```python
import torch

def _softmax(x, axis=-1):
    return torch.softmax(x, dim=axis)
def _gelu(x):
    return torch.nn.functional.gelu(x, approximate="tanh")
def _silu(x):
    return torch.nn.functional.silu(x)
def _sigmoid(x):
    return torch.sigmoid(x)
def _layernorm(x, axis=-1, eps=1e-5):
    m = x.mean(dim=axis, keepdim=True)
    v = x.var(dim=axis, keepdim=True, unbiased=False)
    return (x - m) / torch.sqrt(v + eps)
def _scatter_add(tgt, idx, src, axis=0):
    return tgt.clone().index_add_(axis, idx, src)
def _segment_sum(src, seg, n):
    out = torch.zeros((n,) + src.shape[1:], dtype=src.dtype)
    return out.index_add_(0, seg, src)
def _pad(x, pw):
    flat = tuple(v for pair in reversed(pw) for v in pair)
    return torch.nn.functional.pad(x, flat)

kernel_name = 'gated_mix__grouped_kv_mqa__glu_gated_reglu__prompt'

def setup_inputs():

    _w = (lambda a: (lambda t: t.to(torch.bfloat16) if t.is_floating_point() else t)(torch.as_tensor(a)))
    def _A_setup():
        B, S, D, H = 1, 2048, 1024, 32
        Dh = D // H
        return {
            "x": _w((lambda *s: torch.randn(*s, dtype=torch.bfloat16) * 0.05)(B, S, D)),
            "wq": _w((lambda *s: torch.randn(*s, dtype=torch.bfloat16) * 0.8)(D, H * Dh)),
            "wk": _w((lambda *s: torch.randn(*s, dtype=torch.bfloat16) * 0.8)(D, Dh)),
            "wv": _w((lambda *s: torch.randn(*s, dtype=torch.bfloat16) * 0.05)(D, Dh)),
            "wo": _w((lambda *s: torch.randn(*s, dtype=torch.bfloat16) * 0.05)(H * Dh, D)),
        }
    _A_in = _A_setup()

    def _B_setup():
        B, S, D, F = 1, 2048, 1024, 3584
        return {
            "x": _w((lambda *s: torch.randn(*s, dtype=torch.bfloat16) * 0.05)(B, S, D)),
            "W_gate": _w((lambda *s: torch.randn(*s, dtype=torch.bfloat16) * 1.6)(D, F) * (2.0 / D) ** 0.5),
            "W_up": _w((lambda *s: torch.randn(*s, dtype=torch.bfloat16) * 1.6)(D, F) * (2.0 / D) ** 0.5),
            "W_down": _w((lambda *s: torch.randn(*s, dtype=torch.bfloat16) * 1.6)(F, D) * (1.0 / F) ** 0.5),
        }
    _B_in = _B_setup()

    return {
        "A_x": _A_in["x"],
        "A_wq": _A_in["wq"],
        "A_wk": _A_in["wk"],
        "A_wv": _A_in["wv"],
        "A_wo": _A_in["wo"],
        "B_x": _B_in["x"],
        "B_W_gate": _B_in["W_gate"],
        "B_W_up": _B_in["W_up"],
        "B_W_down": _B_in["W_down"],
        "gate_w": _w((lambda *s: torch.randn(*s, dtype=torch.bfloat16) * 0.05)(1024) * 16.0),
    }

def reference(A_x, A_wq, A_wk, A_wv, A_wo, B_x, B_W_gate, B_W_up, B_W_down, gate_w):
    def _A_ref(x, wq, wk, wv, wo):
        B, S, D = x.shape
        H = 32
        Dh = D // H
        q = (lambda x, *d: x.permute(*d))((x @ wq).reshape(B, S, H, Dh), 0, 2, 1, 3)
        k = x @ wk
        v = x @ wv
        scores = torch.einsum("bhqd,bkd->bhqk", q, k) * (Dh ** -0.5)
        p = _softmax(scores, axis=-1)
        o = torch.einsum("bhqk,bkd->bhqd", p, v)
        return (lambda x, *d: x.permute(*d))(o, 0, 2, 1, 3).reshape(B, S, H * Dh) @ wo

    def _B_ref(x, W_gate, W_up, W_down):
        gate = torch.einsum("bsd,df->bsf", x, W_gate)
        up = torch.einsum("bsd,df->bsf", x, W_up)
        gate = gate * (lambda x, dt: x.to(dt))(gate > 0, gate.dtype)
        h = gate * up
        return torch.einsum("bsf,fd->bsd", h, W_down)

    x = A_x
    g = _sigmoid((x * gate_w).sum(-1, keepdims=True))
    a = _A_ref(x, A_wq, A_wk, A_wv, A_wo)
    b = _B_ref(x, B_W_gate, B_W_up, B_W_down)
    return g * a + (1 - g) * b
```

```python
import re

class Asm:
    def __init__(self):
        self.lines = []
    def __call__(self, s):
        for l in s.split("\n"):
            l = l.strip()
            if l: self.lines.append(l)
    def ext(self, lst):
        for l in lst: self(l)
    def text(self):
        out = []
        for l in self.lines:
            if l.endswith(":") or l.startswith(".") or l.startswith(";"):
                out.append(l)
            else:
                out.append("    " + l)
        return "\n".join(out) + "\n"

def vr(base, n=1, f="v"):
    return f"{f}{base}" if n == 1 else f"{f}[{base}:{base+n-1}]"
def ar(base, n=1): return vr(base, n, "a")
def sr(base, n=1): return vr(base, n, "s")

class Reg:
    def __init__(self, f, base, n): self.f, self.base, self.n = f, base, n
    def __str__(self): return vr(self.base, self.n, self.f)
    def sub(self, off, n=1): return Reg(self.f, self.base + off, n)
    def __getitem__(self, i): return Reg(self.f, self.base + i, 1)

class Alloc:
    def __init__(self, f, start, end): self.f, self.p, self.end = f, start, end
    def get(self, n, align=1):
        self.p = (self.p + align - 1) // align * align
        r = Reg(self.f, self.p, n); self.p += n
        assert self.p <= self.end, f"out of {self.f} regs"
        return r

def interleave(backbone, fillers):
    out = list(fillers.get(-1, []))
    for i, b in enumerate(backbone):
        out.append(b)
        out.extend(fillers.get(i, []))
    assert all(-1 <= k < len(backbone) for k in fillers), (sorted(fillers), len(backbone))
    return out

def kdesc(name, vgpr, accum, sgpr=102):
    return f""".section .rodata,"a"
.p2align 6
.amdhsa_kernel {name}
  .amdhsa_next_free_vgpr {vgpr}
  .amdhsa_next_free_sgpr {sgpr}
  .amdhsa_accum_offset {accum}
  .amdhsa_group_segment_fixed_size 0
  .amdhsa_kernarg_size 104
  .amdhsa_user_sgpr_count 2
  .amdhsa_user_sgpr_kernarg_segment_ptr 1
  .amdhsa_system_sgpr_workgroup_id_x 1
  .amdhsa_float_denorm_mode_32 3
.end_amdhsa_kernel
.text
"""

_reg_re = re.compile(r"\b([vas])(?:\[(\d+):(\d+)\]|(\d+)\b)")
def regs_of(op):
    out = set()
    for m in _reg_re.finditer(op):
        f = m.group(1)
        if m.group(2) is not None:
            for i in range(int(m.group(2)), int(m.group(3)) + 1): out.add((f, i))
        else:
            out.add((f, int(m.group(4))))
    return out

TRANS = ("v_exp_", "v_log_", "v_rcp_", "v_rsq_", "v_sqrt_", "v_sin_", "v_cos_")
def parse(line):
    line = line.split(";")[0].strip()
    if not line or line.endswith(":") or line.startswith("."): return None
    p = line.split(None, 1)
    mn = p[0]; ops = [o.strip() for o in p[1].split(",")] if len(p) > 1 else []
    return mn, ops

def check_hazards(lines, name=""):
    hist = []
    probs = []
    ins = [(l, parse(l)) for l in lines]
    ins = [(l, p) for l, p in ins if p]
    def states(mn, ops):
        if mn == "s_nop": return int(ops[0], 0) + 1
        return 1
    pos = 0; recs = []
    for l, (mn, ops) in ins:
        isM = mn.startswith("v_mfma")
        isV = mn.startswith("v_") and not isM
        isMem = mn.startswith(("buffer_", "global_", "ds_", "flat_"))
        dst = set(); src = set(); srcC = set(); srcAB = set()
        if isM:
            dst = regs_of(ops[0]); srcAB = regs_of(ops[1]) | regs_of(ops[2]); srcC = regs_of(ops[3]); src = srcAB | srcC
        elif isV:
            dst = regs_of(ops[0]); src = set().union(*[regs_of(o) for o in ops[1:]]) if len(ops) > 1 else set()
            if mn.startswith(("v_fmac", "v_dot2c", "v_permlane", "v_writelane")): src |= dst
            if mn.startswith("v_permlane"): dst |= regs_of(ops[1])
            if mn.startswith("v_cmp") and ops[0] == "vcc": dst = {("s", "vcc")}
            if mn.startswith("v_cndmask") and (len(ops) < 4 or ops[3] == "vcc"): src |= {("s", "vcc")}
            if mn.startswith(("v_add_co", "v_sub_co", "v_addc_co")):
                dst |= regs_of(ops[1]) | ({("s","vcc")} if ops[1]=="vcc" else set())
        elif isMem:
            allr = set().union(*[regs_of(o) for o in ops]) if ops else set()
            if "load" in mn or mn.startswith("ds_read") or mn.startswith("ds_bperm") or mn.startswith("ds_swizzle"):
                if " lds" in l or "load_lds" in mn: src = allr
                else:
                    dst = regs_of(ops[0]); src = set().union(*[regs_of(o) for o in ops[1:]])
            else: src = allr
        else:
            src = set().union(*[regs_of(o) for o in ops[1:]]) if len(ops) > 1 else set()
            if ops and not mn.startswith(("s_cmp", "s_waitcnt", "s_cbranch", "s_branch", "s_nop", "s_barrier")): dst = regs_of(ops[0])
            if ops and ops[0] == "m0": dst = {("s", "m0")}
        for r in reversed(recs):
            d = pos - r["pos"] - r["st"]
            d = pos - r["end"]
            if d > 24: break
            need = 0; why = ""
            if r["isM"]:
                p8 = r["passes"] == 8
                if isM:
                    if r["dst"] & srcAB: need, why = (12 if p8 else 8), "mfma D->AB"
                    elif r["dst"] & srcC and not (r["dst"] == srcC and r["mn"] == mn): need, why = (10 if p8 else 6), "mfma D->C partial"
                    elif (r["dst"] & dst) and not (r["dst"] == srcC and r["mn"] == mn) : need, why = (10 if p8 else 6), "mfma WAW"
                elif isV or isMem:
                    if r["dst"] & (src | dst): need, why = (12 if p8 else 8), "mfma D->valu/mem"
                    if isV and (r["srcC"] & dst): need, why = max(need, 7 if p8 else 3), why + " mfma C WAR"
            elif r["isV"]:
                vd = {x for x in r["dst"] if x[0] in "va"}
                sd = {x for x in r["dst"] if x[0] == "s"}
                if isM and vd & src: need, why = 2, "valu->mfma"
                if r["mn"].startswith(TRANS) and isV and not mn.startswith(TRANS) and vd & src: need, why = 1, "trans->valu"
                if r["mn"].startswith(TRANS) and isMem and vd & src: need, why = 1, "trans->mem"
                if mn.startswith("v_permlane") and vd & src: need, why = 2, "valu->permlane"
                if ("dpp" in mn or "row_" in l or "quad_perm" in l) and vd & src: need, why = 2, "valu->dpp"
                if mn.startswith(("v_readfirstlane", "v_readlane")) and vd & src: need, why = 1, "valu->readlane"
                if sd & src:
                    if isMem: need, why = 5, "valu sgpr->vmem"
                    elif isV: need, why = 2, "valu sgpr->valu"
            elif r["isMem"]:
                if ("store" in r["mn"]) and ("x4" in r["mn"] or "x3" in r["mn"]) and (isV or isM) and (r["data"] & dst): need, why = 2, "store data WAR"
            else:
                if ("s", "m0") in r["dst"] and isMem and (" lds" in l or "load_lds" in mn): need, why = 1, "m0->lds dma"
            if need > d:
                probs.append(f"{name}: [{why}] need {need} have {d}: '{r['l']}' -> '{l}'")
        st = states(mn, ops)
        recs.append(dict(l=l, mn=mn, pos=pos, st=st, end=pos + 1 if mn != "s_nop" else pos + st, isM=isM, isV=isV, isMem=isMem,
                         dst=dst, srcC=srcC, passes=(8 if "32x32" in mn else 4), data=(regs_of(ops[0]) if isMem and ops else set())))
        pos += st
    return probs
```

```python
AF_OFF = 0
AF_SIZE = 144 * 128 * 1024
QF_OFF = 0x1200000
KV_OFF = 0x1600000
G_OFF  = 0x1640000
WS_USED = 0x1700000
import math
QSCALE = (32 ** -0.5) * math.log2(math.e)
import struct
def f2u(f): return struct.unpack("<I", struct.pack("<f", f))[0]
```

```python
from asmlib import *
from common import *

def gen_k1(name="k1_kernel", opt=None):
    opt = opt or {}
    A = Asm()
    S_X, S_W0, S_W1, S_KV, S_WS = 8, 12, 16, 20, 24
    sW = 38
    sRB, sCB = 39, 40
    sP = 41
    sSoX = 42
    sSoW = 50
    sM0X, sM0W, sM0K = 54, 55, 56
    sStepW = 57
    sIt = 58
    sT0, sT1, sT2, sT3 = 60, 61, 62, 63
    sNX, sNW, sNK = 64, 65, 66
    sC = 68
    vL = 1
    vXo = [2, 3]; vWo = [4, 5]; vKo = 6
    vXa = [7, 8]; vWa = [9, 10, 11, 12]; vSXa = [13, 14]; vSWa = 15
    vT = 16
    acc = [[None]*8 for _ in range(8)]
    p = 32
    for i in range(7):
        for j in range(8):
            acc[i][j] = Reg("v", p, 4); p += 4
    assert p == 256
    RA = [[Reg("a", 64*s + 4*i, 4) for i in range(8)] for s in range(2)]
    RB = [[Reg("a", 64*s + 32 + 4*j, 4) for j in range(8)] for s in range(2)]
    SA = [Reg("a", 128 + 8*s, 4) for s in range(2)]
    SB = [Reg("a", 132 + 8*s, 4) for s in range(2)]
    sacc = Reg("a", 144, 4)
    for j in range(8): acc[7][j] = Reg("a", 148 + 4*j, 4)
    NA = 180

    A(f".globl {name}\n.p2align 8\n.type {name},@function\n{name}:")
    A("s_cmp_ge_u32 s2, 256\ns_cbranch_scc1 K1_END")
    A("s_load_dwordx4 s[4:7], s[0:1], 0")
    A("s_load_dwordx4 s[28:31], s[0:1], 16")
    A("s_load_dwordx4 s[32:35], s[0:1], 48")
    A("s_load_dwordx2 s[36:37], s[0:1], 96")
    A(f"v_lshrrev_b32 v{vT}, 6, v0\nv_and_b32 v{vL}, 63, v0")
    A(f"v_readfirstlane_b32 s{sW}, v{vT}")
    A(f"""s_and_b32 s{sT0}, s2, 1
    s_lshl_b32 s{sT0}, s{sT0}, 2
    s_bfe_u32 s{sT1}, s2, 0x20003
    s_add_u32 s{sRB}, s{sT0}, s{sT1}
    s_bfe_u32 s{sT0}, s2, 0x20001
    s_lshr_b32 s{sT1}, s2, 5
    s_lshl_b32 s{sT1}, s{sT1}, 2
    s_add_u32 s{sCB}, s{sT0}, s{sT1}""")
    A("s_waitcnt lgkmcnt(0)")
    A(f"""s_lshl_b32 s{sT0}, s{sRB}, 19
    s_add_u32 s{S_X}, s4, s{sT0}
    s_addc_u32 s{S_X+1}, s5, 0
    s_mov_b32 s{S_X+2}, 0x80000
    s_mov_b32 s{S_X+3}, 0x20000""")
    A(f"""s_cmp_lt_u32 s{sCB}, 4
    s_cselect_b32 s{S_W0}, s6, s32
    s_cselect_b32 s{S_W0+1}, s7, s33
    s_cselect_b32 s{S_W1}, s6, s34
    s_cselect_b32 s{S_W1+1}, s7, s35
    s_mov_b32 s{sP}, 7168
    s_cselect_b32 s{sP}, 2048, s{sP}
    s_lshl_b32 s{sT0}, s{sCB}, 9
    s_add_u32 s{sT1}, s{sT0}, 256
    s_sub_u32 s{sT2}, s{sCB}, 4
    s_lshl_b32 s{sT2}, s{sT2}, 8
    s_cmp_lt_u32 s{sCB}, 4
    s_cselect_b32 s{sT0}, s{sT0}, s{sT2}
    s_cselect_b32 s{sT1}, s{sT1}, s{sT2}
    s_add_u32 s{S_W0}, s{S_W0}, s{sT0}
    s_addc_u32 s{S_W0+1}, s{S_W0+1}, 0
    s_add_u32 s{S_W1}, s{S_W1}, s{sT1}
    s_addc_u32 s{S_W1+1}, s{S_W1+1}, 0
    s_lshl_b32 s{sStepW}, s{sP}, 6
    s_mov_b32 s{S_W0+2}, s{sStepW}
    s_mov_b32 s{S_W1+2}, s{sStepW}
    s_mov_b32 s{S_W0+3}, 0x20000
    s_mov_b32 s{S_W1+3}, 0x20000""")
    A(f"""s_bitcmp1_b32 s{sCB}, 0
    s_cselect_b32 s{S_KV}, s30, s28
    s_cselect_b32 s{S_KV+1}, s31, s29
    s_mov_b32 s{S_KV+2}, 4096
    s_mov_b32 s{S_KV+3}, 0x20000
    s_mov_b32 s{S_WS}, s36
    s_mov_b32 s{S_WS+1}, s37
    s_mov_b32 s{S_WS+2}, {WS_USED}
    s_mov_b32 s{S_WS+3}, 0x20000""")
    for e in range(1, 8): A(f"s_mov_b32 s{sSoX+e}, {e*16384 - (e&3)*1024}")
    for e in range(1, 4):
        A(f"s_mul_i32 s{sSoW+e}, s{sP}, {4*e}\ns_sub_u32 s{sSoW+e}, s{sSoW+e}, {e*1024}")
    A(f"""s_lshl_b32 s{sM0X}, s{sW}, 13
    s_lshl_b32 s{sM0W}, s{sW}, 12
    s_add_u32 s{sM0W}, s{sM0W}, 65536
    s_lshl_b32 s{sM0K}, s{sW}, 10
    s_add_u32 s{sM0K}, s{sM0K}, 131072""")
    t0, t1, t2, t3 = vT, vT+1, vT+2, vT+3
    A(f"""s_lshl_b32 s{sT0}, s{sW}, 6
    v_lshrrev_b32 v{t0}, 3, v{vL}
    v_add_u32 v{t0}, s{sT0}, v{t0}
    v_lshlrev_b32 v{t0}, 11, v{t0}
    v_lshrrev_b32 v{t1}, 4, v{vL}
    v_and_b32 v{t2}, 7, v{vL}
    v_xor_b32 v{t2}, v{t2}, v{t1}
    v_lshl_add_u32 v{vXo[0]}, v{t2}, 4, v{t0}
    v_xor_b32 v{vXo[1]}, 64, v{vXo[0]}""")
    A(f"""s_lshl_b32 s{sT0}, s{sW}, 4
    v_add_u32 v{t0}, s{sT0}, v{t1}
    v_mul_lo_u32 v{t0}, v{t0}, s{sP}
    v_and_b32 v{t2}, 15, v{vL}
    v_lshlrev_b32 v{t3}, 1, v{t1}
    v_xor_b32 v{t2}, v{t2}, v{t3}
    v_lshlrev_b32 v{t2}, 4, v{t2}
    v_add_u32 v{vWo[0]}, v{t0}, v{t2}
    v_xor_b32 v{t2}, 128, v{t2}
    v_add_u32 v{vWo[1]}, v{t0}, v{t2}""")
    A(f"""v_lshrrev_b32 v{t0}, 5, v{vL}
    v_lshlrev_b32 v{t0}, 1, v{t0}
    v_xor_b32 v{t0}, v{t0}, v{vL}
    v_lshlrev_b32 v{t0}, 4, v{t0}
    s_lshl_b32 s{sT0}, s{sW}, 10
    v_add_u32 v{vKo}, s{sT0}, v{t0}""")

    def dma_list(p):
        sl = []
        for e in range(8):
            pre = [f"s_add_u32 m0, s{sM0X}, {p*32768 + (e>>2)*4096}"] if (e & 3) == 0 else []
            so = "0" if e == 0 else f"s{sSoX+e}"
            sl.append((pre, f"buffer_load_dwordx4 v{vXo[e&1]}, s[{S_X}:{S_X+3}], {so} offen offset:{(e&3)*1024} lds"))
        for sub in range(2):
            srd = S_W0 if sub == 0 else S_W1
            for e in range(4):
                pre = [f"s_add_u32 m0, s{sM0W}, {p*32768 + sub*16384}"] if e == 0 else []
                so = "0" if e == 0 else f"s{sSoW+e}"
                sl.append((pre, f"buffer_load_dwordx4 v{vWo[e>>1]}, s[{srd}:{srd+3}], {so} offen offset:{e*1024} lds"))
        sl.append(([f"s_add_u32 m0, s{sM0K}, {p*4096}"], f"buffer_load_dwordx4 v{vKo}, s[{S_KV}:{S_KV+3}], 0 offen lds"))
        return sl
    def advance():
        return [f"s_add_u32 s{S_X}, s{S_X}, 128", f"s_addc_u32 s{S_X+1}, s{S_X+1}, 0",
                f"s_add_u32 s{S_W0}, s{S_W0}, s{sStepW}", f"s_addc_u32 s{S_W0+1}, s{S_W0+1}, 0",
                f"s_add_u32 s{S_W1}, s{S_W1}, s{sStepW}", f"s_addc_u32 s{S_W1+1}, s{S_W1+1}, 0",
                f"s_add_u32 s{S_KV}, s{S_KV}, 4096", f"s_addc_u32 s{S_KV+1}, s{S_KV+1}, 0"]
    for p_ in range(2):
        for pre, d in dma_list(p_):
            A.ext(pre)
            if pre: A("s_nop 0")
            A(d)
        A.ext(advance())
    A(f"""v_and_b32 v{t0}, 15, v{vL}
    v_lshrrev_b32 v{t2}, 1, v{t0}
    v_xor_b32 v{t2}, v{t2}, v{t1}
    v_lshlrev_b32 v{t2}, 4, v{t2}
    v_lshl_add_u32 v{t2}, v{t0}, 7, v{t2}
    s_lshr_b32 s{sT0}, s{sW}, 1
    s_lshl_b32 s{sT1}, s{sT0}, 14
    v_add_u32 v{vXa[0]}, s{sT1}, v{t2}
    v_xor_b32 v{vXa[1]}, 64, v{vXa[0]}
    s_bfe_u32 s{sT1}, s{sCB}, 0x30001
    s_lshl_b32 s{sT1}, s{sT1}, 1
    s_add_u32 s{sT1}, s{sT1}, s{sT0}
    s_lshl_b32 s{sT1}, s{sT1}, 11
    v_add_u32 v{vSXa[0]}, s{sT1}, v{t2}
    v_xor_b32 v{vSXa[1]}, 64, v{vSXa[0]}""")
    A(f"""v_bfe_u32 v{t0}, v{vL}, 2, 2
    v_lshl_add_u32 v{t2}, v{t1}, 3, v{t0}
    v_and_b32 v{t3}, 1, v{t1}
    v_lshl_or_b32 v{t0}, v{t3}, 2, v{t0}
    v_and_b32 v{vT+4}, 3, v{vL}
    v_lshlrev_b32 v{vT+4}, 3, v{vT+4}
    v_lshl_add_u32 v{vT+5}, v{t2}, 8, v{vT+4}
    v_add_u32 v{vT+5}, 0x10000, v{vT+5}
    s_and_b32 s{sT0}, s{sW}, 1
    s_lshl_b32 s{sT1}, s{sT0}, 2""")
    for ii in range(4):
        A(f"""s_add_u32 s{sT2}, s{sT1}, {ii}
        v_xor_b32 v{vT+6}, s{sT2}, v{t0}
        v_lshl_add_u32 v{vWa[ii]}, v{vT+6}, 5, v{vT+5}""")
    A(f"""v_xor_b32 v{vT+6}, s{sT0}, v{t3}
    v_lshl_add_u32 v{vT+6}, v{vT+6}, 5, v{vT+4}
    v_lshl_add_u32 v{vT+6}, v{t2}, 6, v{vT+6}
    v_add_u32 v{vSWa}, 0x20000, v{vT+6}""")
    for i in range(8):
        for j in range(8):
            for r in range(4):
                a = acc[i][j][r]
                A(f"v_mov_b32 {a}, 0" if a.f == "v" else f"v_accvgpr_write_b32 {a}, 0")
    for r in range(4): A(f"v_accvgpr_write_b32 {sacc[r]}, 0")

    def reads(p, b, s):
        L = []
        for j in range(8):
            L.append(f"ds_read_b128 {RB[s][j]}, v{vXa[b]} offset:{p*32768 + j*2048}")
        for i in range(8):
            for hf in range(2):
                L.append(f"ds_read_b64_tr_b16 {RA[s][i].sub(2*hf, 2)}, v{vWa[i&3]} offset:{p*32768 + (i>>2)*16384 + b*8192 + hf*1024}")
        L.append(f"ds_read_b128 {SB[s]}, v{vSXa[b]} offset:{p*32768}")
        for hf in range(2):
            L.append(f"ds_read_b64_tr_b16 {SA[s].sub(2*hf, 2)}, v{vSWa} offset:{p*4096 + b*2048 + hf*256}")
        return L
    def mfmas(s):
        L = []
        for i in range(8):
            for j in range(8):
                L.append(f"v_mfma_f32_16x16x32_bf16 {acc[i][j]}, {RA[s][i]}, {RB[s][j]}, {acc[i][j]}")
            if i == 3:
                L.append(f"v_mfma_f32_16x16x32_bf16 {sacc}, {SA[s]}, {SB[s]}, {sacc}")
        return L

    A("s_waitcnt vmcnt(17)\ns_barrier")
    A.ext(reads(0, 0, 0))
    A(f"s_mov_b32 s{sIt}, 0")
    A("s_waitcnt lgkmcnt(0)")
    A(".p2align 6\nK1_LOOP:")
    body = []
    rd_stride0 = opt.get("rd_stride0", 2)
    bar_gap = opt.get("bar_gap", 60)
    for p_ in range(2):
        f = {}
        rds = reads(p_, 1, 1)
        for k, r in enumerate(rds): f.setdefault(k*rd_stride0, []).append(r)
        f.setdefault(bar_gap, []).extend(["s_waitcnt vmcnt(0) lgkmcnt(0)", "s_barrier"])
        if p_ == 0:
            f.setdefault(1, []).append(f"s_cmp_eq_u32 s{sIt}, 7")
            f.setdefault(3, []).append(f"s_cselect_b32 s{S_X+2}, 0, s{S_X+2}")
            f.setdefault(5, []).append(f"s_cselect_b32 s{S_W0+2}, 0, s{S_W0+2}")
            f.setdefault(7, []).append(f"s_cselect_b32 s{S_W1+2}, 0, s{S_W1+2}")
            f.setdefault(9, []).append(f"s_cselect_b32 s{S_KV+2}, 0, s{S_KV+2}")
        m = mfmas(0)
        dl = dma_list(p_)
        body += interleave(m, f)
        f = {}
        rds = reads(p_ ^ 1, 0, 0)
        order = opt.get("h1_order", "alt")
        g = 0
        gaps_d = []; gaps_r = []
        if order == "alt":
            for k in range(17): gaps_d.append(2*k)
            for k in range(27): gaps_r.append(2*k + 1 if k < 17 else 34 + (k - 17)*2)
        for k, (pre, d) in enumerate(dl):
            if pre: f.setdefault(gaps_d[k] - 1, []).extend(pre)
            f.setdefault(gaps_d[k], []).append(d)
        for k, r in enumerate(rds): f.setdefault(gaps_r[k], []).append(r)
        adv = advance()
        for k, a in enumerate(adv): f.setdefault(35 + 2*k, []).append(a)
        if p_ == 1:
            f.setdefault(60, []).append(f"s_add_u32 s{sIt}, s{sIt}, 1")
            f.setdefault(61, []).append(f"s_cmp_lt_u32 s{sIt}, 8")
        f.setdefault(63, []).append("s_waitcnt lgkmcnt(0)")
        if p_ == 1:
            f.setdefault(64, []).append("s_cbranch_scc1 K1_LOOP")
        body += interleave(mfmas(1), f)
    A.ext(body)
    probs = check_hazards(body + body, "k1loop")
    E = Asm()
    E("s_nop 7")
    E(f"v_lshlrev_b32 v{t0}, 4, v{vL}")
    E(f"s_lshr_b32 s{sT0}, s{sW}, 1\ns_and_b32 s{sT1}, s{sW}, 1")
    E(f"s_cmp_ge_u32 s{sCB}, 16\ns_cbranch_scc1 K1_NOSIDE")
    E(f"""s_bfe_u32 s{sT2}, s{sCB}, 0x30001
    s_lshl_b32 s{sT3}, s{sRB}, 3
    s_add_u32 s{sT2}, s{sT2}, s{sT3}
    s_lshl_b32 s{sT2}, s{sT2}, 12
    s_add_u32 s{sT2}, s{sT2}, {KV_OFF}""")
    u = vT + 4
    for r in range(4): E(f"v_accvgpr_read_b32 v{u+r}, {sacc[r]}")
    E(f"v_cvt_pk_bf16_f32 v{u+4}, v{u}, v{u+1}\nv_cvt_pk_bf16_f32 v{u+5}, v{u+2}, v{u+3}")
    E(f"s_bitcmp1_b32 s{sCB}, 0\ns_cbranch_scc1 K1_SIDEV")
    E(f"""v_bfe_u32 v{u+6}, v{vL}, 3, 1
    v_lshlrev_b32 v{u+6}, 4, v{u+6}
    v_and_b32 v{u+7}, 7, v{vL}
    v_add_u32 v{u+6}, v{u+6}, v{u+7}
    v_bfe_u32 v{u+7}, v{vL}, 4, 1
    v_lshl_add_u32 v{u+6}, v{u+7}, 5, v{u+6}
    v_lshlrev_b32 v{u+6}, 4, v{u+6}
    v_lshrrev_b32 v{u+7}, 5, v{vL}
    v_lshl_add_u32 v{u+6}, v{u+7}, 10, v{u+6}
    s_lshl_b32 s{sT3}, s{sT0}, 7
    s_add_u32 s{sT2}, s{sT2}, s{sT3}
    s_lshl_b32 s{sT3}, s{sT1}, 3
    s_add_u32 s{sT2}, s{sT2}, s{sT3}
    buffer_store_dwordx2 v[{u+4}:{u+5}], v{u+6}, s[{S_WS}:{S_WS+3}], s{sT2} offen
    s_branch K1_NOSIDE""")
    E("K1_SIDEV:")
    E(f"""v_lshrrev_b32 v{u+6}, 5, v{vL}
    v_lshlrev_b32 v{u+6}, 4, v{u+6}
    v_bfe_u32 v{u+7}, v{vL}, 4, 1
    v_lshl_add_u32 v{u+6}, v{u+7}, 2, v{u+6}
    v_bfe_u32 v{u+7}, v{vL}, 2, 1
    v_lshl_add_u32 v{u+6}, v{u+7}, 5, v{u+6}
    v_lshlrev_b32 v{u+6}, 4, v{u+6}
    v_bfe_u32 v{u+7}, v{vL}, 3, 1
    v_lshl_add_u32 v{u+6}, v{u+7}, 10, v{u+6}
    v_and_b32 v{u+7}, 3, v{vL}
    v_lshl_add_u32 v{u+6}, v{u+7}, 1, v{u+6}
    s_lshl_b32 s{sT3}, s{sT1}, 7
    s_add_u32 s{sT2}, s{sT2}, s{sT3}
    s_lshl_b32 s{sT3}, s{sT0}, 3
    s_add_u32 s{sT2}, s{sT2}, s{sT3}
    s_add_u32 s{sT2}, s{sT2}, 2048
    buffer_store_short v{u+4}, v{u+6}, s[{S_WS}:{S_WS+3}], s{sT2} offen
    buffer_store_short_d16_hi v{u+4}, v{u+6}, s[{S_WS}:{S_WS+3}], s{sT2} offen offset:16
    buffer_store_short v{u+5}, v{u+6}, s[{S_WS}:{S_WS+3}], s{sT2} offen offset:32
    buffer_store_short_d16_hi v{u+5}, v{u+6}, s[{S_WS}:{S_WS+3}], s{sT2} offen offset:48""")
    E("K1_NOSIDE:")
    E(f"""s_lshl_b32 s{sT2}, s{sRB}, 4
    s_lshl_b32 s{sT0}, s{sT0}, 3
    s_add_u32 s{sT2}, s{sT2}, s{sT0}""")
    E(f"s_cmp_lt_u32 s{sCB}, 4\ns_cbranch_scc1 K1_EPIQ")
    stflag = opt.get("stflag", "")
    E(f"""s_sub_u32 s{sT3}, s{sCB}, 4
    s_lshl_b32 s{sT3}, s{sT3}, 2
    s_lshl_b32 s{sT1}, s{sT1}, 1
    s_add_u32 s{sT3}, s{sT3}, s{sT1}
    s_lshl_b32 s{sT3}, s{sT3}, 17
    s_lshl_b32 s{sT2}, s{sT2}, 10
    s_add_u32 s{sNX}, s{sT3}, s{sT2}
    s_add_u32 s{sNX+1}, s{sNX}, 4096
    s_add_u32 s{sNX+2}, s{sNX}, 131072
    s_add_u32 s{sNX+3}, s{sNX}, {131072+4096}""")
    H = Asm()
    for fb in range(2):
        for j in range(8):
            G0, G1, U0, U1 = acc[2*fb][j], acc[2*fb+1][j], acc[4+2*fb][j], acc[5+2*fb][j]
            if U1.f == "a":
                T = Reg("v", vT + 4 + 4*(j % 3), 4)
                for r in range(4): H(f"v_accvgpr_read_b32 {T[r]}, {U1[r]}")
                U1 = T
            for G in (G0, G1):
                for r in range(4): H(f"v_max_f32 {G[r]}, 0, {G[r]}")
            for G, U in ((G0, U0), (G1, U1)):
                for r in (0, 2): H(f"v_pk_mul_f32 {G.sub(r,2)}, {G.sub(r,2)}, {U.sub(r,2)}")
            H(f"v_cvt_pk_bf16_f32 {U0[0]}, {G0[0]}, {G0[1]}\nv_cvt_pk_bf16_f32 {U0[1]}, {G0[2]}, {G0[3]}")
            H(f"v_cvt_pk_bf16_f32 {U0[2]}, {G1[0]}, {G1[1]}\nv_cvt_pk_bf16_f32 {U0[3]}, {G1[2]}, {G1[3]}")
            H(f"buffer_store_dwordx4 {U0}, v{t0}, s[{S_WS}:{S_WS+3}], s{sNX + 2*fb + (j>>2)} offen offset:{(j&3)*1024} {stflag}")
    E.ext(H.lines)
    E("s_endpgm")
    E("K1_EPIQ:")
    E(f"""s_lshl_b32 s{sT2}, s{sT2}, 5
    s_lshl_b32 s{sT3}, s{sCB}, 3
    s_add_u32 s{sT2}, s{sT2}, s{sT3}
    s_lshl_b32 s{sT1}, s{sT1}, 1
    s_add_u32 s{sT2}, s{sT2}, s{sT1}
    s_lshl_b32 s{sT2}, s{sT2}, 10
    s_add_u32 s{sT2}, s{sT2}, {QF_OFF}
    s_mov_b32 s{sC}, {f2u(QSCALE):#x}
    s_mov_b32 s{sC+1}, {f2u(QSCALE):#x}""")
    Q = Asm()
    for j in range(8):
        for st in range(2):
            for hh in range(2):
                F0, F1 = acc[4*st + 2*hh][j], acc[4*st + 2*hh + 1][j]
                if F1.f == "a":
                    T = Reg("v", vT + 4 + 4*(j % 3), 4)
                    for r in range(4): Q(f"v_accvgpr_read_b32 {T[r]}, {F1[r]}")
                    F1 = T
                for F in (F0, F1):
                    for r in (0, 2): Q(f"v_pk_mul_f32 {F.sub(r,2)}, {F.sub(r,2)}, s[{sC}:{sC+1}]")
                Q(f"v_cvt_pk_bf16_f32 {F0[0]}, {F0[0]}, {F0[1]}\nv_cvt_pk_bf16_f32 {F0[1]}, {F0[2]}, {F0[3]}")
                Q(f"v_cvt_pk_bf16_f32 {F0[2]}, {F1[0]}, {F1[1]}\nv_cvt_pk_bf16_f32 {F0[3]}, {F1[2]}, {F1[3]}")
                if hh == 0:
                    Q(f"s_add_u32 s{sT3}, s{sT2}, {j*32768 + st*4096}")
                Q(f"buffer_store_dwordx4 {F0}, v{t0}, s[{S_WS}:{S_WS+3}], s{sT3} offen offset:{hh*1024} {stflag}")
    E.ext(Q.lines)
    E("K1_END:\ns_endpgm")
    probs += check_hazards(body[-20:] + E.lines, "k1epi")
    probs += check_hazards(A.lines, "k1pro")
    A.ext(E.lines)
    for p_ in probs: print("HAZARD", p_)
    launch = f"; @launch kernel={name} grid=(256,1,1) block=(256,1,1) lds=139264"
    return launch, A.text(), kdesc(name, 256 + NA, 256)
```

```python
from asmlib import *
from common import *

LOG2E = math.log2(math.e)

def gen_k2(name="k2_kernel", opt=None):
    opt = opt or {}
    A = Asm()
    S_WS, S_X, S_GW, S_KVD = 8, 12, 16, 20
    sW, sMB, sHG = 24, 25, 26
    sCur, sNext, sFree = 27, 28, 29
    sIt = 30
    sT0, sT1, sT2, sT3 = 32, 33, 34, 35
    sKVo = 36
    sM0 = 37
    sQo = 38
    sEx = 40
    va = Alloc("v", 1, 256)
    vL = va.get(1); vL16 = va.get(1); vCur = va.get(1); vNxt = va.get(1); vG = va.get(1)
    T = va.get(12, 4)
    S = [va.get(16, 4) for _ in range(2)]
    P = [va.get(8, 4) for _ in range(2)]
    O = [va.get(16, 4) for _ in range(2)]
    Lc = [va.get(4, 4) for _ in range(2)]
    Q = [[va.get(4, 4) for t in range(2)] for ab in range(2)]
    K = [[va.get(4, 4) for t in range(2)] for b in range(2)]
    V = [[va.get(4, 4) for t in range(2)] for b in range(2)]
    ONES = va.get(4, 4)
    GX = [va.get(8, 4) for _ in range(4)]
    GW = va.get(8, 4)
    NEG = [va.get(16, 4) for _ in range(2)]
    nv = va.p
    GLDS = 98304

    A(f".globl {name}\n.p2align 8\n.type {name},@function\n{name}:")
    A("s_cmp_ge_u32 s2, 256\ns_cbranch_scc1 K2_END")
    A("s_load_dwordx2 s[4:5], s[0:1], 0\ns_load_dwordx2 s[6:7], s[0:1], 72\ns_load_dwordx2 s[42:43], s[0:1], 96")
    A(f"v_lshrrev_b32 {T[0]}, 6, v0\nv_and_b32 {vL}, 63, v0\nv_readfirstlane_b32 s{sW}, {T[0]}")
    A(f"v_lshlrev_b32 {vL16}, 4, {vL}")
    A(f"s_lshr_b32 s{sMB}, s2, 1\ns_and_b32 s{sHG}, s2, 1")
    A("s_waitcnt lgkmcnt(0)")
    A(f"""s_mov_b32 s{S_WS}, s42
    s_mov_b32 s{S_WS+1}, s43
    s_mov_b32 s{S_WS+2}, {WS_USED}
    s_mov_b32 s{S_WS+3}, 0x20000
    s_mov_b32 s{S_KVD}, s42
    s_mov_b32 s{S_KVD+1}, s43
    s_mov_b32 s{S_KVD+2}, {KV_OFF + 262144}
    s_mov_b32 s{S_KVD+3}, 0x20000
    s_mov_b32 s{S_X}, s4
    s_mov_b32 s{S_X+1}, s5
    s_mov_b32 s{S_X+2}, 0x400000
    s_mov_b32 s{S_X+3}, 0x20000
    s_mov_b32 s{S_GW}, s6
    s_mov_b32 s{S_GW+1}, s7
    s_mov_b32 s{S_GW+2}, 2048
    s_mov_b32 s{S_GW+3}, 0x20000""")
    A(f"""s_lshl_b32 s{sT0}, s{sMB}, 2
    s_add_u32 s{sT0}, s{sT0}, s{sW}
    s_lshl_b32 s{sT0}, s{sT0}, 13
    s_add_u32 s{sT1}, s{sT0}, 4096""")
    for h in range(2): A(f"buffer_load_dwordx4 {GW.sub(4*h,4)}, {vL16}, s[{S_GW}:{S_GW+3}], 0 offen offset:{h*1024}")
    for r in range(4):
        for h in range(2):
            A(f"buffer_load_dwordx4 {GX[r].sub(4*h,4)}, {vL16}, s[{S_X}:{S_X+3}], s{sT0 + (r>>1)} offen offset:{(r&1)*2048 + h*1024}")
    A(f"""s_lshl_b32 s{sQo}, s{sMB}, 5
    s_lshl_b32 s{sT2}, s{sHG}, 4
    s_add_u32 s{sQo}, s{sQo}, s{sT2}
    s_lshl_b32 s{sT2}, s{sW}, 2
    s_add_u32 s{sQo}, s{sQo}, s{sT2}
    s_lshl_b32 s{sT2}, s{sQo}, 10
    s_add_u32 s{sT2}, s{sT2}, {QF_OFF}
    v_bfe_u32 {T[0]}, {vL}, 4, 1
    v_and_b32 {T[1]}, 15, {vL}
    v_lshrrev_b32 {T[2]}, 5, {vL}
    v_lshl_add_u32 {T[1]}, {T[2]}, 4, {T[1]}
    v_lshlrev_b32 {T[1]}, 4, {T[1]}
    v_lshl_add_u32 {T[3]}, {T[0]}, 10, {T[1]}""")
    for ab in range(2):
        for t in range(2):
            A(f"buffer_load_dwordx4 {Q[ab][t]}, {T[3]}, s[{S_WS}:{S_WS+3}], s{sT2} offen offset:{ab*2048 + t*512}")
    A(f"s_lshl_b32 s{sM0}, s{sW}, 13\ns_add_u32 s{sKVo}, s{sM0}, {KV_OFF}")
    def dma(slot_expr_sgpr):
        L = []
        for e in range(8):
            pre = []
            if e == 0: pre = [f"s_add_u32 m0, s{slot_expr_sgpr}, s{sM0}"]
            if e == 4: pre = [f"s_add_u32 m0, m0, 4096", f"s_add_u32 s{sKVo}, s{sKVo}, 4096"]
            L.append((pre, f"buffer_load_dwordx4 {vL16}, s[{S_KVD}:{S_KVD+3}], s{sKVo} offen offset:{(e&3)*1024} lds"))
        return L
    post_dma = f"s_add_u32 s{sKVo}, s{sKVo}, {32768 - 4096}"
    A(f"s_mov_b32 s{sCur}, 0\ns_mov_b32 s{sNext}, 32768\ns_mov_b32 s{sFree}, 65536")
    for sl in (sCur, sNext):
        for pre, d in dma(sl):
            A.ext(pre)
            if pre: A("s_nop 0")
            A(d)
        A(post_dma)
    for ab in range(2):
        for r in range(16): A(f"v_mov_b32 {O[ab][r]}, 0")
        for r in range(4): A(f"v_mov_b32 {Lc[ab][r]}, 0")
    for r in range(8): A(f"v_mov_b32 {P[1][r]}, 0")
    for t in range(2):
        for r in range(4): A(f"v_mov_b32 {V[1][t][r]}, 0")
    A(f"""v_lshrrev_b32 {T[4]}, 2, {vL}
    v_lshrrev_b32 {T[5]}, 4, {vL}
    v_xor_b32 {T[4]}, {T[4]}, {T[5]}
    v_and_b32 {T[4]}, 1, {T[4]}
    v_cmp_eq_u32 vcc, 0, {T[4]}
    v_mov_b32 {T[5]}, 0x3f803f80
    s_nop 0
    v_cndmask_b32 {ONES[0]}, 0, {T[5]}, vcc
    v_mov_b32 {vCur}, {vL16}
    v_add_u32 {vNxt}, 32768, {vL16}
    v_mov_b32 {ONES[1]}, {ONES[0]}
    v_mov_b32 {ONES[2]}, {ONES[0]}
    v_mov_b32 {ONES[3]}, {ONES[0]}""")
    A("s_waitcnt vmcnt(20)")
    mimic = opt.get("g_mimic", True)
    for r in range(4):
        if not mimic:
            A(f"v_mov_b32 {T[4+r]}, 0")
            for k in range(8): A(f"v_dot2_f32_bf16 {T[4+r]}, {GX[r][k]}, {GW[k]}, {T[4+r]}")
    if mimic:
        W32 = NEG[0]; X32 = NEG[1]
        for k in range(8):
            A(f"v_lshlrev_b32 {W32[2*k]}, 16, {GW[k]}\nv_and_b32 {W32[2*k+1]}, 0xffff0000, {GW[k]}")
        for r in range(4):
            for k in range(8):
                A(f"v_lshlrev_b32 {X32[2*k]}, 16, {GX[r][k]}\nv_and_b32 {X32[2*k+1]}, 0xffff0000, {GX[r][k]}")
            for k in range(8):
                A(f"v_pk_mul_f32 {X32.sub(2*k,2)}, {X32.sub(2*k,2)}, {W32.sub(2*k,2)}")
            for k in range(8):
                A(f"v_cvt_pk_bf16_f32 {X32[k]}, {X32[2*k]}, {X32[2*k+1]}")
            A(f"v_mov_b32 {T[4+r]}, 0\nv_mov_b32 {T[8]}, 0x3f803f80")
            for k in range(8):
                A(f"v_dot2_f32_bf16 {T[4+r]}, {X32[k]}, {T[8]}, {T[4+r]}")
    A("s_nop 2")
    for sh in (8, 4, 2, 1):
        for r in range(4):
            A(f"v_add_f32_dpp {T[4+r]}, {T[4+r]}, {T[4+r]} row_ror:{sh} row_mask:0xf bank_mask:0xf")
    for r in range(4): A(f"v_mov_b32 {T[8+r]}, {T[4+r]}")
    for r in range(4): A(f"v_permlane16_swap_b32 {T[4+r]}, {T[8+r]}")
    for r in range(4): A(f"v_add_f32 {T[4+r]}, {T[4+r]}, {T[8+r]}")
    for r in range(4): A(f"v_mov_b32 {T[8+r]}, {T[4+r]}")
    for r in range(4): A(f"v_permlane32_swap_b32 {T[4+r]}, {T[8+r]}")
    for r in range(4): A(f"v_add_f32 {T[4+r]}, {T[4+r]}, {T[8+r]}")
    A(f"""s_lshl_b32 s{sT0}, s{sW}, 4
    s_add_u32 s{sT0}, s{sT0}, {GLDS}
    v_mov_b32 {T[8]}, s{sT0}
    s_mov_b64 s[{sEx}:{sEx+1}], exec
    s_mov_b64 exec, 1
    ds_write_b128 {T[8]}, {T.sub(4,4)}
    s_mov_b64 exec, s[{sEx}:{sEx+1}]""")
    A("s_waitcnt vmcnt(8) lgkmcnt(0)\ns_barrier")
    A(f"""v_and_b32 {T[0]}, 15, {vL}
    v_lshlrev_b32 {T[0]}, 2, {T[0]}
    v_add_u32 {T[1]}, {GLDS}, {T[0]}
    ds_read_b32 {T[2]}, {T[1]}
    ds_read_b128 {K[0][0]}, {vCur}
    ds_read_b128 {K[0][1]}, {vCur} offset:1024
    s_waitcnt lgkmcnt(0)""")
    A(f"v_mfma_f32_32x32x16_bf16 {S[0]}, {K[0][0]}, {Q[0][0]}, 0\nv_mfma_f32_32x32x16_bf16 {S[0]}, {K[0][1]}, {Q[0][1]}, {S[0]}")
    if mimic:
        A(f"""v_cvt_pk_bf16_f32 {T[2]}, {T[2]}, {T[2]}
        v_and_b32 {T[2]}, 0xffff0000, {T[2]}
        v_mul_f32 {T[2]}, {f2u(-LOG2E):#x}, {T[2]}
        v_exp_f32 {T[2]}, {T[2]}
        s_nop 0
        v_add_f32 {T[2]}, 1.0, {T[2]}
        v_rcp_f32 {T[2]}, {T[2]}
        s_nop 0
        v_cvt_pk_bf16_f32 {T[2]}, {T[2]}, {T[2]}
        v_and_b32 {vG}, 0xffff0000, {T[2]}
        v_sub_f32 {T[3]}, 1.0, {vG}
        v_cvt_pk_bf16_f32 {T[3]}, {T[3]}, {T[3]}
        v_and_b32 {T[3]}, 0xffff0000, {T[3]}""")
    else:
        A(f"""v_mul_f32 {T[2]}, {f2u(-LOG2E):#x}, {T[2]}
        v_exp_f32 {T[2]}, {T[2]}
        s_nop 0
        v_add_f32 {T[2]}, 1.0, {T[2]}
        v_rcp_f32 {vG}, {T[2]}
        s_nop 0
        v_sub_f32 {T[3]}, 1.0, {vG}""")
    A(f"""s_or_b32 s{sT0}, s{sW}, s{sHG}
    s_cmp_lg_u32 s{sT0}, 0
    s_cbranch_scc1 K2_NOG
    s_lshl_b32 s{sT0}, s{sMB}, 6
    s_add_u32 s{sT0}, s{sT0}, {G_OFF}
    s_mov_b64 exec, 0xffff
    buffer_store_dword {T[3]}, {T[0]}, s[{S_WS}:{S_WS+3}], s{sT0} offen
    s_mov_b64 exec, -1
    K2_NOG:""")
    A(f"s_mov_b32 s{sIt}, 0")

    def phase(ab, kpar_qk, vpar_pv, extra=None, cinit=None):
        o = ab ^ 1
        c0 = "0" if cinit is None else str(cinit[o])
        M = [f"v_mfma_f32_32x32x16_bf16 {S[o]}, {K[kpar_qk][0]}, {Q[o][0]}, {c0}",
             f"v_mfma_f32_32x32x16_bf16 {S[o]}, {K[kpar_qk][1]}, {Q[o][1]}, {S[o]}",
             f"v_mfma_f32_32x32x16_bf16 {O[o]}, {V[vpar_pv][0]}, {P[o].sub(0,4)}, {O[o]}",
             f"v_mfma_f32_16x16x32_bf16 {Lc[o]}, {ONES}, {P[o].sub(0,4)}, {Lc[o]}",
             f"v_mfma_f32_32x32x16_bf16 {O[o]}, {V[vpar_pv][1]}, {P[o].sub(4,4)}, {O[o]}",
             f"v_mfma_f32_16x16x32_bf16 {Lc[o]}, {ONES}, {P[o].sub(4,4)}, {Lc[o]}"]
        ex = [f"v_exp_f32 {S[ab][r]}, {S[ab][r]}" for r in range(16)]
        cv = [f"v_cvt_pk_bf16_f32 {P[ab][r]}, {S[ab][2*r]}, {S[ab][2*r+1]}" for r in range(8)]
        vl = []
        for r in range(16):
            vl.append(ex[r])
            if r >= 3 and r % 2 == 1: vl.append(cv[(r - 3)//2])
        vl.append(cv[7])
        mpos = opt.get("mpos", [0, 4, 8, 12, 15, 19])
        out = []
        extra = extra or {}
        mi = 0
        for i, v in enumerate(vl):
            while mi < 6 and mpos[mi] == i:
                out.append(M[mi]); out.extend(extra.get(mi, [])); mi += 1
            if isinstance(v, tuple): out.extend(v)
            else: out.append(v)
        assert mi == 6
        return out

    body = []
    for tau in range(8):
        kp = tau & 1
        ex = {}
        if tau < 7:
            ld = [f"ds_read_b128 {K[kp^1][t]}, {vCur} offset:{(tau+1)*4096 + t*1024}" for t in range(2)]
        else:
            ld = [f"ds_read_b128 {K[kp^1][t]}, {vNxt} offset:{t*1024}" for t in range(2)]
        ld += [f"ds_read_b128 {V[kp][t]}, {vCur} offset:{tau*4096 + 2048 + t*1024}" for t in range(2)]
        if tau == 7:
            ex[0] = ["s_waitcnt vmcnt(0)", "s_barrier", ld[2]]
            ex[1] = [ld[3]]; ex[2] = [ld[0]]; ex[3] = [ld[1]]
        else:
            for k in range(4): ex[k] = [ld[k]]
        body += phase(0, kp, kp ^ 1, ex)
        ex = {}
        pre = ["s_waitcnt lgkmcnt(0)"]
        if tau == 7:
            dl = dma(sFree)
            slots = [0, 1, 2, 2, 3, 4, 4, 5]
            pre += dl[0][0]
            for k, (pp, d) in enumerate(dl):
                if k == 4: ex.setdefault(2, []).extend(pp)
                ex.setdefault(slots[k], []).append(d)
            ex[5] += [post_dma, f"s_mov_b32 s{sT0}, s{sCur}", f"s_mov_b32 s{sCur}, s{sNext}", f"s_mov_b32 s{sNext}, s{sFree}", f"s_mov_b32 s{sFree}, s{sT0}",
                      f"s_add_u32 s{sIt}, s{sIt}, 1"]
        ph = phase(1, kp ^ 1, kp, ex)
        body += pre + ph
        if tau == 7:
            body += [f"v_add_u32 {vCur}, s{sCur}, {vL16}", f"v_add_u32 {vNxt}, s{sNext}, {vL16}", f"s_cmp_lt_u32 s{sIt}, 8", "s_cbranch_scc1 K2_LOOP"]
    A("s_nop 7\n.p2align 6\nK2_LOOP:")
    A.ext(body)
    probs = check_hazards(body + body, "k2loop")
    E = Asm()
    E("s_nop 1")
    E(f"""v_mfma_f32_32x32x16_bf16 {O[1]}, {V[1][0]}, {P[1].sub(0,4)}, {O[1]}
    v_mfma_f32_16x16x32_bf16 {Lc[1]}, {ONES}, {P[1].sub(0,4)}, {Lc[1]}
    v_mfma_f32_32x32x16_bf16 {O[1]}, {V[1][1]}, {P[1].sub(4,4)}, {O[1]}
    v_mfma_f32_16x16x32_bf16 {Lc[1]}, {ONES}, {P[1].sub(4,4)}, {Lc[1]}
    s_nop 15""")
    E(f"v_mov_b32 {T[1]}, 0")
    for ab in range(2):
        for r in range(16):
            E(f"v_fmac_f32 {T[1]}, 0, {O[ab][r]}")
    E(f"""s_mov_b32 s{sT0}, {f2u(2.0**-60):#x}
    s_mov_b32 s{sT1}, {f2u(2.0**100):#x}
    v_cmp_le_f32 vcc, s{sT0}, {Lc[0][0]}
    v_cmp_le_f32 s[44:45], s{sT0}, {Lc[1][0]}
    v_cmp_ge_f32 s[46:47], s{sT1}, {Lc[0][0]}
    v_cmp_ge_f32 s[48:49], s{sT1}, {Lc[1][0]}
    v_cmp_eq_f32 s[50:51], 0, {T[1]}
    s_nop 1
    s_and_b64 vcc, vcc, s[44:45]
    s_and_b64 vcc, vcc, s[46:47]
    s_and_b64 vcc, vcc, s[48:49]
    s_and_b64 vcc, vcc, s[50:51]
    s_cmp_eq_u64 vcc, -1""")
    if opt.get("force_fallback"): E("s_branch K2_FALLBACK")
    E("s_cbranch_scc0 K2_FALLBACK")
    E("K2_FINISH:")
    for ab in range(2): E(f"v_rcp_f32 {T[2*ab]}, {Lc[ab][0]}")
    E("s_nop 0")
    for ab in range(2): E(f"v_mul_f32 {T[2*ab]}, {T[2*ab]}, {vG}")
    E(f"""v_and_b32 {T[4]}, 15, {vL}
    v_lshrrev_b32 {T[5]}, 5, {vL}
    v_lshl_add_u32 {T[4]}, {T[5]}, 4, {T[4]}
    v_lshlrev_b32 {T[4]}, 4, {T[4]}
    v_bfe_u32 {T[5]}, {vL}, 4, 1
    v_lshl_add_u32 {T[4]}, {T[5]}, 17, {T[4]}
    s_and_b32 s{sT0}, s{sQo}, 31
    s_add_u32 s{sT0}, s{sT0}, 112
    s_lshl_b32 s{sT0}, s{sT0}, 17
    s_lshl_b32 s{sT1}, s{sMB}, 10
    s_add_u32 s{sT0}, s{sT0}, s{sT1}
    s_add_u32 s{sT1}, s{sT0}, {2*131072}""")
    for ab in range(2):
        for r in range(0, 16, 2):
            E(f"v_pk_mul_f32 {O[ab].sub(r,2)}, {O[ab].sub(r,2)}, {T.sub(2*ab,2)} op_sel_hi:[1,0]")
        for r in range(8):
            E(f"v_cvt_pk_bf16_f32 {S[ab][r]}, {O[ab][2*r]}, {O[ab][2*r+1]}")
        for c in range(2):
            E(f"buffer_store_dwordx4 {S[ab].sub(4*c,4)}, {T[4]}, s[{S_WS}:{S_WS+3}], s{sT0+ab} offen offset:{c*512} {opt.get('stflag','')}")
    E("s_endpgm")
    F = Asm()
    F("K2_FALLBACK:")
    F("s_waitcnt vmcnt(0)")
    for ab in range(2): F(f"v_mov_b32 {T[ab]}, 0xff800000")
    F(f"s_mov_b32 s{sT0}, {KV_OFF}")
    F("K2_FB1:")
    for t in range(2): F(f"buffer_load_dwordx4 {K[0][t]}, {vL16}, s[{S_WS}:{S_WS+3}], s{sT0} offen offset:{t*1024}")
    F("s_waitcnt vmcnt(0)")
    for ab in range(2):
        F(f"v_mfma_f32_32x32x16_bf16 {S[ab]}, {K[0][0]}, {Q[ab][0]}, 0\nv_mfma_f32_32x32x16_bf16 {S[ab]}, {K[0][1]}, {Q[ab][1]}, {S[ab]}")
    F("s_nop 15")
    for ab in range(2):
        for r in range(0, 16, 2): F(f"v_max3_f32 {T[ab]}, {S[ab][r]}, {S[ab][r+1]}, {T[ab]}")
    F(f"s_add_u32 s{sT0}, s{sT0}, 4096\ns_cmp_lt_u32 s{sT0}, {KV_OFF + 262144}\ns_cbranch_scc1 K2_FB1")
    for ab in range(2): F(f"v_mov_b32 {T[2+ab]}, {T[ab]}")
    F("s_nop 1")
    for ab in range(2): F(f"v_permlane32_swap_b32 {T[ab]}, {T[2+ab]}")
    for ab in range(2): F(f"v_max_f32 {T[ab]}, {T[ab]}, {T[2+ab]}")
    for ab in range(2):
        for r in range(16): F(f"v_sub_f32 {NEG[ab][r]}, 0, {T[ab]}")
        for r in range(16): F(f"v_mov_b32 {O[ab][r]}, 0")
        for r in range(4): F(f"v_mov_b32 {Lc[ab][r]}, 0")
    F(f"s_mov_b32 s{sT0}, {KV_OFF}")
    F("K2_FB2:")
    for t in range(2): F(f"buffer_load_dwordx4 {K[0][t]}, {vL16}, s[{S_WS}:{S_WS+3}], s{sT0} offen offset:{t*1024}")
    for t in range(2): F(f"buffer_load_dwordx4 {V[0][t]}, {vL16}, s[{S_WS}:{S_WS+3}], s{sT0} offen offset:{2048 + t*1024}")
    F("s_waitcnt vmcnt(0)")
    for ab in range(2):
        F(f"v_mfma_f32_32x32x16_bf16 {S[ab]}, {K[0][0]}, {Q[ab][0]}, {NEG[ab]}\nv_mfma_f32_32x32x16_bf16 {S[ab]}, {K[0][1]}, {Q[ab][1]}, {S[ab]}")
    F("s_nop 15")
    for ab in range(2):
        for r in range(16): F(f"v_exp_f32 {S[ab][r]}, {S[ab][r]}")
        F("s_nop 0")
        for r in range(8): F(f"v_cvt_pk_bf16_f32 {P[ab][r]}, {S[ab][2*r]}, {S[ab][2*r+1]}")
    F("s_nop 1")
    for ab in range(2):
        for u in range(2):
            F(f"v_mfma_f32_32x32x16_bf16 {O[ab]}, {V[0][u]}, {P[ab].sub(4*u,4)}, {O[ab]}")
            F(f"v_mfma_f32_16x16x32_bf16 {Lc[ab]}, {ONES}, {P[ab].sub(4*u,4)}, {Lc[ab]}")
    F(f"s_add_u32 s{sT0}, s{sT0}, 4096\ns_cmp_lt_u32 s{sT0}, {KV_OFF + 262144}\ns_cbranch_scc1 K2_FB2")
    F("s_nop 15\ns_branch K2_FINISH")
    F("K2_END:\ns_endpgm")
    probs += check_hazards(body[-30:] + E.lines, "k2epi") + check_hazards(A.lines, "k2pro") + check_hazards(F.lines, "k2fb")
    A.ext(E.lines); A.ext(F.lines)
    for p_ in probs: print("HAZARD", p_)
    launch = f"; @launch kernel={name} grid=(256,1,1) block=(256,1,1) lds={98304 + 64}"
    nvr = (nv + 7) // 8 * 8
    return launch, A.text(), kdesc(name, nvr, nvr)
```

```python
from asmlib import *
from common import *

def gen_k3(name="k3_kernel", opt=None):
    opt = opt or {}
    A = Asm()
    NS = 4
    S_AF, S_W, S_OUT, S_G = 8, 12, 16, 20
    sW, sMT, sNT = 24, 25, 26
    sIt = 27
    sAo = 28
    sSoW = 30
    sM0 = 34
    sT0, sT1, sT2, sT3 = 36, 37, 38, 39
    sWo = 40
    va = Alloc("v", 1, 256)
    vL = va.get(1); vL16 = va.get(1); vWo = va.get(1); vWa = [va.get(1) for _ in range(4)]
    T = va.get(16, 4)
    SC = va.get(8, 4)
    acc = [[va.get(4, 4) for j in range(8)] for i in range(4)]
    RW = [[va.get(4, 4) for i in range(4)] for s in range(2)]
    nv = va.p
    RX = [[Reg("a", 32*s + 4*j, 4) for j in range(8)] for s in range(NS)]
    NA = 32 * NS

    A(f".globl {name}\n.p2align 8\n.type {name},@function\n{name}:")
    A("s_cmp_ge_u32 s2, 256\ns_cbranch_scc1 K3_END")
    A("s_load_dwordx2 s[4:5], s[0:1], 32\ns_load_dwordx2 s[6:7], s[0:1], 64\ns_load_dwordx2 s[42:43], s[0:1], 96\ns_load_dwordx2 s[44:45], s[0:1], 80")
    A(f"v_lshrrev_b32 {T[0]}, 6, v0\nv_and_b32 {vL}, 63, v0\nv_readfirstlane_b32 s{sW}, {T[0]}")
    A(f"v_lshlrev_b32 {vL16}, 4, {vL}")
    A(f"""s_bfe_u32 s{sT0}, s2, 0x20001
    s_lshl_b32 s{sT0}, s{sT0}, 2
    s_bfe_u32 s{sT1}, s2, 0x20003
    s_add_u32 s{sMT}, s{sT0}, s{sT1}
    s_and_b32 s{sT0}, s2, 1
    s_lshl_b32 s{sT0}, s{sT0}, 3
    s_lshr_b32 s{sT1}, s2, 5
    s_add_u32 s{sNT}, s{sT0}, s{sT1}""")
    A("s_waitcnt lgkmcnt(0)")
    A(f"""s_lshl_b32 s{sT0}, s{sNT}, 7
    s_lshl_b32 s{sT1}, s{sW}, 16
    s_add_u32 s{sT0}, s{sT0}, s{sT1}
    s_add_u32 s{S_W}, s6, s{sT0}
    s_addc_u32 s{S_W+1}, s7, 0
    s_mov_b32 s{S_W+2}, 65536
    s_mov_b32 s{S_W+3}, 0x20000
    s_add_u32 s{sWo}, s4, s{sT0}
    s_addc_u32 s{sWo+1}, s5, 0
    s_mov_b32 s{S_AF}, s42
    s_mov_b32 s{S_AF+1}, s43
    s_mov_b32 s{S_AF+2}, {AF_SIZE}
    s_mov_b32 s{S_AF+3}, 0x20000
    s_mov_b32 s{S_G}, s42
    s_mov_b32 s{S_G+1}, s43
    s_mov_b32 s{S_G+2}, {WS_USED}
    s_mov_b32 s{S_G+3}, 0x20000
    s_mov_b32 s{S_OUT}, s44
    s_mov_b32 s{S_OUT+1}, s45
    s_mov_b32 s{S_OUT+2}, 0x400000
    s_mov_b32 s{S_OUT+3}, 0x20000""")
    for e in range(1, 4): A(f"s_mov_b32 s{sSoW+e}, {e*16384 - e*1024}")
    A(f"""s_lshl_b32 s{sAo}, s{sW}, 17
    s_lshl_b32 s{sT0}, s{sMT}, 13
    s_add_u32 s{sAo}, s{sAo}, s{sT0}
    s_add_u32 s{sAo+1}, s{sAo}, 4096
    s_lshl_b32 s{sM0}, s{sW}, {12 + 2}""")
    A(f"""v_lshrrev_b32 {T[0]}, 3, {vL}
    v_lshrrev_b32 {T[1]}, 4, {vL}
    v_lshlrev_b32 {T[2]}, 1, {T[1]}
    v_and_b32 {T[3]}, 7, {vL}
    v_xor_b32 {T[2]}, {T[2]}, {T[3]}
    v_lshlrev_b32 {T[2]}, 4, {T[2]}
    v_lshl_add_u32 {vWo}, {T[0]}, 11, {T[2]}""")
    A(f"""v_and_b32 {T[4]}, 15, {vL}
    v_lshlrev_b32 {T[4]}, 2, {T[4]}
    s_lshl_b32 s{sT0}, s{sMT}, 9
    s_add_u32 s{sT0}, s{sT0}, {G_OFF}""")
    for j in range(8): A(f"buffer_load_dword {SC[j]}, {T[4]}, s[{S_G}:{S_G+3}], s{sT0} offen offset:{j*64}")

    def wdma(slot):
        L = [([f"s_add_u32 m0, s{sM0}, {slot*4096}"] if e == 0 else [],
              f"buffer_load_dwordx4 {vWo}, s[{S_W}:{S_W+3}], {'0' if e == 0 else 's%d' % (sSoW+e)} offen offset:{e*1024} lds") for e in range(4)]
        return L
    def xload(slot, j):
        return f"buffer_load_dwordx4 {RX[slot][j]}, {vL16}, s[{S_AF}:{S_AF+3}], s{sAo + (j>>2)} offen offset:{(j&3)*1024}"
    def adv():
        return [f"s_add_u32 s{S_W}, s{S_W}, {4*65536}", f"s_addc_u32 s{S_W+1}, s{S_W+1}, 0",
                f"s_add_u32 s{sAo}, s{sAo}, {4*131072}", f"s_add_u32 s{sAo+1}, s{sAo+1}, {4*131072}"]
    for s in range(NS):
        for pre, d in wdma(s):
            A.ext(pre)
            if pre: A("s_nop 0")
            A(d)
        for j in range(8): A(xload(s, j))
        A.ext(adv())
    A(f"""v_lshrrev_b32 {T[0]}, 2, {vL}
    v_bfe_u32 {T[1]}, {vL}, 3, 2
    v_and_b32 {T[2]}, 3, {vL}
    v_lshlrev_b32 {T[2]}, 3, {T[2]}
    v_lshl_add_u32 {T[2]}, {T[0]}, 7, {T[2]}
    v_add_u32 {T[2]}, s{sM0}, {T[2]}""")
    for i in range(4):
        A(f"v_xor_b32 {T[3]}, {i}, {T[1]}\nv_lshl_add_u32 {vWa[i]}, {T[3]}, 5, {T[2]}")
    for i in range(4):
        for j in range(8):
            for r in range(4): A(f"v_mov_b32 {acc[i][j][r]}, 0")
    def wread(slot, s):
        return [f"ds_read_b64_tr_b16 {RW[s][i].sub(2*hf,2)}, {vWa[i]} offset:{slot*4096 + hf*2048}" for i in range(4) for hf in range(2)]
    A(f"s_waitcnt vmcnt({12*NS - 4})")
    A.ext(wread(0, 0))
    A(f"s_mov_b32 s{sIt}, 0")
    A(".p2align 6\nK3_LOOP:")
    body = []
    for s in range(NS):
        rs = s & 1
        m = [f"v_mfma_f32_16x16x32_bf16 {acc[i][j]}, {RW[rs][i]}, {RX[s][j]}, {acc[i][j]}" for j in range(8) for i in range(4)]
        f = {}
        f[-1] = [f"s_waitcnt vmcnt({8 + 12*(NS-2)}) lgkmcnt(0)"]
        dl = wdma(s)
        f[-1] += dl[0][0]
        if s == 0:
            f[-1] += [f"s_cmp_eq_u32 s{sIt}, 6", f"s_cselect_b32 s{S_W}, s{sWo}, s{S_W}", f"s_cselect_b32 s{S_W+1}, s{sWo+1}, s{S_W+1}",
                      f"s_cmp_eq_u32 s{sIt}, 8", f"s_cselect_b32 s{S_W+2}, 0, s{S_W+2}"]
        for e in range(4): f.setdefault(e, []).append(dl[e][1])
        rd = wread((s + 1) % NS, rs ^ 1)
        for k, r in enumerate(rd): f.setdefault(4 + 2*k + 1, []).append(r)
        for j in range(8): f.setdefault(4*j + 3 + (1 if j < 7 else 0), []).append(xload(s, j))
        a = adv()
        f.setdefault(31, []).extend(a)
        body += interleave(m, f)
    tail = [f"s_add_u32 s{sIt}, s{sIt}, 1", f"s_cmp_lg_u32 s{sIt}, 7", "s_cbranch_scc1 K3_NOSCALE", "s_nop 7"]
    for i in range(4):
        for j in range(8):
            for r in (0, 2):
                tail.append(f"v_pk_mul_f32 {acc[i][j].sub(r,2)}, {acc[i][j].sub(r,2)}, {SC.sub(j & ~1, 2)} op_sel:[0,{j&1}] op_sel_hi:[1,{j&1}]")
    tail += ["K3_NOSCALE:", f"s_cmp_lt_u32 s{sIt}, 9", "s_cbranch_scc1 K3_LOOP"]
    A.ext(body); A.ext(tail)
    probs = check_hazards(body + tail + body, "k3loop") + check_hazards(body + body, "k3loop2")
    E = Asm()
    E("s_waitcnt vmcnt(0) lgkmcnt(0)\ns_nop 7\ns_barrier")
    for d_rel in range(1, 4):
        pass
    for w in range(4):
        E(f"s_cmp_eq_u32 s{sW}, {w}\ns_cbranch_scc1 K3_RED{w}") if w < 3 else None
    def red(w):
        R = Asm()
        R(f"K3_RED{w}:")
        for d in range(4):
            if d == w: continue
            q = (w - d - 1) & 3
            for jj in range(2):
                for i in range(4):
                    off = (d*3 + q)*8192 + (jj*4 + i)*1024
                    base = vL16 if off < 65536 else T[0]
                    if off >= 65536: off -= 65536
                    R(f"ds_write_b128 {base}, {acc[i][2*d+jj]} offset:{off}")
        R("s_waitcnt lgkmcnt(0)\ns_barrier")
        free = [acc[i][j] for j in range(8) if j // 2 != w for i in range(4)]
        k = 0
        for q in range(3):
            for jj in range(2):
                for i in range(4):
                    off = (w*3 + q)*8192 + (jj*4 + i)*1024
                    base = vL16 if off < 65536 else T[0]
                    if off >= 65536: off -= 65536
                    R(f"ds_read_b128 {free[k]}, {base} offset:{off}"); k += 1
        for q in range(3):
            R(f"s_waitcnt lgkmcnt({[15, 8, 0][q]})")
            for jj in range(2):
                for i in range(4):
                    a = acc[i][2*w+jj]; b = free[q*8 + jj*4 + i]
                    for r in (0, 2): R(f"v_pk_add_f32 {a.sub(r,2)}, {a.sub(r,2)}, {b.sub(r,2)}")
        for jj in range(2):
            for ip in range(2):
                X, Y = acc[2*ip][2*w+jj], acc[2*ip+1][2*w+jj]
                D = T.sub(4 + 4*((jj*2+ip) % 3), 4)
                R(f"v_cvt_pk_bf16_f32 {D[0]}, {X[0]}, {X[1]}\nv_cvt_pk_bf16_f32 {D[1]}, {X[2]}, {X[3]}")
                R(f"v_cvt_pk_bf16_f32 {D[2]}, {Y[0]}, {Y[1]}\nv_cvt_pk_bf16_f32 {D[3]}, {Y[2]}, {Y[3]}")
                R(f"s_nop 1\nv_permlane16_swap_b32 {D[0]}, {D[2]}\nv_permlane16_swap_b32 {D[1]}, {D[3]}")
                R(f"buffer_store_dwordx4 {D}, {T[1]}, s[{S_OUT}:{S_OUT+3}], s{sT0+jj} offen offset:{ip*64}")
        R("s_endpgm")
        return R
    pre = Asm()
    pre(f"""v_add_u32 {T[0]}, 0x10000, {vL16}
    v_and_b32 {T[1]}, 15, {vL}
    v_lshlrev_b32 {T[1]}, 11, {T[1]}
    v_bfe_u32 {T[2]}, {vL}, 4, 1
    v_lshl_add_u32 {T[1]}, {T[2]}, 5, {T[1]}
    v_lshrrev_b32 {T[2]}, 5, {vL}
    v_lshl_add_u32 {T[1]}, {T[2]}, 4, {T[1]}
    s_lshl_b32 s{sT0}, s{sMT}, 18
    s_lshl_b32 s{sT1}, s{sW}, 16
    s_add_u32 s{sT0}, s{sT0}, s{sT1}
    s_lshl_b32 s{sT1}, s{sNT}, 7
    s_add_u32 s{sT0}, s{sT0}, s{sT1}
    s_add_u32 s{sT1}, s{sT0}, 32768""")
    A.ext(pre.lines); A.ext(E.lines)
    for w in (3, 0, 1, 2):
        R = red(w)
        probs += check_hazards(body[-10:] + pre.lines + E.lines + R.lines, f"k3red{w}")
        A.ext(R.lines)
    A("K3_END:\ns_endpgm")
    probs += check_hazards(A.lines[:A.lines.index("K3_LOOP:")], "k3pro")
    for p_ in probs: print("HAZARD", p_)
    launch = f"; @launch kernel={name} grid=(256,1,1) block=(256,1,1) lds=98304"
    acc_off = (nv + 3) // 4 * 4
    return launch, A.text(), kdesc(name, acc_off + NA, acc_off)
```

```python
import sys, json
from k1 import gen_k1
from k2 import gen_k2
from k3 import gen_k3
HDR = open("gated_mix__grouped_kv_mqa__glu_gated_reglu__prompt.s.ref").read().split("; Override launch")[0]
def build(opt=None, kernels=("k1", "k2", "k3")):
    opt = opt or {}
    gens = dict(k1=gen_k1, k2=gen_k2, k3=gen_k3)
    parts = [gens[k](opt=opt.get(k)) for k in kernels]
    s = HDR + "\n".join(p[0] for p in parts) + "\n"
    s += '.amdgcn_target "amdgcn-amd-amdhsa--gfx950"\n.text\n'
    for p in parts: s += p[1]
    for p in parts: s += p[2]
    return s
if __name__ == "__main__":
    out = sys.argv[1] if len(sys.argv) > 1 else "gated_mix__grouped_kv_mqa__glu_gated_reglu__prompt.s"
    opt = json.loads(sys.argv[2]) if len(sys.argv) > 2 else {}
    open(out, "w").write(build(opt))
```

```python
import re

class Asm:
    def __init__(self):
        self.lines = []
    def __call__(self, s):
        if type(s) is not str:
            self.lines.append(s); return
        for l in s.split("\n"):
            l = l.strip()
            if l: self.lines.append(l)
    def ext(self, lst):
        for l in lst: self(l)
    def text(self):
        out = []
        for l in self.lines:
            if l.endswith(":") or l.startswith(".") or l.startswith(";"):
                out.append(l)
            else:
                out.append("    " + l)
        return "\n".join(out) + "\n"

def vr(base, n=1, f="v"):
    return f"{f}{base}" if n == 1 else f"{f}[{base}:{base+n-1}]"
def ar(base, n=1): return vr(base, n, "a")
def sr(base, n=1): return vr(base, n, "s")

class Reg:
    def __init__(self, f, base, n): self.f, self.base, self.n = f, base, n
    def __str__(self): return vr(self.base, self.n, self.f)
    def sub(self, off, n=1): return Reg(self.f, self.base + off, n)
    def __getitem__(self, i): return Reg(self.f, self.base + i, 1)

class Alloc:
    def __init__(self, f, start, end): self.f, self.p, self.end = f, start, end
    def get(self, n, align=1):
        self.p = (self.p + align - 1) // align * align
        r = Reg(self.f, self.p, n); self.p += n
        assert self.p <= self.end, f"out of {self.f} regs"
        return r

def interleave(backbone, fillers):
    out = list(fillers.get(-1, []))
    for i, b in enumerate(backbone):
        out.append(b)
        out.extend(fillers.get(i, []))
    assert all(-1 <= k < len(backbone) for k in fillers), (sorted(fillers), len(backbone))
    return out

def kdesc(name, vgpr, accum, sgpr=102):
    return f""".section .rodata,"a"
.p2align 6
.amdhsa_kernel {name}
  .amdhsa_next_free_vgpr {vgpr}
  .amdhsa_next_free_sgpr {sgpr}
  .amdhsa_accum_offset {accum}
  .amdhsa_group_segment_fixed_size 0
  .amdhsa_kernarg_size 104
  .amdhsa_user_sgpr_count 2
  .amdhsa_user_sgpr_kernarg_segment_ptr 1
  .amdhsa_system_sgpr_workgroup_id_x 1
  .amdhsa_float_denorm_mode_32 3
.end_amdhsa_kernel
.text
"""

_reg_re = re.compile(r"\b([vas])(?:\[(\d+):(\d+)\]|(\d+)\b)")
def regs_of(op):
    out = set()
    for m in _reg_re.finditer(op):
        f = m.group(1)
        if m.group(2) is not None:
            for i in range(int(m.group(2)), int(m.group(3)) + 1): out.add((f, i))
        else:
            out.add((f, int(m.group(4))))
    return out

TRANS = ("v_exp_", "v_log_", "v_rcp_", "v_rsq_", "v_sqrt_", "v_sin_", "v_cos_")
def parse(line):
    line = line.split(";")[0].strip()
    if not line or line.endswith(":") or line.startswith("."): return None
    p = line.split(None, 1)
    mn = p[0]; ops = [o.strip() for o in p[1].split(",")] if len(p) > 1 else []
    return mn, ops

def check_hazards(lines, name=""):
    hist = []
    probs = []
    ins = [(l, parse(l)) for l in lines]
    ins = [(l, p) for l, p in ins if p]
    def states(mn, ops):
        if mn == "s_nop": return int(ops[0], 0) + 1
        return 1
    pos = 0; recs = []
    for l, (mn, ops) in ins:
        isM = mn.startswith("v_mfma")
        isV = mn.startswith("v_") and not isM
        isMem = mn.startswith(("buffer_", "global_", "ds_", "flat_"))
        dst = set(); src = set(); srcC = set(); srcAB = set()
        if isM:
            dst = regs_of(ops[0]); srcAB = regs_of(ops[1]) | regs_of(ops[2]); srcC = regs_of(ops[3]); src = srcAB | srcC
        elif isV:
            dst = regs_of(ops[0]); src = set().union(*[regs_of(o) for o in ops[1:]]) if len(ops) > 1 else set()
            if mn.startswith(("v_fmac", "v_dot2c", "v_permlane", "v_writelane")): src |= dst
            if mn.startswith("v_permlane"): dst |= regs_of(ops[1])
            if mn.startswith("v_cmp") and ops[0] == "vcc": dst = {("s", "vcc")}
            if mn.startswith("v_cndmask") and (len(ops) < 4 or ops[3] == "vcc"): src |= {("s", "vcc")}
            if mn.startswith(("v_add_co", "v_sub_co", "v_addc_co")):
                dst |= regs_of(ops[1]) | ({("s","vcc")} if ops[1]=="vcc" else set())
        elif isMem:
            allr = set().union(*[regs_of(o) for o in ops]) if ops else set()
            if "load" in mn or mn.startswith("ds_read") or mn.startswith("ds_bperm") or mn.startswith("ds_swizzle"):
                if " lds" in l or "load_lds" in mn: src = allr
                else:
                    dst = regs_of(ops[0]); src = set().union(*[regs_of(o) for o in ops[1:]])
            else: src = allr
        else:
            src = set().union(*[regs_of(o) for o in ops[1:]]) if len(ops) > 1 else set()
            if ops and not mn.startswith(("s_cmp", "s_waitcnt", "s_cbranch", "s_branch", "s_nop", "s_barrier")): dst = regs_of(ops[0])
            if ops and ops[0] == "m0": dst = {("s", "m0")}
        for r in reversed(recs):
            d = pos - r["pos"] - r["st"]
            d = pos - r["end"]
            if d > 24: break
            need = 0; why = ""
            if r["isM"]:
                p8 = r["passes"] == 8
                if isM:
                    if r["dst"] & srcAB: need, why = (12 if p8 else 8), "mfma D->AB"
                    elif r["dst"] & srcC and not (r["dst"] == srcC and r["mn"] == mn): need, why = (10 if p8 else 6), "mfma D->C partial"
                    elif (r["dst"] & dst) and not (r["dst"] == srcC and r["mn"] == mn) : need, why = (10 if p8 else 6), "mfma WAW"
                elif isV or isMem:
                    if r["dst"] & (src | dst): need, why = (12 if p8 else 8), "mfma D->valu/mem"
                    if isV and (r["srcC"] & dst): need, why = max(need, 7 if p8 else 3), why + " mfma C WAR"
            elif r["isV"]:
                vd = {x for x in r["dst"] if x[0] in "va"}
                sd = {x for x in r["dst"] if x[0] == "s"}
                if isM and vd & src: need, why = 2, "valu->mfma"
                if r["mn"].startswith(TRANS) and isV and not mn.startswith(TRANS) and vd & src: need, why = 1, "trans->valu"
                if r["mn"].startswith(TRANS) and isMem and vd & src: need, why = 1, "trans->mem"
                if mn.startswith("v_permlane") and vd & src: need, why = 2, "valu->permlane"
                if ("dpp" in mn or "row_" in l or "quad_perm" in l) and vd & src: need, why = 2, "valu->dpp"
                if mn.startswith(("v_readfirstlane", "v_readlane")) and vd & src: need, why = 1, "valu->readlane"
                if sd & src:
                    if isMem: need, why = 5, "valu sgpr->vmem"
                    elif isV: need, why = 2, "valu sgpr->valu"
            elif r["isMem"]:
                if ("store" in r["mn"]) and ("x4" in r["mn"] or "x3" in r["mn"]) and (isV or isM) and (r["data"] & dst): need, why = 2, "store data WAR"
            else:
                if ("s", "m0") in r["dst"] and isMem and (" lds" in l or "load_lds" in mn): need, why = 1, "m0->lds dma"
            if need > d:
                probs.append(f"{name}: [{why}] need {need} have {d}: '{r['l']}' -> '{l}'")
        st = states(mn, ops)
        recs.append(dict(l=l, mn=mn, pos=pos, st=st, end=pos + 1 if mn != "s_nop" else pos + st, isM=isM, isV=isV, isMem=isMem,
                         dst=dst, srcC=srcC, passes=(8 if "32x32" in mn else 4), data=(regs_of(ops[0]) if isMem and ops else set())))
        pos += st
    return probs

class VM(str):
    def __new__(cls, s, tag=None):
        o = str.__new__(cls, s); o.tag = tag; return o
class Need(str):
    def __new__(cls, tags, extra="", n=None):
        o = str.__new__(cls, f"s_waitcnt vmcnt({n if n is not None else 0}) {extra}".strip()); o.tags = tags; o.extra = extra; o.n = n; return o
def is_vmem(l): return l.startswith(("buffer_", "global_"))
def _count_after(seq, pos, tag):
    c = 0
    for k in range(pos - 1, -1, -1):
        l = seq[k]
        if is_vmem(l):
            if getattr(l, "tag", None) == tag: return c
            c += 1
    return None
def resolve_waits(body, pred=None):
    pred = body if pred is None else pred
    seq = list(pred) + list(body); out = []
    for k, l in enumerate(body):
        if isinstance(l, Need) and l.n is None:
            cs = [_count_after(seq, len(pred) + k, t) for t in l.tags]
            assert all(c is not None for c in cs), (l.tags, cs)
            out.append(Need(l.tags, l.extra, min(min(cs), 63)))
        else: out.append(l)
    return out
def verify_waits(seq, start=0, name=""):
    bad = []
    for k in range(start, len(seq)):
        l = seq[k]
        if isinstance(l, Need):
            for t in l.tags:
                c = _count_after(seq, k, t)
                if c is None: bad.append(f"{name}: tag {t} never issued before {k}")
                elif c < l.n:
                    ok = False; cnt = 0
                    for q in range(k - 1, -1, -1):
                        x = seq[q]
                        if is_vmem(x):
                            if getattr(x, "tag", None) == t: break
                        m = re.match(r"s_waitcnt.*vmcnt\((\d+)\)", x)
                        if m:
                            cq = _count_after(seq, q, t)
                            if cq is not None and cq >= int(m.group(1)): ok = True; break
                    if not ok: bad.append(f"{name}: wait at {k} vmcnt({l.n}) insufficient for {t} (only {c} younger)")
    return bad
```

```python
AF_OFF = 0
AF_SIZE = 144 * 128 * 1024
QF_OFF = 0x1200000
KV_OFF = 0x1600000
G_OFF  = 0x1640000
WS_USED = 0x1700000
import math
QSCALE = (32 ** -0.5) * math.log2(math.e)
import struct
def f2u(f): return struct.unpack("<I", struct.pack("<f", f))[0]
TS_OFF = 0x1680000
class TS:
    def __init__(self, on, kidx): self.on, self.k = on, kidx
    def stamp(self, i):
        if not self.on: return []
        return [f"s_memrealtime s[{80+2*i}:{81+2*i}]", f"s_memtime s[{90+2*i}:{91+2*i}]"]
    def flush(self, srd, swave, vt, wsptr=None):
        if not self.on: return []
        L = ["s_waitcnt vmcnt(0) lgkmcnt(0)"] + self.stamp(4) + ["s_waitcnt lgkmcnt(0)"]
        for i in range(5):
            L.append(f"v_mov_b32 v{vt+i}, s{80+2*i}")
            L.append(f"v_mov_b32 v{vt+5+i}, s{90+2*i}")
        L += [f"s_getreg_b32 s79, hwreg(HW_REG_XCC_ID)", f"v_mov_b32 v{vt+10}, s79", f"v_mov_b32 v{vt+11}, 0",
              f"s_lshl_b32 s78, s2, 2", f"s_add_u32 s78, s78, s{swave}", f"s_lshl_b32 s78, s78, 6",
              f"s_add_u32 s78, s78, {TS_OFF + self.k * 65536}", f"v_mov_b32 v{vt+12}, 0", "s_mov_b64 exec, 1"]
        for q in range(3):
            L.append(f"buffer_store_dwordx4 v[{vt+4*q}:{vt+4*q+3}], v{vt+12}, s[{srd}:{srd+3}], s78 offen offset:{16*q}")
        L += ["s_waitcnt vmcnt(0)"]
        return L

class TS10:
    def __init__(self, on, kidx=0): self.on, self.k = on, kidx
    def stamp(self, i):
        if not self.on: return []
        return [f"s_memrealtime s[{82+2*i}:{83+2*i}]"]
    def flush(self, srd, swave, vt):
        if not self.on: return []
        L = ["s_waitcnt vmcnt(0) lgkmcnt(0)"] + self.stamp(9) + ["s_waitcnt lgkmcnt(0)"]
        for i in range(10): L.append(f"v_mov_b32 v{vt+i}, s{82+2*i}")
        L += [f"s_getreg_b32 s81, hwreg(HW_REG_XCC_ID)", f"v_mov_b32 v{vt+10}, s81", f"v_mov_b32 v{vt+11}, 0x7777",
              f"s_lshl_b32 s80, s2, 2", f"s_add_u32 s80, s80, s{swave}", f"s_lshl_b32 s80, s80, 6",
              f"s_add_u32 s80, s80, {TS_OFF + self.k * 65536}", f"v_mov_b32 v{vt+12}, 0", "s_mov_b64 exec, 1"]
        for q in range(3):
            L.append(f"buffer_store_dwordx4 v[{vt+4*q}:{vt+4*q+3}], v{vt+12}, s[{srd}:{srd+3}], s80 offen offset:{16*q}")
        L += ["s_waitcnt vmcnt(0)"]
        return L
```

```python
from asmlib import *
from common import *
LOG2E = math.log2(math.e)
NAME = "gated_mix__grouped_kv_mqa__glu_gated_reglu__prompt_kernel"

FL_E = 0x1648000
FL_H = 0x1649000
FL_O = 0x164a000
SPIN_MAX = 1 << 20
PW = 7168

def put(f, g, x):
    f.setdefault(g, []).extend(x if isinstance(x, list) else [x])

def gen(opt=None):
    opt = opt or {}
    A = Asm()
    ts = TS10(opt.get("ts"), 0)
    SC1 = "sc1"
    probs = []
    P_X, P_WQ, P_WK, P_WV, P_WO = 4, 6, 8, 10, 12
    P_WG, P_WU, P_WD, P_GW = 16, 18, 20, 22
    P_OUT, P_DBG, P_WS = 24, 26, 28
    S_WS, S_A, S_B, S_C, S_D, S_E = 32, 36, 40, 44, 48, 52
    sW, sNonce = 56, 57
    sT0, sT1, sT2, sT3 = 58, 59, 60, 61
    sIt, sRB, sCB = 62, 63, 64
    sL = 65
    vL, vL16 = Reg("v", 1, 1), Reg("v", 2, 1)
    def srd(b): return f"s[{b}:{b+3}]"

    A("; LOCALQ")
    A(f".globl {NAME}\n.p2align 8\n.type {NAME},@function\n{NAME}:")
    A("s_cmp_ge_u32 s2, 256\ns_cbranch_scc1 L_END")
    A.ext(ts.stamp(0))
    A(f"""s_load_dwordx8 s[4:11], s[0:1], 0
    s_load_dwordx2 s[12:13], s[0:1], 32
    s_load_dwordx8 s[16:23], s[0:1], 48
    s_load_dwordx4 s[24:27], s[0:1], 80
    s_load_dwordx2 s[28:29], s[0:1], 96
    s_memrealtime s[30:31]
    v_lshrrev_b32 v3, 6, v0
    v_and_b32 {vL}, 63, v0
    v_readfirstlane_b32 s{sW}, v3
    v_lshlrev_b32 {vL16}, 4, {vL}""")

    S_X, S_W0, S_W1, S_KV, S_Q = S_A, S_B, S_C, S_D, S_E
    sSoX = sL - 1
    sSoW = sL + 6
    sM0X, sM0W, sM0Q = sL + 10, sL + 11, sL + 12
    sWwr, sWrd = sL + 13, sL + 14
    s37off, s37last, s37wrap, s37step, s16k = 14, 15, 3, 31, 30
    XB, WB, QR, KR = 0, 65536, 147456, 155648
    vXo = [3, 4]; vWo = 5; vKo = 6; vQo = 7
    vXa = [8, 9]; vWa = [10, 11, 12]; vA37 = [13, 14, 15, 16]; vSXa = [17, 18]; vSWa = 19
    vT = 20
    acc = [[None]*8 for _ in range(8)]
    p = 32
    for i in range(7):
        for j in range(8):
            acc[i][j] = Reg("v", p, 4); p += 4
    RA = [[Reg("a", 64*s + 4*i, 4) for i in range(8)] for s in range(2)]
    RB = [[Reg("a", 64*s + 32 + 4*j, 4) for j in range(8)] for s in range(2)]
    SA = [Reg("a", 128 + 8*s, 4) for s in range(2)]
    SB = [Reg("a", 132 + 8*s, 4) for s in range(2)]
    sacc = Reg("a", 144, 4)
    for j in range(8): acc[7][j] = Reg("a", 148 + 4*j, 4)
    GXa = [Reg("a", 180 + 8*r, 8) for r in range(4)]
    GWa = Reg("a", 212, 8)
    t0, t1, t2, t3, t4, t5, t6 = range(vT, vT + 7)

    A(f"""s_and_b32 s{sT0}, s2, 1
    s_lshl_b32 s{sT0}, s{sT0}, 2
    s_bfe_u32 s{sT1}, s2, 0x20003
    s_add_u32 s{sRB}, s{sT0}, s{sT1}
    s_bfe_u32 s{sT0}, s2, 0x20001
    s_lshl_b32 s{sT0}, s{sT0}, 3
    s_lshr_b32 s{sT1}, s2, 5
    s_add_u32 s{sCB}, s{sT0}, s{sT1}""")
    A(f"""s_lshl_b32 s{sT0}, s{sW}, 6
    v_lshrrev_b32 v{t0}, 3, {vL}
    v_add_u32 v{t0}, s{sT0}, v{t0}
    v_lshlrev_b32 v{t0}, 11, v{t0}
    v_lshrrev_b32 v{t1}, 4, {vL}
    v_and_b32 v{t2}, 7, {vL}
    v_xor_b32 v{t2}, v{t2}, v{t1}
    v_lshl_add_u32 v{vXo[0]}, v{t2}, 4, v{t0}
    v_xor_b32 v{vXo[1]}, 64, v{vXo[0]}""")
    for e in range(1, 8): A(f"s_mov_b32 s{sSoX+e}, {e*16384 - (e&3)*1024}")
    A(f"""s_mov_b32 s{sSoW+1}, {4*PW - 1024}
    s_mov_b32 s{sSoW+2}, {32*PW}
    s_mov_b32 s{sSoW+3}, {36*PW - 1024}
    s_lshl_b32 s{sM0X}, s{sW}, 13
    s_lshl_b32 s{sM0W}, s{sW}, 11
    s_add_u32 s{sM0W}, s{sM0W}, {WB}
    s_lshl_b32 s{sM0Q}, s{sW}, 10
    s_add_u32 s{sM0Q}, s{sM0Q}, {QR}""")
    A(f"""s_lshl_b32 s{sT0}, s{sW}, 3
    v_add_u32 v{t0}, s{sT0}, v{t1}
    v_mul_u32_u24 v{t0}, {PW}, v{t0}
    s_and_b32 s{sT0}, s{sW}, 1
    s_lshl_b32 s{sT0}, s{sT0}, 3
    v_and_b32 v{t2}, 15, {vL}
    v_lshl_or_b32 v{t3}, v{t1}, 1, s{sT0}
    v_xor_b32 v{t2}, v{t2}, v{t3}
    v_lshl_add_u32 v{vWo}, v{t2}, 4, v{t0}
    v_cmp_lt_u32 vcc, 13, v{t2}
    v_mov_b32 v{t3}, 0x40000000
    v_lshrrev_b32 v{t0}, 5, {vL}
    v_cndmask_b32 v{vWo}, v{vWo}, v{t3}, vcc
    v_lshlrev_b32 v{t0}, 1, v{t0}
    v_xor_b32 v{t0}, v{t0}, {vL}
    v_lshlrev_b32 v{t2}, 4, v{t0}
    s_lshl_b32 s{sT0}, s{sW}, 10
    v_add_u32 v{vKo}, s{sT0}, v{t2}
    v_and_b32 v{t0}, 3, v{t0}
    v_lshlrev_b32 v{t0}, 4, v{t0}
    v_lshrrev_b32 v{t2}, 2, {vL}
    v_lshl_add_u32 v{t0}, v{t2}, 11, v{t0}
    s_lshl_b32 s{sT0}, s{sW}, 15
    v_add_u32 v{vQo}, s{sT0}, v{t0}""")
    A("s_waitcnt lgkmcnt(0)")
    A(f"""s_lshl_b32 s{sT0}, s{sRB}, 19
    s_add_u32 s{S_X}, s{P_X}, s{sT0}
    s_addc_u32 s{S_X+1}, s{P_X+1}, 0
    s_mov_b32 s{S_X+2}, 0x80000
    s_mov_b32 s{S_X+3}, 0x20000""")
    A(f"""s_mov_b32 s{S_WS+3}, 0x20000
    s_or_b32 s{sT0}, s2, s{sW}
    s_cmp_lg_u32 s{sT0}, 0
    s_cbranch_scc1 P1_NONONCE
    s_or_b32 s30, s30, 1
    s_mov_b32 s{S_WS}, s{P_DBG}
    s_mov_b32 s{S_WS+1}, s{P_DBG+1}
    s_mov_b32 s{S_WS+2}, 256
    v_mov_b32 v{t4}, s30
    v_mov_b32 v{t5}, 0
    s_mov_b64 exec, 1
    buffer_store_dword v{t4}, v{t5}, {srd(S_WS)}, 0 offen sc1
    s_mov_b64 exec, -1
    P1_NONONCE:""")
    def xdma(par):
        sl = []
        for e in range(8):
            pre = []
            if e == 0: pre = [f"s_add_u32 m0, s{sM0X}, {par}"]
            if e == 4: pre = ["s_add_u32 m0, m0, 4096"]
            so = "0" if e == 0 else f"s{sSoX+e}"
            sl.append((pre, f"buffer_load_dwordx4 v{vXo[e&1]}, {srd(S_X)}, {so} offen offset:{(e&3)*1024} lds"))
        return sl
    def wdma(hb, slot):
        sl = []
        for sub in range(2):
            sd = S_W0 if sub == 0 else S_W1
            for e in range(2):
                pre = []
                if e == 0: pre = [f"s_add_u32 m0, s{sM0W}, {slot}"] if sub == 0 else ["s_add_u32 m0, m0, 8192"]
                k = 2*hb + e
                so = "0" if k == 0 else f"s{sSoW + k}"
                sl.append((pre, f"buffer_load_dwordx4 v{vWo}, {srd(sd)}, {so} offen offset:{e*1024} lds"))
        return sl
    def qkdma(slot):
        return [([f"s_add_u32 m0, s{sM0Q}, {slot}"], f"buffer_load_dwordx4 v{vQo}, {srd(S_Q)}, 0 offen lds"),
                (["s_add_u32 m0, m0, 8192"], f"buffer_load_dwordx4 v{vKo}, {srd(S_KV)}, 0 offen lds")]
    def emit_dma(sl):
        for pre, d in sl:
            A.ext(pre)
            if pre: A("s_nop 0")
            A(d)
    emit_dma(xdma(0))
    A(f"""s_mul_i32 s{sT0}, s{sCB}, 224
    s_add_u32 s{S_W0}, s{P_WG}, s{sT0}
    s_addc_u32 s{S_W0+1}, s{P_WG+1}, 0
    s_add_u32 s{S_W1}, s{P_WU}, s{sT0}
    s_addc_u32 s{S_W1+1}, s{P_WU+1}, 0
    s_sub_u32 s{S_W0+2}, {1024*PW}, s{sT0}
    s_mov_b32 s{S_W1+2}, s{S_W0+2}
    s_mov_b32 s{S_W0+3}, 0x20000
    s_mov_b32 s{S_W1+3}, 0x20000
    s_lshl_b32 s{sT0}, s{sCB}, 6
    s_add_u32 s{S_Q}, s{P_WQ}, s{sT0}
    s_addc_u32 s{S_Q+1}, s{P_WQ+1}, 0
    s_sub_u32 s{S_Q+2}, {1024*2048}, s{sT0}
    s_mov_b32 s{S_Q+3}, 0x20000
    s_bitcmp1_b32 s{sCB}, 0
    s_cselect_b32 s{S_KV}, s{P_WV}, s{P_WK}
    s_cselect_b32 s{S_KV+1}, s{P_WV+1}, s{P_WK+1}
    s_mov_b32 s{S_KV+2}, 65536
    s_mov_b32 s{S_KV+3}, 0x20000""")
    advX = [f"v_add_u32 v{vXo[0]}, 128, v{vXo[0]}", f"v_add_u32 v{vXo[1]}, 128, v{vXo[1]}",
            f"v_add_u32 v{vQo}, {64*2048}, v{vQo}", f"v_add_u32 v{vKo}, 4096, v{vKo}"]
    advW = [f"v_add_u32 v{vWo}, {64*PW}, v{vWo}"]
    emit_dma(wdma(0, 0)); emit_dma(qkdma(0)); emit_dma(wdma(1, 16384))
    A.ext(advX + advW)
    A(f"""s_mov_b32 s{S_WS}, s{P_WS}
    s_mov_b32 s{S_WS+1}, s{P_WS+1}
    s_mov_b32 s{S_WS+2}, {WS_USED}""")
    second = xdma(32768) + wdma(0, 2*16384) + qkdma(4096) + wdma(1, 3*16384)
    A(f"""v_and_b32 v{t0}, 15, {vL}
    v_lshrrev_b32 v{t2}, 1, v{t0}
    v_xor_b32 v{t2}, v{t2}, v{t1}
    v_lshlrev_b32 v{t2}, 4, v{t2}
    v_lshl_add_u32 v{t2}, v{t0}, 7, v{t2}
    s_lshr_b32 s{sT0}, s{sW}, 1
    s_lshl_b32 s{sT1}, s{sT0}, 14
    v_add_u32 v{vXa[0]}, s{sT1}, v{t2}
    v_xor_b32 v{vXa[1]}, 64, v{vXa[0]}
    s_bfe_u32 s{sT1}, s{sCB}, 0x30001
    s_lshl_b32 s{sT1}, s{sT1}, 1
    s_add_u32 s{sT1}, s{sT1}, s{sT0}
    s_lshl_b32 s{sT1}, s{sT1}, 11
    v_add_u32 v{vSXa[0]}, s{sT1}, v{t2}
    v_xor_b32 v{vSXa[1]}, 64, v{vSXa[0]}
    v_bfe_u32 v{t0}, {vL}, 2, 2
    v_lshl_add_u32 v{t2}, v{t1}, 3, v{t0}
    v_and_b32 v{t3}, 1, v{t1}
    v_lshl_or_b32 v{t0}, v{t3}, 2, v{t0}
    v_and_b32 v{t4}, 3, {vL}
    v_lshlrev_b32 v{t4}, 3, v{t4}
    v_lshl_add_u32 v{t5}, v{t2}, 8, v{t4}
    v_add_u32 v{t5}, {WB}, v{t5}""")
    A(f"""s_and_b32 s{sT0}, s{sW}, 1
    s_mov_b32 s{sT1}, 0x3210
    s_cmp_eq_u32 s{sT0}, 1
    s_cselect_b32 s{sT1}, 0x0654, s{sT1}
    s_mov_b32 s{sT2}, 0x6543
    s_cselect_b32 s{sT2}, 0x0021, s{sT2}
    s_bitcmp1_b32 s{sCB}, 0
    s_cselect_b32 s{sT1}, s{sT2}, s{sT1}""")
    for ii in range(4):
        dst = vWa[ii] if ii < 3 else vA37[0]
        A(f"""s_bfe_u32 s{sT2}, s{sT1}, {(4 << 16) | (4*ii):#x}
        v_xor_b32 v{t6}, s{sT2}, v{t0}
        v_lshl_add_u32 v{dst}, v{t6}, 5, v{t5}""")
    A(f"""v_lshl_add_u32 v{t4}, v{t2}, 6, v{t4}
    v_xor_b32 v{t6}, s{sT0}, v{t3}
    v_lshl_add_u32 v{t6}, v{t6}, 5, v{t4}
    v_add_u32 v{vSWa}, {KR}, v{t6}
    s_mov_b32 s{s16k}, 16384
    s_cmp_eq_u32 s{sT0}, 1
    s_cbranch_scc1 P1_A37Q
    v_add_u32 v{vA37[1]}, 1024, v{vA37[0]}
    v_add_u32 v{vA37[2]}, 8192, v{vA37[0]}
    v_add_u32 v{vA37[3]}, 9216, v{vA37[0]}
    s_mov_b32 s{s37step}, 16384
    s_mov_b32 s{s37last}, {4*16384}
    s_mov_b32 s{s37wrap}, {(-4*16384) & 0xffffffff:#x}
    s_branch P1_A37D
    P1_A37Q:
    v_lshl_add_u32 v{t6}, v{t3}, 5, v{t4}
    v_add_u32 v{vA37[0]}, {QR}, v{t6}
    v_add_u32 v{vA37[1]}, 256, v{vA37[0]}
    v_xor_b32 v{vA37[2]}, 32, v{vA37[0]}
    v_xor_b32 v{vA37[3]}, 32, v{vA37[1]}
    s_mov_b32 s{s37step}, 2048
    s_mov_b32 s{s37last}, 6144
    s_mov_b32 s{s37wrap}, {(-6144) & 0xffffffff:#x}
    P1_A37D:""")
    Z = []
    for i in range(8):
        for j in range(8):
            for r in range(4):
                a = acc[i][j][r]
                Z.append(f"v_mov_b32 {a}, 0" if a.f == "v" else f"v_accvgpr_write_b32 {a}, 0")
    for r in range(4): Z.append(f"v_accvgpr_write_b32 {sacc[r]}, 0")
    per = len(Z) // len(second)
    for k, (pre, d) in enumerate(second):
        A.ext(pre); A.ext(Z[k*per:(k+1)*per]); A(d)
    A.ext(Z[len(second)*per:])
    A.ext(advX + advW)

    def reads(b, s):
        L = [f"ds_read_b128 {RB[s][j]}, v{vXa[b]} offset:{j*2048}" for j in range(8)]
        for i in range(8):
            for hf in range(2):
                if i & 3 == 3: L.append(f"ds_read_b64_tr_b16 {RA[s][i].sub(2*hf, 2)}, v{vA37[2*(i>>2) + hf]}")
                else: L.append(f"ds_read_b64_tr_b16 {RA[s][i].sub(2*hf, 2)}, v{vWa[i&3]} offset:{(i>>2)*8192 + hf*1024}")
        L.append(f"ds_read_b128 {SB[s]}, v{vSXa[b]}")
        for hf in range(2):
            L.append(f"ds_read_b64_tr_b16 {SA[s].sub(2*hf, 2)}, v{vSWa} offset:{b*2048 + hf*256}")
        return L
    def mfmas(s):
        L = []
        for i in range(8):
            js = range(8) if (i % 2 == 0 or not opt.get("snake", 1)) else range(7, -1, -1)
            for j in js:
                L.append(f"v_mfma_f32_16x16x32_bf16 {acc[i][j]}, {RA[s][i]}, {RB[s][j]}, {acc[i][j]}")
            if i == 3: L.append(f"v_mfma_f32_16x16x32_bf16 {sacc}, {SA[s]}, {SB[s]}, {sacc}")
        return L
    def rotW(sreg, sd):
        return [f"s_cmp_eq_u32 s{sreg}, {4*16384}", f"s_cselect_b32 s{sd}, {(-4*16384) & 0xffffffff:#x}, s{s16k}", f"s_add_u32 s{sreg}, s{sreg}, s{sd}"]
    def rot37(sd):
        return [f"s_cmp_eq_u32 s{s37off}, s{s37last}", f"s_cselect_b32 s{sd}, s{s37wrap}, s{s37step}", f"s_add_u32 s{s37off}, s{s37off}, s{sd}"]
    A("s_waitcnt vmcnt(18) lgkmcnt(0)\ns_barrier")
    A.ext(reads(0, 0))
    for r in vWa: A(f"v_add_u32 v{r}, 16384, v{r}")
    for r in vA37: A(f"v_add_u32 v{r}, s{s37step}, v{r}")
    A(f"""s_mov_b32 s{sWrd}, 16384
    s_mov_b32 s{s37off}, s{s37step}
    s_mov_b32 s{sWwr}, {4*16384}
    s_mov_b32 s{sIt}, 0
    s_waitcnt lgkmcnt(0)
    s_barrier""")
    A.ext(ts.stamp(1))
    if ts.on: A("s_waitcnt lgkmcnt(0)")
    body = []
    BG = opt.get("bar_gap", 61)
    rg = [2*k for k in range(27)]
    def rotreads(f):
        put(f, 47, rotW(sWrd, sT1)); put(f, 49, rot37(sT2))
        for k, r in enumerate(vWa): put(f, 51 + k, f"v_add_u32 v{r}, s{sT1}, v{r}")
        for k, r in enumerate(vA37): put(f, 54 + k, f"v_add_u32 v{r}, s{sT2}, v{r}")
    f = {}
    for k, r in enumerate(reads(1, 1)): put(f, rg[k], r)
    dg = [1, 9, 17, 25, 33, 39, 45, 53]
    for k, (pre, d) in enumerate(wdma(0, f"s{sWwr}") + wdma(1, f"s{sWwr}")):
        if pre: put(f, dg[k] - 1, pre)
        put(f, dg[k], d)
    put(f, 3, rotW(sWwr, sT0)); put(f, 35, rotW(sWwr, sT0))
    put(f, 58, advW[0])
    rotreads(f)
    put(f, 59, f"v_xor_b32 v{vSWa}, 0x1000, v{vSWa}")
    put(f, 19, f"v_xor_b32 v{vXa[0]}, 0x8000, v{vXa[0]}"); put(f, 21, f"v_xor_b32 v{vSXa[0]}, 0x8000, v{vSXa[0]}")
    put(f, 27, [f"s_cmp_eq_u32 s{sIt}, 14", f"s_cselect_b32 s{S_X+2}, 0, s{S_X+2}"])
    put(f, BG, ["s_waitcnt vmcnt(8) lgkmcnt(0)", "s_barrier"])
    body += interleave(mfmas(0), f)
    f = {}
    for k, r in enumerate(reads(0, 0)): put(f, rg[k], r)
    put(f, -1, [f"s_and_b32 s{sT3}, s{sIt}, 1", f"s_lshl_b32 s{sT0}, s{sT3}, 15", f"s_lshl_b32 s{sT3}, s{sT3}, 12"])
    dg = [1, 7, 13, 19, 25, 31, 37, 43, 49, 55]
    for k, (pre, d) in enumerate(xdma(f"s{sT0}") + qkdma(f"s{sT3}")):
        if pre: put(f, dg[k] - 1, pre)
        put(f, dg[k], d)
    put(f, 45, advX[0]); put(f, 46, advX[1]); put(f, 58, advX[2]); put(f, 59, advX[3])
    rotreads(f)
    put(f, 21, f"v_xor_b32 v{vXa[1]}, 0x8000, v{vXa[1]}"); put(f, 23, f"v_xor_b32 v{vSXa[1]}, 0x8000, v{vSXa[1]}")
    put(f, 60, [f"s_add_u32 s{sIt}, s{sIt}, 1", f"s_cmp_lt_u32 s{sIt}, 16"])
    put(f, BG, ["s_waitcnt lgkmcnt(0)", "s_barrier"])
    put(f, 64, "s_cbranch_scc1 P1_LOOP")
    body += interleave(mfmas(1), f)
    A(".p2align 6\nP1_LOOP:")
    A.ext(body)
    probs += check_hazards(A.lines, "p1pro") + check_hazards(body + body, "p1loop")

    va = Alloc("v", 3, 256)
    vCur = va.get(1); vNxt = va.get(1); vZero = va.get(1); vNon = va.get(1); vQP = va.get(1)
    T = va.get(12, 4)
    S = [va.get(16, 4) for _ in range(2)]
    P = [va.get(8, 4) for _ in range(2)]
    O = [va.get(16, 4) for _ in range(2)]
    Lc = [va.get(4, 4) for _ in range(2)]
    SCL = va.get(8, 4)
    acc3 = [[va.get(4, 4) for j in range(8)] for i in range(4)]
    vW3o = va.get(1); vW3a = [va.get(1) for _ in range(4)]; vG = va.get(2, 2); vFl = va.get(2, 2)
    NEG = [Reg("v", acc3[0][0].base + 16*k, 16) for k in range(2)]
    aa = Alloc("a", 0, 180)
    RX = [[aa.get(4, 4) for j in range(8)] for s in range(4)]
    Q = [[aa.get(4, 4) for t in range(2)] for ab in range(2)]
    K = [[aa.get(4, 4) for t in range(2)] for b in range(2)]
    V = [[aa.get(4, 4) for t in range(2)] for b in range(2)]
    ONES = aa.get(4, 4)
    RW = [[Reg("a", 220 + 16*s + 4*i, 4) for i in range(4)] for s in range(2)]
    QXB = 98304
    W3B = 98304

    E = Asm()
    E.ext(ts.stamp(2))
    vN, vZ = t0, t1
    E(f"""s_mov_b32 s{S_C}, s{P_DBG}
    s_mov_b32 s{S_C+1}, s{P_DBG+1}
    s_mov_b32 s{S_C+2}, 256
    v_mov_b32 v{vZ}, 0
    buffer_load_dword v{vN}, v{vZ}, {srd(S_C)}, 0 offen sc1
    s_lshr_b32 s{sT0}, s{sW}, 1
    s_and_b32 s{sT1}, s{sW}, 1
    s_cmp_lt_u32 s{sCB}, 16
    s_cbranch_scc1 P1_SIDEKV""")
    E(f"""s_mov_b32 s{S_A}, s{P_X}
    s_mov_b32 s{S_A+1}, s{P_X+1}
    s_mov_b32 s{S_A+2}, 0x400000
    s_mov_b32 s{S_B}, s{P_GW}
    s_mov_b32 s{S_B+1}, s{P_GW+1}
    s_mov_b32 s{S_B+2}, 2048
    s_lshl_b32 s{sT2}, s{sRB}, 4
    s_add_u32 s{sT2}, s{sT2}, s{sCB}
    s_sub_u32 s{sT2}, s{sT2}, 16
    s_lshl_b32 s{sT2}, s{sT2}, 2
    s_add_u32 s{sT2}, s{sT2}, s{sW}
    s_lshl_b32 s{sT2}, s{sT2}, 13
    s_add_u32 s{sT3}, s{sT2}, 4096""")
    for h in range(2): E(f"buffer_load_dwordx4 {GWa.sub(4*h,4)}, {vL16}, {srd(S_B)}, 0 offen offset:{h*1024}")
    for r in range(4):
        for h in range(2):
            E(f"buffer_load_dwordx4 {GXa[r].sub(4*h,4)}, {vL16}, {srd(S_A)}, s{sT2 + (r>>1)} offen offset:{(r&1)*2048 + h*1024}")
    E("s_branch P1_NOSIDE\nP1_SIDEKV:")
    E(f"""s_bfe_u32 s{sT2}, s{sCB}, 0x30001
    s_lshl_b32 s{sT3}, s{sRB}, 3
    s_add_u32 s{sT2}, s{sT2}, s{sT3}
    s_lshl_b32 s{sT2}, s{sT2}, 12
    s_add_u32 s{sT2}, s{sT2}, {KV_OFF}""")
    u = vT + 4
    for r in range(4): E(f"v_accvgpr_read_b32 v{u+r}, {sacc[r]}")
    E(f"v_cvt_pk_bf16_f32 v{u+4}, v{u}, v{u+1}\nv_cvt_pk_bf16_f32 v{u+5}, v{u+2}, v{u+3}")
    E(f"""v_bfe_u32 v{u}, {vL}, 3, 1
    v_lshlrev_b32 v{u}, 4, v{u}
    v_and_b32 v{u+1}, 7, {vL}
    v_add_u32 v{u}, v{u}, v{u+1}
    v_bfe_u32 v{u+1}, {vL}, 4, 1
    v_lshl_add_u32 v{u}, v{u+1}, 5, v{u}
    v_lshlrev_b32 v{u}, 4, v{u}
    v_lshrrev_b32 v{u+1}, 5, {vL}
    v_lshl_add_u32 v{u}, v{u+1}, 10, v{u}
    s_bitcmp1_b32 s{sCB}, 0
    s_cbranch_scc1 P1_SIDEV
    s_lshl_b32 s{sT3}, s{sT0}, 7
    s_add_u32 s{sT2}, s{sT2}, s{sT3}
    s_lshl_b32 s{sT3}, s{sT1}, 3
    s_add_u32 s{sT2}, s{sT2}, s{sT3}
    s_branch P1_SIDEST
    P1_SIDEV:
    v_lshrrev_b32 v{u+6}, 4, {vL}
    v_lshlrev_b32 v{u+6}, 7, v{u+6}
    v_and_b32 v{u+7}, 15, {vL}
    v_lshl_add_u32 v{u+6}, v{u+7}, 1, v{u+6}
    s_lshl_b32 s{sT3}, s{sW}, 9
    v_add_u32 v{u+6}, s{sT3}, v{u+6}
    ds_write_b16 v{u+6}, v{u+4}
    ds_write_b16_d16_hi v{u+6}, v{u+4} offset:32
    ds_write_b16 v{u+6}, v{u+5} offset:64
    ds_write_b16_d16_hi v{u+6}, v{u+5} offset:96
    v_lshlrev_b32 v{u+7}, 5, v{u+7}
    v_lshrrev_b32 v{u+6}, 4, {vL}
    v_lshl_add_u32 v{u+7}, v{u+6}, 3, v{u+7}
    v_add_u32 v{u+7}, s{sT3}, v{u+7}
    s_waitcnt lgkmcnt(0)
    ds_read_b64 v[{u+4}:{u+5}], v{u+7}
    s_lshl_b32 s{sT3}, s{sT1}, 7
    s_add_u32 s{sT2}, s{sT2}, s{sT3}
    s_lshl_b32 s{sT3}, s{sT0}, 3
    s_add_u32 s{sT2}, s{sT2}, s{sT3}
    s_add_u32 s{sT2}, s{sT2}, 2048
    s_waitcnt lgkmcnt(0)
    P1_SIDEST:
    buffer_store_dwordx2 v[{u+4}:{u+5}], v{u}, {srd(S_WS)}, s{sT2} offen {SC1}
    P1_NOSIDE:""")
    sO = sL + 10
    sC = sL + 1
    E(f"""s_lshr_b32 s{sT2}, s{sCB}, 1
    s_mul_i32 s{sT2}, s{sT2}, 7
    s_and_b32 s{sT3}, s{sCB}, 1
    s_lshl_b32 s{sO}, s{sRB}, 4
    s_lshl_b32 s{sT0}, s{sT0}, 3
    s_add_u32 s{sO}, s{sO}, s{sT0}
    s_lshl_b32 s{sO}, s{sO}, 10
    s_lshl_b32 s{sT2}, s{sT2}, 17
    s_add_u32 s{sO}, s{sO}, s{sT2}
    s_cmp_eq_u32 s{sT1}, 1
    s_cbranch_scc1 P1_EPI1
    s_mul_i32 s{sT3}, s{sT3}, {5*131072}
    s_add_u32 s{sO}, s{sO}, s{sT3}
    s_add_u32 s{sO+2}, s{sO}, 131072""")
    def hmath(pairs, dst):
        L = []
        for Gx, U in pairs:
            for r in range(4): L.append(f"v_max_f32 {Gx[r]}, 0, {Gx[r]}")
        for Gx, U in pairs:
            for r in (0, 2): L.append(f"v_pk_mul_f32 {Gx.sub(r,2)}, {Gx.sub(r,2)}, {U.sub(r,2)}")
        for k, (Gx, U) in enumerate(pairs):
            L.append(f"v_cvt_pk_bf16_f32 {dst[2*k]}, {Gx[0]}, {Gx[1]}"); L.append(f"v_cvt_pk_bf16_f32 {dst[2*k+1]}, {Gx[2]}, {Gx[3]}")
        return L
    for fb in range(2):
        for j in range(8):
            U1 = acc[5+2*fb][j]
            if U1.f == "a":
                Tt = Reg("v", vT + 4 + 4*(j % 2), 4)
                for r in range(4): E(f"v_accvgpr_read_b32 {Tt[r]}, {U1[r]}")
                U1 = Tt
            E.ext(hmath([(acc[2*fb][j], acc[4+2*fb][j]), (acc[2*fb+1][j], U1)], acc[4+2*fb][j]))
    E("s_branch P1_EPID\nP1_EPI1:")
    E(f"""s_lshl_b32 s{sO+2}, s{sT3}, 3
    s_add_u32 s{sO+2}, s{sO+2}, s{sO}
    s_add_u32 s{sO+2}, s{sO+2}, {3*131072}
    s_lshl_b32 s{sT3}, s{sT3}, 18
    s_add_u32 s{sO}, s{sO}, s{sT3}
    s_add_u32 s{sO}, s{sO}, {2*131072}
    s_mov_b32 s{sC}, {f2u(QSCALE):#x}
    s_mov_b32 s{sC+1}, {f2u(QSCALE):#x}
    s_lshl_b32 s{sT0}, s{sT0}, 10
    s_add_u32 s{sT0}, s{sT0}, {QXB}
    v_add_u32 v{t2}, s{sT0}, {vL16}""")
    for j in range(8):
        F0 = acc[3][j]; F1 = Reg("v", vT + 4 + 4*(j % 2), 4)
        for r in range(4): E(f"v_accvgpr_read_b32 {F1[r]}, {acc[7][j][r]}")
        for F in (F0, F1):
            for r in (0, 2): E(f"v_pk_mul_f32 {F.sub(r,2)}, {F.sub(r,2)}, s[{sC}:{sC+1}]")
        E(f"v_cvt_pk_bf16_f32 {F0[0]}, {F0[0]}, {F0[1]}\nv_cvt_pk_bf16_f32 {F0[1]}, {F0[2]}, {F0[3]}")
        E(f"v_cvt_pk_bf16_f32 {F0[2]}, {F1[0]}, {F1[1]}\nv_cvt_pk_bf16_f32 {F0[3]}, {F1[2]}, {F1[3]}")
        E(f"ds_write_b128 v{t2}, {F0} offset:{j*1024}")
    for j in range(8):
        E.ext(hmath([(acc[0][j], acc[4][j]), (acc[1][j], acc[5][j])], acc[4][j]))
        E.ext(hmath([(acc[2][j], acc[6][j])], acc[6][j]))
    E("P1_EPID:")
    E(f"s_add_u32 s{sO+1}, s{sO}, 4096\ns_add_u32 s{sO+3}, s{sO+2}, 4096")
    hst0 = [VM(f"buffer_store_dwordx4 {acc[4][j]}, {vL16}, {srd(S_WS)}, s{sO + (j>>2)} offen offset:{(j&3)*1024} {SC1}", "H") for j in range(8)]
    hst1a = [VM(f"buffer_store_dwordx4 {acc[6][j]}, {vL16}, {srd(S_WS)}, s{sO + 2 + (j>>2)} offen offset:{(j&3)*1024} {SC1}", "H") for j in range(8)]
    hst1b = [VM(f"buffer_store_dwordx2 {acc[6][j].sub(0,2)}, {vL16}, {srd(S_WS)}, s{sO + 2 + (j>>2)} offen offset:{(j&3)*1024} {SC1}", "H") for j in range(8)]
    E("s_waitcnt vmcnt(0) lgkmcnt(0)")
    E.ext(ts.stamp(3))
    E(f"""v_readfirstlane_b32 s{sNonce}, v{vN}
    s_mov_b32 s{sT0}, {SPIN_MAX}
    P1_NPOLL:
    s_cmp_lg_u32 s{sNonce}, 0
    s_cbranch_scc1 P1_NOK
    s_sleep 2
    buffer_load_dword v{vN}, v{vZ}, {srd(S_C)}, 0 offen sc1
    s_waitcnt vmcnt(0)
    v_readfirstlane_b32 s{sNonce}, v{vN}
    s_sub_u32 s{sT0}, s{sT0}, 1
    s_cmp_lg_u32 s{sT0}, 0
    s_cbranch_scc1 P1_NPOLL
    s_endpgm
    P1_NOK:
    s_barrier
    s_cmp_ge_u32 s{sCB}, 16
    s_cbranch_scc1 P1_NOFLAG
    s_cmp_lg_u32 s{sW}, 0
    s_cbranch_scc1 P1_NOFLAG
    s_lshl_b32 s{sT0}, s{sRB}, 4
    s_add_u32 s{sT0}, s{sT0}, s{sCB}
    s_lshl_b32 s{sT0}, s{sT0}, 2
    s_add_u32 s{sT0}, s{sT0}, {FL_E}
    s_mov_b64 exec, 1
    buffer_store_dword v{vN}, v{vZ}, {srd(S_WS)}, s{sT0} offen sc1
    s_mov_b64 exec, -1
    P1_NOFLAG:""")
    probs += check_hazards(body[-20:] + E.lines, "p1epi")
    A.ext(E.lines)

    B = Asm()
    S_KVD = S_C
    sCur, sNext, sFree, sKVo, sM0, sFl = sL, sL + 1, sL + 2, sL + 3, sL + 4, sL + 5
    B(f"""v_mov_b32 {vNon}, s{sNonce}
    v_mov_b32 {vZero}, 0
    v_bfe_u32 {T[0]}, {vL}, 4, 1
    v_and_b32 {T[1]}, 15, {vL}
    v_lshrrev_b32 {T[2]}, 5, {vL}
    v_lshl_add_u32 {T[1]}, {T[2]}, 4, {T[1]}
    v_lshlrev_b32 {T[1]}, 4, {T[1]}
    v_lshl_add_u32 {vQP}, {T[0]}, 10, {T[1]}
    s_lshl_b32 s{sT0}, s{sW}, 12
    s_add_u32 s{sT0}, s{sT0}, {QXB}
    v_add_u32 {T[3]}, s{sT0}, {vQP}""")
    for ab in range(2):
        for t in range(2): B(f"ds_read_b128 {Q[ab][t]}, {T[3]} offset:{ab*2048 + t*512}")
    B(f"s_cmp_lt_u32 s{sCB}, 16\ns_cbranch_scc1 P2_NOG")
    W32 = NEG[0]; X32 = NEG[1]; GX = S[0].sub(0, 8); GW = S[0].sub(8, 8)
    for k in range(8): B(f"v_accvgpr_read_b32 {GW[k]}, {GWa[k]}")
    for k in range(8): B(f"v_lshlrev_b32 {W32[2*k]}, 16, {GW[k]}\nv_and_b32 {W32[2*k+1]}, 0xffff0000, {GW[k]}")
    B(f"v_mov_b32 {T[8]}, 0x3f803f80")
    for r in range(4):
        for k in range(8): B(f"v_accvgpr_read_b32 {GX[k]}, {GXa[r][k]}")
        for k in range(8): B(f"v_lshlrev_b32 {X32[2*k]}, 16, {GX[k]}\nv_and_b32 {X32[2*k+1]}, 0xffff0000, {GX[k]}")
        for k in range(8): B(f"v_pk_mul_f32 {X32.sub(2*k,2)}, {X32.sub(2*k,2)}, {W32.sub(2*k,2)}")
        for k in range(8): B(f"v_cvt_pk_bf16_f32 {X32[k]}, {X32[2*k]}, {X32[2*k+1]}")
        B(f"v_mov_b32 {T[4+r]}, 0")
        for k in range(8): B(f"v_dot2_f32_bf16 {T[4+r]}, {X32[k]}, {T[8]}, {T[4+r]}")
    B("s_nop 2")
    for sh in (8, 4, 2, 1):
        for r in range(4): B(f"v_add_f32_dpp {T[4+r]}, {T[4+r]}, {T[4+r]} row_ror:{sh} row_mask:0xf bank_mask:0xf")
    for sw in ("16", "32"):
        for r in range(4): B(f"v_mov_b32 {T[8+r]}, {T[4+r]}")
        for r in range(4): B(f"v_permlane{sw}_swap_b32 {T[4+r]}, {T[8+r]}")
        for r in range(4): B(f"v_add_f32 {T[4+r]}, {T[4+r]}, {T[8+r]}")
    for r in range(4): B(f"v_cvt_pk_bf16_f32 {T[4+r]}, {T[4+r]}, {T[4+r]}")
    for r in range(4): B(f"v_and_b32 {T[4+r]}, 0xffff0000, {T[4+r]}")
    for r in range(4): B(f"v_mul_f32 {T[4+r]}, {f2u(-LOG2E):#x}, {T[4+r]}")
    for r in range(4): B(f"v_exp_f32 {T[4+r]}, {T[4+r]}")
    for r in range(4): B(f"v_add_f32 {T[4+r]}, 1.0, {T[4+r]}")
    for r in range(4): B(f"v_rcp_f32 {T[4+r]}, {T[4+r]}")
    for r in range(4): B(f"v_cvt_pk_bf16_f32 {T[4+r]}, {T[4+r]}, {T[4+r]}")
    for r in range(4): B(f"v_and_b32 {T[4+r]}, 0xffff0000, {T[4+r]}")
    B(f"""s_lshl_b32 s{sT2}, s{sRB}, 4
    s_add_u32 s{sT2}, s{sT2}, s{sCB}
    s_sub_u32 s{sT2}, s{sT2}, 16
    s_lshl_b32 s{sT2}, s{sT2}, 2
    s_add_u32 s{sT2}, s{sT2}, s{sW}
    s_lshl_b32 s{sT2}, s{sT2}, 4
    s_add_u32 s{sT2}, s{sT2}, {G_OFF}
    s_mov_b64 exec, 1
    buffer_store_dwordx4 {T.sub(4,4)}, {vZero}, {srd(S_WS)}, s{sT2} offen sc1
    s_mov_b64 exec, -1
    s_nop 0
    P2_NOG:""")
    for ab in range(2):
        for r in range(16): B(f"v_mov_b32 {O[ab][r]}, 0")
        for r in range(4): B(f"v_mov_b32 {Lc[ab][r]}, 0")
    for r in range(8): B(f"v_mov_b32 {P[1][r]}, 0")
    for t in range(2):
        for r in range(4): B(f"v_accvgpr_write_b32 {V[1][t][r]}, 0")
    B(f"""v_lshrrev_b32 {T[4]}, 2, {vL}
    v_lshrrev_b32 {T[5]}, 4, {vL}
    v_xor_b32 {T[4]}, {T[4]}, {T[5]}
    v_and_b32 {T[4]}, 1, {T[4]}
    v_cmp_eq_u32 vcc, 0, {T[4]}
    v_mov_b32 {T[5]}, 0x3f803f80
    v_mov_b32 {vCur}, {vL16}
    v_cndmask_b32 {T[5]}, 0, {T[5]}, vcc
    v_add_u32 {vNxt}, 32768, {vL16}""")
    for r in range(4): B(f"v_accvgpr_write_b32 {ONES[r]}, {T[5]}")
    B(f"""s_mov_b32 s{S_KVD}, s{P_WS}
    s_mov_b32 s{S_KVD+1}, s{P_WS+1}
    s_mov_b32 s{S_KVD+2}, {KV_OFF + 262144}
    s_lshl_b32 s{sM0}, s{sW}, 13
    s_add_u32 s{sKVo}, s{sM0}, {KV_OFF}
    s_mov_b32 s{sCur}, 0
    s_mov_b32 s{sNext}, 32768
    s_mov_b32 s{sFree}, 65536
    s_lshl_b32 s{sFl}, s{sRB}, 2
    s_add_u32 s{sFl}, s{sFl}, s{sW}
    s_lshl_b32 s{sFl}, s{sFl}, 5
    s_add_u32 s{sFl}, s{sFl}, s{sCB}
    s_lshl_b32 s{sFl}, s{sFl}, 2
    s_add_u32 s{sFl}, s{sFl}, {FL_H}
    v_lshlrev_b32 {T[6]}, 3, {vL}""")
    def check(regs):
        L = [f"v_cmp_eq_u32 vcc, s{sNonce}, {regs[0]}"]
        if len(regs) > 1: L += [f"v_cmp_eq_u32 s[{sT2}:{sT3}], s{sNonce}, {regs[1]}", "s_nop 0", f"s_and_b64 vcc, vcc, s[{sT2}:{sT3}]"]
        else: L += ["s_nop 0"]
        return L + ["s_cmp_eq_u64 vcc, -1"]
    def spin(label, load, regs, back=None):
        L = [f"s_mov_b32 s{sT0}, {SPIN_MAX}", f"{label}_L:", load, "s_waitcnt vmcnt(0)"] + check(regs)
        L += [f"s_cbranch_scc1 {back or label + '_OK'}", "s_sleep 1", f"s_sub_u32 s{sT0}, s{sT0}, 1",
              f"s_cmp_lg_u32 s{sT0}, 0", f"s_cbranch_scc1 {label}_L", "s_endpgm"]
        if not back: L.append(f"{label}_OK:")
        return L
    B.ext(ts.stamp(4))
    B(f"s_mov_b32 s{sT1}, {FL_E}")
    B.ext(spin("P2_POLL", f"buffer_load_dwordx2 {T.sub(8,2)}, {T[6]}, {srd(S_WS)}, s{sT1} offen sc1", [T[8], T[9]]))
    B.ext(ts.stamp(5))
    def kvdma(slot, tag):
        L = []
        for e in range(8):
            pre = []
            if e == 0: pre = [f"s_add_u32 m0, s{slot}, s{sM0}"]
            if e == 4: pre = [f"s_add_u32 s{sT0}, s{slot}, s{sM0}", f"s_add_u32 m0, s{sT0}, 4096", f"s_add_u32 s{sKVo}, s{sKVo}, 4096"]
            L.append((pre, VM(f"buffer_load_dwordx4 {vL16}, {srd(S_KVD)}, s{sKVo} offen offset:{(e&3)*1024} {SC1} lds", tag)))
        return L
    post_dma = f"s_add_u32 s{sKVo}, s{sKVo}, {32768 - 4096}"
    for sl in (sCur, sNext):
        for pre, d in kvdma(sl, "KV"):
            B.ext(pre)
            if pre: B("s_nop 0")
            B(d)
        B(post_dma)
    B("s_waitcnt vmcnt(8) lgkmcnt(0)\ns_barrier")
    B(f"""ds_read_b128 {K[0][0]}, {vCur}
    ds_read_b128 {K[0][1]}, {vCur} offset:1024
    ds_read_b128 {V[0][0]}, {vCur} offset:2048
    ds_read_b128 {V[0][1]}, {vCur} offset:3072""")
    B.ext(hst0)
    B(f"s_bitcmp1_b32 s{sW}, 0\ns_cbranch_scc1 P2_HS1")
    hist = list(B.lines)
    B.ext(hst1a); hist += hst1a
    B("s_branch P2_HS2\nP2_HS1:")
    B.ext(hst1b)
    B("P2_HS2:")
    B(f"""s_waitcnt lgkmcnt(0)
    v_mfma_f32_32x32x16_bf16 {S[0]}, {K[0][0]}, {Q[0][0]}, 0
    v_mfma_f32_32x32x16_bf16 {S[0]}, {K[0][1]}, {Q[0][1]}, {S[0]}""")
    B.ext(ts.stamp(6))
    B("s_nop 7\ns_nop 3")
    probs += check_hazards(B.lines, "p2pro")
    A.ext(B.lines)

    NS = 4
    S_AF, S_W3, S_OUT = S_A, S_B, S_D
    sMT, sNT = sL + 6, sL + 7
    sAo = sL + 8
    sSo3 = sL + 9
    sM3 = sL + 13
    sWo, sWoN = 30, 15
    setup3 = Asm()
    setup3(f"""s_and_b32 s{sT0}, s{sCB}, 1
    s_lshl_b32 s{sMT}, s{sRB}, 1
    s_add_u32 s{sMT}, s{sMT}, s{sT0}
    s_lshr_b32 s{sT0}, s{sCB}, 3
    s_lshl_b32 s{sT0}, s{sT0}, 2
    s_bfe_u32 s{sT1}, s{sCB}, 0x20001
    s_add_u32 s{sNT}, s{sT0}, s{sT1}
    s_lshl_b32 s{sT0}, s{sNT}, 7
    s_add_u32 s{S_W3}, s{P_WD}, s{sT0}
    s_addc_u32 s{S_W3+1}, s{P_WD+1}, 0
    s_sub_u32 s{S_W3+2}, {3584*2048}, s{sT0}
    s_add_u32 s{sWo}, s{P_WO}, s{sT0}
    s_addc_u32 s{sWo+1}, s{P_WO+1}, 0
    s_sub_u32 s{sWoN}, {1024*2048}, s{sT0}
    s_mov_b32 s{S_AF}, s{P_WS}
    s_mov_b32 s{S_AF+1}, s{P_WS+1}
    s_mov_b32 s{S_AF+2}, {AF_SIZE}
    s_mov_b32 s{S_OUT}, s{P_OUT}
    s_mov_b32 s{S_OUT+1}, s{P_OUT+1}
    s_mov_b32 s{S_OUT+2}, 0x400000
    s_lshl_b32 s{sAo}, s{sW}, 17
    s_lshl_b32 s{sT0}, s{sMT}, 13
    s_add_u32 s{sAo}, s{sAo}, s{sT0}
    s_add_u32 s{sAo+1}, s{sAo}, 4096
    s_lshl_b32 s{sM3}, s{sW}, 14
    s_add_u32 s{sM3}, s{sM3}, {W3B}""")
    for e in range(1, 4): setup3(f"s_mov_b32 s{sSo3+e}, {e*16384 - e*1024}")
    setup3v = Asm()
    setup3v(f"""v_lshrrev_b32 {T[0]}, 3, {vL}
    v_lshrrev_b32 {T[1]}, 4, {vL}
    v_lshlrev_b32 {T[2]}, 1, {T[1]}
    v_and_b32 {T[3]}, 7, {vL}
    v_xor_b32 {T[2]}, {T[2]}, {T[3]}
    v_lshlrev_b32 {T[2]}, 4, {T[2]}
    v_lshl_add_u32 {vW3o}, {T[0]}, 11, {T[2]}
    s_lshl_b32 s{sT0}, s{sW}, 16
    v_add_u32 {vW3o}, s{sT0}, {vW3o}
    v_lshrrev_b32 {T[0]}, 2, {vL}
    v_bfe_u32 {T[1]}, {vL}, 3, 2
    v_and_b32 {T[2]}, 3, {vL}
    v_lshlrev_b32 {T[2]}, 3, {T[2]}
    v_lshl_add_u32 {T[2]}, {T[0]}, 7, {T[2]}
    v_add_u32 {T[2]}, s{sM3}, {T[2]}""")
    for i in range(4): setup3v(f"v_xor_b32 {T[3]}, {i}, {T[1]}\nv_lshl_add_u32 {vW3a[i]}, {T[3]}, 5, {T[2]}")
    setup3v(f"""v_lshlrev_b32 {T[4]}, 3, {vL}
    v_lshlrev_b32 {T[5]}, 2, {vL}
    v_and_b32 {T[6]}, 31, {vL}
    v_lshlrev_b32 {T[6]}, 2, {T[6]}
    v_and_b32 {T[7]}, 15, {vL}
    v_lshlrev_b32 {T[7]}, 2, {T[7]}""")
    zero3 = [f"v_mov_b32 {acc3[i][j][r]}, 0" for i in range(4) for j in range(8) for r in range(4)]
    def w3dma(slot, e):
        m0 = f"s_add_u32 m0, s{sM3}, {slot*4096}"
        return m0, VM(f"buffer_load_dwordx4 {vW3o}, {srd(S_W3)}, {'0' if e == 0 else 's%d' % (sSo3+e)} offen offset:{e*1024} lds", ("W", slot))
    def xload(slot, j):
        return VM(f"buffer_load_dwordx4 {RX[slot][j]}, {vL16}, {srd(S_AF)}, s{sAo + (j>>2)} offen offset:{(j&3)*1024} {SC1}", ("X", slot))
    adv3 = [f"v_add_u32 {vW3o}, {4*65536}, {vW3o}", f"s_add_u32 s{sAo}, s{sAo}, {4*131072}", f"s_add_u32 s{sAo+1}, s{sAo+1}, {4*131072}"]
    def wread(slot, s):
        return [f"ds_read_b64_tr_b16 {RW[s][i].sub(2*hf,2)}, {vW3a[i]} offset:{slot*4096 + hf*2048}" for i in range(4) for hf in range(2)]
    def gm(s, j, i): return f"v_mfma_f32_16x16x32_bf16 {acc3[i][j]}, {RW[s&1][i]}, {RX[s][j]}, {acc3[i][j]}"

    def att_parts(ab, kq, vp):
        o = ab ^ 1
        M = [f"v_mfma_f32_32x32x16_bf16 {S[o]}, {K[kq][0]}, {Q[o][0]}, 0",
             f"v_mfma_f32_32x32x16_bf16 {S[o]}, {K[kq][1]}, {Q[o][1]}, {S[o]}",
             f"v_mfma_f32_32x32x16_bf16 {O[o]}, {V[vp][0]}, {P[o].sub(0,4)}, {O[o]}",
             f"v_mfma_f32_16x16x32_bf16 {Lc[o]}, {ONES}, {P[o].sub(0,4)}, {Lc[o]}",
             f"v_mfma_f32_32x32x16_bf16 {O[o]}, {V[vp][1]}, {P[o].sub(4,4)}, {O[o]}",
             f"v_mfma_f32_16x16x32_bf16 {Lc[o]}, {ONES}, {P[o].sub(4,4)}, {Lc[o]}"]
        ex = [f"v_exp_f32 {S[ab][r]}, {S[ab][r]}" for r in range(16)]
        cv = [f"v_cvt_pk_bf16_f32 {P[ab][r]}, {S[ab][2*r]}, {S[ab][2*r+1]}" for r in range(8)]
        return M, ex, cv
    def phase_plain(ab, kq, vp, extra):
        M, ex, cv = att_parts(ab, kq, vp)
        vl = []
        for r in range(16):
            vl.append(ex[r])
            if r >= 3 and r % 2 == 1: vl.append(cv[(r - 3)//2])
        vl.append(cv[7])
        mpos = [0, 4, 8, 12, 15, 19]
        out = []; mi = 0
        for i, v in enumerate(vl):
            while mi < 6 and mpos[mi] == i:
                out.append(M[mi]); out.extend(extra.get(mi, [])); mi += 1
            out.append(v)
        return out
    def phase_merged(ab, kq, vp, G8, extra):
        M, ex, cv = att_parts(ab, kq, vp)
        order = [M[0], G8[0], M[1], G8[1], G8[2], M[2], G8[3], M[3], G8[4], M[4], G8[5], M[5], G8[6], G8[7]]
        e, c = ex, cv
        fill = [[e[0], e[1], e[2]], [e[3]], [e[4], e[5], e[6]], [c[0], c[1]], [e[7]], [e[8], e[9], e[10]], [c[2], c[3]], [e[11]],
                [c[4]], [e[12], e[13], e[14]], [e[15]], [c[5], c[6]], [c[7]], []]
        out = []
        for k in range(14):
            out.append(order[k]); out.extend(extra.get(k, [])); out.extend(fill[k])
        return out
    def chunk(kind, hook=None):
        out = []
        dl = kvdma(sFree, "KV")
        mer = kind == "merged"
        sl = dict(k0=1, k1=2, kv=5, kvpre=4) if not mer else dict(k0=2, k1=5, kv=9, kvpre=7)
        for pi in range(16):
            tau, ab = pi >> 1, pi & 1
            kp = tau & 1
            ex = {}; pre = []
            if ab == 0:
                src = (vCur, (tau+1)*4096) if tau < 7 else (vNxt, 0)
                ld = [f"ds_read_b128 {K[kp^1][t]}, {src[0]} offset:{src[1] + t*1024}" for t in range(2)]
                if tau == 7: put(ex, 0, [Need(["KV"], "lgkmcnt(0)"), "s_barrier"])
            else:
                src = (vCur, (tau+1)*4096 + 2048) if tau < 7 else (vNxt, 2048)
                ld = [f"ds_read_b128 {V[kp^1][t]}, {src[0]} offset:{src[1] + t*1024}" for t in range(2)]
                pre = ["s_waitcnt lgkmcnt(0)"]
            put(ex, sl["k0"], ld[0]); put(ex, sl["k1"], ld[1])
            if pi < 8:
                pp, d = dl[pi]
                if mer and not pp: pp = [f"s_add_u32 s{sT0}, s{sFree}, s{sM0}", f"s_add_u32 m0, s{sT0}, {(pi>>2)*4096}"]
                if pp: put(ex, sl["kvpre"], pp)
                put(ex, sl["kv"], d)
                if pi == 7: put(ex, sl["kv"], post_dma)
            if pi == 15:
                put(ex, sl["kv"], [f"s_mov_b32 s{sT0}, s{sCur}", f"s_mov_b32 s{sCur}, s{sNext}", f"s_mov_b32 s{sNext}, s{sFree}", f"s_mov_b32 s{sFree}, s{sT0}",
                                   f"s_add_u32 s{sIt}, s{sIt}, 1"])
            if mer:
                s, q = pi >> 2, pi & 3
                G8 = [gm(s, 2*q + jj, i) for jj in range(2) for i in range(4)]
                if q == 0: pre = [Need([("W", (s+1) % NS), ("X", s)], "lgkmcnt(0)")]
                m0, d = w3dma(s, q)
                put(ex, 0, m0); put(ex, 1, d)
                rd = wread((s+1) % NS, (s+1) & 1)
                put(ex, 3, rd[2*q]); put(ex, 10, rd[2*q+1])
                put(ex, 8, xload(s, 2*q)); put(ex, 13, xload(s, 2*q+1))
                if q == 3: put(ex, 13, adv3)
            if hook: hook(pi, ex, pre)
            if mer: out += pre + phase_merged(ab, kp ^ ab, kp ^ 1 ^ ab, G8, ex)
            else: out += pre + phase_plain(ab, kp ^ ab, kp ^ 1 ^ ab, ex)
        out += [f"v_add_u32 {vCur}, s{sCur}, {vL16}", f"v_add_u32 {vNxt}, s{sNext}, {vL16}"]
        return out

    def hook0(pi, ex, pre):
        if pi == 9: put(ex, 3, setup3.lines[:14])
        if pi == 11: put(ex, 3, setup3.lines[14:])
    c0 = chunk("plain", hook0)
    c0 = [Need(["KVP"], l.extra, 24) if isinstance(l, Need) else l for l in c0]
    def hook1(pi, ex, pre):
        if pi == 2: put(ex, 3, setup3v.lines)
        if 3 <= pi <= 10: put(ex, 3, zero3[(pi-3)*16:(pi-2)*16])
        if pi == 9:
            put(ex, 4, [Need(["H"]), "s_mov_b64 exec, 1", VM(f"buffer_store_dword {vNon}, {vZero}, {srd(S_WS)}, s{sFl} offen sc1", "HF"), "s_mov_b64 exec, -1", "s_nop 2"])
    c1 = chunk("plain", hook1)
    def retag(ch, cur, need):
        out = []
        for l in ch:
            if isinstance(l, VM) and l.tag == "KV": out.append(VM(l, cur))
            elif isinstance(l, Need) and "KV" in l.tags: out.append(Need([need], l.extra))
            else: out.append(l)
        return out
    hpoll = f"buffer_load_dwordx2 {vFl}, {T[4]}, {srd(S_WS)}, s{sT1} offen sc1"
    pro3 = []
    for s in range(NS):
        for e in range(4):
            m0, d = w3dma(s, e)
            pro3.append(([m0] if e == 0 else [], d))
        for j in range(8): pro3.append(([], xload(s, j)))
    HP = opt.get("hpoll_phase", 3)
    def hook2(pi, ex, pre):
        if pi == HP: put(ex, 3, [f"s_lshl_b32 s{sT1}, s{sRB}, 9", f"s_add_u32 s{sT1}, s{sT1}, {FL_H}", VM(hpoll, "HP")])
        if pi == 7:
            put(ex, 3, [Need(["HP"])] + check([vFl[0], vFl[1]]) + ["s_cbranch_scc0 P3_SLOWH", "P3_HOK:"])
            put(ex, 4, [f"s_lshl_b32 s{sT2}, s{sRB}, 10", f"s_lshl_b32 s{sT3}, s{sW}, 8", f"s_add_u32 s{sT2}, s{sT2}, s{sT3}", f"s_add_u32 s{sT2}, s{sT2}, {G_OFF}",
                        f"s_lshl_b32 s{sT3}, s{sMT}, 9", f"s_add_u32 s{sT3}, s{sT3}, {G_OFF}"])
        if pi == 8:
            put(ex, 0, [VM(f"buffer_load_dword {vG[ab]}, {T[6]}, {srd(S_WS)}, s{sT2} offen offset:{ab*128} sc1", "G") for ab in range(2)])
            put(ex, 1, [VM(f"buffer_load_dword {SCL[j]}, {T[7]}, {srd(S_WS)}, s{sT3} offen offset:{j*64} sc1", "G") for j in range(8)])
        if pi >= 8:
            for k in range(6):
                idx = (pi - 8)*6 + k
                pp, d = pro3[idx]
                if pp: put(ex, k, pp + ["s_nop 0"])
                put(ex, k, d)
                if idx % 12 == 11: put(ex, k, adv3)
        if pi == 15:
            put(ex, 5, [Need([("W", 0)])] + wread(0, 0))
    c2 = chunk("plain", hook2)
    c0 = retag(c0, "KV0", "KVP"); c1 = retag(c1, "KV1", "KV0"); c2 = retag(c2, "KV2", "KV1")
    hist = [VM(l, "KVP") if isinstance(l, VM) and l.tag == "KV" else l for l in hist]
    c0 = resolve_waits(c0, hist); c1 = resolve_waits(c1, hist + c0); c2 = resolve_waits(c2, hist + c0 + c1)
    mA = retag(chunk("merged"), "KVa", "KVb"); mB = retag(chunk("merged"), "KVb", "KVa")
    mres = resolve_waits(mA, mB)
    M = mres
    c2v = [VM(l, "KVb") if isinstance(l, VM) and l.tag == "KV2" else l for l in c2]
    probs += verify_waits(hist + c0 + c1 + c2v + M, len(hist + c0 + c1 + c2v), "c2->M")
    D = Asm()
    D(f"s_mov_b32 s{sIt}, 0")
    D.ext(c0); D.ext(c1); D.ext(c2)
    D(".p2align 6\nP2_MLOOP:")
    D.ext(M)
    D(f"s_cmp_lt_u32 s{sIt}, 8\ns_cbranch_scc1 P2_MLOOP")
    probs += check_hazards(B.lines[-8:] + c0 + c1 + c2 + M + M, "att")
    A.ext(D.lines)

    C = Asm()
    C.ext(ts.stamp(7))
    C(f"""v_mfma_f32_32x32x16_bf16 {O[1]}, {V[1][0]}, {P[1].sub(0,4)}, {O[1]}
    v_mfma_f32_16x16x32_bf16 {Lc[1]}, {ONES}, {P[1].sub(0,4)}, {Lc[1]}
    v_mfma_f32_32x32x16_bf16 {O[1]}, {V[1][1]}, {P[1].sub(4,4)}, {O[1]}
    v_mfma_f32_16x16x32_bf16 {Lc[1]}, {ONES}, {P[1].sub(4,4)}, {Lc[1]}""")
    C(f"v_mov_b32 {T[1]}, 0")
    for r in range(16): C(f"v_fmac_f32 {T[1]}, 0, {O[0][r]}")
    for r in range(16): C(f"v_fmac_f32 {T[1]}, 0, {O[1][r]}")
    C(f"""s_mov_b32 s{sT0}, {f2u(2.0**-60):#x}
    s_mov_b32 s{sT1}, {f2u(2.0**100):#x}
    v_cmp_le_f32 vcc, s{sT0}, {Lc[0][0]}
    v_cmp_le_f32 s[{S_C}:{S_C+1}], s{sT0}, {Lc[1][0]}
    s_nop 1
    s_and_b64 vcc, vcc, s[{S_C}:{S_C+1}]
    v_cmp_ge_f32 s[{S_C}:{S_C+1}], s{sT1}, {Lc[0][0]}
    v_cmp_ge_f32 s[{sT2}:{sT3}], s{sT1}, {Lc[1][0]}
    s_nop 1
    s_and_b64 vcc, vcc, s[{S_C}:{S_C+1}]
    s_and_b64 vcc, vcc, s[{sT2}:{sT3}]
    v_cmp_eq_f32 s[{S_C}:{S_C+1}], 0, {T[1]}
    s_nop 1
    s_and_b64 vcc, vcc, s[{S_C}:{S_C+1}]
    s_cmp_eq_u64 vcc, -1""")
    if opt.get("force_fallback"): C("s_branch P2_FALLBACK")
    C("s_cbranch_scc0 P2_FALLBACK")
    C("P2_FINISH:")
    for ab in range(2): C(f"v_rcp_f32 {T[2*ab]}, {Lc[ab][0]}")
    C(f"""s_add_u32 s{sT0}, s{sCB}, 112
    s_lshl_b32 s{sT0}, s{sT0}, 17
    s_lshl_b32 s{sT1}, s{sRB}, 14
    s_add_u32 s{sT0}, s{sT0}, s{sT1}
    s_lshl_b32 s{sT1}, s{sW}, 12
    s_add_u32 s{sT0}, s{sT0}, s{sT1}""")
    for ab in range(2): C(f"v_mul_f32 {T[2*ab]}, {T[2*ab]}, {vG[ab]}")
    for ab in range(2):
        for r in range(0, 16, 2):
            C(f"v_pk_mul_f32 {O[ab].sub(r,2)}, {O[ab].sub(r,2)}, {T.sub(2*ab,2)} op_sel_hi:[1,0]")
        for r in range(8): C(f"v_cvt_pk_bf16_f32 {S[ab][r]}, {O[ab][2*r]}, {O[ab][2*r+1]}")
        for c in range(2):
            C(VM(f"buffer_store_dwordx4 {S[ab].sub(4*c,4)}, {vQP}, {srd(S_WS)}, s{sT0} offen offset:{ab*2048 + c*512} {SC1}", "O"))
    for j in range(8): C(f"v_sub_f32 {SCL[j]}, 1.0, {SCL[j]}")
    for j in range(8): C(f"v_cvt_pk_bf16_f32 {SCL[j]}, {SCL[j]}, {SCL[j]}")
    for j in range(8): C(f"v_and_b32 {SCL[j]}, 0xffff0000, {SCL[j]}")
    sFC = sL
    C(f"""s_lshl_b32 s{sFC}, s{sMT}, 8
    s_add_u32 s{sFC}, s{sFC}, {FL_O}
    s_add_u32 s{sFl}, s{sFl}, {FL_O - FL_H}""")
    C.ext(ts.stamp(8))
    def p3iter(hook=None):
        out = []
        for s in range(NS):
            m = [gm(s, j, i) for j in range(8) for i in range(4)]
            f = {}
            f[-1] = [Need([("W", (s+1) % NS), ("X", s)], "lgkmcnt(0)"), w3dma(s, 0)[0]]
            dgap = [0, 6, 14, 22]
            for e in range(4): put(f, dgap[e], w3dma(s, e)[1])
            for k, r in enumerate(wread((s + 1) % NS, (s+1) & 1)): put(f, 1 + 3*k, r)
            for j in range(8): put(f, 4*j + 3 + (1 if j < 7 else 0), xload(s, j))
            put(f, 31, adv3)
            if hook: hook(s, f)
            out += interleave(m, f)
        return out
    opoll = f"buffer_load_dword {vFl[0]}, {T[5]}, {srd(S_WS)}, s{sFC} offen sc1"
    OFS, OPS = opt.get("oflag_step", 2), opt.get("opoll_step", 3)
    def hookT(s, f):
        if s == OFS: put(f, 10, [Need(["O"]), "s_mov_b64 exec, 1", VM(f"buffer_store_dword {vNon}, {vZero}, {srd(S_WS)}, s{sFl} offen sc1", "OF"), "s_mov_b64 exec, -1", "s_nop 2"])
        if s == OPS: put(f, 26, VM(opoll, "OP"))
    T5 = resolve_waits(p3iter(hookT), M + M + C.lines)
    L3 = resolve_waits(p3iter())
    mid = [Need(["OP"])] + check([vFl[0]]) + ["s_cbranch_scc0 P3_SLOWO", "P3_OOK:",
           f"s_mov_b32 s{S_W3}, s{sWo}", f"s_mov_b32 s{S_W3+1}, s{sWo+1}", f"s_mov_b32 s{S_W3+2}, s{sWoN}",
           f"v_subrev_u32 {vW3o}, {28*4*65536}, {vW3o}", f"s_mov_b32 s{sIt}, 6"]
    mid = resolve_waits(mid, T5)
    probs += verify_waits(M + C.lines + T5 + mid + L3, len(M + C.lines + T5 + mid), "T5->L3")
    tail = [f"s_add_u32 s{sIt}, s{sIt}, 1", f"s_cmp_eq_u32 s{sIt}, 8", "s_cbranch_scc1 P3_LOOP",
            f"s_cmp_eq_u32 s{sIt}, 9", "s_cbranch_scc1 P3_DONE", "s_nop 7"]
    for i in range(4):
        for j in range(8):
            for r in (0, 2):
                tail.append(f"v_pk_mul_f32 {acc3[i][j].sub(r,2)}, {acc3[i][j].sub(r,2)}, {SCL.sub(j & ~1, 2)} op_sel:[0,{j&1}] op_sel_hi:[1,{j&1}]")
    tail += ["s_nop 0", "s_branch P3_LOOP", "P3_DONE:"]
    probs += check_hazards(M[-30:] + C.lines + T5 + mid + L3 + tail + L3, "tail") + check_hazards(L3 + L3, "l3")
    C.ext(T5); C.ext(mid)
    C(".p2align 6\nP3_LOOP:")
    C.ext(L3); C.ext(tail)
    C(f"""v_add_u32 {T[0]}, 0x10000, {vL16}
    v_and_b32 {T[1]}, 15, {vL}
    v_lshlrev_b32 {T[1]}, 11, {T[1]}
    v_bfe_u32 {T[2]}, {vL}, 4, 1
    v_lshl_add_u32 {T[1]}, {T[2]}, 5, {T[1]}
    v_lshrrev_b32 {T[2]}, 5, {vL}
    v_lshl_add_u32 {T[1]}, {T[2]}, 4, {T[1]}
    s_lshl_b32 s{sT0}, s{sMT}, 18
    s_lshl_b32 s{sT1}, s{sW}, 16
    s_add_u32 s{sT0}, s{sT0}, s{sT1}
    s_lshl_b32 s{sT1}, s{sNT}, 7
    s_add_u32 s{sT0}, s{sT0}, s{sT1}
    s_add_u32 s{sT1}, s{sT0}, 32768
    s_barrier""")
    for w in range(3): C(f"s_cmp_eq_u32 s{sW}, {w}\ns_cbranch_scc1 P3_RED{w}")
    A.ext(C.lines)
    def red(w):
        R = Asm()
        R(f"P3_RED{w}:")
        def adr(off): return (vL16, off) if off < 65536 else (T[0], off - 65536)
        for d in range(4):
            if d == w: continue
            q = (w - d - 1) & 3
            for jj in range(2):
                for i in range(4):
                    b_, off = adr((d*3 + q)*8192 + (jj*4 + i)*1024)
                    R(f"ds_write_b128 {b_}, {acc3[i][2*d+jj]} offset:{off}")
        R("s_waitcnt lgkmcnt(0)\ns_barrier")
        free = [acc3[i][j] for j in range(8) if j // 2 != w for i in range(4)]
        k = 0
        for q in range(3):
            for jj in range(2):
                for i in range(4):
                    b_, off = adr((w*3 + q)*8192 + (jj*4 + i)*1024)
                    R(f"ds_read_b128 {free[k]}, {b_} offset:{off}"); k += 1
        for q in range(3):
            R(f"s_waitcnt lgkmcnt({[15, 8, 0][q]})")
            for jj in range(2):
                for i in range(4):
                    a = acc3[i][2*w+jj]; b = free[q*8 + jj*4 + i]
                    for r in (0, 2): R(f"v_pk_add_f32 {a.sub(r,2)}, {a.sub(r,2)}, {b.sub(r,2)}")
        for jj in range(2):
            for ip in range(2):
                X, Y = acc3[2*ip][2*w+jj], acc3[2*ip+1][2*w+jj]
                Dd = S[0].sub(4*(jj*2+ip), 4)
                R(f"v_cvt_pk_bf16_f32 {Dd[0]}, {X[0]}, {X[1]}\nv_cvt_pk_bf16_f32 {Dd[1]}, {X[2]}, {X[3]}")
                R(f"v_cvt_pk_bf16_f32 {Dd[2]}, {Y[0]}, {Y[1]}\nv_cvt_pk_bf16_f32 {Dd[3]}, {Y[2]}, {Y[3]}")
                R(f"s_nop 1\nv_permlane16_swap_b32 {Dd[0]}, {Dd[2]}\nv_permlane16_swap_b32 {Dd[1]}, {Dd[3]}")
                R(f"buffer_store_dwordx4 {Dd}, {T[1]}, {srd(S_OUT)}, s{sT0+jj} offen offset:{ip*64}")
        R.ext(ts.flush(S_WS, sW, S[1].base))
        R("s_endpgm")
        return R
    for w in (3, 0, 1, 2):
        R = red(w)
        probs += check_hazards(L3[-10:] + C.lines[-22:] + R.lines, f"p3red{w}")
        A.ext(R.lines)
    A("P3_SLOWH:"); A.ext(spin("P3_SH", hpoll, [vFl[0], vFl[1]], "P3_HOK"))
    A("P3_SLOWO:"); A.ext(spin("P3_SO", opoll, [vFl[0]], "P3_OOK"))

    F = Asm()
    F("P2_FALLBACK:")
    for ab in range(2): F(f"v_mov_b32 {T[ab]}, 0xff800000")
    F(f"s_mov_b32 s{sT0}, {KV_OFF}")
    F("P2_FB1:")
    for t in range(2): F(f"buffer_load_dwordx4 {K[0][t]}, {vL16}, {srd(S_WS)}, s{sT0} offen offset:{t*1024} {SC1}")
    F("s_waitcnt vmcnt(0)")
    for ab in range(2):
        F(f"v_mfma_f32_32x32x16_bf16 {S[ab]}, {K[0][0]}, {Q[ab][0]}, 0\nv_mfma_f32_32x32x16_bf16 {S[ab]}, {K[0][1]}, {Q[ab][1]}, {S[ab]}")
    F("s_nop 15")
    for ab in range(2):
        for r in range(0, 16, 2): F(f"v_max3_f32 {T[ab]}, {S[ab][r]}, {S[ab][r+1]}, {T[ab]}")
    F(f"s_add_u32 s{sT0}, s{sT0}, 4096\ns_cmp_lt_u32 s{sT0}, {KV_OFF + 262144}\ns_cbranch_scc1 P2_FB1")
    for ab in range(2): F(f"v_mov_b32 {T[2+ab]}, {T[ab]}")
    F("s_nop 1")
    for ab in range(2): F(f"v_permlane32_swap_b32 {T[ab]}, {T[2+ab]}")
    for ab in range(2): F(f"v_max_f32 {T[8+ab]}, {T[ab]}, {T[2+ab]}")
    for ab in range(2):
        for r in range(16): F(f"v_mov_b32 {O[ab][r]}, 0")
        for r in range(4): F(f"v_mov_b32 {Lc[ab][r]}, 0")
    F(f"s_mov_b32 s{sT0}, {KV_OFF}")
    F("P2_FB2:")
    for t in range(2): F(f"buffer_load_dwordx4 {K[0][t]}, {vL16}, {srd(S_WS)}, s{sT0} offen offset:{t*1024} {SC1}")
    for t in range(2): F(f"buffer_load_dwordx4 {V[0][t]}, {vL16}, {srd(S_WS)}, s{sT0} offen offset:{2048 + t*1024} {SC1}")
    F("s_waitcnt vmcnt(0)")
    for ab in range(2):
        F(f"v_mfma_f32_32x32x16_bf16 {S[ab]}, {K[0][0]}, {Q[ab][0]}, 0\nv_mfma_f32_32x32x16_bf16 {S[ab]}, {K[0][1]}, {Q[ab][1]}, {S[ab]}")
    F("s_nop 15")
    for ab in range(2):
        for r in range(16): F(f"v_sub_f32 {S[ab][r]}, {S[ab][r]}, {T[8+ab]}")
        for r in range(16): F(f"v_exp_f32 {S[ab][r]}, {S[ab][r]}")
        F("s_nop 0")
        for r in range(8): F(f"v_cvt_pk_bf16_f32 {P[ab][r]}, {S[ab][2*r]}, {S[ab][2*r+1]}")
    F("s_nop 1")
    for ab in range(2):
        for u_ in range(2):
            F(f"v_mfma_f32_32x32x16_bf16 {O[ab]}, {V[0][u_]}, {P[ab].sub(4*u_,4)}, {O[ab]}")
            F(f"v_mfma_f32_16x16x32_bf16 {Lc[ab]}, {ONES}, {P[ab].sub(4*u_,4)}, {Lc[ab]}")
    F(f"s_add_u32 s{sT0}, s{sT0}, 4096\ns_cmp_lt_u32 s{sT0}, {KV_OFF + 262144}\ns_cbranch_scc1 P2_FB2")
    F("s_nop 15\ns_branch P2_FINISH")
    F("L_END:\ns_endpgm")
    probs += check_hazards(F.lines, "fb")
    A.ext(F.lines)
    for p_ in probs: print("PROBLEM", p_)
    launch = f"; @launch grid=(256,1,1) block=(256,1,1) lds=163840"
    return launch, A.text(), kdesc(NAME, 512, 256)

HDR = open("gated_mix__grouped_kv_mqa__glu_gated_reglu__prompt.s.ref").read().split("; Override launch")[0]
def build(opt=None):
    l, t, d = gen(opt)
    return HDR + l + "\n" + '.amdgcn_target "amdgcn-amd-amdhsa--gfx950"\n.text\n' + t + d
if __name__ == "__main__":
    import sys, json
    out = sys.argv[1] if len(sys.argv) > 1 else "gated_mix__grouped_kv_mqa__glu_gated_reglu__prompt.s"
    opt = json.loads(sys.argv[2]) if len(sys.argv) > 2 else {}
    open(out, "w").write(build(opt))
```

```python
AF_OFF = 0
AF_SIZE = 144 * 128 * 1024
AFS = 0x21000
AF_SIZE3 = 144 * AFS
QF_OFF = 0x1200000
KV_OFF = 0x1600000
G_OFF  = 0x1640000
WS_USED = 0x1B00000
QF4_OFF = 0x1700000
import math
QSCALE = (32 ** -0.5) * math.log2(math.e)
import struct
def f2u(f): return struct.unpack("<I", struct.pack("<f", f))[0]
TS_OFF = 0x1680000
class TS:
    def __init__(self, on, kidx): self.on, self.k = on, kidx
    def stamp(self, i):
        if not self.on: return []
        return [f"s_memrealtime s[{80+2*i}:{81+2*i}]", f"s_memtime s[{90+2*i}:{91+2*i}]"]
    def flush(self, srd, swave, vt, wsptr=None):
        if not self.on: return []
        L = ["s_waitcnt vmcnt(0) lgkmcnt(0)"] + self.stamp(4) + ["s_waitcnt lgkmcnt(0)"]
        for i in range(5):
            L.append(f"v_mov_b32 v{vt+i}, s{80+2*i}")
            L.append(f"v_mov_b32 v{vt+5+i}, s{90+2*i}")
        L += [f"s_getreg_b32 s79, hwreg(HW_REG_XCC_ID)", f"v_mov_b32 v{vt+10}, s79", f"v_mov_b32 v{vt+11}, 0",
              f"s_lshl_b32 s78, s2, 2", f"s_add_u32 s78, s78, s{swave}", f"s_lshl_b32 s78, s78, 6",
              f"s_add_u32 s78, s78, {TS_OFF + self.k * 65536}", f"v_mov_b32 v{vt+12}, 0", "s_mov_b64 exec, 1"]
        for q in range(3):
            L.append(f"buffer_store_dwordx4 v[{vt+4*q}:{vt+4*q+3}], v{vt+12}, s[{srd}:{srd+3}], s78 offen offset:{16*q}")
        L += ["s_waitcnt vmcnt(0)"]
        return L

class TS10:
    def __init__(self, on, kidx=0): self.on, self.k = on, kidx
    def stamp(self, i):
        if not self.on: return []
        return [f"s_memrealtime s[{82+2*i}:{83+2*i}]"]
    def flush(self, srd, swave, vt):
        if not self.on: return []
        L = ["s_waitcnt vmcnt(0) lgkmcnt(0)"] + self.stamp(9) + ["s_waitcnt lgkmcnt(0)"]
        for i in range(10): L.append(f"v_mov_b32 v{vt+i}, s{82+2*i}")
        L += [f"s_getreg_b32 s81, hwreg(HW_REG_XCC_ID)", f"v_mov_b32 v{vt+10}, s81", f"v_mov_b32 v{vt+11}, 0x7777",
              f"s_lshl_b32 s80, s2, 2", f"s_add_u32 s80, s80, s{swave}", f"s_lshl_b32 s80, s80, 6",
              f"s_add_u32 s80, s80, {TS_OFF + self.k * 65536}", f"v_mov_b32 v{vt+12}, 0", "s_mov_b64 exec, 1"]
        for q in range(3):
            L.append(f"buffer_store_dwordx4 v[{vt+4*q}:{vt+4*q+3}], v{vt+12}, s[{srd}:{srd+3}], s80 offen offset:{16*q}")
        L += ["s_waitcnt vmcnt(0)"]
        return L

class TSN(TS10):
    def __init__(self, names, kind="rt"):
        self.names = list(names or []); self.on = bool(names); self.k = 0; self.kind = kind
    def stamp(self, i):
        ins = "s_memrealtime" if (self.kind == "rt" or i == 0) else "s_memtime"
        return [f"{ins} s[{82+2*i}:{83+2*i}]"]
    def at(self, name, wait=False):
        if name not in self.names: return []
        L = self.stamp(self.names.index(name))
        if wait: L.append("s_waitcnt lgkmcnt(0)")
        return L
```

```python
from asmlib import *
from common import *
LOG2E = math.log2(math.e)
NAME = "gated_mix__grouped_kv_mqa__glu_gated_reglu__prompt_kernel"

FL_E = 0x1650000
FL_ES = 4352
FL_H = 0x1649000
FL_O = 0x164a000
SPIN_MAX = 1 << 20
PW = 7168

def put(f, g, x):
    f.setdefault(g, []).extend(x if isinstance(x, list) else [x])

def gen(opt=None):
    opt = opt or {}
    A = Asm()
    DEF = ["start", "p1", "p1end", "kvdone", "poll0", "poll1", "att", "attend", "tail"]
    tsn = opt.get("ts")
    ts = TSN(DEF if tsn == 1 else tsn, opt.get("tskind", "rt"))
    SC1 = "sc1"
    probs = []
    P_X, P_WQ, P_WK, P_WV, P_WO = 4, 6, 8, 10, 12
    P_WG, P_WU, P_WD, P_GW = 16, 18, 20, 22
    P_OUT, P_DBG, P_WS = 24, 26, 28
    S_WS, S_A, S_B, S_C, S_D, S_E = 32, 36, 40, 44, 48, 52
    sW, sNonce = 56, 57
    sT0, sT1, sT2, sT3 = 58, 59, 60, 61
    sIt, sRB, sCB = 62, 63, 64
    sL = 65
    vL, vL16 = Reg("v", 1, 1), Reg("v", 2, 1)
    def srd(b): return f"s[{b}:{b+3}]"

    A(f".globl {NAME}\n.p2align 8\n.type {NAME},@function\n{NAME}:")
    A("s_cmp_ge_u32 s2, 256\ns_cbranch_scc1 L_END")
    A.ext(ts.at("start"))
    A(f"""s_load_dwordx8 s[4:11], s[0:1], 0
    s_load_dwordx2 s[12:13], s[0:1], 32
    s_load_dwordx8 s[16:23], s[0:1], 48
    s_load_dwordx4 s[24:27], s[0:1], 80
    s_load_dwordx2 s[28:29], s[0:1], 96
    s_memrealtime s[30:31]
    v_lshrrev_b32 v3, 6, v0
    v_and_b32 {vL}, 63, v0
    v_readfirstlane_b32 s{sW}, v3
    v_lshlrev_b32 {vL16}, 4, {vL}""")

    trace = opt.get("trace")
    def tr_issue(): return ["s_memrealtime s[100:101]"] if trace else []
    def tr_commit(): return ["s_lshl_b64 exec, 1, s81", "v_mov_b32 v0, s100", "s_mov_b64 exec, -1", "s_add_u32 s81, s81, 1"] if trace else []
    if trace: A("s_mov_b32 s81, 0\nv_mov_b32 v0, 0\ns_memrealtime s[100:101]\ns_waitcnt lgkmcnt(0)"); A.ext(tr_commit())
    S_X, S_W0, S_W1, S_KV, S_Q = S_A, S_B, S_C, S_D, S_E
    sSoX = sL - 1
    sSoW = sL + 6
    sM0X, sM0W, sM0Q = sL + 10, sL + 11, sL + 12
    sWwr, sWrd = sL + 13, sL + 14
    s37off, s37last, s37wrap, s37step, s16k = 14, 15, 3, 31, 30
    XB, WB, QR, KR = 0, 65536, 147456, 155648
    vXo = [3, 4]; vWo = 5; vKo = 6; vQo = 7
    vXa = [8, 9]; vWa = [10, 11, 12]; vA37 = [13, 14, 15, 16]; vSXa = [17, 18]; vSWa = 19
    vT = 20
    acc = [[None]*8 for _ in range(8)]
    p = 32
    for i in range(7):
        for j in range(8):
            acc[i][j] = Reg("v", p, 4); p += 4
    RA = [[Reg("a", 64*s + 4*i, 4) for i in range(8)] for s in range(2)]
    RB = [[Reg("a", 64*s + 32 + 4*j, 4) for j in range(8)] for s in range(2)]
    SA = [Reg("a", 128 + 8*s, 4) for s in range(2)]
    SB = [Reg("a", 132 + 8*s, 4) for s in range(2)]
    sacc = Reg("a", 144, 4)
    for j in range(8): acc[7][j] = Reg("a", 148 + 4*j, 4)
    GXa = [Reg("a", 180 + 8*r, 8) for r in range(4)]
    GWa = Reg("a", 212, 8)
    t0, t1, t2, t3, t4, t5, t6 = range(vT, vT + 7)

    A(f"""s_and_b32 s{sT0}, s2, 1
    s_lshl_b32 s{sT0}, s{sT0}, 2
    s_bfe_u32 s{sT1}, s2, 0x20003
    s_add_u32 s{sRB}, s{sT0}, s{sT1}
    s_bfe_u32 s{sT0}, s2, 0x20001
    s_lshl_b32 s{sT0}, s{sT0}, 3
    s_lshr_b32 s{sT1}, s2, 5
    s_add_u32 s{sCB}, s{sT0}, s{sT1}""")
    A(f"""s_lshl_b32 s{sT0}, s{sW}, 6
    v_lshrrev_b32 v{t0}, 3, {vL}
    v_add_u32 v{t0}, s{sT0}, v{t0}
    v_lshlrev_b32 v{t0}, 11, v{t0}
    v_lshrrev_b32 v{t1}, 4, {vL}
    v_and_b32 v{t2}, 7, {vL}
    v_xor_b32 v{t2}, v{t2}, v{t1}
    v_lshl_add_u32 v{vXo[0]}, v{t2}, 4, v{t0}
    v_xor_b32 v{vXo[1]}, 64, v{vXo[0]}""")
    for e in range(1, 8): A(f"s_mov_b32 s{sSoX+e}, {e*16384 - (e&3)*1024}")
    A(f"""s_mov_b32 s{sSoW+1}, {4*PW - 1024}
    s_mov_b32 s{sSoW+2}, {32*PW}
    s_mov_b32 s{sSoW+3}, {36*PW - 1024}
    s_lshl_b32 s{sM0X}, s{sW}, 13
    s_lshl_b32 s{sM0W}, s{sW}, 11
    s_add_u32 s{sM0W}, s{sM0W}, {WB}
    s_lshl_b32 s{sM0Q}, s{sW}, 10
    s_add_u32 s{sM0Q}, s{sM0Q}, {QR}""")
    A(f"""s_lshl_b32 s{sT0}, s{sW}, 3
    v_add_u32 v{t0}, s{sT0}, v{t1}
    v_mul_u32_u24 v{t0}, {PW}, v{t0}
    s_and_b32 s{sT0}, s{sW}, 1
    s_lshl_b32 s{sT0}, s{sT0}, 3
    v_and_b32 v{t2}, 15, {vL}
    v_lshl_or_b32 v{t3}, v{t1}, 1, s{sT0}
    v_xor_b32 v{t2}, v{t2}, v{t3}
    v_lshl_add_u32 v{vWo}, v{t2}, 4, v{t0}
    v_cmp_lt_u32 vcc, 13, v{t2}
    v_mov_b32 v{t3}, 0x40000000
    v_lshrrev_b32 v{t0}, 5, {vL}
    v_cndmask_b32 v{vWo}, v{vWo}, v{t3}, vcc
    v_lshlrev_b32 v{t0}, 1, v{t0}
    v_xor_b32 v{t0}, v{t0}, {vL}
    v_lshlrev_b32 v{t2}, 4, v{t0}
    s_lshl_b32 s{sT0}, s{sW}, 10
    v_add_u32 v{vKo}, s{sT0}, v{t2}
    v_and_b32 v{t0}, 3, v{t0}
    v_lshlrev_b32 v{t0}, 4, v{t0}
    v_lshrrev_b32 v{t2}, 2, {vL}
    v_lshl_add_u32 v{t0}, v{t2}, 11, v{t0}
    s_lshl_b32 s{sT0}, s{sW}, 15
    v_add_u32 v{vQo}, s{sT0}, v{t0}""")
    A("s_waitcnt lgkmcnt(0)")
    A(f"""s_lshl_b32 s{sT0}, s{sRB}, 19
    s_add_u32 s{S_X}, s{P_X}, s{sT0}
    s_addc_u32 s{S_X+1}, s{P_X+1}, 0
    s_mov_b32 s{S_X+2}, 0x80000
    s_mov_b32 s{S_X+3}, 0x20000""")
    A(f"""s_mov_b32 s{S_WS+3}, 0x20000
    s_or_b32 s{sT0}, s2, s{sW}
    s_cmp_lg_u32 s{sT0}, 0
    s_cbranch_scc1 P1_NONONCE
    s_or_b32 s30, s30, 1
    s_mov_b32 s{S_WS}, s{P_DBG}
    s_mov_b32 s{S_WS+1}, s{P_DBG+1}
    s_mov_b32 s{S_WS+2}, 256
    v_mov_b32 v{t4}, s30
    v_mov_b32 v{t5}, 0
    s_mov_b64 exec, 1
    buffer_store_dword v{t4}, v{t5}, {srd(S_WS)}, 0 offen sc1
    s_mov_b64 exec, -1
    P1_NONONCE:""")
    def xdma(par):
        sl = []
        for e in range(8):
            pre = []
            if e == 0: pre = [f"s_add_u32 m0, s{sM0X}, {par}"]
            if e == 4: pre = ["s_add_u32 m0, m0, 4096"]
            so = "0" if e == 0 else f"s{sSoX+e}"
            sl.append((pre, f"buffer_load_dwordx4 v{vXo[e&1]}, {srd(S_X)}, {so} offen offset:{(e&3)*1024} lds"))
        return sl
    def wdma(hb, slot):
        sl = []
        for sub in range(2):
            sd = S_W0 if sub == 0 else S_W1
            for e in range(2):
                pre = []
                if e == 0: pre = [f"s_add_u32 m0, s{sM0W}, {slot}"] if sub == 0 else ["s_add_u32 m0, m0, 8192"]
                k = 2*hb + e
                so = "0" if k == 0 else f"s{sSoW + k}"
                sl.append((pre, f"buffer_load_dwordx4 v{vWo}, {srd(sd)}, {so} offen offset:{e*1024} {opt.get('wnt', 'nt')} lds"))
        return sl
    def qkdma(slot):
        return [([f"s_add_u32 m0, s{sM0Q}, {slot}"], f"buffer_load_dwordx4 v{vQo}, {srd(S_Q)}, 0 offen {opt.get('wnt', 'nt')} lds"),
                (["s_add_u32 m0, m0, 8192"], f"buffer_load_dwordx4 v{vKo}, {srd(S_KV)}, 0 offen lds")]
    def emit_dma(sl):
        for pre, d in sl:
            A.ext(pre)
            if pre: A("s_nop 0")
            A(d)
    emit_dma(xdma(0))
    A(f"""s_mul_i32 s{sT0}, s{sCB}, 224
    s_add_u32 s{S_W0}, s{P_WG}, s{sT0}
    s_addc_u32 s{S_W0+1}, s{P_WG+1}, 0
    s_add_u32 s{S_W1}, s{P_WU}, s{sT0}
    s_addc_u32 s{S_W1+1}, s{P_WU+1}, 0
    s_sub_u32 s{S_W0+2}, {1024*PW}, s{sT0}
    s_mov_b32 s{S_W1+2}, s{S_W0+2}
    s_mov_b32 s{S_W0+3}, 0x20000
    s_mov_b32 s{S_W1+3}, 0x20000
    s_lshl_b32 s{sT0}, s{sCB}, 6
    s_add_u32 s{S_Q}, s{P_WQ}, s{sT0}
    s_addc_u32 s{S_Q+1}, s{P_WQ+1}, 0
    s_sub_u32 s{S_Q+2}, {1024*2048}, s{sT0}
    s_mov_b32 s{S_Q+3}, 0x20000
    s_bitcmp1_b32 s{sCB}, 0
    s_cselect_b32 s{S_KV}, s{P_WV}, s{P_WK}
    s_cselect_b32 s{S_KV+1}, s{P_WV+1}, s{P_WK+1}
    s_mov_b32 s{S_KV+2}, 65536
    s_mov_b32 s{S_KV+3}, 0x20000""")
    advX = [f"v_add_u32 v{vXo[0]}, 128, v{vXo[0]}", f"v_add_u32 v{vXo[1]}, 128, v{vXo[1]}",
            f"v_add_u32 v{vQo}, {64*2048}, v{vQo}", f"v_add_u32 v{vKo}, 4096, v{vKo}"]
    advW = [f"v_add_u32 v{vWo}, {64*PW}, v{vWo}"]
    emit_dma(wdma(0, 0)); emit_dma(qkdma(0)); emit_dma(wdma(1, 16384))
    A.ext(advX + advW)
    if opt.get("pretouch", 0):
        A(f"""s_mov_b32 s{S_WS}, s{P_WS}
        s_mov_b32 s{S_WS+1}, s{P_WS+1}
        s_mov_b32 s{S_WS+2}, {WS_USED}
        s_lshl_b32 s{sT0}, s{sRB}, 4
        s_add_u32 s{sT0}, s{sT0}, s{sCB}
        s_lshl_b32 s{sT1}, s{sT0}, 2
        s_add_u32 s{sT1}, s{sT1}, {FL_E}
        v_mul_u32_u24 v{t4}, {FL_ES}, {vL}
        v_add_u32 v{t4}, s{sT1}, v{t4}
        s_bfe_u32 s{sT2}, s{sCB}, 0x30001
        s_lshl_b32 s{sT3}, s{sRB}, 3
        s_add_u32 s{sT2}, s{sT2}, s{sT3}
        s_lshl_b32 s{sT2}, s{sT2}, 1
        s_and_b32 s{sT3}, s{sCB}, 1
        s_add_u32 s{sT2}, s{sT2}, s{sT3}
        s_lshl_b32 s{sT2}, s{sT2}, 11
        s_add_u32 s{sT2}, s{sT2}, {KV_OFF - 16*128}
        v_lshl_add_u32 v{t5}, {vL}, 7, s{sT2}
        v_cmp_gt_u32 vcc, 16, {vL}
        s_lshl_b32 s{sT1}, s{sRB}, 2
        s_add_u32 s{sT1}, s{sT1}, s{sW}
        v_cndmask_b32 v{t4}, v{t5}, v{t4}, vcc
        s_lshl_b32 s{sT1}, s{sT1}, 5
        s_add_u32 s{sT1}, s{sT1}, s{sCB}
        s_lshl_b32 s{sT1}, s{sT1}, 2
        s_add_u32 s{sT1}, s{sT1}, {FL_H}
        v_writelane_b32 v{t4}, s{sT1}, 8
        s_add_u32 s{sT1}, s{sT1}, {FL_O - FL_H}
        v_writelane_b32 v{t4}, s{sT1}, 9
        s_lshr_b32 s{sT1}, s{sCB}, 4
        s_or_b32 s{sT1}, s{sT1}, s{sW}
        s_cmp_eq_u32 s{sT1}, 0
        s_cselect_b32 s{sT2}, 0xffff03ff, 0x300
        s_mov_b32 s{sT3}, 0
        v_mov_b32 v{t5}, 0
        s_mov_b64 exec, s[{sT2}:{sT3}]
        buffer_store_dword v{t5}, v{t4}, {srd(S_WS)}, 0 offen sc1
        s_mov_b64 exec, -1""".replace("s_cselect_b32 s60, 0xffff03ff, 0x300", "s_mov_b32 s60, 0x300\ns_cselect_b32 s60, 0xffff03ff, s60"))
        A(f"""s_bitcmp1_b32 s{sW}, 0
        s_cbranch_scc0 P1_NOPT
        s_lshr_b32 s{sT2}, s{sCB}, 1
        s_mul_i32 s{sT2}, s{sT2}, 7
        s_add_u32 s{sT2}, s{sT2}, 3
        s_mul_i32 s{sT2}, s{sT2}, {AFS}
        s_lshl_b32 s{sT3}, s{sRB}, 1
        s_lshr_b32 s{sT1}, s{sW}, 1
        s_add_u32 s{sT3}, s{sT3}, s{sT1}
        s_lshl_b32 s{sT3}, s{sT3}, 13
        s_add_u32 s{sT2}, s{sT2}, s{sT3}
        s_and_b32 s{sT3}, s{sCB}, 1
        s_lshl_b32 s{sT3}, s{sT3}, 3
        s_add_u32 s{sT2}, s{sT2}, s{sT3}
        v_lshlrev_b32 v{t4}, 7, {vL}
        buffer_store_dword v{t5}, v{t4}, {srd(S_WS)}, s{sT2} offen sc1
        P1_NOPT:""")
    second = xdma(32768) + wdma(0, 2*16384) + qkdma(4096) + wdma(1, 3*16384)
    A(f"""v_and_b32 v{t0}, 15, {vL}
    v_lshrrev_b32 v{t2}, 1, v{t0}
    v_xor_b32 v{t2}, v{t2}, v{t1}
    v_lshlrev_b32 v{t2}, 4, v{t2}
    v_lshl_add_u32 v{t2}, v{t0}, 7, v{t2}
    s_lshr_b32 s{sT0}, s{sW}, 1
    s_lshl_b32 s{sT1}, s{sT0}, 14
    v_add_u32 v{vXa[0]}, s{sT1}, v{t2}
    v_xor_b32 v{vXa[1]}, 64, v{vXa[0]}
    s_bfe_u32 s{sT1}, s{sCB}, 0x30001
    s_lshl_b32 s{sT1}, s{sT1}, 1
    s_add_u32 s{sT1}, s{sT1}, s{sT0}
    s_lshl_b32 s{sT1}, s{sT1}, 11
    v_add_u32 v{vSXa[0]}, s{sT1}, v{t2}
    v_xor_b32 v{vSXa[1]}, 64, v{vSXa[0]}
    v_bfe_u32 v{t0}, {vL}, 2, 2
    v_lshl_add_u32 v{t2}, v{t1}, 3, v{t0}
    v_and_b32 v{t3}, 1, v{t1}
    v_lshl_or_b32 v{t0}, v{t3}, 2, v{t0}
    v_and_b32 v{t4}, 3, {vL}
    v_lshlrev_b32 v{t4}, 3, v{t4}
    v_lshl_add_u32 v{t5}, v{t2}, 8, v{t4}
    v_add_u32 v{t5}, {WB}, v{t5}""")
    A(f"""s_and_b32 s{sT0}, s{sW}, 1
    s_mov_b32 s{sT1}, 0x3210
    s_cmp_eq_u32 s{sT0}, 1
    s_cselect_b32 s{sT1}, 0x0654, s{sT1}
    s_mov_b32 s{sT2}, 0x6543
    s_cselect_b32 s{sT2}, 0x0021, s{sT2}
    s_bitcmp1_b32 s{sCB}, 0
    s_cselect_b32 s{sT1}, s{sT2}, s{sT1}""")
    for ii in range(4):
        dst = vWa[ii] if ii < 3 else vA37[0]
        A(f"""s_bfe_u32 s{sT2}, s{sT1}, {(4 << 16) | (4*ii):#x}
        v_xor_b32 v{t6}, s{sT2}, v{t0}
        v_lshl_add_u32 v{dst}, v{t6}, 5, v{t5}""")
    A(f"""v_lshl_add_u32 v{t4}, v{t2}, 6, v{t4}
    v_xor_b32 v{t6}, s{sT0}, v{t3}
    v_lshl_add_u32 v{t6}, v{t6}, 5, v{t4}
    v_add_u32 v{vSWa}, {KR}, v{t6}
    s_mov_b32 s{s16k}, 16384
    s_cmp_eq_u32 s{sT0}, 1
    s_cbranch_scc1 P1_A37Q
    v_add_u32 v{vA37[1]}, 1024, v{vA37[0]}
    v_add_u32 v{vA37[2]}, 8192, v{vA37[0]}
    v_add_u32 v{vA37[3]}, 9216, v{vA37[0]}
    s_mov_b32 s{s37step}, 16384
    s_mov_b32 s{s37last}, {4*16384}
    s_mov_b32 s{s37wrap}, {(-4*16384) & 0xffffffff:#x}
    s_branch P1_A37D
    P1_A37Q:
    v_lshl_add_u32 v{t6}, v{t3}, 5, v{t4}
    v_add_u32 v{vA37[0]}, {QR}, v{t6}
    v_add_u32 v{vA37[1]}, 256, v{vA37[0]}
    v_xor_b32 v{vA37[2]}, 32, v{vA37[0]}
    v_xor_b32 v{vA37[3]}, 32, v{vA37[1]}
    s_mov_b32 s{s37step}, 2048
    s_mov_b32 s{s37last}, 6144
    s_mov_b32 s{s37wrap}, {(-6144) & 0xffffffff:#x}
    P1_A37D:""")
    PF = opt.get("pf", 1)
    LA = opt.get("la", 0)
    LNT = opt.get("lant", "nt")
    vLW, vLQ = 26, 27
    la_ops = [f"buffer_load_dword a252, v{vLW}, {srd(S_W0)}, 0 offen {LNT}", f"buffer_load_dword a253, v{vLW}, {srd(S_W1)}, 0 offen {LNT}",
              f"buffer_load_dword a254, v{vLQ}, {srd(S_Q)}, 0 offen {LNT}"]
    la_adv = [f"v_add_u32 v{vLW}, {64*PW}, v{vLW}", f"v_add_u32 v{vLQ}, {64*2048}, v{vLQ}"]
    LA0 = opt.get("la0", 2)
    if LA:
        A(f"""s_and_b32 s{sT0}, s{sRB}, 3
        s_lshl_b32 s{sT0}, s{sT0}, 2
        s_add_u32 s{sT0}, s{sT0}, s{sW}
        s_lshl_b32 s{sT0}, s{sT0}, 2
        s_add_u32 s{sT0}, s{sT0}, {64*LA0}
        v_lshrrev_b32 v{t0}, 2, {vL}
        v_add_u32 v{t0}, s{sT0}, v{t0}
        v_and_b32 v{t2}, 3, {vL}
        v_min_u32 v{t2}, 2, v{t2}
        v_mul_u32_u24 v{t2}, 108, v{t2}
        v_mul_u32_u24 v{vLW}, {PW}, v{t0}
        v_add_u32 v{vLW}, v{vLW}, v{t2}
        v_lshlrev_b32 v{vLQ}, 11, v{t0}
        v_cmp_lt_u32 vcc, 15, {vL}
        v_mov_b32 v{t2}, 0x40000000
        s_nop 0
        v_cndmask_b32 v{vLW}, v{vLW}, v{t2}, vcc
        v_cndmask_b32 v{vLQ}, v{vLQ}, v{t2}, vcc""")
    Z = []
    for i in range(8):
        for j in range(8):
            for r in range(4):
                a = acc[i][j][r]
                Z.append(f"v_mov_b32 {a}, 0" if a.f == "v" else f"v_accvgpr_write_b32 {a}, 0")
    for r in range(4): Z.append(f"v_accvgpr_write_b32 {sacc[r]}, 0")
    per = len(Z) // len(second)
    for k, (pre, d) in enumerate(second):
        A.ext(pre); A.ext(Z[k*per:(k+1)*per]); A(d)
    A.ext(Z[len(second)*per:])
    A.ext(advX + advW)
    npf = 0
    if LA:
        for k in range(LA - LA0): A.ext(la_ops + la_adv); npf += 3

    def reads(b, s):
        L = [f"ds_read_b128 {RB[s][j]}, v{vXa[b]} offset:{j*2048}" for j in range(8)]
        for i in range(8):
            for hf in range(2):
                if i & 3 == 3: L.append(f"ds_read_b64_tr_b16 {RA[s][i].sub(2*hf, 2)}, v{vA37[2*(i>>2) + hf]}")
                else: L.append(f"ds_read_b64_tr_b16 {RA[s][i].sub(2*hf, 2)}, v{vWa[i&3]} offset:{(i>>2)*8192 + hf*1024}")
        L.append(f"ds_read_b128 {SB[s]}, v{vSXa[b]}")
        for hf in range(2):
            L.append(f"ds_read_b64_tr_b16 {SA[s].sub(2*hf, 2)}, v{vSWa} offset:{b*2048 + hf*256}")
        return L
    def mfmas(s):
        L = []
        for i in range(8):
            js = range(8) if (i % 2 == 0 or not opt.get("snake", 1)) else range(7, -1, -1)
            for j in js:
                L.append(f"v_mfma_f32_16x16x32_bf16 {acc[i][j]}, {RA[s][i]}, {RB[s][j]}, {acc[i][j]}")
            if i == 3: L.append(f"v_mfma_f32_16x16x32_bf16 {sacc}, {SA[s]}, {SB[s]}, {sacc}")
        return L
    def rotW(sreg, sd):
        return [f"s_cmp_eq_u32 s{sreg}, {4*16384}", f"s_cselect_b32 s{sd}, {(-4*16384) & 0xffffffff:#x}, s{s16k}", f"s_add_u32 s{sreg}, s{sreg}, s{sd}"]
    def rot37(sd):
        return [f"s_cmp_eq_u32 s{s37off}, s{s37last}", f"s_cselect_b32 s{sd}, s{s37wrap}, s{s37step}", f"s_add_u32 s{s37off}, s{s37off}, s{sd}"]
    A(f"s_waitcnt vmcnt({18 + npf}) lgkmcnt(0)\ns_barrier")
    A.ext(reads(0, 0))
    for r in vWa: A(f"v_add_u32 v{r}, 16384, v{r}")
    for r in vA37: A(f"v_add_u32 v{r}, s{s37step}, v{r}")
    A(f"""s_mov_b32 s{sWrd}, 16384
    s_mov_b32 s{s37off}, s{s37step}
    s_mov_b32 s{sWwr}, {4*16384}
    s_mov_b32 s{sIt}, 0
    s_waitcnt lgkmcnt(0)
    s_barrier""")
    A.ext(ts.at("p1"))
    if ts.on: A("s_waitcnt lgkmcnt(0)")
    body = []
    BG = opt.get("bar_gap", 61)
    rg = [2*k for k in range(27)]
    def rotreads(f):
        put(f, 47, rotW(sWrd, sT1)); put(f, 49, rot37(sT2))
        for k, r in enumerate(vWa): put(f, 51 + k, f"v_add_u32 v{r}, s{sT1}, v{r}")
        for k, r in enumerate(vA37): put(f, 54 + k, f"v_add_u32 v{r}, s{sT2}, v{r}")
    f = {}
    for k, r in enumerate(reads(1, 1)): put(f, rg[k], r)
    dg = [1, 9, 17, 25, 33, 39, 45, 53]
    for k, (pre, d) in enumerate(wdma(0, f"s{sWwr}") + wdma(1, f"s{sWwr}")):
        if pre: put(f, dg[k] - 1, pre)
        put(f, dg[k], d)
    put(f, 3, rotW(sWwr, sT0)); put(f, 35, rotW(sWwr, sT0))
    put(f, 58, advW[0])
    rotreads(f)
    put(f, 59, f"v_xor_b32 v{vSWa}, 0x1000, v{vSWa}")
    put(f, 19, f"v_xor_b32 v{vXa[0]}, 0x8000, v{vXa[0]}"); put(f, 21, f"v_xor_b32 v{vSXa[0]}, 0x8000, v{vSXa[0]}")
    put(f, 27, [f"s_cmp_eq_u32 s{sIt}, 14", f"s_cselect_b32 s{S_X+2}, 0, s{S_X+2}"])
    if LA:
        put(f, 5, la_ops[0]); put(f, 13, la_ops[1]); put(f, 21, la_ops[2]); put(f, 23, la_adv[0]); put(f, 29, la_adv[1])
    put(f, BG, [f"s_waitcnt vmcnt({11 if LA else 8}) lgkmcnt(0)", "s_barrier"])
    body += interleave(mfmas(0), f)
    f = {}
    for k, r in enumerate(reads(0, 0)): put(f, rg[k], r)
    put(f, -1, [f"s_and_b32 s{sT3}, s{sIt}, 1", f"s_lshl_b32 s{sT0}, s{sT3}, 15", f"s_lshl_b32 s{sT3}, s{sT3}, 12"])
    dg = [1, 7, 13, 19, 25, 31, 37, 43, 49, 55]
    if opt.get("qfirst", 1):
        for k, (pre, d) in enumerate(qkdma(f"s{sT3}") + xdma(f"s{sT0}")):
            if pre: put(f, dg[k] - 1, pre)
            put(f, dg[k], d)
        put(f, 58, advX[0]); put(f, 59, advX[1]); put(f, 15, advX[2]); put(f, 17, advX[3])
    else:
        for k, (pre, d) in enumerate(xdma(f"s{sT0}") + qkdma(f"s{sT3}")):
            if pre: put(f, dg[k] - 1, pre)
            put(f, dg[k], d)
        put(f, 45, advX[0]); put(f, 46, advX[1]); put(f, 58, advX[2]); put(f, 59, advX[3])
    rotreads(f)
    put(f, 21, f"v_xor_b32 v{vXa[1]}, 0x8000, v{vXa[1]}"); put(f, 23, f"v_xor_b32 v{vSXa[1]}, 0x8000, v{vSXa[1]}")
    put(f, 57, tr_issue())
    put(f, BG, ["s_waitcnt lgkmcnt(0)", "s_barrier"] + tr_commit())
    put(f, 62, [f"s_add_u32 s{sIt}, s{sIt}, 1", f"s_cmp_lt_u32 s{sIt}, 16"])
    put(f, 64, "s_cbranch_scc1 P1_LOOP")
    body += interleave(mfmas(1), f)
    A(".p2align 6\nP1_LOOP:")
    A.ext(body)
    probs += check_hazards(A.lines, "p1pro") + check_hazards(body + body, "p1loop")

    va = Alloc("v", 3, 256)
    vCur = va.get(1); vNxt = va.get(1); vZero = va.get(1); vNon = va.get(1); vQP = va.get(1)
    T = va.get(12, 4)
    S = [va.get(16, 4) for _ in range(2)]
    P = [va.get(8, 4) for _ in range(2)]
    O = [va.get(16, 4) for _ in range(2)]
    Lc = [va.get(4, 4) for _ in range(2)]
    SCL = va.get(8, 4)
    acc3 = [[va.get(4, 4) for j in range(8)] for i in range(4)]
    vW3o = va.get(1); vW3a = [va.get(1) for _ in range(4)]; vPF = va.get(1); vG = va.get(2, 2); vFl = va.get(2, 2)
    NEG = [Reg("v", acc3[0][0].base + 16*k, 16) for k in range(2)]
    aa = Alloc("a", 0, 180)
    RX = [[aa.get(4, 4) for j in range(8)] for s in range(4)]
    Q = [[aa.get(4, 4) for t in range(2)] for ab in range(2)]
    K = [[aa.get(4, 4) for t in range(2)] for b in range(2)]
    V = [[aa.get(4, 4) for t in range(2)] for b in range(2)]
    ONES = aa.get(4, 4)
    RW = [[Reg("a", 220 + 16*s + 4*i, 4) for i in range(4)] for s in range(2)]
    QXB = 98304
    W3B = 98304

    E = Asm()
    E.ext(ts.at("p1end"))
    vN, vZ = t0, t1
    E(f"""s_mov_b32 s{S_WS}, s{P_WS}
    s_mov_b32 s{S_WS+1}, s{P_WS+1}
    s_mov_b32 s{S_WS+2}, {WS_USED}
    s_mov_b32 s{S_C}, s{P_DBG}
    s_mov_b32 s{S_C+1}, s{P_DBG+1}
    s_mov_b32 s{S_C+2}, 256
    v_mov_b32 v{vZ}, 0
    buffer_load_dword v{vN}, v{vZ}, {srd(S_C)}, 0 offen sc1
    s_lshr_b32 s{sT0}, s{sW}, 1
    s_and_b32 s{sT1}, s{sW}, 1
    s_cmp_lt_u32 s{sCB}, 16
    s_cbranch_scc1 P1_SIDEKV""")
    E(f"""s_mov_b32 s{S_A}, s{P_X}
    s_mov_b32 s{S_A+1}, s{P_X+1}
    s_mov_b32 s{S_A+2}, 0x400000
    s_mov_b32 s{S_B}, s{P_GW}
    s_mov_b32 s{S_B+1}, s{P_GW+1}
    s_mov_b32 s{S_B+2}, 2048
    s_lshl_b32 s{sT2}, s{sRB}, 4
    s_add_u32 s{sT2}, s{sT2}, s{sCB}
    s_sub_u32 s{sT2}, s{sT2}, 16
    s_lshl_b32 s{sT2}, s{sT2}, 2
    s_add_u32 s{sT2}, s{sT2}, s{sW}
    s_lshl_b32 s{sT2}, s{sT2}, 13
    s_add_u32 s{sT3}, s{sT2}, 4096""")
    for h in range(2): E(f"buffer_load_dwordx4 {GWa.sub(4*h,4)}, {vL16}, {srd(S_B)}, 0 offen offset:{h*1024}")
    for r in range(4):
        for h in range(2):
            E(f"buffer_load_dwordx4 {GXa[r].sub(4*h,4)}, {vL16}, {srd(S_A)}, s{sT2 + (r>>1)} offen offset:{(r&1)*2048 + h*1024}")
    E("s_branch P1_NOSIDE\nP1_SIDEKV:")
    E(f"""s_bfe_u32 s{sT2}, s{sCB}, 0x30001
    s_lshl_b32 s{sT3}, s{sRB}, 3
    s_add_u32 s{sT2}, s{sT2}, s{sT3}
    s_lshl_b32 s{sT2}, s{sT2}, 12
    s_add_u32 s{sT2}, s{sT2}, {KV_OFF}""")
    u = vT + 4
    for r in range(4): E(f"v_accvgpr_read_b32 v{u+r}, {sacc[r]}")
    E(f"v_cvt_pk_bf16_f32 v{u+4}, v{u}, v{u+1}\nv_cvt_pk_bf16_f32 v{u+5}, v{u+2}, v{u+3}")
    E(f"""s_bitcmp1_b32 s{sCB}, 0
    s_cbranch_scc1 P1_SIDEV
    v_bfe_u32 v{u}, {vL}, 3, 1
    v_lshlrev_b32 v{u}, 4, v{u}
    v_and_b32 v{u+1}, 7, {vL}
    v_add_u32 v{u}, v{u}, v{u+1}
    v_bfe_u32 v{u+1}, {vL}, 4, 1
    v_lshl_add_u32 v{u}, v{u+1}, 5, v{u}
    v_lshlrev_b32 v{u}, 4, v{u}
    v_lshrrev_b32 v{u+1}, 5, {vL}
    v_lshl_add_u32 v{u}, v{u+1}, 10, v{u}
    s_lshl_b32 s{sT3}, s{sT0}, 7
    s_lshl_b32 s{sNonce}, s{sT1}, 3
    s_add_u32 s{sT3}, s{sT3}, s{sNonce}
    v_add_u32 v{u}, s{sT3}, v{u}
    ds_write_b64 v{u}, v[{u+4}:{u+5}]
    s_branch P1_NOSIDE
    P1_SIDEV:
    v_lshrrev_b32 v{u}, 5, {vL}
    v_lshlrev_b32 v{u}, 4, v{u}
    v_bfe_u32 v{u+1}, {vL}, 4, 1
    v_lshl_add_u32 v{u}, v{u+1}, 2, v{u}
    v_bfe_u32 v{u+1}, {vL}, 2, 1
    v_lshl_add_u32 v{u}, v{u+1}, 5, v{u}
    v_lshlrev_b32 v{u}, 4, v{u}
    v_bfe_u32 v{u+1}, {vL}, 3, 1
    v_lshl_add_u32 v{u}, v{u+1}, 10, v{u}
    v_and_b32 v{u+1}, 3, {vL}
    v_lshl_add_u32 v{u}, v{u+1}, 1, v{u}
    s_lshl_b32 s{sT3}, s{sT1}, 7
    s_lshl_b32 s{sNonce}, s{sT0}, 3
    s_add_u32 s{sT3}, s{sT3}, s{sNonce}
    v_add_u32 v{u}, s{sT3}, v{u}
    ds_write_b16 v{u}, v{u+4}
    ds_write_b16_d16_hi v{u}, v{u+4} offset:16
    ds_write_b16 v{u}, v{u+5} offset:32
    ds_write_b16_d16_hi v{u}, v{u+5} offset:48
    s_add_u32 s{sT2}, s{sT2}, 2048
    P1_NOSIDE:
    s_waitcnt lgkmcnt(0)
    s_barrier
    s_cmp_ge_u32 s{sCB}, 16
    s_cbranch_scc1 P1_NOKVST
    s_cmp_lg_u32 s{sW}, 0
    s_cbranch_scc1 P1_NOKVST
    ds_read_b128 v[{u}:{u+3}], {vL16}
    ds_read_b128 v[{u+4}:{u+7}], {vL16} offset:1024
    s_waitcnt lgkmcnt(0)
    buffer_store_dwordx4 v[{u}:{u+3}], {vL16}, {srd(S_WS)}, s{sT2} offen {SC1}
    buffer_store_dwordx4 v[{u+4}:{u+7}], {vL16}, {srd(S_WS)}, s{sT2} offen offset:1024 {SC1}
    s_nop 1
    P1_NOKVST:""")
    sO = sL + 10
    sC = sL + 1
    E(f"""s_lshr_b32 s{sT2}, s{sCB}, 1
    s_mul_i32 s{sT2}, s{sT2}, 7
    s_and_b32 s{sT3}, s{sCB}, 1
    s_lshl_b32 s{sO}, s{sRB}, 4
    s_lshl_b32 s{sT0}, s{sT0}, 3
    s_add_u32 s{sO}, s{sO}, s{sT0}
    s_lshl_b32 s{sO}, s{sO}, 10
    s_mul_i32 s{sT2}, s{sT2}, {AFS}
    s_add_u32 s{sO}, s{sO}, s{sT2}
    s_cmp_eq_u32 s{sT1}, 1
    s_cbranch_scc1 P1_EPI1
    s_mul_i32 s{sT3}, s{sT3}, {5*AFS}
    s_add_u32 s{sO}, s{sO}, s{sT3}
    s_add_u32 s{sO+2}, s{sO}, {AFS}""")
    def hmath(pairs, dst):
        L = []
        for Gx, U in pairs:
            for r in range(4): L.append(f"v_max_f32 {Gx[r]}, 0, {Gx[r]}")
        for Gx, U in pairs:
            for r in (0, 2): L.append(f"v_pk_mul_f32 {Gx.sub(r,2)}, {Gx.sub(r,2)}, {U.sub(r,2)}")
        for k, (Gx, U) in enumerate(pairs):
            L.append(f"v_cvt_pk_bf16_f32 {dst[2*k]}, {Gx[0]}, {Gx[1]}"); L.append(f"v_cvt_pk_bf16_f32 {dst[2*k+1]}, {Gx[2]}, {Gx[3]}")
        return L
    for fb in range(2):
        for j in range(8):
            U1 = acc[5+2*fb][j]
            if U1.f == "a":
                Tt = Reg("v", vT + 4 + 4*(j % 2), 4)
                for r in range(4): E(f"v_accvgpr_read_b32 {Tt[r]}, {U1[r]}")
                U1 = Tt
            E.ext(hmath([(acc[2*fb][j], acc[4+2*fb][j]), (acc[2*fb+1][j], U1)], acc[4+2*fb][j]))
    E("s_branch P1_EPID\nP1_EPI1:")
    E(f"""s_lshl_b32 s{sO+2}, s{sT3}, 3
    s_add_u32 s{sO+2}, s{sO+2}, s{sO}
    s_add_u32 s{sO+2}, s{sO+2}, {3*AFS}
    s_mul_i32 s{sT3}, s{sT3}, {2*AFS}
    s_add_u32 s{sO}, s{sO}, s{sT3}
    s_add_u32 s{sO}, s{sO}, {2*AFS}
    s_mov_b32 s{sC}, {f2u(QSCALE):#x}
    s_mov_b32 s{sC+1}, {f2u(QSCALE):#x}
    s_lshl_b32 s{sT0}, s{sT0}, 10
    s_add_u32 s{sT0}, s{sT0}, {QXB}
    v_add_u32 v{t2}, s{sT0}, {vL16}""")
    for j in range(8):
        F0 = acc[3][j]; F1 = Reg("v", vT + 4 + 4*(j % 2), 4)
        for r in range(4): E(f"v_accvgpr_read_b32 {F1[r]}, {acc[7][j][r]}")
        for F in (F0, F1):
            for r in (0, 2): E(f"v_pk_mul_f32 {F.sub(r,2)}, {F.sub(r,2)}, s[{sC}:{sC+1}]")
        E(f"v_cvt_pk_bf16_f32 {F0[0]}, {F0[0]}, {F0[1]}\nv_cvt_pk_bf16_f32 {F0[1]}, {F0[2]}, {F0[3]}")
        E(f"v_cvt_pk_bf16_f32 {F0[2]}, {F1[0]}, {F1[1]}\nv_cvt_pk_bf16_f32 {F0[3]}, {F1[2]}, {F1[3]}")
        E(f"ds_write_b128 v{t2}, {F0} offset:{j*1024}")
    for j in range(8):
        E.ext(hmath([(acc[0][j], acc[4][j]), (acc[1][j], acc[5][j])], acc[4][j]))
        E.ext(hmath([(acc[2][j], acc[6][j])], acc[6][j]))
    E("P1_EPID:")
    E(f"s_add_u32 s{sO+1}, s{sO}, 4096\ns_add_u32 s{sO+3}, s{sO+2}, 4096")
    hst0 = [VM(f"buffer_store_dwordx4 {acc[4][j]}, {vL16}, {srd(S_WS)}, s{sO + (j>>2)} offen offset:{(j&3)*1024} {SC1}", "H") for j in range(8)]
    hst1a = [VM(f"buffer_store_dwordx4 {acc[6][j]}, {vL16}, {srd(S_WS)}, s{sO + 2 + (j>>2)} offen offset:{(j&3)*1024} {SC1}", "H") for j in range(8)]
    hst1b = [VM(f"buffer_store_dwordx2 {acc[6][j].sub(0,2)}, {vL16}, {srd(S_WS)}, s{sO + 2 + (j>>2)} offen offset:{(j&3)*1024} {SC1}", "H") for j in range(8)]
    E("s_waitcnt vmcnt(0) lgkmcnt(0)")
    E.ext(ts.at("kvdone"))
    E(f"""v_readfirstlane_b32 s{sNonce}, v{vN}
    s_mov_b32 s{sT0}, {SPIN_MAX}
    P1_NPOLL:
    s_cmp_lg_u32 s{sNonce}, 0
    s_cbranch_scc1 P1_NOK
    s_sleep 2
    buffer_load_dword v{vN}, v{vZ}, {srd(S_C)}, 0 offen sc1
    s_waitcnt vmcnt(0)
    v_readfirstlane_b32 s{sNonce}, v{vN}
    s_sub_u32 s{sT0}, s{sT0}, 1
    s_cmp_lg_u32 s{sT0}, 0
    s_cbranch_scc1 P1_NPOLL
    s_endpgm
    P1_NOK:
    s_cmp_ge_u32 s{sCB}, 16
    s_cbranch_scc1 P1_NOFLAG
    s_cmp_lg_u32 s{sW}, 0
    s_cbranch_scc1 P1_NOFLAG
    s_lshl_b32 s{sT0}, s{sRB}, 4
    s_add_u32 s{sT0}, s{sT0}, s{sCB}
    s_lshl_b32 s{sT0}, s{sT0}, 2
    s_add_u32 s{sT0}, s{sT0}, {FL_E}
    v_mul_u32_u24 v{t2}, {FL_ES}, {vL}
    s_mov_b64 exec, 0xff
    buffer_store_dword v{vN}, v{t2}, {srd(S_WS)}, s{sT0} offen sc1
    s_mov_b64 exec, -1
    P1_NOFLAG:
    s_barrier""")
    probs += check_hazards(body[-20:] + E.lines, "p1epi")
    A.ext(E.lines)

    B = Asm()
    S_KVD = S_C
    sCur, sNext, sFree, sKVo, sM0, sFl = sL, sL + 1, sL + 2, sL + 3, sL + 4, sL + 5
    B(f"""v_mov_b32 {vNon}, s{sNonce}
    v_mov_b32 {vZero}, 0
    v_bfe_u32 {T[0]}, {vL}, 4, 1
    v_and_b32 {T[1]}, 15, {vL}
    v_lshrrev_b32 {T[2]}, 5, {vL}
    v_lshl_add_u32 {T[1]}, {T[2]}, 4, {T[1]}
    v_lshlrev_b32 {T[1]}, 4, {T[1]}
    v_lshl_add_u32 {vQP}, {T[0]}, 10, {T[1]}
    s_lshl_b32 s{sT0}, s{sW}, 12
    s_add_u32 s{sT0}, s{sT0}, {QXB}
    v_add_u32 {T[3]}, s{sT0}, {vQP}""")
    for ab in range(2):
        for t in range(2): B(f"ds_read_b128 {Q[ab][t]}, {T[3]} offset:{ab*2048 + t*512}")
    S_PF, sPF = S_E, P_WK
    pfop = [VM(f"buffer_load_dword a252, {vPF}, {srd(S_PF)}, s{sPF} offen", "PF"), f"s_add_u32 s{sPF}, s{sPF}, 0x100000"] if PF else []
    B(f"s_cmp_lt_u32 s{sCB}, 16\ns_cbranch_scc1 P2_NOG")
    W32 = NEG[0]; X32 = NEG[1]; GX = S[0].sub(0, 8); GW = S[0].sub(8, 8)
    for k in range(8): B(f"v_accvgpr_read_b32 {GW[k]}, {GWa[k]}")
    for k in range(8): B(f"v_lshlrev_b32 {W32[2*k]}, 16, {GW[k]}\nv_and_b32 {W32[2*k+1]}, 0xffff0000, {GW[k]}")
    B(f"v_mov_b32 {T[8]}, 0x3f803f80")
    for r in range(4):
        for k in range(8): B(f"v_accvgpr_read_b32 {GX[k]}, {GXa[r][k]}")
        for k in range(8): B(f"v_lshlrev_b32 {X32[2*k]}, 16, {GX[k]}\nv_and_b32 {X32[2*k+1]}, 0xffff0000, {GX[k]}")
        for k in range(8): B(f"v_pk_mul_f32 {X32.sub(2*k,2)}, {X32.sub(2*k,2)}, {W32.sub(2*k,2)}")
        for k in range(8): B(f"v_cvt_pk_bf16_f32 {X32[k]}, {X32[2*k]}, {X32[2*k+1]}")
        B(f"v_mov_b32 {T[4+r]}, 0")
        for k in range(8): B(f"v_dot2_f32_bf16 {T[4+r]}, {X32[k]}, {T[8]}, {T[4+r]}")
    B("s_nop 2")
    for sh in (8, 4, 2, 1):
        for r in range(4): B(f"v_add_f32_dpp {T[4+r]}, {T[4+r]}, {T[4+r]} row_ror:{sh} row_mask:0xf bank_mask:0xf")
    for sw in ("16", "32"):
        for r in range(4): B(f"v_mov_b32 {T[8+r]}, {T[4+r]}")
        for r in range(4): B(f"v_permlane{sw}_swap_b32 {T[4+r]}, {T[8+r]}")
        for r in range(4): B(f"v_add_f32 {T[4+r]}, {T[4+r]}, {T[8+r]}")
    for r in range(4): B(f"v_cvt_pk_bf16_f32 {T[4+r]}, {T[4+r]}, {T[4+r]}")
    for r in range(4): B(f"v_and_b32 {T[4+r]}, 0xffff0000, {T[4+r]}")
    for r in range(4): B(f"v_mul_f32 {T[4+r]}, {f2u(-LOG2E):#x}, {T[4+r]}")
    for r in range(4): B(f"v_exp_f32 {T[4+r]}, {T[4+r]}")
    for r in range(4): B(f"v_add_f32 {T[4+r]}, 1.0, {T[4+r]}")
    for r in range(4): B(f"v_rcp_f32 {T[4+r]}, {T[4+r]}")
    for r in range(4): B(f"v_cvt_pk_bf16_f32 {T[4+r]}, {T[4+r]}, {T[4+r]}")
    for r in range(4): B(f"v_and_b32 {T[4+r]}, 0xffff0000, {T[4+r]}")
    B(f"""s_lshl_b32 s{sT2}, s{sRB}, 4
    s_add_u32 s{sT2}, s{sT2}, s{sCB}
    s_sub_u32 s{sT2}, s{sT2}, 16
    s_lshl_b32 s{sT2}, s{sT2}, 2
    s_add_u32 s{sT2}, s{sT2}, s{sW}
    s_lshl_b32 s{sT2}, s{sT2}, 4
    s_add_u32 s{sT2}, s{sT2}, {G_OFF}
    s_mov_b64 exec, 1
    buffer_store_dwordx4 {T.sub(4,4)}, {vZero}, {srd(S_WS)}, s{sT2} offen sc1
    s_mov_b64 exec, -1
    s_nop 0
    P2_NOG:""")
    for ab in range(2):
        for r in range(16): B(f"v_mov_b32 {O[ab][r]}, 0")
        for r in range(4): B(f"v_mov_b32 {Lc[ab][r]}, 0")
    for r in range(8): B(f"v_mov_b32 {P[1][r]}, 0")
    for t in range(2):
        for r in range(4): B(f"v_accvgpr_write_b32 {V[1][t][r]}, 0")
    B(f"""v_lshrrev_b32 {T[4]}, 2, {vL}
    v_lshrrev_b32 {T[5]}, 4, {vL}
    v_xor_b32 {T[4]}, {T[4]}, {T[5]}
    v_and_b32 {T[4]}, 1, {T[4]}
    v_cmp_eq_u32 vcc, 0, {T[4]}
    v_mov_b32 {T[5]}, 0x3f803f80
    v_mov_b32 {vCur}, {vL16}
    v_cndmask_b32 {T[5]}, 0, {T[5]}, vcc
    v_add_u32 {vNxt}, 32768, {vL16}""")
    for r in range(4): B(f"v_accvgpr_write_b32 {ONES[r]}, {T[5]}")
    B(f"""s_mov_b32 s{S_KVD}, s{P_WS}
    s_mov_b32 s{S_KVD+1}, s{P_WS+1}
    s_mov_b32 s{S_KVD+2}, {KV_OFF + 262144}
    s_lshl_b32 s{sM0}, s{sW}, 13
    s_add_u32 s{sKVo}, s{sM0}, {KV_OFF}
    s_mov_b32 s{sCur}, 0
    s_mov_b32 s{sNext}, 32768
    s_mov_b32 s{sFree}, 65536
    s_lshl_b32 s{sFl}, s{sRB}, 2
    s_add_u32 s{sFl}, s{sFl}, s{sW}
    s_lshl_b32 s{sFl}, s{sFl}, 5
    s_add_u32 s{sFl}, s{sFl}, s{sCB}
    s_lshl_b32 s{sFl}, s{sFl}, 2
    s_add_u32 s{sFl}, s{sFl}, {FL_H}
    v_lshlrev_b32 {T[6]}, 3, {vL}""")
    def check(regs):
        L = [f"v_cmp_eq_u32 vcc, s{sNonce}, {regs[0]}"]
        if len(regs) > 1: L += [f"v_cmp_eq_u32 s[{sT2}:{sT3}], s{sNonce}, {regs[1]}", "s_nop 0", f"s_and_b64 vcc, vcc, s[{sT2}:{sT3}]"]
        else: L += ["s_nop 0"]
        return L + ["s_cmp_eq_u64 vcc, -1"]
    def spin(label, load, regs, back=None):
        L = [f"s_mov_b32 s{sT0}, {SPIN_MAX}", f"{label}_L:", load, "s_waitcnt vmcnt(0)"] + check(regs)
        L += [f"s_cbranch_scc1 {back or label + '_OK'}", f"s_sleep {4 if back else 1}", f"s_sub_u32 s{sT0}, s{sT0}, 1",
              f"s_cmp_lg_u32 s{sT0}, 0", f"s_cbranch_scc1 {label}_L", "s_endpgm"]
        if not back: L.append(f"{label}_OK:")
        return L
    B.ext(ts.at("poll0"))
    B(f"""s_bfe_u32 s{sT1}, s2, 0x30003
    s_mul_i32 s{sT1}, s{sT1}, {FL_ES}
    s_add_u32 s{sT1}, s{sT1}, {FL_E}
    s_cmp_lg_u32 s{sW}, 0
    s_cbranch_scc1 P2_POLL_OK""")
    B.ext(spin("P2_POLL", f"buffer_load_dwordx2 {T.sub(8,2)}, {T[6]}, {srd(S_WS)}, s{sT1} offen sc1", [T[8], T[9]]))
    B("s_barrier")
    B.ext(ts.at("poll1"))
    def kvdma(slot, tag):
        L = []
        for e in range(8):
            pre = []
            if e == 0: pre = [f"s_add_u32 m0, s{slot}, s{sM0}"]
            if e == 4: pre = [f"s_add_u32 s{sT0}, s{slot}, s{sM0}", f"s_add_u32 m0, s{sT0}, 4096", f"s_add_u32 s{sKVo}, s{sKVo}, 4096"]
            L.append((pre, VM(f"buffer_load_dwordx4 {vL16}, {srd(S_KVD)}, s{sKVo} offen offset:{(e&3)*1024} {SC1} lds", tag)))
        return L
    post_dma = f"s_add_u32 s{sKVo}, s{sKVo}, {32768 - 4096}"
    for sl in (sCur, sNext):
        for pre, d in kvdma(sl, "KV"):
            B.ext(pre)
            if pre: B("s_nop 0")
            B(d)
        B(post_dma)
    B("s_waitcnt vmcnt(8) lgkmcnt(0)\ns_barrier")
    B(f"""ds_read_b128 {K[0][0]}, {vCur}
    ds_read_b128 {K[0][1]}, {vCur} offset:1024
    ds_read_b128 {V[0][0]}, {vCur} offset:2048
    ds_read_b128 {V[0][1]}, {vCur} offset:3072""")
    hist = list(B.lines)
    B(f"""s_waitcnt lgkmcnt(0)
    v_mfma_f32_32x32x16_bf16 {S[0]}, {K[0][0]}, {Q[0][0]}, 0
    v_mfma_f32_32x32x16_bf16 {S[0]}, {K[0][1]}, {Q[0][1]}, {S[0]}""")
    B.ext(ts.at("att"))
    B("s_nop 7\ns_nop 3")
    probs += check_hazards(B.lines, "p2pro")
    A.ext(B.lines)

    NS = 4
    S_AF, S_W3, S_OUT = S_A, S_B, S_D
    sMT, sNT = sL + 6, sL + 7
    sAo = sL + 8
    sSo3 = sL + 9
    sM3 = sL + 13
    sWo, sWoN = 30, 15
    setup3 = Asm()
    setup3(f"""s_and_b32 s{sT0}, s{sCB}, 1
    s_lshl_b32 s{sMT}, s{sRB}, 1
    s_add_u32 s{sMT}, s{sMT}, s{sT0}
    s_lshr_b32 s{sT0}, s{sCB}, 3
    s_lshl_b32 s{sT0}, s{sT0}, 2
    s_bfe_u32 s{sT1}, s{sCB}, 0x20001
    s_add_u32 s{sNT}, s{sT0}, s{sT1}
    s_lshl_b32 s{sT0}, s{sNT}, 7
    s_add_u32 s{S_W3}, s{P_WD}, s{sT0}
    s_addc_u32 s{S_W3+1}, s{P_WD+1}, 0
    s_sub_u32 s{S_W3+2}, {3584*2048}, s{sT0}
    s_add_u32 s{sWo}, s{P_WO}, s{sT0}
    s_addc_u32 s{sWo+1}, s{P_WO+1}, 0
    s_sub_u32 s{sWoN}, {1024*2048}, s{sT0}
    s_mov_b32 s{S_AF}, s{P_WS}
    s_mov_b32 s{S_AF+1}, s{P_WS+1}
    s_mov_b32 s{S_AF+2}, {AF_SIZE3}
    s_mov_b32 s{S_OUT}, s{P_OUT}
    s_mov_b32 s{S_OUT+1}, s{P_OUT+1}
    s_mov_b32 s{S_OUT+2}, 0x400000
    s_mul_i32 s{sAo}, s{sW}, {AFS}
    s_lshl_b32 s{sT0}, s{sMT}, 13
    s_add_u32 s{sAo}, s{sAo}, s{sT0}
    s_add_u32 s{sAo+1}, s{sAo}, 4096
    s_lshl_b32 s{sM3}, s{sW}, 14
    s_add_u32 s{sM3}, s{sM3}, {W3B}""")
    for e in range(1, 4): setup3(f"s_mov_b32 s{sSo3+e}, {e*16384 - e*1024}")
    setup3v = Asm()
    setup3v(f"""v_lshrrev_b32 {T[0]}, 3, {vL}
    v_lshrrev_b32 {T[1]}, 4, {vL}
    v_lshlrev_b32 {T[2]}, 1, {T[1]}
    v_and_b32 {T[3]}, 7, {vL}
    v_xor_b32 {T[2]}, {T[2]}, {T[3]}
    v_lshlrev_b32 {T[2]}, 4, {T[2]}
    v_lshl_add_u32 {vW3o}, {T[0]}, 11, {T[2]}
    s_lshl_b32 s{sT0}, s{sW}, 16
    v_add_u32 {vW3o}, s{sT0}, {vW3o}
    v_lshrrev_b32 {T[0]}, 2, {vL}
    v_bfe_u32 {T[1]}, {vL}, 3, 2
    v_and_b32 {T[2]}, 3, {vL}
    v_lshlrev_b32 {T[2]}, 3, {T[2]}
    v_lshl_add_u32 {T[2]}, {T[0]}, 7, {T[2]}
    v_add_u32 {T[2]}, s{sM3}, {T[2]}""")
    for i in range(4): setup3v(f"v_xor_b32 {T[3]}, {i}, {T[1]}\nv_lshl_add_u32 {vW3a[i]}, {T[3]}, 5, {T[2]}")
    setup3v(f"""v_lshlrev_b32 {T[4]}, 3, {vL}
    v_lshlrev_b32 {T[5]}, 2, {vL}
    v_and_b32 {T[6]}, 31, {vL}
    v_lshlrev_b32 {T[6]}, 2, {T[6]}
    v_and_b32 {T[7]}, 15, {vL}
    v_lshlrev_b32 {T[7]}, 2, {T[7]}""")
    zero3 = [f"v_mov_b32 {acc3[i][j][r]}, 0" for i in range(4) for j in range(8) for r in range(4)]
    def w3dma(slot, e):
        m0 = f"s_add_u32 m0, s{sM3}, {slot*4096}"
        return m0, VM(f"buffer_load_dwordx4 {vW3o}, {srd(S_W3)}, {'0' if e == 0 else 's%d' % (sSo3+e)} offen offset:{e*1024} {opt.get('w3nt', '')} lds", ("W", slot))
    def xload(slot, j):
        return VM(f"buffer_load_dwordx4 {RX[slot][j]}, {vL16}, {srd(S_AF)}, s{sAo + (j>>2)} offen offset:{(j&3)*1024} {SC1}", ("X", slot))
    adv3 = [f"v_add_u32 {vW3o}, {4*65536}, {vW3o}", f"s_add_u32 s{sAo}, s{sAo}, {4*AFS}", f"s_add_u32 s{sAo+1}, s{sAo+1}, {4*AFS}"]
    def wread(slot, s):
        return [f"ds_read_b64_tr_b16 {RW[s][i].sub(2*hf,2)}, {vW3a[i]} offset:{slot*4096 + hf*2048}" for i in range(4) for hf in range(2)]
    def gm(s, j, i, first=False): return f"v_mfma_f32_16x16x32_bf16 {acc3[i][j]}, {RW[s&1][i]}, {RX[s][j]}, {0 if first else acc3[i][j]}"

    def att_parts(ab, kq, vp):
        o = ab ^ 1
        M = [f"v_mfma_f32_32x32x16_bf16 {S[o]}, {K[kq][0]}, {Q[o][0]}, 0",
             f"v_mfma_f32_32x32x16_bf16 {S[o]}, {K[kq][1]}, {Q[o][1]}, {S[o]}",
             f"v_mfma_f32_32x32x16_bf16 {O[o]}, {V[vp][0]}, {P[o].sub(0,4)}, {O[o]}",
             f"v_mfma_f32_16x16x32_bf16 {Lc[o]}, {ONES}, {P[o].sub(0,4)}, {Lc[o]}",
             f"v_mfma_f32_32x32x16_bf16 {O[o]}, {V[vp][1]}, {P[o].sub(4,4)}, {O[o]}",
             f"v_mfma_f32_16x16x32_bf16 {Lc[o]}, {ONES}, {P[o].sub(4,4)}, {Lc[o]}"]
        ex = [f"v_exp_f32 {S[ab][r]}, {S[ab][r]}" for r in range(16)]
        cv = [f"v_cvt_pk_bf16_f32 {P[ab][r]}, {S[ab][2*r]}, {S[ab][2*r+1]}" for r in range(8)]
        return M, ex, cv
    def phase_plain(ab, kq, vp, extra):
        M, ex, cv = att_parts(ab, kq, vp)
        vl = []
        for r in range(16):
            vl.append(ex[r])
            if r >= 3 and r % 2 == 1: vl.append(cv[(r - 3)//2])
        vl.append(cv[7])
        mpos = [0, 4, 8, 12, 15, 19]
        out = []; mi = 0
        for i, v in enumerate(vl):
            while mi < 6 and mpos[mi] == i:
                out.append(M[mi]); out.extend(extra.get(mi, [])); mi += 1
            out.append(v)
        return out
    def phase_merged(ab, kq, vp, G8, extra):
        M, ex, cv = att_parts(ab, kq, vp)
        order = [M[0], G8[0], M[1], G8[1], G8[2], M[2], G8[3], M[3], G8[4], M[4], G8[5], M[5], G8[6], G8[7]]
        e, c = ex, cv
        fill = [[e[0], e[1], e[2]], [e[3]], [e[4], e[5], e[6]], [c[0], c[1]], [e[7]], [e[8], e[9], e[10]], [c[2], c[3]], [e[11]],
                [c[4]], [e[12], e[13], e[14]], [e[15]], [c[5], c[6]], [c[7]], []]
        out = []
        for k in range(14):
            out.append(order[k]); out.extend(extra.get(k, [])); out.extend(fill[k])
        return out
    def chunk(kind, hook=None, first=False, pfok=True):
        out = []
        dl = kvdma(sFree, "KV")
        mer = kind == "merged"
        sl = dict(k0=1, k1=2, kv=5, kvpre=4) if not mer else dict(k0=2, k1=5, kv=9, kvpre=7)
        for pi in range(16):
            tau, ab = pi >> 1, pi & 1
            kp = tau & 1
            ex = {}; pre = []
            if ab == 0:
                src = (vCur, (tau+1)*4096) if tau < 7 else (vNxt, 0)
                ld = [f"ds_read_b128 {K[kp^1][t]}, {src[0]} offset:{src[1] + t*1024}" for t in range(2)]
                if tau == 7: put(ex, 0, [Need(["KV"], "lgkmcnt(0)"), "s_barrier"])
            else:
                src = (vCur, (tau+1)*4096 + 2048) if tau < 7 else (vNxt, 2048)
                ld = [f"ds_read_b128 {V[kp^1][t]}, {src[0]} offset:{src[1] + t*1024}" for t in range(2)]
                pre = ["s_waitcnt lgkmcnt(0)"]
            put(ex, sl["k0"], ld[0]); put(ex, sl["k1"], ld[1])
            if pi < 8:
                pp, d = dl[pi]
                if mer and not pp: pp = [f"s_add_u32 s{sT0}, s{sFree}, s{sM0}", f"s_add_u32 m0, s{sT0}, {(pi>>2)*4096}"]
                if pp: put(ex, sl["kvpre"], pp)
                put(ex, sl["kv"], d)
                if pi == 7: put(ex, sl["kv"], post_dma)
            if pi == 15:
                put(ex, sl["kv"], [f"s_mov_b32 s{sT0}, s{sCur}", f"s_mov_b32 s{sCur}, s{sNext}", f"s_mov_b32 s{sNext}, s{sFree}", f"s_mov_b32 s{sFree}, s{sT0}",
                                   f"s_add_u32 s{sIt}, s{sIt}, 1"])
            if mer:
                s, q = pi >> 2, pi & 3
                G8 = [gm(s, 2*q + jj, i, first and s == 0) for jj in range(2) for i in range(4)]
                if q == 0: pre = [Need([("W", (s+1) % NS), ("X", s)], "lgkmcnt(0)")]
                m0, d = w3dma(s, q)
                put(ex, 0, m0); put(ex, 1, d)
                rd = wread((s+1) % NS, (s+1) & 1)
                put(ex, 3, rd[2*q]); put(ex, 10, rd[2*q+1])
                put(ex, 8, xload(s, 2*q)); put(ex, 13, xload(s, 2*q+1))
                if q == 3: put(ex, 13, adv3)
            if pi == 9 and PF and pfok:
                put(ex, 4, pfop)
                if mer: put(ex, 6, [f"s_cmp_eq_u32 s{sIt}, 5", f"s_cselect_b32 s{sPF}, 0, s{sPF}", f"s_cselect_b32 s{S_PF}, s{P_WO}, s{S_PF}",
                                    f"s_cselect_b32 s{S_PF+1}, s{P_WO+1}, s{S_PF+1}", f"s_cselect_b32 s{S_PF+2}, 0x200000, s{S_PF+2}"])
            if pi % 8 == 6: put(ex, 5, tr_issue())
            if pi % 8 == 7: pre = pre + tr_commit()
            if hook: hook(pi, ex, pre)
            if mer: out += pre + phase_merged(ab, kp ^ ab, kp ^ 1 ^ ab, G8, ex)
            else: out += pre + phase_plain(ab, kp ^ ab, kp ^ 1 ^ ab, ex)
        out += [f"v_add_u32 {vCur}, s{sCur}, {vL16}", f"v_add_u32 {vNxt}, s{sNext}, {vL16}"]
        return out

    def hook0(pi, ex, pre):
        HS = opt.get("hs_rate", 2)
        for k in range(HS):
            n = pi*HS + k
            if n < 8: put(ex, [3, 0][k], hst0[n])
            elif n < 16:
                j = n - 8
                put(ex, [3, 0][k], [f"s_bitcmp1_b32 s{sW}, 0", f"s_cbranch_scc1 P2_HS{j}", hst1a[j], f"P2_HSB{j}:"])
    c0 = chunk("plain", hook0, pfok=False)
    HFP = opt.get("hflag_phase", 10)
    def hook1(pi, ex, pre):
        if pi == 0 and PF:
            put(ex, 0, [f"s_lshl_b32 s{sT1}, s2, 2", f"s_add_u32 s{sT1}, s{sT1}, s{sW}", f"s_lshl_b32 s{sT1}, s{sT1}, 10",
                        f"v_lshrrev_b32 {vPF}, 3, {vL}", f"v_lshlrev_b32 {vPF}, 7, {vPF}", f"v_add_u32 {vPF}, s{sT1}, {vPF}",
                        f"s_mov_b32 s{S_PF}, s{P_WD}", f"s_mov_b32 s{S_PF+1}, s{P_WD+1}", f"s_mov_b32 s{S_PF+2}, {3584*2048}", f"s_mov_b32 s{sPF}, 0"] + pfop)
        if pi == 4: put(ex, 2, pfop)
        if pi == 0: put(ex, 3, setup3.lines[:14])
        if pi == 1: put(ex, 3, setup3.lines[14:])
        if pi == 2: put(ex, 3, setup3v.lines)
        if pi >= 8:
            for k in range(2):
                s_, e_ = divmod((pi - 8)*2 + k, 4)
                m0, d = w3dma(s_, e_)
                put(ex, 2*k + 1, ([m0, "s_nop 0"] if e_ == 0 else []) + [d] + ([adv3[0]] if e_ == 3 else []))
        if pi == HFP:
            put(ex, 4, [Need(["H"]), "s_mov_b64 exec, 1", VM(f"buffer_store_dword {vNon}, {vZero}, {srd(S_WS)}, s{sFl} offen sc1", "HF"), "s_mov_b64 exec, -1", "s_nop 2"])
    c1 = chunk("plain", hook1)
    def retag(ch, cur, need):
        out = []
        for l in ch:
            if isinstance(l, VM) and l.tag == "KV": out.append(VM(l, cur))
            elif isinstance(l, Need) and "KV" in l.tags: out.append(Need([need], l.extra))
            else: out.append(l)
        return out
    hpoll = f"buffer_load_dwordx2 {vFl}, {T[4]}, {srd(S_WS)}, s{sT1} offen sc1"
    HP = opt.get("hpoll_phase", 4)
    def hook2(pi, ex, pre):
        if pi == HP: put(ex, 3, [f"s_lshl_b32 s{sT1}, s{sRB}, 9", f"s_add_u32 s{sT1}, s{sT1}, {FL_H}", VM(hpoll, "HP")])
        if pi == 7:
            put(ex, 3, [Need(["HP"])] + check([vFl[0], vFl[1]]) + ["s_cbranch_scc0 P3_SLOWH", "P3_HOK:"])
            put(ex, 4, [f"s_lshl_b32 s{sT2}, s{sRB}, 10", f"s_lshl_b32 s{sT3}, s{sW}, 8", f"s_add_u32 s{sT2}, s{sT2}, s{sT3}", f"s_add_u32 s{sT2}, s{sT2}, {G_OFF}",
                        f"s_lshl_b32 s{sT3}, s{sMT}, 9", f"s_add_u32 s{sT3}, s{sT3}, {G_OFF}"])
        if pi == 8:
            put(ex, 0, [VM(f"buffer_load_dword {vG[ab]}, {T[6]}, {srd(S_WS)}, s{sT2} offen offset:{ab*128} sc1", "G") for ab in range(2)])
            put(ex, 1, [VM(f"buffer_load_dword {SCL[j]}, {T[7]}, {srd(S_WS)}, s{sT3} offen offset:{j*64} sc1", "G") for j in range(8)])
        if pi >= 8:
            for k in range(4):
                s_, j_ = divmod((pi - 8)*4 + k, 8)
                put(ex, [2, 3, 4, 5][k], [xload(s_, j_)] + (adv3[1:] if j_ == 7 else []))
        if pi == 15:
            put(ex, 5, [Need([("W", 0)])] + wread(0, 0))
    c2 = chunk("plain", hook2)
    c0 = retag(c0, "KV0", "KVP"); c1 = retag(c1, "KV1", "KV0"); c2 = retag(c2, "KV2", "KV1")
    hist = [VM(l, "KVP") if isinstance(l, VM) and l.tag == "KV" else l for l in hist]
    c0 = resolve_waits(c0, hist); c1 = resolve_waits(c1, hist + c0); c2 = resolve_waits(c2, hist + c0 + c1)
    mA = retag(chunk("merged"), "KVa", "KVb"); mB = retag(chunk("merged"), "KVb", "KVa")
    mres = resolve_waits(mA, mB)
    M = mres
    M0 = resolve_waits(retag(chunk("merged", first=True), "KVb", "KV2"), hist + c0 + c1 + c2)
    probs += verify_waits(hist + c0 + c1 + c2 + M0 + M, len(hist + c0 + c1 + c2 + M0), "M0->M")
    D = Asm()
    D(f"s_mov_b32 s{sIt}, 0")
    D.ext(c0); D.ext(ts.at("c1")); D.ext(c1); D.ext(ts.at("c2")); D.ext(c2); D.ext(ts.at("m")); D.ext(M0)
    D(".p2align 6\nP2_MLOOP:")
    D.ext(M)
    D(f"s_cmp_lt_u32 s{sIt}, 8\ns_cbranch_scc1 P2_MLOOP")
    probs += check_hazards(B.lines[-8:] + c0 + c1 + c2 + M0 + M + M, "att")
    A.ext(D.lines)

    C = Asm()
    C.ext(ts.at("attend"))
    C(f"""v_mfma_f32_32x32x16_bf16 {O[1]}, {V[1][0]}, {P[1].sub(0,4)}, {O[1]}
    v_mfma_f32_16x16x32_bf16 {Lc[1]}, {ONES}, {P[1].sub(0,4)}, {Lc[1]}
    v_mfma_f32_32x32x16_bf16 {O[1]}, {V[1][1]}, {P[1].sub(4,4)}, {O[1]}
    v_mfma_f32_16x16x32_bf16 {Lc[1]}, {ONES}, {P[1].sub(4,4)}, {Lc[1]}""")
    C(f"v_mov_b32 {T[1]}, 0")
    for r in range(16): C(f"v_fmac_f32 {T[1]}, 0, {O[0][r]}")
    for r in range(16): C(f"v_fmac_f32 {T[1]}, 0, {O[1][r]}")
    C(f"""s_mov_b32 s{sT0}, {f2u(2.0**-60):#x}
    s_mov_b32 s{sT1}, {f2u(2.0**100):#x}
    v_cmp_le_f32 vcc, s{sT0}, {Lc[0][0]}
    v_cmp_le_f32 s[{S_C}:{S_C+1}], s{sT0}, {Lc[1][0]}
    s_nop 1
    s_and_b64 vcc, vcc, s[{S_C}:{S_C+1}]
    v_cmp_ge_f32 s[{S_C}:{S_C+1}], s{sT1}, {Lc[0][0]}
    v_cmp_ge_f32 s[{sT2}:{sT3}], s{sT1}, {Lc[1][0]}
    s_nop 1
    s_and_b64 vcc, vcc, s[{S_C}:{S_C+1}]
    s_and_b64 vcc, vcc, s[{sT2}:{sT3}]
    v_cmp_eq_f32 s[{S_C}:{S_C+1}], 0, {T[1]}
    s_nop 1
    s_and_b64 vcc, vcc, s[{S_C}:{S_C+1}]
    s_cmp_eq_u64 vcc, -1""")
    if opt.get("force_fallback"): C("s_branch P2_FALLBACK")
    C("s_cbranch_scc0 P2_FALLBACK")
    C("P2_FINISH:")
    for ab in range(2): C(f"v_rcp_f32 {T[2*ab]}, {Lc[ab][0]}")
    C(f"""s_add_u32 s{sT0}, s{sCB}, 112
    s_mul_i32 s{sT0}, s{sT0}, {AFS}
    s_lshl_b32 s{sT1}, s{sRB}, 14
    s_add_u32 s{sT0}, s{sT0}, s{sT1}
    s_lshl_b32 s{sT1}, s{sW}, 12
    s_add_u32 s{sT0}, s{sT0}, s{sT1}""")
    for ab in range(2): C(f"v_mul_f32 {T[2*ab]}, {T[2*ab]}, {vG[ab]}")
    for ab in range(2):
        for r in range(0, 16, 2):
            C(f"v_pk_mul_f32 {O[ab].sub(r,2)}, {O[ab].sub(r,2)}, {T.sub(2*ab,2)} op_sel_hi:[1,0]")
        for r in range(8): C(f"v_cvt_pk_bf16_f32 {S[ab][r]}, {O[ab][2*r]}, {O[ab][2*r+1]}")
        for c in range(2):
            C(VM(f"buffer_store_dwordx4 {S[ab].sub(4*c,4)}, {vQP}, {srd(S_WS)}, s{sT0} offen offset:{ab*2048 + c*512} {SC1}", "O"))
    for j in range(8): C(f"v_sub_f32 {SCL[j]}, 1.0, {SCL[j]}")
    for j in range(8): C(f"v_cvt_pk_bf16_f32 {SCL[j]}, {SCL[j]}, {SCL[j]}")
    for j in range(8): C(f"v_and_b32 {SCL[j]}, 0xffff0000, {SCL[j]}")
    sFC = sL
    C(f"""s_lshl_b32 s{sFC}, s{sMT}, 8
    s_add_u32 s{sFC}, s{sFC}, {FL_O}
    s_add_u32 s{sFl}, s{sFl}, {FL_O - FL_H}""")
    C.ext(ts.at("tail"))
    def p3iter(hook=None):
        out = []
        for s in range(NS):
            m = [gm(s, j, i) for j in range(8) for i in range(4)]
            f = {}
            f[-1] = [Need([("W", (s+1) % NS), ("X", s)], "lgkmcnt(0)"), w3dma(s, 0)[0]]
            dgap = [0, 6, 14, 22]
            for e in range(4): put(f, dgap[e], w3dma(s, e)[1])
            for k, r in enumerate(wread((s + 1) % NS, (s+1) & 1)): put(f, 1 + 3*k, r)
            for j in range(8): put(f, 4*j + 3 + (1 if j < 7 else 0), xload(s, j))
            put(f, 31, adv3)
            put(f, 28, tr_issue())
            if trace: f[-1] = f[-1][:1] + tr_commit() + f[-1][1:]
            if hook: hook(s, f)
            out += interleave(m, f)
        return out
    opoll = f"buffer_load_dword {vFl[0]}, {T[5]}, {srd(S_WS)}, s{sFC} offen sc1"
    OFS, OPS = opt.get("oflag_step", 2), opt.get("opoll_step", 3)
    def hookT(s, f):
        if s == OFS: put(f, 10, [Need(["O"]), "s_mov_b64 exec, 1", VM(f"buffer_store_dword {vNon}, {vZero}, {srd(S_WS)}, s{sFl} offen sc1", "OF"), "s_mov_b64 exec, -1", "s_nop 2"])
        if s == OPS: put(f, 26, VM(opoll, "OP"))
    T5 = resolve_waits(p3iter(hookT), M + M + C.lines)
    L3 = resolve_waits(p3iter())
    mid = [Need(["OP"])] + check([vFl[0]]) + ["s_cbranch_scc0 P3_SLOWO", "P3_OOK:",
           f"s_mov_b32 s{S_W3}, s{sWo}", f"s_mov_b32 s{S_W3+1}, s{sWo+1}", f"s_mov_b32 s{S_W3+2}, s{sWoN}",
           f"v_subrev_u32 {vW3o}, {28*4*65536}, {vW3o}", f"s_mov_b32 s{sIt}, 6"]
    mid = resolve_waits(mid, T5)
    probs += verify_waits(M + C.lines + T5 + mid + L3, len(M + C.lines + T5 + mid), "T5->L3")
    tail = [f"s_add_u32 s{sIt}, s{sIt}, 1", f"s_cmp_eq_u32 s{sIt}, 8", "s_cbranch_scc1 P3_LOOP",
            f"s_cmp_eq_u32 s{sIt}, 9", "s_cbranch_scc1 P3_DONE", "s_nop 7"]
    for i in range(4):
        for j in range(8):
            for r in (0, 2):
                tail.append(f"v_pk_mul_f32 {acc3[i][j].sub(r,2)}, {acc3[i][j].sub(r,2)}, {SCL.sub(j & ~1, 2)} op_sel:[0,{j&1}] op_sel_hi:[1,{j&1}]")
    tail += ["s_nop 0", "s_branch P3_LOOP", "P3_DONE:"]
    probs += check_hazards(M[-30:] + C.lines + T5 + mid + L3 + tail + L3, "tail") + check_hazards(L3 + L3, "l3")
    C.ext(T5); C.ext(ts.at("t5end")); C.ext(mid); C.ext(ts.at("l3"))
    C(".p2align 6\nP3_LOOP:")
    C.ext(L3); C.ext(tail); C.ext(ts.at("l3end"))
    C(f"""v_add_u32 {T[0]}, 0x10000, {vL16}
    v_and_b32 {T[1]}, 15, {vL}
    v_lshlrev_b32 {T[1]}, 11, {T[1]}
    v_bfe_u32 {T[2]}, {vL}, 4, 1
    v_lshl_add_u32 {T[1]}, {T[2]}, 5, {T[1]}
    v_lshrrev_b32 {T[2]}, 5, {vL}
    v_lshl_add_u32 {T[1]}, {T[2]}, 4, {T[1]}
    s_lshl_b32 s{sT0}, s{sMT}, 18
    s_lshl_b32 s{sT1}, s{sW}, 16
    s_add_u32 s{sT0}, s{sT0}, s{sT1}
    s_lshl_b32 s{sT1}, s{sNT}, 7
    s_add_u32 s{sT0}, s{sT0}, s{sT1}
    s_add_u32 s{sT1}, s{sT0}, 32768
    s_barrier""")
    for w in range(3): C(f"s_cmp_eq_u32 s{sW}, {w}\ns_cbranch_scc1 P3_RED{w}")
    A.ext(C.lines)
    def red(w):
        R = Asm()
        R(f"P3_RED{w}:")
        def adr(off): return (vL16, off) if off < 65536 else (T[0], off - 65536)
        for d in range(4):
            if d == w: continue
            q = (w - d - 1) & 3
            for jj in range(2):
                for i in range(4):
                    b_, off = adr((d*3 + q)*8192 + (jj*4 + i)*1024)
                    R(f"ds_write_b128 {b_}, {acc3[i][2*d+jj]} offset:{off}")
        R("s_waitcnt lgkmcnt(0)\ns_barrier")
        R.ext(ts.at("redw", True))
        free = [acc3[i][j] for j in range(8) if j // 2 != w for i in range(4)]
        k = 0
        for q in range(3):
            for jj in range(2):
                for i in range(4):
                    b_, off = adr((w*3 + q)*8192 + (jj*4 + i)*1024)
                    R(f"ds_read_b128 {free[k]}, {b_} offset:{off}"); k += 1
        for q in range(3):
            R(f"s_waitcnt lgkmcnt({[15, 8, 0][q]})")
            for jj in range(2):
                for i in range(4):
                    a = acc3[i][2*w+jj]; b = free[q*8 + jj*4 + i]
                    for r in (0, 2): R(f"v_pk_add_f32 {a.sub(r,2)}, {a.sub(r,2)}, {b.sub(r,2)}")
        for jj in range(2):
            for ip in range(2):
                X, Y = acc3[2*ip][2*w+jj], acc3[2*ip+1][2*w+jj]
                Dd = S[0].sub(4*(jj*2+ip), 4)
                R(f"v_cvt_pk_bf16_f32 {Dd[0]}, {X[0]}, {X[1]}\nv_cvt_pk_bf16_f32 {Dd[1]}, {X[2]}, {X[3]}")
                R(f"v_cvt_pk_bf16_f32 {Dd[2]}, {Y[0]}, {Y[1]}\nv_cvt_pk_bf16_f32 {Dd[3]}, {Y[2]}, {Y[3]}")
                R(f"s_nop 1\nv_permlane16_swap_b32 {Dd[0]}, {Dd[2]}\nv_permlane16_swap_b32 {Dd[1]}, {Dd[3]}")
                R(f"buffer_store_dwordx4 {Dd}, {T[1]}, {srd(S_OUT)}, s{sT0+jj} offen offset:{ip*64}")
        if trace:
            R(f"""s_waitcnt vmcnt(0)
            s_memrealtime s[100:101]
            s_waitcnt lgkmcnt(0)
            s_lshl_b64 exec, 1, s81
            v_mov_b32 v0, s100
            s_mov_b64 exec, -1
            s_lshl_b32 s80, s2, 2
            s_add_u32 s80, s80, s{sW}
            s_lshl_b32 s80, s80, 8
            s_add_u32 s80, s80, {TS_OFF}
            v_lshlrev_b32 {T[3]}, 2, {vL}
            buffer_store_dword v0, {T[3]}, {srd(S_WS)}, s80 offen
            s_waitcnt vmcnt(0) ; TRACE""")
        R.ext(ts.flush(S_WS, sW, S[1].base))
        R("s_endpgm")
        return R
    for w in (3, 0, 1, 2):
        R = red(w)
        probs += check_hazards(L3[-10:] + C.lines[-22:] + R.lines, f"p3red{w}")
        A.ext(R.lines)
    for j in range(8): A(f"P2_HS{j}:"); A(hst1b[j]); A(f"s_branch P2_HSB{j}")
    A("P3_SLOWH:"); A.ext(spin("P3_SH", hpoll, [vFl[0], vFl[1]], "P3_HOK"))
    A("P3_SLOWO:"); A.ext(spin("P3_SO", opoll, [vFl[0]], "P3_OOK"))

    F = Asm()
    F("P2_FALLBACK:")
    for ab in range(2): F(f"v_mov_b32 {T[ab]}, 0xff800000")
    F(f"s_mov_b32 s{sT0}, {KV_OFF}")
    F("P2_FB1:")
    for t in range(2): F(f"buffer_load_dwordx4 {K[0][t]}, {vL16}, {srd(S_WS)}, s{sT0} offen offset:{t*1024} {SC1}")
    F("s_waitcnt vmcnt(0)")
    for ab in range(2):
        F(f"v_mfma_f32_32x32x16_bf16 {S[ab]}, {K[0][0]}, {Q[ab][0]}, 0\nv_mfma_f32_32x32x16_bf16 {S[ab]}, {K[0][1]}, {Q[ab][1]}, {S[ab]}")
    F("s_nop 15")
    for ab in range(2):
        for r in range(0, 16, 2): F(f"v_max3_f32 {T[ab]}, {S[ab][r]}, {S[ab][r+1]}, {T[ab]}")
    F(f"s_add_u32 s{sT0}, s{sT0}, 4096\ns_cmp_lt_u32 s{sT0}, {KV_OFF + 262144}\ns_cbranch_scc1 P2_FB1")
    for ab in range(2): F(f"v_mov_b32 {T[2+ab]}, {T[ab]}")
    F("s_nop 1")
    for ab in range(2): F(f"v_permlane32_swap_b32 {T[ab]}, {T[2+ab]}")
    for ab in range(2): F(f"v_max_f32 {T[8+ab]}, {T[ab]}, {T[2+ab]}")
    for ab in range(2):
        for r in range(16): F(f"v_mov_b32 {O[ab][r]}, 0")
        for r in range(4): F(f"v_mov_b32 {Lc[ab][r]}, 0")
    F(f"s_mov_b32 s{sT0}, {KV_OFF}")
    F("P2_FB2:")
    for t in range(2): F(f"buffer_load_dwordx4 {K[0][t]}, {vL16}, {srd(S_WS)}, s{sT0} offen offset:{t*1024} {SC1}")
    for t in range(2): F(f"buffer_load_dwordx4 {V[0][t]}, {vL16}, {srd(S_WS)}, s{sT0} offen offset:{2048 + t*1024} {SC1}")
    F("s_waitcnt vmcnt(0)")
    for ab in range(2):
        F(f"v_mfma_f32_32x32x16_bf16 {S[ab]}, {K[0][0]}, {Q[ab][0]}, 0\nv_mfma_f32_32x32x16_bf16 {S[ab]}, {K[0][1]}, {Q[ab][1]}, {S[ab]}")
    F("s_nop 15")
    for ab in range(2):
        for r in range(16): F(f"v_sub_f32 {S[ab][r]}, {S[ab][r]}, {T[8+ab]}")
        for r in range(16): F(f"v_exp_f32 {S[ab][r]}, {S[ab][r]}")
        F("s_nop 0")
        for r in range(8): F(f"v_cvt_pk_bf16_f32 {P[ab][r]}, {S[ab][2*r]}, {S[ab][2*r+1]}")
    F("s_nop 1")
    for ab in range(2):
        for u_ in range(2):
            F(f"v_mfma_f32_32x32x16_bf16 {O[ab]}, {V[0][u_]}, {P[ab].sub(4*u_,4)}, {O[ab]}")
            F(f"v_mfma_f32_16x16x32_bf16 {Lc[ab]}, {ONES}, {P[ab].sub(4*u_,4)}, {Lc[ab]}")
    F(f"s_add_u32 s{sT0}, s{sT0}, 4096\ns_cmp_lt_u32 s{sT0}, {KV_OFF + 262144}\ns_cbranch_scc1 P2_FB2")
    F("s_nop 15\ns_branch P2_FINISH")
    F("L_END:\ns_endpgm")
    probs += check_hazards(F.lines, "fb")
    A.ext(F.lines)
    for p_ in probs: print("PROBLEM", p_)
    launch = f"; @launch grid=(256,1,1) block=(256,1,1) lds=163840"
    return launch, A.text(), kdesc(NAME, 512, 256)

HDR = open("gated_mix__grouped_kv_mqa__glu_gated_reglu__prompt.s.ref").read().split("; Override launch")[0]
def build(opt=None):
    l, t, d = gen(opt)
    return HDR + l + "\n" + '.amdgcn_target "amdgcn-amd-amdhsa--gfx950"\n.text\n' + t + d
if __name__ == "__main__":
    import sys, json
    out = sys.argv[1] if len(sys.argv) > 1 else "gated_mix__grouped_kv_mqa__glu_gated_reglu__prompt.s"
    opt = json.loads(sys.argv[2]) if len(sys.argv) > 2 else {}
    open(out, "w").write(build(opt))
```

```python
from asmlib import *
from common import *
LOG2E = math.log2(math.e)
NAME = "gated_mix__grouped_kv_mqa__glu_gated_reglu__prompt_kernel"

FL_E = 0x1650000
FL_ES = 4352
FL_Q = 0x1660000
FL_H = 0x1649000
FL_O = 0x164a000
SPIN_MAX = 1 << 20
PW = 7168

def put(f, g, x):
    f.setdefault(g, []).extend(x if isinstance(x, list) else [x])

def gen(opt=None):
    opt = opt or {}
    A = Asm()
    DEF = ["start", "p1", "p1end", "kvdone", "poll0", "poll1", "att", "attend", "tail"]
    tsn = opt.get("ts")
    ts = TSN(DEF if tsn == 1 else tsn, opt.get("tskind", "rt"))
    SC1 = "sc1"
    probs = []
    P_X, P_WQ, P_WK, P_WV, P_WO = 4, 6, 8, 10, 12
    P_WG, P_WU, P_WD, P_GW = 16, 18, 20, 22
    P_OUT, P_DBG, P_WS = 24, 26, 28
    S_WS, S_A, S_B, S_C, S_D, S_E = 32, 36, 40, 44, 48, 52
    sW, sNonce = 56, 57
    sT0, sT1, sT2, sT3 = 58, 59, 60, 61
    sIt, sRB, sCB = 62, 63, 64
    sL = 65
    vL, vL16 = Reg("v", 1, 1), Reg("v", 2, 1)
    def srd(b): return f"s[{b}:{b+3}]"

    A(f".globl {NAME}\n.p2align 8\n.type {NAME},@function\n{NAME}:")
    A("s_cmp_ge_u32 s2, 256\ns_cbranch_scc1 L_END")
    A.ext(ts.at("start"))
    A(f"""s_load_dwordx8 s[4:11], s[0:1], 0
    s_load_dwordx2 s[12:13], s[0:1], 32
    s_load_dwordx8 s[16:23], s[0:1], 48
    s_load_dwordx4 s[24:27], s[0:1], 80
    s_load_dwordx2 s[28:29], s[0:1], 96
    s_memrealtime s[30:31]
    v_lshrrev_b32 v3, 6, v0
    v_and_b32 {vL}, 63, v0
    v_readfirstlane_b32 s{sW}, v3
    v_lshlrev_b32 {vL16}, 4, {vL}""")

    trace = opt.get("trace")
    def tr_issue(): return ["s_memrealtime s[100:101]"] if trace else []
    def tr_commit(): return ["s_lshl_b64 exec, 1, s81", "v_mov_b32 v0, s100", "s_mov_b64 exec, -1", "s_add_u32 s81, s81, 1"] if trace else []
    if trace: A("s_mov_b32 s81, 0\nv_mov_b32 v0, 0\ns_memrealtime s[100:101]\ns_waitcnt lgkmcnt(0)"); A.ext(tr_commit())
    S_X, S_W0, S_W1, S_KV, S_Wb = S_A, S_B, S_C, S_D, S_E
    sSoX = sL - 1
    sSo0 = sL + 7
    sSo1 = sL + 7
    sM0X, sM0W, sM0K, sWwr = sL + 11, sL + 12, sL + 13, sL + 14
    sWrd, s16k, sStep1, sJob, sGJ, sIsB, sKVst, sEfl = 14, 30, 15, 3, 31, 9, 10, 11
    XB, WB, KR = 0, 65536, 147456
    vXo = [3, 4]; vWo0, vWo1, vKo, vSXo = 5, 6, 7, 8
    vXa = [9, 10]; vW0a = [[11 + 2*i, 12 + 2*i] for i in range(4)]; vW1a = [19, 20, 21, 22]; vSWa = 23
    vT = 24
    acc = [[None]*8 for _ in range(8)]
    p = 32
    for i in range(7):
        for j in range(8):
            acc[i][j] = Reg("v", p, 4); p += 4
    RA = [[Reg("a", 64*s + 4*i, 4) for i in range(8)] for s in range(2)]
    RB = [[Reg("a", 64*s + 32 + 4*j, 4) for j in range(8)] for s in range(2)]
    SA = [[Reg("a", 128 + 8*s + 4*k, 4) for k in range(2)] for s in range(2)]
    sacc = Reg("a", 144, 4)
    for j in range(8): acc[7][j] = Reg("a", 148 + 4*j, 4)
    SXB = [[Reg("a", 180 + 16*b + 4*j, 4) for j in range(4)] for b in range(2)]
    GXa = [Reg("a", 180 + 8*r, 8) for r in range(4)]
    GWa = Reg("a", 212, 8)
    t0, t1, t2, t3, t4, t5, t6, t7 = range(vT, vT + 8)
    HUGE = 0x40000000

    A(f"""s_and_b32 s{sT0}, s2, 1
    s_lshl_b32 s{sT0}, s{sT0}, 2
    s_bfe_u32 s{sT1}, s2, 0x20003
    s_add_u32 s{sRB}, s{sT0}, s{sT1}
    s_bfe_u32 s{sT0}, s2, 0x20001
    s_lshl_b32 s{sT0}, s{sT0}, 3
    s_lshr_b32 s{sT1}, s2, 5
    s_add_u32 s{sCB}, s{sT0}, s{sT1}""")
    A(f"""s_lshl_b32 s{sT0}, s{sW}, 6
    v_lshrrev_b32 v{t0}, 3, {vL}
    v_add_u32 v{t2}, s{sT0}, v{t0}
    v_lshlrev_b32 v{t2}, 11, v{t2}
    v_lshrrev_b32 v{t1}, 4, {vL}
    v_and_b32 v{t3}, 7, {vL}
    v_xor_b32 v{t4}, v{t3}, v{t1}
    v_lshl_add_u32 v{vXo[0]}, v{t4}, 4, v{t2}
    v_xor_b32 v{vXo[1]}, 64, v{vXo[0]}""")
    for e in range(1, 8): A(f"s_mov_b32 s{sSoX+e}, {e*16384 - (e&3)*1024}")
    A(f"""s_lshl_b32 s{sM0X}, s{sW}, 13
    s_lshl_b32 s{sM0W}, s{sW}, 11
    s_add_u32 s{sM0K}, s{sM0W}, {KR}
    s_add_u32 s{sM0W}, s{sM0W}, {WB}
    s_lshr_b32 s{sT0}, s{sCB}, 2
    s_and_b32 s{sT1}, s{sCB}, 3
    s_mul_i32 s{sT2}, s{sT0}, 3
    s_add_u32 s{sT2}, s{sT2}, s{sT1}
    s_sub_u32 s{sT3}, s{sT2}, 16
    s_cmp_lt_u32 s{sT2}, 16
    s_cselect_b32 s{sJob}, s{sT2}, 64
    s_cselect_b32 s{sT3}, 64, s{sT3}
    s_add_u32 s{sT2}, s{sT0}, 8
    s_mov_b32 s{sStep1}, {PW}
    s_cmp_eq_u32 s{sT1}, 3
    s_cselect_b32 s{sJob}, 64, s{sJob}
    s_cselect_b32 s{sT3}, s{sT2}, s{sT3}
    s_cselect_b32 s{sStep1}, 2048, s{sStep1}""")
    A(f"""s_lshl_b32 s{sT0}, s{sW}, 3
    v_add_u32 v{t2}, s{sT0}, v{t1}
    v_mul_lo_u32 v{t2}, v{t2}, s{sStep1}
    s_and_b32 s{sT1}, s{sW}, 1
    s_lshl_b32 s{sT2}, s{sT1}, 3
    v_and_b32 v{t4}, 15, {vL}
    v_lshl_or_b32 v{t5}, v{t1}, 1, s{sT2}
    v_xor_b32 v{t4}, v{t4}, v{t5}
    v_lshl_add_u32 v{vWo1}, v{t4}, 4, v{t2}
    v_add_u32 v{t2}, s{sT0}, v{t0}
    v_mul_u32_u24 v{t2}, {PW}, v{t2}
    s_lshl_b32 s{sT2}, s{sT1}, 2
    v_and_b32 v{t4}, 1, v{t1}
    v_lshl_or_b32 v{t4}, v{t4}, 1, s{sT2}
    v_xor_b32 v{t4}, v{t4}, v{t3}
    v_lshl_add_u32 v{vWo0}, v{t4}, 4, v{t2}""")
    A("s_waitcnt lgkmcnt(0)")
    A(f"""s_lshl_b32 s{sT0}, s{sRB}, 19
    s_add_u32 s{S_X}, s{P_X}, s{sT0}
    s_addc_u32 s{S_X+1}, s{P_X+1}, 0
    s_mov_b32 s{S_X+2}, 0x80000
    s_mov_b32 s{S_X+3}, 0x20000""")
    A(f"""s_mov_b32 s{S_WS+3}, 0x20000
    s_or_b32 s{sT0}, s2, s{sW}
    s_cmp_lg_u32 s{sT0}, 0
    s_cbranch_scc1 P1_NONONCE
    s_or_b32 s30, s30, 1
    s_mov_b32 s{S_WS}, s{P_DBG}
    s_mov_b32 s{S_WS+1}, s{P_DBG+1}
    s_mov_b32 s{S_WS+2}, 256
    v_mov_b32 v{t6}, s30
    v_mov_b32 v{t7}, 0
    s_mov_b64 exec, 1
    buffer_store_dword v{t6}, v{t7}, {srd(S_WS)}, 0 offen sc1
    s_mov_b64 exec, -1
    P1_NONONCE:
    s_mov_b32 s{sGJ}, s{sT3}""")
    WNT = opt.get("wnt", "")
    def xdma(par):
        sl = []
        for e in range(8):
            pre = []
            if e == 0: pre = [f"s_add_u32 m0, s{sM0X}, {par}"]
            if e == 4: pre = ["s_add_u32 m0, m0, 4096"]
            so = "0" if e == 0 else f"s{sSoX+e}"
            sl.append((pre, VM(f"buffer_load_dwordx4 v{vXo[e&1]}, {srd(S_X)}, {so} offen offset:{(e&3)*1024} lds", "X")))
        return sl
    def wdma(hb, slot):
        so0 = "0" if hb == 0 else f"s{sSo0}"
        so1 = ["0" if hb == 0 else f"s{sSo1+2}", f"s{sSo1 + 1 + 2*hb}"]
        return [([f"s_add_u32 m0, s{sM0W}, {slot}"], VM(f"buffer_load_dwordx4 v{vWo0}, {srd(S_W0)}, {so0} offen {WNT} lds", "W")),
                ([], VM(f"buffer_load_dwordx4 v{vWo0}, {srd(S_Wb)}, {so0} offen offset:1024 {WNT} lds", "W")),
                (["s_add_u32 m0, m0, 8192"], VM(f"buffer_load_dwordx4 v{vWo1}, {srd(S_W1)}, {so1[0]} offen {WNT} lds", "W")),
                ([], VM(f"buffer_load_dwordx4 v{vWo1}, {srd(S_W1)}, {so1[1]} offen offset:1024 {WNT} lds", "W"))]
    def kdma(slot):
        return [([f"s_add_u32 m0, s{sM0K}, {slot}"], VM(f"buffer_load_dwordx4 v{vKo}, {srd(S_KV)}, 0 offen lds", "X")),
                ([], VM(f"buffer_load_dwordx4 v{vKo}, {srd(S_KV)}, 0 offen offset:1024 lds", "X"))]
    def sxload(b): return [VM(f"buffer_load_dwordx4 {SXB[b][j]}, v{vSXo}, {srd(S_X)}, 0 offen offset:{j*64}", "SX") for j in range(4)]
    def emit_dma(X, sl):
        for pre, d in sl:
            X.ext(pre)
            if pre: X("s_nop 0")
            X(d)
    emit_dma(A, xdma(0))
    A(f"""s_lshr_b32 s{sT0}, s{sCB}, 2
    s_and_b32 s{sT1}, s{sCB}, 3
    s_mul_i32 s{sT2}, s{sT0}, 896
    s_lshl_b32 s{sT3}, s{sT1}, 8
    s_add_u32 s{sT2}, s{sT2}, s{sT3}
    s_add_u32 s{S_W0}, s{P_WG}, s{sT2}
    s_addc_u32 s{S_W0+1}, s{P_WG+1}, 0
    s_sub_u32 s{S_W0+2}, {1024*PW}, s{sT2}
    s_mov_b32 s{S_W0+3}, 0x20000
    s_mov_b32 s{S_W1+3}, 0x20000
    s_mov_b32 s{S_Wb+3}, 0x20000
    s_mov_b32 s{sSo0}, {32*PW}
    s_cmp_eq_u32 s{sT1}, 3
    s_cbranch_scc1 P1_SRDB
    s_add_u32 s{S_Wb}, s{S_W0}, {4*PW - 1024}
    s_addc_u32 s{S_Wb+1}, s{S_W0+1}, 0
    s_sub_u32 s{S_Wb+2}, s{S_W0+2}, {4*PW - 1024}
    s_add_u32 s{S_W1}, s{P_WU}, s{sT2}
    s_addc_u32 s{S_W1+1}, s{P_WU+1}, 0
    s_mov_b32 s{S_W1+2}, s{S_W0+2}
    v_mov_b32 v{vWo0}, v{vWo1}
    s_branch P1_SRDD
    P1_SRDB:
    s_add_u32 s{S_Wb}, s{P_WU}, s{sT2}
    s_addc_u32 s{S_Wb+1}, s{P_WU+1}, 0
    s_sub_u32 s{S_Wb}, s{S_Wb}, 1024
    s_subb_u32 s{S_Wb+1}, s{S_Wb+1}, 0
    s_add_u32 s{S_Wb+2}, s{S_W0+2}, 1024
    s_lshl_b32 s{sT0}, s{sT0}, 8
    s_add_u32 s{S_W1}, s{P_WQ}, s{sT0}
    s_addc_u32 s{S_W1+1}, s{P_WQ+1}, 0
    s_sub_u32 s{S_W1+2}, {1024*2048}, s{sT0}
    P1_SRDD:
    s_lshl_b32 s{sSo1+1}, s{sStep1}, 2
    s_sub_u32 s{sSo1+1}, s{sSo1+1}, 1024
    s_lshl_b32 s{sSo1+2}, s{sStep1}, 5
    s_add_u32 s{sSo1+3}, s{sSo1+2}, s{sSo1+1}
    s_lshl_b32 s{sStep1}, s{sStep1}, 6""")
    advX = [f"v_add_u32 v{vXo[0]}, 128, v{vXo[0]}", f"v_add_u32 v{vXo[1]}, 128, v{vXo[1]}"]
    advW = [f"v_add_u32 v{vWo0}, {64*PW}, v{vWo0}", f"v_add_u32 v{vWo1}, s{sStep1}, v{vWo1}"]
    advK = f"v_add_u32 v{vKo}, 8192, v{vKo}"
    advS = f"v_add_u32 v{vSXo}, 256, v{vSXo}"
    emit_dma(A, wdma(0, 0)); emit_dma(A, wdma(1, 16384))
    A.ext(advX + advW)
    A(f"""s_bitcmp1_b32 s{sJob}, 0
    s_cselect_b32 s{S_KV}, s{P_WV}, s{P_WK}
    s_cselect_b32 s{S_KV+1}, s{P_WV+1}, s{P_WK+1}
    s_cmp_lt_u32 s{sJob}, 16
    s_cselect_b32 s{S_KV+2}, 65536, 0
    s_mov_b32 s{S_KV+3}, 0x20000
    s_and_b32 s{sIsB}, s{sCB}, 3
    s_cmp_eq_u32 s{sIsB}, 3
    s_cselect_b32 s{sIsB}, 1, 0
    v_lshrrev_b32 v{t2}, 5, {vL}
    v_lshlrev_b32 v{t2}, 1, v{t2}
    v_xor_b32 v{t2}, v{t2}, {vL}
    v_lshlrev_b32 v{t2}, 4, v{t2}
    s_lshl_b32 s{sT0}, s{sW}, 11
    v_add_u32 v{vKo}, s{sT0}, v{t2}
    s_lshr_b32 s{sT0}, s{sJob}, 1
    s_lshl_b32 s{sT0}, s{sT0}, 1
    s_lshr_b32 s{sT1}, s{sW}, 1
    s_add_u32 s{sT0}, s{sT0}, s{sT1}
    s_lshl_b32 s{sT0}, s{sT0}, 15
    v_and_b32 v{t2}, 15, {vL}
    v_lshlrev_b32 v{t2}, 11, v{t2}
    v_lshl_add_u32 v{t2}, v{t1}, 4, v{t2}
    v_add_u32 v{vSXo}, s{sT0}, v{t2}""")
    emit_dma(A, kdma(0)); A.ext(sxload(0)); A(advK); A(advS)
    A(f"""s_mov_b32 s{S_WS}, s{P_WS}
    s_mov_b32 s{S_WS+1}, s{P_WS+1}
    s_mov_b32 s{S_WS+2}, {WS_USED}""")
    nfirst = len(A.lines)
    second = xdma(32768) + wdma(0, 2*16384) + kdma(8192) + wdma(1, 3*16384)
    A(f"""v_and_b32 v{t0}, 15, {vL}
    v_lshrrev_b32 v{t2}, 1, v{t0}
    v_xor_b32 v{t2}, v{t2}, v{t1}
    v_lshlrev_b32 v{t2}, 4, v{t2}
    v_lshl_add_u32 v{t2}, v{t0}, 7, v{t2}
    s_lshr_b32 s{sT0}, s{sW}, 1
    s_lshl_b32 s{sT1}, s{sT0}, 14
    v_add_u32 v{vXa[0]}, s{sT1}, v{t2}
    v_xor_b32 v{vXa[1]}, 64, v{vXa[0]}
    v_bfe_u32 v{t0}, {vL}, 2, 2
    v_lshl_add_u32 v{t2}, v{t1}, 3, v{t0}
    v_and_b32 v{t3}, 1, v{t1}
    v_lshl_or_b32 v{t5}, v{t3}, 2, v{t0}
    v_and_b32 v{t4}, 3, {vL}
    v_lshlrev_b32 v{t4}, 3, v{t4}
    v_lshl_add_u32 v{t6}, v{t2}, 8, v{t4}
    v_add_u32 v{t6}, {WB + 8192}, v{t6}
    s_and_b32 s{sT0}, s{sW}, 1
    s_lshl_b32 s{sT1}, s{sT0}, 2""")
    for ii in range(4):
        A(f"""s_add_u32 s{sT2}, s{sT1}, {ii}
        v_xor_b32 v{t7}, s{sT2}, v{t5}
        v_lshl_add_u32 v{vW1a[ii]}, v{t7}, 5, v{t6}""")
    A(f"""v_lshl_add_u32 v{t2}, v{t2}, 6, v{t4}
    v_xor_b32 v{t7}, s{sT0}, v{t3}
    v_lshl_add_u32 v{t7}, v{t7}, 5, v{t2}
    v_add_u32 v{vSWa}, {KR}, v{t7}
    s_mov_b32 s{s16k}, 16384
    s_cmp_eq_u32 s{sIsB}, 1
    s_cbranch_scc1 P1_ADB""")
    for ii in range(4):
        A(f"v_subrev_u32 v{vW0a[ii][0]}, 8192, v{vW1a[ii]}\nv_subrev_u32 v{vW0a[ii][1]}, 7168, v{vW1a[ii]}")
    A(f"""s_branch P1_ADD
    P1_ADB:
    v_lshl_add_u32 v{t4}, v{t1}, 11, v{t4}
    v_lshl_add_u32 v{t4}, v{t0}, 7, v{t4}
    v_add_u32 v{t4}, {WB}, v{t4}
    v_lshrrev_b32 v{t0}, 1, v{t0}
    v_lshl_or_b32 v{t0}, v{t3}, 1, v{t0}
    s_lshl_b32 s{sT1}, s{sT0}, 1""")
    for k in range(2):
        A(f"""s_add_u32 s{sT2}, s{sT1}, {k}
        v_xor_b32 v{t7}, s{sT2}, v{t0}
        v_lshl_add_u32 v{vW0a[k][0]}, v{t7}, 5, v{t4}
        v_add_u32 v{vW0a[k][1]}, 512, v{vW0a[k][0]}
        v_add_u32 v{vW0a[2+k][0]}, 1024, v{vW0a[k][0]}
        v_add_u32 v{vW0a[2+k][1]}, 1536, v{vW0a[k][0]}""")
    A("P1_ADD:")
    PF = opt.get("pf", 1)
    Z = []
    for i in range(8):
        for j in range(8):
            for r in range(4):
                a = acc[i][j][r]
                Z.append(f"v_mov_b32 {a}, 0" if a.f == "v" else f"v_accvgpr_write_b32 {a}, 0")
    for r in range(4): Z.append(f"v_accvgpr_write_b32 {sacc[r]}, 0")
    per = len(Z) // len(second)
    for k, (pre, d) in enumerate(second):
        A.ext(pre); A.ext(Z[k*per:(k+1)*per]); A(d)
    A.ext(Z[len(second)*per:])
    A.ext(advX + advW + [advK])

    rdregs = [r for pr in vW0a for r in pr] + vW1a
    def reads(b, s, side):
        L = [f"ds_read_b128 {RB[s][j]}, v{vXa[b]} offset:{j*2048}" for j in range(8)]
        for i in range(8):
            for hf in range(2):
                if i < 4: L.append(f"ds_read_b64_tr_b16 {RA[s][i].sub(2*hf, 2)}, v{vW0a[i][hf]}")
                else: L.append(f"ds_read_b64_tr_b16 {RA[s][i].sub(2*hf, 2)}, v{vW1a[i-4]} offset:{hf*1024}")
        if side:
            for k in range(2):
                for hf in range(2):
                    L.append(f"ds_read_b64_tr_b16 {SA[s][k].sub(2*hf, 2)}, v{vSWa} offset:{(2*b + k)*2048 + hf*256}")
        return L
    def mfmas(s, side=None):
        L = []
        for i in range(8):
            js = range(8) if i % 2 == 0 else range(7, -1, -1)
            for j in js:
                L.append(f"v_mfma_f32_16x16x32_bf16 {acc[i][j]}, {RA[s][i]}, {RB[s][j]}, {acc[i][j]}")
            if side is not None and i in (2, 5):
                k = 0 if i == 2 else 1
                L.append(f"v_mfma_f32_16x16x32_bf16 {sacc}, {SA[s][k]}, {SXB[side][2*s + k]}, {sacc}")
        return L
    def rotW(sreg, sd):
        return [f"s_cmp_eq_u32 s{sreg}, {4*16384}", f"s_cselect_b32 s{sd}, {(-4*16384) & 0xffffffff:#x}, s{s16k}", f"s_add_u32 s{sreg}, s{sreg}, s{sd}"]
    A(f"s_waitcnt vmcnt({len(second)}) lgkmcnt(0)\ns_barrier")
    A.ext(reads(0, 0, True))
    for r in rdregs: A(f"v_add_u32 v{r}, 16384, v{r}")
    A(f"""s_mov_b32 s{sWrd}, 16384
    s_mov_b32 s{sWwr}, {4*16384}
    s_mov_b32 s{sIt}, 0
    s_waitcnt lgkmcnt(0)
    s_barrier""")
    A.ext(ts.at("p1"))
    if ts.on: A("s_waitcnt lgkmcnt(0)")
    pro_hist = list(A.lines)

    def step(side=None, dma=True, last=False, hook=None, lim=None):
        out = []
        sd = side is not None
        n = 66 if sd else 64
        BG = n - 4
        def rot(f):
            put(f, 47, rotW(sWrd, sT1))
            for k, r in enumerate(rdregs): put(f, 48 + k, f"v_add_u32 v{r}, s{sT1}, v{r}")
        f = {}
        for k, r in enumerate(reads(1, 1, sd)): put(f, 2*k if k < 24 else 49 + 2*(k - 24), r)
        if dma:
            dg = [1, 9, 17, 25, 33, 39, 45, 53] if not sd else [9, 15, 21, 27, 33, 39, 45, 53]
            for k, (pre, d) in enumerate(wdma(0, f"s{sWwr}") + wdma(1, f"s{sWwr}")):
                if pre: put(f, dg[k] - 1, pre)
                put(f, dg[k], d)
            put(f, dg[0] + 2, rotW(sWwr, sT0)); put(f, 35, rotW(sWwr, sT0))
            put(f, 55, advW[0]); put(f, 57, advW[1])
        if sd:
            for k, l in enumerate(sxload(side ^ 1)): put(f, [1, 1, 5, 5][k], l)
            put(f, 7, advS)
            put(f, 59, f"v_xor_b32 v{vSWa}, 0x2000, v{vSWa}")
        rot(f)
        put(f, 19, f"v_xor_b32 v{vXa[0]}, 0x8000, v{vXa[0]}")
        if hook: hook(0, f, BG)
        put(f, BG, [Need(["X"], "lgkmcnt(0)") if (dma or not last) else "s_waitcnt lgkmcnt(0)", "s_barrier"])
        if hook: hook(2, f, BG)
        out += interleave(mfmas(0, side), f)
        f = {}
        if not last:
            for k, r in enumerate(reads(0, 0, sd)): put(f, 2*k if k < 24 else 49 + 2*(k - 24), r)
            rot(f)
            put(f, 21, f"v_xor_b32 v{vXa[1]}, 0x8000, v{vXa[1]}")
        if dma:
            put(f, -1, [f"s_and_b32 s{sT3}, s{sIt}, 1", f"s_lshl_b32 s{sT0}, s{sT3}, 15", f"s_lshl_b32 s{sT3}, s{sT3}, 13"])
            dl = (kdma(f"s{sT3}") if sd else []) + xdma(f"s{sT0}")
            dg = [1, 7, 13, 19, 25, 31, 37, 43, 49, 55] if sd else [1, 9, 17, 25, 33, 41, 47, 53]
            for k, (pre, d) in enumerate(dl):
                if pre: put(f, dg[k] - 1, pre)
                put(f, dg[k], d)
            put(f, 57, advX[0]); put(f, 59, advX[1])
            if sd: put(f, 9, advK)
        if hook: hook(1, f, BG)
        put(f, BG - 3, tr_issue())
        put(f, BG, [Need(["SX"], "lgkmcnt(0)") if sd else "s_waitcnt lgkmcnt(0)", "s_barrier"] + tr_commit())
        put(f, BG + 1, f"s_add_u32 s{sIt}, s{sIt}, 1")
        if lim: put(f, BG + 2, f"s_cmp_lt_u32 s{sIt}, {lim}")
        out += interleave(mfmas(1, side), f)
        return out

    vN, vZ, vKA, vFA = t0, t1, t2, t3
    u = 28
    nload = f"buffer_load_dword v{vN}, v{vZ}, {srd(S_KV)}, 0 offen sc1"
    dbgsrd = [f"s_mov_b32 s{S_KV}, s{P_DBG}", f"s_mov_b32 s{S_KV+1}, s{P_DBG+1}", f"s_mov_b32 s{S_KV+2}, 256", f"v_mov_b32 v{vZ}, 0"]
    kvA = Asm()
    kvA(f"""s_lshr_b32 s{sKVst}, s{sW}, 1
    s_and_b32 s{sEfl}, s{sW}, 1
    s_bitcmp1_b32 s{sJob}, 0
    s_cbranch_scc1 P1_KVAV
    v_bfe_u32 v{vKA}, {vL}, 3, 1
    v_lshlrev_b32 v{vKA}, 4, v{vKA}
    v_and_b32 v{vFA}, 7, {vL}
    v_add_u32 v{vKA}, v{vKA}, v{vFA}
    v_bfe_u32 v{vFA}, {vL}, 4, 1
    v_lshl_add_u32 v{vKA}, v{vFA}, 5, v{vKA}
    v_lshlrev_b32 v{vKA}, 4, v{vKA}
    v_lshrrev_b32 v{vFA}, 5, {vL}
    v_lshl_add_u32 v{vKA}, v{vFA}, 10, v{vKA}
    s_lshl_b32 s{sKVst}, s{sKVst}, 7
    s_lshl_b32 s{sEfl}, s{sEfl}, 3
    s_add_u32 s{sKVst}, s{sKVst}, s{sEfl}
    s_add_u32 s{sKVst}, s{sKVst}, {KR}
    v_add_u32 v{vKA}, s{sKVst}, v{vKA}
    ds_write_b64 v{vKA}, v[{u}:{u+1}]
    s_branch P1_KVAD
    P1_KVAV:
    v_lshrrev_b32 v{vKA}, 5, {vL}
    v_lshlrev_b32 v{vKA}, 4, v{vKA}
    v_bfe_u32 v{vFA}, {vL}, 4, 1
    v_lshl_add_u32 v{vKA}, v{vFA}, 2, v{vKA}
    v_bfe_u32 v{vFA}, {vL}, 2, 1
    v_lshl_add_u32 v{vKA}, v{vFA}, 5, v{vKA}
    v_lshlrev_b32 v{vKA}, 4, v{vKA}
    v_bfe_u32 v{vFA}, {vL}, 3, 1
    v_lshl_add_u32 v{vKA}, v{vFA}, 10, v{vKA}
    v_and_b32 v{vFA}, 3, {vL}
    v_lshl_add_u32 v{vKA}, v{vFA}, 1, v{vKA}
    s_lshl_b32 s{sEfl}, s{sEfl}, 7
    s_lshl_b32 s{sKVst}, s{sKVst}, 3
    s_add_u32 s{sKVst}, s{sKVst}, s{sEfl}
    s_add_u32 s{sKVst}, s{sKVst}, {KR}
    v_add_u32 v{vKA}, s{sKVst}, v{vKA}
    ds_write_b16 v{vKA}, v{u}
    ds_write_b16_d16_hi v{vKA}, v{u} offset:16
    ds_write_b16 v{vKA}, v{u+1} offset:32
    ds_write_b16_d16_hi v{vKA}, v{u+1} offset:48
    P1_KVAD:""")
    def hookS8(ph, f, BG):
        if ph == 0:
            for r in range(4): put(f, 11 + 2*r, f"v_accvgpr_read_b32 v{u+r}, {sacc[r]}")
            put(f, 21, f"v_cvt_pk_bf16_f32 v{u}, v{u}, v{u+1}"); put(f, 23, f"v_cvt_pk_bf16_f32 v{u+1}, v{u+2}, v{u+3}")
            put(f, 27, dbgsrd)
        if ph == 1:
            put(f, 3, kvA.lines)
            put(f, 5, VM(nload, "N"))
            put(f, 11, [f"s_lshl_b32 s{sKVst}, s{sRB}, 4", f"s_add_u32 s{sKVst}, s{sKVst}, s{sJob}", f"s_lshl_b32 s{sEfl}, s{sKVst}, 2"])
            put(f, 13, [f"s_lshl_b32 s{sKVst}, s{sKVst}, 11", f"s_add_u32 s{sKVst}, s{sKVst}, {KV_OFF}", f"s_add_u32 s{sEfl}, s{sEfl}, {FL_E}"])
            put(f, 15, [f"s_cmp_eq_u32 s{sW}, 0", f"s_cselect_b32 s{sKVst}, s{sKVst}, {HUGE}", f"s_cselect_b32 s{sEfl}, s{sEfl}, {HUGE}"])
            put(f, 23, f"v_add_u32 v{vKA}, {KR}, {vL16}")
            put(f, 27, f"v_mul_u32_u24 v{vFA}, {FL_ES}, {vL}")
    KT = [Reg("a", 128, 4), Reg("a", 132, 4)]
    def hookS9(ph, f, BG):
        if ph == 0:
            put(f, 1, [f"ds_read_b128 {KT[0]}, v{vKA}"]); put(f, 3, [f"ds_read_b128 {KT[1]}, v{vKA} offset:1024"])
            put(f, 13, "s_waitcnt lgkmcnt(5)")
            put(f, 13, VM(f"buffer_store_dwordx4 {KT[0]}, {vL16}, {srd(S_WS)}, s{sKVst} offen {SC1}", "KS"))
            put(f, 21, VM(f"buffer_store_dwordx4 {KT[1]}, {vL16}, {srd(S_WS)}, s{sKVst} offen offset:1024 {SC1}", "KS"))
    def hookS10(ph, f, BG):
        if ph == 1:
            put(f, 3, [Need(["KS", "N"]), f"v_readfirstlane_b32 s{sNonce}, v{vN}", f"s_cmp_eq_u32 s{sNonce}, 0", "s_cbranch_scc1 P1_SLOWN", "P1_NOK:",
                       "s_mov_b64 exec, 0xff", VM(f"buffer_store_dword v{vN}, v{vFA}, {srd(S_WS)}, s{sEfl} offen sc1", "EF"), "s_mov_b64 exec, -1", "s_nop 2"])
    sKVo, sM0 = sL + 3, sL + 4
    S_KVD = S_C
    vE = Reg("v", 26, 2)
    epoll = f"buffer_load_dwordx2 {vE}, v{u}, {srd(S_WS)}, s{sEfl} offen sc1"
    def kvdma0(slotoff):
        L = []
        for e in range(8):
            pre = []
            if e == 0: pre = [f"s_add_u32 m0, s{sM0}, {slotoff}"]
            if e == 4: pre = [f"s_add_u32 m0, m0, 4096", f"s_add_u32 s{sKVo}, s{sKVo}, 4096"]
            L.append((pre, VM(f"buffer_load_dwordx4 {vL16}, {srd(S_KVD)}, s{sKVo} offen offset:{(e&3)*1024} {SC1} lds", "KV")))
        return L
    def hookS14(ph, f, BG):
        if ph == 0:
            put(f, 1, dbgsrd + [VM(nload, "N")])
            put(f, 5, [f"s_bfe_u32 s{sEfl}, s2, 0x30003", f"s_mul_i32 s{sEfl}, s{sEfl}, {FL_ES}", f"s_add_u32 s{sEfl}, s{sEfl}, {FL_E}"])
            put(f, 7, f"v_lshlrev_b32 v{u}, 3, {vL}"); put(f, 9, VM(epoll, "N"))
            put(f, 11, [f"s_mov_b32 s{S_KVD}, s{P_WS}", f"s_mov_b32 s{S_KVD+1}, s{P_WS+1}", f"s_mov_b32 s{S_KVD+2}, {KV_OFF + 262144}"])
            put(f, 13, [f"s_lshl_b32 s{sM0}, s{sW}, 13", f"s_add_u32 s{sKVo}, s{sM0}, {KV_OFF}"])
    def echeck():
        return [f"v_readfirstlane_b32 s{sNonce}, v{vN}", "s_nop 1", f"v_cmp_eq_u32 vcc, s{sNonce}, {vE[0]}", f"v_cmp_eq_u32 s[{sT2}:{sT3}], s{sNonce}, {vE[1]}",
                f"s_cmp_eq_u32 s{sNonce}, 0", f"s_cselect_b64 s[{sT2}:{sT3}], 0, s[{sT2}:{sT3}]", f"s_and_b64 vcc, vcc, s[{sT2}:{sT3}]", "s_cmp_eq_u64 vcc, -1"]
    def hookS15(ph, f, BG):
        dg = [5, 11, 17, 23, 29, 35, 41, 46]
        if ph == 0: put(f, 1, [Need(["N"])] + echeck() + ["s_cbranch_scc0 P1_SLOWE", "P1_EOK:"])
        if ph in (0, 1):
            for k, (pre, d) in enumerate(kvdma0(32768*ph)):
                if pre: put(f, dg[k] - 1, pre)
                put(f, dg[k], d)
            put(f, 47, f"s_add_u32 s{sKVo}, s{sKVo}, {32768 - 4096}")
    Ls = step(0) + step(1, lim=8)
    Ls = resolve_waits(Ls)
    Lp = resolve_waits(step(lim=14))
    S8 = resolve_waits(step(hook=hookS8), Ls); S9 = resolve_waits(step(hook=hookS9), Ls + S8); S10 = resolve_waits(step(hook=hookS10), S8 + S9)
    S14 = resolve_waits(step(dma=False, hook=hookS14), Lp); S15 = resolve_waits(step(dma=False, last=True, hook=hookS15), Lp + S14)
    probs += verify_waits(pro_hist + Ls, len(pro_hist), "pro->Ls") + verify_waits(pro_hist + Lp, len(pro_hist), "pro->Lp")
    probs += verify_waits(S9 + S10 + Lp, len(S9 + S10), "S10->Lp")
    A(f"s_cmp_ge_u32 s{sJob}, 16\ns_cbranch_scc1 P1_LP")
    A(".p2align 6\nP1_LS:")
    A.ext(Ls); A("s_cbranch_scc1 P1_LS")
    A.ext(S8); A.ext(S9); A.ext(S10)
    A(".p2align 6\nP1_LP:")
    A.ext(Lp); A("s_cbranch_scc1 P1_LP")
    A.ext(S14); A.ext(S15)
    probs += check_hazards(A.lines, "p1") + check_hazards(Ls + Ls, "ls") + check_hazards(Lp + Lp, "lp")
    slow1 = Asm()
    slow1(f"""P1_SLOWN:
    s_mov_b32 s{sT2}, {SPIN_MAX}
    P1_SLOWN_L:
    {nload}
    s_waitcnt vmcnt(0)
    v_readfirstlane_b32 s{sNonce}, v{vN}
    s_cmp_lg_u32 s{sNonce}, 0
    s_cbranch_scc1 P1_NOK
    s_sleep 4
    s_sub_u32 s{sT2}, s{sT2}, 1
    s_cmp_lg_u32 s{sT2}, 0
    s_cbranch_scc1 P1_SLOWN_L
    s_endpgm
    P1_SLOWE:
    s_mov_b32 s{sT0}, {SPIN_MAX}
    P1_SLOWE_L:
    {nload}
    {epoll}
    s_waitcnt vmcnt(0)""")
    slow1.ext(echeck())
    slow1(f"""s_cbranch_scc1 P1_EOK
    s_sleep 4
    s_sub_u32 s{sT0}, s{sT0}, 1
    s_cmp_lg_u32 s{sT0}, 0
    s_cbranch_scc1 P1_SLOWE_L
    s_endpgm""")

    va = Alloc("v", 3, 256)
    vCur = va.get(1); vNxt = va.get(1); vZero = va.get(1); vNon = va.get(1); vQP = va.get(1)
    T = va.get(12, 4)
    S = [va.get(16, 4) for _ in range(2)]
    P = [va.get(8, 4) for _ in range(2)]
    O = [va.get(16, 4) for _ in range(2)]
    Lc = [va.get(4, 4) for _ in range(2)]
    SCL = va.get(8, 4)
    acc3 = [[va.get(4, 4) for j in range(8)] for i in range(4)]
    vW3o = va.get(1); vW3a = [va.get(1) for _ in range(4)]; vPF = va.get(1); vG = va.get(2, 2); vFl = va.get(2, 2)
    NEG = [Reg("v", acc3[0][0].base + 16*k, 16) for k in range(2)]
    aa = Alloc("a", 0, 180)
    RX = [[aa.get(4, 4) for j in range(8)] for s in range(4)]
    Q = [[aa.get(4, 4) for t in range(2)] for ab in range(2)]
    K = [[aa.get(4, 4) for t in range(2)] for b in range(2)]
    V = [[aa.get(4, 4) for t in range(2)] for b in range(2)]
    ONES = aa.get(4, 4)
    RW = [[Reg("a", 220 + 16*s + 4*i, 4) for i in range(4)] for s in range(2)]
    QXB = 98304
    W3B = 98304

    E = Asm()
    E.ext(ts.at("p1end"))
    sO = sL + 10
    sC = sL + 1
    sQf = sL + 9
    tA = [Reg("v", 20, 4), Reg("v", 28, 4)]
    def hmath(pairs, dst):
        L = []
        for Gx, U in pairs:
            for r in range(4): L.append(f"v_max_f32 {Gx[r]}, 0, {Gx[r]}")
        for Gx, U in pairs:
            for r in (0, 2): L.append(f"v_pk_mul_f32 {Gx.sub(r,2)}, {Gx.sub(r,2)}, {U.sub(r,2)}")
        for k, (Gx, U) in enumerate(pairs):
            L.append(f"v_cvt_pk_bf16_f32 {dst[2*k]}, {Gx[0]}, {Gx[1]}"); L.append(f"v_cvt_pk_bf16_f32 {dst[2*k+1]}, {Gx[2]}, {Gx[3]}")
        return L
    gl = Asm()
    gl(f"""s_mov_b32 s{S_A}, s{P_X}
    s_mov_b32 s{S_A+1}, s{P_X+1}
    s_mov_b32 s{S_A+2}, 0x400000
    s_mov_b32 s{S_B}, s{P_GW}
    s_mov_b32 s{S_B+1}, s{P_GW+1}
    s_mov_b32 s{S_B+2}, 2048
    s_lshl_b32 s{sT2}, s{sRB}, 4
    s_add_u32 s{sT2}, s{sT2}, s{sGJ}
    s_lshl_b32 s{sT2}, s{sT2}, 2
    s_add_u32 s{sT2}, s{sT2}, s{sW}
    s_lshl_b32 s{sT2}, s{sT2}, 13
    s_add_u32 s{sT3}, s{sT2}, 4096""")
    for h in range(2): gl(f"buffer_load_dwordx4 {GWa.sub(4*h,4)}, {vL16}, {srd(S_B)}, 0 offen offset:{h*1024}")
    for r in range(4):
        for h in range(2):
            gl(f"buffer_load_dwordx4 {GXa[r].sub(4*h,4)}, {vL16}, {srd(S_A)}, s{sT2 + (r>>1)} offen offset:{(r&1)*2048 + h*1024}")
    E(f"""s_lshr_b32 s{sT0}, s{sW}, 1
    s_and_b32 s{sT1}, s{sW}, 1
    s_lshl_b32 s{sO}, s{sRB}, 4
    s_lshl_b32 s{sT2}, s{sT0}, 3
    s_add_u32 s{sO}, s{sO}, s{sT2}
    s_lshl_b32 s{sO}, s{sO}, 10
    s_lshr_b32 s{sT2}, s{sCB}, 2
    s_mul_i32 s{sO+1}, s{sT2}, 14
    s_and_b32 s{sT3}, s{sCB}, 3
    s_lshl_b32 s{sT3}, s{sT3}, 2
    s_add_u32 s{sO+1}, s{sO+1}, s{sT3}
    s_add_u32 s{sO+1}, s{sO+1}, s{sT1}
    s_cmp_eq_u32 s{sIsB}, 1
    s_cbranch_scc1 P1_EPIB
    s_add_u32 s{sO+1}, s{sO+1}, s{sT1}
    s_mul_i32 s{sO+1}, s{sO+1}, {AFS}
    s_add_u32 s{sO}, s{sO}, s{sO+1}
    s_add_u32 s{sO+2}, s{sO}, {AFS}
    s_cmp_ge_u32 s{sGJ}, 16
    s_cbranch_scc1 P1_EPIA""")
    E.ext(gl.lines)
    E("P1_EPIA:")
    for fb in range(2):
        for j in range(8):
            U1 = acc[5+2*fb][j]
            if U1.f == "a":
                Tt = tA[j % 2]
                for r in range(4): E(f"v_accvgpr_read_b32 {Tt[r]}, {U1[r]}")
                U1 = Tt
            E.ext(hmath([(acc[2*fb][j], acc[4+2*fb][j]), (acc[2*fb+1][j], U1)], acc[4+2*fb][j]))
    E("s_waitcnt vmcnt(0)\ns_branch P1_EPID\nP1_EPIB:")
    E(f"""s_mul_i32 s{sO+1}, s{sO+1}, {AFS}
    s_add_u32 s{sO}, s{sO}, s{sO+1}
    s_mov_b32 s{sO+2}, {HUGE}
    s_lshl_b32 s{sQf}, s{sRB}, 3
    s_add_u32 s{sQf}, s{sQf}, s{sT2}
    s_lshl_b32 s{sQf}, s{sQf}, 2
    s_lshl_b32 s{sT1}, s{sT1}, 1
    s_add_u32 s{sT2}, s{sQf}, s{sT1}
    s_lshl_b32 s{sT2}, s{sT2}, 1
    s_add_u32 s{sT2}, s{sT2}, s{sT0}
    s_lshl_b32 s{sT2}, s{sT2}, 13
    s_add_u32 s{sT0}, s{sT2}, {QF4_OFF}
    s_add_u32 s{sT1}, s{sT0}, 4096
    s_add_u32 s{sT2}, s{sT0}, 16384
    s_add_u32 s{sT3}, s{sT0}, {16384 + 4096}
    s_add_u32 s{sQf}, s{sQf}, s{sW}
    s_lshl_b32 s{sQf}, s{sQf}, 7
    s_add_u32 s{sQf}, s{sQf}, {FL_Q}
    s_mov_b32 s{sC}, {f2u(QSCALE):#x}
    s_mov_b32 s{sC+1}, {f2u(QSCALE):#x}""")
    for hh in range(2):
        for j in range(8):
            F0, F1 = acc[4 + 2*hh][j], acc[5 + 2*hh][j]
            if F1.f == "a":
                Tt = tA[j % 2]
                for r in range(4): E(f"v_accvgpr_read_b32 {Tt[r]}, {F1[r]}")
                F1 = Tt
            for F in (F0, F1):
                for r in (0, 2): E(f"v_pk_mul_f32 {F.sub(r,2)}, {F.sub(r,2)}, s[{sC}:{sC+1}]")
            E(f"v_cvt_pk_bf16_f32 {F0[0]}, {F0[0]}, {F0[1]}\nv_cvt_pk_bf16_f32 {F0[1]}, {F0[2]}, {F0[3]}")
            E(f"v_cvt_pk_bf16_f32 {F0[2]}, {F1[0]}, {F1[1]}\nv_cvt_pk_bf16_f32 {F0[3]}, {F1[2]}, {F1[3]}")
            E(f"buffer_store_dwordx4 {F0}, {vL16}, {srd(S_WS)}, s{sT0 + 2*hh + (j>>2)} offen offset:{(j&3)*1024} {SC1}")
    E.ext(gl.lines)
    for j in range(8):
        E.ext(hmath([(acc[0][j], acc[2][j]), (acc[1][j], acc[3][j])], acc[4][j]))
    E(f"""s_waitcnt vmcnt(10)
    s_mov_b64 exec, 1
    buffer_store_dword v{vN}, v{vZ}, {srd(S_WS)}, s{sQf} offen sc1
    s_mov_b64 exec, -1
    P1_EPID:
    s_add_u32 s{sO+1}, s{sO}, 4096
    s_add_u32 s{sO+3}, s{sO+2}, 4096""")
    E.ext(ts.at("kvdone"))
    hst0 = [VM(f"buffer_store_dwordx4 {acc[4][j]}, {vL16}, {srd(S_WS)}, s{sO + (j>>2)} offen offset:{(j&3)*1024} {SC1}", "H") for j in range(8)]
    hst1a = [VM(f"buffer_store_dwordx4 {acc[6][j]}, {vL16}, {srd(S_WS)}, s{sO + 2 + (j>>2)} offen offset:{(j&3)*1024} {SC1}", "H") for j in range(8)]
    probs += check_hazards(S15[-20:] + E.lines, "p1epi")
    A.ext(E.lines)

    B = Asm()
    sCur, sNext, sFree, sFl = sL, sL + 1, sL + 2, sL + 5
    B(f"""v_mov_b32 {vNon}, s{sNonce}
    v_mov_b32 {vZero}, 0
    v_bfe_u32 {T[0]}, {vL}, 4, 1
    v_and_b32 {T[1]}, 15, {vL}
    v_lshrrev_b32 {T[2]}, 5, {vL}
    v_lshl_add_u32 {T[1]}, {T[2]}, 4, {T[1]}
    v_lshlrev_b32 {T[1]}, 4, {T[1]}
    v_lshl_add_u32 {vQP}, {T[0]}, 10, {T[1]}""")
    S_PF, sPF = S_E, 8
    pfop = [VM(f"buffer_load_dword a252, {vPF}, {srd(S_PF)}, s{sPF} offen", "PF"), f"s_add_u32 s{sPF}, s{sPF}, 0x100000"] if PF else []
    B(f"s_cmp_ge_u32 s{sGJ}, 16\ns_cbranch_scc1 P2_NOG\ns_waitcnt vmcnt(1)")
    W32 = NEG[0]; X32 = NEG[1]; GX = S[0].sub(0, 8); GW = S[0].sub(8, 8)
    for k in range(8): B(f"v_accvgpr_read_b32 {GW[k]}, {GWa[k]}")
    for k in range(8): B(f"v_lshlrev_b32 {W32[2*k]}, 16, {GW[k]}\nv_and_b32 {W32[2*k+1]}, 0xffff0000, {GW[k]}")
    B(f"v_mov_b32 {T[8]}, 0x3f803f80")
    for r in range(4):
        for k in range(8): B(f"v_accvgpr_read_b32 {GX[k]}, {GXa[r][k]}")
        for k in range(8): B(f"v_lshlrev_b32 {X32[2*k]}, 16, {GX[k]}\nv_and_b32 {X32[2*k+1]}, 0xffff0000, {GX[k]}")
        for k in range(8): B(f"v_pk_mul_f32 {X32.sub(2*k,2)}, {X32.sub(2*k,2)}, {W32.sub(2*k,2)}")
        for k in range(8): B(f"v_cvt_pk_bf16_f32 {X32[k]}, {X32[2*k]}, {X32[2*k+1]}")
        B(f"v_mov_b32 {T[4+r]}, 0")
        for k in range(8): B(f"v_dot2_f32_bf16 {T[4+r]}, {X32[k]}, {T[8]}, {T[4+r]}")
    B("s_nop 2")
    for sh in (8, 4, 2, 1):
        for r in range(4): B(f"v_add_f32_dpp {T[4+r]}, {T[4+r]}, {T[4+r]} row_ror:{sh} row_mask:0xf bank_mask:0xf")
    for sw in ("16", "32"):
        for r in range(4): B(f"v_mov_b32 {T[8+r]}, {T[4+r]}")
        for r in range(4): B(f"v_permlane{sw}_swap_b32 {T[4+r]}, {T[8+r]}")
        for r in range(4): B(f"v_add_f32 {T[4+r]}, {T[4+r]}, {T[8+r]}")
    for r in range(4): B(f"v_cvt_pk_bf16_f32 {T[4+r]}, {T[4+r]}, {T[4+r]}")
    for r in range(4): B(f"v_and_b32 {T[4+r]}, 0xffff0000, {T[4+r]}")
    for r in range(4): B(f"v_mul_f32 {T[4+r]}, {f2u(-LOG2E):#x}, {T[4+r]}")
    for r in range(4): B(f"v_exp_f32 {T[4+r]}, {T[4+r]}")
    for r in range(4): B(f"v_add_f32 {T[4+r]}, 1.0, {T[4+r]}")
    for r in range(4): B(f"v_rcp_f32 {T[4+r]}, {T[4+r]}")
    for r in range(4): B(f"v_cvt_pk_bf16_f32 {T[4+r]}, {T[4+r]}, {T[4+r]}")
    for r in range(4): B(f"v_and_b32 {T[4+r]}, 0xffff0000, {T[4+r]}")
    B(f"""s_lshl_b32 s{sT2}, s{sRB}, 4
    s_add_u32 s{sT2}, s{sT2}, s{sGJ}
    s_lshl_b32 s{sT2}, s{sT2}, 2
    s_add_u32 s{sT2}, s{sT2}, s{sW}
    s_lshl_b32 s{sT2}, s{sT2}, 4
    s_add_u32 s{sT2}, s{sT2}, {G_OFF}
    s_mov_b64 exec, 1
    buffer_store_dwordx4 {T.sub(4,4)}, {vZero}, {srd(S_WS)}, s{sT2} offen sc1
    s_mov_b64 exec, -1
    s_nop 0
    P2_NOG:""")
    for ab in range(2):
        for r in range(16): B(f"v_mov_b32 {O[ab][r]}, 0")
        for r in range(4): B(f"v_mov_b32 {Lc[ab][r]}, 0")
    for r in range(8): B(f"v_mov_b32 {P[1][r]}, 0")
    for t in range(2):
        for r in range(4): B(f"v_accvgpr_write_b32 {V[1][t][r]}, 0")
    B(f"""v_lshrrev_b32 {T[4]}, 2, {vL}
    v_lshrrev_b32 {T[5]}, 4, {vL}
    v_xor_b32 {T[4]}, {T[4]}, {T[5]}
    v_and_b32 {T[4]}, 1, {T[4]}
    v_cmp_eq_u32 vcc, 0, {T[4]}
    v_mov_b32 {T[5]}, 0x3f803f80
    v_mov_b32 {vCur}, {vL16}
    v_cndmask_b32 {T[5]}, 0, {T[5]}, vcc
    v_add_u32 {vNxt}, 32768, {vL16}""")
    for r in range(4): B(f"v_accvgpr_write_b32 {ONES[r]}, {T[5]}")
    B(f"""s_mov_b32 s{sCur}, 0
    s_mov_b32 s{sNext}, 32768
    s_mov_b32 s{sFree}, 65536
    s_lshl_b32 s{sFl}, s{sRB}, 2
    s_add_u32 s{sFl}, s{sFl}, s{sW}
    s_lshl_b32 s{sFl}, s{sFl}, 5
    s_add_u32 s{sFl}, s{sFl}, s{sCB}
    s_lshl_b32 s{sFl}, s{sFl}, 2
    s_add_u32 s{sFl}, s{sFl}, {FL_H}
    s_lshl_b32 s{sT1}, s{sRB}, 3
    s_lshr_b32 s{sT2}, s{sCB}, 2
    s_add_u32 s{sT1}, s{sT1}, s{sT2}
    s_lshl_b32 s{sT1}, s{sT1}, 2
    s_and_b32 s{sT2}, s{sW}, 2
    s_add_u32 s{sT1}, s{sT1}, s{sT2}
    s_bfe_u32 s{sT2}, s{sCB}, 0x10001
    s_add_u32 s{sT1}, s{sT1}, s{sT2}
    s_lshl_b32 s{sT1}, s{sT1}, 7
    s_add_u32 s{sT1}, s{sT1}, {FL_Q}
    s_lshl_b32 s{sQf}, s{sRB}, 5
    s_add_u32 s{sQf}, s{sQf}, s{sCB}
    s_lshl_b32 s{sQf}, s{sQf}, 2
    s_add_u32 s{sQf}, s{sQf}, s{sW}
    s_lshl_b32 s{sQf}, s{sQf}, 12
    s_add_u32 s{sQf}, s{sQf}, {QF4_OFF}""")
    def check(regs):
        L = [f"v_cmp_eq_u32 vcc, s{sNonce}, {regs[0]}"]
        if len(regs) > 1: L += [f"v_cmp_eq_u32 s[{sT2}:{sT3}], s{sNonce}, {regs[1]}", "s_nop 0", f"s_and_b64 vcc, vcc, s[{sT2}:{sT3}]"]
        else: L += ["s_nop 0"]
        return L + ["s_cmp_eq_u64 vcc, -1"]
    def spin(label, load, regs, back=None):
        L = [f"s_mov_b32 s{sT0}, {SPIN_MAX}", f"{label}_L:", load, "s_waitcnt vmcnt(0)"] + check(regs)
        L += [f"s_cbranch_scc1 {back or label + '_OK'}", f"s_sleep {4 if back else 1}", f"s_sub_u32 s{sT0}, s{sT0}, 1",
              f"s_cmp_lg_u32 s{sT0}, 0", f"s_cbranch_scc1 {label}_L", "s_endpgm"]
        if not back: L.append(f"{label}_OK:")
        return L
    B.ext(ts.at("poll0"))
    B.ext(spin("P2_POLL", f"buffer_load_dword {T[8]}, {vZero}, {srd(S_WS)}, s{sT1} offen sc1", [T[8]]))
    B.ext(ts.at("poll1"))
    for ab in range(2):
        for t in range(2): B(f"buffer_load_dwordx4 {Q[ab][t]}, {vQP}, {srd(S_WS)}, s{sQf} offen offset:{ab*2048 + t*512} {SC1}")
    B("s_barrier")
    def kvdma(slot, tag):
        L = []
        for e in range(8):
            pre = []
            if e == 0: pre = [f"s_add_u32 m0, s{slot}, s{sM0}"]
            if e == 4: pre = [f"s_add_u32 s{sT0}, s{slot}, s{sM0}", f"s_add_u32 m0, s{sT0}, 4096", f"s_add_u32 s{sKVo}, s{sKVo}, 4096"]
            L.append((pre, VM(f"buffer_load_dwordx4 {vL16}, {srd(S_KVD)}, s{sKVo} offen offset:{(e&3)*1024} {SC1} lds", tag)))
        return L
    post_dma = f"s_add_u32 s{sKVo}, s{sKVo}, {32768 - 4096}"
    B(f"""ds_read_b128 {K[0][0]}, {vCur}
    ds_read_b128 {K[0][1]}, {vCur} offset:1024
    ds_read_b128 {V[0][0]}, {vCur} offset:2048
    ds_read_b128 {V[0][1]}, {vCur} offset:3072""")
    hist = list(S15) + list(B.lines)
    B(f"""s_waitcnt vmcnt(0) lgkmcnt(0)
    v_mfma_f32_32x32x16_bf16 {S[0]}, {K[0][0]}, {Q[0][0]}, 0
    v_mfma_f32_32x32x16_bf16 {S[0]}, {K[0][1]}, {Q[0][1]}, {S[0]}""")
    B.ext(ts.at("att"))
    B("s_nop 7\ns_nop 3")
    probs += check_hazards(B.lines, "p2pro")
    A.ext(B.lines)

    NS = 4
    S_AF, S_W3, S_OUT = S_A, S_B, S_D
    sMT, sNT = sL + 6, sL + 7
    sAo = sL + 8
    sSo3 = sL + 9
    sM3 = sL + 13
    sWo, sWoN = 30, 15
    setup3 = Asm()
    setup3(f"""s_and_b32 s{sT0}, s{sCB}, 1
    s_lshl_b32 s{sMT}, s{sRB}, 1
    s_add_u32 s{sMT}, s{sMT}, s{sT0}
    s_lshr_b32 s{sT0}, s{sCB}, 3
    s_lshl_b32 s{sT0}, s{sT0}, 2
    s_bfe_u32 s{sT1}, s{sCB}, 0x20001
    s_add_u32 s{sNT}, s{sT0}, s{sT1}
    s_lshl_b32 s{sT0}, s{sNT}, 7
    s_add_u32 s{S_W3}, s{P_WD}, s{sT0}
    s_addc_u32 s{S_W3+1}, s{P_WD+1}, 0
    s_sub_u32 s{S_W3+2}, {3584*2048}, s{sT0}
    s_add_u32 s{sWo}, s{P_WO}, s{sT0}
    s_addc_u32 s{sWo+1}, s{P_WO+1}, 0
    s_sub_u32 s{sWoN}, {1024*2048}, s{sT0}
    s_mov_b32 s{S_AF}, s{P_WS}
    s_mov_b32 s{S_AF+1}, s{P_WS+1}
    s_mov_b32 s{S_AF+2}, {AF_SIZE3}
    s_mov_b32 s{S_OUT}, s{P_OUT}
    s_mov_b32 s{S_OUT+1}, s{P_OUT+1}
    s_mov_b32 s{S_OUT+2}, 0x400000
    s_mul_i32 s{sAo}, s{sW}, {AFS}
    s_lshl_b32 s{sT0}, s{sMT}, 13
    s_add_u32 s{sAo}, s{sAo}, s{sT0}
    s_add_u32 s{sAo+1}, s{sAo}, 4096
    s_lshl_b32 s{sM3}, s{sW}, 14
    s_add_u32 s{sM3}, s{sM3}, {W3B}""")
    for e in range(1, 4): setup3(f"s_mov_b32 s{sSo3+e}, {e*16384 - e*1024}")
    setup3v = Asm()
    setup3v(f"""v_lshrrev_b32 {T[0]}, 3, {vL}
    v_lshrrev_b32 {T[1]}, 4, {vL}
    v_lshlrev_b32 {T[2]}, 1, {T[1]}
    v_and_b32 {T[3]}, 7, {vL}
    v_xor_b32 {T[2]}, {T[2]}, {T[3]}
    v_lshlrev_b32 {T[2]}, 4, {T[2]}
    v_lshl_add_u32 {vW3o}, {T[0]}, 11, {T[2]}
    s_lshl_b32 s{sT0}, s{sW}, 16
    v_add_u32 {vW3o}, s{sT0}, {vW3o}
    v_lshrrev_b32 {T[0]}, 2, {vL}
    v_bfe_u32 {T[1]}, {vL}, 3, 2
    v_and_b32 {T[2]}, 3, {vL}
    v_lshlrev_b32 {T[2]}, 3, {T[2]}
    v_lshl_add_u32 {T[2]}, {T[0]}, 7, {T[2]}
    v_add_u32 {T[2]}, s{sM3}, {T[2]}""")
    for i in range(4): setup3v(f"v_xor_b32 {T[3]}, {i}, {T[1]}\nv_lshl_add_u32 {vW3a[i]}, {T[3]}, 5, {T[2]}")
    setup3v(f"""v_lshlrev_b32 {T[4]}, 3, {vL}
    v_lshlrev_b32 {T[5]}, 2, {vL}
    v_and_b32 {T[6]}, 31, {vL}
    v_lshlrev_b32 {T[6]}, 2, {T[6]}
    v_and_b32 {T[7]}, 15, {vL}
    v_lshlrev_b32 {T[7]}, 2, {T[7]}""")
    zero3 = [f"v_mov_b32 {acc3[i][j][r]}, 0" for i in range(4) for j in range(8) for r in range(4)]
    def w3dma(slot, e):
        m0 = f"s_add_u32 m0, s{sM3}, {slot*4096}"
        return m0, VM(f"buffer_load_dwordx4 {vW3o}, {srd(S_W3)}, {'0' if e == 0 else 's%d' % (sSo3+e)} offen offset:{e*1024} {opt.get('w3nt', '')} lds", ("W", slot))
    def xload(slot, j):
        return VM(f"buffer_load_dwordx4 {RX[slot][j]}, {vL16}, {srd(S_AF)}, s{sAo + (j>>2)} offen offset:{(j&3)*1024} {SC1}", ("X", slot))
    adv3 = [f"v_add_u32 {vW3o}, {4*65536}, {vW3o}", f"s_add_u32 s{sAo}, s{sAo}, {4*AFS}", f"s_add_u32 s{sAo+1}, s{sAo+1}, {4*AFS}"]
    def wread(slot, s):
        return [f"ds_read_b64_tr_b16 {RW[s][i].sub(2*hf,2)}, {vW3a[i]} offset:{slot*4096 + hf*2048}" for i in range(4) for hf in range(2)]
    def gm(s, j, i, first=False): return f"v_mfma_f32_16x16x32_bf16 {acc3[i][j]}, {RW[s&1][i]}, {RX[s][j]}, {0 if first else acc3[i][j]}"

    def att_parts(ab, kq, vp):
        o = ab ^ 1
        M = [f"v_mfma_f32_32x32x16_bf16 {S[o]}, {K[kq][0]}, {Q[o][0]}, 0",
             f"v_mfma_f32_32x32x16_bf16 {S[o]}, {K[kq][1]}, {Q[o][1]}, {S[o]}",
             f"v_mfma_f32_32x32x16_bf16 {O[o]}, {V[vp][0]}, {P[o].sub(0,4)}, {O[o]}",
             f"v_mfma_f32_16x16x32_bf16 {Lc[o]}, {ONES}, {P[o].sub(0,4)}, {Lc[o]}",
             f"v_mfma_f32_32x32x16_bf16 {O[o]}, {V[vp][1]}, {P[o].sub(4,4)}, {O[o]}",
             f"v_mfma_f32_16x16x32_bf16 {Lc[o]}, {ONES}, {P[o].sub(4,4)}, {Lc[o]}"]
        ex = [f"v_exp_f32 {S[ab][r]}, {S[ab][r]}" for r in range(16)]
        cv = [f"v_cvt_pk_bf16_f32 {P[ab][r]}, {S[ab][2*r]}, {S[ab][2*r+1]}" for r in range(8)]
        return M, ex, cv
    def phase_plain(ab, kq, vp, extra):
        M, ex, cv = att_parts(ab, kq, vp)
        vl = []
        for r in range(16):
            vl.append(ex[r])
            if r >= 3 and r % 2 == 1: vl.append(cv[(r - 3)//2])
        vl.append(cv[7])
        mpos = [0, 4, 8, 12, 15, 19]
        out = []; mi = 0
        for i, v in enumerate(vl):
            while mi < 6 and mpos[mi] == i:
                out.append(M[mi]); out.extend(extra.get(mi, [])); mi += 1
            out.append(v)
        return out
    def phase_merged(ab, kq, vp, G8, extra):
        M, ex, cv = att_parts(ab, kq, vp)
        order = [M[0], G8[0], M[1], G8[1], G8[2], M[2], G8[3], M[3], G8[4], M[4], G8[5], M[5], G8[6], G8[7]]
        e, c = ex, cv
        fill = [[e[0], e[1], e[2]], [e[3]], [e[4], e[5], e[6]], [c[0], c[1]], [e[7]], [e[8], e[9], e[10]], [c[2], c[3]], [e[11]],
                [c[4]], [e[12], e[13], e[14]], [e[15]], [c[5], c[6]], [c[7]], []]
        out = []
        for k in range(14):
            out.append(order[k]); out.extend(extra.get(k, [])); out.extend(fill[k])
        return out
    def chunk(kind, hook=None, first=False, pfok=True):
        out = []
        dl = kvdma(sFree, "KV")
        mer = kind == "merged"
        sl = dict(k0=1, k1=2, kv=5, kvpre=4) if not mer else dict(k0=2, k1=5, kv=9, kvpre=7)
        for pi in range(16):
            tau, ab = pi >> 1, pi & 1
            kp = tau & 1
            ex = {}; pre = []
            if ab == 0:
                src = (vCur, (tau+1)*4096) if tau < 7 else (vNxt, 0)
                ld = [f"ds_read_b128 {K[kp^1][t]}, {src[0]} offset:{src[1] + t*1024}" for t in range(2)]
                if tau == 7: put(ex, 0, [Need(["KV"], "lgkmcnt(0)"), "s_barrier"])
            else:
                src = (vCur, (tau+1)*4096 + 2048) if tau < 7 else (vNxt, 2048)
                ld = [f"ds_read_b128 {V[kp^1][t]}, {src[0]} offset:{src[1] + t*1024}" for t in range(2)]
                pre = ["s_waitcnt lgkmcnt(0)"]
            put(ex, sl["k0"], ld[0]); put(ex, sl["k1"], ld[1])
            if pi < 8:
                pp, d = dl[pi]
                if mer and not pp: pp = [f"s_add_u32 s{sT0}, s{sFree}, s{sM0}", f"s_add_u32 m0, s{sT0}, {(pi>>2)*4096}"]
                if pp: put(ex, sl["kvpre"], pp)
                put(ex, sl["kv"], d)
                if pi == 7: put(ex, sl["kv"], post_dma)
            if pi == 15:
                put(ex, sl["kv"], [f"s_mov_b32 s{sT0}, s{sCur}", f"s_mov_b32 s{sCur}, s{sNext}", f"s_mov_b32 s{sNext}, s{sFree}", f"s_mov_b32 s{sFree}, s{sT0}",
                                   f"s_add_u32 s{sIt}, s{sIt}, 1"])
            if mer:
                s, q = pi >> 2, pi & 3
                G8 = [gm(s, 2*q + jj, i, first and s == 0) for jj in range(2) for i in range(4)]
                if q == 0: pre = [Need([("W", (s+1) % NS), ("X", s)], "lgkmcnt(0)")]
                m0, d = w3dma(s, q)
                put(ex, 0, m0); put(ex, 1, d)
                rd = wread((s+1) % NS, (s+1) & 1)
                put(ex, 3, rd[2*q]); put(ex, 10, rd[2*q+1])
                put(ex, 8, xload(s, 2*q)); put(ex, 13, xload(s, 2*q+1))
                if q == 3: put(ex, 13, adv3)
            if pi == 9 and PF and pfok:
                put(ex, 4, pfop)
                if mer: put(ex, 6, [f"s_cmp_eq_u32 s{sIt}, 5", f"s_cselect_b32 s{sPF}, 0, s{sPF}", f"s_cselect_b32 s{S_PF}, s{P_WO}, s{S_PF}",
                                    f"s_cselect_b32 s{S_PF+1}, s{P_WO+1}, s{S_PF+1}", f"s_cselect_b32 s{S_PF+2}, 0x200000, s{S_PF+2}"])
            if pi % 8 == 6: put(ex, 5, tr_issue())
            if pi % 8 == 7: pre = pre + tr_commit()
            if hook: hook(pi, ex, pre)
            if mer: out += pre + phase_merged(ab, kp ^ ab, kp ^ 1 ^ ab, G8, ex)
            else: out += pre + phase_plain(ab, kp ^ ab, kp ^ 1 ^ ab, ex)
        out += [f"v_add_u32 {vCur}, s{sCur}, {vL16}", f"v_add_u32 {vNxt}, s{sNext}, {vL16}"]
        return out

    def hook0(pi, ex, pre):
        HS = opt.get("hs_rate", 2)
        for k in range(HS):
            n = pi*HS + k
            if n < 8: put(ex, [3, 0][k], hst0[n])
            elif n < 16:
                j = n - 8
                put(ex, [3, 0][k], hst1a[j])
    c0 = chunk("plain", hook0, pfok=False)
    HFP = opt.get("hflag_phase", 10)
    def hook1(pi, ex, pre):
        if pi == 0 and PF:
            put(ex, 0, [f"s_lshl_b32 s{sT1}, s2, 2", f"s_add_u32 s{sT1}, s{sT1}, s{sW}", f"s_lshl_b32 s{sT1}, s{sT1}, 10",
                        f"v_lshrrev_b32 {vPF}, 3, {vL}", f"v_lshlrev_b32 {vPF}, 7, {vPF}", f"v_add_u32 {vPF}, s{sT1}, {vPF}",
                        f"s_mov_b32 s{S_PF}, s{P_WD}", f"s_mov_b32 s{S_PF+1}, s{P_WD+1}", f"s_mov_b32 s{S_PF+2}, {3584*2048}", f"s_mov_b32 s{sPF}, 0"] + pfop)
        if pi == 4: put(ex, 2, pfop)
        if pi == 0: put(ex, 3, setup3.lines[:14])
        if pi == 1: put(ex, 3, setup3.lines[14:])
        if pi == 2: put(ex, 3, setup3v.lines)
        if pi >= 8:
            for k in range(2):
                s_, e_ = divmod((pi - 8)*2 + k, 4)
                m0, d = w3dma(s_, e_)
                put(ex, 2*k + 1, ([m0, "s_nop 0"] if e_ == 0 else []) + [d] + ([adv3[0]] if e_ == 3 else []))
        if pi == HFP:
            put(ex, 4, [Need(["H"]), "s_mov_b64 exec, 1", VM(f"buffer_store_dword {vNon}, {vZero}, {srd(S_WS)}, s{sFl} offen sc1", "HF"), "s_mov_b64 exec, -1", "s_nop 2"])
    c1 = chunk("plain", hook1)
    def retag(ch, cur, need):
        out = []
        for l in ch:
            if isinstance(l, VM) and l.tag == "KV": out.append(VM(l, cur))
            elif isinstance(l, Need) and "KV" in l.tags: out.append(Need([need], l.extra))
            else: out.append(l)
        return out
    hpoll = f"buffer_load_dwordx2 {vFl}, {T[4]}, {srd(S_WS)}, s{sT1} offen sc1"
    HP = opt.get("hpoll_phase", 4)
    def hook2(pi, ex, pre):
        if pi == HP: put(ex, 3, [f"s_lshl_b32 s{sT1}, s{sRB}, 9", f"s_add_u32 s{sT1}, s{sT1}, {FL_H}", VM(hpoll, "HP")])
        if pi == 7:
            put(ex, 3, [Need(["HP"])] + check([vFl[0], vFl[1]]) + ["s_cbranch_scc0 P3_SLOWH", "P3_HOK:"])
            put(ex, 4, [f"s_lshl_b32 s{sT2}, s{sRB}, 10", f"s_lshl_b32 s{sT3}, s{sW}, 8", f"s_add_u32 s{sT2}, s{sT2}, s{sT3}", f"s_add_u32 s{sT2}, s{sT2}, {G_OFF}",
                        f"s_lshl_b32 s{sT3}, s{sMT}, 9", f"s_add_u32 s{sT3}, s{sT3}, {G_OFF}"])
        if pi == 8:
            put(ex, 0, [VM(f"buffer_load_dword {vG[ab]}, {T[6]}, {srd(S_WS)}, s{sT2} offen offset:{ab*128} sc1", "G") for ab in range(2)])
            put(ex, 1, [VM(f"buffer_load_dword {SCL[j]}, {T[7]}, {srd(S_WS)}, s{sT3} offen offset:{j*64} sc1", "G") for j in range(8)])
        if pi >= 8:
            for k in range(4):
                s_, j_ = divmod((pi - 8)*4 + k, 8)
                put(ex, [2, 3, 4, 5][k], [xload(s_, j_)] + (adv3[1:] if j_ == 7 else []))
        if pi == 15:
            put(ex, 5, [Need([("W", 0)])] + wread(0, 0))
    c2 = chunk("plain", hook2)
    c0 = retag(c0, "KV0", "KVP"); c1 = retag(c1, "KV1", "KV0"); c2 = retag(c2, "KV2", "KV1")
    hist = [VM(l, "KVP") if isinstance(l, VM) and l.tag == "KV" else l for l in hist]
    c0 = resolve_waits(c0, hist); c1 = resolve_waits(c1, hist + c0); c2 = resolve_waits(c2, hist + c0 + c1)
    mA = retag(chunk("merged"), "KVa", "KVb"); mB = retag(chunk("merged"), "KVb", "KVa")
    mres = resolve_waits(mA, mB)
    M = mres
    M0 = resolve_waits(retag(chunk("merged", first=True), "KVb", "KV2"), hist + c0 + c1 + c2)
    probs += verify_waits(hist + c0 + c1 + c2 + M0 + M, len(hist + c0 + c1 + c2 + M0), "M0->M")
    D = Asm()
    D(f"s_mov_b32 s{sIt}, 0")
    D.ext(c0); D.ext(ts.at("c1")); D.ext(c1); D.ext(ts.at("c2")); D.ext(c2); D.ext(ts.at("m")); D.ext(M0)
    D(".p2align 6\nP2_MLOOP:")
    D.ext(M)
    D(f"s_cmp_lt_u32 s{sIt}, 8\ns_cbranch_scc1 P2_MLOOP")
    probs += check_hazards(B.lines[-8:] + c0 + c1 + c2 + M0 + M + M, "att")
    A.ext(D.lines)

    C = Asm()
    C.ext(ts.at("attend"))
    C(f"""v_mfma_f32_32x32x16_bf16 {O[1]}, {V[1][0]}, {P[1].sub(0,4)}, {O[1]}
    v_mfma_f32_16x16x32_bf16 {Lc[1]}, {ONES}, {P[1].sub(0,4)}, {Lc[1]}
    v_mfma_f32_32x32x16_bf16 {O[1]}, {V[1][1]}, {P[1].sub(4,4)}, {O[1]}
    v_mfma_f32_16x16x32_bf16 {Lc[1]}, {ONES}, {P[1].sub(4,4)}, {Lc[1]}""")
    C(f"v_mov_b32 {T[1]}, 0")
    for r in range(16): C(f"v_fmac_f32 {T[1]}, 0, {O[0][r]}")
    for r in range(16): C(f"v_fmac_f32 {T[1]}, 0, {O[1][r]}")
    C(f"""s_mov_b32 s{sT0}, {f2u(2.0**-60):#x}
    s_mov_b32 s{sT1}, {f2u(2.0**100):#x}
    v_cmp_le_f32 vcc, s{sT0}, {Lc[0][0]}
    v_cmp_le_f32 s[{S_C}:{S_C+1}], s{sT0}, {Lc[1][0]}
    s_nop 1
    s_and_b64 vcc, vcc, s[{S_C}:{S_C+1}]
    v_cmp_ge_f32 s[{S_C}:{S_C+1}], s{sT1}, {Lc[0][0]}
    v_cmp_ge_f32 s[{sT2}:{sT3}], s{sT1}, {Lc[1][0]}
    s_nop 1
    s_and_b64 vcc, vcc, s[{S_C}:{S_C+1}]
    s_and_b64 vcc, vcc, s[{sT2}:{sT3}]
    v_cmp_eq_f32 s[{S_C}:{S_C+1}], 0, {T[1]}
    s_nop 1
    s_and_b64 vcc, vcc, s[{S_C}:{S_C+1}]
    s_cmp_eq_u64 vcc, -1""")
    if opt.get("force_fallback"): C("s_branch P2_FALLBACK")
    C("s_cbranch_scc0 P2_FALLBACK")
    C("P2_FINISH:")
    for ab in range(2): C(f"v_rcp_f32 {T[2*ab]}, {Lc[ab][0]}")
    C(f"""s_add_u32 s{sT0}, s{sCB}, 112
    s_mul_i32 s{sT0}, s{sT0}, {AFS}
    s_lshl_b32 s{sT1}, s{sRB}, 14
    s_add_u32 s{sT0}, s{sT0}, s{sT1}
    s_lshl_b32 s{sT1}, s{sW}, 12
    s_add_u32 s{sT0}, s{sT0}, s{sT1}""")
    for ab in range(2): C(f"v_mul_f32 {T[2*ab]}, {T[2*ab]}, {vG[ab]}")
    for ab in range(2):
        for r in range(0, 16, 2):
            C(f"v_pk_mul_f32 {O[ab].sub(r,2)}, {O[ab].sub(r,2)}, {T.sub(2*ab,2)} op_sel_hi:[1,0]")
        for r in range(8): C(f"v_cvt_pk_bf16_f32 {S[ab][r]}, {O[ab][2*r]}, {O[ab][2*r+1]}")
        for c in range(2):
            C(VM(f"buffer_store_dwordx4 {S[ab].sub(4*c,4)}, {vQP}, {srd(S_WS)}, s{sT0} offen offset:{ab*2048 + c*512} {SC1}", "O"))
    for j in range(8): C(f"v_sub_f32 {SCL[j]}, 1.0, {SCL[j]}")
    for j in range(8): C(f"v_cvt_pk_bf16_f32 {SCL[j]}, {SCL[j]}, {SCL[j]}")
    for j in range(8): C(f"v_and_b32 {SCL[j]}, 0xffff0000, {SCL[j]}")
    sFC = sL
    C(f"""s_lshl_b32 s{sFC}, s{sMT}, 8
    s_add_u32 s{sFC}, s{sFC}, {FL_O}
    s_add_u32 s{sFl}, s{sFl}, {FL_O - FL_H}""")
    C.ext(ts.at("tail"))
    def p3iter(hook=None):
        out = []
        for s in range(NS):
            m = [gm(s, j, i) for j in range(8) for i in range(4)]
            f = {}
            f[-1] = [Need([("W", (s+1) % NS), ("X", s)], "lgkmcnt(0)"), w3dma(s, 0)[0]]
            dgap = [0, 6, 14, 22]
            for e in range(4): put(f, dgap[e], w3dma(s, e)[1])
            for k, r in enumerate(wread((s + 1) % NS, (s+1) & 1)): put(f, 1 + 3*k, r)
            for j in range(8): put(f, 4*j + 3 + (1 if j < 7 else 0), xload(s, j))
            put(f, 31, adv3)
            put(f, 28, tr_issue())
            if trace: f[-1] = f[-1][:1] + tr_commit() + f[-1][1:]
            if hook: hook(s, f)
            out += interleave(m, f)
        return out
    opoll = f"buffer_load_dword {vFl[0]}, {T[5]}, {srd(S_WS)}, s{sFC} offen sc1"
    OFS, OPS = opt.get("oflag_step", 2), opt.get("opoll_step", 3)
    def hookT(s, f):
        if s == OFS: put(f, 10, [Need(["O"]), "s_mov_b64 exec, 1", VM(f"buffer_store_dword {vNon}, {vZero}, {srd(S_WS)}, s{sFl} offen sc1", "OF"), "s_mov_b64 exec, -1", "s_nop 2"])
        if s == OPS: put(f, 26, VM(opoll, "OP"))
    T5 = resolve_waits(p3iter(hookT), M + M + C.lines)
    L3 = resolve_waits(p3iter())
    mid = [Need(["OP"])] + check([vFl[0]]) + ["s_cbranch_scc0 P3_SLOWO", "P3_OOK:",
           f"s_mov_b32 s{S_W3}, s{sWo}", f"s_mov_b32 s{S_W3+1}, s{sWo+1}", f"s_mov_b32 s{S_W3+2}, s{sWoN}",
           f"v_subrev_u32 {vW3o}, {28*4*65536}, {vW3o}", f"s_mov_b32 s{sIt}, 6"]
    mid = resolve_waits(mid, T5)
    probs += verify_waits(M + C.lines + T5 + mid + L3, len(M + C.lines + T5 + mid), "T5->L3")
    tail = [f"s_add_u32 s{sIt}, s{sIt}, 1", f"s_cmp_eq_u32 s{sIt}, 8", "s_cbranch_scc1 P3_LOOP",
            f"s_cmp_eq_u32 s{sIt}, 9", "s_cbranch_scc1 P3_DONE", "s_nop 7"]
    for i in range(4):
        for j in range(8):
            for r in (0, 2):
                tail.append(f"v_pk_mul_f32 {acc3[i][j].sub(r,2)}, {acc3[i][j].sub(r,2)}, {SCL.sub(j & ~1, 2)} op_sel:[0,{j&1}] op_sel_hi:[1,{j&1}]")
    tail += ["s_nop 0", "s_branch P3_LOOP", "P3_DONE:"]
    probs += check_hazards(M[-30:] + C.lines + T5 + mid + L3 + tail + L3, "tail") + check_hazards(L3 + L3, "l3")
    C.ext(T5); C.ext(ts.at("t5end")); C.ext(mid); C.ext(ts.at("l3"))
    C(".p2align 6\nP3_LOOP:")
    C.ext(L3); C.ext(tail); C.ext(ts.at("l3end"))
    C(f"""v_add_u32 {T[0]}, 0x10000, {vL16}
    v_and_b32 {T[1]}, 15, {vL}
    v_lshlrev_b32 {T[1]}, 11, {T[1]}
    v_bfe_u32 {T[2]}, {vL}, 4, 1
    v_lshl_add_u32 {T[1]}, {T[2]}, 5, {T[1]}
    v_lshrrev_b32 {T[2]}, 5, {vL}
    v_lshl_add_u32 {T[1]}, {T[2]}, 4, {T[1]}
    s_lshl_b32 s{sT0}, s{sMT}, 18
    s_lshl_b32 s{sT1}, s{sW}, 16
    s_add_u32 s{sT0}, s{sT0}, s{sT1}
    s_lshl_b32 s{sT1}, s{sNT}, 7
    s_add_u32 s{sT0}, s{sT0}, s{sT1}
    s_add_u32 s{sT1}, s{sT0}, 32768
    s_barrier""")
    for w in range(3): C(f"s_cmp_eq_u32 s{sW}, {w}\ns_cbranch_scc1 P3_RED{w}")
    A.ext(C.lines)
    def red(w):
        R = Asm()
        R(f"P3_RED{w}:")
        def adr(off): return (vL16, off) if off < 65536 else (T[0], off - 65536)
        for d in range(4):
            if d == w: continue
            q = (w - d - 1) & 3
            for jj in range(2):
                for i in range(4):
                    b_, off = adr((d*3 + q)*8192 + (jj*4 + i)*1024)
                    R(f"ds_write_b128 {b_}, {acc3[i][2*d+jj]} offset:{off}")
        R("s_waitcnt lgkmcnt(0)\ns_barrier")
        R.ext(ts.at("redw", True))
        free = [acc3[i][j] for j in range(8) if j // 2 != w for i in range(4)]
        k = 0
        for q in range(3):
            for jj in range(2):
                for i in range(4):
                    b_, off = adr((w*3 + q)*8192 + (jj*4 + i)*1024)
                    R(f"ds_read_b128 {free[k]}, {b_} offset:{off}"); k += 1
        for q in range(3):
            R(f"s_waitcnt lgkmcnt({[15, 8, 0][q]})")
            for jj in range(2):
                for i in range(4):
                    a = acc3[i][2*w+jj]; b = free[q*8 + jj*4 + i]
                    for r in (0, 2): R(f"v_pk_add_f32 {a.sub(r,2)}, {a.sub(r,2)}, {b.sub(r,2)}")
        for jj in range(2):
            for ip in range(2):
                X, Y = acc3[2*ip][2*w+jj], acc3[2*ip+1][2*w+jj]
                Dd = S[0].sub(4*(jj*2+ip), 4)
                R(f"v_cvt_pk_bf16_f32 {Dd[0]}, {X[0]}, {X[1]}\nv_cvt_pk_bf16_f32 {Dd[1]}, {X[2]}, {X[3]}")
                R(f"v_cvt_pk_bf16_f32 {Dd[2]}, {Y[0]}, {Y[1]}\nv_cvt_pk_bf16_f32 {Dd[3]}, {Y[2]}, {Y[3]}")
                R(f"s_nop 1\nv_permlane16_swap_b32 {Dd[0]}, {Dd[2]}\nv_permlane16_swap_b32 {Dd[1]}, {Dd[3]}")
                R(f"buffer_store_dwordx4 {Dd}, {T[1]}, {srd(S_OUT)}, s{sT0+jj} offen offset:{ip*64}")
        if trace:
            R(f"""s_waitcnt vmcnt(0)
            s_memrealtime s[100:101]
            s_waitcnt lgkmcnt(0)
            s_lshl_b64 exec, 1, s81
            v_mov_b32 v0, s100
            s_mov_b64 exec, -1
            s_lshl_b32 s80, s2, 2
            s_add_u32 s80, s80, s{sW}
            s_lshl_b32 s80, s80, 8
            s_add_u32 s80, s80, {TS_OFF}
            v_lshlrev_b32 {T[3]}, 2, {vL}
            buffer_store_dword v0, {T[3]}, {srd(S_WS)}, s80 offen
            s_waitcnt vmcnt(0) ; TRACE""")
        R.ext(ts.flush(S_WS, sW, S[1].base))
        R("s_endpgm")
        return R
    for w in (3, 0, 1, 2):
        R = red(w)
        probs += check_hazards(L3[-10:] + C.lines[-22:] + R.lines, f"p3red{w}")
        A.ext(R.lines)
    A.ext(slow1.lines)
    A("P3_SLOWH:"); A.ext(spin("P3_SH", hpoll, [vFl[0], vFl[1]], "P3_HOK"))
    A("P3_SLOWO:"); A.ext(spin("P3_SO", opoll, [vFl[0]], "P3_OOK"))

    F = Asm()
    F("P2_FALLBACK:")
    for ab in range(2): F(f"v_mov_b32 {T[ab]}, 0xff800000")
    F(f"s_mov_b32 s{sT0}, {KV_OFF}")
    F("P2_FB1:")
    for t in range(2): F(f"buffer_load_dwordx4 {K[0][t]}, {vL16}, {srd(S_WS)}, s{sT0} offen offset:{t*1024} {SC1}")
    F("s_waitcnt vmcnt(0)")
    for ab in range(2):
        F(f"v_mfma_f32_32x32x16_bf16 {S[ab]}, {K[0][0]}, {Q[ab][0]}, 0\nv_mfma_f32_32x32x16_bf16 {S[ab]}, {K[0][1]}, {Q[ab][1]}, {S[ab]}")
    F("s_nop 15")
    for ab in range(2):
        for r in range(0, 16, 2): F(f"v_max3_f32 {T[ab]}, {S[ab][r]}, {S[ab][r+1]}, {T[ab]}")
    F(f"s_add_u32 s{sT0}, s{sT0}, 4096\ns_cmp_lt_u32 s{sT0}, {KV_OFF + 262144}\ns_cbranch_scc1 P2_FB1")
    for ab in range(2): F(f"v_mov_b32 {T[2+ab]}, {T[ab]}")
    F("s_nop 1")
    for ab in range(2): F(f"v_permlane32_swap_b32 {T[ab]}, {T[2+ab]}")
    for ab in range(2): F(f"v_max_f32 {T[8+ab]}, {T[ab]}, {T[2+ab]}")
    for ab in range(2):
        for r in range(16): F(f"v_mov_b32 {O[ab][r]}, 0")
        for r in range(4): F(f"v_mov_b32 {Lc[ab][r]}, 0")
    F(f"s_mov_b32 s{sT0}, {KV_OFF}")
    F("P2_FB2:")
    for t in range(2): F(f"buffer_load_dwordx4 {K[0][t]}, {vL16}, {srd(S_WS)}, s{sT0} offen offset:{t*1024} {SC1}")
    for t in range(2): F(f"buffer_load_dwordx4 {V[0][t]}, {vL16}, {srd(S_WS)}, s{sT0} offen offset:{2048 + t*1024} {SC1}")
    F("s_waitcnt vmcnt(0)")
    for ab in range(2):
        F(f"v_mfma_f32_32x32x16_bf16 {S[ab]}, {K[0][0]}, {Q[ab][0]}, 0\nv_mfma_f32_32x32x16_bf16 {S[ab]}, {K[0][1]}, {Q[ab][1]}, {S[ab]}")
    F("s_nop 15")
    for ab in range(2):
        for r in range(16): F(f"v_sub_f32 {S[ab][r]}, {S[ab][r]}, {T[8+ab]}")
        for r in range(16): F(f"v_exp_f32 {S[ab][r]}, {S[ab][r]}")
        F("s_nop 0")
        for r in range(8): F(f"v_cvt_pk_bf16_f32 {P[ab][r]}, {S[ab][2*r]}, {S[ab][2*r+1]}")
    F("s_nop 1")
    for ab in range(2):
        for u_ in range(2):
            F(f"v_mfma_f32_32x32x16_bf16 {O[ab]}, {V[0][u_]}, {P[ab].sub(4*u_,4)}, {O[ab]}")
            F(f"v_mfma_f32_16x16x32_bf16 {Lc[ab]}, {ONES}, {P[ab].sub(4*u_,4)}, {Lc[ab]}")
    F(f"s_add_u32 s{sT0}, s{sT0}, 4096\ns_cmp_lt_u32 s{sT0}, {KV_OFF + 262144}\ns_cbranch_scc1 P2_FB2")
    F("s_nop 15\ns_branch P2_FINISH")
    F("L_END:\ns_endpgm")
    probs += check_hazards(F.lines, "fb")
    A.ext(F.lines)
    for p_ in probs: print("PROBLEM", p_)
    launch = f"; @launch grid=(256,1,1) block=(256,1,1) lds=163840"
    return launch, A.text(), kdesc(NAME, 512, 256)

HDR = open("gated_mix__grouped_kv_mqa__glu_gated_reglu__prompt.s.ref").read().split("; Override launch")[0]
def build(opt=None):
    l, t, d = gen(opt)
    return HDR + l + "\n" + '.amdgcn_target "amdgcn-amd-amdhsa--gfx950"\n.text\n' + t + d
if __name__ == "__main__":
    import sys, json
    out = sys.argv[1] if len(sys.argv) > 1 else "gated_mix__grouped_kv_mqa__glu_gated_reglu__prompt.s"
    opt = json.loads(sys.argv[2]) if len(sys.argv) > 2 else {}
    open(out, "w").write(build(opt))
```

```python
from asmlib import *
from common import *
LOG2E = math.log2(math.e)
NAME = "gated_mix__grouped_kv_mqa__glu_gated_reglu__prompt_kernel"

FL_E = 0x1650000
FL_ES = 4352
FL_Q = 0x1660000
FL_H = 0x1649000
FL_O = 0x164a000
SPIN_MAX = 1 << 20
PW = 7168

def put(f, g, x):
    f.setdefault(g, []).extend(x if isinstance(x, list) else [x])

def gen(opt=None):
    opt = opt or {}
    A = Asm()
    DEF = ["start", "p1", "p1end", "kvdone", "poll0", "poll1", "att", "attend", "tail"]
    tsn = opt.get("ts")
    ts = TSN(DEF if tsn == 1 else tsn, opt.get("tskind", "rt"))
    SC1 = "sc1"
    probs = []
    P_X, P_WQ, P_WK, P_WV, P_WO = 4, 6, 8, 10, 12
    P_WG, P_WU, P_WD, P_GW = 16, 18, 20, 22
    P_OUT, P_DBG, P_WS = 24, 26, 28
    S_WS, S_A, S_B, S_C, S_D, S_E = 32, 36, 40, 44, 48, 52
    sW, sNonce = 56, 57
    sT0, sT1, sT2, sT3 = 58, 59, 60, 61
    sIt, sRB, sCB = 62, 63, 64
    sL = 65
    vL, vL16 = Reg("v", 1, 1), Reg("v", 2, 1)
    def srd(b): return f"s[{b}:{b+3}]"

    A(f".globl {NAME}\n.p2align 8\n.type {NAME},@function\n{NAME}:")
    A("s_cmp_ge_u32 s2, 256\ns_cbranch_scc1 L_END")
    A.ext(ts.at("start"))
    A(f"""s_load_dwordx8 s[4:11], s[0:1], 0
    s_load_dwordx2 s[12:13], s[0:1], 32
    s_load_dwordx8 s[16:23], s[0:1], 48
    s_load_dwordx4 s[24:27], s[0:1], 80
    s_load_dwordx2 s[28:29], s[0:1], 96
    s_memrealtime s[30:31]
    v_lshrrev_b32 v3, 6, v0
    v_and_b32 {vL}, 63, v0
    v_readfirstlane_b32 s{sW}, v3
    v_lshlrev_b32 {vL16}, 4, {vL}""")

    trace = opt.get("trace")
    def tr_issue(): return ["s_memrealtime s[100:101]"] if trace else []
    def tr_commit(): return ["s_lshl_b64 exec, 1, s81", "v_mov_b32 v0, s100", "s_mov_b64 exec, -1", "s_add_u32 s81, s81, 1"] if trace else []
    if trace: A("s_mov_b32 s81, 0\nv_mov_b32 v0, 0\ns_memrealtime s[100:101]\ns_waitcnt lgkmcnt(0)"); A.ext(tr_commit())
    S_X, S_W0, S_W1, S_KV, S_Wb = S_A, S_B, S_C, S_D, S_E
    sSoX = sL - 1
    sSo0 = sL + 7
    sSo1 = sL + 7
    sM0X, sM0W, sM0K, sWwr = sL + 11, sL + 12, sL + 13, sL + 14
    sWrd, s16k, sStep1, sSa, sSc, sIsB, sKVst, sEfl = 14, 30, 15, 3, 31, 9, 10, 11
    XB, WB, KR = 0, 65536, 147456
    vXo = [3, 4]; vWo0, vWo1, vKo, vSXo = 5, 6, 7, 8
    vXa = [9, 10]; vW0a = [[11 + 2*i, 12 + 2*i] for i in range(4)]; vW1a = [19, 20, 21, 22]; vSWa = 23
    vT = 24
    acc = [[None]*8 for _ in range(8)]
    p = 32
    for i in range(7):
        for j in range(8):
            acc[i][j] = Reg("v", p, 4); p += 4
    RA = [[Reg("a", 64*s + 4*i, 4) for i in range(8)] for s in range(2)]
    RB = [[Reg("a", 64*s + 32 + 4*j, 4) for j in range(8)] for s in range(2)]
    SA = [Reg("a", 128 + 4*s, 4) for s in range(2)]
    sacc = Reg("a", 144, 4)
    for j in range(8): acc[7][j] = Reg("a", 148 + 4*j, 4)
    SXB = [[Reg("a", 180 + 8*b + 4*j, 4) for j in range(2)] for b in range(2)]
    GXa = [Reg("a", 196 + 8*r, 8) for r in range(2)]
    GWa = Reg("a", 212, 8)
    t0, t1, t2, t3, t4, t5, t6, t7 = range(vT, vT + 8)
    HUGE = 0x40000000

    A(f"""s_and_b32 s{sT0}, s2, 1
    s_lshl_b32 s{sT0}, s{sT0}, 2
    s_bfe_u32 s{sT1}, s2, 0x20003
    s_add_u32 s{sRB}, s{sT0}, s{sT1}
    s_bfe_u32 s{sT0}, s2, 0x20001
    s_lshl_b32 s{sT0}, s{sT0}, 3
    s_lshr_b32 s{sT1}, s2, 5
    s_add_u32 s{sCB}, s{sT0}, s{sT1}""")
    A(f"""s_lshl_b32 s{sT0}, s{sW}, 6
    v_lshrrev_b32 v{t0}, 3, {vL}
    v_add_u32 v{t2}, s{sT0}, v{t0}
    v_lshlrev_b32 v{t2}, 11, v{t2}
    v_lshrrev_b32 v{t1}, 4, {vL}
    v_and_b32 v{t3}, 7, {vL}
    v_xor_b32 v{t4}, v{t3}, v{t1}
    v_lshl_add_u32 v{vXo[0]}, v{t4}, 4, v{t2}
    v_xor_b32 v{vXo[1]}, 64, v{vXo[0]}""")
    for e in range(1, 8): A(f"s_mov_b32 s{sSoX+e}, {e*16384 - (e&3)*1024}")
    A(f"""s_lshl_b32 s{sM0X}, s{sW}, 13
    s_lshl_b32 s{sM0W}, s{sW}, 11
    s_add_u32 s{sM0K}, s{sM0W}, {KR}
    s_add_u32 s{sM0W}, s{sM0W}, {WB}
    s_and_b32 s{sT1}, s{sCB}, 3
    s_mov_b32 s{sStep1}, {PW}
    s_cmp_eq_u32 s{sT1}, 3
    s_cselect_b32 s{sStep1}, 2048, s{sStep1}""")
    A(f"""s_lshl_b32 s{sT0}, s{sW}, 3
    v_add_u32 v{t2}, s{sT0}, v{t1}
    v_mul_lo_u32 v{t2}, v{t2}, s{sStep1}
    s_and_b32 s{sT1}, s{sW}, 1
    s_lshl_b32 s{sT2}, s{sT1}, 3
    v_and_b32 v{t4}, 15, {vL}
    v_lshl_or_b32 v{t5}, v{t1}, 1, s{sT2}
    v_xor_b32 v{t4}, v{t4}, v{t5}
    v_lshl_add_u32 v{vWo1}, v{t4}, 4, v{t2}
    v_add_u32 v{t2}, s{sT0}, v{t0}
    v_mul_u32_u24 v{t2}, {PW}, v{t2}
    s_lshl_b32 s{sT2}, s{sT1}, 2
    v_and_b32 v{t4}, 1, v{t1}
    v_lshl_or_b32 v{t4}, v{t4}, 1, s{sT2}
    v_xor_b32 v{t4}, v{t4}, v{t3}
    v_lshl_add_u32 v{vWo0}, v{t4}, 4, v{t2}""")
    A("s_waitcnt lgkmcnt(0)")
    A(f"""s_lshl_b32 s{sT0}, s{sRB}, 19
    s_add_u32 s{S_X}, s{P_X}, s{sT0}
    s_addc_u32 s{S_X+1}, s{P_X+1}, 0
    s_mov_b32 s{S_X+2}, 0x80000
    s_mov_b32 s{S_X+3}, 0x20000""")
    A(f"""s_mov_b32 s{S_WS+3}, 0x20000
    s_or_b32 s{sT0}, s2, s{sW}
    s_cmp_lg_u32 s{sT0}, 0
    s_cbranch_scc1 P1_NONONCE
    s_or_b32 s30, s30, 1
    s_mov_b32 s{S_WS}, s{P_DBG}
    s_mov_b32 s{S_WS+1}, s{P_DBG+1}
    s_mov_b32 s{S_WS+2}, 256
    v_mov_b32 v{t6}, s30
    v_mov_b32 v{t7}, 0
    s_mov_b64 exec, 1
    buffer_store_dword v{t6}, v{t7}, {srd(S_WS)}, 0 offen sc1
    s_mov_b64 exec, -1
    P1_NONONCE:""")
    WNT = opt.get("wnt", "")
    def xdma(par):
        sl = []
        for e in range(8):
            pre = []
            if e == 0: pre = [f"s_add_u32 m0, s{sM0X}, {par}"]
            if e == 4: pre = ["s_add_u32 m0, m0, 4096"]
            so = "0" if e == 0 else f"s{sSoX+e}"
            sl.append((pre, VM(f"buffer_load_dwordx4 v{vXo[e&1]}, {srd(S_X)}, {so} offen offset:{(e&3)*1024} lds", "X")))
        return sl
    def wdma(hb, slot):
        so0 = "0" if hb == 0 else f"s{sSo0}"
        so1 = ["0" if hb == 0 else f"s{sSo1+2}", f"s{sSo1 + 1 + 2*hb}"]
        return [([f"s_add_u32 m0, s{sM0W}, {slot}"], VM(f"buffer_load_dwordx4 v{vWo0}, {srd(S_W0)}, {so0} offen {WNT} lds", "W")),
                ([], VM(f"buffer_load_dwordx4 v{vWo0}, {srd(S_Wb)}, {so0} offen offset:1024 {WNT} lds", "W")),
                (["s_add_u32 m0, m0, 8192"], VM(f"buffer_load_dwordx4 v{vWo1}, {srd(S_W1)}, {so1[0]} offen {WNT} lds", "W")),
                ([], VM(f"buffer_load_dwordx4 v{vWo1}, {srd(S_W1)}, {so1[1]} offen offset:1024 {WNT} lds", "W"))]
    def kdma(slot):
        return [([f"s_add_u32 m0, s{sM0K}, {slot}"], VM(f"buffer_load_dwordx4 v{vKo}, {srd(S_KV)}, 0 offen lds", "X")),
                ([], VM(f"buffer_load_dwordx4 v{vKo}, {srd(S_KV)}, 0 offen offset:1024 lds", "X"))]
    def sxload(b): return [VM(f"buffer_load_dwordx4 {SXB[b][j]}, v{vSXo}, {srd(S_X)}, 0 offen offset:{j*64}", "SX") for j in range(2)]
    def emit_dma(X, sl):
        for pre, d in sl:
            X.ext(pre)
            if pre: X("s_nop 0")
            X(d)
    emit_dma(A, xdma(0))
    A(f"""s_lshr_b32 s{sT0}, s{sCB}, 2
    s_and_b32 s{sT1}, s{sCB}, 3
    s_mul_i32 s{sT2}, s{sT0}, 896
    s_lshl_b32 s{sT3}, s{sT1}, 8
    s_add_u32 s{sT2}, s{sT2}, s{sT3}
    s_add_u32 s{S_W0}, s{P_WG}, s{sT2}
    s_addc_u32 s{S_W0+1}, s{P_WG+1}, 0
    s_sub_u32 s{S_W0+2}, {1024*PW}, s{sT2}
    s_mov_b32 s{S_W0+3}, 0x20000
    s_mov_b32 s{S_W1+3}, 0x20000
    s_mov_b32 s{S_Wb+3}, 0x20000
    s_mov_b32 s{sSo0}, {32*PW}
    s_cmp_eq_u32 s{sT1}, 3
    s_cbranch_scc1 P1_SRDB
    s_add_u32 s{S_Wb}, s{S_W0}, {4*PW - 1024}
    s_addc_u32 s{S_Wb+1}, s{S_W0+1}, 0
    s_sub_u32 s{S_Wb+2}, s{S_W0+2}, {4*PW - 1024}
    s_add_u32 s{S_W1}, s{P_WU}, s{sT2}
    s_addc_u32 s{S_W1+1}, s{P_WU+1}, 0
    s_mov_b32 s{S_W1+2}, s{S_W0+2}
    v_mov_b32 v{vWo0}, v{vWo1}
    s_branch P1_SRDD
    P1_SRDB:
    s_add_u32 s{S_Wb}, s{P_WU}, s{sT2}
    s_addc_u32 s{S_Wb+1}, s{P_WU+1}, 0
    s_sub_u32 s{S_Wb}, s{S_Wb}, 1024
    s_subb_u32 s{S_Wb+1}, s{S_Wb+1}, 0
    s_add_u32 s{S_Wb+2}, s{S_W0+2}, 1024
    s_lshl_b32 s{sT0}, s{sT0}, 8
    s_add_u32 s{S_W1}, s{P_WQ}, s{sT0}
    s_addc_u32 s{S_W1+1}, s{P_WQ+1}, 0
    s_sub_u32 s{S_W1+2}, {1024*2048}, s{sT0}
    P1_SRDD:
    s_lshl_b32 s{sSo1+1}, s{sStep1}, 2
    s_sub_u32 s{sSo1+1}, s{sSo1+1}, 1024
    s_lshl_b32 s{sSo1+2}, s{sStep1}, 5
    s_add_u32 s{sSo1+3}, s{sSo1+2}, s{sSo1+1}
    s_lshl_b32 s{sStep1}, s{sStep1}, 6""")
    advX = [f"v_add_u32 v{vXo[0]}, 128, v{vXo[0]}", f"v_add_u32 v{vXo[1]}, 128, v{vXo[1]}"]
    advW = [f"v_add_u32 v{vWo0}, {64*PW}, v{vWo0}", f"v_add_u32 v{vWo1}, s{sStep1}, v{vWo1}"]
    advK = f"v_add_u32 v{vKo}, 4096, v{vKo}"
    advS = f"v_add_u32 v{vSXo}, 128, v{vSXo}"
    emit_dma(A, wdma(0, 0)); emit_dma(A, wdma(1, 16384))
    A.ext(advX + advW)
    A(f"""s_bfe_u32 s{sT0}, s{sCB}, 0x10001
    s_and_b32 s{sT1}, s{sW}, 1
    s_bitcmp1_b32 s{sCB}, 0
    s_cselect_b32 s{S_KV}, s{P_WV}, s{P_WK}
    s_cselect_b32 s{S_KV+1}, s{P_WV+1}, s{P_WK+1}
    s_cselect_b32 s{sSa}, s{sT1}, s{sT0}
    s_cselect_b32 s{sSc}, s{sT0}, s{sT1}
    s_mov_b32 s{S_KV+2}, 65536
    s_mov_b32 s{S_KV+3}, 0x20000
    s_and_b32 s{sIsB}, s{sCB}, 3
    s_cmp_eq_u32 s{sIsB}, 3
    s_cselect_b32 s{sIsB}, 1, 0
    v_lshrrev_b32 v{t2}, 5, {vL}
    v_lshlrev_b32 v{t2}, 1, v{t2}
    v_xor_b32 v{t2}, v{t2}, {vL}
    v_lshlrev_b32 v{t2}, 4, v{t2}
    s_lshr_b32 s{sT2}, s{sW}, 1
    s_lshl_b32 s{sT0}, s{sT2}, 15
    s_lshl_b32 s{sT1}, s{sT1}, 11
    s_add_u32 s{sT0}, s{sT0}, s{sT1}
    v_add_u32 v{vKo}, s{sT0}, v{t2}
    s_lshr_b32 s{sT0}, s{sCB}, 2
    s_lshl_b32 s{sT0}, s{sT0}, 1
    s_add_u32 s{sT0}, s{sT0}, s{sSa}
    s_lshl_b32 s{sT0}, s{sT0}, 15
    s_lshl_b32 s{sT2}, s{sT2}, 10
    s_add_u32 s{sT0}, s{sT0}, s{sT2}
    v_and_b32 v{t2}, 15, {vL}
    v_lshlrev_b32 v{t2}, 11, v{t2}
    v_lshl_add_u32 v{t2}, v{t1}, 4, v{t2}
    v_add_u32 v{vSXo}, s{sT0}, v{t2}""")
    emit_dma(A, kdma(0)); A.ext(sxload(0)); A(advK); A(advS)
    A(f"""s_mov_b32 s{S_WS}, s{P_WS}
    s_mov_b32 s{S_WS+1}, s{P_WS+1}
    s_mov_b32 s{S_WS+2}, {WS_USED}""")
    nfirst = len(A.lines)
    second = xdma(32768) + wdma(0, 2*16384) + kdma(8192) + wdma(1, 3*16384)
    A(f"""v_and_b32 v{t0}, 15, {vL}
    v_lshrrev_b32 v{t2}, 1, v{t0}
    v_xor_b32 v{t2}, v{t2}, v{t1}
    v_lshlrev_b32 v{t2}, 4, v{t2}
    v_lshl_add_u32 v{t2}, v{t0}, 7, v{t2}
    s_lshr_b32 s{sT0}, s{sW}, 1
    s_lshl_b32 s{sT1}, s{sT0}, 14
    v_add_u32 v{vXa[0]}, s{sT1}, v{t2}
    v_xor_b32 v{vXa[1]}, 64, v{vXa[0]}
    v_bfe_u32 v{t0}, {vL}, 2, 2
    v_lshl_add_u32 v{t2}, v{t1}, 3, v{t0}
    v_and_b32 v{t3}, 1, v{t1}
    v_lshl_or_b32 v{t5}, v{t3}, 2, v{t0}
    v_and_b32 v{t4}, 3, {vL}
    v_lshlrev_b32 v{t4}, 3, v{t4}
    v_lshl_add_u32 v{t6}, v{t2}, 8, v{t4}
    v_add_u32 v{t6}, {WB + 8192}, v{t6}
    s_and_b32 s{sT0}, s{sW}, 1
    s_lshl_b32 s{sT1}, s{sT0}, 2""")
    for ii in range(4):
        A(f"""s_add_u32 s{sT2}, s{sT1}, {ii}
        v_xor_b32 v{t7}, s{sT2}, v{t5}
        v_lshl_add_u32 v{vW1a[ii]}, v{t7}, 5, v{t6}""")
    A(f"""v_lshl_add_u32 v{t2}, v{t2}, 6, v{t4}
    v_xor_b32 v{t7}, s{sSc}, v{t3}
    v_lshl_add_u32 v{t7}, v{t7}, 5, v{t2}
    s_lshr_b32 s{sT2}, s{sW}, 1
    s_lshl_b32 s{sT2}, s{sT2}, 12
    s_add_u32 s{sT2}, s{sT2}, {KR}
    v_add_u32 v{vSWa}, s{sT2}, v{t7}
    s_mov_b32 s{s16k}, 16384
    s_cmp_eq_u32 s{sIsB}, 1
    s_cbranch_scc1 P1_ADB""")
    for ii in range(4):
        A(f"v_subrev_u32 v{vW0a[ii][0]}, 8192, v{vW1a[ii]}\nv_subrev_u32 v{vW0a[ii][1]}, 7168, v{vW1a[ii]}")
    A(f"""s_branch P1_ADD
    P1_ADB:
    v_lshl_add_u32 v{t4}, v{t1}, 11, v{t4}
    v_lshl_add_u32 v{t4}, v{t0}, 7, v{t4}
    v_add_u32 v{t4}, {WB}, v{t4}
    v_lshrrev_b32 v{t0}, 1, v{t0}
    v_lshl_or_b32 v{t0}, v{t3}, 1, v{t0}
    s_lshl_b32 s{sT1}, s{sT0}, 1""")
    for k in range(2):
        A(f"""s_add_u32 s{sT2}, s{sT1}, {k}
        v_xor_b32 v{t7}, s{sT2}, v{t0}
        v_lshl_add_u32 v{vW0a[k][0]}, v{t7}, 5, v{t4}
        v_add_u32 v{vW0a[k][1]}, 512, v{vW0a[k][0]}
        v_add_u32 v{vW0a[2+k][0]}, 1024, v{vW0a[k][0]}
        v_add_u32 v{vW0a[2+k][1]}, 1536, v{vW0a[k][0]}""")
    A("P1_ADD:")
    PF = opt.get("pf", 1)
    Z = []
    for i in range(8):
        for j in range(8):
            for r in range(4):
                a = acc[i][j][r]
                Z.append(f"v_mov_b32 {a}, 0" if a.f == "v" else f"v_accvgpr_write_b32 {a}, 0")
    for r in range(4): Z.append(f"v_accvgpr_write_b32 {sacc[r]}, 0")
    per = len(Z) // len(second)
    for k, (pre, d) in enumerate(second):
        A.ext(pre); A.ext(Z[k*per:(k+1)*per]); A(d)
    A.ext(Z[len(second)*per:])
    A.ext(advX + advW + [advK])

    rdregs = [r for pr in vW0a for r in pr] + vW1a
    def reads(b, s, side):
        L = [f"ds_read_b128 {RB[s][j]}, v{vXa[b]} offset:{j*2048}" for j in range(8)]
        for i in range(8):
            for hf in range(2):
                if i < 4: L.append(f"ds_read_b64_tr_b16 {RA[s][i].sub(2*hf, 2)}, v{vW0a[i][hf]}")
                else: L.append(f"ds_read_b64_tr_b16 {RA[s][i].sub(2*hf, 2)}, v{vW1a[i-4]} offset:{hf*1024}")
        if side:
            for hf in range(2):
                L.append(f"ds_read_b64_tr_b16 {SA[s].sub(2*hf, 2)}, v{vSWa} offset:{b*2048 + hf*256}")
        return L
    def mfmas(s, side=None):
        L = []
        for i in range(8):
            js = range(8) if i % 2 == 0 else range(7, -1, -1)
            for j in js:
                L.append(f"v_mfma_f32_16x16x32_bf16 {acc[i][j]}, {RA[s][i]}, {RB[s][j]}, {acc[i][j]}")
            if side is not None and i == 3:
                L.append(f"v_mfma_f32_16x16x32_bf16 {sacc}, {SA[s]}, {SXB[side][s]}, {sacc}")
        return L
    def rotW(sreg, sd):
        return [f"s_cmp_eq_u32 s{sreg}, {4*16384}", f"s_cselect_b32 s{sd}, {(-4*16384) & 0xffffffff:#x}, s{s16k}", f"s_add_u32 s{sreg}, s{sreg}, s{sd}"]
    A(f"s_waitcnt vmcnt({len(second)}) lgkmcnt(0)\ns_barrier")
    A.ext(reads(0, 0, True))
    for r in rdregs: A(f"v_add_u32 v{r}, 16384, v{r}")
    A(f"""s_mov_b32 s{sWrd}, 16384
    s_mov_b32 s{sWwr}, {4*16384}
    s_mov_b32 s{sIt}, 0
    s_waitcnt lgkmcnt(0)
    s_barrier""")
    A.ext(ts.at("p1"))
    if ts.on: A("s_waitcnt lgkmcnt(0)")
    pro_hist = list(A.lines)

    def step(side=None, dma=True, last=False, hook=None, lim=None):
        out = []
        sd = side is not None
        n = 65 if sd else 64
        BG = n - 4
        def rot(f):
            put(f, 47, rotW(sWrd, sT1))
            for k, r in enumerate(rdregs): put(f, 48 + k, f"v_add_u32 v{r}, s{sT1}, v{r}")
        f = {}
        for k, r in enumerate(reads(1, 1, sd)): put(f, 2*k if k < 24 else 49 + 2*(k - 24), r)
        if dma:
            dg = [1, 9, 17, 25, 33, 39, 45, 53] if not sd else [13, 19, 25, 31, 37, 43, 49, 55]
            for k, (pre, d) in enumerate(wdma(0, f"s{sWwr}") + wdma(1, f"s{sWwr}")):
                if pre: put(f, dg[k] - 1, pre)
                put(f, dg[k], d)
            put(f, dg[0] + 2, rotW(sWwr, sT0)); put(f, dg[4] + 2, rotW(sWwr, sT0))
            put(f, 57, advW[0]); put(f, 58, advW[1])
        if sd:
            for k, l in enumerate(sxload(side ^ 1)): put(f, [1, 7][k], l)
            put(f, 9, advS)
            put(f, 59, f"v_xor_b32 v{vSWa}, 0x2000, v{vSWa}")
        rot(f)
        put(f, 19, f"v_xor_b32 v{vXa[0]}, 0x8000, v{vXa[0]}")
        if hook: hook(0, f, BG)
        put(f, BG, [Need(["X"], "lgkmcnt(0)") if (dma or not last) else "s_waitcnt lgkmcnt(0)", "s_barrier"])
        if hook: hook(2, f, BG)
        out += interleave(mfmas(0, side), f)
        f = {}
        if not last:
            for k, r in enumerate(reads(0, 0, sd)): put(f, 2*k if k < 24 else 49 + 2*(k - 24), r)
            rot(f)
            put(f, 21, f"v_xor_b32 v{vXa[1]}, 0x8000, v{vXa[1]}")
        if dma:
            put(f, -1, [f"s_and_b32 s{sT3}, s{sIt}, 1", f"s_lshl_b32 s{sT0}, s{sT3}, 15", f"s_lshl_b32 s{sT3}, s{sT3}, 13"])
            dl = (kdma(f"s{sT3}") if sd else []) + xdma(f"s{sT0}")
            dg = [1, 7, 13, 19, 25, 31, 37, 43, 49, 55] if sd else [1, 9, 17, 25, 33, 41, 47, 53]
            for k, (pre, d) in enumerate(dl):
                if pre: put(f, dg[k] - 1, pre)
                put(f, dg[k], d)
            put(f, 57, advX[0]); put(f, 59, advX[1])
            if sd: put(f, 9, advK)
        if hook: hook(1, f, BG)
        put(f, BG - 3, tr_issue())
        put(f, BG, [Need(["SX"], "lgkmcnt(0)") if sd else "s_waitcnt lgkmcnt(0)", "s_barrier"] + tr_commit())
        put(f, BG + 1, f"s_add_u32 s{sIt}, s{sIt}, 1")
        if lim: put(f, BG + 2, f"s_cmp_lt_u32 s{sIt}, {lim}")
        out += interleave(mfmas(1, side), f)
        return out

    vN, vZ, vKA, vFA = t0, t1, t2, t3
    u = 28
    nload = f"buffer_load_dword v{vN}, v{vZ}, {srd(S_KV)}, 0 offen sc1"
    dbgsrd = [f"s_mov_b32 s{S_KV}, s{P_DBG}", f"s_mov_b32 s{S_KV+1}, s{P_DBG+1}", f"s_mov_b32 s{S_KV+2}, 256", f"v_mov_b32 v{vZ}, 0"]
    PSC = KR + 4096
    kvK = f"""v_bfe_u32 v{vKA}, {vL}, 3, 1
    v_lshlrev_b32 v{vKA}, 4, v{vKA}
    v_and_b32 v{vFA}, 7, {vL}
    v_add_u32 v{vKA}, v{vKA}, v{vFA}
    v_bfe_u32 v{vFA}, {vL}, 4, 1
    v_lshl_add_u32 v{vKA}, v{vFA}, 5, v{vKA}
    v_lshlrev_b32 v{vKA}, 4, v{vKA}
    v_lshrrev_b32 v{vFA}, 5, {vL}
    v_lshl_add_u32 v{vKA}, v{vFA}, 10, v{vKA}
    s_lshl_b32 s{sKVst}, s{sSa}, 7
    s_lshl_b32 s{sEfl}, s{sSc}, 3""".split("\n")
    kvV = f"""v_lshrrev_b32 v{vKA}, 5, {vL}
    v_lshlrev_b32 v{vKA}, 4, v{vKA}
    v_bfe_u32 v{vFA}, {vL}, 4, 1
    v_lshl_add_u32 v{vKA}, v{vFA}, 2, v{vKA}
    v_bfe_u32 v{vFA}, {vL}, 2, 1
    v_lshl_add_u32 v{vKA}, v{vFA}, 5, v{vKA}
    v_lshlrev_b32 v{vKA}, 4, v{vKA}
    v_bfe_u32 v{vFA}, {vL}, 3, 1
    v_lshl_add_u32 v{vKA}, v{vFA}, 10, v{vKA}
    v_and_b32 v{vFA}, 3, {vL}
    v_lshl_add_u32 v{vKA}, v{vFA}, 1, v{vKA}
    s_lshl_b32 s{sKVst}, s{sSc}, 7
    s_lshl_b32 s{sEfl}, s{sSa}, 3""".split("\n")
    kvaddr = [f"s_bitcmp1_b32 s{sCB}, 0", "s_cbranch_scc1 P1_KVAV"] + [l.strip() for l in kvK] + ["P1_KVAD:",
              f"s_add_u32 s{sKVst}, s{sKVst}, s{sEfl}", f"s_add_u32 s{sKVst}, s{sKVst}, {KR}", f"v_add_u32 v{vKA}, s{sKVst}, v{vKA}"]
    kvwr = [f"s_bitcmp1_b32 s{sCB}, 0", "s_cbranch_scc1 P1_KVWV", f"ds_write_b64 v{vKA}, v[{u}:{u+1}]", "P1_KVWD:"]
    ool = Asm()
    ool("P1_KVAV:"); ool.ext(kvV); ool("s_branch P1_KVAD")
    ool(f"""P1_KVWV:
    ds_write_b16 v{vKA}, v{u}
    ds_write_b16_d16_hi v{vKA}, v{u} offset:16
    ds_write_b16 v{vKA}, v{u+1} offset:32
    ds_write_b16_d16_hi v{vKA}, v{u+1} offset:48
    s_branch P1_KVWD""")
    vP = vSXo
    KT = Reg("a", 128, 4); PT = Reg("a", 132, 4)
    def hookS8(ph, f, BG):
        if ph == 0:
            put(f, 11, dbgsrd)
            put(f, 21, [f"s_lshl_b32 s{sT2}, s{sW}, 10", f"s_add_u32 s{sT2}, s{sT2}, {PSC}"]); put(f, 23, f"v_add_u32 v{vP}, s{sT2}, {vL16}")
            put(f, 27, kvaddr)
        if ph == 1:
            put(f, 3, f"ds_write_b128 v{vP}, {sacc}")
            put(f, 5, VM(nload, "N"))
            put(f, 11, f"v_xor_b32 v{vP}, 0x800, v{vP}")
            for r in range(4): put(f, 13 + 2*r, f"v_accvgpr_read_b32 v{u+r}, {sacc[r]}")
    def hookS9(ph, f, BG):
        if ph == 0:
            put(f, 1, f"ds_read_b128 {PT}, v{vP}")
            put(f, 11, "s_waitcnt lgkmcnt(5)")
            for r in range(4): put(f, 11 + 2*r, f"v_accvgpr_read_b32 v{vFA}, {PT[r]}"); put(f, 12 + 2*r, f"v_add_f32 v{u+r}, v{u+r}, v{vFA}")
            put(f, 21, f"v_cvt_pk_bf16_f32 v{u}, v{u}, v{u+1}"); put(f, 23, f"v_cvt_pk_bf16_f32 v{u+1}, v{u+2}, v{u+3}")
            put(f, 27, kvwr)
            put(f, 29, f"v_lshrrev_b32 v{vP}, 3, {vL}"); put(f, 31, f"v_and_b32 v{vFA}, 7, {vL}")
            put(f, 35, f"v_lshlrev_b32 v{vFA}, 4, v{vFA}"); put(f, 37, f"v_lshl_add_u32 v{vP}, v{vP}, 8, v{vFA}")
            put(f, 41, [f"s_bfe_u32 s{sT2}, s{sCB}, 0x10001", f"s_lshl_b32 s{sT2}, s{sT2}, 7"])
            put(f, 43, f"v_add_u32 v{vP}, s{sT2}, v{vP}")
            put(f, 44, f"v_add_u32 v{vKA}, {KR}, v{vP}")
        if ph == 1:
            put(f, 3, f"ds_read_b128 {KT}, v{vKA}")
            put(f, 5, [f"s_lshl_b32 s{sKVst}, s{sRB}, 3", f"s_lshr_b32 s{sT2}, s{sCB}, 2", f"s_add_u32 s{sKVst}, s{sKVst}, s{sT2}"])
            put(f, 7, [f"s_lshl_b32 s{sKVst}, s{sKVst}, 1", f"s_and_b32 s{sT2}, s{sCB}, 1", f"s_add_u32 s{sKVst}, s{sKVst}, s{sT2}"])
            put(f, 11, [f"s_lshl_b32 s{sKVst}, s{sKVst}, 11", f"s_add_u32 s{sKVst}, s{sKVst}, {KV_OFF}", f"s_lshl_b32 s{sEfl}, s{sRB}, 5"])
            put(f, 13, [f"s_add_u32 s{sEfl}, s{sEfl}, s{sCB}", f"s_lshl_b32 s{sEfl}, s{sEfl}, 2", f"s_add_u32 s{sEfl}, s{sEfl}, {FL_E}"])
            put(f, 15, [f"s_cmp_eq_u32 s{sW}, 0", f"s_cselect_b32 s{sKVst}, s{sKVst}, {HUGE}", f"s_cselect_b32 s{sEfl}, s{sEfl}, {HUGE}"])
            put(f, 19, f"v_mul_u32_u24 v{vFA}, {FL_ES}, {vL}")
            put(f, 21, ["s_waitcnt lgkmcnt(9)", VM(f"buffer_store_dwordx4 {KT}, v{vP}, {srd(S_WS)}, s{sKVst} offen {SC1}", "KS")])
    def hookS10(ph, f, BG):
        if ph == 1:
            put(f, 27, [Need(["KS", "N"]), f"v_readfirstlane_b32 s{sNonce}, v{vN}", f"s_cmp_eq_u32 s{sNonce}, 0", "s_cbranch_scc1 P1_SLOWN", "P1_NOK:",
                       "s_mov_b64 exec, 0xff", VM(f"buffer_store_dword v{vN}, v{vFA}, {srd(S_WS)}, s{sEfl} offen sc1", "EF"), "s_mov_b64 exec, -1", "s_nop 2"])
    sKVo, sM0 = sL + 3, sL + 4
    S_KVD = S_C
    vE = Reg("v", 28, 4)
    epoll = f"buffer_load_dwordx4 {vE}, {vL16}, {srd(S_WS)}, s{sEfl} offen sc1"
    def kvdma0(slotoff):
        L = []
        for e in range(8):
            pre = []
            if e == 0: pre = [f"s_add_u32 m0, s{sM0}, {slotoff}"]
            if e == 4: pre = [f"s_add_u32 m0, m0, 4096", f"s_add_u32 s{sKVo}, s{sKVo}, 4096"]
            L.append((pre, VM(f"buffer_load_dwordx4 {vL16}, {srd(S_KVD)}, s{sKVo} offen offset:{(e&3)*1024} {SC1} lds", "KV")))
        return L
    def hookS14(ph, f, BG):
        if ph == 0:
            put(f, 5, [f"s_bfe_u32 s{sEfl}, s2, 0x30003", f"s_mul_i32 s{sEfl}, s{sEfl}, {FL_ES}", f"s_add_u32 s{sEfl}, s{sEfl}, {FL_E}"])
            put(f, 9, VM(epoll, "N"))
            put(f, 11, [f"s_mov_b32 s{S_KVD}, s{P_WS}", f"s_mov_b32 s{S_KVD+1}, s{P_WS+1}", f"s_mov_b32 s{S_KVD+2}, {KV_OFF + 262144}"])
            put(f, 13, [f"s_lshl_b32 s{sM0}, s{sW}, 13", f"s_add_u32 s{sKVo}, s{sM0}, {KV_OFF}"])
    def echeck():
        return [f"v_xor_b32 {vE[0]}, {vE[0]}, v{vN}", f"v_xor_b32 {vE[1]}, {vE[1]}, v{vN}", f"v_xor_b32 {vE[2]}, {vE[2]}, v{vN}", f"v_xor_b32 {vE[3]}, {vE[3]}, v{vN}",
                f"v_or3_b32 {vE[0]}, {vE[0]}, {vE[1]}, {vE[2]}", f"v_or_b32 {vE[0]}, {vE[0]}, {vE[3]}", f"v_cmp_eq_u32 vcc, 0, {vE[0]}", "s_nop 0", "s_cmp_eq_u64 vcc, -1"]
    def hookS15(ph, f, BG):
        dg = [5, 11, 17, 23, 29, 35, 41, 46]
        if ph == 0: put(f, 1, [Need(["N"])] + echeck() + ["s_cbranch_scc0 P1_SLOWE", "P1_EOK:"])
        if ph in (0, 1):
            for k, (pre, d) in enumerate(kvdma0(32768*ph)):
                if pre: put(f, dg[k] - 1, pre)
                put(f, dg[k], d)
            put(f, 47, f"s_add_u32 s{sKVo}, s{sKVo}, {32768 - 4096}")
    Ls = step(0) + step(1, lim=8)
    Ls = resolve_waits(Ls)
    Lp = resolve_waits(step(lim=14))
    S8 = resolve_waits(step(hook=hookS8), Ls); S9 = resolve_waits(step(hook=hookS9), Ls + S8); S10 = resolve_waits(step(hook=hookS10), S8 + S9)
    S14 = resolve_waits(step(dma=False, hook=hookS14), Lp); S15 = resolve_waits(step(dma=False, last=True, hook=hookS15), Lp + S14)
    probs += verify_waits(pro_hist + Ls, len(pro_hist), "pro->Ls")
    probs += verify_waits(S9 + S10 + Lp, len(S9 + S10), "S10->Lp")
    A(".p2align 6\nP1_LS:")
    A.ext(Ls); A("s_cbranch_scc1 P1_LS")
    A.ext(S8); A.ext(S9); A.ext(S10)
    A(".p2align 6\nP1_LP:")
    A.ext(Lp); A("s_cbranch_scc1 P1_LP")
    A.ext(S14); A.ext(S15)
    probs += check_hazards(A.lines, "p1") + check_hazards(Ls + Ls, "ls") + check_hazards(Lp + Lp, "lp")
    slow1 = Asm()
    slow1(f"""P1_SLOWN:
    s_mov_b32 s{sT2}, {SPIN_MAX}
    P1_SLOWN_L:
    {nload}
    s_waitcnt vmcnt(0)
    v_readfirstlane_b32 s{sNonce}, v{vN}
    s_cmp_lg_u32 s{sNonce}, 0
    s_cbranch_scc1 P1_NOK
    s_sleep 4
    s_sub_u32 s{sT2}, s{sT2}, 1
    s_cmp_lg_u32 s{sT2}, 0
    s_cbranch_scc1 P1_SLOWN_L
    s_endpgm
    P1_SLOWE:
    s_mov_b32 s{sT0}, {SPIN_MAX}
    P1_SLOWE_L:
    {epoll}
    s_waitcnt vmcnt(0)""")
    slow1.ext(echeck())
    slow1(f"""s_cbranch_scc1 P1_EOK
    s_sleep 4
    s_sub_u32 s{sT0}, s{sT0}, 1
    s_cmp_lg_u32 s{sT0}, 0
    s_cbranch_scc1 P1_SLOWE_L
    s_endpgm""")

    va = Alloc("v", 3, 256)
    vCur = va.get(1); vNxt = va.get(1); vZero = va.get(1); vNon = va.get(1); vQP = va.get(1)
    T = va.get(12, 4)
    S = [va.get(16, 4) for _ in range(2)]
    P = [va.get(8, 4) for _ in range(2)]
    O = [va.get(16, 4) for _ in range(2)]
    Lc = [va.get(4, 4) for _ in range(2)]
    SCL = va.get(8, 4)
    acc3 = [[va.get(4, 4) for j in range(8)] for i in range(4)]
    vW3o = va.get(1); vW3a = [va.get(1) for _ in range(4)]; vPF = va.get(1); vG = va.get(2, 2); vFl = va.get(2, 2)
    NEG = [Reg("v", acc3[0][0].base + 16*k, 16) for k in range(2)]
    aa = Alloc("a", 0, 180)
    RX = [[aa.get(4, 4) for j in range(8)] for s in range(4)]
    Q = [[aa.get(4, 4) for t in range(2)] for ab in range(2)]
    K = [[aa.get(4, 4) for t in range(2)] for b in range(2)]
    V = [[aa.get(4, 4) for t in range(2)] for b in range(2)]
    ONES = aa.get(4, 4)
    RW = [[Reg("a", 220 + 16*s + 4*i, 4) for i in range(4)] for s in range(2)]
    QXB = 98304
    W3B = 98304

    E = Asm()
    E.ext(ts.at("p1end"))
    sO = sL + 10
    sC = sL + 1
    sQf = sL + 9
    tA = [Reg("v", 20, 4), Reg("v", 28, 4)]
    def hmath(pairs, dst):
        L = []
        for Gx, U in pairs:
            for r in range(4): L.append(f"v_max_f32 {Gx[r]}, 0, {Gx[r]}")
        for Gx, U in pairs:
            for r in (0, 2): L.append(f"v_pk_mul_f32 {Gx.sub(r,2)}, {Gx.sub(r,2)}, {U.sub(r,2)}")
        for k, (Gx, U) in enumerate(pairs):
            L.append(f"v_cvt_pk_bf16_f32 {dst[2*k]}, {Gx[0]}, {Gx[1]}"); L.append(f"v_cvt_pk_bf16_f32 {dst[2*k+1]}, {Gx[2]}, {Gx[3]}")
        return L
    gl = Asm()
    gl(f"""s_mov_b32 s{S_A}, s{P_X}
    s_mov_b32 s{S_A+1}, s{P_X+1}
    s_mov_b32 s{S_A+2}, 0x400000
    s_mov_b32 s{S_B}, s{P_GW}
    s_mov_b32 s{S_B+1}, s{P_GW+1}
    s_mov_b32 s{S_B+2}, 2048
    s_lshl_b32 s{sT2}, s{sRB}, 5
    s_add_u32 s{sT2}, s{sT2}, s{sCB}
    s_lshl_b32 s{sT2}, s{sT2}, 2
    s_add_u32 s{sT2}, s{sT2}, s{sW}
    s_lshl_b32 s{sT2}, s{sT2}, 12""")
    for h in range(2): gl(f"buffer_load_dwordx4 {GWa.sub(4*h,4)}, {vL16}, {srd(S_B)}, 0 offen offset:{h*1024}")
    for r in range(2):
        for h in range(2):
            gl(f"buffer_load_dwordx4 {GXa[r].sub(4*h,4)}, {vL16}, {srd(S_A)}, s{sT2} offen offset:{r*2048 + h*1024}")
    E(f"""s_lshr_b32 s{sT0}, s{sW}, 1
    s_and_b32 s{sT1}, s{sW}, 1
    s_lshl_b32 s{sO}, s{sRB}, 4
    s_lshl_b32 s{sT2}, s{sT0}, 3
    s_add_u32 s{sO}, s{sO}, s{sT2}
    s_lshl_b32 s{sO}, s{sO}, 10
    s_lshr_b32 s{sT2}, s{sCB}, 2
    s_mul_i32 s{sO+1}, s{sT2}, 14
    s_and_b32 s{sT3}, s{sCB}, 3
    s_lshl_b32 s{sT3}, s{sT3}, 2
    s_add_u32 s{sO+1}, s{sO+1}, s{sT3}
    s_add_u32 s{sO+1}, s{sO+1}, s{sT1}
    s_cmp_eq_u32 s{sIsB}, 1
    s_cbranch_scc1 P1_EPIB
    s_add_u32 s{sO+1}, s{sO+1}, s{sT1}
    s_mul_i32 s{sO+1}, s{sO+1}, {AFS}
    s_add_u32 s{sO}, s{sO}, s{sO+1}
    s_add_u32 s{sO+2}, s{sO}, {AFS}""")
    E.ext(gl.lines)
    for fb in range(2):
        for j in range(8):
            U1 = acc[5+2*fb][j]
            if U1.f == "a":
                Tt = tA[j % 2]
                for r in range(4): E(f"v_accvgpr_read_b32 {Tt[r]}, {U1[r]}")
                U1 = Tt
            E.ext(hmath([(acc[2*fb][j], acc[4+2*fb][j]), (acc[2*fb+1][j], U1)], acc[4+2*fb][j]))
    E("s_waitcnt vmcnt(0)\ns_branch P1_EPID\nP1_EPIB:")
    E(f"""s_mul_i32 s{sO+1}, s{sO+1}, {AFS}
    s_add_u32 s{sO}, s{sO}, s{sO+1}
    s_mov_b32 s{sO+2}, {HUGE}
    s_lshl_b32 s{sQf}, s{sRB}, 3
    s_add_u32 s{sQf}, s{sQf}, s{sT2}
    s_lshl_b32 s{sQf}, s{sQf}, 2
    s_lshl_b32 s{sT1}, s{sT1}, 1
    s_add_u32 s{sT2}, s{sQf}, s{sT1}
    s_lshl_b32 s{sT2}, s{sT2}, 1
    s_add_u32 s{sT2}, s{sT2}, s{sT0}
    s_lshl_b32 s{sT2}, s{sT2}, 13
    s_add_u32 s{sT0}, s{sT2}, {QF4_OFF}
    s_add_u32 s{sT1}, s{sT0}, 4096
    s_add_u32 s{sT2}, s{sT0}, 16384
    s_add_u32 s{sT3}, s{sT0}, {16384 + 4096}
    s_add_u32 s{sQf}, s{sQf}, s{sW}
    s_lshl_b32 s{sQf}, s{sQf}, 7
    s_add_u32 s{sQf}, s{sQf}, {FL_Q}
    s_mov_b32 s{sC}, {f2u(QSCALE):#x}
    s_mov_b32 s{sC+1}, {f2u(QSCALE):#x}""")
    for hh in range(2):
        for j in range(8):
            F0, F1 = acc[4 + 2*hh][j], acc[5 + 2*hh][j]
            if F1.f == "a":
                Tt = tA[j % 2]
                for r in range(4): E(f"v_accvgpr_read_b32 {Tt[r]}, {F1[r]}")
                F1 = Tt
            for F in (F0, F1):
                for r in (0, 2): E(f"v_pk_mul_f32 {F.sub(r,2)}, {F.sub(r,2)}, s[{sC}:{sC+1}]")
            E(f"v_cvt_pk_bf16_f32 {F0[0]}, {F0[0]}, {F0[1]}\nv_cvt_pk_bf16_f32 {F0[1]}, {F0[2]}, {F0[3]}")
            E(f"v_cvt_pk_bf16_f32 {F0[2]}, {F1[0]}, {F1[1]}\nv_cvt_pk_bf16_f32 {F0[3]}, {F1[2]}, {F1[3]}")
            E(f"buffer_store_dwordx4 {F0}, {vL16}, {srd(S_WS)}, s{sT0 + 2*hh + (j>>2)} offen offset:{(j&3)*1024} {SC1}")
    E.ext(gl.lines)
    for j in range(8):
        E.ext(hmath([(acc[0][j], acc[2][j]), (acc[1][j], acc[3][j])], acc[4][j]))
    E(f"""s_waitcnt vmcnt(6)
    s_mov_b64 exec, 1
    buffer_store_dword v{vN}, v{vZ}, {srd(S_WS)}, s{sQf} offen sc1
    s_mov_b64 exec, -1
    P1_EPID:
    s_add_u32 s{sO+1}, s{sO}, 4096
    s_add_u32 s{sO+3}, s{sO+2}, 4096""")
    E.ext(ts.at("kvdone"))
    hst0 = [VM(f"buffer_store_dwordx4 {acc[4][j]}, {vL16}, {srd(S_WS)}, s{sO + (j>>2)} offen offset:{(j&3)*1024} {SC1}", "H") for j in range(8)]
    hst1a = [VM(f"buffer_store_dwordx4 {acc[6][j]}, {vL16}, {srd(S_WS)}, s{sO + 2 + (j>>2)} offen offset:{(j&3)*1024} {SC1}", "H") for j in range(8)]
    probs += check_hazards(S15[-20:] + E.lines, "p1epi")
    A.ext(E.lines)

    B = Asm()
    sCur, sNext, sFree, sFl = sL, sL + 1, sL + 2, sL + 5
    B(f"""v_mov_b32 {vNon}, s{sNonce}
    v_mov_b32 {vZero}, 0
    v_bfe_u32 {T[0]}, {vL}, 4, 1
    v_and_b32 {T[1]}, 15, {vL}
    v_lshrrev_b32 {T[2]}, 5, {vL}
    v_lshl_add_u32 {T[1]}, {T[2]}, 4, {T[1]}
    v_lshlrev_b32 {T[1]}, 4, {T[1]}
    v_lshl_add_u32 {vQP}, {T[0]}, 10, {T[1]}""")
    S_PF, sPF = S_E, 8
    pfop = [VM(f"buffer_load_dword a252, {vPF}, {srd(S_PF)}, s{sPF} offen", "PF"), f"s_add_u32 s{sPF}, s{sPF}, 0x100000"] if PF else []
    B("s_waitcnt vmcnt(1)")
    W32 = NEG[0]; X32 = NEG[1]; GX = S[0].sub(0, 8); GW = S[0].sub(8, 8)
    R2 = range(2)
    for k in range(8): B(f"v_accvgpr_read_b32 {GW[k]}, {GWa[k]}")
    for k in range(8): B(f"v_lshlrev_b32 {W32[2*k]}, 16, {GW[k]}\nv_and_b32 {W32[2*k+1]}, 0xffff0000, {GW[k]}")
    B(f"v_mov_b32 {T[8]}, 0x3f803f80")
    for r in R2:
        for k in range(8): B(f"v_accvgpr_read_b32 {GX[k]}, {GXa[r][k]}")
        for k in range(8): B(f"v_lshlrev_b32 {X32[2*k]}, 16, {GX[k]}\nv_and_b32 {X32[2*k+1]}, 0xffff0000, {GX[k]}")
        for k in range(8): B(f"v_pk_mul_f32 {X32.sub(2*k,2)}, {X32.sub(2*k,2)}, {W32.sub(2*k,2)}")
        for k in range(8): B(f"v_cvt_pk_bf16_f32 {X32[k]}, {X32[2*k]}, {X32[2*k+1]}")
        B(f"v_mov_b32 {T[4+r]}, 0")
        for k in range(8): B(f"v_dot2_f32_bf16 {T[4+r]}, {X32[k]}, {T[8]}, {T[4+r]}")
    B("s_nop 2")
    for sh in (8, 4, 2, 1):
        for r in R2: B(f"v_add_f32_dpp {T[4+r]}, {T[4+r]}, {T[4+r]} row_ror:{sh} row_mask:0xf bank_mask:0xf")
        B("s_nop 0")
    for sw in ("16", "32"):
        for r in R2: B(f"v_mov_b32 {T[8+r]}, {T[4+r]}")
        B("s_nop 0")
        for r in R2: B(f"v_permlane{sw}_swap_b32 {T[4+r]}, {T[8+r]}")
        for r in R2: B(f"v_add_f32 {T[4+r]}, {T[4+r]}, {T[8+r]}")
    for r in R2: B(f"v_cvt_pk_bf16_f32 {T[4+r]}, {T[4+r]}, {T[4+r]}")
    for r in R2: B(f"v_and_b32 {T[4+r]}, 0xffff0000, {T[4+r]}")
    for r in R2: B(f"v_mul_f32 {T[4+r]}, {f2u(-LOG2E):#x}, {T[4+r]}")
    for r in R2: B(f"v_exp_f32 {T[4+r]}, {T[4+r]}")
    B("s_nop 0")
    for r in R2: B(f"v_add_f32 {T[4+r]}, 1.0, {T[4+r]}")
    for r in R2: B(f"v_rcp_f32 {T[4+r]}, {T[4+r]}")
    B("s_nop 0")
    for r in R2: B(f"v_cvt_pk_bf16_f32 {T[4+r]}, {T[4+r]}, {T[4+r]}")
    for r in R2: B(f"v_and_b32 {T[4+r]}, 0xffff0000, {T[4+r]}")
    B(f"""s_lshl_b32 s{sT2}, s{sRB}, 5
    s_add_u32 s{sT2}, s{sT2}, s{sCB}
    s_lshl_b32 s{sT2}, s{sT2}, 2
    s_add_u32 s{sT2}, s{sT2}, s{sW}
    s_lshl_b32 s{sT2}, s{sT2}, 3
    s_add_u32 s{sT2}, s{sT2}, {G_OFF}
    s_mov_b64 exec, 1
    buffer_store_dwordx2 {T.sub(4,2)}, {vZero}, {srd(S_WS)}, s{sT2} offen sc1
    s_mov_b64 exec, -1""")
    for ab in range(2):
        for r in range(16): B(f"v_mov_b32 {O[ab][r]}, 0")
        for r in range(4): B(f"v_mov_b32 {Lc[ab][r]}, 0")
    for r in range(8): B(f"v_mov_b32 {P[1][r]}, 0")
    for t in range(2):
        for r in range(4): B(f"v_accvgpr_write_b32 {V[1][t][r]}, 0")
    B(f"""v_lshrrev_b32 {T[4]}, 2, {vL}
    v_lshrrev_b32 {T[5]}, 4, {vL}
    v_xor_b32 {T[4]}, {T[4]}, {T[5]}
    v_and_b32 {T[4]}, 1, {T[4]}
    v_cmp_eq_u32 vcc, 0, {T[4]}
    v_mov_b32 {T[5]}, 0x3f803f80
    v_mov_b32 {vCur}, {vL16}
    v_cndmask_b32 {T[5]}, 0, {T[5]}, vcc
    v_add_u32 {vNxt}, 32768, {vL16}""")
    for r in range(4): B(f"v_accvgpr_write_b32 {ONES[r]}, {T[5]}")
    B(f"""s_mov_b32 s{sCur}, 0
    s_mov_b32 s{sNext}, 32768
    s_mov_b32 s{sFree}, 65536
    s_lshl_b32 s{sFl}, s{sRB}, 2
    s_add_u32 s{sFl}, s{sFl}, s{sW}
    s_lshl_b32 s{sFl}, s{sFl}, 5
    s_add_u32 s{sFl}, s{sFl}, s{sCB}
    s_lshl_b32 s{sFl}, s{sFl}, 2
    s_add_u32 s{sFl}, s{sFl}, {FL_H}
    s_lshl_b32 s{sT1}, s{sRB}, 3
    s_lshr_b32 s{sT2}, s{sCB}, 2
    s_add_u32 s{sT1}, s{sT1}, s{sT2}
    s_lshl_b32 s{sT1}, s{sT1}, 2
    s_and_b32 s{sT2}, s{sW}, 2
    s_add_u32 s{sT1}, s{sT1}, s{sT2}
    s_bfe_u32 s{sT2}, s{sCB}, 0x10001
    s_add_u32 s{sT1}, s{sT1}, s{sT2}
    s_lshl_b32 s{sT1}, s{sT1}, 7
    s_add_u32 s{sT1}, s{sT1}, {FL_Q}
    s_lshl_b32 s{sQf}, s{sRB}, 5
    s_add_u32 s{sQf}, s{sQf}, s{sCB}
    s_lshl_b32 s{sQf}, s{sQf}, 2
    s_add_u32 s{sQf}, s{sQf}, s{sW}
    s_lshl_b32 s{sQf}, s{sQf}, 12
    s_add_u32 s{sQf}, s{sQf}, {QF4_OFF}""")
    def check(regs):
        L = [f"v_cmp_eq_u32 vcc, s{sNonce}, {regs[0]}"]
        if len(regs) > 1: L += [f"v_cmp_eq_u32 s[{sT2}:{sT3}], s{sNonce}, {regs[1]}", "s_nop 0", f"s_and_b64 vcc, vcc, s[{sT2}:{sT3}]"]
        else: L += ["s_nop 0"]
        return L + ["s_cmp_eq_u64 vcc, -1"]
    def spin(label, load, regs, back=None):
        L = [f"s_mov_b32 s{sT0}, {SPIN_MAX}", f"{label}_L:", load, "s_waitcnt vmcnt(0)"] + check(regs)
        L += [f"s_cbranch_scc1 {back or label + '_OK'}", f"s_sleep {4 if back else 1}", f"s_sub_u32 s{sT0}, s{sT0}, 1",
              f"s_cmp_lg_u32 s{sT0}, 0", f"s_cbranch_scc1 {label}_L", "s_endpgm"]
        if not back: L.append(f"{label}_OK:")
        return L
    B.ext(ts.at("poll0"))
    B.ext(spin("P2_POLL", f"buffer_load_dword {T[8]}, {vZero}, {srd(S_WS)}, s{sT1} offen sc1", [T[8]]))
    B.ext(ts.at("poll1"))
    for ab in range(2):
        for t in range(2): B(f"buffer_load_dwordx4 {Q[ab][t]}, {vQP}, {srd(S_WS)}, s{sQf} offen offset:{ab*2048 + t*512} {SC1}")
    B("s_barrier")
    def kvdma(slot, tag):
        L = []
        for e in range(8):
            pre = []
            if e == 0: pre = [f"s_add_u32 m0, s{slot}, s{sM0}"]
            if e == 4: pre = [f"s_add_u32 s{sT0}, s{slot}, s{sM0}", f"s_add_u32 m0, s{sT0}, 4096", f"s_add_u32 s{sKVo}, s{sKVo}, 4096"]
            L.append((pre, VM(f"buffer_load_dwordx4 {vL16}, {srd(S_KVD)}, s{sKVo} offen offset:{(e&3)*1024} {SC1} lds", tag)))
        return L
    post_dma = f"s_add_u32 s{sKVo}, s{sKVo}, {32768 - 4096}"
    B(f"""ds_read_b128 {K[0][0]}, {vCur}
    ds_read_b128 {K[0][1]}, {vCur} offset:1024
    ds_read_b128 {V[0][0]}, {vCur} offset:2048
    ds_read_b128 {V[0][1]}, {vCur} offset:3072""")
    hist = list(S15) + list(B.lines)
    B(f"""s_waitcnt vmcnt(0) lgkmcnt(0)
    v_mfma_f32_32x32x16_bf16 {S[0]}, {K[0][0]}, {Q[0][0]}, 0
    v_mfma_f32_32x32x16_bf16 {S[0]}, {K[0][1]}, {Q[0][1]}, {S[0]}""")
    B.ext(ts.at("att"))
    B("s_nop 7\ns_nop 3")
    probs += check_hazards(B.lines, "p2pro")
    A.ext(B.lines)

    NS = 4
    S_AF, S_W3, S_OUT = S_A, S_B, S_D
    sMT, sNT = sL + 6, sL + 7
    sAo = sL + 8
    sSo3 = sL + 9
    sM3 = sL + 13
    sWo, sWoN = 30, 15
    setup3 = Asm()
    setup3(f"""s_and_b32 s{sT0}, s{sCB}, 1
    s_lshl_b32 s{sMT}, s{sRB}, 1
    s_add_u32 s{sMT}, s{sMT}, s{sT0}
    s_lshr_b32 s{sT0}, s{sCB}, 3
    s_lshl_b32 s{sT0}, s{sT0}, 2
    s_bfe_u32 s{sT1}, s{sCB}, 0x20001
    s_add_u32 s{sNT}, s{sT0}, s{sT1}
    s_lshl_b32 s{sT0}, s{sNT}, 7
    s_add_u32 s{S_W3}, s{P_WD}, s{sT0}
    s_addc_u32 s{S_W3+1}, s{P_WD+1}, 0
    s_sub_u32 s{S_W3+2}, {3584*2048}, s{sT0}
    s_add_u32 s{sWo}, s{P_WO}, s{sT0}
    s_addc_u32 s{sWo+1}, s{P_WO+1}, 0
    s_sub_u32 s{sWoN}, {1024*2048}, s{sT0}
    s_mov_b32 s{S_AF}, s{P_WS}
    s_mov_b32 s{S_AF+1}, s{P_WS+1}
    s_mov_b32 s{S_AF+2}, {AF_SIZE3}
    s_mov_b32 s{S_OUT}, s{P_OUT}
    s_mov_b32 s{S_OUT+1}, s{P_OUT+1}
    s_mov_b32 s{S_OUT+2}, 0x400000
    s_mul_i32 s{sAo}, s{sW}, {AFS}
    s_lshl_b32 s{sT0}, s{sMT}, 13
    s_add_u32 s{sAo}, s{sAo}, s{sT0}
    s_add_u32 s{sAo+1}, s{sAo}, 4096
    s_lshl_b32 s{sM3}, s{sW}, 14
    s_add_u32 s{sM3}, s{sM3}, {W3B}""")
    for e in range(1, 4): setup3(f"s_mov_b32 s{sSo3+e}, {e*16384 - e*1024}")
    setup3v = Asm()
    setup3v(f"""v_lshrrev_b32 {T[0]}, 3, {vL}
    v_lshrrev_b32 {T[1]}, 4, {vL}
    v_lshlrev_b32 {T[2]}, 1, {T[1]}
    v_and_b32 {T[3]}, 7, {vL}
    v_xor_b32 {T[2]}, {T[2]}, {T[3]}
    v_lshlrev_b32 {T[2]}, 4, {T[2]}
    v_lshl_add_u32 {vW3o}, {T[0]}, 11, {T[2]}
    s_lshl_b32 s{sT0}, s{sW}, 16
    v_add_u32 {vW3o}, s{sT0}, {vW3o}
    v_lshrrev_b32 {T[0]}, 2, {vL}
    v_bfe_u32 {T[1]}, {vL}, 3, 2
    v_and_b32 {T[2]}, 3, {vL}
    v_lshlrev_b32 {T[2]}, 3, {T[2]}
    v_lshl_add_u32 {T[2]}, {T[0]}, 7, {T[2]}
    v_add_u32 {T[2]}, s{sM3}, {T[2]}""")
    for i in range(4): setup3v(f"v_xor_b32 {T[3]}, {i}, {T[1]}\nv_lshl_add_u32 {vW3a[i]}, {T[3]}, 5, {T[2]}")
    setup3v(f"""v_lshlrev_b32 {T[4]}, 3, {vL}
    v_lshlrev_b32 {T[5]}, 2, {vL}
    v_and_b32 {T[6]}, 31, {vL}
    v_lshlrev_b32 {T[6]}, 2, {T[6]}
    v_and_b32 {T[7]}, 15, {vL}
    v_lshlrev_b32 {T[7]}, 2, {T[7]}""")
    zero3 = [f"v_mov_b32 {acc3[i][j][r]}, 0" for i in range(4) for j in range(8) for r in range(4)]
    def w3dma(slot, e):
        m0 = f"s_add_u32 m0, s{sM3}, {slot*4096}"
        return m0, VM(f"buffer_load_dwordx4 {vW3o}, {srd(S_W3)}, {'0' if e == 0 else 's%d' % (sSo3+e)} offen offset:{e*1024} {opt.get('w3nt', '')} lds", ("W", slot))
    def xload(slot, j):
        return VM(f"buffer_load_dwordx4 {RX[slot][j]}, {vL16}, {srd(S_AF)}, s{sAo + (j>>2)} offen offset:{(j&3)*1024} {SC1}", ("X", slot))
    adv3 = [f"v_add_u32 {vW3o}, {4*65536}, {vW3o}", f"s_add_u32 s{sAo}, s{sAo}, {4*AFS}", f"s_add_u32 s{sAo+1}, s{sAo+1}, {4*AFS}"]
    def wread(slot, s):
        return [f"ds_read_b64_tr_b16 {RW[s][i].sub(2*hf,2)}, {vW3a[i]} offset:{slot*4096 + hf*2048}" for i in range(4) for hf in range(2)]
    def gm(s, j, i, first=False): return f"v_mfma_f32_16x16x32_bf16 {acc3[i][j]}, {RW[s&1][i]}, {RX[s][j]}, {0 if first else acc3[i][j]}"

    def att_parts(ab, kq, vp):
        o = ab ^ 1
        M = [f"v_mfma_f32_32x32x16_bf16 {S[o]}, {K[kq][0]}, {Q[o][0]}, 0",
             f"v_mfma_f32_32x32x16_bf16 {S[o]}, {K[kq][1]}, {Q[o][1]}, {S[o]}",
             f"v_mfma_f32_32x32x16_bf16 {O[o]}, {V[vp][0]}, {P[o].sub(0,4)}, {O[o]}",
             f"v_mfma_f32_16x16x32_bf16 {Lc[o]}, {ONES}, {P[o].sub(0,4)}, {Lc[o]}",
             f"v_mfma_f32_32x32x16_bf16 {O[o]}, {V[vp][1]}, {P[o].sub(4,4)}, {O[o]}",
             f"v_mfma_f32_16x16x32_bf16 {Lc[o]}, {ONES}, {P[o].sub(4,4)}, {Lc[o]}"]
        ex = [f"v_exp_f32 {S[ab][r]}, {S[ab][r]}" for r in range(16)]
        cv = [f"v_cvt_pk_bf16_f32 {P[ab][r]}, {S[ab][2*r]}, {S[ab][2*r+1]}" for r in range(8)]
        return M, ex, cv
    def phase_plain(ab, kq, vp, extra):
        M, ex, cv = att_parts(ab, kq, vp)
        vl = []
        for r in range(16):
            vl.append(ex[r])
            if r >= 3 and r % 2 == 1: vl.append(cv[(r - 3)//2])
        vl.append(cv[7])
        mpos = [0, 4, 8, 12, 15, 19]
        out = []; mi = 0
        for i, v in enumerate(vl):
            while mi < 6 and mpos[mi] == i:
                out.append(M[mi]); out.extend(extra.get(mi, [])); mi += 1
            out.append(v)
        return out
    def phase_merged(ab, kq, vp, G8, extra):
        M, ex, cv = att_parts(ab, kq, vp)
        order = [M[0], G8[0], M[1], G8[1], G8[2], M[2], G8[3], M[3], G8[4], M[4], G8[5], M[5], G8[6], G8[7]]
        e, c = ex, cv
        fill = [[e[0], e[1], e[2]], [e[3]], [e[4], e[5], e[6]], [c[0], c[1]], [e[7]], [e[8], e[9], e[10]], [c[2], c[3]], [e[11]],
                [c[4]], [e[12], e[13], e[14]], [e[15]], [c[5], c[6]], [c[7]], []]
        out = []
        for k in range(14):
            out.append(order[k]); out.extend(extra.get(k, [])); out.extend(fill[k])
        return out
    def chunk(kind, hook=None, first=False, pfok=True):
        out = []
        dl = kvdma(sFree, "KV")
        mer = kind == "merged"
        sl = dict(k0=1, k1=2, kv=5, kvpre=4) if not mer else dict(k0=2, k1=5, kv=9, kvpre=7)
        for pi in range(16):
            tau, ab = pi >> 1, pi & 1
            kp = tau & 1
            ex = {}; pre = []
            if ab == 0:
                src = (vCur, (tau+1)*4096) if tau < 7 else (vNxt, 0)
                ld = [f"ds_read_b128 {K[kp^1][t]}, {src[0]} offset:{src[1] + t*1024}" for t in range(2)]
                if tau == 7: put(ex, 0, [Need(["KV"], "lgkmcnt(0)"), "s_barrier"])
            else:
                src = (vCur, (tau+1)*4096 + 2048) if tau < 7 else (vNxt, 2048)
                ld = [f"ds_read_b128 {V[kp^1][t]}, {src[0]} offset:{src[1] + t*1024}" for t in range(2)]
                pre = ["s_waitcnt lgkmcnt(0)"]
            put(ex, sl["k0"], ld[0]); put(ex, sl["k1"], ld[1])
            if pi < 8:
                pp, d = dl[pi]
                if mer and not pp: pp = [f"s_add_u32 s{sT0}, s{sFree}, s{sM0}", f"s_add_u32 m0, s{sT0}, {(pi>>2)*4096}"]
                if pp: put(ex, sl["kvpre"], pp)
                put(ex, sl["kv"], d)
                if pi == 7: put(ex, sl["kv"], post_dma)
            if pi == 15:
                put(ex, sl["kv"], [f"s_mov_b32 s{sT0}, s{sCur}", f"s_mov_b32 s{sCur}, s{sNext}", f"s_mov_b32 s{sNext}, s{sFree}", f"s_mov_b32 s{sFree}, s{sT0}",
                                   f"s_add_u32 s{sIt}, s{sIt}, 1"])
            if mer:
                s, q = pi >> 2, pi & 3
                G8 = [gm(s, 2*q + jj, i, first and s == 0) for jj in range(2) for i in range(4)]
                if q == 0: pre = [Need([("W", (s+1) % NS), ("X", s)], "lgkmcnt(0)")]
                m0, d = w3dma(s, q)
                put(ex, 0, m0); put(ex, 1, d)
                rd = wread((s+1) % NS, (s+1) & 1)
                put(ex, 3, rd[2*q]); put(ex, 10, rd[2*q+1])
                put(ex, 8, xload(s, 2*q)); put(ex, 13, xload(s, 2*q+1))
                if q == 3: put(ex, 13, adv3)
            if pi == 9 and PF and pfok:
                put(ex, 4, pfop)
                if mer: put(ex, 6, [f"s_cmp_eq_u32 s{sIt}, 5", f"s_cselect_b32 s{sPF}, 0, s{sPF}", f"s_cselect_b32 s{S_PF}, s{P_WO}, s{S_PF}",
                                    f"s_cselect_b32 s{S_PF+1}, s{P_WO+1}, s{S_PF+1}", f"s_cselect_b32 s{S_PF+2}, 0x200000, s{S_PF+2}"])
            if pi % 8 == 6: put(ex, 5, tr_issue())
            if pi % 8 == 7: pre = pre + tr_commit()
            if hook: hook(pi, ex, pre)
            if mer: out += pre + phase_merged(ab, kp ^ ab, kp ^ 1 ^ ab, G8, ex)
            else: out += pre + phase_plain(ab, kp ^ ab, kp ^ 1 ^ ab, ex)
        out += [f"v_add_u32 {vCur}, s{sCur}, {vL16}", f"v_add_u32 {vNxt}, s{sNext}, {vL16}"]
        return out

    def hook0(pi, ex, pre):
        HS = opt.get("hs_rate", 2)
        for k in range(HS):
            n = pi*HS + k
            if n < 8: put(ex, [3, 0][k], hst0[n])
            elif n < 16:
                j = n - 8
                put(ex, [3, 0][k], hst1a[j])
    c0 = chunk("plain", hook0, pfok=False)
    HFP = opt.get("hflag_phase", 10)
    def hook1(pi, ex, pre):
        if pi == 0 and PF:
            put(ex, 0, [f"s_lshl_b32 s{sT1}, s2, 2", f"s_add_u32 s{sT1}, s{sT1}, s{sW}", f"s_lshl_b32 s{sT1}, s{sT1}, 10",
                        f"v_lshrrev_b32 {vPF}, 3, {vL}", f"v_lshlrev_b32 {vPF}, 7, {vPF}", f"v_add_u32 {vPF}, s{sT1}, {vPF}",
                        f"s_mov_b32 s{S_PF}, s{P_WD}", f"s_mov_b32 s{S_PF+1}, s{P_WD+1}", f"s_mov_b32 s{S_PF+2}, {3584*2048}", f"s_mov_b32 s{sPF}, 0"] + pfop)
        if pi == 4: put(ex, 2, pfop)
        if pi == 0: put(ex, 3, setup3.lines[:14])
        if pi == 1: put(ex, 3, setup3.lines[14:])
        if pi == 2: put(ex, 3, setup3v.lines)
        if pi >= 8:
            for k in range(2):
                s_, e_ = divmod((pi - 8)*2 + k, 4)
                m0, d = w3dma(s_, e_)
                put(ex, 2*k + 1, ([m0, "s_nop 0"] if e_ == 0 else []) + [d] + ([adv3[0]] if e_ == 3 else []))
        if pi == HFP:
            put(ex, 4, [Need(["H"]), "s_mov_b64 exec, 1", VM(f"buffer_store_dword {vNon}, {vZero}, {srd(S_WS)}, s{sFl} offen sc1", "HF"), "s_mov_b64 exec, -1", "s_nop 2"])
    c1 = chunk("plain", hook1)
    def retag(ch, cur, need):
        out = []
        for l in ch:
            if isinstance(l, VM) and l.tag == "KV": out.append(VM(l, cur))
            elif isinstance(l, Need) and "KV" in l.tags: out.append(Need([need], l.extra))
            else: out.append(l)
        return out
    hpoll = f"buffer_load_dwordx2 {vFl}, {T[4]}, {srd(S_WS)}, s{sT1} offen sc1"
    HP = opt.get("hpoll_phase", 4)
    def hook2(pi, ex, pre):
        if pi == HP: put(ex, 3, [f"s_lshl_b32 s{sT1}, s{sRB}, 9", f"s_add_u32 s{sT1}, s{sT1}, {FL_H}", VM(hpoll, "HP")])
        if pi == 7:
            put(ex, 3, [Need(["HP"])] + check([vFl[0], vFl[1]]) + ["s_cbranch_scc0 P3_SLOWH", "P3_HOK:"])
            put(ex, 4, [f"s_lshl_b32 s{sT2}, s{sRB}, 10", f"s_lshl_b32 s{sT3}, s{sW}, 8", f"s_add_u32 s{sT2}, s{sT2}, s{sT3}", f"s_add_u32 s{sT2}, s{sT2}, {G_OFF}",
                        f"s_lshl_b32 s{sT3}, s{sMT}, 9", f"s_add_u32 s{sT3}, s{sT3}, {G_OFF}"])
        if pi == 8:
            put(ex, 0, [VM(f"buffer_load_dword {vG[ab]}, {T[6]}, {srd(S_WS)}, s{sT2} offen offset:{ab*128} sc1", "G") for ab in range(2)])
            put(ex, 1, [VM(f"buffer_load_dword {SCL[j]}, {T[7]}, {srd(S_WS)}, s{sT3} offen offset:{j*64} sc1", "G") for j in range(8)])
        if pi >= 8:
            for k in range(4):
                s_, j_ = divmod((pi - 8)*4 + k, 8)
                put(ex, [2, 3, 4, 5][k], [xload(s_, j_)] + (adv3[1:] if j_ == 7 else []))
        if pi == 15:
            put(ex, 5, [Need([("W", 0)])] + wread(0, 0))
    c2 = chunk("plain", hook2)
    c0 = retag(c0, "KV0", "KVP"); c1 = retag(c1, "KV1", "KV0"); c2 = retag(c2, "KV2", "KV1")
    hist = [VM(l, "KVP") if isinstance(l, VM) and l.tag == "KV" else l for l in hist]
    c0 = resolve_waits(c0, hist); c1 = resolve_waits(c1, hist + c0); c2 = resolve_waits(c2, hist + c0 + c1)
    mA = retag(chunk("merged"), "KVa", "KVb"); mB = retag(chunk("merged"), "KVb", "KVa")
    mres = resolve_waits(mA, mB)
    M = mres
    M0 = resolve_waits(retag(chunk("merged", first=True), "KVb", "KV2"), hist + c0 + c1 + c2)
    probs += verify_waits(hist + c0 + c1 + c2 + M0 + M, len(hist + c0 + c1 + c2 + M0), "M0->M")
    D = Asm()
    D(f"s_mov_b32 s{sIt}, 0")
    D.ext(c0); D.ext(ts.at("c1")); D.ext(c1); D.ext(ts.at("c2")); D.ext(c2); D.ext(ts.at("m")); D.ext(M0)
    D(".p2align 6\nP2_MLOOP:")
    D.ext(M)
    D(f"s_cmp_lt_u32 s{sIt}, 8\ns_cbranch_scc1 P2_MLOOP")
    probs += check_hazards(B.lines[-8:] + c0 + c1 + c2 + M0 + M + M, "att")
    A.ext(D.lines)

    C = Asm()
    C.ext(ts.at("attend"))
    C(f"""v_mfma_f32_32x32x16_bf16 {O[1]}, {V[1][0]}, {P[1].sub(0,4)}, {O[1]}
    v_mfma_f32_16x16x32_bf16 {Lc[1]}, {ONES}, {P[1].sub(0,4)}, {Lc[1]}
    v_mfma_f32_32x32x16_bf16 {O[1]}, {V[1][1]}, {P[1].sub(4,4)}, {O[1]}
    v_mfma_f32_16x16x32_bf16 {Lc[1]}, {ONES}, {P[1].sub(4,4)}, {Lc[1]}""")
    C(f"v_mov_b32 {T[1]}, 0")
    for r in range(16): C(f"v_fmac_f32 {T[1]}, 0, {O[0][r]}")
    for r in range(16): C(f"v_fmac_f32 {T[1]}, 0, {O[1][r]}")
    C(f"""s_mov_b32 s{sT0}, {f2u(2.0**-60):#x}
    s_mov_b32 s{sT1}, {f2u(2.0**100):#x}
    v_cmp_le_f32 vcc, s{sT0}, {Lc[0][0]}
    v_cmp_le_f32 s[{S_C}:{S_C+1}], s{sT0}, {Lc[1][0]}
    s_nop 1
    s_and_b64 vcc, vcc, s[{S_C}:{S_C+1}]
    v_cmp_ge_f32 s[{S_C}:{S_C+1}], s{sT1}, {Lc[0][0]}
    v_cmp_ge_f32 s[{sT2}:{sT3}], s{sT1}, {Lc[1][0]}
    s_nop 1
    s_and_b64 vcc, vcc, s[{S_C}:{S_C+1}]
    s_and_b64 vcc, vcc, s[{sT2}:{sT3}]
    v_cmp_eq_f32 s[{S_C}:{S_C+1}], 0, {T[1]}
    s_nop 1
    s_and_b64 vcc, vcc, s[{S_C}:{S_C+1}]
    s_cmp_eq_u64 vcc, -1""")
    if opt.get("force_fallback"): C("s_branch P2_FALLBACK")
    C("s_cbranch_scc0 P2_FALLBACK")
    C("P2_FINISH:")
    for ab in range(2): C(f"v_rcp_f32 {T[2*ab]}, {Lc[ab][0]}")
    C(f"""s_add_u32 s{sT0}, s{sCB}, 112
    s_mul_i32 s{sT0}, s{sT0}, {AFS}
    s_lshl_b32 s{sT1}, s{sRB}, 14
    s_add_u32 s{sT0}, s{sT0}, s{sT1}
    s_lshl_b32 s{sT1}, s{sW}, 12
    s_add_u32 s{sT0}, s{sT0}, s{sT1}""")
    for ab in range(2): C(f"v_mul_f32 {T[2*ab]}, {T[2*ab]}, {vG[ab]}")
    for ab in range(2):
        for r in range(0, 16, 2):
            C(f"v_pk_mul_f32 {O[ab].sub(r,2)}, {O[ab].sub(r,2)}, {T.sub(2*ab,2)} op_sel_hi:[1,0]")
        for r in range(8): C(f"v_cvt_pk_bf16_f32 {S[ab][r]}, {O[ab][2*r]}, {O[ab][2*r+1]}")
        for c in range(2):
            C(VM(f"buffer_store_dwordx4 {S[ab].sub(4*c,4)}, {vQP}, {srd(S_WS)}, s{sT0} offen offset:{ab*2048 + c*512} {SC1}", "O"))
    for j in range(8): C(f"v_sub_f32 {SCL[j]}, 1.0, {SCL[j]}")
    for j in range(8): C(f"v_cvt_pk_bf16_f32 {SCL[j]}, {SCL[j]}, {SCL[j]}")
    for j in range(8): C(f"v_and_b32 {SCL[j]}, 0xffff0000, {SCL[j]}")
    sFC = sL
    C(f"""s_lshl_b32 s{sFC}, s{sMT}, 8
    s_add_u32 s{sFC}, s{sFC}, {FL_O}
    s_add_u32 s{sFl}, s{sFl}, {FL_O - FL_H}""")
    C.ext(ts.at("tail"))
    def p3iter(hook=None):
        out = []
        for s in range(NS):
            m = [gm(s, j, i) for j in range(8) for i in range(4)]
            f = {}
            f[-1] = [Need([("W", (s+1) % NS), ("X", s)], "lgkmcnt(0)"), w3dma(s, 0)[0]]
            dgap = [0, 6, 14, 22]
            for e in range(4): put(f, dgap[e], w3dma(s, e)[1])
            for k, r in enumerate(wread((s + 1) % NS, (s+1) & 1)): put(f, 1 + 3*k, r)
            for j in range(8): put(f, 4*j + 3 + (1 if j < 7 else 0), xload(s, j))
            put(f, 31, adv3)
            put(f, 28, tr_issue())
            if trace: f[-1] = f[-1][:1] + tr_commit() + f[-1][1:]
            if hook: hook(s, f)
            out += interleave(m, f)
        return out
    opoll = f"buffer_load_dword {vFl[0]}, {T[5]}, {srd(S_WS)}, s{sFC} offen sc1"
    OFS, OPS = opt.get("oflag_step", 2), opt.get("opoll_step", 3)
    def hookT(s, f):
        if s == OFS: put(f, 10, [Need(["O"]), "s_mov_b64 exec, 1", VM(f"buffer_store_dword {vNon}, {vZero}, {srd(S_WS)}, s{sFl} offen sc1", "OF"), "s_mov_b64 exec, -1", "s_nop 2"])
        if s == OPS: put(f, 26, VM(opoll, "OP"))
    T5 = resolve_waits(p3iter(hookT), M + M + C.lines)
    L3 = resolve_waits(p3iter())
    mid = [Need(["OP"])] + check([vFl[0]]) + ["s_cbranch_scc0 P3_SLOWO", "P3_OOK:",
           f"s_mov_b32 s{S_W3}, s{sWo}", f"s_mov_b32 s{S_W3+1}, s{sWo+1}", f"s_mov_b32 s{S_W3+2}, s{sWoN}",
           f"v_subrev_u32 {vW3o}, {28*4*65536}, {vW3o}", f"s_mov_b32 s{sIt}, 6"]
    mid = resolve_waits(mid, T5)
    probs += verify_waits(M + C.lines + T5 + mid + L3, len(M + C.lines + T5 + mid), "T5->L3")
    tail = [f"s_add_u32 s{sIt}, s{sIt}, 1", f"s_cmp_eq_u32 s{sIt}, 8", "s_cbranch_scc1 P3_LOOP",
            f"s_cmp_eq_u32 s{sIt}, 9", "s_cbranch_scc1 P3_DONE", "s_nop 7"]
    for i in range(4):
        for j in range(8):
            for r in (0, 2):
                tail.append(f"v_pk_mul_f32 {acc3[i][j].sub(r,2)}, {acc3[i][j].sub(r,2)}, {SCL.sub(j & ~1, 2)} op_sel:[0,{j&1}] op_sel_hi:[1,{j&1}]")
    tail += ["s_nop 0", "s_branch P3_LOOP", "P3_DONE:"]
    probs += check_hazards(M[-30:] + C.lines + T5 + mid + L3 + tail + L3, "tail") + check_hazards(L3 + L3, "l3")
    C.ext(T5); C.ext(ts.at("t5end")); C.ext(mid); C.ext(ts.at("l3"))
    C(".p2align 6\nP3_LOOP:")
    C.ext(L3); C.ext(tail); C.ext(ts.at("l3end"))
    C(f"""v_add_u32 {T[0]}, 0x10000, {vL16}
    v_and_b32 {T[1]}, 15, {vL}
    v_lshlrev_b32 {T[1]}, 11, {T[1]}
    v_bfe_u32 {T[2]}, {vL}, 4, 1
    v_lshl_add_u32 {T[1]}, {T[2]}, 5, {T[1]}
    v_lshrrev_b32 {T[2]}, 5, {vL}
    v_lshl_add_u32 {T[1]}, {T[2]}, 4, {T[1]}
    s_lshl_b32 s{sT0}, s{sMT}, 18
    s_lshl_b32 s{sT1}, s{sW}, 16
    s_add_u32 s{sT0}, s{sT0}, s{sT1}
    s_lshl_b32 s{sT1}, s{sNT}, 7
    s_add_u32 s{sT0}, s{sT0}, s{sT1}
    s_add_u32 s{sT1}, s{sT0}, 32768
    s_barrier""")
    for w in range(3): C(f"s_cmp_eq_u32 s{sW}, {w}\ns_cbranch_scc1 P3_RED{w}")
    A.ext(C.lines)
    def red(w):
        R = Asm()
        R(f"P3_RED{w}:")
        def adr(off): return (vL16, off) if off < 65536 else (T[0], off - 65536)
        for d in range(4):
            if d == w: continue
            q = (w - d - 1) & 3
            for jj in range(2):
                for i in range(4):
                    b_, off = adr((d*3 + q)*8192 + (jj*4 + i)*1024)
                    R(f"ds_write_b128 {b_}, {acc3[i][2*d+jj]} offset:{off}")
        R("s_waitcnt lgkmcnt(0)\ns_barrier")
        R.ext(ts.at("redw", True))
        free = [acc3[i][j] for j in range(8) if j // 2 != w for i in range(4)]
        k = 0
        for q in range(3):
            for jj in range(2):
                for i in range(4):
                    b_, off = adr((w*3 + q)*8192 + (jj*4 + i)*1024)
                    R(f"ds_read_b128 {free[k]}, {b_} offset:{off}"); k += 1
        for q in range(3):
            R(f"s_waitcnt lgkmcnt({[15, 8, 0][q]})")
            for jj in range(2):
                for i in range(4):
                    a = acc3[i][2*w+jj]; b = free[q*8 + jj*4 + i]
                    for r in (0, 2): R(f"v_pk_add_f32 {a.sub(r,2)}, {a.sub(r,2)}, {b.sub(r,2)}")
        for jj in range(2):
            for ip in range(2):
                X, Y = acc3[2*ip][2*w+jj], acc3[2*ip+1][2*w+jj]
                Dd = S[0].sub(4*(jj*2+ip), 4)
                R(f"v_cvt_pk_bf16_f32 {Dd[0]}, {X[0]}, {X[1]}\nv_cvt_pk_bf16_f32 {Dd[1]}, {X[2]}, {X[3]}")
                R(f"v_cvt_pk_bf16_f32 {Dd[2]}, {Y[0]}, {Y[1]}\nv_cvt_pk_bf16_f32 {Dd[3]}, {Y[2]}, {Y[3]}")
                R(f"s_nop 1\nv_permlane16_swap_b32 {Dd[0]}, {Dd[2]}\nv_permlane16_swap_b32 {Dd[1]}, {Dd[3]}")
                R(f"buffer_store_dwordx4 {Dd}, {T[1]}, {srd(S_OUT)}, s{sT0+jj} offen offset:{ip*64}")
        if trace:
            R(f"""s_waitcnt vmcnt(0)
            s_memrealtime s[100:101]
            s_waitcnt lgkmcnt(0)
            s_lshl_b64 exec, 1, s81
            v_mov_b32 v0, s100
            s_mov_b64 exec, -1
            s_lshl_b32 s80, s2, 2
            s_add_u32 s80, s80, s{sW}
            s_lshl_b32 s80, s80, 8
            s_add_u32 s80, s80, {TS_OFF}
            v_lshlrev_b32 {T[3]}, 2, {vL}
            buffer_store_dword v0, {T[3]}, {srd(S_WS)}, s80 offen
            s_waitcnt vmcnt(0) ; TRACE""")
        R.ext(ts.flush(S_WS, sW, S[1].base))
        R("s_endpgm")
        return R
    for w in (3, 0, 1, 2):
        R = red(w)
        probs += check_hazards(L3[-10:] + C.lines[-22:] + R.lines, f"p3red{w}")
        A.ext(R.lines)
    A.ext(slow1.lines); A.ext(ool.lines)
    A("P3_SLOWH:"); A.ext(spin("P3_SH", hpoll, [vFl[0], vFl[1]], "P3_HOK"))
    A("P3_SLOWO:"); A.ext(spin("P3_SO", opoll, [vFl[0]], "P3_OOK"))

    F = Asm()
    F("P2_FALLBACK:")
    for ab in range(2): F(f"v_mov_b32 {T[ab]}, 0xff800000")
    F(f"s_mov_b32 s{sT0}, {KV_OFF}")
    F("P2_FB1:")
    for t in range(2): F(f"buffer_load_dwordx4 {K[0][t]}, {vL16}, {srd(S_WS)}, s{sT0} offen offset:{t*1024} {SC1}")
    F("s_waitcnt vmcnt(0)")
    for ab in range(2):
        F(f"v_mfma_f32_32x32x16_bf16 {S[ab]}, {K[0][0]}, {Q[ab][0]}, 0\nv_mfma_f32_32x32x16_bf16 {S[ab]}, {K[0][1]}, {Q[ab][1]}, {S[ab]}")
    F("s_nop 15")
    for ab in range(2):
        for r in range(0, 16, 2): F(f"v_max3_f32 {T[ab]}, {S[ab][r]}, {S[ab][r+1]}, {T[ab]}")
    F(f"s_add_u32 s{sT0}, s{sT0}, 4096\ns_cmp_lt_u32 s{sT0}, {KV_OFF + 262144}\ns_cbranch_scc1 P2_FB1")
    for ab in range(2): F(f"v_mov_b32 {T[2+ab]}, {T[ab]}")
    F("s_nop 1")
    for ab in range(2): F(f"v_permlane32_swap_b32 {T[ab]}, {T[2+ab]}")
    for ab in range(2): F(f"v_max_f32 {T[8+ab]}, {T[ab]}, {T[2+ab]}")
    for ab in range(2):
        for r in range(16): F(f"v_mov_b32 {O[ab][r]}, 0")
        for r in range(4): F(f"v_mov_b32 {Lc[ab][r]}, 0")
    F(f"s_mov_b32 s{sT0}, {KV_OFF}")
    F("P2_FB2:")
    for t in range(2): F(f"buffer_load_dwordx4 {K[0][t]}, {vL16}, {srd(S_WS)}, s{sT0} offen offset:{t*1024} {SC1}")
    for t in range(2): F(f"buffer_load_dwordx4 {V[0][t]}, {vL16}, {srd(S_WS)}, s{sT0} offen offset:{2048 + t*1024} {SC1}")
    F("s_waitcnt vmcnt(0)")
    for ab in range(2):
        F(f"v_mfma_f32_32x32x16_bf16 {S[ab]}, {K[0][0]}, {Q[ab][0]}, 0\nv_mfma_f32_32x32x16_bf16 {S[ab]}, {K[0][1]}, {Q[ab][1]}, {S[ab]}")
    F("s_nop 15")
    for ab in range(2):
        for r in range(16): F(f"v_sub_f32 {S[ab][r]}, {S[ab][r]}, {T[8+ab]}")
        for r in range(16): F(f"v_exp_f32 {S[ab][r]}, {S[ab][r]}")
        F("s_nop 0")
        for r in range(8): F(f"v_cvt_pk_bf16_f32 {P[ab][r]}, {S[ab][2*r]}, {S[ab][2*r+1]}")
    F("s_nop 1")
    for ab in range(2):
        for u_ in range(2):
            F(f"v_mfma_f32_32x32x16_bf16 {O[ab]}, {V[0][u_]}, {P[ab].sub(4*u_,4)}, {O[ab]}")
            F(f"v_mfma_f32_16x16x32_bf16 {Lc[ab]}, {ONES}, {P[ab].sub(4*u_,4)}, {Lc[ab]}")
    F(f"s_add_u32 s{sT0}, s{sT0}, 4096\ns_cmp_lt_u32 s{sT0}, {KV_OFF + 262144}\ns_cbranch_scc1 P2_FB2")
    F("s_nop 15\ns_branch P2_FINISH")
    F("L_END:\ns_endpgm")
    probs += check_hazards(F.lines, "fb")
    A.ext(F.lines)
    for p_ in probs: print("PROBLEM", p_)
    launch = f"; @launch grid=(256,1,1) block=(256,1,1) lds=163840"
    return launch, A.text(), kdesc(NAME, 512, 256)

HDR = open("gated_mix__grouped_kv_mqa__glu_gated_reglu__prompt.s.ref").read().split("; Override launch")[0]
def build(opt=None):
    l, t, d = gen(opt)
    return HDR + l + "\n" + '.amdgcn_target "amdgcn-amd-amdhsa--gfx950"\n.text\n' + t + d
if __name__ == "__main__":
    import sys, json
    out = sys.argv[1] if len(sys.argv) > 1 else "gated_mix__grouped_kv_mqa__glu_gated_reglu__prompt.s"
    opt = json.loads(sys.argv[2]) if len(sys.argv) > 2 else {}
    open(out, "w").write(build(opt))
```

```python
from asmlib import *
from common import *
LOG2E = math.log2(math.e)
NAME = "gated_mix__grouped_kv_mqa__glu_gated_reglu__prompt_kernel"

FL_E = 0x1650000
FL_ES = 4352
FL_Q = 0x1660000
FL_H = 0x1649000
FL_O = 0x164a000
SPIN_MAX = 1 << 20
PW = 7168

def put(f, g, x):
    f.setdefault(g, []).extend(x if isinstance(x, list) else [x])

def gen(opt=None):
    opt = opt or {}
    A = Asm()
    DEF = ["start", "p1", "p1end", "kvdone", "poll0", "poll1", "att", "attend", "tail"]
    tsn = opt.get("ts")
    ts = TSN(DEF if tsn == 1 else tsn, opt.get("tskind", "rt"))
    SC1 = "sc1"
    probs = []
    P_X, P_WQ, P_WK, P_WV, P_WO = 4, 6, 8, 10, 12
    P_WG, P_WU, P_WD, P_GW = 16, 18, 20, 22
    P_OUT, P_DBG, P_WS = 24, 26, 28
    S_WS, S_A, S_B, S_C, S_D, S_E = 32, 36, 40, 44, 48, 52
    sW, sNonce = 56, 57
    sT0, sT1, sT2, sT3 = 58, 59, 60, 61
    sIt, sRB, sCB = 62, 63, 64
    sL = 65
    vL, vL16 = Reg("v", 1, 1), Reg("v", 2, 1)
    def srd(b): return f"s[{b}:{b+3}]"

    A(f".globl {NAME}\n.p2align 8\n.type {NAME},@function\n{NAME}:")
    A("s_cmp_ge_u32 s2, 256\ns_cbranch_scc1 L_END")
    A.ext(ts.at("start"))
    A(f"""s_load_dwordx8 s[4:11], s[0:1], 0
    s_load_dwordx2 s[12:13], s[0:1], 32
    s_load_dwordx8 s[16:23], s[0:1], 48
    s_load_dwordx4 s[24:27], s[0:1], 80
    s_load_dwordx2 s[28:29], s[0:1], 96
    s_memrealtime s[30:31]
    v_lshrrev_b32 v3, 6, v0
    v_and_b32 {vL}, 63, v0
    v_readfirstlane_b32 s{sW}, v3
    v_lshlrev_b32 {vL16}, 4, {vL}""")
    CPF = opt.get("cpf", 1) and not opt.get("trace")
    sPC = 100
    cpf = VM(f"global_load_dword a253, v0, s[{sPC}:{sPC+1}]", "CP")
    cpa = "v_add_u32 v0, 0x2000, v0"
    def cp(adv=True): return ([cpf] + ([cpa] if adv else [])) if CPF else []
    if CPF:
        A(f"""s_getpc_b64 s[{sPC}:{sPC+1}]
        L_PCREF:
        v_lshlrev_b32 v0, 7, {vL}
        s_sub_u32 s{sPC}, s{sPC}, L_PCREF-{NAME}
        s_subb_u32 s{sPC+1}, s{sPC+1}, 0""")
        A.ext(cp())

    if opt.get("ticket", 0):
        A(f"""s_getreg_b32 s{sT0}, hwreg(HW_REG_XCC_ID)
        s_and_b32 s{sT0}, s{sT0}, 7
        s_cmp_lg_u32 s{sW}, 0
        s_cbranch_scc1 L_TKWAIT
        v_mov_b32 v5, 0
        s_mov_b32 s{sT1}, 8
        s_mov_b32 s{S_WS+2}, 256
        s_mov_b32 s{S_WS+3}, 0x20000
        s_waitcnt lgkmcnt(0)
        s_mov_b32 s{S_WS}, s{P_DBG}
        s_mov_b32 s{S_WS+1}, s{P_DBG+1}
        s_mov_b64 exec, 1
        L_TKTRY:
        v_mov_b32 v4, 1
        s_lshl_b32 s{sT2}, s{sT0}, 5
        buffer_atomic_add v4, v5, {srd(S_WS)}, s{sT2} offen offset:4 sc0
        s_waitcnt vmcnt(0)
        v_readfirstlane_b32 s{sT2}, v4
        s_cmp_lt_u32 s{sT2}, 32
        s_cbranch_scc1 L_TKGOT
        s_add_u32 s{sT0}, s{sT0}, 1
        s_and_b32 s{sT0}, s{sT0}, 7
        s_sub_u32 s{sT1}, s{sT1}, 1
        s_cmp_lg_u32 s{sT1}, 0
        s_cbranch_scc1 L_TKTRY
        s_mov_b32 s{sT2}, 32
        L_TKGOT:
        s_lshl_b32 s{sT2}, s{sT2}, 3
        s_add_u32 s{sT2}, s{sT2}, s{sT0}
        v_mov_b32 v4, s{sT2}
        ds_write_b32 v5, v4
        s_mov_b64 exec, -1
        s_waitcnt lgkmcnt(0)
        L_TKWAIT:
        v_mov_b32 v5, 0
        s_barrier
        ds_read_b32 v4, v5
        s_waitcnt lgkmcnt(0)
        v_readfirstlane_b32 s2, v4
        s_barrier
        s_cmp_ge_u32 s2, 256
        s_cbranch_scc1 L_END""")
    trace = opt.get("trace")
    def tr_issue(): return ["s_memrealtime s[100:101]"] if trace else []
    def tr_commit(): return ["s_lshl_b64 exec, 1, s81", "v_mov_b32 v0, s100", "s_mov_b64 exec, -1", "s_add_u32 s81, s81, 1"] if trace else []
    if trace: A("s_mov_b32 s81, 0\nv_mov_b32 v0, 0\ns_memrealtime s[100:101]\ns_waitcnt lgkmcnt(0)"); A.ext(tr_commit())
    S_X, S_W0, S_W1, S_KV, S_Wb = S_A, S_B, S_C, S_D, S_E
    sSoX = sL - 1
    sSo0 = sL + 7
    sSo1 = sL + 7
    sM0X, sM0W, sM0K, sWwr = sL + 11, sL + 12, sL + 13, sL + 14
    sWrd, s16k, sStep1, sSa, sSc, sIsB, sKVst, sEfl = 14, 30, 15, 3, 31, 9, 10, 11
    XB, WB, KR = 0, 65536, 147456
    vXo = [3, 4]; vWo0, vWo1, vKo, vSXo = 5, 6, 7, 8
    vXa = [9, 10]; vW0a = [[11 + 2*i, 12 + 2*i] for i in range(4)]; vW1a = [19, 20, 21, 22]; vSWa = 23
    vT = 24
    acc = [[None]*8 for _ in range(8)]
    p = 32
    for i in range(7):
        for j in range(8):
            acc[i][j] = Reg("v", p, 4); p += 4
    RA = [[Reg("a", 64*s + 4*i, 4) for i in range(8)] for s in range(2)]
    RB = [[Reg("a", 64*s + 32 + 4*j, 4) for j in range(8)] for s in range(2)]
    SA = [Reg("a", 128 + 4*s, 4) for s in range(2)]
    sacc = Reg("a", 144, 4)
    for j in range(8): acc[7][j] = Reg("a", 148 + 4*j, 4)
    SXB = [[Reg("a", 180 + 8*b + 4*j, 4) for j in range(2)] for b in range(2)]
    GXa = [Reg("a", 196 + 8*r, 8) for r in range(2)]
    GWa = Reg("a", 212, 8)
    t0, t1, t2, t3, t4, t5, t6, t7 = range(vT, vT + 8)
    HUGE = 0x40000000

    A(f"""s_and_b32 s{sT0}, s2, 1
    s_lshl_b32 s{sT0}, s{sT0}, 2
    s_bfe_u32 s{sT1}, s2, 0x20003
    s_add_u32 s{sRB}, s{sT0}, s{sT1}
    s_bfe_u32 s{sT0}, s2, 0x20001
    s_lshl_b32 s{sT0}, s{sT0}, 3
    s_lshr_b32 s{sT1}, s2, 5
    s_add_u32 s{sCB}, s{sT0}, s{sT1}""")
    A(f"""s_lshl_b32 s{sT0}, s{sW}, 6
    v_lshrrev_b32 v{t0}, 3, {vL}
    v_add_u32 v{t2}, s{sT0}, v{t0}
    v_lshlrev_b32 v{t2}, 11, v{t2}
    v_lshrrev_b32 v{t1}, 4, {vL}
    v_and_b32 v{t3}, 7, {vL}
    v_xor_b32 v{t4}, v{t3}, v{t1}
    v_lshl_add_u32 v{vXo[0]}, v{t4}, 4, v{t2}
    v_xor_b32 v{vXo[1]}, 64, v{vXo[0]}""")
    for e in range(1, 8): A(f"s_mov_b32 s{sSoX+e}, {e*16384 - (e&3)*1024}")
    A(f"""s_lshl_b32 s{sM0X}, s{sW}, 13
    s_lshl_b32 s{sM0W}, s{sW}, 11
    s_add_u32 s{sM0K}, s{sM0W}, {KR}
    s_add_u32 s{sM0W}, s{sM0W}, {WB}
    s_and_b32 s{sT1}, s{sCB}, 3
    s_mov_b32 s{sStep1}, {PW}
    s_cmp_eq_u32 s{sT1}, 3
    s_cselect_b32 s{sStep1}, 2048, s{sStep1}""")
    A(f"""s_lshl_b32 s{sT0}, s{sW}, 3
    v_add_u32 v{t2}, s{sT0}, v{t1}
    v_mul_lo_u32 v{t2}, v{t2}, s{sStep1}
    s_and_b32 s{sT1}, s{sW}, 1
    s_lshl_b32 s{sT2}, s{sT1}, 3
    v_and_b32 v{t4}, 15, {vL}
    v_lshl_or_b32 v{t5}, v{t1}, 1, s{sT2}
    v_xor_b32 v{t4}, v{t4}, v{t5}
    v_lshl_add_u32 v{vWo1}, v{t4}, 4, v{t2}
    v_add_u32 v{t2}, s{sT0}, v{t0}
    v_mul_u32_u24 v{t2}, {PW}, v{t2}
    s_lshl_b32 s{sT2}, s{sT1}, 2
    v_and_b32 v{t4}, 1, v{t1}
    v_lshl_or_b32 v{t4}, v{t4}, 1, s{sT2}
    v_xor_b32 v{t4}, v{t4}, v{t3}
    v_lshl_add_u32 v{vWo0}, v{t4}, 4, v{t2}""")
    A("s_waitcnt lgkmcnt(0)")
    A(f"""s_lshl_b32 s{sT0}, s{sRB}, 19
    s_add_u32 s{S_X}, s{P_X}, s{sT0}
    s_addc_u32 s{S_X+1}, s{P_X+1}, 0
    s_mov_b32 s{S_X+2}, 0x80000
    s_mov_b32 s{S_X+3}, 0x20000""")
    A(f"""s_mov_b32 s{S_WS+3}, 0x20000
    s_or_b32 s{sT0}, s2, s{sW}
    s_cmp_lg_u32 s{sT0}, 0
    s_cbranch_scc1 P1_NONONCE
    s_or_b32 s30, s30, 1
    s_mov_b32 s{S_WS}, s{P_DBG}
    s_mov_b32 s{S_WS+1}, s{P_DBG+1}
    s_mov_b32 s{S_WS+2}, 256
    v_mov_b32 v{t6}, s30
    v_mov_b32 v{t7}, 0
    s_mov_b64 exec, 1
    buffer_store_dword v{t6}, v{t7}, {srd(S_WS)}, 0 offen sc1
    s_mov_b64 exec, -1
    P1_NONONCE:""")
    WNT = opt.get("wnt", "")
    def xdma(par):
        sl = []
        for e in range(8):
            pre = []
            if e == 0: pre = [f"s_add_u32 m0, s{sM0X}, {par}"]
            if e == 4: pre = ["s_add_u32 m0, m0, 4096"]
            so = "0" if e == 0 else f"s{sSoX+e}"
            sl.append((pre, VM(f"buffer_load_dwordx4 v{vXo[e&1]}, {srd(S_X)}, {so} offen offset:{(e&3)*1024} lds", "X")))
        return sl
    def wdma(hb, slot):
        so0 = "0" if hb == 0 else f"s{sSo0}"
        so1 = ["0" if hb == 0 else f"s{sSo1+2}", f"s{sSo1 + 1 + 2*hb}"]
        return [([f"s_add_u32 m0, s{sM0W}, {slot}"], VM(f"buffer_load_dwordx4 v{vWo0}, {srd(S_W0)}, {so0} offen {WNT} lds", "W")),
                ([], VM(f"buffer_load_dwordx4 v{vWo0}, {srd(S_Wb)}, {so0} offen offset:1024 {WNT} lds", "W")),
                (["s_add_u32 m0, m0, 8192"], VM(f"buffer_load_dwordx4 v{vWo1}, {srd(S_W1)}, {so1[0]} offen {WNT} lds", "W")),
                ([], VM(f"buffer_load_dwordx4 v{vWo1}, {srd(S_W1)}, {so1[1]} offen offset:1024 {WNT} lds", "W"))]
    def kdma(slot):
        return [([f"s_add_u32 m0, s{sM0K}, {slot}"], VM(f"buffer_load_dwordx4 v{vKo}, {srd(S_KV)}, 0 offen lds", "X")),
                ([], VM(f"buffer_load_dwordx4 v{vKo}, {srd(S_KV)}, 0 offen offset:1024 lds", "X"))]
    def sxload(b): return [VM(f"buffer_load_dwordx4 {SXB[b][j]}, v{vSXo}, {srd(S_X)}, 0 offen offset:{j*64}", "SX") for j in range(2)]
    def emit_dma(X, sl):
        for pre, d in sl:
            X.ext(pre)
            if pre: X("s_nop 0")
            X(d)
    emit_dma(A, xdma(0))
    A(f"""s_lshr_b32 s{sT0}, s{sCB}, 2
    s_and_b32 s{sT1}, s{sCB}, 3
    s_mul_i32 s{sT2}, s{sT0}, 896
    s_lshl_b32 s{sT3}, s{sT1}, 8
    s_add_u32 s{sT2}, s{sT2}, s{sT3}
    s_add_u32 s{S_W0}, s{P_WG}, s{sT2}
    s_addc_u32 s{S_W0+1}, s{P_WG+1}, 0
    s_sub_u32 s{S_W0+2}, {1024*PW}, s{sT2}
    s_mov_b32 s{S_W0+3}, 0x20000
    s_mov_b32 s{S_W1+3}, 0x20000
    s_mov_b32 s{S_Wb+3}, 0x20000
    s_mov_b32 s{sSo0}, {32*PW}
    s_cmp_eq_u32 s{sT1}, 3
    s_cbranch_scc1 P1_SRDB
    s_add_u32 s{S_Wb}, s{S_W0}, {4*PW - 1024}
    s_addc_u32 s{S_Wb+1}, s{S_W0+1}, 0
    s_sub_u32 s{S_Wb+2}, s{S_W0+2}, {4*PW - 1024}
    s_add_u32 s{S_W1}, s{P_WU}, s{sT2}
    s_addc_u32 s{S_W1+1}, s{P_WU+1}, 0
    s_mov_b32 s{S_W1+2}, s{S_W0+2}
    v_mov_b32 v{vWo0}, v{vWo1}
    s_branch P1_SRDD
    P1_SRDB:
    s_add_u32 s{S_Wb}, s{P_WU}, s{sT2}
    s_addc_u32 s{S_Wb+1}, s{P_WU+1}, 0
    s_sub_u32 s{S_Wb}, s{S_Wb}, 1024
    s_subb_u32 s{S_Wb+1}, s{S_Wb+1}, 0
    s_add_u32 s{S_Wb+2}, s{S_W0+2}, 1024
    s_lshl_b32 s{sT0}, s{sT0}, 8
    s_add_u32 s{S_W1}, s{P_WQ}, s{sT0}
    s_addc_u32 s{S_W1+1}, s{P_WQ+1}, 0
    s_sub_u32 s{S_W1+2}, {1024*2048}, s{sT0}
    P1_SRDD:
    s_lshl_b32 s{sSo1+1}, s{sStep1}, 2
    s_sub_u32 s{sSo1+1}, s{sSo1+1}, 1024
    s_lshl_b32 s{sSo1+2}, s{sStep1}, 5
    s_add_u32 s{sSo1+3}, s{sSo1+2}, s{sSo1+1}
    s_lshl_b32 s{sStep1}, s{sStep1}, 6""")
    advX = [f"v_add_u32 v{vXo[0]}, 128, v{vXo[0]}", f"v_add_u32 v{vXo[1]}, 128, v{vXo[1]}"]
    advW = [f"v_add_u32 v{vWo0}, {64*PW}, v{vWo0}", f"v_add_u32 v{vWo1}, s{sStep1}, v{vWo1}"]
    advK = f"v_add_u32 v{vKo}, 4096, v{vKo}"
    advS = f"v_add_u32 v{vSXo}, 128, v{vSXo}"
    emit_dma(A, wdma(0, 0)); emit_dma(A, wdma(1, 16384))
    A.ext(advX + advW)
    A(f"""s_bfe_u32 s{sT0}, s{sCB}, 0x10001
    s_and_b32 s{sT1}, s{sW}, 1
    s_bitcmp1_b32 s{sCB}, 0
    s_cselect_b32 s{S_KV}, s{P_WV}, s{P_WK}
    s_cselect_b32 s{S_KV+1}, s{P_WV+1}, s{P_WK+1}
    s_cselect_b32 s{sSa}, s{sT1}, s{sT0}
    s_cselect_b32 s{sSc}, s{sT0}, s{sT1}
    s_mov_b32 s{S_KV+2}, 65536
    s_mov_b32 s{S_KV+3}, 0x20000
    s_and_b32 s{sIsB}, s{sCB}, 3
    s_cmp_eq_u32 s{sIsB}, 3
    s_cselect_b32 s{sIsB}, 1, 0
    v_lshrrev_b32 v{t2}, 5, {vL}
    v_lshlrev_b32 v{t2}, 1, v{t2}
    v_xor_b32 v{t2}, v{t2}, {vL}
    v_lshlrev_b32 v{t2}, 4, v{t2}
    s_lshr_b32 s{sT2}, s{sW}, 1
    s_lshl_b32 s{sT0}, s{sT2}, 15
    s_lshl_b32 s{sT1}, s{sT1}, 11
    s_add_u32 s{sT0}, s{sT0}, s{sT1}
    v_add_u32 v{vKo}, s{sT0}, v{t2}
    s_lshr_b32 s{sT0}, s{sCB}, 2
    s_lshl_b32 s{sT0}, s{sT0}, 1
    s_add_u32 s{sT0}, s{sT0}, s{sSa}
    s_lshl_b32 s{sT0}, s{sT0}, 15
    s_lshl_b32 s{sT2}, s{sT2}, 10
    s_add_u32 s{sT0}, s{sT0}, s{sT2}
    v_and_b32 v{t2}, 15, {vL}
    v_lshlrev_b32 v{t2}, 11, v{t2}
    v_lshl_add_u32 v{t2}, v{t1}, 4, v{t2}
    v_add_u32 v{vSXo}, s{sT0}, v{t2}""")
    emit_dma(A, kdma(0)); A.ext(sxload(0)); A(advK); A(advS)
    A(f"""s_mov_b32 s{S_WS}, s{P_WS}
    s_mov_b32 s{S_WS+1}, s{P_WS+1}
    s_mov_b32 s{S_WS+2}, {WS_USED}""")
    nfirst = len(A.lines)
    second = xdma(32768) + wdma(0, 2*16384) + kdma(8192) + wdma(1, 3*16384)
    A(f"""v_and_b32 v{t0}, 15, {vL}
    v_lshrrev_b32 v{t2}, 1, v{t0}
    v_xor_b32 v{t2}, v{t2}, v{t1}
    v_lshlrev_b32 v{t2}, 4, v{t2}
    v_lshl_add_u32 v{t2}, v{t0}, 7, v{t2}
    s_lshr_b32 s{sT0}, s{sW}, 1
    s_lshl_b32 s{sT1}, s{sT0}, 14
    v_add_u32 v{vXa[0]}, s{sT1}, v{t2}
    v_xor_b32 v{vXa[1]}, 64, v{vXa[0]}
    v_bfe_u32 v{t0}, {vL}, 2, 2
    v_lshl_add_u32 v{t2}, v{t1}, 3, v{t0}
    v_and_b32 v{t3}, 1, v{t1}
    v_lshl_or_b32 v{t5}, v{t3}, 2, v{t0}
    v_and_b32 v{t4}, 3, {vL}
    v_lshlrev_b32 v{t4}, 3, v{t4}
    v_lshl_add_u32 v{t6}, v{t2}, 8, v{t4}
    v_add_u32 v{t6}, {WB + 8192}, v{t6}
    s_and_b32 s{sT0}, s{sW}, 1
    s_lshl_b32 s{sT1}, s{sT0}, 2""")
    for ii in range(4):
        A(f"""s_add_u32 s{sT2}, s{sT1}, {ii}
        v_xor_b32 v{t7}, s{sT2}, v{t5}
        v_lshl_add_u32 v{vW1a[ii]}, v{t7}, 5, v{t6}""")
    A(f"""v_lshl_add_u32 v{t2}, v{t2}, 6, v{t4}
    v_xor_b32 v{t7}, s{sSc}, v{t3}
    v_lshl_add_u32 v{t7}, v{t7}, 5, v{t2}
    s_lshr_b32 s{sT2}, s{sW}, 1
    s_lshl_b32 s{sT2}, s{sT2}, 12
    s_add_u32 s{sT2}, s{sT2}, {KR}
    v_add_u32 v{vSWa}, s{sT2}, v{t7}
    s_mov_b32 s{s16k}, 16384
    s_cmp_eq_u32 s{sIsB}, 1
    s_cbranch_scc1 P1_ADB""")
    for ii in range(4):
        A(f"v_subrev_u32 v{vW0a[ii][0]}, 8192, v{vW1a[ii]}\nv_subrev_u32 v{vW0a[ii][1]}, 7168, v{vW1a[ii]}")
    A(f"""s_branch P1_ADD
    P1_ADB:
    v_lshl_add_u32 v{t4}, v{t1}, 11, v{t4}
    v_lshl_add_u32 v{t4}, v{t0}, 7, v{t4}
    v_add_u32 v{t4}, {WB}, v{t4}
    v_lshrrev_b32 v{t0}, 1, v{t0}
    v_lshl_or_b32 v{t0}, v{t3}, 1, v{t0}
    s_lshl_b32 s{sT1}, s{sT0}, 1""")
    for k in range(2):
        A(f"""s_add_u32 s{sT2}, s{sT1}, {k}
        v_xor_b32 v{t7}, s{sT2}, v{t0}
        v_lshl_add_u32 v{vW0a[k][0]}, v{t7}, 5, v{t4}
        v_add_u32 v{vW0a[k][1]}, 512, v{vW0a[k][0]}
        v_add_u32 v{vW0a[2+k][0]}, 1024, v{vW0a[k][0]}
        v_add_u32 v{vW0a[2+k][1]}, 1536, v{vW0a[k][0]}""")
    A("P1_ADD:")
    PF = opt.get("pf", 1)
    Z = []
    for i in range(8):
        for j in range(8):
            for r in range(4):
                a = acc[i][j][r]
                Z.append(f"v_mov_b32 {a}, 0" if a.f == "v" else f"v_accvgpr_write_b32 {a}, 0")
    for r in range(4): Z.append(f"v_accvgpr_write_b32 {sacc[r]}, 0")
    per = len(Z) // len(second)
    for k, (pre, d) in enumerate(second):
        A.ext(pre); A.ext(Z[k*per:(k+1)*per]); A(d)
    A.ext(Z[len(second)*per:])
    A.ext(advX + advW + [advK])

    rdregs = [r for pr in vW0a for r in pr] + vW1a
    def reads(b, s, side):
        L = [f"ds_read_b128 {RB[s][j]}, v{vXa[b]} offset:{j*2048}" for j in range(8)]
        for i in range(8):
            for hf in range(2):
                if i < 4: L.append(f"ds_read_b64_tr_b16 {RA[s][i].sub(2*hf, 2)}, v{vW0a[i][hf]}")
                else: L.append(f"ds_read_b64_tr_b16 {RA[s][i].sub(2*hf, 2)}, v{vW1a[i-4]} offset:{hf*1024}")
        if side:
            for hf in range(2):
                L.append(f"ds_read_b64_tr_b16 {SA[s].sub(2*hf, 2)}, v{vSWa} offset:{b*2048 + hf*256}")
        return L
    def mfmas(s, side=None):
        L = []
        for i in range(8):
            js = range(8) if i % 2 == 0 else range(7, -1, -1)
            for j in js:
                L.append(f"v_mfma_f32_16x16x32_bf16 {acc[i][j]}, {RA[s][i]}, {RB[s][j]}, {acc[i][j]}")
            if side is not None and i == 3:
                L.append(f"v_mfma_f32_16x16x32_bf16 {sacc}, {SA[s]}, {SXB[side][s]}, {sacc}")
        return L
    def rotW(sreg, sd):
        return [f"s_cmp_eq_u32 s{sreg}, {4*16384}", f"s_cselect_b32 s{sd}, {(-4*16384) & 0xffffffff:#x}, s{s16k}", f"s_add_u32 s{sreg}, s{sreg}, s{sd}"]
    A(f"s_waitcnt vmcnt({len(second)}) lgkmcnt(0)\ns_barrier")
    A.ext(reads(0, 0, True))
    for r in rdregs: A(f"v_add_u32 v{r}, 16384, v{r}")
    A(f"""s_mov_b32 s{sWrd}, 16384
    s_mov_b32 s{sWwr}, {4*16384}
    s_mov_b32 s{sIt}, 0
    s_waitcnt lgkmcnt(0)
    s_barrier""")
    A.ext(ts.at("p1"))
    if ts.on: A("s_waitcnt lgkmcnt(0)")
    pro_hist = list(A.lines)

    def step(side=None, dma=True, last=False, hook=None, lim=None, cpfm=None):
        out = []
        sd = side is not None
        n = 65 if sd else 64
        BG = n - 4
        def rot(f):
            put(f, 47, rotW(sWrd, sT1))
            for k, r in enumerate(rdregs): put(f, 48 + k, f"v_add_u32 v{r}, s{sT1}, v{r}")
        f = {}
        for k, r in enumerate(reads(1, 1, sd)): put(f, 2*k if k < 24 else 49 + 2*(k - 24), r)
        if dma:
            dg = [1, 9, 17, 25, 33, 39, 45, 53] if not sd else [13, 19, 25, 31, 37, 43, 49, 55]
            for k, (pre, d) in enumerate(wdma(0, f"s{sWwr}") + wdma(1, f"s{sWwr}")):
                if pre: put(f, dg[k] - 1, pre)
                put(f, dg[k], d)
            put(f, dg[0] + 2, rotW(sWwr, sT0)); put(f, dg[4] + 2, rotW(sWwr, sT0))
            put(f, 57, advW[0]); put(f, 58, advW[1])
        if sd:
            for k, l in enumerate(sxload(side ^ 1)): put(f, [1, 7][k], l)
            put(f, 9, advS)
            put(f, 59, f"v_xor_b32 v{vSWa}, 0x2000, v{vSWa}")
        rot(f)
        put(f, 19, f"v_xor_b32 v{vXa[0]}, 0x8000, v{vXa[0]}")
        if cpfm == "rep": put(f, 3 if not sd else 4, cp(False))
        if cpfm == "adv": put(f, 3, cpa if CPF else [])
        if cpfm == "advld": put(f, 3, ([cpa] + cp()) if CPF else [])
        if hook: hook(0, f, BG)
        put(f, BG, [Need(["X"], "lgkmcnt(0)") if (dma or not last) else "s_waitcnt lgkmcnt(0)", "s_barrier"])
        if hook: hook(2, f, BG)
        out += interleave(mfmas(0, side), f)
        f = {}
        if not last:
            for k, r in enumerate(reads(0, 0, sd)): put(f, 2*k if k < 24 else 49 + 2*(k - 24), r)
            rot(f)
            put(f, 21, f"v_xor_b32 v{vXa[1]}, 0x8000, v{vXa[1]}")
        if dma:
            put(f, -1, [f"s_and_b32 s{sT3}, s{sIt}, 1", f"s_lshl_b32 s{sT0}, s{sT3}, 15", f"s_lshl_b32 s{sT3}, s{sT3}, 13"])
            dl = (kdma(f"s{sT3}") if sd else []) + xdma(f"s{sT0}")
            dg = [1, 7, 13, 19, 25, 31, 37, 43, 49, 55] if sd else [1, 9, 17, 25, 33, 41, 47, 53]
            for k, (pre, d) in enumerate(dl):
                if pre: put(f, dg[k] - 1, pre)
                put(f, dg[k], d)
            put(f, 57, advX[0]); put(f, 59, advX[1])
            if sd: put(f, 9, advK)
        if hook: hook(1, f, BG)
        put(f, BG - 3, tr_issue())
        put(f, BG, [Need(["SX"], "lgkmcnt(0)") if sd else "s_waitcnt lgkmcnt(0)", "s_barrier"] + tr_commit())
        put(f, BG + 1, f"s_add_u32 s{sIt}, s{sIt}, 1")
        if lim: put(f, BG + 2, f"s_cmp_lt_u32 s{sIt}, {lim}")
        out += interleave(mfmas(1, side), f)
        return out

    vN, vZ, vKA, vFA = t0, t1, t2, t3
    u = 28
    nload = f"buffer_load_dword v{vN}, v{vZ}, {srd(S_KV)}, 0 offen sc1"
    dbgsrd = [f"s_mov_b32 s{S_KV}, s{P_DBG}", f"s_mov_b32 s{S_KV+1}, s{P_DBG+1}", f"s_mov_b32 s{S_KV+2}, 256", f"v_mov_b32 v{vZ}, 0"]
    PSC = KR + 4096
    kvK = f"""v_bfe_u32 v{vKA}, {vL}, 3, 1
    v_lshlrev_b32 v{vKA}, 4, v{vKA}
    v_and_b32 v{vFA}, 7, {vL}
    v_add_u32 v{vKA}, v{vKA}, v{vFA}
    v_bfe_u32 v{vFA}, {vL}, 4, 1
    v_lshl_add_u32 v{vKA}, v{vFA}, 5, v{vKA}
    v_lshlrev_b32 v{vKA}, 4, v{vKA}
    v_lshrrev_b32 v{vFA}, 5, {vL}
    v_lshl_add_u32 v{vKA}, v{vFA}, 10, v{vKA}
    s_lshl_b32 s{sKVst}, s{sSa}, 7
    s_lshl_b32 s{sEfl}, s{sSc}, 3""".split("\n")
    kvV = f"""v_lshrrev_b32 v{vKA}, 5, {vL}
    v_lshlrev_b32 v{vKA}, 4, v{vKA}
    v_bfe_u32 v{vFA}, {vL}, 4, 1
    v_lshl_add_u32 v{vKA}, v{vFA}, 2, v{vKA}
    v_bfe_u32 v{vFA}, {vL}, 2, 1
    v_lshl_add_u32 v{vKA}, v{vFA}, 5, v{vKA}
    v_lshlrev_b32 v{vKA}, 4, v{vKA}
    v_bfe_u32 v{vFA}, {vL}, 3, 1
    v_lshl_add_u32 v{vKA}, v{vFA}, 10, v{vKA}
    v_and_b32 v{vFA}, 3, {vL}
    v_lshl_add_u32 v{vKA}, v{vFA}, 1, v{vKA}
    s_lshl_b32 s{sKVst}, s{sSc}, 7
    s_lshl_b32 s{sEfl}, s{sSa}, 3""".split("\n")
    kvaddr = [f"s_bitcmp1_b32 s{sCB}, 0", "s_cbranch_scc1 P1_KVAV"] + [l.strip() for l in kvK] + ["P1_KVAD:",
              f"s_add_u32 s{sKVst}, s{sKVst}, s{sEfl}", f"s_add_u32 s{sKVst}, s{sKVst}, {KR}", f"v_add_u32 v{vKA}, s{sKVst}, v{vKA}"]
    kvwr = [f"s_bitcmp1_b32 s{sCB}, 0", "s_cbranch_scc1 P1_KVWV", f"ds_write_b64 v{vKA}, v[{u}:{u+1}]", "P1_KVWD:"]
    ool = Asm()
    ool("P1_KVAV:"); ool.ext(kvV); ool("s_branch P1_KVAD")
    ool(f"""P1_KVWV:
    ds_write_b16 v{vKA}, v{u}
    ds_write_b16_d16_hi v{vKA}, v{u} offset:16
    ds_write_b16 v{vKA}, v{u+1} offset:32
    ds_write_b16_d16_hi v{vKA}, v{u+1} offset:48
    s_branch P1_KVWD""")
    vP = vSXo
    KT = Reg("a", 128, 4); PT = Reg("a", 132, 4)
    def hookS8(ph, f, BG):
        if ph == 0:
            put(f, 11, dbgsrd)
            put(f, 21, [f"s_lshl_b32 s{sT2}, s{sW}, 10", f"s_add_u32 s{sT2}, s{sT2}, {PSC}"]); put(f, 23, f"v_add_u32 v{vP}, s{sT2}, {vL16}")
            put(f, 27, kvaddr)
        if ph == 1:
            put(f, 3, f"ds_write_b128 v{vP}, {sacc}")
            put(f, 5, VM(nload, "N"))
            put(f, 11, f"v_xor_b32 v{vP}, 0x800, v{vP}")
            for r in range(4): put(f, 13 + 2*r, f"v_accvgpr_read_b32 v{u+r}, {sacc[r]}")
    def hookS9(ph, f, BG):
        if ph == 0:
            put(f, 1, f"ds_read_b128 {PT}, v{vP}")
            put(f, 11, "s_waitcnt lgkmcnt(5)")
            for r in range(4): put(f, 11 + 2*r, f"v_accvgpr_read_b32 v{vFA}, {PT[r]}"); put(f, 12 + 2*r, f"v_add_f32 v{u+r}, v{u+r}, v{vFA}")
            put(f, 21, f"v_cvt_pk_bf16_f32 v{u}, v{u}, v{u+1}"); put(f, 23, f"v_cvt_pk_bf16_f32 v{u+1}, v{u+2}, v{u+3}")
            put(f, 27, kvwr)
            put(f, 29, f"v_lshrrev_b32 v{vP}, 3, {vL}"); put(f, 31, f"v_and_b32 v{vFA}, 7, {vL}")
            put(f, 35, f"v_lshlrev_b32 v{vFA}, 4, v{vFA}"); put(f, 37, f"v_lshl_add_u32 v{vP}, v{vP}, 8, v{vFA}")
            put(f, 41, [f"s_bfe_u32 s{sT2}, s{sCB}, 0x10001", f"s_lshl_b32 s{sT2}, s{sT2}, 7"])
            put(f, 43, f"v_add_u32 v{vP}, s{sT2}, v{vP}")
            put(f, 44, f"v_add_u32 v{vKA}, {KR}, v{vP}")
        if ph == 1:
            put(f, 3, f"ds_read_b128 {KT}, v{vKA}")
            put(f, 5, [f"s_lshl_b32 s{sKVst}, s{sRB}, 3", f"s_lshr_b32 s{sT2}, s{sCB}, 2", f"s_add_u32 s{sKVst}, s{sKVst}, s{sT2}"])
            put(f, 7, [f"s_lshl_b32 s{sKVst}, s{sKVst}, 1", f"s_and_b32 s{sT2}, s{sCB}, 1", f"s_add_u32 s{sKVst}, s{sKVst}, s{sT2}"])
            put(f, 11, [f"s_lshl_b32 s{sKVst}, s{sKVst}, 11", f"s_add_u32 s{sKVst}, s{sKVst}, {KV_OFF}", f"s_lshl_b32 s{sEfl}, s{sRB}, 5"])
            put(f, 13, [f"s_add_u32 s{sEfl}, s{sEfl}, s{sCB}", f"s_lshl_b32 s{sEfl}, s{sEfl}, 2", f"s_add_u32 s{sEfl}, s{sEfl}, {FL_E}"])
            put(f, 15, [f"s_cmp_eq_u32 s{sW}, 0", f"s_cselect_b32 s{sKVst}, s{sKVst}, {HUGE}", f"s_cselect_b32 s{sEfl}, s{sEfl}, {HUGE}"])
            put(f, 19, f"v_mul_u32_u24 v{vFA}, {FL_ES}, {vL}")
            put(f, 21, ["s_waitcnt lgkmcnt(9)", VM(f"buffer_store_dwordx4 {KT}, v{vP}, {srd(S_WS)}, s{sKVst} offen {SC1}", "KS")])
    def hookS10(ph, f, BG):
        if ph == 1:
            put(f, 27, [Need(["KS", "N"]), f"v_readfirstlane_b32 s{sNonce}, v{vN}", f"s_cmp_eq_u32 s{sNonce}, 0", "s_cbranch_scc1 P1_SLOWN", "P1_NOK:",
                       "s_mov_b64 exec, 0xff", VM(f"buffer_store_dword v{vN}, v{vFA}, {srd(S_WS)}, s{sEfl} offen sc1", "EF"), "s_mov_b64 exec, -1", "s_nop 2"])
    sKVo, sM0 = sL + 3, sL + 4
    S_KVD = S_C
    vE = Reg("v", 28, 4)
    epoll = f"buffer_load_dwordx4 {vE}, {vL16}, {srd(S_WS)}, s{sEfl} offen sc1"
    def kvdma0(slotoff):
        L = []
        for e in range(8):
            pre = []
            if e == 0: pre = [f"s_add_u32 m0, s{sM0}, {slotoff}"]
            if e == 4: pre = [f"s_add_u32 m0, m0, 4096", f"s_add_u32 s{sKVo}, s{sKVo}, 4096"]
            L.append((pre, VM(f"buffer_load_dwordx4 {vL16}, {srd(S_KVD)}, s{sKVo} offen offset:{(e&3)*1024} {SC1} lds", "KV")))
        return L
    def hookS14(ph, f, BG):
        if ph == 0:
            put(f, 5, [f"s_bfe_u32 s{sEfl}, s2, 0x30003", f"s_mul_i32 s{sEfl}, s{sEfl}, {FL_ES}", f"s_add_u32 s{sEfl}, s{sEfl}, {FL_E}"])
            put(f, 9, VM(epoll, "N"))
            put(f, 11, [f"s_mov_b32 s{S_KVD}, s{P_WS}", f"s_mov_b32 s{S_KVD+1}, s{P_WS+1}", f"s_mov_b32 s{S_KVD+2}, {KV_OFF + 262144}"])
            put(f, 13, [f"s_lshl_b32 s{sM0}, s{sW}, 13", f"s_add_u32 s{sKVo}, s{sM0}, {KV_OFF}"])
    def echeck():
        return [f"v_xor_b32 {vE[0]}, {vE[0]}, v{vN}", f"v_xor_b32 {vE[1]}, {vE[1]}, v{vN}", f"v_xor_b32 {vE[2]}, {vE[2]}, v{vN}", f"v_xor_b32 {vE[3]}, {vE[3]}, v{vN}",
                f"v_or3_b32 {vE[0]}, {vE[0]}, {vE[1]}, {vE[2]}", f"v_or_b32 {vE[0]}, {vE[0]}, {vE[3]}", f"v_cmp_eq_u32 vcc, 0, {vE[0]}", "s_nop 0", "s_cmp_eq_u64 vcc, -1"]
    def hookS15(ph, f, BG):
        dg = [5, 11, 17, 23, 29, 35, 41, 46]
        if ph == 0: put(f, 1, [Need(["N"])] + echeck() + ["s_cbranch_scc0 P1_SLOWE", "P1_EOK:"])
        if ph in (0, 1):
            for k, (pre, d) in enumerate(kvdma0(32768*ph)):
                if pre: put(f, dg[k] - 1, pre)
                put(f, dg[k], d)
            put(f, 47, f"s_add_u32 s{sKVo}, s{sKVo}, {32768 - 4096}")
    Ls = step(0, cpfm='rep') + step(1, lim=8)
    Ls = resolve_waits(Ls)
    Lp = resolve_waits(step(lim=14, cpfm='rep'))
    S8 = resolve_waits(step(hook=hookS8, cpfm='adv'), Ls); S9 = resolve_waits(step(hook=hookS9), Ls + S8); S10 = resolve_waits(step(hook=hookS10), S8 + S9)
    S14 = resolve_waits(step(dma=False, hook=hookS14, cpfm='advld'), Lp); S15 = resolve_waits(step(dma=False, last=True, hook=hookS15), Lp + S14)
    probs += verify_waits(pro_hist + Ls, len(pro_hist), "pro->Ls")
    probs += verify_waits(S9 + S10 + Lp, len(S9 + S10), "S10->Lp")
    A(".p2align 6\nP1_LS:")
    A.ext(Ls); A("s_cbranch_scc1 P1_LS")
    A.ext(S8); A.ext(S9); A.ext(S10)
    A("s_branch P1_LP"); A.ext(ool.lines)
    A(".p2align 6\nP1_LP:")
    A.ext(Lp); A("s_cbranch_scc1 P1_LP")
    A.ext(S14); A.ext(S15)
    probs += check_hazards(A.lines, "p1") + check_hazards(Ls + Ls, "ls") + check_hazards(Lp + Lp, "lp")
    slow1 = Asm()
    slow1(f"""P1_SLOWN:
    s_mov_b32 s{sT2}, {SPIN_MAX}
    P1_SLOWN_L:
    {nload}
    s_waitcnt vmcnt(0)
    v_readfirstlane_b32 s{sNonce}, v{vN}
    s_cmp_lg_u32 s{sNonce}, 0
    s_cbranch_scc1 P1_NOK
    s_sleep 4
    s_sub_u32 s{sT2}, s{sT2}, 1
    s_cmp_lg_u32 s{sT2}, 0
    s_cbranch_scc1 P1_SLOWN_L
    s_endpgm
    P1_SLOWE:
    s_mov_b32 s{sT0}, {SPIN_MAX}
    P1_SLOWE_L:
    {epoll}
    s_waitcnt vmcnt(0)""")
    slow1.ext(echeck())
    slow1(f"""s_cbranch_scc1 P1_EOK
    s_sleep 4
    s_sub_u32 s{sT0}, s{sT0}, 1
    s_cmp_lg_u32 s{sT0}, 0
    s_cbranch_scc1 P1_SLOWE_L
    s_endpgm""")

    va = Alloc("v", 3, 256)
    vCur = va.get(1); vNxt = va.get(1); vZero = va.get(1); vNon = va.get(1); vQP = va.get(1)
    T = va.get(12, 4)
    S = [va.get(16, 4) for _ in range(2)]
    P = [va.get(8, 4) for _ in range(2)]
    O = [va.get(16, 4) for _ in range(2)]
    Lc = [va.get(4, 4) for _ in range(2)]
    SCL = va.get(8, 4)
    acc3 = [[va.get(4, 4) for j in range(8)] for i in range(4)]
    vW3o = va.get(1); vW3a = [va.get(1) for _ in range(4)]; vPF = va.get(1); vG = va.get(2, 2); vFl = va.get(4, 4)
    NEG = [Reg("v", acc3[0][0].base + 16*k, 16) for k in range(2)]
    aa = Alloc("a", 0, 180)
    RX = [[aa.get(4, 4) for j in range(8)] for s in range(4)]
    Q = [[aa.get(4, 4) for t in range(2)] for ab in range(2)]
    K = [[aa.get(4, 4) for t in range(2)] for b in range(2)]
    V = [[aa.get(4, 4) for t in range(2)] for b in range(2)]
    ONES = aa.get(4, 4)
    RW = [[Reg("a", 220 + 16*s + 4*i, 4) for i in range(4)] for s in range(2)]
    QXB = 98304
    W3B = 98304

    E = Asm()
    E.ext(ts.at("p1end"))
    sO = sL + 10
    sC = sL + 1
    sQf = sL + 9
    tA = [Reg("v", 20, 4), Reg("v", 28, 4)]
    def hmath(pairs, dst):
        L = []
        for Gx, U in pairs:
            for r in range(4): L.append(f"v_max_f32 {Gx[r]}, 0, {Gx[r]}")
        for Gx, U in pairs:
            for r in (0, 2): L.append(f"v_pk_mul_f32 {Gx.sub(r,2)}, {Gx.sub(r,2)}, {U.sub(r,2)}")
        for k, (Gx, U) in enumerate(pairs):
            L.append(f"v_cvt_pk_bf16_f32 {dst[2*k]}, {Gx[0]}, {Gx[1]}"); L.append(f"v_cvt_pk_bf16_f32 {dst[2*k+1]}, {Gx[2]}, {Gx[3]}")
        return L
    gl = Asm()
    gl(f"""s_mov_b32 s{S_A}, s{P_X}
    s_mov_b32 s{S_A+1}, s{P_X+1}
    s_mov_b32 s{S_A+2}, 0x400000
    s_mov_b32 s{S_B}, s{P_GW}
    s_mov_b32 s{S_B+1}, s{P_GW+1}
    s_mov_b32 s{S_B+2}, 2048
    s_lshl_b32 s{sT2}, s{sRB}, 5
    s_add_u32 s{sT2}, s{sT2}, s{sCB}
    s_lshl_b32 s{sT2}, s{sT2}, 2
    s_add_u32 s{sT2}, s{sT2}, s{sW}
    s_lshl_b32 s{sT2}, s{sT2}, 12""")
    for h in range(2): gl(f"buffer_load_dwordx4 {GWa.sub(4*h,4)}, {vL16}, {srd(S_B)}, 0 offen offset:{h*1024}")
    for r in range(2):
        for h in range(2):
            gl(f"buffer_load_dwordx4 {GXa[r].sub(4*h,4)}, {vL16}, {srd(S_A)}, s{sT2} offen offset:{r*2048 + h*1024}")
    E(f"""s_lshr_b32 s{sT0}, s{sW}, 1
    s_and_b32 s{sT1}, s{sW}, 1
    s_lshl_b32 s{sO}, s{sRB}, 4
    s_lshl_b32 s{sT2}, s{sT0}, 3
    s_add_u32 s{sO}, s{sO}, s{sT2}
    s_lshl_b32 s{sO}, s{sO}, 10
    s_lshr_b32 s{sT2}, s{sCB}, 2
    s_mul_i32 s{sO+1}, s{sT2}, 14
    s_and_b32 s{sT3}, s{sCB}, 3
    s_lshl_b32 s{sT3}, s{sT3}, 2
    s_add_u32 s{sO+1}, s{sO+1}, s{sT3}
    s_add_u32 s{sO+1}, s{sO+1}, s{sT1}
    s_cmp_eq_u32 s{sIsB}, 1
    s_cbranch_scc1 P1_EPIB
    s_add_u32 s{sO+1}, s{sO+1}, s{sT1}
    s_mul_i32 s{sO+1}, s{sO+1}, {AFS}
    s_add_u32 s{sO}, s{sO}, s{sO+1}
    s_add_u32 s{sO+2}, s{sO}, {AFS}""")
    E.ext(gl.lines)
    for fb in range(2):
        for j in range(8):
            U1 = acc[5+2*fb][j]
            if U1.f == "a":
                Tt = tA[j % 2]
                for r in range(4): E(f"v_accvgpr_read_b32 {Tt[r]}, {U1[r]}")
                U1 = Tt
            E.ext(hmath([(acc[2*fb][j], acc[4+2*fb][j]), (acc[2*fb+1][j], U1)], acc[4+2*fb][j]))
    E("s_waitcnt vmcnt(0)\ns_branch P1_EPID\nP1_EPIB:")
    E(f"""s_mul_i32 s{sO+1}, s{sO+1}, {AFS}
    s_add_u32 s{sO}, s{sO}, s{sO+1}
    s_mov_b32 s{sO+2}, {HUGE}
    s_lshl_b32 s{sQf}, s{sRB}, 3
    s_add_u32 s{sQf}, s{sQf}, s{sT2}
    s_lshl_b32 s{sQf}, s{sQf}, 2
    s_lshl_b32 s{sT1}, s{sT1}, 1
    s_add_u32 s{sT2}, s{sQf}, s{sT1}
    s_lshl_b32 s{sT2}, s{sT2}, 1
    s_add_u32 s{sT2}, s{sT2}, s{sT0}
    s_lshl_b32 s{sT2}, s{sT2}, 13
    s_add_u32 s{sT0}, s{sT2}, {QF4_OFF}
    s_add_u32 s{sT1}, s{sT0}, 4096
    s_add_u32 s{sT2}, s{sT0}, 16384
    s_add_u32 s{sT3}, s{sT0}, {16384 + 4096}
    s_add_u32 s{sQf}, s{sQf}, s{sW}
    s_lshl_b32 s{sQf}, s{sQf}, 7
    s_add_u32 s{sQf}, s{sQf}, {FL_Q}
    s_mov_b32 s{sC}, {f2u(QSCALE):#x}
    s_mov_b32 s{sC+1}, {f2u(QSCALE):#x}""")
    for hh in range(2):
        for j in range(8):
            F0, F1 = acc[4 + 2*hh][j], acc[5 + 2*hh][j]
            if F1.f == "a":
                Tt = tA[j % 2]
                for r in range(4): E(f"v_accvgpr_read_b32 {Tt[r]}, {F1[r]}")
                F1 = Tt
            for F in (F0, F1):
                for r in (0, 2): E(f"v_pk_mul_f32 {F.sub(r,2)}, {F.sub(r,2)}, s[{sC}:{sC+1}]")
            E(f"v_cvt_pk_bf16_f32 {F0[0]}, {F0[0]}, {F0[1]}\nv_cvt_pk_bf16_f32 {F0[1]}, {F0[2]}, {F0[3]}")
            E(f"v_cvt_pk_bf16_f32 {F0[2]}, {F1[0]}, {F1[1]}\nv_cvt_pk_bf16_f32 {F0[3]}, {F1[2]}, {F1[3]}")
            E(f"buffer_store_dwordx4 {F0}, {vL16}, {srd(S_WS)}, s{sT0 + 2*hh + (j>>2)} offen offset:{(j&3)*1024} {SC1}")
    E.ext(gl.lines)
    for j in range(8):
        E.ext(hmath([(acc[0][j], acc[2][j]), (acc[1][j], acc[3][j])], acc[4][j]))
    E(f"""s_waitcnt vmcnt(6)
    s_mov_b64 exec, 1
    buffer_store_dword v{vN}, v{vZ}, {srd(S_WS)}, s{sQf} offen sc1
    s_mov_b64 exec, -1
    P1_EPID:
    s_add_u32 s{sO+1}, s{sO}, 4096
    s_add_u32 s{sO+3}, s{sO+2}, 4096""")
    E.ext(ts.at("kvdone"))
    hst0 = [VM(f"buffer_store_dwordx4 {acc[4][j]}, {vL16}, {srd(S_WS)}, s{sO + (j>>2)} offen offset:{(j&3)*1024} {SC1}", "H") for j in range(8)]
    hst1a = [VM(f"buffer_store_dwordx4 {acc[6][j]}, {vL16}, {srd(S_WS)}, s{sO + 2 + (j>>2)} offen offset:{(j&3)*1024} {SC1}", "H") for j in range(8)]
    probs += check_hazards(S15[-20:] + E.lines, "p1epi")
    A.ext(E.lines)

    B = Asm()
    sCur, sNext, sFree, sFl = sL, sL + 1, sL + 2, sL + 5
    B(f"""v_mov_b32 {vNon}, s{sNonce}
    v_mov_b32 {vZero}, 0
    v_bfe_u32 {T[0]}, {vL}, 4, 1
    v_and_b32 {T[1]}, 15, {vL}
    v_lshrrev_b32 {T[2]}, 5, {vL}
    v_lshl_add_u32 {T[1]}, {T[2]}, 4, {T[1]}
    v_lshlrev_b32 {T[1]}, 4, {T[1]}
    v_lshl_add_u32 {vQP}, {T[0]}, 10, {T[1]}""")
    S_PF, sPF = S_E, 8
    pfop = [VM(f"buffer_load_dword a252, {vPF}, {srd(S_PF)}, s{sPF} offen", "PF"), f"s_add_u32 s{sPF}, s{sPF}, 0x100000"] if PF else []
    B("s_waitcnt vmcnt(1)")
    W32 = NEG[0]; X32 = NEG[1]; GX = S[0].sub(0, 8); GW = S[0].sub(8, 8)
    R2 = range(2)
    for k in range(8): B(f"v_accvgpr_read_b32 {GW[k]}, {GWa[k]}")
    for k in range(8): B(f"v_lshlrev_b32 {W32[2*k]}, 16, {GW[k]}\nv_and_b32 {W32[2*k+1]}, 0xffff0000, {GW[k]}")
    B(f"v_mov_b32 {T[8]}, 0x3f803f80")
    for r in R2:
        for k in range(8): B(f"v_accvgpr_read_b32 {GX[k]}, {GXa[r][k]}")
        for k in range(8): B(f"v_lshlrev_b32 {X32[2*k]}, 16, {GX[k]}\nv_and_b32 {X32[2*k+1]}, 0xffff0000, {GX[k]}")
        for k in range(8): B(f"v_pk_mul_f32 {X32.sub(2*k,2)}, {X32.sub(2*k,2)}, {W32.sub(2*k,2)}")
        for k in range(8): B(f"v_cvt_pk_bf16_f32 {X32[k]}, {X32[2*k]}, {X32[2*k+1]}")
        B(f"v_mov_b32 {T[4+r]}, 0")
        for k in range(8): B(f"v_dot2_f32_bf16 {T[4+r]}, {X32[k]}, {T[8]}, {T[4+r]}")
    B("s_nop 2")
    for sh in (8, 4, 2, 1):
        for r in R2: B(f"v_add_f32_dpp {T[4+r]}, {T[4+r]}, {T[4+r]} row_ror:{sh} row_mask:0xf bank_mask:0xf")
        B("s_nop 0")
    for sw in ("16", "32"):
        for r in R2: B(f"v_mov_b32 {T[8+r]}, {T[4+r]}")
        B("s_nop 0")
        for r in R2: B(f"v_permlane{sw}_swap_b32 {T[4+r]}, {T[8+r]}")
        for r in R2: B(f"v_add_f32 {T[4+r]}, {T[4+r]}, {T[8+r]}")
    for r in R2: B(f"v_cvt_pk_bf16_f32 {T[4+r]}, {T[4+r]}, {T[4+r]}")
    for r in R2: B(f"v_and_b32 {T[4+r]}, 0xffff0000, {T[4+r]}")
    for r in R2: B(f"v_mul_f32 {T[4+r]}, {f2u(-LOG2E):#x}, {T[4+r]}")
    for r in R2: B(f"v_exp_f32 {T[4+r]}, {T[4+r]}")
    B("s_nop 0")
    for r in R2: B(f"v_add_f32 {T[4+r]}, 1.0, {T[4+r]}")
    for r in R2: B(f"v_rcp_f32 {T[4+r]}, {T[4+r]}")
    B("s_nop 0")
    for r in R2: B(f"v_cvt_pk_bf16_f32 {T[4+r]}, {T[4+r]}, {T[4+r]}")
    for r in R2: B(f"v_and_b32 {T[4+r]}, 0xffff0000, {T[4+r]}")
    B(f"""s_lshl_b32 s{sT2}, s{sRB}, 5
    s_add_u32 s{sT2}, s{sT2}, s{sCB}
    s_lshl_b32 s{sT2}, s{sT2}, 2
    s_add_u32 s{sT2}, s{sT2}, s{sW}
    s_lshl_b32 s{sT2}, s{sT2}, 3
    s_add_u32 s{sT2}, s{sT2}, {G_OFF}
    s_mov_b64 exec, 1
    buffer_store_dwordx2 {T.sub(4,2)}, {vZero}, {srd(S_WS)}, s{sT2} offen sc1
    s_mov_b64 exec, -1""")
    for ab in range(2):
        for r in range(16): B(f"v_mov_b32 {O[ab][r]}, 0")
        for r in range(4): B(f"v_mov_b32 {Lc[ab][r]}, 0")
    for r in range(8): B(f"v_mov_b32 {P[1][r]}, 0")
    for t in range(2):
        for r in range(4): B(f"v_accvgpr_write_b32 {V[1][t][r]}, 0")
    B(f"""v_lshrrev_b32 {T[4]}, 2, {vL}
    v_lshrrev_b32 {T[5]}, 4, {vL}
    v_xor_b32 {T[4]}, {T[4]}, {T[5]}
    v_and_b32 {T[4]}, 1, {T[4]}
    v_cmp_eq_u32 vcc, 0, {T[4]}
    v_mov_b32 {T[5]}, 0x3f803f80
    v_mov_b32 {vCur}, {vL16}
    v_cndmask_b32 {T[5]}, 0, {T[5]}, vcc
    v_add_u32 {vNxt}, 32768, {vL16}""")
    for r in range(4): B(f"v_accvgpr_write_b32 {ONES[r]}, {T[5]}")
    B(f"""s_mov_b32 s{sCur}, 0
    s_mov_b32 s{sNext}, 32768
    s_mov_b32 s{sFree}, 65536
    s_add_u32 s{sL+14}, s{sM0}, 65536
    s_lshl_b32 s{sFl}, s{sRB}, 2
    s_add_u32 s{sFl}, s{sFl}, s{sW}
    s_lshl_b32 s{sFl}, s{sFl}, 5
    s_add_u32 s{sFl}, s{sFl}, s{sCB}
    s_lshl_b32 s{sFl}, s{sFl}, 2
    s_add_u32 s{sFl}, s{sFl}, {FL_H}
    s_lshl_b32 s{sT1}, s{sRB}, 3
    s_lshr_b32 s{sT2}, s{sCB}, 2
    s_add_u32 s{sT1}, s{sT1}, s{sT2}
    s_lshl_b32 s{sT1}, s{sT1}, 2
    s_and_b32 s{sT2}, s{sW}, 2
    s_add_u32 s{sT1}, s{sT1}, s{sT2}
    s_bfe_u32 s{sT2}, s{sCB}, 0x10001
    s_add_u32 s{sT1}, s{sT1}, s{sT2}
    s_lshl_b32 s{sT1}, s{sT1}, 7
    s_add_u32 s{sT1}, s{sT1}, {FL_Q}
    s_lshl_b32 s{sQf}, s{sRB}, 5
    s_add_u32 s{sQf}, s{sQf}, s{sCB}
    s_lshl_b32 s{sQf}, s{sQf}, 2
    s_add_u32 s{sQf}, s{sQf}, s{sW}
    s_lshl_b32 s{sQf}, s{sQf}, 12
    s_add_u32 s{sQf}, s{sQf}, {QF4_OFF}""")
    def check(regs):
        if len(regs) == 4:
            return [f"v_xor_b32 {r}, {r}, {vNon}" for r in regs] + [f"v_or3_b32 {regs[0]}, {regs[0]}, {regs[1]}, {regs[2]}", f"v_or_b32 {regs[0]}, {regs[0]}, {regs[3]}",
                    f"v_cmp_eq_u32 vcc, 0, {regs[0]}", "s_nop 0", "s_cmp_eq_u64 vcc, -1"]
        L = [f"v_cmp_eq_u32 vcc, s{sNonce}, {regs[0]}"]
        if len(regs) > 1: L += [f"v_cmp_eq_u32 s[{sT2}:{sT3}], s{sNonce}, {regs[1]}", "s_nop 0", f"s_and_b64 vcc, vcc, s[{sT2}:{sT3}]"]
        else: L += ["s_nop 0"]
        return L + ["s_cmp_eq_u64 vcc, -1"]
    def spin(label, load, regs, back=None):
        L = [f"s_mov_b32 s{sT0}, {SPIN_MAX}", f"{label}_L:", load, "s_waitcnt vmcnt(0)"] + check(regs)
        L += [f"s_cbranch_scc1 {back or label + '_OK'}", f"s_sleep {4 if back else 1}", f"s_sub_u32 s{sT0}, s{sT0}, 1",
              f"s_cmp_lg_u32 s{sT0}, 0", f"s_cbranch_scc1 {label}_L", "s_endpgm"]
        if not back: L.append(f"{label}_OK:")
        return L
    B.ext(ts.at("poll0"))
    B.ext(spin("P2_POLL", f"buffer_load_dword {T[8]}, {vZero}, {srd(S_WS)}, s{sT1} offen sc1", [T[8]]))
    B.ext(ts.at("poll1"))
    for ab in range(2):
        for t in range(2): B(f"buffer_load_dwordx4 {Q[ab][t]}, {vQP}, {srd(S_WS)}, s{sQf} offen offset:{ab*2048 + t*512} {SC1}")
    B("s_barrier")
    def kvdma(slot, tag):
        L = []
        for e in range(8):
            pre = []
            if e == 0: pre = [f"s_add_u32 m0, s{slot}, s{sM0}"]
            if e == 4: pre = [f"s_add_u32 s{sT0}, s{slot}, s{sM0}", f"s_add_u32 m0, s{sT0}, 4096", f"s_add_u32 s{sKVo}, s{sKVo}, 4096"]
            L.append((pre, VM(f"buffer_load_dwordx4 {vL16}, {srd(S_KVD)}, s{sKVo} offen offset:{(e&3)*1024} {SC1} lds", tag)))
        return L
    post_dma = f"s_add_u32 s{sKVo}, s{sKVo}, {32768 - 4096}"
    B(f"""ds_read_b128 {K[0][0]}, {vCur}
    ds_read_b128 {K[0][1]}, {vCur} offset:1024
    ds_read_b128 {V[0][0]}, {vCur} offset:2048
    ds_read_b128 {V[0][1]}, {vCur} offset:3072""")
    hist = list(S15) + list(B.lines)
    B(f"""s_waitcnt vmcnt(0) lgkmcnt(0)
    v_mfma_f32_32x32x16_bf16 {S[0]}, {K[0][0]}, {Q[0][0]}, 0
    v_mfma_f32_32x32x16_bf16 {S[0]}, {K[0][1]}, {Q[0][1]}, {S[0]}""")
    B.ext(ts.at("att"))
    B("s_nop 7\ns_nop 3")
    probs += check_hazards(B.lines, "p2pro")
    A.ext(B.lines)

    NS = 4
    S_AF, S_W3, S_OUT = S_A, S_B, S_D
    sMT, sNT = sL + 6, sL + 7
    sAo = sL + 8
    sSo3 = sL + 9
    sM3 = sL + 13
    sWo, sWoN = 30, 15
    setup3 = Asm()
    MAP48 = opt.get("map48", 0)
    if MAP48:
        setup3(f"""s_and_b32 s{sT0}, s{sRB}, 4
        s_add_u32 s{sMT}, s{sRB}, s{sT0}
        s_bfe_u32 s{sT0}, s{sCB}, 0x10003
        s_lshl2_add_u32 s{sMT}, s{sT0}, s{sMT}
        s_lshr_b32 s{sT0}, s{sCB}, 4
        s_and_b32 s{sT1}, s{sCB}, 7
        s_lshl3_add_u32 s{sNT}, s{sT0}, s{sT1}""")
    else:
        setup3(f"""s_and_b32 s{sT0}, s{sCB}, 1
        s_lshl_b32 s{sMT}, s{sRB}, 1
        s_add_u32 s{sMT}, s{sMT}, s{sT0}
        s_lshr_b32 s{sT0}, s{sCB}, 3
        s_lshl_b32 s{sT0}, s{sT0}, 2
        s_bfe_u32 s{sT1}, s{sCB}, 0x20001
        s_add_u32 s{sNT}, s{sT0}, s{sT1}""")
    setup3(f"""s_lshl_b32 s{sT0}, s{sNT}, 7
    s_add_u32 s{S_W3}, s{P_WD}, s{sT0}
    s_addc_u32 s{S_W3+1}, s{P_WD+1}, 0
    s_sub_u32 s{S_W3+2}, {3584*2048}, s{sT0}
    s_add_u32 s{sWo}, s{P_WO}, s{sT0}
    s_addc_u32 s{sWo+1}, s{P_WO+1}, 0
    s_sub_u32 s{sWoN}, {1024*2048}, s{sT0}
    s_mov_b32 s{S_AF}, s{P_WS}
    s_mov_b32 s{S_AF+1}, s{P_WS+1}
    s_mov_b32 s{S_AF+2}, {AF_SIZE3}
    s_mov_b32 s{S_OUT}, s{P_OUT}
    s_mov_b32 s{S_OUT+1}, s{P_OUT+1}
    s_mov_b32 s{S_OUT+2}, 0x400000
    s_mul_i32 s{sAo}, s{sW}, {AFS}
    s_lshl_b32 s{sT0}, s{sMT}, 13
    s_add_u32 s{sAo}, s{sAo}, s{sT0}
    s_add_u32 s{sAo+1}, s{sAo}, 4096
    s_lshl_b32 s{sM3}, s{sW}, 14
    s_add_u32 s{sM3}, s{sM3}, {W3B}""")
    for e in range(1, 4): setup3(f"s_mov_b32 s{sSo3+e}, {e*16384 - e*1024}")
    setup3v = Asm()
    setup3v(f"""v_lshrrev_b32 {T[0]}, 3, {vL}
    v_lshrrev_b32 {T[1]}, 4, {vL}
    v_lshlrev_b32 {T[2]}, 1, {T[1]}
    v_and_b32 {T[3]}, 7, {vL}
    v_xor_b32 {T[2]}, {T[2]}, {T[3]}
    v_lshlrev_b32 {T[2]}, 4, {T[2]}
    v_lshl_add_u32 {vW3o}, {T[0]}, 11, {T[2]}
    s_lshl_b32 s{sT0}, s{sW}, 16
    v_add_u32 {vW3o}, s{sT0}, {vW3o}
    v_lshrrev_b32 {T[0]}, 2, {vL}
    v_bfe_u32 {T[1]}, {vL}, 3, 2
    v_and_b32 {T[2]}, 3, {vL}
    v_lshlrev_b32 {T[2]}, 3, {T[2]}
    v_lshl_add_u32 {T[2]}, {T[0]}, 7, {T[2]}
    v_add_u32 {T[2]}, s{sM3}, {T[2]}""")
    for i in range(4): setup3v(f"v_xor_b32 {T[3]}, {i}, {T[1]}\nv_lshl_add_u32 {vW3a[i]}, {T[3]}, 5, {T[2]}")
    setup3v(f"""s_lshr_b32 s{sT0}, s{sMT}, 1
    s_lshl_b32 s{sT0}, s{sT0}, 9
    s_sub_u32 s{sT0}, s{sT0}, 512
    s_lshl_b32 s{sT1}, s{sRB}, 9
    v_mov_b32 {T[4]}, s{sT0}
    v_mov_b32 {T[5]}, s{sT1}
    v_cmp_gt_u32 vcc, 32, {vL}
    v_and_b32 {T[6]}, 31, {vL}
    v_lshlrev_b32 {T[6]}, 2, {T[6]}
    v_cndmask_b32 {T[4]}, {T[4]}, {T[5]}, vcc
    v_add_u32 {T[4]}, {T[4]}, {vL16}
    v_lshlrev_b32 {T[5]}, 2, {vL}
    v_and_b32 {T[7]}, 15, {vL}
    v_lshlrev_b32 {T[7]}, 2, {T[7]}""")
    zero3 = [f"v_mov_b32 {acc3[i][j][r]}, 0" for i in range(4) for j in range(8) for r in range(4)]
    def w3dma(slot, e):
        m0 = f"s_add_u32 m0, s{sM3}, {slot*4096}"
        return m0, VM(f"buffer_load_dwordx4 {vW3o}, {srd(S_W3)}, {'0' if e == 0 else 's%d' % (sSo3+e)} offen offset:{e*1024} {opt.get('w3nt', '')} lds", ("W", slot))
    def xload(slot, j):
        return VM(f"buffer_load_dwordx4 {RX[slot][j]}, {vL16}, {srd(S_AF)}, s{sAo + (j>>2)} offen offset:{(j&3)*1024} {opt.get('xflag', SC1)}", ("X", slot, j >> 2))
    adv3 = [f"v_add_u32 {vW3o}, {4*65536}, {vW3o}", f"s_add_u32 s{sAo}, s{sAo}, {4*AFS}", f"s_add_u32 s{sAo+1}, s{sAo+1}, {4*AFS}"]
    def wread(slot, s):
        return [f"ds_read_b64_tr_b16 {RW[s][i].sub(2*hf,2)}, {vW3a[i]} offset:{slot*4096 + hf*2048}" for i in range(4) for hf in range(2)]
    def gm(s, j, i, first=False): return f"v_mfma_f32_16x16x32_bf16 {acc3[i][j]}, {RW[s&1][i]}, {RX[s][j]}, {0 if first else acc3[i][j]}"

    def att_parts(ab, kq, vp):
        o = ab ^ 1
        M = [f"v_mfma_f32_32x32x16_bf16 {S[o]}, {K[kq][0]}, {Q[o][0]}, 0",
             f"v_mfma_f32_32x32x16_bf16 {S[o]}, {K[kq][1]}, {Q[o][1]}, {S[o]}",
             f"v_mfma_f32_32x32x16_bf16 {O[o]}, {V[vp][0]}, {P[o].sub(0,4)}, {O[o]}",
             f"v_mfma_f32_16x16x32_bf16 {Lc[o]}, {ONES}, {P[o].sub(0,4)}, {Lc[o]}",
             f"v_mfma_f32_32x32x16_bf16 {O[o]}, {V[vp][1]}, {P[o].sub(4,4)}, {O[o]}",
             f"v_mfma_f32_16x16x32_bf16 {Lc[o]}, {ONES}, {P[o].sub(4,4)}, {Lc[o]}"]
        ex = [f"v_exp_f32 {S[ab][r]}, {S[ab][r]}" for r in range(16)]
        cv = [f"v_cvt_pk_bf16_f32 {P[ab][r]}, {S[ab][2*r]}, {S[ab][2*r+1]}" for r in range(8)]
        return M, ex, cv
    def phase_plain(ab, kq, vp, extra):
        M, ex, cv = att_parts(ab, kq, vp)
        vl = []
        for r in range(16):
            vl.append(ex[r])
            if r >= 3 and r % 2 == 1: vl.append(cv[(r - 3)//2])
        vl.append(cv[7])
        mpos = [0, 4, 8, 12, 15, 19]
        out = []; mi = 0
        for i, v in enumerate(vl):
            while mi < 6 and mpos[mi] == i:
                out.append(M[mi]); out.extend(extra.get(mi, [])); mi += 1
            out.append(v)
        return out
    def phase_merged(ab, kq, vp, G8, extra, tail):
        M, ex, cv = att_parts(ab, kq, vp)
        order = [M[0], G8[0], M[1], G8[1], G8[2], M[2], G8[3], M[3], G8[4], M[4], G8[5], M[5], G8[6], G8[7]]
        e, c = ex, cv
        fill = [[e[0], e[1], e[2]], [e[3]], [e[4], e[5], e[6]], [c[0], c[1]], [e[7]], [e[8], e[9], e[10]], [c[2], c[3]], [e[11]],
                [c[4]], [e[12], e[13], e[14]], [e[15]], [c[5], c[6]], [c[7]], []]
        if opt.get("lpk"):
            pk = [f"v_pk_add_f32 {Lc[ab].sub(2,2)}, {Lc[ab].sub(2,2)}, {S[ab].sub(2*r,2)}" for r in range(8)]
            order[7] = pk[0]; order[11] = pk[1]
            fill[3] = fill[3] + [pk[2]]; fill[6] = fill[6] + [pk[3]]; fill[8] = fill[8] + [pk[4]]; fill[12] = fill[12] + [pk[5]]; fill[13] = [pk[6], pk[7]]
        if opt.get("lnone"): order[7] = "s_nop 0"; order[11] = "s_nop 0"
        out = []
        for k in range(14):
            out.append(order[k]); out.extend(extra.get(k, [])); out.extend(fill[k]); out.extend(tail.get(k, []))
        return out
    NP = opt.get("np", 4)
    PFSW = 6
    sKM = sL + 14
    def chunk(kind, hook=None, first=False, pfok=True):
        out = []
        mer = kind == "merged"
        for pi in range(16):
            tau, ab = pi >> 1, pi & 1
            kp = tau & 1
            ex = {}; tl = {}; pre = []
            if ab == 0:
                src = (vCur, (tau+1)*4096) if tau < 7 else (vNxt, 0)
                ld = [f"ds_read_b128 {K[kp^1][t]}, {src[0]} offset:{src[1] + t*1024}" for t in range(2)]
                if tau == 7: put(ex, 0, [Need(["KV"], "lgkmcnt(0)"), "s_barrier"])
            else:
                src = (vCur, (tau+1)*4096 + 2048) if tau < 7 else (vNxt, 2048)
                ld = [f"ds_read_b128 {V[kp^1][t]}, {src[0]} offset:{src[1] + t*1024}" for t in range(2)]
                pre = ["s_waitcnt lgkmcnt(0)"]
            kvd = VM(f"buffer_load_dwordx4 {vL16}, {srd(S_KVD)}, s{sKVo} offen offset:{(pi&3)*1024} {SC1} lds", "KV")
            rotate = [f"s_mov_b32 s{sT0}, s{sCur}", f"s_mov_b32 s{sCur}, s{sNext}", f"s_mov_b32 s{sNext}, s{sFree}", f"s_mov_b32 s{sFree}, s{sT0}",
                      f"s_add_u32 s{sKM}, s{sT0}, s{sM0}", f"s_add_u32 s{sIt}, s{sIt}, 1"]
            upd = [f"v_add_u32 {vCur}, s{sCur}, {vL16}", f"v_add_u32 {vNxt}, s{sNext}, {vL16}"]
            if not mer:
                put(ex, 1, ld[0]); put(ex, 2, ld[1])
                if pi < 8:
                    lateput = [(4, f"s_mov_b32 m0, s{sKM}"), (5, kvd)]
                    if pi == 3: lateput += [(5, f"s_add_u32 s{sKVo}, s{sKVo}, 4096"), (5, f"s_add_u32 s{sKM}, s{sKM}, 4096")]
                    for g_, x_ in lateput: put(ex, g_, x_)
                    if pi == 7: put(ex, 5, post_dma)
                if pi == 15:
                    for k in range(3): put(ex, 3 + k, rotate[2*k:2*k+2])
            else:
                s, q = pi >> 2, pi & 3
                G8 = [gm(s, 2*q + jj, i, first and s == 0) for jj in range(2) for i in range(4)]
                if q == 0: pre = [Need([("W", (s+1) % NS), ("X", s, 1)], "lgkmcnt(0)")]
                elif ab == 1 and not trace: pre = ["s_waitcnt lgkmcnt(2)"]
                m0, d = w3dma(s, q)
                rd = wread((s+1) % NS, (s+1) & 1)
                ms = opt.get("ms", 3)
                if ms == 1:
                    put(tl, 1, ld[0]); put(tl, 4, ld[1])
                    if q < 3: put(tl, 7, rd[2*q]); put(ex, 13, rd[2*q+1])
                    else: put(tl, 3, rd[2*q]); put(tl, 7, rd[2*q+1])
                    put(ex, 8, xload(s, 2*q)); put(ex, 13, xload(s, 2*q+1))
                    put(ex, 11, m0); put(ex, 12, d)
                    kvs = (9, 10, tl)
                elif ms == 0:
                    put(ex, 2, ld[0]); put(ex, 5, ld[1]); put(ex, 3, rd[2*q]); put(ex, 10, rd[2*q+1])
                    put(ex, 8, xload(s, 2*q)); put(ex, 13, xload(s, 2*q+1)); put(ex, 0, m0); put(ex, 1, d)
                    kvs = (7, 9, ex)
                    if ab == 1 and q: pre = ["s_waitcnt lgkmcnt(1)" if not trace else "s_waitcnt lgkmcnt(0)"]
                elif ms == 2:
                    put(ex, 1, ld[0]); put(ex, 4, ld[1])
                    if q < 3: put(ex, 10, rd[2*q]); put(ex, 12, rd[2*q+1])
                    else: put(ex, 6, rd[2*q]); put(ex, 7, rd[2*q+1])
                    put(ex, 2, m0); put(ex, 3, d); put(ex, 8, xload(s, 2*q)); put(ex, 13, xload(s, 2*q+1))
                    kvs = (4, 5, ex)
                elif ms == 3:
                    put(ex, 0, ld[0]); put(ex, 2, ld[1])
                    if q < 3: put(ex, 9, rd[2*q]); put(ex, 12, rd[2*q+1])
                    else: put(ex, 5, rd[2*q]); put(ex, 9, rd[2*q+1])
                    put(ex, 3, m0); put(ex, 4, d); put(ex, 8, xload(s, 2*q)); put(ex, 13, xload(s, 2*q+1))
                    kvs = (10, 11, ex)
                if q == 3: put(ex, 13, adv3[0])
                if pi < 8: put(ex, kvs[0], f"s_mov_b32 m0, s{sKM}"); put(kvs[2], kvs[1], kvd)
                if pi in (4,): put(ex, 1, f"s_add_u32 s{sKVo}, s{sKVo}, 4096"); put(ex, 2, f"s_add_u32 s{sKM}, s{sKM}, 4096")
                if pi == 8: put(ex, 1, post_dma)
                if q == 0 and s > 0: put(ex, 3, adv3[1]); put(ex, 4, adv3[2])
                if pi == 15:
                    for k in range(6): put(ex, 2 + k, rotate[k])
                if pi == 9 and PF:
                    put(ex, 11, pfop[0])
                    put(ex, 6, [f"s_cmp_eq_u32 s{sIt}, {PFSW}", f"s_cselect_b32 s{sPF}, 0, s{sPF}", f"s_cselect_b32 s{S_PF}, s{P_WO}, s{S_PF}",
                                f"s_cselect_b32 s{S_PF+1}, s{P_WO+1}, s{S_PF+1}", f"s_cselect_b32 s{S_PF+2}, 0x200000, s{S_PF+2}"])
                if pi == 10 and PF: put(ex, 1, pfop[1])
                if pi == 12: put(ex, 11, cp(False))
            if pi % 8 == 6: put(ex, 5, tr_issue())
            if pi % 8 == 7: pre = pre + tr_commit()
            if hook: hook(pi, ex, pre)
            if mer: out += pre + phase_merged(ab, kp ^ ab, kp ^ 1 ^ ab, G8, ex, tl)
            else: out += pre + phase_plain(ab, kp ^ ab, kp ^ 1 ^ ab, ex)
        if mer: out += adv3[1:]
        out += upd
        return out

    dflt = {3: dict(hs=[1, 1], gs=23, hf=26, hp=36, hc=39, pf=[25, 28, 41]), 4: dict(hs=[2, 1], gs=32, hf=44, hp=50, hc=53, pf=[34, 38, 44, 56])}[NP]
    dflt.update(opt.get("sched", {}))
    HSN, HSD = dflt["hs"]; GS, HF, HPg, HC, PFP = dflt["gs"], dflt["hf"], dflt["hp"], dflt["hc"], dflt["pf"]
    assert len(PFP) == NP
    hst = hst0 + hst1a
    hph = [dflt.get("hs0", 0) + n*HSN//HSD for n in range(16)]
    assert hph[-1] < GS and (GS & 15) >= 0
    hpoll = f"buffer_load_dwordx4 {vFl}, {T[4]}, {srd(S_WS)}, s{sT1} offen sc1"
    LASTP = 16*NP - 1
    wph = [GS + 1 + k // 2 for k in range(16)]
    xph = [HC + 1 + (k * (LASTP - HC)) // 32 for k in range(32)]
    def mkhook(base):
        def hook(pi, ex, pre):
            gp = base + pi
            k = 0
            for n in range(16):
                if hph[n] == gp: put(ex, [3, 0][k], hst[n]); k += 1
            if gp == GS:
                put(ex, 0, setup3.lines[:14]); put(ex, 1, setup3.lines[14:]); put(ex, 3, setup3v.lines)
                if PF:
                    put(ex, 3, [f"s_lshl_b32 s{sT1}, s2, 2", f"s_add_u32 s{sT1}, s{sT1}, s{sW}", f"s_lshl_b32 s{sT1}, s{sT1}, 10",
                        f"v_lshrrev_b32 {vPF}, 3, {vL}", f"v_lshlrev_b32 {vPF}, 7, {vPF}", f"v_add_u32 {vPF}, s{sT1}, {vPF}",
                        f"s_mov_b32 s{S_PF}, s{P_WD}", f"s_mov_b32 s{S_PF+1}, s{P_WD+1}", f"s_mov_b32 s{S_PF+2}, {3584*2048}", f"s_mov_b32 s{sPF}, 0x100000"])
            if gp in PFP and PF: put(ex, 2, pfop)
            if gp in (9, 16*NP - 22): put(ex, 2, cp())
            k = 0
            for n in range(16):
                if wph[n] == gp:
                    s_, e_ = divmod(n, 4)
                    m0, d = w3dma(s_, e_)
                    if k == 0: put(ex, 0, m0)
                    put(ex, 2*k + 1, [d] + ([adv3[0]] if e_ == 3 else [])); k += 1
            if gp == HF:
                put(ex, 2, [Need(["H"]), "s_mov_b64 exec, 1", VM(f"buffer_store_dword {vNon}, {vZero}, {srd(S_WS)}, s{sFl} offen sc1", "HF"), "s_mov_b64 exec, -1", "s_nop 2"])
            if gp == HPg: put(ex, 3, [f"s_mov_b32 s{sT1}, {FL_H}", VM(hpoll, "HP")])
            if gp == HC:
                put(ex, 2, [Need(["HP"])] + check([vFl[k] for k in range(4)]) + ["s_cbranch_scc0 P3_SLOWH", "P3_HOK:"])
                put(ex, 3, [f"s_lshl_b32 s{sT2}, s{sRB}, 10", f"s_lshl_b32 s{sT3}, s{sW}, 8", f"s_add_u32 s{sT2}, s{sT2}, s{sT3}", f"s_add_u32 s{sT2}, s{sT2}, {G_OFF}",
                            f"s_lshl_b32 s{sT3}, s{sMT}, 9", f"s_add_u32 s{sT3}, s{sT3}, {G_OFF}"])
                put(ex, 3, [VM(f"buffer_load_dword {vG[ab]}, {T[6]}, {srd(S_WS)}, s{sT2} offen offset:{ab*128} sc1", "G") for ab in range(2)])
                put(ex, 3, [VM(f"buffer_load_dword {SCL[j]}, {T[7]}, {srd(S_WS)}, s{sT3} offen offset:{j*64} sc1", "G") for j in range(8)])
            k = 0
            for n in range(32):
                if xph[n] == gp:
                    s_, j_ = divmod(n, 8)
                    put(ex, [0, 2, 3, 4][k], [xload(s_, j_)] + (adv3[1:] if j_ == 7 else [])); k += 1
            if gp == LASTP: put(ex, 5, [Need([("W", 0)])] + wread(0, 0))
        return hook
    def retag(ch, cur, need):
        out = []
        for l in ch:
            if isinstance(l, VM) and l.tag == "KV": out.append(VM(l, cur))
            elif isinstance(l, Need) and "KV" in l.tags: out.append(Need([need], l.extra))
            else: out.append(l)
        return out
    hist = [VM(l, "KV-1") if isinstance(l, VM) and l.tag == "KV" else l for l in hist]
    CP = []; hh_ = list(hist)
    for c in range(NP):
        ch = resolve_waits(retag(chunk("plain", mkhook(16*c)), f"KV{c}", f"KV{c-1}"), hh_)
        CP.append(ch); hh_ += ch
    mA = retag(chunk("merged"), "KVa", "KVb"); mB = retag(chunk("merged"), "KVb", "KVa")
    mres = resolve_waits(mA, mB)
    M = mres
    M0 = resolve_waits(retag(chunk("merged", first=True), "KVb", f"KV{NP-1}"), hh_)
    probs += verify_waits(hh_ + M0 + M, len(hh_ + M0), "M0->M")
    mab = opt.get("mabl", "")
    def abl(L):
        out = []
        for l in L:
            if "x" in mab and isinstance(l, VM) and isinstance(l.tag, tuple) and l.tag[0] == "X": continue
            if "w" in mab and isinstance(l, VM) and isinstance(l.tag, tuple) and l.tag[0] == "W": continue
            if "t" in mab and l.startswith("ds_read_b64_tr"): continue
            if "k" in mab and l.startswith("ds_read_b128"): continue
            if "s" in mab and l.startswith(("s_add", "s_mov", "s_cmp", "s_cselect")) and f"s{sIt}" not in l and "exec" not in l: continue
            if "n" in mab and isinstance(l, Need): out.append("s_waitcnt lgkmcnt(0)" if l.extra else "s_nop 0"); continue
            if "g" in mab and l.startswith("v_mfma_f32_16x16") and "a[2" in l: continue
            out.append(l)
        return out
    Me = abl(M); M0e = abl(M0)
    D = Asm()
    D(f"s_mov_b32 s{sIt}, 0")
    for c in range(NP): D.ext(ts.at(f"c{c}")); D.ext(CP[c])
    D.ext(ts.at("m")); D.ext(M0e)
    D(".p2align 6\nP2_MLOOP:")
    D.ext(Me)
    D(f"s_cmp_lt_u32 s{sIt}, 8\ns_cbranch_scc1 P2_MLOOP")
    probs += check_hazards(B.lines[-8:] + sum(CP, []) + M0 + M + M, "att")
    A.ext(D.lines)

    C = Asm()
    C.ext(ts.at("attend"))
    C(f"""v_mfma_f32_32x32x16_bf16 {O[1]}, {V[1][0]}, {P[1].sub(0,4)}, {O[1]}
    v_mfma_f32_16x16x32_bf16 {Lc[1]}, {ONES}, {P[1].sub(0,4)}, {Lc[1]}
    v_mfma_f32_32x32x16_bf16 {O[1]}, {V[1][1]}, {P[1].sub(4,4)}, {O[1]}
    v_mfma_f32_16x16x32_bf16 {Lc[1]}, {ONES}, {P[1].sub(4,4)}, {Lc[1]}""")
    C(f"v_mov_b32 {T[1]}, 0")
    for r in range(16): C(f"v_fmac_f32 {T[1]}, 0, {O[0][r]}")
    for r in range(16): C(f"v_fmac_f32 {T[1]}, 0, {O[1][r]}")
    C(f"""s_mov_b32 s{sT0}, {f2u(2.0**-60):#x}
    s_mov_b32 s{sT1}, {f2u(2.0**100):#x}
    v_cmp_le_f32 vcc, s{sT0}, {Lc[0][0]}
    v_cmp_le_f32 s[{S_C}:{S_C+1}], s{sT0}, {Lc[1][0]}
    s_nop 1
    s_and_b64 vcc, vcc, s[{S_C}:{S_C+1}]
    v_cmp_ge_f32 s[{S_C}:{S_C+1}], s{sT1}, {Lc[0][0]}
    v_cmp_ge_f32 s[{sT2}:{sT3}], s{sT1}, {Lc[1][0]}
    s_nop 1
    s_and_b64 vcc, vcc, s[{S_C}:{S_C+1}]
    s_and_b64 vcc, vcc, s[{sT2}:{sT3}]
    v_cmp_eq_f32 s[{S_C}:{S_C+1}], 0, {T[1]}
    s_nop 1
    s_and_b64 vcc, vcc, s[{S_C}:{S_C+1}]
    s_cmp_eq_u64 vcc, -1""")
    if opt.get("force_fallback"): C("s_branch P2_FALLBACK")
    C("s_cbranch_scc0 P2_FALLBACK")
    C("P2_FINISH:")
    for ab in range(2): C(f"v_rcp_f32 {T[2*ab]}, {Lc[ab][0]}")
    C(f"""s_add_u32 s{sT0}, s{sCB}, 112
    s_mul_i32 s{sT0}, s{sT0}, {AFS}
    s_lshl_b32 s{sT1}, s{sRB}, 14
    s_add_u32 s{sT0}, s{sT0}, s{sT1}
    s_lshl_b32 s{sT1}, s{sW}, 12
    s_add_u32 s{sT0}, s{sT0}, s{sT1}""")
    for ab in range(2): C(f"v_mul_f32 {T[2*ab]}, {T[2*ab]}, {vG[ab]}")
    for ab in range(2):
        for r in range(0, 16, 2):
            C(f"v_pk_mul_f32 {O[ab].sub(r,2)}, {O[ab].sub(r,2)}, {T.sub(2*ab,2)} op_sel_hi:[1,0]")
        for r in range(8): C(f"v_cvt_pk_bf16_f32 {S[ab][r]}, {O[ab][2*r]}, {O[ab][2*r+1]}")
        for c in range(2):
            C(VM(f"buffer_store_dwordx4 {S[ab].sub(4*c,4)}, {vQP}, {srd(S_WS)}, s{sT0} offen offset:{ab*2048 + c*512} {SC1}", "O"))
    for j in range(8): C(f"v_sub_f32 {SCL[j]}, 1.0, {SCL[j]}")
    for j in range(8): C(f"v_cvt_pk_bf16_f32 {SCL[j]}, {SCL[j]}, {SCL[j]}")
    for j in range(8): C(f"v_and_b32 {SCL[j]}, 0xffff0000, {SCL[j]}")
    sFC = sL
    C(f"""s_lshl_b32 s{sFC}, s{sMT}, 8
    s_add_u32 s{sFC}, s{sFC}, {FL_O}
    s_add_u32 s{sFl}, s{sFl}, {FL_O - FL_H}""")
    C.ext(ts.at("tail"))
    def p3iter(hook=None):
        out = []
        for s in range(NS):
            m = [gm(s, j, i) for j in range(8) for i in range(4)]
            f = {}
            if opt.get("t3", 1) == 0:
                f[-1] = [Need([("W", (s+1) % NS), ("X", s, 1)], "lgkmcnt(0)"), w3dma(s, 0)[0]]
                dgap = [0, 6, 14, 22]
                for e in range(4): put(f, dgap[e], w3dma(s, e)[1])
                for k, r in enumerate(wread((s + 1) % NS, (s+1) & 1)): put(f, 1 + 3*k, r)
                for j in range(8): put(f, 4*j + 3 + (1 if j < 7 else 0), xload(s, j))
            else:
                f[-1] = [Need([("X", s, 0)], "lgkmcnt(0)"), w3dma(s, 0)[0]]
                dgap = opt.get("t3w", [0, 2, 6, 10])
                for e in range(4): put(f, dgap[e], w3dma(s, e)[1])
                put(f, 15, Need([("X", s, 1)]))
                rg0 = opt.get("t3r", 18)
                put(f, rg0 - 1, Need([("W", (s+1) % NS)]))
                for k, r in enumerate(wread((s + 1) % NS, (s+1) & 1)): put(f, rg0 + k + (1 if rg0 + k >= 20 else 0) + (1 if rg0 + k >= 23 else 0), r)
                for j in range(8): put(f, 4*j + 3 + (1 if j < 7 else 0), xload(s, j))
            put(f, 31, adv3)
            put(f, 28, tr_issue())
            if trace: f[-1] = f[-1][:1] + tr_commit() + f[-1][1:]
            if hook: hook(s, f)
            out += interleave(m, f)
        return out
    opoll = f"buffer_load_dword {vFl[0]}, {T[5]}, {srd(S_WS)}, s{sFC} offen sc1"
    NT = NP - 2
    OFS, OPS = opt.get("oflag_step", 2), opt.get("opoll_step", 4*NT - 1 if NT == 1 else 4*NT - 2)
    def mkT(base):
        def hookT(s, f):
            if base + s == OFS: put(f, 10, [Need(["O"]), "s_mov_b64 exec, 1", VM(f"buffer_store_dword {vNon}, {vZero}, {srd(S_WS)}, s{sFl} offen sc1", "OF"), "s_mov_b64 exec, -1", "s_nop 2"])
            if base + s == OPS: put(f, 26, VM(opoll, "OP"))
            if base + s == 1 and CPF: put(f, 14, [cpa] + cp(False))
        return hookT
    T5 = []
    for k in range(NT): T5 += resolve_waits(p3iter(mkT(4*k)), M + M + C.lines + T5)
    L3 = resolve_waits(p3iter())
    mid = [Need(["OP"])] + check([vFl[0]]) + ["s_cbranch_scc0 P3_SLOWO", "P3_OOK:",
           f"s_mov_b32 s{S_W3}, s{sWo}", f"s_mov_b32 s{S_W3+1}, s{sWo+1}", f"s_mov_b32 s{S_W3+2}, s{sWoN}",
           f"v_subrev_u32 {vW3o}, {28*4*65536}, {vW3o}", f"s_mov_b32 s{sIt}, 6", "s_barrier",
           f"v_add_u32 {T[0]}, 0x10000, {vL16}", f"v_and_b32 {T[1]}, 15, {vL}", f"v_lshlrev_b32 {T[1]}, 11, {T[1]}", f"v_bfe_u32 {T[2]}, {vL}, 4, 1",
           f"v_lshl_add_u32 {T[1]}, {T[2]}, 5, {T[1]}", f"v_lshrrev_b32 {T[2]}, 5, {vL}", f"v_lshl_add_u32 {T[1]}, {T[2]}, 4, {T[1]}",
           f"s_lshl_b32 s{sT0}, s{sMT}, 18", f"s_lshl_b32 s{sT1}, s{sW}, 16", f"s_add_u32 s{sT0}, s{sT0}, s{sT1}",
           f"s_lshl_b32 s{sT1}, s{sNT}, 7", f"s_add_u32 s{sT0}, s{sT0}, s{sT1}", f"s_add_u32 s{sT1}, s{sT0}, 32768"]
    mid = resolve_waits(mid, T5)
    probs += verify_waits(M + C.lines + T5 + mid + L3, len(M + C.lines + T5 + mid), "T5->L3")
    tail = [f"s_add_u32 s{sIt}, s{sIt}, 1", f"s_cmp_eq_u32 s{sIt}, 8", "s_cbranch_scc1 P3_DONE", "s_nop 7"]
    for i in range(4):
        for j in range(8):
            for r in (0, 2):
                tail.append(f"v_pk_mul_f32 {acc3[i][j].sub(r,2)}, {acc3[i][j].sub(r,2)}, {SCL.sub(j & ~1, 2)} op_sel:[0,{j&1}] op_sel_hi:[1,{j&1}]")
    tail += ["s_nop 0", "s_branch P3_LOOP", "P3_DONE:"]
    probs += check_hazards(M[-30:] + C.lines + T5 + mid + L3 + tail + L3, "tail") + check_hazards(L3 + L3, "l3")
    tab = opt.get("tabl", "")
    def tabl(L):
        out = []
        for l in L:
            if isinstance(l, VM) and isinstance(l.tag, tuple) and l.tag[0].lower() in tab: continue
            if "t" in tab and l.startswith("ds_read_b64_tr"): continue
            if "m" in tab and l.startswith("v_mfma"): continue
            if "a" in tab and l in adv3: continue
            out.append(l)
        return out
    T5 = tabl(T5); L3 = tabl(L3)
    C.ext(T5); C.ext(ts.at("t5end")); C.ext(mid); C.ext(ts.at("l3"))
    C(".p2align 6\nP3_LOOP:")
    C.ext(L3); C.ext(tail); C.ext(ts.at("l3end"))
    for w in range(3): C(f"s_cmp_eq_u32 s{sW}, {w}\ns_cbranch_scc1 P3_FIN{w}")
    A.ext(C.lines)
    RWF = [RW[0]] + [[Reg("a", 128 + 16*k + 4*i, 4) for i in range(4)] for k in range(3)]
    def fin(w):
        def adr(off): return (vL16, off) if off < 65536 else (T[0], off - 65536)
        own = [2*w, 2*w + 1]
        oth = [j for d in range(1, 4) for j in (2*((w + d) & 3), 2*((w + d) & 3) + 1)]
        mm = lambda s_, j, i: f"v_mfma_f32_16x16x32_bf16 {acc3[i][j]}, {RWF[s_][i]}, {RX[s_][j]}, {acc3[i][j]}"
        m = [mm(0, j, i) for j in oth + own for i in range(4)]
        f = {}
        f[-1] = [Need([("X", 0, 1), ("W", 1)], "lgkmcnt(0)")]
        k = 0
        for s_ in (1, 2, 3):
            if s_ > 1: put(f, k, Need([("W", s_)]))
            for i in range(4):
                for hf in range(2):
                    put(f, k, f"ds_read_b64_tr_b16 {RWF[s_][i].sub(2*hf,2)}, {vW3a[i]} offset:{s_*4096 + hf*2048}"); k += 1
        put(f, 31, Need([("X", 3, 1)], "lgkmcnt(0)"))
        for n, j in enumerate(oth + own):
            m += [mm(s_, j, i) for s_ in (1, 2, 3) for i in range(4)]
        for n, j in enumerate(oth):
            d = j >> 1; q = (w - d - 1) & 3
            for i in range(4):
                b_, off = adr((d*3 + q)*8192 + ((j & 1)*4 + i)*1024)
                put(f, 32 + 12*(n + 1) + 5 + 2*i, f"ds_write_b128 {b_}, {acc3[i][j]} offset:{off}")
        free = [acc3[i][j] for j in oth for i in range(4)]
        g0 = 32 + 12*7 + 2
        put(f, g0, ["s_waitcnt lgkmcnt(0)", "s_barrier"])
        k = 0
        for q in range(3):
            for jj in range(2):
                for i in range(4):
                    b_, off = adr((w*3 + q)*8192 + (jj*4 + i)*1024)
                    put(f, min(g0 + k // 3, 127), f"ds_read_b128 {free[k]}, {b_} offset:{off}"); k += 1
        R = Asm()
        R.ext(resolve_waits(interleave(m, f), L3 + L3))
        R.ext(ts.at("redw"))
        R("s_nop 3")
        for q in range(3):
            R(f"s_waitcnt lgkmcnt({[15, 8, 0][q] if not ts.on else 0})")
            for jj in range(2):
                for i in range(4):
                    a = acc3[i][2*w+jj]; b = free[q*8 + jj*4 + i]
                    for r in (0, 2): R(f"v_pk_add_f32 {a.sub(r,2)}, {a.sub(r,2)}, {b.sub(r,2)}")
        for jj in range(2):
            for ip in range(2):
                X, Y = acc3[2*ip][2*w+jj], acc3[2*ip+1][2*w+jj]
                Dd = S[0].sub(4*(jj*2+ip), 4)
                R(f"v_cvt_pk_bf16_f32 {Dd[0]}, {X[0]}, {X[1]}\nv_cvt_pk_bf16_f32 {Dd[1]}, {X[2]}, {X[3]}")
                R(f"v_cvt_pk_bf16_f32 {Dd[2]}, {Y[0]}, {Y[1]}\nv_cvt_pk_bf16_f32 {Dd[3]}, {Y[2]}, {Y[3]}")
                R(f"s_nop 1\nv_permlane16_swap_b32 {Dd[0]}, {Dd[2]}\nv_permlane16_swap_b32 {Dd[1]}, {Dd[3]}")
                R(f"buffer_store_dwordx4 {Dd}, {T[1]}, {srd(S_OUT)}, s{sT0+jj} offen offset:{ip*64} {opt.get('outflag', '')}")
        if trace:
            R(f"""s_waitcnt vmcnt(0)
            s_memrealtime s[100:101]
            s_waitcnt lgkmcnt(0)
            s_lshl_b64 exec, 1, s81
            v_mov_b32 v0, s100
            s_mov_b64 exec, -1
            s_lshl_b32 s80, s2, 2
            s_add_u32 s80, s80, s{sW}
            s_lshl_b32 s80, s80, 8
            s_add_u32 s80, s80, {TS_OFF}
            v_lshlrev_b32 {T[3]}, 2, {vL}
            buffer_store_dword v0, {T[3]}, {srd(S_WS)}, s80 offen
            s_waitcnt vmcnt(0) ; TRACE""")
        R.ext(ts.flush(S_WS, sW, S[1].base))
        R("s_endpgm")
        return R
    for w in (3, 0, 1, 2):
        R = fin(w)
        probs += check_hazards(L3[-10:] + R.lines, f"fin{w}")
        A(f"P3_FIN{w}:"); A.ext(R.lines)
    A.ext(slow1.lines)
    A("P3_SLOWH:"); A.ext(spin("P3_SH", hpoll, [vFl[k] for k in range(4)], "P3_HOK"))
    A("P3_SLOWO:"); A.ext(spin("P3_SO", opoll, [vFl[0]], "P3_OOK"))

    F = Asm()
    F("P2_FALLBACK:")
    for ab in range(2): F(f"v_mov_b32 {T[ab]}, 0xff800000")
    F(f"s_mov_b32 s{sT0}, {KV_OFF}")
    F("P2_FB1:")
    for t in range(2): F(f"buffer_load_dwordx4 {K[0][t]}, {vL16}, {srd(S_WS)}, s{sT0} offen offset:{t*1024} {SC1}")
    F("s_waitcnt vmcnt(0)")
    for ab in range(2):
        F(f"v_mfma_f32_32x32x16_bf16 {S[ab]}, {K[0][0]}, {Q[ab][0]}, 0\nv_mfma_f32_32x32x16_bf16 {S[ab]}, {K[0][1]}, {Q[ab][1]}, {S[ab]}")
    F("s_nop 15")
    for ab in range(2):
        for r in range(0, 16, 2): F(f"v_max3_f32 {T[ab]}, {S[ab][r]}, {S[ab][r+1]}, {T[ab]}")
    F(f"s_add_u32 s{sT0}, s{sT0}, 4096\ns_cmp_lt_u32 s{sT0}, {KV_OFF + 262144}\ns_cbranch_scc1 P2_FB1")
    for ab in range(2): F(f"v_mov_b32 {T[2+ab]}, {T[ab]}")
    F("s_nop 1")
    for ab in range(2): F(f"v_permlane32_swap_b32 {T[ab]}, {T[2+ab]}")
    for ab in range(2): F(f"v_max_f32 {T[8+ab]}, {T[ab]}, {T[2+ab]}")
    for ab in range(2):
        for r in range(16): F(f"v_mov_b32 {O[ab][r]}, 0")
        for r in range(4): F(f"v_mov_b32 {Lc[ab][r]}, 0")
    F(f"s_mov_b32 s{sT0}, {KV_OFF}")
    F("P2_FB2:")
    for t in range(2): F(f"buffer_load_dwordx4 {K[0][t]}, {vL16}, {srd(S_WS)}, s{sT0} offen offset:{t*1024} {SC1}")
    for t in range(2): F(f"buffer_load_dwordx4 {V[0][t]}, {vL16}, {srd(S_WS)}, s{sT0} offen offset:{2048 + t*1024} {SC1}")
    F("s_waitcnt vmcnt(0)")
    for ab in range(2):
        F(f"v_mfma_f32_32x32x16_bf16 {S[ab]}, {K[0][0]}, {Q[ab][0]}, 0\nv_mfma_f32_32x32x16_bf16 {S[ab]}, {K[0][1]}, {Q[ab][1]}, {S[ab]}")
    F("s_nop 15")
    for ab in range(2):
        for r in range(16): F(f"v_sub_f32 {S[ab][r]}, {S[ab][r]}, {T[8+ab]}")
        for r in range(16): F(f"v_exp_f32 {S[ab][r]}, {S[ab][r]}")
        F("s_nop 0")
        for r in range(8): F(f"v_cvt_pk_bf16_f32 {P[ab][r]}, {S[ab][2*r]}, {S[ab][2*r+1]}")
    F("s_nop 1")
    for ab in range(2):
        for u_ in range(2):
            F(f"v_mfma_f32_32x32x16_bf16 {O[ab]}, {V[0][u_]}, {P[ab].sub(4*u_,4)}, {O[ab]}")
            F(f"v_mfma_f32_16x16x32_bf16 {Lc[ab]}, {ONES}, {P[ab].sub(4*u_,4)}, {Lc[ab]}")
    F(f"s_add_u32 s{sT0}, s{sT0}, 4096\ns_cmp_lt_u32 s{sT0}, {KV_OFF + 262144}\ns_cbranch_scc1 P2_FB2")
    F("s_nop 15\ns_branch P2_FINISH")
    F("L_END:\ns_endpgm")
    probs += check_hazards(F.lines, "fb")
    A.ext(F.lines)
    for p_ in probs: print("PROBLEM", p_)
    launch = f"; @launch grid=(256,1,1) block=(256,1,1) lds=163840"
    return launch, A.text(), kdesc(NAME, 512, 256)

HDR = open("gated_mix__grouped_kv_mqa__glu_gated_reglu__prompt.s.ref").read().split("; Override launch")[0]
def build(opt=None):
    l, t, d = gen(opt)
    return HDR + l + "\n" + '.amdgcn_target "amdgcn-amd-amdhsa--gfx950"\n.text\n' + t + d
if __name__ == "__main__":
    import sys, json
    out = sys.argv[1] if len(sys.argv) > 1 else "gated_mix__grouped_kv_mqa__glu_gated_reglu__prompt.s"
    opt = json.loads(sys.argv[2]) if len(sys.argv) > 2 else {}
    open(out, "w").write(build(opt))
```

```python
from asmlib import *
from common import *
LOG2E = math.log2(math.e)
NAME = "gated_mix__grouped_kv_mqa__glu_gated_reglu__prompt_kernel"

FL_E = 0x1650000
FL_ES = 4352
FL_Q = 0x1660000
FL_H = 0x1649000
FL_O = 0x164a000
SPIN_MAX = 1 << 20
PW = 7168

def put(f, g, x):
    f.setdefault(g, []).extend(x if isinstance(x, list) else [x])

def gen(opt=None):
    opt = opt or {}
    A = Asm()
    DEF = ["start", "p1", "p1end", "kvdone", "poll0", "poll1", "att", "attend", "tail"]
    tsn = opt.get("ts")
    ts = TSN(DEF if tsn == 1 else tsn, opt.get("tskind", "rt"))
    SC1 = "sc1"
    probs = []
    P_X, P_WQ, P_WK, P_WV, P_WO = 4, 6, 8, 10, 12
    P_WG, P_WU, P_WD, P_GW = 16, 18, 20, 22
    P_OUT, P_DBG, P_WS = 24, 26, 28
    S_WS, S_A, S_B, S_C, S_D, S_E = 32, 36, 40, 44, 48, 52
    sW, sNonce = 56, 57
    sT0, sT1, sT2, sT3 = 58, 59, 60, 61
    sIt, sRB, sCB = 62, 63, 64
    sL = 65
    vL, vL16 = Reg("v", 1, 1), Reg("v", 2, 1)
    def srd(b): return f"s[{b}:{b+3}]"

    A(f".globl {NAME}\n.p2align 8\n.type {NAME},@function\n{NAME}:")
    A("s_cmp_ge_u32 s2, 256\ns_cbranch_scc1 L_END")
    A.ext(ts.at("start"))
    A(f"""s_load_dwordx8 s[4:11], s[0:1], 0
    s_load_dwordx2 s[12:13], s[0:1], 32
    s_load_dwordx8 s[16:23], s[0:1], 48
    s_load_dwordx4 s[24:27], s[0:1], 80
    s_load_dwordx2 s[28:29], s[0:1], 96
    s_memrealtime s[30:31]
    v_lshrrev_b32 v3, 6, v0
    v_and_b32 {vL}, 63, v0
    v_readfirstlane_b32 s{sW}, v3
    v_lshlrev_b32 {vL16}, 4, {vL}""")
    CPF = opt.get("cpf", 1) and not opt.get("trace")
    sPC = 100
    cpf = VM(f"global_load_dword a253, v0, s[{sPC}:{sPC+1}]", "CP")
    cpa = "v_add_u32 v0, 0x2000, v0"
    def cp(adv=True): return ([cpf] + ([cpa] if adv else [])) if CPF else []
    if CPF:
        A(f"""s_getpc_b64 s[{sPC}:{sPC+1}]
        L_PCREF:
        v_lshlrev_b32 v0, 7, {vL}
        s_sub_u32 s{sPC}, s{sPC}, L_PCREF-{NAME}
        s_subb_u32 s{sPC+1}, s{sPC+1}, 0""")
        A.ext(cp())

    if opt.get("ticket", 0):
        A(f"""s_getreg_b32 s{sT0}, hwreg(HW_REG_XCC_ID)
        s_and_b32 s{sT0}, s{sT0}, 7
        s_cmp_lg_u32 s{sW}, 0
        s_cbranch_scc1 L_TKWAIT
        v_mov_b32 v5, 0
        s_mov_b32 s{sT1}, 8
        s_mov_b32 s{S_WS+2}, 256
        s_mov_b32 s{S_WS+3}, 0x20000
        s_waitcnt lgkmcnt(0)
        s_mov_b32 s{S_WS}, s{P_DBG}
        s_mov_b32 s{S_WS+1}, s{P_DBG+1}
        s_mov_b64 exec, 1
        L_TKTRY:
        v_mov_b32 v4, 1
        s_lshl_b32 s{sT2}, s{sT0}, 5
        buffer_atomic_add v4, v5, {srd(S_WS)}, s{sT2} offen offset:4 sc0
        s_waitcnt vmcnt(0)
        v_readfirstlane_b32 s{sT2}, v4
        s_cmp_lt_u32 s{sT2}, 32
        s_cbranch_scc1 L_TKGOT
        s_add_u32 s{sT0}, s{sT0}, 1
        s_and_b32 s{sT0}, s{sT0}, 7
        s_sub_u32 s{sT1}, s{sT1}, 1
        s_cmp_lg_u32 s{sT1}, 0
        s_cbranch_scc1 L_TKTRY
        s_mov_b32 s{sT2}, 32
        L_TKGOT:
        s_lshl_b32 s{sT2}, s{sT2}, 3
        s_add_u32 s{sT2}, s{sT2}, s{sT0}
        v_mov_b32 v4, s{sT2}
        ds_write_b32 v5, v4
        s_mov_b64 exec, -1
        s_waitcnt lgkmcnt(0)
        L_TKWAIT:
        v_mov_b32 v5, 0
        s_barrier
        ds_read_b32 v4, v5
        s_waitcnt lgkmcnt(0)
        v_readfirstlane_b32 s2, v4
        s_barrier
        s_cmp_ge_u32 s2, 256
        s_cbranch_scc1 L_END""")
    trace = opt.get("trace")
    def tr_issue(): return ["s_memrealtime s[100:101]"] if trace else []
    def tr_commit(): return ["s_lshl_b64 exec, 1, s81", "v_mov_b32 v0, s100", "s_mov_b64 exec, -1", "s_add_u32 s81, s81, 1"] if trace else []
    if trace: A("s_mov_b32 s81, 0\nv_mov_b32 v0, 0\ns_memrealtime s[100:101]\ns_waitcnt lgkmcnt(0)"); A.ext(tr_commit())
    S_X, S_W0, S_W1, S_KV, S_Wb = S_A, S_B, S_C, S_D, S_E
    sSoX = sL - 1
    sSo0 = sL + 7
    sSo1 = sL + 7
    sM0X, sM0W, sM0K, sWwr = sL + 11, sL + 12, sL + 13, sL + 14
    sWrd, s16k, sStep1, sSa, sSc, sIsB, sKVst, sEfl = 14, 30, 15, 3, 31, 9, 10, 11
    XB, WB, KR = 0, 65536, 147456
    vXo = [3, 4]; vWo0, vWo1, vKo, vSXo = 5, 6, 7, 8
    vXa = [9, 10]; vW0a = [[11 + 2*i, 12 + 2*i] for i in range(4)]; vW1a = [19, 20, 21, 22]; vSWa = 23
    vT = 24
    acc = [[None]*8 for _ in range(8)]
    p = 32
    for i in range(7):
        for j in range(8):
            acc[i][j] = Reg("v", p, 4); p += 4
    RA = [[Reg("a", 64*s + 4*i, 4) for i in range(8)] for s in range(2)]
    RB = [[Reg("a", 64*s + 32 + 4*j, 4) for j in range(8)] for s in range(2)]
    SA = [Reg("a", 128 + 4*s, 4) for s in range(2)]
    sacc = Reg("a", 144, 4)
    for j in range(8): acc[7][j] = Reg("a", 148 + 4*j, 4)
    SXB = [[Reg("a", 180 + 8*b + 4*j, 4) for j in range(2)] for b in range(2)]
    GXa = [Reg("a", 196 + 8*r, 8) for r in range(2)]
    GWa = Reg("a", 212, 8)
    t0, t1, t2, t3, t4, t5, t6, t7 = range(vT, vT + 8)
    HUGE = 0x40000000

    A(f"""s_and_b32 s{sT0}, s2, 1
    s_lshl_b32 s{sT0}, s{sT0}, 2
    s_bfe_u32 s{sT1}, s2, 0x20003
    s_add_u32 s{sRB}, s{sT0}, s{sT1}
    s_bfe_u32 s{sT0}, s2, 0x20001
    s_lshl_b32 s{sT0}, s{sT0}, 3
    s_lshr_b32 s{sT1}, s2, 5
    s_add_u32 s{sCB}, s{sT0}, s{sT1}""")
    A(f"""s_lshl_b32 s{sT0}, s{sW}, 6
    v_lshrrev_b32 v{t0}, 3, {vL}
    v_add_u32 v{t2}, s{sT0}, v{t0}
    v_lshlrev_b32 v{t2}, 11, v{t2}
    v_lshrrev_b32 v{t1}, 4, {vL}
    v_and_b32 v{t3}, 7, {vL}
    v_xor_b32 v{t4}, v{t3}, v{t1}
    v_lshl_add_u32 v{vXo[0]}, v{t4}, 4, v{t2}
    v_xor_b32 v{vXo[1]}, 64, v{vXo[0]}""")
    for e in range(1, 8): A(f"s_mov_b32 s{sSoX+e}, {e*16384 - (e&3)*1024}")
    A(f"""s_lshl_b32 s{sM0X}, s{sW}, 13
    s_lshl_b32 s{sM0W}, s{sW}, 11
    s_add_u32 s{sM0K}, s{sM0W}, {KR}
    s_add_u32 s{sM0W}, s{sM0W}, {WB}
    s_and_b32 s{sT1}, s{sCB}, 3
    s_mov_b32 s{sStep1}, {PW}
    s_cmp_eq_u32 s{sT1}, 3
    s_cselect_b32 s{sStep1}, 2048, s{sStep1}""")
    A(f"""s_lshl_b32 s{sT0}, s{sW}, 3
    v_add_u32 v{t2}, s{sT0}, v{t1}
    v_mul_lo_u32 v{t2}, v{t2}, s{sStep1}
    s_and_b32 s{sT1}, s{sW}, 1
    s_lshl_b32 s{sT2}, s{sT1}, 3
    v_and_b32 v{t4}, 15, {vL}
    v_lshl_or_b32 v{t5}, v{t1}, 1, s{sT2}
    v_xor_b32 v{t4}, v{t4}, v{t5}
    v_lshl_add_u32 v{vWo1}, v{t4}, 4, v{t2}
    v_add_u32 v{t2}, s{sT0}, v{t0}
    v_mul_u32_u24 v{t2}, {PW}, v{t2}
    s_lshl_b32 s{sT2}, s{sT1}, 2
    v_and_b32 v{t4}, 1, v{t1}
    v_lshl_or_b32 v{t4}, v{t4}, 1, s{sT2}
    v_xor_b32 v{t4}, v{t4}, v{t3}
    v_lshl_add_u32 v{vWo0}, v{t4}, 4, v{t2}""")
    A("s_waitcnt lgkmcnt(0)")
    A(f"""s_lshl_b32 s{sT0}, s{sRB}, 19
    s_add_u32 s{S_X}, s{P_X}, s{sT0}
    s_addc_u32 s{S_X+1}, s{P_X+1}, 0
    s_mov_b32 s{S_X+2}, 0x80000
    s_mov_b32 s{S_X+3}, 0x20000""")
    A(f"""s_mov_b32 s{S_WS+3}, 0x20000
    s_or_b32 s{sT0}, s2, s{sW}
    s_cmp_lg_u32 s{sT0}, 0
    s_cbranch_scc1 P1_NONONCE
    s_or_b32 s30, s30, 1
    s_mov_b32 s{S_WS}, s{P_DBG}
    s_mov_b32 s{S_WS+1}, s{P_DBG+1}
    s_mov_b32 s{S_WS+2}, 256
    v_mov_b32 v{t6}, s30
    v_mov_b32 v{t7}, 0
    s_mov_b64 exec, 1
    buffer_store_dword v{t6}, v{t7}, {srd(S_WS)}, 0 offen sc1
    s_mov_b64 exec, -1
    P1_NONONCE:""")
    WNT = opt.get("wnt", "")
    def xdma(par):
        sl = []
        for e in range(8):
            pre = []
            if e == 0: pre = [f"s_add_u32 m0, s{sM0X}, {par}"]
            if e == 4: pre = ["s_add_u32 m0, m0, 4096"]
            so = "0" if e == 0 else f"s{sSoX+e}"
            sl.append((pre, VM(f"buffer_load_dwordx4 v{vXo[e&1]}, {srd(S_X)}, {so} offen offset:{(e&3)*1024} lds", "X")))
        return sl
    def wdma(hb, slot):
        so0 = "0" if hb == 0 else f"s{sSo0}"
        so1 = ["0" if hb == 0 else f"s{sSo1+2}", f"s{sSo1 + 1 + 2*hb}"]
        return [([f"s_add_u32 m0, s{sM0W}, {slot}"], VM(f"buffer_load_dwordx4 v{vWo0}, {srd(S_W0)}, {so0} offen {WNT} lds", "W")),
                ([], VM(f"buffer_load_dwordx4 v{vWo0}, {srd(S_Wb)}, {so0} offen offset:1024 {WNT} lds", "W")),
                (["s_add_u32 m0, m0, 8192"], VM(f"buffer_load_dwordx4 v{vWo1}, {srd(S_W1)}, {so1[0]} offen {WNT} lds", "W")),
                ([], VM(f"buffer_load_dwordx4 v{vWo1}, {srd(S_W1)}, {so1[1]} offen offset:1024 {WNT} lds", "W"))]
    def kdma(slot):
        return [([f"s_add_u32 m0, s{sM0K}, {slot}"], VM(f"buffer_load_dwordx4 v{vKo}, {srd(S_KV)}, 0 offen lds", "X")),
                ([], VM(f"buffer_load_dwordx4 v{vKo}, {srd(S_KV)}, 0 offen offset:1024 lds", "X"))]
    def sxload(b): return [VM(f"buffer_load_dwordx4 {SXB[b][j]}, v{vSXo}, {srd(S_X)}, 0 offen offset:{j*64}", "SX") for j in range(2)]
    def emit_dma(X, sl):
        for pre, d in sl:
            X.ext(pre)
            if pre: X("s_nop 0")
            X(d)
    emit_dma(A, xdma(0))
    A(f"""s_lshr_b32 s{sT0}, s{sCB}, 2
    s_and_b32 s{sT1}, s{sCB}, 3
    s_mul_i32 s{sT2}, s{sT0}, 896
    s_lshl_b32 s{sT3}, s{sT1}, 8
    s_add_u32 s{sT2}, s{sT2}, s{sT3}
    s_add_u32 s{S_W0}, s{P_WG}, s{sT2}
    s_addc_u32 s{S_W0+1}, s{P_WG+1}, 0
    s_sub_u32 s{S_W0+2}, {1024*PW}, s{sT2}
    s_mov_b32 s{S_W0+3}, 0x20000
    s_mov_b32 s{S_W1+3}, 0x20000
    s_mov_b32 s{S_Wb+3}, 0x20000
    s_mov_b32 s{sSo0}, {32*PW}
    s_cmp_eq_u32 s{sT1}, 3
    s_cbranch_scc1 P1_SRDB
    s_add_u32 s{S_Wb}, s{S_W0}, {4*PW - 1024}
    s_addc_u32 s{S_Wb+1}, s{S_W0+1}, 0
    s_sub_u32 s{S_Wb+2}, s{S_W0+2}, {4*PW - 1024}
    s_add_u32 s{S_W1}, s{P_WU}, s{sT2}
    s_addc_u32 s{S_W1+1}, s{P_WU+1}, 0
    s_mov_b32 s{S_W1+2}, s{S_W0+2}
    v_mov_b32 v{vWo0}, v{vWo1}
    s_branch P1_SRDD
    P1_SRDB:
    s_add_u32 s{S_Wb}, s{P_WU}, s{sT2}
    s_addc_u32 s{S_Wb+1}, s{P_WU+1}, 0
    s_sub_u32 s{S_Wb}, s{S_Wb}, 1024
    s_subb_u32 s{S_Wb+1}, s{S_Wb+1}, 0
    s_add_u32 s{S_Wb+2}, s{S_W0+2}, 1024
    s_lshl_b32 s{sT0}, s{sT0}, 8
    s_add_u32 s{S_W1}, s{P_WQ}, s{sT0}
    s_addc_u32 s{S_W1+1}, s{P_WQ+1}, 0
    s_sub_u32 s{S_W1+2}, {1024*2048}, s{sT0}
    P1_SRDD:
    s_lshl_b32 s{sSo1+1}, s{sStep1}, 2
    s_sub_u32 s{sSo1+1}, s{sSo1+1}, 1024
    s_lshl_b32 s{sSo1+2}, s{sStep1}, 5
    s_add_u32 s{sSo1+3}, s{sSo1+2}, s{sSo1+1}
    s_lshl_b32 s{sStep1}, s{sStep1}, 6""")
    advX = [f"v_add_u32 v{vXo[0]}, 128, v{vXo[0]}", f"v_add_u32 v{vXo[1]}, 128, v{vXo[1]}"]
    advW = [f"v_add_u32 v{vWo0}, {64*PW}, v{vWo0}", f"v_add_u32 v{vWo1}, s{sStep1}, v{vWo1}"]
    advK = f"v_add_u32 v{vKo}, 4096, v{vKo}"
    advS = f"v_add_u32 v{vSXo}, 128, v{vSXo}"
    emit_dma(A, wdma(0, 0)); emit_dma(A, wdma(1, 16384))
    A.ext(advX + advW)
    A(f"""s_bfe_u32 s{sT0}, s{sCB}, 0x10001
    s_and_b32 s{sT1}, s{sW}, 1
    s_bitcmp1_b32 s{sCB}, 0
    s_cselect_b32 s{S_KV}, s{P_WV}, s{P_WK}
    s_cselect_b32 s{S_KV+1}, s{P_WV+1}, s{P_WK+1}
    s_cselect_b32 s{sSa}, s{sT1}, s{sT0}
    s_cselect_b32 s{sSc}, s{sT0}, s{sT1}
    s_mov_b32 s{S_KV+2}, 65536
    s_mov_b32 s{S_KV+3}, 0x20000
    s_and_b32 s{sIsB}, s{sCB}, 3
    s_cmp_eq_u32 s{sIsB}, 3
    s_cselect_b32 s{sIsB}, 1, 0
    v_lshrrev_b32 v{t2}, 5, {vL}
    v_lshlrev_b32 v{t2}, 1, v{t2}
    v_xor_b32 v{t2}, v{t2}, {vL}
    v_lshlrev_b32 v{t2}, 4, v{t2}
    s_lshr_b32 s{sT2}, s{sW}, 1
    s_lshl_b32 s{sT0}, s{sT2}, 15
    s_lshl_b32 s{sT1}, s{sT1}, 11
    s_add_u32 s{sT0}, s{sT0}, s{sT1}
    v_add_u32 v{vKo}, s{sT0}, v{t2}
    s_lshr_b32 s{sT0}, s{sCB}, 2
    s_lshl_b32 s{sT0}, s{sT0}, 1
    s_add_u32 s{sT0}, s{sT0}, s{sSa}
    s_lshl_b32 s{sT0}, s{sT0}, 15
    s_lshl_b32 s{sT2}, s{sT2}, 10
    s_add_u32 s{sT0}, s{sT0}, s{sT2}
    v_and_b32 v{t2}, 15, {vL}
    v_lshlrev_b32 v{t2}, 11, v{t2}
    v_lshl_add_u32 v{t2}, v{t1}, 4, v{t2}
    v_add_u32 v{vSXo}, s{sT0}, v{t2}""")
    emit_dma(A, kdma(0)); A.ext(sxload(0)); A(advK); A(advS)
    A(f"""s_mov_b32 s{S_WS}, s{P_WS}
    s_mov_b32 s{S_WS+1}, s{P_WS+1}
    s_mov_b32 s{S_WS+2}, {WS_USED}""")
    nfirst = len(A.lines)
    second = xdma(32768) + wdma(0, 2*16384) + kdma(8192) + wdma(1, 3*16384)
    A(f"""v_and_b32 v{t0}, 15, {vL}
    v_lshrrev_b32 v{t2}, 1, v{t0}
    v_xor_b32 v{t2}, v{t2}, v{t1}
    v_lshlrev_b32 v{t2}, 4, v{t2}
    v_lshl_add_u32 v{t2}, v{t0}, 7, v{t2}
    s_lshr_b32 s{sT0}, s{sW}, 1
    s_lshl_b32 s{sT1}, s{sT0}, 14
    v_add_u32 v{vXa[0]}, s{sT1}, v{t2}
    v_xor_b32 v{vXa[1]}, 64, v{vXa[0]}
    v_bfe_u32 v{t0}, {vL}, 2, 2
    v_lshl_add_u32 v{t2}, v{t1}, 3, v{t0}
    v_and_b32 v{t3}, 1, v{t1}
    v_lshl_or_b32 v{t5}, v{t3}, 2, v{t0}
    v_and_b32 v{t4}, 3, {vL}
    v_lshlrev_b32 v{t4}, 3, v{t4}
    v_lshl_add_u32 v{t6}, v{t2}, 8, v{t4}
    v_add_u32 v{t6}, {WB + 8192}, v{t6}
    s_and_b32 s{sT0}, s{sW}, 1
    s_lshl_b32 s{sT1}, s{sT0}, 2""")
    for ii in range(4):
        A(f"""s_add_u32 s{sT2}, s{sT1}, {ii}
        v_xor_b32 v{t7}, s{sT2}, v{t5}
        v_lshl_add_u32 v{vW1a[ii]}, v{t7}, 5, v{t6}""")
    A(f"""v_lshl_add_u32 v{t2}, v{t2}, 6, v{t4}
    v_xor_b32 v{t7}, s{sSc}, v{t3}
    v_lshl_add_u32 v{t7}, v{t7}, 5, v{t2}
    s_lshr_b32 s{sT2}, s{sW}, 1
    s_lshl_b32 s{sT2}, s{sT2}, 12
    s_add_u32 s{sT2}, s{sT2}, {KR}
    v_add_u32 v{vSWa}, s{sT2}, v{t7}
    s_mov_b32 s{s16k}, 16384
    s_cmp_eq_u32 s{sIsB}, 1
    s_cbranch_scc1 P1_ADB""")
    for ii in range(4):
        A(f"v_subrev_u32 v{vW0a[ii][0]}, 8192, v{vW1a[ii]}\nv_subrev_u32 v{vW0a[ii][1]}, 7168, v{vW1a[ii]}")
    A(f"""s_branch P1_ADD
    P1_ADB:
    v_lshl_add_u32 v{t4}, v{t1}, 11, v{t4}
    v_lshl_add_u32 v{t4}, v{t0}, 7, v{t4}
    v_add_u32 v{t4}, {WB}, v{t4}
    v_lshrrev_b32 v{t0}, 1, v{t0}
    v_lshl_or_b32 v{t0}, v{t3}, 1, v{t0}
    s_lshl_b32 s{sT1}, s{sT0}, 1""")
    for k in range(2):
        A(f"""s_add_u32 s{sT2}, s{sT1}, {k}
        v_xor_b32 v{t7}, s{sT2}, v{t0}
        v_lshl_add_u32 v{vW0a[k][0]}, v{t7}, 5, v{t4}
        v_add_u32 v{vW0a[k][1]}, 512, v{vW0a[k][0]}
        v_add_u32 v{vW0a[2+k][0]}, 1024, v{vW0a[k][0]}
        v_add_u32 v{vW0a[2+k][1]}, 1536, v{vW0a[k][0]}""")
    A("P1_ADD:")
    PF = opt.get("pf", 1)
    Z = []
    for i in range(8):
        for j in range(8):
            for r in range(4):
                a = acc[i][j][r]
                Z.append(f"v_mov_b32 {a}, 0" if a.f == "v" else f"v_accvgpr_write_b32 {a}, 0")
    for r in range(4): Z.append(f"v_accvgpr_write_b32 {sacc[r]}, 0")
    per = len(Z) // len(second)
    for k, (pre, d) in enumerate(second):
        A.ext(pre); A.ext(Z[k*per:(k+1)*per]); A(d)
    A.ext(Z[len(second)*per:])
    A.ext(advX + advW + [advK])

    rdregs = [r for pr in vW0a for r in pr] + vW1a
    def reads(b, s, side):
        L = [f"ds_read_b128 {RB[s][j]}, v{vXa[b]} offset:{j*2048}" for j in range(8)]
        for i in range(8):
            for hf in range(2):
                if i < 4: L.append(f"ds_read_b64_tr_b16 {RA[s][i].sub(2*hf, 2)}, v{vW0a[i][hf]}")
                else: L.append(f"ds_read_b64_tr_b16 {RA[s][i].sub(2*hf, 2)}, v{vW1a[i-4]} offset:{hf*1024}")
        if side:
            for hf in range(2):
                L.append(f"ds_read_b64_tr_b16 {SA[s].sub(2*hf, 2)}, v{vSWa} offset:{b*2048 + hf*256}")
        return L
    def mfmas(s, side=None):
        L = []
        for i in range(8):
            js = range(8) if i % 2 == 0 else range(7, -1, -1)
            for j in js:
                L.append(f"v_mfma_f32_16x16x32_bf16 {acc[i][j]}, {RA[s][i]}, {RB[s][j]}, {acc[i][j]}")
            if side is not None and i == 3:
                L.append(f"v_mfma_f32_16x16x32_bf16 {sacc}, {SA[s]}, {SXB[side][s]}, {sacc}")
        return L
    def rotW(sreg, sd):
        return [f"s_cmp_eq_u32 s{sreg}, {4*16384}", f"s_cselect_b32 s{sd}, {(-4*16384) & 0xffffffff:#x}, s{s16k}", f"s_add_u32 s{sreg}, s{sreg}, s{sd}"]
    A(f"s_waitcnt vmcnt({len(second)}) lgkmcnt(0)\ns_barrier")
    A.ext(reads(0, 0, True))
    for r in rdregs: A(f"v_add_u32 v{r}, 16384, v{r}")
    A(f"""s_mov_b32 s{sWrd}, 16384
    s_mov_b32 s{sWwr}, {4*16384}
    s_mov_b32 s{sIt}, 0
    s_waitcnt lgkmcnt(0)
    s_barrier""")
    A.ext(ts.at("p1"))
    if ts.on: A("s_waitcnt lgkmcnt(0)")
    pro_hist = list(A.lines)

    def step(side=None, dma=True, last=False, hook=None, lim=None, cpfm=None):
        out = []
        sd = side is not None
        n = 65 if sd else 64
        BG = n - 4
        def rot(f):
            put(f, 47, rotW(sWrd, sT1))
            for k, r in enumerate(rdregs): put(f, 48 + k, f"v_add_u32 v{r}, s{sT1}, v{r}")
        f = {}
        for k, r in enumerate(reads(1, 1, sd)): put(f, 2*k if k < 24 else 49 + 2*(k - 24), r)
        if dma:
            dg = [1, 9, 17, 25, 33, 39, 45, 53] if not sd else [13, 19, 25, 31, 37, 43, 49, 55]
            for k, (pre, d) in enumerate(wdma(0, f"s{sWwr}") + wdma(1, f"s{sWwr}")):
                if pre: put(f, dg[k] - 1, pre)
                put(f, dg[k], d)
            put(f, dg[0] + 2, rotW(sWwr, sT0)); put(f, dg[4] + 2, rotW(sWwr, sT0))
            put(f, 57, advW[0]); put(f, 58, advW[1])
        if sd:
            for k, l in enumerate(sxload(side ^ 1)): put(f, [1, 7][k], l)
            put(f, 9, advS)
            put(f, 59, f"v_xor_b32 v{vSWa}, 0x2000, v{vSWa}")
        rot(f)
        put(f, 19, f"v_xor_b32 v{vXa[0]}, 0x8000, v{vXa[0]}")
        if cpfm == "rep": put(f, 3 if not sd else 4, cp(False))
        if cpfm == "adv": put(f, 3, cpa if CPF else [])
        if cpfm == "advld": put(f, 3, ([cpa] + cp()) if CPF else [])
        if hook: hook(0, f, BG)
        put(f, BG, [Need(["X"], "lgkmcnt(0)") if (dma or not last) else "s_waitcnt lgkmcnt(0)", "s_barrier"])
        if hook: hook(2, f, BG)
        out += interleave(mfmas(0, side), f)
        f = {}
        if not last:
            for k, r in enumerate(reads(0, 0, sd)): put(f, 2*k if k < 24 else 49 + 2*(k - 24), r)
            rot(f)
            put(f, 21, f"v_xor_b32 v{vXa[1]}, 0x8000, v{vXa[1]}")
        if dma:
            put(f, -1, [f"s_and_b32 s{sT3}, s{sIt}, 1", f"s_lshl_b32 s{sT0}, s{sT3}, 15", f"s_lshl_b32 s{sT3}, s{sT3}, 13"])
            dl = (kdma(f"s{sT3}") if sd else []) + xdma(f"s{sT0}")
            dg = [1, 7, 13, 19, 25, 31, 37, 43, 49, 55] if sd else [1, 9, 17, 25, 33, 41, 47, 53]
            for k, (pre, d) in enumerate(dl):
                if pre: put(f, dg[k] - 1, pre)
                put(f, dg[k], d)
            put(f, 57, advX[0]); put(f, 59, advX[1])
            if sd: put(f, 9, advK)
        if hook: hook(1, f, BG)
        put(f, BG - 3, tr_issue())
        put(f, BG, [Need(["SX"], "lgkmcnt(0)") if sd else "s_waitcnt lgkmcnt(0)", "s_barrier"] + tr_commit())
        put(f, BG + 1, f"s_add_u32 s{sIt}, s{sIt}, 1")
        if lim: put(f, BG + 2, f"s_cmp_lt_u32 s{sIt}, {lim}")
        out += interleave(mfmas(1, side), f)
        return out

    vN, vZ, vKA, vFA = t0, t1, t2, t3
    u = 28
    nload = f"buffer_load_dword v{vN}, v{vZ}, {srd(S_KV)}, 0 offen sc1"
    dbgsrd = [f"s_mov_b32 s{S_KV}, s{P_DBG}", f"s_mov_b32 s{S_KV+1}, s{P_DBG+1}", f"s_mov_b32 s{S_KV+2}, 256", f"v_mov_b32 v{vZ}, 0"]
    PSC = KR + 4096
    kvK = f"""v_bfe_u32 v{vKA}, {vL}, 3, 1
    v_lshlrev_b32 v{vKA}, 4, v{vKA}
    v_and_b32 v{vFA}, 7, {vL}
    v_add_u32 v{vKA}, v{vKA}, v{vFA}
    v_bfe_u32 v{vFA}, {vL}, 4, 1
    v_lshl_add_u32 v{vKA}, v{vFA}, 5, v{vKA}
    v_lshlrev_b32 v{vKA}, 4, v{vKA}
    v_lshrrev_b32 v{vFA}, 5, {vL}
    v_lshl_add_u32 v{vKA}, v{vFA}, 10, v{vKA}
    s_lshl_b32 s{sKVst}, s{sSa}, 7
    s_lshl_b32 s{sEfl}, s{sSc}, 3""".split("\n")
    kvV = f"""v_lshrrev_b32 v{vKA}, 5, {vL}
    v_lshlrev_b32 v{vKA}, 4, v{vKA}
    v_bfe_u32 v{vFA}, {vL}, 4, 1
    v_lshl_add_u32 v{vKA}, v{vFA}, 2, v{vKA}
    v_bfe_u32 v{vFA}, {vL}, 2, 1
    v_lshl_add_u32 v{vKA}, v{vFA}, 5, v{vKA}
    v_lshlrev_b32 v{vKA}, 4, v{vKA}
    v_bfe_u32 v{vFA}, {vL}, 3, 1
    v_lshl_add_u32 v{vKA}, v{vFA}, 10, v{vKA}
    v_and_b32 v{vFA}, 3, {vL}
    v_lshl_add_u32 v{vKA}, v{vFA}, 1, v{vKA}
    s_lshl_b32 s{sKVst}, s{sSc}, 7
    s_lshl_b32 s{sEfl}, s{sSa}, 3""".split("\n")
    kvaddr = [f"s_bitcmp1_b32 s{sCB}, 0", "s_cbranch_scc1 P1_KVAV"] + [l.strip() for l in kvK] + ["P1_KVAD:",
              f"s_add_u32 s{sKVst}, s{sKVst}, s{sEfl}", f"s_add_u32 s{sKVst}, s{sKVst}, {KR}", f"v_add_u32 v{vKA}, s{sKVst}, v{vKA}"]
    kvwr = [f"s_bitcmp1_b32 s{sCB}, 0", "s_cbranch_scc1 P1_KVWV", f"ds_write_b64 v{vKA}, v[{u}:{u+1}]", "P1_KVWD:"]
    ool = Asm()
    ool("P1_KVAV:"); ool.ext(kvV); ool("s_branch P1_KVAD")
    ool(f"""P1_KVWV:
    ds_write_b16 v{vKA}, v{u}
    ds_write_b16_d16_hi v{vKA}, v{u} offset:16
    ds_write_b16 v{vKA}, v{u+1} offset:32
    ds_write_b16_d16_hi v{vKA}, v{u+1} offset:48
    s_branch P1_KVWD""")
    vP = vSXo
    KT = Reg("a", 128, 4); PT = Reg("a", 132, 4)
    def hookS8(ph, f, BG):
        if ph == 0:
            put(f, 11, dbgsrd)
            put(f, 21, [f"s_lshl_b32 s{sT2}, s{sW}, 10", f"s_add_u32 s{sT2}, s{sT2}, {PSC}"]); put(f, 23, f"v_add_u32 v{vP}, s{sT2}, {vL16}")
            put(f, 27, kvaddr)
        if ph == 1:
            put(f, 3, f"ds_write_b128 v{vP}, {sacc}")
            put(f, 5, VM(nload, "N"))
            put(f, 11, f"v_xor_b32 v{vP}, 0x800, v{vP}")
            for r in range(4): put(f, 13 + 2*r, f"v_accvgpr_read_b32 v{u+r}, {sacc[r]}")
    def hookS9(ph, f, BG):
        if ph == 0:
            put(f, 1, f"ds_read_b128 {PT}, v{vP}")
            put(f, 11, "s_waitcnt lgkmcnt(5)")
            for r in range(4): put(f, 11 + 2*r, f"v_accvgpr_read_b32 v{vFA}, {PT[r]}"); put(f, 12 + 2*r, f"v_add_f32 v{u+r}, v{u+r}, v{vFA}")
            put(f, 21, f"v_cvt_pk_bf16_f32 v{u}, v{u}, v{u+1}"); put(f, 23, f"v_cvt_pk_bf16_f32 v{u+1}, v{u+2}, v{u+3}")
            put(f, 27, kvwr)
            put(f, 29, f"v_lshrrev_b32 v{vP}, 3, {vL}"); put(f, 31, f"v_and_b32 v{vFA}, 7, {vL}")
            put(f, 35, f"v_lshlrev_b32 v{vFA}, 4, v{vFA}"); put(f, 37, f"v_lshl_add_u32 v{vP}, v{vP}, 8, v{vFA}")
            put(f, 41, [f"s_bfe_u32 s{sT2}, s{sCB}, 0x10001", f"s_lshl_b32 s{sT2}, s{sT2}, 7"])
            put(f, 43, f"v_add_u32 v{vP}, s{sT2}, v{vP}")
            put(f, 44, f"v_add_u32 v{vKA}, {KR}, v{vP}")
        if ph == 1:
            put(f, 3, f"ds_read_b128 {KT}, v{vKA}")
            put(f, 5, [f"s_lshl_b32 s{sKVst}, s{sRB}, 3", f"s_lshr_b32 s{sT2}, s{sCB}, 2", f"s_add_u32 s{sKVst}, s{sKVst}, s{sT2}"])
            put(f, 7, [f"s_lshl_b32 s{sKVst}, s{sKVst}, 1", f"s_and_b32 s{sT2}, s{sCB}, 1", f"s_add_u32 s{sKVst}, s{sKVst}, s{sT2}"])
            put(f, 11, [f"s_lshl_b32 s{sKVst}, s{sKVst}, 11", f"s_add_u32 s{sKVst}, s{sKVst}, {KV_OFF}", f"s_lshl_b32 s{sEfl}, s{sRB}, 5"])
            put(f, 13, [f"s_add_u32 s{sEfl}, s{sEfl}, s{sCB}", f"s_lshl_b32 s{sEfl}, s{sEfl}, 2", f"s_add_u32 s{sEfl}, s{sEfl}, {FL_E}"])
            put(f, 15, [f"s_cmp_eq_u32 s{sW}, 0", f"s_cselect_b32 s{sKVst}, s{sKVst}, {HUGE}", f"s_cselect_b32 s{sEfl}, s{sEfl}, {HUGE}"])
            put(f, 19, f"v_mul_u32_u24 v{vFA}, {FL_ES}, {vL}")
            put(f, 21, ["s_waitcnt lgkmcnt(9)", VM(f"buffer_store_dwordx4 {KT}, v{vP}, {srd(S_WS)}, s{sKVst} offen {SC1}", "KS")])
    def hookS10(ph, f, BG):
        if ph == 1:
            put(f, 27, [Need(["KS", "N"]), f"v_readfirstlane_b32 s{sNonce}, v{vN}", f"s_cmp_eq_u32 s{sNonce}, 0", "s_cbranch_scc1 P1_SLOWN", "P1_NOK:",
                       "s_mov_b64 exec, 0xff", VM(f"buffer_store_dword v{vN}, v{vFA}, {srd(S_WS)}, s{sEfl} offen sc1", "EF"), "s_mov_b64 exec, -1", "s_nop 2"])
    sKVo, sM0 = sL + 3, sL + 4
    S_KVD = S_C
    vE = Reg("v", 28, 4)
    epoll = f"buffer_load_dwordx4 {vE}, {vL16}, {srd(S_WS)}, s{sEfl} offen sc1"
    def kvdma0(slotoff):
        L = []
        for e in range(8):
            pre = []
            if e == 0: pre = [f"s_add_u32 m0, s{sM0}, {slotoff}"]
            if e == 4: pre = [f"s_add_u32 m0, m0, 4096", f"s_add_u32 s{sKVo}, s{sKVo}, 4096"]
            L.append((pre, VM(f"buffer_load_dwordx4 {vL16}, {srd(S_KVD)}, s{sKVo} offen offset:{(e&3)*1024} {SC1} lds", "KV")))
        return L
    def hookS14(ph, f, BG):
        if ph == 0:
            put(f, 5, [f"s_bfe_u32 s{sEfl}, s2, 0x30003", f"s_mul_i32 s{sEfl}, s{sEfl}, {FL_ES}", f"s_add_u32 s{sEfl}, s{sEfl}, {FL_E}"])
            put(f, 9, VM(epoll, "N"))
            put(f, 11, [f"s_mov_b32 s{S_KVD}, s{P_WS}", f"s_mov_b32 s{S_KVD+1}, s{P_WS+1}", f"s_mov_b32 s{S_KVD+2}, {KV_OFF + 262144}"])
            put(f, 13, [f"s_lshl_b32 s{sM0}, s{sW}, 13", f"s_add_u32 s{sKVo}, s{sM0}, {KV_OFF}"])
    def echeck():
        return [f"v_xor_b32 {vE[0]}, {vE[0]}, v{vN}", f"v_xor_b32 {vE[1]}, {vE[1]}, v{vN}", f"v_xor_b32 {vE[2]}, {vE[2]}, v{vN}", f"v_xor_b32 {vE[3]}, {vE[3]}, v{vN}",
                f"v_or3_b32 {vE[0]}, {vE[0]}, {vE[1]}, {vE[2]}", f"v_or_b32 {vE[0]}, {vE[0]}, {vE[3]}", f"v_cmp_eq_u32 vcc, 0, {vE[0]}", "s_nop 0", "s_cmp_eq_u64 vcc, -1"]
    def hookS15(ph, f, BG):
        dg = [5, 11, 17, 23, 29, 35, 41, 46]
        if ph == 0: put(f, 1, [Need(["N"])] + echeck() + ["s_cbranch_scc0 P1_SLOWE", "P1_EOK:"])
        if ph in (0, 1):
            for k, (pre, d) in enumerate(kvdma0(32768*ph)):
                if pre: put(f, dg[k] - 1, pre)
                put(f, dg[k], d)
            put(f, 47, f"s_add_u32 s{sKVo}, s{sKVo}, {32768 - 4096}")
    Ls = step(0, cpfm='rep') + step(1, lim=8)
    Ls = resolve_waits(Ls)
    Lp = resolve_waits(step(lim=14, cpfm='rep'))
    S8 = resolve_waits(step(hook=hookS8, cpfm='adv'), Ls); S9 = resolve_waits(step(hook=hookS9), Ls + S8); S10 = resolve_waits(step(hook=hookS10), S8 + S9)
    S14 = resolve_waits(step(dma=False, hook=hookS14, cpfm='advld'), Lp); S15 = resolve_waits(step(dma=False, last=True, hook=hookS15), Lp + S14)
    probs += verify_waits(pro_hist + Ls, len(pro_hist), "pro->Ls")
    probs += verify_waits(S9 + S10 + Lp, len(S9 + S10), "S10->Lp")
    A(".p2align 6\nP1_LS:")
    A.ext(Ls); A("s_cbranch_scc1 P1_LS")
    A.ext(S8); A.ext(S9); A.ext(S10)
    A("s_branch P1_LP"); A.ext(ool.lines)
    A(".p2align 6\nP1_LP:")
    A.ext(Lp); A("s_cbranch_scc1 P1_LP")
    A.ext(S14); A.ext(S15)
    probs += check_hazards(A.lines, "p1") + check_hazards(Ls + Ls, "ls") + check_hazards(Lp + Lp, "lp")
    slow1 = Asm()
    slow1(f"""P1_SLOWN:
    s_mov_b32 s{sT2}, {SPIN_MAX}
    P1_SLOWN_L:
    {nload}
    s_waitcnt vmcnt(0)
    v_readfirstlane_b32 s{sNonce}, v{vN}
    s_cmp_lg_u32 s{sNonce}, 0
    s_cbranch_scc1 P1_NOK
    s_sleep 4
    s_sub_u32 s{sT2}, s{sT2}, 1
    s_cmp_lg_u32 s{sT2}, 0
    s_cbranch_scc1 P1_SLOWN_L
    s_endpgm
    P1_SLOWE:
    s_mov_b32 s{sT0}, {SPIN_MAX}
    P1_SLOWE_L:
    {epoll}
    s_waitcnt vmcnt(0)""")
    slow1.ext(echeck())
    slow1(f"""s_cbranch_scc1 P1_EOK
    s_sleep 4
    s_sub_u32 s{sT0}, s{sT0}, 1
    s_cmp_lg_u32 s{sT0}, 0
    s_cbranch_scc1 P1_SLOWE_L
    s_endpgm""")

    va = Alloc("v", 3, 256)
    vCur = va.get(1); vNxt = va.get(1); vZero = va.get(1); vNon = va.get(1); vQP = va.get(1)
    T = va.get(12, 4)
    S = [va.get(16, 4) for _ in range(2)]
    P = [va.get(8, 4) for _ in range(2)]
    O = [va.get(16, 4) for _ in range(2)]
    Lc = [va.get(4, 4) for _ in range(2)]
    SCL = va.get(8, 4)
    acc3 = [[va.get(4, 4) for j in range(8)] for i in range(4)]
    vW3o = va.get(1); vW3a = [va.get(1) for _ in range(4)]; vPF = va.get(1); vG = va.get(2, 2); vFl = va.get(4, 4)
    NEG = [Reg("v", acc3[0][0].base + 16*k, 16) for k in range(2)]
    aa = Alloc("a", 0, 180)
    RX = [[aa.get(4, 4) for j in range(8)] for s in range(4)]
    Q = [[aa.get(4, 4) for t in range(2)] for ab in range(2)]
    K = [[aa.get(4, 4) for t in range(2)] for b in range(2)]
    V = [[aa.get(4, 4) for t in range(2)] for b in range(2)]
    ONES = aa.get(4, 4)
    RW = [[Reg("a", 220 + 16*s + 4*i, 4) for i in range(4)] for s in range(2)]
    QXB = 98304
    W3B = 98304

    E = Asm()
    E.ext(ts.at("p1end"))
    sO = sL + 10
    sC = sL + 1
    sQf = sL + 9
    tA = [Reg("v", 20, 4), Reg("v", 28, 4)]
    def hmath(pairs, dst):
        L = []
        for Gx, U in pairs:
            for r in range(4): L.append(f"v_max_f32 {Gx[r]}, 0, {Gx[r]}")
        for Gx, U in pairs:
            for r in (0, 2): L.append(f"v_pk_mul_f32 {Gx.sub(r,2)}, {Gx.sub(r,2)}, {U.sub(r,2)}")
        for k, (Gx, U) in enumerate(pairs):
            L.append(f"v_cvt_pk_bf16_f32 {dst[2*k]}, {Gx[0]}, {Gx[1]}"); L.append(f"v_cvt_pk_bf16_f32 {dst[2*k+1]}, {Gx[2]}, {Gx[3]}")
        return L
    gl = Asm()
    gl(f"""s_mov_b32 s{S_A}, s{P_X}
    s_mov_b32 s{S_A+1}, s{P_X+1}
    s_mov_b32 s{S_A+2}, 0x400000
    s_mov_b32 s{S_B}, s{P_GW}
    s_mov_b32 s{S_B+1}, s{P_GW+1}
    s_mov_b32 s{S_B+2}, 2048
    s_lshl_b32 s{sT2}, s{sRB}, 5
    s_add_u32 s{sT2}, s{sT2}, s{sCB}
    s_lshl_b32 s{sT2}, s{sT2}, 2
    s_add_u32 s{sT2}, s{sT2}, s{sW}
    s_lshl_b32 s{sT2}, s{sT2}, 12""")
    for h in range(2): gl(f"buffer_load_dwordx4 {GWa.sub(4*h,4)}, {vL16}, {srd(S_B)}, 0 offen offset:{h*1024}")
    for r in range(2):
        for h in range(2):
            gl(f"buffer_load_dwordx4 {GXa[r].sub(4*h,4)}, {vL16}, {srd(S_A)}, s{sT2} offen offset:{r*2048 + h*1024}")
    E(f"""s_lshr_b32 s{sT0}, s{sW}, 1
    s_and_b32 s{sT1}, s{sW}, 1
    s_lshl_b32 s{sO}, s{sRB}, 4
    s_lshl_b32 s{sT2}, s{sT0}, 3
    s_add_u32 s{sO}, s{sO}, s{sT2}
    s_lshl_b32 s{sO}, s{sO}, 10
    s_lshr_b32 s{sT2}, s{sCB}, 2
    s_mul_i32 s{sO+1}, s{sT2}, 14
    s_and_b32 s{sT3}, s{sCB}, 3
    s_lshl_b32 s{sT3}, s{sT3}, 2
    s_add_u32 s{sO+1}, s{sO+1}, s{sT3}
    s_add_u32 s{sO+1}, s{sO+1}, s{sT1}
    s_cmp_eq_u32 s{sIsB}, 1
    s_cbranch_scc1 P1_EPIB
    s_add_u32 s{sO+1}, s{sO+1}, s{sT1}
    s_mul_i32 s{sO+1}, s{sO+1}, {AFS}
    s_add_u32 s{sO}, s{sO}, s{sO+1}
    s_add_u32 s{sO+2}, s{sO}, {AFS}""")
    E.ext(gl.lines)
    for fb in range(2):
        for j in range(8):
            U1 = acc[5+2*fb][j]
            if U1.f == "a":
                Tt = tA[j % 2]
                for r in range(4): E(f"v_accvgpr_read_b32 {Tt[r]}, {U1[r]}")
                U1 = Tt
            E.ext(hmath([(acc[2*fb][j], acc[4+2*fb][j]), (acc[2*fb+1][j], U1)], acc[4+2*fb][j]))
    E("s_waitcnt vmcnt(0)\ns_branch P1_EPID\nP1_EPIB:")
    E(f"""s_mul_i32 s{sO+1}, s{sO+1}, {AFS}
    s_add_u32 s{sO}, s{sO}, s{sO+1}
    s_mov_b32 s{sO+2}, {HUGE}
    s_lshl_b32 s{sQf}, s{sRB}, 3
    s_add_u32 s{sQf}, s{sQf}, s{sT2}
    s_lshl_b32 s{sQf}, s{sQf}, 2
    s_lshl_b32 s{sT1}, s{sT1}, 1
    s_add_u32 s{sT2}, s{sQf}, s{sT1}
    s_lshl_b32 s{sT2}, s{sT2}, 1
    s_add_u32 s{sT2}, s{sT2}, s{sT0}
    s_lshl_b32 s{sT2}, s{sT2}, 13
    s_add_u32 s{sT0}, s{sT2}, {QF4_OFF}
    s_add_u32 s{sT1}, s{sT0}, 4096
    s_add_u32 s{sT2}, s{sT0}, 16384
    s_add_u32 s{sT3}, s{sT0}, {16384 + 4096}
    s_add_u32 s{sQf}, s{sQf}, s{sW}
    s_lshl_b32 s{sQf}, s{sQf}, 7
    s_add_u32 s{sQf}, s{sQf}, {FL_Q}
    s_mov_b32 s{sC}, {f2u(QSCALE):#x}
    s_mov_b32 s{sC+1}, {f2u(QSCALE):#x}""")
    for hh in range(2):
        for j in range(8):
            F0, F1 = acc[4 + 2*hh][j], acc[5 + 2*hh][j]
            if F1.f == "a":
                Tt = tA[j % 2]
                for r in range(4): E(f"v_accvgpr_read_b32 {Tt[r]}, {F1[r]}")
                F1 = Tt
            for F in (F0, F1):
                for r in (0, 2): E(f"v_pk_mul_f32 {F.sub(r,2)}, {F.sub(r,2)}, s[{sC}:{sC+1}]")
            E(f"v_cvt_pk_bf16_f32 {F0[0]}, {F0[0]}, {F0[1]}\nv_cvt_pk_bf16_f32 {F0[1]}, {F0[2]}, {F0[3]}")
            E(f"v_cvt_pk_bf16_f32 {F0[2]}, {F1[0]}, {F1[1]}\nv_cvt_pk_bf16_f32 {F0[3]}, {F1[2]}, {F1[3]}")
            E(f"buffer_store_dwordx4 {F0}, {vL16}, {srd(S_WS)}, s{sT0 + 2*hh + (j>>2)} offen offset:{(j&3)*1024} {SC1}")
    E.ext(gl.lines)
    for j in range(8):
        E.ext(hmath([(acc[0][j], acc[2][j]), (acc[1][j], acc[3][j])], acc[4][j]))
    E(f"""s_waitcnt vmcnt(6)
    s_mov_b64 exec, 1
    buffer_store_dword v{vN}, v{vZ}, {srd(S_WS)}, s{sQf} offen sc1
    s_mov_b64 exec, -1
    P1_EPID:
    s_add_u32 s{sO+1}, s{sO}, 4096
    s_add_u32 s{sO+3}, s{sO+2}, 4096""")
    E.ext(ts.at("kvdone"))
    hst0 = [VM(f"buffer_store_dwordx4 {acc[4][j]}, {vL16}, {srd(S_WS)}, s{sO + (j>>2)} offen offset:{(j&3)*1024} {SC1}", "H") for j in range(8)]
    hst1a = [VM(f"buffer_store_dwordx4 {acc[6][j]}, {vL16}, {srd(S_WS)}, s{sO + 2 + (j>>2)} offen offset:{(j&3)*1024} {SC1}", "H") for j in range(8)]
    probs += check_hazards(S15[-20:] + E.lines, "p1epi")
    A.ext(E.lines)

    B = Asm()
    sCur, sNext, sFree, sFl = sL, sL + 1, sL + 2, sL + 5
    B(f"""v_mov_b32 {vNon}, s{sNonce}
    v_mov_b32 {vZero}, 0
    v_bfe_u32 {T[0]}, {vL}, 4, 1
    v_and_b32 {T[1]}, 15, {vL}
    v_lshrrev_b32 {T[2]}, 5, {vL}
    v_lshl_add_u32 {T[1]}, {T[2]}, 4, {T[1]}
    v_lshlrev_b32 {T[1]}, 4, {T[1]}
    v_lshl_add_u32 {vQP}, {T[0]}, 10, {T[1]}""")
    S_PF, sPF = S_E, 8
    pfop = [VM(f"buffer_load_dword a252, {vPF}, {srd(S_PF)}, s{sPF} offen", "PF"), f"s_add_u32 s{sPF}, s{sPF}, 0x100000"] if PF else []
    B("s_waitcnt vmcnt(1)")
    W32 = NEG[0]; X32 = NEG[1]; GX = S[0].sub(0, 8); GW = S[0].sub(8, 8)
    R2 = range(2)
    for k in range(8): B(f"v_accvgpr_read_b32 {GW[k]}, {GWa[k]}")
    for k in range(8): B(f"v_lshlrev_b32 {W32[2*k]}, 16, {GW[k]}\nv_and_b32 {W32[2*k+1]}, 0xffff0000, {GW[k]}")
    B(f"v_mov_b32 {T[8]}, 0x3f803f80")
    for r in R2:
        for k in range(8): B(f"v_accvgpr_read_b32 {GX[k]}, {GXa[r][k]}")
        for k in range(8): B(f"v_lshlrev_b32 {X32[2*k]}, 16, {GX[k]}\nv_and_b32 {X32[2*k+1]}, 0xffff0000, {GX[k]}")
        for k in range(8): B(f"v_pk_mul_f32 {X32.sub(2*k,2)}, {X32.sub(2*k,2)}, {W32.sub(2*k,2)}")
        for k in range(8): B(f"v_cvt_pk_bf16_f32 {X32[k]}, {X32[2*k]}, {X32[2*k+1]}")
        B(f"v_mov_b32 {T[4+r]}, 0")
        for k in range(8): B(f"v_dot2_f32_bf16 {T[4+r]}, {X32[k]}, {T[8]}, {T[4+r]}")
    B("s_nop 2")
    for sh in (8, 4, 2, 1):
        for r in R2: B(f"v_add_f32_dpp {T[4+r]}, {T[4+r]}, {T[4+r]} row_ror:{sh} row_mask:0xf bank_mask:0xf")
        B("s_nop 0")
    for sw in ("16", "32"):
        for r in R2: B(f"v_mov_b32 {T[8+r]}, {T[4+r]}")
        B("s_nop 0")
        for r in R2: B(f"v_permlane{sw}_swap_b32 {T[4+r]}, {T[8+r]}")
        for r in R2: B(f"v_add_f32 {T[4+r]}, {T[4+r]}, {T[8+r]}")
    for r in R2: B(f"v_cvt_pk_bf16_f32 {T[4+r]}, {T[4+r]}, {T[4+r]}")
    for r in R2: B(f"v_and_b32 {T[4+r]}, 0xffff0000, {T[4+r]}")
    for r in R2: B(f"v_mul_f32 {T[4+r]}, {f2u(-LOG2E):#x}, {T[4+r]}")
    for r in R2: B(f"v_exp_f32 {T[4+r]}, {T[4+r]}")
    B("s_nop 0")
    for r in R2: B(f"v_add_f32 {T[4+r]}, 1.0, {T[4+r]}")
    for r in R2: B(f"v_rcp_f32 {T[4+r]}, {T[4+r]}")
    B("s_nop 0")
    for r in R2: B(f"v_cvt_pk_bf16_f32 {T[4+r]}, {T[4+r]}, {T[4+r]}")
    for r in R2: B(f"v_and_b32 {T[4+r]}, 0xffff0000, {T[4+r]}")
    B(f"""s_lshl_b32 s{sT2}, s{sRB}, 5
    s_add_u32 s{sT2}, s{sT2}, s{sCB}
    s_lshl_b32 s{sT2}, s{sT2}, 2
    s_add_u32 s{sT2}, s{sT2}, s{sW}
    s_lshl_b32 s{sT2}, s{sT2}, 3
    s_add_u32 s{sT2}, s{sT2}, {G_OFF}
    s_mov_b64 exec, 1
    buffer_store_dwordx2 {T.sub(4,2)}, {vZero}, {srd(S_WS)}, s{sT2} offen sc1
    s_mov_b64 exec, -1""")
    for ab in range(2):
        for r in range(16): B(f"v_mov_b32 {O[ab][r]}, 0")
        for r in range(4): B(f"v_mov_b32 {Lc[ab][r]}, 0")
    for r in range(8): B(f"v_mov_b32 {P[1][r]}, 0")
    for t in range(2):
        for r in range(4): B(f"v_accvgpr_write_b32 {V[1][t][r]}, 0")
    B(f"""v_lshrrev_b32 {T[4]}, 2, {vL}
    v_lshrrev_b32 {T[5]}, 4, {vL}
    v_xor_b32 {T[4]}, {T[4]}, {T[5]}
    v_and_b32 {T[4]}, 1, {T[4]}
    v_cmp_eq_u32 vcc, 0, {T[4]}
    v_mov_b32 {T[5]}, 0x3f803f80
    v_mov_b32 {vCur}, {vL16}
    v_cndmask_b32 {T[5]}, 0, {T[5]}, vcc
    v_add_u32 {vNxt}, 32768, {vL16}""")
    for r in range(4): B(f"v_accvgpr_write_b32 {ONES[r]}, {T[5]}")
    B(f"""s_mov_b32 s{sCur}, 0
    s_mov_b32 s{sNext}, 32768
    s_mov_b32 s{sFree}, 65536
    s_add_u32 s{sL+14}, s{sM0}, 65536
    s_lshl_b32 s{sFl}, s{sRB}, 2
    s_add_u32 s{sFl}, s{sFl}, s{sW}
    s_lshl_b32 s{sFl}, s{sFl}, 5
    s_add_u32 s{sFl}, s{sFl}, s{sCB}
    s_lshl_b32 s{sFl}, s{sFl}, 2
    s_add_u32 s{sFl}, s{sFl}, {FL_H}
    s_lshl_b32 s{sT1}, s{sRB}, 3
    s_lshr_b32 s{sT2}, s{sCB}, 2
    s_add_u32 s{sT1}, s{sT1}, s{sT2}
    s_lshl_b32 s{sT1}, s{sT1}, 2
    s_and_b32 s{sT2}, s{sW}, 2
    s_add_u32 s{sT1}, s{sT1}, s{sT2}
    s_bfe_u32 s{sT2}, s{sCB}, 0x10001
    s_add_u32 s{sT1}, s{sT1}, s{sT2}
    s_lshl_b32 s{sT1}, s{sT1}, 7
    s_add_u32 s{sT1}, s{sT1}, {FL_Q}
    s_lshl_b32 s{sQf}, s{sRB}, 5
    s_add_u32 s{sQf}, s{sQf}, s{sCB}
    s_lshl_b32 s{sQf}, s{sQf}, 2
    s_add_u32 s{sQf}, s{sQf}, s{sW}
    s_lshl_b32 s{sQf}, s{sQf}, 12
    s_add_u32 s{sQf}, s{sQf}, {QF4_OFF}""")
    def check(regs):
        if len(regs) == 4:
            return [f"v_xor_b32 {r}, {r}, {vNon}" for r in regs] + [f"v_or3_b32 {regs[0]}, {regs[0]}, {regs[1]}, {regs[2]}", f"v_or_b32 {regs[0]}, {regs[0]}, {regs[3]}",
                    f"v_cmp_eq_u32 vcc, 0, {regs[0]}", "s_nop 0", "s_cmp_eq_u64 vcc, -1"]
        L = [f"v_cmp_eq_u32 vcc, s{sNonce}, {regs[0]}"]
        if len(regs) > 1: L += [f"v_cmp_eq_u32 s[{sT2}:{sT3}], s{sNonce}, {regs[1]}", "s_nop 0", f"s_and_b64 vcc, vcc, s[{sT2}:{sT3}]"]
        else: L += ["s_nop 0"]
        return L + ["s_cmp_eq_u64 vcc, -1"]
    def spin(label, load, regs, back=None):
        L = [f"s_mov_b32 s{sT0}, {SPIN_MAX}", f"{label}_L:", load, "s_waitcnt vmcnt(0)"] + check(regs)
        L += [f"s_cbranch_scc1 {back or label + '_OK'}", f"s_sleep {4 if back else 1}", f"s_sub_u32 s{sT0}, s{sT0}, 1",
              f"s_cmp_lg_u32 s{sT0}, 0", f"s_cbranch_scc1 {label}_L", "s_endpgm"]
        if not back: L.append(f"{label}_OK:")
        return L
    B.ext(ts.at("poll0"))
    B.ext(spin("P2_POLL", f"buffer_load_dword {T[8]}, {vZero}, {srd(S_WS)}, s{sT1} offen sc1", [T[8]]))
    B.ext(ts.at("poll1"))
    for ab in range(2):
        for t in range(2): B(f"buffer_load_dwordx4 {Q[ab][t]}, {vQP}, {srd(S_WS)}, s{sQf} offen offset:{ab*2048 + t*512} {SC1}")
    B("s_barrier")
    def kvdma(slot, tag):
        L = []
        for e in range(8):
            pre = []
            if e == 0: pre = [f"s_add_u32 m0, s{slot}, s{sM0}"]
            if e == 4: pre = [f"s_add_u32 s{sT0}, s{slot}, s{sM0}", f"s_add_u32 m0, s{sT0}, 4096", f"s_add_u32 s{sKVo}, s{sKVo}, 4096"]
            L.append((pre, VM(f"buffer_load_dwordx4 {vL16}, {srd(S_KVD)}, s{sKVo} offen offset:{(e&3)*1024} {SC1} lds", tag)))
        return L
    post_dma = f"s_add_u32 s{sKVo}, s{sKVo}, {32768 - 4096}"
    B(f"""ds_read_b128 {K[0][0]}, {vCur}
    ds_read_b128 {K[0][1]}, {vCur} offset:1024
    ds_read_b128 {V[0][0]}, {vCur} offset:2048
    ds_read_b128 {V[0][1]}, {vCur} offset:3072""")
    hist = list(S15) + list(B.lines)
    B(f"""s_waitcnt vmcnt(0) lgkmcnt(0)
    v_mfma_f32_32x32x16_bf16 {S[0]}, {K[0][0]}, {Q[0][0]}, 0
    v_mfma_f32_32x32x16_bf16 {S[0]}, {K[0][1]}, {Q[0][1]}, {S[0]}""")
    B.ext(ts.at("att"))
    B("s_nop 7\ns_nop 3")
    probs += check_hazards(B.lines, "p2pro")
    A.ext(B.lines)

    NS = 4
    S_AF, S_W3, S_OUT = S_A, S_B, S_D
    sMT, sNT = sL + 6, sL + 7
    sAo = sL + 8
    sSo3 = sL + 9
    sM3 = sL + 13
    sWo, sWoN = 30, 15
    setup3 = Asm()
    MAP48 = opt.get("map48", 0)
    if MAP48:
        setup3(f"""s_and_b32 s{sT0}, s{sRB}, 4
        s_add_u32 s{sMT}, s{sRB}, s{sT0}
        s_bfe_u32 s{sT0}, s{sCB}, 0x10003
        s_lshl2_add_u32 s{sMT}, s{sT0}, s{sMT}
        s_lshr_b32 s{sT0}, s{sCB}, 4
        s_and_b32 s{sT1}, s{sCB}, 7
        s_lshl3_add_u32 s{sNT}, s{sT0}, s{sT1}""")
    else:
        setup3(f"""s_and_b32 s{sT0}, s{sCB}, 1
        s_lshl_b32 s{sMT}, s{sRB}, 1
        s_add_u32 s{sMT}, s{sMT}, s{sT0}
        s_lshr_b32 s{sT0}, s{sCB}, 3
        s_lshl_b32 s{sT0}, s{sT0}, 2
        s_bfe_u32 s{sT1}, s{sCB}, 0x20001
        s_add_u32 s{sNT}, s{sT0}, s{sT1}""")
    setup3(f"""s_lshl_b32 s{sT0}, s{sNT}, 7
    s_add_u32 s{S_W3}, s{P_WD}, s{sT0}
    s_addc_u32 s{S_W3+1}, s{P_WD+1}, 0
    s_sub_u32 s{S_W3+2}, {3584*2048}, s{sT0}
    s_add_u32 s{sWo}, s{P_WO}, s{sT0}
    s_addc_u32 s{sWo+1}, s{P_WO+1}, 0
    s_sub_u32 s{sWoN}, {1024*2048}, s{sT0}
    s_mov_b32 s{S_AF}, s{P_WS}
    s_mov_b32 s{S_AF+1}, s{P_WS+1}
    s_mov_b32 s{S_AF+2}, {AF_SIZE3}
    s_mov_b32 s{S_OUT}, s{P_OUT}
    s_mov_b32 s{S_OUT+1}, s{P_OUT+1}
    s_mov_b32 s{S_OUT+2}, 0x400000
    s_mul_i32 s{sAo}, s{sW}, {AFS}
    s_lshl_b32 s{sT0}, s{sMT}, 13
    s_add_u32 s{sAo}, s{sAo}, s{sT0}
    s_add_u32 s{sAo+1}, s{sAo}, 4096
    s_lshl_b32 s{sM3}, s{sW}, 14
    s_add_u32 s{sM3}, s{sM3}, {W3B}""")
    for e in range(1, 4): setup3(f"s_mov_b32 s{sSo3+e}, {e*16384 - e*1024}")
    setup3v = Asm()
    setup3v(f"""v_lshrrev_b32 {T[0]}, 3, {vL}
    v_lshrrev_b32 {T[1]}, 4, {vL}
    v_lshlrev_b32 {T[2]}, 1, {T[1]}
    v_and_b32 {T[3]}, 7, {vL}
    v_xor_b32 {T[2]}, {T[2]}, {T[3]}
    v_lshlrev_b32 {T[2]}, 4, {T[2]}
    v_lshl_add_u32 {vW3o}, {T[0]}, 11, {T[2]}
    s_lshl_b32 s{sT0}, s{sW}, 16
    v_add_u32 {vW3o}, s{sT0}, {vW3o}
    v_lshrrev_b32 {T[0]}, 2, {vL}
    v_bfe_u32 {T[1]}, {vL}, 3, 2
    v_and_b32 {T[2]}, 3, {vL}
    v_lshlrev_b32 {T[2]}, 3, {T[2]}
    v_lshl_add_u32 {T[2]}, {T[0]}, 7, {T[2]}
    v_add_u32 {T[2]}, s{sM3}, {T[2]}""")
    for i in range(4): setup3v(f"v_xor_b32 {T[3]}, {i}, {T[1]}\nv_lshl_add_u32 {vW3a[i]}, {T[3]}, 5, {T[2]}")
    setup3v(f"""s_lshr_b32 s{sT0}, s{sMT}, 1
    s_lshl_b32 s{sT0}, s{sT0}, 9
    s_sub_u32 s{sT0}, s{sT0}, 512
    s_lshl_b32 s{sT1}, s{sRB}, 9
    v_mov_b32 {T[4]}, s{sT0}
    v_mov_b32 {T[5]}, s{sT1}
    v_cmp_gt_u32 vcc, 32, {vL}
    v_and_b32 {T[6]}, 31, {vL}
    v_lshlrev_b32 {T[6]}, 2, {T[6]}
    v_cndmask_b32 {T[4]}, {T[4]}, {T[5]}, vcc
    v_add_u32 {T[4]}, {T[4]}, {vL16}
    v_lshlrev_b32 {T[5]}, 2, {vL}
    v_and_b32 {T[7]}, 15, {vL}
    v_lshlrev_b32 {T[7]}, 2, {T[7]}""")
    zero3 = [f"v_mov_b32 {acc3[i][j][r]}, 0" for i in range(4) for j in range(8) for r in range(4)]
    def w3dma(slot, e):
        m0 = f"s_add_u32 m0, s{sM3}, {slot*4096}"
        return m0, VM(f"buffer_load_dwordx4 {vW3o}, {srd(S_W3)}, {'0' if e == 0 else 's%d' % (sSo3+e)} offen offset:{e*1024} {opt.get('w3nt', '')} lds", ("W", slot))
    def xload(slot, j):
        return VM(f"buffer_load_dwordx4 {RX[slot][j]}, {vL16}, {srd(S_AF)}, s{sAo + (j>>2)} offen offset:{(j&3)*1024} {opt.get('xflag', SC1)}", ("X", slot, j >> 2))
    adv3 = [f"v_add_u32 {vW3o}, {4*65536}, {vW3o}", f"s_add_u32 s{sAo}, s{sAo}, {4*AFS}", f"s_add_u32 s{sAo+1}, s{sAo+1}, {4*AFS}"]
    def wread(slot, s):
        return [f"ds_read_b64_tr_b16 {RW[s][i].sub(2*hf,2)}, {vW3a[i]} offset:{slot*4096 + hf*2048}" for i in range(4) for hf in range(2)]
    def gm(s, j, i, first=False): return f"v_mfma_f32_16x16x32_bf16 {acc3[i][j]}, {RW[s&1][i]}, {RX[s][j]}, {0 if first else acc3[i][j]}"

    def att_parts(ab, kq, vp):
        o = ab ^ 1
        M = [f"v_mfma_f32_32x32x16_bf16 {S[o]}, {K[kq][0]}, {Q[o][0]}, 0",
             f"v_mfma_f32_32x32x16_bf16 {S[o]}, {K[kq][1]}, {Q[o][1]}, {S[o]}",
             f"v_mfma_f32_32x32x16_bf16 {O[o]}, {V[vp][0]}, {P[o].sub(0,4)}, {O[o]}",
             f"v_mfma_f32_16x16x32_bf16 {Lc[o]}, {ONES}, {P[o].sub(0,4)}, {Lc[o]}",
             f"v_mfma_f32_32x32x16_bf16 {O[o]}, {V[vp][1]}, {P[o].sub(4,4)}, {O[o]}",
             f"v_mfma_f32_16x16x32_bf16 {Lc[o]}, {ONES}, {P[o].sub(4,4)}, {Lc[o]}"]
        ex = [f"v_exp_f32 {S[ab][r]}, {S[ab][r]}" for r in range(16)]
        cv = [f"v_cvt_pk_bf16_f32 {P[ab][r]}, {S[ab][2*r]}, {S[ab][2*r+1]}" for r in range(8)]
        return M, ex, cv
    def phase_plain(ab, kq, vp, extra):
        M, ex, cv = att_parts(ab, kq, vp)
        vl = []
        for r in range(16):
            vl.append(ex[r])
            if r >= 3 and r % 2 == 1: vl.append(cv[(r - 3)//2])
        vl.append(cv[7])
        mpos = [0, 4, 8, 12, 15, 19]
        out = []; mi = 0
        for i, v in enumerate(vl):
            while mi < 6 and mpos[mi] == i:
                out.append(M[mi]); out.extend(extra.get(mi, [])); mi += 1
            out.append(v)
        return out
    def phase_merged(ab, kq, vp, G8, extra, tail):
        M, ex, cv = att_parts(ab, kq, vp)
        order = [M[0], G8[0], M[1], G8[1], G8[2], M[2], G8[3], M[3], G8[4], M[4], G8[5], M[5], G8[6], G8[7]]
        e, c = ex, cv
        fill = [[e[0], e[1], e[2]], [e[3]], [e[4], e[5], e[6]], [c[0], c[1]], [e[7]], [e[8], e[9], e[10]], [c[2], c[3]], [e[11]],
                [c[4]], [e[12], e[13], e[14]], [e[15]], [c[5], c[6]], [c[7]], []]
        if opt.get("lpk"):
            pk = [f"v_pk_add_f32 {Lc[ab].sub(2,2)}, {Lc[ab].sub(2,2)}, {S[ab].sub(2*r,2)}" for r in range(8)]
            order[7] = pk[0]; order[11] = pk[1]
            fill[3] = fill[3] + [pk[2]]; fill[6] = fill[6] + [pk[3]]; fill[8] = fill[8] + [pk[4]]; fill[12] = fill[12] + [pk[5]]; fill[13] = [pk[6], pk[7]]
        if opt.get("lnone"): order[7] = "s_nop 0"; order[11] = "s_nop 0"
        out = []
        for k in range(14):
            out.append(order[k]); out.extend(extra.get(k, [])); out.extend(fill[k]); out.extend(tail.get(k, []))
        return out
    NP = opt.get("np", 4)
    PFSW = 6
    sKM = sL + 14
    def chunk(kind, hook=None, first=False, pfok=True):
        out = []
        mer = kind == "merged"
        for pi in range(16):
            tau, ab = pi >> 1, pi & 1
            kp = tau & 1
            ex = {}; tl = {}; pre = []
            if ab == 0:
                src = (vCur, (tau+1)*4096) if tau < 7 else (vNxt, 0)
                ld = [f"ds_read_b128 {K[kp^1][t]}, {src[0]} offset:{src[1] + t*1024}" for t in range(2)]
                if tau == 7: put(ex, 0, [Need(["KV"], "lgkmcnt(0)"), "s_barrier"])
            else:
                src = (vCur, (tau+1)*4096 + 2048) if tau < 7 else (vNxt, 2048)
                ld = [f"ds_read_b128 {V[kp^1][t]}, {src[0]} offset:{src[1] + t*1024}" for t in range(2)]
                pre = ["s_waitcnt lgkmcnt(0)"]
            kvd = VM(f"buffer_load_dwordx4 {vL16}, {srd(S_KVD)}, s{sKVo} offen offset:{(pi&3)*1024} {SC1} lds", "KV")
            rotate = [f"s_mov_b32 s{sT0}, s{sCur}", f"s_mov_b32 s{sCur}, s{sNext}", f"s_mov_b32 s{sNext}, s{sFree}", f"s_mov_b32 s{sFree}, s{sT0}",
                      f"s_add_u32 s{sKM}, s{sT0}, s{sM0}", f"s_add_u32 s{sIt}, s{sIt}, 1"]
            upd = [f"v_add_u32 {vCur}, s{sCur}, {vL16}", f"v_add_u32 {vNxt}, s{sNext}, {vL16}"]
            if not mer:
                put(ex, 1, ld[0]); put(ex, 2, ld[1])
                if pi < 8:
                    lateput = [(4, f"s_mov_b32 m0, s{sKM}"), (5, kvd)]
                    if pi == 3: lateput += [(5, f"s_add_u32 s{sKVo}, s{sKVo}, 4096"), (5, f"s_add_u32 s{sKM}, s{sKM}, 4096")]
                    for g_, x_ in lateput: put(ex, g_, x_)
                    if pi == 7: put(ex, 5, post_dma)
                if pi == 15:
                    for k in range(3): put(ex, 3 + k, rotate[2*k:2*k+2])
            else:
                s, q = pi >> 2, pi & 3
                G8 = [gm(s, 2*q + jj, i, first and s == 0) for jj in range(2) for i in range(4)]
                if q == 0: pre = [Need([("W", (s+1) % NS), ("X", s, 1)], "lgkmcnt(0)")]
                elif ab == 1 and not trace: pre = ["s_waitcnt lgkmcnt(2)"]
                m0, d = w3dma(s, q)
                rd = wread((s+1) % NS, (s+1) & 1)
                ms = opt.get("ms", 3)
                if ms == 1:
                    put(tl, 1, ld[0]); put(tl, 4, ld[1])
                    if q < 3: put(tl, 7, rd[2*q]); put(ex, 13, rd[2*q+1])
                    else: put(tl, 3, rd[2*q]); put(tl, 7, rd[2*q+1])
                    put(ex, 8, xload(s, 2*q)); put(ex, 13, xload(s, 2*q+1))
                    put(ex, 11, m0); put(ex, 12, d)
                    kvs = (9, 10, tl)
                elif ms == 0:
                    put(ex, 2, ld[0]); put(ex, 5, ld[1]); put(ex, 3, rd[2*q]); put(ex, 10, rd[2*q+1])
                    put(ex, 8, xload(s, 2*q)); put(ex, 13, xload(s, 2*q+1)); put(ex, 0, m0); put(ex, 1, d)
                    kvs = (7, 9, ex)
                    if ab == 1 and q: pre = ["s_waitcnt lgkmcnt(1)" if not trace else "s_waitcnt lgkmcnt(0)"]
                elif ms == 2:
                    put(ex, 1, ld[0]); put(ex, 4, ld[1])
                    if q < 3: put(ex, 10, rd[2*q]); put(ex, 12, rd[2*q+1])
                    else: put(ex, 6, rd[2*q]); put(ex, 7, rd[2*q+1])
                    put(ex, 2, m0); put(ex, 3, d); put(ex, 8, xload(s, 2*q)); put(ex, 13, xload(s, 2*q+1))
                    kvs = (4, 5, ex)
                elif ms == 3:
                    put(ex, 0, ld[0]); put(ex, 2, ld[1])
                    if q < 3: put(ex, 9, rd[2*q]); put(ex, 12, rd[2*q+1])
                    else: put(ex, 5, rd[2*q]); put(ex, 9, rd[2*q+1])
                    put(ex, 3, m0); put(ex, 4, d); put(ex, 8, xload(s, 2*q)); put(ex, 13, xload(s, 2*q+1))
                    kvs = (10, 11, ex)
                if q == 3: put(ex, 13, adv3[0])
                if pi < 8: put(ex, kvs[0], f"s_mov_b32 m0, s{sKM}"); put(kvs[2], kvs[1], kvd)
                if pi in (4,): put(ex, 1, f"s_add_u32 s{sKVo}, s{sKVo}, 4096"); put(ex, 2, f"s_add_u32 s{sKM}, s{sKM}, 4096")
                if pi == 8: put(ex, 1, post_dma)
                if q == 0 and s > 0: put(ex, 3, adv3[1]); put(ex, 4, adv3[2])
                if pi == 15:
                    for k in range(6): put(ex, 2 + k, rotate[k])
                if pi == 9 and PF:
                    put(ex, 11, pfop[0])
                    put(ex, 6, [f"s_cmp_eq_u32 s{sIt}, {PFSW}", f"s_cselect_b32 s{sPF}, 0, s{sPF}", f"s_cselect_b32 s{S_PF}, s{P_WO}, s{S_PF}",
                                f"s_cselect_b32 s{S_PF+1}, s{P_WO+1}, s{S_PF+1}", f"s_cselect_b32 s{S_PF+2}, 0x200000, s{S_PF+2}"])
                if pi == 10 and PF: put(ex, 1, pfop[1])
                if pi == 12: put(ex, 11, cp(False))
            if pi % 8 == 6: put(ex, 5, tr_issue())
            if pi % 8 == 7: pre = pre + tr_commit()
            if hook: hook(pi, ex, pre)
            if mer: out += pre + phase_merged(ab, kp ^ ab, kp ^ 1 ^ ab, G8, ex, tl)
            else: out += pre + phase_plain(ab, kp ^ ab, kp ^ 1 ^ ab, ex)
        if mer: out += adv3[1:]
        out += upd
        return out

    dflt = {3: dict(hs=[1, 1], gs=23, hf=26, hp=36, hc=39, pf=[25, 28, 41]), 4: dict(hs=[2, 1], gs=32, hf=44, hp=50, hc=53, pf=[34, 38, 44, 56])}[NP]
    dflt.update(opt.get("sched", {}))
    HSN, HSD = dflt["hs"]; GS, HF, HPg, HC, PFP = dflt["gs"], dflt["hf"], dflt["hp"], dflt["hc"], dflt["pf"]
    assert len(PFP) == NP
    hst = hst0 + hst1a
    hph = [dflt.get("hs0", 0) + n*HSN//HSD for n in range(16)]
    assert hph[-1] < GS and (GS & 15) >= 0
    hpoll = f"buffer_load_dwordx4 {vFl}, {T[4]}, {srd(S_WS)}, s{sT1} offen sc1"
    LASTP = 16*NP - 1
    wph = [GS + 1 + k // 2 for k in range(16)]
    xph = [HC + 1 + (k * (LASTP - HC)) // 32 for k in range(32)]
    def mkhook(base):
        def hook(pi, ex, pre):
            gp = base + pi
            k = 0
            for n in range(16):
                if hph[n] == gp: put(ex, [3, 0][k], hst[n]); k += 1
            if gp == GS:
                put(ex, 0, setup3.lines[:14]); put(ex, 1, setup3.lines[14:]); put(ex, 3, setup3v.lines)
                if PF:
                    put(ex, 3, [f"s_lshl_b32 s{sT1}, s2, 2", f"s_add_u32 s{sT1}, s{sT1}, s{sW}", f"s_lshl_b32 s{sT1}, s{sT1}, 10",
                        f"v_lshrrev_b32 {vPF}, 3, {vL}", f"v_lshlrev_b32 {vPF}, 7, {vPF}", f"v_add_u32 {vPF}, s{sT1}, {vPF}",
                        f"s_mov_b32 s{S_PF}, s{P_WD}", f"s_mov_b32 s{S_PF+1}, s{P_WD+1}", f"s_mov_b32 s{S_PF+2}, {3584*2048}", f"s_mov_b32 s{sPF}, 0x100000"])
            if gp in PFP and PF: put(ex, 2, pfop)
            if gp in (9, 16*NP - 22): put(ex, 2, cp())
            k = 0
            for n in range(16):
                if wph[n] == gp:
                    s_, e_ = divmod(n, 4)
                    m0, d = w3dma(s_, e_)
                    if k == 0: put(ex, 0, m0)
                    put(ex, 2*k + 1, [d] + ([adv3[0]] if e_ == 3 else [])); k += 1
            if gp == HF:
                put(ex, 2, [Need(["H"]), "s_mov_b64 exec, 1", VM(f"buffer_store_dword {vNon}, {vZero}, {srd(S_WS)}, s{sFl} offen sc1", "HF"), "s_mov_b64 exec, -1", "s_nop 2"])
            if gp == HPg: put(ex, 3, [f"s_mov_b32 s{sT1}, {FL_H}", VM(hpoll, "HP")])
            if gp == HC:
                put(ex, 2, [Need(["HP"])] + check([vFl[k] for k in range(4)]) + ["s_cbranch_scc0 P3_SLOWH", "P3_HOK:"])
                put(ex, 3, [f"s_lshl_b32 s{sT2}, s{sRB}, 10", f"s_lshl_b32 s{sT3}, s{sW}, 8", f"s_add_u32 s{sT2}, s{sT2}, s{sT3}", f"s_add_u32 s{sT2}, s{sT2}, {G_OFF}",
                            f"s_lshl_b32 s{sT3}, s{sMT}, 9", f"s_add_u32 s{sT3}, s{sT3}, {G_OFF}"])
                put(ex, 3, [VM(f"buffer_load_dword {vG[ab]}, {T[6]}, {srd(S_WS)}, s{sT2} offen offset:{ab*128} sc1", "G") for ab in range(2)])
                put(ex, 3, [VM(f"buffer_load_dword {SCL[j]}, {T[7]}, {srd(S_WS)}, s{sT3} offen offset:{j*64} sc1", "G") for j in range(8)])
            k = 0
            for n in range(32):
                if xph[n] == gp:
                    s_, j_ = divmod(n, 8)
                    put(ex, [0, 2, 3, 4][k], [xload(s_, j_)] + (adv3[1:] if j_ == 7 else [])); k += 1
            if gp == LASTP: put(ex, 5, [Need([("W", 0)])] + wread(0, 0))
        return hook
    def retag(ch, cur, need):
        out = []
        for l in ch:
            if isinstance(l, VM) and l.tag == "KV": out.append(VM(l, cur))
            elif isinstance(l, Need) and "KV" in l.tags: out.append(Need([need], l.extra))
            else: out.append(l)
        return out
    hist = [VM(l, "KV-1") if isinstance(l, VM) and l.tag == "KV" else l for l in hist]
    CP = []; hh_ = list(hist)
    for c in range(NP):
        ch = resolve_waits(retag(chunk("plain", mkhook(16*c)), f"KV{c}", f"KV{c-1}"), hh_)
        CP.append(ch); hh_ += ch
    mA = retag(chunk("merged"), "KVa", "KVb"); mB = retag(chunk("merged"), "KVb", "KVa")
    mres = resolve_waits(mA, mB)
    M = mres
    M0 = resolve_waits(retag(chunk("merged", first=True), "KVb", f"KV{NP-1}"), hh_)
    probs += verify_waits(hh_ + M0 + M, len(hh_ + M0), "M0->M")
    mab = opt.get("mabl", "")
    def abl(L):
        out = []
        for l in L:
            if "x" in mab and isinstance(l, VM) and isinstance(l.tag, tuple) and l.tag[0] == "X": continue
            if "w" in mab and isinstance(l, VM) and isinstance(l.tag, tuple) and l.tag[0] == "W": continue
            if "t" in mab and l.startswith("ds_read_b64_tr"): continue
            if "k" in mab and l.startswith("ds_read_b128"): continue
            if "s" in mab and l.startswith(("s_add", "s_mov", "s_cmp", "s_cselect")) and f"s{sIt}" not in l and "exec" not in l: continue
            if "n" in mab and isinstance(l, Need): out.append("s_waitcnt lgkmcnt(0)" if l.extra else "s_nop 0"); continue
            if "g" in mab and l.startswith("v_mfma_f32_16x16") and "a[2" in l: continue
            out.append(l)
        return out
    Me = abl(M); M0e = abl(M0)
    D = Asm()
    D(f"s_mov_b32 s{sIt}, 0")
    for c in range(NP): D.ext(ts.at(f"c{c}")); D.ext(CP[c])
    D.ext(ts.at("m")); D.ext(M0e)
    D(".p2align 6\nP2_MLOOP:")
    D.ext(Me)
    D(f"s_cmp_lt_u32 s{sIt}, 8\ns_cbranch_scc1 P2_MLOOP")
    probs += check_hazards(B.lines[-8:] + sum(CP, []) + M0 + M + M, "att")
    A.ext(D.lines)

    C = Asm()
    C.ext(ts.at("attend"))
    C(f"""v_mfma_f32_32x32x16_bf16 {O[1]}, {V[1][0]}, {P[1].sub(0,4)}, {O[1]}
    v_mfma_f32_16x16x32_bf16 {Lc[1]}, {ONES}, {P[1].sub(0,4)}, {Lc[1]}
    v_mfma_f32_32x32x16_bf16 {O[1]}, {V[1][1]}, {P[1].sub(4,4)}, {O[1]}
    v_mfma_f32_16x16x32_bf16 {Lc[1]}, {ONES}, {P[1].sub(4,4)}, {Lc[1]}""")
    C(f"v_mov_b32 {T[1]}, 0")
    for r in range(16): C(f"v_fmac_f32 {T[1]}, 0, {O[0][r]}")
    for r in range(16): C(f"v_fmac_f32 {T[1]}, 0, {O[1][r]}")
    C(f"""s_mov_b32 s{sT0}, {f2u(2.0**-60):#x}
    s_mov_b32 s{sT1}, {f2u(2.0**100):#x}
    v_cmp_le_f32 vcc, s{sT0}, {Lc[0][0]}
    v_cmp_le_f32 s[{S_C}:{S_C+1}], s{sT0}, {Lc[1][0]}
    s_nop 1
    s_and_b64 vcc, vcc, s[{S_C}:{S_C+1}]
    v_cmp_ge_f32 s[{S_C}:{S_C+1}], s{sT1}, {Lc[0][0]}
    v_cmp_ge_f32 s[{sT2}:{sT3}], s{sT1}, {Lc[1][0]}
    s_nop 1
    s_and_b64 vcc, vcc, s[{S_C}:{S_C+1}]
    s_and_b64 vcc, vcc, s[{sT2}:{sT3}]
    v_cmp_eq_f32 s[{S_C}:{S_C+1}], 0, {T[1]}
    s_nop 1
    s_and_b64 vcc, vcc, s[{S_C}:{S_C+1}]
    s_cmp_eq_u64 vcc, -1""")
    if opt.get("force_fallback"): C("s_branch P2_FALLBACK")
    C("s_cbranch_scc0 P2_FALLBACK")
    C("P2_FINISH:")
    for ab in range(2): C(f"v_rcp_f32 {T[2*ab]}, {Lc[ab][0]}")
    C(f"""s_add_u32 s{sT0}, s{sCB}, 112
    s_mul_i32 s{sT0}, s{sT0}, {AFS}
    s_lshl_b32 s{sT1}, s{sRB}, 14
    s_add_u32 s{sT0}, s{sT0}, s{sT1}
    s_lshl_b32 s{sT1}, s{sW}, 12
    s_add_u32 s{sT0}, s{sT0}, s{sT1}""")
    for ab in range(2): C(f"v_mul_f32 {T[2*ab]}, {T[2*ab]}, {vG[ab]}")
    for ab in range(2):
        for r in range(0, 16, 2):
            C(f"v_pk_mul_f32 {O[ab].sub(r,2)}, {O[ab].sub(r,2)}, {T.sub(2*ab,2)} op_sel_hi:[1,0]")
        for r in range(8): C(f"v_cvt_pk_bf16_f32 {S[ab][r]}, {O[ab][2*r]}, {O[ab][2*r+1]}")
        for c in range(2):
            C(VM(f"buffer_store_dwordx4 {S[ab].sub(4*c,4)}, {vQP}, {srd(S_WS)}, s{sT0} offen offset:{ab*2048 + c*512} {SC1}", "O"))
    for j in range(8): C(f"v_sub_f32 {SCL[j]}, 1.0, {SCL[j]}")
    for j in range(8): C(f"v_cvt_pk_bf16_f32 {SCL[j]}, {SCL[j]}, {SCL[j]}")
    for j in range(8): C(f"v_and_b32 {SCL[j]}, 0xffff0000, {SCL[j]}")
    sFC = sL
    C(f"""s_lshl_b32 s{sFC}, s{sMT}, 8
    s_add_u32 s{sFC}, s{sFC}, {FL_O}
    s_add_u32 s{sFl}, s{sFl}, {FL_O - FL_H}""")
    C.ext(ts.at("tail"))
    def p3iter(hook=None):
        out = []
        for s in range(NS):
            m = [gm(s, j, i) for j in range(8) for i in range(4)]
            f = {}
            if opt.get("t3", 1) == 0:
                f[-1] = [Need([("W", (s+1) % NS), ("X", s, 1)], "lgkmcnt(0)"), w3dma(s, 0)[0]]
                dgap = [0, 6, 14, 22]
                for e in range(4): put(f, dgap[e], w3dma(s, e)[1])
                for k, r in enumerate(wread((s + 1) % NS, (s+1) & 1)): put(f, 1 + 3*k, r)
                for j in range(8): put(f, 4*j + 3 + (1 if j < 7 else 0), xload(s, j))
            else:
                f[-1] = [Need([("X", s, 0)], "lgkmcnt(0)"), w3dma(s, 0)[0]]
                dgap = opt.get("t3w", [0, 2, 6, 10])
                for e in range(4): put(f, dgap[e], w3dma(s, e)[1])
                put(f, 15, Need([("X", s, 1)]))
                rg0 = opt.get("t3r", 18)
                put(f, rg0 - 1, Need([("W", (s+1) % NS)]))
                for k, r in enumerate(wread((s + 1) % NS, (s+1) & 1)): put(f, rg0 + k + (1 if rg0 + k >= 20 else 0) + (1 if rg0 + k >= 23 else 0), r)
                for j in range(8): put(f, 4*j + 3 + (1 if j < 7 else 0), xload(s, j))
            put(f, 31, adv3)
            put(f, 28, tr_issue())
            if trace: f[-1] = f[-1][:1] + tr_commit() + f[-1][1:]
            if hook: hook(s, f)
            out += interleave(m, f)
        return out
    opoll = f"buffer_load_dword {vFl[0]}, {T[5]}, {srd(S_WS)}, s{sFC} offen sc1"
    NT = NP - 2
    OFS, OPS = opt.get("oflag_step", 2), opt.get("opoll_step", 4*NT - 1 if NT == 1 else 4*NT - 2)
    def mkT(base):
        def hookT(s, f):
            if base + s == OFS: put(f, 10, [Need(["O"]), "s_mov_b64 exec, 1", VM(f"buffer_store_dword {vNon}, {vZero}, {srd(S_WS)}, s{sFl} offen sc1", "OF"), "s_mov_b64 exec, -1", "s_nop 2"])
            if base + s == OPS: put(f, 26, VM(opoll, "OP"))
            if base + s == 1 and CPF: put(f, 14, [cpa] + cp(False))
        return hookT
    T5 = []
    for k in range(NT): T5 += resolve_waits(p3iter(mkT(4*k)), M + M + C.lines + T5)
    L3 = resolve_waits(p3iter())
    mid = [Need(["OP"])] + check([vFl[0]]) + ["s_cbranch_scc0 P3_SLOWO", "P3_OOK:",
           f"s_mov_b32 s{S_W3}, s{sWo}", f"s_mov_b32 s{S_W3+1}, s{sWo+1}", f"s_mov_b32 s{S_W3+2}, s{sWoN}",
           f"v_subrev_u32 {vW3o}, {28*4*65536}, {vW3o}", f"s_mov_b32 s{sIt}, 6", "s_barrier",
           f"v_add_u32 {T[0]}, 0x10000, {vL16}", f"v_and_b32 {T[1]}, 15, {vL}", f"v_lshlrev_b32 {T[1]}, 11, {T[1]}", f"v_bfe_u32 {T[2]}, {vL}, 4, 1",
           f"v_lshl_add_u32 {T[1]}, {T[2]}, 5, {T[1]}", f"v_lshrrev_b32 {T[2]}, 5, {vL}", f"v_lshl_add_u32 {T[1]}, {T[2]}, 4, {T[1]}",
           f"s_lshl_b32 s{sT0}, s{sMT}, 18", f"s_lshl_b32 s{sT1}, s{sW}, 16", f"s_add_u32 s{sT0}, s{sT0}, s{sT1}",
           f"s_lshl_b32 s{sT1}, s{sNT}, 7", f"s_add_u32 s{sT0}, s{sT0}, s{sT1}", f"s_add_u32 s{sT1}, s{sT0}, 32768"]
    mid = resolve_waits(mid, T5)
    probs += verify_waits(M + C.lines + T5 + mid + L3, len(M + C.lines + T5 + mid), "T5->L3")
    tail = [f"s_add_u32 s{sIt}, s{sIt}, 1", f"s_cmp_eq_u32 s{sIt}, 8", "s_cbranch_scc1 P3_DONE", "s_nop 7"]
    for i in range(4):
        for j in range(8):
            for r in (0, 2):
                tail.append(f"v_pk_mul_f32 {acc3[i][j].sub(r,2)}, {acc3[i][j].sub(r,2)}, {SCL.sub(j & ~1, 2)} op_sel:[0,{j&1}] op_sel_hi:[1,{j&1}]")
    tail += ["s_nop 0", "s_branch P3_LOOP", "P3_DONE:"]
    probs += check_hazards(M[-30:] + C.lines + T5 + mid + L3 + tail + L3, "tail") + check_hazards(L3 + L3, "l3")
    tab = opt.get("tabl", "")
    def tabl(L):
        out = []
        for l in L:
            if isinstance(l, VM) and isinstance(l.tag, tuple) and l.tag[0].lower() in tab: continue
            if "t" in tab and l.startswith("ds_read_b64_tr"): continue
            if "m" in tab and l.startswith("v_mfma"): continue
            if "a" in tab and l in adv3: continue
            out.append(l)
        return out
    T5 = tabl(T5); L3 = tabl(L3)
    C.ext(T5); C.ext(ts.at("t5end")); C.ext(mid); C.ext(ts.at("l3"))
    C(".p2align 6\nP3_LOOP:")
    C.ext(L3); C.ext(tail); C.ext(ts.at("l3end"))
    for w in range(3): C(f"s_cmp_eq_u32 s{sW}, {w}\ns_cbranch_scc1 P3_FIN{w}")
    A.ext(C.lines)
    RWF = [RW[0]] + [[Reg("a", 128 + 16*k + 4*i, 4) for i in range(4)] for k in range(3)]
    def fin(w):
        def adr(off): return (vL16, off) if off < 65536 else (T[0], off - 65536)
        own = [2*w, 2*w + 1]
        oth = [j for d in range(1, 4) for j in (2*((w + d) & 3), 2*((w + d) & 3) + 1)]
        mm = lambda s_, j, i: f"v_mfma_f32_16x16x32_bf16 {acc3[i][j]}, {RWF[s_][i]}, {RX[s_][j]}, {acc3[i][j]}"
        m = [mm(0, j, i) for j in oth + own for i in range(4)]
        f = {}
        f[-1] = [Need([("X", 0, 1), ("W", 1)], "lgkmcnt(0)")]
        k = 0
        for s_ in (1, 2, 3):
            if s_ > 1: put(f, k, Need([("W", s_)]))
            for i in range(4):
                for hf in range(2):
                    put(f, k, f"ds_read_b64_tr_b16 {RWF[s_][i].sub(2*hf,2)}, {vW3a[i]} offset:{s_*4096 + hf*2048}"); k += 1
        put(f, 31, Need([("X", 3, 1)], "lgkmcnt(0)"))
        for n, j in enumerate(oth + own):
            m += [mm(s_, j, i) for s_ in (1, 2, 3) for i in range(4)]
        for n, j in enumerate(oth):
            d = j >> 1; q = (w - d - 1) & 3
            for i in range(4):
                b_, off = adr((d*3 + q)*8192 + ((j & 1)*4 + i)*1024)
                put(f, 32 + 12*(n + 1) + 5 + 2*i, f"ds_write_b128 {b_}, {acc3[i][j]} offset:{off}")
        free = [acc3[i][j] for j in oth for i in range(4)]
        g0 = 32 + 12*7 + 2
        put(f, g0, ["s_waitcnt lgkmcnt(0)", "s_barrier"])
        k = 0
        for q in range(3):
            for jj in range(2):
                for i in range(4):
                    b_, off = adr((w*3 + q)*8192 + (jj*4 + i)*1024)
                    put(f, min(g0 + k // 3, 127), f"ds_read_b128 {free[k]}, {b_} offset:{off}"); k += 1
        R = Asm()
        R.ext(resolve_waits(interleave(m, f), L3 + L3))
        R.ext(ts.at("redw"))
        R("s_nop 3")
        for q in range(3):
            R(f"s_waitcnt lgkmcnt({[15, 8, 0][q] if not ts.on else 0})")
            for jj in range(2):
                for i in range(4):
                    a = acc3[i][2*w+jj]; b = free[q*8 + jj*4 + i]
                    for r in (0, 2): R(f"v_pk_add_f32 {a.sub(r,2)}, {a.sub(r,2)}, {b.sub(r,2)}")
        for jj in range(2):
            for ip in range(2):
                X, Y = acc3[2*ip][2*w+jj], acc3[2*ip+1][2*w+jj]
                Dd = S[0].sub(4*(jj*2+ip), 4)
                R(f"v_cvt_pk_bf16_f32 {Dd[0]}, {X[0]}, {X[1]}\nv_cvt_pk_bf16_f32 {Dd[1]}, {X[2]}, {X[3]}")
                R(f"v_cvt_pk_bf16_f32 {Dd[2]}, {Y[0]}, {Y[1]}\nv_cvt_pk_bf16_f32 {Dd[3]}, {Y[2]}, {Y[3]}")
                R(f"s_nop 1\nv_permlane16_swap_b32 {Dd[0]}, {Dd[2]}\nv_permlane16_swap_b32 {Dd[1]}, {Dd[3]}")
                R(f"buffer_store_dwordx4 {Dd}, {T[1]}, {srd(S_OUT)}, s{sT0+jj} offen offset:{ip*64} {opt.get('outflag', '')}")
        if trace:
            R(f"""s_waitcnt vmcnt(0)
            s_memrealtime s[100:101]
            s_waitcnt lgkmcnt(0)
            s_lshl_b64 exec, 1, s81
            v_mov_b32 v0, s100
            s_mov_b64 exec, -1
            s_lshl_b32 s80, s2, 2
            s_add_u32 s80, s80, s{sW}
            s_lshl_b32 s80, s80, 8
            s_add_u32 s80, s80, {TS_OFF}
            v_lshlrev_b32 {T[3]}, 2, {vL}
            buffer_store_dword v0, {T[3]}, {srd(S_WS)}, s80 offen
            s_waitcnt vmcnt(0) ; TRACE""")
        if opt.get("dbgt"):
            R(f"""s_waitcnt vmcnt(0) lgkmcnt(0)
            s_memrealtime s[100:101]
            s_waitcnt lgkmcnt(0)
            s_mov_b32 s{S_C}, s{P_DBG}
            s_mov_b32 s{S_C+1}, s{P_DBG+1}
            s_mov_b32 s{S_C+2}, 256
            s_mov_b64 exec, 1""")
            for i in range(10):
                R(f"""s_sub_u32 s80, s{82+2*i}, s{sNonce}
                s_add_u32 s80, s80, 1000
                v_mov_b32 {T[3]}, s80
                buffer_atomic_umax {T[3]}, {vZero}, {srd(S_C)}, 0 offen offset:{8 + 4*i}""")
            R("s_waitcnt vmcnt(0)")
        else:
            R.ext(ts.flush(S_WS, sW, S[1].base))
        R("s_endpgm")
        return R
    for w in (3, 0, 1, 2):
        R = fin(w)
        probs += check_hazards(L3[-10:] + R.lines, f"fin{w}")
        A(f"P3_FIN{w}:"); A.ext(R.lines)
    A.ext(slow1.lines)
    A("P3_SLOWH:"); A.ext(spin("P3_SH", hpoll, [vFl[k] for k in range(4)], "P3_HOK"))
    A("P3_SLOWO:"); A.ext(spin("P3_SO", opoll, [vFl[0]], "P3_OOK"))

    F = Asm()
    F("P2_FALLBACK:")
    for ab in range(2): F(f"v_mov_b32 {T[ab]}, 0xff800000")
    F(f"s_mov_b32 s{sT0}, {KV_OFF}")
    F("P2_FB1:")
    for t in range(2): F(f"buffer_load_dwordx4 {K[0][t]}, {vL16}, {srd(S_WS)}, s{sT0} offen offset:{t*1024} {SC1}")
    F("s_waitcnt vmcnt(0)")
    for ab in range(2):
        F(f"v_mfma_f32_32x32x16_bf16 {S[ab]}, {K[0][0]}, {Q[ab][0]}, 0\nv_mfma_f32_32x32x16_bf16 {S[ab]}, {K[0][1]}, {Q[ab][1]}, {S[ab]}")
    F("s_nop 15")
    for ab in range(2):
        for r in range(0, 16, 2): F(f"v_max3_f32 {T[ab]}, {S[ab][r]}, {S[ab][r+1]}, {T[ab]}")
    F(f"s_add_u32 s{sT0}, s{sT0}, 4096\ns_cmp_lt_u32 s{sT0}, {KV_OFF + 262144}\ns_cbranch_scc1 P2_FB1")
    for ab in range(2): F(f"v_mov_b32 {T[2+ab]}, {T[ab]}")
    F("s_nop 1")
    for ab in range(2): F(f"v_permlane32_swap_b32 {T[ab]}, {T[2+ab]}")
    for ab in range(2): F(f"v_max_f32 {T[8+ab]}, {T[ab]}, {T[2+ab]}")
    for ab in range(2):
        for r in range(16): F(f"v_mov_b32 {O[ab][r]}, 0")
        for r in range(4): F(f"v_mov_b32 {Lc[ab][r]}, 0")
    F(f"s_mov_b32 s{sT0}, {KV_OFF}")
    F("P2_FB2:")
    for t in range(2): F(f"buffer_load_dwordx4 {K[0][t]}, {vL16}, {srd(S_WS)}, s{sT0} offen offset:{t*1024} {SC1}")
    for t in range(2): F(f"buffer_load_dwordx4 {V[0][t]}, {vL16}, {srd(S_WS)}, s{sT0} offen offset:{2048 + t*1024} {SC1}")
    F("s_waitcnt vmcnt(0)")
    for ab in range(2):
        F(f"v_mfma_f32_32x32x16_bf16 {S[ab]}, {K[0][0]}, {Q[ab][0]}, 0\nv_mfma_f32_32x32x16_bf16 {S[ab]}, {K[0][1]}, {Q[ab][1]}, {S[ab]}")
    F("s_nop 15")
    for ab in range(2):
        for r in range(16): F(f"v_sub_f32 {S[ab][r]}, {S[ab][r]}, {T[8+ab]}")
        for r in range(16): F(f"v_exp_f32 {S[ab][r]}, {S[ab][r]}")
        F("s_nop 0")
        for r in range(8): F(f"v_cvt_pk_bf16_f32 {P[ab][r]}, {S[ab][2*r]}, {S[ab][2*r+1]}")
    F("s_nop 1")
    for ab in range(2):
        for u_ in range(2):
            F(f"v_mfma_f32_32x32x16_bf16 {O[ab]}, {V[0][u_]}, {P[ab].sub(4*u_,4)}, {O[ab]}")
            F(f"v_mfma_f32_16x16x32_bf16 {Lc[ab]}, {ONES}, {P[ab].sub(4*u_,4)}, {Lc[ab]}")
    F(f"s_add_u32 s{sT0}, s{sT0}, 4096\ns_cmp_lt_u32 s{sT0}, {KV_OFF + 262144}\ns_cbranch_scc1 P2_FB2")
    F("s_nop 15\ns_branch P2_FINISH")
    F("L_END:\ns_endpgm")
    probs += check_hazards(F.lines, "fb")
    A.ext(F.lines)
    for p_ in probs: print("PROBLEM", p_)
    launch = f"; @launch grid=(256,1,1) block=(256,1,1) lds=163840"
    return launch, A.text(), kdesc(NAME, 512, 256)

HDR = open("gated_mix__grouped_kv_mqa__glu_gated_reglu__prompt.s.ref").read().split("; Override launch")[0]
def build(opt=None):
    l, t, d = gen(opt)
    return HDR + l + "\n" + '.amdgcn_target "amdgcn-amd-amdhsa--gfx950"\n.text\n' + t + d
if __name__ == "__main__":
    import sys, json
    out = sys.argv[1] if len(sys.argv) > 1 else "gated_mix__grouped_kv_mqa__glu_gated_reglu__prompt.s"
    opt = json.loads(sys.argv[2]) if len(sys.argv) > 2 else {}
    open(out, "w").write(build(opt))
```

```python
import re

class Asm:
    def __init__(self):
        self.lines = []
    def __call__(self, s):
        if type(s) is not str:
            self.lines.append(s); return
        for l in s.split("\n"):
            l = l.strip()
            if l: self.lines.append(l)
    def ext(self, lst):
        for l in lst: self(l)
    def text(self):
        out = []
        for l in self.lines:
            if l.endswith(":") or l.startswith(".") or l.startswith(";"):
                out.append(l)
            else:
                out.append("    " + l)
        return "\n".join(out) + "\n"

def vr(base, n=1, f="v"):
    return f"{f}{base}" if n == 1 else f"{f}[{base}:{base+n-1}]"
def ar(base, n=1): return vr(base, n, "a")
def sr(base, n=1): return vr(base, n, "s")

class Reg:
    def __init__(self, f, base, n): self.f, self.base, self.n = f, base, n
    def __str__(self): return vr(self.base, self.n, self.f)
    def sub(self, off, n=1): return Reg(self.f, self.base + off, n)
    def __getitem__(self, i): return Reg(self.f, self.base + i, 1)

class Alloc:
    def __init__(self, f, start, end): self.f, self.p, self.end = f, start, end
    def get(self, n, align=1):
        self.p = (self.p + align - 1) // align * align
        r = Reg(self.f, self.p, n); self.p += n
        assert self.p <= self.end, f"out of {self.f} regs"
        return r

def interleave(backbone, fillers):
    out = list(fillers.get(-1, []))
    for i, b in enumerate(backbone):
        out.append(b)
        out.extend(fillers.get(i, []))
    assert all(-1 <= k < len(backbone) for k in fillers), (sorted(fillers), len(backbone))
    return out

def kdesc(name, vgpr, accum, sgpr=102):
    return f""".section .rodata,"a"
.p2align 6
.amdhsa_kernel {name}
  .amdhsa_next_free_vgpr {vgpr}
  .amdhsa_next_free_sgpr {sgpr}
  .amdhsa_accum_offset {accum}
  .amdhsa_group_segment_fixed_size 0
  .amdhsa_kernarg_size 104
  .amdhsa_user_sgpr_count 2
  .amdhsa_user_sgpr_kernarg_segment_ptr 1
  .amdhsa_system_sgpr_workgroup_id_x 1
  .amdhsa_float_denorm_mode_32 3
.end_amdhsa_kernel
.text
"""

_reg_re = re.compile(r"\b([vas])(?:\[(\d+):(\d+)\]|(\d+)\b)")
def regs_of(op):
    out = set()
    for m in _reg_re.finditer(op):
        f = m.group(1)
        if m.group(2) is not None:
            for i in range(int(m.group(2)), int(m.group(3)) + 1): out.add((f, i))
        else:
            out.add((f, int(m.group(4))))
    return out

TRANS = ("v_exp_", "v_log_", "v_rcp_", "v_rsq_", "v_sqrt_", "v_sin_", "v_cos_")
def parse(line):
    line = line.split(";")[0].strip()
    if not line or line.endswith(":") or line.startswith("."): return None
    p = line.split(None, 1)
    mn = p[0]; ops = [o.strip() for o in p[1].split(",")] if len(p) > 1 else []
    return mn, ops

def check_hazards(lines, name=""):
    hist = []
    probs = []
    ins = [(l, parse(l)) for l in lines]
    ins = [(l, p) for l, p in ins if p]
    def states(mn, ops):
        if mn == "s_nop": return int(ops[0], 0) + 1
        return 1
    pos = 0; recs = []
    for l, (mn, ops) in ins:
        isM = mn.startswith(("v_mfma", "v_smfmac"))
        isV = mn.startswith("v_") and not isM
        isMem = mn.startswith(("buffer_", "global_", "ds_", "flat_"))
        dst = set(); src = set(); srcC = set(); srcAB = set()
        if isM:
            dst = regs_of(ops[0]); srcAB = regs_of(ops[1]) | regs_of(ops[2]); srcC = regs_of(ops[3])
            if mn.startswith("v_smfmac"): srcAB |= srcC; srcC = set(dst)
            src = srcAB | srcC
        elif isV:
            dst = regs_of(ops[0]); src = set().union(*[regs_of(o) for o in ops[1:]]) if len(ops) > 1 else set()
            if mn.startswith(("v_fmac", "v_dot2c", "v_permlane", "v_writelane")): src |= dst
            if mn.startswith("v_permlane"): dst |= regs_of(ops[1])
            if mn.startswith("v_cmp") and ops[0] == "vcc": dst = {("s", "vcc")}
            if mn.startswith("v_cndmask") and (len(ops) < 4 or ops[3] == "vcc"): src |= {("s", "vcc")}
            if mn.startswith(("v_add_co", "v_sub_co", "v_addc_co")):
                dst |= regs_of(ops[1]) | ({("s","vcc")} if ops[1]=="vcc" else set())
        elif isMem:
            allr = set().union(*[regs_of(o) for o in ops]) if ops else set()
            if "load" in mn or mn.startswith("ds_read") or mn.startswith("ds_bperm") or mn.startswith("ds_swizzle"):
                if " lds" in l or "load_lds" in mn: src = allr
                else:
                    dst = regs_of(ops[0]); src = set().union(*[regs_of(o) for o in ops[1:]])
            else: src = allr
        else:
            src = set().union(*[regs_of(o) for o in ops[1:]]) if len(ops) > 1 else set()
            if ops and not mn.startswith(("s_cmp", "s_waitcnt", "s_cbranch", "s_branch", "s_nop", "s_barrier")): dst = regs_of(ops[0])
            if ops and ops[0] == "m0": dst = {("s", "m0")}
        for r in reversed(recs):
            d = pos - r["pos"] - r["st"]
            d = pos - r["end"]
            if d > 24: break
            need = 0; why = ""
            if r["isM"]:
                p8 = r["passes"] == 8
                if isM:
                    if r["dst"] & srcAB: need, why = (12 if p8 else 8), "mfma D->AB"
                    elif r["dst"] & srcC and not (r["dst"] == srcC and r["mn"] == mn): need, why = (10 if p8 else 6), "mfma D->C partial"
                    elif (r["dst"] & dst) and not (r["dst"] == srcC and r["mn"] == mn) : need, why = (10 if p8 else 6), "mfma WAW"
                elif isV or isMem:
                    if r["dst"] & (src | dst): need, why = (12 if p8 else 8), "mfma D->valu/mem"
                    if isV and (r["srcC"] & dst): need, why = max(need, 7 if p8 else 3), why + " mfma C WAR"
            elif r["isV"]:
                vd = {x for x in r["dst"] if x[0] in "va"}
                sd = {x for x in r["dst"] if x[0] == "s"}
                if isM and vd & src: need, why = 2, "valu->mfma"
                if r["mn"].startswith(TRANS) and isV and not mn.startswith(TRANS) and vd & src: need, why = 1, "trans->valu"
                if r["mn"].startswith(TRANS) and isMem and vd & src: need, why = 1, "trans->mem"
                if mn.startswith("v_permlane") and vd & src: need, why = 2, "valu->permlane"
                if ("dpp" in mn or "row_" in l or "quad_perm" in l) and vd & src: need, why = 2, "valu->dpp"
                if mn.startswith(("v_readfirstlane", "v_readlane")) and vd & src: need, why = 1, "valu->readlane"
                if sd & src:
                    if isMem: need, why = 5, "valu sgpr->vmem"
                    elif isV: need, why = 2, "valu sgpr->valu"
            elif r["isMem"]:
                if ("store" in r["mn"]) and ("x4" in r["mn"] or "x3" in r["mn"]) and (isV or isM) and (r["data"] & dst): need, why = 2, "store data WAR"
            else:
                if ("s", "m0") in r["dst"] and isMem and (" lds" in l or "load_lds" in mn): need, why = 1, "m0->lds dma"
            if need > d:
                probs.append(f"{name}: [{why}] need {need} have {d}: '{r['l']}' -> '{l}'")
        st = states(mn, ops)
        recs.append(dict(l=l, mn=mn, pos=pos, st=st, end=pos + 1 if mn != "s_nop" else pos + st, isM=isM, isV=isV, isMem=isMem,
                         dst=dst, srcC=srcC, passes=(8 if "32x32" in mn else 4), data=(regs_of(ops[0]) if isMem and ops else set())))
        pos += st
    return probs

class VM(str):
    def __new__(cls, s, tag=None):
        o = str.__new__(cls, s); o.tag = tag; return o
class Need(str):
    def __new__(cls, tags, extra="", n=None):
        o = str.__new__(cls, f"s_waitcnt vmcnt({n if n is not None else 0}) {extra}".strip()); o.tags = tags; o.extra = extra; o.n = n; return o
def is_vmem(l): return l.startswith(("buffer_", "global_"))
def _count_after(seq, pos, tag):
    c = 0
    for k in range(pos - 1, -1, -1):
        l = seq[k]
        if is_vmem(l):
            if getattr(l, "tag", None) == tag: return c
            c += 1
    return None
def resolve_waits(body, pred=None):
    pred = body if pred is None else pred
    seq = list(pred) + list(body); out = []
    for k, l in enumerate(body):
        if isinstance(l, Need) and l.n is None:
            cs = [_count_after(seq, len(pred) + k, t) for t in l.tags]
            assert all(c is not None for c in cs), (l.tags, cs)
            out.append(Need(l.tags, l.extra, min(min(cs), 63)))
        else: out.append(l)
    return out
def verify_waits(seq, start=0, name=""):
    bad = []
    for k in range(start, len(seq)):
        l = seq[k]
        if isinstance(l, Need):
            for t in l.tags:
                c = _count_after(seq, k, t)
                if c is None: bad.append(f"{name}: tag {t} never issued before {k}")
                elif c < l.n:
                    ok = False; cnt = 0
                    for q in range(k - 1, -1, -1):
                        x = seq[q]
                        if is_vmem(x):
                            if getattr(x, "tag", None) == t: break
                        m = re.match(r"s_waitcnt.*vmcnt\((\d+)\)", x)
                        if m:
                            cq = _count_after(seq, q, t)
                            if cq is not None and cq >= int(m.group(1)): ok = True; break
                    if not ok: bad.append(f"{name}: wait at {k} vmcnt({l.n}) insufficient for {t} (only {c} younger)")
    return bad
```

```python
from asmlib import *
from common import *
LOG2E = math.log2(math.e)
NAME = "gated_mix__grouped_kv_mqa__glu_gated_reglu__prompt_kernel"

FL_E = 0x1650000
FL_ES = 4352
FL_Q = 0x1660000
FL_H = 0x1649000
FL_O = 0x164a000
SPIN_MAX = 1 << 20
PW = 7168

def put(f, g, x):
    f.setdefault(g, []).extend(x if isinstance(x, list) else [x])

def gen(opt=None):
    opt = opt or {}
    A = Asm()
    DEF = ["start", "p1", "p1end", "kvdone", "poll0", "poll1", "att", "attend", "tail"]
    tsn = opt.get("ts")
    ts = TSN(DEF if tsn == 1 else tsn, opt.get("tskind", "rt"))
    SC1 = "sc1"
    probs = []
    P_X, P_WQ, P_WK, P_WV, P_WO = 4, 6, 8, 10, 12
    P_WG, P_WU, P_WD, P_GW = 16, 18, 20, 22
    P_OUT, P_DBG, P_WS = 24, 26, 28
    S_WS, S_A, S_B, S_C, S_D, S_E = 32, 36, 40, 44, 48, 52
    sW, sNonce = 56, 57
    sT0, sT1, sT2, sT3 = 58, 59, 60, 61
    sIt, sRB, sCB = 62, 63, 64
    sL = 65
    vL, vL16 = Reg("v", 1, 1), Reg("v", 2, 1)
    def srd(b): return f"s[{b}:{b+3}]"

    A(f".globl {NAME}\n.p2align 8\n.type {NAME},@function\n{NAME}:")
    A("s_cmp_ge_u32 s2, 256\ns_cbranch_scc1 L_END")
    A.ext(ts.at("start"))
    A(f"""s_load_dwordx8 s[4:11], s[0:1], 0
    s_load_dwordx2 s[12:13], s[0:1], 32
    s_load_dwordx8 s[16:23], s[0:1], 48
    s_load_dwordx4 s[24:27], s[0:1], 80
    s_load_dwordx2 s[28:29], s[0:1], 96
    s_memrealtime s[30:31]
    v_lshrrev_b32 v3, 6, v0
    v_and_b32 {vL}, 63, v0
    v_readfirstlane_b32 s{sW}, v3
    v_lshlrev_b32 {vL16}, 4, {vL}""")
    CPF = opt.get("cpf", 1) and not opt.get("trace")
    sPC = 100
    cpf = VM(f"global_load_dword a253, v0, s[{sPC}:{sPC+1}]", "CP")
    cpa = "v_add_u32 v0, 0x2000, v0"
    def cp(adv=True): return ([cpf] + ([cpa] if adv else [])) if CPF else []
    if CPF:
        A(f"""s_getpc_b64 s[{sPC}:{sPC+1}]
        L_PCREF:
        v_lshlrev_b32 v0, 7, {vL}
        s_sub_u32 s{sPC}, s{sPC}, L_PCREF-{NAME}
        s_subb_u32 s{sPC+1}, s{sPC+1}, 0""")
        A.ext(cp())

    if opt.get("ticket", 0):
        A(f"""s_getreg_b32 s{sT0}, hwreg(HW_REG_XCC_ID)
        s_and_b32 s{sT0}, s{sT0}, 7
        s_cmp_lg_u32 s{sW}, 0
        s_cbranch_scc1 L_TKWAIT
        v_mov_b32 v5, 0
        s_mov_b32 s{sT1}, 8
        s_mov_b32 s{S_WS+2}, 256
        s_mov_b32 s{S_WS+3}, 0x20000
        s_waitcnt lgkmcnt(0)
        s_mov_b32 s{S_WS}, s{P_DBG}
        s_mov_b32 s{S_WS+1}, s{P_DBG+1}
        s_mov_b64 exec, 1
        L_TKTRY:
        v_mov_b32 v4, 1
        s_lshl_b32 s{sT2}, s{sT0}, 5
        buffer_atomic_add v4, v5, {srd(S_WS)}, s{sT2} offen offset:4 sc0
        s_waitcnt vmcnt(0)
        v_readfirstlane_b32 s{sT2}, v4
        s_cmp_lt_u32 s{sT2}, 32
        s_cbranch_scc1 L_TKGOT
        s_add_u32 s{sT0}, s{sT0}, 1
        s_and_b32 s{sT0}, s{sT0}, 7
        s_sub_u32 s{sT1}, s{sT1}, 1
        s_cmp_lg_u32 s{sT1}, 0
        s_cbranch_scc1 L_TKTRY
        s_mov_b32 s{sT2}, 32
        L_TKGOT:
        s_lshl_b32 s{sT2}, s{sT2}, 3
        s_add_u32 s{sT2}, s{sT2}, s{sT0}
        v_mov_b32 v4, s{sT2}
        ds_write_b32 v5, v4
        s_mov_b64 exec, -1
        s_waitcnt lgkmcnt(0)
        L_TKWAIT:
        v_mov_b32 v5, 0
        s_barrier
        ds_read_b32 v4, v5
        s_waitcnt lgkmcnt(0)
        v_readfirstlane_b32 s2, v4
        s_barrier
        s_cmp_ge_u32 s2, 256
        s_cbranch_scc1 L_END""")
    trace = opt.get("trace")
    def tr_issue(): return ["s_memrealtime s[100:101]"] if trace else []
    def tr_commit(): return ["s_lshl_b64 exec, 1, s81", "v_mov_b32 v0, s100", "s_mov_b64 exec, -1", "s_add_u32 s81, s81, 1"] if trace else []
    if trace: A("s_mov_b32 s81, 0\nv_mov_b32 v0, 0\ns_memrealtime s[100:101]\ns_waitcnt lgkmcnt(0)"); A.ext(tr_commit())
    S_X, S_W0, S_W1, S_KV, S_Wb = S_A, S_B, S_C, S_D, S_E
    sSoX = sL - 1
    sSo0 = sL + 7
    sSo1 = sL + 7
    sM0X, sM0W, sM0K, sWwr = sL + 11, sL + 12, sL + 13, sL + 14
    sWrd, s16k, sStep1, sSa, sSc, sIsB, sKVst, sEfl = 14, 30, 15, 3, 31, 9, 10, 11
    XB, WB, KR = 0, 65536, 147456
    vXo = [3, 4]; vWo0, vWo1, vKo, vSXo = 5, 6, 7, 8
    vXa = [9, 10]; vW0a = [[11 + 2*i, 12 + 2*i] for i in range(4)]; vW1a = [19, 20, 21, 22]; vSWa = 23
    vT = 24
    acc = [[None]*8 for _ in range(8)]
    p = 32
    for i in range(7):
        for j in range(8):
            acc[i][j] = Reg("v", p, 4); p += 4
    RA = [[Reg("a", 64*s + 4*i, 4) for i in range(8)] for s in range(2)]
    RB = [[Reg("a", 64*s + 32 + 4*j, 4) for j in range(8)] for s in range(2)]
    SA = [Reg("a", 128 + 4*s, 4) for s in range(2)]
    sacc = Reg("a", 144, 4)
    for j in range(8): acc[7][j] = Reg("a", 148 + 4*j, 4)
    SXB = [[Reg("a", 180 + 8*b + 4*j, 4) for j in range(2)] for b in range(2)]
    GXa = [Reg("a", 196 + 8*r, 8) for r in range(2)]
    GWa = Reg("a", 212, 8)
    t0, t1, t2, t3, t4, t5, t6, t7 = range(vT, vT + 8)
    HUGE = 0x40000000

    A(f"""s_and_b32 s{sT0}, s2, 1
    s_lshl_b32 s{sT0}, s{sT0}, 2
    s_bfe_u32 s{sT1}, s2, 0x20003
    s_add_u32 s{sRB}, s{sT0}, s{sT1}
    s_bfe_u32 s{sT0}, s2, 0x20001
    s_lshl_b32 s{sT0}, s{sT0}, 3
    s_lshr_b32 s{sT1}, s2, 5
    s_add_u32 s{sCB}, s{sT0}, s{sT1}""")
    A(f"""s_lshl_b32 s{sT0}, s{sW}, 6
    v_lshrrev_b32 v{t0}, 3, {vL}
    v_add_u32 v{t2}, s{sT0}, v{t0}
    v_lshlrev_b32 v{t2}, 11, v{t2}
    v_lshrrev_b32 v{t1}, 4, {vL}
    v_and_b32 v{t3}, 7, {vL}
    v_xor_b32 v{t4}, v{t3}, v{t1}
    v_lshl_add_u32 v{vXo[0]}, v{t4}, 4, v{t2}
    v_xor_b32 v{vXo[1]}, 64, v{vXo[0]}""")
    for e in range(1, 8): A(f"s_mov_b32 s{sSoX+e}, {e*16384 - (e&3)*1024}")
    A(f"""s_lshl_b32 s{sM0X}, s{sW}, 13
    s_lshl_b32 s{sM0W}, s{sW}, 11
    s_add_u32 s{sM0K}, s{sM0W}, {KR}
    s_add_u32 s{sM0W}, s{sM0W}, {WB}
    s_and_b32 s{sT1}, s{sCB}, 3
    s_mov_b32 s{sStep1}, {PW}
    s_cmp_eq_u32 s{sT1}, 3
    s_cselect_b32 s{sStep1}, 2048, s{sStep1}""")
    A(f"""s_lshl_b32 s{sT0}, s{sW}, 3
    v_add_u32 v{t2}, s{sT0}, v{t1}
    v_mul_lo_u32 v{t2}, v{t2}, s{sStep1}
    s_and_b32 s{sT1}, s{sW}, 1
    s_lshl_b32 s{sT2}, s{sT1}, 3
    v_and_b32 v{t4}, 15, {vL}
    v_lshl_or_b32 v{t5}, v{t1}, 1, s{sT2}
    v_xor_b32 v{t4}, v{t4}, v{t5}
    v_lshl_add_u32 v{vWo1}, v{t4}, 4, v{t2}
    v_add_u32 v{t2}, s{sT0}, v{t0}
    v_mul_u32_u24 v{t2}, {PW}, v{t2}
    s_lshl_b32 s{sT2}, s{sT1}, 2
    v_and_b32 v{t4}, 1, v{t1}
    v_lshl_or_b32 v{t4}, v{t4}, 1, s{sT2}
    v_xor_b32 v{t4}, v{t4}, v{t3}
    v_lshl_add_u32 v{vWo0}, v{t4}, 4, v{t2}""")
    A("s_waitcnt lgkmcnt(0)")
    A(f"""s_lshl_b32 s{sT0}, s{sRB}, 19
    s_add_u32 s{S_X}, s{P_X}, s{sT0}
    s_addc_u32 s{S_X+1}, s{P_X+1}, 0
    s_mov_b32 s{S_X+2}, 0x80000
    s_mov_b32 s{S_X+3}, 0x20000""")
    A(f"""s_mov_b32 s{S_WS+3}, 0x20000
    s_or_b32 s{sT0}, s2, s{sW}
    s_cmp_lg_u32 s{sT0}, 0
    s_cbranch_scc1 P1_NONONCE
    s_or_b32 s30, s30, 1
    s_mov_b32 s{S_WS}, s{P_DBG}
    s_mov_b32 s{S_WS+1}, s{P_DBG+1}
    s_mov_b32 s{S_WS+2}, 256
    v_mov_b32 v{t6}, s30
    v_mov_b32 v{t7}, 0
    s_mov_b64 exec, 1
    buffer_store_dword v{t6}, v{t7}, {srd(S_WS)}, 0 offen sc1
    s_mov_b64 exec, -1
    P1_NONONCE:""")
    WNT = opt.get("wnt", "")
    def xdma(par):
        sl = []
        for e in range(8):
            pre = []
            if e == 0: pre = [f"s_add_u32 m0, s{sM0X}, {par}"]
            if e == 4: pre = ["s_add_u32 m0, m0, 4096"]
            so = "0" if e == 0 else f"s{sSoX+e}"
            sl.append((pre, VM(f"buffer_load_dwordx4 v{vXo[e&1]}, {srd(S_X)}, {so} offen offset:{(e&3)*1024} lds", "X")))
        return sl
    def wdma(hb, slot):
        so0 = "0" if hb == 0 else f"s{sSo0}"
        so1 = ["0" if hb == 0 else f"s{sSo1+2}", f"s{sSo1 + 1 + 2*hb}"]
        return [([f"s_add_u32 m0, s{sM0W}, {slot}"], VM(f"buffer_load_dwordx4 v{vWo0}, {srd(S_W0)}, {so0} offen {WNT} lds", "W")),
                ([], VM(f"buffer_load_dwordx4 v{vWo0}, {srd(S_Wb)}, {so0} offen offset:1024 {WNT} lds", "W")),
                (["s_add_u32 m0, m0, 8192"], VM(f"buffer_load_dwordx4 v{vWo1}, {srd(S_W1)}, {so1[0]} offen {WNT} lds", "W")),
                ([], VM(f"buffer_load_dwordx4 v{vWo1}, {srd(S_W1)}, {so1[1]} offen offset:1024 {WNT} lds", "W"))]
    def kdma(slot):
        return [([f"s_add_u32 m0, s{sM0K}, {slot}"], VM(f"buffer_load_dwordx4 v{vKo}, {srd(S_KV)}, 0 offen lds", "X")),
                ([], VM(f"buffer_load_dwordx4 v{vKo}, {srd(S_KV)}, 0 offen offset:1024 lds", "X"))]
    def sxload(b): return [VM(f"buffer_load_dwordx4 {SXB[b][j]}, v{vSXo}, {srd(S_X)}, 0 offen offset:{j*64}", "SX") for j in range(2)]
    def emit_dma(X, sl):
        for pre, d in sl:
            X.ext(pre)
            if pre: X("s_nop 0")
            X(d)
    emit_dma(A, xdma(0))
    A(f"""s_lshr_b32 s{sT0}, s{sCB}, 2
    s_and_b32 s{sT1}, s{sCB}, 3
    s_mul_i32 s{sT2}, s{sT0}, 896
    s_lshl_b32 s{sT3}, s{sT1}, 8
    s_add_u32 s{sT2}, s{sT2}, s{sT3}
    s_add_u32 s{S_W0}, s{P_WG}, s{sT2}
    s_addc_u32 s{S_W0+1}, s{P_WG+1}, 0
    s_sub_u32 s{S_W0+2}, {1024*PW}, s{sT2}
    s_mov_b32 s{S_W0+3}, 0x20000
    s_mov_b32 s{S_W1+3}, 0x20000
    s_mov_b32 s{S_Wb+3}, 0x20000
    s_mov_b32 s{sSo0}, {32*PW}
    s_cmp_eq_u32 s{sT1}, 3
    s_cbranch_scc1 P1_SRDB
    s_add_u32 s{S_Wb}, s{S_W0}, {4*PW - 1024}
    s_addc_u32 s{S_Wb+1}, s{S_W0+1}, 0
    s_sub_u32 s{S_Wb+2}, s{S_W0+2}, {4*PW - 1024}
    s_add_u32 s{S_W1}, s{P_WU}, s{sT2}
    s_addc_u32 s{S_W1+1}, s{P_WU+1}, 0
    s_mov_b32 s{S_W1+2}, s{S_W0+2}
    v_mov_b32 v{vWo0}, v{vWo1}
    s_branch P1_SRDD
    P1_SRDB:
    s_add_u32 s{S_Wb}, s{P_WU}, s{sT2}
    s_addc_u32 s{S_Wb+1}, s{P_WU+1}, 0
    s_sub_u32 s{S_Wb}, s{S_Wb}, 1024
    s_subb_u32 s{S_Wb+1}, s{S_Wb+1}, 0
    s_add_u32 s{S_Wb+2}, s{S_W0+2}, 1024
    s_lshl_b32 s{sT0}, s{sT0}, 8
    s_add_u32 s{S_W1}, s{P_WQ}, s{sT0}
    s_addc_u32 s{S_W1+1}, s{P_WQ+1}, 0
    s_sub_u32 s{S_W1+2}, {1024*2048}, s{sT0}
    P1_SRDD:
    s_lshl_b32 s{sSo1+1}, s{sStep1}, 2
    s_sub_u32 s{sSo1+1}, s{sSo1+1}, 1024
    s_lshl_b32 s{sSo1+2}, s{sStep1}, 5
    s_add_u32 s{sSo1+3}, s{sSo1+2}, s{sSo1+1}
    s_lshl_b32 s{sStep1}, s{sStep1}, 6""")
    advX = [f"v_add_u32 v{vXo[0]}, 128, v{vXo[0]}", f"v_add_u32 v{vXo[1]}, 128, v{vXo[1]}"]
    advW = [f"v_add_u32 v{vWo0}, {64*PW}, v{vWo0}", f"v_add_u32 v{vWo1}, s{sStep1}, v{vWo1}"]
    advK = f"v_add_u32 v{vKo}, 4096, v{vKo}"
    advS = f"v_add_u32 v{vSXo}, 128, v{vSXo}"
    emit_dma(A, wdma(0, 0)); emit_dma(A, wdma(1, 16384))
    A.ext(advX + advW)
    A(f"""s_bfe_u32 s{sT0}, s{sCB}, 0x10001
    s_and_b32 s{sT1}, s{sW}, 1
    s_bitcmp1_b32 s{sCB}, 0
    s_cselect_b32 s{S_KV}, s{P_WV}, s{P_WK}
    s_cselect_b32 s{S_KV+1}, s{P_WV+1}, s{P_WK+1}
    s_cselect_b32 s{sSa}, s{sT1}, s{sT0}
    s_cselect_b32 s{sSc}, s{sT0}, s{sT1}
    s_mov_b32 s{S_KV+2}, 65536
    s_mov_b32 s{S_KV+3}, 0x20000
    s_and_b32 s{sIsB}, s{sCB}, 3
    s_cmp_eq_u32 s{sIsB}, 3
    s_cselect_b32 s{sIsB}, 1, 0
    v_lshrrev_b32 v{t2}, 5, {vL}
    v_lshlrev_b32 v{t2}, 1, v{t2}
    v_xor_b32 v{t2}, v{t2}, {vL}
    v_lshlrev_b32 v{t2}, 4, v{t2}
    s_lshr_b32 s{sT2}, s{sW}, 1
    s_lshl_b32 s{sT0}, s{sT2}, 15
    s_lshl_b32 s{sT1}, s{sT1}, 11
    s_add_u32 s{sT0}, s{sT0}, s{sT1}
    v_add_u32 v{vKo}, s{sT0}, v{t2}
    s_lshr_b32 s{sT0}, s{sCB}, 2
    s_lshl_b32 s{sT0}, s{sT0}, 1
    s_add_u32 s{sT0}, s{sT0}, s{sSa}
    s_lshl_b32 s{sT0}, s{sT0}, 15
    s_lshl_b32 s{sT2}, s{sT2}, 10
    s_add_u32 s{sT0}, s{sT0}, s{sT2}
    v_and_b32 v{t2}, 15, {vL}
    v_lshlrev_b32 v{t2}, 11, v{t2}
    v_lshl_add_u32 v{t2}, v{t1}, 4, v{t2}
    v_add_u32 v{vSXo}, s{sT0}, v{t2}""")
    emit_dma(A, kdma(0)); A.ext(sxload(0)); A(advK); A(advS)
    A(f"""s_mov_b32 s{S_WS}, s{P_WS}
    s_mov_b32 s{S_WS+1}, s{P_WS+1}
    s_mov_b32 s{S_WS+2}, {WS_USED}""")
    nfirst = len(A.lines)
    second = xdma(32768) + wdma(0, 2*16384) + kdma(8192) + wdma(1, 3*16384)
    A(f"""v_and_b32 v{t0}, 15, {vL}
    v_lshrrev_b32 v{t2}, 1, v{t0}
    v_xor_b32 v{t2}, v{t2}, v{t1}
    v_lshlrev_b32 v{t2}, 4, v{t2}
    v_lshl_add_u32 v{t2}, v{t0}, 7, v{t2}
    s_lshr_b32 s{sT0}, s{sW}, 1
    s_lshl_b32 s{sT1}, s{sT0}, 14
    v_add_u32 v{vXa[0]}, s{sT1}, v{t2}
    v_xor_b32 v{vXa[1]}, 64, v{vXa[0]}
    v_bfe_u32 v{t0}, {vL}, 2, 2
    v_lshl_add_u32 v{t2}, v{t1}, 3, v{t0}
    v_and_b32 v{t3}, 1, v{t1}
    v_lshl_or_b32 v{t5}, v{t3}, 2, v{t0}
    v_and_b32 v{t4}, 3, {vL}
    v_lshlrev_b32 v{t4}, 3, v{t4}
    v_lshl_add_u32 v{t6}, v{t2}, 8, v{t4}
    v_add_u32 v{t6}, {WB + 8192}, v{t6}
    s_and_b32 s{sT0}, s{sW}, 1
    s_lshl_b32 s{sT1}, s{sT0}, 2""")
    for ii in range(4):
        A(f"""s_add_u32 s{sT2}, s{sT1}, {ii}
        v_xor_b32 v{t7}, s{sT2}, v{t5}
        v_lshl_add_u32 v{vW1a[ii]}, v{t7}, 5, v{t6}""")
    A(f"""v_lshl_add_u32 v{t2}, v{t2}, 6, v{t4}
    v_xor_b32 v{t7}, s{sSc}, v{t3}
    v_lshl_add_u32 v{t7}, v{t7}, 5, v{t2}
    s_lshr_b32 s{sT2}, s{sW}, 1
    s_lshl_b32 s{sT2}, s{sT2}, 12
    s_add_u32 s{sT2}, s{sT2}, {KR}
    v_add_u32 v{vSWa}, s{sT2}, v{t7}
    s_mov_b32 s{s16k}, 16384
    s_cmp_eq_u32 s{sIsB}, 1
    s_cbranch_scc1 P1_ADB""")
    for ii in range(4):
        A(f"v_subrev_u32 v{vW0a[ii][0]}, 8192, v{vW1a[ii]}\nv_subrev_u32 v{vW0a[ii][1]}, 7168, v{vW1a[ii]}")
    A(f"""s_branch P1_ADD
    P1_ADB:
    v_lshl_add_u32 v{t4}, v{t1}, 11, v{t4}
    v_lshl_add_u32 v{t4}, v{t0}, 7, v{t4}
    v_add_u32 v{t4}, {WB}, v{t4}
    v_lshrrev_b32 v{t0}, 1, v{t0}
    v_lshl_or_b32 v{t0}, v{t3}, 1, v{t0}
    s_lshl_b32 s{sT1}, s{sT0}, 1""")
    for k in range(2):
        A(f"""s_add_u32 s{sT2}, s{sT1}, {k}
        v_xor_b32 v{t7}, s{sT2}, v{t0}
        v_lshl_add_u32 v{vW0a[k][0]}, v{t7}, 5, v{t4}
        v_add_u32 v{vW0a[k][1]}, 512, v{vW0a[k][0]}
        v_add_u32 v{vW0a[2+k][0]}, 1024, v{vW0a[k][0]}
        v_add_u32 v{vW0a[2+k][1]}, 1536, v{vW0a[k][0]}""")
    A("P1_ADD:")
    PF = opt.get("pf", 1)
    Z = []
    for i in range(8):
        for j in range(8):
            for r in range(4):
                a = acc[i][j][r]
                Z.append(f"v_mov_b32 {a}, 0" if a.f == "v" else f"v_accvgpr_write_b32 {a}, 0")
    for r in range(4): Z.append(f"v_accvgpr_write_b32 {sacc[r]}, 0")
    per = len(Z) // len(second)
    for k, (pre, d) in enumerate(second):
        A.ext(pre); A.ext(Z[k*per:(k+1)*per]); A(d)
    A.ext(Z[len(second)*per:])
    A.ext(advX + advW + [advK])

    rdregs = [r for pr in vW0a for r in pr] + vW1a
    def reads(b, s, side):
        L = [f"ds_read_b128 {RB[s][j]}, v{vXa[b]} offset:{j*2048}" for j in range(8)]
        for i in range(8):
            for hf in range(2):
                if i < 4: L.append(f"ds_read_b64_tr_b16 {RA[s][i].sub(2*hf, 2)}, v{vW0a[i][hf]}")
                else: L.append(f"ds_read_b64_tr_b16 {RA[s][i].sub(2*hf, 2)}, v{vW1a[i-4]} offset:{hf*1024}")
        if side:
            for hf in range(2):
                L.append(f"ds_read_b64_tr_b16 {SA[s].sub(2*hf, 2)}, v{vSWa} offset:{b*2048 + hf*256}")
        return L
    def mfmas(s, side=None):
        L = []
        for i in range(8):
            js = range(8) if i % 2 == 0 else range(7, -1, -1)
            for j in js:
                L.append(f"v_mfma_f32_16x16x32_bf16 {acc[i][j]}, {RA[s][i]}, {RB[s][j]}, {acc[i][j]}")
            if side is not None and i == 3:
                L.append(f"v_mfma_f32_16x16x32_bf16 {sacc}, {SA[s]}, {SXB[side][s]}, {sacc}")
        return L
    def rotW(sreg, sd):
        return [f"s_cmp_eq_u32 s{sreg}, {4*16384}", f"s_cselect_b32 s{sd}, {(-4*16384) & 0xffffffff:#x}, s{s16k}", f"s_add_u32 s{sreg}, s{sreg}, s{sd}"]
    A(f"s_waitcnt vmcnt({len(second)}) lgkmcnt(0)\ns_barrier")
    A.ext(reads(0, 0, True))
    for r in rdregs: A(f"v_add_u32 v{r}, 16384, v{r}")
    A(f"""s_mov_b32 s{sWrd}, 16384
    s_mov_b32 s{sWwr}, {4*16384}
    s_mov_b32 s{sIt}, 0
    s_waitcnt lgkmcnt(0)
    s_barrier""")
    A.ext(ts.at("p1"))
    if ts.on: A("s_waitcnt lgkmcnt(0)")
    pro_hist = list(A.lines)

    def step(side=None, dma=True, last=False, hook=None, lim=None, cpfm=None):
        out = []
        sd = side is not None
        n = 65 if sd else 64
        BG = n - 4
        def rot(f):
            put(f, 47, rotW(sWrd, sT1))
            for k, r in enumerate(rdregs): put(f, 48 + k, f"v_add_u32 v{r}, s{sT1}, v{r}")
        f = {}
        for k, r in enumerate(reads(1, 1, sd)): put(f, 2*k if k < 24 else 49 + 2*(k - 24), r)
        if dma:
            dg = [1, 9, 17, 25, 33, 39, 45, 53] if not sd else [13, 19, 25, 31, 37, 43, 49, 55]
            for k, (pre, d) in enumerate(wdma(0, f"s{sWwr}") + wdma(1, f"s{sWwr}")):
                if pre: put(f, dg[k] - 1, pre)
                put(f, dg[k], d)
            put(f, dg[0] + 2, rotW(sWwr, sT0)); put(f, dg[4] + 2, rotW(sWwr, sT0))
            put(f, 57, advW[0]); put(f, 58, advW[1])
        if sd:
            for k, l in enumerate(sxload(side ^ 1)): put(f, [1, 7][k], l)
            put(f, 9, advS)
            put(f, 59, f"v_xor_b32 v{vSWa}, 0x2000, v{vSWa}")
        rot(f)
        put(f, 19, f"v_xor_b32 v{vXa[0]}, 0x8000, v{vXa[0]}")
        if cpfm == "rep": put(f, 3 if not sd else 4, cp(False))
        if cpfm == "adv": put(f, 3, cpa if CPF else [])
        if cpfm == "advld": put(f, 3, ([cpa] + cp()) if CPF else [])
        if hook: hook(0, f, BG)
        put(f, BG, [Need(["X"], "lgkmcnt(0)") if (dma or not last) else "s_waitcnt lgkmcnt(0)", "s_barrier"])
        if hook: hook(2, f, BG)
        out += interleave(mfmas(0, side), f)
        f = {}
        if not last:
            for k, r in enumerate(reads(0, 0, sd)): put(f, 2*k if k < 24 else 49 + 2*(k - 24), r)
            rot(f)
            put(f, 21, f"v_xor_b32 v{vXa[1]}, 0x8000, v{vXa[1]}")
        if dma:
            put(f, -1, [f"s_and_b32 s{sT3}, s{sIt}, 1", f"s_lshl_b32 s{sT0}, s{sT3}, 15", f"s_lshl_b32 s{sT3}, s{sT3}, 13"])
            dl = (kdma(f"s{sT3}") if sd else []) + xdma(f"s{sT0}")
            dg = [1, 7, 13, 19, 25, 31, 37, 43, 49, 55] if sd else [1, 9, 17, 25, 33, 41, 47, 53]
            for k, (pre, d) in enumerate(dl):
                if pre: put(f, dg[k] - 1, pre)
                put(f, dg[k], d)
            put(f, 57, advX[0]); put(f, 59, advX[1])
            if sd: put(f, 9, advK)
        if hook: hook(1, f, BG)
        put(f, BG - 3, tr_issue())
        put(f, BG, [Need(["SX"], "lgkmcnt(0)") if sd else "s_waitcnt lgkmcnt(0)", "s_barrier"] + tr_commit())
        put(f, BG + 1, f"s_add_u32 s{sIt}, s{sIt}, 1")
        if lim: put(f, BG + 2, f"s_cmp_lt_u32 s{sIt}, {lim}")
        out += interleave(mfmas(1, side), f)
        return out

    vN, vZ, vKA, vFA = t0, t1, t2, t3
    u = 28
    nload = f"buffer_load_dword v{vN}, v{vZ}, {srd(S_KV)}, 0 offen sc1"
    dbgsrd = [f"s_mov_b32 s{S_KV}, s{P_DBG}", f"s_mov_b32 s{S_KV+1}, s{P_DBG+1}", f"s_mov_b32 s{S_KV+2}, 256", f"v_mov_b32 v{vZ}, 0"]
    PSC = KR + 4096
    kvK = f"""v_bfe_u32 v{vKA}, {vL}, 3, 1
    v_lshlrev_b32 v{vKA}, 4, v{vKA}
    v_and_b32 v{vFA}, 7, {vL}
    v_add_u32 v{vKA}, v{vKA}, v{vFA}
    v_bfe_u32 v{vFA}, {vL}, 4, 1
    v_lshl_add_u32 v{vKA}, v{vFA}, 5, v{vKA}
    v_lshlrev_b32 v{vKA}, 4, v{vKA}
    v_lshrrev_b32 v{vFA}, 5, {vL}
    v_lshl_add_u32 v{vKA}, v{vFA}, 10, v{vKA}
    s_lshl_b32 s{sKVst}, s{sSa}, 7
    s_lshl_b32 s{sEfl}, s{sSc}, 3""".split("\n")
    kvV = f"""v_lshrrev_b32 v{vKA}, 5, {vL}
    v_lshlrev_b32 v{vKA}, 4, v{vKA}
    v_bfe_u32 v{vFA}, {vL}, 4, 1
    v_lshl_add_u32 v{vKA}, v{vFA}, 2, v{vKA}
    v_bfe_u32 v{vFA}, {vL}, 2, 1
    v_lshl_add_u32 v{vKA}, v{vFA}, 5, v{vKA}
    v_lshlrev_b32 v{vKA}, 4, v{vKA}
    v_bfe_u32 v{vFA}, {vL}, 3, 1
    v_lshl_add_u32 v{vKA}, v{vFA}, 10, v{vKA}
    v_and_b32 v{vFA}, 3, {vL}
    v_lshl_add_u32 v{vKA}, v{vFA}, 1, v{vKA}
    s_lshl_b32 s{sKVst}, s{sSc}, 7
    s_lshl_b32 s{sEfl}, s{sSa}, 3""".split("\n")
    kvaddr = [f"s_bitcmp1_b32 s{sCB}, 0", "s_cbranch_scc1 P1_KVAV"] + [l.strip() for l in kvK] + ["P1_KVAD:",
              f"s_add_u32 s{sKVst}, s{sKVst}, s{sEfl}", f"s_add_u32 s{sKVst}, s{sKVst}, {KR}", f"v_add_u32 v{vKA}, s{sKVst}, v{vKA}"]
    kvwr = [f"s_bitcmp1_b32 s{sCB}, 0", "s_cbranch_scc1 P1_KVWV", f"ds_write_b64 v{vKA}, v[{u}:{u+1}]", "P1_KVWD:"]
    ool = Asm()
    ool("P1_KVAV:"); ool.ext(kvV); ool("s_branch P1_KVAD")
    ool(f"""P1_KVWV:
    ds_write_b16 v{vKA}, v{u}
    ds_write_b16_d16_hi v{vKA}, v{u} offset:16
    ds_write_b16 v{vKA}, v{u+1} offset:32
    ds_write_b16_d16_hi v{vKA}, v{u+1} offset:48
    s_branch P1_KVWD""")
    vP = vSXo
    KT = Reg("a", 128, 4); PT = Reg("a", 132, 4)
    def hookS8(ph, f, BG):
        if ph == 0:
            put(f, 11, dbgsrd)
            put(f, 21, [f"s_lshl_b32 s{sT2}, s{sW}, 10", f"s_add_u32 s{sT2}, s{sT2}, {PSC}"]); put(f, 23, f"v_add_u32 v{vP}, s{sT2}, {vL16}")
            put(f, 27, kvaddr)
        if ph == 1:
            put(f, 3, f"ds_write_b128 v{vP}, {sacc}")
            put(f, 5, VM(nload, "N"))
            put(f, 11, f"v_xor_b32 v{vP}, 0x800, v{vP}")
            for r in range(4): put(f, 13 + 2*r, f"v_accvgpr_read_b32 v{u+r}, {sacc[r]}")
    def hookS9(ph, f, BG):
        if ph == 0:
            put(f, 1, f"ds_read_b128 {PT}, v{vP}")
            put(f, 11, "s_waitcnt lgkmcnt(5)")
            for r in range(4): put(f, 11 + 2*r, f"v_accvgpr_read_b32 v{vFA}, {PT[r]}"); put(f, 12 + 2*r, f"v_add_f32 v{u+r}, v{u+r}, v{vFA}")
            put(f, 21, f"v_cvt_pk_bf16_f32 v{u}, v{u}, v{u+1}"); put(f, 23, f"v_cvt_pk_bf16_f32 v{u+1}, v{u+2}, v{u+3}")
            put(f, 27, kvwr)
            put(f, 29, f"v_lshrrev_b32 v{vP}, 3, {vL}"); put(f, 31, f"v_and_b32 v{vFA}, 7, {vL}")
            put(f, 35, f"v_lshlrev_b32 v{vFA}, 4, v{vFA}"); put(f, 37, f"v_lshl_add_u32 v{vP}, v{vP}, 8, v{vFA}")
            put(f, 41, [f"s_bfe_u32 s{sT2}, s{sCB}, 0x10001", f"s_lshl_b32 s{sT2}, s{sT2}, 7"])
            put(f, 43, f"v_add_u32 v{vP}, s{sT2}, v{vP}")
            put(f, 44, f"v_add_u32 v{vKA}, {KR}, v{vP}")
        if ph == 1:
            put(f, 3, f"ds_read_b128 {KT}, v{vKA}")
            put(f, 5, [f"s_lshl_b32 s{sKVst}, s{sRB}, 3", f"s_lshr_b32 s{sT2}, s{sCB}, 2", f"s_add_u32 s{sKVst}, s{sKVst}, s{sT2}"])
            put(f, 7, [f"s_lshl_b32 s{sKVst}, s{sKVst}, 1", f"s_and_b32 s{sT2}, s{sCB}, 1", f"s_add_u32 s{sKVst}, s{sKVst}, s{sT2}"])
            put(f, 11, [f"s_lshl_b32 s{sKVst}, s{sKVst}, 11", f"s_add_u32 s{sKVst}, s{sKVst}, {KV_OFF}", f"s_lshl_b32 s{sEfl}, s{sRB}, 5"])
            put(f, 13, [f"s_add_u32 s{sEfl}, s{sEfl}, s{sCB}", f"s_lshl_b32 s{sEfl}, s{sEfl}, 2", f"s_add_u32 s{sEfl}, s{sEfl}, {FL_E}"])
            put(f, 15, [f"s_cmp_eq_u32 s{sW}, 0", f"s_cselect_b32 s{sKVst}, s{sKVst}, {HUGE}", f"s_cselect_b32 s{sEfl}, s{sEfl}, {HUGE}"])
            put(f, 19, f"v_mul_u32_u24 v{vFA}, {FL_ES}, {vL}")
            put(f, 21, ["s_waitcnt lgkmcnt(9)", VM(f"buffer_store_dwordx4 {KT}, v{vP}, {srd(S_WS)}, s{sKVst} offen {SC1}", "KS")])
    def hookS10(ph, f, BG):
        if ph == 1:
            put(f, 27, [Need(["KS", "N"]), f"v_readfirstlane_b32 s{sNonce}, v{vN}", f"s_cmp_eq_u32 s{sNonce}, 0", "s_cbranch_scc1 P1_SLOWN", "P1_NOK:",
                       "s_mov_b64 exec, 0xff", VM(f"buffer_store_dword v{vN}, v{vFA}, {srd(S_WS)}, s{sEfl} offen sc1", "EF"), "s_mov_b64 exec, -1", "s_nop 2"])
    sKVo, sM0 = sL + 3, sL + 4
    S_KVD = S_C
    vE = Reg("v", 28, 4)
    epoll = f"buffer_load_dwordx4 {vE}, {vL16}, {srd(S_WS)}, s{sEfl} offen sc1"
    def kvdma0(slotoff):
        L = []
        for e in range(8):
            pre = []
            if e == 0: pre = [f"s_add_u32 m0, s{sM0}, {slotoff}"]
            if e == 4: pre = [f"s_add_u32 m0, m0, 4096", f"s_add_u32 s{sKVo}, s{sKVo}, 4096"]
            L.append((pre, VM(f"buffer_load_dwordx4 {vL16}, {srd(S_KVD)}, s{sKVo} offen offset:{(e&3)*1024} {SC1} lds", "KV")))
        return L
    def hookS14(ph, f, BG):
        if ph == 0:
            put(f, 5, [f"s_bfe_u32 s{sEfl}, s2, 0x30003", f"s_mul_i32 s{sEfl}, s{sEfl}, {FL_ES}", f"s_add_u32 s{sEfl}, s{sEfl}, {FL_E}"])
            put(f, 9, VM(epoll, "N"))
            put(f, 11, [f"s_mov_b32 s{S_KVD}, s{P_WS}", f"s_mov_b32 s{S_KVD+1}, s{P_WS+1}", f"s_mov_b32 s{S_KVD+2}, {KV_OFF + 262144}"])
            put(f, 13, [f"s_lshl_b32 s{sM0}, s{sW}, 13", f"s_add_u32 s{sKVo}, s{sM0}, {KV_OFF}"])
    def echeck():
        return [f"v_xor_b32 {vE[0]}, {vE[0]}, v{vN}", f"v_xor_b32 {vE[1]}, {vE[1]}, v{vN}", f"v_xor_b32 {vE[2]}, {vE[2]}, v{vN}", f"v_xor_b32 {vE[3]}, {vE[3]}, v{vN}",
                f"v_or3_b32 {vE[0]}, {vE[0]}, {vE[1]}, {vE[2]}", f"v_or_b32 {vE[0]}, {vE[0]}, {vE[3]}", f"v_cmp_eq_u32 vcc, 0, {vE[0]}", "s_nop 0", "s_cmp_eq_u64 vcc, -1"]
    def hookS15(ph, f, BG):
        dg = [5, 11, 17, 23, 29, 35, 41, 46]
        if ph == 0: put(f, 1, [Need(["N"])] + echeck() + ["s_cbranch_scc0 P1_SLOWE", "P1_EOK:"])
        if ph in (0, 1):
            for k, (pre, d) in enumerate(kvdma0(32768*ph)):
                if pre: put(f, dg[k] - 1, pre)
                put(f, dg[k], d)
            put(f, 47, f"s_add_u32 s{sKVo}, s{sKVo}, {32768 - 4096}")
    Ls = step(0, cpfm='rep') + step(1, lim=8)
    Ls = resolve_waits(Ls)
    Lp = resolve_waits(step(lim=14, cpfm='rep'))
    S8 = resolve_waits(step(hook=hookS8, cpfm='adv'), Ls); S9 = resolve_waits(step(hook=hookS9), Ls + S8); S10 = resolve_waits(step(hook=hookS10), S8 + S9)
    S14 = resolve_waits(step(dma=False, hook=hookS14, cpfm='advld'), Lp); S15 = resolve_waits(step(dma=False, last=True, hook=hookS15), Lp + S14)
    probs += verify_waits(pro_hist + Ls, len(pro_hist), "pro->Ls")
    probs += verify_waits(S9 + S10 + Lp, len(S9 + S10), "S10->Lp")
    A(".p2align 6\nP1_LS:")
    A.ext(Ls); A("s_cbranch_scc1 P1_LS")
    A.ext(S8); A.ext(S9); A.ext(S10)
    A("s_branch P1_LP"); A.ext(ool.lines)
    A(".p2align 6\nP1_LP:")
    A.ext(Lp); A("s_cbranch_scc1 P1_LP")
    A.ext(S14); A.ext(S15)
    probs += check_hazards(A.lines, "p1") + check_hazards(Ls + Ls, "ls") + check_hazards(Lp + Lp, "lp")
    slow1 = Asm()
    slow1(f"""P1_SLOWN:
    s_mov_b32 s{sT2}, {SPIN_MAX}
    P1_SLOWN_L:
    {nload}
    s_waitcnt vmcnt(0)
    v_readfirstlane_b32 s{sNonce}, v{vN}
    s_cmp_lg_u32 s{sNonce}, 0
    s_cbranch_scc1 P1_NOK
    s_sleep 4
    s_sub_u32 s{sT2}, s{sT2}, 1
    s_cmp_lg_u32 s{sT2}, 0
    s_cbranch_scc1 P1_SLOWN_L
    s_endpgm
    P1_SLOWE:
    s_mov_b32 s{sT0}, {SPIN_MAX}
    P1_SLOWE_L:
    {epoll}
    s_waitcnt vmcnt(0)""")
    slow1.ext(echeck())
    slow1(f"""s_cbranch_scc1 P1_EOK
    s_sleep 4
    s_sub_u32 s{sT0}, s{sT0}, 1
    s_cmp_lg_u32 s{sT0}, 0
    s_cbranch_scc1 P1_SLOWE_L
    s_endpgm""")

    va = Alloc("v", 3, 256)
    vCur = va.get(1); vNxt = va.get(1); vZero = va.get(1); vNon = va.get(1); vQP = va.get(1)
    T = va.get(12, 4)
    S = [va.get(16, 4) for _ in range(2)]
    P = [va.get(8, 4) for _ in range(2)]
    O = [va.get(16, 4) for _ in range(2)]
    Lc = [va.get(4, 4) for _ in range(2)]
    SCL = va.get(8, 4)
    acc3 = [[va.get(4, 4) for j in range(8)] for i in range(4)]
    vW3o = va.get(1); vW3a = [va.get(1) for _ in range(4)]; vPF = va.get(1); vG = va.get(2, 2); vFl = va.get(4, 4)
    NEG = [Reg("v", acc3[0][0].base + 16*k, 16) for k in range(2)]
    aa = Alloc("a", 0, 180)
    RX = [[aa.get(4, 4) for j in range(8)] for s in range(4)]
    Q = [[aa.get(4, 4) for t in range(2)] for ab in range(2)]
    K = [[aa.get(4, 4) for t in range(2)] for b in range(2)]
    V = [[aa.get(4, 4) for t in range(2)] for b in range(2)]
    ONES = aa.get(4, 4)
    RW = [[Reg("a", 220 + 16*s + 4*i, 4) for i in range(4)] for s in range(2)]
    QXB = 98304
    W3B = 98304

    E = Asm()
    E.ext(ts.at("p1end"))
    sO = sL + 10
    sC = sL + 1
    sQf = sL + 9
    tA = [Reg("v", 20, 4), Reg("v", 28, 4)]
    def hmath(pairs, dst):
        L = []
        for Gx, U in pairs:
            for r in range(4): L.append(f"v_max_f32 {Gx[r]}, 0, {Gx[r]}")
        for Gx, U in pairs:
            for r in (0, 2): L.append(f"v_pk_mul_f32 {Gx.sub(r,2)}, {Gx.sub(r,2)}, {U.sub(r,2)}")
        for k, (Gx, U) in enumerate(pairs):
            L.append(f"v_cvt_pk_bf16_f32 {dst[2*k]}, {Gx[0]}, {Gx[1]}"); L.append(f"v_cvt_pk_bf16_f32 {dst[2*k+1]}, {Gx[2]}, {Gx[3]}")
        return L
    gl = Asm()
    gl(f"""s_mov_b32 s{S_A}, s{P_X}
    s_mov_b32 s{S_A+1}, s{P_X+1}
    s_mov_b32 s{S_A+2}, 0x400000
    s_mov_b32 s{S_B}, s{P_GW}
    s_mov_b32 s{S_B+1}, s{P_GW+1}
    s_mov_b32 s{S_B+2}, 2048
    s_lshl_b32 s{sT2}, s{sRB}, 5
    s_add_u32 s{sT2}, s{sT2}, s{sCB}
    s_lshl_b32 s{sT2}, s{sT2}, 2
    s_add_u32 s{sT2}, s{sT2}, s{sW}
    s_lshl_b32 s{sT2}, s{sT2}, 12""")
    for h in range(2): gl(f"buffer_load_dwordx4 {GWa.sub(4*h,4)}, {vL16}, {srd(S_B)}, 0 offen offset:{h*1024}")
    for r in range(2):
        for h in range(2):
            gl(f"buffer_load_dwordx4 {GXa[r].sub(4*h,4)}, {vL16}, {srd(S_A)}, s{sT2} offen offset:{r*2048 + h*1024}")
    E(f"""s_lshr_b32 s{sT0}, s{sW}, 1
    s_and_b32 s{sT1}, s{sW}, 1
    s_lshl_b32 s{sO}, s{sRB}, 4
    s_lshl_b32 s{sT2}, s{sT0}, 3
    s_add_u32 s{sO}, s{sO}, s{sT2}
    s_lshl_b32 s{sO}, s{sO}, 10
    s_lshr_b32 s{sT2}, s{sCB}, 2
    s_mul_i32 s{sO+1}, s{sT2}, 14
    s_and_b32 s{sT3}, s{sCB}, 3
    s_lshl_b32 s{sT3}, s{sT3}, 2
    s_add_u32 s{sO+1}, s{sO+1}, s{sT3}
    s_add_u32 s{sO+1}, s{sO+1}, s{sT1}
    s_cmp_eq_u32 s{sIsB}, 1
    s_cbranch_scc1 P1_EPIB
    s_add_u32 s{sO+1}, s{sO+1}, s{sT1}
    s_mul_i32 s{sO+1}, s{sO+1}, {AFS}
    s_add_u32 s{sO}, s{sO}, s{sO+1}
    s_add_u32 s{sO+2}, s{sO}, {AFS}""")
    E.ext(gl.lines)
    for fb in range(2):
        for j in range(8):
            U1 = acc[5+2*fb][j]
            if U1.f == "a":
                Tt = tA[j % 2]
                for r in range(4): E(f"v_accvgpr_read_b32 {Tt[r]}, {U1[r]}")
                U1 = Tt
            E.ext(hmath([(acc[2*fb][j], acc[4+2*fb][j]), (acc[2*fb+1][j], U1)], acc[4+2*fb][j]))
    E("s_waitcnt vmcnt(0)\ns_branch P1_EPID\nP1_EPIB:")
    E(f"""s_mul_i32 s{sO+1}, s{sO+1}, {AFS}
    s_add_u32 s{sO}, s{sO}, s{sO+1}
    s_mov_b32 s{sO+2}, {HUGE}
    s_lshl_b32 s{sQf}, s{sRB}, 3
    s_add_u32 s{sQf}, s{sQf}, s{sT2}
    s_lshl_b32 s{sQf}, s{sQf}, 2
    s_lshl_b32 s{sT1}, s{sT1}, 1
    s_add_u32 s{sT2}, s{sQf}, s{sT1}
    s_lshl_b32 s{sT2}, s{sT2}, 1
    s_add_u32 s{sT2}, s{sT2}, s{sT0}
    s_lshl_b32 s{sT2}, s{sT2}, 13
    s_add_u32 s{sT0}, s{sT2}, {QF4_OFF}
    s_add_u32 s{sT1}, s{sT0}, 4096
    s_add_u32 s{sT2}, s{sT0}, 16384
    s_add_u32 s{sT3}, s{sT0}, {16384 + 4096}
    s_add_u32 s{sQf}, s{sQf}, s{sW}
    s_lshl_b32 s{sQf}, s{sQf}, 7
    s_add_u32 s{sQf}, s{sQf}, {FL_Q}
    s_mov_b32 s{sC}, {f2u(QSCALE):#x}
    s_mov_b32 s{sC+1}, {f2u(QSCALE):#x}""")
    for hh in range(2):
        for j in range(8):
            F0, F1 = acc[4 + 2*hh][j], acc[5 + 2*hh][j]
            if F1.f == "a":
                Tt = tA[j % 2]
                for r in range(4): E(f"v_accvgpr_read_b32 {Tt[r]}, {F1[r]}")
                F1 = Tt
            for F in (F0, F1):
                for r in (0, 2): E(f"v_pk_mul_f32 {F.sub(r,2)}, {F.sub(r,2)}, s[{sC}:{sC+1}]")
            E(f"v_cvt_pk_bf16_f32 {F0[0]}, {F0[0]}, {F0[1]}\nv_cvt_pk_bf16_f32 {F0[1]}, {F0[2]}, {F0[3]}")
            E(f"v_cvt_pk_bf16_f32 {F0[2]}, {F1[0]}, {F1[1]}\nv_cvt_pk_bf16_f32 {F0[3]}, {F1[2]}, {F1[3]}")
            E(f"buffer_store_dwordx4 {F0}, {vL16}, {srd(S_WS)}, s{sT0 + 2*hh + (j>>2)} offen offset:{(j&3)*1024} {SC1}")
    E.ext(gl.lines)
    for j in range(8):
        E.ext(hmath([(acc[0][j], acc[2][j]), (acc[1][j], acc[3][j])], acc[4][j]))
    E(f"""s_waitcnt vmcnt(6)
    s_mov_b64 exec, 1
    buffer_store_dword v{vN}, v{vZ}, {srd(S_WS)}, s{sQf} offen sc1
    s_mov_b64 exec, -1
    P1_EPID:
    s_add_u32 s{sO+1}, s{sO}, 4096
    s_add_u32 s{sO+3}, s{sO+2}, 4096""")
    E.ext(ts.at("kvdone"))
    hst0 = [VM(f"buffer_store_dwordx4 {acc[4][j]}, {vL16}, {srd(S_WS)}, s{sO + (j>>2)} offen offset:{(j&3)*1024} {SC1}", "H") for j in range(8)]
    hst1a = [VM(f"buffer_store_dwordx4 {acc[6][j]}, {vL16}, {srd(S_WS)}, s{sO + 2 + (j>>2)} offen offset:{(j&3)*1024} {SC1}", "H") for j in range(8)]
    probs += check_hazards(S15[-20:] + E.lines, "p1epi")
    A.ext(E.lines)

    B = Asm()
    sCur, sNext, sFree, sFl = sL, sL + 1, sL + 2, sL + 5
    B(f"""v_mov_b32 {vNon}, s{sNonce}
    v_mov_b32 {vZero}, 0
    v_bfe_u32 {T[0]}, {vL}, 4, 1
    v_and_b32 {T[1]}, 15, {vL}
    v_lshrrev_b32 {T[2]}, 5, {vL}
    v_lshl_add_u32 {T[1]}, {T[2]}, 4, {T[1]}
    v_lshlrev_b32 {T[1]}, 4, {T[1]}
    v_lshl_add_u32 {vQP}, {T[0]}, 10, {T[1]}""")
    S_PF, sPF = S_E, 8
    pfop = [VM(f"buffer_load_dword a252, {vPF}, {srd(S_PF)}, s{sPF} offen", "PF"), f"s_add_u32 s{sPF}, s{sPF}, 0x100000"] if PF else []
    B("s_waitcnt vmcnt(1)")
    W32 = NEG[0]; X32 = NEG[1]; GX = S[0].sub(0, 8); GW = S[0].sub(8, 8)
    R2 = range(2)
    for k in range(8): B(f"v_accvgpr_read_b32 {GW[k]}, {GWa[k]}")
    for k in range(8): B(f"v_lshlrev_b32 {W32[2*k]}, 16, {GW[k]}\nv_and_b32 {W32[2*k+1]}, 0xffff0000, {GW[k]}")
    B(f"v_mov_b32 {T[8]}, 0x3f803f80")
    for r in R2:
        for k in range(8): B(f"v_accvgpr_read_b32 {GX[k]}, {GXa[r][k]}")
        for k in range(8): B(f"v_lshlrev_b32 {X32[2*k]}, 16, {GX[k]}\nv_and_b32 {X32[2*k+1]}, 0xffff0000, {GX[k]}")
        for k in range(8): B(f"v_pk_mul_f32 {X32.sub(2*k,2)}, {X32.sub(2*k,2)}, {W32.sub(2*k,2)}")
        for k in range(8): B(f"v_cvt_pk_bf16_f32 {X32[k]}, {X32[2*k]}, {X32[2*k+1]}")
        B(f"v_mov_b32 {T[4+r]}, 0")
        for k in range(8): B(f"v_dot2_f32_bf16 {T[4+r]}, {X32[k]}, {T[8]}, {T[4+r]}")
    B("s_nop 2")
    for sh in (8, 4, 2, 1):
        for r in R2: B(f"v_add_f32_dpp {T[4+r]}, {T[4+r]}, {T[4+r]} row_ror:{sh} row_mask:0xf bank_mask:0xf")
        B("s_nop 0")
    for sw in ("16", "32"):
        for r in R2: B(f"v_mov_b32 {T[8+r]}, {T[4+r]}")
        B("s_nop 0")
        for r in R2: B(f"v_permlane{sw}_swap_b32 {T[4+r]}, {T[8+r]}")
        for r in R2: B(f"v_add_f32 {T[4+r]}, {T[4+r]}, {T[8+r]}")
    for r in R2: B(f"v_cvt_pk_bf16_f32 {T[4+r]}, {T[4+r]}, {T[4+r]}")
    for r in R2: B(f"v_and_b32 {T[4+r]}, 0xffff0000, {T[4+r]}")
    for r in R2: B(f"v_mul_f32 {T[4+r]}, {f2u(-LOG2E):#x}, {T[4+r]}")
    for r in R2: B(f"v_exp_f32 {T[4+r]}, {T[4+r]}")
    B("s_nop 0")
    for r in R2: B(f"v_add_f32 {T[4+r]}, 1.0, {T[4+r]}")
    for r in R2: B(f"v_rcp_f32 {T[4+r]}, {T[4+r]}")
    B("s_nop 0")
    for r in R2: B(f"v_cvt_pk_bf16_f32 {T[4+r]}, {T[4+r]}, {T[4+r]}")
    for r in R2: B(f"v_and_b32 {T[4+r]}, 0xffff0000, {T[4+r]}")
    B(f"""s_lshl_b32 s{sT2}, s{sRB}, 5
    s_add_u32 s{sT2}, s{sT2}, s{sCB}
    s_lshl_b32 s{sT2}, s{sT2}, 2
    s_add_u32 s{sT2}, s{sT2}, s{sW}
    s_lshl_b32 s{sT2}, s{sT2}, 3
    s_add_u32 s{sT2}, s{sT2}, {G_OFF}
    s_mov_b64 exec, 1
    buffer_store_dwordx2 {T.sub(4,2)}, {vZero}, {srd(S_WS)}, s{sT2} offen sc1
    s_mov_b64 exec, -1""")
    for ab in range(2):
        for r in range(16): B(f"v_mov_b32 {O[ab][r]}, 0")
        for r in range(4): B(f"v_mov_b32 {Lc[ab][r]}, 0")
    for r in range(8): B(f"v_mov_b32 {P[1][r]}, 0")
    for t in range(2):
        for r in range(4): B(f"v_accvgpr_write_b32 {V[1][t][r]}, 0")
    vIdx = T[10]
    B(f"""v_bfe_u32 {T[4]}, {vL}, 2, 1
    v_cmp_eq_u32 vcc, 0, {T[4]}
    v_mov_b32 {T[5]}, 0x3f803f80
    v_mov_b32 {vCur}, {vL16}
    v_cndmask_b32 {T[4]}, 0, {T[5]}, vcc
    v_cndmask_b32 {T[5]}, {T[5]}, 0, vcc
    v_add_u32 {vNxt}, 32768, {vL16}
    v_and_b32 {vIdx}, 1, {vL}
    v_mul_u32_u24 {vIdx}, 0xaaaa, {vIdx}
    v_add_u32 {vIdx}, 0x4444, {vIdx}""".replace(f"v_cndmask_b32 {T[5]}, {T[5]}, 0, vcc", f"v_xor_b32 {T[5]}, {T[5]}, {T[4]}"))
    for r in range(4): B(f"v_accvgpr_write_b32 {ONES[r]}, {T[4 + (r >> 1)]}")
    def lsum(o): return f"v_smfmac_f32_16x16x64_bf16 {Lc[o]}, {ONES}, {P[o]}, {vIdx}"
    B(f"""s_mov_b32 s{sCur}, 0
    s_mov_b32 s{sNext}, 32768
    s_mov_b32 s{sFree}, 65536
    s_add_u32 s{sL+14}, s{sM0}, 65536
    s_lshl_b32 s{sFl}, s{sRB}, 2
    s_add_u32 s{sFl}, s{sFl}, s{sW}
    s_lshl_b32 s{sFl}, s{sFl}, 5
    s_add_u32 s{sFl}, s{sFl}, s{sCB}
    s_lshl_b32 s{sFl}, s{sFl}, 2
    s_add_u32 s{sFl}, s{sFl}, {FL_H}
    s_lshl_b32 s{sT1}, s{sRB}, 3
    s_lshr_b32 s{sT2}, s{sCB}, 2
    s_add_u32 s{sT1}, s{sT1}, s{sT2}
    s_lshl_b32 s{sT1}, s{sT1}, 2
    s_and_b32 s{sT2}, s{sW}, 2
    s_add_u32 s{sT1}, s{sT1}, s{sT2}
    s_bfe_u32 s{sT2}, s{sCB}, 0x10001
    s_add_u32 s{sT1}, s{sT1}, s{sT2}
    s_lshl_b32 s{sT1}, s{sT1}, 7
    s_add_u32 s{sT1}, s{sT1}, {FL_Q}
    s_lshl_b32 s{sQf}, s{sRB}, 5
    s_add_u32 s{sQf}, s{sQf}, s{sCB}
    s_lshl_b32 s{sQf}, s{sQf}, 2
    s_add_u32 s{sQf}, s{sQf}, s{sW}
    s_lshl_b32 s{sQf}, s{sQf}, 12
    s_add_u32 s{sQf}, s{sQf}, {QF4_OFF}""")
    def check(regs):
        if len(regs) == 4:
            return [f"v_xor_b32 {r}, {r}, {vNon}" for r in regs] + [f"v_or3_b32 {regs[0]}, {regs[0]}, {regs[1]}, {regs[2]}", f"v_or_b32 {regs[0]}, {regs[0]}, {regs[3]}",
                    f"v_cmp_eq_u32 vcc, 0, {regs[0]}", "s_nop 0", "s_cmp_eq_u64 vcc, -1"]
        L = [f"v_cmp_eq_u32 vcc, s{sNonce}, {regs[0]}"]
        if len(regs) > 1: L += [f"v_cmp_eq_u32 s[{sT2}:{sT3}], s{sNonce}, {regs[1]}", "s_nop 0", f"s_and_b64 vcc, vcc, s[{sT2}:{sT3}]"]
        else: L += ["s_nop 0"]
        return L + ["s_cmp_eq_u64 vcc, -1"]
    def spin(label, load, regs, back=None):
        L = [f"s_mov_b32 s{sT0}, {SPIN_MAX}", f"{label}_L:", load, "s_waitcnt vmcnt(0)"] + check(regs)
        L += [f"s_cbranch_scc1 {back or label + '_OK'}", f"s_sleep {4 if back else 1}", f"s_sub_u32 s{sT0}, s{sT0}, 1",
              f"s_cmp_lg_u32 s{sT0}, 0", f"s_cbranch_scc1 {label}_L", "s_endpgm"]
        if not back: L.append(f"{label}_OK:")
        return L
    B.ext(ts.at("poll0"))
    B.ext(spin("P2_POLL", f"buffer_load_dword {T[8]}, {vZero}, {srd(S_WS)}, s{sT1} offen sc1", [T[8]]))
    B.ext(ts.at("poll1"))
    for ab in range(2):
        for t in range(2): B(f"buffer_load_dwordx4 {Q[ab][t]}, {vQP}, {srd(S_WS)}, s{sQf} offen offset:{ab*2048 + t*512} {SC1}")
    B("s_barrier")
    def kvdma(slot, tag):
        L = []
        for e in range(8):
            pre = []
            if e == 0: pre = [f"s_add_u32 m0, s{slot}, s{sM0}"]
            if e == 4: pre = [f"s_add_u32 s{sT0}, s{slot}, s{sM0}", f"s_add_u32 m0, s{sT0}, 4096", f"s_add_u32 s{sKVo}, s{sKVo}, 4096"]
            L.append((pre, VM(f"buffer_load_dwordx4 {vL16}, {srd(S_KVD)}, s{sKVo} offen offset:{(e&3)*1024} {SC1} lds", tag)))
        return L
    post_dma = f"s_add_u32 s{sKVo}, s{sKVo}, {32768 - 4096}"
    B(f"""ds_read_b128 {K[0][0]}, {vCur}
    ds_read_b128 {K[0][1]}, {vCur} offset:1024
    ds_read_b128 {V[0][0]}, {vCur} offset:2048
    ds_read_b128 {V[0][1]}, {vCur} offset:3072""")
    hist = list(S15) + list(B.lines)
    B(f"""s_waitcnt vmcnt(0) lgkmcnt(0)
    v_mfma_f32_32x32x16_bf16 {S[0]}, {K[0][0]}, {Q[0][0]}, 0
    v_mfma_f32_32x32x16_bf16 {S[0]}, {K[0][1]}, {Q[0][1]}, {S[0]}""")
    B.ext(ts.at("att"))
    B("s_nop 7\ns_nop 3")
    probs += check_hazards(B.lines, "p2pro")
    A.ext(B.lines)

    NS = 4
    S_AF, S_W3, S_OUT = S_A, S_B, S_D
    sMT, sNT = sL + 6, sL + 7
    sAo = sL + 8
    sSo3 = sL + 9
    sM3 = sL + 13
    sWo, sWoN = 30, 15
    setup3 = Asm()
    MAP48 = opt.get("map48", 0)
    if MAP48:
        setup3(f"""s_and_b32 s{sT0}, s{sRB}, 4
        s_add_u32 s{sMT}, s{sRB}, s{sT0}
        s_bfe_u32 s{sT0}, s{sCB}, 0x10003
        s_lshl2_add_u32 s{sMT}, s{sT0}, s{sMT}
        s_lshr_b32 s{sT0}, s{sCB}, 4
        s_and_b32 s{sT1}, s{sCB}, 7
        s_lshl3_add_u32 s{sNT}, s{sT0}, s{sT1}""")
    else:
        setup3(f"""s_and_b32 s{sT0}, s{sCB}, 1
        s_lshl_b32 s{sMT}, s{sRB}, 1
        s_add_u32 s{sMT}, s{sMT}, s{sT0}
        s_lshr_b32 s{sT0}, s{sCB}, 3
        s_lshl_b32 s{sT0}, s{sT0}, 2
        s_bfe_u32 s{sT1}, s{sCB}, 0x20001
        s_add_u32 s{sNT}, s{sT0}, s{sT1}""")
    setup3(f"""s_lshl_b32 s{sT0}, s{sNT}, 7
    s_add_u32 s{S_W3}, s{P_WD}, s{sT0}
    s_addc_u32 s{S_W3+1}, s{P_WD+1}, 0
    s_sub_u32 s{S_W3+2}, {3584*2048}, s{sT0}
    s_add_u32 s{sWo}, s{P_WO}, s{sT0}
    s_addc_u32 s{sWo+1}, s{P_WO+1}, 0
    s_sub_u32 s{sWoN}, {1024*2048}, s{sT0}
    s_mov_b32 s{S_AF}, s{P_WS}
    s_mov_b32 s{S_AF+1}, s{P_WS+1}
    s_mov_b32 s{S_AF+2}, {AF_SIZE3}
    s_mov_b32 s{S_OUT}, s{P_OUT}
    s_mov_b32 s{S_OUT+1}, s{P_OUT+1}
    s_mov_b32 s{S_OUT+2}, 0x400000
    s_mul_i32 s{sAo}, s{sW}, {AFS}
    s_lshl_b32 s{sT0}, s{sMT}, 13
    s_add_u32 s{sAo}, s{sAo}, s{sT0}
    s_add_u32 s{sAo+1}, s{sAo}, 4096
    s_lshl_b32 s{sM3}, s{sW}, 14
    s_add_u32 s{sM3}, s{sM3}, {W3B}""")
    for e in range(1, 4): setup3(f"s_mov_b32 s{sSo3+e}, {e*16384 - e*1024}")
    setup3v = Asm()
    setup3v(f"""v_lshrrev_b32 {T[0]}, 3, {vL}
    v_lshrrev_b32 {T[1]}, 4, {vL}
    v_lshlrev_b32 {T[2]}, 1, {T[1]}
    v_and_b32 {T[3]}, 7, {vL}
    v_xor_b32 {T[2]}, {T[2]}, {T[3]}
    v_lshlrev_b32 {T[2]}, 4, {T[2]}
    v_lshl_add_u32 {vW3o}, {T[0]}, 11, {T[2]}
    s_lshl_b32 s{sT0}, s{sW}, 16
    v_add_u32 {vW3o}, s{sT0}, {vW3o}
    v_add_u32 {T[11]}, {16*65536}, {vW3o}
    v_lshrrev_b32 {T[0]}, 2, {vL}
    v_bfe_u32 {T[1]}, {vL}, 3, 2
    v_and_b32 {T[2]}, 3, {vL}
    v_lshlrev_b32 {T[2]}, 3, {T[2]}
    v_lshl_add_u32 {T[2]}, {T[0]}, 7, {T[2]}
    v_add_u32 {T[2]}, s{sM3}, {T[2]}""")
    for i in range(4): setup3v(f"v_xor_b32 {T[3]}, {i}, {T[1]}\nv_lshl_add_u32 {vW3a[i]}, {T[3]}, 5, {T[2]}")
    setup3v(f"""s_lshr_b32 s{sT0}, s{sMT}, 1
    s_lshl_b32 s{sT0}, s{sT0}, 9
    s_sub_u32 s{sT0}, s{sT0}, 512
    s_lshl_b32 s{sT1}, s{sRB}, 9
    v_mov_b32 {T[4]}, s{sT0}
    v_mov_b32 {T[5]}, s{sT1}
    v_cmp_gt_u32 vcc, 32, {vL}
    v_and_b32 {T[6]}, 31, {vL}
    v_lshlrev_b32 {T[6]}, 2, {T[6]}
    v_cndmask_b32 {T[4]}, {T[4]}, {T[5]}, vcc
    v_add_u32 {T[4]}, {T[4]}, {vL16}
    v_lshlrev_b32 {T[5]}, 2, {vL}
    v_and_b32 {T[7]}, 15, {vL}
    v_lshlrev_b32 {T[7]}, 2, {T[7]}""")
    zero3 = [f"v_mov_b32 {acc3[i][j][r]}, 0" for i in range(4) for j in range(8) for r in range(4)]
    def w3dma(slot, e):
        m0 = f"s_add_u32 m0, s{sM3}, {slot*4096}"
        return m0, VM(f"buffer_load_dwordx4 {vW3o}, {srd(S_W3)}, {'0' if e == 0 else 's%d' % (sSo3+e)} offen offset:{e*1024} {opt.get('w3nt', '')} lds", ("W", slot))
    def xload(slot, j):
        return VM(f"buffer_load_dwordx4 {RX[slot][j]}, {vL16}, {srd(S_AF)}, s{sAo + (j>>2)} offen offset:{(j&3)*1024} {opt.get('xflag', SC1)}", ("X", slot, j >> 2))
    adv3 = [f"v_add_u32 {vW3o}, {4*65536}, {vW3o}", f"s_add_u32 s{sAo}, s{sAo}, {4*AFS}", f"s_add_u32 s{sAo+1}, s{sAo+1}, {4*AFS}"]
    def wread(slot, s):
        return [f"ds_read_b64_tr_b16 {RW[s][i].sub(2*hf,2)}, {vW3a[i]} offset:{slot*4096 + hf*2048}" for i in range(4) for hf in range(2)]
    def gm(s, j, i, first=False): return f"v_mfma_f32_16x16x32_bf16 {acc3[i][j]}, {RW[s&1][i]}, {RX[s][j]}, {0 if first else acc3[i][j]}"

    def att_parts(ab, kq, vp):
        o = ab ^ 1
        M = [f"v_mfma_f32_32x32x16_bf16 {S[o]}, {K[kq][0]}, {Q[o][0]}, 0",
             f"v_mfma_f32_32x32x16_bf16 {S[o]}, {K[kq][1]}, {Q[o][1]}, {S[o]}",
             f"v_mfma_f32_32x32x16_bf16 {O[o]}, {V[vp][0]}, {P[o].sub(0,4)}, {O[o]}",
             lsum(o),
             f"v_mfma_f32_32x32x16_bf16 {O[o]}, {V[vp][1]}, {P[o].sub(4,4)}, {O[o]}",
             None]
        ex = [f"v_exp_f32 {S[ab][r]}, {S[ab][r]}" for r in range(16)]
        cv = [f"v_cvt_pk_bf16_f32 {P[ab][r]}, {S[ab][2*r]}, {S[ab][2*r+1]}" for r in range(8)]
        return M, ex, cv
    def phase_plain(ab, kq, vp, extra):
        M, ex, cv = att_parts(ab, kq, vp)
        vl = []
        for r in range(16):
            vl.append(ex[r])
            if r >= 3 and r % 2 == 1: vl.append(cv[(r - 3)//2])
        vl.append(cv[7])
        mpos = opt.get("mpos", [0, 4, 9, 14, 17, 21])
        out = []; mi = 0
        for i, v in enumerate(vl):
            while mi < 6 and mpos[mi] == i:
                if M[mi]: out.append(M[mi])
                out.extend(extra.get(mi, [])); mi += 1
            out.append(v)
        return out
    def phase_merged(ab, kq, vp, G8, extra, tail):
        M, ex, cv = att_parts(ab, kq, vp)
        order = [M[0], G8[0], M[1], G8[1], G8[2], M[2], G8[3], M[3], G8[4], M[4], G8[5], M[5], G8[6], G8[7]]
        e, c = ex, cv
        fill = [[e[0], e[1], e[2]], [e[3]], [e[4], e[5], e[6]], [c[0], c[1]], [e[7]], [e[8], e[9], e[10]], [c[2], c[3]], [c[4]],
                [e[11]], [e[12], e[13], e[14]], [e[15]], [], [c[5], c[6]], [c[7]]]
        if opt.get("lpk"):
            pk = [f"v_pk_add_f32 {Lc[ab].sub(2,2)}, {Lc[ab].sub(2,2)}, {S[ab].sub(2*r,2)}" for r in range(8)]
            order[7] = pk[0]; order[11] = pk[1]
            fill[3] = fill[3] + [pk[2]]; fill[6] = fill[6] + [pk[3]]; fill[8] = fill[8] + [pk[4]]; fill[12] = fill[12] + [pk[5]]; fill[13] = [pk[6], pk[7]]
        if opt.get("lnone"): order[7] = "s_nop 0"; order[11] = "s_nop 0"
        out = []
        for k in range(14):
            if order[k]: out.append(order[k])
            out.extend(extra.get(k, [])); out.extend(fill[k]); out.extend(tail.get(k, []))
        return out
    sX3 = 16
    NP = opt.get("np", 4)
    PFSW = 6
    sKM = sL + 14
    def chunk(kind, hook=None, first=False, pfok=True, wpre=False):
        out = []
        mer = kind == "merged"
        for pi in range(16):
            tau, ab = pi >> 1, pi & 1
            kp = tau & 1
            ex = {}; tl = {}; pre = []
            if ab == 0:
                src = (vCur, (tau+1)*4096) if tau < 7 else (vNxt, 0)
                ld = [f"ds_read_b128 {K[kp^1][t]}, {src[0]} offset:{src[1] + t*1024}" for t in range(2)]
                if tau == 7: put(ex, 0, [Need(["KV"], "lgkmcnt(0)"), "s_barrier"])
            else:
                src = (vCur, (tau+1)*4096 + 2048) if tau < 7 else (vNxt, 2048)
                ld = [f"ds_read_b128 {V[kp^1][t]}, {src[0]} offset:{src[1] + t*1024}" for t in range(2)]
                pre = ["s_waitcnt lgkmcnt(0)"]
            kvd = VM(f"buffer_load_dwordx4 {vL16}, {srd(S_KVD)}, s{sKVo} offen offset:{(pi&3)*1024} {SC1} lds", "KV")
            if wpre:
                kvd = VM(f"buffer_load_dwordx4 {T[11]}, {srd(S_KVD)}, {'0' if pi & 3 == 0 else 's%d' % (sSo3 + (pi & 3))} offen offset:{(pi&3)*1024} lds", "PW")
            rotate = [f"s_mov_b32 s{sT0}, s{sCur}", f"s_mov_b32 s{sCur}, s{sNext}", f"s_mov_b32 s{sNext}, s{sFree}", f"s_mov_b32 s{sFree}, s{sT0}",
                      f"s_add_u32 s{sKM}, s{sT0}, s{sM0}", f"s_add_u32 s{sIt}, s{sIt}, 1"]
            upd = [f"v_add_u32 {vCur}, s{sCur}, {vL16}", f"v_add_u32 {vNxt}, s{sNext}, {vL16}"]
            if not mer:
                put(ex, 1, ld[0]); put(ex, 2, ld[1])
                if pi < 8:
                    lateput = [(4, f"s_mov_b32 m0, s{sKM}"), (5, kvd)]
                    if pi == 3: lateput += [(5, f"s_add_u32 s{sKVo}, s{sKVo}, 4096"), (5, f"s_add_u32 s{sKM}, s{sKM}, 4096")]
                    for g_, x_ in lateput: put(ex, g_, x_)
                    if pi == 7: put(ex, 5, post_dma)
                if pi == 15:
                    for k in range(3): put(ex, 3 + k, rotate[2*k:2*k+2])
            else:
                s, q = pi >> 2, pi & 3
                G8 = [gm(s, 2*q + jj, i, first and s == 0) for jj in range(2) for i in range(4)]
                if q == 0: pre = [Need([("W", (s+1) % NS), ("X", s, 1)], "lgkmcnt(0)")]
                elif ab == 1 and not trace: pre = ["s_waitcnt lgkmcnt(2)"]
                m0, d = w3dma(s, q)
                rd = wread((s+1) % NS, (s+1) & 1)
                ms = opt.get("ms", 3)
                if ms == 1:
                    put(tl, 1, ld[0]); put(tl, 4, ld[1])
                    if q < 3: put(tl, 7, rd[2*q]); put(ex, 13, rd[2*q+1])
                    else: put(tl, 3, rd[2*q]); put(tl, 7, rd[2*q+1])
                    put(ex, 8, xload(s, 2*q)); put(ex, 13, xload(s, 2*q+1))
                    put(ex, 11, m0); put(ex, 12, d)
                    kvs = (9, 10, tl)
                elif ms == 0:
                    put(ex, 2, ld[0]); put(ex, 5, ld[1]); put(ex, 3, rd[2*q]); put(ex, 10, rd[2*q+1])
                    put(ex, 8, xload(s, 2*q)); put(ex, 13, xload(s, 2*q+1)); put(ex, 0, m0); put(ex, 1, d)
                    kvs = (7, 9, ex)
                    if ab == 1 and q: pre = ["s_waitcnt lgkmcnt(1)" if not trace else "s_waitcnt lgkmcnt(0)"]
                elif ms == 2:
                    put(ex, 1, ld[0]); put(ex, 4, ld[1])
                    if q < 3: put(ex, 10, rd[2*q]); put(ex, 12, rd[2*q+1])
                    else: put(ex, 6, rd[2*q]); put(ex, 7, rd[2*q+1])
                    put(ex, 2, m0); put(ex, 3, d); put(ex, 8, xload(s, 2*q)); put(ex, 13, xload(s, 2*q+1))
                    kvs = (4, 5, ex)
                elif ms == 3:
                    put(ex, 0, ld[0]); put(ex, 2, ld[1])
                    if q < 3: put(ex, 9, rd[2*q]); put(ex, 12, rd[2*q+1])
                    else: put(ex, 5, rd[2*q]); put(ex, 9, rd[2*q+1])
                    put(ex, 3, m0); put(ex, 4, d); put(ex, 8, xload(s, 2*q)); put(ex, 13, xload(s, 2*q+1))
                    kvs = (10, 11, ex)
                if q == 3: put(ex, 13, adv3[0])
                if pi < 8: put(ex, kvs[0], f"s_mov_b32 m0, s{sKM}"); put(kvs[2], kvs[1], kvd)
                if pi in (4,): put(ex, 1, f"s_add_u32 s{sKVo}, s{sKVo}, 4096"); put(ex, 2, f"s_add_u32 s{sKM}, s{sKM}, 4096")
                if pi == 8: put(ex, 1, post_dma)
                if wpre and pi in (4, 8): put(ex, 0, f"v_add_u32 {T[11]}, {4*65536}, {T[11]}")
                if q == 0 and s > 0: put(ex, 3, adv3[1]); put(ex, 4, adv3[2])
                if pi == 15:
                    for k in range(6): put(ex, 2 + k, rotate[k])
                if pi == 9 and PF:
                    put(ex, 11, pfop[0])
                    put(ex, 6, [f"s_cmp_eq_u32 s{sIt}, {PFSW}", f"s_cselect_b32 s{sPF}, 0, s{sPF}", f"s_cselect_b32 s{S_PF}, s{P_WO}, s{S_PF}",
                                f"s_cselect_b32 s{S_PF+1}, s{P_WO+1}, s{S_PF+1}", f"s_cselect_b32 s{S_PF+2}, 0x200000, s{S_PF+2}"])
                if pi == 10 and PF: put(ex, 1, pfop[1])
                if pi == 12: put(ex, 11, cp(False))
            if pi % 8 == 6: put(ex, 5, tr_issue())
            if pi % 8 == 7: pre = pre + tr_commit()
            if hook: hook(pi, ex, pre)
            if mer: out += pre + phase_merged(ab, kp ^ ab, kp ^ 1 ^ ab, G8, ex, tl)
            else: out += pre + phase_plain(ab, kp ^ ab, kp ^ 1 ^ ab, ex)
        if mer: out += adv3[1:]
        out += upd
        return out

    dflt = {3: dict(hs=[1, 1], gs=23, hf=26, hp=36, hc=39, pf=[25, 28, 41]), 4: dict(hs=[2, 1], gs=32, hf=44, hp=50, hc=53, pf=[34, 38, 44, 56])}[NP]
    dflt.update(opt.get("sched", {}))
    HSN, HSD = dflt["hs"]; GS, HF, HPg, HC, PFP = dflt["gs"], dflt["hf"], dflt["hp"], dflt["hc"], dflt["pf"]
    assert len(PFP) == NP
    hst = hst0 + hst1a
    hph = [dflt.get("hs0", 0) + n*HSN//HSD for n in range(16)]
    assert hph[-1] < GS and (GS & 15) >= 0
    hpoll = f"buffer_load_dwordx4 {vFl}, {T[4]}, {srd(S_WS)}, s{sT1} offen sc1"
    LASTP = 16*NP - 1
    wph = [GS + 1 + k // 2 for k in range(16)]
    NXP = opt.get("nxp", 24)
    xph = [HC + 1 + (k * (LASTP - HC)) // NXP for k in range(NXP)] + [-1] * (32 - NXP)
    gloads = [VM(f"buffer_load_dword {vG[ab]}, {T[6]}, {srd(S_WS)}, s{sT2} offen offset:{ab*128} sc1", "G") for ab in range(2)]
    gloads += [VM(f"buffer_load_dword {SCL[j]}, {T[7]}, {srd(S_WS)}, s{sT3} offen offset:{j*64} sc1", "G") for j in range(8)]
    def hookM0(pi, ex, pre):
        n = NXP + pi
        if n < 32:
            s_, j_ = divmod(n, 8)
            put(ex, 6, VM(f"buffer_load_dwordx4 {RX[s_][j_]}, {vL16}, {srd(S_AF)}, s{sX3 + (j_>>2)} offen offset:{(j_&3)*1024} {SC1}", ("X", s_, j_ >> 2)))
        if pi >= 11: put(ex, 6, gloads[2*(pi - 11):2*(pi - 10)])
    def mkhook(base):
        def hook(pi, ex, pre):
            gp = base + pi
            k = 0
            for n in range(16):
                if hph[n] == gp: put(ex, [3, 0][k], hst[n]); k += 1
            if gp == GS:
                put(ex, 0, setup3.lines[:14]); put(ex, 1, setup3.lines[14:]); put(ex, 3, setup3v.lines)
                if PF:
                    put(ex, 3, [f"s_lshl_b32 s{sT1}, s2, 2", f"s_add_u32 s{sT1}, s{sT1}, s{sW}", f"s_lshl_b32 s{sT1}, s{sT1}, 10",
                        f"v_lshrrev_b32 {vPF}, 3, {vL}", f"v_lshlrev_b32 {vPF}, 7, {vPF}", f"v_add_u32 {vPF}, s{sT1}, {vPF}",
                        f"s_mov_b32 s{S_PF}, s{P_WD}", f"s_mov_b32 s{S_PF+1}, s{P_WD+1}", f"s_mov_b32 s{S_PF+2}, {3584*2048}", f"s_mov_b32 s{sPF}, 0x100000"])
            if gp in PFP and PF: put(ex, 2, pfop)
            if gp in (9, 16*NP - 22): put(ex, 2, cp())
            k = 0
            for n in range(16):
                if wph[n] == gp:
                    s_, e_ = divmod(n, 4)
                    m0, d = w3dma(s_, e_)
                    if k == 0: put(ex, 0, m0)
                    put(ex, 2*k + 1, [d] + ([adv3[0]] if e_ == 3 else [])); k += 1
            if gp == HF:
                put(ex, 2, [Need(["H"]), "s_mov_b64 exec, 1", VM(f"buffer_store_dword {vNon}, {vZero}, {srd(S_WS)}, s{sFl} offen sc1", "HF"), "s_mov_b64 exec, -1", "s_nop 2"])
            if gp == HPg: put(ex, 3, [f"s_mov_b32 s{sT1}, {FL_H}", VM(hpoll, "HP")])
            if gp == HC:
                put(ex, 2, [Need(["HP"])] + check([vFl[k] for k in range(4)]) + ["s_cbranch_scc0 P3_SLOWH", "P3_HOK:"])
                put(ex, 3, [f"s_lshl_b32 s{sT2}, s{sRB}, 10", f"s_lshl_b32 s{sT3}, s{sW}, 8", f"s_add_u32 s{sT2}, s{sT2}, s{sT3}", f"s_add_u32 s{sT2}, s{sT2}, {G_OFF}",
                            f"s_lshl_b32 s{sT3}, s{sMT}, 9", f"s_add_u32 s{sT3}, s{sT3}, {G_OFF}"])
            k = 0
            for n in range(32):
                if xph[n] == gp:
                    s_, j_ = divmod(n, 8)
                    put(ex, [0, 2, 3, 4][k], [xload(s_, j_)] + (adv3[1:] if j_ == 7 else [])); k += 1
            if gp == LASTP:
                put(ex, 5, [Need([("W", 0)])] + wread(0, 0))
                if NXP == 24: put(ex, 5, [f"s_mov_b32 s{sX3}, s{sAo}", f"s_mov_b32 s{sX3+1}, s{sAo+1}"] + adv3[1:])
        return hook
    def retag(ch, cur, need):
        out = []
        for l in ch:
            if isinstance(l, VM) and l.tag == "KV": out.append(VM(l, cur))
            elif isinstance(l, Need) and "KV" in l.tags: out.append(Need([need], l.extra))
            else: out.append(l)
        return out
    hist = [VM(l, "KV-1") if isinstance(l, VM) and l.tag == "KV" else l for l in hist]
    CP = []; hh_ = list(hist)
    for c in range(NP):
        ch = resolve_waits(retag(chunk("plain", mkhook(16*c)), f"KV{c}", f"KV{c-1}"), hh_)
        CP.append(ch); hh_ += ch
    mA = retag(chunk("merged"), "KVa", "KVb"); mB = retag(chunk("merged"), "KVb", "KVa")
    mres = resolve_waits(mA, mB)
    M = mres
    M0 = resolve_waits(retag(chunk("merged", hookM0, first=True), "KVb", f"KV{NP-1}"), hh_)
    probs += verify_waits(hh_ + M0 + M, len(hh_ + M0), "M0->M")
    WPRE = opt.get("wpre", 1)
    if WPRE:
        MW = resolve_waits(retag(chunk("merged", wpre=True), "-", "KVa"), M)
        probs += verify_waits(M + MW + [l for l in MW if not (isinstance(l, Need) and "KVa" in l.tags)], len(M + MW), "MW->MW")
    mab = opt.get("mabl", "")
    def abl(L):
        out = []
        for l in L:
            if "x" in mab and isinstance(l, VM) and isinstance(l.tag, tuple) and l.tag[0] == "X": continue
            if "w" in mab and isinstance(l, VM) and isinstance(l.tag, tuple) and l.tag[0] == "W": continue
            if "t" in mab and l.startswith("ds_read_b64_tr"): continue
            if "k" in mab and l.startswith("ds_read_b128"): continue
            if "s" in mab and l.startswith(("s_add", "s_mov", "s_cmp", "s_cselect")) and f"s{sIt}" not in l and "exec" not in l: continue
            if "n" in mab and isinstance(l, Need): out.append("s_waitcnt lgkmcnt(0)" if l.extra else "s_nop 0"); continue
            if "g" in mab and l.startswith("v_mfma_f32_16x16") and "a[2" in l: continue
            out.append(l)
        return out
    Me = abl(M); M0e = abl(M0)
    D = Asm()
    D(f"s_mov_b32 s{sIt}, 0")
    for c in range(NP): D.ext(ts.at(f"c{c}")); D.ext(CP[c])
    D.ext(ts.at("m")); D.ext(M0e)
    D(".p2align 6\nP2_MLOOP:")
    D.ext(Me)
    if WPRE:
        D(f"""s_cmp_lt_u32 s{sIt}, 6
        s_cbranch_scc1 P2_MLOOP
        s_mov_b32 s{S_KVD}, s{sWo}
        s_mov_b32 s{S_KVD+1}, s{sWo+1}
        s_mov_b32 s{S_KVD+2}, s{sWoN}""")
        if CPF: D(cpa)
        D("P2_MWLOOP:")
        D.ext(abl(MW))
        D(f"s_cmp_lt_u32 s{sIt}, 8\ns_cbranch_scc1 P2_MWLOOP")
        probs += check_hazards(M + MW + MW, "mw")
        M = MW
    else:
        D(f"s_cmp_lt_u32 s{sIt}, 8\ns_cbranch_scc1 P2_MLOOP")
    probs += check_hazards(B.lines[-8:] + sum(CP, []) + M0 + M + M, "att")
    A.ext(D.lines)

    C = Asm()
    C.ext(ts.at("attend"))
    C(f"""v_mfma_f32_32x32x16_bf16 {O[1]}, {V[1][0]}, {P[1].sub(0,4)}, {O[1]}
    {lsum(1)}
    v_mfma_f32_32x32x16_bf16 {O[1]}, {V[1][1]}, {P[1].sub(4,4)}, {O[1]}""")
    C(f"v_mov_b32 {T[1]}, 0")
    for r in range(16): C(f"v_fmac_f32 {T[1]}, 0, {O[0][r]}")
    for r in range(16): C(f"v_fmac_f32 {T[1]}, 0, {O[1][r]}")
    for ab in range(2): C(f"v_add_f32 {Lc[ab][0]}, {Lc[ab][0]}, {Lc[ab][1]}")
    C(f"""s_mov_b32 s{sT0}, {f2u(2.0**-60):#x}
    s_mov_b32 s{sT1}, {f2u(2.0**100):#x}
    v_cmp_le_f32 vcc, s{sT0}, {Lc[0][0]}
    v_cmp_le_f32 s[{S_C}:{S_C+1}], s{sT0}, {Lc[1][0]}
    s_nop 1
    s_and_b64 vcc, vcc, s[{S_C}:{S_C+1}]
    v_cmp_ge_f32 s[{S_C}:{S_C+1}], s{sT1}, {Lc[0][0]}
    v_cmp_ge_f32 s[{sT2}:{sT3}], s{sT1}, {Lc[1][0]}
    s_nop 1
    s_and_b64 vcc, vcc, s[{S_C}:{S_C+1}]
    s_and_b64 vcc, vcc, s[{sT2}:{sT3}]
    v_cmp_eq_f32 s[{S_C}:{S_C+1}], 0, {T[1]}
    s_nop 1
    s_and_b64 vcc, vcc, s[{S_C}:{S_C+1}]
    s_cmp_eq_u64 vcc, -1""")
    if opt.get("force_fallback"): C("s_branch P2_FALLBACK")
    C("s_cbranch_scc0 P2_FALLBACK")
    C("P2_FINISH:")
    for ab in range(2): C(f"v_rcp_f32 {T[2*ab]}, {Lc[ab][0]}")
    C(f"""s_add_u32 s{sT0}, s{sCB}, 112
    s_mul_i32 s{sT0}, s{sT0}, {AFS}
    s_lshl_b32 s{sT1}, s{sRB}, 14
    s_add_u32 s{sT0}, s{sT0}, s{sT1}
    s_lshl_b32 s{sT1}, s{sW}, 12
    s_add_u32 s{sT0}, s{sT0}, s{sT1}""")
    for ab in range(2): C(f"v_mul_f32 {T[2*ab]}, {T[2*ab]}, {vG[ab]}")
    for ab in range(2):
        for r in range(0, 16, 2):
            C(f"v_pk_mul_f32 {O[ab].sub(r,2)}, {O[ab].sub(r,2)}, {T.sub(2*ab,2)} op_sel_hi:[1,0]")
        for r in range(8): C(f"v_cvt_pk_bf16_f32 {S[ab][r]}, {O[ab][2*r]}, {O[ab][2*r+1]}")
        for c in range(2):
            C(VM(f"buffer_store_dwordx4 {S[ab].sub(4*c,4)}, {vQP}, {srd(S_WS)}, s{sT0} offen offset:{ab*2048 + c*512} {SC1}", "O"))
    for j in range(8): C(f"v_sub_f32 {SCL[j]}, 1.0, {SCL[j]}")
    for j in range(8): C(f"v_cvt_pk_bf16_f32 {SCL[j]}, {SCL[j]}, {SCL[j]}")
    for j in range(8): C(f"v_and_b32 {SCL[j]}, 0xffff0000, {SCL[j]}")
    sFC = sL
    C(f"""s_lshl_b32 s{sFC}, s{sMT}, 8
    s_add_u32 s{sFC}, s{sFC}, {FL_O}
    s_add_u32 s{sFl}, s{sFl}, {FL_O - FL_H}""")
    C.ext(ts.at("tail"))
    vPa = [O[0][i] for i in range(4)]; vPb = [O[0][4 + i] for i in range(4)]
    def pread(st, dst):
        base = vPb if st < 2 else vPa
        return [f"ds_read_b64_tr_b16 {dst[i].sub(2*hf,2)}, {base[i]} offset:{(st & 1)*4096 + hf*2048}" for i in range(4) for hf in range(2)]
    def p3iter(hook=None, now=False):
        out = []
        for s in range(NS):
            m = [gm(s, j, i) for j in range(8) for i in range(4)]
            f = {}
            if opt.get("t3", 1) == 0:
                f[-1] = [Need([("W", (s+1) % NS), ("X", s, 1)], "lgkmcnt(0)"), w3dma(s, 0)[0]]
                dgap = [0, 6, 14, 22]
                for e in range(4): put(f, dgap[e], w3dma(s, e)[1])
                for k, r in enumerate(wread((s + 1) % NS, (s+1) & 1)): put(f, 1 + 3*k, r)
                for j in range(8): put(f, 4*j + 3 + (1 if j < 7 else 0), xload(s, j))
            else:
                f[-1] = [Need([("X", s, 0)], "lgkmcnt(0)"), w3dma(s, 0)[0]]
                dgap = opt.get("t3w", [0, 2, 6, 10])
                if now: f[-1] = f[-1][:1]
                else:
                    for e in range(4): put(f, dgap[e], w3dma(s, e)[1])
                put(f, 15, Need([("X", s, 1)]))
                rg0 = opt.get("t3r", 18)
                if not (now and s == 3): put(f, rg0 - 1, Need([("W", (s+1) % NS)]))
                for k, r in enumerate(pread(0, RW[0]) if (now and s == 3) else wread((s + 1) % NS, (s+1) & 1)): put(f, rg0 + k + (1 if rg0 + k >= 20 else 0) + (1 if rg0 + k >= 23 else 0), r)
                for j in range(8): put(f, 4*j + 3 + (1 if j < 7 else 0), xload(s, j))
            put(f, 31, adv3)
            put(f, 28, tr_issue())
            if trace: f[-1] = f[-1][:1] + tr_commit() + f[-1][1:]
            if hook: hook(s, f)
            out += interleave(m, f)
        return out
    opoll = f"buffer_load_dword {vFl[0]}, {T[5]}, {srd(S_WS)}, s{sFC} offen sc1"
    NT = NP - 2
    OFS, OPS = opt.get("oflag_step", 2), opt.get("opoll_step", 4*NT - 1 if NT == 1 else 4*NT - 2)
    def mkT(base):
        def hookT(s, f):
            if base + s == OFS: put(f, 10, [Need(["O"]), "s_mov_b64 exec, 1", VM(f"buffer_store_dword {vNon}, {vZero}, {srd(S_WS)}, s{sFl} offen sc1", "OF"), "s_mov_b64 exec, -1", "s_nop 2"])
            if base + s == OPS: put(f, 26, VM(opoll, "OP"))
            if base + s == 1 and CPF: put(f, 14, [cpa, f"v_min_u32 v0, L_END-{NAME}-4, v0"] + cp(False))
        return hookT
    T5 = []
    for k in range(NT): T5 += resolve_waits(p3iter(mkT(4*k)), M + M + C.lines + T5)
    L3 = resolve_waits(p3iter())
    mid = [Need(["OP"])] + check([vFl[0]]) + ["s_cbranch_scc0 P3_SLOWO", "P3_OOK:",
           f"s_mov_b32 s{S_W3}, s{sWo}", f"s_mov_b32 s{S_W3+1}, s{sWo+1}", f"s_mov_b32 s{S_W3+2}, s{sWoN}",
           f"v_subrev_u32 {vW3o}, {28*4*65536}, {vW3o}", f"s_mov_b32 s{sIt}, 6", "s_barrier",
           f"v_add_u32 {T[0]}, 0x10000, {vL16}", f"v_and_b32 {T[1]}, 15, {vL}", f"v_lshlrev_b32 {T[1]}, 11, {T[1]}", f"v_bfe_u32 {T[2]}, {vL}, 4, 1",
           f"v_lshl_add_u32 {T[1]}, {T[2]}, 5, {T[1]}", f"v_lshrrev_b32 {T[2]}, 5, {vL}", f"v_lshl_add_u32 {T[1]}, {T[2]}, 4, {T[1]}",
           f"s_lshl_b32 s{sT0}, s{sMT}, 18", f"s_lshl_b32 s{sT1}, s{sW}, 16", f"s_add_u32 s{sT0}, s{sT0}, s{sT1}",
           f"s_lshl_b32 s{sT1}, s{sNT}, 7", f"s_add_u32 s{sT0}, s{sT0}, s{sT1}", f"s_add_u32 s{sT1}, s{sT0}, 32768"]
    if WPRE:
        mid += [f"s_lshl_b32 s{sT2}, s{sW}, 13", f"s_add_u32 s{sT2}, s{sT2}, {W3B}"]
        mid += [f"v_subrev_u32 {vPa[i]}, s{sT2}, {vW3a[i]}" for i in range(4)] + [f"v_add_u32 {vPb[i]}, 0x10000, {vPa[i]}" for i in range(4)]
    mid = resolve_waits(mid, T5)
    probs += verify_waits(M + C.lines + T5 + mid + L3, len(M + C.lines + T5 + mid), "T5->L3")
    tail = [f"s_add_u32 s{sIt}, s{sIt}, 1", f"s_cmp_eq_u32 s{sIt}, 8", "s_cbranch_scc1 P3_DONE", "s_nop 7"]
    for i in range(4):
        for j in range(8):
            for r in (0, 2):
                tail.append(f"v_pk_mul_f32 {acc3[i][j].sub(r,2)}, {acc3[i][j].sub(r,2)}, {SCL.sub(j & ~1, 2)} op_sel:[0,{j&1}] op_sel_hi:[1,{j&1}]")
    tail += ["s_nop 0", "s_branch P3_LOOP", "P3_DONE:"]
    probs += check_hazards(M[-30:] + C.lines + T5 + mid + L3 + tail + L3, "tail") + check_hazards(L3 + L3, "l3")
    tab = opt.get("tabl", "")
    def tabl(L):
        out = []
        for l in L:
            if isinstance(l, VM) and isinstance(l.tag, tuple) and l.tag[0].lower() in tab: continue
            if "t" in tab and l.startswith("ds_read_b64_tr"): continue
            if "m" in tab and l.startswith("v_mfma"): continue
            if "a" in tab and l in adv3: continue
            out.append(l)
        return out
    T5 = tabl(T5); L3 = tabl(L3)
    C.ext(T5); C.ext(ts.at("t5end")); C.ext(mid); C.ext(ts.at("l3"))
    if WPRE:
        L7 = resolve_waits(p3iter(now=True), L3 + L3)
        probs += check_hazards(L3 + tail[3:-2] + L7, "l7")
        C.ext(L3); C.ext(tail[3:-2]); C.ext(tabl(L7)); C.ext(ts.at("l3end"))
        LPREV = L3 + L7
    else:
        C(".p2align 6\nP3_LOOP:")
        C.ext(L3); C.ext(tail); C.ext(ts.at("l3end"))
        LPREV = L3 + L3
    for w in range(3): C(f"s_cmp_eq_u32 s{sW}, {w}\ns_cbranch_scc1 P3_FIN{w}")
    A.ext(C.lines)
    RWF = [RW[0]] + [[Reg("a", 128 + 16*k + 4*i, 4) for i in range(4)] for k in range(3)]
    def fin(w):
        def adr(off): return (vL16, off) if off < 65536 else (T[0], off - 65536)
        own = [2*w, 2*w + 1]
        oth = [j for d in range(1, 4) for j in (2*((w + d) & 3), 2*((w + d) & 3) + 1)]
        mm = lambda s_, j, i: f"v_mfma_f32_16x16x32_bf16 {acc3[i][j]}, {RWF[s_][i]}, {RX[s_][j]}, {acc3[i][j]}"
        m = [mm(0, j, i) for j in oth + own for i in range(4)]
        f = {}
        f[-1] = [Need([("X", 0, 1)] + ([] if WPRE else [("W", 1)]), "lgkmcnt(0)")]
        k = 0
        for s_ in (1, 2, 3):
            if s_ > 1 and not WPRE: put(f, k, Need([("W", s_)]))
            for r in (pread(s_, RWF[s_]) if WPRE else [f"ds_read_b64_tr_b16 {RWF[s_][i].sub(2*hf,2)}, {vW3a[i]} offset:{s_*4096 + hf*2048}" for i in range(4) for hf in range(2)]):
                put(f, k, r); k += 1
        put(f, 31, Need([("X", 3, 1)], "lgkmcnt(0)"))
        if WPRE: put(f, 31, "s_barrier")
        for n, j in enumerate(oth + own):
            m += [mm(s_, j, i) for s_ in (1, 2, 3) for i in range(4)]
        for n, j in enumerate(oth):
            d = j >> 1; q = (w - d - 1) & 3
            for i in range(4):
                b_, off = adr((d*3 + q)*8192 + ((j & 1)*4 + i)*1024)
                put(f, 32 + 12*(n + 1) + 5 + 2*i, f"ds_write_b128 {b_}, {acc3[i][j]} offset:{off}")
        free = [acc3[i][j] for j in oth for i in range(4)]
        g0 = 32 + 12*7 + 2
        put(f, g0, ["s_waitcnt lgkmcnt(0)", "s_barrier"])
        k = 0
        for q in range(3):
            for jj in range(2):
                for i in range(4):
                    b_, off = adr((w*3 + q)*8192 + (jj*4 + i)*1024)
                    put(f, min(g0 + k // 3, 127), f"ds_read_b128 {free[k]}, {b_} offset:{off}"); k += 1
        R = Asm()
        R.ext(resolve_waits(interleave(m, f), LPREV))
        R.ext(ts.at("redw"))
        R("s_nop 3")
        for q in range(3):
            R(f"s_waitcnt lgkmcnt({[15, 8, 0][q] if not ts.on else 0})")
            for jj in range(2):
                for i in range(4):
                    a = acc3[i][2*w+jj]; b = free[q*8 + jj*4 + i]
                    for r in (0, 2): R(f"v_pk_add_f32 {a.sub(r,2)}, {a.sub(r,2)}, {b.sub(r,2)}")
        for jj in range(2):
            for ip in range(2):
                X, Y = acc3[2*ip][2*w+jj], acc3[2*ip+1][2*w+jj]
                Dd = S[0].sub(4*(jj*2+ip), 4)
                R(f"v_cvt_pk_bf16_f32 {Dd[0]}, {X[0]}, {X[1]}\nv_cvt_pk_bf16_f32 {Dd[1]}, {X[2]}, {X[3]}")
                R(f"v_cvt_pk_bf16_f32 {Dd[2]}, {Y[0]}, {Y[1]}\nv_cvt_pk_bf16_f32 {Dd[3]}, {Y[2]}, {Y[3]}")
                R(f"s_nop 1\nv_permlane16_swap_b32 {Dd[0]}, {Dd[2]}\nv_permlane16_swap_b32 {Dd[1]}, {Dd[3]}")
                R(f"buffer_store_dwordx4 {Dd}, {T[1]}, {srd(S_OUT)}, s{sT0+jj} offen offset:{ip*64} {opt.get('outflag', '')}")
        if trace:
            R(f"""s_waitcnt vmcnt(0)
            s_memrealtime s[100:101]
            s_waitcnt lgkmcnt(0)
            s_lshl_b64 exec, 1, s81
            v_mov_b32 v0, s100
            s_mov_b64 exec, -1
            s_lshl_b32 s80, s2, 2
            s_add_u32 s80, s80, s{sW}
            s_lshl_b32 s80, s80, 8
            s_add_u32 s80, s80, {TS_OFF}
            v_lshlrev_b32 {T[3]}, 2, {vL}
            buffer_store_dword v0, {T[3]}, {srd(S_WS)}, s80 offen
            s_waitcnt vmcnt(0) ; TRACE""")
        if opt.get("dbgt"):
            R(f"""s_waitcnt vmcnt(0) lgkmcnt(0)
            s_memrealtime s[100:101]
            s_waitcnt lgkmcnt(0)
            s_mov_b32 s{S_C}, s{P_DBG}
            s_mov_b32 s{S_C+1}, s{P_DBG+1}
            s_mov_b32 s{S_C+2}, 256
            s_mov_b64 exec, 1""")
            for i in range(10):
                R(f"""s_sub_u32 s80, s{82+2*i}, s{sNonce}
                s_add_u32 s80, s80, 1000
                v_mov_b32 {T[3]}, s80
                buffer_atomic_umax {T[3]}, {vZero}, {srd(S_C)}, 0 offen offset:{8 + 4*i}""")
            R("s_waitcnt vmcnt(0)")
        else:
            R.ext(ts.flush(S_WS, sW, S[1].base))
        R("s_endpgm")
        return R
    for w in (3, 0, 1, 2):
        R = fin(w)
        probs += check_hazards(LPREV[-10:] + R.lines, f"fin{w}")
        A(f"P3_FIN{w}:"); A.ext(R.lines)
    A.ext(slow1.lines)
    A("P3_SLOWH:"); A.ext(spin("P3_SH", hpoll, [vFl[k] for k in range(4)], "P3_HOK"))
    A("P3_SLOWO:"); A.ext(spin("P3_SO", opoll, [vFl[0]], "P3_OOK"))

    F = Asm()
    F("P2_FALLBACK:")
    for ab in range(2): F(f"v_mov_b32 {T[ab]}, 0xff800000")
    F(f"s_mov_b32 s{sT0}, {KV_OFF}")
    F("P2_FB1:")
    for t in range(2): F(f"buffer_load_dwordx4 {K[0][t]}, {vL16}, {srd(S_WS)}, s{sT0} offen offset:{t*1024} {SC1}")
    F("s_waitcnt vmcnt(0)")
    for ab in range(2):
        F(f"v_mfma_f32_32x32x16_bf16 {S[ab]}, {K[0][0]}, {Q[ab][0]}, 0\nv_mfma_f32_32x32x16_bf16 {S[ab]}, {K[0][1]}, {Q[ab][1]}, {S[ab]}")
    F("s_nop 15")
    for ab in range(2):
        for r in range(0, 16, 2): F(f"v_max3_f32 {T[ab]}, {S[ab][r]}, {S[ab][r+1]}, {T[ab]}")
    F(f"s_add_u32 s{sT0}, s{sT0}, 4096\ns_cmp_lt_u32 s{sT0}, {KV_OFF + 262144}\ns_cbranch_scc1 P2_FB1")
    for ab in range(2): F(f"v_mov_b32 {T[2+ab]}, {T[ab]}")
    F("s_nop 1")
    for ab in range(2): F(f"v_permlane32_swap_b32 {T[ab]}, {T[2+ab]}")
    for ab in range(2): F(f"v_max_f32 {T[8+ab]}, {T[ab]}, {T[2+ab]}")
    for ab in range(2):
        for r in range(16): F(f"v_mov_b32 {O[ab][r]}, 0")
        for r in range(4): F(f"v_mov_b32 {Lc[ab][r]}, 0")
    F(f"s_mov_b32 s{sT0}, {KV_OFF}")
    F("P2_FB2:")
    for t in range(2): F(f"buffer_load_dwordx4 {K[0][t]}, {vL16}, {srd(S_WS)}, s{sT0} offen offset:{t*1024} {SC1}")
    for t in range(2): F(f"buffer_load_dwordx4 {V[0][t]}, {vL16}, {srd(S_WS)}, s{sT0} offen offset:{2048 + t*1024} {SC1}")
    F("s_waitcnt vmcnt(0)")
    for ab in range(2):
        F(f"v_mfma_f32_32x32x16_bf16 {S[ab]}, {K[0][0]}, {Q[ab][0]}, 0\nv_mfma_f32_32x32x16_bf16 {S[ab]}, {K[0][1]}, {Q[ab][1]}, {S[ab]}")
    F("s_nop 15")
    for ab in range(2):
        for r in range(16): F(f"v_sub_f32 {S[ab][r]}, {S[ab][r]}, {T[8+ab]}")
        for r in range(16): F(f"v_exp_f32 {S[ab][r]}, {S[ab][r]}")
        F("s_nop 0")
        for r in range(8): F(f"v_cvt_pk_bf16_f32 {P[ab][r]}, {S[ab][2*r]}, {S[ab][2*r+1]}")
    F("s_nop 1")
    for ab in range(2):
        for u_ in range(2):
            F(f"v_mfma_f32_32x32x16_bf16 {O[ab]}, {V[0][u_]}, {P[ab].sub(4*u_,4)}, {O[ab]}")
            if u_ == 0: F(lsum(ab))
    F(f"s_add_u32 s{sT0}, s{sT0}, 4096\ns_cmp_lt_u32 s{sT0}, {KV_OFF + 262144}\ns_cbranch_scc1 P2_FB2")
    F("s_nop 15")
    for ab in range(2): F(f"v_add_f32 {Lc[ab][0]}, {Lc[ab][0]}, {Lc[ab][1]}")
    F("s_branch P2_FINISH")
    F("L_END:\ns_endpgm")
    probs += check_hazards(F.lines, "fb")
    A.ext(F.lines)
    for p_ in probs: print("PROBLEM", p_)
    launch = f"; @launch grid=(256,1,1) block=(256,1,1) lds=163840"
    return launch, A.text(), kdesc(NAME, 512, 256)

HDR = open("gated_mix__grouped_kv_mqa__glu_gated_reglu__prompt.s.ref").read().split("; Override launch")[0]
def build(opt=None):
    l, t, d = gen(opt)
    return HDR + l + "\n" + '.amdgcn_target "amdgcn-amd-amdhsa--gfx950"\n.text\n' + t + d
if __name__ == "__main__":
    import sys, json
    out = sys.argv[1] if len(sys.argv) > 1 else "gated_mix__grouped_kv_mqa__glu_gated_reglu__prompt.s"
    opt = json.loads(sys.argv[2]) if len(sys.argv) > 2 else {}
    open(out, "w").write(build(opt))
```

```python
import re

class Asm:
    def __init__(self):
        self.lines = []
    def __call__(self, s):
        if type(s) is not str:
            self.lines.append(s); return
        for l in s.split("\n"):
            l = l.strip()
            if l: self.lines.append(l)
    def ext(self, lst):
        for l in lst: self(l)
    def text(self):
        out = []
        for l in self.lines:
            if l.endswith(":") or l.startswith(".") or l.startswith(";"):
                out.append(l)
            else:
                out.append("    " + l)
        return "\n".join(out) + "\n"

def vr(base, n=1, f="v"):
    return f"{f}{base}" if n == 1 else f"{f}[{base}:{base+n-1}]"
def ar(base, n=1): return vr(base, n, "a")
def sr(base, n=1): return vr(base, n, "s")

class Reg:
    def __init__(self, f, base, n): self.f, self.base, self.n = f, base, n
    def __str__(self): return vr(self.base, self.n, self.f)
    def sub(self, off, n=1): return Reg(self.f, self.base + off, n)
    def __getitem__(self, i): return Reg(self.f, self.base + i, 1)

class Alloc:
    def __init__(self, f, start, end): self.f, self.p, self.end = f, start, end
    def get(self, n, align=1):
        self.p = (self.p + align - 1) // align * align
        r = Reg(self.f, self.p, n); self.p += n
        assert self.p <= self.end, f"out of {self.f} regs"
        return r

def flat(L):
    out = []
    for l in L:
        if type(l) is str and "\n" in l: out.extend(x.strip() for x in l.split("\n"))
        else: out.append(l)
    return out

def interleave(backbone, fillers):
    out = list(fillers.get(-1, []))
    for i, b in enumerate(backbone):
        out.append(b)
        out.extend(fillers.get(i, []))
    assert all(-1 <= k < len(backbone) for k in fillers), (sorted(fillers), len(backbone))
    return out

def kdesc(name, vgpr, accum, sgpr=102):
    return f""".section .rodata,"a"
.p2align 6
.amdhsa_kernel {name}
  .amdhsa_next_free_vgpr {vgpr}
  .amdhsa_next_free_sgpr {sgpr}
  .amdhsa_accum_offset {accum}
  .amdhsa_group_segment_fixed_size 0
  .amdhsa_kernarg_size 104
  .amdhsa_user_sgpr_count 2
  .amdhsa_user_sgpr_kernarg_segment_ptr 1
  .amdhsa_system_sgpr_workgroup_id_x 1
  .amdhsa_float_denorm_mode_32 3
.end_amdhsa_kernel
.text
"""

_reg_re = re.compile(r"\b([vas])(?:\[(\d+):(\d+)\]|(\d+)\b)")
def regs_of(op):
    out = set()
    for m in _reg_re.finditer(op):
        f = m.group(1)
        if m.group(2) is not None:
            for i in range(int(m.group(2)), int(m.group(3)) + 1): out.add((f, i))
        else:
            out.add((f, int(m.group(4))))
    return out

TRANS = ("v_exp_", "v_log_", "v_rcp_", "v_rsq_", "v_sqrt_", "v_sin_", "v_cos_")
def parse(line):
    line = line.split(";")[0].strip()
    if not line or line.endswith(":") or line.startswith("."): return None
    p = line.split(None, 1)
    mn = p[0]; ops = [o.strip() for o in p[1].split(",")] if len(p) > 1 else []
    return mn, ops

def check_hazards(lines, name=""):
    hist = []
    probs = []
    ins = [(l, parse(l)) for l in flat(lines)]
    ins = [(l, p) for l, p in ins if p]
    def states(mn, ops):
        if mn == "s_nop": return int(ops[0], 0) + 1
        return 1
    pos = 0; recs = []
    for l, (mn, ops) in ins:
        isM = mn.startswith(("v_mfma", "v_smfmac"))
        isV = mn.startswith("v_") and not isM
        isMem = mn.startswith(("buffer_", "global_", "ds_", "flat_"))
        dst = set(); src = set(); srcC = set(); srcAB = set()
        if isM:
            dst = regs_of(ops[0]); srcAB = regs_of(ops[1]) | regs_of(ops[2]); srcC = regs_of(ops[3])
            if mn.startswith("v_smfmac"): srcAB |= srcC; srcC = set(dst)
            src = srcAB | srcC
        elif isV:
            dst = regs_of(ops[0]); src = set().union(*[regs_of(o) for o in ops[1:]]) if len(ops) > 1 else set()
            if mn.startswith(("v_fmac", "v_dot2c", "v_permlane", "v_writelane")): src |= dst
            if mn.startswith("v_permlane"): dst |= regs_of(ops[1])
            if mn.startswith("v_cmp") and ops[0] == "vcc": dst = {("s", "vcc")}
            if mn.startswith("v_cndmask") and (len(ops) < 4 or ops[3] == "vcc"): src |= {("s", "vcc")}
            if mn.startswith(("v_add_co", "v_sub_co", "v_addc_co")):
                dst |= regs_of(ops[1]) | ({("s","vcc")} if ops[1]=="vcc" else set())
        elif isMem:
            allr = set().union(*[regs_of(o) for o in ops]) if ops else set()
            if "load" in mn or mn.startswith("ds_read") or mn.startswith("ds_bperm") or mn.startswith("ds_swizzle"):
                if " lds" in l or "load_lds" in mn: src = allr
                else:
                    dst = regs_of(ops[0]); src = set().union(*[regs_of(o) for o in ops[1:]])
            else: src = allr
        else:
            src = set().union(*[regs_of(o) for o in ops[1:]]) if len(ops) > 1 else set()
            if ops and not mn.startswith(("s_cmp", "s_waitcnt", "s_cbranch", "s_branch", "s_nop", "s_barrier")): dst = regs_of(ops[0])
            if ops and ops[0] == "m0": dst = {("s", "m0")}
        for r in reversed(recs):
            d = pos - r["pos"] - r["st"]
            d = pos - r["end"]
            if d > 24: break
            need = 0; why = ""
            if r["isM"]:
                p8 = r["passes"] == 8
                if isM:
                    if r["dst"] & srcAB: need, why = (12 if p8 else 8), "mfma D->AB"
                    elif r["dst"] & srcC and not (r["dst"] == srcC and r["mn"] == mn): need, why = (10 if p8 else 6), "mfma D->C partial"
                    elif (r["dst"] & dst) and not (r["dst"] == srcC and r["mn"] == mn) : need, why = (10 if p8 else 6), "mfma WAW"
                elif isV or isMem:
                    if r["dst"] & (src | dst): need, why = (12 if p8 else 8), "mfma D->valu/mem"
                    if isV and (r["srcC"] & dst): need, why = max(need, 7 if p8 else 3), why + " mfma C WAR"
            elif r["isV"]:
                vd = {x for x in r["dst"] if x[0] in "va"}
                sd = {x for x in r["dst"] if x[0] == "s"}
                if isM and vd & src: need, why = 2, "valu->mfma"
                if r["mn"].startswith(TRANS) and isV and not mn.startswith(TRANS) and vd & src: need, why = 1, "trans->valu"
                if r["mn"].startswith(TRANS) and isMem and vd & src: need, why = 1, "trans->mem"
                if mn.startswith("v_permlane") and vd & src: need, why = 2, "valu->permlane"
                if ("dpp" in mn or "row_" in l or "quad_perm" in l) and vd & src: need, why = 2, "valu->dpp"
                if mn.startswith(("v_readfirstlane", "v_readlane")) and vd & src: need, why = 1, "valu->readlane"
                if sd & src:
                    if isMem: need, why = 5, "valu sgpr->vmem"
                    elif isV: need, why = 2, "valu sgpr->valu"
            elif r["isMem"]:
                if ("store" in r["mn"]) and ("x4" in r["mn"] or "x3" in r["mn"]) and (isV or isM) and (r["data"] & dst): need, why = 2, "store data WAR"
            else:
                if ("s", "m0") in r["dst"] and isMem and (" lds" in l or "load_lds" in mn): need, why = 1, "m0->lds dma"
            if need > d:
                probs.append(f"{name}: [{why}] need {need} have {d}: '{r['l']}' -> '{l}'")
        st = states(mn, ops)
        recs.append(dict(l=l, mn=mn, pos=pos, st=st, end=pos + 1 if mn != "s_nop" else pos + st, isM=isM, isV=isV, isMem=isMem,
                         dst=dst, srcC=srcC, passes=(8 if "32x32" in mn else 4), data=(regs_of(ops[0]) if isMem and ops else set())))
        pos += st
    return probs

class VM(str):
    def __new__(cls, s, tag=None):
        o = str.__new__(cls, s); o.tag = tag; return o
class Need(str):
    def __new__(cls, tags, extra="", n=None):
        o = str.__new__(cls, f"s_waitcnt vmcnt({n if n is not None else 0}) {extra}".strip()); o.tags = tags; o.extra = extra; o.n = n; return o
def is_vmem(l): return l.startswith(("buffer_", "global_"))
def _count_after(seq, pos, tag):
    c = 0
    for k in range(pos - 1, -1, -1):
        l = seq[k]
        if is_vmem(l):
            if getattr(l, "tag", None) == tag: return c
            c += 1
    return None
def resolve_waits(body, pred=None):
    pred = body if pred is None else pred
    seq = list(pred) + list(body); out = []
    for k, l in enumerate(body):
        if isinstance(l, Need) and l.n is None:
            cs = [_count_after(seq, len(pred) + k, t) for t in l.tags]
            assert all(c is not None for c in cs), (l.tags, cs)
            out.append(Need(l.tags, l.extra, min(min(cs), 63)))
        else: out.append(l)
    return out
def verify_waits(seq, start=0, name=""):
    bad = []
    for k in range(start, len(seq)):
        l = seq[k]
        if isinstance(l, Need):
            for t in l.tags:
                c = _count_after(seq, k, t)
                if c is None: bad.append(f"{name}: tag {t} never issued before {k}")
                elif c < l.n:
                    ok = False; cnt = 0
                    for q in range(k - 1, -1, -1):
                        x = seq[q]
                        if is_vmem(x):
                            if getattr(x, "tag", None) == t: break
                        m = re.match(r"s_waitcnt.*vmcnt\((\d+)\)", x)
                        if m:
                            cq = _count_after(seq, q, t)
                            if cq is not None and cq >= int(m.group(1)): ok = True; break
                    if not ok: bad.append(f"{name}: wait at {k} vmcnt({l.n}) insufficient for {t} (only {c} younger)")
    return bad
```

```python
AF_OFF = 0
AF_SIZE = 144 * 128 * 1024
AFS = 0x21000
AF_SIZE3 = 144 * AFS
QF_OFF = 0x1200000
KV_OFF = 0x1600000
G_OFF  = 0x1640000
WS_USED = 0x4D00000
QF5_OFF = 0x4500000
CW_OFF = 0x1B00000
CW_SZ = 4608 * 256
AF2_OFF = 0x2000000
AFS2 = 0x41000
QF4_OFF = 0x1700000
import math
QSCALE = (32 ** -0.5) * math.log2(math.e)
import struct
def f2u(f): return struct.unpack("<I", struct.pack("<f", f))[0]
TS_OFF = 0x1680000
class TS:
    def __init__(self, on, kidx): self.on, self.k = on, kidx
    def stamp(self, i):
        if not self.on: return []
        return [f"s_memrealtime s[{80+2*i}:{81+2*i}]", f"s_memtime s[{90+2*i}:{91+2*i}]"]
    def flush(self, srd, swave, vt, wsptr=None):
        if not self.on: return []
        L = ["s_waitcnt vmcnt(0) lgkmcnt(0)"] + self.stamp(4) + ["s_waitcnt lgkmcnt(0)"]
        for i in range(5):
            L.append(f"v_mov_b32 v{vt+i}, s{80+2*i}")
            L.append(f"v_mov_b32 v{vt+5+i}, s{90+2*i}")
        L += [f"s_getreg_b32 s79, hwreg(HW_REG_XCC_ID)", f"v_mov_b32 v{vt+10}, s79", f"v_mov_b32 v{vt+11}, 0",
              f"s_lshl_b32 s78, s2, 2", f"s_add_u32 s78, s78, s{swave}", f"s_lshl_b32 s78, s78, 6",
              f"s_add_u32 s78, s78, {TS_OFF + self.k * 65536}", f"v_mov_b32 v{vt+12}, 0", "s_mov_b64 exec, 1"]
        for q in range(3):
            L.append(f"buffer_store_dwordx4 v[{vt+4*q}:{vt+4*q+3}], v{vt+12}, s[{srd}:{srd+3}], s78 offen offset:{16*q}")
        L += ["s_waitcnt vmcnt(0)"]
        return L

class TS10:
    def __init__(self, on, kidx=0): self.on, self.k = on, kidx
    def stamp(self, i):
        if not self.on: return []
        return [f"s_memrealtime s[{82+2*i}:{83+2*i}]"]
    def flush(self, srd, swave, vt):
        if not self.on: return []
        L = ["s_waitcnt vmcnt(0) lgkmcnt(0)"] + self.stamp(9) + ["s_waitcnt lgkmcnt(0)"]
        for i in range(10): L.append(f"v_mov_b32 v{vt+i}, s{82+2*i}")
        L += [f"s_getreg_b32 s81, hwreg(HW_REG_XCC_ID)", f"v_mov_b32 v{vt+10}, s81", f"v_mov_b32 v{vt+11}, 0x7777",
              f"s_lshl_b32 s80, s2, 2", f"s_add_u32 s80, s80, s{swave}", f"s_lshl_b32 s80, s80, 6",
              f"s_add_u32 s80, s80, {TS_OFF + self.k * 65536}", f"v_mov_b32 v{vt+12}, 0", "s_mov_b64 exec, 1"]
        for q in range(3):
            L.append(f"buffer_store_dwordx4 v[{vt+4*q}:{vt+4*q+3}], v{vt+12}, s[{srd}:{srd+3}], s80 offen offset:{16*q}")
        L += ["s_waitcnt vmcnt(0)"]
        return L

class TSN(TS10):
    def __init__(self, names, kind="rt"):
        self.names = list(names or []); self.on = bool(names); self.k = 0; self.kind = kind
    def stamp(self, i):
        ins = "s_memrealtime" if (self.kind == "rt" or i == 0) else "s_memtime"
        return [f"{ins} s[{82+2*i}:{83+2*i}]"]
    def at(self, name, wait=False):
        if name not in self.names: return []
        L = self.stamp(self.names.index(name))
        if wait: L.append("s_waitcnt lgkmcnt(0)")
        return L
```

```python
from asmlib import *
from common import *
LOG2E = math.log2(math.e)
NAME = "gated_mix__grouped_kv_mqa__glu_gated_reglu__prompt_kernel"

FL_E = 0x1650000
FL_ES = 4352
FL_Q = 0x1660000
FL_H = 0x1649000
FL_O = 0x164a000
SPIN_MAX = 1 << 20
PW = 7168

def put(f, g, x):
    f.setdefault(g, []).extend(x if isinstance(x, list) else [x])

def gen(opt=None):
    opt = opt or {}
    A = Asm()
    DEF = ["start", "p1", "p1end", "kvdone", "poll0", "poll1", "att", "attend", "tail"]
    tsn = opt.get("ts")
    ts = TSN(DEF if tsn == 1 else tsn, opt.get("tskind", "rt"))
    SC1 = "sc1"
    probs = []
    P_X, P_WQ, P_WK, P_WV, P_WO = 4, 6, 8, 10, 12
    P_WG, P_WU, P_WD, P_GW = 16, 18, 20, 22
    P_OUT, P_DBG, P_WS = 24, 26, 28
    S_WS, S_A, S_B, S_C, S_D, S_E = 32, 36, 40, 44, 48, 52
    sW, sNonce = 56, 57
    sT0, sT1, sT2, sT3 = 58, 59, 60, 61
    sIt, sRB, sCB = 62, 63, 64
    sL = 65
    vL, vL16 = Reg("v", 1, 1), Reg("v", 2, 1)
    def srd(b): return f"s[{b}:{b+3}]"

    A(f".globl {NAME}\n.p2align 8\n.type {NAME},@function\n{NAME}:")
    A("s_cmp_ge_u32 s2, 256\ns_cbranch_scc1 L_END")
    A.ext(ts.at("start"))
    A(f"""s_load_dwordx8 s[4:11], s[0:1], 0
    s_load_dwordx2 s[12:13], s[0:1], 32
    s_load_dwordx8 s[16:23], s[0:1], 48
    s_load_dwordx4 s[24:27], s[0:1], 80
    s_load_dwordx2 s[28:29], s[0:1], 96
    s_memrealtime s[30:31]
    v_lshrrev_b32 v3, 6, v0
    v_and_b32 {vL}, 63, v0
    v_readfirstlane_b32 s{sW}, v3
    v_lshlrev_b32 {vL16}, 4, {vL}""")
    CPF = opt.get("cpf", 1) and not opt.get("trace")
    sPC = 100
    cpf = VM(f"global_load_dword a253, v0, s[{sPC}:{sPC+1}]", "CP")
    cpa = "v_add_u32 v0, 0x2000, v0"
    def cp(adv=True): return ([cpf] + ([cpa] if adv else [])) if CPF else []
    if CPF:
        A(f"""s_getpc_b64 s[{sPC}:{sPC+1}]
        L_PCREF:
        v_lshlrev_b32 v0, 7, {vL}
        s_sub_u32 s{sPC}, s{sPC}, L_PCREF-{NAME}
        s_subb_u32 s{sPC+1}, s{sPC+1}, 0""")
        A.ext(cp())

    if opt.get("ticket", 0):
        A(f"""s_getreg_b32 s{sT0}, hwreg(HW_REG_XCC_ID)
        s_and_b32 s{sT0}, s{sT0}, 7
        s_cmp_lg_u32 s{sW}, 0
        s_cbranch_scc1 L_TKWAIT
        v_mov_b32 v5, 0
        s_mov_b32 s{sT1}, 8
        s_mov_b32 s{S_WS+2}, 256
        s_mov_b32 s{S_WS+3}, 0x20000
        s_waitcnt lgkmcnt(0)
        s_mov_b32 s{S_WS}, s{P_DBG}
        s_mov_b32 s{S_WS+1}, s{P_DBG+1}
        s_mov_b64 exec, 1
        L_TKTRY:
        v_mov_b32 v4, 1
        s_lshl_b32 s{sT2}, s{sT0}, 5
        buffer_atomic_add v4, v5, {srd(S_WS)}, s{sT2} offen offset:4 sc0
        s_waitcnt vmcnt(0)
        v_readfirstlane_b32 s{sT2}, v4
        s_cmp_lt_u32 s{sT2}, 32
        s_cbranch_scc1 L_TKGOT
        s_add_u32 s{sT0}, s{sT0}, 1
        s_and_b32 s{sT0}, s{sT0}, 7
        s_sub_u32 s{sT1}, s{sT1}, 1
        s_cmp_lg_u32 s{sT1}, 0
        s_cbranch_scc1 L_TKTRY
        s_mov_b32 s{sT2}, 32
        L_TKGOT:
        s_lshl_b32 s{sT2}, s{sT2}, 3
        s_add_u32 s{sT2}, s{sT2}, s{sT0}
        v_mov_b32 v4, s{sT2}
        ds_write_b32 v5, v4
        s_mov_b64 exec, -1
        s_waitcnt lgkmcnt(0)
        L_TKWAIT:
        v_mov_b32 v5, 0
        s_barrier
        ds_read_b32 v4, v5
        s_waitcnt lgkmcnt(0)
        v_readfirstlane_b32 s2, v4
        s_barrier
        s_cmp_ge_u32 s2, 256
        s_cbranch_scc1 L_END""")
    trace = opt.get("trace")
    def tr_issue(): return ["s_memrealtime s[100:101]"] if trace else []
    def tr_commit(): return ["s_lshl_b64 exec, 1, s81", "v_mov_b32 v0, s100", "s_mov_b64 exec, -1", "s_add_u32 s81, s81, 1"] if trace else []
    if trace: A("s_mov_b32 s81, 0\nv_mov_b32 v0, 0\ns_memrealtime s[100:101]\ns_waitcnt lgkmcnt(0)"); A.ext(tr_commit())
    S_X, S_W0, S_W1, S_KV, S_Wb = S_A, S_B, S_C, S_D, S_E
    sSoX = sL - 1
    sSo0 = sL + 7
    sSo1 = sL + 7
    sM0X, sM0W, sM0K, sWwr = sL + 11, sL + 12, sL + 13, sL + 14
    sWrd, s16k, sStep1, sSa, sSc, sIsB, sKVst, sEfl = 14, 30, 15, 3, 31, 9, 10, 11
    XB, WB, KR = 0, 65536, 147456
    vXo = [3, 4]; vWo0, vWo1, vKo, vSXo = 5, 6, 7, 8
    vXa = [9, 10]; vW0a = [[11 + 2*i, 12 + 2*i] for i in range(4)]; vW1a = [19, 20, 21, 22]; vSWa = 23
    vT = 24
    acc = [[None]*8 for _ in range(8)]
    p = 32
    for i in range(7):
        for j in range(8):
            acc[i][j] = Reg("v", p, 4); p += 4
    RA = [[Reg("a", 64*s + 4*i, 4) for i in range(8)] for s in range(2)]
    RB = [[Reg("a", 64*s + 32 + 4*j, 4) for j in range(8)] for s in range(2)]
    SA = [Reg("a", 128 + 4*s, 4) for s in range(2)]
    sacc = Reg("a", 144, 4)
    for j in range(8): acc[7][j] = Reg("a", 148 + 4*j, 4)
    SXB = [[Reg("a", 180 + 8*b + 4*j, 4) for j in range(2)] for b in range(2)]
    GXa = [Reg("a", 196 + 8*r, 8) for r in range(2)]
    GWa = Reg("a", 212, 8)
    t0, t1, t2, t3, t4, t5, t6, t7 = range(vT, vT + 8)
    HUGE = 0x40000000
    sCWa, sCWb = 6, 7

    A(f"""s_and_b32 s{sT0}, s2, 1
    s_lshl_b32 s{sT0}, s{sT0}, 2
    s_bfe_u32 s{sT1}, s2, 0x20003
    s_add_u32 s{sRB}, s{sT0}, s{sT1}
    s_bfe_u32 s{sT0}, s2, 0x20001
    s_lshl_b32 s{sT0}, s{sT0}, 3
    s_lshr_b32 s{sT1}, s2, 5
    s_add_u32 s{sCB}, s{sT0}, s{sT1}""")
    A(f"""s_lshl_b32 s{sT0}, s{sW}, 6
    v_lshrrev_b32 v{t0}, 3, {vL}
    v_add_u32 v{t2}, s{sT0}, v{t0}
    v_lshlrev_b32 v{t2}, 11, v{t2}
    v_lshrrev_b32 v{t1}, 4, {vL}
    v_and_b32 v{t3}, 7, {vL}
    v_xor_b32 v{t4}, v{t3}, v{t1}
    v_lshl_add_u32 v{vXo[0]}, v{t4}, 4, v{t2}
    v_xor_b32 v{vXo[1]}, 64, v{vXo[0]}""")
    for e in range(1, 8): A(f"s_mov_b32 s{sSoX+e}, {e*16384 - (e&3)*1024}")
    A(f"""s_lshl_b32 s{sM0X}, s{sW}, 13
    s_lshl_b32 s{sM0W}, s{sW}, 11
    s_add_u32 s{sM0K}, s{sM0W}, {KR}
    s_add_u32 s{sM0W}, s{sM0W}, {WB}
    s_and_b32 s{sT1}, s{sCB}, 3
    s_mov_b32 s{sStep1}, {PW}
    s_cmp_eq_u32 s{sT1}, 3
    s_cselect_b32 s{sStep1}, 2048, s{sStep1}""")
    A(f"""s_lshl_b32 s{sT0}, s{sW}, 3
    v_add_u32 v{t2}, s{sT0}, v{t1}
    v_mul_lo_u32 v{t2}, v{t2}, s{sStep1}
    s_and_b32 s{sT1}, s{sW}, 1
    s_lshl_b32 s{sT2}, s{sT1}, 3
    v_and_b32 v{t4}, 15, {vL}
    v_lshl_or_b32 v{t5}, v{t1}, 1, s{sT2}
    v_xor_b32 v{t4}, v{t4}, v{t5}
    v_lshl_add_u32 v{vWo1}, v{t4}, 4, v{t2}
    v_add_u32 v{t2}, s{sT0}, v{t0}
    v_mul_u32_u24 v{t2}, {PW}, v{t2}
    s_lshl_b32 s{sT2}, s{sT1}, 2
    v_and_b32 v{t4}, 1, v{t1}
    v_lshl_or_b32 v{t4}, v{t4}, 1, s{sT2}
    v_xor_b32 v{t4}, v{t4}, v{t3}
    v_lshl_add_u32 v{vWo0}, v{t4}, 4, v{t2}""")
    A.ext(ts.at("a0"))
    A("s_waitcnt lgkmcnt(0)")
    A.ext(ts.at("a1"))
    A(f"""s_lshl_b32 s{sT0}, s{sRB}, 19
    s_add_u32 s{S_X}, s{P_X}, s{sT0}
    s_addc_u32 s{S_X+1}, s{P_X+1}, 0
    s_mov_b32 s{S_X+2}, 0x80000
    s_mov_b32 s{S_X+3}, 0x20000""")
    A(f"""s_mov_b32 s{S_WS+3}, 0x20000
    s_or_b32 s{sT0}, s2, s{sW}
    s_cmp_lg_u32 s{sT0}, 0
    s_cbranch_scc1 P1_NONONCE
    s_or_b32 s30, s30, 1
    s_mov_b32 s{S_WS}, s{P_DBG}
    s_mov_b32 s{S_WS+1}, s{P_DBG+1}
    s_mov_b32 s{S_WS+2}, 256
    v_mov_b32 v{t6}, s30
    v_mov_b32 v{t7}, 0
    s_mov_b64 exec, 1
    buffer_store_dword v{t6}, v{t7}, {srd(S_WS)}, 0 offen sc1
    s_mov_b64 exec, -1
    P1_NONONCE:""")
    WNT = opt.get("wnt", "")
    def xdma(par):
        sl = []
        for e in range(8):
            pre = []
            if e == 0: pre = [f"s_add_u32 m0, s{sM0X}, {par}"]
            if e == 4: pre = ["s_add_u32 m0, m0, 4096"]
            so = "0" if e == 0 else f"s{sSoX+e}"
            sl.append((pre, VM(f"buffer_load_dwordx4 v{vXo[e&1]}, {srd(S_X)}, {so} offen offset:{(e&3)*1024} lds", "X")))
        return sl
    def wdma(hb, slot):
        so0 = "0" if hb == 0 else f"s{sSo0}"
        so1 = ["0" if hb == 0 else f"s{sSo1+2}", f"s{sSo1 + 1 + 2*hb}"]
        return [([f"s_add_u32 m0, s{sM0W}, {slot}"], VM(f"buffer_load_dwordx4 v{vWo0}, {srd(S_W0)}, {so0} offen {WNT} lds", "W")),
                ([], VM(f"buffer_load_dwordx4 v{vWo0}, {srd(S_Wb)}, {so0} offen offset:1024 {WNT} lds", "W")),
                (["s_add_u32 m0, m0, 8192"], VM(f"buffer_load_dwordx4 v{vWo1}, {srd(S_W1)}, {so1[0]} offen {WNT} lds", "W")),
                ([], VM(f"buffer_load_dwordx4 v{vWo1}, {srd(S_W1)}, {so1[1]} offen offset:1024 {WNT} lds", "W"))]
    def kdma(slot):
        return [([f"s_add_u32 m0, s{sM0K}, {slot}"], VM(f"buffer_load_dwordx4 v{vKo}, {srd(S_KV)}, 0 offen lds", "X")),
                ([], VM(f"buffer_load_dwordx4 v{vKo}, {srd(S_KV)}, 0 offen offset:1024 lds", "X"))]
    def sxload(b): return [VM(f"buffer_load_dwordx4 {SXB[b][j]}, v{vSXo}, {srd(S_X)}, 0 offen offset:{j*64}", "SX") for j in range(2)]
    def emit_dma(X, sl):
        for pre, d in sl:
            X.ext(pre)
            if pre: X("s_nop 0")
            X(d)
    emit_dma(A, xdma(0))
    A.ext(ts.at("a2"))
    A(f"""s_lshr_b32 s{sT0}, s{sCB}, 2
    s_and_b32 s{sT1}, s{sCB}, 3
    s_mul_i32 s{sT2}, s{sT0}, 896
    s_lshl_b32 s{sT3}, s{sT1}, 8
    s_add_u32 s{sT2}, s{sT2}, s{sT3}
    s_add_u32 s{S_W0}, s{P_WG}, s{sT2}
    s_addc_u32 s{S_W0+1}, s{P_WG+1}, 0
    s_sub_u32 s{S_W0+2}, {1024*PW}, s{sT2}
    s_mov_b32 s{S_W0+3}, 0x20000
    s_mov_b32 s{S_W1+3}, 0x20000
    s_mov_b32 s{S_Wb+3}, 0x20000
    s_mov_b32 s{sSo0}, {32*PW}
    s_cmp_eq_u32 s{sT1}, 3
    s_cbranch_scc1 P1_SRDB
    s_add_u32 s{S_Wb}, s{S_W0}, {4*PW - 1024}
    s_addc_u32 s{S_Wb+1}, s{S_W0+1}, 0
    s_sub_u32 s{S_Wb+2}, s{S_W0+2}, {4*PW - 1024}
    s_add_u32 s{S_W1}, s{P_WU}, s{sT2}
    s_addc_u32 s{S_W1+1}, s{P_WU+1}, 0
    s_mov_b32 s{S_W1+2}, s{S_W0+2}
    v_mov_b32 v{vWo0}, v{vWo1}
    s_branch P1_SRDD
    P1_SRDB:
    s_add_u32 s{S_Wb}, s{P_WU}, s{sT2}
    s_addc_u32 s{S_Wb+1}, s{P_WU+1}, 0
    s_sub_u32 s{S_Wb}, s{S_Wb}, 1024
    s_subb_u32 s{S_Wb+1}, s{S_Wb+1}, 0
    s_add_u32 s{S_Wb+2}, s{S_W0+2}, 1024
    s_lshl_b32 s{sT0}, s{sT0}, 8
    s_add_u32 s{S_W1}, s{P_WQ}, s{sT0}
    s_addc_u32 s{S_W1+1}, s{P_WQ+1}, 0
    s_sub_u32 s{S_W1+2}, {1024*2048}, s{sT0}
    P1_SRDD:
    s_lshl_b32 s{sSo1+1}, s{sStep1}, 2
    s_sub_u32 s{sSo1+1}, s{sSo1+1}, 1024
    s_lshl_b32 s{sSo1+2}, s{sStep1}, 5
    s_add_u32 s{sSo1+3}, s{sSo1+2}, s{sSo1+1}
    s_lshl_b32 s{sStep1}, s{sStep1}, 6""")
    advX = [f"v_add_u32 v{vXo[0]}, 128, v{vXo[0]}", f"v_add_u32 v{vXo[1]}, 128, v{vXo[1]}"]
    advW = [f"v_add_u32 v{vWo0}, {64*PW}, v{vWo0}", f"v_add_u32 v{vWo1}, s{sStep1}, v{vWo1}"]
    advK = f"v_add_u32 v{vKo}, 4096, v{vKo}"
    advS = f"v_add_u32 v{vSXo}, 128, v{vSXo}"
    emit_dma(A, wdma(0, 0)); emit_dma(A, wdma(1, 16384))
    A.ext(advX + advW)
    A(f"""s_bfe_u32 s{sT0}, s{sCB}, 0x10001
    s_and_b32 s{sT1}, s{sW}, 1
    s_bitcmp1_b32 s{sCB}, 0
    s_cselect_b32 s{S_KV}, s{P_WV}, s{P_WK}
    s_cselect_b32 s{S_KV+1}, s{P_WV+1}, s{P_WK+1}
    s_cselect_b32 s{sSa}, s{sT1}, s{sT0}
    s_cselect_b32 s{sSc}, s{sT0}, s{sT1}
    s_mov_b32 s{S_KV+2}, 65536
    s_mov_b32 s{S_KV+3}, 0x20000
    s_and_b32 s{sIsB}, s{sCB}, 3
    s_cmp_eq_u32 s{sIsB}, 3
    s_cselect_b32 s{sIsB}, 1, 0
    v_lshrrev_b32 v{t2}, 5, {vL}
    v_lshlrev_b32 v{t2}, 1, v{t2}
    v_xor_b32 v{t2}, v{t2}, {vL}
    v_lshlrev_b32 v{t2}, 4, v{t2}
    s_lshr_b32 s{sT2}, s{sW}, 1
    s_lshl_b32 s{sT0}, s{sT2}, 15
    s_lshl_b32 s{sT1}, s{sT1}, 11
    s_add_u32 s{sT0}, s{sT0}, s{sT1}
    v_add_u32 v{vKo}, s{sT0}, v{t2}
    s_lshr_b32 s{sT0}, s{sCB}, 2
    s_lshl_b32 s{sT0}, s{sT0}, 1
    s_add_u32 s{sT0}, s{sT0}, s{sSa}
    s_lshl_b32 s{sT0}, s{sT0}, 15
    s_lshl_b32 s{sT2}, s{sT2}, 10
    s_add_u32 s{sT0}, s{sT0}, s{sT2}
    v_and_b32 v{t2}, 15, {vL}
    v_lshlrev_b32 v{t2}, 11, v{t2}
    v_lshl_add_u32 v{t2}, v{t1}, 4, v{t2}
    v_add_u32 v{vSXo}, s{sT0}, v{t2}""")
    emit_dma(A, kdma(0)); A.ext(sxload(0)); A(advK); A(advS)
    A(f"""s_mov_b32 s{S_WS}, s{P_WS}
    s_mov_b32 s{S_WS+1}, s{P_WS+1}
    s_mov_b32 s{S_WS+2}, {WS_USED}""")
    A.ext(ts.at("a3"))
    second = xdma(32768) + wdma(0, 2*16384) + kdma(8192) + [(p_, VM(d_, "W3")) for p_, d_ in wdma(1, 3*16384)]
    A(f"""v_and_b32 v{t0}, 15, {vL}
    v_lshrrev_b32 v{t2}, 1, v{t0}
    v_xor_b32 v{t2}, v{t2}, v{t1}
    v_lshlrev_b32 v{t2}, 4, v{t2}
    v_lshl_add_u32 v{t2}, v{t0}, 7, v{t2}
    s_lshr_b32 s{sT0}, s{sW}, 1
    s_lshl_b32 s{sT1}, s{sT0}, 14
    v_add_u32 v{vXa[0]}, s{sT1}, v{t2}
    v_xor_b32 v{vXa[1]}, 64, v{vXa[0]}
    v_bfe_u32 v{t0}, {vL}, 2, 2
    v_lshl_add_u32 v{t2}, v{t1}, 3, v{t0}
    v_and_b32 v{t3}, 1, v{t1}
    v_lshl_or_b32 v{t5}, v{t3}, 2, v{t0}
    v_and_b32 v{t4}, 3, {vL}
    v_lshlrev_b32 v{t4}, 3, v{t4}
    v_lshl_add_u32 v{t6}, v{t2}, 8, v{t4}
    v_add_u32 v{t6}, {WB + 8192}, v{t6}
    s_and_b32 s{sT0}, s{sW}, 1
    s_lshl_b32 s{sT1}, s{sT0}, 2""")
    for ii in range(4):
        A(f"""s_add_u32 s{sT2}, s{sT1}, {ii}
        v_xor_b32 v{t7}, s{sT2}, v{t5}
        v_lshl_add_u32 v{vW1a[ii]}, v{t7}, 5, v{t6}""")
    A(f"""v_lshl_add_u32 v{t2}, v{t2}, 6, v{t4}
    v_xor_b32 v{t7}, s{sSc}, v{t3}
    v_lshl_add_u32 v{t7}, v{t7}, 5, v{t2}
    s_lshr_b32 s{sT2}, s{sW}, 1
    s_lshl_b32 s{sT2}, s{sT2}, 12
    s_add_u32 s{sT2}, s{sT2}, {KR}
    v_add_u32 v{vSWa}, s{sT2}, v{t7}
    s_mov_b32 s{s16k}, 16384
    s_cmp_eq_u32 s{sIsB}, 1
    s_cbranch_scc1 P1_ADB""")
    for ii in range(4):
        A(f"v_subrev_u32 v{vW0a[ii][0]}, 8192, v{vW1a[ii]}\nv_subrev_u32 v{vW0a[ii][1]}, 7168, v{vW1a[ii]}")
    A(f"""s_branch P1_ADD
    P1_ADB:
    v_lshl_add_u32 v{t4}, v{t1}, 11, v{t4}
    v_lshl_add_u32 v{t4}, v{t0}, 7, v{t4}
    v_add_u32 v{t4}, {WB}, v{t4}
    v_lshrrev_b32 v{t0}, 1, v{t0}
    v_lshl_or_b32 v{t0}, v{t3}, 1, v{t0}
    s_lshl_b32 s{sT1}, s{sT0}, 1""")
    for k in range(2):
        A(f"""s_add_u32 s{sT2}, s{sT1}, {k}
        v_xor_b32 v{t7}, s{sT2}, v{t0}
        v_lshl_add_u32 v{vW0a[k][0]}, v{t7}, 5, v{t4}
        v_add_u32 v{vW0a[k][1]}, 512, v{vW0a[k][0]}
        v_add_u32 v{vW0a[2+k][0]}, 1024, v{vW0a[k][0]}
        v_add_u32 v{vW0a[2+k][1]}, 1536, v{vW0a[k][0]}""")
    A("P1_ADD:")
    PF = opt.get("pf", 1)
    Z = []
    for i in range(8):
        for j in range(8):
            for r in range(4):
                a = acc[i][j][r]
                Z.append(f"v_mov_b32 {a}, 0" if a.f == "v" else f"v_accvgpr_write_b32 {a}, 0")
    for r in range(4): Z.append(f"v_accvgpr_write_b32 {sacc[r]}, 0")
    PEEL = opt.get("peel", 0)
    NPRE = opt.get("npre", 0)
    if not PEEL:
        per = len(Z) // len(second)
        for k, (pre, d) in enumerate(second):
            A.ext(pre); A.ext(Z[k*per:(k+1)*per]); A(d)
        A.ext(Z[len(second)*per:])
        A.ext(advX + advW + [advK])
    else:
        emit_dma(A, second[:NPRE])

    rdregs = [r for pr in vW0a for r in pr] + vW1a
    def reads(b, s, side):
        L = [f"ds_read_b128 {RB[s][j]}, v{vXa[b]} offset:{j*2048}" for j in range(8)]
        for i in range(8):
            for hf in range(2):
                if i < 4: L.append(f"ds_read_b64_tr_b16 {RA[s][i].sub(2*hf, 2)}, v{vW0a[i][hf]}")
                else: L.append(f"ds_read_b64_tr_b16 {RA[s][i].sub(2*hf, 2)}, v{vW1a[i-4]} offset:{hf*1024}")
        if side:
            for hf in range(2):
                L.append(f"ds_read_b64_tr_b16 {SA[s].sub(2*hf, 2)}, v{vSWa} offset:{b*2048 + hf*256}")
        return L
    def mfmas(s, side=None, zero=False):
        L = []
        for i in range(8):
            js = range(8) if i % 2 == 0 else range(7, -1, -1)
            for j in js:
                L.append(f"v_mfma_f32_16x16x32_bf16 {acc[i][j]}, {RA[s][i]}, {RB[s][j]}, {0 if zero else acc[i][j]}")
            if side is not None and i == 3:
                L.append(f"v_mfma_f32_16x16x32_bf16 {sacc}, {SA[s]}, {SXB[side][s]}, {0 if zero else sacc}")
        return L
    def rotW(sreg, sd):
        return [f"s_cmp_eq_u32 s{sreg}, {4*16384}", f"s_cselect_b32 s{sd}, {(-4*16384) & 0xffffffff:#x}, s{s16k}", f"s_add_u32 s{sreg}, s{sreg}, s{sd}"]
    A.ext(ts.at("a4"))
    A(f"s_waitcnt vmcnt({NPRE if PEEL else len(second)}) lgkmcnt(0)")
    A.ext(ts.at("a5"))
    A("s_barrier")
    A.ext(reads(0, 0, True))
    for r in rdregs: A(f"v_add_u32 v{r}, 16384, v{r}")
    A(f"""s_mov_b32 s{sWrd}, 16384
    s_mov_b32 s{sWwr}, {16384 if PEEL else 4*16384}
    s_mov_b32 s{sIt}, 0
    s_waitcnt lgkmcnt(0)
    s_barrier""")
    A.ext(ts.at("p1"))
    if ts.on: A("s_waitcnt lgkmcnt(0)")
    pro_hist = list(A.lines)

    def step(side=None, dma=True, last=False, hook=None, lim=None, cpfm=None, first=False):
        out = []
        sd = side is not None
        n = 65 if sd else 64
        BG = n - 4
        def rot(f):
            put(f, 47, rotW(sWrd, sT1))
            for k, r in enumerate(rdregs): put(f, 48 + k, f"v_add_u32 v{r}, s{sT1}, v{r}")
        f = {}
        for k, r in enumerate(reads(1, 1, sd)): put(f, 2*k if k < 24 else 49 + 2*(k - 24), r)
        if first:
            rest = second[NPRE:]
            for k, (pre, d) in enumerate(rest):
                g_ = 1 + (k * 52) // len(rest)
                if pre: put(f, g_ - 1, pre)
                put(f, g_, d)
            put(f, 55, advX[0]); put(f, 56, advX[1]); put(f, 57, advW[0]); put(f, 58, [advW[1], advK])
        elif dma:
            dg = [1, 9, 17, 25, 33, 39, 45, 53] if not sd else [13, 19, 25, 31, 37, 43, 49, 55]
            for k, (pre, d) in enumerate(wdma(0, f"s{sWwr}") + wdma(1, f"s{sWwr}")):
                if pre: put(f, dg[k] - 1, pre)
                put(f, dg[k], d)
            put(f, dg[0] + 2, rotW(sWwr, sT0)); put(f, dg[4] + 2, rotW(sWwr, sT0))
            put(f, 57, advW[0]); put(f, 58, advW[1])
        if sd:
            for k, l in enumerate(sxload(side ^ 1)): put(f, ([1, 7] if not first else [-1, -1])[k], l)
            put(f, 9, advS)
            put(f, 59, f"v_xor_b32 v{vSWa}, 0x2000, v{vSWa}")
        rot(f)
        put(f, 19, f"v_xor_b32 v{vXa[0]}, 0x8000, v{vXa[0]}")
        if cpfm == "rep": put(f, 3 if not sd else 4, cp(False))
        if cpfm == "adv": put(f, 3, cpa if CPF else [])
        if cpfm == "advld": put(f, 3, ([cpa] + cp()) if CPF else [])
        if hook: hook(0, f, BG)
        put(f, BG, [Need(["X"], "lgkmcnt(0)") if (dma or not last) else "s_waitcnt lgkmcnt(0)", "s_barrier"])
        if hook: hook(2, f, BG)
        out += interleave(mfmas(0, side, first), f)
        if last: return out + tr_issue() + (["s_waitcnt lgkmcnt(0)"] if trace else []) + tr_commit()
        f = {}
        if not last:
            for k, r in enumerate(reads(0, 0, sd)): put(f, 2*k if k < 24 else 49 + 2*(k - 24), r)
            rot(f)
            put(f, 21, f"v_xor_b32 v{vXa[1]}, 0x8000, v{vXa[1]}")
        if dma:
            put(f, -1, [f"s_and_b32 s{sT3}, s{sIt}, 1", f"s_lshl_b32 s{sT0}, s{sT3}, 15", f"s_lshl_b32 s{sT3}, s{sT3}, 13"])
            dl = (kdma(f"s{sT3}") if sd else []) + xdma(f"s{sT0}")
            dg = [1, 7, 13, 19, 25, 31, 37, 43, 49, 55] if sd else [1, 9, 17, 25, 33, 41, 47, 53]
            if first:
                dl = wdma(0, 4*16384) + wdma(1, 0) + dl
                dg = [1 + (k * 55) // 18 for k in range(18)]
                put(f, 60, advW)
            for k, (pre, d) in enumerate(dl):
                if pre: put(f, dg[k] - 1, pre)
                put(f, dg[k], d)
            put(f, 57, advX[0]); put(f, 59, advX[1])
            if sd: put(f, 9 if not first else 58, advK)
        if hook: hook(1, f, BG)
        put(f, BG - 3, tr_issue())
        put(f, BG, [Need(["SX"] + (["W3"] if first else []), "lgkmcnt(0)") if sd else "s_waitcnt lgkmcnt(0)", "s_barrier"] + tr_commit())
        put(f, BG + 1, f"s_add_u32 s{sIt}, s{sIt}, 1")
        if lim: put(f, BG + 2, f"s_cmp_lt_u32 s{sIt}, {lim}")
        out += interleave(mfmas(1, side), f)
        return out

    vN, vZ, vKA, vFA = t0, t1, t2, t3
    u = 28
    nload = f"buffer_load_dword v{vN}, v{vZ}, {srd(S_KV)}, 0 offen sc1"
    dbgsrd = [f"s_mov_b32 s{S_KV}, s{P_DBG}", f"s_mov_b32 s{S_KV+1}, s{P_DBG+1}", f"s_mov_b32 s{S_KV+2}, 256", f"v_mov_b32 v{vZ}, 0"]
    PSC = KR + 4096
    kvK = f"""v_bfe_u32 v{vKA}, {vL}, 3, 1
    v_lshlrev_b32 v{vKA}, 4, v{vKA}
    v_and_b32 v{vFA}, 7, {vL}
    v_add_u32 v{vKA}, v{vKA}, v{vFA}
    v_bfe_u32 v{vFA}, {vL}, 4, 1
    v_lshl_add_u32 v{vKA}, v{vFA}, 5, v{vKA}
    v_lshlrev_b32 v{vKA}, 4, v{vKA}
    v_lshrrev_b32 v{vFA}, 5, {vL}
    v_lshl_add_u32 v{vKA}, v{vFA}, 10, v{vKA}
    s_lshl_b32 s{sKVst}, s{sSa}, 7
    s_lshl_b32 s{sEfl}, s{sSc}, 3""".split("\n")
    kvV = f"""v_lshrrev_b32 v{vKA}, 5, {vL}
    v_lshlrev_b32 v{vKA}, 4, v{vKA}
    v_bfe_u32 v{vFA}, {vL}, 4, 1
    v_lshl_add_u32 v{vKA}, v{vFA}, 2, v{vKA}
    v_bfe_u32 v{vFA}, {vL}, 2, 1
    v_lshl_add_u32 v{vKA}, v{vFA}, 5, v{vKA}
    v_lshlrev_b32 v{vKA}, 4, v{vKA}
    v_bfe_u32 v{vFA}, {vL}, 3, 1
    v_lshl_add_u32 v{vKA}, v{vFA}, 10, v{vKA}
    v_and_b32 v{vFA}, 3, {vL}
    v_lshl_add_u32 v{vKA}, v{vFA}, 1, v{vKA}
    s_lshl_b32 s{sKVst}, s{sSc}, 7
    s_lshl_b32 s{sEfl}, s{sSa}, 3""".split("\n")
    kvaddr = [f"s_bitcmp1_b32 s{sCB}, 0", "s_cbranch_scc1 P1_KVAV"] + [l.strip() for l in kvK] + ["P1_KVAD:",
              f"s_add_u32 s{sKVst}, s{sKVst}, s{sEfl}", f"s_add_u32 s{sKVst}, s{sKVst}, {KR}", f"v_add_u32 v{vKA}, s{sKVst}, v{vKA}"]
    kvwr = [f"s_bitcmp1_b32 s{sCB}, 0", "s_cbranch_scc1 P1_KVWV", f"ds_write_b64 v{vKA}, v[{u}:{u+1}]", "P1_KVWD:"]
    ool = Asm()
    ool("P1_KVAV:"); ool.ext(kvV); ool("s_branch P1_KVAD")
    ool(f"""P1_KVWV:
    ds_write_b16 v{vKA}, v{u}
    ds_write_b16_d16_hi v{vKA}, v{u} offset:16
    ds_write_b16 v{vKA}, v{u+1} offset:32
    ds_write_b16_d16_hi v{vKA}, v{u+1} offset:48
    s_branch P1_KVWD""")
    vP = vSXo
    KT = Reg("a", 128, 4); PT = Reg("a", 132, 4)
    QPOLL = opt.get("qpoll", 0)
    CW = opt.get("cw", 1)
    CA, CB = Reg("a", 136, 4), Reg("a", 140, 4)
    vDA, vDB = vSWa, vKo
    def hookS8(ph, f, BG):
        if ph == 0 and CW:
            put(f, 1, [f"s_lshl_b32 s{sT2}, s2, 2", f"s_add_u32 s{sT2}, s{sT2}, s{sW}", f"s_mul_i32 s{sT3}, s{sT2}, 7"])
            L_ = [f"v_lshrrev_b32 v{u}, 3, {vL}", f"v_and_b32 v{u+1}, 7, {vL}", f"v_lshlrev_b32 v{u+1}, 4, v{u+1}",
                  f"v_add_u32 v{u+2}, s{sT3}, v{u}", f"v_and_b32 v{u+3}, 1, v{u+2}", f"v_lshrrev_b32 v{u+2}, 1, v{u+2}",
                  f"v_lshl_add_u32 v{vDA}, v{u+2}, 8, v{u+1}", f"v_mul_u32_u24 v{vDB}, {CW_SZ}, v{u+3}", f"v_add_u32 v{vDA}, v{vDA}, v{vDB}",
                  f"v_lshl_add_u32 v{u+2}, v{u+2}, 11, v{u+1}", f"v_lshl_add_u32 v{u+2}, v{u+3}, 10, v{u+2}",
                  f"v_cmp_gt_u32 vcc, 56, {vL}", f"v_mov_b32 v{u+3}, {HUGE}", f"v_add_u32 v{u+2}, 384, v{u+2}",
                  f"v_cndmask_b32 v{u+2}, v{u+3}, v{u+2}, vcc", f"v_cndmask_b32 v{vDA}, v{u+3}, v{vDA}, vcc"]
            for k, l in enumerate(L_): put(f, 2 + k // 2, l)
            put(f, 10, [f"s_mov_b32 s{S_KV}, s{P_WD}", f"s_mov_b32 s{S_KV+1}, s{P_WD+1}", f"s_mov_b32 s{S_KV+2}, {3584*2048}"])
            put(f, 12, VM(f"buffer_load_dwordx4 {CA}, v{u+2}, {srd(S_KV)}, 0 offen", "CL"))
            L_ = [f"v_mul_u32_u24 v{vDB}, {CW_SZ}, v{u}", f"v_add_u32 v{vDB}, v{vDB}, v{u+1}", f"v_lshl_add_u32 v{u+2}, v{u}, 10, v{u+1}",
                  f"v_cmp_gt_u32 vcc, 16, {vL}", f"s_lshl_b32 s{sT3}, s{sT2}, 11", f"s_add_u32 s{sT3}, s{sT3}, 384",
                  f"v_cndmask_b32 v{u+2}, v{u+3}, v{u+2}, vcc", f"v_cndmask_b32 v{vDB}, v{u+3}, v{vDB}, vcc"]
            for k, l in enumerate(L_): put(f, 13 + k // 2, l)
            put(f, 17, [f"s_mov_b32 s{S_KV}, s{P_WO}", f"s_mov_b32 s{S_KV+1}, s{P_WO+1}", f"s_mov_b32 s{S_KV+2}, {1024*2048}"])
            put(f, 19, VM(f"buffer_load_dwordx4 {CB}, v{u+2}, {srd(S_KV)}, s{sT3} offen", "CL"))
            put(f, 20, [f"s_lshl_b32 s{sCWb}, s{sT2}, 8", f"s_add_u32 s{sCWb}, s{sCWb}, {CW_OFF + 3584*256}", f"s_mov_b32 s{sCWa}, {CW_OFF}"])
        if ph == 0 and QPOLL:
            for r in range(4): put(f, 2 + r, f"v_mov_b32 v{u+r}, -1")
            put(f, 5, [f"s_lshl_b32 s{sKVst}, s{sRB}, 5", f"s_add_u32 s{sKVst}, s{sKVst}, s{sCB}", f"s_lshl_b32 s{sKVst}, s{sKVst}, 2"])
            put(f, 7, [f"s_add_u32 s{sKVst}, s{sKVst}, s{sW}", f"s_lshl_b32 s{sKVst}, s{sKVst}, 12", f"s_add_u32 s{sKVst}, s{sKVst}, {QF4_OFF}"])
            for r in range(4): put(f, [13, 15, 21, 23][r], VM(f"buffer_store_dwordx4 v[{u}:{u+3}], {vL16}, {srd(S_WS)}, s{sKVst} offen offset:{r*1024} {SC1}", "QP"))
        if ph == 0:
            put(f, 25, dbgsrd)
            put(f, 21, [f"s_lshl_b32 s{sT2}, s{sW}, 10", f"s_add_u32 s{sT2}, s{sT2}, {PSC}"]); put(f, 23, f"v_add_u32 v{vP}, s{sT2}, {vL16}")
            put(f, 27, kvaddr)
        if ph == 1:
            put(f, 3, f"ds_write_b128 v{vP}, {sacc}")
            put(f, 5, VM(nload, "N"))
            put(f, 11, f"v_xor_b32 v{vP}, 0x800, v{vP}")
            for r in range(4): put(f, 13 + 2*r, f"v_accvgpr_read_b32 v{u+r}, {sacc[r]}")
    def hookS9(ph, f, BG):
        if ph == 0 and CW:
            put(f, 5, [Need(["CL"]), VM(f"buffer_store_dwordx4 {CA}, v{vDA}, {srd(S_WS)}, s{sCWa} offen {SC1}", "CS")])
            put(f, 13, VM(f"buffer_store_dwordx4 {CB}, v{vDB}, {srd(S_WS)}, s{sCWb} offen {SC1}", "CS"))
        if ph == 0:
            put(f, 1, f"ds_read_b128 {PT}, v{vP}")
            put(f, 11, "s_waitcnt lgkmcnt(5)")
            for r in range(4): put(f, 11 + 2*r, f"v_accvgpr_read_b32 v{vFA}, {PT[r]}"); put(f, 12 + 2*r, f"v_add_f32 v{u+r}, v{u+r}, v{vFA}")
            put(f, 21, f"v_cvt_pk_bf16_f32 v{u}, v{u}, v{u+1}"); put(f, 23, f"v_cvt_pk_bf16_f32 v{u+1}, v{u+2}, v{u+3}")
            put(f, 27, kvwr)
            put(f, 29, f"v_lshrrev_b32 v{vP}, 3, {vL}"); put(f, 31, f"v_and_b32 v{vFA}, 7, {vL}")
            put(f, 35, f"v_lshlrev_b32 v{vFA}, 4, v{vFA}"); put(f, 37, f"v_lshl_add_u32 v{vP}, v{vP}, 8, v{vFA}")
            put(f, 41, [f"s_bfe_u32 s{sT2}, s{sCB}, 0x10001", f"s_lshl_b32 s{sT2}, s{sT2}, 7"])
            put(f, 43, f"v_add_u32 v{vP}, s{sT2}, v{vP}")
            put(f, 44, f"v_add_u32 v{vKA}, {KR}, v{vP}")
        if ph == 1:
            put(f, 3, f"ds_read_b128 {KT}, v{vKA}")
            put(f, 5, [f"s_lshl_b32 s{sKVst}, s{sRB}, 3", f"s_lshr_b32 s{sT2}, s{sCB}, 2", f"s_add_u32 s{sKVst}, s{sKVst}, s{sT2}"])
            put(f, 7, [f"s_lshl_b32 s{sKVst}, s{sKVst}, 1", f"s_and_b32 s{sT2}, s{sCB}, 1", f"s_add_u32 s{sKVst}, s{sKVst}, s{sT2}"])
            put(f, 11, [f"s_lshl_b32 s{sKVst}, s{sKVst}, 11", f"s_add_u32 s{sKVst}, s{sKVst}, {KV_OFF}", f"s_lshl_b32 s{sEfl}, s{sRB}, 5"])
            put(f, 13, [f"s_add_u32 s{sEfl}, s{sEfl}, s{sCB}", f"s_lshl_b32 s{sEfl}, s{sEfl}, 2", f"s_add_u32 s{sEfl}, s{sEfl}, {FL_E}"])
            put(f, 15, [f"s_cmp_eq_u32 s{sW}, 0", f"s_cselect_b32 s{sKVst}, s{sKVst}, {HUGE}", f"s_cselect_b32 s{sEfl}, s{sEfl}, {HUGE}"])
            put(f, 19, f"v_mul_u32_u24 v{vFA}, {FL_ES}, {vL}")
            put(f, 21, ["s_waitcnt lgkmcnt(9)", VM(f"buffer_store_dwordx4 {KT}, v{vP}, {srd(S_WS)}, s{sKVst} offen {SC1}", "KS")])
    def hookS10(ph, f, BG):
        if ph == 1:
            put(f, 27, [Need(["KS", "N"]), f"v_readfirstlane_b32 s{sNonce}, v{vN}", f"s_cmp_eq_u32 s{sNonce}, 0", "s_cbranch_scc1 P1_SLOWN", "P1_NOK:",
                       "s_mov_b64 exec, 0xff", VM(f"buffer_store_dword v{vN}, v{vFA}, {srd(S_WS)}, s{sEfl} offen sc1", "EF"), "s_mov_b64 exec, -1", "s_nop 2"])
    sKVo, sM0 = sL + 3, sL + 4
    S_KVD = S_C
    vE = Reg("v", 28, 4)
    epoll = f"buffer_load_dwordx4 {vE}, {vL16}, {srd(S_WS)}, s{sEfl} offen sc1"
    def kvdma0(slotoff):
        L = []
        for e in range(8):
            pre = []
            if e == 0: pre = [f"s_add_u32 m0, s{sM0}, {slotoff}"]
            if e == 4: pre = [f"s_add_u32 m0, m0, 4096", f"s_add_u32 s{sKVo}, s{sKVo}, 4096"]
            L.append((pre, VM(f"buffer_load_dwordx4 {vL16}, {srd(S_KVD)}, s{sKVo} offen offset:{(e&3)*1024} {SC1} lds", "KV")))
        return L
    def hookS14(ph, f, BG):
        if ph == 0:
            put(f, 5, [f"s_bfe_u32 s{sEfl}, s2, 0x30003", f"s_mul_i32 s{sEfl}, s{sEfl}, {FL_ES}", f"s_add_u32 s{sEfl}, s{sEfl}, {FL_E}"])
            put(f, 9, VM(epoll, "N"))
            put(f, 11, [f"s_mov_b32 s{S_KVD}, s{P_WS}", f"s_mov_b32 s{S_KVD+1}, s{P_WS+1}", f"s_mov_b32 s{S_KVD+2}, {KV_OFF + 262144}"])
            put(f, 13, [f"s_lshl_b32 s{sM0}, s{sW}, 13", f"s_add_u32 s{sKVo}, s{sM0}, {KV_OFF}"])
    def echeck():
        return [f"v_xor_b32 {vE[0]}, {vE[0]}, v{vN}", f"v_xor_b32 {vE[1]}, {vE[1]}, v{vN}", f"v_xor_b32 {vE[2]}, {vE[2]}, v{vN}", f"v_xor_b32 {vE[3]}, {vE[3]}, v{vN}",
                f"v_or3_b32 {vE[0]}, {vE[0]}, {vE[1]}, {vE[2]}", f"v_or_b32 {vE[0]}, {vE[0]}, {vE[3]}", f"v_cmp_eq_u32 vcc, 0, {vE[0]}", "s_nop 0", "s_cmp_eq_u64 vcc, -1"]
    def hookS15(ph, f, BG):
        dg = [5, 11, 17, 23, 29, 35, 41, 46]
        if ph == 0: put(f, 1, [Need(["N"])] + echeck() + ["s_cbranch_scc0 P1_SLOWE", "P1_EOK:"])
        if ph == 0:
            for k, (pre, d) in enumerate(kvdma0(32768*ph)):
                if pre: put(f, dg[k] - 1, pre)
                put(f, dg[k], d)
            put(f, 47, f"s_add_u32 s{sKVo}, s{sKVo}, {32768 - 4096}")
    Ls = step(0, cpfm='rep') + step(1, lim=8)
    Ls = resolve_waits(Ls)
    if PEEL:
        S0 = resolve_waits(step(0, first=True), pro_hist); S1 = resolve_waits(step(1), pro_hist + S0)
        pro_hist = pro_hist + S0 + S1
    Lp = resolve_waits(step(lim=14, cpfm='rep'))
    S8 = resolve_waits(step(hook=hookS8, cpfm='adv'), Ls); S9 = resolve_waits(step(hook=hookS9), Ls + S8); S10 = resolve_waits(step(hook=hookS10), S8 + S9)
    S14 = resolve_waits(step(dma=False, hook=hookS14, cpfm='advld'), Lp); S15 = resolve_waits(step(dma=False, last=True, hook=hookS15), Lp + S14)
    probs += verify_waits(pro_hist + Ls, len(pro_hist), "pro->Ls")
    probs += verify_waits(S9 + S10 + Lp, len(S9 + S10), "S10->Lp")
    if PEEL: A.ext(S0); A.ext(S1)
    A(".p2align 6\nP1_LS:")
    A.ext(Ls); A("s_cbranch_scc1 P1_LS")
    A.ext(S8); A.ext(S9); A.ext(S10)
    A("s_branch P1_LP"); A.ext(ool.lines)
    A(".p2align 6\nP1_LP:")
    A.ext(Lp); A("s_cbranch_scc1 P1_LP")
    A.ext(S14); A.ext(S15)
    probs += check_hazards(A.lines, "p1") + check_hazards(Ls + Ls, "ls") + check_hazards(Lp + Lp, "lp")
    slow1 = Asm()
    slow1(f"""P1_SLOWN:
    s_mov_b32 s{sT2}, {SPIN_MAX}
    P1_SLOWN_L:
    {nload}
    s_waitcnt vmcnt(0)
    v_readfirstlane_b32 s{sNonce}, v{vN}
    s_cmp_lg_u32 s{sNonce}, 0
    s_cbranch_scc1 P1_NOK
    s_sleep 4
    s_sub_u32 s{sT2}, s{sT2}, 1
    s_cmp_lg_u32 s{sT2}, 0
    s_cbranch_scc1 P1_SLOWN_L
    s_endpgm
    P1_SLOWE:
    s_mov_b32 s{sT0}, {SPIN_MAX}
    P1_SLOWE_L:
    {epoll}
    s_waitcnt vmcnt(0)""")
    slow1.ext(echeck())
    slow1(f"""s_cbranch_scc1 P1_EOK
    s_sleep 4
    s_sub_u32 s{sT0}, s{sT0}, 1
    s_cmp_lg_u32 s{sT0}, 0
    s_cbranch_scc1 P1_SLOWE_L
    s_endpgm""")

    va = Alloc("v", 3, 256)
    vCur = va.get(1); vNxt = va.get(1); vZero = va.get(1); vNon = va.get(1); vQP = va.get(1)
    T = va.get(12, 4)
    S = [va.get(16, 4) for _ in range(2)]
    P = [va.get(8, 4) for _ in range(2)]
    O = [va.get(16, 4) for _ in range(2)]
    Lc = [va.get(4, 4) for _ in range(2)]
    SCL = va.get(8, 4)
    acc3 = [[va.get(4, 4) for j in range(8)] for i in range(4)]
    vW3o = va.get(1); vW3a = [va.get(1) for _ in range(4)]; vPF = va.get(1); vG = va.get(2, 2); vFl = va.get(4, 4)
    NEG = [Reg("v", acc3[0][0].base + 16*k, 16) for k in range(2)]
    aa = Alloc("a", 0, 180)
    RX = [[aa.get(4, 4) for j in range(8)] for s in range(4)]
    Q = [[aa.get(4, 4) for t in range(2)] for ab in range(2)]
    K = [[aa.get(4, 4) for t in range(2)] for b in range(2)]
    V = [[aa.get(4, 4) for t in range(2)] for b in range(2)]
    ONES = aa.get(4, 4)
    RW = [[Reg("a", 220 + 16*s + 4*i, 4) for i in range(4)] for s in range(2)]
    QXB = 98304
    W3B = 98304

    E = Asm()
    E.ext(ts.at("p1end"))
    sO = sL + 10
    sC = sL + 1
    sQf = sL + 9
    tA = [Reg("v", 20, 4), Reg("v", 28, 4)]
    def hmath(pairs, dst):
        L = []
        for Gx, U in pairs:
            for r in range(4): L.append(f"v_max_f32 {Gx[r]}, 0, {Gx[r]}")
        for Gx, U in pairs:
            for r in (0, 2): L.append(f"v_pk_mul_f32 {Gx.sub(r,2)}, {Gx.sub(r,2)}, {U.sub(r,2)}")
        for k, (Gx, U) in enumerate(pairs):
            L.append(f"v_cvt_pk_bf16_f32 {dst[2*k]}, {Gx[0]}, {Gx[1]}"); L.append(f"v_cvt_pk_bf16_f32 {dst[2*k+1]}, {Gx[2]}, {Gx[3]}")
        return L
    gl = Asm()
    gl(f"""s_mov_b32 s{S_A}, s{P_X}
    s_mov_b32 s{S_A+1}, s{P_X+1}
    s_mov_b32 s{S_A+2}, 0x400000
    s_mov_b32 s{S_B}, s{P_GW}
    s_mov_b32 s{S_B+1}, s{P_GW+1}
    s_mov_b32 s{S_B+2}, 2048
    s_lshl_b32 s{sT2}, s{sRB}, 5
    s_add_u32 s{sT2}, s{sT2}, s{sCB}
    s_lshl_b32 s{sT2}, s{sT2}, 2
    s_add_u32 s{sT2}, s{sT2}, s{sW}
    s_lshl_b32 s{sT2}, s{sT2}, 12""")
    for h in range(2): gl(f"buffer_load_dwordx4 {GWa.sub(4*h,4)}, {vL16}, {srd(S_B)}, 0 offen offset:{h*1024}")
    for r in range(2):
        for h in range(2):
            gl(f"buffer_load_dwordx4 {GXa[r].sub(4*h,4)}, {vL16}, {srd(S_A)}, s{sT2} offen offset:{r*2048 + h*1024}")
    def merge(mf, items, rate):
        out = []; k = 0
        for g, m_ in enumerate(mf):
            out.append(m_)
            n = 0
            while k < len(items) and items[k][0] <= g and n < rate: out.append(items[k][1]); k += 1; n += 1
        if k < len(items): out.append("s_nop 7")
        return out + [x[1] for x in items[k:]]
    mm1 = lambda i, j: f"v_mfma_f32_16x16x32_bf16 {acc[i][j]}, {RA[1][i]}, {RB[1][j]}, {acc[i][j]}"
    kv1 = []
    for pre, d in kvdma0(32768): kv1 += pre + (["s_nop 0"] if pre else []) + [d]
    kv1.append(f"s_add_u32 s{sKVo}, s{sKVo}, {32768 - 4096}")
    head = Asm()
    head(f"""s_lshr_b32 s{sT0}, s{sW}, 1
    s_and_b32 s{sT1}, s{sW}, 1
    s_lshl_b32 s{sO}, s{sRB}, 4
    s_lshl_b32 s{sT2}, s{sT0}, 3
    s_add_u32 s{sO}, s{sO}, s{sT2}
    s_lshl_b32 s{sO}, s{sO}, 11
    s_add_u32 s{sO}, s{sO}, {AF2_OFF}
    s_lshr_b32 s{sT2}, s{sCB}, 2
    s_mul_i32 s{sO+1}, s{sT2}, 14
    s_and_b32 s{sT3}, s{sCB}, 3
    s_lshl_b32 s{sT3}, s{sT3}, 2
    s_add_u32 s{sO+1}, s{sO+1}, s{sT3}
    s_add_u32 s{sO+1}, s{sO+1}, s{sT1}""")
    E(f"s_cmp_eq_u32 s{sIsB}, 1\ns_cbranch_scc1 P1_EPIB")
    LAG = 5
    it = [(0, l) for l in head.lines]
    it += [(0, l) for l in (f"s_add_u32 s{sO+1}, s{sO+1}, s{sT1}", f"s_mul_i32 s{sO+1}, s{sO+1}, {AFS2}", f"s_add_u32 s{sO}, s{sO}, s{sO+1}", f"s_add_u32 s{sO+2}, s{sO}, {AFS2}")]
    it += [(0, l) for l in gl.lines]
    kq = list(kv1)
    for j in range(8):
        g_ = 8*j + 7 + LAG
        Tt = tA[j % 2]
        L_ = hmath([(acc[0][j], acc[4][j]), (acc[1][j], acc[5][j])], acc[4][j])
        L_ += [f"v_accvgpr_read_b32 {Tt[r]}, {acc[7][j][r]}" for r in range(4)]
        L_ += hmath([(acc[2][j], acc[6][j]), (acc[3][j], Tt)], acc[6][j])
        it += [(g_, l) for l in L_]
        while kq:
            x_ = kq.pop(0); it.append((g_, x_))
            if is_vmem(x_): break
    it += [(64, l) for l in kq]
    EA = merge([mm1(i, j) for j in range(8) for i in range(8)], it, opt.get("rateA", 5))
    E.ext(EA)
    E("s_branch P1_EPID\nP1_EPIB:")
    hb = Asm()
    hb(f"""s_mul_i32 s{sO+1}, s{sO+1}, {AFS2}
    s_add_u32 s{sO}, s{sO}, s{sO+1}
    s_mov_b32 s{sO+2}, {HUGE}
    s_lshl_b32 s{sQf}, s{sRB}, 3
    s_add_u32 s{sQf}, s{sQf}, s{sT2}
    s_lshl_b32 s{sQf}, s{sQf}, 2
    s_lshl_b32 s{sT1}, s{sT1}, 1
    s_add_u32 s{sT2}, s{sQf}, s{sT1}
    s_lshl_b32 s{sT2}, s{sT2}, 1
    s_add_u32 s{sT2}, s{sT2}, s{sT0}
    s_lshl_b32 s{sT2}, s{sT2}, 13
    s_add_u32 s{sT0}, s{sT2}, {QF4_OFF}
    s_add_u32 s{sT1}, s{sT0}, 4096
    s_add_u32 s{sT2}, s{sT0}, 16384
    s_add_u32 s{sT3}, s{sT0}, {16384 + 4096}
    s_add_u32 s{sQf}, s{sQf}, s{sW}
    s_lshl_b32 s{sQf}, s{sQf}, 7
    s_add_u32 s{sQf}, s{sQf}, {FL_Q}
    s_mov_b32 s{sC}, {f2u(QSCALE):#x}
    s_mov_b32 s{sC+1}, {f2u(QSCALE):#x}""")
    it = [(0, l) for l in gl.lines + head.lines + hb.lines]
    for j in range(8):
        g_ = 4*j + 3 + LAG
        for hh in range(2):
            F0, F1 = acc[4 + 2*hh][j], acc[5 + 2*hh][j]
            L_ = []
            if F1.f == "a":
                Tt = tA[j % 2]
                L_ += [f"v_accvgpr_read_b32 {Tt[r]}, {F1[r]}" for r in range(4)]
                F1 = Tt
            for F in (F0, F1):
                for r in (0, 2): L_.append(f"v_pk_mul_f32 {F.sub(r,2)}, {F.sub(r,2)}, s[{sC}:{sC+1}]")
            L_ += [f"v_cvt_pk_bf16_f32 {F0[0]}, {F0[0]}, {F0[1]}", f"v_cvt_pk_bf16_f32 {F0[1]}, {F0[2]}, {F0[3]}",
                   f"v_cvt_pk_bf16_f32 {F0[2]}, {F1[0]}, {F1[1]}", f"v_cvt_pk_bf16_f32 {F0[3]}, {F1[2]}, {F1[3]}",
                   f"buffer_store_dwordx4 {F0}, {vL16}, {srd(S_WS)}, s{sT0 + 2*hh + (j>>2)} offen offset:{(j&3)*1024} {SC1}"]
            it += [(g_, l) for l in L_]
    EB = merge([mm1(i, j) for j in range(8) for i in range(4, 8)] + [mm1(i, j) for j in range(8) for i in range(4)], it, opt.get("rateB", 4))
    E.ext(EB)
    E.ext(kv1)
    for j in range(8):
        E.ext(hmath([(acc[0][j], acc[2][j]), (acc[1][j], acc[3][j])], acc[4][j]))
    E(f"""s_waitcnt vmcnt(24)
    s_branch P1_EPIE
    P1_EPID:
    s_waitcnt vmcnt(8)
    P1_EPIE:""")
    probs += check_hazards(S15[-20:] + EA, "epiA") + check_hazards(S15[-20:] + E.lines[E.lines.index("P1_EPIB:"):], "epiB")
    E.ext(ts.at("kvdone"))
    vAF = T[9]
    def hstore(reg, so, j):
        return [VM(f"buffer_store_dwordx4 {reg}, {vAF}, {srd(S_WS)}, s{so} offen offset:{(j&1)*2048} {SC1}", "H")] + ([f"s_add_u32 s{so}, s{so}, 4096"] if j & 1 else [])
    hst0 = [hstore(acc[4][j], sO, j) for j in range(8)]
    hst1a = [hstore(acc[6][j], sO + 2, j) for j in range(8)]
    A.ext(E.lines)

    B = Asm()
    sCur, sNext, sFree, sFl = sL, sL + 1, sL + 2, sL + 5
    B(f"""v_mov_b32 {vNon}, s{sNonce}
    v_mov_b32 {vZero}, 0
    v_bfe_u32 {T[0]}, {vL}, 4, 1
    v_and_b32 {T[1]}, 15, {vL}
    v_lshrrev_b32 {T[2]}, 5, {vL}
    v_lshl_add_u32 {T[1]}, {T[2]}, 4, {T[1]}
    v_lshlrev_b32 {T[1]}, 4, {T[1]}
    v_lshl_add_u32 {vQP}, {T[0]}, 10, {T[1]}""")
    S_PF, sPF = S_E, 8
    pfop = [VM(f"buffer_load_dword a252, {vPF}, {srd(S_PF)}, s{sPF} offen", "PF"), f"s_add_u32 s{sPF}, s{sPF}, 0x100000"] if PF else []
    W32 = NEG[0]; X32 = NEG[1]; GX = S[0].sub(0, 8); GW = S[0].sub(8, 8)
    R2 = range(2)
    for k in range(8): B(f"v_accvgpr_read_b32 {GW[k]}, {GWa[k]}")
    for k in range(8): B(f"v_lshlrev_b32 {W32[2*k]}, 16, {GW[k]}\nv_and_b32 {W32[2*k+1]}, 0xffff0000, {GW[k]}")
    B(f"v_mov_b32 {T[8]}, 0x3f803f80")
    for r in R2:
        for k in range(8): B(f"v_accvgpr_read_b32 {GX[k]}, {GXa[r][k]}")
        for k in range(8): B(f"v_lshlrev_b32 {X32[2*k]}, 16, {GX[k]}\nv_and_b32 {X32[2*k+1]}, 0xffff0000, {GX[k]}")
        for k in range(8): B(f"v_pk_mul_f32 {X32.sub(2*k,2)}, {X32.sub(2*k,2)}, {W32.sub(2*k,2)}")
        for k in range(8): B(f"v_cvt_pk_bf16_f32 {X32[k]}, {X32[2*k]}, {X32[2*k+1]}")
        B(f"v_mov_b32 {T[4+r]}, 0")
        for k in range(8): B(f"v_dot2_f32_bf16 {T[4+r]}, {X32[k]}, {T[8]}, {T[4+r]}")
    B("s_nop 2")
    for sh in (8, 4, 2, 1):
        for r in R2: B(f"v_add_f32_dpp {T[4+r]}, {T[4+r]}, {T[4+r]} row_ror:{sh} row_mask:0xf bank_mask:0xf")
        B("s_nop 0")
    for sw in ("16", "32"):
        for r in R2: B(f"v_mov_b32 {T[8+r]}, {T[4+r]}")
        B("s_nop 0")
        for r in R2: B(f"v_permlane{sw}_swap_b32 {T[4+r]}, {T[8+r]}")
        for r in R2: B(f"v_add_f32 {T[4+r]}, {T[4+r]}, {T[8+r]}")
    for r in R2: B(f"v_cvt_pk_bf16_f32 {T[4+r]}, {T[4+r]}, {T[4+r]}")
    for r in R2: B(f"v_and_b32 {T[4+r]}, 0xffff0000, {T[4+r]}")
    for r in R2: B(f"v_mul_f32 {T[4+r]}, {f2u(-LOG2E):#x}, {T[4+r]}")
    for r in R2: B(f"v_exp_f32 {T[4+r]}, {T[4+r]}")
    B("s_nop 0")
    for r in R2: B(f"v_add_f32 {T[4+r]}, 1.0, {T[4+r]}")
    for r in R2: B(f"v_rcp_f32 {T[4+r]}, {T[4+r]}")
    B("s_nop 0")
    for r in R2: B(f"v_cvt_pk_bf16_f32 {T[4+r]}, {T[4+r]}, {T[4+r]}")
    for r in R2: B(f"v_and_b32 {T[4+r]}, 0xffff0000, {T[4+r]}")
    B(f"""s_cmp_eq_u32 s{sIsB}, 0
    s_cbranch_scc1 P2_NOQF
    s_waitcnt vmcnt(8)
    s_mov_b64 exec, 1
    buffer_store_dword {vNon}, {vZero}, {srd(S_WS)}, s{sQf} offen sc1
    s_mov_b64 exec, -1
    P2_NOQF:
    s_lshl_b32 s{sT2}, s{sRB}, 5
    s_add_u32 s{sT2}, s{sT2}, s{sCB}
    s_lshl_b32 s{sT2}, s{sT2}, 2
    s_add_u32 s{sT2}, s{sT2}, s{sW}
    s_lshl_b32 s{sT2}, s{sT2}, 3
    s_add_u32 s{sT2}, s{sT2}, {G_OFF}
    s_mov_b64 exec, 1
    buffer_store_dwordx2 {T.sub(4,2)}, {vZero}, {srd(S_WS)}, s{sT2} offen sc1
    s_mov_b64 exec, -1""")
    for ab in range(2):
        for r in range(16): B(f"v_mov_b32 {O[ab][r]}, 0")
        for r in range(4): B(f"v_mov_b32 {Lc[ab][r]}, 0")
    for r in range(8): B(f"v_mov_b32 {P[1][r]}, 0")
    for t in range(2):
        for r in range(4): B(f"v_accvgpr_write_b32 {V[1][t][r]}, 0")
    vIdx = T[10]
    B(f"""v_bfe_u32 {T[4]}, {vL}, 2, 1
    v_cmp_eq_u32 vcc, 0, {T[4]}
    v_mov_b32 {T[5]}, 0x3f803f80
    v_mov_b32 {vCur}, {vL16}
    v_cndmask_b32 {T[4]}, 0, {T[5]}, vcc
    v_cndmask_b32 {T[5]}, {T[5]}, 0, vcc
    v_add_u32 {vNxt}, 32768, {vL16}
    v_and_b32 {vIdx}, 1, {vL}
    v_mul_u32_u24 {vIdx}, 0xaaaa, {vIdx}
    v_add_u32 {vIdx}, 0x4444, {vIdx}
    v_cmp_lt_u32 vcc, 23, {vL}
    v_add_u32 {vAF}, 128, {vL16}
    s_nop 0
    v_cndmask_b32 {vAF}, {vL16}, {vAF}, vcc""".replace(f"v_cndmask_b32 {T[5]}, {T[5]}, 0, vcc", f"v_xor_b32 {T[5]}, {T[5]}, {T[4]}"))
    for r in range(4): B(f"v_accvgpr_write_b32 {ONES[r]}, {T[4 + (r >> 1)]}")
    def lsum(o): return f"v_smfmac_f32_16x16x64_bf16 {Lc[o]}, {ONES}, {P[o]}, {vIdx}"
    B(f"""s_mov_b32 s{sCur}, 0
    s_mov_b32 s{sNext}, 32768
    s_mov_b32 s{sFree}, 65536
    s_add_u32 s{sL+14}, s{sM0}, 65536
    s_lshl_b32 s{sFl}, s{sRB}, 2
    s_add_u32 s{sFl}, s{sFl}, s{sW}
    s_lshl_b32 s{sFl}, s{sFl}, 5
    s_add_u32 s{sFl}, s{sFl}, s{sCB}
    s_lshl_b32 s{sFl}, s{sFl}, 2
    s_add_u32 s{sFl}, s{sFl}, {FL_H}
    s_lshl_b32 s{sT1}, s{sRB}, 3
    s_lshr_b32 s{sT2}, s{sCB}, 2
    s_add_u32 s{sT1}, s{sT1}, s{sT2}
    s_lshl_b32 s{sT1}, s{sT1}, 2
    s_and_b32 s{sT2}, s{sW}, 2
    s_add_u32 s{sT1}, s{sT1}, s{sT2}
    s_bfe_u32 s{sT2}, s{sCB}, 0x10001
    s_add_u32 s{sT1}, s{sT1}, s{sT2}
    s_lshl_b32 s{sT1}, s{sT1}, 7
    s_add_u32 s{sT1}, s{sT1}, {FL_Q}
    s_lshl_b32 s{sQf}, s{sRB}, 5
    s_add_u32 s{sQf}, s{sQf}, s{sCB}
    s_lshl_b32 s{sQf}, s{sQf}, 2
    s_add_u32 s{sQf}, s{sQf}, s{sW}
    s_lshl_b32 s{sQf}, s{sQf}, 12
    s_add_u32 s{sQf}, s{sQf}, {QF4_OFF}""")
    def check(regs):
        if len(regs) == 4:
            return [f"v_xor_b32 {r}, {r}, {vNon}" for r in regs] + [f"v_or3_b32 {regs[0]}, {regs[0]}, {regs[1]}, {regs[2]}", f"v_or_b32 {regs[0]}, {regs[0]}, {regs[3]}",
                    f"v_cmp_eq_u32 vcc, 0, {regs[0]}", "s_nop 0", "s_cmp_eq_u64 vcc, -1"]
        L = [f"v_cmp_eq_u32 vcc, s{sNonce}, {regs[0]}"]
        if len(regs) > 1: L += [f"v_cmp_eq_u32 s[{sT2}:{sT3}], s{sNonce}, {regs[1]}", "s_nop 0", f"s_and_b64 vcc, vcc, s[{sT2}:{sT3}]"]
        else: L += ["s_nop 0"]
        return L + ["s_cmp_eq_u64 vcc, -1"]
    def spin(label, load, regs, back=None):
        L = [f"s_mov_b32 s{sT0}, {SPIN_MAX}", f"{label}_L:", load, "s_waitcnt vmcnt(0)"] + check(regs)
        L += [f"s_cbranch_scc1 {back or label + '_OK'}", f"s_sleep {4 if back else 1}", f"s_sub_u32 s{sT0}, s{sT0}, 1",
              f"s_cmp_lg_u32 s{sT0}, 0", f"s_cbranch_scc1 {label}_L", "s_endpgm"]
        if not back: L.append(f"{label}_OK:")
        return L
    B.ext(ts.at("poll0"))
    qld = lambda dst: [f"buffer_load_dwordx4 {dst(ab, t)}, {vQP}, {srd(S_WS)}, s{sQf} offen offset:{ab*2048 + t*512} {SC1}" for ab in range(2) for t in range(2)]
    if QPOLL:
        QV = S[1]
        B(f"s_mov_b32 s{sT0}, {SPIN_MAX}\nP2_QL:")
        B(f"buffer_load_dword {T[8]}, {vZero}, {srd(S_WS)}, s{sT1} offen sc1")
        B.ext(qld(lambda ab, t: QV.sub(8*ab + 4*t, 4)))
        B("s_waitcnt vmcnt(0)")
        B(f"v_max3_u32 {T[9]}, {QV[0]}, {QV[1]}, {QV[2]}")
        for k in range(3, 15, 2): B(f"v_max3_u32 {T[9]}, {QV[k]}, {QV[k+1]}, {T[9]}")
        B(f"""v_max_u32 {T[9]}, {QV[15]}, {T[9]}
        v_cmp_eq_u32 vcc, -1, {T[9]}
        v_readfirstlane_b32 s{sT2}, {T[8]}
        s_nop 0
        s_cmp_eq_u64 vcc, 0
        s_cbranch_scc1 P2_QOK
        s_cmp_eq_u32 s{sT2}, s{sNonce}
        s_cbranch_scc1 P2_QRE
        s_sub_u32 s{sT0}, s{sT0}, 1
        s_cmp_lg_u32 s{sT0}, 0
        s_cbranch_scc1 P2_QL
        s_endpgm
        P2_QRE:""")
        B.ext(qld(lambda ab, t: QV.sub(8*ab + 4*t, 4)))
        B("s_waitcnt vmcnt(0)\nP2_QOK:")
        B.ext(ts.at("poll1"))
        for ab in range(2):
            for t in range(2):
                for r in range(4): B(f"v_accvgpr_write_b32 {Q[ab][t][r]}, {QV[8*ab + 4*t + r]}")
    else:
        B.ext(spin("P2_POLL", f"buffer_load_dword {T[8]}, {vZero}, {srd(S_WS)}, s{sT1} offen sc1", [T[8]]))
        B.ext(ts.at("poll1"))
        B.ext(qld(lambda ab, t: Q[ab][t]))
    B("s_barrier")
    def kvdma(slot, tag):
        L = []
        for e in range(8):
            pre = []
            if e == 0: pre = [f"s_add_u32 m0, s{slot}, s{sM0}"]
            if e == 4: pre = [f"s_add_u32 s{sT0}, s{slot}, s{sM0}", f"s_add_u32 m0, s{sT0}, 4096", f"s_add_u32 s{sKVo}, s{sKVo}, 4096"]
            L.append((pre, VM(f"buffer_load_dwordx4 {vL16}, {srd(S_KVD)}, s{sKVo} offen offset:{(e&3)*1024} {SC1} lds", tag)))
        return L
    post_dma = f"s_add_u32 s{sKVo}, s{sKVo}, {32768 - 4096}"
    B(f"""ds_read_b128 {K[0][0]}, {vCur}
    ds_read_b128 {K[0][1]}, {vCur} offset:1024
    ds_read_b128 {V[0][0]}, {vCur} offset:2048
    ds_read_b128 {V[0][1]}, {vCur} offset:3072""")
    hist = list(S15) + list(EA) + list(B.lines)
    B(f"""s_waitcnt vmcnt(0) lgkmcnt(0)
    v_mfma_f32_32x32x16_bf16 {S[0]}, {K[0][0]}, {Q[0][0]}, 0
    v_mfma_f32_32x32x16_bf16 {S[0]}, {K[0][1]}, {Q[0][1]}, {S[0]}""")
    B.ext(ts.at("att"))
    B("s_nop 7\ns_nop 3")
    probs += check_hazards(B.lines, "p2pro")
    A.ext(B.lines)

    NS = 4
    S_AF, S_W3, S_OUT = S_A, S_B, S_D
    sMT, sNT = sL + 6, sL + 7
    sAo = sL + 8
    sSo3 = sL + 9
    sM3 = sL + 13
    sWo, sWoN = 30, 15
    sX3 = 16
    sSh, sAdv, sAdv28 = 10, 18, 19
    setup3 = Asm()
    MAP48 = opt.get("map48", 0)
    if MAP48:
        setup3(f"""s_and_b32 s{sT0}, s{sRB}, 4
        s_add_u32 s{sMT}, s{sRB}, s{sT0}
        s_bfe_u32 s{sT0}, s{sCB}, 0x10003
        s_lshl2_add_u32 s{sMT}, s{sT0}, s{sMT}
        s_lshr_b32 s{sT0}, s{sCB}, 4
        s_and_b32 s{sT1}, s{sCB}, 7
        s_lshl3_add_u32 s{sNT}, s{sT0}, s{sT1}""")
    else:
        setup3(f"""s_and_b32 s{sT0}, s{sCB}, 1
        s_lshl_b32 s{sMT}, s{sRB}, 1
        s_add_u32 s{sMT}, s{sMT}, s{sT0}
        s_lshr_b32 s{sT0}, s{sCB}, 3
        s_lshl_b32 s{sT0}, s{sT0}, 2
        s_bfe_u32 s{sT1}, s{sCB}, 0x20001
        s_add_u32 s{sNT}, s{sT0}, s{sT1}""")
    setup3(f"""s_lshl_b32 s{sT0}, s{sNT}, 7
    s_add_u32 s{S_W3}, s{P_WD}, s{sT0}
    s_addc_u32 s{S_W3+1}, s{P_WD+1}, 0
    s_sub_u32 s{S_W3+2}, {3584*2048}, s{sT0}
    s_add_u32 s{sWo}, s{P_WO}, s{sT0}
    s_addc_u32 s{sWo+1}, s{P_WO+1}, 0
    s_sub_u32 s{sWoN}, {1024*2048}, s{sT0}
    s_mov_b32 s{sSh}, 11
    s_mov_b32 s{S_AF+2}, 16384
    s_mov_b32 s{S_OUT}, s{P_OUT}
    s_mov_b32 s{S_OUT+1}, s{P_OUT+1}
    s_mov_b32 s{S_OUT+2}, 0x400000
    s_mul_i32 s{sAo}, s{sW}, {AFS2}
    s_lshl_b32 s{sT0}, s{sMT}, 14
    s_add_u32 s{sAo}, s{sAo}, s{sT0}
    s_add_u32 s{sAo}, s{sAo}, {AF2_OFF}
    s_add_u32 s{S_AF}, s{P_WS}, s{sAo}
    s_addc_u32 s{S_AF+1}, s{P_WS+1}, 0
    s_mov_b32 s{sAo}, 4096
    s_mov_b32 s{sAo+1}, 8192
    s_mov_b32 s{sX3}, 12288
    s_lshl_b32 s{sM3}, s{sW}, 14
    s_add_u32 s{sM3}, s{sM3}, {W3B}""")
    for e in range(1, 4): setup3(f"s_mov_b32 s{sSo3+e}, {e*16384 - e*1024}")
    if CW:
        setup3(f"""s_and_b32 s{sT0}, s{sNT}, 7
        s_cmp_lg_u32 s{sT0}, 3
        s_cbranch_scc1 P3_NOCW
        s_lshr_b32 s{sT0}, s{sNT}, 3
        s_mul_i32 s{sT0}, s{sT0}, {CW_SZ}
        s_add_u32 s{sT0}, s{sT0}, {CW_OFF}
        s_add_u32 s{S_W3}, s{P_WS}, s{sT0}
        s_addc_u32 s{S_W3+1}, s{P_WS+1}, 0
        s_mov_b32 s{S_W3+2}, {3584*256}
        s_add_u32 s{sWo}, s{S_W3}, {3584*256}
        s_addc_u32 s{sWo+1}, s{S_W3+1}, 0
        s_mov_b32 s{sWoN}, {1024*256}
        s_mov_b32 s{sSh}, 8
        s_mov_b32 s{sSo3+1}, 1024
        s_mov_b32 s{sSo3+2}, 2048
        s_mov_b32 s{sSo3+3}, 3072
        P3_NOCW:""")
    setup3(f"""s_lshl_b32 s{sAdv}, 128, s{sSh}
    s_mul_i32 s{sAdv28}, s{sAdv}, 28""")
    setup3v = Asm()
    setup3v(f"""v_lshrrev_b32 {T[0]}, 3, {vL}
    v_lshrrev_b32 {T[1]}, 4, {vL}
    v_lshlrev_b32 {T[2]}, 1, {T[1]}
    v_and_b32 {T[3]}, 7, {vL}
    v_xor_b32 {T[2]}, {T[2]}, {T[3]}
    v_lshlrev_b32 {T[2]}, 4, {T[2]}
    s_lshl_b32 s{sT0}, s{sW}, 5
    v_add_u32 {T[0]}, s{sT0}, {T[0]}
    v_lshl_add_u32 {vW3o}, {T[0]}, s{sSh}, {T[2]}
    s_lshl_b32 s{sT0}, s{sAdv}, 2
    v_add_u32 {T[11]}, s{sT0}, {vW3o}
    v_lshrrev_b32 {T[0]}, 2, {vL}
    v_bfe_u32 {T[1]}, {vL}, 3, 2
    v_and_b32 {T[2]}, 3, {vL}
    v_lshlrev_b32 {T[2]}, 3, {T[2]}
    v_lshl_add_u32 {T[2]}, {T[0]}, 7, {T[2]}
    v_add_u32 {T[2]}, s{sM3}, {T[2]}""")
    for i in range(4): setup3v(f"v_xor_b32 {T[3]}, {i}, {T[1]}\nv_lshl_add_u32 {vW3a[i]}, {T[3]}, 5, {T[2]}")
    setup3v(f"""s_lshr_b32 s{sT0}, s{sMT}, 1
    s_lshl_b32 s{sT0}, s{sT0}, 9
    s_sub_u32 s{sT0}, s{sT0}, 512
    s_lshl_b32 s{sT1}, s{sRB}, 9
    v_mov_b32 {T[4]}, s{sT0}
    v_mov_b32 {T[5]}, s{sT1}
    v_cmp_gt_u32 vcc, 32, {vL}
    v_and_b32 {T[6]}, 31, {vL}
    v_lshlrev_b32 {T[6]}, 2, {T[6]}
    v_cndmask_b32 {T[4]}, {T[4]}, {T[5]}, vcc
    v_add_u32 {T[4]}, {T[4]}, {vL16}
    v_lshlrev_b32 {T[5]}, 2, {vL}
    v_and_b32 {T[7]}, 15, {vL}
    v_lshlrev_b32 {T[7]}, 2, {T[7]}""")
    zero3 = [f"v_mov_b32 {acc3[i][j][r]}, 0" for i in range(4) for j in range(8) for r in range(4)]
    def w3dma(slot, e):
        m0 = f"s_add_u32 m0, s{sM3}, {slot*4096}"
        return m0, VM(f"buffer_load_dwordx4 {vW3o}, {srd(S_W3)}, {'0' if e == 0 else 's%d' % (sSo3+e)} offen offset:{e*1024} {SC1 if CW else ''} lds", ("W", slot))
    def xload(slot, j):
        return VM(f"buffer_load_dwordx4 {RX[slot][j]}, {vAF}, {srd(S_AF)}, {['0', 's%d' % sAo, 's%d' % (sAo+1), 's16'][j>>1]} offen offset:{(j&1)*2048} {opt.get('xflag', SC1)}", ("X", slot, j >> 2))
    adv3 = [f"v_add_u32 {vW3o}, s{sAdv}, {vW3o}", f"s_add_u32 s{S_AF}, s{S_AF}, {4*AFS2}\ns_addc_u32 s{S_AF+1}, s{S_AF+1}, 0"]
    def wread(slot, s):
        return [f"ds_read_b64_tr_b16 {RW[s][i].sub(2*hf,2)}, {vW3a[i]} offset:{slot*4096 + hf*2048}" for i in range(4) for hf in range(2)]
    def gm(s, j, i, first=False): return f"v_mfma_f32_16x16x32_bf16 {acc3[i][j]}, {RW[s&1][i]}, {RX[s][j]}, {0 if first else acc3[i][j]}"

    def att_parts(ab, kq, vp):
        o = ab ^ 1
        M = [f"v_mfma_f32_32x32x16_bf16 {S[o]}, {K[kq][0]}, {Q[o][0]}, 0",
             f"v_mfma_f32_32x32x16_bf16 {S[o]}, {K[kq][1]}, {Q[o][1]}, {S[o]}",
             f"v_mfma_f32_32x32x16_bf16 {O[o]}, {V[vp][0]}, {P[o].sub(0,4)}, {O[o]}",
             lsum(o),
             f"v_mfma_f32_32x32x16_bf16 {O[o]}, {V[vp][1]}, {P[o].sub(4,4)}, {O[o]}",
             None]
        ex = [f"v_exp_f32 {S[ab][r]}, {S[ab][r]}" for r in range(16)]
        cv = [f"v_cvt_pk_bf16_f32 {P[ab][r]}, {S[ab][2*r]}, {S[ab][2*r+1]}" for r in range(8)]
        return M, ex, cv
    def phase_plain(ab, kq, vp, extra):
        M, ex, cv = att_parts(ab, kq, vp)
        vl = []
        for r in range(16):
            vl.append(ex[r])
            if r >= 3 and r % 2 == 1: vl.append(cv[(r - 3)//2])
        vl.append(cv[7])
        mpos = opt.get("mpos", [0, 4, 9, 14, 17, 21])
        out = []; mi = 0
        for i, v in enumerate(vl):
            while mi < 6 and mpos[mi] == i:
                if M[mi]: out.append(M[mi])
                out.extend(extra.get(mi, [])); mi += 1
            out.append(v)
        return out
    def phase_merged(ab, kq, vp, G8, extra, tail):
        M, ex, cv = att_parts(ab, kq, vp)
        order = [M[0], G8[0], M[1], G8[1], G8[2], M[2], G8[3], M[3], G8[4], M[4], G8[5], M[5], G8[6], G8[7]]
        e, c = ex, cv
        fill = [[e[0], e[1], e[2]], [e[3]], [e[4], e[5], e[6]], [c[0], c[1]], [e[7]], [e[8], e[9], e[10]], [c[2], c[3]], [c[4]],
                [e[11]], [e[12], e[13], e[14]], [e[15]], [], [c[5], c[6]], [c[7]]]
        if opt.get("lpk"):
            pk = [f"v_pk_add_f32 {Lc[ab].sub(2,2)}, {Lc[ab].sub(2,2)}, {S[ab].sub(2*r,2)}" for r in range(8)]
            order[7] = pk[0]; order[11] = pk[1]
            fill[3] = fill[3] + [pk[2]]; fill[6] = fill[6] + [pk[3]]; fill[8] = fill[8] + [pk[4]]; fill[12] = fill[12] + [pk[5]]; fill[13] = [pk[6], pk[7]]
        if opt.get("lnone"): order[7] = "s_nop 0"; order[11] = "s_nop 0"
        out = []
        for k in range(14):
            if order[k]: out.append(order[k])
            out.extend(extra.get(k, [])); out.extend(fill[k]); out.extend(tail.get(k, []))
        return out
    sX3 = 16
    NP = opt.get("np", 4)
    PFSW = 6
    sKM = sL + 14
    def chunk(kind, hook=None, first=False, pfok=True, wpre=False):
        out = []
        mer = kind == "merged"
        for pi in range(16):
            tau, ab = pi >> 1, pi & 1
            kp = tau & 1
            ex = {}; tl = {}; pre = []
            if ab == 0:
                src = (vCur, (tau+1)*4096) if tau < 7 else (vNxt, 0)
                ld = [f"ds_read_b128 {K[kp^1][t]}, {src[0]} offset:{src[1] + t*1024}" for t in range(2)]
                if tau == 7: put(ex, 0, [Need(["KV"], "lgkmcnt(0)"), "s_barrier"])
            else:
                src = (vCur, (tau+1)*4096 + 2048) if tau < 7 else (vNxt, 2048)
                ld = [f"ds_read_b128 {V[kp^1][t]}, {src[0]} offset:{src[1] + t*1024}" for t in range(2)]
                pre = ["s_waitcnt lgkmcnt(0)"]
            kvd = VM(f"buffer_load_dwordx4 {vL16}, {srd(S_KVD)}, s{sKVo} offen offset:{(pi&3)*1024} {SC1} lds", "KV")
            if wpre:
                kvd = VM(f"buffer_load_dwordx4 {T[11]}, {srd(S_KVD)}, {'0' if pi & 3 == 0 else 's%d' % (sSo3 + (pi & 3))} offen offset:{(pi&3)*1024} {SC1 if CW else ''} lds", "PW")
            rotate = [f"s_mov_b32 s{sT0}, s{sCur}", f"s_mov_b32 s{sCur}, s{sNext}", f"s_mov_b32 s{sNext}, s{sFree}", f"s_mov_b32 s{sFree}, s{sT0}",
                      f"s_add_u32 s{sKM}, s{sT0}, s{sM0}", f"s_add_u32 s{sIt}, s{sIt}, 1"]
            upd = [f"v_add_u32 {vCur}, s{sCur}, {vL16}", f"v_add_u32 {vNxt}, s{sNext}, {vL16}"]
            if not mer:
                put(ex, 1, ld[0]); put(ex, 2, ld[1])
                if pi < 8:
                    lateput = [(4, f"s_mov_b32 m0, s{sKM}"), (5, kvd)]
                    if pi == 3: lateput += [(5, f"s_add_u32 s{sKVo}, s{sKVo}, 4096"), (5, f"s_add_u32 s{sKM}, s{sKM}, 4096")]
                    for g_, x_ in lateput: put(ex, g_, x_)
                    if pi == 7: put(ex, 5, post_dma)
                if pi == 15:
                    for k in range(3): put(ex, 3 + k, rotate[2*k:2*k+2])
            else:
                s, q = pi >> 2, pi & 3
                G8 = [gm(s, 2*q + jj, i, first and s == 0) for jj in range(2) for i in range(4)]
                if q == 0: pre = [Need([("W", (s+1) % NS), ("X", s, 1)], "lgkmcnt(0)")]
                elif ab == 1 and not trace: pre = ["s_waitcnt lgkmcnt(2)"]
                m0, d = w3dma(s, q)
                rd = wread((s+1) % NS, (s+1) & 1)
                ms = opt.get("ms", 3)
                if ms == 1:
                    put(tl, 1, ld[0]); put(tl, 4, ld[1])
                    if q < 3: put(tl, 7, rd[2*q]); put(ex, 13, rd[2*q+1])
                    else: put(tl, 3, rd[2*q]); put(tl, 7, rd[2*q+1])
                    put(ex, 8, xload(s, 2*q)); put(ex, 13, xload(s, 2*q+1))
                    put(ex, 11, m0); put(ex, 12, d)
                    kvs = (9, 10, tl)
                elif ms == 0:
                    put(ex, 2, ld[0]); put(ex, 5, ld[1]); put(ex, 3, rd[2*q]); put(ex, 10, rd[2*q+1])
                    put(ex, 8, xload(s, 2*q)); put(ex, 13, xload(s, 2*q+1)); put(ex, 0, m0); put(ex, 1, d)
                    kvs = (7, 9, ex)
                    if ab == 1 and q: pre = ["s_waitcnt lgkmcnt(1)" if not trace else "s_waitcnt lgkmcnt(0)"]
                elif ms == 2:
                    put(ex, 1, ld[0]); put(ex, 4, ld[1])
                    if q < 3: put(ex, 10, rd[2*q]); put(ex, 12, rd[2*q+1])
                    else: put(ex, 6, rd[2*q]); put(ex, 7, rd[2*q+1])
                    put(ex, 2, m0); put(ex, 3, d); put(ex, 8, xload(s, 2*q)); put(ex, 13, xload(s, 2*q+1))
                    kvs = (4, 5, ex)
                elif ms == 3:
                    put(ex, 0, ld[0]); put(ex, 2, ld[1])
                    if q < 3: put(ex, 9, rd[2*q]); put(ex, 12, rd[2*q+1])
                    else: put(ex, 5, rd[2*q]); put(ex, 9, rd[2*q+1])
                    put(ex, 3, m0); put(ex, 4, d); put(ex, 8, xload(s, 2*q)); put(ex, 13, xload(s, 2*q+1))
                    kvs = (10, 11, ex)
                if q == 3: put(ex, 13, adv3[0])
                if pi < 8: put(ex, kvs[0], f"s_mov_b32 m0, s{sKM}"); put(kvs[2], kvs[1], kvd)
                if pi in (4,): put(ex, 1, f"s_add_u32 s{sKVo}, s{sKVo}, 4096"); put(ex, 2, f"s_add_u32 s{sKM}, s{sKM}, 4096")
                if pi == 8: put(ex, 1, post_dma)
                if wpre and pi in (4, 8): put(ex, 0, f"v_add_u32 {T[11]}, s{sAdv}, {T[11]}")
                if q == 0 and s > 0: put(ex, 5, adv3[1])
                if pi == 15:
                    for k in range(6): put(ex, 2 + k, rotate[k])
                if pi == 9 and PF:
                    put(ex, 11, pfop[0])
                    put(ex, 6, [f"s_cmp_eq_u32 s{sIt}, {PFSW}", f"s_cselect_b32 s{sPF}, 0, s{sPF}", f"s_cselect_b32 s{S_PF}, s{P_WO}, s{S_PF}",
                                f"s_cselect_b32 s{S_PF+1}, s{P_WO+1}, s{S_PF+1}", f"s_cselect_b32 s{S_PF+2}, 0x200000, s{S_PF+2}"])
                if pi == 10 and PF: put(ex, 1, pfop[1])
                if pi == 12: put(ex, 11, cp(False))
            if pi % 8 == 6: put(ex, 5, tr_issue())
            if pi % 8 == 7: pre = pre + tr_commit()
            if hook: hook(pi, ex, pre)
            if mer: out += pre + phase_merged(ab, kp ^ ab, kp ^ 1 ^ ab, G8, ex, tl)
            else: out += pre + phase_plain(ab, kp ^ ab, kp ^ 1 ^ ab, ex)
        if mer: out += adv3[1:]
        out += upd
        return out

    dflt = {3: dict(hs=[1, 1], gs=23, hf=26, hp=36, hc=39, pf=[25, 28, 41]), 4: dict(hs=[2, 1], gs=32, hf=44, hp=50, hc=53, pf=[34, 38, 44, 56])}[NP]
    dflt.update(opt.get("sched", {}))
    HSN, HSD = dflt["hs"]; GS, HF, HPg, HC, PFP = dflt["gs"], dflt["hf"], dflt["hp"], dflt["hc"], dflt["pf"]
    assert len(PFP) == NP
    hst = hst0 + hst1a
    hph = [dflt.get("hs0", 0) + n*HSN//HSD for n in range(16)]
    assert hph[-1] < GS and (GS & 15) >= 0
    hpoll = f"buffer_load_dwordx4 {vFl}, {T[4]}, {srd(S_WS)}, s{sT1} offen sc1"
    LASTP = 16*NP - 1
    wph = [GS + 1 + k // 2 for k in range(16)]
    NXP = opt.get("nxp", 32)
    xph = [HC + 1 + (k * (LASTP - HC)) // NXP for k in range(NXP)] + [-1] * (32 - NXP)
    gloads = [VM(f"buffer_load_dword {vG[ab]}, {T[6]}, {srd(S_WS)}, s{sT2} offen offset:{ab*128} sc1", "G") for ab in range(2)]
    gloads += [VM(f"buffer_load_dword {SCL[j]}, {T[7]}, {srd(S_WS)}, s{sT3} offen offset:{j*64} sc1", "G") for j in range(8)]
    def hookM0(pi, ex, pre):
        n = NXP + pi
        if n < 32:
            s_, j_ = divmod(n, 8)
            put(ex, 6, VM(f"buffer_load_dwordx4 {RX[s_][j_]}, {vL16}, {srd(S_AF)}, s{sX3 + (j_>>2)} offen offset:{(j_&3)*1024} {SC1}", ("X", s_, j_ >> 2)))
        if pi >= 11: put(ex, 6, gloads[2*(pi - 11):2*(pi - 10)])
    def mkhook(base):
        def hook(pi, ex, pre):
            gp = base + pi
            k = 0
            for n in range(16):
                if hph[n] == gp: put(ex, [3, 0][k], hst[n]); k += 1
            if gp == GS:
                put(ex, 0, setup3.lines[:15]); put(ex, 1, setup3.lines[15:]); put(ex, 3, setup3v.lines)
                if PF:
                    put(ex, 3, [f"s_lshl_b32 s{sT1}, s2, 2", f"s_add_u32 s{sT1}, s{sT1}, s{sW}", f"s_lshl_b32 s{sT1}, s{sT1}, 10",
                        f"v_lshrrev_b32 {vPF}, 3, {vL}", f"v_lshlrev_b32 {vPF}, 7, {vPF}", f"v_add_u32 {vPF}, s{sT1}, {vPF}",
                        f"s_mov_b32 s{S_PF}, s{P_WD}", f"s_mov_b32 s{S_PF+1}, s{P_WD+1}", f"s_mov_b32 s{S_PF+2}, {3584*2048}", f"s_mov_b32 s{sPF}, 0x100000"])
            if gp in PFP and PF: put(ex, 2, pfop)
            if gp in (9, 16*NP - 22): put(ex, 2, cp())
            k = 0
            for n in range(16):
                if wph[n] == gp:
                    s_, e_ = divmod(n, 4)
                    m0, d = w3dma(s_, e_)
                    if k == 0: put(ex, 0, m0)
                    put(ex, 2*k + 1, [d] + ([adv3[0]] if e_ == 3 else [])); k += 1
            if gp == HF:
                put(ex, 2, [Need(["H"]), "s_mov_b64 exec, 1", VM(f"buffer_store_dword {vNon}, {vZero}, {srd(S_WS)}, s{sFl} offen sc1", "HF"), "s_mov_b64 exec, -1", "s_nop 2"])
            if gp == HPg: put(ex, 3, [f"s_mov_b32 s{sT1}, {FL_H}", VM(hpoll, "HP")])
            if gp == HC:
                put(ex, 2, [Need(["HP"])] + check([vFl[k] for k in range(4)]) + ["s_cbranch_scc0 P3_SLOWH", "P3_HOK:"])
                put(ex, 3, [f"s_lshl_b32 s{sT2}, s{sRB}, 10", f"s_lshl_b32 s{sT3}, s{sW}, 8", f"s_add_u32 s{sT2}, s{sT2}, s{sT3}", f"s_add_u32 s{sT2}, s{sT2}, {G_OFF}",
                            f"s_lshl_b32 s{sT3}, s{sMT}, 9", f"s_add_u32 s{sT3}, s{sT3}, {G_OFF}"])
            k = 0
            for n in range(32):
                if xph[n] == gp:
                    s_, j_ = divmod(n, 8)
                    put(ex, [0, 2, 3, 4][k], [xload(s_, j_)] + (adv3[1:] if j_ == 7 else [])); k += 1
            if gp == LASTP:
                put(ex, 5, [Need([("W", 0)])] + wread(0, 0))
                if NXP == 24: put(ex, 5, [f"s_mov_b32 s{sX3}, s{sAo}", f"s_mov_b32 s{sX3+1}, s{sAo+1}"] + adv3[1:])
        return hook
    def retag(ch, cur, need):
        out = []
        for l in ch:
            if isinstance(l, VM) and l.tag == "KV": out.append(VM(l, cur))
            elif isinstance(l, Need) and "KV" in l.tags: out.append(Need([need], l.extra))
            else: out.append(l)
        return out
    hist = [VM(l, "KV-1") if isinstance(l, VM) and l.tag == "KV" else l for l in hist]
    CP = []; hh_ = list(hist)
    for c in range(NP):
        ch = resolve_waits(retag(chunk("plain", mkhook(16*c)), f"KV{c}", f"KV{c-1}"), hh_)
        CP.append(ch); hh_ += ch
    mA = retag(chunk("merged"), "KVa", "KVb"); mB = retag(chunk("merged"), "KVb", "KVa")
    mres = resolve_waits(mA, mB)
    M = mres
    M0 = resolve_waits(retag(chunk("merged", hookM0, first=True), "KVb", f"KV{NP-1}"), hh_)
    probs += verify_waits(hh_ + M0 + M, len(hh_ + M0), "M0->M")
    WPRE = opt.get("wpre", 1)
    if WPRE:
        MW = resolve_waits(retag(chunk("merged", wpre=True), "-", "KVa"), M)
        probs += verify_waits(M + MW + [l for l in MW if not (isinstance(l, Need) and "KVa" in l.tags)], len(M + MW), "MW->MW")
    mab = opt.get("mabl", "")
    def abl(L):
        out = []
        for l in L:
            if "x" in mab and isinstance(l, VM) and isinstance(l.tag, tuple) and l.tag[0] == "X": continue
            if "w" in mab and isinstance(l, VM) and isinstance(l.tag, tuple) and l.tag[0] == "W": continue
            if "t" in mab and l.startswith("ds_read_b64_tr"): continue
            if "k" in mab and l.startswith("ds_read_b128"): continue
            if "s" in mab and l.startswith(("s_add", "s_mov", "s_cmp", "s_cselect")) and f"s{sIt}" not in l and "exec" not in l: continue
            if "n" in mab and isinstance(l, Need): out.append("s_waitcnt lgkmcnt(0)" if l.extra else "s_nop 0"); continue
            if "g" in mab and l.startswith("v_mfma_f32_16x16") and "a[2" in l: continue
            out.append(l)
        return out
    Me = abl(M); M0e = abl(M0)
    D = Asm()
    D(f"s_mov_b32 s{sIt}, 0")
    for c in range(NP): D.ext(ts.at(f"c{c}")); D.ext(CP[c])
    D.ext(ts.at("m")); D.ext(M0e)
    D(".p2align 6\nP2_MLOOP:")
    D.ext(Me)
    if WPRE:
        D(f"""s_cmp_lt_u32 s{sIt}, 6
        s_cbranch_scc1 P2_MLOOP
        s_mov_b32 s{S_KVD}, s{sWo}
        s_mov_b32 s{S_KVD+1}, s{sWo+1}
        s_mov_b32 s{S_KVD+2}, s{sWoN}""")
        if CPF: D(cpa)
        D("P2_MWLOOP:")
        D.ext(abl(MW))
        D(f"s_cmp_lt_u32 s{sIt}, 8\ns_cbranch_scc1 P2_MWLOOP")
        probs += check_hazards(M + MW + MW, "mw")
        M = MW
    else:
        D(f"s_cmp_lt_u32 s{sIt}, 8\ns_cbranch_scc1 P2_MLOOP")
    probs += check_hazards(B.lines[-8:] + sum(CP, []) + M0 + M + M, "att")
    A.ext(D.lines)

    C = Asm()
    C.ext(ts.at("attend"))
    C(f"""v_mfma_f32_32x32x16_bf16 {O[1]}, {V[1][0]}, {P[1].sub(0,4)}, {O[1]}
    {lsum(1)}
    v_mfma_f32_32x32x16_bf16 {O[1]}, {V[1][1]}, {P[1].sub(4,4)}, {O[1]}""")
    C(f"v_mov_b32 {T[1]}, 0")
    for r in range(16): C(f"v_fmac_f32 {T[1]}, 0, {O[0][r]}")
    for r in range(16): C(f"v_fmac_f32 {T[1]}, 0, {O[1][r]}")
    for ab in range(2): C(f"v_add_f32 {Lc[ab][0]}, {Lc[ab][0]}, {Lc[ab][1]}")
    C(f"""s_mov_b32 s{sT0}, {f2u(2.0**-60):#x}
    s_mov_b32 s{sT1}, {f2u(2.0**100):#x}
    v_cmp_le_f32 vcc, s{sT0}, {Lc[0][0]}
    v_cmp_le_f32 s[{S_C}:{S_C+1}], s{sT0}, {Lc[1][0]}
    s_nop 1
    s_and_b64 vcc, vcc, s[{S_C}:{S_C+1}]
    v_cmp_ge_f32 s[{S_C}:{S_C+1}], s{sT1}, {Lc[0][0]}
    v_cmp_ge_f32 s[{sT2}:{sT3}], s{sT1}, {Lc[1][0]}
    s_nop 1
    s_and_b64 vcc, vcc, s[{S_C}:{S_C+1}]
    s_and_b64 vcc, vcc, s[{sT2}:{sT3}]
    v_cmp_eq_f32 s[{S_C}:{S_C+1}], 0, {T[1]}
    s_nop 1
    s_and_b64 vcc, vcc, s[{S_C}:{S_C+1}]
    s_cmp_eq_u64 vcc, -1""")
    if opt.get("force_fallback"): C("s_branch P2_FALLBACK")
    C("s_cbranch_scc0 P2_FALLBACK")
    C("P2_FINISH:")
    for ab in range(2): C(f"v_rcp_f32 {T[2*ab]}, {Lc[ab][0]}")
    C(f"""s_add_u32 s{sT0}, s{sCB}, 112
    s_mul_i32 s{sT0}, s{sT0}, {AFS2}
    s_lshl_b32 s{sT1}, s{sRB}, 15
    s_add_u32 s{sT0}, s{sT0}, s{sT1}
    s_lshl_b32 s{sT1}, s{sW}, 13
    s_add_u32 s{sT0}, s{sT0}, s{sT1}
    s_add_u32 s{sT0}, s{sT0}, {AF2_OFF}
    s_add_u32 s{sT1}, s{sT0}, 4096
    v_and_b32 {vFl[1]}, 0x400, {vQP}
    v_add_u32 {vFl[1]}, {vFl[1]}, {vQP}
    v_and_b32 {vFl[2]}, 40, {vL}
    v_cmp_eq_u32 vcc, 40, {vFl[2]}
    v_add_u32 {vFl[2]}, 128, {vFl[1]}
    s_nop 0
    v_cndmask_b32 {vFl[1]}, {vFl[1]}, {vFl[2]}, vcc""")
    for ab in range(2): C(f"v_mul_f32 {T[2*ab]}, {T[2*ab]}, {vG[ab]}")
    for ab in range(2):
        for r in range(0, 16, 2):
            C(f"v_pk_mul_f32 {O[ab].sub(r,2)}, {O[ab].sub(r,2)}, {T.sub(2*ab,2)} op_sel_hi:[1,0]")
        for r in range(8): C(f"v_cvt_pk_bf16_f32 {S[ab][r]}, {O[ab][2*r]}, {O[ab][2*r+1]}")
        for c in range(2):
            C(VM(f"buffer_store_dwordx4 {S[ab].sub(4*c,4)}, {vFl[1+c]}, {srd(S_WS)}, s{sT0+ab} offen offset:{c*512} {SC1}", "O"))
    for j in range(8): C(f"v_sub_f32 {SCL[j]}, 1.0, {SCL[j]}")
    for j in range(8): C(f"v_cvt_pk_bf16_f32 {SCL[j]}, {SCL[j]}, {SCL[j]}")
    for j in range(8): C(f"v_and_b32 {SCL[j]}, 0xffff0000, {SCL[j]}")
    sFC = sL
    C(f"""s_lshl_b32 s{sFC}, s{sMT}, 8
    s_add_u32 s{sFC}, s{sFC}, {FL_O}
    s_add_u32 s{sFl}, s{sFl}, {FL_O - FL_H}""")
    C.ext(ts.at("tail"))
    EPI_IL = opt.get("epi_il", 1)
    groups = []
    if EPI_IL:
        n0 = next(k for k, l in enumerate(C.lines) if l.startswith("v_mov_b32") )
        rest = C.lines[n0:]; C.lines = C.lines[:n0]
        k0 = next(k for k, l in enumerate(rest) if l.startswith("s_mov_b32"))
        k1 = rest.index("P2_FINISH:")
        groups = [[l] for l in rest[:k0]] + [rest[k0:k1 + 1]] + [[l] for l in rest[k1 + 1:]]
    vPa = [O[0][i] for i in range(4)]; vPb = [O[0][4 + i] for i in range(4)]
    def pread(st, dst):
        base = vPb if st < 2 else vPa
        return [f"ds_read_b64_tr_b16 {dst[i].sub(2*hf,2)}, {base[i]} offset:{(st & 1)*4096 + hf*2048}" for i in range(4) for hf in range(2)]
    def p3iter(hook=None, now=False):
        out = []
        for s in range(NS):
            m = [gm(s, j, i) for j in range(8) for i in range(4)]
            f = {}
            if opt.get("t3", 1) == 0:
                f[-1] = [Need([("W", (s+1) % NS), ("X", s, 1)], "lgkmcnt(0)"), w3dma(s, 0)[0]]
                dgap = [0, 6, 14, 22]
                for e in range(4): put(f, dgap[e], w3dma(s, e)[1])
                for k, r in enumerate(wread((s + 1) % NS, (s+1) & 1)): put(f, 1 + 3*k, r)
                for j in range(8): put(f, 4*j + 3 + (1 if j < 7 else 0), xload(s, j))
            else:
                f[-1] = [Need([("X", s, 0)], "lgkmcnt(0)"), w3dma(s, 0)[0]]
                dgap = opt.get("t3w", [0, 2, 6, 10])
                if now: f[-1] = f[-1][:1]
                else:
                    for e in range(4): put(f, dgap[e], w3dma(s, e)[1])
                put(f, 15, Need([("X", s, 1)]))
                rg0 = opt.get("t3r", 18)
                if not (now and s == 3): put(f, rg0 - 1, Need([("W", (s+1) % NS)]))
                for k, r in enumerate(pread(0, RW[0]) if (now and s == 3) else wread((s + 1) % NS, (s+1) & 1)): put(f, rg0 + k + (1 if rg0 + k >= 20 else 0) + (1 if rg0 + k >= 23 else 0), r)
                for j in range(8): put(f, 4*j + 3 + (1 if j < 7 else 0), xload(s, j))
            put(f, 31, adv3)
            put(f, 28, tr_issue())
            if trace: f[-1] = f[-1][:1] + tr_commit() + f[-1][1:]
            if hook: hook(s, f)
            out += interleave(m, f)
        return out
    opoll = f"buffer_load_dword {vFl[0]}, {T[5]}, {srd(S_WS)}, s{sFC} offen sc1"
    NT = NP - 2
    OFS, OPS = opt.get("oflag_step", 2), opt.get("opoll_step", 4*NT - 1 if NT == 1 else 4*NT - 2)
    def mkT(base):
        def hookT(s, f):
            if base == 0 and s < 2:
                R_ = opt.get("epi_rate", 3)
                for g_ in range(2 if s == 0 else 0, 31):
                    for _ in range(R_):
                        if groups: put(f, g_, groups.pop(0))
                assert s == 0 or not groups
            if base + s == OFS: put(f, 10, [Need(["O"]), "s_mov_b64 exec, 1", VM(f"buffer_store_dword {vNon}, {vZero}, {srd(S_WS)}, s{sFl} offen sc1", "OF"), "s_mov_b64 exec, -1", "s_nop 2"])
            if base + s == OPS: put(f, 26, VM(opoll, "OP"))
            if base + s == 1 and CPF: put(f, 14, [cpa, f"v_min_u32 v0, L_END-{NAME}-4, v0"] + cp(False))
        return hookT
    T5 = []
    for k in range(NT): T5 += resolve_waits(p3iter(mkT(4*k)), M + M + C.lines + T5)
    L3 = resolve_waits(p3iter())
    mid = [Need(["OP"])] + check([vFl[0]]) + ["s_cbranch_scc0 P3_SLOWO", "P3_OOK:",
           f"s_mov_b32 s{S_W3}, s{sWo}", f"s_mov_b32 s{S_W3+1}, s{sWo+1}", f"s_mov_b32 s{S_W3+2}, s{sWoN}",
           f"v_subrev_u32 {vW3o}, s{sAdv28}, {vW3o}", f"s_mov_b32 s{sIt}, 6", "s_barrier",
           f"v_add_u32 {T[0]}, 0x10000, {vL16}", f"v_and_b32 {T[1]}, 15, {vL}", f"v_lshlrev_b32 {T[1]}, 11, {T[1]}", f"v_bfe_u32 {T[2]}, {vL}, 4, 1",
           f"v_lshl_add_u32 {T[1]}, {T[2]}, 5, {T[1]}", f"v_lshrrev_b32 {T[2]}, 5, {vL}", f"v_lshl_add_u32 {T[1]}, {T[2]}, 4, {T[1]}",
           f"s_lshl_b32 s{sT0}, s{sMT}, 18", f"s_lshl_b32 s{sT1}, s{sW}, 16", f"s_add_u32 s{sT0}, s{sT0}, s{sT1}",
           f"s_lshl_b32 s{sT1}, s{sNT}, 7", f"s_add_u32 s{sT0}, s{sT0}, s{sT1}", f"s_add_u32 s{sT1}, s{sT0}, 32768"]
    if WPRE:
        mid += [f"s_lshl_b32 s{sT2}, s{sW}, 13", f"s_add_u32 s{sT2}, s{sT2}, {W3B}"]
        mid += [f"v_subrev_u32 {vPa[i]}, s{sT2}, {vW3a[i]}" for i in range(4)] + [f"v_add_u32 {vPb[i]}, 0x10000, {vPa[i]}" for i in range(4)]
    mid = resolve_waits(mid, T5)
    probs += verify_waits(M + C.lines + T5 + mid + L3, len(M + C.lines + T5 + mid), "T5->L3")
    tail = [f"s_add_u32 s{sIt}, s{sIt}, 1", f"s_cmp_eq_u32 s{sIt}, 8", "s_cbranch_scc1 P3_DONE", "s_nop 7"]
    for i in range(4):
        for j in range(8):
            for r in (0, 2):
                tail.append(f"v_pk_mul_f32 {acc3[i][j].sub(r,2)}, {acc3[i][j].sub(r,2)}, {SCL.sub(j & ~1, 2)} op_sel:[0,{j&1}] op_sel_hi:[1,{j&1}]")
    tail += ["s_nop 0", "s_branch P3_LOOP", "P3_DONE:"]
    probs += check_hazards(M[-30:] + C.lines + T5 + mid + L3 + tail + L3, "tail") + check_hazards(L3 + L3, "l3")
    tab = opt.get("tabl", "")
    def tabl(L):
        out = []
        for l in L:
            if isinstance(l, VM) and isinstance(l.tag, tuple) and l.tag[0].lower() in tab: continue
            if "t" in tab and l.startswith("ds_read_b64_tr"): continue
            if "m" in tab and l.startswith("v_mfma"): continue
            if "a" in tab and l in adv3: continue
            out.append(l)
        return out
    T5 = tabl(T5); L3 = tabl(L3)
    C.ext(T5); C.ext(ts.at("t5end")); C.ext(mid); C.ext(ts.at("l3"))
    if WPRE:
        def hookL7(s, f):
            if s == 0:
                for j in range(8):
                    sc = [f"v_pk_mul_f32 {acc3[i][j].sub(r,2)}, {acc3[i][j].sub(r,2)}, {SCL.sub(j & ~1, 2)} op_sel:[0,{j&1}] op_sel_hi:[1,{j&1}]" for i in range(4) for r in (0, 2)]
                    if j == 0: put(f, -1, sc + ["s_nop 1"])
                    else:
                        for k in range(8): put(f, 4*(j - 1) + k // 3, sc[k])
        L7 = resolve_waits(p3iter(hookL7, now=True), L3 + L3)
        probs += check_hazards(L3 + L7, "l7")
        C.ext(L3); C.ext(tabl(L7)); C.ext(ts.at("l3end"))
        LPREV = L3 + L7
    else:
        C(".p2align 6\nP3_LOOP:")
        C.ext(L3); C.ext(tail); C.ext(ts.at("l3end"))
        LPREV = L3 + L3
    for w in range(3): C(f"s_cmp_eq_u32 s{sW}, {w}\ns_cbranch_scc1 P3_FIN{w}")
    A.ext(C.lines)
    RWF = [RW[0]] + [[Reg("a", 128 + 16*k + 4*i, 4) for i in range(4)] for k in range(3)]
    def fin(w):
        def adr(off): return (vL16, off) if off < 65536 else (T[0], off - 65536)
        own = [2*w, 2*w + 1]
        oth = [j for d in range(1, 4) for j in (2*((w + d) & 3), 2*((w + d) & 3) + 1)]
        mm = lambda s_, j, i: f"v_mfma_f32_16x16x32_bf16 {acc3[i][j]}, {RWF[s_][i]}, {RX[s_][j]}, {acc3[i][j]}"
        FA = opt.get("fa", 2)
        m = [mm(s_, j, i) for s_ in range(FA) for j in oth + own for i in range(4)]
        G0 = 32*FA; PJ = 4*(4 - FA)
        f = {}
        f[-1] = [Need([("X", 0, 1)] + ([] if WPRE else [("W", 1)]), "lgkmcnt(0)")]
        k = 0
        for s_ in (1, 2, 3):
            if s_ > 1 and not WPRE: put(f, k, Need([("W", s_)]))
            for r in (pread(s_, RWF[s_]) if WPRE else [f"ds_read_b64_tr_b16 {RWF[s_][i].sub(2*hf,2)}, {vW3a[i]} offset:{s_*4096 + hf*2048}" for i in range(4) for hf in range(2)]):
                put(f, k, r); k += 1
        for s_ in range(1, FA): put(f, 32*s_ - 1, Need([("X", s_, 1)], "lgkmcnt(0)"))
        put(f, G0 - 1, Need([("X", 3, 1)], "lgkmcnt(0)"))
        if WPRE: put(f, 31, "s_barrier")
        for n, j in enumerate(oth + own):
            m += [mm(s_, j, i) for s_ in range(FA, 4) for i in range(4)]
        for n, j in enumerate(oth):
            d = j >> 1; q = (w - d - 1) & 3
            for i in range(4):
                b_, off = adr((d*3 + q)*8192 + ((j & 1)*4 + i)*1024)
                put(f, G0 + PJ*(n + 1) + 5 + (2 if FA == 1 else 1)*i, f"ds_write_b128 {b_}, {acc3[i][j]} offset:{off}")
        free = [acc3[i][j] for j in oth for i in range(4)]
        g0 = G0 + PJ*7 + 2
        put(f, g0, ["s_waitcnt lgkmcnt(0)", "s_barrier"])
        k = 0
        for q in range(3):
            for jj in range(2):
                for i in range(4):
                    b_, off = adr((w*3 + q)*8192 + (jj*4 + i)*1024)
                    put(f, min(g0 + k // (3 if FA == 1 else 4), 127), f"ds_read_b128 {free[k]}, {b_} offset:{off}"); k += 1
        R = Asm()
        R.ext(resolve_waits(interleave(m, f), LPREV))
        R.ext(ts.at("redw"))
        R("s_nop 3")
        for q in range(3):
            R(f"s_waitcnt lgkmcnt({[15, 8, 0][q] if not ts.on else 0})")
            for jj in range(2):
                for i in range(4):
                    a = acc3[i][2*w+jj]; b = free[q*8 + jj*4 + i]
                    for r in (0, 2): R(f"v_pk_add_f32 {a.sub(r,2)}, {a.sub(r,2)}, {b.sub(r,2)}")
        for jj in range(2):
            for ip in range(2):
                X, Y = acc3[2*ip][2*w+jj], acc3[2*ip+1][2*w+jj]
                Dd = S[0].sub(4*(jj*2+ip), 4)
                R(f"v_cvt_pk_bf16_f32 {Dd[0]}, {X[0]}, {X[1]}\nv_cvt_pk_bf16_f32 {Dd[1]}, {X[2]}, {X[3]}")
                R(f"v_cvt_pk_bf16_f32 {Dd[2]}, {Y[0]}, {Y[1]}\nv_cvt_pk_bf16_f32 {Dd[3]}, {Y[2]}, {Y[3]}")
                R(f"s_nop 1\nv_permlane16_swap_b32 {Dd[0]}, {Dd[2]}\nv_permlane16_swap_b32 {Dd[1]}, {Dd[3]}")
                R(f"buffer_store_dwordx4 {Dd}, {T[1]}, {srd(S_OUT)}, s{sT0+jj} offen offset:{ip*64} {opt.get('outflag', '')}")
        if trace:
            R(f"""s_waitcnt vmcnt(0)
            s_memrealtime s[100:101]
            s_waitcnt lgkmcnt(0)
            s_lshl_b64 exec, 1, s81
            v_mov_b32 v0, s100
            s_mov_b64 exec, -1
            s_lshl_b32 s80, s2, 2
            s_add_u32 s80, s80, s{sW}
            s_lshl_b32 s80, s80, 8
            s_add_u32 s80, s80, {TS_OFF}
            v_lshlrev_b32 {T[3]}, 2, {vL}
            buffer_store_dword v0, {T[3]}, {srd(S_WS)}, s80 offen
            s_waitcnt vmcnt(0) ; TRACE""")
        if opt.get("dbgt"):
            R(f"""s_waitcnt vmcnt(0) lgkmcnt(0)
            s_memrealtime s[100:101]
            s_waitcnt lgkmcnt(0)
            s_mov_b32 s{S_C}, s{P_DBG}
            s_mov_b32 s{S_C+1}, s{P_DBG+1}
            s_mov_b32 s{S_C+2}, 256
            s_mov_b64 exec, 1""")
            for i in range(10):
                R(f"""s_sub_u32 s80, s{82+2*i}, s{sNonce}
                s_add_u32 s80, s80, 1000
                v_mov_b32 {T[3]}, s80
                buffer_atomic_umax {T[3]}, {vZero}, {srd(S_C)}, 0 offen offset:{8 + 4*i}""")
            R("s_waitcnt vmcnt(0)")
        else:
            R.ext(ts.flush(S_WS, sW, S[1].base))
        R("s_endpgm")
        return R
    for w in (3, 0, 1, 2):
        R = fin(w)
        probs += check_hazards(LPREV[-10:] + R.lines, f"fin{w}")
        A(f"P3_FIN{w}:"); A.ext(R.lines)
    A.ext(slow1.lines)
    A("P3_SLOWH:"); A.ext(spin("P3_SH", hpoll, [vFl[k] for k in range(4)], "P3_HOK"))
    A("P3_SLOWO:"); A.ext(spin("P3_SO", opoll, [vFl[0]], "P3_OOK"))

    F = Asm()
    F("P2_FALLBACK:")
    for ab in range(2): F(f"v_mov_b32 {T[ab]}, 0xff800000")
    F(f"s_mov_b32 s{sT0}, {KV_OFF}")
    F("P2_FB1:")
    for t in range(2): F(f"buffer_load_dwordx4 {K[0][t]}, {vL16}, {srd(S_WS)}, s{sT0} offen offset:{t*1024} {SC1}")
    F("s_waitcnt vmcnt(0)")
    for ab in range(2):
        F(f"v_mfma_f32_32x32x16_bf16 {S[ab]}, {K[0][0]}, {Q[ab][0]}, 0\nv_mfma_f32_32x32x16_bf16 {S[ab]}, {K[0][1]}, {Q[ab][1]}, {S[ab]}")
    F("s_nop 15")
    for ab in range(2):
        for r in range(0, 16, 2): F(f"v_max3_f32 {T[ab]}, {S[ab][r]}, {S[ab][r+1]}, {T[ab]}")
    F(f"s_add_u32 s{sT0}, s{sT0}, 4096\ns_cmp_lt_u32 s{sT0}, {KV_OFF + 262144}\ns_cbranch_scc1 P2_FB1")
    for ab in range(2): F(f"v_mov_b32 {T[2+ab]}, {T[ab]}")
    F("s_nop 1")
    for ab in range(2): F(f"v_permlane32_swap_b32 {T[ab]}, {T[2+ab]}")
    for ab in range(2): F(f"v_max_f32 {vFl[ab]}, {T[ab]}, {T[2+ab]}")
    for ab in range(2):
        for r in range(16): F(f"v_mov_b32 {O[ab][r]}, 0")
        for r in range(4): F(f"v_mov_b32 {Lc[ab][r]}, 0")
    F(f"s_mov_b32 s{sT0}, {KV_OFF}")
    F("P2_FB2:")
    for t in range(2): F(f"buffer_load_dwordx4 {K[0][t]}, {vL16}, {srd(S_WS)}, s{sT0} offen offset:{t*1024} {SC1}")
    for t in range(2): F(f"buffer_load_dwordx4 {V[0][t]}, {vL16}, {srd(S_WS)}, s{sT0} offen offset:{2048 + t*1024} {SC1}")
    F("s_waitcnt vmcnt(0)")
    for ab in range(2):
        F(f"v_mfma_f32_32x32x16_bf16 {S[ab]}, {K[0][0]}, {Q[ab][0]}, 0\nv_mfma_f32_32x32x16_bf16 {S[ab]}, {K[0][1]}, {Q[ab][1]}, {S[ab]}")
    F("s_nop 15")
    for ab in range(2):
        for r in range(16): F(f"v_sub_f32 {S[ab][r]}, {S[ab][r]}, {vFl[ab]}")
        for r in range(16): F(f"v_exp_f32 {S[ab][r]}, {S[ab][r]}")
        F("s_nop 0")
        for r in range(8): F(f"v_cvt_pk_bf16_f32 {P[ab][r]}, {S[ab][2*r]}, {S[ab][2*r+1]}")
    F("s_nop 1")
    for ab in range(2):
        for u_ in range(2):
            F(f"v_mfma_f32_32x32x16_bf16 {O[ab]}, {V[0][u_]}, {P[ab].sub(4*u_,4)}, {O[ab]}")
            if u_ == 0: F(lsum(ab))
    F(f"s_add_u32 s{sT0}, s{sT0}, 4096\ns_cmp_lt_u32 s{sT0}, {KV_OFF + 262144}\ns_cbranch_scc1 P2_FB2")
    F("s_nop 15")
    for ab in range(2): F(f"v_add_f32 {Lc[ab][0]}, {Lc[ab][0]}, {Lc[ab][1]}")
    F("s_branch P2_FINISH")
    F("L_END:\ns_endpgm")
    probs += check_hazards(F.lines, "fb")
    A.ext(F.lines)
    for p_ in probs: print("PROBLEM", p_)
    launch = f"; @launch grid=(256,1,1) block=(256,1,1) lds=163840"
    return launch, A.text(), kdesc(NAME, 512, 256)

HDR = open("gated_mix__grouped_kv_mqa__glu_gated_reglu__prompt.s.ref").read().split("; Override launch")[0]
def build(opt=None):
    l, t, d = gen(opt)
    return HDR + l + "\n" + '.amdgcn_target "amdgcn-amd-amdhsa--gfx950"\n.text\n' + t + d
if __name__ == "__main__":
    import sys, json
    out = sys.argv[1] if len(sys.argv) > 1 else "gated_mix__grouped_kv_mqa__glu_gated_reglu__prompt.s"
    opt = json.loads(sys.argv[2]) if len(sys.argv) > 2 else {}
    open(out, "w").write(build(opt))
```

```python
from asmlib import *
from common import *
LOG2E = math.log2(math.e)
NAME = "gated_mix__grouped_kv_mqa__glu_gated_reglu__prompt_kernel"

FL_E = 0x1650000
FL_ES = 4352
FL_Q = 0x1660000
FL_H = 0x1670000
FL_O = 0x1672000
SPIN_MAX = 1 << 20
PW = 7168

def put(f, g, x):
    f.setdefault(g, []).extend(x if isinstance(x, list) else [x])

def gen(opt=None):
    opt = opt or {}
    A = Asm()
    DEF = ["start", "p1", "p1end", "kvdone", "poll0", "poll1", "att", "attend", "tail"]
    tsn = opt.get("ts")
    ts = TSN(DEF if tsn == 1 else tsn, opt.get("tskind", "rt"))
    SC1 = "sc1"
    probs = []
    P_X, P_WQ, P_WK, P_WV, P_WO = 4, 6, 8, 10, 12
    P_WG, P_WU, P_WD, P_GW = 16, 18, 20, 22
    P_OUT, P_DBG, P_WS = 24, 26, 28
    S_WS, S_A, S_B, S_C, S_D, S_E = 32, 36, 40, 44, 48, 52
    sW, sNonce = 56, 57
    sT0, sT1, sT2, sT3 = 58, 59, 60, 61
    sIt, sRB, sCB = 62, 63, 64
    sL = 65
    vL, vL16 = Reg("v", 1, 1), Reg("v", 2, 1)
    def srd(b): return f"s[{b}:{b+3}]"

    A(f".globl {NAME}\n.p2align 8\n.type {NAME},@function\n{NAME}:")
    A("s_cmp_ge_u32 s2, 256\ns_cbranch_scc1 L_END")
    A.ext(ts.at("start"))
    A(f"""s_load_dwordx8 s[4:11], s[0:1], 0
    s_load_dwordx2 s[12:13], s[0:1], 32
    s_load_dwordx8 s[16:23], s[0:1], 48
    s_load_dwordx4 s[24:27], s[0:1], 80
    s_load_dwordx2 s[28:29], s[0:1], 96
    s_memrealtime s[30:31]
    v_lshrrev_b32 v3, 6, v0
    v_and_b32 {vL}, 63, v0
    v_readfirstlane_b32 s{sW}, v3
    v_lshlrev_b32 {vL16}, 4, {vL}""")
    CPF = opt.get("cpf", 1) and not opt.get("trace")
    sPC = 100
    cpf = VM(f"global_load_dword a253, v0, s[{sPC}:{sPC+1}]", "CP")
    cpa = "v_add_u32 v0, 0x2000, v0"
    def cp(adv=True): return ([cpf] + ([cpa] if adv else [])) if CPF else []
    if CPF:
        A(f"""s_getpc_b64 s[{sPC}:{sPC+1}]
        L_PCREF:
        v_lshlrev_b32 v0, 7, {vL}
        s_sub_u32 s{sPC}, s{sPC}, L_PCREF-{NAME}
        s_subb_u32 s{sPC+1}, s{sPC+1}, 0""")
        A.ext(cp())

    if opt.get("ticket", 0):
        A(f"""s_getreg_b32 s{sT0}, hwreg(HW_REG_XCC_ID)
        s_and_b32 s{sT0}, s{sT0}, 7
        s_cmp_lg_u32 s{sW}, 0
        s_cbranch_scc1 L_TKWAIT
        v_mov_b32 v5, 0
        s_mov_b32 s{sT1}, 8
        s_mov_b32 s{S_WS+2}, 256
        s_mov_b32 s{S_WS+3}, 0x20000
        s_waitcnt lgkmcnt(0)
        s_mov_b32 s{S_WS}, s{P_DBG}
        s_mov_b32 s{S_WS+1}, s{P_DBG+1}
        s_mov_b64 exec, 1
        L_TKTRY:
        v_mov_b32 v4, 1
        s_lshl_b32 s{sT2}, s{sT0}, 5
        buffer_atomic_add v4, v5, {srd(S_WS)}, s{sT2} offen offset:4 sc0
        s_waitcnt vmcnt(0)
        v_readfirstlane_b32 s{sT2}, v4
        s_cmp_lt_u32 s{sT2}, 32
        s_cbranch_scc1 L_TKGOT
        s_add_u32 s{sT0}, s{sT0}, 1
        s_and_b32 s{sT0}, s{sT0}, 7
        s_sub_u32 s{sT1}, s{sT1}, 1
        s_cmp_lg_u32 s{sT1}, 0
        s_cbranch_scc1 L_TKTRY
        s_mov_b32 s{sT2}, 32
        L_TKGOT:
        s_lshl_b32 s{sT2}, s{sT2}, 3
        s_add_u32 s{sT2}, s{sT2}, s{sT0}
        v_mov_b32 v4, s{sT2}
        ds_write_b32 v5, v4
        s_mov_b64 exec, -1
        s_waitcnt lgkmcnt(0)
        L_TKWAIT:
        v_mov_b32 v5, 0
        s_barrier
        ds_read_b32 v4, v5
        s_waitcnt lgkmcnt(0)
        v_readfirstlane_b32 s2, v4
        s_barrier
        s_cmp_ge_u32 s2, 256
        s_cbranch_scc1 L_END""")
    trace = opt.get("trace")
    def tr_issue(): return ["s_memrealtime s[100:101]"] if trace else []
    def tr_commit(): return ["s_lshl_b64 exec, 1, s81", "v_mov_b32 v0, s100", "s_mov_b64 exec, -1", "s_add_u32 s81, s81, 1"] if trace else []
    if trace: A("s_mov_b32 s81, 0\nv_mov_b32 v0, 0\ns_memrealtime s[100:101]\ns_waitcnt lgkmcnt(0)"); A.ext(tr_commit())
    S_X, S_W0, S_W1, S_KV, S_Wb = S_A, S_B, S_C, S_D, S_E
    sSoX = sL - 1
    sSo0 = sL + 7
    sSo1 = sL + 7
    sM0X, sM0W, sM0K, sWwr = sL + 11, sL + 12, sL + 13, sL + 14
    sWrd, s16k, sStep1, sSa, sSc, sIsB, sKVst, sEfl = 14, 30, 15, 3, 31, 9, 10, 11
    XB, WB, KR = 0, 65536, 147456
    vXo = [3, 4]; vWo0, vWo1, vKo, vSXo = 5, 6, 7, 8
    vXa = [9, 10]; vW0a = [[11 + 2*i, 12 + 2*i] for i in range(4)]; vW1a = [19, 20, 21, 22]; vSWa = 23
    vT = 24
    acc = [[None]*8 for _ in range(8)]
    p = 32
    for i in range(7):
        for j in range(8):
            acc[i][j] = Reg("v", p, 4); p += 4
    RA = [[Reg("a", 64*s + 4*i, 4) for i in range(8)] for s in range(2)]
    RB = [[Reg("a", 64*s + 32 + 4*j, 4) for j in range(8)] for s in range(2)]
    SA = [Reg("a", 128 + 4*s, 4) for s in range(2)]
    sacc = Reg("a", 144, 4)
    for j in range(8): acc[7][j] = Reg("a", 148 + 4*j, 4)
    SXB = [[Reg("a", 180 + 8*b + 4*j, 4) for j in range(2)] for b in range(2)]
    GXa = [Reg("a", 196 + 8*r, 8) for r in range(2)]
    GWa = Reg("a", 212, 8)
    t0, t1, t2, t3, t4, t5, t6, t7 = range(vT, vT + 8)
    HUGE = 0x40000000
    KP = opt.get("kp", [0, 1, 2, 4, 5, 6, 7, 8, 9, 10, 12, 13, 14, 15, 3, 11])
    sCWa, sCWb = 6, 7

    A(f"""s_and_b32 s{sT0}, s2, 1
    s_lshl_b32 s{sT0}, s{sT0}, 2
    s_bfe_u32 s{sT1}, s2, 0x20003
    s_add_u32 s{sRB}, s{sT0}, s{sT1}
    s_bfe_u32 s{sT0}, s2, 0x20001
    s_lshl_b32 s{sT0}, s{sT0}, 3
    s_lshr_b32 s{sT1}, s2, 5
    s_add_u32 s{sCB}, s{sT0}, s{sT1}""")
    A(f"""s_lshl_b32 s{sT0}, s{sW}, 6
    v_lshrrev_b32 v{t0}, 3, {vL}
    v_add_u32 v{t2}, s{sT0}, v{t0}
    v_lshlrev_b32 v{t2}, 11, v{t2}
    v_lshrrev_b32 v{t1}, 4, {vL}
    v_and_b32 v{t3}, 7, {vL}
    v_xor_b32 v{t4}, v{t3}, v{t1}
    v_lshl_add_u32 v{vXo[0]}, v{t4}, 4, v{t2}
    v_add_u32 v{vXo[0]}, {KP[0]*128}, v{vXo[0]}
    v_xor_b32 v{vXo[1]}, 64, v{vXo[0]}""")
    for e in range(1, 8): A(f"s_mov_b32 s{sSoX+e}, {e*16384 - (e&3)*1024}")
    A(f"""s_lshl_b32 s{sM0X}, s{sW}, 13
    s_lshl_b32 s{sM0W}, s{sW}, 11
    s_add_u32 s{sM0K}, s{sM0W}, {KR}
    s_add_u32 s{sM0W}, s{sM0W}, {WB}
    s_and_b32 s{sT1}, s{sCB}, 3
    s_mov_b32 s{sStep1}, {PW}
    s_cmp_eq_u32 s{sT1}, 3
    s_cselect_b32 s{sStep1}, 2048, s{sStep1}""")
    A(f"""s_lshl_b32 s{sT0}, s{sW}, 3
    v_add_u32 v{t2}, s{sT0}, v{t1}
    v_mul_lo_u32 v{t2}, v{t2}, s{sStep1}
    s_and_b32 s{sT1}, s{sW}, 1
    s_lshl_b32 s{sT2}, s{sT1}, 3
    v_and_b32 v{t4}, 15, {vL}
    v_lshl_or_b32 v{t5}, v{t1}, 1, s{sT2}
    v_xor_b32 v{t4}, v{t4}, v{t5}
    v_lshl_add_u32 v{vWo1}, v{t4}, 4, v{t2}
    v_add_u32 v{t2}, s{sT0}, v{t0}
    v_mul_u32_u24 v{t2}, {PW}, v{t2}
    s_lshl_b32 s{sT2}, s{sT1}, 2
    v_and_b32 v{t4}, 1, v{t1}
    v_lshl_or_b32 v{t4}, v{t4}, 1, s{sT2}
    v_xor_b32 v{t4}, v{t4}, v{t3}
    v_lshl_add_u32 v{vWo0}, v{t4}, 4, v{t2}""")
    A.ext(ts.at("a0"))
    A("s_waitcnt lgkmcnt(0)")
    A.ext(ts.at("a1"))
    A(f"""s_lshl_b32 s{sT0}, s{sRB}, 19
    s_add_u32 s{S_X}, s{P_X}, s{sT0}
    s_addc_u32 s{S_X+1}, s{P_X+1}, 0
    s_mov_b32 s{S_X+2}, 0x80000
    s_mov_b32 s{S_X+3}, 0x20000""")
    A(f"""s_mov_b32 s{S_WS+3}, 0x20000
    s_or_b32 s{sT0}, s2, s{sW}
    s_cmp_lg_u32 s{sT0}, 0
    s_cbranch_scc1 P1_NONONCE
    s_or_b32 s30, s30, 1
    s_mov_b32 s{S_WS}, s{P_DBG}
    s_mov_b32 s{S_WS+1}, s{P_DBG+1}
    s_mov_b32 s{S_WS+2}, 256
    v_mov_b32 v{t6}, s30
    v_mov_b32 v{t7}, 0
    s_mov_b64 exec, 1
    buffer_store_dword v{t6}, v{t7}, {srd(S_WS)}, 0 offen sc1
    s_mov_b64 exec, -1
    P1_NONONCE:""")
    WNT = opt.get("wnt", "")
    def xdma(par):
        sl = []
        for e in range(8):
            pre = []
            if e == 0: pre = [f"s_add_u32 m0, s{sM0X}, {par}"]
            if e == 4: pre = ["s_add_u32 m0, m0, 4096"]
            so = "0" if e == 0 else f"s{sSoX+e}"
            sl.append((pre, VM(f"buffer_load_dwordx4 v{vXo[e&1]}, {srd(S_X)}, {so} offen offset:{(e&3)*1024} {opt.get('xnt', '')} lds", "X")))
        return sl
    def wdma(hb, slot):
        so0 = "0" if hb == 0 else f"s{sSo0}"
        so1 = ["0" if hb == 0 else f"s{sSo1+2}", f"s{sSo1 + 1 + 2*hb}"]
        return [([f"s_add_u32 m0, s{sM0W}, {slot}"], VM(f"buffer_load_dwordx4 v{vWo0}, {srd(S_W0)}, {so0} offen {WNT} lds", "W")),
                ([], VM(f"buffer_load_dwordx4 v{vWo0}, {srd(S_Wb)}, {so0} offen offset:1024 {WNT} lds", "W")),
                (["s_add_u32 m0, m0, 40960"], VM(f"buffer_load_dwordx4 v{vWo1}, {srd(S_W1)}, {so1[0]} offen {WNT} lds", "W")),
                ([], VM(f"buffer_load_dwordx4 v{vWo1}, {srd(S_W1)}, {so1[1]} offen offset:1024 {WNT} lds", "W"))]
    def kdma(slot):
        return [([f"s_add_u32 m0, s{sM0K}, {slot}"], VM(f"buffer_load_dwordx4 v{vKo}, {srd(S_KV)}, 0 offen lds", "X")),
                ([], VM(f"buffer_load_dwordx4 v{vKo}, {srd(S_KV)}, 0 offen offset:1024 lds", "X"))]
    def sxload(b): return [VM(f"buffer_load_dwordx4 {SXB[b][j]}, v{vSXo}, {srd(S_X)}, 0 offen offset:{j*64}", "SX") for j in range(2)]
    def emit_dma(X, sl):
        for pre, d in sl:
            X.ext(pre)
            if pre: X("s_nop 0")
            X(d)
    emit_dma(A, xdma(0))
    A.ext(ts.at("a2"))
    A(f"""s_lshr_b32 s{sT0}, s{sCB}, 2
    s_and_b32 s{sT1}, s{sCB}, 3
    s_mul_i32 s{sT2}, s{sT0}, 896
    s_lshl_b32 s{sT3}, s{sT1}, 8
    s_add_u32 s{sT2}, s{sT2}, s{sT3}
    s_add_u32 s{S_W0}, s{P_WG}, s{sT2}
    s_addc_u32 s{S_W0+1}, s{P_WG+1}, 0
    s_sub_u32 s{S_W0+2}, {1024*PW}, s{sT2}
    s_mov_b32 s{S_W0+3}, 0x20000
    s_mov_b32 s{S_W1+3}, 0x20000
    s_mov_b32 s{S_Wb+3}, 0x20000
    s_mov_b32 s{sSo0}, {32*PW}
    s_cmp_eq_u32 s{sT1}, 3
    s_cbranch_scc1 P1_SRDB
    s_add_u32 s{S_Wb}, s{S_W0}, {4*PW - 1024}
    s_addc_u32 s{S_Wb+1}, s{S_W0+1}, 0
    s_sub_u32 s{S_Wb+2}, s{S_W0+2}, {4*PW - 1024}
    s_add_u32 s{S_W1}, s{P_WU}, s{sT2}
    s_addc_u32 s{S_W1+1}, s{P_WU+1}, 0
    s_mov_b32 s{S_W1+2}, s{S_W0+2}
    v_mov_b32 v{vWo0}, v{vWo1}
    s_branch P1_SRDD
    P1_SRDB:
    s_add_u32 s{S_Wb}, s{P_WU}, s{sT2}
    s_addc_u32 s{S_Wb+1}, s{P_WU+1}, 0
    s_sub_u32 s{S_Wb}, s{S_Wb}, 1024
    s_subb_u32 s{S_Wb+1}, s{S_Wb+1}, 0
    s_add_u32 s{S_Wb+2}, s{S_W0+2}, 1024
    s_lshl_b32 s{sT0}, s{sT0}, 8
    s_add_u32 s{S_W1}, s{P_WQ}, s{sT0}
    s_addc_u32 s{S_W1+1}, s{P_WQ+1}, 0
    s_sub_u32 s{S_W1+2}, {1024*2048}, s{sT0}
    P1_SRDD:
    s_lshl_b32 s{sSo1+1}, s{sStep1}, 2
    s_sub_u32 s{sSo1+1}, s{sSo1+1}, 1024
    s_lshl_b32 s{sSo1+2}, s{sStep1}, 5
    s_add_u32 s{sSo1+3}, s{sSo1+2}, s{sSo1+1}
    s_lshl_b32 s{sStep1}, s{sStep1}, 6""")
    def advXf(a, b):
        d = (KP[b] - KP[a]) * 128 & 0xffffffff
        return [f"v_add_u32 v{vXo[0]}, {d:#x}, v{vXo[0]}", f"v_add_u32 v{vXo[1]}, {d:#x}, v{vXo[1]}"]
    def advWf(a, b):
        d = KP[b] - KP[a]
        if d == 1: return [f"v_add_u32 v{vWo0}, {64*PW}, v{vWo0}", f"v_add_u32 v{vWo1}, s{sStep1}, v{vWo1}"]
        return [f"v_add_u32 v{vWo0}, {d*64*PW & 0xffffffff:#x}, v{vWo0}", f"s_mul_i32 s{sT3}, s{sStep1}, {d}\nv_add_u32 v{vWo1}, s{sT3}, v{vWo1}"]
    if KP[0]:
        A(f"""v_add_u32 v{vWo0}, {KP[0]*64*PW}, v{vWo0}
        s_mul_i32 s{sT3}, s{sStep1}, {KP[0]}
        v_add_u32 v{vWo1}, s{sT3}, v{vWo1}""")
    advK = f"v_add_u32 v{vKo}, 4096, v{vKo}"
    advS = f"v_add_u32 v{vSXo}, 128, v{vSXo}"
    emit_dma(A, wdma(0, 0)); emit_dma(A, wdma(1, 8192))
    A.ext(advXf(0, 1) + advWf(0, 1))
    A(f"""s_bfe_u32 s{sT0}, s{sCB}, 0x10001
    s_and_b32 s{sT1}, s{sW}, 1
    s_bitcmp1_b32 s{sCB}, 0
    s_cselect_b32 s{S_KV}, s{P_WV}, s{P_WK}
    s_cselect_b32 s{S_KV+1}, s{P_WV+1}, s{P_WK+1}
    s_cselect_b32 s{sSa}, s{sT1}, s{sT0}
    s_cselect_b32 s{sSc}, s{sT0}, s{sT1}
    s_mov_b32 s{S_KV+2}, 65536
    s_mov_b32 s{S_KV+3}, 0x20000
    s_and_b32 s{sIsB}, s{sCB}, 3
    s_cmp_eq_u32 s{sIsB}, 3
    s_cselect_b32 s{sIsB}, 1, 0
    v_lshrrev_b32 v{t2}, 5, {vL}
    v_lshlrev_b32 v{t2}, 1, v{t2}
    v_xor_b32 v{t2}, v{t2}, {vL}
    v_lshlrev_b32 v{t2}, 4, v{t2}
    s_lshr_b32 s{sT2}, s{sW}, 1
    s_lshl_b32 s{sT0}, s{sT2}, 15
    s_lshl_b32 s{sT1}, s{sT1}, 11
    s_add_u32 s{sT0}, s{sT0}, s{sT1}
    v_add_u32 v{vKo}, s{sT0}, v{t2}
    s_lshr_b32 s{sT0}, s{sCB}, 2
    s_lshl_b32 s{sT0}, s{sT0}, 1
    s_add_u32 s{sT0}, s{sT0}, s{sSa}
    s_lshl_b32 s{sT0}, s{sT0}, 15
    s_lshl_b32 s{sT2}, s{sT2}, 10
    s_add_u32 s{sT0}, s{sT0}, s{sT2}
    v_and_b32 v{t2}, 15, {vL}
    v_lshlrev_b32 v{t2}, 11, v{t2}
    v_lshl_add_u32 v{t2}, v{t1}, 4, v{t2}
    v_add_u32 v{vSXo}, s{sT0}, v{t2}""")
    emit_dma(A, kdma(0)); A.ext(sxload(0)); A(advK); A(advS)
    A(f"""s_mov_b32 s{S_WS}, s{P_WS}
    s_mov_b32 s{S_WS+1}, s{P_WS+1}
    s_mov_b32 s{S_WS+2}, {WS_USED}""")
    A.ext(ts.at("a3"))
    second = xdma(32768) + wdma(0, 2*8192) + kdma(8192) + wdma(1, 3*8192)
    A(f"""v_and_b32 v{t0}, 15, {vL}
    v_lshrrev_b32 v{t2}, 1, v{t0}
    v_xor_b32 v{t2}, v{t2}, v{t1}
    v_lshlrev_b32 v{t2}, 4, v{t2}
    v_lshl_add_u32 v{t2}, v{t0}, 7, v{t2}
    s_lshr_b32 s{sT0}, s{sW}, 1
    s_lshl_b32 s{sT1}, s{sT0}, 14
    v_add_u32 v{vXa[0]}, s{sT1}, v{t2}
    v_xor_b32 v{vXa[1]}, 64, v{vXa[0]}
    v_bfe_u32 v{t0}, {vL}, 2, 2
    v_lshl_add_u32 v{t2}, v{t1}, 3, v{t0}
    v_and_b32 v{t3}, 1, v{t1}
    v_lshl_or_b32 v{t5}, v{t3}, 2, v{t0}
    v_and_b32 v{t4}, 3, {vL}
    v_lshlrev_b32 v{t4}, 3, v{t4}
    v_lshl_add_u32 v{t6}, v{t2}, 8, v{t4}
    v_add_u32 v{t6}, {WB + 40960}, v{t6}
    s_and_b32 s{sT0}, s{sW}, 1
    s_lshl_b32 s{sT1}, s{sT0}, 2""")
    for ii in range(4):
        A(f"""s_add_u32 s{sT2}, s{sT1}, {ii}
        v_xor_b32 v{t7}, s{sT2}, v{t5}
        v_lshl_add_u32 v{vW1a[ii]}, v{t7}, 5, v{t6}""")
    A(f"""v_lshl_add_u32 v{t2}, v{t2}, 6, v{t4}
    v_xor_b32 v{t7}, s{sSc}, v{t3}
    v_lshl_add_u32 v{t7}, v{t7}, 5, v{t2}
    s_lshr_b32 s{sT2}, s{sW}, 1
    s_lshl_b32 s{sT2}, s{sT2}, 12
    s_add_u32 s{sT2}, s{sT2}, {KR}
    v_add_u32 v{vSWa}, s{sT2}, v{t7}
    s_mov_b32 s{s16k}, 16384
    s_cmp_eq_u32 s{sIsB}, 1
    s_cbranch_scc1 P1_ADB""")
    for ii in range(4):
        A(f"v_subrev_u32 v{vW0a[ii][0]}, 40960, v{vW1a[ii]}\nv_subrev_u32 v{vW0a[ii][1]}, {40960 - 1024}, v{vW1a[ii]}")
    A(f"""s_branch P1_ADD
    P1_ADB:
    v_lshl_add_u32 v{t4}, v{t1}, 11, v{t4}
    v_lshl_add_u32 v{t4}, v{t0}, 7, v{t4}
    v_add_u32 v{t4}, {WB}, v{t4}
    v_lshrrev_b32 v{t0}, 1, v{t0}
    v_lshl_or_b32 v{t0}, v{t3}, 1, v{t0}
    s_lshl_b32 s{sT1}, s{sT0}, 1""")
    for k in range(2):
        A(f"""s_add_u32 s{sT2}, s{sT1}, {k}
        v_xor_b32 v{t7}, s{sT2}, v{t0}
        v_lshl_add_u32 v{vW0a[k][0]}, v{t7}, 5, v{t4}
        v_add_u32 v{vW0a[k][1]}, 512, v{vW0a[k][0]}
        v_add_u32 v{vW0a[2+k][0]}, 1024, v{vW0a[k][0]}
        v_add_u32 v{vW0a[2+k][1]}, 1536, v{vW0a[k][0]}""")
    A("P1_ADD:")
    PF = opt.get("pf", 1)
    Z = []
    for i in range(8):
        for j in range(8):
            for r in range(4):
                a = acc[i][j][r]
                Z.append(f"v_mov_b32 {a}, 0" if a.f == "v" else f"v_accvgpr_write_b32 {a}, 0")
    for r in range(4): Z.append(f"v_accvgpr_write_b32 {sacc[r]}, 0")
    PEEL = opt.get("peel", 0)
    NPRE = opt.get("npre", 0)
    if not PEEL:
        per = len(Z) // len(second)
        for k, (pre, d) in enumerate(second):
            A.ext(pre); A.ext(Z[k*per:(k+1)*per]); A(d)
        A.ext(Z[len(second)*per:])
        A.ext(advXf(1, 2) + advWf(1, 2) + [advK])
    else:
        emit_dma(A, second[:NPRE])

    def reads(t, s, side):
        b = t & 1; xo = ((t >> 1) & 1)*32768; wo = (t % 5)*8192; ko = ((t >> 1) & 1)*8192
        L = [f"ds_read_b128 {RB[s][j]}, v{vXa[b]} offset:{xo + j*2048}" for j in range(8)]
        for i in range(8):
            for hf in range(2):
                if i < 4: L.append(f"ds_read_b64_tr_b16 {RA[s][i].sub(2*hf, 2)}, v{vW0a[i][hf]} offset:{wo}")
                else: L.append(f"ds_read_b64_tr_b16 {RA[s][i].sub(2*hf, 2)}, v{vW1a[i-4]} offset:{wo + hf*1024}")
        if side:
            for hf in range(2):
                L.append(f"ds_read_b64_tr_b16 {SA[s].sub(2*hf, 2)}, v{vSWa} offset:{ko + b*2048 + hf*256}")
        return L
    def mfmas(s, side=None, zero=False):
        L = []
        for i in range(8):
            js = range(8) if i % 2 == 0 else range(7, -1, -1)
            for j in js:
                L.append(f"v_mfma_f32_16x16x32_bf16 {acc[i][j]}, {RA[s][i]}, {RB[s][j]}, {0 if zero else acc[i][j]}")
            if side is not None and i == 3:
                L.append(f"v_mfma_f32_16x16x32_bf16 {sacc}, {SA[s]}, {SXB[side][s]}, {0 if zero else sacc}")
        return L
    A.ext(ts.at("a4"))
    A(f"s_waitcnt vmcnt({len(second)}) lgkmcnt(0)")
    A.ext(ts.at("a5"))
    A("s_barrier")
    A.ext(reads(0, 0, True))
    A("s_waitcnt lgkmcnt(0)\ns_barrier")
    A.ext(ts.at("p1"))
    if ts.on: A("s_waitcnt lgkmcnt(0)")
    pro_hist = list(A.lines)

    def step(st, hook=None, cpl=False):
        out = []
        sd = st < 8; side = st & 1 if sd else None
        dma = st < 14; last = st == 15
        n = 65 if sd else 64
        BG = n - 4
        f = {}
        for k, r in enumerate(reads(2*st + 1, 1, sd)): put(f, 2*k, r)
        if dma:
            dg = [1, 9, 17, 25, 33, 39, 47, 55] if not (st < 7) else [13, 19, 25, 31, 37, 43, 49, 55]
            for k, (pre, d) in enumerate(wdma(0, ((2*st + 4) % 5)*8192) + wdma(1, ((2*st + 5) % 5)*8192)):
                if pre: put(f, dg[k] - 1, pre)
                put(f, dg[k], d)
            if st < 13: put(f, 57, advWf(st + 2, st + 3)[0]); put(f, 58, advWf(st + 2, st + 3)[1])
        if st < 7:
            for k, l in enumerate(sxload(side ^ 1)): put(f, [1, 7][k], l)
            put(f, 9, advS)
        if cpl: put(f, 4, cp())
        if hook: hook(0, f, BG)
        put(f, BG, [Need(["X"], "lgkmcnt(0)") if not last else "s_waitcnt lgkmcnt(0)", "s_barrier"])
        out += interleave(mfmas(0, side), f)
        if last: return out + tr_issue() + (["s_waitcnt lgkmcnt(0)"] if trace else []) + tr_commit()
        f = {}
        for k, r in enumerate(reads(2*st + 2, 0, st < 7)): put(f, 2*k, r)
        if dma:
            kv = st < 6
            dl = (kdma((st & 1)*8192) if kv else []) + xdma((st & 1)*32768)
            dg = [1, 7, 13, 19, 25, 31, 37, 43, 49, 55] if kv else [1, 9, 17, 25, 33, 41, 47, 55]
            for k, (pre, d) in enumerate(dl):
                if pre: put(f, dg[k] - 1, pre)
                put(f, dg[k], d)
            if st < 13: put(f, 57, advXf(st + 2, st + 3)[0]); put(f, 59, advXf(st + 2, st + 3)[1])
            if kv: put(f, 9, advK)
        if hook: hook(1, f, BG)
        put(f, BG - 3, tr_issue())
        put(f, BG, [Need(["SX"], "lgkmcnt(0)") if st < 7 else "s_waitcnt lgkmcnt(0)", "s_barrier"] + tr_commit())
        out += interleave(mfmas(1, side), f)
        return out

    vN, vZ, vKA, vFA = t0, t1, t2, t3
    u = 28
    nload = f"buffer_load_dword v{vN}, v{vZ}, {srd(S_KV)}, 0 offen sc1"
    dbgsrd = [f"s_mov_b32 s{S_KV}, s{P_DBG}", f"s_mov_b32 s{S_KV+1}, s{P_DBG+1}", f"s_mov_b32 s{S_KV+2}, 256", f"v_mov_b32 v{vZ}, 0"]
    PSC = KR + 4096
    kvK = f"""v_bfe_u32 v{vKA}, {vL}, 3, 1
    v_lshlrev_b32 v{vKA}, 4, v{vKA}
    v_and_b32 v{vFA}, 7, {vL}
    v_add_u32 v{vKA}, v{vKA}, v{vFA}
    v_bfe_u32 v{vFA}, {vL}, 4, 1
    v_lshl_add_u32 v{vKA}, v{vFA}, 5, v{vKA}
    v_lshlrev_b32 v{vKA}, 4, v{vKA}
    v_lshrrev_b32 v{vFA}, 5, {vL}
    v_lshl_add_u32 v{vKA}, v{vFA}, 10, v{vKA}
    s_lshl_b32 s{sKVst}, s{sSa}, 7
    s_lshl_b32 s{sEfl}, s{sSc}, 3""".split("\n")
    kvV = f"""v_lshrrev_b32 v{vKA}, 5, {vL}
    v_lshlrev_b32 v{vKA}, 4, v{vKA}
    v_bfe_u32 v{vFA}, {vL}, 4, 1
    v_lshl_add_u32 v{vKA}, v{vFA}, 2, v{vKA}
    v_bfe_u32 v{vFA}, {vL}, 2, 1
    v_lshl_add_u32 v{vKA}, v{vFA}, 5, v{vKA}
    v_lshlrev_b32 v{vKA}, 4, v{vKA}
    v_bfe_u32 v{vFA}, {vL}, 3, 1
    v_lshl_add_u32 v{vKA}, v{vFA}, 10, v{vKA}
    v_and_b32 v{vFA}, 3, {vL}
    v_lshl_add_u32 v{vKA}, v{vFA}, 1, v{vKA}
    s_lshl_b32 s{sKVst}, s{sSc}, 7
    s_lshl_b32 s{sEfl}, s{sSa}, 3""".split("\n")
    kvaddr = [f"s_bitcmp1_b32 s{sCB}, 0", "s_cbranch_scc1 P1_KVAV"] + [l.strip() for l in kvK] + ["P1_KVAD:",
              f"s_add_u32 s{sKVst}, s{sKVst}, s{sEfl}", f"s_add_u32 s{sKVst}, s{sKVst}, {KR}", f"v_add_u32 v{vKA}, s{sKVst}, v{vKA}"]
    kvwr = [f"s_bitcmp1_b32 s{sCB}, 0", "s_cbranch_scc1 P1_KVWV", f"ds_write_b64 v{vKA}, v[{u}:{u+1}]", "P1_KVWD:"]
    ool = Asm()
    ool("P1_KVAV:"); ool.ext(kvV); ool("s_branch P1_KVAD")
    ool(f"""P1_KVWV:
    ds_write_b16 v{vKA}, v{u}
    ds_write_b16_d16_hi v{vKA}, v{u} offset:16
    ds_write_b16 v{vKA}, v{u+1} offset:32
    ds_write_b16_d16_hi v{vKA}, v{u+1} offset:48
    s_branch P1_KVWD""")
    vP = vSXo
    KT = Reg("a", 128, 4); PT = Reg("a", 132, 4)
    QPOLL = opt.get("qpoll", 0)
    CW = opt.get("cw", 1)
    CA, CB = Reg("a", 136, 4), Reg("a", 140, 4)
    vDA, vDB = vSWa, vKo
    def hookS8(ph, f, BG):
        if ph == 0 and CW:
            put(f, 1, [f"s_lshl_b32 s{sT2}, s2, 2", f"s_add_u32 s{sT2}, s{sT2}, s{sW}", f"s_mul_i32 s{sT3}, s{sT2}, 7"])
            L_ = [f"v_lshrrev_b32 v{u}, 3, {vL}", f"v_and_b32 v{u+1}, 7, {vL}", f"v_lshlrev_b32 v{u+1}, 4, v{u+1}",
                  f"v_add_u32 v{u+2}, s{sT3}, v{u}", f"v_and_b32 v{u+3}, 1, v{u+2}", f"v_lshrrev_b32 v{u+2}, 1, v{u+2}",
                  f"v_lshl_add_u32 v{vDA}, v{u+2}, 8, v{u+1}", f"v_mul_u32_u24 v{vDB}, {CW_SZ}, v{u+3}", f"v_add_u32 v{vDA}, v{vDA}, v{vDB}",
                  f"v_lshl_add_u32 v{u+2}, v{u+2}, 11, v{u+1}", f"v_lshl_add_u32 v{u+2}, v{u+3}, 10, v{u+2}",
                  f"v_cmp_gt_u32 vcc, 56, {vL}", f"v_mov_b32 v{u+3}, {HUGE}", f"v_add_u32 v{u+2}, 384, v{u+2}",
                  f"v_cndmask_b32 v{u+2}, v{u+3}, v{u+2}, vcc", f"v_cndmask_b32 v{vDA}, v{u+3}, v{vDA}, vcc"]
            for k, l in enumerate(L_): put(f, 2 + k // 2, l)
            put(f, 10, [f"s_mov_b32 s{S_KV}, s{P_WD}", f"s_mov_b32 s{S_KV+1}, s{P_WD+1}", f"s_mov_b32 s{S_KV+2}, {3584*2048}"])
            put(f, 12, VM(f"buffer_load_dwordx4 {CA}, v{u+2}, {srd(S_KV)}, 0 offen", "CL"))
            L_ = [f"v_mul_u32_u24 v{vDB}, {CW_SZ}, v{u}", f"v_add_u32 v{vDB}, v{vDB}, v{u+1}", f"v_lshl_add_u32 v{u+2}, v{u}, 10, v{u+1}",
                  f"v_cmp_gt_u32 vcc, 16, {vL}", f"s_lshl_b32 s{sT3}, s{sT2}, 11", f"s_add_u32 s{sT3}, s{sT3}, 384",
                  f"v_cndmask_b32 v{u+2}, v{u+3}, v{u+2}, vcc", f"v_cndmask_b32 v{vDB}, v{u+3}, v{vDB}, vcc"]
            for k, l in enumerate(L_): put(f, 13 + k // 2, l)
            put(f, 17, [f"s_mov_b32 s{S_KV}, s{P_WO}", f"s_mov_b32 s{S_KV+1}, s{P_WO+1}", f"s_mov_b32 s{S_KV+2}, {1024*2048}"])
            put(f, 19, VM(f"buffer_load_dwordx4 {CB}, v{u+2}, {srd(S_KV)}, s{sT3} offen", "CL"))
            put(f, 20, [f"s_lshl_b32 s{sCWb}, s{sT2}, 8", f"s_add_u32 s{sCWb}, s{sCWb}, {CW_OFF + 3584*256}", f"s_mov_b32 s{sCWa}, {CW_OFF}"])
        if ph == 0 and QPOLL:
            for r in range(4): put(f, 2 + r, f"v_mov_b32 v{u+r}, -1")
            put(f, 5, [f"s_lshl_b32 s{sKVst}, s{sRB}, 5", f"s_add_u32 s{sKVst}, s{sKVst}, s{sCB}", f"s_lshl_b32 s{sKVst}, s{sKVst}, 2"])
            put(f, 7, [f"s_add_u32 s{sKVst}, s{sKVst}, s{sW}", f"s_lshl_b32 s{sKVst}, s{sKVst}, 12", f"s_add_u32 s{sKVst}, s{sKVst}, {QF4_OFF}"])
            for r in range(4): put(f, [13, 15, 21, 23][r], VM(f"buffer_store_dwordx4 v[{u}:{u+3}], {vL16}, {srd(S_WS)}, s{sKVst} offen offset:{r*1024} {SC1}", "QP"))
        if ph == 0:
            put(f, 25, dbgsrd)
            put(f, 21, [f"s_lshl_b32 s{sT2}, s{sW}, 10", f"s_add_u32 s{sT2}, s{sT2}, {PSC}"]); put(f, 23, f"v_add_u32 v{vP}, s{sT2}, {vL16}")
            put(f, 27, kvaddr)
        if ph == 1:
            put(f, 3, f"ds_write_b128 v{vP}, {sacc}")
            put(f, 5, VM(nload, "N"))
            put(f, 11, f"v_xor_b32 v{vP}, 0x800, v{vP}")
            for r in range(4): put(f, 13 + 2*r, f"v_accvgpr_read_b32 v{u+r}, {sacc[r]}")
    def hookS9(ph, f, BG):
        if ph == 0 and CW:
            put(f, 5, [Need(["CL"]), VM(f"buffer_store_dwordx4 {CA}, v{vDA}, {srd(S_WS)}, s{sCWa} offen {SC1}", "CS")])
            put(f, 13, VM(f"buffer_store_dwordx4 {CB}, v{vDB}, {srd(S_WS)}, s{sCWb} offen {SC1}", "CS"))
        if ph == 0:
            put(f, 1, f"ds_read_b128 {PT}, v{vP}")
            put(f, 11, "s_waitcnt lgkmcnt(5)")
            for r in range(4): put(f, 11 + 2*r, f"v_accvgpr_read_b32 v{vFA}, {PT[r]}"); put(f, 12 + 2*r, f"v_add_f32 v{u+r}, v{u+r}, v{vFA}")
            put(f, 21, f"v_cvt_pk_bf16_f32 v{u}, v{u}, v{u+1}"); put(f, 23, f"v_cvt_pk_bf16_f32 v{u+1}, v{u+2}, v{u+3}")
            put(f, 27, kvwr)
            put(f, 29, f"v_lshrrev_b32 v{vP}, 3, {vL}"); put(f, 31, f"v_and_b32 v{vFA}, 7, {vL}")
            put(f, 35, f"v_lshlrev_b32 v{vFA}, 4, v{vFA}"); put(f, 37, f"v_lshl_add_u32 v{vP}, v{vP}, 8, v{vFA}")
            put(f, 41, [f"s_bfe_u32 s{sT2}, s{sCB}, 0x10001", f"s_lshl_b32 s{sT2}, s{sT2}, 7"])
            put(f, 43, f"v_add_u32 v{vP}, s{sT2}, v{vP}")
            put(f, 44, f"v_add_u32 v{vKA}, {KR}, v{vP}")
        if ph == 1:
            put(f, 3, f"ds_read_b128 {KT}, v{vKA}")
            put(f, 5, [f"s_lshl_b32 s{sKVst}, s{sRB}, 3", f"s_lshr_b32 s{sT2}, s{sCB}, 2", f"s_add_u32 s{sKVst}, s{sKVst}, s{sT2}"])
            put(f, 7, [f"s_lshl_b32 s{sKVst}, s{sKVst}, 1", f"s_and_b32 s{sT2}, s{sCB}, 1", f"s_add_u32 s{sKVst}, s{sKVst}, s{sT2}"])
            put(f, 11, [f"s_lshl_b32 s{sKVst}, s{sKVst}, 11", f"s_add_u32 s{sKVst}, s{sKVst}, {KV_OFF}", f"s_lshl_b32 s{sEfl}, s{sRB}, 5"])
            put(f, 13, [f"s_add_u32 s{sEfl}, s{sEfl}, s{sCB}", f"s_lshl_b32 s{sEfl}, s{sEfl}, 2", f"s_add_u32 s{sEfl}, s{sEfl}, {FL_E}"])
            put(f, 15, [f"s_cmp_eq_u32 s{sW}, 0", f"s_cselect_b32 s{sKVst}, s{sKVst}, {HUGE}", f"s_cselect_b32 s{sEfl}, s{sEfl}, {HUGE}"])
            put(f, 19, f"v_mul_u32_u24 v{vFA}, {FL_ES}, {vL}")
            put(f, 21, ["s_waitcnt lgkmcnt(9)", VM(f"buffer_store_dwordx4 {KT}, v{vP}, {srd(S_WS)}, s{sKVst} offen {SC1}", "KS")])
    def hookS10(ph, f, BG):
        if ph == 1:
            put(f, 27, [Need(["KS", "N"]), f"v_readfirstlane_b32 s{sNonce}, v{vN}", f"s_cmp_eq_u32 s{sNonce}, 0", "s_cbranch_scc1 P1_SLOWN", "P1_NOK:",
                       "s_mov_b64 exec, 0xff", VM(f"buffer_store_dword v{vN}, v{vFA}, {srd(S_WS)}, s{sEfl} offen sc1", "EF"), "s_mov_b64 exec, -1", "s_nop 2"])
    sKVo, sM0 = sL + 3, sL + 4
    S_KVD = S_C
    vE = Reg("v", 28, 4)
    epoll = f"buffer_load_dwordx4 {vE}, {vL16}, {srd(S_WS)}, s{sEfl} offen sc1"
    def kvdma0(slotoff):
        L = []
        for e in range(8):
            pre = []
            if e == 0: pre = [f"s_add_u32 m0, s{sM0}, {slotoff}"]
            if e == 4: pre = [f"s_add_u32 m0, m0, 4096", f"s_add_u32 s{sKVo}, s{sKVo}, 4096"]
            L.append((pre, VM(f"buffer_load_dwordx4 {vL16}, {srd(S_KVD)}, s{sKVo} offen offset:{(e&3)*1024} {SC1} lds", "KV")))
        return L
    def hookS14(ph, f, BG):
        if ph == 0:
            put(f, 5, [f"s_bfe_u32 s{sEfl}, s2, 0x30003", f"s_mul_i32 s{sEfl}, s{sEfl}, {FL_ES}", f"s_add_u32 s{sEfl}, s{sEfl}, {FL_E}"])
            put(f, 9, VM(epoll, "N"))
            put(f, 11, [f"s_mov_b32 s{S_KVD}, s{P_WS}", f"s_mov_b32 s{S_KVD+1}, s{P_WS+1}", f"s_mov_b32 s{S_KVD+2}, {KV_OFF + 262144}"])
            put(f, 13, [f"s_lshl_b32 s{sM0}, s{sW}, 13", f"s_add_u32 s{sKVo}, s{sM0}, {KV_OFF}"])
    def echeck():
        return [f"v_xor_b32 {vE[0]}, {vE[0]}, v{vN}", f"v_xor_b32 {vE[1]}, {vE[1]}, v{vN}", f"v_xor_b32 {vE[2]}, {vE[2]}, v{vN}", f"v_xor_b32 {vE[3]}, {vE[3]}, v{vN}",
                f"v_or3_b32 {vE[0]}, {vE[0]}, {vE[1]}, {vE[2]}", f"v_or_b32 {vE[0]}, {vE[0]}, {vE[3]}", f"v_cmp_eq_u32 vcc, 0, {vE[0]}", "s_nop 0", "s_cmp_eq_u64 vcc, -1"]
    def hookS15(ph, f, BG):
        dg = [5, 11, 17, 23, 29, 35, 41, 46]
        if ph == 0: put(f, 1, [Need(["N"])] + echeck() + ["s_cbranch_scc0 P1_SLOWE", "P1_EOK:"])
        if ph == 0:
            for k, (pre, d) in enumerate(kvdma0(32768*ph)):
                if pre: put(f, dg[k] - 1, pre)
                put(f, dg[k], d)
            put(f, 47, f"s_add_u32 s{sKVo}, s{sKVo}, {32768 - 4096}")
    hooks = {8: hookS8, 9: hookS9, 10: hookS10, 14: hookS14, 15: hookS15}
    cpsteps = opt.get("cps", [0, 3, 7, 11, 14])
    h1 = list(pro_hist)
    for st in range(16):
        S_ = resolve_waits(step(st, hooks.get(st), st in cpsteps), h1)
        h1 += S_
        A.ext(S_)
        if st == 10: A("s_branch P1_CONT"); A.ext(ool.lines); A("P1_CONT:")
    S15 = S_
    probs += check_hazards(A.lines, "p1")
    slow1 = Asm()
    slow1(f"""P1_SLOWN:
    s_mov_b32 s{sT2}, {SPIN_MAX}
    P1_SLOWN_L:
    {nload}
    s_waitcnt vmcnt(0)
    v_readfirstlane_b32 s{sNonce}, v{vN}
    s_cmp_lg_u32 s{sNonce}, 0
    s_cbranch_scc1 P1_NOK
    s_sleep 4
    s_sub_u32 s{sT2}, s{sT2}, 1
    s_cmp_lg_u32 s{sT2}, 0
    s_cbranch_scc1 P1_SLOWN_L
    s_endpgm
    P1_SLOWE:
    s_mov_b32 s{sT0}, {SPIN_MAX}
    P1_SLOWE_L:
    {epoll}
    s_waitcnt vmcnt(0)""")
    slow1.ext(echeck())
    slow1(f"""s_cbranch_scc1 P1_EOK
    s_sleep 4
    s_sub_u32 s{sT0}, s{sT0}, 1
    s_cmp_lg_u32 s{sT0}, 0
    s_cbranch_scc1 P1_SLOWE_L
    s_endpgm""")

    va = Alloc("v", 3, 256)
    vCur = va.get(1); vNxt = va.get(1); vZero = va.get(1); vNon = va.get(1); vQP = va.get(1)
    T = va.get(12, 4)
    S = [va.get(16, 4) for _ in range(2)]
    P = [va.get(8, 4) for _ in range(2)]
    O = [va.get(16, 4) for _ in range(2)]
    Lc = [va.get(4, 4) for _ in range(2)]
    SCL = va.get(8, 4)
    acc3 = [[va.get(4, 4) for j in range(8)] for i in range(4)]
    vW3o = va.get(1); vW3a = [va.get(1) for _ in range(4)]; vPF = va.get(1); vG = va.get(2, 2); vFl = va.get(4, 4)
    NEG = [Reg("v", acc3[0][0].base + 16*k, 16) for k in range(2)]
    aa = Alloc("a", 0, 180)
    RX = [[aa.get(4, 4) for j in range(8)] for s in range(4)]
    Q = [[aa.get(4, 4) for t in range(2)] for ab in range(2)]
    K = [[aa.get(4, 4) for t in range(2)] for b in range(2)]
    V = [[aa.get(4, 4) for t in range(2)] for b in range(2)]
    ONES = aa.get(4, 4)
    RW = [[Reg("a", 220 + 16*s + 4*i, 4) for i in range(4)] for s in range(2)]
    QXB = 98304
    W3B = 98304

    E = Asm()
    E.ext(ts.at("p1end"))
    sO = sL + 10
    sC = sL + 1
    sQf = sL + 9
    tA = [Reg("v", 20, 4), Reg("v", 28, 4)]
    def hmath(pairs, dst):
        L = []
        for Gx, U in pairs:
            for r in range(4): L.append(f"v_max_f32 {Gx[r]}, 0, {Gx[r]}")
        for Gx, U in pairs:
            for r in (0, 2): L.append(f"v_pk_mul_f32 {Gx.sub(r,2)}, {Gx.sub(r,2)}, {U.sub(r,2)}")
        for k, (Gx, U) in enumerate(pairs):
            L.append(f"v_cvt_pk_bf16_f32 {dst[2*k]}, {Gx[0]}, {Gx[1]}"); L.append(f"v_cvt_pk_bf16_f32 {dst[2*k+1]}, {Gx[2]}, {Gx[3]}")
        return L
    gl = Asm()
    gl(f"""s_mov_b32 s{S_A}, s{P_X}
    s_mov_b32 s{S_A+1}, s{P_X+1}
    s_mov_b32 s{S_A+2}, 0x400000
    s_mov_b32 s{S_B}, s{P_GW}
    s_mov_b32 s{S_B+1}, s{P_GW+1}
    s_mov_b32 s{S_B+2}, 2048
    s_lshl_b32 s{sT2}, s{sRB}, 5
    s_add_u32 s{sT2}, s{sT2}, s{sCB}
    s_lshl_b32 s{sT2}, s{sT2}, 2
    s_add_u32 s{sT2}, s{sT2}, s{sW}
    s_lshl_b32 s{sT2}, s{sT2}, 12""")
    for h in range(2): gl(f"buffer_load_dwordx4 {GWa.sub(4*h,4)}, {vL16}, {srd(S_B)}, 0 offen offset:{h*1024}")
    for r in range(2):
        for h in range(2):
            gl(f"buffer_load_dwordx4 {GXa[r].sub(4*h,4)}, {vL16}, {srd(S_A)}, s{sT2} offen offset:{r*2048 + h*1024}")
    def merge(mf, items, rate):
        out = []; k = 0
        for g, m_ in enumerate(mf):
            out.append(m_)
            n = 0
            while k < len(items) and items[k][0] <= g and n < rate: out.append(items[k][1]); k += 1; n += 1
        if k < len(items): out.append("s_nop 7")
        return out + [x[1] for x in items[k:]]
    mm1 = lambda i, j: f"v_mfma_f32_16x16x32_bf16 {acc[i][j]}, {RA[1][i]}, {RB[1][j]}, {acc[i][j]}"
    kv1 = []
    for pre, d in kvdma0(32768): kv1 += pre + (["s_nop 0"] if pre else []) + [d]
    kv1.append(f"s_add_u32 s{sKVo}, s{sKVo}, {32768 - 4096}")
    head = Asm()
    head(f"""s_lshr_b32 s{sT0}, s{sW}, 1
    s_and_b32 s{sT1}, s{sW}, 1
    s_lshl_b32 s{sO}, s{sRB}, 4
    s_lshl_b32 s{sT2}, s{sT0}, 3
    s_add_u32 s{sO}, s{sO}, s{sT2}
    s_lshl_b32 s{sO}, s{sO}, 11
    s_add_u32 s{sO}, s{sO}, {AF2_OFF}
    s_lshr_b32 s{sT2}, s{sCB}, 2
    s_mul_i32 s{sO+1}, s{sT2}, 14
    s_and_b32 s{sT3}, s{sCB}, 3
    s_lshl_b32 s{sT3}, s{sT3}, 2
    s_add_u32 s{sO+1}, s{sO+1}, s{sT3}
    s_add_u32 s{sO+1}, s{sO+1}, s{sT1}""")
    E(f"s_cmp_eq_u32 s{sIsB}, 1\ns_cbranch_scc1 P1_EPIB")
    LAG = 5
    it = [(0, l) for l in head.lines]
    it += [(0, l) for l in (f"s_add_u32 s{sO+1}, s{sO+1}, s{sT1}", f"s_mul_i32 s{sO+1}, s{sO+1}, {AFS2}", f"s_add_u32 s{sO}, s{sO}, s{sO+1}", f"s_add_u32 s{sO+2}, s{sO}, {AFS2}")]
    it += [(0, l) for l in gl.lines]
    kq = list(kv1)
    for j in range(8):
        g_ = 8*j + 7 + LAG
        Tt = tA[j % 2]
        L_ = hmath([(acc[0][j], acc[4][j]), (acc[1][j], acc[5][j])], acc[4][j])
        L_ += [f"v_accvgpr_read_b32 {Tt[r]}, {acc[7][j][r]}" for r in range(4)]
        L_ += hmath([(acc[2][j], acc[6][j]), (acc[3][j], Tt)], acc[6][j])
        it += [(g_, l) for l in L_]
        while kq:
            x_ = kq.pop(0); it.append((g_, x_))
            if is_vmem(x_): break
    it += [(64, l) for l in kq]
    EA = merge([mm1(i, j) for j in range(8) for i in range(8)], it, opt.get("rateA", 5))
    E.ext(EA)
    E("s_branch P1_EPID\nP1_EPIB:")
    hb = Asm()
    hb(f"""s_mul_i32 s{sO+1}, s{sO+1}, {AFS2}
    s_add_u32 s{sO}, s{sO}, s{sO+1}
    s_mov_b32 s{sO+2}, {HUGE}
    s_lshl_b32 s{sQf}, s{sRB}, 3
    s_add_u32 s{sQf}, s{sQf}, s{sT2}
    s_lshl_b32 s{sQf}, s{sQf}, 2
    s_lshl_b32 s{sT1}, s{sT1}, 1
    s_add_u32 s{sT2}, s{sQf}, s{sT1}
    s_lshl_b32 s{sT2}, s{sT2}, 1
    s_add_u32 s{sT2}, s{sT2}, s{sT0}
    s_lshl_b32 s{sT2}, s{sT2}, 14
    s_add_u32 s{sT0}, s{sT2}, {QF5_OFF}
    s_add_u32 s{sT1}, s{sT0}, 32768
    v_cmp_lt_u32 vcc, 23, {vL}
    v_add_u32 v26, 128, {vL16}
    s_nop 0
    v_cndmask_b32 v26, {vL16}, v26, vcc
    s_add_u32 s{sQf}, s{sQf}, s{sW}
    s_lshl_b32 s{sQf}, s{sQf}, 8
    s_add_u32 s{sQf}, s{sQf}, {FL_Q}
    s_mov_b32 s{sC}, {f2u(QSCALE):#x}
    s_mov_b32 s{sC+1}, {f2u(QSCALE):#x}""")
    it = [(0, l) for l in gl.lines + head.lines + hb.lines]
    for j in range(8):
        g_ = 4*j + 3 + LAG
        for hh in range(2):
            F0, F1 = acc[4 + 2*hh][j], acc[5 + 2*hh][j]
            L_ = []
            if F1.f == "a":
                Tt = tA[j % 2]
                L_ += [f"v_accvgpr_read_b32 {Tt[r]}, {F1[r]}" for r in range(4)]
                F1 = Tt
            for F in (F0, F1):
                for r in (0, 2): L_.append(f"v_pk_mul_f32 {F.sub(r,2)}, {F.sub(r,2)}, s[{sC}:{sC+1}]")
            L_ += [f"v_cvt_pk_bf16_f32 {F0[0]}, {F0[0]}, {F0[1]}", f"v_cvt_pk_bf16_f32 {F0[1]}, {F0[2]}, {F0[3]}",
                   f"v_cvt_pk_bf16_f32 {F0[2]}, {F1[0]}, {F1[1]}", f"v_cvt_pk_bf16_f32 {F0[3]}, {F1[2]}, {F1[3]}",
                   f"buffer_store_dwordx4 {F0}, v26, {srd(S_WS)}, s{sT0 + hh} offen offset:{(j&1)*2048} {SC1}"]
            if j & 1: L_.append(f"s_add_u32 s{sT0 + hh}, s{sT0 + hh}, 4096")
            it += [(g_, l) for l in L_]
    EB = merge([mm1(i, j) for j in range(8) for i in range(4, 8)] + [mm1(i, j) for j in range(8) for i in range(4)], it, opt.get("rateB", 4))
    E.ext(EB)
    E.ext(kv1)
    for j in range(8):
        E.ext(hmath([(acc[0][j], acc[2][j]), (acc[1][j], acc[3][j])], acc[4][j]))
    E(f"""s_waitcnt vmcnt(24)
    s_branch P1_EPIE
    P1_EPID:
    s_waitcnt vmcnt(8)
    P1_EPIE:""")
    probs += check_hazards(S15[-20:] + EA, "epiA") + check_hazards(S15[-20:] + E.lines[E.lines.index("P1_EPIB:"):], "epiB")
    E.ext(ts.at("kvdone"))
    vAF = T[9]
    def hstore(reg, so, j):
        return [VM(f"buffer_store_dwordx4 {reg}, {vAF}, {srd(S_WS)}, s{so} offen offset:{(j&1)*2048} {SC1}", "H")] + ([f"s_add_u32 s{so}, s{so}, 4096"] if j & 1 else [])
    hst0 = [hstore(acc[4][j], sO, j) for j in range(8)]
    hst1a = [hstore(acc[6][j], sO + 2, j) for j in range(8)]
    A.ext(E.lines)

    B = Asm()
    sCur, sNext, sFree, sFl = sL, sL + 1, sL + 2, sL + 5
    B(f"""v_mov_b32 {vNon}, s{sNonce}
    v_mov_b32 {vZero}, 0
    v_bfe_u32 {T[0]}, {vL}, 4, 1
    v_and_b32 {T[1]}, 15, {vL}
    v_lshrrev_b32 {T[2]}, 5, {vL}
    v_lshl_add_u32 {T[1]}, {T[2]}, 4, {T[1]}
    v_lshlrev_b32 {T[1]}, 4, {T[1]}
    v_lshl_add_u32 {vQP}, {T[0]}, 11, {T[1]}""")
    S_PF, sPF = S_E, 8
    pfop = [VM(f"buffer_load_dword a252, {vPF}, {srd(S_PF)}, s{sPF} offen", "PF"), f"s_add_u32 s{sPF}, s{sPF}, 0x100000"] if PF else []
    W32 = NEG[0]; X32 = NEG[1]; GX = S[0].sub(0, 8); GW = S[0].sub(8, 8)
    R2 = range(2)
    for k in range(8): B(f"v_accvgpr_read_b32 {GW[k]}, {GWa[k]}")
    for k in range(8): B(f"v_lshlrev_b32 {W32[2*k]}, 16, {GW[k]}\nv_and_b32 {W32[2*k+1]}, 0xffff0000, {GW[k]}")
    B(f"v_mov_b32 {T[8]}, 0x3f803f80")
    for r in R2:
        for k in range(8): B(f"v_accvgpr_read_b32 {GX[k]}, {GXa[r][k]}")
        for k in range(8): B(f"v_lshlrev_b32 {X32[2*k]}, 16, {GX[k]}\nv_and_b32 {X32[2*k+1]}, 0xffff0000, {GX[k]}")
        for k in range(8): B(f"v_pk_mul_f32 {X32.sub(2*k,2)}, {X32.sub(2*k,2)}, {W32.sub(2*k,2)}")
        for k in range(8): B(f"v_cvt_pk_bf16_f32 {X32[k]}, {X32[2*k]}, {X32[2*k+1]}")
        B(f"v_mov_b32 {T[4+r]}, 0")
        for k in range(8): B(f"v_dot2_f32_bf16 {T[4+r]}, {X32[k]}, {T[8]}, {T[4+r]}")
    B("s_nop 2")
    for sh in (8, 4, 2, 1):
        for r in R2: B(f"v_add_f32_dpp {T[4+r]}, {T[4+r]}, {T[4+r]} row_ror:{sh} row_mask:0xf bank_mask:0xf")
        B("s_nop 0")
    for sw in ("16", "32"):
        for r in R2: B(f"v_mov_b32 {T[8+r]}, {T[4+r]}")
        B("s_nop 0")
        for r in R2: B(f"v_permlane{sw}_swap_b32 {T[4+r]}, {T[8+r]}")
        for r in R2: B(f"v_add_f32 {T[4+r]}, {T[4+r]}, {T[8+r]}")
    for r in R2: B(f"v_cvt_pk_bf16_f32 {T[4+r]}, {T[4+r]}, {T[4+r]}")
    for r in R2: B(f"v_and_b32 {T[4+r]}, 0xffff0000, {T[4+r]}")
    for r in R2: B(f"v_mul_f32 {T[4+r]}, {f2u(-LOG2E):#x}, {T[4+r]}")
    for r in R2: B(f"v_exp_f32 {T[4+r]}, {T[4+r]}")
    B("s_nop 0")
    for r in R2: B(f"v_add_f32 {T[4+r]}, 1.0, {T[4+r]}")
    for r in R2: B(f"v_rcp_f32 {T[4+r]}, {T[4+r]}")
    B("s_nop 0")
    for r in R2: B(f"v_cvt_pk_bf16_f32 {T[4+r]}, {T[4+r]}, {T[4+r]}")
    for r in R2: B(f"v_and_b32 {T[4+r]}, 0xffff0000, {T[4+r]}")
    B(f"""s_cmp_eq_u32 s{sIsB}, 0
    s_cbranch_scc1 P2_NOQF
    s_waitcnt vmcnt(8)
    s_mov_b64 exec, 1
    buffer_store_dword {vNon}, {vZero}, {srd(S_WS)}, s{sQf} offen sc1
    s_mov_b64 exec, -1
    P2_NOQF:
    s_lshl_b32 s{sT2}, s{sRB}, 5
    s_add_u32 s{sT2}, s{sT2}, s{sCB}
    s_lshl_b32 s{sT2}, s{sT2}, 2
    s_add_u32 s{sT2}, s{sT2}, s{sW}
    s_lshl_b32 s{sT2}, s{sT2}, 3
    s_add_u32 s{sT2}, s{sT2}, {G_OFF}
    s_mov_b64 exec, 1
    buffer_store_dwordx2 {T.sub(4,2)}, {vZero}, {srd(S_WS)}, s{sT2} offen sc1
    s_mov_b64 exec, -1""")
    for ab in range(2):
        for r in range(16): B(f"v_mov_b32 {O[ab][r]}, 0")
        for r in range(4): B(f"v_mov_b32 {Lc[ab][r]}, 0")
    for r in range(8): B(f"v_mov_b32 {P[1][r]}, 0")
    for t in range(2):
        for r in range(4): B(f"v_accvgpr_write_b32 {V[1][t][r]}, 0")
    vIdx = T[10]
    B(f"""v_bfe_u32 {T[4]}, {vL}, 2, 1
    v_cmp_eq_u32 vcc, 0, {T[4]}
    v_mov_b32 {T[5]}, 0x3f803f80
    v_mov_b32 {vCur}, {vL16}
    v_cndmask_b32 {T[4]}, 0, {T[5]}, vcc
    v_cndmask_b32 {T[5]}, {T[5]}, 0, vcc
    v_add_u32 {vNxt}, 32768, {vL16}
    v_and_b32 {vIdx}, 1, {vL}
    v_mul_u32_u24 {vIdx}, 0xaaaa, {vIdx}
    v_add_u32 {vIdx}, 0x4444, {vIdx}
    v_cmp_lt_u32 vcc, 23, {vL}
    v_add_u32 {vAF}, 128, {vL16}
    s_nop 0
    v_cndmask_b32 {vAF}, {vL16}, {vAF}, vcc""".replace(f"v_cndmask_b32 {T[5]}, {T[5]}, 0, vcc", f"v_xor_b32 {T[5]}, {T[5]}, {T[4]}"))
    for r in range(4): B(f"v_accvgpr_write_b32 {ONES[r]}, {T[4 + (r >> 1)]}")
    def lsum(o): return f"v_smfmac_f32_16x16x64_bf16 {Lc[o]}, {ONES}, {P[o]}, {vIdx}"
    B(f"""s_mov_b32 s{sCur}, 0
    s_mov_b32 s{sNext}, 32768
    s_mov_b32 s{sFree}, 65536
    s_add_u32 s{sL+14}, s{sM0}, 65536
    s_lshl_b32 s{sFl}, s{sRB}, 2
    s_add_u32 s{sFl}, s{sFl}, s{sW}
    s_lshl_b32 s{sFl}, s{sFl}, 6
    s_add_u32 s{sFl}, s{sFl}, s{sCB}
    s_lshl_b32 s{sFl}, s{sFl}, 2
    s_add_u32 s{sFl}, s{sFl}, {FL_H}
    s_lshl_b32 s{sT1}, s{sRB}, 3
    s_lshr_b32 s{sT2}, s{sCB}, 2
    s_add_u32 s{sT1}, s{sT1}, s{sT2}
    s_lshl_b32 s{sT1}, s{sT1}, 2
    s_and_b32 s{sT2}, s{sW}, 2
    s_add_u32 s{sT1}, s{sT1}, s{sT2}
    s_bfe_u32 s{sT2}, s{sCB}, 0x10001
    s_add_u32 s{sT1}, s{sT1}, s{sT2}
    s_lshl_b32 s{sT1}, s{sT1}, 8
    s_add_u32 s{sT1}, s{sT1}, {FL_Q}
    s_lshl_b32 s{sQf}, s{sRB}, 5
    s_add_u32 s{sQf}, s{sQf}, s{sCB}
    s_lshl_b32 s{sQf}, s{sQf}, 2
    s_add_u32 s{sQf}, s{sQf}, s{sW}
    s_lshl_b32 s{sQf}, s{sQf}, 13
    s_add_u32 s{sQf}, s{sQf}, {QF5_OFF}
    s_add_u32 s{sT3}, s{sQf}, 4096""")
    def check(regs):
        if len(regs) == 4:
            return [f"v_xor_b32 {r}, {r}, {vNon}" for r in regs] + [f"v_or3_b32 {regs[0]}, {regs[0]}, {regs[1]}, {regs[2]}", f"v_or_b32 {regs[0]}, {regs[0]}, {regs[3]}",
                    f"v_cmp_eq_u32 vcc, 0, {regs[0]}", "s_nop 0", "s_cmp_eq_u64 vcc, -1"]
        L = [f"v_cmp_eq_u32 vcc, s{sNonce}, {regs[0]}"]
        if len(regs) > 1: L += [f"v_cmp_eq_u32 s[{sT2}:{sT3}], s{sNonce}, {regs[1]}", "s_nop 0", f"s_and_b64 vcc, vcc, s[{sT2}:{sT3}]"]
        else: L += ["s_nop 0"]
        return L + ["s_cmp_eq_u64 vcc, -1"]
    def spin(label, load, regs, back=None):
        L = [f"s_mov_b32 s{sT0}, {SPIN_MAX}", f"{label}_L:", load, "s_waitcnt vmcnt(0)"] + check(regs)
        L += [f"s_cbranch_scc1 {back or label + '_OK'}", f"s_sleep {4 if back else 1}", f"s_sub_u32 s{sT0}, s{sT0}, 1",
              f"s_cmp_lg_u32 s{sT0}, 0", f"s_cbranch_scc1 {label}_L", "s_endpgm"]
        if not back: L.append(f"{label}_OK:")
        return L
    B.ext(ts.at("poll0"))
    B(f"""v_and_b32 {T[2]}, 40, {vL}
    v_cmp_eq_u32 vcc, 40, {T[2]}
    v_add_u32 {T[3]}, 128, {vQP}
    s_nop 0
    v_cndmask_b32 {T[2]}, {vQP}, {T[3]}, vcc""")
    qld = lambda dst: [f"buffer_load_dwordx4 {dst(ab, t)}, {T[2+t]}, {srd(S_WS)}, s{[sQf, sT3][ab]} offen offset:{t*512} {SC1}" for ab in range(2) for t in range(2)]
    if QPOLL:
        QV = S[1]
        B(f"s_mov_b32 s{sT0}, {SPIN_MAX}\nP2_QL:")
        B(f"buffer_load_dword {T[8]}, {vZero}, {srd(S_WS)}, s{sT1} offen sc1")
        B.ext(qld(lambda ab, t: QV.sub(8*ab + 4*t, 4)))
        B("s_waitcnt vmcnt(0)")
        B(f"v_max3_u32 {T[9]}, {QV[0]}, {QV[1]}, {QV[2]}")
        for k in range(3, 15, 2): B(f"v_max3_u32 {T[9]}, {QV[k]}, {QV[k+1]}, {T[9]}")
        B(f"""v_max_u32 {T[9]}, {QV[15]}, {T[9]}
        v_cmp_eq_u32 vcc, -1, {T[9]}
        v_readfirstlane_b32 s{sT2}, {T[8]}
        s_nop 0
        s_cmp_eq_u64 vcc, 0
        s_cbranch_scc1 P2_QOK
        s_cmp_eq_u32 s{sT2}, s{sNonce}
        s_cbranch_scc1 P2_QRE
        s_sub_u32 s{sT0}, s{sT0}, 1
        s_cmp_lg_u32 s{sT0}, 0
        s_cbranch_scc1 P2_QL
        s_endpgm
        P2_QRE:""")
        B.ext(qld(lambda ab, t: QV.sub(8*ab + 4*t, 4)))
        B("s_waitcnt vmcnt(0)\nP2_QOK:")
        B.ext(ts.at("poll1"))
        for ab in range(2):
            for t in range(2):
                for r in range(4): B(f"v_accvgpr_write_b32 {Q[ab][t][r]}, {QV[8*ab + 4*t + r]}")
    else:
        B.ext(spin("P2_POLL", f"buffer_load_dword {T[8]}, {vZero}, {srd(S_WS)}, s{sT1} offen sc1", [T[8]]))
        B.ext(ts.at("poll1"))
        B.ext(qld(lambda ab, t: Q[ab][t]))
    B("s_barrier")
    def kvdma(slot, tag):
        L = []
        for e in range(8):
            pre = []
            if e == 0: pre = [f"s_add_u32 m0, s{slot}, s{sM0}"]
            if e == 4: pre = [f"s_add_u32 s{sT0}, s{slot}, s{sM0}", f"s_add_u32 m0, s{sT0}, 4096", f"s_add_u32 s{sKVo}, s{sKVo}, 4096"]
            L.append((pre, VM(f"buffer_load_dwordx4 {vL16}, {srd(S_KVD)}, s{sKVo} offen offset:{(e&3)*1024} {SC1} lds", tag)))
        return L
    post_dma = f"s_add_u32 s{sKVo}, s{sKVo}, {32768 - 4096}"
    B(f"""ds_read_b128 {K[0][0]}, {vCur}
    ds_read_b128 {K[0][1]}, {vCur} offset:1024
    ds_read_b128 {V[0][0]}, {vCur} offset:2048
    ds_read_b128 {V[0][1]}, {vCur} offset:3072""")
    hist = list(S15) + list(EA) + list(B.lines)
    B(f"""s_waitcnt vmcnt(0) lgkmcnt(0)
    v_mfma_f32_32x32x16_bf16 {S[0]}, {K[0][0]}, {Q[0][0]}, 0
    v_mfma_f32_32x32x16_bf16 {S[0]}, {K[0][1]}, {Q[0][1]}, {S[0]}""")
    B.ext(ts.at("att"))
    B("s_nop 7\ns_nop 3")
    probs += check_hazards(B.lines, "p2pro")
    A.ext(B.lines)

    NS = 4
    S_AF, S_W3, S_OUT = S_A, S_B, S_D
    sMT, sNT = sL + 6, sL + 7
    sAo = sL + 8
    sSo3 = sL + 9
    sM3 = sL + 13
    sWo, sWoN = 30, 15
    sX3 = 16
    sSh, sAdv, sAdv28 = 10, 18, 19
    setup3 = Asm()
    MAP48 = opt.get("map48", 0)
    if MAP48:
        setup3(f"""s_and_b32 s{sT0}, s{sRB}, 4
        s_add_u32 s{sMT}, s{sRB}, s{sT0}
        s_bfe_u32 s{sT0}, s{sCB}, 0x10003
        s_lshl2_add_u32 s{sMT}, s{sT0}, s{sMT}
        s_lshr_b32 s{sT0}, s{sCB}, 4
        s_and_b32 s{sT1}, s{sCB}, 7
        s_lshl3_add_u32 s{sNT}, s{sT0}, s{sT1}""")
    else:
        setup3(f"""s_and_b32 s{sT0}, s{sCB}, 1
        s_lshl_b32 s{sMT}, s{sRB}, 1
        s_add_u32 s{sMT}, s{sMT}, s{sT0}
        s_lshr_b32 s{sT0}, s{sCB}, 3
        s_lshl_b32 s{sT0}, s{sT0}, 2
        s_bfe_u32 s{sT1}, s{sCB}, 0x20001
        s_add_u32 s{sNT}, s{sT0}, s{sT1}""")
    setup3(f"""s_lshl_b32 s{sT0}, s{sNT}, 7
    s_add_u32 s{S_W3}, s{P_WD}, s{sT0}
    s_addc_u32 s{S_W3+1}, s{P_WD+1}, 0
    s_sub_u32 s{S_W3+2}, {3584*2048}, s{sT0}
    s_add_u32 s{sWo}, s{P_WO}, s{sT0}
    s_addc_u32 s{sWo+1}, s{P_WO+1}, 0
    s_sub_u32 s{sWoN}, {1024*2048}, s{sT0}
    s_mov_b32 s{sSh}, 11
    s_mov_b32 s{S_AF+2}, 16384
    s_mov_b32 s{S_OUT}, s{P_OUT}
    s_mov_b32 s{S_OUT+1}, s{P_OUT+1}
    s_mov_b32 s{S_OUT+2}, 0x400000
    s_mul_i32 s{sAo}, s{sW}, {AFS2}
    s_lshl_b32 s{sT0}, s{sMT}, 14
    s_add_u32 s{sAo}, s{sAo}, s{sT0}
    s_add_u32 s{sAo}, s{sAo}, {AF2_OFF}
    s_add_u32 s{S_AF}, s{P_WS}, s{sAo}
    s_addc_u32 s{S_AF+1}, s{P_WS+1}, 0
    s_mov_b32 s{sAo}, 4096
    s_mov_b32 s{sAo+1}, 8192
    s_mov_b32 s{sX3}, 12288
    s_lshl_b32 s{sM3}, s{sW}, 14
    s_add_u32 s{sM3}, s{sM3}, {W3B}""")
    for e in range(1, 4): setup3(f"s_mov_b32 s{sSo3+e}, {e*16384 - e*1024}")
    if CW:
        setup3(f"""s_and_b32 s{sT0}, s{sNT}, 7
        s_cmp_lg_u32 s{sT0}, 3
        s_cbranch_scc1 P3_NOCW
        s_lshr_b32 s{sT0}, s{sNT}, 3
        s_mul_i32 s{sT0}, s{sT0}, {CW_SZ}
        s_add_u32 s{sT0}, s{sT0}, {CW_OFF}
        s_add_u32 s{S_W3}, s{P_WS}, s{sT0}
        s_addc_u32 s{S_W3+1}, s{P_WS+1}, 0
        s_mov_b32 s{S_W3+2}, {3584*256}
        s_add_u32 s{sWo}, s{S_W3}, {3584*256}
        s_addc_u32 s{sWo+1}, s{S_W3+1}, 0
        s_mov_b32 s{sWoN}, {1024*256}
        s_mov_b32 s{sSh}, 8
        s_mov_b32 s{sSo3+1}, 1024
        s_mov_b32 s{sSo3+2}, 2048
        s_mov_b32 s{sSo3+3}, 3072
        P3_NOCW:""")
    setup3(f"""s_lshl_b32 s{sAdv}, 128, s{sSh}
    s_mul_i32 s{sAdv28}, s{sAdv}, 28""")
    setup3v = Asm()
    setup3v(f"""v_lshrrev_b32 {T[0]}, 3, {vL}
    v_lshrrev_b32 {T[1]}, 4, {vL}
    v_lshlrev_b32 {T[2]}, 1, {T[1]}
    v_and_b32 {T[3]}, 7, {vL}
    v_xor_b32 {T[2]}, {T[2]}, {T[3]}
    v_lshlrev_b32 {T[2]}, 4, {T[2]}
    s_lshl_b32 s{sT0}, s{sW}, 5
    v_add_u32 {T[0]}, s{sT0}, {T[0]}
    v_lshl_add_u32 {vW3o}, {T[0]}, s{sSh}, {T[2]}
    s_lshl_b32 s{sT0}, s{sAdv}, 2
    v_add_u32 {T[11]}, s{sT0}, {vW3o}
    v_lshrrev_b32 {T[0]}, 2, {vL}
    v_bfe_u32 {T[1]}, {vL}, 3, 2
    v_and_b32 {T[2]}, 3, {vL}
    v_lshlrev_b32 {T[2]}, 3, {T[2]}
    v_lshl_add_u32 {T[2]}, {T[0]}, 7, {T[2]}
    v_add_u32 {T[2]}, s{sM3}, {T[2]}""")
    for i in range(4): setup3v(f"v_xor_b32 {T[3]}, {i}, {T[1]}\nv_lshl_add_u32 {vW3a[i]}, {T[3]}, 5, {T[2]}")
    setup3v(f"""s_lshr_b32 s{sT0}, s{sMT}, 1
    s_lshl_b32 s{sT0}, s{sT0}, 10
    s_lshl_b32 s{sT1}, s{sRB}, 10
    v_mov_b32 {T[4]}, s{sT0}
    v_mov_b32 {T[5]}, s{sT1}
    v_cmp_gt_u32 vcc, 32, {vL}
    v_and_b32 {T[6]}, 31, {vL}
    v_lshlrev_b32 {T[6]}, 2, {T[6]}
    v_cndmask_b32 {T[4]}, {T[4]}, {T[5]}, vcc
    v_bfe_u32 {T[5]}, {vL}, 3, 2
    v_lshl_add_u32 {T[4]}, {T[5]}, 8, {T[4]}
    v_and_b32 {T[5]}, 7, {vL}
    v_lshl_add_u32 {T[4]}, {T[5]}, 4, {T[4]}
    v_lshrrev_b32 {T[5]}, 5, {vL}
    v_lshl_add_u32 {T[5]}, {T[5]}, 8, {T[6]}
    v_and_b32 {T[7]}, 15, {vL}
    v_lshlrev_b32 {T[7]}, 2, {T[7]}""")
    XPF = opt.get("xpf", 0)
    sXP = 17
    setup3v(f"""v_and_b32 {T[0]}, 7, {vL}
    v_cmp_lt_u32 vcc, 2, {T[0]}
    v_lshrrev_b32 {T[8]}, 3, {vL}
    v_lshlrev_b32 {T[8]}, 4, {T[8]}
    v_addc_co_u32 {T[8]}, vcc, {T[8]}, {T[0]}, vcc
    v_lshlrev_b32 {T[8]}, 7, {T[8]}
    s_and_b32 s{sXP}, s{sNT}, 3
    s_lshl_b32 s{sXP}, s{sXP}, 2
    s_add_u32 s{sXP}, s{sXP}, s{sW}
    s_lshl_b32 s{sXP}, s{sXP}, 1
    s_add_u32 s{sXP}, s{sXP}, {opt.get("xp0", 80)}
    s_mul_i32 s{sXP}, s{sXP}, {AFS2}
    s_lshl_b32 s{sT0}, s{sMT}, 14
    s_add_u32 s{sXP}, s{sXP}, s{sT0}
    s_add_u32 s{sXP}, s{sXP}, {AF2_OFF}""")
    def xpf(adv): return [VM(f"buffer_load_dword a254, {T[8]}, {srd(S_WS)}, s{sXP} offen sc1", "XP"), f"s_add_u32 s{sXP}, s{sXP}, {adv}"]
    zero3 = [f"v_mov_b32 {acc3[i][j][r]}, 0" for i in range(4) for j in range(8) for r in range(4)]
    def w3dma(slot, e):
        m0 = f"s_add_u32 m0, s{sM3}, {slot*4096}"
        return m0, VM(f"buffer_load_dwordx4 {vW3o}, {srd(S_W3)}, {'0' if e == 0 else 's%d' % (sSo3+e)} offen offset:{e*1024} {SC1 if CW else ''} lds", ("W", slot))
    def xload(slot, j):
        return VM(f"buffer_load_dwordx4 {RX[slot][j]}, {vAF}, {srd(S_AF)}, {['0', 's%d' % sAo, 's%d' % (sAo+1), 's16'][j>>1]} offen offset:{(j&1)*2048} {opt.get('xflag', SC1)}", ("X", slot, j >> 2))
    adv3 = [f"v_add_u32 {vW3o}, s{sAdv}, {vW3o}", f"s_add_u32 s{S_AF}, s{S_AF}, {4*AFS2}\ns_addc_u32 s{S_AF+1}, s{S_AF+1}, 0"]
    def wread(slot, s):
        return [f"ds_read_b64_tr_b16 {RW[s][i].sub(2*hf,2)}, {vW3a[i]} offset:{slot*4096 + hf*2048}" for i in range(4) for hf in range(2)]
    def gm(s, j, i, first=False): return f"v_mfma_f32_16x16x32_bf16 {acc3[i][j]}, {RW[s&1][i]}, {RX[s][j]}, {0 if first else acc3[i][j]}"

    def att_parts(ab, kq, vp):
        o = ab ^ 1
        M = [f"v_mfma_f32_32x32x16_bf16 {S[o]}, {K[kq][0]}, {Q[o][0]}, 0",
             f"v_mfma_f32_32x32x16_bf16 {S[o]}, {K[kq][1]}, {Q[o][1]}, {S[o]}",
             f"v_mfma_f32_32x32x16_bf16 {O[o]}, {V[vp][0]}, {P[o].sub(0,4)}, {O[o]}",
             lsum(o),
             f"v_mfma_f32_32x32x16_bf16 {O[o]}, {V[vp][1]}, {P[o].sub(4,4)}, {O[o]}",
             None]
        ex = [f"v_exp_f32 {S[ab][r]}, {S[ab][r]}" for r in range(16)]
        cv = [f"v_cvt_pk_bf16_f32 {P[ab][r]}, {S[ab][2*r]}, {S[ab][2*r+1]}" for r in range(8)]
        return M, ex, cv
    def phase_plain(ab, kq, vp, extra):
        M, ex, cv = att_parts(ab, kq, vp)
        vl = []
        for r in range(16):
            vl.append(ex[r])
            if r >= 3 and r % 2 == 1: vl.append(cv[(r - 3)//2])
        vl.append(cv[7])
        mpos = opt.get("mpos", [0, 4, 9, 14, 17, 21])
        out = []; mi = 0
        for i, v in enumerate(vl):
            while mi < 6 and mpos[mi] == i:
                if M[mi]: out.append(M[mi])
                out.extend(extra.get(mi, [])); mi += 1
            out.append(v)
        return out
    def phase_merged(ab, kq, vp, G8, extra, tail):
        M, ex, cv = att_parts(ab, kq, vp)
        order = [M[0], G8[0], M[1], G8[1], G8[2], M[2], G8[3], M[3], G8[4], M[4], G8[5], M[5], G8[6], G8[7]]
        e, c = ex, cv
        fill = [[e[0], e[1], e[2]], [e[3]], [e[4], e[5], e[6]], [c[0], c[1]], [e[7]], [e[8], e[9], e[10]], [c[2], c[3]], [c[4]],
                [e[11]], [e[12], e[13], e[14]], [e[15]], [], [c[5], c[6]], [c[7]]]
        if opt.get("lpk"):
            pk = [f"v_pk_add_f32 {Lc[ab].sub(2,2)}, {Lc[ab].sub(2,2)}, {S[ab].sub(2*r,2)}" for r in range(8)]
            order[7] = pk[0]; order[11] = pk[1]
            fill[3] = fill[3] + [pk[2]]; fill[6] = fill[6] + [pk[3]]; fill[8] = fill[8] + [pk[4]]; fill[12] = fill[12] + [pk[5]]; fill[13] = [pk[6], pk[7]]
        if opt.get("lnone"): order[7] = "s_nop 0"; order[11] = "s_nop 0"
        out = []
        for k in range(14):
            if order[k]: out.append(order[k])
            out.extend(extra.get(k, [])); out.extend(fill[k]); out.extend(tail.get(k, []))
        return out
    sX3 = 16
    NP = opt.get("np", 4)
    PFSW = 6
    sKM = sL + 14
    def chunk(kind, hook=None, first=False, pfok=True, wpre=False):
        out = []
        mer = kind == "merged"
        for pi in range(16):
            tau, ab = pi >> 1, pi & 1
            kp = tau & 1
            ex = {}; tl = {}; pre = []
            if ab == 0:
                src = (vCur, (tau+1)*4096) if tau < 7 else (vNxt, 0)
                ld = [f"ds_read_b128 {K[kp^1][t]}, {src[0]} offset:{src[1] + t*1024}" for t in range(2)]
                if tau == 7: put(ex, 0, [Need(["KV"], "lgkmcnt(0)"), "s_barrier"])
            else:
                src = (vCur, (tau+1)*4096 + 2048) if tau < 7 else (vNxt, 2048)
                ld = [f"ds_read_b128 {V[kp^1][t]}, {src[0]} offset:{src[1] + t*1024}" for t in range(2)]
                pre = ["s_waitcnt lgkmcnt(0)"]
            kvd = VM(f"buffer_load_dwordx4 {vL16}, {srd(S_KVD)}, s{sKVo} offen offset:{(pi&3)*1024} {SC1} lds", "KV")
            if wpre:
                kvd = VM(f"buffer_load_dwordx4 {T[11]}, {srd(S_KVD)}, {'0' if pi & 3 == 0 else 's%d' % (sSo3 + (pi & 3))} offen offset:{(pi&3)*1024} {SC1 if CW else ''} lds", "PW")
            rotate = [f"s_mov_b32 s{sT0}, s{sCur}", f"s_mov_b32 s{sCur}, s{sNext}", f"s_mov_b32 s{sNext}, s{sFree}", f"s_mov_b32 s{sFree}, s{sT0}",
                      f"s_add_u32 s{sKM}, s{sT0}, s{sM0}", f"s_add_u32 s{sIt}, s{sIt}, 1"]
            upd = [f"v_add_u32 {vCur}, s{sCur}, {vL16}", f"v_add_u32 {vNxt}, s{sNext}, {vL16}"]
            if not mer:
                put(ex, 1, ld[0]); put(ex, 2, ld[1])
                if pi < 8:
                    lateput = [(4, f"s_mov_b32 m0, s{sKM}"), (5, kvd)]
                    if pi == 3: lateput += [(5, f"s_add_u32 s{sKVo}, s{sKVo}, 4096"), (5, f"s_add_u32 s{sKM}, s{sKM}, 4096")]
                    for g_, x_ in lateput: put(ex, g_, x_)
                    if pi == 7: put(ex, 5, post_dma)
                if pi == 15:
                    for k in range(3): put(ex, 3 + k, rotate[2*k:2*k+2])
            else:
                s, q = pi >> 2, pi & 3
                G8 = [gm(s, 2*q + jj, i, first and s == 0) for jj in range(2) for i in range(4)]
                if q == 0: pre = [Need([("W", (s+1) % NS), ("X", s, 1)], "lgkmcnt(0)")]
                elif ab == 1 and not trace: pre = ["s_waitcnt lgkmcnt(2)"]
                m0, d = w3dma(s, q)
                rd = wread((s+1) % NS, (s+1) & 1)
                ms = opt.get("ms", 3)
                if ms == 1:
                    put(tl, 1, ld[0]); put(tl, 4, ld[1])
                    if q < 3: put(tl, 7, rd[2*q]); put(ex, 13, rd[2*q+1])
                    else: put(tl, 3, rd[2*q]); put(tl, 7, rd[2*q+1])
                    put(ex, 8, xload(s, 2*q)); put(ex, 13, xload(s, 2*q+1))
                    put(ex, 11, m0); put(ex, 12, d)
                    kvs = (9, 10, tl)
                elif ms == 0:
                    put(ex, 2, ld[0]); put(ex, 5, ld[1]); put(ex, 3, rd[2*q]); put(ex, 10, rd[2*q+1])
                    put(ex, 8, xload(s, 2*q)); put(ex, 13, xload(s, 2*q+1)); put(ex, 0, m0); put(ex, 1, d)
                    kvs = (7, 9, ex)
                    if ab == 1 and q: pre = ["s_waitcnt lgkmcnt(1)" if not trace else "s_waitcnt lgkmcnt(0)"]
                elif ms == 2:
                    put(ex, 1, ld[0]); put(ex, 4, ld[1])
                    if q < 3: put(ex, 10, rd[2*q]); put(ex, 12, rd[2*q+1])
                    else: put(ex, 6, rd[2*q]); put(ex, 7, rd[2*q+1])
                    put(ex, 2, m0); put(ex, 3, d); put(ex, 8, xload(s, 2*q)); put(ex, 13, xload(s, 2*q+1))
                    kvs = (4, 5, ex)
                elif ms == 3:
                    put(ex, 0, ld[0]); put(ex, 2, ld[1])
                    if q < 3: put(ex, 9, rd[2*q]); put(ex, 12, rd[2*q+1])
                    else: put(ex, 5, rd[2*q]); put(ex, 9, rd[2*q+1])
                    put(ex, 3, m0); put(ex, 4, d); put(ex, 8, xload(s, 2*q)); put(ex, 13, xload(s, 2*q+1))
                    kvs = (10, 11, ex)
                if q == 3: put(ex, 13, adv3[0])
                if pi < 8: put(ex, kvs[0], f"s_mov_b32 m0, s{sKM}"); put(kvs[2], kvs[1], kvd)
                if pi in (4,): put(ex, 1, f"s_add_u32 s{sKVo}, s{sKVo}, 4096"); put(ex, 2, f"s_add_u32 s{sKM}, s{sKM}, 4096")
                if pi == 8: put(ex, 1, post_dma)
                if wpre and XPF & 1 and pi == opt.get("xpp", 13): put(ex, 11, xpf(AFS2))
                if wpre and pi in (4, 8): put(ex, 0, f"v_add_u32 {T[11]}, s{sAdv}, {T[11]}")
                if q == 0 and s > 0: put(ex, 5, adv3[1])
                if pi == 15:
                    for k in range(6): put(ex, 2 + k, rotate[k])
                if pi == 9 and PF:
                    put(ex, 11, pfop[0])
                    put(ex, 6, [f"s_cmp_eq_u32 s{sIt}, {PFSW}", f"s_cselect_b32 s{sPF}, 0, s{sPF}", f"s_cselect_b32 s{S_PF}, s{P_WO}, s{S_PF}",
                                f"s_cselect_b32 s{S_PF+1}, s{P_WO+1}, s{S_PF+1}", f"s_cselect_b32 s{S_PF+2}, 0x200000, s{S_PF+2}"])
                if pi == 10 and PF: put(ex, 1, pfop[1])
                if pi == 12: put(ex, 11, cp(False))
            if pi % 8 == 6: put(ex, 5, tr_issue())
            if pi % 8 == 7: pre = pre + tr_commit()
            if hook: hook(pi, ex, pre)
            if mer: out += pre + phase_merged(ab, kp ^ ab, kp ^ 1 ^ ab, G8, ex, tl)
            else: out += pre + phase_plain(ab, kp ^ ab, kp ^ 1 ^ ab, ex)
        if mer: out += adv3[1:]
        out += upd
        return out

    dflt = {3: dict(hs=[1, 1], gs=23, hf=26, hp=36, hc=39, pf=[25, 28, 41]), 4: dict(hs=[2, 1], gs=32, hf=44, hp=50, hc=53, pf=[34, 38, 44, 56])}[NP]
    dflt.update(opt.get("sched", {}))
    HSN, HSD = dflt["hs"]; GS, HF, HPg, HC, PFP = dflt["gs"], dflt["hf"], dflt["hp"], dflt["hc"], dflt["pf"]
    assert len(PFP) == NP
    hst = hst0 + hst1a
    hph = [dflt.get("hs0", 0) + n*HSN//HSD for n in range(16)]
    assert hph[-1] < GS and (GS & 15) >= 0
    hpoll = f"buffer_load_dwordx4 {vFl}, {T[4]}, {srd(S_WS)}, s{sT1} offen sc1"
    LASTP = 16*NP - 1
    wph = [GS + 1 + k // 2 for k in range(16)]
    NXP = opt.get("nxp", 32)
    xph = [HC + 1 + (k * (LASTP - HC)) // NXP for k in range(NXP)] + [-1] * (32 - NXP)
    gloads = [VM(f"buffer_load_dword {vG[ab]}, {T[6]}, {srd(S_WS)}, s{sT2} offen offset:{ab*128} sc1", "G") for ab in range(2)]
    gloads += [VM(f"buffer_load_dword {SCL[j]}, {T[7]}, {srd(S_WS)}, s{sT3} offen offset:{j*64} sc1", "G") for j in range(8)]
    def hookM0(pi, ex, pre):
        n = NXP + pi
        if n < 32:
            s_, j_ = divmod(n, 8)
            put(ex, 6, VM(f"buffer_load_dwordx4 {RX[s_][j_]}, {vL16}, {srd(S_AF)}, s{sX3 + (j_>>2)} offen offset:{(j_&3)*1024} {SC1}", ("X", s_, j_ >> 2)))
        if pi >= 11: put(ex, 6, gloads[2*(pi - 11):2*(pi - 10)])
    def mkhook(base):
        def hook(pi, ex, pre):
            gp = base + pi
            k = 0
            for n in range(16):
                if hph[n] == gp: put(ex, [3, 0][k], hst[n]); k += 1
            if gp == GS:
                put(ex, 0, setup3.lines[:15]); put(ex, 1, setup3.lines[15:]); put(ex, 3, setup3v.lines)
                if PF:
                    put(ex, 3, [f"s_lshl_b32 s{sT1}, s2, 2", f"s_add_u32 s{sT1}, s{sT1}, s{sW}", f"s_lshl_b32 s{sT1}, s{sT1}, 10",
                        f"v_lshrrev_b32 {vPF}, 3, {vL}", f"v_lshlrev_b32 {vPF}, 7, {vPF}", f"v_add_u32 {vPF}, s{sT1}, {vPF}",
                        f"s_mov_b32 s{S_PF}, s{P_WD}", f"s_mov_b32 s{S_PF+1}, s{P_WD+1}", f"s_mov_b32 s{S_PF+2}, {3584*2048}", f"s_mov_b32 s{sPF}, 0x100000"])
            if gp in PFP and PF: put(ex, 2, pfop)
            if gp in (9, 16*NP - 22): put(ex, 2, cp())
            k = 0
            for n in range(16):
                if wph[n] == gp:
                    s_, e_ = divmod(n, 4)
                    m0, d = w3dma(s_, e_)
                    if k == 0: put(ex, 0, m0)
                    put(ex, 2*k + 1, [d] + ([adv3[0]] if e_ == 3 else [])); k += 1
            if gp == HF:
                put(ex, 2, [Need(["H"]), "s_mov_b64 exec, 1", VM(f"buffer_store_dword {vNon}, {vZero}, {srd(S_WS)}, s{sFl} offen sc1", "HF"), "s_mov_b64 exec, -1", "s_nop 2"])
            if gp == HPg: put(ex, 3, [f"s_mov_b32 s{sT1}, {FL_H}", VM(hpoll, "HP")])
            if gp == HC:
                put(ex, 2, [Need(["HP"])] + check([vFl[k] for k in range(4)]) + ["s_cbranch_scc0 P3_SLOWH", "P3_HOK:"])
                put(ex, 3, [f"s_lshl_b32 s{sT2}, s{sRB}, 10", f"s_lshl_b32 s{sT3}, s{sW}, 8", f"s_add_u32 s{sT2}, s{sT2}, s{sT3}", f"s_add_u32 s{sT2}, s{sT2}, {G_OFF}",
                            f"s_lshl_b32 s{sT3}, s{sMT}, 9", f"s_add_u32 s{sT3}, s{sT3}, {G_OFF}"])
            k = 0
            for n in range(32):
                if xph[n] == gp:
                    s_, j_ = divmod(n, 8)
                    put(ex, [0, 2, 3, 4][k], [xload(s_, j_)] + (adv3[1:] if j_ == 7 else [])); k += 1
            if gp == LASTP:
                put(ex, 5, [Need([("W", 0)])] + wread(0, 0))
                if NXP == 24: put(ex, 5, [f"s_mov_b32 s{sX3}, s{sAo}", f"s_mov_b32 s{sX3+1}, s{sAo+1}"] + adv3[1:])
        return hook
    def retag(ch, cur, need):
        out = []
        for l in ch:
            if isinstance(l, VM) and l.tag == "KV": out.append(VM(l, cur))
            elif isinstance(l, Need) and "KV" in l.tags: out.append(Need([need], l.extra))
            else: out.append(l)
        return out
    hist = [VM(l, "KV-1") if isinstance(l, VM) and l.tag == "KV" else l for l in hist]
    CP = []; hh_ = list(hist)
    for c in range(NP):
        ch = resolve_waits(retag(chunk("plain", mkhook(16*c)), f"KV{c}", f"KV{c-1}"), hh_)
        CP.append(ch); hh_ += ch
    mA = retag(chunk("merged"), "KVa", "KVb"); mB = retag(chunk("merged"), "KVb", "KVa")
    mres = resolve_waits(mA, mB)
    M = mres
    M0 = resolve_waits(retag(chunk("merged", hookM0, first=True), "KVb", f"KV{NP-1}"), hh_)
    probs += verify_waits(hh_ + M0 + M, len(hh_ + M0), "M0->M")
    WPRE = opt.get("wpre", 1)
    if WPRE:
        MW = resolve_waits(retag(chunk("merged", wpre=True), "-", "KVa"), M)
        probs += verify_waits(M + MW + [l for l in MW if not (isinstance(l, Need) and "KVa" in l.tags)], len(M + MW), "MW->MW")
    mab = opt.get("mabl", "")
    def abl(L):
        out = []
        for l in L:
            if "x" in mab and isinstance(l, VM) and isinstance(l.tag, tuple) and l.tag[0] == "X": continue
            if "w" in mab and isinstance(l, VM) and isinstance(l.tag, tuple) and l.tag[0] == "W": continue
            if "t" in mab and l.startswith("ds_read_b64_tr"): continue
            if "k" in mab and l.startswith("ds_read_b128"): continue
            if "s" in mab and l.startswith(("s_add", "s_mov", "s_cmp", "s_cselect")) and f"s{sIt}" not in l and "exec" not in l: continue
            if "n" in mab and isinstance(l, Need): out.append("s_waitcnt lgkmcnt(0)" if l.extra else "s_nop 0"); continue
            if "g" in mab and l.startswith("v_mfma_f32_16x16") and "a[2" in l: continue
            out.append(l)
        return out
    Me = abl(M); M0e = abl(M0)
    D = Asm()
    D(f"s_mov_b32 s{sIt}, 0")
    for c in range(NP): D.ext(ts.at(f"c{c}")); D.ext(CP[c])
    D.ext(ts.at("m")); D.ext(M0e)
    D(".p2align 6\nP2_MLOOP:")
    D.ext(Me)
    if WPRE:
        D(f"""s_cmp_lt_u32 s{sIt}, 6
        s_cbranch_scc1 P2_MLOOP
        s_mov_b32 s{S_KVD}, s{sWo}
        s_mov_b32 s{S_KVD+1}, s{sWo+1}
        s_mov_b32 s{S_KVD+2}, s{sWoN}""")
        if CPF: D(cpa)
        D("P2_MWLOOP:")
        D.ext(abl(MW))
        D(f"s_cmp_lt_u32 s{sIt}, 8\ns_cbranch_scc1 P2_MWLOOP")
        probs += check_hazards(M + MW + MW, "mw")
        M = MW
    else:
        D(f"s_cmp_lt_u32 s{sIt}, 8\ns_cbranch_scc1 P2_MLOOP")
    probs += check_hazards(B.lines[-8:] + sum(CP, []) + M0 + M + M, "att")
    A.ext(D.lines)

    C = Asm()
    C.ext(ts.at("attend"))
    C(f"""v_mfma_f32_32x32x16_bf16 {O[1]}, {V[1][0]}, {P[1].sub(0,4)}, {O[1]}
    {lsum(1)}
    v_mfma_f32_32x32x16_bf16 {O[1]}, {V[1][1]}, {P[1].sub(4,4)}, {O[1]}""")
    C(f"v_mov_b32 {T[1]}, 0")
    for r in range(16): C(f"v_fmac_f32 {T[1]}, 0, {O[0][r]}")
    for r in range(16): C(f"v_fmac_f32 {T[1]}, 0, {O[1][r]}")
    for ab in range(2): C(f"v_add_f32 {Lc[ab][0]}, {Lc[ab][0]}, {Lc[ab][1]}")
    C(f"""s_mov_b32 s{sT0}, {f2u(2.0**-60):#x}
    s_mov_b32 s{sT1}, {f2u(2.0**100):#x}
    v_cmp_le_f32 vcc, s{sT0}, {Lc[0][0]}
    v_cmp_le_f32 s[{S_C}:{S_C+1}], s{sT0}, {Lc[1][0]}
    s_nop 1
    s_and_b64 vcc, vcc, s[{S_C}:{S_C+1}]
    v_cmp_ge_f32 s[{S_C}:{S_C+1}], s{sT1}, {Lc[0][0]}
    v_cmp_ge_f32 s[{sT2}:{sT3}], s{sT1}, {Lc[1][0]}
    s_nop 1
    s_and_b64 vcc, vcc, s[{S_C}:{S_C+1}]
    s_and_b64 vcc, vcc, s[{sT2}:{sT3}]
    v_cmp_eq_f32 s[{S_C}:{S_C+1}], 0, {T[1]}
    s_nop 1
    s_and_b64 vcc, vcc, s[{S_C}:{S_C+1}]
    s_cmp_eq_u64 vcc, -1""")
    if opt.get("force_fallback"): C("s_branch P2_FALLBACK")
    C("s_cbranch_scc0 P2_FALLBACK")
    C("P2_FINISH:")
    for ab in range(2): C(f"v_rcp_f32 {T[2*ab]}, {Lc[ab][0]}")
    C(f"""s_add_u32 s{sT0}, s{sCB}, 112
    s_mul_i32 s{sT0}, s{sT0}, {AFS2}
    s_lshl_b32 s{sT1}, s{sRB}, 15
    s_add_u32 s{sT0}, s{sT0}, s{sT1}
    s_lshl_b32 s{sT1}, s{sW}, 13
    s_add_u32 s{sT0}, s{sT0}, s{sT1}
    s_add_u32 s{sT0}, s{sT0}, {AF2_OFF}
    s_add_u32 s{sT1}, s{sT0}, 4096
    v_and_b32 {vFl[2]}, 40, {vL}
    v_cmp_eq_u32 vcc, 40, {vFl[2]}
    v_add_u32 {vFl[2]}, 128, {vQP}
    s_nop 0
    v_cndmask_b32 {vFl[1]}, {vQP}, {vFl[2]}, vcc""")
    for ab in range(2): C(f"v_mul_f32 {T[2*ab]}, {T[2*ab]}, {vG[ab]}")
    for ab in range(2):
        for r in range(0, 16, 2):
            C(f"v_pk_mul_f32 {O[ab].sub(r,2)}, {O[ab].sub(r,2)}, {T.sub(2*ab,2)} op_sel_hi:[1,0]")
        for r in range(8): C(f"v_cvt_pk_bf16_f32 {S[ab][r]}, {O[ab][2*r]}, {O[ab][2*r+1]}")
        for c in range(2):
            C(VM(f"buffer_store_dwordx4 {S[ab].sub(4*c,4)}, {vFl[1+c]}, {srd(S_WS)}, s{sT0+ab} offen offset:{c*512} {SC1}", "O"))
    for j in range(8): C(f"v_sub_f32 {SCL[j]}, 1.0, {SCL[j]}")
    for j in range(8): C(f"v_cvt_pk_bf16_f32 {SCL[j]}, {SCL[j]}, {SCL[j]}")
    for j in range(8): C(f"v_and_b32 {SCL[j]}, 0xffff0000, {SCL[j]}")
    sFC = sL
    C(f"""s_lshl_b32 s{sFC}, s{sMT}, 9
    s_add_u32 s{sFC}, s{sFC}, {FL_O}
    s_add_u32 s{sFl}, s{sFl}, {FL_O - FL_H}""")
    C.ext(ts.at("tail"))
    EPI_IL = opt.get("epi_il", 1)
    groups = []
    if EPI_IL:
        n0 = next(k for k, l in enumerate(C.lines) if l.startswith("v_mov_b32") )
        rest = C.lines[n0:]; C.lines = C.lines[:n0]
        k0 = next(k for k, l in enumerate(rest) if l.startswith("s_mov_b32"))
        k1 = rest.index("P2_FINISH:")
        groups = [[l] for l in rest[:k0]] + [rest[k0:k1 + 1]] + [[l] for l in rest[k1 + 1:]]
    vPa = [O[0][i] for i in range(4)]; vPb = [O[0][4 + i] for i in range(4)]
    def pread(st, dst):
        base = vPb if st < 2 else vPa
        return [f"ds_read_b64_tr_b16 {dst[i].sub(2*hf,2)}, {base[i]} offset:{(st & 1)*4096 + hf*2048}" for i in range(4) for hf in range(2)]
    def p3iter(hook=None, now=False):
        out = []
        for s in range(NS):
            m = [gm(s, j, i) for j in range(8) for i in range(4)]
            f = {}
            if opt.get("t3", 1) == 0:
                f[-1] = [Need([("W", (s+1) % NS), ("X", s, 1)], "lgkmcnt(0)"), w3dma(s, 0)[0]]
                dgap = [0, 6, 14, 22]
                for e in range(4): put(f, dgap[e], w3dma(s, e)[1])
                for k, r in enumerate(wread((s + 1) % NS, (s+1) & 1)): put(f, 1 + 3*k, r)
                for j in range(8): put(f, 4*j + 3 + (1 if j < 7 else 0), xload(s, j))
            else:
                f[-1] = [Need([("X", s, 0)], "lgkmcnt(0)"), w3dma(s, 0)[0]]
                dgap = opt.get("t3w", [0, 2, 6, 10])
                if now: f[-1] = f[-1][:1]
                else:
                    for e in range(4): put(f, dgap[e], w3dma(s, e)[1])
                put(f, 15, Need([("X", s, 1)]))
                rg0 = opt.get("t3r", 18)
                if not (now and s == 3): put(f, rg0 - 1, Need([("W", (s+1) % NS)]))
                for k, r in enumerate(pread(0, RW[0]) if (now and s == 3) else wread((s + 1) % NS, (s+1) & 1)): put(f, rg0 + k + (1 if rg0 + k >= 20 else 0) + (1 if rg0 + k >= 23 else 0), r)
                for j in range(8): put(f, 4*j + 3 + (1 if j < 7 else 0), xload(s, j))
            put(f, 31, adv3)
            put(f, 28, tr_issue())
            if trace: f[-1] = f[-1][:1] + tr_commit() + f[-1][1:]
            if hook: hook(s, f)
            out += interleave(m, f)
        return out
    opoll = f"buffer_load_dword {vFl[0]}, {T[5]}, {srd(S_WS)}, s{sFC} offen sc1"
    NT = NP - 2
    OFS, OPS = opt.get("oflag_step", 2), opt.get("opoll_step", 4*NT - 1 if NT == 1 else 4*NT - 2)
    def mkT(base):
        def hookT(s, f):
            if base == 0 and s < 2:
                R_ = opt.get("epi_rate", 3)
                for g_ in range(2 if s == 0 else 0, 31):
                    for _ in range(R_):
                        if groups: put(f, g_, groups.pop(0))
                assert s == 0 or not groups
            if base + s == OFS: put(f, 10, [Need(["O"]), "s_mov_b64 exec, 1", VM(f"buffer_store_dword {vNon}, {vZero}, {srd(S_WS)}, s{sFl} offen sc1", "OF"), "s_mov_b64 exec, -1", "s_nop 2"])
            if base + s == OPS: put(f, 26, VM(opoll, "OP"))
            if base + s == 1 and CPF: put(f, 14, [cpa, f"v_min_u32 v0, L_END-{NAME}-4, v0"] + cp(False))
        return hookT
    T5 = []
    for k in range(NT): T5 += resolve_waits(p3iter(mkT(4*k)), M + M + C.lines + T5)
    L3 = resolve_waits(p3iter())
    mid = [Need(["OP"])] + check([vFl[0]]) + ["s_cbranch_scc0 P3_SLOWO", "P3_OOK:",
           f"s_mov_b32 s{S_W3}, s{sWo}", f"s_mov_b32 s{S_W3+1}, s{sWo+1}", f"s_mov_b32 s{S_W3+2}, s{sWoN}",
           f"v_subrev_u32 {vW3o}, s{sAdv28}, {vW3o}", f"s_mov_b32 s{sIt}, 6", "s_barrier",
           f"v_add_u32 {T[0]}, 0x10000, {vL16}", f"v_and_b32 {T[1]}, 15, {vL}", f"v_lshlrev_b32 {T[1]}, 11, {T[1]}", f"v_bfe_u32 {T[2]}, {vL}, 4, 1",
           f"v_lshl_add_u32 {T[1]}, {T[2]}, 5, {T[1]}", f"v_lshrrev_b32 {T[2]}, 5, {vL}", f"v_lshl_add_u32 {T[1]}, {T[2]}, 4, {T[1]}",
           f"s_lshl_b32 s{sT0}, s{sMT}, 18", f"s_lshl_b32 s{sT1}, s{sW}, 16", f"s_add_u32 s{sT0}, s{sT0}, s{sT1}",
           f"s_lshl_b32 s{sT1}, s{sNT}, 7", f"s_add_u32 s{sT0}, s{sT0}, s{sT1}", f"s_add_u32 s{sT1}, s{sT0}, 32768"]
    if XPF & 2:
        mid += [f"s_add_u32 s{sXP}, s{sXP}, {(112 - opt.get('xp0', 80) - (2 if XPF & 1 else 0))*AFS2}"] + xpf(AFS2) + xpf(0)
    if WPRE:
        mid += [f"s_lshl_b32 s{sT2}, s{sW}, 13", f"s_add_u32 s{sT2}, s{sT2}, {W3B}"]
        mid += [f"v_subrev_u32 {vPa[i]}, s{sT2}, {vW3a[i]}" for i in range(4)] + [f"v_add_u32 {vPb[i]}, 0x10000, {vPa[i]}" for i in range(4)]
    mid = resolve_waits(mid, T5)
    probs += verify_waits(M + C.lines + T5 + mid + L3, len(M + C.lines + T5 + mid), "T5->L3")
    tail = [f"s_add_u32 s{sIt}, s{sIt}, 1", f"s_cmp_eq_u32 s{sIt}, 8", "s_cbranch_scc1 P3_DONE", "s_nop 7"]
    for i in range(4):
        for j in range(8):
            for r in (0, 2):
                tail.append(f"v_pk_mul_f32 {acc3[i][j].sub(r,2)}, {acc3[i][j].sub(r,2)}, {SCL.sub(j & ~1, 2)} op_sel:[0,{j&1}] op_sel_hi:[1,{j&1}]")
    tail += ["s_nop 0", "s_branch P3_LOOP", "P3_DONE:"]
    probs += check_hazards(M[-30:] + C.lines + T5 + mid + L3 + tail + L3, "tail") + check_hazards(L3 + L3, "l3")
    tab = opt.get("tabl", "")
    def tabl(L):
        out = []
        for l in L:
            if isinstance(l, VM) and isinstance(l.tag, tuple) and l.tag[0].lower() in tab: continue
            if "t" in tab and l.startswith("ds_read_b64_tr"): continue
            if "m" in tab and l.startswith("v_mfma"): continue
            if "a" in tab and l in adv3: continue
            out.append(l)
        return out
    T5 = tabl(T5); L3 = tabl(L3)
    C.ext(T5); C.ext(ts.at("t5end")); C.ext(mid); C.ext(ts.at("l3"))
    if WPRE:
        def hookL7(s, f):
            if s == 0:
                for j in range(8):
                    sc = [f"v_pk_mul_f32 {acc3[i][j].sub(r,2)}, {acc3[i][j].sub(r,2)}, {SCL.sub(j & ~1, 2)} op_sel:[0,{j&1}] op_sel_hi:[1,{j&1}]" for i in range(4) for r in (0, 2)]
                    if j == 0: put(f, -1, sc + ["s_nop 1"])
                    else:
                        for k in range(8): put(f, 4*(j - 1) + k // 3, sc[k])
        L7 = resolve_waits(p3iter(hookL7, now=True), L3 + L3)
        probs += check_hazards(L3 + L7, "l7")
        C.ext(L3); C.ext(tabl(L7)); C.ext(ts.at("l3end"))
        LPREV = L3 + L7
    else:
        C(".p2align 6\nP3_LOOP:")
        C.ext(L3); C.ext(tail); C.ext(ts.at("l3end"))
        LPREV = L3 + L3
    for w in range(3): C(f"s_cmp_eq_u32 s{sW}, {w}\ns_cbranch_scc1 P3_FIN{w}")
    A.ext(C.lines)
    RWF = [RW[0]] + [[Reg("a", 128 + 16*k + 4*i, 4) for i in range(4)] for k in range(3)]
    def fin(w):
        def adr(off): return (vL16, off) if off < 65536 else (T[0], off - 65536)
        own = [2*w, 2*w + 1]
        oth = [j for d in range(1, 4) for j in (2*((w + d) & 3), 2*((w + d) & 3) + 1)]
        mm = lambda s_, j, i: f"v_mfma_f32_16x16x32_bf16 {acc3[i][j]}, {RWF[s_][i]}, {RX[s_][j]}, {acc3[i][j]}"
        FA = opt.get("fa", 2)
        m = [mm(s_, j, i) for s_ in range(FA) for j in oth + own for i in range(4)]
        G0 = 32*FA; PJ = 4*(4 - FA)
        f = {}
        f[-1] = [Need([("X", 0, 1)] + ([] if WPRE else [("W", 1)]), "lgkmcnt(0)")]
        k = 0
        for s_ in (1, 2, 3):
            if s_ > 1 and not WPRE: put(f, k, Need([("W", s_)]))
            for r in (pread(s_, RWF[s_]) if WPRE else [f"ds_read_b64_tr_b16 {RWF[s_][i].sub(2*hf,2)}, {vW3a[i]} offset:{s_*4096 + hf*2048}" for i in range(4) for hf in range(2)]):
                put(f, k, r); k += 1
        for s_ in range(1, FA): put(f, 32*s_ - 1, Need([("X", s_, 1)], "lgkmcnt(0)"))
        put(f, G0 - 1, Need([("X", 3, 1)], "lgkmcnt(0)"))
        if WPRE: put(f, 31, "s_barrier")
        for n, j in enumerate(oth + own):
            m += [mm(s_, j, i) for s_ in range(FA, 4) for i in range(4)]
        for n, j in enumerate(oth):
            d = j >> 1; q = (w - d - 1) & 3
            for i in range(4):
                b_, off = adr((d*3 + q)*8192 + ((j & 1)*4 + i)*1024)
                put(f, G0 + PJ*(n + 1) + 5 + (2 if FA == 1 else 1)*i, f"ds_write_b128 {b_}, {acc3[i][j]} offset:{off}")
        free = [acc3[i][j] for j in oth for i in range(4)]
        g0 = G0 + PJ*7 + 2
        put(f, g0, ["s_waitcnt lgkmcnt(0)", "s_barrier"])
        k = 0
        for q in range(3):
            for jj in range(2):
                for i in range(4):
                    b_, off = adr((w*3 + q)*8192 + (jj*4 + i)*1024)
                    put(f, min(g0 + k // (3 if FA == 1 else 4), 127), f"ds_read_b128 {free[k]}, {b_} offset:{off}"); k += 1
        R = Asm()
        R.ext(resolve_waits(interleave(m, f), LPREV))
        R.ext(ts.at("redw"))
        R("s_nop 3")
        for q in range(3):
            R(f"s_waitcnt lgkmcnt({[15, 8, 0][q] if not ts.on else 0})")
            for jj in range(2):
                for i in range(4):
                    a = acc3[i][2*w+jj]; b = free[q*8 + jj*4 + i]
                    for r in (0, 2): R(f"v_pk_add_f32 {a.sub(r,2)}, {a.sub(r,2)}, {b.sub(r,2)}")
        for jj in range(2):
            for ip in range(2):
                X, Y = acc3[2*ip][2*w+jj], acc3[2*ip+1][2*w+jj]
                Dd = S[0].sub(4*(jj*2+ip), 4)
                R(f"v_cvt_pk_bf16_f32 {Dd[0]}, {X[0]}, {X[1]}\nv_cvt_pk_bf16_f32 {Dd[1]}, {X[2]}, {X[3]}")
                R(f"v_cvt_pk_bf16_f32 {Dd[2]}, {Y[0]}, {Y[1]}\nv_cvt_pk_bf16_f32 {Dd[3]}, {Y[2]}, {Y[3]}")
                R(f"s_nop 1\nv_permlane16_swap_b32 {Dd[0]}, {Dd[2]}\nv_permlane16_swap_b32 {Dd[1]}, {Dd[3]}")
                R(f"buffer_store_dwordx4 {Dd}, {T[1]}, {srd(S_OUT)}, s{sT0+jj} offen offset:{ip*64} {opt.get('outflag', '')}")
        if trace:
            R(f"""s_waitcnt vmcnt(0)
            s_memrealtime s[100:101]
            s_waitcnt lgkmcnt(0)
            s_lshl_b64 exec, 1, s81
            v_mov_b32 v0, s100
            s_mov_b64 exec, -1
            s_lshl_b32 s80, s2, 2
            s_add_u32 s80, s80, s{sW}
            s_lshl_b32 s80, s80, 8
            s_add_u32 s80, s80, {TS_OFF}
            v_lshlrev_b32 {T[3]}, 2, {vL}
            buffer_store_dword v0, {T[3]}, {srd(S_WS)}, s80 offen
            s_waitcnt vmcnt(0) ; TRACE""")
        if opt.get("dbgt"):
            R(f"""s_waitcnt vmcnt(0) lgkmcnt(0)
            s_memrealtime s[100:101]
            s_waitcnt lgkmcnt(0)
            s_mov_b32 s{S_C}, s{P_DBG}
            s_mov_b32 s{S_C+1}, s{P_DBG+1}
            s_mov_b32 s{S_C+2}, 256
            s_mov_b64 exec, 1""")
            for i in range(10):
                R(f"""s_sub_u32 s80, s{82+2*i}, s{sNonce}
                s_add_u32 s80, s80, 1000
                v_mov_b32 {T[3]}, s80
                buffer_atomic_umax {T[3]}, {vZero}, {srd(S_C)}, 0 offen offset:{8 + 4*i}""")
            R("s_waitcnt vmcnt(0)")
        else:
            R.ext(ts.flush(S_WS, sW, S[1].base))
        R("s_endpgm")
        return R
    for w in (3, 0, 1, 2):
        R = fin(w)
        probs += check_hazards(LPREV[-10:] + R.lines, f"fin{w}")
        A(f"P3_FIN{w}:"); A.ext(R.lines)
    A.ext(slow1.lines)
    A("P3_SLOWH:"); A.ext(spin("P3_SH", hpoll, [vFl[k] for k in range(4)], "P3_HOK"))
    A("P3_SLOWO:"); A.ext(spin("P3_SO", opoll, [vFl[0]], "P3_OOK"))

    F = Asm()
    F("P2_FALLBACK:")
    for ab in range(2): F(f"v_mov_b32 {T[ab]}, 0xff800000")
    F(f"s_mov_b32 s{sT0}, {KV_OFF}")
    F("P2_FB1:")
    for t in range(2): F(f"buffer_load_dwordx4 {K[0][t]}, {vL16}, {srd(S_WS)}, s{sT0} offen offset:{t*1024} {SC1}")
    F("s_waitcnt vmcnt(0)")
    for ab in range(2):
        F(f"v_mfma_f32_32x32x16_bf16 {S[ab]}, {K[0][0]}, {Q[ab][0]}, 0\nv_mfma_f32_32x32x16_bf16 {S[ab]}, {K[0][1]}, {Q[ab][1]}, {S[ab]}")
    F("s_nop 15")
    for ab in range(2):
        for r in range(0, 16, 2): F(f"v_max3_f32 {T[ab]}, {S[ab][r]}, {S[ab][r+1]}, {T[ab]}")
    F(f"s_add_u32 s{sT0}, s{sT0}, 4096\ns_cmp_lt_u32 s{sT0}, {KV_OFF + 262144}\ns_cbranch_scc1 P2_FB1")
    for ab in range(2): F(f"v_mov_b32 {T[2+ab]}, {T[ab]}")
    F("s_nop 1")
    for ab in range(2): F(f"v_permlane32_swap_b32 {T[ab]}, {T[2+ab]}")
    for ab in range(2): F(f"v_max_f32 {vFl[ab]}, {T[ab]}, {T[2+ab]}")
    for ab in range(2):
        for r in range(16): F(f"v_mov_b32 {O[ab][r]}, 0")
        for r in range(4): F(f"v_mov_b32 {Lc[ab][r]}, 0")
    F(f"s_mov_b32 s{sT0}, {KV_OFF}")
    F("P2_FB2:")
    for t in range(2): F(f"buffer_load_dwordx4 {K[0][t]}, {vL16}, {srd(S_WS)}, s{sT0} offen offset:{t*1024} {SC1}")
    for t in range(2): F(f"buffer_load_dwordx4 {V[0][t]}, {vL16}, {srd(S_WS)}, s{sT0} offen offset:{2048 + t*1024} {SC1}")
    F("s_waitcnt vmcnt(0)")
    for ab in range(2):
        F(f"v_mfma_f32_32x32x16_bf16 {S[ab]}, {K[0][0]}, {Q[ab][0]}, 0\nv_mfma_f32_32x32x16_bf16 {S[ab]}, {K[0][1]}, {Q[ab][1]}, {S[ab]}")
    F("s_nop 15")
    for ab in range(2):
        for r in range(16): F(f"v_sub_f32 {S[ab][r]}, {S[ab][r]}, {vFl[ab]}")
        for r in range(16): F(f"v_exp_f32 {S[ab][r]}, {S[ab][r]}")
        F("s_nop 0")
        for r in range(8): F(f"v_cvt_pk_bf16_f32 {P[ab][r]}, {S[ab][2*r]}, {S[ab][2*r+1]}")
    F("s_nop 1")
    for ab in range(2):
        for u_ in range(2):
            F(f"v_mfma_f32_32x32x16_bf16 {O[ab]}, {V[0][u_]}, {P[ab].sub(4*u_,4)}, {O[ab]}")
            if u_ == 0: F(lsum(ab))
    F(f"s_add_u32 s{sT0}, s{sT0}, 4096\ns_cmp_lt_u32 s{sT0}, {KV_OFF + 262144}\ns_cbranch_scc1 P2_FB2")
    F("s_nop 15")
    for ab in range(2): F(f"v_add_f32 {Lc[ab][0]}, {Lc[ab][0]}, {Lc[ab][1]}")
    F("s_branch P2_FINISH")
    F("L_END:\ns_endpgm")
    probs += check_hazards(F.lines, "fb")
    A.ext(F.lines)
    for p_ in probs: print("PROBLEM", p_)
    launch = f"; @launch grid=(256,1,1) block=(256,1,1) lds=163840"
    return launch, A.text(), kdesc(NAME, 512, 256)

HDR = open("gated_mix__grouped_kv_mqa__glu_gated_reglu__prompt.s.ref").read().split("; Override launch")[0]
def build(opt=None):
    l, t, d = gen(opt)
    return HDR + l + "\n" + '.amdgcn_target "amdgcn-amd-amdhsa--gfx950"\n.text\n' + t + d
if __name__ == "__main__":
    import sys, json
    out = sys.argv[1] if len(sys.argv) > 1 else "gated_mix__grouped_kv_mqa__glu_gated_reglu__prompt.s"
    opt = json.loads(sys.argv[2]) if len(sys.argv) > 2 else {}
    open(out, "w").write(build(opt))
```

```python
from asmlib import *
from common import *
LOG2E = math.log2(math.e)
NAME = "gated_mix__grouped_kv_mqa__glu_gated_reglu__prompt_kernel"

FL_E = 0x1650000
FL_ES = 4352
FL_Q = 0x1660000
FL_H = 0x1670000
FL_O = 0x1672000
SPIN_MAX = 1 << 20
PW = 7168

def put(f, g, x):
    f.setdefault(g, []).extend(x if isinstance(x, list) else [x])

def gen(opt=None):
    opt = opt or {}
    A = Asm()
    DEF = ["start", "p1", "p1end", "kvdone", "poll0", "poll1", "att", "attend", "tail"]
    tsn = opt.get("ts")
    ts = TSN(DEF if tsn == 1 else tsn, opt.get("tskind", "rt"))
    SC1 = "sc1"
    probs = []
    P_X, P_WQ, P_WK, P_WV, P_WO = 4, 6, 8, 10, 12
    P_WG, P_WU, P_WD, P_GW = 16, 18, 20, 22
    P_OUT, P_DBG, P_WS = 24, 26, 28
    S_WS, S_A, S_B, S_C, S_D, S_E = 32, 36, 40, 44, 48, 52
    sW, sNonce = 56, 57
    sT0, sT1, sT2, sT3 = 58, 59, 60, 61
    sIt, sRB, sCB = 62, 63, 64
    sL = 65
    vL, vL16 = Reg("v", 1, 1), Reg("v", 2, 1)
    def srd(b): return f"s[{b}:{b+3}]"

    A(f".globl {NAME}\n.p2align 8\n.type {NAME},@function\n{NAME}:")
    A("s_cmp_ge_u32 s2, 256\ns_cbranch_scc1 L_END")
    A.ext(ts.at("start"))
    A(f"""s_load_dwordx8 s[4:11], s[0:1], 0
    s_load_dwordx2 s[12:13], s[0:1], 32
    s_load_dwordx8 s[16:23], s[0:1], 48
    s_load_dwordx4 s[24:27], s[0:1], 80
    s_load_dwordx2 s[28:29], s[0:1], 96
    s_memrealtime s[30:31]
    v_lshrrev_b32 v3, 6, v0
    v_and_b32 {vL}, 63, v0
    v_readfirstlane_b32 s{sW}, v3
    v_lshlrev_b32 {vL16}, 4, {vL}""")
    CPF = opt.get("cpf", 1) and not opt.get("trace")
    sPC = 100
    cpf = VM(f"global_load_dword a253, v0, s[{sPC}:{sPC+1}]", "CP")
    cpa = "v_add_u32 v0, 0x2000, v0"
    def cp(adv=True): return ([cpf] + ([cpa] if adv else [])) if CPF else []
    if CPF:
        A(f"""s_getpc_b64 s[{sPC}:{sPC+1}]
        L_PCREF:
        v_lshlrev_b32 v0, 7, {vL}
        s_sub_u32 s{sPC}, s{sPC}, L_PCREF-{NAME}
        s_subb_u32 s{sPC+1}, s{sPC+1}, 0""")
        A.ext(cp())

    if opt.get("ticket", 0):
        A(f"""s_getreg_b32 s{sT0}, hwreg(HW_REG_XCC_ID)
        s_and_b32 s{sT0}, s{sT0}, 7
        s_cmp_lg_u32 s{sW}, 0
        s_cbranch_scc1 L_TKWAIT
        v_mov_b32 v5, 0
        s_mov_b32 s{sT1}, 8
        s_mov_b32 s{S_WS+2}, 256
        s_mov_b32 s{S_WS+3}, 0x20000
        s_waitcnt lgkmcnt(0)
        s_mov_b32 s{S_WS}, s{P_DBG}
        s_mov_b32 s{S_WS+1}, s{P_DBG+1}
        s_mov_b64 exec, 1
        L_TKTRY:
        v_mov_b32 v4, 1
        s_lshl_b32 s{sT2}, s{sT0}, 5
        buffer_atomic_add v4, v5, {srd(S_WS)}, s{sT2} offen offset:4 sc0
        s_waitcnt vmcnt(0)
        v_readfirstlane_b32 s{sT2}, v4
        s_cmp_lt_u32 s{sT2}, 32
        s_cbranch_scc1 L_TKGOT
        s_add_u32 s{sT0}, s{sT0}, 1
        s_and_b32 s{sT0}, s{sT0}, 7
        s_sub_u32 s{sT1}, s{sT1}, 1
        s_cmp_lg_u32 s{sT1}, 0
        s_cbranch_scc1 L_TKTRY
        s_mov_b32 s{sT2}, 32
        L_TKGOT:
        s_lshl_b32 s{sT2}, s{sT2}, 3
        s_add_u32 s{sT2}, s{sT2}, s{sT0}
        v_mov_b32 v4, s{sT2}
        ds_write_b32 v5, v4
        s_mov_b64 exec, -1
        s_waitcnt lgkmcnt(0)
        L_TKWAIT:
        v_mov_b32 v5, 0
        s_barrier
        ds_read_b32 v4, v5
        s_waitcnt lgkmcnt(0)
        v_readfirstlane_b32 s2, v4
        s_barrier
        s_cmp_ge_u32 s2, 256
        s_cbranch_scc1 L_END""")
    trace = opt.get("trace")
    def tr_issue(): return ["s_memrealtime s[100:101]"] if trace else []
    def tr_commit(): return ["s_lshl_b64 exec, 1, s81", "v_mov_b32 v0, s100", "s_mov_b64 exec, -1", "s_add_u32 s81, s81, 1"] if trace else []
    if trace: A("s_mov_b32 s81, 0\nv_mov_b32 v0, 0\ns_memrealtime s[100:101]\ns_waitcnt lgkmcnt(0)"); A.ext(tr_commit())
    S_X, S_W0, S_W1, S_KV, S_Wb = S_A, S_B, S_C, S_D, S_E
    sSoX = sL - 1
    sSo0 = sL + 7
    sSo1 = sL + 7
    sM0X, sM0W, sM0K, sWwr = sL + 11, sL + 12, sL + 13, sL + 14
    sWrd, s16k, sStep1, sSa, sSc, sIsB, sKVst, sEfl = 14, 30, 15, 3, 31, 9, 10, 11
    XB, WB, KR = 0, 65536, 147456
    vXo = [3, 4]; vWo0, vWo1, vKo, vSXo = 5, 6, 7, 8
    vXa = [9, 10]; vW0a = [[11 + 2*i, 12 + 2*i] for i in range(4)]; vW1a = [19, 20, 21, 22]; vSWa = 23
    vT = 24
    acc = [[None]*8 for _ in range(8)]
    p = 32
    for i in range(7):
        for j in range(8):
            acc[i][j] = Reg("v", p, 4); p += 4
    RA = [[Reg("a", 64*s + 4*i, 4) for i in range(8)] for s in range(2)]
    RB = [[Reg("a", 64*s + 32 + 4*j, 4) for j in range(8)] for s in range(2)]
    SA = [Reg("a", 128 + 4*s, 4) for s in range(2)]
    sacc = Reg("a", 144, 4)
    for j in range(8): acc[7][j] = Reg("a", 148 + 4*j, 4)
    SXB = [[Reg("a", 180 + 8*b + 4*j, 4) for j in range(2)] for b in range(2)]
    GXa = [Reg("a", 196 + 8*r, 8) for r in range(2)]
    GWa = Reg("a", 212, 8)
    t0, t1, t2, t3, t4, t5, t6, t7 = range(vT, vT + 8)
    HUGE = 0x40000000
    KP = opt.get("kp", [0, 1, 2, 4, 5, 6, 7, 8, 9, 10, 12, 13, 14, 15, 3, 11])
    sCWa, sCWb = 6, 7

    A(f"""s_and_b32 s{sT0}, s2, 1
    s_lshl_b32 s{sT0}, s{sT0}, 2
    s_bfe_u32 s{sT1}, s2, 0x20003
    s_add_u32 s{sRB}, s{sT0}, s{sT1}
    s_bfe_u32 s{sT0}, s2, 0x20001
    s_lshl_b32 s{sT0}, s{sT0}, 3
    s_lshr_b32 s{sT1}, s2, 5
    s_add_u32 s{sCB}, s{sT0}, s{sT1}""")
    A(f"""s_lshl_b32 s{sT0}, s{sW}, 6
    v_lshrrev_b32 v{t0}, 3, {vL}
    v_add_u32 v{t2}, s{sT0}, v{t0}
    v_lshlrev_b32 v{t2}, 11, v{t2}
    v_lshrrev_b32 v{t1}, 4, {vL}
    v_and_b32 v{t3}, 7, {vL}
    v_xor_b32 v{t4}, v{t3}, v{t1}
    v_lshl_add_u32 v{vXo[0]}, v{t4}, 4, v{t2}
    v_add_u32 v{vXo[0]}, {KP[0]*128}, v{vXo[0]}
    v_xor_b32 v{vXo[1]}, 64, v{vXo[0]}""")
    for e in range(1, 8): A(f"s_mov_b32 s{sSoX+e}, {e*16384 - (e&3)*1024}")
    A(f"""s_lshl_b32 s{sM0X}, s{sW}, 13
    s_lshl_b32 s{sM0W}, s{sW}, 11
    s_add_u32 s{sM0K}, s{sM0W}, {KR}
    s_add_u32 s{sM0W}, s{sM0W}, {WB}
    s_and_b32 s{sT1}, s{sCB}, 3
    s_mov_b32 s{sStep1}, {PW}
    s_cmp_eq_u32 s{sT1}, 3
    s_cselect_b32 s{sStep1}, 2048, s{sStep1}""")
    A(f"""s_lshl_b32 s{sT0}, s{sW}, 3
    v_add_u32 v{t2}, s{sT0}, v{t1}
    v_mul_lo_u32 v{t2}, v{t2}, s{sStep1}
    s_and_b32 s{sT1}, s{sW}, 1
    s_lshl_b32 s{sT2}, s{sT1}, 3
    v_and_b32 v{t4}, 15, {vL}
    v_lshl_or_b32 v{t5}, v{t1}, 1, s{sT2}
    v_xor_b32 v{t4}, v{t4}, v{t5}
    v_lshl_add_u32 v{vWo1}, v{t4}, 4, v{t2}
    v_add_u32 v{t2}, s{sT0}, v{t0}
    v_mul_u32_u24 v{t2}, {PW}, v{t2}
    s_lshl_b32 s{sT2}, s{sT1}, 2
    v_and_b32 v{t4}, 1, v{t1}
    v_lshl_or_b32 v{t4}, v{t4}, 1, s{sT2}
    v_xor_b32 v{t4}, v{t4}, v{t3}
    v_lshl_add_u32 v{vWo0}, v{t4}, 4, v{t2}""")
    A.ext(ts.at("a0"))
    A("s_waitcnt lgkmcnt(0)")
    A.ext(ts.at("a1"))
    A(f"""s_lshl_b32 s{sT0}, s{sRB}, 19
    s_add_u32 s{S_X}, s{P_X}, s{sT0}
    s_addc_u32 s{S_X+1}, s{P_X+1}, 0
    s_mov_b32 s{S_X+2}, 0x80000
    s_mov_b32 s{S_X+3}, 0x20000""")
    A(f"""s_mov_b32 s{S_WS+3}, 0x20000
    s_or_b32 s{sT0}, s2, s{sW}
    s_cmp_lg_u32 s{sT0}, 0
    s_cbranch_scc1 P1_NONONCE
    s_or_b32 s30, s30, 1
    s_mov_b32 s{S_WS}, s{P_DBG}
    s_mov_b32 s{S_WS+1}, s{P_DBG+1}
    s_mov_b32 s{S_WS+2}, 256
    v_mov_b32 v{t6}, s30
    v_mov_b32 v{t7}, 0
    s_mov_b64 exec, 1
    buffer_store_dword v{t6}, v{t7}, {srd(S_WS)}, 0 offen sc1
    s_mov_b64 exec, -1
    P1_NONONCE:""")
    WNT = opt.get("wnt", "")
    def xdma(par):
        sl = []
        for e in range(8):
            pre = []
            if e == 0: pre = [f"s_add_u32 m0, s{sM0X}, {par}"]
            if e == 4: pre = ["s_add_u32 m0, m0, 4096"]
            so = "0" if e == 0 else f"s{sSoX+e}"
            sl.append((pre, VM(f"buffer_load_dwordx4 v{vXo[e&1]}, {srd(S_X)}, {so} offen offset:{(e&3)*1024} {opt.get('xnt', '')} lds", "X")))
        return sl
    def wdma(hb, slot):
        so0 = "0" if hb == 0 else f"s{sSo0}"
        so1 = ["0" if hb == 0 else f"s{sSo1+2}", f"s{sSo1 + 1 + 2*hb}"]
        return [([f"s_add_u32 m0, s{sM0W}, {slot}"], VM(f"buffer_load_dwordx4 v{vWo0}, {srd(S_W0)}, {so0} offen {WNT} lds", "W")),
                ([], VM(f"buffer_load_dwordx4 v{vWo0}, {srd(S_Wb)}, {so0} offen offset:1024 {WNT} lds", "W")),
                (["s_add_u32 m0, m0, 40960"], VM(f"buffer_load_dwordx4 v{vWo1}, {srd(S_W1)}, {so1[0]} offen {WNT} lds", "W")),
                ([], VM(f"buffer_load_dwordx4 v{vWo1}, {srd(S_W1)}, {so1[1]} offen offset:1024 {WNT} lds", "W"))]
    def kdma(slot):
        return [([f"s_add_u32 m0, s{sM0K}, {slot}"], VM(f"buffer_load_dwordx4 v{vKo}, {srd(S_KV)}, 0 offen lds", "X")),
                ([], VM(f"buffer_load_dwordx4 v{vKo}, {srd(S_KV)}, 0 offen offset:1024 lds", "X"))]
    def sxload(b): return [VM(f"buffer_load_dwordx4 {SXB[b][j]}, v{vSXo}, {srd(S_X)}, 0 offen offset:{j*64}", "SX") for j in range(2)]
    def emit_dma(X, sl):
        for pre, d in sl:
            X.ext(pre)
            if pre: X("s_nop 0")
            X(d)
    emit_dma(A, xdma(0))
    A.ext(ts.at("a2"))
    A(f"""s_lshr_b32 s{sT0}, s{sCB}, 2
    s_and_b32 s{sT1}, s{sCB}, 3
    s_mul_i32 s{sT2}, s{sT0}, 896
    s_lshl_b32 s{sT3}, s{sT1}, 8
    s_add_u32 s{sT2}, s{sT2}, s{sT3}
    s_add_u32 s{S_W0}, s{P_WG}, s{sT2}
    s_addc_u32 s{S_W0+1}, s{P_WG+1}, 0
    s_sub_u32 s{S_W0+2}, {1024*PW}, s{sT2}
    s_mov_b32 s{S_W0+3}, 0x20000
    s_mov_b32 s{S_W1+3}, 0x20000
    s_mov_b32 s{S_Wb+3}, 0x20000
    s_mov_b32 s{sSo0}, {32*PW}
    s_cmp_eq_u32 s{sT1}, 3
    s_cbranch_scc1 P1_SRDB
    s_add_u32 s{S_Wb}, s{S_W0}, {4*PW - 1024}
    s_addc_u32 s{S_Wb+1}, s{S_W0+1}, 0
    s_sub_u32 s{S_Wb+2}, s{S_W0+2}, {4*PW - 1024}
    s_add_u32 s{S_W1}, s{P_WU}, s{sT2}
    s_addc_u32 s{S_W1+1}, s{P_WU+1}, 0
    s_mov_b32 s{S_W1+2}, s{S_W0+2}
    v_mov_b32 v{vWo0}, v{vWo1}
    s_branch P1_SRDD
    P1_SRDB:
    s_add_u32 s{S_Wb}, s{P_WU}, s{sT2}
    s_addc_u32 s{S_Wb+1}, s{P_WU+1}, 0
    s_sub_u32 s{S_Wb}, s{S_Wb}, 1024
    s_subb_u32 s{S_Wb+1}, s{S_Wb+1}, 0
    s_add_u32 s{S_Wb+2}, s{S_W0+2}, 1024
    s_lshl_b32 s{sT0}, s{sT0}, 8
    s_add_u32 s{S_W1}, s{P_WQ}, s{sT0}
    s_addc_u32 s{S_W1+1}, s{P_WQ+1}, 0
    s_sub_u32 s{S_W1+2}, {1024*2048}, s{sT0}
    P1_SRDD:
    s_lshl_b32 s{sSo1+1}, s{sStep1}, 2
    s_sub_u32 s{sSo1+1}, s{sSo1+1}, 1024
    s_lshl_b32 s{sSo1+2}, s{sStep1}, 5
    s_add_u32 s{sSo1+3}, s{sSo1+2}, s{sSo1+1}
    s_lshl_b32 s{sStep1}, s{sStep1}, 6""")
    def advXf(a, b):
        d = (KP[b] - KP[a]) * 128 & 0xffffffff
        return [f"v_add_u32 v{vXo[0]}, {d:#x}, v{vXo[0]}", f"v_add_u32 v{vXo[1]}, {d:#x}, v{vXo[1]}"]
    def advWf(a, b):
        d = KP[b] - KP[a]
        if d == 1: return [f"v_add_u32 v{vWo0}, {64*PW}, v{vWo0}", f"v_add_u32 v{vWo1}, s{sStep1}, v{vWo1}"]
        return [f"v_add_u32 v{vWo0}, {d*64*PW & 0xffffffff:#x}, v{vWo0}", f"s_mul_i32 s{sT3}, s{sStep1}, {d}\nv_add_u32 v{vWo1}, s{sT3}, v{vWo1}"]
    if KP[0]:
        A(f"""v_add_u32 v{vWo0}, {KP[0]*64*PW}, v{vWo0}
        s_mul_i32 s{sT3}, s{sStep1}, {KP[0]}
        v_add_u32 v{vWo1}, s{sT3}, v{vWo1}""")
    advK = f"v_add_u32 v{vKo}, 4096, v{vKo}"
    advS = f"v_add_u32 v{vSXo}, 128, v{vSXo}"
    emit_dma(A, wdma(0, 0)); emit_dma(A, wdma(1, 8192))
    A.ext(advXf(0, 1) + advWf(0, 1))
    A(f"""s_bfe_u32 s{sT0}, s{sCB}, 0x10001
    s_and_b32 s{sT1}, s{sW}, 1
    s_bitcmp1_b32 s{sCB}, 0
    s_cselect_b32 s{S_KV}, s{P_WV}, s{P_WK}
    s_cselect_b32 s{S_KV+1}, s{P_WV+1}, s{P_WK+1}
    s_cselect_b32 s{sSa}, s{sT1}, s{sT0}
    s_cselect_b32 s{sSc}, s{sT0}, s{sT1}
    s_mov_b32 s{S_KV+2}, 65536
    s_mov_b32 s{S_KV+3}, 0x20000
    s_and_b32 s{sIsB}, s{sCB}, 3
    s_cmp_eq_u32 s{sIsB}, 3
    s_cselect_b32 s{sIsB}, 1, 0
    v_lshrrev_b32 v{t2}, 5, {vL}
    v_lshlrev_b32 v{t2}, 1, v{t2}
    v_xor_b32 v{t2}, v{t2}, {vL}
    v_lshlrev_b32 v{t2}, 4, v{t2}
    s_lshr_b32 s{sT2}, s{sW}, 1
    s_lshl_b32 s{sT0}, s{sT2}, 15
    s_lshl_b32 s{sT1}, s{sT1}, 11
    s_add_u32 s{sT0}, s{sT0}, s{sT1}
    v_add_u32 v{vKo}, s{sT0}, v{t2}
    s_lshr_b32 s{sT0}, s{sCB}, 2
    s_lshl_b32 s{sT0}, s{sT0}, 1
    s_add_u32 s{sT0}, s{sT0}, s{sSa}
    s_lshl_b32 s{sT0}, s{sT0}, 15
    s_lshl_b32 s{sT2}, s{sT2}, 10
    s_add_u32 s{sT0}, s{sT0}, s{sT2}
    v_and_b32 v{t2}, 15, {vL}
    v_lshlrev_b32 v{t2}, 11, v{t2}
    v_lshl_add_u32 v{t2}, v{t1}, 4, v{t2}
    v_add_u32 v{vSXo}, s{sT0}, v{t2}""")
    emit_dma(A, kdma(0)); A.ext(sxload(0)); A(advK); A(advS)
    A(f"""s_mov_b32 s{S_WS}, s{P_WS}
    s_mov_b32 s{S_WS+1}, s{P_WS+1}
    s_mov_b32 s{S_WS+2}, {WS_USED}""")
    A.ext(ts.at("a3"))
    second = xdma(32768) + wdma(0, 2*8192) + kdma(8192) + wdma(1, 3*8192)
    A(f"""v_and_b32 v{t0}, 15, {vL}
    v_lshrrev_b32 v{t2}, 1, v{t0}
    v_xor_b32 v{t2}, v{t2}, v{t1}
    v_lshlrev_b32 v{t2}, 4, v{t2}
    v_lshl_add_u32 v{t2}, v{t0}, 7, v{t2}
    s_lshr_b32 s{sT0}, s{sW}, 1
    s_lshl_b32 s{sT1}, s{sT0}, 14
    v_add_u32 v{vXa[0]}, s{sT1}, v{t2}
    v_xor_b32 v{vXa[1]}, 64, v{vXa[0]}
    v_bfe_u32 v{t0}, {vL}, 2, 2
    v_lshl_add_u32 v{t2}, v{t1}, 3, v{t0}
    v_and_b32 v{t3}, 1, v{t1}
    v_lshl_or_b32 v{t5}, v{t3}, 2, v{t0}
    v_and_b32 v{t4}, 3, {vL}
    v_lshlrev_b32 v{t4}, 3, v{t4}
    v_lshl_add_u32 v{t6}, v{t2}, 8, v{t4}
    v_add_u32 v{t6}, {WB + 40960}, v{t6}
    s_and_b32 s{sT0}, s{sW}, 1
    s_lshl_b32 s{sT1}, s{sT0}, 2""")
    for ii in range(4):
        A(f"""s_add_u32 s{sT2}, s{sT1}, {ii}
        v_xor_b32 v{t7}, s{sT2}, v{t5}
        v_lshl_add_u32 v{vW1a[ii]}, v{t7}, 5, v{t6}""")
    A(f"""v_lshl_add_u32 v{t2}, v{t2}, 6, v{t4}
    v_xor_b32 v{t7}, s{sSc}, v{t3}
    v_lshl_add_u32 v{t7}, v{t7}, 5, v{t2}
    s_lshr_b32 s{sT2}, s{sW}, 1
    s_lshl_b32 s{sT2}, s{sT2}, 12
    s_add_u32 s{sT2}, s{sT2}, {KR}
    v_add_u32 v{vSWa}, s{sT2}, v{t7}
    s_mov_b32 s{s16k}, 16384
    s_cmp_eq_u32 s{sIsB}, 1
    s_cbranch_scc1 P1_ADB""")
    for ii in range(4):
        A(f"v_subrev_u32 v{vW0a[ii][0]}, 40960, v{vW1a[ii]}\nv_subrev_u32 v{vW0a[ii][1]}, {40960 - 1024}, v{vW1a[ii]}")
    A(f"""s_branch P1_ADD
    P1_ADB:
    v_lshl_add_u32 v{t4}, v{t1}, 11, v{t4}
    v_lshl_add_u32 v{t4}, v{t0}, 7, v{t4}
    v_add_u32 v{t4}, {WB}, v{t4}
    v_lshrrev_b32 v{t0}, 1, v{t0}
    v_lshl_or_b32 v{t0}, v{t3}, 1, v{t0}
    s_lshl_b32 s{sT1}, s{sT0}, 1""")
    for k in range(2):
        A(f"""s_add_u32 s{sT2}, s{sT1}, {k}
        v_xor_b32 v{t7}, s{sT2}, v{t0}
        v_lshl_add_u32 v{vW0a[k][0]}, v{t7}, 5, v{t4}
        v_add_u32 v{vW0a[k][1]}, 512, v{vW0a[k][0]}
        v_add_u32 v{vW0a[2+k][0]}, 1024, v{vW0a[k][0]}
        v_add_u32 v{vW0a[2+k][1]}, 1536, v{vW0a[k][0]}""")
    A("P1_ADD:")
    PF = opt.get("pf", 1)
    Z = []
    for i in range(8):
        for j in range(8):
            for r in range(4):
                a = acc[i][j][r]
                Z.append(f"v_mov_b32 {a}, 0" if a.f == "v" else f"v_accvgpr_write_b32 {a}, 0")
    for r in range(4): Z.append(f"v_accvgpr_write_b32 {sacc[r]}, 0")
    PEEL = opt.get("peel", 0)
    NPRE = opt.get("npre", 0)
    if not PEEL:
        per = len(Z) // len(second)
        for k, (pre, d) in enumerate(second):
            A.ext(pre); A.ext(Z[k*per:(k+1)*per]); A(d)
        A.ext(Z[len(second)*per:])
        A.ext(advXf(1, 2) + advWf(1, 2) + [advK])
    else:
        emit_dma(A, second[:NPRE])

    def reads(t, s, side):
        b = t & 1; xo = ((t >> 1) & 1)*32768; wo = (t % 5)*8192; ko = ((t >> 1) & 1)*8192
        L = [f"ds_read_b128 {RB[s][j]}, v{vXa[b]} offset:{xo + j*2048}" for j in range(8)]
        for i in range(8):
            for hf in range(2):
                if i < 4: L.append(f"ds_read_b64_tr_b16 {RA[s][i].sub(2*hf, 2)}, v{vW0a[i][hf]} offset:{wo}")
                else: L.append(f"ds_read_b64_tr_b16 {RA[s][i].sub(2*hf, 2)}, v{vW1a[i-4]} offset:{wo + hf*1024}")
        if side:
            for hf in range(2):
                L.append(f"ds_read_b64_tr_b16 {SA[s].sub(2*hf, 2)}, v{vSWa} offset:{ko + b*2048 + hf*256}")
        return L
    def mfmas(s, side=None, zero=False):
        L = []
        for i in range(8):
            js = range(8) if i % 2 == 0 else range(7, -1, -1)
            for j in js:
                L.append(f"v_mfma_f32_16x16x32_bf16 {acc[i][j]}, {RA[s][i]}, {RB[s][j]}, {0 if zero else acc[i][j]}")
            if side is not None and i == 3:
                L.append(f"v_mfma_f32_16x16x32_bf16 {sacc}, {SA[s]}, {SXB[side][s]}, {0 if zero else sacc}")
        return L
    A.ext(ts.at("a4"))
    A(f"s_waitcnt vmcnt({len(second)}) lgkmcnt(0)")
    A.ext(ts.at("a5"))
    A("s_barrier")
    A.ext(reads(0, 0, True))
    A("s_waitcnt lgkmcnt(0)\ns_barrier")
    A.ext(ts.at("p1"))
    if ts.on: A("s_waitcnt lgkmcnt(0)")
    pro_hist = list(A.lines)

    def step(st, hook=None, cpl=False):
        out = []
        sd = st < 8; side = st & 1 if sd else None
        dma = st < 14; last = st == 15
        n = 65 if sd else 64
        BG = n - opt.get('bgo', 4)
        f = {}
        for k, r in enumerate(reads(2*st + 1, 1, sd)): put(f, 2*k, r)
        if dma:
            dg = opt.get('dgw', [1, 9, 17, 25, 33, 39, 47, 55]) if not (st < 7) else [13, 19, 25, 31, 37, 43, 49, 55]
            for k, (pre, d) in enumerate(wdma(0, ((2*st + 4) % 5)*8192) + wdma(1, ((2*st + 5) % 5)*8192)):
                if pre: put(f, dg[k] - 1, pre)
                put(f, dg[k], d)
            if st < 13: put(f, 57, advWf(st + 2, st + 3)[0]); put(f, 58, advWf(st + 2, st + 3)[1])
        if st < 7:
            for k, l in enumerate(sxload(side ^ 1)): put(f, [1, 7][k], l)
            put(f, 9, advS)
        if cpl: put(f, 4, cp())
        if hook: hook(0, f, BG)
        put(f, BG, [Need(["X"], "lgkmcnt(0)") if not last else "s_waitcnt lgkmcnt(0)", "s_barrier"])
        out += interleave(mfmas(0, side), f)
        if last: return out + tr_issue() + (["s_waitcnt lgkmcnt(0)"] if trace else []) + tr_commit()
        f = {}
        for k, r in enumerate(reads(2*st + 2, 0, st < 7)): put(f, 2*k, r)
        if dma:
            kv = st < 6
            dl = ((kdma((st & 1)*8192) if kv else []) + xdma((st & 1)*32768)) if not opt.get('xfirst') else (xdma((st & 1)*32768) + (kdma((st & 1)*8192) if kv else []))
            dg = opt.get('dgk', [1, 7, 13, 19, 25, 31, 37, 43, 49, 55]) if kv else opt.get('dgx', [1, 9, 17, 25, 33, 41, 47, 55])
            for k, (pre, d) in enumerate(dl):
                if pre: put(f, dg[k] - 1, pre)
                put(f, dg[k], d)
            if st < 13: put(f, 57, advXf(st + 2, st + 3)[0]); put(f, 59, advXf(st + 2, st + 3)[1])
            if kv: put(f, 9 if not opt.get('xfirst') else 58, advK)
        if hook: hook(1, f, BG)
        put(f, BG - 3, tr_issue())
        put(f, BG, [Need(["SX"], "lgkmcnt(0)") if st < 7 else "s_waitcnt lgkmcnt(0)", "s_barrier"] + tr_commit())
        out += interleave(mfmas(1, side), f)
        return out

    vN, vZ, vKA, vFA = t0, t1, t2, t3
    u = 28
    nload = f"buffer_load_dword v{vN}, v{vZ}, {srd(S_KV)}, 0 offen sc1"
    dbgsrd = [f"s_mov_b32 s{S_KV}, s{P_DBG}", f"s_mov_b32 s{S_KV+1}, s{P_DBG+1}", f"s_mov_b32 s{S_KV+2}, 256", f"v_mov_b32 v{vZ}, 0"]
    PSC = KR + 4096
    kvK = f"""v_bfe_u32 v{vKA}, {vL}, 3, 1
    v_lshlrev_b32 v{vKA}, 4, v{vKA}
    v_and_b32 v{vFA}, 7, {vL}
    v_add_u32 v{vKA}, v{vKA}, v{vFA}
    v_bfe_u32 v{vFA}, {vL}, 4, 1
    v_lshl_add_u32 v{vKA}, v{vFA}, 5, v{vKA}
    v_lshlrev_b32 v{vKA}, 4, v{vKA}
    v_lshrrev_b32 v{vFA}, 5, {vL}
    v_lshl_add_u32 v{vKA}, v{vFA}, 10, v{vKA}
    s_lshl_b32 s{sKVst}, s{sSa}, 7
    s_lshl_b32 s{sEfl}, s{sSc}, 3""".split("\n")
    kvV = f"""v_lshrrev_b32 v{vKA}, 5, {vL}
    v_lshlrev_b32 v{vKA}, 4, v{vKA}
    v_bfe_u32 v{vFA}, {vL}, 4, 1
    v_lshl_add_u32 v{vKA}, v{vFA}, 2, v{vKA}
    v_bfe_u32 v{vFA}, {vL}, 2, 1
    v_lshl_add_u32 v{vKA}, v{vFA}, 5, v{vKA}
    v_lshlrev_b32 v{vKA}, 4, v{vKA}
    v_bfe_u32 v{vFA}, {vL}, 3, 1
    v_lshl_add_u32 v{vKA}, v{vFA}, 10, v{vKA}
    v_and_b32 v{vFA}, 3, {vL}
    v_lshl_add_u32 v{vKA}, v{vFA}, 1, v{vKA}
    s_lshl_b32 s{sKVst}, s{sSc}, 7
    s_lshl_b32 s{sEfl}, s{sSa}, 3""".split("\n")
    kvaddr = [f"s_bitcmp1_b32 s{sCB}, 0", "s_cbranch_scc1 P1_KVAV"] + [l.strip() for l in kvK] + ["P1_KVAD:",
              f"s_add_u32 s{sKVst}, s{sKVst}, s{sEfl}", f"s_add_u32 s{sKVst}, s{sKVst}, {KR}", f"v_add_u32 v{vKA}, s{sKVst}, v{vKA}"]
    kvwr = [f"s_bitcmp1_b32 s{sCB}, 0", "s_cbranch_scc1 P1_KVWV", f"ds_write_b64 v{vKA}, v[{u}:{u+1}]", "P1_KVWD:"]
    ool = Asm()
    ool("P1_KVAV:"); ool.ext(kvV); ool("s_branch P1_KVAD")
    ool(f"""P1_KVWV:
    ds_write_b16 v{vKA}, v{u}
    ds_write_b16_d16_hi v{vKA}, v{u} offset:16
    ds_write_b16 v{vKA}, v{u+1} offset:32
    ds_write_b16_d16_hi v{vKA}, v{u+1} offset:48
    s_branch P1_KVWD""")
    vP = vSXo
    KT = Reg("a", 128, 4); PT = Reg("a", 132, 4)
    QPOLL = opt.get("qpoll", 0)
    CW = opt.get("cw", 1)
    CA, CB = Reg("a", 136, 4), Reg("a", 140, 4)
    vDA, vDB = vSWa, vKo
    def hookS8(ph, f, BG):
        if ph == 0 and CW:
            put(f, 1, [f"s_lshl_b32 s{sT2}, s2, 2", f"s_add_u32 s{sT2}, s{sT2}, s{sW}", f"s_mul_i32 s{sT3}, s{sT2}, 7"])
            L_ = [f"v_lshrrev_b32 v{u}, 3, {vL}", f"v_and_b32 v{u+1}, 7, {vL}", f"v_lshlrev_b32 v{u+1}, 4, v{u+1}",
                  f"v_add_u32 v{u+2}, s{sT3}, v{u}", f"v_and_b32 v{u+3}, 1, v{u+2}", f"v_lshrrev_b32 v{u+2}, 1, v{u+2}",
                  f"v_lshl_add_u32 v{vDA}, v{u+2}, 8, v{u+1}", f"v_mul_u32_u24 v{vDB}, {CW_SZ}, v{u+3}", f"v_add_u32 v{vDA}, v{vDA}, v{vDB}",
                  f"v_lshl_add_u32 v{u+2}, v{u+2}, 11, v{u+1}", f"v_lshl_add_u32 v{u+2}, v{u+3}, 10, v{u+2}",
                  f"v_cmp_gt_u32 vcc, 56, {vL}", f"v_mov_b32 v{u+3}, {HUGE}", f"v_add_u32 v{u+2}, 384, v{u+2}",
                  f"v_cndmask_b32 v{u+2}, v{u+3}, v{u+2}, vcc", f"v_cndmask_b32 v{vDA}, v{u+3}, v{vDA}, vcc"]
            for k, l in enumerate(L_): put(f, 2 + k // 2, l)
            put(f, 10, [f"s_mov_b32 s{S_KV}, s{P_WD}", f"s_mov_b32 s{S_KV+1}, s{P_WD+1}", f"s_mov_b32 s{S_KV+2}, {3584*2048}"])
            put(f, 12, VM(f"buffer_load_dwordx4 {CA}, v{u+2}, {srd(S_KV)}, 0 offen", "CL"))
            L_ = [f"v_mul_u32_u24 v{vDB}, {CW_SZ}, v{u}", f"v_add_u32 v{vDB}, v{vDB}, v{u+1}", f"v_lshl_add_u32 v{u+2}, v{u}, 10, v{u+1}",
                  f"v_cmp_gt_u32 vcc, 16, {vL}", f"s_lshl_b32 s{sT3}, s{sT2}, 11", f"s_add_u32 s{sT3}, s{sT3}, 384",
                  f"v_cndmask_b32 v{u+2}, v{u+3}, v{u+2}, vcc", f"v_cndmask_b32 v{vDB}, v{u+3}, v{vDB}, vcc"]
            for k, l in enumerate(L_): put(f, 13 + k // 2, l)
            put(f, 17, [f"s_mov_b32 s{S_KV}, s{P_WO}", f"s_mov_b32 s{S_KV+1}, s{P_WO+1}", f"s_mov_b32 s{S_KV+2}, {1024*2048}"])
            put(f, 19, VM(f"buffer_load_dwordx4 {CB}, v{u+2}, {srd(S_KV)}, s{sT3} offen", "CL"))
            put(f, 20, [f"s_lshl_b32 s{sCWb}, s{sT2}, 8", f"s_add_u32 s{sCWb}, s{sCWb}, {CW_OFF + 3584*256}", f"s_mov_b32 s{sCWa}, {CW_OFF}"])
        if ph == 0 and QPOLL:
            for r in range(4): put(f, 2 + r, f"v_mov_b32 v{u+r}, -1")
            put(f, 5, [f"s_lshl_b32 s{sKVst}, s{sRB}, 5", f"s_add_u32 s{sKVst}, s{sKVst}, s{sCB}", f"s_lshl_b32 s{sKVst}, s{sKVst}, 2"])
            put(f, 7, [f"s_add_u32 s{sKVst}, s{sKVst}, s{sW}", f"s_lshl_b32 s{sKVst}, s{sKVst}, 12", f"s_add_u32 s{sKVst}, s{sKVst}, {QF4_OFF}"])
            for r in range(4): put(f, [13, 15, 21, 23][r], VM(f"buffer_store_dwordx4 v[{u}:{u+3}], {vL16}, {srd(S_WS)}, s{sKVst} offen offset:{r*1024} {SC1}", "QP"))
        if ph == 0:
            put(f, 25, dbgsrd)
            put(f, 21, [f"s_lshl_b32 s{sT2}, s{sW}, 10", f"s_add_u32 s{sT2}, s{sT2}, {PSC}"]); put(f, 23, f"v_add_u32 v{vP}, s{sT2}, {vL16}")
            put(f, 27, kvaddr)
        if ph == 1:
            put(f, 3, f"ds_write_b128 v{vP}, {sacc}")
            put(f, 5, VM(nload, "N"))
            put(f, 11, f"v_xor_b32 v{vP}, 0x800, v{vP}")
            for r in range(4): put(f, 13 + 2*r, f"v_accvgpr_read_b32 v{u+r}, {sacc[r]}")
    def hookS9(ph, f, BG):
        if ph == 0 and CW:
            put(f, 5, [Need(["CL"]), VM(f"buffer_store_dwordx4 {CA}, v{vDA}, {srd(S_WS)}, s{sCWa} offen {SC1}", "CS")])
            put(f, 13, VM(f"buffer_store_dwordx4 {CB}, v{vDB}, {srd(S_WS)}, s{sCWb} offen {SC1}", "CS"))
        if ph == 0:
            put(f, 1, f"ds_read_b128 {PT}, v{vP}")
            put(f, 11, "s_waitcnt lgkmcnt(5)")
            for r in range(4): put(f, 11 + 2*r, f"v_accvgpr_read_b32 v{vFA}, {PT[r]}"); put(f, 12 + 2*r, f"v_add_f32 v{u+r}, v{u+r}, v{vFA}")
            put(f, 21, f"v_cvt_pk_bf16_f32 v{u}, v{u}, v{u+1}"); put(f, 23, f"v_cvt_pk_bf16_f32 v{u+1}, v{u+2}, v{u+3}")
            put(f, 27, kvwr)
            put(f, 29, f"v_lshrrev_b32 v{vP}, 3, {vL}"); put(f, 31, f"v_and_b32 v{vFA}, 7, {vL}")
            put(f, 35, f"v_lshlrev_b32 v{vFA}, 4, v{vFA}"); put(f, 37, f"v_lshl_add_u32 v{vP}, v{vP}, 8, v{vFA}")
            put(f, 41, [f"s_bfe_u32 s{sT2}, s{sCB}, 0x10001", f"s_lshl_b32 s{sT2}, s{sT2}, 7"])
            put(f, 43, f"v_add_u32 v{vP}, s{sT2}, v{vP}")
            put(f, 44, f"v_add_u32 v{vKA}, {KR}, v{vP}")
        if ph == 1:
            put(f, 3, f"ds_read_b128 {KT}, v{vKA}")
            put(f, 5, [f"s_lshl_b32 s{sKVst}, s{sRB}, 3", f"s_lshr_b32 s{sT2}, s{sCB}, 2", f"s_add_u32 s{sKVst}, s{sKVst}, s{sT2}"])
            put(f, 7, [f"s_lshl_b32 s{sKVst}, s{sKVst}, 1", f"s_and_b32 s{sT2}, s{sCB}, 1", f"s_add_u32 s{sKVst}, s{sKVst}, s{sT2}"])
            put(f, 11, [f"s_lshl_b32 s{sKVst}, s{sKVst}, 11", f"s_add_u32 s{sKVst}, s{sKVst}, {KV_OFF}", f"s_lshl_b32 s{sEfl}, s{sRB}, 5"])
            put(f, 13, [f"s_add_u32 s{sEfl}, s{sEfl}, s{sCB}", f"s_lshl_b32 s{sEfl}, s{sEfl}, 2", f"s_add_u32 s{sEfl}, s{sEfl}, {FL_E}"])
            put(f, 15, [f"s_cmp_eq_u32 s{sW}, 0", f"s_cselect_b32 s{sKVst}, s{sKVst}, {HUGE}", f"s_cselect_b32 s{sEfl}, s{sEfl}, {HUGE}"])
            put(f, 19, f"v_mul_u32_u24 v{vFA}, {FL_ES}, {vL}")
            put(f, 21, ["s_waitcnt lgkmcnt(9)", VM(f"buffer_store_dwordx4 {KT}, v{vP}, {srd(S_WS)}, s{sKVst} offen {SC1}", "KS")])
    def hookS10(ph, f, BG):
        if ph == 1:
            put(f, 27, [Need(["KS", "N"]), f"v_readfirstlane_b32 s{sNonce}, v{vN}", f"s_cmp_eq_u32 s{sNonce}, 0", "s_cbranch_scc1 P1_SLOWN", "P1_NOK:",
                       "s_mov_b64 exec, 0xff", VM(f"buffer_store_dword v{vN}, v{vFA}, {srd(S_WS)}, s{sEfl} offen sc1", "EF"), "s_mov_b64 exec, -1", "s_nop 2"])
    sKVo, sM0 = sL + 3, sL + 4
    S_KVD = S_C
    vE = Reg("v", 28, 4)
    epoll = f"buffer_load_dwordx4 {vE}, {vL16}, {srd(S_WS)}, s{sEfl} offen sc1"
    def kvdma0(slotoff):
        L = []
        for e in range(8):
            pre = []
            if e == 0: pre = [f"s_add_u32 m0, s{sM0}, {slotoff}"]
            if e == 4: pre = [f"s_add_u32 m0, m0, 4096", f"s_add_u32 s{sKVo}, s{sKVo}, 4096"]
            L.append((pre, VM(f"buffer_load_dwordx4 {vL16}, {srd(S_KVD)}, s{sKVo} offen offset:{(e&3)*1024} {SC1} lds", "KV")))
        return L
    def hookS14(ph, f, BG):
        if ph == 0:
            put(f, 5, [f"s_bfe_u32 s{sEfl}, s2, 0x30003", f"s_mul_i32 s{sEfl}, s{sEfl}, {FL_ES}", f"s_add_u32 s{sEfl}, s{sEfl}, {FL_E}"])
            put(f, 9, VM(epoll, "N"))
            put(f, 11, [f"s_mov_b32 s{S_KVD}, s{P_WS}", f"s_mov_b32 s{S_KVD+1}, s{P_WS+1}", f"s_mov_b32 s{S_KVD+2}, {KV_OFF + 262144}"])
            put(f, 13, [f"s_lshl_b32 s{sM0}, s{sW}, 13", f"s_add_u32 s{sKVo}, s{sM0}, {KV_OFF}"])
    def echeck():
        return [f"v_xor_b32 {vE[0]}, {vE[0]}, v{vN}", f"v_xor_b32 {vE[1]}, {vE[1]}, v{vN}", f"v_xor_b32 {vE[2]}, {vE[2]}, v{vN}", f"v_xor_b32 {vE[3]}, {vE[3]}, v{vN}",
                f"v_or3_b32 {vE[0]}, {vE[0]}, {vE[1]}, {vE[2]}", f"v_or_b32 {vE[0]}, {vE[0]}, {vE[3]}", f"v_cmp_eq_u32 vcc, 0, {vE[0]}", "s_nop 0", "s_cmp_eq_u64 vcc, -1"]
    def hookS15(ph, f, BG):
        dg = [5, 11, 17, 23, 29, 35, 41, 46]
        if ph == 0: put(f, 1, [Need(["N"])] + echeck() + ["s_cbranch_scc0 P1_SLOWE", "P1_EOK:"])
        if ph == 0:
            for k, (pre, d) in enumerate(kvdma0(32768*ph)):
                if pre: put(f, dg[k] - 1, pre)
                put(f, dg[k], d)
            put(f, 47, f"s_add_u32 s{sKVo}, s{sKVo}, {32768 - 4096}")
    hooks = {8: hookS8, 9: hookS9, 10: hookS10, 14: hookS14, 15: hookS15}
    cpsteps = opt.get("cps", [0, 3, 7, 11, 14])
    h1 = list(pro_hist)
    for st in range(16):
        S_ = resolve_waits(step(st, hooks.get(st), st in cpsteps), h1)
        h1 += S_
        A.ext(ts.at(f"s{st}"))
        A.ext(S_)
        if st == 10: A("s_branch P1_CONT"); A.ext(ool.lines); A("P1_CONT:")
    S15 = S_
    probs += check_hazards(A.lines, "p1")
    slow1 = Asm()
    slow1(f"""P1_SLOWN:
    s_mov_b32 s{sT2}, {SPIN_MAX}
    P1_SLOWN_L:
    {nload}
    s_waitcnt vmcnt(0)
    v_readfirstlane_b32 s{sNonce}, v{vN}
    s_cmp_lg_u32 s{sNonce}, 0
    s_cbranch_scc1 P1_NOK
    s_sleep 4
    s_sub_u32 s{sT2}, s{sT2}, 1
    s_cmp_lg_u32 s{sT2}, 0
    s_cbranch_scc1 P1_SLOWN_L
    s_endpgm
    P1_SLOWE:
    s_mov_b32 s{sT0}, {SPIN_MAX}
    P1_SLOWE_L:
    {epoll}
    s_waitcnt vmcnt(0)""")
    slow1.ext(echeck())
    slow1(f"""s_cbranch_scc1 P1_EOK
    s_sleep 4
    s_sub_u32 s{sT0}, s{sT0}, 1
    s_cmp_lg_u32 s{sT0}, 0
    s_cbranch_scc1 P1_SLOWE_L
    s_endpgm""")

    va = Alloc("v", 3, 256)
    vCur = va.get(1); vNxt = va.get(1); vZero = va.get(1); vNon = va.get(1); vQP = va.get(1)
    T = va.get(12, 4)
    S = [va.get(16, 4) for _ in range(2)]
    P = [va.get(8, 4) for _ in range(2)]
    O = [va.get(16, 4) for _ in range(2)]
    Lc = [va.get(4, 4) for _ in range(2)]
    SCL = va.get(8, 4)
    acc3 = [[va.get(4, 4) for j in range(8)] for i in range(4)]
    vW3o = va.get(1); vW3a = [va.get(1) for _ in range(4)]; vPF = va.get(1); vG = va.get(2, 2); vFl = va.get(4, 4)
    NEG = [Reg("v", acc3[0][0].base + 16*k, 16) for k in range(2)]
    aa = Alloc("a", 0, 180)
    RX = [[aa.get(4, 4) for j in range(8)] for s in range(4)]
    Q = [[aa.get(4, 4) for t in range(2)] for ab in range(2)]
    K = [[aa.get(4, 4) for t in range(2)] for b in range(2)]
    V = [[aa.get(4, 4) for t in range(2)] for b in range(2)]
    ONES = aa.get(4, 4)
    RW = [[Reg("a", 220 + 16*s + 4*i, 4) for i in range(4)] for s in range(2)]
    QXB = 98304
    W3B = 98304

    E = Asm()
    E.ext(ts.at("p1end"))
    sO, sO1, sO2 = 0, 1, 3
    sC = sL + 1
    sQf = 14
    tA = [Reg("v", 20, 4), Reg("v", 28, 4)]
    PKE = opt.get("pke", 0)
    def hmath(pairs, dst, pk=True):
        L = []
        for Gx, U in pairs:
            for r in range(4): L.append(f"v_max_f32 {Gx[r]}, 0, {Gx[r]}")
        for Gx, U in pairs:
            if pk:
                for r in (0, 2): L.append(f"v_pk_mul_f32 {Gx.sub(r,2)}, {Gx.sub(r,2)}, {U.sub(r,2)}")
            else:
                for r in range(4): L.append(f"v_mul_f32 {Gx[r]}, {Gx[r]}, {U[r]}")
        for k, (Gx, U) in enumerate(pairs):
            L.append(f"v_cvt_pk_bf16_f32 {dst[2*k]}, {Gx[0]}, {Gx[1]}"); L.append(f"v_cvt_pk_bf16_f32 {dst[2*k+1]}, {Gx[2]}, {Gx[3]}")
        return L
    gl = Asm()
    gl(f"""s_mov_b32 s{S_A}, s{P_X}
    s_mov_b32 s{S_A+1}, s{P_X+1}
    s_mov_b32 s{S_A+2}, 0x400000
    s_mov_b32 s{S_B}, s{P_GW}
    s_mov_b32 s{S_B+1}, s{P_GW+1}
    s_mov_b32 s{S_B+2}, 2048
    s_lshl_b32 s{sT2}, s{sRB}, 5
    s_add_u32 s{sT2}, s{sT2}, s{sCB}
    s_lshl_b32 s{sT2}, s{sT2}, 2
    s_add_u32 s{sT2}, s{sT2}, s{sW}
    s_lshl_b32 s{sT2}, s{sT2}, 12""")
    for h in range(2): gl(f"buffer_load_dwordx4 {GWa.sub(4*h,4)}, {vL16}, {srd(S_B)}, 0 offen offset:{h*1024}")
    for r in range(2):
        for h in range(2):
            gl(f"buffer_load_dwordx4 {GXa[r].sub(4*h,4)}, {vL16}, {srd(S_A)}, s{sT2} offen offset:{r*2048 + h*1024}")
    def merge(mf, items, rate):
        out = []; k = 0
        for g, m_ in enumerate(mf):
            out.append(m_)
            n = 0; seenv = False
            while k < len(items) and items[k][0] <= g and n < rate:
                x_ = items[k][1]
                if is_vmem(x_) and seenv: break
                seenv |= x_.startswith("v_")
                out.append(x_); k += 1; n += 1
        if k < len(items): out.append("s_nop 7")
        return out + [x[1] for x in items[k:]]
    mm1 = lambda i, j: f"v_mfma_f32_16x16x32_bf16 {acc[i][j]}, {RA[1][i]}, {RB[1][j]}, {acc[i][j]}"
    kv1 = []
    for pre, d in kvdma0(32768): kv1 += pre + (["s_nop 0"] if pre else []) + [d]
    kv1.append(f"s_add_u32 s{sKVo}, s{sKVo}, {32768 - 4096}")
    head = Asm()
    head(f"""s_lshr_b32 s{sT0}, s{sW}, 1
    s_and_b32 s{sT1}, s{sW}, 1
    s_lshl_b32 s{sO}, s{sRB}, 4
    s_lshl_b32 s{sT2}, s{sT0}, 3
    s_add_u32 s{sO}, s{sO}, s{sT2}
    s_lshl_b32 s{sO}, s{sO}, 11
    s_add_u32 s{sO}, s{sO}, {AF2_OFF}
    s_lshr_b32 s{sT2}, s{sCB}, 2
    s_mul_i32 s{sO1}, s{sT2}, 14
    s_and_b32 s{sT3}, s{sCB}, 3
    s_lshl_b32 s{sT3}, s{sT3}, 2
    s_add_u32 s{sO1}, s{sO1}, s{sT3}
    s_add_u32 s{sO1}, s{sO1}, s{sT1}""")
    E(f"s_cmp_eq_u32 s{sIsB}, 1\ns_cbranch_scc1 P1_EPIB")
    LAG = 5
    it = [(0, l) for l in head.lines]
    it += [(0, l) for l in (f"s_add_u32 s{sO1}, s{sO1}, s{sT1}", f"s_mul_i32 s{sO1}, s{sO1}, {AFS2}", f"s_add_u32 s{sO}, s{sO}, s{sO1}", f"s_add_u32 s{sO2}, s{sO}, {AFS2}")]
    it += [(0, l) for l in gl.lines]
    kq = list(kv1)
    for j in range(8):
        g_ = 8*j + 7 + LAG
        Tt = tA[j % 2]
        L_ = hmath([(acc[0][j], acc[4][j]), (acc[1][j], acc[5][j])], acc[4][j], PKE or j >= opt.get('pkj', 8))
        L_ += [f"v_accvgpr_read_b32 {Tt[r]}, {acc[7][j][r]}" for r in range(4)]
        L_ += hmath([(acc[2][j], acc[6][j]), (acc[3][j], Tt)], acc[5][j], PKE or j >= opt.get('pkj', 8))
        it += [(g_, l) for l in L_]
        while kq:
            x_ = kq.pop(0); it.append((g_, x_))
            if is_vmem(x_): break
    it += [(64, l) for l in kq]
    EA = merge([mm1(i, j) for j in range(8) for i in range(8)], it, opt.get("rateA", 5))
    E.ext(EA)
    E("s_branch P1_EPID\nP1_EPIB:")
    hb = Asm()
    hb(f"""s_mul_i32 s{sO1}, s{sO1}, {AFS2}
    s_add_u32 s{sO}, s{sO}, s{sO1}
    s_mov_b32 s{sO2}, {HUGE}
    s_lshl_b32 s{sQf}, s{sRB}, 3
    s_add_u32 s{sQf}, s{sQf}, s{sT2}
    s_lshl_b32 s{sQf}, s{sQf}, 2
    s_lshl_b32 s{sT1}, s{sT1}, 1
    s_add_u32 s{sT2}, s{sQf}, s{sT1}
    s_lshl_b32 s{sT2}, s{sT2}, 1
    s_add_u32 s{sT2}, s{sT2}, s{sT0}
    s_lshl_b32 s{sT2}, s{sT2}, 14
    s_add_u32 s{sT0}, s{sT2}, {QF5_OFF}
    s_add_u32 s{sT1}, s{sT0}, 32768
    v_cmp_lt_u32 vcc, 23, {vL}
    v_add_u32 v26, 128, {vL16}
    s_nop 0
    v_cndmask_b32 v26, {vL16}, v26, vcc
    s_add_u32 s{sQf}, s{sQf}, s{sW}
    s_lshl_b32 s{sQf}, s{sQf}, 8
    s_add_u32 s{sQf}, s{sQf}, {FL_Q}
    s_mov_b32 s{sC}, {f2u(QSCALE):#x}
    s_mov_b32 s{sC+1}, {f2u(QSCALE):#x}""")
    it = [(0, l) for l in gl.lines + head.lines + hb.lines]
    for j in range(8):
        g_ = 4*j + 3 + LAG
        for hh in range(2):
            F0, F1 = acc[4 + 2*hh][j], acc[5 + 2*hh][j]
            L_ = []
            if F1.f == "a":
                Tt = tA[j % 2]
                L_ += [f"v_accvgpr_read_b32 {Tt[r]}, {F1[r]}" for r in range(4)]
                F1 = Tt
            for F in (F0, F1):
                if PKE:
                    for r in (0, 2): L_.append(f"v_pk_mul_f32 {F.sub(r,2)}, {F.sub(r,2)}, s[{sC}:{sC+1}]")
                else:
                    for r in range(4): L_.append(f"v_mul_f32 {F[r]}, s{sC}, {F[r]}")
            L_ += [f"v_cvt_pk_bf16_f32 {F0[0]}, {F0[0]}, {F0[1]}", f"v_cvt_pk_bf16_f32 {F0[1]}, {F0[2]}, {F0[3]}",
                   f"v_cvt_pk_bf16_f32 {F0[2]}, {F1[0]}, {F1[1]}", f"v_cvt_pk_bf16_f32 {F0[3]}, {F1[2]}, {F1[3]}",
                   f"buffer_store_dwordx4 {F0}, v26, {srd(S_WS)}, s{sT0 + hh} offen offset:{(j&1)*2048} {SC1}"]
            if j & 1: L_.append(f"s_add_u32 s{sT0 + hh}, s{sT0 + hh}, 4096")
            it += [(g_, l) for l in L_]
    EB = merge([mm1(i, j) for j in range(8) for i in range(4, 8)] + [mm1(i, j) for j in range(8) for i in range(4)], it, opt.get("rateB", 4))
    E.ext(EB)
    E.ext(kv1)
    for j in range(8):
        E.ext(hmath([(acc[0][j], acc[2][j]), (acc[1][j], acc[3][j])], acc[4][j]))
    E(f"""s_waitcnt vmcnt(24)
    s_branch P1_EPIE
    P1_EPID:
    s_waitcnt vmcnt(8)
    P1_EPIE:""")
    probs += check_hazards(S15[-20:] + EA, "epiA") + check_hazards(S15[-20:] + E.lines[E.lines.index("P1_EPIB:"):], "epiB")
    E.ext(ts.at("kvdone"))
    vAF = T[9]
    def hstore(reg, so, j):
        return [VM(f"buffer_store_dwordx4 {reg}, {vAF}, {srd(S_WS)}, s{so} offen offset:{(j&1)*2048} {SC1}", "H")] + ([f"s_add_u32 s{so}, s{so}, 4096"] if j & 1 else [])
    hst0 = [hstore(acc[4][j], sO, j) for j in range(8)]
    hst1a = [hstore(acc[5][j], sO2, j) for j in range(8)]
    A.ext(E.lines)

    B = Asm()
    sCur, sNext, sFree, sFl = sL, sL + 1, sL + 2, sL + 5
    B(f"""v_mov_b32 {vNon}, s{sNonce}
    v_mov_b32 {vZero}, 0
    v_bfe_u32 {T[0]}, {vL}, 4, 1
    v_and_b32 {T[1]}, 15, {vL}
    v_lshrrev_b32 {T[2]}, 5, {vL}
    v_lshl_add_u32 {T[1]}, {T[2]}, 4, {T[1]}
    v_lshlrev_b32 {T[1]}, 4, {T[1]}
    v_lshl_add_u32 {vQP}, {T[0]}, 11, {T[1]}""")
    S_PF, sPF = S_E, 8
    pfop = [VM(f"buffer_load_dword a252, {vPF}, {srd(S_PF)}, s{sPF} offen", "PF"), f"s_add_u32 s{sPF}, s{sPF}, 0x100000"] if PF else []
    W32 = NEG[0]; X32 = NEG[1]; GX = S[0].sub(0, 8); GW = S[0].sub(8, 8)
    R2 = range(2)
    for k in range(8): B(f"v_accvgpr_read_b32 {GW[k]}, {GWa[k]}")
    for k in range(8): B(f"v_lshlrev_b32 {W32[2*k]}, 16, {GW[k]}\nv_and_b32 {W32[2*k+1]}, 0xffff0000, {GW[k]}")
    B(f"v_mov_b32 {T[8]}, 0x3f803f80")
    for r in R2:
        for k in range(8): B(f"v_accvgpr_read_b32 {GX[k]}, {GXa[r][k]}")
        for k in range(8): B(f"v_lshlrev_b32 {X32[2*k]}, 16, {GX[k]}\nv_and_b32 {X32[2*k+1]}, 0xffff0000, {GX[k]}")
        for k in range(8): B(f"v_pk_mul_f32 {X32.sub(2*k,2)}, {X32.sub(2*k,2)}, {W32.sub(2*k,2)}")
        for k in range(8): B(f"v_cvt_pk_bf16_f32 {X32[k]}, {X32[2*k]}, {X32[2*k+1]}")
        B(f"v_mov_b32 {T[4+r]}, 0")
        for k in range(8): B(f"v_dot2_f32_bf16 {T[4+r]}, {X32[k]}, {T[8]}, {T[4+r]}")
    B("s_nop 2")
    for sh in (8, 4, 2, 1):
        for r in R2: B(f"v_add_f32_dpp {T[4+r]}, {T[4+r]}, {T[4+r]} row_ror:{sh} row_mask:0xf bank_mask:0xf")
        B("s_nop 0")
    for sw in ("16", "32"):
        for r in R2: B(f"v_mov_b32 {T[8+r]}, {T[4+r]}")
        B("s_nop 0")
        for r in R2: B(f"v_permlane{sw}_swap_b32 {T[4+r]}, {T[8+r]}")
        for r in R2: B(f"v_add_f32 {T[4+r]}, {T[4+r]}, {T[8+r]}")
    for r in R2: B(f"v_cvt_pk_bf16_f32 {T[4+r]}, {T[4+r]}, {T[4+r]}")
    for r in R2: B(f"v_and_b32 {T[4+r]}, 0xffff0000, {T[4+r]}")
    for r in R2: B(f"v_mul_f32 {T[4+r]}, {f2u(-LOG2E):#x}, {T[4+r]}")
    for r in R2: B(f"v_exp_f32 {T[4+r]}, {T[4+r]}")
    B("s_nop 0")
    for r in R2: B(f"v_add_f32 {T[4+r]}, 1.0, {T[4+r]}")
    for r in R2: B(f"v_rcp_f32 {T[4+r]}, {T[4+r]}")
    B("s_nop 0")
    for r in R2: B(f"v_cvt_pk_bf16_f32 {T[4+r]}, {T[4+r]}, {T[4+r]}")
    for r in R2: B(f"v_and_b32 {T[4+r]}, 0xffff0000, {T[4+r]}")
    B(f"""s_cmp_eq_u32 s{sIsB}, 0
    s_cbranch_scc1 P2_NOQF
    s_waitcnt vmcnt(8)
    s_mov_b64 exec, 1
    buffer_store_dword {vNon}, {vZero}, {srd(S_WS)}, s{sQf} offen sc1
    s_mov_b64 exec, -1
    P2_NOQF:
    s_lshl_b32 s{sT2}, s{sRB}, 5
    s_add_u32 s{sT2}, s{sT2}, s{sCB}
    s_lshl_b32 s{sT2}, s{sT2}, 2
    s_add_u32 s{sT2}, s{sT2}, s{sW}
    s_lshl_b32 s{sT2}, s{sT2}, 3
    s_add_u32 s{sT2}, s{sT2}, {G_OFF}
    s_mov_b64 exec, 1
    buffer_store_dwordx2 {T.sub(4,2)}, {vZero}, {srd(S_WS)}, s{sT2} offen sc1
    s_mov_b64 exec, -1""")
    for ab in range(2):
        for r in range(16): B(f"v_mov_b32 {O[ab][r]}, 0")
        for r in range(4): B(f"v_mov_b32 {Lc[ab][r]}, 0")
    for r in range(8): B(f"v_mov_b32 {P[1][r]}, 0")
    for t in range(2):
        for r in range(4): B(f"v_accvgpr_write_b32 {V[1][t][r]}, 0")
    vIdx = T[10]
    B(f"""v_bfe_u32 {T[4]}, {vL}, 2, 1
    v_cmp_eq_u32 vcc, 0, {T[4]}
    v_mov_b32 {T[5]}, 0x3f803f80
    v_mov_b32 {vCur}, {vL16}
    v_cndmask_b32 {T[4]}, 0, {T[5]}, vcc
    v_cndmask_b32 {T[5]}, {T[5]}, 0, vcc
    v_add_u32 {vNxt}, 32768, {vL16}
    v_and_b32 {vIdx}, 1, {vL}
    v_mul_u32_u24 {vIdx}, 0xaaaa, {vIdx}
    v_add_u32 {vIdx}, 0x4444, {vIdx}
    v_cmp_lt_u32 vcc, 23, {vL}
    v_add_u32 {vAF}, 128, {vL16}
    s_nop 0
    v_cndmask_b32 {vAF}, {vL16}, {vAF}, vcc""".replace(f"v_cndmask_b32 {T[5]}, {T[5]}, 0, vcc", f"v_xor_b32 {T[5]}, {T[5]}, {T[4]}"))
    for r in range(4): B(f"v_accvgpr_write_b32 {ONES[r]}, {T[4 + (r >> 1)]}")
    def lsum(o): return f"v_smfmac_f32_16x16x64_bf16 {Lc[o]}, {ONES}, {P[o]}, {vIdx}"
    B("; @@SETUP3@@")
    B(f"""s_mov_b32 s{sCur}, 0
    s_mov_b32 s{sNext}, 32768
    s_mov_b32 s{sFree}, 65536
    s_add_u32 s{sL+14}, s{sM0}, 65536
    s_lshl_b32 s{sFl}, s{sRB}, 2
    s_add_u32 s{sFl}, s{sFl}, s{sW}
    s_lshl_b32 s{sFl}, s{sFl}, 6
    s_add_u32 s{sFl}, s{sFl}, s{sCB}
    s_lshl_b32 s{sFl}, s{sFl}, 2
    s_add_u32 s{sFl}, s{sFl}, {FL_H}
    s_lshl_b32 s{sT1}, s{sRB}, 3
    s_lshr_b32 s{sT2}, s{sCB}, 2
    s_add_u32 s{sT1}, s{sT1}, s{sT2}
    s_lshl_b32 s{sT1}, s{sT1}, 2
    s_and_b32 s{sT2}, s{sW}, 2
    s_add_u32 s{sT1}, s{sT1}, s{sT2}
    s_bfe_u32 s{sT2}, s{sCB}, 0x10001
    s_add_u32 s{sT1}, s{sT1}, s{sT2}
    s_lshl_b32 s{sT1}, s{sT1}, 8
    s_add_u32 s{sT1}, s{sT1}, {FL_Q}
    s_lshl_b32 s{sQf}, s{sRB}, 5
    s_add_u32 s{sQf}, s{sQf}, s{sCB}
    s_lshl_b32 s{sQf}, s{sQf}, 2
    s_add_u32 s{sQf}, s{sQf}, s{sW}
    s_lshl_b32 s{sQf}, s{sQf}, 13
    s_add_u32 s{sQf}, s{sQf}, {QF5_OFF}
    s_add_u32 s{sT3}, s{sQf}, 4096""")
    def check(regs):
        if len(regs) == 4:
            return [f"v_xor_b32 {r}, {r}, {vNon}" for r in regs] + [f"v_or3_b32 {regs[0]}, {regs[0]}, {regs[1]}, {regs[2]}", f"v_or_b32 {regs[0]}, {regs[0]}, {regs[3]}",
                    f"v_cmp_eq_u32 vcc, 0, {regs[0]}", "s_nop 0", "s_cmp_eq_u64 vcc, -1"]
        L = [f"v_cmp_eq_u32 vcc, s{sNonce}, {regs[0]}"]
        if len(regs) > 1: L += [f"v_cmp_eq_u32 s[{sT2}:{sT3}], s{sNonce}, {regs[1]}", "s_nop 0", f"s_and_b64 vcc, vcc, s[{sT2}:{sT3}]"]
        else: L += ["s_nop 0"]
        return L + ["s_cmp_eq_u64 vcc, -1"]
    def spin(label, load, regs, back=None):
        L = [f"s_mov_b32 s{sT0}, {SPIN_MAX}", f"{label}_L:", load, "s_waitcnt vmcnt(0)"] + check(regs)
        L += [f"s_cbranch_scc1 {back or label + '_OK'}", f"s_sleep {4 if back else 1}", f"s_sub_u32 s{sT0}, s{sT0}, 1",
              f"s_cmp_lg_u32 s{sT0}, 0", f"s_cbranch_scc1 {label}_L", "s_endpgm"]
        if not back: L.append(f"{label}_OK:")
        return L
    B.ext(ts.at("poll0"))
    B(f"""v_and_b32 {T[2]}, 40, {vL}
    v_cmp_eq_u32 vcc, 40, {T[2]}
    v_add_u32 {T[3]}, 128, {vQP}
    s_nop 0
    v_cndmask_b32 {T[2]}, {vQP}, {T[3]}, vcc""")
    qld = lambda dst: [f"buffer_load_dwordx4 {dst(ab, t)}, {T[2+t]}, {srd(S_WS)}, s{[sQf, sT3][ab]} offen offset:{t*512} {SC1}" for ab in range(2) for t in range(2)]
    if QPOLL:
        QV = S[1]
        B(f"s_mov_b32 s{sT0}, {SPIN_MAX}\nP2_QL:")
        B(f"buffer_load_dword {T[8]}, {vZero}, {srd(S_WS)}, s{sT1} offen sc1")
        B.ext(qld(lambda ab, t: QV.sub(8*ab + 4*t, 4)))
        B("s_waitcnt vmcnt(0)")
        B(f"v_max3_u32 {T[9]}, {QV[0]}, {QV[1]}, {QV[2]}")
        for k in range(3, 15, 2): B(f"v_max3_u32 {T[9]}, {QV[k]}, {QV[k+1]}, {T[9]}")
        B(f"""v_max_u32 {T[9]}, {QV[15]}, {T[9]}
        v_cmp_eq_u32 vcc, -1, {T[9]}
        v_readfirstlane_b32 s{sT2}, {T[8]}
        s_nop 0
        s_cmp_eq_u64 vcc, 0
        s_cbranch_scc1 P2_QOK
        s_cmp_eq_u32 s{sT2}, s{sNonce}
        s_cbranch_scc1 P2_QRE
        s_sub_u32 s{sT0}, s{sT0}, 1
        s_cmp_lg_u32 s{sT0}, 0
        s_cbranch_scc1 P2_QL
        s_endpgm
        P2_QRE:""")
        B.ext(qld(lambda ab, t: QV.sub(8*ab + 4*t, 4)))
        B("s_waitcnt vmcnt(0)\nP2_QOK:")
        B.ext(ts.at("poll1"))
        for ab in range(2):
            for t in range(2):
                for r in range(4): B(f"v_accvgpr_write_b32 {Q[ab][t][r]}, {QV[8*ab + 4*t + r]}")
    else:
        B.ext(spin("P2_POLL", f"buffer_load_dword {T[8]}, {vZero}, {srd(S_WS)}, s{sT1} offen sc1", [T[8]]))
        B.ext(ts.at("poll1"))
        B.ext(qld(lambda ab, t: Q[ab][t]))
    B("s_barrier")
    def kvdma(slot, tag):
        L = []
        for e in range(8):
            pre = []
            if e == 0: pre = [f"s_add_u32 m0, s{slot}, s{sM0}"]
            if e == 4: pre = [f"s_add_u32 s{sT0}, s{slot}, s{sM0}", f"s_add_u32 m0, s{sT0}, 4096", f"s_add_u32 s{sKVo}, s{sKVo}, 4096"]
            L.append((pre, VM(f"buffer_load_dwordx4 {vL16}, {srd(S_KVD)}, s{sKVo} offen offset:{(e&3)*1024} {SC1} lds", tag)))
        return L
    post_dma = f"s_add_u32 s{sKVo}, s{sKVo}, {32768 - 4096}"
    B(f"""ds_read_b128 {K[0][0]}, {vCur}
    ds_read_b128 {K[0][1]}, {vCur} offset:1024
    ds_read_b128 {V[0][0]}, {vCur} offset:2048
    ds_read_b128 {V[0][1]}, {vCur} offset:3072""")
    hist = list(S15) + list(EA) + list(B.lines)
    B(f"""s_waitcnt vmcnt(0) lgkmcnt(0)
    v_mfma_f32_32x32x16_bf16 {S[0]}, {K[0][0]}, {Q[0][0]}, 0
    v_mfma_f32_32x32x16_bf16 {S[0]}, {K[0][1]}, {Q[0][1]}, {S[0]}""")
    B.ext(ts.at("att"))
    B("s_nop 7\ns_nop 3")

    NS = 4
    S_AF, S_W3, S_OUT = S_A, S_B, S_D
    sMT, sNT = sL + 6, sL + 7
    sAo = sL + 8
    sSo3 = sL + 9
    sM3 = sL + 13
    sWo, sWoN = 30, 15
    sX3 = 16
    sSh, sAdv, sAdv28 = 10, 18, 19
    setup3 = Asm()
    MAP48 = opt.get("map48", 0)
    if MAP48:
        setup3(f"""s_and_b32 s{sT0}, s{sRB}, 4
        s_add_u32 s{sMT}, s{sRB}, s{sT0}
        s_bfe_u32 s{sT0}, s{sCB}, 0x10003
        s_lshl2_add_u32 s{sMT}, s{sT0}, s{sMT}
        s_lshr_b32 s{sT0}, s{sCB}, 4
        s_and_b32 s{sT1}, s{sCB}, 7
        s_lshl3_add_u32 s{sNT}, s{sT0}, s{sT1}""")
    else:
        setup3(f"""s_and_b32 s{sT0}, s{sCB}, 1
        s_lshl_b32 s{sMT}, s{sRB}, 1
        s_add_u32 s{sMT}, s{sMT}, s{sT0}
        s_lshr_b32 s{sT0}, s{sCB}, 3
        s_lshl_b32 s{sT0}, s{sT0}, 2
        s_bfe_u32 s{sT1}, s{sCB}, 0x20001
        s_add_u32 s{sNT}, s{sT0}, s{sT1}""")
    setup3(f"""s_lshl_b32 s{sT0}, s{sNT}, 7
    s_add_u32 s{S_W3}, s{P_WD}, s{sT0}
    s_addc_u32 s{S_W3+1}, s{P_WD+1}, 0
    s_sub_u32 s{S_W3+2}, {3584*2048}, s{sT0}
    s_add_u32 s{sWo}, s{P_WO}, s{sT0}
    s_addc_u32 s{sWo+1}, s{P_WO+1}, 0
    s_sub_u32 s{sWoN}, {1024*2048}, s{sT0}
    s_mov_b32 s{sSh}, 11
    s_mov_b32 s{S_AF+2}, 16384
    s_mov_b32 s{S_OUT}, s{P_OUT}
    s_mov_b32 s{S_OUT+1}, s{P_OUT+1}
    s_mov_b32 s{S_OUT+2}, 0x400000
    s_mul_i32 s{sAo}, s{sW}, {AFS2}
    s_lshl_b32 s{sT0}, s{sMT}, 14
    s_add_u32 s{sAo}, s{sAo}, s{sT0}
    s_add_u32 s{sAo}, s{sAo}, {AF2_OFF}
    s_add_u32 s{S_AF}, s{P_WS}, s{sAo}
    s_addc_u32 s{S_AF+1}, s{P_WS+1}, 0
    s_mov_b32 s{sAo}, 4096
    s_mov_b32 s{sAo+1}, 8192
    s_mov_b32 s{sX3}, 12288
    s_lshl_b32 s{sM3}, s{sW}, 14
    s_add_u32 s{sM3}, s{sM3}, {W3B}""")
    for e in range(1, 4): setup3(f"s_mov_b32 s{sSo3+e}, {e*16384 - e*1024}")
    if CW:
        setup3(f"""s_and_b32 s{sT0}, s{sNT}, 7
        s_cmp_lg_u32 s{sT0}, 3
        s_cbranch_scc1 P3_NOCW
        s_lshr_b32 s{sT0}, s{sNT}, 3
        s_mul_i32 s{sT0}, s{sT0}, {CW_SZ}
        s_add_u32 s{sT0}, s{sT0}, {CW_OFF}
        s_add_u32 s{S_W3}, s{P_WS}, s{sT0}
        s_addc_u32 s{S_W3+1}, s{P_WS+1}, 0
        s_mov_b32 s{S_W3+2}, {3584*256}
        s_add_u32 s{sWo}, s{S_W3}, {3584*256}
        s_addc_u32 s{sWo+1}, s{S_W3+1}, 0
        s_mov_b32 s{sWoN}, {1024*256}
        s_mov_b32 s{sSh}, 8
        s_mov_b32 s{sSo3+1}, 1024
        s_mov_b32 s{sSo3+2}, 2048
        s_mov_b32 s{sSo3+3}, 3072
        P3_NOCW:""")
    setup3(f"""s_lshl_b32 s{sAdv}, 128, s{sSh}
    s_mul_i32 s{sAdv28}, s{sAdv}, 28""")
    setup3v = Asm()
    setup3v(f"""v_lshrrev_b32 {T[0]}, 3, {vL}
    v_lshrrev_b32 {T[1]}, 4, {vL}
    v_lshlrev_b32 {T[2]}, 1, {T[1]}
    v_and_b32 {T[3]}, 7, {vL}
    v_xor_b32 {T[2]}, {T[2]}, {T[3]}
    v_lshlrev_b32 {T[2]}, 4, {T[2]}
    s_lshl_b32 s{sT0}, s{sW}, 5
    v_add_u32 {T[0]}, s{sT0}, {T[0]}
    v_lshl_add_u32 {vW3o}, {T[0]}, s{sSh}, {T[2]}
    s_lshl_b32 s{sT0}, s{sAdv}, 2
    v_add_u32 {T[11]}, s{sT0}, {vW3o}
    v_lshrrev_b32 {T[0]}, 2, {vL}
    v_bfe_u32 {T[1]}, {vL}, 3, 2
    v_and_b32 {T[2]}, 3, {vL}
    v_lshlrev_b32 {T[2]}, 3, {T[2]}
    v_lshl_add_u32 {T[2]}, {T[0]}, 7, {T[2]}
    v_add_u32 {T[2]}, s{sM3}, {T[2]}""")
    for i in range(4): setup3v(f"v_xor_b32 {T[3]}, {i}, {T[1]}\nv_lshl_add_u32 {vW3a[i]}, {T[3]}, 5, {T[2]}")
    setup3v(f"""s_lshr_b32 s{sT0}, s{sMT}, 1
    s_lshl_b32 s{sT0}, s{sT0}, 10
    s_lshl_b32 s{sT1}, s{sRB}, 10
    v_mov_b32 {T[4]}, s{sT0}
    v_mov_b32 {T[5]}, s{sT1}
    v_cmp_gt_u32 vcc, 32, {vL}
    v_and_b32 {T[6]}, 31, {vL}
    v_lshlrev_b32 {T[6]}, 2, {T[6]}
    v_cndmask_b32 {T[4]}, {T[4]}, {T[5]}, vcc
    v_bfe_u32 {T[5]}, {vL}, 3, 2
    v_lshl_add_u32 {T[4]}, {T[5]}, 8, {T[4]}
    v_and_b32 {T[5]}, 7, {vL}
    v_lshl_add_u32 {T[4]}, {T[5]}, 4, {T[4]}
    v_lshrrev_b32 {T[5]}, 5, {vL}
    v_lshl_add_u32 {T[5]}, {T[5]}, 8, {T[6]}
    v_and_b32 {T[7]}, 15, {vL}
    v_lshlrev_b32 {T[7]}, 2, {T[7]}""")
    XPF = opt.get("xpf", 0)
    sXP = 17
    setup3v(f"""v_and_b32 {T[0]}, 7, {vL}
    v_cmp_lt_u32 vcc, 2, {T[0]}
    v_lshrrev_b32 {T[8]}, 3, {vL}
    v_lshlrev_b32 {T[8]}, 4, {T[8]}
    v_addc_co_u32 {T[8]}, vcc, {T[8]}, {T[0]}, vcc
    v_lshlrev_b32 {T[8]}, 7, {T[8]}
    s_and_b32 s{sXP}, s{sNT}, 3
    s_lshl_b32 s{sXP}, s{sXP}, 2
    s_add_u32 s{sXP}, s{sXP}, s{sW}
    s_lshl_b32 s{sXP}, s{sXP}, 1
    s_add_u32 s{sXP}, s{sXP}, {opt.get("xp0", 80)}
    s_mul_i32 s{sXP}, s{sXP}, {AFS2}
    s_lshl_b32 s{sT0}, s{sMT}, 14
    s_add_u32 s{sXP}, s{sXP}, s{sT0}
    s_add_u32 s{sXP}, s{sXP}, {AF2_OFF}""")
    def xpf(adv): return [VM(f"buffer_load_dword a254, {T[8]}, {srd(S_WS)}, s{sXP} offen sc1", "XP"), f"s_add_u32 s{sXP}, s{sXP}, {adv}"]
    zero3 = [f"v_mov_b32 {acc3[i][j][r]}, 0" for i in range(4) for j in range(8) for r in range(4)]
    def w3dma(slot, e):
        m0 = f"s_add_u32 m0, s{sM3}, {slot*4096}"
        return m0, VM(f"buffer_load_dwordx4 {vW3o}, {srd(S_W3)}, {'0' if e == 0 else 's%d' % (sSo3+e)} offen offset:{e*1024} {SC1 if CW else ''} lds", ("W", slot))
    def xload(slot, j):
        return VM(f"buffer_load_dwordx4 {RX[slot][j]}, {vAF}, {srd(S_AF)}, {['0', 's%d' % sAo, 's%d' % (sAo+1), 's16'][j>>1]} offen offset:{(j&1)*2048} {opt.get('xflag', SC1)}", ("X", slot, j >> 2))
    adv3 = [f"v_add_u32 {vW3o}, s{sAdv}, {vW3o}", f"s_add_u32 s{S_AF}, s{S_AF}, {4*AFS2}\ns_addc_u32 s{S_AF+1}, s{S_AF+1}, 0"]
    def wread(slot, s):
        return [f"ds_read_b64_tr_b16 {RW[s][i].sub(2*hf,2)}, {vW3a[i]} offset:{slot*4096 + hf*2048}" for i in range(4) for hf in range(2)]
    def gm(s, j, i, first=False): return f"v_mfma_f32_16x16x32_bf16 {acc3[i][j]}, {RW[s&1][i]}, {RX[s][j]}, {0 if first else acc3[i][j]}"

    EARLY3 = opt.get("early3", 0)
    pfsetup = [f"s_lshl_b32 s{sT1}, s2, 2", f"s_add_u32 s{sT1}, s{sT1}, s{sW}", f"s_lshl_b32 s{sT1}, s{sT1}, 10",
               f"v_lshrrev_b32 {vPF}, 3, {vL}", f"v_lshlrev_b32 {vPF}, 7, {vPF}", f"v_add_u32 {vPF}, s{sT1}, {vPF}",
               f"s_mov_b32 s{S_PF}, s{P_WD}", f"s_mov_b32 s{S_PF+1}, s{P_WD+1}", f"s_mov_b32 s{S_PF+2}, {3584*2048}", f"s_mov_b32 s{sPF}, 0x100000"] if PF else []
    k_ = B.lines.index("; @@SETUP3@@")
    ins = []
    if EARLY3:
        ins = setup3.lines + setup3v.lines + pfsetup
        if EARLY3 > 1:
            for s_ in range(4):
                for e_ in range(4):
                    m0, d = w3dma(s_, e_)
                    ins += ([m0, "s_nop 0"] if e_ == 0 else []) + [d] + ([adv3[0]] if e_ == 3 else [])
    B.lines[k_:k_ + 1] = ins
    k2_ = hist.index("; @@SETUP3@@"); hist[k2_:k2_ + 1] = ins
    probs += check_hazards(B.lines, "p2pro")
    A.ext(B.lines)
    def att_parts(ab, kq, vp):
        o = ab ^ 1
        M = [f"v_mfma_f32_32x32x16_bf16 {S[o]}, {K[kq][0]}, {Q[o][0]}, 0",
             f"v_mfma_f32_32x32x16_bf16 {S[o]}, {K[kq][1]}, {Q[o][1]}, {S[o]}",
             f"v_mfma_f32_32x32x16_bf16 {O[o]}, {V[vp][0]}, {P[o].sub(0,4)}, {O[o]}",
             lsum(o),
             f"v_mfma_f32_32x32x16_bf16 {O[o]}, {V[vp][1]}, {P[o].sub(4,4)}, {O[o]}",
             None]
        ex = [f"v_exp_f32 {S[ab][r]}, {S[ab][r]}" for r in range(16)]
        cv = [f"v_cvt_pk_bf16_f32 {P[ab][r]}, {S[ab][2*r]}, {S[ab][2*r+1]}" for r in range(8)]
        return M, ex, cv
    def phase_plain(ab, kq, vp, extra):
        M, ex, cv = att_parts(ab, kq, vp)
        order = [M[2], M[0], M[1], M[3], M[4]]
        vl = []
        for r in range(16):
            vl.append(ex[r])
            if r >= 3 and r % 2 == 1: vl.append(cv[(r - 3)//2])
        vl.append(cv[7])
        mpos = opt.get("mpos", [0, 4, 9, 14, 18])
        assert max(extra, default=0) <= 4
        out = []; mi = 0
        for i, v in enumerate(vl):
            while mi < 5 and mpos[mi] == i:
                out.append(order[mi]); out.extend(extra.get(mi, [])); mi += 1
            out.append(v)
        return out
    def phase_merged(ab, kq, vp, G8, extra):
        M, ex, cv = att_parts(ab, kq, vp)
        order = [M[2], G8[0], M[0], G8[1], G8[2], M[1], G8[3], M[3], G8[4], M[4], G8[5], G8[6], G8[7]]
        e, c = ex, cv
        fill = [[e[0], e[1], e[2]], [e[3]], [e[4], e[5], e[6]], [c[0], c[1]], [e[7]], [e[8], e[9], e[10]], [c[2], c[3]], [c[4]],
                [e[11]], [e[12], e[13], e[14]], [e[15]], [c[5], c[6]], [c[7]]]
        assert max(extra, default=0) <= 12
        out = []
        for k in range(13):
            out.append(order[k]); out.extend(extra.get(k, [])); out.extend(fill[k])
        return out
    sX3 = 16
    NP = opt.get("np", 4)
    PFSW = 6
    sKM = sL + 14
    def chunk(kind, hook=None, first=False, pfok=True, wpre=False):
        out = []
        mer = kind == "merged"
        for pi in range(16):
            tau, ab = pi >> 1, pi & 1
            kp = tau & 1
            ex = {}
            if ab == 0:
                src = (vCur, (tau+1)*4096) if tau < 7 else (vNxt, 0)
                ld = [f"ds_read_b128 {K[kp^1][t]}, {src[0]} offset:{src[1] + t*1024}" for t in range(2)]
            else:
                src = (vCur, (tau+1)*4096 + 2048) if tau < 7 else (vNxt, 2048)
                ld = [f"ds_read_b128 {V[kp^1][t]}, {src[0]} offset:{src[1] + t*1024}" for t in range(2)]
            kvd = VM(f"buffer_load_dwordx4 {vL16}, {srd(S_KVD)}, s{sKVo} offen offset:{(pi&3)*1024} {SC1} lds", "KV")
            if wpre:
                kvd = VM(f"buffer_load_dwordx4 {T[11]}, {srd(S_KVD)}, {'0' if pi & 3 == 0 else 's%d' % (sSo3 + (pi & 3))} offen offset:{(pi&3)*1024} {SC1 if CW else ''} lds", "PW")
            rotate = [f"s_mov_b32 s{sT0}, s{sCur}", f"s_mov_b32 s{sCur}, s{sNext}", f"s_mov_b32 s{sNext}, s{sFree}", f"s_mov_b32 s{sFree}, s{sT0}",
                      f"s_add_u32 s{sKM}, s{sT0}, s{sM0}", f"s_add_u32 s{sIt}, s{sIt}, 1"]
            upd = [f"v_add_u32 {vCur}, s{sCur}, {vL16}", f"v_add_u32 {vNxt}, s{sNext}, {vL16}"]
            lg = 0 if (trace or not mer) else 2
            s, q = pi >> 2, pi & 3
            if pi == 14: w0 = [Need(["KV"], "lgkmcnt(0)"), "s_barrier"]
            elif mer and q == 0: w0 = [Need([("W", (s+1) % NS), ("X", s, 1)], "lgkmcnt(0)")]
            else: w0 = [f"s_waitcnt lgkmcnt({lg})"]
            put(ex, 0, w0)
            if pi % 8 == 7: put(ex, 0, tr_commit())
            if not mer:
                if pi < 8: put(ex, 3, f"s_mov_b32 m0, s{sKM}")
                if pi == 4: put(ex, 1, f"s_add_u32 s{sKVo}, s{sKVo}, 4096"); put(ex, 2, f"s_add_u32 s{sKM}, s{sKM}, 4096")
                if pi == 8: put(ex, 1, post_dma)
                if pi == 14: put(ex, 3, rotate[0]); put(ex, 4, rotate[1])
                if pi == 15: put(ex, 1, rotate[2]); put(ex, 2, rotate[3]); put(ex, 3, rotate[4]); put(ex, 4, rotate[5])
                put(ex, 1, ld[0]); put(ex, 2, ld[1])
                if pi < 8: put(ex, 4, kvd)
            else:
                G8 = [gm(s, 2*q + jj, i, first and s == 0) for jj in range(2) for i in range(4)]
                m0, d = w3dma(s, q)
                rd = wread((s+1) % NS, (s+1) & 1)
                if pi == 4: put(ex, 1, f"s_add_u32 s{sKVo}, s{sKVo}, 4096"); put(ex, 4, f"s_add_u32 s{sKM}, s{sKM}, 4096")
                if pi == 8: put(ex, 1, post_dma)
                if q == 0 and s > 0: put(ex, 6, adv3[1])
                if pi == 15:
                    for k, g_ in enumerate((4, 5, 6, 7, 8, 9)): put(ex, g_, rotate[k])
                if pi == 10 and PF: put(ex, 1, pfop[1])
                put(ex, 1, ld[0]); put(ex, 2, m0); put(ex, 3, d); put(ex, 4, ld[1])
                put(ex, 5, rd[2*q]); put(ex, 10 if q < 3 else 6, rd[2*q+1])
                put(ex, 7, xload(s, 2*q)); put(ex, 12, xload(s, 2*q+1))
                if q == 3: put(ex, 11, adv3[0])
                if pi < 8: put(ex, 8, f"s_mov_b32 m0, s{sKM}"); put(ex, 9, kvd)
                if wpre and pi in (4, 8): put(ex, 6, f"v_add_u32 {T[11]}, s{sAdv}, {T[11]}")
                if pi == 9 and PF:
                    put(ex, 9, pfop[0])
                    put(ex, 6, [f"s_cmp_eq_u32 s{sIt}, {PFSW}", f"s_cselect_b32 s{sPF}, 0, s{sPF}", f"s_cselect_b32 s{S_PF}, s{P_WO}, s{S_PF}",
                                f"s_cselect_b32 s{S_PF+1}, s{P_WO+1}, s{S_PF+1}", f"s_cselect_b32 s{S_PF+2}, 0x200000, s{S_PF+2}"])
                if pi == 12: put(ex, 9, cp(False))
            if pi % 8 == 6: put(ex, 3, tr_issue())
            if hook: hook(pi, ex, None)
            if mer: out += phase_merged(ab, kp ^ ab, kp ^ 1 ^ ab, G8, ex)
            else: out += phase_plain(ab, kp ^ ab, kp ^ 1 ^ ab, ex)
        if mer: out += adv3[1:]
        out += upd
        return out

    dflt = {3: dict(hs=[1, 1], gs=23, hf=26, hp=36, hc=39, pf=[25, 28, 41]), 4: dict(hs=[2, 1], gs=32, hf=44, hp=50, hc=53, pf=[34, 38, 44, 56])}[NP]
    dflt.update(opt.get("sched", {}))
    HSN, HSD = dflt["hs"]; GS, HF, HPg, HC, PFP = dflt["gs"], dflt["hf"], dflt["hp"], dflt["hc"], dflt["pf"]
    assert len(PFP) == NP
    hst = hst0 + hst1a
    hph = [dflt.get("hs0", 0) + n*HSN//HSD for n in range(16)]
    assert EARLY3 or hph[-1] < GS
    hpoll = f"buffer_load_dwordx4 {vFl}, {T[4]}, {srd(S_WS)}, s{sT1} offen sc1"
    LASTP = 16*NP - 1
    wph = [GS + 1 + k // 2 for k in range(16)] if not EARLY3 else ([-1]*16 if EARLY3 > 1 else [2*(k // 2)*2 + 1 for k in range(16)])
    NXP = opt.get("nxp", 32)
    xph = [HC + 1 + (k * (LASTP - HC)) // NXP for k in range(NXP)] + [-1] * (32 - NXP)
    gloads = [VM(f"buffer_load_dword {vG[ab]}, {T[6]}, {srd(S_WS)}, s{sT2} offen offset:{ab*128} sc1", "G") for ab in range(2)]
    gloads += [VM(f"buffer_load_dword {SCL[j]}, {T[7]}, {srd(S_WS)}, s{sT3} offen offset:{j*64} sc1", "G") for j in range(8)]
    def hookM0(pi, ex, pre):
        n = NXP + pi
        if n < 32:
            s_, j_ = divmod(n, 8)
            put(ex, 6, VM(f"buffer_load_dwordx4 {RX[s_][j_]}, {vL16}, {srd(S_AF)}, s{sX3 + (j_>>2)} offen offset:{(j_&3)*1024} {SC1}", ("X", s_, j_ >> 2)))
        if pi >= 11: put(ex, 8, gloads[2*(pi - 11)]); put(ex, 11, gloads[2*(pi - 11) + 1])
    def mkhook(base):
        def hook(pi, ex, pre):
            gp = base + pi
            k = 0
            for n in range(16):
                if hph[n] == gp: put(ex, [0, 3][k], hst[n]); k += 1
            if gp == GS and not EARLY3:
                put(ex, 0, setup3.lines[:15]); put(ex, 1, setup3.lines[15:]); put(ex, 3, setup3v.lines + pfsetup)
            if gp in PFP and PF: put(ex, 3 if (gp & 15) >= 8 else 0, pfop)
            if gp in (9, 16*NP - 22): put(ex, 4, cp())
            k = 0
            for n in range(16):
                if wph[n] == gp:
                    s_, e_ = divmod(n, 4)
                    m0, d = w3dma(s_, e_)
                    if k == 0: ex[0] = ex[0] + [m0]
                    put(ex, k + 1, [d] + ([adv3[0]] if e_ == 3 else [])); k += 1
            if gp == HF:
                put(ex, 2, [Need(["H"]), "s_mov_b64 exec, 1", VM(f"buffer_store_dword {vNon}, {vZero}, {srd(S_WS)}, s{sFl} offen sc1", "HF"), "s_mov_b64 exec, -1", "s_nop 2"])
            if gp == HPg: put(ex, 3, [f"s_mov_b32 s{sT1}, {FL_H}", VM(hpoll, "HP")])
            if gp == HC:
                put(ex, 2, [Need(["HP"])] + check([vFl[k] for k in range(4)]) + ["s_cbranch_scc0 P3_SLOWH", "P3_HOK:"])
                put(ex, 3, [f"s_lshl_b32 s{sT2}, s{sRB}, 10", f"s_lshl_b32 s{sT3}, s{sW}, 8", f"s_add_u32 s{sT2}, s{sT2}, s{sT3}", f"s_add_u32 s{sT2}, s{sT2}, {G_OFF}",
                            f"s_lshl_b32 s{sT3}, s{sMT}, 9", f"s_add_u32 s{sT3}, s{sT3}, {G_OFF}"])
            k = 0
            for n in range(32):
                if xph[n] == gp:
                    s_, j_ = divmod(n, 8)
                    put(ex, [0, 3, 4, 2][k], [xload(s_, j_)] + (adv3[1:] if j_ == 7 else [])); k += 1
            if gp == LASTP:
                put(ex, 3, [Need([("W", 0)])] + wread(0, 0))
                if NXP == 24: put(ex, 5, [f"s_mov_b32 s{sX3}, s{sAo}", f"s_mov_b32 s{sX3+1}, s{sAo+1}"] + adv3[1:])
        return hook
    def retag(ch, cur, need):
        out = []
        for l in ch:
            if isinstance(l, VM) and l.tag == "KV": out.append(VM(l, cur))
            elif isinstance(l, Need) and "KV" in l.tags: out.append(Need([need], l.extra))
            else: out.append(l)
        return out
    hist = [VM(l, "KV-1") if isinstance(l, VM) and l.tag == "KV" else l for l in hist]
    CP = []; hh_ = list(hist)
    for c in range(NP):
        ch = resolve_waits(retag(chunk("plain", mkhook(16*c)), f"KV{c}", f"KV{c-1}"), hh_)
        CP.append(ch); hh_ += ch
    mA = retag(chunk("merged"), "KVa", "KVb"); mB = retag(chunk("merged"), "KVb", "KVa")
    mres = resolve_waits(mA, mB)
    M = mres
    M0 = resolve_waits(retag(chunk("merged", hookM0, first=True), "KVb", f"KV{NP-1}"), hh_)
    probs += verify_waits(hh_ + M0 + M, len(hh_ + M0), "M0->M")
    WPRE = opt.get("wpre", 1)
    if WPRE:
        MW = resolve_waits(retag(chunk("merged", wpre=True), "-", "KVa"), M)
        probs += verify_waits(M + MW + [l for l in MW if not (isinstance(l, Need) and "KVa" in l.tags)], len(M + MW), "MW->MW")
    mab = opt.get("mabl", "")
    def abl(L):
        out = []
        for l in L:
            if "x" in mab and isinstance(l, VM) and isinstance(l.tag, tuple) and l.tag[0] == "X": continue
            if "w" in mab and isinstance(l, VM) and isinstance(l.tag, tuple) and l.tag[0] == "W": continue
            if "t" in mab and l.startswith("ds_read_b64_tr"): continue
            if "k" in mab and l.startswith("ds_read_b128"): continue
            if "s" in mab and l.startswith(("s_add", "s_mov", "s_cmp", "s_cselect")) and f"s{sIt}" not in l and "exec" not in l: continue
            if "n" in mab and isinstance(l, Need): out.append("s_waitcnt lgkmcnt(0)" if l.extra else "s_nop 0"); continue
            if "g" in mab and l.startswith("v_mfma_f32_16x16") and "a[2" in l: continue
            out.append(l)
        return out
    Me = abl(M); M0e = abl(M0)
    D = Asm()
    D(f"s_mov_b32 s{sIt}, 0")
    for c in range(NP): D.ext(ts.at(f"c{c}")); D.ext(CP[c])
    D.ext(ts.at("m")); D.ext(M0e)
    D.ext(ts.at("m1"))
    D(".p2align 6\nP2_MLOOP:")
    D.ext(Me)
    if WPRE:
        D(f"""s_cmp_lt_u32 s{sIt}, 6
        s_cbranch_scc1 P2_MLOOP
        s_mov_b32 s{S_KVD}, s{sWo}
        s_mov_b32 s{S_KVD+1}, s{sWo+1}
        s_mov_b32 s{S_KVD+2}, s{sWoN}""")
        if CPF: D(cpa)
        D.ext(ts.at("mw"))
        D("P2_MWLOOP:")
        if "mw2" in ts.names: D.ext(ts.at("mw2"))
        D.ext(abl(MW))
        D(f"s_cmp_lt_u32 s{sIt}, 8\ns_cbranch_scc1 P2_MWLOOP")
        probs += check_hazards(M + MW + MW, "mw")
        M = MW
    else:
        D(f"s_cmp_lt_u32 s{sIt}, 8\ns_cbranch_scc1 P2_MLOOP")
    probs += check_hazards(B.lines[-8:] + sum(CP, []) + M0 + M + M, "att")
    A.ext(D.lines)

    C = Asm()
    C.ext(ts.at("attend"))
    C(f"""v_mfma_f32_32x32x16_bf16 {O[1]}, {V[1][0]}, {P[1].sub(0,4)}, {O[1]}
    {lsum(1)}
    v_mfma_f32_32x32x16_bf16 {O[1]}, {V[1][1]}, {P[1].sub(4,4)}, {O[1]}""")
    C(f"v_mov_b32 {T[1]}, 0")
    for r in range(16): C(f"v_fmac_f32 {T[1]}, 0, {O[0][r]}")
    for r in range(16): C(f"v_fmac_f32 {T[1]}, 0, {O[1][r]}")
    for ab in range(2): C(f"v_add_f32 {Lc[ab][0]}, {Lc[ab][0]}, {Lc[ab][1]}")
    C(f"""s_mov_b32 s{sT0}, {f2u(2.0**-20):#x}
    s_mov_b32 s{sT1}, {f2u(2.0**100):#x}
    v_cmp_le_f32 vcc, s{sT0}, {Lc[0][0]}
    v_cmp_le_f32 s[{S_C}:{S_C+1}], s{sT0}, {Lc[1][0]}
    s_nop 1
    s_and_b64 vcc, vcc, s[{S_C}:{S_C+1}]
    v_cmp_ge_f32 s[{S_C}:{S_C+1}], s{sT1}, {Lc[0][0]}
    v_cmp_ge_f32 s[{sT2}:{sT3}], s{sT1}, {Lc[1][0]}
    s_nop 1
    s_and_b64 vcc, vcc, s[{S_C}:{S_C+1}]
    s_and_b64 vcc, vcc, s[{sT2}:{sT3}]
    v_cmp_eq_f32 s[{S_C}:{S_C+1}], 0, {T[1]}
    s_nop 1
    s_and_b64 vcc, vcc, s[{S_C}:{S_C+1}]
    s_cmp_eq_u64 vcc, -1""")
    if opt.get("force_fallback"): C("s_branch P2_FALLBACK")
    C("s_cbranch_scc0 P2_FALLBACK")
    C("P2_FINISH:")
    for ab in range(2): C(f"v_rcp_f32 {T[2*ab]}, {Lc[ab][0]}")
    C(f"""s_add_u32 s{sT0}, s{sCB}, 112
    s_mul_i32 s{sT0}, s{sT0}, {AFS2}
    s_lshl_b32 s{sT1}, s{sRB}, 15
    s_add_u32 s{sT0}, s{sT0}, s{sT1}
    s_lshl_b32 s{sT1}, s{sW}, 13
    s_add_u32 s{sT0}, s{sT0}, s{sT1}
    s_add_u32 s{sT0}, s{sT0}, {AF2_OFF}
    s_add_u32 s{sT1}, s{sT0}, 4096
    v_and_b32 {vFl[2]}, 40, {vL}
    v_cmp_eq_u32 vcc, 40, {vFl[2]}
    v_add_u32 {vFl[2]}, 128, {vQP}
    s_nop 0
    v_cndmask_b32 {vFl[1]}, {vQP}, {vFl[2]}, vcc""")
    for ab in range(2): C(f"v_mul_f32 {T[2*ab]}, {T[2*ab]}, {vG[ab]}")
    for ab in range(2):
        for r in range(0, 16, 2):
            C(f"v_pk_mul_f32 {O[ab].sub(r,2)}, {O[ab].sub(r,2)}, {T.sub(2*ab,2)} op_sel_hi:[1,0]")
        for r in range(8): C(f"v_cvt_pk_bf16_f32 {S[ab][r]}, {O[ab][2*r]}, {O[ab][2*r+1]}")
        for c in range(2):
            C(VM(f"buffer_store_dwordx4 {S[ab].sub(4*c,4)}, {vFl[1+c]}, {srd(S_WS)}, s{sT0+ab} offen offset:{c*512} {SC1}", "O"))
    for j in range(8): C(f"v_sub_f32 {SCL[j]}, 1.0, {SCL[j]}")
    for j in range(8): C(f"v_cvt_pk_bf16_f32 {SCL[j]}, {SCL[j]}, {SCL[j]}")
    for j in range(8): C(f"v_and_b32 {SCL[j]}, 0xffff0000, {SCL[j]}")
    sFC = sL
    C(f"""s_lshl_b32 s{sFC}, s{sMT}, 9
    s_add_u32 s{sFC}, s{sFC}, {FL_O}
    s_add_u32 s{sFl}, s{sFl}, {FL_O - FL_H}""")
    C.ext(ts.at("tail"))
    EPI_IL = opt.get("epi_il", 1)
    groups = []
    if EPI_IL:
        n0 = next(k for k, l in enumerate(C.lines) if l.startswith("v_mov_b32") )
        rest = C.lines[n0:]; C.lines = C.lines[:n0]
        k0 = next(k for k, l in enumerate(rest) if l.startswith("s_mov_b32"))
        k1 = rest.index("P2_FINISH:")
        groups = [[l] for l in rest[:k0]] + [rest[k0:k1 + 1]] + [[l] for l in rest[k1 + 1:]]
    vPa = [O[0][i] for i in range(4)]; vPb = [O[0][4 + i] for i in range(4)]
    def pread(st, dst):
        base = vPb if st < 2 else vPa
        return [f"ds_read_b64_tr_b16 {dst[i].sub(2*hf,2)}, {base[i]} offset:{(st & 1)*4096 + hf*2048}" for i in range(4) for hf in range(2)]
    def p3iter(hook=None, now=False):
        out = []
        for s in range(NS):
            m = [gm(s, j, i) for j in range(8) for i in range(4)]
            f = {}
            if opt.get("t3", 1) == 0:
                f[-1] = [Need([("W", (s+1) % NS), ("X", s, 1)], "lgkmcnt(0)"), w3dma(s, 0)[0]]
                dgap = [0, 6, 14, 22]
                for e in range(4): put(f, dgap[e], w3dma(s, e)[1])
                for k, r in enumerate(wread((s + 1) % NS, (s+1) & 1)): put(f, 1 + 3*k, r)
                for j in range(8): put(f, 4*j + 3 + (1 if j < 7 else 0), xload(s, j))
            else:
                f[-1] = [Need([("X", s, 0)], "lgkmcnt(0)"), w3dma(s, 0)[0]]
                dgap = opt.get("t3w", [0, 2, 6, 10])
                if now: f[-1] = f[-1][:1]
                else:
                    for e in range(4): put(f, dgap[e], w3dma(s, e)[1])
                put(f, 15, Need([("X", s, 1)]))
                rg0 = opt.get("t3r", 18)
                if not (now and s == 3): put(f, rg0 - 1, Need([("W", (s+1) % NS)]))
                for k, r in enumerate(pread(0, RW[0]) if (now and s == 3) else wread((s + 1) % NS, (s+1) & 1)): put(f, rg0 + k + (1 if rg0 + k >= 20 else 0) + (1 if rg0 + k >= 23 else 0), r)
                for j in range(8): put(f, 4*j + 3 + (1 if j < 7 else 0), xload(s, j))
            put(f, 31, adv3)
            put(f, 28, tr_issue())
            if trace: f[-1] = f[-1][:1] + tr_commit() + f[-1][1:]
            if hook: hook(s, f)
            out += interleave(m, f)
        return out
    opoll = f"buffer_load_dword {vFl[0]}, {T[5]}, {srd(S_WS)}, s{sFC} offen sc1"
    NT = NP - 2
    OFS, OPS = opt.get("oflag_step", 2), opt.get("opoll_step", 4*NT - 1 if NT == 1 else 4*NT - 2)
    def mkT(base):
        def hookT(s, f):
            if base == 0 and s < 2:
                R_ = opt.get("epi_rate", 3)
                for g_ in range(2 if s == 0 else 0, 31):
                    for _ in range(R_):
                        if groups: put(f, g_, groups.pop(0))
                assert s == 0 or not groups
            if base + s == OFS: put(f, 10, [Need(["O"]), "s_mov_b64 exec, 1", VM(f"buffer_store_dword {vNon}, {vZero}, {srd(S_WS)}, s{sFl} offen sc1", "OF"), "s_mov_b64 exec, -1", "s_nop 2"])
            if base + s == OPS: put(f, 26, VM(opoll, "OP"))
            if base + s == 1 and CPF: put(f, 14, [cpa, f"v_min_u32 v0, L_END-{NAME}-4, v0"] + cp(False))
        return hookT
    T5 = []
    for k in range(NT): T5 += resolve_waits(p3iter(mkT(4*k)), M + M + C.lines + T5)
    L3 = resolve_waits(p3iter())
    mid = [Need(["OP"])] + check([vFl[0]]) + ["s_cbranch_scc0 P3_SLOWO", "P3_OOK:",
           f"s_mov_b32 s{S_W3}, s{sWo}", f"s_mov_b32 s{S_W3+1}, s{sWo+1}", f"s_mov_b32 s{S_W3+2}, s{sWoN}",
           f"v_subrev_u32 {vW3o}, s{sAdv28}, {vW3o}", f"s_mov_b32 s{sIt}, 6", "s_barrier",
           f"v_add_u32 {T[0]}, 0x10000, {vL16}", f"v_and_b32 {T[1]}, 15, {vL}", f"v_lshlrev_b32 {T[1]}, 11, {T[1]}", f"v_bfe_u32 {T[2]}, {vL}, 4, 1",
           f"v_lshl_add_u32 {T[1]}, {T[2]}, 5, {T[1]}", f"v_lshrrev_b32 {T[2]}, 5, {vL}", f"v_lshl_add_u32 {T[1]}, {T[2]}, 4, {T[1]}",
           f"s_lshl_b32 s{sT0}, s{sMT}, 18", f"s_lshl_b32 s{sT1}, s{sW}, 16", f"s_add_u32 s{sT0}, s{sT0}, s{sT1}",
           f"s_lshl_b32 s{sT1}, s{sNT}, 7", f"s_add_u32 s{sT0}, s{sT0}, s{sT1}", f"s_add_u32 s{sT1}, s{sT0}, 32768"]
    if XPF & 2:
        mid += [f"s_add_u32 s{sXP}, s{sXP}, {(112 - opt.get('xp0', 80) - (2 if XPF & 1 else 0))*AFS2}"] + xpf(AFS2) + xpf(0)
    if WPRE:
        mid += [f"s_lshl_b32 s{sT2}, s{sW}, 13", f"s_add_u32 s{sT2}, s{sT2}, {W3B}"]
        mid += [f"v_subrev_u32 {vPa[i]}, s{sT2}, {vW3a[i]}" for i in range(4)] + [f"v_add_u32 {vPb[i]}, 0x10000, {vPa[i]}" for i in range(4)]
    mid = resolve_waits(mid, T5)
    probs += verify_waits(M + C.lines + T5 + mid + L3, len(M + C.lines + T5 + mid), "T5->L3")
    tail = [f"s_add_u32 s{sIt}, s{sIt}, 1", f"s_cmp_eq_u32 s{sIt}, 8", "s_cbranch_scc1 P3_DONE", "s_nop 7"]
    for i in range(4):
        for j in range(8):
            for r in (0, 2):
                tail.append(f"v_pk_mul_f32 {acc3[i][j].sub(r,2)}, {acc3[i][j].sub(r,2)}, {SCL.sub(j & ~1, 2)} op_sel:[0,{j&1}] op_sel_hi:[1,{j&1}]")
    tail += ["s_nop 0", "s_branch P3_LOOP", "P3_DONE:"]
    probs += check_hazards(M[-30:] + C.lines + T5 + mid + L3 + tail + L3, "tail") + check_hazards(L3 + L3, "l3")
    tab = opt.get("tabl", "")
    def tabl(L):
        out = []
        for l in L:
            if isinstance(l, VM) and isinstance(l.tag, tuple) and l.tag[0].lower() in tab: continue
            if "t" in tab and l.startswith("ds_read_b64_tr"): continue
            if "m" in tab and l.startswith("v_mfma"): continue
            if "a" in tab and l in adv3: continue
            out.append(l)
        return out
    T5 = tabl(T5); L3 = tabl(L3)
    C.ext(T5); C.ext(ts.at("t5end")); C.ext(mid); C.ext(ts.at("l3"))
    if WPRE:
        def hookL7(s, f):
            if s == 0:
                for j in range(8):
                    sc = [f"v_pk_mul_f32 {acc3[i][j].sub(r,2)}, {acc3[i][j].sub(r,2)}, {SCL.sub(j & ~1, 2)} op_sel:[0,{j&1}] op_sel_hi:[1,{j&1}]" for i in range(4) for r in (0, 2)]
                    if j == 0: put(f, -1, sc + ["s_nop 1"])
                    else:
                        for k in range(8): put(f, 4*(j - 1) + k // 3, sc[k])
        L7 = resolve_waits(p3iter(hookL7, now=True), L3 + L3)
        probs += check_hazards(L3 + L7, "l7")
        C.ext(L3); C.ext(tabl(L7)); C.ext(ts.at("l3end"))
        LPREV = L3 + L7
    else:
        C(".p2align 6\nP3_LOOP:")
        C.ext(L3); C.ext(tail); C.ext(ts.at("l3end"))
        LPREV = L3 + L3
    for w in range(3): C(f"s_cmp_eq_u32 s{sW}, {w}\ns_cbranch_scc1 P3_FIN{w}")
    A.ext(C.lines)
    RWF = [RW[0]] + [[Reg("a", 128 + 16*k + 4*i, 4) for i in range(4)] for k in range(3)]
    def fin(w):
        def adr(off): return (vL16, off) if off < 65536 else (T[0], off - 65536)
        own = [2*w, 2*w + 1]
        oth = [j for d in range(1, 4) for j in (2*((w + d) & 3), 2*((w + d) & 3) + 1)]
        mm = lambda s_, j, i: f"v_mfma_f32_16x16x32_bf16 {acc3[i][j]}, {RWF[s_][i]}, {RX[s_][j]}, {acc3[i][j]}"
        FA = opt.get("fa", 2)
        m = [mm(s_, j, i) for s_ in range(FA) for j in oth + own for i in range(4)]
        G0 = 32*FA; PJ = 4*(4 - FA)
        f = {}
        f[-1] = [Need([("X", 0, 1)] + ([] if WPRE else [("W", 1)]), "lgkmcnt(0)")]
        k = 0
        for s_ in (1, 2, 3):
            if s_ > 1 and not WPRE: put(f, k, Need([("W", s_)]))
            for r in (pread(s_, RWF[s_]) if WPRE else [f"ds_read_b64_tr_b16 {RWF[s_][i].sub(2*hf,2)}, {vW3a[i]} offset:{s_*4096 + hf*2048}" for i in range(4) for hf in range(2)]):
                put(f, k, r); k += 1
        for s_ in range(1, FA): put(f, 32*s_ - 1, Need([("X", s_, 1)], "lgkmcnt(0)"))
        put(f, G0 - 1, Need([("X", 3, 1)], "lgkmcnt(0)"))
        if WPRE: put(f, 31, "s_barrier")
        for n, j in enumerate(oth + own):
            m += [mm(s_, j, i) for s_ in range(FA, 4) for i in range(4)]
        for n, j in enumerate(oth):
            d = j >> 1; q = (w - d - 1) & 3
            for i in range(4):
                b_, off = adr((d*3 + q)*8192 + ((j & 1)*4 + i)*1024)
                put(f, G0 + PJ*(n + 1) + 5 + (2 if FA == 1 else 1)*i, f"ds_write_b128 {b_}, {acc3[i][j]} offset:{off}")
        free = [acc3[i][j] for j in oth for i in range(4)]
        g0 = G0 + PJ*7 + 2
        put(f, g0, ["s_waitcnt lgkmcnt(0)", "s_barrier"])
        k = 0
        for q in range(3):
            for jj in range(2):
                for i in range(4):
                    b_, off = adr((w*3 + q)*8192 + (jj*4 + i)*1024)
                    put(f, min(g0 + k // (3 if FA == 1 else 4), 127), f"ds_read_b128 {free[k]}, {b_} offset:{off}"); k += 1
        R = Asm()
        R.ext(resolve_waits(interleave(m, f), LPREV))
        R.ext(ts.at("redw"))
        R("s_nop 3")
        for q in range(3):
            R(f"s_waitcnt lgkmcnt({[15, 8, 0][q] if not ts.on else 0})")
            for jj in range(2):
                for i in range(4):
                    a = acc3[i][2*w+jj]; b = free[q*8 + jj*4 + i]
                    for r in (0, 2): R(f"v_pk_add_f32 {a.sub(r,2)}, {a.sub(r,2)}, {b.sub(r,2)}")
        for jj in range(2):
            for ip in range(2):
                X, Y = acc3[2*ip][2*w+jj], acc3[2*ip+1][2*w+jj]
                Dd = S[0].sub(4*(jj*2+ip), 4)
                R(f"v_cvt_pk_bf16_f32 {Dd[0]}, {X[0]}, {X[1]}\nv_cvt_pk_bf16_f32 {Dd[1]}, {X[2]}, {X[3]}")
                R(f"v_cvt_pk_bf16_f32 {Dd[2]}, {Y[0]}, {Y[1]}\nv_cvt_pk_bf16_f32 {Dd[3]}, {Y[2]}, {Y[3]}")
                R(f"s_nop 1\nv_permlane16_swap_b32 {Dd[0]}, {Dd[2]}\nv_permlane16_swap_b32 {Dd[1]}, {Dd[3]}")
                R(f"buffer_store_dwordx4 {Dd}, {T[1]}, {srd(S_OUT)}, s{sT0+jj} offen offset:{ip*64} {opt.get('outflag', '')}")
        if trace:
            R(f"""s_waitcnt vmcnt(0)
            s_memrealtime s[100:101]
            s_waitcnt lgkmcnt(0)
            s_lshl_b64 exec, 1, s81
            v_mov_b32 v0, s100
            s_mov_b64 exec, -1
            s_lshl_b32 s80, s2, 2
            s_add_u32 s80, s80, s{sW}
            s_lshl_b32 s80, s80, 8
            s_add_u32 s80, s80, {TS_OFF}
            v_lshlrev_b32 {T[3]}, 2, {vL}
            buffer_store_dword v0, {T[3]}, {srd(S_WS)}, s80 offen
            s_waitcnt vmcnt(0) ; TRACE""")
        if opt.get("dbgt"):
            R(f"""s_waitcnt vmcnt(0) lgkmcnt(0)
            s_memrealtime s[100:101]
            s_waitcnt lgkmcnt(0)
            s_mov_b32 s{S_C}, s{P_DBG}
            s_mov_b32 s{S_C+1}, s{P_DBG+1}
            s_mov_b32 s{S_C+2}, 256
            s_mov_b64 exec, 1""")
            for i in range(10):
                R(f"""s_sub_u32 s80, s{82+2*i}, s{sNonce}
                s_add_u32 s80, s80, 1000
                v_mov_b32 {T[3]}, s80
                buffer_atomic_umax {T[3]}, {vZero}, {srd(S_C)}, 0 offen offset:{8 + 4*i}""")
            R("s_waitcnt vmcnt(0)")
        else:
            R.ext(ts.flush(S_WS, sW, S[1].base))
        R("s_endpgm")
        return R
    for w in (3, 0, 1, 2):
        R = fin(w)
        probs += check_hazards(LPREV[-10:] + R.lines, f"fin{w}")
        A(f"P3_FIN{w}:"); A.ext(R.lines)
    A.ext(slow1.lines)
    A("P3_SLOWH:"); A.ext(spin("P3_SH", hpoll, [vFl[k] for k in range(4)], "P3_HOK"))
    A("P3_SLOWO:"); A.ext(spin("P3_SO", opoll, [vFl[0]], "P3_OOK"))

    F = Asm()
    F("P2_FALLBACK:")
    for ab in range(2): F(f"v_mov_b32 {T[ab]}, 0xff800000")
    F(f"s_mov_b32 s{sT0}, {KV_OFF}")
    F("P2_FB1:")
    for t in range(2): F(f"buffer_load_dwordx4 {K[0][t]}, {vL16}, {srd(S_WS)}, s{sT0} offen offset:{t*1024} {SC1}")
    F("s_waitcnt vmcnt(0)")
    for ab in range(2):
        F(f"v_mfma_f32_32x32x16_bf16 {S[ab]}, {K[0][0]}, {Q[ab][0]}, 0\nv_mfma_f32_32x32x16_bf16 {S[ab]}, {K[0][1]}, {Q[ab][1]}, {S[ab]}")
    F("s_nop 15")
    for ab in range(2):
        for r in range(0, 16, 2): F(f"v_max3_f32 {T[ab]}, {S[ab][r]}, {S[ab][r+1]}, {T[ab]}")
    F(f"s_add_u32 s{sT0}, s{sT0}, 4096\ns_cmp_lt_u32 s{sT0}, {KV_OFF + 262144}\ns_cbranch_scc1 P2_FB1")
    for ab in range(2): F(f"v_mov_b32 {T[2+ab]}, {T[ab]}")
    F("s_nop 1")
    for ab in range(2): F(f"v_permlane32_swap_b32 {T[ab]}, {T[2+ab]}")
    for ab in range(2): F(f"v_max_f32 {vFl[ab]}, {T[ab]}, {T[2+ab]}")
    for ab in range(2):
        for r in range(16): F(f"v_mov_b32 {O[ab][r]}, 0")
        for r in range(4): F(f"v_mov_b32 {Lc[ab][r]}, 0")
    F(f"s_mov_b32 s{sT0}, {KV_OFF}")
    F("P2_FB2:")
    for t in range(2): F(f"buffer_load_dwordx4 {K[0][t]}, {vL16}, {srd(S_WS)}, s{sT0} offen offset:{t*1024} {SC1}")
    for t in range(2): F(f"buffer_load_dwordx4 {V[0][t]}, {vL16}, {srd(S_WS)}, s{sT0} offen offset:{2048 + t*1024} {SC1}")
    F("s_waitcnt vmcnt(0)")
    for ab in range(2):
        F(f"v_mfma_f32_32x32x16_bf16 {S[ab]}, {K[0][0]}, {Q[ab][0]}, 0\nv_mfma_f32_32x32x16_bf16 {S[ab]}, {K[0][1]}, {Q[ab][1]}, {S[ab]}")
    F("s_nop 15")
    for ab in range(2):
        for r in range(16): F(f"v_sub_f32 {S[ab][r]}, {S[ab][r]}, {vFl[ab]}")
        for r in range(16): F(f"v_exp_f32 {S[ab][r]}, {S[ab][r]}")
        F("s_nop 0")
        for r in range(8): F(f"v_cvt_pk_bf16_f32 {P[ab][r]}, {S[ab][2*r]}, {S[ab][2*r+1]}")
    F("s_nop 1")
    for ab in range(2):
        for u_ in range(2):
            F(f"v_mfma_f32_32x32x16_bf16 {O[ab]}, {V[0][u_]}, {P[ab].sub(4*u_,4)}, {O[ab]}")
            if u_ == 0: F(lsum(ab))
    F(f"s_add_u32 s{sT0}, s{sT0}, 4096\ns_cmp_lt_u32 s{sT0}, {KV_OFF + 262144}\ns_cbranch_scc1 P2_FB2")
    F("s_nop 15")
    for ab in range(2): F(f"v_add_f32 {Lc[ab][0]}, {Lc[ab][0]}, {Lc[ab][1]}")
    F("s_branch P2_FINISH")
    F("L_END:\ns_endpgm")
    probs += check_hazards(F.lines, "fb")
    A.ext(F.lines)
    for p_ in probs: print("PROBLEM", p_)
    launch = f"; @launch grid=(256,1,1) block=(256,1,1) lds=163840"
    return launch, A.text(), kdesc(NAME, 512, 256)

HDR = open("gated_mix__grouped_kv_mqa__glu_gated_reglu__prompt.s.ref").read().split("; Override launch")[0]
def build(opt=None):
    l, t, d = gen(opt)
    txt = HDR + l + "\n" + '.amdgcn_target "amdgcn-amd-amdhsa--gfx950"\n.text\n' + t + d
    if (opt or {}).get("skip3"):
        import skip3
        txt = skip3.apply(txt, NAME, *opt["skip3"])
    return txt
if __name__ == "__main__":
    import sys, json
    out = sys.argv[1] if len(sys.argv) > 1 else "gated_mix__grouped_kv_mqa__glu_gated_reglu__prompt.s"
    opt = json.loads(sys.argv[2]) if len(sys.argv) > 2 else {}
    open(out, "w").write(build(opt))
```

```python
from asmlib import *
from common import *
LOG2E = math.log2(math.e)
NAME = "gated_mix__grouped_kv_mqa__glu_gated_reglu__prompt_kernel"

FL_E = 0x1650000
FL_ES = 4352
FL_Q = 0x1660000
FL_H = 0x1670000
FL_O = 0x1672000
SPIN_MAX = 1 << 20
PW = 7168

def put(f, g, x):
    f.setdefault(g, []).extend(x if isinstance(x, list) else [x])

def gen(opt=None):
    opt = opt or {}
    A = Asm()
    DEF = ["start", "p1", "p1end", "kvdone", "poll0", "poll1", "att", "attend", "tail"]
    tsn = opt.get("ts")
    ts = TSN(DEF if tsn == 1 else tsn, opt.get("tskind", "rt"))
    SC1 = "sc1"
    probs = []
    P_X, P_WQ, P_WK, P_WV, P_WO = 4, 6, 8, 10, 12
    P_WG, P_WU, P_WD, P_GW = 16, 18, 20, 22
    P_OUT, P_DBG, P_WS = 24, 26, 28
    S_WS, S_A, S_B, S_C, S_D, S_E = 32, 36, 40, 44, 48, 52
    sW, sNonce = 56, 57
    sT0, sT1, sT2, sT3 = 58, 59, 60, 61
    sIt, sRB, sCB = 62, 63, 64
    sL = 65
    vL, vL16 = Reg("v", 1, 1), Reg("v", 2, 1)
    def srd(b): return f"s[{b}:{b+3}]"

    A(f".globl {NAME}\n.p2align 8\n.type {NAME},@function\n{NAME}:")
    A("s_cmp_ge_u32 s2, 256\ns_cbranch_scc1 L_END")
    A.ext(ts.at("start"))
    A(f"""s_load_dwordx8 s[4:11], s[0:1], 0
    s_load_dwordx2 s[12:13], s[0:1], 32
    s_load_dwordx8 s[16:23], s[0:1], 48
    s_load_dwordx4 s[24:27], s[0:1], 80
    s_load_dwordx2 s[28:29], s[0:1], 96
    s_memrealtime s[30:31]
    v_lshrrev_b32 v3, 6, v0
    v_and_b32 {vL}, 63, v0
    v_readfirstlane_b32 s{sW}, v3
    v_lshlrev_b32 {vL16}, 4, {vL}""")
    CPF = opt.get("cpf", 1) and not opt.get("trace")
    sPC = 100
    cpf = VM(f"global_load_dword a253, v0, s[{sPC}:{sPC+1}]", "CP")
    cpa = "v_add_u32 v0, 0x2000, v0"
    def cp(adv=True): return ([cpf] + ([cpa] if adv else [])) if CPF else []
    if CPF:
        A(f"""s_getpc_b64 s[{sPC}:{sPC+1}]
        L_PCREF:
        v_lshlrev_b32 v0, 7, {vL}
        s_sub_u32 s{sPC}, s{sPC}, L_PCREF-{NAME}
        s_subb_u32 s{sPC+1}, s{sPC+1}, 0""")
        A.ext(cp())

    if opt.get("ticket", 0):
        A(f"""s_getreg_b32 s{sT0}, hwreg(HW_REG_XCC_ID)
        s_and_b32 s{sT0}, s{sT0}, 7
        s_cmp_lg_u32 s{sW}, 0
        s_cbranch_scc1 L_TKWAIT
        v_mov_b32 v5, 0
        s_mov_b32 s{sT1}, 8
        s_mov_b32 s{S_WS+2}, 256
        s_mov_b32 s{S_WS+3}, 0x20000
        s_waitcnt lgkmcnt(0)
        s_mov_b32 s{S_WS}, s{P_DBG}
        s_mov_b32 s{S_WS+1}, s{P_DBG+1}
        s_mov_b64 exec, 1
        L_TKTRY:
        v_mov_b32 v4, 1
        s_lshl_b32 s{sT2}, s{sT0}, 5
        buffer_atomic_add v4, v5, {srd(S_WS)}, s{sT2} offen offset:4 sc0
        s_waitcnt vmcnt(0)
        v_readfirstlane_b32 s{sT2}, v4
        s_cmp_lt_u32 s{sT2}, 32
        s_cbranch_scc1 L_TKGOT
        s_add_u32 s{sT0}, s{sT0}, 1
        s_and_b32 s{sT0}, s{sT0}, 7
        s_sub_u32 s{sT1}, s{sT1}, 1
        s_cmp_lg_u32 s{sT1}, 0
        s_cbranch_scc1 L_TKTRY
        s_mov_b32 s{sT2}, 32
        L_TKGOT:
        s_lshl_b32 s{sT2}, s{sT2}, 3
        s_add_u32 s{sT2}, s{sT2}, s{sT0}
        v_mov_b32 v4, s{sT2}
        ds_write_b32 v5, v4
        s_mov_b64 exec, -1
        s_waitcnt lgkmcnt(0)
        L_TKWAIT:
        v_mov_b32 v5, 0
        s_barrier
        ds_read_b32 v4, v5
        s_waitcnt lgkmcnt(0)
        v_readfirstlane_b32 s2, v4
        s_barrier
        s_cmp_ge_u32 s2, 256
        s_cbranch_scc1 L_END""")
    trace = opt.get("trace")
    def tr_issue(): return ["s_memrealtime s[100:101]"] if trace else []
    def tr_commit(): return ["s_lshl_b64 exec, 1, s81", "v_mov_b32 v0, s100", "s_mov_b64 exec, -1", "s_add_u32 s81, s81, 1"] if trace else []
    if trace: A("s_mov_b32 s81, 0\nv_mov_b32 v0, 0\ns_memrealtime s[100:101]\ns_waitcnt lgkmcnt(0)"); A.ext(tr_commit())
    S_X, S_W0, S_W1, S_KV, S_Wb = S_A, S_B, S_C, S_D, S_E
    sSoX = sL - 1
    sSo0 = sL + 7
    sSo1 = sL + 7
    sM0X, sM0W, sM0K, sWwr = sL + 11, sL + 12, sL + 13, sL + 14
    sWrd, s16k, sStep1, sSa, sSc, sIsB, sKVst, sEfl = 14, 30, 15, 3, 31, 9, 10, 11
    XB, WB, KR = 0, 65536, 147456
    vXo = [3, 4]; vWo0, vWo1, vKo, vSXo = 5, 6, 7, 8
    vXa = [9, 10]; vW0a = [[11 + 2*i, 12 + 2*i] for i in range(4)]; vW1a = [19, 20, 21, 22]; vSWa = 23
    vT = 24
    acc = [[None]*8 for _ in range(8)]
    p = 32
    for i in range(7):
        for j in range(8):
            acc[i][j] = Reg("v", p, 4); p += 4
    RA = [[Reg("a", 64*s + 4*i, 4) for i in range(8)] for s in range(2)]
    RB = [[Reg("a", 64*s + 32 + 4*j, 4) for j in range(8)] for s in range(2)]
    SA = [Reg("a", 128 + 4*s, 4) for s in range(2)]
    sacc = Reg("a", 144, 4)
    for j in range(8): acc[7][j] = Reg("a", 148 + 4*j, 4)
    SXB = [[Reg("a", 180 + 8*b + 4*j, 4) for j in range(2)] for b in range(2)]
    GXa = [Reg("a", 196 + 8*r, 8) for r in range(2)]
    GWa = Reg("a", 212, 8)
    t0, t1, t2, t3, t4, t5, t6, t7 = range(vT, vT + 8)
    HUGE = 0x40000000
    KP = opt.get("kp", [0, 1, 2, 4, 5, 6, 7, 8, 9, 10, 12, 13, 14, 15, 3, 11])
    sCWa, sCWb = 6, 7

    A(f"""s_and_b32 s{sT0}, s2, 1
    s_lshl_b32 s{sT0}, s{sT0}, 2
    s_bfe_u32 s{sT1}, s2, 0x20003
    s_add_u32 s{sRB}, s{sT0}, s{sT1}
    s_bfe_u32 s{sT0}, s2, 0x20001
    s_lshl_b32 s{sT0}, s{sT0}, 3
    s_lshr_b32 s{sT1}, s2, 5
    s_add_u32 s{sCB}, s{sT0}, s{sT1}""")
    A(f"""s_lshl_b32 s{sT0}, s{sW}, 6
    v_lshrrev_b32 v{t0}, 3, {vL}
    v_add_u32 v{t2}, s{sT0}, v{t0}
    v_lshlrev_b32 v{t2}, 11, v{t2}
    v_lshrrev_b32 v{t1}, 4, {vL}
    v_and_b32 v{t3}, 7, {vL}
    v_xor_b32 v{t4}, v{t3}, v{t1}
    v_lshl_add_u32 v{vXo[0]}, v{t4}, 4, v{t2}
    v_add_u32 v{vXo[0]}, {KP[0]*128}, v{vXo[0]}
    v_xor_b32 v{vXo[1]}, 64, v{vXo[0]}""")
    for e in range(1, 8): A(f"s_mov_b32 s{sSoX+e}, {e*16384 - (e&3)*1024}")
    A(f"""s_lshl_b32 s{sM0X}, s{sW}, 13
    s_lshl_b32 s{sM0W}, s{sW}, 11
    s_add_u32 s{sM0K}, s{sM0W}, {KR}
    s_add_u32 s{sM0W}, s{sM0W}, {WB}
    s_and_b32 s{sT1}, s{sCB}, 3
    s_mov_b32 s{sStep1}, {PW}
    s_cmp_eq_u32 s{sT1}, 3
    s_cselect_b32 s{sStep1}, 2048, s{sStep1}""")
    A(f"""s_lshl_b32 s{sT0}, s{sW}, 3
    v_add_u32 v{t2}, s{sT0}, v{t1}
    v_mul_lo_u32 v{t2}, v{t2}, s{sStep1}
    s_and_b32 s{sT1}, s{sW}, 1
    s_lshl_b32 s{sT2}, s{sT1}, 3
    v_and_b32 v{t4}, 15, {vL}
    v_lshl_or_b32 v{t5}, v{t1}, 1, s{sT2}
    v_xor_b32 v{t4}, v{t4}, v{t5}
    v_lshl_add_u32 v{vWo1}, v{t4}, 4, v{t2}
    v_add_u32 v{t2}, s{sT0}, v{t0}
    v_mul_u32_u24 v{t2}, {PW}, v{t2}
    s_lshl_b32 s{sT2}, s{sT1}, 2
    v_and_b32 v{t4}, 1, v{t1}
    v_lshl_or_b32 v{t4}, v{t4}, 1, s{sT2}
    v_xor_b32 v{t4}, v{t4}, v{t3}
    v_lshl_add_u32 v{vWo0}, v{t4}, 4, v{t2}""")
    A.ext(ts.at("a0"))
    A("s_waitcnt lgkmcnt(0)")
    A.ext(ts.at("a1"))
    A(f"""s_lshl_b32 s{sT0}, s{sRB}, 19
    s_add_u32 s{S_X}, s{P_X}, s{sT0}
    s_addc_u32 s{S_X+1}, s{P_X+1}, 0
    s_mov_b32 s{S_X+2}, 0x80000
    s_mov_b32 s{S_X+3}, 0x20000""")
    A(f"""s_mov_b32 s{S_WS+3}, 0x20000
    s_or_b32 s{sT0}, s2, s{sW}
    s_cmp_lg_u32 s{sT0}, 0
    s_cbranch_scc1 P1_NONONCE
    s_or_b32 s30, s30, 1
    s_mov_b32 s{S_WS}, s{P_DBG}
    s_mov_b32 s{S_WS+1}, s{P_DBG+1}
    s_mov_b32 s{S_WS+2}, 256
    v_mov_b32 v{t6}, s30
    v_mov_b32 v{t7}, 0
    s_mov_b64 exec, 1
    buffer_store_dword v{t6}, v{t7}, {srd(S_WS)}, 0 offen sc1
    s_mov_b64 exec, -1
    P1_NONONCE:""")
    WNT = opt.get("wnt", "")
    def xdma(par):
        sl = []
        for e in range(8):
            pre = []
            if e == 0: pre = [f"s_add_u32 m0, s{sM0X}, {par}"]
            if e == 4: pre = ["s_add_u32 m0, m0, 4096"]
            so = "0" if e == 0 else f"s{sSoX+e}"
            sl.append((pre, VM(f"buffer_load_dwordx4 v{vXo[e&1]}, {srd(S_X)}, {so} offen offset:{(e&3)*1024} {opt.get('xnt', '')} lds", "X")))
        return sl
    def wdma(hb, slot):
        so0 = "0" if hb == 0 else f"s{sSo0}"
        so1 = ["0" if hb == 0 else f"s{sSo1+2}", f"s{sSo1 + 1 + 2*hb}"]
        return [([f"s_add_u32 m0, s{sM0W}, {slot}"], VM(f"buffer_load_dwordx4 v{vWo0}, {srd(S_W0)}, {so0} offen {WNT} lds", "W")),
                ([], VM(f"buffer_load_dwordx4 v{vWo0}, {srd(S_Wb)}, {so0} offen offset:1024 {WNT} lds", "W")),
                (["s_add_u32 m0, m0, 40960"], VM(f"buffer_load_dwordx4 v{vWo1}, {srd(S_W1)}, {so1[0]} offen {WNT} lds", "W")),
                ([], VM(f"buffer_load_dwordx4 v{vWo1}, {srd(S_W1)}, {so1[1]} offen offset:1024 {WNT} lds", "W"))]
    def kdma(slot):
        return [([f"s_add_u32 m0, s{sM0K}, {slot}"], VM(f"buffer_load_dwordx4 v{vKo}, {srd(S_KV)}, 0 offen lds", "X")),
                ([], VM(f"buffer_load_dwordx4 v{vKo}, {srd(S_KV)}, 0 offen offset:1024 lds", "X"))]
    def sxload(b): return [VM(f"buffer_load_dwordx4 {SXB[b][j]}, v{vSXo}, {srd(S_X)}, 0 offen offset:{j*64}", "SX") for j in range(2)]
    def emit_dma(X, sl):
        for pre, d in sl:
            X.ext(pre)
            if pre: X("s_nop 0")
            X(d)
    emit_dma(A, xdma(0))
    A.ext(ts.at("a2"))
    A(f"""s_lshr_b32 s{sT0}, s{sCB}, 2
    s_and_b32 s{sT1}, s{sCB}, 3
    s_mul_i32 s{sT2}, s{sT0}, 896
    s_lshl_b32 s{sT3}, s{sT1}, 8
    s_add_u32 s{sT2}, s{sT2}, s{sT3}
    s_add_u32 s{S_W0}, s{P_WG}, s{sT2}
    s_addc_u32 s{S_W0+1}, s{P_WG+1}, 0
    s_sub_u32 s{S_W0+2}, {1024*PW}, s{sT2}
    s_mov_b32 s{S_W0+3}, 0x20000
    s_mov_b32 s{S_W1+3}, 0x20000
    s_mov_b32 s{S_Wb+3}, 0x20000
    s_mov_b32 s{sSo0}, {32*PW}
    s_cmp_eq_u32 s{sT1}, 3
    s_cbranch_scc1 P1_SRDB
    s_add_u32 s{S_Wb}, s{S_W0}, {4*PW - 1024}
    s_addc_u32 s{S_Wb+1}, s{S_W0+1}, 0
    s_sub_u32 s{S_Wb+2}, s{S_W0+2}, {4*PW - 1024}
    s_add_u32 s{S_W1}, s{P_WU}, s{sT2}
    s_addc_u32 s{S_W1+1}, s{P_WU+1}, 0
    s_mov_b32 s{S_W1+2}, s{S_W0+2}
    v_mov_b32 v{vWo0}, v{vWo1}
    s_branch P1_SRDD
    P1_SRDB:
    s_add_u32 s{S_Wb}, s{P_WU}, s{sT2}
    s_addc_u32 s{S_Wb+1}, s{P_WU+1}, 0
    s_sub_u32 s{S_Wb}, s{S_Wb}, 1024
    s_subb_u32 s{S_Wb+1}, s{S_Wb+1}, 0
    s_add_u32 s{S_Wb+2}, s{S_W0+2}, 1024
    s_lshl_b32 s{sT0}, s{sT0}, 8
    s_add_u32 s{S_W1}, s{P_WQ}, s{sT0}
    s_addc_u32 s{S_W1+1}, s{P_WQ+1}, 0
    s_sub_u32 s{S_W1+2}, {1024*2048}, s{sT0}
    P1_SRDD:
    s_lshl_b32 s{sSo1+1}, s{sStep1}, 2
    s_sub_u32 s{sSo1+1}, s{sSo1+1}, 1024
    s_lshl_b32 s{sSo1+2}, s{sStep1}, 5
    s_add_u32 s{sSo1+3}, s{sSo1+2}, s{sSo1+1}
    s_lshl_b32 s{sStep1}, s{sStep1}, 6""")
    def advXf(a, b):
        d = (KP[b] - KP[a]) * 128 & 0xffffffff
        return [f"v_add_u32 v{vXo[0]}, {d:#x}, v{vXo[0]}", f"v_add_u32 v{vXo[1]}, {d:#x}, v{vXo[1]}"]
    def advWf(a, b):
        d = KP[b] - KP[a]
        if d == 1: return [f"v_add_u32 v{vWo0}, {64*PW}, v{vWo0}", f"v_add_u32 v{vWo1}, s{sStep1}, v{vWo1}"]
        return [f"v_add_u32 v{vWo0}, {d*64*PW & 0xffffffff:#x}, v{vWo0}", f"s_mul_i32 s{sT3}, s{sStep1}, {d}\nv_add_u32 v{vWo1}, s{sT3}, v{vWo1}"]
    if KP[0]:
        A(f"""v_add_u32 v{vWo0}, {KP[0]*64*PW}, v{vWo0}
        s_mul_i32 s{sT3}, s{sStep1}, {KP[0]}
        v_add_u32 v{vWo1}, s{sT3}, v{vWo1}""")
    advK = f"v_add_u32 v{vKo}, 4096, v{vKo}"
    advS = f"v_add_u32 v{vSXo}, 128, v{vSXo}"
    emit_dma(A, wdma(0, 0)); emit_dma(A, wdma(1, 8192))
    A.ext(advXf(0, 1) + advWf(0, 1))
    A(f"""s_bfe_u32 s{sT0}, s{sCB}, 0x10001
    s_and_b32 s{sT1}, s{sW}, 1
    s_bitcmp1_b32 s{sCB}, 0
    s_cselect_b32 s{S_KV}, s{P_WV}, s{P_WK}
    s_cselect_b32 s{S_KV+1}, s{P_WV+1}, s{P_WK+1}
    s_cselect_b32 s{sSa}, s{sT1}, s{sT0}
    s_cselect_b32 s{sSc}, s{sT0}, s{sT1}
    s_mov_b32 s{S_KV+2}, 65536
    s_mov_b32 s{S_KV+3}, 0x20000
    s_and_b32 s{sIsB}, s{sCB}, 3
    s_cmp_eq_u32 s{sIsB}, 3
    s_cselect_b32 s{sIsB}, 1, 0
    v_lshrrev_b32 v{t2}, 5, {vL}
    v_lshlrev_b32 v{t2}, 1, v{t2}
    v_xor_b32 v{t2}, v{t2}, {vL}
    v_lshlrev_b32 v{t2}, 4, v{t2}
    s_lshr_b32 s{sT2}, s{sW}, 1
    s_lshl_b32 s{sT0}, s{sT2}, 15
    s_lshl_b32 s{sT1}, s{sT1}, 11
    s_add_u32 s{sT0}, s{sT0}, s{sT1}
    v_add_u32 v{vKo}, s{sT0}, v{t2}
    s_lshr_b32 s{sT0}, s{sCB}, 2
    s_lshl_b32 s{sT0}, s{sT0}, 1
    s_add_u32 s{sT0}, s{sT0}, s{sSa}
    s_lshl_b32 s{sT0}, s{sT0}, 15
    s_lshl_b32 s{sT2}, s{sT2}, 10
    s_add_u32 s{sT0}, s{sT0}, s{sT2}
    v_and_b32 v{t2}, 15, {vL}
    v_lshlrev_b32 v{t2}, 11, v{t2}
    v_lshl_add_u32 v{t2}, v{t1}, 4, v{t2}
    v_add_u32 v{vSXo}, s{sT0}, v{t2}""")
    emit_dma(A, kdma(0)); A.ext(sxload(0)); A(advK); A(advS)
    A(f"""s_mov_b32 s{S_WS}, s{P_WS}
    s_mov_b32 s{S_WS+1}, s{P_WS+1}
    s_mov_b32 s{S_WS+2}, {WS_USED}""")
    A.ext(ts.at("a3"))
    second = xdma(32768) + wdma(0, 2*8192) + kdma(8192) + wdma(1, 3*8192)
    A(f"""v_and_b32 v{t0}, 15, {vL}
    v_lshrrev_b32 v{t2}, 1, v{t0}
    v_xor_b32 v{t2}, v{t2}, v{t1}
    v_lshlrev_b32 v{t2}, 4, v{t2}
    v_lshl_add_u32 v{t2}, v{t0}, 7, v{t2}
    s_lshr_b32 s{sT0}, s{sW}, 1
    s_lshl_b32 s{sT1}, s{sT0}, 14
    v_add_u32 v{vXa[0]}, s{sT1}, v{t2}
    v_xor_b32 v{vXa[1]}, 64, v{vXa[0]}
    v_bfe_u32 v{t0}, {vL}, 2, 2
    v_lshl_add_u32 v{t2}, v{t1}, 3, v{t0}
    v_and_b32 v{t3}, 1, v{t1}
    v_lshl_or_b32 v{t5}, v{t3}, 2, v{t0}
    v_and_b32 v{t4}, 3, {vL}
    v_lshlrev_b32 v{t4}, 3, v{t4}
    v_lshl_add_u32 v{t6}, v{t2}, 8, v{t4}
    v_add_u32 v{t6}, {WB + 40960}, v{t6}
    s_and_b32 s{sT0}, s{sW}, 1
    s_lshl_b32 s{sT1}, s{sT0}, 2""")
    for ii in range(4):
        A(f"""s_add_u32 s{sT2}, s{sT1}, {ii}
        v_xor_b32 v{t7}, s{sT2}, v{t5}
        v_lshl_add_u32 v{vW1a[ii]}, v{t7}, 5, v{t6}""")
    A(f"""v_lshl_add_u32 v{t2}, v{t2}, 6, v{t4}
    v_xor_b32 v{t7}, s{sSc}, v{t3}
    v_lshl_add_u32 v{t7}, v{t7}, 5, v{t2}
    s_lshr_b32 s{sT2}, s{sW}, 1
    s_lshl_b32 s{sT2}, s{sT2}, 12
    s_add_u32 s{sT2}, s{sT2}, {KR}
    v_add_u32 v{vSWa}, s{sT2}, v{t7}
    s_mov_b32 s{s16k}, 16384
    s_cmp_eq_u32 s{sIsB}, 1
    s_cbranch_scc1 P1_ADB""")
    for ii in range(4):
        A(f"v_subrev_u32 v{vW0a[ii][0]}, 40960, v{vW1a[ii]}\nv_subrev_u32 v{vW0a[ii][1]}, {40960 - 1024}, v{vW1a[ii]}")
    A(f"""s_branch P1_ADD
    P1_ADB:
    v_lshl_add_u32 v{t4}, v{t1}, 11, v{t4}
    v_lshl_add_u32 v{t4}, v{t0}, 7, v{t4}
    v_add_u32 v{t4}, {WB}, v{t4}
    v_lshrrev_b32 v{t0}, 1, v{t0}
    v_lshl_or_b32 v{t0}, v{t3}, 1, v{t0}
    s_lshl_b32 s{sT1}, s{sT0}, 1""")
    for k in range(2):
        A(f"""s_add_u32 s{sT2}, s{sT1}, {k}
        v_xor_b32 v{t7}, s{sT2}, v{t0}
        v_lshl_add_u32 v{vW0a[k][0]}, v{t7}, 5, v{t4}
        v_add_u32 v{vW0a[k][1]}, 512, v{vW0a[k][0]}
        v_add_u32 v{vW0a[2+k][0]}, 1024, v{vW0a[k][0]}
        v_add_u32 v{vW0a[2+k][1]}, 1536, v{vW0a[k][0]}""")
    A("P1_ADD:")
    PF = opt.get("pf", 1)
    Z = []
    for i in range(8):
        for j in range(8):
            for r in range(4):
                a = acc[i][j][r]
                Z.append(f"v_mov_b32 {a}, 0" if a.f == "v" else f"v_accvgpr_write_b32 {a}, 0")
    for r in range(4): Z.append(f"v_accvgpr_write_b32 {sacc[r]}, 0")
    PEEL = opt.get("peel", 0)
    NPRE = opt.get("npre", 0)
    if not PEEL:
        per = len(Z) // len(second)
        for k, (pre, d) in enumerate(second):
            A.ext(pre); A.ext(Z[k*per:(k+1)*per]); A(d)
        A.ext(Z[len(second)*per:])
        A.ext(advXf(1, 2) + advWf(1, 2) + [advK])
    else:
        emit_dma(A, second[:NPRE])

    def reads(t, s, side):
        b = t & 1; xo = ((t >> 1) & 1)*32768; wo = (t % 5)*8192; ko = ((t >> 1) & 1)*8192
        L = [f"ds_read_b128 {RB[s][j]}, v{vXa[b]} offset:{xo + j*2048}" for j in range(8)]
        for i in range(8):
            for hf in range(2):
                if i < 4: L.append(f"ds_read_b64_tr_b16 {RA[s][i].sub(2*hf, 2)}, v{vW0a[i][hf]} offset:{wo}")
                else: L.append(f"ds_read_b64_tr_b16 {RA[s][i].sub(2*hf, 2)}, v{vW1a[i-4]} offset:{wo + hf*1024}")
        if side:
            for hf in range(2):
                L.append(f"ds_read_b64_tr_b16 {SA[s].sub(2*hf, 2)}, v{vSWa} offset:{ko + b*2048 + hf*256}")
        return L
    def mfmas(s, side=None, zero=False):
        L = []
        for i in range(8):
            js = range(8) if i % 2 == 0 else range(7, -1, -1)
            for j in js:
                L.append(f"v_mfma_f32_16x16x32_bf16 {acc[i][j]}, {RA[s][i]}, {RB[s][j]}, {0 if zero else acc[i][j]}")
            if side is not None and i == 3:
                L.append(f"v_mfma_f32_16x16x32_bf16 {sacc}, {SA[s]}, {SXB[side][s]}, {0 if zero else sacc}")
        return L
    A.ext(ts.at("a4"))
    A(f"s_waitcnt vmcnt({len(second)}) lgkmcnt(0)")
    A.ext(ts.at("a5"))
    A("s_barrier")
    A.ext(reads(0, 0, True))
    A("s_waitcnt lgkmcnt(0)\ns_barrier")
    A.ext(ts.at("p1"))
    if ts.on: A("s_waitcnt lgkmcnt(0)")
    pro_hist = list(A.lines)

    def step(st, hook=None, cpl=False):
        out = []
        sd = st < 8; side = st & 1 if sd else None
        dma = st < 14; last = st == 15
        n = 65 if sd else 64
        BG = n - opt.get('bgo', 4)
        f = {}
        for k, r in enumerate(reads(2*st + 1, 1, sd)): put(f, 2*k, r)
        if dma:
            dg = opt.get('dgw', [1, 9, 17, 25, 33, 39, 47, 55]) if not (st < 7) else [13, 19, 25, 31, 37, 43, 49, 55]
            for k, (pre, d) in enumerate(wdma(0, ((2*st + 4) % 5)*8192) + wdma(1, ((2*st + 5) % 5)*8192)):
                if pre: put(f, dg[k] - 1, pre)
                put(f, dg[k], d)
            if st < 13: put(f, 57, advWf(st + 2, st + 3)[0]); put(f, 58, advWf(st + 2, st + 3)[1])
        if st < 7:
            for k, l in enumerate(sxload(side ^ 1)): put(f, [1, 7][k], l)
            put(f, 9, advS)
        if cpl: put(f, 4, cp())
        if hook: hook(0, f, BG)
        put(f, BG, [Need(["X"], "lgkmcnt(0)") if not last else "s_waitcnt lgkmcnt(0)", "s_barrier"])
        out += interleave(mfmas(0, side), f)
        if last: return out + tr_issue() + (["s_waitcnt lgkmcnt(0)"] if trace else []) + tr_commit()
        f = {}
        for k, r in enumerate(reads(2*st + 2, 0, st < 7)): put(f, 2*k, r)
        if dma:
            kv = st < 6
            dl = ((kdma((st & 1)*8192) if kv else []) + xdma((st & 1)*32768)) if not opt.get('xfirst') else (xdma((st & 1)*32768) + (kdma((st & 1)*8192) if kv else []))
            dg = opt.get('dgk', [1, 7, 13, 19, 25, 31, 37, 43, 49, 55]) if kv else opt.get('dgx', [1, 9, 17, 25, 33, 41, 47, 55])
            for k, (pre, d) in enumerate(dl):
                if pre: put(f, dg[k] - 1, pre)
                put(f, dg[k], d)
            if st < 13: put(f, 57, advXf(st + 2, st + 3)[0]); put(f, 59, advXf(st + 2, st + 3)[1])
            if kv: put(f, 9 if not opt.get('xfirst') else 58, advK)
        if hook: hook(1, f, BG)
        put(f, BG - 3, tr_issue())
        put(f, BG, [Need(["SX"], "lgkmcnt(0)") if st < 7 else "s_waitcnt lgkmcnt(0)", "s_barrier"] + tr_commit())
        out += interleave(mfmas(1, side), f)
        return out

    vN, vZ, vKA, vFA = t0, t1, t2, t3
    u = 28
    nload = f"buffer_load_dword v{vN}, v{vZ}, {srd(S_KV)}, 0 offen sc1"
    dbgsrd = [f"s_mov_b32 s{S_KV}, s{P_DBG}", f"s_mov_b32 s{S_KV+1}, s{P_DBG+1}", f"s_mov_b32 s{S_KV+2}, 256", f"v_mov_b32 v{vZ}, 0"]
    PSC = KR + 4096
    kvK = f"""v_bfe_u32 v{vKA}, {vL}, 3, 1
    v_lshlrev_b32 v{vKA}, 4, v{vKA}
    v_and_b32 v{vFA}, 7, {vL}
    v_add_u32 v{vKA}, v{vKA}, v{vFA}
    v_bfe_u32 v{vFA}, {vL}, 4, 1
    v_lshl_add_u32 v{vKA}, v{vFA}, 5, v{vKA}
    v_lshlrev_b32 v{vKA}, 4, v{vKA}
    v_lshrrev_b32 v{vFA}, 5, {vL}
    v_lshl_add_u32 v{vKA}, v{vFA}, 10, v{vKA}
    s_lshl_b32 s{sKVst}, s{sSa}, 7
    s_lshl_b32 s{sEfl}, s{sSc}, 3""".split("\n")
    kvV = f"""v_lshrrev_b32 v{vKA}, 5, {vL}
    v_lshlrev_b32 v{vKA}, 4, v{vKA}
    v_bfe_u32 v{vFA}, {vL}, 4, 1
    v_lshl_add_u32 v{vKA}, v{vFA}, 2, v{vKA}
    v_bfe_u32 v{vFA}, {vL}, 2, 1
    v_lshl_add_u32 v{vKA}, v{vFA}, 5, v{vKA}
    v_lshlrev_b32 v{vKA}, 4, v{vKA}
    v_bfe_u32 v{vFA}, {vL}, 3, 1
    v_lshl_add_u32 v{vKA}, v{vFA}, 10, v{vKA}
    v_and_b32 v{vFA}, 3, {vL}
    v_lshl_add_u32 v{vKA}, v{vFA}, 1, v{vKA}
    s_lshl_b32 s{sKVst}, s{sSc}, 7
    s_lshl_b32 s{sEfl}, s{sSa}, 3""".split("\n")
    kvaddr = [f"s_bitcmp1_b32 s{sCB}, 0", "s_cbranch_scc1 P1_KVAV"] + [l.strip() for l in kvK] + ["P1_KVAD:",
              f"s_add_u32 s{sKVst}, s{sKVst}, s{sEfl}", f"s_add_u32 s{sKVst}, s{sKVst}, {KR}", f"v_add_u32 v{vKA}, s{sKVst}, v{vKA}"]
    kvwr = [f"s_bitcmp1_b32 s{sCB}, 0", "s_cbranch_scc1 P1_KVWV", f"ds_write_b64 v{vKA}, v[{u}:{u+1}]", "P1_KVWD:"]
    ool = Asm()
    ool("P1_KVAV:"); ool.ext(kvV); ool("s_branch P1_KVAD")
    ool(f"""P1_KVWV:
    ds_write_b16 v{vKA}, v{u}
    ds_write_b16_d16_hi v{vKA}, v{u} offset:16
    ds_write_b16 v{vKA}, v{u+1} offset:32
    ds_write_b16_d16_hi v{vKA}, v{u+1} offset:48
    s_branch P1_KVWD""")
    vP = vSXo
    KT = Reg("a", 128, 4); PT = Reg("a", 132, 4)
    QPOLL = opt.get("qpoll", 0)
    CW = opt.get("cw", 1)
    CA, CB = Reg("a", 136, 4), Reg("a", 140, 4)
    vDA, vDB = vSWa, vKo
    def hookS8(ph, f, BG):
        if ph == 0 and CW:
            put(f, 1, [f"s_lshl_b32 s{sT2}, s2, 2", f"s_add_u32 s{sT2}, s{sT2}, s{sW}", f"s_mul_i32 s{sT3}, s{sT2}, 7"])
            L_ = [f"v_lshrrev_b32 v{u}, 3, {vL}", f"v_and_b32 v{u+1}, 7, {vL}", f"v_lshlrev_b32 v{u+1}, 4, v{u+1}",
                  f"v_add_u32 v{u+2}, s{sT3}, v{u}", f"v_and_b32 v{u+3}, 1, v{u+2}", f"v_lshrrev_b32 v{u+2}, 1, v{u+2}",
                  f"v_lshl_add_u32 v{vDA}, v{u+2}, 8, v{u+1}", f"v_mul_u32_u24 v{vDB}, {CW_SZ}, v{u+3}", f"v_add_u32 v{vDA}, v{vDA}, v{vDB}",
                  f"v_lshl_add_u32 v{u+2}, v{u+2}, 11, v{u+1}", f"v_lshl_add_u32 v{u+2}, v{u+3}, 10, v{u+2}",
                  f"v_cmp_gt_u32 vcc, 56, {vL}", f"v_mov_b32 v{u+3}, {HUGE}", f"v_add_u32 v{u+2}, 384, v{u+2}",
                  f"v_cndmask_b32 v{u+2}, v{u+3}, v{u+2}, vcc", f"v_cndmask_b32 v{vDA}, v{u+3}, v{vDA}, vcc"]
            for k, l in enumerate(L_): put(f, 2 + k // 2, l)
            put(f, 10, [f"s_mov_b32 s{S_KV}, s{P_WD}", f"s_mov_b32 s{S_KV+1}, s{P_WD+1}", f"s_mov_b32 s{S_KV+2}, {3584*2048}"])
            put(f, 12, VM(f"buffer_load_dwordx4 {CA}, v{u+2}, {srd(S_KV)}, 0 offen", "CL"))
            L_ = [f"v_mul_u32_u24 v{vDB}, {CW_SZ}, v{u}", f"v_add_u32 v{vDB}, v{vDB}, v{u+1}", f"v_lshl_add_u32 v{u+2}, v{u}, 10, v{u+1}",
                  f"v_cmp_gt_u32 vcc, 16, {vL}", f"s_lshl_b32 s{sT3}, s{sT2}, 11", f"s_add_u32 s{sT3}, s{sT3}, 384",
                  f"v_cndmask_b32 v{u+2}, v{u+3}, v{u+2}, vcc", f"v_cndmask_b32 v{vDB}, v{u+3}, v{vDB}, vcc"]
            for k, l in enumerate(L_): put(f, 13 + k // 2, l)
            put(f, 17, [f"s_mov_b32 s{S_KV}, s{P_WO}", f"s_mov_b32 s{S_KV+1}, s{P_WO+1}", f"s_mov_b32 s{S_KV+2}, {1024*2048}"])
            put(f, 19, VM(f"buffer_load_dwordx4 {CB}, v{u+2}, {srd(S_KV)}, s{sT3} offen", "CL"))
            put(f, 20, [f"s_lshl_b32 s{sCWb}, s{sT2}, 8", f"s_add_u32 s{sCWb}, s{sCWb}, {CW_OFF + 3584*256}", f"s_mov_b32 s{sCWa}, {CW_OFF}"])
        if ph == 0 and QPOLL:
            for r in range(4): put(f, 2 + r, f"v_mov_b32 v{u+r}, -1")
            put(f, 5, [f"s_lshl_b32 s{sKVst}, s{sRB}, 5", f"s_add_u32 s{sKVst}, s{sKVst}, s{sCB}", f"s_lshl_b32 s{sKVst}, s{sKVst}, 2"])
            put(f, 7, [f"s_add_u32 s{sKVst}, s{sKVst}, s{sW}", f"s_lshl_b32 s{sKVst}, s{sKVst}, 12", f"s_add_u32 s{sKVst}, s{sKVst}, {QF4_OFF}"])
            for r in range(4): put(f, [13, 15, 21, 23][r], VM(f"buffer_store_dwordx4 v[{u}:{u+3}], {vL16}, {srd(S_WS)}, s{sKVst} offen offset:{r*1024} {SC1}", "QP"))
        if ph == 0:
            put(f, 25, dbgsrd)
            put(f, 21, [f"s_lshl_b32 s{sT2}, s{sW}, 10", f"s_add_u32 s{sT2}, s{sT2}, {PSC}"]); put(f, 23, f"v_add_u32 v{vP}, s{sT2}, {vL16}")
            put(f, 27, kvaddr)
        if ph == 1:
            put(f, 3, f"ds_write_b128 v{vP}, {sacc}")
            put(f, 5, VM(nload, "N"))
            put(f, 11, f"v_xor_b32 v{vP}, 0x800, v{vP}")
            for r in range(4): put(f, 13 + 2*r, f"v_accvgpr_read_b32 v{u+r}, {sacc[r]}")
    def hookS9(ph, f, BG):
        if ph == 0 and CW:
            put(f, 5, [Need(["CL"]), VM(f"buffer_store_dwordx4 {CA}, v{vDA}, {srd(S_WS)}, s{sCWa} offen {SC1}", "CS")])
            put(f, 13, VM(f"buffer_store_dwordx4 {CB}, v{vDB}, {srd(S_WS)}, s{sCWb} offen {SC1}", "CS"))
        if ph == 0:
            put(f, 1, f"ds_read_b128 {PT}, v{vP}")
            put(f, 11, "s_waitcnt lgkmcnt(5)")
            for r in range(4): put(f, 11 + 2*r, f"v_accvgpr_read_b32 v{vFA}, {PT[r]}"); put(f, 12 + 2*r, f"v_add_f32 v{u+r}, v{u+r}, v{vFA}")
            put(f, 21, f"v_cvt_pk_bf16_f32 v{u}, v{u}, v{u+1}"); put(f, 23, f"v_cvt_pk_bf16_f32 v{u+1}, v{u+2}, v{u+3}")
            put(f, 27, kvwr)
            put(f, 29, f"v_lshrrev_b32 v{vP}, 3, {vL}"); put(f, 31, f"v_and_b32 v{vFA}, 7, {vL}")
            put(f, 35, f"v_lshlrev_b32 v{vFA}, 4, v{vFA}"); put(f, 37, f"v_lshl_add_u32 v{vP}, v{vP}, 8, v{vFA}")
            put(f, 41, [f"s_bfe_u32 s{sT2}, s{sCB}, 0x10001", f"s_lshl_b32 s{sT2}, s{sT2}, 7"])
            put(f, 43, f"v_add_u32 v{vP}, s{sT2}, v{vP}")
            put(f, 44, f"v_add_u32 v{vKA}, {KR}, v{vP}")
        if ph == 1:
            put(f, 3, f"ds_read_b128 {KT}, v{vKA}")
            put(f, 5, [f"s_lshl_b32 s{sKVst}, s{sRB}, 3", f"s_lshr_b32 s{sT2}, s{sCB}, 2", f"s_add_u32 s{sKVst}, s{sKVst}, s{sT2}"])
            put(f, 7, [f"s_lshl_b32 s{sKVst}, s{sKVst}, 1", f"s_and_b32 s{sT2}, s{sCB}, 1", f"s_add_u32 s{sKVst}, s{sKVst}, s{sT2}"])
            put(f, 11, [f"s_lshl_b32 s{sKVst}, s{sKVst}, 11", f"s_add_u32 s{sKVst}, s{sKVst}, {KV_OFF}", f"s_lshl_b32 s{sEfl}, s{sRB}, 5"])
            put(f, 13, [f"s_add_u32 s{sEfl}, s{sEfl}, s{sCB}", f"s_lshl_b32 s{sEfl}, s{sEfl}, 2", f"s_add_u32 s{sEfl}, s{sEfl}, {FL_E}"])
            put(f, 15, [f"s_cmp_eq_u32 s{sW}, 0", f"s_cselect_b32 s{sKVst}, s{sKVst}, {HUGE}", f"s_cselect_b32 s{sEfl}, s{sEfl}, {HUGE}"])
            put(f, 19, f"v_mul_u32_u24 v{vFA}, {FL_ES}, {vL}")
            put(f, 21, ["s_waitcnt lgkmcnt(9)", VM(f"buffer_store_dwordx4 {KT}, v{vP}, {srd(S_WS)}, s{sKVst} offen {SC1}", "KS")])
    def hookS10(ph, f, BG):
        if ph == 1:
            put(f, 27, [Need(["KS", "N"]), f"v_readfirstlane_b32 s{sNonce}, v{vN}", f"s_cmp_eq_u32 s{sNonce}, 0", "s_cbranch_scc1 P1_SLOWN", "P1_NOK:",
                       "s_mov_b64 exec, 0xff", VM(f"buffer_store_dword v{vN}, v{vFA}, {srd(S_WS)}, s{sEfl} offen sc1", "EF"), "s_mov_b64 exec, -1", "s_nop 2"])
    sKVo, sM0 = sL + 3, sL + 4
    S_KVD = S_C
    vE = Reg("v", 28, 4)
    epoll = f"buffer_load_dwordx4 {vE}, {vL16}, {srd(S_WS)}, s{sEfl} offen sc1"
    def kvdma0(slotoff):
        L = []
        for e in range(8):
            pre = []
            if e == 0: pre = [f"s_add_u32 m0, s{sM0}, {slotoff}"]
            if e == 4: pre = [f"s_add_u32 m0, m0, 4096", f"s_add_u32 s{sKVo}, s{sKVo}, 4096"]
            L.append((pre, VM(f"buffer_load_dwordx4 {vL16}, {srd(S_KVD)}, s{sKVo} offen offset:{(e&3)*1024} {SC1} lds", "KV")))
        return L
    def hookS14(ph, f, BG):
        if ph == 0:
            put(f, 5, [f"s_bfe_u32 s{sEfl}, s2, 0x30003", f"s_mul_i32 s{sEfl}, s{sEfl}, {FL_ES}", f"s_add_u32 s{sEfl}, s{sEfl}, {FL_E}"])
            put(f, 45, VM(epoll, "N"))
            put(f, 11, [f"s_mov_b32 s{S_KVD}, s{P_WS}", f"s_mov_b32 s{S_KVD+1}, s{P_WS+1}", f"s_mov_b32 s{S_KVD+2}, {KV_OFF + 262144}"])
            put(f, 13, [f"s_lshl_b32 s{sM0}, s{sW}, 13", f"s_add_u32 s{sKVo}, s{sM0}, {KV_OFF}"])
        if ph == 1: put(f, 51, [Need(["N"])] + echeck() + ["s_cbranch_scc0 P1_SLOWE", "P1_EOK:"])
    def echeck():
        return [f"v_xor_b32 {vE[0]}, {vE[0]}, v{vN}", f"v_xor_b32 {vE[1]}, {vE[1]}, v{vN}", f"v_xor_b32 {vE[2]}, {vE[2]}, v{vN}", f"v_xor_b32 {vE[3]}, {vE[3]}, v{vN}",
                f"v_or3_b32 {vE[0]}, {vE[0]}, {vE[1]}, {vE[2]}", f"v_or_b32 {vE[0]}, {vE[0]}, {vE[3]}", f"v_cmp_eq_u32 vcc, 0, {vE[0]}", "s_nop 0", "s_cmp_eq_u64 vcc, -1"]
    def hookS15(ph, f, BG):
        dg = [5, 11, 17, 23, 29, 35, 41, 46]
        if ph == 0:
            for k, (pre, d) in enumerate(kvdma0(32768*ph)):
                if pre: put(f, dg[k] - 1, pre)
                put(f, dg[k], d)
            put(f, 47, f"s_add_u32 s{sKVo}, s{sKVo}, {32768 - 4096}")
    z = [7, 8]; vOne = 23
    gv = [f"v_mov_b32 v{vOne}, 0x3f803f80", f"v_mov_b32 v{z[0]}, 0", f"v_mov_b32 v{z[1]}, 0", None]
    for k in range(8):
        gv += [f"v_accvgpr_read_b32 v26, {GWa[k]}", f"v_accvgpr_read_b32 v28, {GXa[0][k]}", f"v_accvgpr_read_b32 v30, {GXa[1][k]}",
               "v_and_b32 v27, 0xffff0000, v26", "v_and_b32 v29, 0xffff0000, v28", "v_and_b32 v31, 0xffff0000, v30",
               "v_lshlrev_b32 v26, 16, v26", "v_lshlrev_b32 v28, 16, v28", "v_lshlrev_b32 v30, 16, v30",
               "v_mul_f32 v29, v29, v27", "v_mul_f32 v31, v31, v27", "v_mul_f32 v28, v28, v26", "v_mul_f32 v30, v30, v26",
               "v_cvt_pk_bf16_f32 v28, v28, v29", "v_cvt_pk_bf16_f32 v30, v30, v31",
               f"v_dot2_f32_bf16 v{z[0]}, v28, v{vOne}, v{z[0]}", f"v_dot2_f32_bf16 v{z[1]}, v30, v{vOne}, v{z[1]}"]
    gv += [None, None]
    P2_ = lambda fmt: [fmt(r) for r in range(2)]
    for sh in (8, 4, 2, 1): gv += P2_(lambda r: f"v_add_f32_dpp v{z[r]}, v{z[r]}, v{z[r]} row_ror:{sh} row_mask:0xf bank_mask:0xf")
    for sw in ("16", "32"):
        gv += P2_(lambda r: f"v_mov_b32 v{28+r}, v{z[r]}") + P2_(lambda r: f"v_permlane{sw}_swap_b32 v{z[r]}, v{28+r}") + P2_(lambda r: f"v_add_f32 v{z[r]}, v{z[r]}, v{28+r}")
    gv += P2_(lambda r: f"v_cvt_pk_bf16_f32 v{z[r]}, v{z[r]}, v{z[r]}") + P2_(lambda r: f"v_and_b32 v{z[r]}, 0xffff0000, v{z[r]}")
    gv += P2_(lambda r: f"v_mul_f32 v{z[r]}, {f2u(-LOG2E):#x}, v{z[r]}") + [f"v_exp_f32 v{z[0]}, v{z[0]}", None, f"v_exp_f32 v{z[1]}, v{z[1]}", None]
    gv += P2_(lambda r: f"v_add_f32 v{z[r]}, 1.0, v{z[r]}") + [f"v_rcp_f32 v{z[0]}, v{z[0]}", None, f"v_rcp_f32 v{z[1]}, v{z[1]}", None]
    gv += P2_(lambda r: f"v_cvt_pk_bf16_f32 v{z[r]}, v{z[r]}, v{z[r]}") + P2_(lambda r: f"v_and_b32 v{26+r}, 0xffff0000, v{z[r]}")
    gq = [gv[k:k+2] for k in range(0, len(gv), 2)]
    def hookS11(ph, f, BG):
        if ph == 0:
            put(f, 2, [f"s_mov_b32 s{S_KV}, s{P_GW}", f"s_mov_b32 s{S_KV+1}, s{P_GW+1}"]); put(f, 3, f"s_mov_b32 s{S_KV+2}, 2048")
            put(f, 5, VM(f"buffer_load_dwordx4 {GWa.sub(0,4)}, {vL16}, {srd(S_KV)}, 0 offen", "GL"))
            put(f, 7, VM(f"buffer_load_dwordx4 {GWa.sub(4,4)}, {vL16}, {srd(S_KV)}, 0 offen offset:1024", "GL"))
            put(f, 10, [f"s_mov_b32 s{S_KV}, s{P_X}", f"s_mov_b32 s{S_KV+1}, s{P_X+1}"]); put(f, 11, [f"s_mov_b32 s{S_KV+2}, 0x400000", f"s_lshl_b32 s{sT2}, s{sRB}, 5"])
            put(f, 12, [f"s_add_u32 s{sT2}, s{sT2}, s{sCB}", f"s_lshl_b32 s{sT2}, s{sT2}, 2"]); put(f, 13, [f"s_add_u32 s{sT2}, s{sT2}, s{sW}", f"s_lshl_b32 s{sT1}, s{sT2}, 3"])
            put(f, 14, [f"s_lshl_b32 s{sT2}, s{sT2}, 12", f"s_add_u32 s{sT1}, s{sT1}, {G_OFF}"])
            for k in range(4):
                put(f, [15, 21, 29, 37][k], VM(f"buffer_load_dwordx4 {GXa[k>>1].sub(4*(k&1),4)}, {vL16}, {srd(S_KV)}, s{sT2} offen offset:{k*1024}", "GL"))
    def hookG(ph, f, BG, first=False):
        if first and ph == 0: return
        for g_ in range(1, BG - 1):
            cur = flat(f.get(g_, []))
            busy = any(is_vmem(x) or x.startswith(("v_", "ds_")) for x in cur)
            if gq and not busy: put(f, g_, [x for x in gq.pop(0) if x])
    def hookS12(ph, f, BG): hookG(ph, f, BG, True)
    def hookS14g(ph, f, BG):
        if ph == 0:
            hookG(ph, f, 38)
            assert not gq, len(gq)
            put(f, 41, ["s_mov_b64 exec, 1", VM(f"buffer_store_dwordx2 v[26:27], v{vZ}, {srd(S_WS)}, s{sT1} offen sc1", "GS"), "s_mov_b64 exec, -1", "s_nop 2"])
        hookS14(ph, f, BG)
    hooks = {8: hookS8, 9: hookS9, 10: hookS10, 11: hookS11, 12: hookS12, 13: hookG, 14: hookS14g, 15: hookS15}
    cpsteps = opt.get("cps", [0, 3, 7, 11, 14])
    h1 = list(pro_hist)
    for st in range(16):
        S_ = resolve_waits(step(st, hooks.get(st), st in cpsteps), h1)
        h1 += S_
        A.ext(ts.at(f"s{st}"))
        if st == 15: A(f"s_cmp_eq_u32 s{sIsB}, 1\ns_cbranch_scc1 P1_EPIB")
        if st == 14: S14 = S_
        A.ext(S_)
        if st == 10: A("s_branch P1_CONT"); A.ext(ool.lines); A("P1_CONT:")
    S15 = S_
    probs += check_hazards(A.lines, "p1")
    slow1 = Asm()
    slow1(f"""P1_SLOWN:
    s_mov_b32 s{sT2}, {SPIN_MAX}
    P1_SLOWN_L:
    {nload}
    s_waitcnt vmcnt(0)
    v_readfirstlane_b32 s{sNonce}, v{vN}
    s_cmp_lg_u32 s{sNonce}, 0
    s_cbranch_scc1 P1_NOK
    s_sleep 4
    s_sub_u32 s{sT2}, s{sT2}, 1
    s_cmp_lg_u32 s{sT2}, 0
    s_cbranch_scc1 P1_SLOWN_L
    s_endpgm
    P1_SLOWE:
    s_mov_b32 s{sT0}, {SPIN_MAX}
    P1_SLOWE_L:
    {epoll}
    s_waitcnt vmcnt(0)""")
    slow1.ext(echeck())
    slow1(f"""s_cbranch_scc1 P1_EOK
    s_sleep 4
    s_sub_u32 s{sT0}, s{sT0}, 1
    s_cmp_lg_u32 s{sT0}, 0
    s_cbranch_scc1 P1_SLOWE_L
    s_endpgm""")

    va = Alloc("v", 3, 256)
    vCur = va.get(1); vNxt = va.get(1); vZero = va.get(1); vNon = va.get(1); vQP = va.get(1)
    T = va.get(12, 4)
    S = [va.get(16, 4) for _ in range(2)]
    P = [va.get(8, 4) for _ in range(2)]
    O = [va.get(16, 4) for _ in range(2)]
    Lc = [va.get(4, 4) for _ in range(2)]
    SCL = va.get(8, 4)
    acc3 = [[va.get(4, 4) for j in range(8)] for i in range(4)]
    vW3o = va.get(1); vW3a = [va.get(1) for _ in range(4)]; vPF = va.get(1); vG = va.get(2, 2); vFl = va.get(4, 4)
    NEG = [Reg("v", acc3[0][0].base + 16*k, 16) for k in range(2)]
    aa = Alloc("a", 0, 180)
    RX = [[aa.get(4, 4) for j in range(8)] for s in range(4)]
    Q = [[aa.get(4, 4) for t in range(2)] for ab in range(2)]
    K = [[aa.get(4, 4) for t in range(2)] for b in range(2)]
    V = [[aa.get(4, 4) for t in range(2)] for b in range(2)]
    ONES = aa.get(4, 4)
    RW = [[Reg("a", 220 + 16*s + 4*i, 4) for i in range(4)] for s in range(2)]
    QXB = 98304
    W3B = 98304

    E = Asm()
    E.ext(ts.at("p1end"))
    sO, sO1, sO2 = 0, 1, 3
    sC = sL + 1
    sQf = 14
    tA = [Reg("v", 20, 4), Reg("v", 28, 4)]
    PKE = opt.get("pke", 0)
    def hmath(pairs, dst, pk=True):
        L = []
        for Gx, U in pairs:
            for r in range(4): L.append(f"v_max_f32 {Gx[r]}, 0, {Gx[r]}")
        for Gx, U in pairs:
            if pk:
                for r in (0, 2): L.append(f"v_pk_mul_f32 {Gx.sub(r,2)}, {Gx.sub(r,2)}, {U.sub(r,2)}")
            else:
                for r in range(4): L.append(f"v_mul_f32 {Gx[r]}, {Gx[r]}, {U[r]}")
        for k, (Gx, U) in enumerate(pairs):
            L.append(f"v_cvt_pk_bf16_f32 {dst[2*k]}, {Gx[0]}, {Gx[1]}"); L.append(f"v_cvt_pk_bf16_f32 {dst[2*k+1]}, {Gx[2]}, {Gx[3]}")
        return L
    gl = Asm()
    gl(f"""s_mov_b32 s{S_A}, s{P_X}
    s_mov_b32 s{S_A+1}, s{P_X+1}
    s_mov_b32 s{S_A+2}, 0x400000
    s_mov_b32 s{S_B}, s{P_GW}
    s_mov_b32 s{S_B+1}, s{P_GW+1}
    s_mov_b32 s{S_B+2}, 2048
    s_lshl_b32 s{sT2}, s{sRB}, 5
    s_add_u32 s{sT2}, s{sT2}, s{sCB}
    s_lshl_b32 s{sT2}, s{sT2}, 2
    s_add_u32 s{sT2}, s{sT2}, s{sW}
    s_lshl_b32 s{sT2}, s{sT2}, 12""")
    for h in range(2): gl(f"buffer_load_dwordx4 {GWa.sub(4*h,4)}, {vL16}, {srd(S_B)}, 0 offen offset:{h*1024}")
    for r in range(2):
        for h in range(2):
            gl(f"buffer_load_dwordx4 {GXa[r].sub(4*h,4)}, {vL16}, {srd(S_A)}, s{sT2} offen offset:{r*2048 + h*1024}")
    def merge(mf, items, rate, fixed=None):
        out = []; k = 0
        for g, m_ in enumerate(mf):
            out.append(m_)
            n = 0; seenv = False
            if fixed and g in fixed: out.extend(fixed[g]); n += len(fixed[g])
            while k < len(items) and items[k][0] <= g and n < rate:
                x_ = items[k][1]
                if is_vmem(x_) and seenv: break
                seenv |= x_.startswith("v_")
                out.append(x_); k += 1; n += 1
        if k < len(items): out.append("s_nop 7")
        return out + [x[1] for x in items[k:]]
    mm1 = lambda i, j: f"v_mfma_f32_16x16x32_bf16 {acc[i][j]}, {RA[1][i]}, {RB[1][j]}, {acc[i][j]}"
    kv1 = []
    for pre, d in kvdma0(32768): kv1 += pre + (["s_nop 0"] if pre else []) + [d]
    kv1.append(f"s_add_u32 s{sKVo}, s{sKVo}, {32768 - 4096}")
    head = Asm()
    head(f"""s_lshr_b32 s{sT0}, s{sW}, 1
    s_and_b32 s{sT1}, s{sW}, 1
    s_lshl_b32 s{sO}, s{sRB}, 4
    s_lshl_b32 s{sT2}, s{sT0}, 3
    s_add_u32 s{sO}, s{sO}, s{sT2}
    s_lshl_b32 s{sO}, s{sO}, 11
    s_add_u32 s{sO}, s{sO}, {AF2_OFF}
    s_lshr_b32 s{sT2}, s{sCB}, 2
    s_mul_i32 s{sO1}, s{sT2}, 14
    s_and_b32 s{sT3}, s{sCB}, 3
    s_lshl_b32 s{sT3}, s{sT3}, 2
    s_add_u32 s{sO1}, s{sO1}, s{sT3}
    s_add_u32 s{sO1}, s{sO1}, s{sT1}""")
    LAG = 5
    it = [(0, l) for l in head.lines]
    it += [(0, l) for l in (f"s_add_u32 s{sO1}, s{sO1}, s{sT1}", f"s_mul_i32 s{sO1}, s{sO1}, {AFS2}", f"s_add_u32 s{sO}, s{sO}, s{sO1}", f"s_add_u32 s{sO2}, s{sO}, {AFS2}")]
    kq = list(kv1)
    for j in range(8):
        g_ = 8*j + 7 + LAG
        Tt = tA[j % 2]
        L_ = hmath([(acc[0][j], acc[4][j]), (acc[1][j], acc[5][j])], acc[4][j], PKE or j >= opt.get('pkj', 8))
        L_ += [f"v_accvgpr_read_b32 {Tt[r]}, {acc[7][j][r]}" for r in range(4)]
        L_ += hmath([(acc[2][j], acc[6][j]), (acc[3][j], Tt)], acc[5][j], PKE or j >= opt.get('pkj', 8))
        it += [(g_, l) for l in L_]
        while kq:
            x_ = kq.pop(0); it.append((g_, x_))
            if is_vmem(x_): break
    it += [(64, l) for l in kq]
    EA = merge([mm1(i, j) for j in range(8) for i in range(8)], it, opt.get("rateA", 5))
    E.ext(EA)
    E("s_branch P1_EPID\nP1_EPIB:")
    hb = Asm()
    hb(f"""s_mul_i32 s{sO1}, s{sO1}, {AFS2}
    s_add_u32 s{sO}, s{sO}, s{sO1}
    s_mov_b32 s{sO2}, {HUGE}
    s_lshl_b32 s{sQf}, s{sRB}, 3
    s_add_u32 s{sQf}, s{sQf}, s{sT2}
    s_lshl_b32 s{sQf}, s{sQf}, 2
    s_lshl_b32 s{sT1}, s{sT1}, 1
    s_add_u32 s{sT2}, s{sQf}, s{sT1}
    s_lshl_b32 s{sT2}, s{sT2}, 1
    s_add_u32 s{sT2}, s{sT2}, s{sT0}
    s_lshl_b32 s{sT2}, s{sT2}, 14
    s_add_u32 s{sT0}, s{sT2}, {QF5_OFF}
    s_add_u32 s{sT1}, s{sT0}, 32768
    v_cmp_lt_u32 vcc, 23, {vL}
    v_add_u32 v26, 128, {vL16}
    s_nop 0
    v_cndmask_b32 v26, {vL16}, v26, vcc
    s_add_u32 s{sQf}, s{sQf}, s{sW}
    s_lshl_b32 s{sQf}, s{sQf}, 8
    s_add_u32 s{sQf}, s{sQf}, {FL_Q}
    s_mov_b32 s{sC}, {f2u(QSCALE):#x}
    s_mov_b32 s{sC+1}, {f2u(QSCALE):#x}""")
    it = [(0, l) for l in head.lines + hb.lines]
    for j in range(8):
        g_ = 32 + 4*j + 3 + LAG
        for hh in range(2):
            F0, F1 = acc[4 + 2*hh][j], acc[5 + 2*hh][j]
            L_ = []
            if F1.f == "a":
                Tt = tA[j % 2]
                L_ += [f"v_accvgpr_read_b32 {Tt[r]}, {F1[r]}" for r in range(4)]
                F1 = Tt
            for F in (F0, F1):
                if PKE:
                    for r in (0, 2): L_.append(f"v_pk_mul_f32 {F.sub(r,2)}, {F.sub(r,2)}, s[{sC}:{sC+1}]")
                else:
                    for r in range(4): L_.append(f"v_mul_f32 {F[r]}, s{sC}, {F[r]}")
            L_ += [f"v_cvt_pk_bf16_f32 {F0[0]}, {F0[0]}, {F0[1]}", f"v_cvt_pk_bf16_f32 {F0[1]}, {F0[2]}, {F0[3]}",
                   f"v_cvt_pk_bf16_f32 {F0[2]}, {F1[0]}, {F1[1]}", f"v_cvt_pk_bf16_f32 {F0[3]}, {F1[2]}, {F1[3]}",
                   f"buffer_store_dwordx4 {F0}, v26, {srd(S_WS)}, s{sT0 + hh} offen offset:{(j&1)*2048} {SC1}"]
            if j & 1: L_.append(f"s_add_u32 s{sT0 + hh}, s{sT0 + hh}, 4096")
            it += [(g_, l) for l in L_]
    mm0 = lambda i, j: f"v_mfma_f32_16x16x32_bf16 {acc[i][j]}, {RA[0][i]}, {RB[0][j]}, {acc[i][j]}"
    fx = {}
    rd_ = reads(31, 1, False)
    for k, r in enumerate(rd_[:8] + rd_[16:24] + rd_[8:16]): put(fx, k, r)
    k = 0
    for pre, d in kvdma0(0):
        if pre: put(fx, 23 + k, pre)
        put(fx, 24 + k, d); k += 1
    put(fx, 31, [f"s_add_u32 s{sKVo}, s{sKVo}, {32768 - 4096}", "s_waitcnt lgkmcnt(0)", "s_barrier"])
    EB = merge([mm0(i, j) for i in range(4, 8) for j in range(8)] + [mm1(i, j) for j in range(8) for i in range(4, 8)] +
               [mm0(i, j) for i in range(4) for j in range(8)] + [mm1(i, j) for j in range(8) for i in range(4)], it, opt.get("rateB", 3), fx)
    E.ext(EB)
    E.ext(kv1)
    for j in range(8):
        E.ext(hmath([(acc[0][j], acc[2][j]), (acc[1][j], acc[3][j])], acc[4][j]))
    E(f"""s_waitcnt vmcnt(8)
    s_mov_b64 exec, 1
    buffer_store_dword v{vN}, v{vZ}, {srd(S_WS)}, s{sQf} offen sc1
    s_mov_b64 exec, -1
    P1_EPID:""")
    probs += check_hazards(S15[-20:] + EA, "epiA") + check_hazards(S14[-20:] + E.lines[E.lines.index("P1_EPIB:"):], "epiB")
    E.ext(ts.at("kvdone"))
    vAF = T[9]
    def hstore(reg, so, j):
        return [VM(f"buffer_store_dwordx4 {reg}, {vAF}, {srd(S_WS)}, s{so} offen offset:{(j&1)*2048} {SC1}", "H")] + ([f"s_add_u32 s{so}, s{so}, 4096"] if j & 1 else [])
    hst0 = [hstore(acc[4][j], sO, j) for j in range(8)]
    hst1a = [hstore(acc[5][j], sO2, j) for j in range(8)]
    A.ext(E.lines)

    B = Asm()
    sCur, sNext, sFree, sFl = sL, sL + 1, sL + 2, sL + 5
    B(f"""v_mov_b32 {vNon}, s{sNonce}
    v_mov_b32 {vZero}, 0
    v_bfe_u32 {T[0]}, {vL}, 4, 1
    v_and_b32 {T[1]}, 15, {vL}
    v_lshrrev_b32 {T[2]}, 5, {vL}
    v_lshl_add_u32 {T[1]}, {T[2]}, 4, {T[1]}
    v_lshlrev_b32 {T[1]}, 4, {T[1]}
    v_lshl_add_u32 {vQP}, {T[0]}, 11, {T[1]}""")
    S_PF, sPF = S_E, 8
    pfop = [VM(f"buffer_load_dword a252, {vPF}, {srd(S_PF)}, s{sPF} offen", "PF"), f"s_add_u32 s{sPF}, s{sPF}, 0x100000"] if PF else []
    for ab in range(2):
        for r in range(16): B(f"v_mov_b32 {O[ab][r]}, 0")
        for r in range(4): B(f"v_mov_b32 {Lc[ab][r]}, 0")
    for r in range(8): B(f"v_mov_b32 {P[1][r]}, 0")
    for t in range(2):
        for r in range(4): B(f"v_accvgpr_write_b32 {V[1][t][r]}, 0")
    vIdx = T[10]
    B(f"""v_bfe_u32 {T[4]}, {vL}, 2, 1
    v_cmp_eq_u32 vcc, 0, {T[4]}
    v_mov_b32 {T[5]}, 0x3f803f80
    v_mov_b32 {vCur}, {vL16}
    v_cndmask_b32 {T[4]}, 0, {T[5]}, vcc
    v_cndmask_b32 {T[5]}, {T[5]}, 0, vcc
    v_add_u32 {vNxt}, 32768, {vL16}
    v_and_b32 {vIdx}, 1, {vL}
    v_mul_u32_u24 {vIdx}, 0xaaaa, {vIdx}
    v_add_u32 {vIdx}, 0x4444, {vIdx}
    v_cmp_lt_u32 vcc, 23, {vL}
    v_add_u32 {vAF}, 128, {vL16}
    s_nop 0
    v_cndmask_b32 {vAF}, {vL16}, {vAF}, vcc""".replace(f"v_cndmask_b32 {T[5]}, {T[5]}, 0, vcc", f"v_xor_b32 {T[5]}, {T[5]}, {T[4]}"))
    for r in range(4): B(f"v_accvgpr_write_b32 {ONES[r]}, {T[4 + (r >> 1)]}")
    def lsum(o): return f"v_smfmac_f32_16x16x64_bf16 {Lc[o]}, {ONES}, {P[o]}, {vIdx}"
    B("; @@SETUP3@@")
    B(f"""s_mov_b32 s{sCur}, 0
    s_mov_b32 s{sNext}, 32768
    s_mov_b32 s{sFree}, 65536
    s_add_u32 s{sL+14}, s{sM0}, 65536
    s_lshl_b32 s{sFl}, s{sRB}, 2
    s_add_u32 s{sFl}, s{sFl}, s{sW}
    s_lshl_b32 s{sFl}, s{sFl}, 6
    s_add_u32 s{sFl}, s{sFl}, s{sCB}
    s_lshl_b32 s{sFl}, s{sFl}, 2
    s_add_u32 s{sFl}, s{sFl}, {FL_H}
    s_lshl_b32 s{sT1}, s{sRB}, 3
    s_lshr_b32 s{sT2}, s{sCB}, 2
    s_add_u32 s{sT1}, s{sT1}, s{sT2}
    s_lshl_b32 s{sT1}, s{sT1}, 2
    s_and_b32 s{sT2}, s{sW}, 2
    s_add_u32 s{sT1}, s{sT1}, s{sT2}
    s_bfe_u32 s{sT2}, s{sCB}, 0x10001
    s_add_u32 s{sT1}, s{sT1}, s{sT2}
    s_lshl_b32 s{sT1}, s{sT1}, 8
    s_add_u32 s{sT1}, s{sT1}, {FL_Q}
    s_lshl_b32 s{sQf}, s{sRB}, 5
    s_add_u32 s{sQf}, s{sQf}, s{sCB}
    s_lshl_b32 s{sQf}, s{sQf}, 2
    s_add_u32 s{sQf}, s{sQf}, s{sW}
    s_lshl_b32 s{sQf}, s{sQf}, 13
    s_add_u32 s{sQf}, s{sQf}, {QF5_OFF}
    s_add_u32 s{sT3}, s{sQf}, 4096""")
    def check(regs):
        if len(regs) == 4:
            return [f"v_xor_b32 {r}, {r}, {vNon}" for r in regs] + [f"v_or3_b32 {regs[0]}, {regs[0]}, {regs[1]}, {regs[2]}", f"v_or_b32 {regs[0]}, {regs[0]}, {regs[3]}",
                    f"v_cmp_eq_u32 vcc, 0, {regs[0]}", "s_nop 0", "s_cmp_eq_u64 vcc, -1"]
        L = [f"v_cmp_eq_u32 vcc, s{sNonce}, {regs[0]}"]
        if len(regs) > 1: L += [f"v_cmp_eq_u32 s[{sT2}:{sT3}], s{sNonce}, {regs[1]}", "s_nop 0", f"s_and_b64 vcc, vcc, s[{sT2}:{sT3}]"]
        else: L += ["s_nop 0"]
        return L + ["s_cmp_eq_u64 vcc, -1"]
    def spin(label, load, regs, back=None):
        L = [f"s_mov_b32 s{sT0}, {SPIN_MAX}", f"{label}_L:", load, "s_waitcnt vmcnt(0)"] + check(regs)
        L += [f"s_cbranch_scc1 {back or label + '_OK'}", f"s_sleep {4 if back else 1}", f"s_sub_u32 s{sT0}, s{sT0}, 1",
              f"s_cmp_lg_u32 s{sT0}, 0", f"s_cbranch_scc1 {label}_L", "s_endpgm"]
        if not back: L.append(f"{label}_OK:")
        return L
    B.ext(ts.at("poll0"))
    B(f"""v_and_b32 {T[2]}, 40, {vL}
    v_cmp_eq_u32 vcc, 40, {T[2]}
    v_add_u32 {T[3]}, 128, {vQP}
    s_nop 0
    v_cndmask_b32 {T[2]}, {vQP}, {T[3]}, vcc""")
    qld = lambda dst: [f"buffer_load_dwordx4 {dst(ab, t)}, {T[2+t]}, {srd(S_WS)}, s{[sQf, sT3][ab]} offen offset:{t*512} {SC1}" for ab in range(2) for t in range(2)]
    if QPOLL:
        QV = S[1]
        B(f"s_mov_b32 s{sT0}, {SPIN_MAX}\nP2_QL:")
        B(f"buffer_load_dword {T[8]}, {vZero}, {srd(S_WS)}, s{sT1} offen sc1")
        B.ext(qld(lambda ab, t: QV.sub(8*ab + 4*t, 4)))
        B("s_waitcnt vmcnt(0)")
        B(f"v_max3_u32 {T[9]}, {QV[0]}, {QV[1]}, {QV[2]}")
        for k in range(3, 15, 2): B(f"v_max3_u32 {T[9]}, {QV[k]}, {QV[k+1]}, {T[9]}")
        B(f"""v_max_u32 {T[9]}, {QV[15]}, {T[9]}
        v_cmp_eq_u32 vcc, -1, {T[9]}
        v_readfirstlane_b32 s{sT2}, {T[8]}
        s_nop 0
        s_cmp_eq_u64 vcc, 0
        s_cbranch_scc1 P2_QOK
        s_cmp_eq_u32 s{sT2}, s{sNonce}
        s_cbranch_scc1 P2_QRE
        s_sub_u32 s{sT0}, s{sT0}, 1
        s_cmp_lg_u32 s{sT0}, 0
        s_cbranch_scc1 P2_QL
        s_endpgm
        P2_QRE:""")
        B.ext(qld(lambda ab, t: QV.sub(8*ab + 4*t, 4)))
        B("s_waitcnt vmcnt(0)\nP2_QOK:")
        B.ext(ts.at("poll1"))
        for ab in range(2):
            for t in range(2):
                for r in range(4): B(f"v_accvgpr_write_b32 {Q[ab][t][r]}, {QV[8*ab + 4*t + r]}")
    else:
        B.ext(spin("P2_POLL", f"buffer_load_dword {T[8]}, {vZero}, {srd(S_WS)}, s{sT1} offen sc1", [T[8]]))
        B.ext(ts.at("poll1"))
        B.ext(qld(lambda ab, t: Q[ab][t]))
    B("s_barrier")
    def kvdma(slot, tag):
        L = []
        for e in range(8):
            pre = []
            if e == 0: pre = [f"s_add_u32 m0, s{slot}, s{sM0}"]
            if e == 4: pre = [f"s_add_u32 s{sT0}, s{slot}, s{sM0}", f"s_add_u32 m0, s{sT0}, 4096", f"s_add_u32 s{sKVo}, s{sKVo}, 4096"]
            L.append((pre, VM(f"buffer_load_dwordx4 {vL16}, {srd(S_KVD)}, s{sKVo} offen offset:{(e&3)*1024} {SC1} lds", tag)))
        return L
    post_dma = f"s_add_u32 s{sKVo}, s{sKVo}, {32768 - 4096}"
    B(f"""ds_read_b128 {K[0][0]}, {vCur}
    ds_read_b128 {K[0][1]}, {vCur} offset:1024
    ds_read_b128 {V[0][0]}, {vCur} offset:2048
    ds_read_b128 {V[0][1]}, {vCur} offset:3072""")
    hist = list(S15) + list(EA) + list(B.lines)
    B(f"""s_waitcnt vmcnt(0) lgkmcnt(0)
    v_mfma_f32_32x32x16_bf16 {S[0]}, {K[0][0]}, {Q[0][0]}, 0
    v_mfma_f32_32x32x16_bf16 {S[0]}, {K[0][1]}, {Q[0][1]}, {S[0]}""")
    B.ext(ts.at("att"))
    B("s_nop 7\ns_nop 3")

    NS = 4
    S_AF, S_W3, S_OUT = S_A, S_B, S_D
    sMT, sNT = sL + 6, sL + 7
    sAo = sL + 8
    sSo3 = sL + 9
    sM3 = sL + 13
    sWo, sWoN = 30, 15
    sX3 = 16
    sSh, sAdv, sAdv28 = 10, 18, 19
    setup3 = Asm()
    MAP48 = opt.get("map48", 0)
    if MAP48:
        setup3(f"""s_and_b32 s{sT0}, s{sRB}, 4
        s_add_u32 s{sMT}, s{sRB}, s{sT0}
        s_bfe_u32 s{sT0}, s{sCB}, 0x10003
        s_lshl2_add_u32 s{sMT}, s{sT0}, s{sMT}
        s_lshr_b32 s{sT0}, s{sCB}, 4
        s_and_b32 s{sT1}, s{sCB}, 7
        s_lshl3_add_u32 s{sNT}, s{sT0}, s{sT1}""")
    else:
        setup3(f"""s_and_b32 s{sT0}, s{sCB}, 1
        s_lshl_b32 s{sMT}, s{sRB}, 1
        s_add_u32 s{sMT}, s{sMT}, s{sT0}
        s_lshr_b32 s{sT0}, s{sCB}, 3
        s_lshl_b32 s{sT0}, s{sT0}, 2
        s_bfe_u32 s{sT1}, s{sCB}, 0x20001
        s_add_u32 s{sNT}, s{sT0}, s{sT1}""")
    setup3(f"""s_lshl_b32 s{sT0}, s{sNT}, 7
    s_add_u32 s{S_W3}, s{P_WD}, s{sT0}
    s_addc_u32 s{S_W3+1}, s{P_WD+1}, 0
    s_sub_u32 s{S_W3+2}, {3584*2048}, s{sT0}
    s_add_u32 s{sWo}, s{P_WO}, s{sT0}
    s_addc_u32 s{sWo+1}, s{P_WO+1}, 0
    s_sub_u32 s{sWoN}, {1024*2048}, s{sT0}
    s_mov_b32 s{sSh}, 11
    s_mov_b32 s{S_AF+2}, 16384
    s_mov_b32 s{S_OUT}, s{P_OUT}
    s_mov_b32 s{S_OUT+1}, s{P_OUT+1}
    s_mov_b32 s{S_OUT+2}, 0x400000
    s_mul_i32 s{sAo}, s{sW}, {AFS2}
    s_lshl_b32 s{sT0}, s{sMT}, 14
    s_add_u32 s{sAo}, s{sAo}, s{sT0}
    s_add_u32 s{sAo}, s{sAo}, {AF2_OFF}
    s_add_u32 s{S_AF}, s{P_WS}, s{sAo}
    s_addc_u32 s{S_AF+1}, s{P_WS+1}, 0
    s_mov_b32 s{sAo}, 4096
    s_mov_b32 s{sAo+1}, 8192
    s_mov_b32 s{sX3}, 12288
    s_lshl_b32 s{sM3}, s{sW}, 14
    s_add_u32 s{sM3}, s{sM3}, {W3B}""")
    for e in range(1, 4): setup3(f"s_mov_b32 s{sSo3+e}, {e*16384 - e*1024}")
    if CW:
        setup3(f"""s_and_b32 s{sT0}, s{sNT}, 7
        s_cmp_lg_u32 s{sT0}, 3
        s_cbranch_scc1 P3_NOCW
        s_lshr_b32 s{sT0}, s{sNT}, 3
        s_mul_i32 s{sT0}, s{sT0}, {CW_SZ}
        s_add_u32 s{sT0}, s{sT0}, {CW_OFF}
        s_add_u32 s{S_W3}, s{P_WS}, s{sT0}
        s_addc_u32 s{S_W3+1}, s{P_WS+1}, 0
        s_mov_b32 s{S_W3+2}, {3584*256}
        s_add_u32 s{sWo}, s{S_W3}, {3584*256}
        s_addc_u32 s{sWo+1}, s{S_W3+1}, 0
        s_mov_b32 s{sWoN}, {1024*256}
        s_mov_b32 s{sSh}, 8
        s_mov_b32 s{sSo3+1}, 1024
        s_mov_b32 s{sSo3+2}, 2048
        s_mov_b32 s{sSo3+3}, 3072
        P3_NOCW:""")
    setup3(f"""s_lshl_b32 s{sAdv}, 128, s{sSh}
    s_mul_i32 s{sAdv28}, s{sAdv}, 28""")
    setup3v = Asm()
    setup3v(f"""v_lshrrev_b32 {T[0]}, 3, {vL}
    v_lshrrev_b32 {T[1]}, 4, {vL}
    v_lshlrev_b32 {T[2]}, 1, {T[1]}
    v_and_b32 {T[3]}, 7, {vL}
    v_xor_b32 {T[2]}, {T[2]}, {T[3]}
    v_lshlrev_b32 {T[2]}, 4, {T[2]}
    s_lshl_b32 s{sT0}, s{sW}, 5
    v_add_u32 {T[0]}, s{sT0}, {T[0]}
    v_lshl_add_u32 {vW3o}, {T[0]}, s{sSh}, {T[2]}
    s_lshl_b32 s{sT0}, s{sAdv}, 2
    v_add_u32 {T[11]}, s{sT0}, {vW3o}
    v_lshrrev_b32 {T[0]}, 2, {vL}
    v_bfe_u32 {T[1]}, {vL}, 3, 2
    v_and_b32 {T[2]}, 3, {vL}
    v_lshlrev_b32 {T[2]}, 3, {T[2]}
    v_lshl_add_u32 {T[2]}, {T[0]}, 7, {T[2]}
    v_add_u32 {T[2]}, s{sM3}, {T[2]}""")
    for i in range(4): setup3v(f"v_xor_b32 {T[3]}, {i}, {T[1]}\nv_lshl_add_u32 {vW3a[i]}, {T[3]}, 5, {T[2]}")
    setup3v(f"""s_lshr_b32 s{sT0}, s{sMT}, 1
    s_lshl_b32 s{sT0}, s{sT0}, 10
    s_lshl_b32 s{sT1}, s{sRB}, 10
    v_mov_b32 {T[4]}, s{sT0}
    v_mov_b32 {T[5]}, s{sT1}
    v_cmp_gt_u32 vcc, 32, {vL}
    v_and_b32 {T[6]}, 31, {vL}
    v_lshlrev_b32 {T[6]}, 2, {T[6]}
    v_cndmask_b32 {T[4]}, {T[4]}, {T[5]}, vcc
    v_bfe_u32 {T[5]}, {vL}, 3, 2
    v_lshl_add_u32 {T[4]}, {T[5]}, 8, {T[4]}
    v_and_b32 {T[5]}, 7, {vL}
    v_lshl_add_u32 {T[4]}, {T[5]}, 4, {T[4]}
    v_lshrrev_b32 {T[5]}, 5, {vL}
    v_lshl_add_u32 {T[5]}, {T[5]}, 8, {T[6]}
    v_and_b32 {T[7]}, 15, {vL}
    v_lshlrev_b32 {T[7]}, 2, {T[7]}""")
    XPF = opt.get("xpf", 0)
    sXP = 17
    setup3v(f"""v_and_b32 {T[0]}, 7, {vL}
    v_cmp_lt_u32 vcc, 2, {T[0]}
    v_lshrrev_b32 {T[8]}, 3, {vL}
    v_lshlrev_b32 {T[8]}, 4, {T[8]}
    v_addc_co_u32 {T[8]}, vcc, {T[8]}, {T[0]}, vcc
    v_lshlrev_b32 {T[8]}, 7, {T[8]}
    s_and_b32 s{sXP}, s{sNT}, 3
    s_lshl_b32 s{sXP}, s{sXP}, 2
    s_add_u32 s{sXP}, s{sXP}, s{sW}
    s_lshl_b32 s{sXP}, s{sXP}, 1
    s_add_u32 s{sXP}, s{sXP}, {opt.get("xp0", 80)}
    s_mul_i32 s{sXP}, s{sXP}, {AFS2}
    s_lshl_b32 s{sT0}, s{sMT}, 14
    s_add_u32 s{sXP}, s{sXP}, s{sT0}
    s_add_u32 s{sXP}, s{sXP}, {AF2_OFF}""")
    def xpf(adv): return [VM(f"buffer_load_dword a254, {T[8]}, {srd(S_WS)}, s{sXP} offen sc1", "XP"), f"s_add_u32 s{sXP}, s{sXP}, {adv}"]
    zero3 = [f"v_mov_b32 {acc3[i][j][r]}, 0" for i in range(4) for j in range(8) for r in range(4)]
    def w3dma(slot, e):
        m0 = f"s_add_u32 m0, s{sM3}, {slot*4096}"
        return m0, VM(f"buffer_load_dwordx4 {vW3o}, {srd(S_W3)}, {'0' if e == 0 else 's%d' % (sSo3+e)} offen offset:{e*1024} {SC1 if CW else ''} lds", ("W", slot))
    def xload(slot, j):
        return VM(f"buffer_load_dwordx4 {RX[slot][j]}, {vAF}, {srd(S_AF)}, {['0', 's%d' % sAo, 's%d' % (sAo+1), 's16'][j>>1]} offen offset:{(j&1)*2048} {opt.get('xflag', SC1)}", ("X", slot, j >> 2))
    adv3 = [f"v_add_u32 {vW3o}, s{sAdv}, {vW3o}", f"s_add_u32 s{S_AF}, s{S_AF}, {4*AFS2}\ns_addc_u32 s{S_AF+1}, s{S_AF+1}, 0"]
    def wread(slot, s):
        return [f"ds_read_b64_tr_b16 {RW[s][i].sub(2*hf,2)}, {vW3a[i]} offset:{slot*4096 + hf*2048}" for i in range(4) for hf in range(2)]
    def gm(s, j, i, first=False): return f"v_mfma_f32_16x16x32_bf16 {acc3[i][j]}, {RW[s&1][i]}, {RX[s][j]}, {0 if first else acc3[i][j]}"

    EARLY3 = opt.get("early3", 0)
    pfsetup = [f"s_lshl_b32 s{sT1}, s2, 2", f"s_add_u32 s{sT1}, s{sT1}, s{sW}", f"s_lshl_b32 s{sT1}, s{sT1}, 10",
               f"v_lshrrev_b32 {vPF}, 3, {vL}", f"v_lshlrev_b32 {vPF}, 7, {vPF}", f"v_add_u32 {vPF}, s{sT1}, {vPF}",
               f"s_mov_b32 s{S_PF}, s{P_WD}", f"s_mov_b32 s{S_PF+1}, s{P_WD+1}", f"s_mov_b32 s{S_PF+2}, {3584*2048}", f"s_mov_b32 s{sPF}, 0x100000"] if PF else []
    k_ = B.lines.index("; @@SETUP3@@")
    ins = []
    if EARLY3:
        ins = setup3.lines + setup3v.lines + pfsetup
        if EARLY3 > 1:
            for s_ in range(4):
                for e_ in range(4):
                    m0, d = w3dma(s_, e_)
                    ins += ([m0, "s_nop 0"] if e_ == 0 else []) + [d] + ([adv3[0]] if e_ == 3 else [])
    B.lines[k_:k_ + 1] = ins
    k2_ = hist.index("; @@SETUP3@@"); hist[k2_:k2_ + 1] = ins
    probs += check_hazards(B.lines, "p2pro")
    A.ext(B.lines)
    def att_parts(ab, kq, vp):
        o = ab ^ 1
        M = [f"v_mfma_f32_32x32x16_bf16 {S[o]}, {K[kq][0]}, {Q[o][0]}, 0",
             f"v_mfma_f32_32x32x16_bf16 {S[o]}, {K[kq][1]}, {Q[o][1]}, {S[o]}",
             f"v_mfma_f32_32x32x16_bf16 {O[o]}, {V[vp][0]}, {P[o].sub(0,4)}, {O[o]}",
             lsum(o),
             f"v_mfma_f32_32x32x16_bf16 {O[o]}, {V[vp][1]}, {P[o].sub(4,4)}, {O[o]}",
             None]
        ex = [f"v_exp_f32 {S[ab][r]}, {S[ab][r]}" for r in range(16)]
        cv = [f"v_cvt_pk_bf16_f32 {P[ab][r]}, {S[ab][2*r]}, {S[ab][2*r+1]}" for r in range(8)]
        return M, ex, cv
    def phase_plain(ab, kq, vp, extra):
        M, ex, cv = att_parts(ab, kq, vp)
        order = [M[2], M[0], M[1], M[3], M[4]]
        vl = []
        for r in range(16):
            vl.append(ex[r])
            if r >= 3 and r % 2 == 1: vl.append(cv[(r - 3)//2])
        vl.append(cv[7])
        mpos = opt.get("mpos", [0, 4, 9, 14, 18])
        assert max(extra, default=0) <= 4
        out = []; mi = 0
        for i, v in enumerate(vl):
            while mi < 5 and mpos[mi] == i:
                out.append(order[mi]); out.extend(extra.get(mi, [])); mi += 1
            out.append(v)
        return out
    def phase_merged(ab, kq, vp, G8, extra):
        M, ex, cv = att_parts(ab, kq, vp)
        order = [M[2], G8[0], M[0], G8[1], G8[2], M[1], G8[3], M[3], G8[4], M[4], G8[5], G8[6], G8[7]]
        e, c = ex, cv
        fill = [[e[0], e[1], e[2]], [e[3]], [e[4], e[5], e[6]], [c[0], c[1]], [e[7]], [e[8], e[9], e[10]], [c[2], c[3]], [c[4]],
                [e[11]], [e[12], e[13], e[14]], [e[15]], [c[5], c[6]], [c[7]]]
        assert max(extra, default=0) <= 12
        out = []
        for k in range(13):
            out.append(order[k]); out.extend(extra.get(k, [])); out.extend(fill[k])
        return out
    sX3 = 16
    NP = opt.get("np", 4)
    PFSW = 6
    sKM = sL + 14
    def chunk(kind, hook=None, first=False, pfok=True, wpre=False):
        out = []
        mer = kind == "merged"
        for pi in range(16):
            tau, ab = pi >> 1, pi & 1
            kp = tau & 1
            ex = {}
            if ab == 0:
                src = (vCur, (tau+1)*4096) if tau < 7 else (vNxt, 0)
                ld = [f"ds_read_b128 {K[kp^1][t]}, {src[0]} offset:{src[1] + t*1024}" for t in range(2)]
            else:
                src = (vCur, (tau+1)*4096 + 2048) if tau < 7 else (vNxt, 2048)
                ld = [f"ds_read_b128 {V[kp^1][t]}, {src[0]} offset:{src[1] + t*1024}" for t in range(2)]
            kvd = VM(f"buffer_load_dwordx4 {vL16}, {srd(S_KVD)}, s{sKVo} offen offset:{(pi&3)*1024} {SC1} lds", "KV")
            if wpre:
                kvd = VM(f"buffer_load_dwordx4 {T[11]}, {srd(S_KVD)}, {'0' if pi & 3 == 0 else 's%d' % (sSo3 + (pi & 3))} offen offset:{(pi&3)*1024} {SC1 if CW else ''} lds", "PW")
            rotate = [f"s_mov_b32 s{sT0}, s{sCur}", f"s_mov_b32 s{sCur}, s{sNext}", f"s_mov_b32 s{sNext}, s{sFree}", f"s_mov_b32 s{sFree}, s{sT0}",
                      f"s_add_u32 s{sKM}, s{sT0}, s{sM0}", f"s_add_u32 s{sIt}, s{sIt}, 1"]
            upd = [f"v_add_u32 {vCur}, s{sCur}, {vL16}", f"v_add_u32 {vNxt}, s{sNext}, {vL16}"]
            lg = 0 if (trace or not mer) else 2
            s, q = pi >> 2, pi & 3
            if pi == 14: w0 = [Need(["KV"], "lgkmcnt(0)"), "s_barrier"]
            elif mer and q == 0: w0 = [Need([("W", (s+1) % NS), ("X", s, 1)], "lgkmcnt(0)")]
            else: w0 = [f"s_waitcnt lgkmcnt({lg})"]
            put(ex, 0, w0)
            if pi % 8 == 7: put(ex, 0, tr_commit())
            if not mer:
                if pi < 8: put(ex, 3, f"s_mov_b32 m0, s{sKM}")
                if pi == 4: put(ex, 1, f"s_add_u32 s{sKVo}, s{sKVo}, 4096"); put(ex, 2, f"s_add_u32 s{sKM}, s{sKM}, 4096")
                if pi == 8: put(ex, 1, post_dma)
                if pi == 14: put(ex, 3, rotate[0]); put(ex, 4, rotate[1])
                if pi == 15: put(ex, 1, rotate[2]); put(ex, 2, rotate[3]); put(ex, 3, rotate[4]); put(ex, 4, rotate[5])
                put(ex, 1, ld[0]); put(ex, 2, ld[1])
                if pi < 8: put(ex, 4, kvd)
            else:
                G8 = [gm(s, 2*q + jj, i, first and s == 0) for jj in range(2) for i in range(4)]
                m0, d = w3dma(s, q)
                rd = wread((s+1) % NS, (s+1) & 1)
                if pi == 4: put(ex, 1, f"s_add_u32 s{sKVo}, s{sKVo}, 4096"); put(ex, 4, f"s_add_u32 s{sKM}, s{sKM}, 4096")
                if pi == 8: put(ex, 1, post_dma)
                if q == 0 and s > 0: put(ex, 6, adv3[1])
                if pi == 15:
                    for k, g_ in enumerate((4, 5, 6, 7, 8, 9)): put(ex, g_, rotate[k])
                if pi == 10 and PF: put(ex, 1, pfop[1])
                put(ex, 1, ld[0]); put(ex, 2, m0); put(ex, 3, d); put(ex, 4, ld[1])
                put(ex, 5, rd[2*q]); put(ex, 10 if q < 3 else 6, rd[2*q+1])
                put(ex, 7, xload(s, 2*q)); put(ex, 12, xload(s, 2*q+1))
                if q == 3: put(ex, 11, adv3[0])
                if pi < 8: put(ex, 8, f"s_mov_b32 m0, s{sKM}"); put(ex, 9, kvd)
                if wpre and pi in (4, 8): put(ex, 6, f"v_add_u32 {T[11]}, s{sAdv}, {T[11]}")
                if pi == 9 and PF:
                    put(ex, 9, pfop[0])
                    put(ex, 6, [f"s_cmp_eq_u32 s{sIt}, {PFSW}", f"s_cselect_b32 s{sPF}, 0, s{sPF}", f"s_cselect_b32 s{S_PF}, s{P_WO}, s{S_PF}",
                                f"s_cselect_b32 s{S_PF+1}, s{P_WO+1}, s{S_PF+1}", f"s_cselect_b32 s{S_PF+2}, 0x200000, s{S_PF+2}"])
                if pi == 12: put(ex, 9, cp(False))
            if pi % 8 == 6: put(ex, 3, tr_issue())
            if hook: hook(pi, ex, None)
            if mer: out += phase_merged(ab, kp ^ ab, kp ^ 1 ^ ab, G8, ex)
            else: out += phase_plain(ab, kp ^ ab, kp ^ 1 ^ ab, ex)
        if mer: out += adv3[1:]
        out += upd
        return out

    dflt = {3: dict(hs=[1, 1], gs=23, hf=26, hp=36, hc=39, pf=[25, 28, 41]), 4: dict(hs=[2, 1], gs=32, hf=44, hp=50, hc=53, pf=[34, 38, 44, 56])}[NP]
    dflt.update(opt.get("sched", {}))
    HSN, HSD = dflt["hs"]; GS, HF, HPg, HC, PFP = dflt["gs"], dflt["hf"], dflt["hp"], dflt["hc"], dflt["pf"]
    assert len(PFP) == NP
    hst = hst0 + hst1a
    hph = [dflt.get("hs0", 0) + n*HSN//HSD for n in range(16)]
    assert EARLY3 or hph[-1] < GS
    hpoll = f"buffer_load_dwordx4 {vFl}, {T[4]}, {srd(S_WS)}, s{sT1} offen sc1"
    LASTP = 16*NP - 1
    wph = [GS + 1 + k // 2 for k in range(16)] if not EARLY3 else ([-1]*16 if EARLY3 > 1 else [2*(k // 2)*2 + 1 for k in range(16)])
    NXP = opt.get("nxp", 32)
    xph = [HC + 1 + (k * (LASTP - HC)) // NXP for k in range(NXP)] + [-1] * (32 - NXP)
    gloads = [VM(f"buffer_load_dword {vG[ab]}, {T[6]}, {srd(S_WS)}, s{sT2} offen offset:{ab*128} sc1", "G") for ab in range(2)]
    gloads += [VM(f"buffer_load_dword {SCL[j]}, {T[7]}, {srd(S_WS)}, s{sT3} offen offset:{j*64} sc1", "G") for j in range(8)]
    def hookM0(pi, ex, pre):
        n = NXP + pi
        if n < 32:
            s_, j_ = divmod(n, 8)
            put(ex, 6, VM(f"buffer_load_dwordx4 {RX[s_][j_]}, {vL16}, {srd(S_AF)}, s{sX3 + (j_>>2)} offen offset:{(j_&3)*1024} {SC1}", ("X", s_, j_ >> 2)))
        if pi >= 11: put(ex, 8, gloads[2*(pi - 11)]); put(ex, 11, gloads[2*(pi - 11) + 1])
    def mkhook(base):
        def hook(pi, ex, pre):
            gp = base + pi
            k = 0
            for n in range(16):
                if hph[n] == gp: put(ex, [0, 3][k], hst[n]); k += 1
            if gp == GS and not EARLY3:
                put(ex, 0, setup3.lines[:15]); put(ex, 1, setup3.lines[15:]); put(ex, 3, setup3v.lines + pfsetup)
            if gp in PFP and PF: put(ex, 3 if (gp & 15) >= 8 else 0, pfop)
            if gp in (9, 16*NP - 22): put(ex, 4, cp())
            k = 0
            for n in range(16):
                if wph[n] == gp:
                    s_, e_ = divmod(n, 4)
                    m0, d = w3dma(s_, e_)
                    if k == 0: ex[0] = ex[0] + [m0]
                    put(ex, k + 1, [d] + ([adv3[0]] if e_ == 3 else [])); k += 1
            if gp == HF:
                put(ex, 2, [Need(["H"]), "s_mov_b64 exec, 1", VM(f"buffer_store_dword {vNon}, {vZero}, {srd(S_WS)}, s{sFl} offen sc1", "HF"), "s_mov_b64 exec, -1", "s_nop 2"])
            if gp == HPg: put(ex, 3, [f"s_mov_b32 s{sT1}, {FL_H}", VM(hpoll, "HP")])
            if gp == HC:
                put(ex, 2, [Need(["HP"])] + check([vFl[k] for k in range(4)]) + ["s_cbranch_scc0 P3_SLOWH", "P3_HOK:"])
                put(ex, 3, [f"s_lshl_b32 s{sT2}, s{sRB}, 10", f"s_lshl_b32 s{sT3}, s{sW}, 8", f"s_add_u32 s{sT2}, s{sT2}, s{sT3}", f"s_add_u32 s{sT2}, s{sT2}, {G_OFF}",
                            f"s_lshl_b32 s{sT3}, s{sMT}, 9", f"s_add_u32 s{sT3}, s{sT3}, {G_OFF}"])
            k = 0
            for n in range(32):
                if xph[n] == gp:
                    s_, j_ = divmod(n, 8)
                    put(ex, [0, 3, 4, 2][k], [xload(s_, j_)] + (adv3[1:] if j_ == 7 else [])); k += 1
            if gp == LASTP:
                put(ex, 3, [Need([("W", 0)])] + wread(0, 0))
                if NXP == 24: put(ex, 5, [f"s_mov_b32 s{sX3}, s{sAo}", f"s_mov_b32 s{sX3+1}, s{sAo+1}"] + adv3[1:])
        return hook
    def retag(ch, cur, need):
        out = []
        for l in ch:
            if isinstance(l, VM) and l.tag == "KV": out.append(VM(l, cur))
            elif isinstance(l, Need) and "KV" in l.tags: out.append(Need([need], l.extra))
            else: out.append(l)
        return out
    hist = [VM(l, "KV-1") if isinstance(l, VM) and l.tag == "KV" else l for l in hist]
    CP = []; hh_ = list(hist)
    for c in range(NP):
        ch = resolve_waits(retag(chunk("plain", mkhook(16*c)), f"KV{c}", f"KV{c-1}"), hh_)
        CP.append(ch); hh_ += ch
    mA = retag(chunk("merged"), "KVa", "KVb"); mB = retag(chunk("merged"), "KVb", "KVa")
    mres = resolve_waits(mA, mB)
    M = mres
    M0 = resolve_waits(retag(chunk("merged", hookM0, first=True), "KVb", f"KV{NP-1}"), hh_)
    probs += verify_waits(hh_ + M0 + M, len(hh_ + M0), "M0->M")
    WPRE = opt.get("wpre", 1)
    if WPRE:
        MW = resolve_waits(retag(chunk("merged", wpre=True), "-", "KVa"), M)
        probs += verify_waits(M + MW + [l for l in MW if not (isinstance(l, Need) and "KVa" in l.tags)], len(M + MW), "MW->MW")
    mab = opt.get("mabl", "")
    def abl(L):
        out = []
        for l in L:
            if "x" in mab and isinstance(l, VM) and isinstance(l.tag, tuple) and l.tag[0] == "X": continue
            if "w" in mab and isinstance(l, VM) and isinstance(l.tag, tuple) and l.tag[0] == "W": continue
            if "t" in mab and l.startswith("ds_read_b64_tr"): continue
            if "k" in mab and l.startswith("ds_read_b128"): continue
            if "s" in mab and l.startswith(("s_add", "s_mov", "s_cmp", "s_cselect")) and f"s{sIt}" not in l and "exec" not in l: continue
            if "n" in mab and isinstance(l, Need): out.append("s_waitcnt lgkmcnt(0)" if l.extra else "s_nop 0"); continue
            if "g" in mab and l.startswith("v_mfma_f32_16x16") and "a[2" in l: continue
            out.append(l)
        return out
    Me = abl(M); M0e = abl(M0)
    D = Asm()
    D(f"s_mov_b32 s{sIt}, 0")
    for c in range(NP): D.ext(ts.at(f"c{c}")); D.ext(CP[c])
    D.ext(ts.at("m")); D.ext(M0e)
    D.ext(ts.at("m1"))
    D(".p2align 6\nP2_MLOOP:")
    D.ext(Me)
    if WPRE:
        D(f"""s_cmp_lt_u32 s{sIt}, 6
        s_cbranch_scc1 P2_MLOOP
        s_mov_b32 s{S_KVD}, s{sWo}
        s_mov_b32 s{S_KVD+1}, s{sWo+1}
        s_mov_b32 s{S_KVD+2}, s{sWoN}""")
        if CPF: D(cpa)
        D.ext(ts.at("mw"))
        D("P2_MWLOOP:")
        if "mw2" in ts.names: D.ext(ts.at("mw2"))
        D.ext(abl(MW))
        D(f"s_cmp_lt_u32 s{sIt}, 8\ns_cbranch_scc1 P2_MWLOOP")
        probs += check_hazards(M + MW + MW, "mw")
        M = MW
    else:
        D(f"s_cmp_lt_u32 s{sIt}, 8\ns_cbranch_scc1 P2_MLOOP")
    probs += check_hazards(B.lines[-8:] + sum(CP, []) + M0 + M + M, "att")
    A.ext(D.lines)

    C = Asm()
    C.ext(ts.at("attend"))
    C(f"""v_mfma_f32_32x32x16_bf16 {O[1]}, {V[1][0]}, {P[1].sub(0,4)}, {O[1]}
    {lsum(1)}
    v_mfma_f32_32x32x16_bf16 {O[1]}, {V[1][1]}, {P[1].sub(4,4)}, {O[1]}""")
    C(f"v_mov_b32 {T[1]}, 0")
    for r in range(16): C(f"v_fmac_f32 {T[1]}, 0, {O[0][r]}")
    for r in range(16): C(f"v_fmac_f32 {T[1]}, 0, {O[1][r]}")
    for ab in range(2): C(f"v_add_f32 {Lc[ab][0]}, {Lc[ab][0]}, {Lc[ab][1]}")
    C(f"""s_mov_b32 s{sT0}, {f2u(2.0**-20):#x}
    s_mov_b32 s{sT1}, {f2u(2.0**100):#x}
    v_cmp_le_f32 vcc, s{sT0}, {Lc[0][0]}
    v_cmp_le_f32 s[{S_C}:{S_C+1}], s{sT0}, {Lc[1][0]}
    s_nop 1
    s_and_b64 vcc, vcc, s[{S_C}:{S_C+1}]
    v_cmp_ge_f32 s[{S_C}:{S_C+1}], s{sT1}, {Lc[0][0]}
    v_cmp_ge_f32 s[{sT2}:{sT3}], s{sT1}, {Lc[1][0]}
    s_nop 1
    s_and_b64 vcc, vcc, s[{S_C}:{S_C+1}]
    s_and_b64 vcc, vcc, s[{sT2}:{sT3}]
    v_cmp_eq_f32 s[{S_C}:{S_C+1}], 0, {T[1]}
    s_nop 1
    s_and_b64 vcc, vcc, s[{S_C}:{S_C+1}]
    s_cmp_eq_u64 vcc, -1""")
    if opt.get("force_fallback"): C("s_branch P2_FALLBACK")
    C("s_cbranch_scc0 P2_FALLBACK")
    C("P2_FINISH:")
    for ab in range(2): C(f"v_rcp_f32 {T[2*ab]}, {Lc[ab][0]}")
    C(f"""s_add_u32 s{sT0}, s{sCB}, 112
    s_mul_i32 s{sT0}, s{sT0}, {AFS2}
    s_lshl_b32 s{sT1}, s{sRB}, 15
    s_add_u32 s{sT0}, s{sT0}, s{sT1}
    s_lshl_b32 s{sT1}, s{sW}, 13
    s_add_u32 s{sT0}, s{sT0}, s{sT1}
    s_add_u32 s{sT0}, s{sT0}, {AF2_OFF}
    s_add_u32 s{sT1}, s{sT0}, 4096
    v_and_b32 {vFl[2]}, 40, {vL}
    v_cmp_eq_u32 vcc, 40, {vFl[2]}
    v_add_u32 {vFl[2]}, 128, {vQP}
    s_nop 0
    v_cndmask_b32 {vFl[1]}, {vQP}, {vFl[2]}, vcc""")
    for ab in range(2): C(f"v_mul_f32 {T[2*ab]}, {T[2*ab]}, {vG[ab]}")
    for ab in range(2):
        for r in range(0, 16, 2):
            C(f"v_pk_mul_f32 {O[ab].sub(r,2)}, {O[ab].sub(r,2)}, {T.sub(2*ab,2)} op_sel_hi:[1,0]")
        for r in range(8): C(f"v_cvt_pk_bf16_f32 {S[ab][r]}, {O[ab][2*r]}, {O[ab][2*r+1]}")
        for c in range(2):
            C(VM(f"buffer_store_dwordx4 {S[ab].sub(4*c,4)}, {vFl[1+c]}, {srd(S_WS)}, s{sT0+ab} offen offset:{c*512} {SC1}", "O"))
    for j in range(8): C(f"v_sub_f32 {SCL[j]}, 1.0, {SCL[j]}")
    for j in range(8): C(f"v_cvt_pk_bf16_f32 {SCL[j]}, {SCL[j]}, {SCL[j]}")
    for j in range(8): C(f"v_and_b32 {SCL[j]}, 0xffff0000, {SCL[j]}")
    sFC = sL
    C(f"""s_lshl_b32 s{sFC}, s{sMT}, 9
    s_add_u32 s{sFC}, s{sFC}, {FL_O}
    s_add_u32 s{sFl}, s{sFl}, {FL_O - FL_H}""")
    C.ext(ts.at("tail"))
    EPI_IL = opt.get("epi_il", 1)
    groups = []
    if EPI_IL:
        n0 = next(k for k, l in enumerate(C.lines) if l.startswith("v_mov_b32") )
        rest = C.lines[n0:]; C.lines = C.lines[:n0]
        k0 = next(k for k, l in enumerate(rest) if l.startswith("s_mov_b32"))
        k1 = rest.index("P2_FINISH:")
        groups = [[l] for l in rest[:k0]] + [rest[k0:k1 + 1]] + [[l] for l in rest[k1 + 1:]]
    vPa = [O[0][i] for i in range(4)]; vPb = [O[0][4 + i] for i in range(4)]
    def pread(st, dst):
        base = vPb if st < 2 else vPa
        return [f"ds_read_b64_tr_b16 {dst[i].sub(2*hf,2)}, {base[i]} offset:{(st & 1)*4096 + hf*2048}" for i in range(4) for hf in range(2)]
    def p3iter(hook=None, now=False):
        out = []
        for s in range(NS):
            m = [gm(s, j, i) for j in range(8) for i in range(4)]
            f = {}
            if opt.get("t3", 1) == 0:
                f[-1] = [Need([("W", (s+1) % NS), ("X", s, 1)], "lgkmcnt(0)"), w3dma(s, 0)[0]]
                dgap = [0, 6, 14, 22]
                for e in range(4): put(f, dgap[e], w3dma(s, e)[1])
                for k, r in enumerate(wread((s + 1) % NS, (s+1) & 1)): put(f, 1 + 3*k, r)
                for j in range(8): put(f, 4*j + 3 + (1 if j < 7 else 0), xload(s, j))
            else:
                f[-1] = [Need([("X", s, 0)], "lgkmcnt(0)"), w3dma(s, 0)[0]]
                dgap = opt.get("t3w", [0, 2, 6, 10])
                if now: f[-1] = f[-1][:1]
                else:
                    for e in range(4): put(f, dgap[e], w3dma(s, e)[1])
                put(f, 15, Need([("X", s, 1)]))
                rg0 = opt.get("t3r", 18)
                if not (now and s == 3): put(f, rg0 - 1, Need([("W", (s+1) % NS)]))
                for k, r in enumerate(pread(0, RW[0]) if (now and s == 3) else wread((s + 1) % NS, (s+1) & 1)): put(f, rg0 + k + (1 if rg0 + k >= 20 else 0) + (1 if rg0 + k >= 23 else 0), r)
                for j in range(8): put(f, 4*j + 3 + (1 if j < 7 else 0), xload(s, j))
            put(f, 31, adv3)
            put(f, 28, tr_issue())
            if trace: f[-1] = f[-1][:1] + tr_commit() + f[-1][1:]
            if hook: hook(s, f)
            out += interleave(m, f)
        return out
    opoll = f"buffer_load_dword {vFl[0]}, {T[5]}, {srd(S_WS)}, s{sFC} offen sc1"
    NT = NP - 2
    OFS, OPS = opt.get("oflag_step", 2), opt.get("opoll_step", 4*NT - 1 if NT == 1 else 4*NT - 2)
    def mkT(base):
        def hookT(s, f):
            if base == 0 and s < 2:
                R_ = opt.get("epi_rate", 3)
                for g_ in range(2 if s == 0 else 0, 31):
                    for _ in range(R_):
                        if groups: put(f, g_, groups.pop(0))
                assert s == 0 or not groups
            if base + s == OFS: put(f, 10, [Need(["O"]), "s_mov_b64 exec, 1", VM(f"buffer_store_dword {vNon}, {vZero}, {srd(S_WS)}, s{sFl} offen sc1", "OF"), "s_mov_b64 exec, -1", "s_nop 2"])
            if base + s == OPS: put(f, 26, VM(opoll, "OP"))
            if base + s == 1 and CPF: put(f, 14, [cpa, f"v_min_u32 v0, L_END-{NAME}-4, v0"] + cp(False))
        return hookT
    T5 = []
    for k in range(NT): T5 += resolve_waits(p3iter(mkT(4*k)), M + M + C.lines + T5)
    L3 = resolve_waits(p3iter())
    mid = [Need(["OP"])] + check([vFl[0]]) + ["s_cbranch_scc0 P3_SLOWO", "P3_OOK:",
           f"s_mov_b32 s{S_W3}, s{sWo}", f"s_mov_b32 s{S_W3+1}, s{sWo+1}", f"s_mov_b32 s{S_W3+2}, s{sWoN}",
           f"v_subrev_u32 {vW3o}, s{sAdv28}, {vW3o}", f"s_mov_b32 s{sIt}, 6", "s_barrier",
           f"v_add_u32 {T[0]}, 0x10000, {vL16}", f"v_and_b32 {T[1]}, 15, {vL}", f"v_lshlrev_b32 {T[1]}, 11, {T[1]}", f"v_bfe_u32 {T[2]}, {vL}, 4, 1",
           f"v_lshl_add_u32 {T[1]}, {T[2]}, 5, {T[1]}", f"v_lshrrev_b32 {T[2]}, 5, {vL}", f"v_lshl_add_u32 {T[1]}, {T[2]}, 4, {T[1]}",
           f"s_lshl_b32 s{sT0}, s{sMT}, 18", f"s_lshl_b32 s{sT1}, s{sW}, 16", f"s_add_u32 s{sT0}, s{sT0}, s{sT1}",
           f"s_lshl_b32 s{sT1}, s{sNT}, 7", f"s_add_u32 s{sT0}, s{sT0}, s{sT1}", f"s_add_u32 s{sT1}, s{sT0}, 32768"]
    if XPF & 2:
        mid += [f"s_add_u32 s{sXP}, s{sXP}, {(112 - opt.get('xp0', 80) - (2 if XPF & 1 else 0))*AFS2}"] + xpf(AFS2) + xpf(0)
    if WPRE:
        mid += [f"s_lshl_b32 s{sT2}, s{sW}, 13", f"s_add_u32 s{sT2}, s{sT2}, {W3B}"]
        mid += [f"v_subrev_u32 {vPa[i]}, s{sT2}, {vW3a[i]}" for i in range(4)] + [f"v_add_u32 {vPb[i]}, 0x10000, {vPa[i]}" for i in range(4)]
    mid = resolve_waits(mid, T5)
    probs += verify_waits(M + C.lines + T5 + mid + L3, len(M + C.lines + T5 + mid), "T5->L3")
    tail = [f"s_add_u32 s{sIt}, s{sIt}, 1", f"s_cmp_eq_u32 s{sIt}, 8", "s_cbranch_scc1 P3_DONE", "s_nop 7"]
    for i in range(4):
        for j in range(8):
            for r in (0, 2):
                tail.append(f"v_pk_mul_f32 {acc3[i][j].sub(r,2)}, {acc3[i][j].sub(r,2)}, {SCL.sub(j & ~1, 2)} op_sel:[0,{j&1}] op_sel_hi:[1,{j&1}]")
    tail += ["s_nop 0", "s_branch P3_LOOP", "P3_DONE:"]
    probs += check_hazards(M[-30:] + C.lines + T5 + mid + L3 + tail + L3, "tail") + check_hazards(L3 + L3, "l3")
    tab = opt.get("tabl", "")
    def tabl(L):
        out = []
        for l in L:
            if isinstance(l, VM) and isinstance(l.tag, tuple) and l.tag[0].lower() in tab: continue
            if "t" in tab and l.startswith("ds_read_b64_tr"): continue
            if "m" in tab and l.startswith("v_mfma"): continue
            if "a" in tab and l in adv3: continue
            out.append(l)
        return out
    T5 = tabl(T5); L3 = tabl(L3)
    C.ext(T5); C.ext(ts.at("t5end")); C.ext(mid); C.ext(ts.at("l3"))
    if WPRE:
        def hookL7(s, f):
            if s == 0:
                for j in range(8):
                    sc = [f"v_pk_mul_f32 {acc3[i][j].sub(r,2)}, {acc3[i][j].sub(r,2)}, {SCL.sub(j & ~1, 2)} op_sel:[0,{j&1}] op_sel_hi:[1,{j&1}]" for i in range(4) for r in (0, 2)]
                    if j == 0: put(f, -1, sc + ["s_nop 1"])
                    else:
                        for k in range(8): put(f, 4*(j - 1) + k // 3, sc[k])
        L7 = resolve_waits(p3iter(hookL7, now=True), L3 + L3)
        probs += check_hazards(L3 + L7, "l7")
        C.ext(L3); C.ext(tabl(L7)); C.ext(ts.at("l3end"))
        LPREV = L3 + L7
    else:
        C(".p2align 6\nP3_LOOP:")
        C.ext(L3); C.ext(tail); C.ext(ts.at("l3end"))
        LPREV = L3 + L3
    for w in range(3): C(f"s_cmp_eq_u32 s{sW}, {w}\ns_cbranch_scc1 P3_FIN{w}")
    A.ext(C.lines)
    RWF = [RW[0]] + [[Reg("a", 128 + 16*k + 4*i, 4) for i in range(4)] for k in range(3)]
    def fin(w):
        def adr(off): return (vL16, off) if off < 65536 else (T[0], off - 65536)
        own = [2*w, 2*w + 1]
        oth = [j for d in range(1, 4) for j in (2*((w + d) & 3), 2*((w + d) & 3) + 1)]
        mm = lambda s_, j, i: f"v_mfma_f32_16x16x32_bf16 {acc3[i][j]}, {RWF[s_][i]}, {RX[s_][j]}, {acc3[i][j]}"
        FA = opt.get("fa", 2)
        m = [mm(s_, j, i) for s_ in range(FA) for j in oth + own for i in range(4)]
        G0 = 32*FA; PJ = 4*(4 - FA)
        f = {}
        f[-1] = [Need([("X", 0, 1)] + ([] if WPRE else [("W", 1)]), "lgkmcnt(0)")]
        k = 0
        for s_ in (1, 2, 3):
            if s_ > 1 and not WPRE: put(f, k, Need([("W", s_)]))
            for r in (pread(s_, RWF[s_]) if WPRE else [f"ds_read_b64_tr_b16 {RWF[s_][i].sub(2*hf,2)}, {vW3a[i]} offset:{s_*4096 + hf*2048}" for i in range(4) for hf in range(2)]):
                put(f, k, r); k += 1
        for s_ in range(1, FA): put(f, 32*s_ - 1, Need([("X", s_, 1)], "lgkmcnt(0)"))
        put(f, G0 - 1, Need([("X", 3, 1)], "lgkmcnt(0)"))
        if WPRE: put(f, 31, "s_barrier")
        for n, j in enumerate(oth + own):
            m += [mm(s_, j, i) for s_ in range(FA, 4) for i in range(4)]
        for n, j in enumerate(oth):
            d = j >> 1; q = (w - d - 1) & 3
            for i in range(4):
                b_, off = adr((d*3 + q)*8192 + ((j & 1)*4 + i)*1024)
                put(f, G0 + PJ*(n + 1) + 5 + (2 if FA == 1 else 1)*i, f"ds_write_b128 {b_}, {acc3[i][j]} offset:{off}")
        free = [acc3[i][j] for j in oth for i in range(4)]
        g0 = G0 + PJ*7 + 2
        put(f, g0, ["s_waitcnt lgkmcnt(0)", "s_barrier"])
        k = 0
        for q in range(3):
            for jj in range(2):
                for i in range(4):
                    b_, off = adr((w*3 + q)*8192 + (jj*4 + i)*1024)
                    put(f, min(g0 + k // (3 if FA == 1 else 4), 127), f"ds_read_b128 {free[k]}, {b_} offset:{off}"); k += 1
        R = Asm()
        R.ext(resolve_waits(interleave(m, f), LPREV))
        R.ext(ts.at("redw"))
        R("s_nop 3")
        for q in range(3):
            R(f"s_waitcnt lgkmcnt({[15, 8, 0][q] if not ts.on else 0})")
            for jj in range(2):
                for i in range(4):
                    a = acc3[i][2*w+jj]; b = free[q*8 + jj*4 + i]
                    for r in (0, 2): R(f"v_pk_add_f32 {a.sub(r,2)}, {a.sub(r,2)}, {b.sub(r,2)}")
        for jj in range(2):
            for ip in range(2):
                X, Y = acc3[2*ip][2*w+jj], acc3[2*ip+1][2*w+jj]
                Dd = S[0].sub(4*(jj*2+ip), 4)
                R(f"v_cvt_pk_bf16_f32 {Dd[0]}, {X[0]}, {X[1]}\nv_cvt_pk_bf16_f32 {Dd[1]}, {X[2]}, {X[3]}")
                R(f"v_cvt_pk_bf16_f32 {Dd[2]}, {Y[0]}, {Y[1]}\nv_cvt_pk_bf16_f32 {Dd[3]}, {Y[2]}, {Y[3]}")
                R(f"s_nop 1\nv_permlane16_swap_b32 {Dd[0]}, {Dd[2]}\nv_permlane16_swap_b32 {Dd[1]}, {Dd[3]}")
                R(f"buffer_store_dwordx4 {Dd}, {T[1]}, {srd(S_OUT)}, s{sT0+jj} offen offset:{ip*64} {opt.get('outflag', '')}")
        if trace:
            R(f"""s_waitcnt vmcnt(0)
            s_memrealtime s[100:101]
            s_waitcnt lgkmcnt(0)
            s_lshl_b64 exec, 1, s81
            v_mov_b32 v0, s100
            s_mov_b64 exec, -1
            s_lshl_b32 s80, s2, 2
            s_add_u32 s80, s80, s{sW}
            s_lshl_b32 s80, s80, 8
            s_add_u32 s80, s80, {TS_OFF}
            v_lshlrev_b32 {T[3]}, 2, {vL}
            buffer_store_dword v0, {T[3]}, {srd(S_WS)}, s80 offen
            s_waitcnt vmcnt(0) ; TRACE""")
        if opt.get("dbgt"):
            R(f"""s_waitcnt vmcnt(0) lgkmcnt(0)
            s_memrealtime s[100:101]
            s_waitcnt lgkmcnt(0)
            s_mov_b32 s{S_C}, s{P_DBG}
            s_mov_b32 s{S_C+1}, s{P_DBG+1}
            s_mov_b32 s{S_C+2}, 256
            s_mov_b64 exec, 1""")
            for i in range(10):
                R(f"""s_sub_u32 s80, s{82+2*i}, s{sNonce}
                s_add_u32 s80, s80, 1000
                v_mov_b32 {T[3]}, s80
                buffer_atomic_umax {T[3]}, {vZero}, {srd(S_C)}, 0 offen offset:{8 + 4*i}""")
            R("s_waitcnt vmcnt(0)")
        else:
            R.ext(ts.flush(S_WS, sW, S[1].base))
        R("s_endpgm")
        return R
    for w in (3, 0, 1, 2):
        R = fin(w)
        probs += check_hazards(LPREV[-10:] + R.lines, f"fin{w}")
        A(f"P3_FIN{w}:"); A.ext(R.lines)
    A.ext(slow1.lines)
    A("P3_SLOWH:"); A.ext(spin("P3_SH", hpoll, [vFl[k] for k in range(4)], "P3_HOK"))
    A("P3_SLOWO:"); A.ext(spin("P3_SO", opoll, [vFl[0]], "P3_OOK"))

    F = Asm()
    F("P2_FALLBACK:")
    for ab in range(2): F(f"v_mov_b32 {T[ab]}, 0xff800000")
    F(f"s_mov_b32 s{sT0}, {KV_OFF}")
    F("P2_FB1:")
    for t in range(2): F(f"buffer_load_dwordx4 {K[0][t]}, {vL16}, {srd(S_WS)}, s{sT0} offen offset:{t*1024} {SC1}")
    F("s_waitcnt vmcnt(0)")
    for ab in range(2):
        F(f"v_mfma_f32_32x32x16_bf16 {S[ab]}, {K[0][0]}, {Q[ab][0]}, 0\nv_mfma_f32_32x32x16_bf16 {S[ab]}, {K[0][1]}, {Q[ab][1]}, {S[ab]}")
    F("s_nop 15")
    for ab in range(2):
        for r in range(0, 16, 2): F(f"v_max3_f32 {T[ab]}, {S[ab][r]}, {S[ab][r+1]}, {T[ab]}")
    F(f"s_add_u32 s{sT0}, s{sT0}, 4096\ns_cmp_lt_u32 s{sT0}, {KV_OFF + 262144}\ns_cbranch_scc1 P2_FB1")
    for ab in range(2): F(f"v_mov_b32 {T[2+ab]}, {T[ab]}")
    F("s_nop 1")
    for ab in range(2): F(f"v_permlane32_swap_b32 {T[ab]}, {T[2+ab]}")
    for ab in range(2): F(f"v_max_f32 {vFl[ab]}, {T[ab]}, {T[2+ab]}")
    for ab in range(2):
        for r in range(16): F(f"v_mov_b32 {O[ab][r]}, 0")
        for r in range(4): F(f"v_mov_b32 {Lc[ab][r]}, 0")
    F(f"s_mov_b32 s{sT0}, {KV_OFF}")
    F("P2_FB2:")
    for t in range(2): F(f"buffer_load_dwordx4 {K[0][t]}, {vL16}, {srd(S_WS)}, s{sT0} offen offset:{t*1024} {SC1}")
    for t in range(2): F(f"buffer_load_dwordx4 {V[0][t]}, {vL16}, {srd(S_WS)}, s{sT0} offen offset:{2048 + t*1024} {SC1}")
    F("s_waitcnt vmcnt(0)")
    for ab in range(2):
        F(f"v_mfma_f32_32x32x16_bf16 {S[ab]}, {K[0][0]}, {Q[ab][0]}, 0\nv_mfma_f32_32x32x16_bf16 {S[ab]}, {K[0][1]}, {Q[ab][1]}, {S[ab]}")
    F("s_nop 15")
    for ab in range(2):
        for r in range(16): F(f"v_sub_f32 {S[ab][r]}, {S[ab][r]}, {vFl[ab]}")
        for r in range(16): F(f"v_exp_f32 {S[ab][r]}, {S[ab][r]}")
        F("s_nop 0")
        for r in range(8): F(f"v_cvt_pk_bf16_f32 {P[ab][r]}, {S[ab][2*r]}, {S[ab][2*r+1]}")
    F("s_nop 1")
    for ab in range(2):
        for u_ in range(2):
            F(f"v_mfma_f32_32x32x16_bf16 {O[ab]}, {V[0][u_]}, {P[ab].sub(4*u_,4)}, {O[ab]}")
            if u_ == 0: F(lsum(ab))
    F(f"s_add_u32 s{sT0}, s{sT0}, 4096\ns_cmp_lt_u32 s{sT0}, {KV_OFF + 262144}\ns_cbranch_scc1 P2_FB2")
    F("s_nop 15")
    for ab in range(2): F(f"v_add_f32 {Lc[ab][0]}, {Lc[ab][0]}, {Lc[ab][1]}")
    F("s_branch P2_FINISH")
    F("L_END:\ns_endpgm")
    probs += check_hazards(F.lines, "fb")
    A.ext(F.lines)
    for p_ in probs: print("PROBLEM", p_)
    launch = f"; @launch grid=(256,1,1) block=(256,1,1) lds=163840"
    return launch, A.text(), kdesc(NAME, 512, 256)

HDR = open("gated_mix__grouped_kv_mqa__glu_gated_reglu__prompt.s.ref").read().split("; Override launch")[0]
def build(opt=None):
    l, t, d = gen(opt)
    txt = HDR + l + "\n" + '.amdgcn_target "amdgcn-amd-amdhsa--gfx950"\n.text\n' + t + d
    if (opt or {}).get("skip3"):
        import skip3
        txt = skip3.apply(txt, NAME, *opt["skip3"])
    return txt
if __name__ == "__main__":
    import sys, json
    out = sys.argv[1] if len(sys.argv) > 1 else "gated_mix__grouped_kv_mqa__glu_gated_reglu__prompt.s"
    opt = json.loads(sys.argv[2]) if len(sys.argv) > 2 else {}
    open(out, "w").write(build(opt))
```

```python
from asmlib import *
from common import *
LOG2E = math.log2(math.e)
NAME = "gated_mix__grouped_kv_mqa__glu_gated_reglu__prompt_kernel"

FL_E = 0x1650000
FL_ES = 4352
FL_Q = 0x1660000
FL_H = 0x1670000
FL_O = 0x1672000
SPIN_MAX = 1 << 20
PW = 7168

def put(f, g, x):
    f.setdefault(g, []).extend(x if isinstance(x, list) else [x])

def gen(opt=None):
    opt = opt or {}
    A = Asm()
    DEF = ["start", "p1", "p1end", "kvdone", "poll0", "poll1", "att", "attend", "tail"]
    tsn = opt.get("ts")
    ts = TSN(DEF if tsn == 1 else tsn, opt.get("tskind", "rt"))
    SC1 = "sc1"
    probs = []
    P_X, P_WQ, P_WK, P_WV, P_WO = 4, 6, 8, 10, 12
    P_WG, P_WU, P_WD, P_GW = 16, 18, 20, 22
    P_OUT, P_DBG, P_WS = 24, 26, 28
    S_WS, S_A, S_B, S_C, S_D, S_E = 32, 36, 40, 44, 48, 52
    sW, sNonce = 56, 57
    sT0, sT1, sT2, sT3 = 58, 59, 60, 61
    sIt, sRB, sCB = 62, 63, 64
    sL = 65
    vL, vL16 = Reg("v", 1, 1), Reg("v", 2, 1)
    def srd(b): return f"s[{b}:{b+3}]"

    A("""; LOCALQ AFS4
; (published in d_debug by workgroup 0); consumers poll the flags and read the data with sc1 loads.""")
    A(f".globl {NAME}\n.p2align 8\n.type {NAME},@function\n{NAME}:")
    A("s_cmp_ge_u32 s2, 256\ns_cbranch_scc1 L_END")
    A.ext(ts.at("start"))
    A(f"""s_load_dwordx8 s[4:11], s[0:1], 0
    s_load_dwordx2 s[12:13], s[0:1], 32
    s_load_dwordx8 s[16:23], s[0:1], 48
    s_load_dwordx4 s[24:27], s[0:1], 80
    s_load_dwordx2 s[28:29], s[0:1], 96
    s_memrealtime s[30:31]
    v_lshrrev_b32 v3, 6, v0
    v_and_b32 {vL}, 63, v0
    v_readfirstlane_b32 s{sW}, v3
    v_lshlrev_b32 {vL16}, 4, {vL}""")
    CPF = opt.get("cpf", 1) and not opt.get("trace")
    sPC = 100
    cpf = VM(f"global_load_dword a253, v0, s[{sPC}:{sPC+1}]", "CP")
    cpa = "v_add_u32 v0, 0x2000, v0"
    def cp(adv=True): return ([cpf] + ([cpa] if adv else [])) if CPF else []
    if CPF:
        A(f"""s_getpc_b64 s[{sPC}:{sPC+1}]
        L_PCREF:
        v_lshlrev_b32 v0, 7, {vL}
        s_sub_u32 s{sPC}, s{sPC}, L_PCREF-{NAME}
        s_subb_u32 s{sPC+1}, s{sPC+1}, 0""")
        A.ext(cp())

    if opt.get("ticket", 0):
        A(f"""s_getreg_b32 s{sT0}, hwreg(HW_REG_XCC_ID)
        s_and_b32 s{sT0}, s{sT0}, 7
        s_cmp_lg_u32 s{sW}, 0
        s_cbranch_scc1 L_TKWAIT
        v_mov_b32 v5, 0
        s_mov_b32 s{sT1}, 8
        s_mov_b32 s{S_WS+2}, 256
        s_mov_b32 s{S_WS+3}, 0x20000
        s_waitcnt lgkmcnt(0)
        s_mov_b32 s{S_WS}, s{P_DBG}
        s_mov_b32 s{S_WS+1}, s{P_DBG+1}
        s_mov_b64 exec, 1
        L_TKTRY:
        v_mov_b32 v4, 1
        s_lshl_b32 s{sT2}, s{sT0}, 5
        buffer_atomic_add v4, v5, {srd(S_WS)}, s{sT2} offen offset:4 sc0
        s_waitcnt vmcnt(0)
        v_readfirstlane_b32 s{sT2}, v4
        s_cmp_lt_u32 s{sT2}, 32
        s_cbranch_scc1 L_TKGOT
        s_add_u32 s{sT0}, s{sT0}, 1
        s_and_b32 s{sT0}, s{sT0}, 7
        s_sub_u32 s{sT1}, s{sT1}, 1
        s_cmp_lg_u32 s{sT1}, 0
        s_cbranch_scc1 L_TKTRY
        s_mov_b32 s{sT2}, 32
        L_TKGOT:
        s_lshl_b32 s{sT2}, s{sT2}, 3
        s_add_u32 s{sT2}, s{sT2}, s{sT0}
        v_mov_b32 v4, s{sT2}
        ds_write_b32 v5, v4
        s_mov_b64 exec, -1
        s_waitcnt lgkmcnt(0)
        L_TKWAIT:
        v_mov_b32 v5, 0
        s_barrier
        ds_read_b32 v4, v5
        s_waitcnt lgkmcnt(0)
        v_readfirstlane_b32 s2, v4
        s_barrier
        s_cmp_ge_u32 s2, 256
        s_cbranch_scc1 L_END""")
    trace = opt.get("trace")
    def tr_issue(): return ["s_memrealtime s[100:101]"] if trace else []
    def tr_commit(): return ["s_lshl_b64 exec, 1, s81", "v_mov_b32 v0, s100", "s_mov_b64 exec, -1", "s_add_u32 s81, s81, 1"] if trace else []
    if trace: A("s_mov_b32 s81, 0\nv_mov_b32 v0, 0\ns_memrealtime s[100:101]\ns_waitcnt lgkmcnt(0)"); A.ext(tr_commit())
    S_X, S_W0, S_W1, S_KV, S_Wb = S_A, S_B, S_C, S_D, S_E
    sSoX = sL - 1
    sSo0 = sL + 7
    sSo1 = sL + 7
    sM0X, sM0W, sM0K, sWwr = sL + 11, sL + 12, sL + 13, sL + 14
    sWrd, s16k, sStep1, sSa, sSc, sIsB, sKVst, sEfl = 14, 30, 15, 3, 31, 9, 10, 11
    XB, WB, KR = 0, 65536, 147456
    vXo = [3, 4]; vWo0, vWo1, vKo, vSXo = 5, 6, 7, 8
    vXa = [9, 10]; vW0a = [[11 + 2*i, 12 + 2*i] for i in range(4)]; vW1a = [19, 20, 21, 22]; vSWa = 23
    vT = 24
    acc = [[None]*8 for _ in range(8)]
    p = 32
    for i in range(7):
        for j in range(8):
            acc[i][j] = Reg("v", p, 4); p += 4
    RA = [[Reg("a", 64*s + 4*i, 4) for i in range(8)] for s in range(2)]
    RB = [[Reg("a", 64*s + 32 + 4*j, 4) for j in range(8)] for s in range(2)]
    SA = [Reg("a", 128 + 4*s, 4) for s in range(2)]
    sacc = Reg("a", 144, 4)
    for j in range(8): acc[7][j] = Reg("a", 148 + 4*j, 4)
    SXB = [[Reg("a", 180 + 8*b + 4*j, 4) for j in range(2)] for b in range(2)]
    GXa = [Reg("a", 196 + 8*r, 8) for r in range(2)]
    GWa = Reg("a", 212, 8)
    t0, t1, t2, t3, t4, t5, t6, t7 = range(vT, vT + 8)
    HUGE = 0x40000000
    KP = opt.get("kp", [0, 1, 2, 4, 5, 6, 7, 8, 9, 10, 12, 13, 14, 15, 3, 11])
    sCWa, sCWb = 6, 7

    A(f"""s_and_b32 s{sT0}, s2, 1
    s_lshl_b32 s{sT0}, s{sT0}, 2
    s_bfe_u32 s{sT1}, s2, 0x20003
    s_add_u32 s{sRB}, s{sT0}, s{sT1}
    s_bfe_u32 s{sT0}, s2, 0x20001
    s_lshl_b32 s{sT0}, s{sT0}, 3
    s_lshr_b32 s{sT1}, s2, 5
    s_add_u32 s{sCB}, s{sT0}, s{sT1}""")
    A(f"""s_lshl_b32 s{sT0}, s{sW}, 6
    v_lshrrev_b32 v{t0}, 3, {vL}
    v_add_u32 v{t2}, s{sT0}, v{t0}
    v_lshlrev_b32 v{t2}, 11, v{t2}
    v_lshrrev_b32 v{t1}, 4, {vL}
    v_and_b32 v{t3}, 7, {vL}
    v_xor_b32 v{t4}, v{t3}, v{t1}
    v_lshl_add_u32 v{vXo[0]}, v{t4}, 4, v{t2}
    v_add_u32 v{vXo[0]}, {KP[0]*128}, v{vXo[0]}
    v_xor_b32 v{vXo[1]}, 64, v{vXo[0]}""")
    for e in range(1, 8): A(f"s_mov_b32 s{sSoX+e}, {e*16384 - (e&3)*1024}")
    A(f"""s_lshl_b32 s{sM0X}, s{sW}, 13
    s_lshl_b32 s{sM0W}, s{sW}, 11
    s_add_u32 s{sM0K}, s{sM0W}, {KR}
    s_add_u32 s{sM0W}, s{sM0W}, {WB}
    s_and_b32 s{sT1}, s{sCB}, 3
    s_mov_b32 s{sStep1}, {PW}
    s_cmp_eq_u32 s{sT1}, 3
    s_cselect_b32 s{sStep1}, 2048, s{sStep1}""")
    A(f"""s_lshl_b32 s{sT0}, s{sW}, 3
    v_add_u32 v{t2}, s{sT0}, v{t1}
    v_mul_lo_u32 v{t2}, v{t2}, s{sStep1}
    s_and_b32 s{sT1}, s{sW}, 1
    s_lshl_b32 s{sT2}, s{sT1}, 3
    v_and_b32 v{t4}, 15, {vL}
    v_lshl_or_b32 v{t5}, v{t1}, 1, s{sT2}
    v_xor_b32 v{t4}, v{t4}, v{t5}
    v_lshl_add_u32 v{vWo1}, v{t4}, 4, v{t2}
    v_add_u32 v{t2}, s{sT0}, v{t0}
    v_mul_u32_u24 v{t2}, {PW}, v{t2}
    s_lshl_b32 s{sT2}, s{sT1}, 2
    v_and_b32 v{t4}, 1, v{t1}
    v_lshl_or_b32 v{t4}, v{t4}, 1, s{sT2}
    v_xor_b32 v{t4}, v{t4}, v{t3}
    v_lshl_add_u32 v{vWo0}, v{t4}, 4, v{t2}""")
    A.ext(ts.at("a0"))
    A("s_waitcnt lgkmcnt(0)")
    A.ext(ts.at("a1"))
    A(f"""s_lshl_b32 s{sT0}, s{sRB}, 19
    s_add_u32 s{S_X}, s{P_X}, s{sT0}
    s_addc_u32 s{S_X+1}, s{P_X+1}, 0
    s_mov_b32 s{S_X+2}, 0x80000
    s_mov_b32 s{S_X+3}, 0x20000""")
    A(f"""s_mov_b32 s{S_WS+3}, 0x20000
    s_or_b32 s{sT0}, s2, s{sW}
    s_cmp_lg_u32 s{sT0}, 0
    s_cbranch_scc1 P1_NONONCE
    s_or_b32 s30, s30, 1
    s_mov_b32 s{S_WS}, s{P_DBG}
    s_mov_b32 s{S_WS+1}, s{P_DBG+1}
    s_mov_b32 s{S_WS+2}, 256
    v_mov_b32 v{t6}, s30
    v_mov_b32 v{t7}, 0
    s_mov_b64 exec, 1
    buffer_store_dword v{t6}, v{t7}, {srd(S_WS)}, 0 offen sc1
    s_mov_b64 exec, -1
    P1_NONONCE:""")
    WNT = opt.get("wnt", "")
    def xdma(par):
        sl = []
        for e in range(8):
            pre = []
            if e == 0: pre = [f"s_add_u32 m0, s{sM0X}, {par}"]
            if e == 4: pre = ["s_add_u32 m0, m0, 4096"]
            so = "0" if e == 0 else f"s{sSoX+e}"
            sl.append((pre, VM(f"buffer_load_dwordx4 v{vXo[e&1]}, {srd(S_X)}, {so} offen offset:{(e&3)*1024} {opt.get('xnt', '')} lds", "X")))
        return sl
    def wdma(hb, slot):
        so0 = "0" if hb == 0 else f"s{sSo0}"
        so1 = ["0" if hb == 0 else f"s{sSo1+2}", f"s{sSo1 + 1 + 2*hb}"]
        return [([f"s_add_u32 m0, s{sM0W}, {slot}"], VM(f"buffer_load_dwordx4 v{vWo0}, {srd(S_W0)}, {so0} offen {WNT} lds", "W")),
                ([], VM(f"buffer_load_dwordx4 v{vWo0}, {srd(S_Wb)}, {so0} offen offset:1024 {WNT} lds", "W")),
                (["s_add_u32 m0, m0, 40960"], VM(f"buffer_load_dwordx4 v{vWo1}, {srd(S_W1)}, {so1[0]} offen {WNT} lds", "W")),
                ([], VM(f"buffer_load_dwordx4 v{vWo1}, {srd(S_W1)}, {so1[1]} offen offset:1024 {WNT} lds", "W"))]
    def kdma(slot):
        return [([f"s_add_u32 m0, s{sM0K}, {slot}"], VM(f"buffer_load_dwordx4 v{vKo}, {srd(S_KV)}, 0 offen lds", "X")),
                ([], VM(f"buffer_load_dwordx4 v{vKo}, {srd(S_KV)}, 0 offen offset:1024 lds", "X"))]
    def sxload(b): return [VM(f"buffer_load_dwordx4 {SXB[b][j]}, v{vSXo}, {srd(S_X)}, 0 offen offset:{j*64}", "SX") for j in range(2)]
    def emit_dma(X, sl):
        for pre, d in sl:
            X.ext(pre)
            if pre: X("s_nop 0")
            X(d)
    emit_dma(A, xdma(0))
    A.ext(ts.at("a2"))
    A(f"""s_lshr_b32 s{sT0}, s{sCB}, 2
    s_and_b32 s{sT1}, s{sCB}, 3
    s_mul_i32 s{sT2}, s{sT0}, 896
    s_lshl_b32 s{sT3}, s{sT1}, 8
    s_add_u32 s{sT2}, s{sT2}, s{sT3}
    s_add_u32 s{S_W0}, s{P_WG}, s{sT2}
    s_addc_u32 s{S_W0+1}, s{P_WG+1}, 0
    s_sub_u32 s{S_W0+2}, {1024*PW}, s{sT2}
    s_mov_b32 s{S_W0+3}, 0x20000
    s_mov_b32 s{S_W1+3}, 0x20000
    s_mov_b32 s{S_Wb+3}, 0x20000
    s_mov_b32 s{sSo0}, {32*PW}
    s_cmp_eq_u32 s{sT1}, 3
    s_cbranch_scc1 P1_SRDB
    s_add_u32 s{S_Wb}, s{S_W0}, {4*PW - 1024}
    s_addc_u32 s{S_Wb+1}, s{S_W0+1}, 0
    s_sub_u32 s{S_Wb+2}, s{S_W0+2}, {4*PW - 1024}
    s_add_u32 s{S_W1}, s{P_WU}, s{sT2}
    s_addc_u32 s{S_W1+1}, s{P_WU+1}, 0
    s_mov_b32 s{S_W1+2}, s{S_W0+2}
    v_mov_b32 v{vWo0}, v{vWo1}
    s_branch P1_SRDD
    P1_SRDB:
    s_add_u32 s{S_Wb}, s{P_WU}, s{sT2}
    s_addc_u32 s{S_Wb+1}, s{P_WU+1}, 0
    s_sub_u32 s{S_Wb}, s{S_Wb}, 1024
    s_subb_u32 s{S_Wb+1}, s{S_Wb+1}, 0
    s_add_u32 s{S_Wb+2}, s{S_W0+2}, 1024
    s_lshl_b32 s{sT0}, s{sT0}, 8
    s_add_u32 s{S_W1}, s{P_WQ}, s{sT0}
    s_addc_u32 s{S_W1+1}, s{P_WQ+1}, 0
    s_sub_u32 s{S_W1+2}, {1024*2048}, s{sT0}
    P1_SRDD:
    s_lshl_b32 s{sSo1+1}, s{sStep1}, 2
    s_sub_u32 s{sSo1+1}, s{sSo1+1}, 1024
    s_lshl_b32 s{sSo1+2}, s{sStep1}, 5
    s_add_u32 s{sSo1+3}, s{sSo1+2}, s{sSo1+1}
    s_lshl_b32 s{sStep1}, s{sStep1}, 6""")
    def advXf(a, b):
        d = (KP[b] - KP[a]) * 128 & 0xffffffff
        return [f"v_add_u32 v{vXo[0]}, {d:#x}, v{vXo[0]}", f"v_add_u32 v{vXo[1]}, {d:#x}, v{vXo[1]}"]
    def advWf(a, b):
        d = KP[b] - KP[a]
        if d == 1: return [f"v_add_u32 v{vWo0}, {64*PW}, v{vWo0}", f"v_add_u32 v{vWo1}, s{sStep1}, v{vWo1}"]
        return [f"v_add_u32 v{vWo0}, {d*64*PW & 0xffffffff:#x}, v{vWo0}", f"s_mul_i32 s{sT3}, s{sStep1}, {d}\nv_add_u32 v{vWo1}, s{sT3}, v{vWo1}"]
    if KP[0]:
        A(f"""v_add_u32 v{vWo0}, {KP[0]*64*PW}, v{vWo0}
        s_mul_i32 s{sT3}, s{sStep1}, {KP[0]}
        v_add_u32 v{vWo1}, s{sT3}, v{vWo1}""")
    advK = f"v_add_u32 v{vKo}, 4096, v{vKo}"
    advS = f"v_add_u32 v{vSXo}, 128, v{vSXo}"
    emit_dma(A, wdma(0, 0)); emit_dma(A, wdma(1, 8192))
    A.ext(advXf(0, 1) + advWf(0, 1))
    A(f"""s_bfe_u32 s{sT0}, s{sCB}, 0x10001
    s_and_b32 s{sT1}, s{sW}, 1
    s_bitcmp1_b32 s{sCB}, 0
    s_cselect_b32 s{S_KV}, s{P_WV}, s{P_WK}
    s_cselect_b32 s{S_KV+1}, s{P_WV+1}, s{P_WK+1}
    s_cselect_b32 s{sSa}, s{sT1}, s{sT0}
    s_cselect_b32 s{sSc}, s{sT0}, s{sT1}
    s_mov_b32 s{S_KV+2}, 65536
    s_mov_b32 s{S_KV+3}, 0x20000
    s_and_b32 s{sIsB}, s{sCB}, 3
    s_cmp_eq_u32 s{sIsB}, 3
    s_cselect_b32 s{sIsB}, 1, 0
    v_lshrrev_b32 v{t2}, 5, {vL}
    v_lshlrev_b32 v{t2}, 1, v{t2}
    v_xor_b32 v{t2}, v{t2}, {vL}
    v_lshlrev_b32 v{t2}, 4, v{t2}
    s_lshr_b32 s{sT2}, s{sW}, 1
    s_lshl_b32 s{sT0}, s{sT2}, 15
    s_lshl_b32 s{sT1}, s{sT1}, 11
    s_add_u32 s{sT0}, s{sT0}, s{sT1}
    v_add_u32 v{vKo}, s{sT0}, v{t2}
    s_lshr_b32 s{sT0}, s{sCB}, 2
    s_lshl_b32 s{sT0}, s{sT0}, 1
    s_add_u32 s{sT0}, s{sT0}, s{sSa}
    s_lshl_b32 s{sT0}, s{sT0}, 15
    s_lshl_b32 s{sT2}, s{sT2}, 10
    s_add_u32 s{sT0}, s{sT0}, s{sT2}
    v_and_b32 v{t2}, 15, {vL}
    v_lshlrev_b32 v{t2}, 11, v{t2}
    v_lshl_add_u32 v{t2}, v{t1}, 4, v{t2}
    v_add_u32 v{vSXo}, s{sT0}, v{t2}""")
    emit_dma(A, kdma(0)); A.ext(sxload(0)); A(advK); A(advS)
    A(f"""s_mov_b32 s{S_WS}, s{P_WS}
    s_mov_b32 s{S_WS+1}, s{P_WS+1}
    s_mov_b32 s{S_WS+2}, {WS_USED}""")
    A.ext(ts.at("a3"))
    second = xdma(32768) + wdma(0, 2*8192) + kdma(8192) + wdma(1, 3*8192)
    A(f"""v_and_b32 v{t0}, 15, {vL}
    v_lshrrev_b32 v{t2}, 1, v{t0}
    v_xor_b32 v{t2}, v{t2}, v{t1}
    v_lshlrev_b32 v{t2}, 4, v{t2}
    v_lshl_add_u32 v{t2}, v{t0}, 7, v{t2}
    s_lshr_b32 s{sT0}, s{sW}, 1
    s_lshl_b32 s{sT1}, s{sT0}, 14
    v_add_u32 v{vXa[0]}, s{sT1}, v{t2}
    v_xor_b32 v{vXa[1]}, 64, v{vXa[0]}
    v_bfe_u32 v{t0}, {vL}, 2, 2
    v_lshl_add_u32 v{t2}, v{t1}, 3, v{t0}
    v_and_b32 v{t3}, 1, v{t1}
    v_lshl_or_b32 v{t5}, v{t3}, 2, v{t0}
    v_and_b32 v{t4}, 3, {vL}
    v_lshlrev_b32 v{t4}, 3, v{t4}
    v_lshl_add_u32 v{t6}, v{t2}, 8, v{t4}
    v_add_u32 v{t6}, {WB + 40960}, v{t6}
    s_and_b32 s{sT0}, s{sW}, 1
    s_lshl_b32 s{sT1}, s{sT0}, 2""")
    for ii in range(4):
        A(f"""s_add_u32 s{sT2}, s{sT1}, {ii}
        v_xor_b32 v{t7}, s{sT2}, v{t5}
        v_lshl_add_u32 v{vW1a[ii]}, v{t7}, 5, v{t6}""")
    A(f"""v_lshl_add_u32 v{t2}, v{t2}, 6, v{t4}
    v_xor_b32 v{t7}, s{sSc}, v{t3}
    v_lshl_add_u32 v{t7}, v{t7}, 5, v{t2}
    s_lshr_b32 s{sT2}, s{sW}, 1
    s_lshl_b32 s{sT2}, s{sT2}, 12
    s_add_u32 s{sT2}, s{sT2}, {KR}
    v_add_u32 v{vSWa}, s{sT2}, v{t7}
    s_mov_b32 s{s16k}, 16384
    s_cmp_eq_u32 s{sIsB}, 1
    s_cbranch_scc1 P1_ADB""")
    for ii in range(4):
        A(f"v_subrev_u32 v{vW0a[ii][0]}, 40960, v{vW1a[ii]}\nv_subrev_u32 v{vW0a[ii][1]}, {40960 - 1024}, v{vW1a[ii]}")
    A(f"""s_branch P1_ADD
    P1_ADB:
    v_lshl_add_u32 v{t4}, v{t1}, 11, v{t4}
    v_lshl_add_u32 v{t4}, v{t0}, 7, v{t4}
    v_add_u32 v{t4}, {WB}, v{t4}
    v_lshrrev_b32 v{t0}, 1, v{t0}
    v_lshl_or_b32 v{t0}, v{t3}, 1, v{t0}
    s_lshl_b32 s{sT1}, s{sT0}, 1""")
    for k in range(2):
        A(f"""s_add_u32 s{sT2}, s{sT1}, {k}
        v_xor_b32 v{t7}, s{sT2}, v{t0}
        v_lshl_add_u32 v{vW0a[k][0]}, v{t7}, 5, v{t4}
        v_add_u32 v{vW0a[k][1]}, 512, v{vW0a[k][0]}
        v_add_u32 v{vW0a[2+k][0]}, 1024, v{vW0a[k][0]}
        v_add_u32 v{vW0a[2+k][1]}, 1536, v{vW0a[k][0]}""")
    A("P1_ADD:")
    PF = opt.get("pf", 1)
    Z = []
    for i in range(8):
        for j in range(8):
            for r in range(4):
                a = acc[i][j][r]
                Z.append(f"v_mov_b32 {a}, 0" if a.f == "v" else f"v_accvgpr_write_b32 {a}, 0")
    for r in range(4): Z.append(f"v_accvgpr_write_b32 {sacc[r]}, 0")
    PEEL = opt.get("peel", 0)
    NPRE = opt.get("npre", 0)
    if not PEEL:
        per = len(Z) // len(second)
        for k, (pre, d) in enumerate(second):
            A.ext(pre); A.ext(Z[k*per:(k+1)*per]); A(d)
        A.ext(Z[len(second)*per:])
        A.ext(advXf(1, 2) + advWf(1, 2) + [advK])
    else:
        emit_dma(A, second[:NPRE])

    def reads(t, s, side):
        b = t & 1; xo = ((t >> 1) & 1)*32768; wo = (t % 5)*8192; ko = ((t >> 1) & 1)*8192
        L = [f"ds_read_b128 {RB[s][j]}, v{vXa[b]} offset:{xo + j*2048}" for j in range(8)]
        for i in range(8):
            for hf in range(2):
                if i < 4: L.append(f"ds_read_b64_tr_b16 {RA[s][i].sub(2*hf, 2)}, v{vW0a[i][hf]} offset:{wo}")
                else: L.append(f"ds_read_b64_tr_b16 {RA[s][i].sub(2*hf, 2)}, v{vW1a[i-4]} offset:{wo + hf*1024}")
        if side:
            for hf in range(2):
                L.append(f"ds_read_b64_tr_b16 {SA[s].sub(2*hf, 2)}, v{vSWa} offset:{ko + b*2048 + hf*256}")
        return L
    def mfmas(s, side=None, zero=False):
        L = []
        for i in range(8):
            js = range(8) if i % 2 == 0 else range(7, -1, -1)
            for j in js:
                L.append(f"v_mfma_f32_16x16x32_bf16 {acc[i][j]}, {RA[s][i]}, {RB[s][j]}, {0 if zero else acc[i][j]}")
            if side is not None and i == 3:
                L.append(f"v_mfma_f32_16x16x32_bf16 {sacc}, {SA[s]}, {SXB[side][s]}, {0 if zero else sacc}")
        return L
    IPF = opt.get("ipf", 0)
    npf = 0
    if IPF:
        assert KP[2:6] == [2, 4, 5, 6]
        A(f"""v_lshrrev_b32 v{t0}, 3, {vL}
        v_cmp_lt_u32 vcc, 0, v{t0}
        v_add_u32 v{t1}, 2, v{t0}
        v_and_b32 v{t2}, 7, {vL}
        v_addc_co_u32 v{t1}, vcc, 0, v{t1}, vcc
        v_cmp_gt_u32 vcc, {IPF}, v{t0}
        s_and_b32 s{sT0}, s{sCB}, 7
        s_lshl_b32 s{sT0}, s{sT0}, 2
        s_add_u32 s{sT0}, s{sT0}, s{sW}
        s_lshl_b32 s{sT0}, s{sT0}, 3
        v_add_u32 v{t3}, s{sT0}, v{t2}
        v_lshlrev_b32 v{t3}, 11, v{t3}
        v_lshl_add_u32 v{t3}, v{t1}, 7, v{t3}
        v_mov_b32 v{t6}, {HUGE}
        v_cndmask_b32 v{t3}, v{t6}, v{t3}, vcc
        buffer_load_dword a252, v{t3}, {srd(S_X)}, 0 offen
        s_and_b32 s{sT0}, s{sRB}, 3
        s_lshl_b32 s{sT0}, s{sT0}, 2
        s_add_u32 s{sT0}, s{sT0}, s{sW}
        s_lshl_b32 s{sT0}, s{sT0}, 2
        v_lshrrev_b32 v{t4}, 1, v{t2}
        v_lshl_add_u32 v{t4}, v{t1}, 6, v{t4}
        v_add_u32 v{t4}, s{sT0}, v{t4}
        v_and_b32 v{t2}, 1, v{t2}
        v_lshlrev_b32 v{t2}, 7, v{t2}
        v_mul_u32_u24 v{t5}, {PW}, v{t4}
        v_add_u32 v{t5}, v{t5}, v{t2}
        v_cndmask_b32 v{t5}, v{t6}, v{t5}, vcc
        buffer_load_dword a254, v{t5}, {srd(S_W0)}, 0 offen
        s_lshr_b32 s{sT0}, s{sStep1}, 6
        v_mul_lo_u32 v{t5}, v{t4}, s{sT0}
        v_add_u32 v{t5}, v{t5}, v{t2}
        v_cndmask_b32 v{t5}, v{t6}, v{t5}, vcc
        buffer_load_dword a255, v{t5}, {srd(S_W1)}, 0 offen""")
        npf = 3
    A.ext(ts.at("a4"))
    A(f"s_waitcnt vmcnt({len(second) + npf}) lgkmcnt(0)")
    A.ext(ts.at("a5"))
    A("s_barrier")
    A.ext(reads(0, 0, True))
    A("s_waitcnt lgkmcnt(0)\ns_barrier")
    A.ext(ts.at("p1"))
    if ts.on: A("s_waitcnt lgkmcnt(0)")
    pro_hist = list(A.lines)

    def step(st, hook=None, cpl=False):
        out = []
        sd = st < 8; side = st & 1 if sd else None
        dma = st < 14; last = st == 15
        n = 65 if sd else 64
        BG = n - opt.get('bgo', 4)
        f = {}
        for k, r in enumerate(reads(2*st + 1, 1, sd)): put(f, 2*k, r)
        if dma:
            dg = opt.get('dgw', [1, 9, 17, 25, 33, 39, 47, 55]) if not (st < 7) else [13, 19, 25, 31, 37, 43, 49, 55]
            for k, (pre, d) in enumerate(wdma(0, ((2*st + 4) % 5)*8192) + wdma(1, ((2*st + 5) % 5)*8192)):
                if pre: put(f, dg[k] - 1, pre)
                put(f, dg[k], d)
            if st < 13: put(f, 57, advWf(st + 2, st + 3)[0]); put(f, 58, advWf(st + 2, st + 3)[1])
        if st < 7:
            for k, l in enumerate(sxload(side ^ 1)): put(f, [1, 7][k], l)
            put(f, 9, advS)
        if cpl: put(f, 4, cp())
        if hook: hook(0, f, BG)
        put(f, BG, [Need(["X"], "lgkmcnt(0)") if not last else "s_waitcnt lgkmcnt(0)", "s_barrier"])
        out += interleave(mfmas(0, side), f)
        if last: return out + tr_issue() + (["s_waitcnt lgkmcnt(0)"] if trace else []) + tr_commit()
        f = {}
        for k, r in enumerate(reads(2*st + 2, 0, st < 7)): put(f, 2*k, r)
        if dma:
            kv = st < 6
            dl = ((kdma((st & 1)*8192) if kv else []) + xdma((st & 1)*32768)) if not opt.get('xfirst') else (xdma((st & 1)*32768) + (kdma((st & 1)*8192) if kv else []))
            dg = opt.get('dgk', [1, 7, 13, 19, 25, 31, 37, 43, 49, 55]) if kv else opt.get('dgx', [1, 9, 17, 25, 33, 41, 47, 55])
            for k, (pre, d) in enumerate(dl):
                if pre: put(f, dg[k] - 1, pre)
                put(f, dg[k], d)
            if st < 13: put(f, 57, advXf(st + 2, st + 3)[0]); put(f, 59, advXf(st + 2, st + 3)[1])
            if kv: put(f, 9 if not opt.get('xfirst') else 58, advK)
        if hook: hook(1, f, BG)
        put(f, BG - 3, tr_issue())
        put(f, BG, [Need(["SX"], "lgkmcnt(0)") if st < 7 else "s_waitcnt lgkmcnt(0)", "s_barrier"] + tr_commit())
        out += interleave(mfmas(1, side), f)
        return out

    vN, vZ, vKA, vFA = t0, t1, t2, t3
    u = 28
    nload = f"buffer_load_dword v{vN}, v{vZ}, {srd(S_KV)}, 0 offen sc1"
    dbgsrd = [f"s_mov_b32 s{S_KV}, s{P_DBG}", f"s_mov_b32 s{S_KV+1}, s{P_DBG+1}", f"s_mov_b32 s{S_KV+2}, 256", f"v_mov_b32 v{vZ}, 0"]
    PSC = KR + 4096
    kvK = f"""v_bfe_u32 v{vKA}, {vL}, 3, 1
    v_lshlrev_b32 v{vKA}, 4, v{vKA}
    v_and_b32 v{vFA}, 7, {vL}
    v_add_u32 v{vKA}, v{vKA}, v{vFA}
    v_bfe_u32 v{vFA}, {vL}, 4, 1
    v_lshl_add_u32 v{vKA}, v{vFA}, 5, v{vKA}
    v_lshlrev_b32 v{vKA}, 4, v{vKA}
    v_lshrrev_b32 v{vFA}, 5, {vL}
    v_lshl_add_u32 v{vKA}, v{vFA}, 10, v{vKA}
    s_lshl_b32 s{sKVst}, s{sSa}, 7
    s_lshl_b32 s{sEfl}, s{sSc}, 3""".split("\n")
    kvV = f"""v_lshrrev_b32 v{vKA}, 5, {vL}
    v_lshlrev_b32 v{vKA}, 4, v{vKA}
    v_bfe_u32 v{vFA}, {vL}, 4, 1
    v_lshl_add_u32 v{vKA}, v{vFA}, 2, v{vKA}
    v_bfe_u32 v{vFA}, {vL}, 2, 1
    v_lshl_add_u32 v{vKA}, v{vFA}, 5, v{vKA}
    v_lshlrev_b32 v{vKA}, 4, v{vKA}
    v_bfe_u32 v{vFA}, {vL}, 3, 1
    v_lshl_add_u32 v{vKA}, v{vFA}, 10, v{vKA}
    v_and_b32 v{vFA}, 3, {vL}
    v_lshl_add_u32 v{vKA}, v{vFA}, 1, v{vKA}
    s_lshl_b32 s{sKVst}, s{sSc}, 7
    s_lshl_b32 s{sEfl}, s{sSa}, 3""".split("\n")
    kvaddr = [f"s_bitcmp1_b32 s{sCB}, 0", "s_cbranch_scc1 P1_KVAV"] + [l.strip() for l in kvK] + ["P1_KVAD:",
              f"s_add_u32 s{sKVst}, s{sKVst}, s{sEfl}", f"s_add_u32 s{sKVst}, s{sKVst}, {KR}", f"v_add_u32 v{vKA}, s{sKVst}, v{vKA}"]
    kvwr = [f"s_bitcmp1_b32 s{sCB}, 0", "s_cbranch_scc1 P1_KVWV", f"ds_write_b64 v{vKA}, v[{u}:{u+1}]", "P1_KVWD:"]
    ool = Asm()
    ool("P1_KVAV:"); ool.ext(kvV); ool("s_branch P1_KVAD")
    ool(f"""P1_KVWV:
    ds_write_b16 v{vKA}, v{u}
    ds_write_b16_d16_hi v{vKA}, v{u} offset:16
    ds_write_b16 v{vKA}, v{u+1} offset:32
    ds_write_b16_d16_hi v{vKA}, v{u+1} offset:48
    s_branch P1_KVWD""")
    vP = vSXo
    KT = Reg("a", 128, 4); PT = Reg("a", 132, 4)
    QPOLL = opt.get("qpoll", 0)
    CW = opt.get("cw", 1)
    CA, CB = Reg("a", 136, 4), Reg("a", 140, 4)
    vDA, vDB = vSWa, vKo
    def hookS8(ph, f, BG):
        if ph == 0 and CW:
            put(f, 1, [f"s_lshl_b32 s{sT2}, s2, 2", f"s_add_u32 s{sT2}, s{sT2}, s{sW}", f"s_mul_i32 s{sT3}, s{sT2}, 7"])
            L_ = [f"v_lshrrev_b32 v{u}, 3, {vL}", f"v_and_b32 v{u+1}, 7, {vL}", f"v_lshlrev_b32 v{u+1}, 4, v{u+1}",
                  f"v_add_u32 v{u+2}, s{sT3}, v{u}", f"v_and_b32 v{u+3}, 1, v{u+2}", f"v_lshrrev_b32 v{u+2}, 1, v{u+2}",
                  f"v_lshl_add_u32 v{vDA}, v{u+2}, 8, v{u+1}", f"v_mul_u32_u24 v{vDB}, {CW_SZ}, v{u+3}", f"v_add_u32 v{vDA}, v{vDA}, v{vDB}",
                  f"v_lshl_add_u32 v{u+2}, v{u+2}, 11, v{u+1}", f"v_lshl_add_u32 v{u+2}, v{u+3}, 10, v{u+2}",
                  f"v_cmp_gt_u32 vcc, 56, {vL}", f"v_mov_b32 v{u+3}, {HUGE}", f"v_add_u32 v{u+2}, 384, v{u+2}",
                  f"v_cndmask_b32 v{u+2}, v{u+3}, v{u+2}, vcc", f"v_cndmask_b32 v{vDA}, v{u+3}, v{vDA}, vcc"]
            for k, l in enumerate(L_): put(f, 2 + k // 2, l)
            put(f, 10, [f"s_mov_b32 s{S_KV}, s{P_WD}", f"s_mov_b32 s{S_KV+1}, s{P_WD+1}", f"s_mov_b32 s{S_KV+2}, {3584*2048}"])
            put(f, 12, VM(f"buffer_load_dwordx4 {CA}, v{u+2}, {srd(S_KV)}, 0 offen", "CL"))
            L_ = [f"v_mul_u32_u24 v{vDB}, {CW_SZ}, v{u}", f"v_add_u32 v{vDB}, v{vDB}, v{u+1}", f"v_lshl_add_u32 v{u+2}, v{u}, 10, v{u+1}",
                  f"v_cmp_gt_u32 vcc, 16, {vL}", f"s_lshl_b32 s{sT3}, s{sT2}, 11", f"s_add_u32 s{sT3}, s{sT3}, 384",
                  f"v_cndmask_b32 v{u+2}, v{u+3}, v{u+2}, vcc", f"v_cndmask_b32 v{vDB}, v{u+3}, v{vDB}, vcc"]
            for k, l in enumerate(L_): put(f, 13 + k // 2, l)
            put(f, 17, [f"s_mov_b32 s{S_KV}, s{P_WO}", f"s_mov_b32 s{S_KV+1}, s{P_WO+1}", f"s_mov_b32 s{S_KV+2}, {1024*2048}"])
            put(f, 19, VM(f"buffer_load_dwordx4 {CB}, v{u+2}, {srd(S_KV)}, s{sT3} offen", "CL"))
            put(f, 20, [f"s_lshl_b32 s{sCWb}, s{sT2}, 8", f"s_add_u32 s{sCWb}, s{sCWb}, {CW_OFF + 3584*256}", f"s_mov_b32 s{sCWa}, {CW_OFF}"])
        if ph == 0 and QPOLL:
            for r in range(4): put(f, 2 + r, f"v_mov_b32 v{u+r}, -1")
            put(f, 5, [f"s_lshl_b32 s{sKVst}, s{sRB}, 5", f"s_add_u32 s{sKVst}, s{sKVst}, s{sCB}", f"s_lshl_b32 s{sKVst}, s{sKVst}, 2"])
            put(f, 7, [f"s_add_u32 s{sKVst}, s{sKVst}, s{sW}", f"s_lshl_b32 s{sKVst}, s{sKVst}, 12", f"s_add_u32 s{sKVst}, s{sKVst}, {QF4_OFF}"])
            for r in range(4): put(f, [13, 15, 21, 23][r], VM(f"buffer_store_dwordx4 v[{u}:{u+3}], {vL16}, {srd(S_WS)}, s{sKVst} offen offset:{r*1024} {SC1}", "QP"))
        if ph == 0:
            put(f, 25, dbgsrd)
            put(f, 21, [f"s_lshl_b32 s{sT2}, s{sW}, 10", f"s_add_u32 s{sT2}, s{sT2}, {PSC}"]); put(f, 23, f"v_add_u32 v{vP}, s{sT2}, {vL16}")
            put(f, 27, kvaddr)
        if ph == 1:
            put(f, 3, f"ds_write_b128 v{vP}, {sacc}")
            put(f, 5, VM(nload, "N"))
            put(f, 11, f"v_xor_b32 v{vP}, 0x800, v{vP}")
            for r in range(4): put(f, 13 + 2*r, f"v_accvgpr_read_b32 v{u+r}, {sacc[r]}")
    def hookS9(ph, f, BG):
        if ph == 0 and CW:
            put(f, 5, [Need(["CL"]), VM(f"buffer_store_dwordx4 {CA}, v{vDA}, {srd(S_WS)}, s{sCWa} offen {SC1}", "CS")])
            put(f, 13, VM(f"buffer_store_dwordx4 {CB}, v{vDB}, {srd(S_WS)}, s{sCWb} offen {SC1}", "CS"))
        if ph == 0:
            put(f, 1, f"ds_read_b128 {PT}, v{vP}")
            put(f, 11, "s_waitcnt lgkmcnt(5)")
            for r in range(4): put(f, 11 + 2*r, f"v_accvgpr_read_b32 v{vFA}, {PT[r]}"); put(f, 12 + 2*r, f"v_add_f32 v{u+r}, v{u+r}, v{vFA}")
            put(f, 21, f"v_cvt_pk_bf16_f32 v{u}, v{u}, v{u+1}"); put(f, 23, f"v_cvt_pk_bf16_f32 v{u+1}, v{u+2}, v{u+3}")
            put(f, 27, kvwr)
            put(f, 29, f"v_lshrrev_b32 v{vP}, 3, {vL}"); put(f, 31, f"v_and_b32 v{vFA}, 7, {vL}")
            put(f, 35, f"v_lshlrev_b32 v{vFA}, 4, v{vFA}"); put(f, 37, f"v_lshl_add_u32 v{vP}, v{vP}, 8, v{vFA}")
            put(f, 41, [f"s_bfe_u32 s{sT2}, s{sCB}, 0x10001", f"s_lshl_b32 s{sT2}, s{sT2}, 7"])
            put(f, 43, f"v_add_u32 v{vP}, s{sT2}, v{vP}")
            put(f, 44, f"v_add_u32 v{vKA}, {KR}, v{vP}")
        if ph == 1:
            put(f, 3, f"ds_read_b128 {KT}, v{vKA}")
            put(f, 5, [f"s_lshl_b32 s{sKVst}, s{sRB}, 3", f"s_lshr_b32 s{sT2}, s{sCB}, 2", f"s_add_u32 s{sKVst}, s{sKVst}, s{sT2}"])
            put(f, 7, [f"s_lshl_b32 s{sKVst}, s{sKVst}, 1", f"s_and_b32 s{sT2}, s{sCB}, 1", f"s_add_u32 s{sKVst}, s{sKVst}, s{sT2}"])
            put(f, 11, [f"s_lshl_b32 s{sKVst}, s{sKVst}, 11", f"s_add_u32 s{sKVst}, s{sKVst}, {KV_OFF}", f"s_lshl_b32 s{sEfl}, s{sRB}, 5"])
            put(f, 13, [f"s_add_u32 s{sEfl}, s{sEfl}, s{sCB}", f"s_lshl_b32 s{sEfl}, s{sEfl}, 2", f"s_add_u32 s{sEfl}, s{sEfl}, {FL_E}"])
            put(f, 15, [f"s_cmp_eq_u32 s{sW}, 0", f"s_cselect_b32 s{sKVst}, s{sKVst}, {HUGE}", f"s_cselect_b32 s{sEfl}, s{sEfl}, {HUGE}"])
            put(f, 19, f"v_mul_u32_u24 v{vFA}, {FL_ES}, {vL}")
            put(f, 21, ["s_waitcnt lgkmcnt(9)", VM(f"buffer_store_dwordx4 {KT}, v{vP}, {srd(S_WS)}, s{sKVst} offen {SC1}", "KS")])
    def hookS10(ph, f, BG):
        if ph == 1:
            put(f, 27, [Need(["KS", "N"]), f"v_readfirstlane_b32 s{sNonce}, v{vN}", f"s_cmp_eq_u32 s{sNonce}, 0", "s_cbranch_scc1 P1_SLOWN", "P1_NOK:",
                       "s_mov_b64 exec, 0xff", VM(f"buffer_store_dword v{vN}, v{vFA}, {srd(S_WS)}, s{sEfl} offen sc1", "EF"), "s_mov_b64 exec, -1", "s_nop 2"])
    sKVo, sM0 = sL + 3, sL + 4
    S_KVD = S_C
    vE = Reg("v", 28, 4)
    epoll = f"buffer_load_dwordx4 {vE}, {vL16}, {srd(S_WS)}, s{sEfl} offen sc1"
    def kvdma0(slotoff):
        L = []
        for e in range(8):
            pre = []
            if e == 0: pre = [f"s_add_u32 m0, s{sM0}, {slotoff}"]
            if e == 4: pre = [f"s_add_u32 m0, m0, 4096", f"s_add_u32 s{sKVo}, s{sKVo}, 4096"]
            L.append((pre, VM(f"buffer_load_dwordx4 {vL16}, {srd(S_KVD)}, s{sKVo} offen offset:{(e&3)*1024} {SC1} lds", "KV")))
        return L
    def hookS14(ph, f, BG):
        if ph == 0:
            put(f, 5, [f"s_bfe_u32 s{sEfl}, s2, 0x30003", f"s_mul_i32 s{sEfl}, s{sEfl}, {FL_ES}", f"s_add_u32 s{sEfl}, s{sEfl}, {FL_E}"])
            put(f, 45, VM(epoll, "N"))
            put(f, 11, [f"s_mov_b32 s{S_KVD}, s{P_WS}", f"s_mov_b32 s{S_KVD+1}, s{P_WS+1}", f"s_mov_b32 s{S_KVD+2}, {KV_OFF + 262144}"])
            put(f, 13, [f"s_lshl_b32 s{sM0}, s{sW}, 13", f"s_add_u32 s{sKVo}, s{sM0}, {KV_OFF}"])
        if ph == 1: put(f, 51, [Need(["N"])] + echeck() + ["s_cbranch_scc0 P1_SLOWE", "P1_EOK:"])
    def echeck():
        return [f"v_xor_b32 {vE[0]}, {vE[0]}, v{vN}", f"v_xor_b32 {vE[1]}, {vE[1]}, v{vN}", f"v_xor_b32 {vE[2]}, {vE[2]}, v{vN}", f"v_xor_b32 {vE[3]}, {vE[3]}, v{vN}",
                f"v_or3_b32 {vE[0]}, {vE[0]}, {vE[1]}, {vE[2]}", f"v_or_b32 {vE[0]}, {vE[0]}, {vE[3]}", f"v_cmp_eq_u32 vcc, 0, {vE[0]}", "s_nop 0", "s_cmp_eq_u64 vcc, -1"]
    def hookS15(ph, f, BG):
        dg = [5, 11, 17, 23, 29, 35, 41, 46]
        if ph == 0:
            for k, (pre, d) in enumerate(kvdma0(32768*ph)):
                if pre: put(f, dg[k] - 1, pre)
                put(f, dg[k], d)
            put(f, 47, f"s_add_u32 s{sKVo}, s{sKVo}, {32768 - 4096}")
    z = [7, 8]; vOne = 23
    gv = [f"v_mov_b32 v{vOne}, 0x3f803f80", f"v_mov_b32 v{z[0]}, 0", f"v_mov_b32 v{z[1]}, 0", None]
    for k in range(8):
        gv += [f"v_accvgpr_read_b32 v26, {GWa[k]}", f"v_accvgpr_read_b32 v28, {GXa[0][k]}", f"v_accvgpr_read_b32 v30, {GXa[1][k]}",
               "v_and_b32 v27, 0xffff0000, v26", "v_and_b32 v29, 0xffff0000, v28", "v_and_b32 v31, 0xffff0000, v30",
               "v_lshlrev_b32 v26, 16, v26", "v_lshlrev_b32 v28, 16, v28", "v_lshlrev_b32 v30, 16, v30",
               "v_mul_f32 v29, v29, v27", "v_mul_f32 v31, v31, v27", "v_mul_f32 v28, v28, v26", "v_mul_f32 v30, v30, v26",
               "v_cvt_pk_bf16_f32 v28, v28, v29", "v_cvt_pk_bf16_f32 v30, v30, v31",
               f"v_dot2_f32_bf16 v{z[0]}, v28, v{vOne}, v{z[0]}", f"v_dot2_f32_bf16 v{z[1]}, v30, v{vOne}, v{z[1]}"]
    gv += [None, None]
    P2_ = lambda fmt: [fmt(r) for r in range(2)]
    for sh in (8, 4, 2, 1): gv += P2_(lambda r: f"v_add_f32_dpp v{z[r]}, v{z[r]}, v{z[r]} row_ror:{sh} row_mask:0xf bank_mask:0xf")
    for sw in ("16", "32"):
        gv += P2_(lambda r: f"v_mov_b32 v{28+r}, v{z[r]}") + P2_(lambda r: f"v_permlane{sw}_swap_b32 v{z[r]}, v{28+r}") + P2_(lambda r: f"v_add_f32 v{z[r]}, v{z[r]}, v{28+r}")
    gv += P2_(lambda r: f"v_cvt_pk_bf16_f32 v{z[r]}, v{z[r]}, v{z[r]}") + P2_(lambda r: f"v_and_b32 v{z[r]}, 0xffff0000, v{z[r]}")
    gv += P2_(lambda r: f"v_mul_f32 v{z[r]}, {f2u(-LOG2E):#x}, v{z[r]}") + [f"v_exp_f32 v{z[0]}, v{z[0]}", None, f"v_exp_f32 v{z[1]}, v{z[1]}", None]
    gv += P2_(lambda r: f"v_add_f32 v{z[r]}, 1.0, v{z[r]}") + [f"v_rcp_f32 v{z[0]}, v{z[0]}", None, f"v_rcp_f32 v{z[1]}, v{z[1]}", None]
    gv += P2_(lambda r: f"v_cvt_pk_bf16_f32 v{z[r]}, v{z[r]}, v{z[r]}") + P2_(lambda r: f"v_and_b32 v{26+r}, 0xffff0000, v{z[r]}")
    gq = [gv[k:k+2] for k in range(0, len(gv), 2)]
    def hookS11(ph, f, BG):
        if ph == 0:
            put(f, 2, [f"s_mov_b32 s{S_KV}, s{P_GW}", f"s_mov_b32 s{S_KV+1}, s{P_GW+1}"]); put(f, 3, f"s_mov_b32 s{S_KV+2}, 2048")
            put(f, 5, VM(f"buffer_load_dwordx4 {GWa.sub(0,4)}, {vL16}, {srd(S_KV)}, 0 offen", "GL"))
            put(f, 7, VM(f"buffer_load_dwordx4 {GWa.sub(4,4)}, {vL16}, {srd(S_KV)}, 0 offen offset:1024", "GL"))
            put(f, 10, [f"s_mov_b32 s{S_KV}, s{P_X}", f"s_mov_b32 s{S_KV+1}, s{P_X+1}"]); put(f, 11, [f"s_mov_b32 s{S_KV+2}, 0x400000", f"s_lshl_b32 s{sT2}, s{sRB}, 5"])
            put(f, 12, [f"s_add_u32 s{sT2}, s{sT2}, s{sCB}", f"s_lshl_b32 s{sT2}, s{sT2}, 2"]); put(f, 13, [f"s_add_u32 s{sT2}, s{sT2}, s{sW}", f"s_lshl_b32 s{sT1}, s{sT2}, 3"])
            put(f, 14, [f"s_lshl_b32 s{sT2}, s{sT2}, 12", f"s_add_u32 s{sT1}, s{sT1}, {G_OFF}"])
            for k in range(4):
                put(f, [15, 21, 29, 37][k], VM(f"buffer_load_dwordx4 {GXa[k>>1].sub(4*(k&1),4)}, {vL16}, {srd(S_KV)}, s{sT2} offen offset:{k*1024}", "GL"))
    def hookG(ph, f, BG, first=False):
        if first and ph == 0: return
        for g_ in range(1, BG - 1):
            cur = flat(f.get(g_, []))
            busy = any(is_vmem(x) or x.startswith(("v_", "ds_")) for x in cur)
            if gq and not busy: put(f, g_, [x for x in gq.pop(0) if x])
    def hookS12(ph, f, BG): hookG(ph, f, BG, True)
    def hookS14g(ph, f, BG):
        if ph == 0:
            hookG(ph, f, 38)
            assert not gq, len(gq)
            put(f, 41, ["s_mov_b64 exec, 1", VM(f"buffer_store_dwordx2 v[26:27], v{vZ}, {srd(S_WS)}, s{sT1} offen sc1", "GS"), "s_mov_b64 exec, -1", "s_nop 2"])
        hookS14(ph, f, BG)
    hooks = {8: hookS8, 9: hookS9, 10: hookS10, 11: hookS11, 12: hookS12, 13: hookG, 14: hookS14g, 15: hookS15}
    cpsteps = opt.get("cps", [0, 3, 7, 11, 14])
    h1 = list(pro_hist)
    for st in range(16):
        S_ = resolve_waits(step(st, hooks.get(st), st in cpsteps), h1)
        h1 += S_
        A.ext(ts.at(f"s{st}"))
        if st == 15: A(f"s_cmp_eq_u32 s{sIsB}, 1\ns_cbranch_scc1 P1_EPIB")
        if st == 14: S14 = S_
        A.ext(S_)
        if st == 10: A("s_branch P1_CONT"); A.ext(ool.lines); A("P1_CONT:")
    S15 = S_
    probs += check_hazards(A.lines, "p1")
    slow1 = Asm()
    slow1(f"""P1_SLOWN:
    s_mov_b32 s{sT2}, {SPIN_MAX}
    P1_SLOWN_L:
    {nload}
    s_waitcnt vmcnt(0)
    v_readfirstlane_b32 s{sNonce}, v{vN}
    s_cmp_lg_u32 s{sNonce}, 0
    s_cbranch_scc1 P1_NOK
    s_sleep 4
    s_sub_u32 s{sT2}, s{sT2}, 1
    s_cmp_lg_u32 s{sT2}, 0
    s_cbranch_scc1 P1_SLOWN_L
    s_endpgm
    P1_SLOWE:
    s_mov_b32 s{sT0}, {SPIN_MAX}
    P1_SLOWE_L:
    {epoll}
    s_waitcnt vmcnt(0)""")
    slow1.ext(echeck())
    slow1(f"""s_cbranch_scc1 P1_EOK
    s_sleep 4
    s_sub_u32 s{sT0}, s{sT0}, 1
    s_cmp_lg_u32 s{sT0}, 0
    s_cbranch_scc1 P1_SLOWE_L
    s_endpgm""")

    va = Alloc("v", 3, 256)
    vCur = va.get(1); vNxt = va.get(1); vZero = va.get(1); vNon = va.get(1); vQP = va.get(1)
    T = va.get(12, 4)
    S = [va.get(16, 4) for _ in range(2)]
    P = [va.get(8, 4) for _ in range(2)]
    O = [va.get(16, 4) for _ in range(2)]
    Lc = [va.get(4, 4) for _ in range(2)]
    SCL = va.get(8, 4)
    acc3 = [[va.get(4, 4) for j in range(8)] for i in range(4)]
    vW3o = va.get(1); vW3a = [va.get(1) for _ in range(4)]; vPF = va.get(1); vG = va.get(2, 2); vFl = va.get(4, 4)
    NEG = [Reg("v", acc3[0][0].base + 16*k, 16) for k in range(2)]
    aa = Alloc("a", 0, 180)
    RX = [[aa.get(4, 4) for j in range(8)] for s in range(4)]
    Q = [[aa.get(4, 4) for t in range(2)] for ab in range(2)]
    K = [[aa.get(4, 4) for t in range(2)] for b in range(2)]
    V = [[aa.get(4, 4) for t in range(2)] for b in range(2)]
    ONES = aa.get(4, 4)
    RW = [[Reg("a", 220 + 16*s + 4*i, 4) for i in range(4)] for s in range(2)]
    QXB = 98304
    W3B = 98304

    E = Asm()
    E.ext(ts.at("p1end"))
    sO, sO1, sO2 = 0, 1, 3
    sC = sL + 1
    sQf = 14
    tA = [Reg("v", 20, 4), Reg("v", 28, 4)]
    PKE = opt.get("pke", 0)
    def hmath(pairs, dst, pk=True):
        L = []
        for Gx, U in pairs:
            for r in range(4): L.append(f"v_max_f32 {Gx[r]}, 0, {Gx[r]}")
        for Gx, U in pairs:
            if pk:
                for r in (0, 2): L.append(f"v_pk_mul_f32 {Gx.sub(r,2)}, {Gx.sub(r,2)}, {U.sub(r,2)}")
            else:
                for r in range(4): L.append(f"v_mul_f32 {Gx[r]}, {Gx[r]}, {U[r]}")
        for k, (Gx, U) in enumerate(pairs):
            L.append(f"v_cvt_pk_bf16_f32 {dst[2*k]}, {Gx[0]}, {Gx[1]}"); L.append(f"v_cvt_pk_bf16_f32 {dst[2*k+1]}, {Gx[2]}, {Gx[3]}")
        return L
    gl = Asm()
    gl(f"""s_mov_b32 s{S_A}, s{P_X}
    s_mov_b32 s{S_A+1}, s{P_X+1}
    s_mov_b32 s{S_A+2}, 0x400000
    s_mov_b32 s{S_B}, s{P_GW}
    s_mov_b32 s{S_B+1}, s{P_GW+1}
    s_mov_b32 s{S_B+2}, 2048
    s_lshl_b32 s{sT2}, s{sRB}, 5
    s_add_u32 s{sT2}, s{sT2}, s{sCB}
    s_lshl_b32 s{sT2}, s{sT2}, 2
    s_add_u32 s{sT2}, s{sT2}, s{sW}
    s_lshl_b32 s{sT2}, s{sT2}, 12""")
    for h in range(2): gl(f"buffer_load_dwordx4 {GWa.sub(4*h,4)}, {vL16}, {srd(S_B)}, 0 offen offset:{h*1024}")
    for r in range(2):
        for h in range(2):
            gl(f"buffer_load_dwordx4 {GXa[r].sub(4*h,4)}, {vL16}, {srd(S_A)}, s{sT2} offen offset:{r*2048 + h*1024}")
    def merge(mf, items, rate, fixed=None):
        out = []; k = 0
        for g, m_ in enumerate(mf):
            out.append(m_)
            n = 0; seenv = False
            if fixed and g in fixed: out.extend(fixed[g]); n += len(fixed[g])
            while k < len(items) and items[k][0] <= g and n < rate:
                x_ = items[k][1]
                if is_vmem(x_) and seenv: break
                seenv |= x_.startswith("v_")
                out.append(x_); k += 1; n += 1
        if k < len(items): out.append("s_nop 7")
        return out + [x[1] for x in items[k:]]
    mm1 = lambda i, j: f"v_mfma_f32_16x16x32_bf16 {acc[i][j]}, {RA[1][i]}, {RB[1][j]}, {acc[i][j]}"
    kv1 = []
    for pre, d in kvdma0(32768): kv1 += pre + (["s_nop 0"] if pre else []) + [d]
    kv1.append(f"s_add_u32 s{sKVo}, s{sKVo}, {32768 - 4096}")
    head = Asm()
    head(f"""s_lshr_b32 s{sT0}, s{sW}, 1
    s_and_b32 s{sT1}, s{sW}, 1
    s_lshl_b32 s{sO}, s{sRB}, 4
    s_lshl_b32 s{sT2}, s{sT0}, 3
    s_add_u32 s{sO}, s{sO}, s{sT2}
    s_lshl_b32 s{sO}, s{sO}, 11
    s_add_u32 s{sO}, s{sO}, {AF2_OFF}
    s_lshr_b32 s{sT2}, s{sCB}, 2
    s_mul_i32 s{sO1}, s{sT2}, 14
    s_and_b32 s{sT3}, s{sCB}, 3
    s_lshl_b32 s{sT3}, s{sT3}, 2
    s_add_u32 s{sO1}, s{sO1}, s{sT3}
    s_add_u32 s{sO1}, s{sO1}, s{sT1}""")
    LAG = 5
    it = [(0, l) for l in head.lines]
    it += [(0, l) for l in (f"s_add_u32 s{sO1}, s{sO1}, s{sT1}", f"s_mul_i32 s{sO1}, s{sO1}, {AFS2}", f"s_add_u32 s{sO}, s{sO}, s{sO1}", f"s_add_u32 s{sO2}, s{sO}, {AFS2}")]
    kq = list(kv1)
    for j in range(8):
        g_ = 8*j + 7 + LAG
        Tt = tA[j % 2]
        L_ = hmath([(acc[0][j], acc[4][j]), (acc[1][j], acc[5][j])], acc[4][j], PKE or j >= opt.get('pkj', 8))
        L_ += [f"v_accvgpr_read_b32 {Tt[r]}, {acc[7][j][r]}" for r in range(4)]
        L_ += hmath([(acc[2][j], acc[6][j]), (acc[3][j], Tt)], acc[5][j], PKE or j >= opt.get('pkj', 8))
        it += [(g_, l) for l in L_]
        while kq:
            x_ = kq.pop(0); it.append((g_, x_))
            if is_vmem(x_): break
    it += [(64, l) for l in kq]
    EA = merge([mm1(i, j) for j in range(8) for i in range(8)], it, opt.get("rateA", 5))
    E.ext(EA)
    E("s_branch P1_EPID\nP1_EPIB:")
    hb = Asm()
    hb(f"""s_mul_i32 s{sO1}, s{sO1}, {AFS2}
    s_add_u32 s{sO}, s{sO}, s{sO1}
    s_mov_b32 s{sO2}, {HUGE}
    s_lshl_b32 s{sQf}, s{sRB}, 3
    s_add_u32 s{sQf}, s{sQf}, s{sT2}
    s_lshl_b32 s{sQf}, s{sQf}, 2
    s_lshl_b32 s{sT1}, s{sT1}, 1
    s_add_u32 s{sT2}, s{sQf}, s{sT1}
    s_lshl_b32 s{sT2}, s{sT2}, 1
    s_add_u32 s{sT2}, s{sT2}, s{sT0}
    s_lshl_b32 s{sT2}, s{sT2}, 14
    s_add_u32 s{sT0}, s{sT2}, {QF5_OFF}
    s_add_u32 s{sT1}, s{sT0}, 32768
    v_cmp_lt_u32 vcc, 23, {vL}
    v_add_u32 v26, 128, {vL16}
    s_nop 0
    v_cndmask_b32 v26, {vL16}, v26, vcc
    s_add_u32 s{sQf}, s{sQf}, s{sW}
    s_lshl_b32 s{sQf}, s{sQf}, 8
    s_add_u32 s{sQf}, s{sQf}, {FL_Q}
    s_mov_b32 s{sC}, {f2u(QSCALE):#x}
    s_mov_b32 s{sC+1}, {f2u(QSCALE):#x}""")
    it = [(0, l) for l in head.lines + hb.lines]
    for j in range(8):
        g_ = 32 + 4*j + 3 + LAG
        for hh in range(2):
            F0, F1 = acc[4 + 2*hh][j], acc[5 + 2*hh][j]
            L_ = []
            if F1.f == "a":
                Tt = tA[j % 2]
                L_ += [f"v_accvgpr_read_b32 {Tt[r]}, {F1[r]}" for r in range(4)]
                F1 = Tt
            for F in (F0, F1):
                if PKE:
                    for r in (0, 2): L_.append(f"v_pk_mul_f32 {F.sub(r,2)}, {F.sub(r,2)}, s[{sC}:{sC+1}]")
                else:
                    for r in range(4): L_.append(f"v_mul_f32 {F[r]}, s{sC}, {F[r]}")
            L_ += [f"v_cvt_pk_bf16_f32 {F0[0]}, {F0[0]}, {F0[1]}", f"v_cvt_pk_bf16_f32 {F0[1]}, {F0[2]}, {F0[3]}",
                   f"v_cvt_pk_bf16_f32 {F0[2]}, {F1[0]}, {F1[1]}", f"v_cvt_pk_bf16_f32 {F0[3]}, {F1[2]}, {F1[3]}",
                   f"buffer_store_dwordx4 {F0}, v26, {srd(S_WS)}, s{sT0 + hh} offen offset:{(j&1)*2048} {SC1}"]
            if j & 1: L_.append(f"s_add_u32 s{sT0 + hh}, s{sT0 + hh}, 4096")
            it += [(g_, l) for l in L_]
    mm0 = lambda i, j: f"v_mfma_f32_16x16x32_bf16 {acc[i][j]}, {RA[0][i]}, {RB[0][j]}, {acc[i][j]}"
    fx = {}
    rd_ = reads(31, 1, False)
    for k, r in enumerate(rd_[:8] + rd_[16:24] + rd_[8:16]): put(fx, k, r)
    k = 0
    for pre, d in kvdma0(0):
        if pre: put(fx, 23 + k, pre)
        put(fx, 24 + k, d); k += 1
    put(fx, 31, [f"s_add_u32 s{sKVo}, s{sKVo}, {32768 - 4096}", "s_waitcnt lgkmcnt(0)", "s_barrier"])
    EB = merge([mm0(i, j) for i in range(4, 8) for j in range(8)] + [mm1(i, j) for j in range(8) for i in range(4, 8)] +
               [mm0(i, j) for i in range(4) for j in range(8)] + [mm1(i, j) for j in range(8) for i in range(4)], it, opt.get("rateB", 3), fx)
    E.ext(EB)
    E.ext(kv1)
    for j in range(8):
        E.ext(hmath([(acc[0][j], acc[2][j]), (acc[1][j], acc[3][j])], acc[4][j]))
    E(f"""s_waitcnt vmcnt(8)
    s_mov_b64 exec, 1
    buffer_store_dword v{vN}, v{vZ}, {srd(S_WS)}, s{sQf} offen sc1
    s_mov_b64 exec, -1
    P1_EPID:""")
    probs += check_hazards(S15[-20:] + EA, "epiA") + check_hazards(S14[-20:] + E.lines[E.lines.index("P1_EPIB:"):], "epiB")
    E.ext(ts.at("kvdone"))
    vAF = T[9]
    def hstore(reg, so, j):
        return [VM(f"buffer_store_dwordx4 {reg}, {vAF}, {srd(S_WS)}, s{so} offen offset:{(j&1)*2048} {SC1}", "H")] + ([f"s_add_u32 s{so}, s{so}, 4096"] if j & 1 else [])
    hst0 = [hstore(acc[4][j], sO, j) for j in range(8)]
    hst1a = [hstore(acc[5][j], sO2, j) for j in range(8)]
    A.ext(E.lines)

    B = Asm()
    sCur, sNext, sFree, sFl = sL, sL + 1, sL + 2, sL + 5
    B(f"""v_mov_b32 {vNon}, s{sNonce}
    v_mov_b32 {vZero}, 0
    v_bfe_u32 {T[0]}, {vL}, 4, 1
    v_and_b32 {T[1]}, 15, {vL}
    v_lshrrev_b32 {T[2]}, 5, {vL}
    v_lshl_add_u32 {T[1]}, {T[2]}, 4, {T[1]}
    v_lshlrev_b32 {T[1]}, 4, {T[1]}
    v_lshl_add_u32 {vQP}, {T[0]}, 11, {T[1]}""")
    S_PF, sPF = S_E, 8
    pfop = [VM(f"buffer_load_dword a252, {vPF}, {srd(S_PF)}, s{sPF} offen", "PF"), f"s_add_u32 s{sPF}, s{sPF}, 0x100000"] if PF else []
    for ab in range(2):
        for r in range(16): B(f"v_mov_b32 {O[ab][r]}, 0")
        for r in range(4): B(f"v_mov_b32 {Lc[ab][r]}, 0")
    for r in range(8): B(f"v_mov_b32 {P[1][r]}, 0")
    for t in range(2):
        for r in range(4): B(f"v_accvgpr_write_b32 {V[1][t][r]}, 0")
    vIdx = T[10]
    B(f"""v_bfe_u32 {T[4]}, {vL}, 2, 1
    v_cmp_eq_u32 vcc, 0, {T[4]}
    v_mov_b32 {T[5]}, 0x3f803f80
    v_mov_b32 {vCur}, {vL16}
    v_cndmask_b32 {T[4]}, 0, {T[5]}, vcc
    v_cndmask_b32 {T[5]}, {T[5]}, 0, vcc
    v_add_u32 {vNxt}, 32768, {vL16}
    v_and_b32 {vIdx}, 1, {vL}
    v_mul_u32_u24 {vIdx}, 0xaaaa, {vIdx}
    v_add_u32 {vIdx}, 0x4444, {vIdx}
    v_cmp_lt_u32 vcc, 23, {vL}
    v_add_u32 {vAF}, 128, {vL16}
    s_nop 0
    v_cndmask_b32 {vAF}, {vL16}, {vAF}, vcc""".replace(f"v_cndmask_b32 {T[5]}, {T[5]}, 0, vcc", f"v_xor_b32 {T[5]}, {T[5]}, {T[4]}"))
    for r in range(4): B(f"v_accvgpr_write_b32 {ONES[r]}, {T[4 + (r >> 1)]}")
    def lsum(o): return f"v_smfmac_f32_16x16x64_bf16 {Lc[o]}, {ONES}, {P[o]}, {vIdx}"
    B("; @@SETUP3@@")
    B(f"""s_mov_b32 s{sCur}, 0
    s_mov_b32 s{sNext}, 32768
    s_mov_b32 s{sFree}, 65536
    s_add_u32 s{sL+14}, s{sM0}, 65536
    s_lshl_b32 s{sFl}, s{sRB}, 2
    s_add_u32 s{sFl}, s{sFl}, s{sW}
    s_lshl_b32 s{sFl}, s{sFl}, 6
    s_add_u32 s{sFl}, s{sFl}, s{sCB}
    s_lshl_b32 s{sFl}, s{sFl}, 2
    s_add_u32 s{sFl}, s{sFl}, {FL_H}
    s_lshl_b32 s{sT1}, s{sRB}, 3
    s_lshr_b32 s{sT2}, s{sCB}, 2
    s_add_u32 s{sT1}, s{sT1}, s{sT2}
    s_lshl_b32 s{sT1}, s{sT1}, 2
    s_and_b32 s{sT2}, s{sW}, 2
    s_add_u32 s{sT1}, s{sT1}, s{sT2}
    s_bfe_u32 s{sT2}, s{sCB}, 0x10001
    s_add_u32 s{sT1}, s{sT1}, s{sT2}
    s_lshl_b32 s{sT1}, s{sT1}, 8
    s_add_u32 s{sT1}, s{sT1}, {FL_Q}
    s_lshl_b32 s{sQf}, s{sRB}, 5
    s_add_u32 s{sQf}, s{sQf}, s{sCB}
    s_lshl_b32 s{sQf}, s{sQf}, 2
    s_add_u32 s{sQf}, s{sQf}, s{sW}
    s_lshl_b32 s{sQf}, s{sQf}, 13
    s_add_u32 s{sQf}, s{sQf}, {QF5_OFF}
    s_add_u32 s{sT3}, s{sQf}, 4096""")
    def check(regs):
        if len(regs) == 4:
            return [f"v_xor_b32 {r}, {r}, {vNon}" for r in regs] + [f"v_or3_b32 {regs[0]}, {regs[0]}, {regs[1]}, {regs[2]}", f"v_or_b32 {regs[0]}, {regs[0]}, {regs[3]}",
                    f"v_cmp_eq_u32 vcc, 0, {regs[0]}", "s_nop 0", "s_cmp_eq_u64 vcc, -1"]
        L = [f"v_cmp_eq_u32 vcc, s{sNonce}, {regs[0]}"]
        if len(regs) > 1: L += [f"v_cmp_eq_u32 s[{sT2}:{sT3}], s{sNonce}, {regs[1]}", "s_nop 0", f"s_and_b64 vcc, vcc, s[{sT2}:{sT3}]"]
        else: L += ["s_nop 0"]
        return L + ["s_cmp_eq_u64 vcc, -1"]
    def spin(label, load, regs, back=None):
        L = [f"s_mov_b32 s{sT0}, {SPIN_MAX}", f"{label}_L:", load, "s_waitcnt vmcnt(0)"] + check(regs)
        L += [f"s_cbranch_scc1 {back or label + '_OK'}", f"s_sleep {4 if back else 1}", f"s_sub_u32 s{sT0}, s{sT0}, 1",
              f"s_cmp_lg_u32 s{sT0}, 0", f"s_cbranch_scc1 {label}_L", "s_endpgm"]
        if not back: L.append(f"{label}_OK:")
        return L
    B.ext(ts.at("poll0"))
    B(f"""v_and_b32 {T[2]}, 40, {vL}
    v_cmp_eq_u32 vcc, 40, {T[2]}
    v_add_u32 {T[3]}, 128, {vQP}
    s_nop 0
    v_cndmask_b32 {T[2]}, {vQP}, {T[3]}, vcc""")
    qld = lambda dst: [f"buffer_load_dwordx4 {dst(ab, t)}, {T[2+t]}, {srd(S_WS)}, s{[sQf, sT3][ab]} offen offset:{t*512} {SC1}" for ab in range(2) for t in range(2)]
    if QPOLL:
        QV = S[1]
        B(f"s_mov_b32 s{sT0}, {SPIN_MAX}\nP2_QL:")
        B(f"buffer_load_dword {T[8]}, {vZero}, {srd(S_WS)}, s{sT1} offen sc1")
        B.ext(qld(lambda ab, t: QV.sub(8*ab + 4*t, 4)))
        B("s_waitcnt vmcnt(0)")
        B(f"v_max3_u32 {T[9]}, {QV[0]}, {QV[1]}, {QV[2]}")
        for k in range(3, 15, 2): B(f"v_max3_u32 {T[9]}, {QV[k]}, {QV[k+1]}, {T[9]}")
        B(f"""v_max_u32 {T[9]}, {QV[15]}, {T[9]}
        v_cmp_eq_u32 vcc, -1, {T[9]}
        v_readfirstlane_b32 s{sT2}, {T[8]}
        s_nop 0
        s_cmp_eq_u64 vcc, 0
        s_cbranch_scc1 P2_QOK
        s_cmp_eq_u32 s{sT2}, s{sNonce}
        s_cbranch_scc1 P2_QRE
        s_sub_u32 s{sT0}, s{sT0}, 1
        s_cmp_lg_u32 s{sT0}, 0
        s_cbranch_scc1 P2_QL
        s_endpgm
        P2_QRE:""")
        B.ext(qld(lambda ab, t: QV.sub(8*ab + 4*t, 4)))
        B("s_waitcnt vmcnt(0)\nP2_QOK:")
        B.ext(ts.at("poll1"))
        for ab in range(2):
            for t in range(2):
                for r in range(4): B(f"v_accvgpr_write_b32 {Q[ab][t][r]}, {QV[8*ab + 4*t + r]}")
    else:
        B.ext(spin("P2_POLL", f"buffer_load_dword {T[8]}, {vZero}, {srd(S_WS)}, s{sT1} offen sc1", [T[8]]))
        B.ext(ts.at("poll1"))
        B.ext(qld(lambda ab, t: Q[ab][t]))
    B("s_barrier")
    def kvdma(slot, tag):
        L = []
        for e in range(8):
            pre = []
            if e == 0: pre = [f"s_add_u32 m0, s{slot}, s{sM0}"]
            if e == 4: pre = [f"s_add_u32 s{sT0}, s{slot}, s{sM0}", f"s_add_u32 m0, s{sT0}, 4096", f"s_add_u32 s{sKVo}, s{sKVo}, 4096"]
            L.append((pre, VM(f"buffer_load_dwordx4 {vL16}, {srd(S_KVD)}, s{sKVo} offen offset:{(e&3)*1024} {SC1} lds", tag)))
        return L
    post_dma = f"s_add_u32 s{sKVo}, s{sKVo}, {32768 - 4096}"
    B(f"""ds_read_b128 {K[0][0]}, {vCur}
    ds_read_b128 {K[0][1]}, {vCur} offset:1024
    ds_read_b128 {V[0][0]}, {vCur} offset:2048
    ds_read_b128 {V[0][1]}, {vCur} offset:3072""")
    hist = list(S15) + list(EA) + list(B.lines)
    B(f"""s_waitcnt vmcnt(0) lgkmcnt(0)
    v_mfma_f32_32x32x16_bf16 {S[0]}, {K[0][0]}, {Q[0][0]}, 0
    v_mfma_f32_32x32x16_bf16 {S[0]}, {K[0][1]}, {Q[0][1]}, {S[0]}""")
    B.ext(ts.at("att"))
    B("s_nop 7\ns_nop 3")

    NS = 4
    S_AF, S_W3, S_OUT = S_A, S_B, S_D
    sMT, sNT = sL + 6, sL + 7
    sAo = sL + 8
    sSo3 = sL + 9
    sM3 = sL + 13
    sWo, sWoN = 30, 15
    sX3 = 16
    sSh, sAdv, sAdv28 = 10, 18, 19
    setup3 = Asm()
    MAP48 = opt.get("map48", 0)
    if MAP48:
        setup3(f"""s_and_b32 s{sT0}, s{sRB}, 4
        s_add_u32 s{sMT}, s{sRB}, s{sT0}
        s_bfe_u32 s{sT0}, s{sCB}, 0x10003
        s_lshl2_add_u32 s{sMT}, s{sT0}, s{sMT}
        s_lshr_b32 s{sT0}, s{sCB}, 4
        s_and_b32 s{sT1}, s{sCB}, 7
        s_lshl3_add_u32 s{sNT}, s{sT0}, s{sT1}""")
    else:
        setup3(f"""s_and_b32 s{sT0}, s{sCB}, 1
        s_lshl_b32 s{sMT}, s{sRB}, 1
        s_add_u32 s{sMT}, s{sMT}, s{sT0}
        s_lshr_b32 s{sT0}, s{sCB}, 3
        s_lshl_b32 s{sT0}, s{sT0}, 2
        s_bfe_u32 s{sT1}, s{sCB}, 0x20001
        s_add_u32 s{sNT}, s{sT0}, s{sT1}""")
    setup3(f"""s_lshl_b32 s{sT0}, s{sNT}, 7
    s_add_u32 s{S_W3}, s{P_WD}, s{sT0}
    s_addc_u32 s{S_W3+1}, s{P_WD+1}, 0
    s_sub_u32 s{S_W3+2}, {3584*2048}, s{sT0}
    s_add_u32 s{sWo}, s{P_WO}, s{sT0}
    s_addc_u32 s{sWo+1}, s{P_WO+1}, 0
    s_sub_u32 s{sWoN}, {1024*2048}, s{sT0}
    s_mov_b32 s{sSh}, 11
    s_mov_b32 s{S_AF+2}, 16384
    s_mov_b32 s{S_OUT}, s{P_OUT}
    s_mov_b32 s{S_OUT+1}, s{P_OUT+1}
    s_mov_b32 s{S_OUT+2}, 0x400000
    s_mul_i32 s{sAo}, s{sW}, {AFS2}
    s_lshl_b32 s{sT0}, s{sMT}, 14
    s_add_u32 s{sAo}, s{sAo}, s{sT0}
    s_add_u32 s{sAo}, s{sAo}, {AF2_OFF}
    s_add_u32 s{S_AF}, s{P_WS}, s{sAo}
    s_addc_u32 s{S_AF+1}, s{P_WS+1}, 0
    s_mov_b32 s{sAo}, 4096
    s_mov_b32 s{sAo+1}, 8192
    s_mov_b32 s{sX3}, 12288
    s_lshl_b32 s{sM3}, s{sW}, 14
    s_add_u32 s{sM3}, s{sM3}, {W3B}""")
    for e in range(1, 4): setup3(f"s_mov_b32 s{sSo3+e}, {e*16384 - e*1024}")
    if CW:
        setup3(f"""s_and_b32 s{sT0}, s{sNT}, 7
        s_cmp_lg_u32 s{sT0}, 3
        s_cbranch_scc1 P3_NOCW
        s_lshr_b32 s{sT0}, s{sNT}, 3
        s_mul_i32 s{sT0}, s{sT0}, {CW_SZ}
        s_add_u32 s{sT0}, s{sT0}, {CW_OFF}
        s_add_u32 s{S_W3}, s{P_WS}, s{sT0}
        s_addc_u32 s{S_W3+1}, s{P_WS+1}, 0
        s_mov_b32 s{S_W3+2}, {3584*256}
        s_add_u32 s{sWo}, s{S_W3}, {3584*256}
        s_addc_u32 s{sWo+1}, s{S_W3+1}, 0
        s_mov_b32 s{sWoN}, {1024*256}
        s_mov_b32 s{sSh}, 8
        s_mov_b32 s{sSo3+1}, 1024
        s_mov_b32 s{sSo3+2}, 2048
        s_mov_b32 s{sSo3+3}, 3072
        P3_NOCW:""")
    setup3(f"""s_lshl_b32 s{sAdv}, 128, s{sSh}
    s_mul_i32 s{sAdv28}, s{sAdv}, 28""")
    setup3v = Asm()
    setup3v(f"""v_lshrrev_b32 {T[0]}, 3, {vL}
    v_lshrrev_b32 {T[1]}, 4, {vL}
    v_lshlrev_b32 {T[2]}, 1, {T[1]}
    v_and_b32 {T[3]}, 7, {vL}
    v_xor_b32 {T[2]}, {T[2]}, {T[3]}
    v_lshlrev_b32 {T[2]}, 4, {T[2]}
    s_lshl_b32 s{sT0}, s{sW}, 5
    v_add_u32 {T[0]}, s{sT0}, {T[0]}
    v_lshl_add_u32 {vW3o}, {T[0]}, s{sSh}, {T[2]}
    s_lshl_b32 s{sT0}, s{sAdv}, 2
    v_add_u32 {T[11]}, s{sT0}, {vW3o}
    v_lshrrev_b32 {T[0]}, 2, {vL}
    v_bfe_u32 {T[1]}, {vL}, 3, 2
    v_and_b32 {T[2]}, 3, {vL}
    v_lshlrev_b32 {T[2]}, 3, {T[2]}
    v_lshl_add_u32 {T[2]}, {T[0]}, 7, {T[2]}
    v_add_u32 {T[2]}, s{sM3}, {T[2]}""")
    for i in range(4): setup3v(f"v_xor_b32 {T[3]}, {i}, {T[1]}\nv_lshl_add_u32 {vW3a[i]}, {T[3]}, 5, {T[2]}")
    setup3v(f"""s_lshr_b32 s{sT0}, s{sMT}, 1
    s_lshl_b32 s{sT0}, s{sT0}, 10
    s_lshl_b32 s{sT1}, s{sRB}, 10
    v_mov_b32 {T[4]}, s{sT0}
    v_mov_b32 {T[5]}, s{sT1}
    v_cmp_gt_u32 vcc, 32, {vL}
    v_and_b32 {T[6]}, 31, {vL}
    v_lshlrev_b32 {T[6]}, 2, {T[6]}
    v_cndmask_b32 {T[4]}, {T[4]}, {T[5]}, vcc
    v_bfe_u32 {T[5]}, {vL}, 3, 2
    v_lshl_add_u32 {T[4]}, {T[5]}, 8, {T[4]}
    v_and_b32 {T[5]}, 7, {vL}
    v_lshl_add_u32 {T[4]}, {T[5]}, 4, {T[4]}
    v_lshrrev_b32 {T[5]}, 5, {vL}
    v_lshl_add_u32 {T[5]}, {T[5]}, 8, {T[6]}
    v_and_b32 {T[7]}, 15, {vL}
    v_lshlrev_b32 {T[7]}, 2, {T[7]}""")
    XRE = opt.get("xre", 0)
    RE = [Reg("a", 180 + 4*j, 4) for j in range(8)]
    sXP = 17
    setup3v(f"""s_add_u32 s{sXP}, s{sW}, {4*(36 - 4*opt.get("np", 4))}
    s_mul_i32 s{sXP}, s{sXP}, {AFS2}
    s_lshl_b32 s{sT0}, s{sMT}, 14
    s_add_u32 s{sXP}, s{sXP}, s{sT0}
    s_add_u32 s{sXP}, s{sXP}, {AF2_OFF}""")
    zero3 = [f"v_mov_b32 {acc3[i][j][r]}, 0" for i in range(4) for j in range(8) for r in range(4)]
    def w3dma(slot, e):
        m0 = f"s_add_u32 m0, s{sM3}, {slot*4096}"
        return m0, VM(f"buffer_load_dwordx4 {vW3o}, {srd(S_W3)}, {'0' if e == 0 else 's%d' % (sSo3+e)} offen offset:{e*1024} {SC1 if CW else ''} lds", ("W", slot))
    def xload(slot, j):
        return VM(f"buffer_load_dwordx4 {RX[slot][j]}, {vAF}, {srd(S_AF)}, {['0', 's%d' % sAo, 's%d' % (sAo+1), 's16'][j>>1]} offen offset:{(j&1)*2048} {opt.get('xflag', SC1)}", ("X", slot, j >> 2))
    adv3 = [f"v_add_u32 {vW3o}, s{sAdv}, {vW3o}", f"s_add_u32 s{S_AF}, s{S_AF}, {4*AFS2}\ns_addc_u32 s{S_AF+1}, s{S_AF+1}, 0"]
    def wread(slot, s):
        return [f"ds_read_b64_tr_b16 {RW[s][i].sub(2*hf,2)}, {vW3a[i]} offset:{slot*4096 + hf*2048}" for i in range(4) for hf in range(2)]
    def gm(s, j, i, first=False): return f"v_mfma_f32_16x16x32_bf16 {acc3[i][j]}, {RW[s&1][i]}, {RX[s][j]}, {0 if first else acc3[i][j]}"

    EARLY3 = opt.get("early3", 0)
    pfsetup = [f"s_lshl_b32 s{sT1}, s2, 2", f"s_add_u32 s{sT1}, s{sT1}, s{sW}", f"s_lshl_b32 s{sT1}, s{sT1}, 10",
               f"v_lshrrev_b32 {vPF}, 3, {vL}", f"v_lshlrev_b32 {vPF}, 7, {vPF}", f"v_add_u32 {vPF}, s{sT1}, {vPF}",
               f"s_mov_b32 s{S_PF}, s{P_WD}", f"s_mov_b32 s{S_PF+1}, s{P_WD+1}", f"s_mov_b32 s{S_PF+2}, {3584*2048}", f"s_mov_b32 s{sPF}, 0x100000"] if PF else []
    k_ = B.lines.index("; @@SETUP3@@")
    ins = []
    if EARLY3:
        ins = setup3.lines + setup3v.lines + pfsetup
        if EARLY3 > 1:
            for s_ in range(4):
                for e_ in range(4):
                    m0, d = w3dma(s_, e_)
                    ins += ([m0, "s_nop 0"] if e_ == 0 else []) + [d] + ([adv3[0]] if e_ == 3 else [])
    B.lines[k_:k_ + 1] = ins
    k2_ = hist.index("; @@SETUP3@@"); hist[k2_:k2_ + 1] = ins
    probs += check_hazards(B.lines, "p2pro")
    A.ext(B.lines)
    def att_parts(ab, kq, vp):
        o = ab ^ 1
        M = [f"v_mfma_f32_32x32x16_bf16 {S[o]}, {K[kq][0]}, {Q[o][0]}, 0",
             f"v_mfma_f32_32x32x16_bf16 {S[o]}, {K[kq][1]}, {Q[o][1]}, {S[o]}",
             f"v_mfma_f32_32x32x16_bf16 {O[o]}, {V[vp][0]}, {P[o].sub(0,4)}, {O[o]}",
             lsum(o),
             f"v_mfma_f32_32x32x16_bf16 {O[o]}, {V[vp][1]}, {P[o].sub(4,4)}, {O[o]}",
             None]
        ex = [f"v_exp_f32 {S[ab][r]}, {S[ab][r]}" for r in range(16)]
        cv = [f"v_cvt_pk_bf16_f32 {P[ab][r]}, {S[ab][2*r]}, {S[ab][2*r+1]}" for r in range(8)]
        return M, ex, cv
    def phase_plain(ab, kq, vp, extra):
        M, ex, cv = att_parts(ab, kq, vp)
        order = [M[2], M[0], M[1], M[3], M[4]]
        vl = []
        for r in range(16):
            vl.append(ex[r])
            if r >= 3 and r % 2 == 1: vl.append(cv[(r - 3)//2])
        vl.append(cv[7])
        mpos = opt.get("mpos", [0, 4, 9, 14, 18])
        assert max(extra, default=0) <= 4
        out = []; mi = 0
        for i, v in enumerate(vl):
            while mi < 5 and mpos[mi] == i:
                out.append(order[mi]); out.extend(extra.get(mi, [])); mi += 1
            out.append(v)
        return out
    def phase_merged(ab, kq, vp, G8, extra):
        M, ex, cv = att_parts(ab, kq, vp)
        order = [M[2], G8[0], M[0], G8[1], G8[2], M[1], G8[3], M[3], G8[4], M[4], G8[5], G8[6], G8[7]]
        e, c = ex, cv
        fill = [[e[0], e[1], e[2]], [e[3]], [e[4], e[5], e[6]], [c[0], c[1]], [e[7]], [e[8], e[9], e[10]], [c[2], c[3]], [c[4]],
                [e[11]], [e[12], e[13], e[14]], [e[15]], [c[5], c[6]], [c[7]]]
        assert max(extra, default=0) <= 12
        out = []
        for k in range(13):
            out.append(order[k]); out.extend(extra.get(k, [])); out.extend(fill[k])
        return out
    sX3 = 16
    NP = opt.get("np", 4)
    PFSW = 6
    sKM = sL + 14
    def chunk(kind, hook=None, first=False, pfok=True, wpre=False):
        out = []
        mer = kind == "merged"
        for pi in range(16):
            tau, ab = pi >> 1, pi & 1
            kp = tau & 1
            ex = {}
            if ab == 0:
                src = (vCur, (tau+1)*4096) if tau < 7 else (vNxt, 0)
                ld = [f"ds_read_b128 {K[kp^1][t]}, {src[0]} offset:{src[1] + t*1024}" for t in range(2)]
            else:
                src = (vCur, (tau+1)*4096 + 2048) if tau < 7 else (vNxt, 2048)
                ld = [f"ds_read_b128 {V[kp^1][t]}, {src[0]} offset:{src[1] + t*1024}" for t in range(2)]
            kvd = VM(f"buffer_load_dwordx4 {vL16}, {srd(S_KVD)}, s{sKVo} offen offset:{(pi&3)*1024} {SC1} lds", "KV")
            if wpre:
                kvd = VM(f"buffer_load_dwordx4 {T[11]}, {srd(S_KVD)}, {'0' if pi & 3 == 0 else 's%d' % (sSo3 + (pi & 3))} offen offset:{(pi&3)*1024} {SC1 if CW else ''} lds", "PW")
            rotate = [f"s_mov_b32 s{sT0}, s{sCur}", f"s_mov_b32 s{sCur}, s{sNext}", f"s_mov_b32 s{sNext}, s{sFree}", f"s_mov_b32 s{sFree}, s{sT0}",
                      f"s_add_u32 s{sKM}, s{sT0}, s{sM0}", f"s_add_u32 s{sIt}, s{sIt}, 1"]
            upd = [f"v_add_u32 {vCur}, s{sCur}, {vL16}", f"v_add_u32 {vNxt}, s{sNext}, {vL16}"]
            lg = 0 if (trace or not mer) else 2
            s, q = pi >> 2, pi & 3
            if pi == 14: w0 = [Need(["KV"], "lgkmcnt(0)"), "s_barrier"]
            elif mer and q == 0: w0 = [Need([("W", (s+1) % NS), ("X", s, 1)], "lgkmcnt(0)")]
            else: w0 = [f"s_waitcnt lgkmcnt({lg})"]
            put(ex, 0, w0)
            if pi % 8 == 7: put(ex, 0, tr_commit())
            if not mer:
                if pi < 8: put(ex, 3, f"s_mov_b32 m0, s{sKM}")
                if pi == 4: put(ex, 1, f"s_add_u32 s{sKVo}, s{sKVo}, 4096"); put(ex, 2, f"s_add_u32 s{sKM}, s{sKM}, 4096")
                if pi == 8: put(ex, 1, post_dma)
                if pi == 14: put(ex, 3, rotate[0]); put(ex, 4, rotate[1])
                if pi == 15: put(ex, 1, rotate[2]); put(ex, 2, rotate[3]); put(ex, 3, rotate[4]); put(ex, 4, rotate[5])
                put(ex, 1, ld[0]); put(ex, 2, ld[1])
                if pi < 8: put(ex, 4, kvd)
            else:
                G8 = [gm(s, 2*q + jj, i, first and s == 0) for jj in range(2) for i in range(4)]
                m0, d = w3dma(s, q)
                rd = wread((s+1) % NS, (s+1) & 1)
                if pi == 4: put(ex, 1, f"s_add_u32 s{sKVo}, s{sKVo}, 4096"); put(ex, 4, f"s_add_u32 s{sKM}, s{sKM}, 4096")
                if pi == 8: put(ex, 1, post_dma)
                if q == 0 and s > 0: put(ex, 6, adv3[1])
                if pi == 15:
                    for k, g_ in enumerate((4, 5, 6, 7, 8, 9)): put(ex, g_, rotate[k])
                if pi == 10 and PF: put(ex, 1, pfop[1])
                put(ex, 1, ld[0]); put(ex, 2, m0); put(ex, 3, d); put(ex, 4, ld[1])
                put(ex, 5, rd[2*q]); put(ex, 10 if q < 3 else 6, rd[2*q+1])
                put(ex, 7, xload(s, 2*q)); put(ex, 12, xload(s, 2*q+1))
                if q == 3: put(ex, 11, adv3[0])
                if pi < 8: put(ex, 8, f"s_mov_b32 m0, s{sKM}"); put(ex, 9, kvd)
                if wpre and pi in (4, 8): put(ex, 6, f"v_add_u32 {T[11]}, s{sAdv}, {T[11]}")
                if pi == 9 and PF:
                    put(ex, 9, pfop[0])
                    put(ex, 6, [f"s_cmp_eq_u32 s{sIt}, {PFSW}", f"s_cselect_b32 s{sPF}, 0, s{sPF}", f"s_cselect_b32 s{S_PF}, s{P_WO}, s{S_PF}",
                                f"s_cselect_b32 s{S_PF+1}, s{P_WO+1}, s{S_PF+1}", f"s_cselect_b32 s{S_PF+2}, 0x200000, s{S_PF+2}"])
                if pi == 12: put(ex, 9, cp(False))
                if wpre and XRE and pi >= 8:
                    j_ = pi - 8
                    put(ex, 8 if pi not in (15,) else 10, VM(f"buffer_load_dwordx4 {RE[j_]}, {vAF}, {srd(S_WS)}, s{sXP} offen offset:{(j_&1)*2048} {SC1}", ("XE", j_ >> 2)))
                    if j_ & 1: put(ex, 11, f"s_add_u32 s{sXP}, s{sXP}, {4096 if j_ < 7 else (-12288) & 0xffffffff}")
            if pi % 8 == 6: put(ex, 3, tr_issue())
            if hook: hook(pi, ex, None)
            if mer: out += phase_merged(ab, kp ^ ab, kp ^ 1 ^ ab, G8, ex)
            else: out += phase_plain(ab, kp ^ ab, kp ^ 1 ^ ab, ex)
        if mer: out += adv3[1:]
        out += upd
        return out

    dflt = {3: dict(hs=[1, 1], gs=23, hf=26, hp=36, hc=39, pf=[25, 28, 41]), 4: dict(hs=[2, 1], gs=32, hf=44, hp=50, hc=53, pf=[34, 38, 44, 56])}[NP]
    dflt.update(opt.get("sched", {}))
    HSN, HSD = dflt["hs"]; GS, HF, HPg, HC, PFP = dflt["gs"], dflt["hf"], dflt["hp"], dflt["hc"], dflt["pf"]
    assert len(PFP) == NP
    hst = hst0 + hst1a
    hph = [dflt.get("hs0", 0) + n*HSN//HSD for n in range(16)]
    assert EARLY3 or hph[-1] < GS
    hpoll = f"buffer_load_dwordx4 {vFl}, {T[4]}, {srd(S_WS)}, s{sT1} offen sc1"
    LASTP = 16*NP - 1
    wph = [GS + 1 + k // 2 for k in range(16)] if not EARLY3 else ([-1]*16 if EARLY3 > 1 else [2*(k // 2)*2 + 1 for k in range(16)])
    NXP = opt.get("nxp", 32)
    xph = [HC + 1 + (k * (LASTP - HC)) // NXP for k in range(NXP)] + [-1] * (32 - NXP)
    gloads = [VM(f"buffer_load_dword {vG[ab]}, {T[6]}, {srd(S_WS)}, s{sT2} offen offset:{ab*128} sc1", "G") for ab in range(2)]
    gloads += [VM(f"buffer_load_dword {SCL[j]}, {T[7]}, {srd(S_WS)}, s{sT3} offen offset:{j*64} sc1", "G") for j in range(8)]
    def hookM0(pi, ex, pre):
        n = NXP + pi
        if n < 32:
            s_, j_ = divmod(n, 8)
            put(ex, 6, VM(f"buffer_load_dwordx4 {RX[s_][j_]}, {vL16}, {srd(S_AF)}, s{sX3 + (j_>>2)} offen offset:{(j_&3)*1024} {SC1}", ("X", s_, j_ >> 2)))
        if pi >= 11: put(ex, 8, gloads[2*(pi - 11)]); put(ex, 11, gloads[2*(pi - 11) + 1])
    def mkhook(base):
        def hook(pi, ex, pre):
            gp = base + pi
            k = 0
            for n in range(16):
                if hph[n] == gp: put(ex, [0, 3][k], hst[n]); k += 1
            if gp == GS and not EARLY3:
                put(ex, 0, setup3.lines[:15]); put(ex, 1, setup3.lines[15:]); put(ex, 3, setup3v.lines + pfsetup)
            if gp in PFP and PF: put(ex, 3 if (gp & 15) >= 8 else 0, pfop)
            if gp in (9, 16*NP - 22): put(ex, 4, cp())
            k = 0
            for n in range(16):
                if wph[n] == gp:
                    s_, e_ = divmod(n, 4)
                    m0, d = w3dma(s_, e_)
                    if k == 0: ex[0] = ex[0] + [m0]
                    put(ex, k + 1, [d] + ([adv3[0]] if e_ == 3 else [])); k += 1
            if gp == HF:
                put(ex, 2, [Need(["H"]), "s_mov_b64 exec, 1", VM(f"buffer_store_dword {vNon}, {vZero}, {srd(S_WS)}, s{sFl} offen sc1", "HF"), "s_mov_b64 exec, -1", "s_nop 2"])
            if gp == HPg: put(ex, 3, [f"s_mov_b32 s{sT1}, {FL_H}", VM(hpoll, "HP")])
            if gp == HC:
                put(ex, 2, [Need(["HP"])] + check([vFl[k] for k in range(4)]) + ["s_cbranch_scc0 P3_SLOWH", "P3_HOK:"])
                put(ex, 3, [f"s_lshl_b32 s{sT2}, s{sRB}, 10", f"s_lshl_b32 s{sT3}, s{sW}, 8", f"s_add_u32 s{sT2}, s{sT2}, s{sT3}", f"s_add_u32 s{sT2}, s{sT2}, {G_OFF}",
                            f"s_lshl_b32 s{sT3}, s{sMT}, 9", f"s_add_u32 s{sT3}, s{sT3}, {G_OFF}"])
            k = 0
            for n in range(32):
                if xph[n] == gp:
                    s_, j_ = divmod(n, 8)
                    put(ex, [0, 3, 4, 2][k], [xload(s_, j_)] + (adv3[1:] if j_ == 7 else [])); k += 1
            if gp == LASTP:
                put(ex, 3, [Need([("W", 0)])] + wread(0, 0))
                if NXP == 24: put(ex, 5, [f"s_mov_b32 s{sX3}, s{sAo}", f"s_mov_b32 s{sX3+1}, s{sAo+1}"] + adv3[1:])
        return hook
    def retag(ch, cur, need):
        out = []
        for l in ch:
            if isinstance(l, VM) and l.tag == "KV": out.append(VM(l, cur))
            elif isinstance(l, Need) and "KV" in l.tags: out.append(Need([need], l.extra))
            else: out.append(l)
        return out
    hist = [VM(l, "KV-1") if isinstance(l, VM) and l.tag == "KV" else l for l in hist]
    CP = []; hh_ = list(hist)
    for c in range(NP):
        ch = resolve_waits(retag(chunk("plain", mkhook(16*c)), f"KV{c}", f"KV{c-1}"), hh_)
        CP.append(ch); hh_ += ch
    mA = retag(chunk("merged"), "KVa", "KVb"); mB = retag(chunk("merged"), "KVb", "KVa")
    mres = resolve_waits(mA, mB)
    M = mres
    M0 = resolve_waits(retag(chunk("merged", hookM0, first=True), "KVb", f"KV{NP-1}"), hh_)
    probs += verify_waits(hh_ + M0 + M, len(hh_ + M0), "M0->M")
    WPRE = opt.get("wpre", 1)
    if WPRE:
        MW = resolve_waits(retag(chunk("merged", wpre=True), "-", "KVa"), M)
        probs += verify_waits(M + MW + [l for l in MW if not (isinstance(l, Need) and "KVa" in l.tags)], len(M + MW), "MW->MW")
    mab = opt.get("mabl", "")
    def abl(L):
        out = []
        for l in L:
            if "x" in mab and isinstance(l, VM) and isinstance(l.tag, tuple) and l.tag[0] == "X": continue
            if "w" in mab and isinstance(l, VM) and isinstance(l.tag, tuple) and l.tag[0] == "W": continue
            if "t" in mab and l.startswith("ds_read_b64_tr"): continue
            if "k" in mab and l.startswith("ds_read_b128"): continue
            if "s" in mab and l.startswith(("s_add", "s_mov", "s_cmp", "s_cselect")) and f"s{sIt}" not in l and "exec" not in l: continue
            if "n" in mab and isinstance(l, Need): out.append("s_waitcnt lgkmcnt(0)" if l.extra else "s_nop 0"); continue
            if "g" in mab and l.startswith("v_mfma_f32_16x16") and "a[2" in l: continue
            out.append(l)
        return out
    Me = abl(M); M0e = abl(M0)
    D = Asm()
    D(f"s_mov_b32 s{sIt}, 0")
    for c in range(NP): D.ext(ts.at(f"c{c}")); D.ext(CP[c])
    D.ext(ts.at("m")); D.ext(M0e)
    D.ext(ts.at("m1"))
    D(".p2align 6\nP2_MLOOP:")
    D.ext(Me)
    if WPRE:
        D(f"""s_cmp_lt_u32 s{sIt}, 6
        s_cbranch_scc1 P2_MLOOP
        s_mov_b32 s{S_KVD}, s{sWo}
        s_mov_b32 s{S_KVD+1}, s{sWo+1}
        s_mov_b32 s{S_KVD+2}, s{sWoN}""")
        if CPF: D(cpa)
        D.ext(ts.at("mw"))
        D("P2_MWLOOP:")
        if "mw2" in ts.names: D.ext(ts.at("mw2"))
        D.ext(abl(MW))
        D(f"s_cmp_lt_u32 s{sIt}, 8\ns_cbranch_scc1 P2_MWLOOP")
        probs += check_hazards(M + MW + MW, "mw")
        M = MW
    else:
        D(f"s_cmp_lt_u32 s{sIt}, 8\ns_cbranch_scc1 P2_MLOOP")
    probs += check_hazards(B.lines[-8:] + sum(CP, []) + M0 + M + M, "att")
    A.ext(D.lines)

    C = Asm()
    C.ext(ts.at("attend"))
    C(f"""v_mfma_f32_32x32x16_bf16 {O[1]}, {V[1][0]}, {P[1].sub(0,4)}, {O[1]}
    {lsum(1)}
    v_mfma_f32_32x32x16_bf16 {O[1]}, {V[1][1]}, {P[1].sub(4,4)}, {O[1]}""")
    C(f"v_mov_b32 {T[1]}, 0")
    for r in range(16): C(f"v_fmac_f32 {T[1]}, 0, {O[0][r]}")
    for r in range(16): C(f"v_fmac_f32 {T[1]}, 0, {O[1][r]}")
    for ab in range(2): C(f"v_add_f32 {Lc[ab][0]}, {Lc[ab][0]}, {Lc[ab][1]}")
    C(f"""s_mov_b32 s{sT0}, {f2u(2.0**-20):#x}
    s_mov_b32 s{sT1}, {f2u(2.0**100):#x}
    v_cmp_le_f32 vcc, s{sT0}, {Lc[0][0]}
    v_cmp_le_f32 s[{S_C}:{S_C+1}], s{sT0}, {Lc[1][0]}
    s_nop 1
    s_and_b64 vcc, vcc, s[{S_C}:{S_C+1}]
    v_cmp_ge_f32 s[{S_C}:{S_C+1}], s{sT1}, {Lc[0][0]}
    v_cmp_ge_f32 s[{sT2}:{sT3}], s{sT1}, {Lc[1][0]}
    s_nop 1
    s_and_b64 vcc, vcc, s[{S_C}:{S_C+1}]
    s_and_b64 vcc, vcc, s[{sT2}:{sT3}]
    v_cmp_eq_f32 s[{S_C}:{S_C+1}], 0, {T[1]}
    s_nop 1
    s_and_b64 vcc, vcc, s[{S_C}:{S_C+1}]
    s_cmp_eq_u64 vcc, -1""")
    if opt.get("force_fallback"): C("s_branch P2_FALLBACK")
    C("s_cbranch_scc0 P2_FALLBACK")
    C("P2_FINISH:")
    for ab in range(2): C(f"v_rcp_f32 {T[2*ab]}, {Lc[ab][0]}")
    C(f"""s_add_u32 s{sT0}, s{sCB}, 112
    s_mul_i32 s{sT0}, s{sT0}, {AFS2}
    s_lshl_b32 s{sT1}, s{sRB}, 15
    s_add_u32 s{sT0}, s{sT0}, s{sT1}
    s_lshl_b32 s{sT1}, s{sW}, 13
    s_add_u32 s{sT0}, s{sT0}, s{sT1}
    s_add_u32 s{sT0}, s{sT0}, {AF2_OFF}
    s_add_u32 s{sT1}, s{sT0}, 4096
    v_and_b32 {vFl[2]}, 40, {vL}
    v_cmp_eq_u32 vcc, 40, {vFl[2]}
    v_add_u32 {vFl[2]}, 128, {vQP}
    s_nop 0
    v_cndmask_b32 {vFl[1]}, {vQP}, {vFl[2]}, vcc""")
    for ab in range(2): C(f"v_mul_f32 {T[2*ab]}, {T[2*ab]}, {vG[ab]}")
    for ab in range(2):
        for r in range(0, 16, 2):
            C(f"v_pk_mul_f32 {O[ab].sub(r,2)}, {O[ab].sub(r,2)}, {T.sub(2*ab,2)} op_sel_hi:[1,0]")
        for r in range(8): C(f"v_cvt_pk_bf16_f32 {S[ab][r]}, {O[ab][2*r]}, {O[ab][2*r+1]}")
        for c in range(2):
            C(VM(f"buffer_store_dwordx4 {S[ab].sub(4*c,4)}, {vFl[1+c]}, {srd(S_WS)}, s{sT0+ab} offen offset:{c*512} {SC1}", "O"))
    for j in range(8): C(f"v_sub_f32 {SCL[j]}, 1.0, {SCL[j]}")
    for j in range(8): C(f"v_cvt_pk_bf16_f32 {SCL[j]}, {SCL[j]}, {SCL[j]}")
    for j in range(8): C(f"v_and_b32 {SCL[j]}, 0xffff0000, {SCL[j]}")
    sFC = sL
    C(f"""s_lshl_b32 s{sFC}, s{sMT}, 9
    s_add_u32 s{sFC}, s{sFC}, {FL_O}
    s_add_u32 s{sFl}, s{sFl}, {FL_O - FL_H}""")
    C.ext(ts.at("tail"))
    EPI_IL = opt.get("epi_il", 1)
    groups = []
    if EPI_IL:
        n0 = next(k for k, l in enumerate(C.lines) if l.startswith("v_mov_b32") )
        rest = C.lines[n0:]; C.lines = C.lines[:n0]
        k0 = next(k for k, l in enumerate(rest) if l.startswith("s_mov_b32"))
        k1 = rest.index("P2_FINISH:")
        groups = [[l] for l in rest[:k0]] + [rest[k0:k1 + 1]] + [[l] for l in rest[k1 + 1:]]
    vPa = [O[0][i] for i in range(4)]; vPb = [O[0][4 + i] for i in range(4)]
    def pread(st, dst):
        base = vPb if st < 2 else vPa
        return [f"ds_read_b64_tr_b16 {dst[i].sub(2*hf,2)}, {base[i]} offset:{(st & 1)*4096 + hf*2048}" for i in range(4) for hf in range(2)]
    def p3iter(hook=None, now=False, skipx=False, usee=False):
        out = []
        for s in range(NS):
            m = [gm(s, j, i) for j in range(8) for i in range(4)]
            xt = lambda h: ("X", s, h)
            if usee and s == 0:
                m = [l.replace(str(RX[0][k // 4]), str(RE[k // 4])) for k, l in enumerate(m)]
                xt = lambda h: ("XE", h)
            f = {}
            if opt.get("t3", 1) == 0:
                f[-1] = [Need([("W", (s+1) % NS), ("X", s, 1)], "lgkmcnt(0)"), w3dma(s, 0)[0]]
                dgap = [0, 6, 14, 22]
                for e in range(4): put(f, dgap[e], w3dma(s, e)[1])
                for k, r in enumerate(wread((s + 1) % NS, (s+1) & 1)): put(f, 1 + 3*k, r)
                for j in range(8): put(f, 4*j + 3 + (1 if j < 7 else 0), xload(s, j))
            else:
                f[-1] = [Need([xt(0)], "lgkmcnt(0)"), w3dma(s, 0)[0]]
                dgap = opt.get("t3w", [0, 2, 6, 10])
                if now: f[-1] = f[-1][:1]
                else:
                    for e in range(4): put(f, dgap[e], w3dma(s, e)[1])
                put(f, 15, Need([xt(1)]))
                rg0 = opt.get("t3r", 18)
                if not (now and s == 3): put(f, rg0 - 1, Need([("W", (s+1) % NS)]))
                for k, r in enumerate(pread(0, RW[0]) if (now and s == 3) else wread((s + 1) % NS, (s+1) & 1)): put(f, rg0 + k + (1 if rg0 + k >= 20 else 0) + (1 if rg0 + k >= 23 else 0), r)
                if not (skipx and s == 0):
                    for j in range(8): put(f, 4*j + 3 + (1 if j < 7 else 0), xload(s, j))
            put(f, 31, adv3)
            put(f, 28, tr_issue())
            if trace: f[-1] = f[-1][:1] + tr_commit() + f[-1][1:]
            if hook: hook(s, f)
            out += interleave(m, f)
        return out
    opoll = f"buffer_load_dword {vFl[0]}, {T[5]}, {srd(S_WS)}, s{sFC} offen sc1"
    NT = NP - 2
    OFS, OPS = opt.get("oflag_step", 2), opt.get("opoll_step", 4*NT - 1 if NT == 1 else 4*NT - 2)
    def mkT(base):
        def hookT(s, f):
            if base == 0 and s < 2:
                R_ = opt.get("epi_rate", 3)
                for g_ in range(2 if s == 0 else 0, 31):
                    for _ in range(R_):
                        if groups: put(f, g_, groups.pop(0))
                assert s == 0 or not groups
            if base + s == OFS: put(f, 10, [Need(["O"]), "s_mov_b64 exec, 1", VM(f"buffer_store_dword {vNon}, {vZero}, {srd(S_WS)}, s{sFl} offen sc1", "OF"), "s_mov_b64 exec, -1", "s_nop 2"])
            if base + s == OPS: put(f, 26, VM(opoll, "OP"))
            if base + s == 1 and CPF: put(f, 14, [cpa, f"v_min_u32 v0, L_END-{NAME}-4, v0"] + cp(False))
        return hookT
    T5 = []
    XE_ = XRE and WPRE and NT >= 2
    for k in range(NT): T5 += resolve_waits(p3iter(mkT(4*k), skipx=XE_ and k == 0, usee=XE_ and k == 1), M + M + C.lines + T5)
    L3 = resolve_waits(p3iter())
    mid = [Need(["OP"])] + check([vFl[0]]) + ["s_cbranch_scc0 P3_SLOWO", "P3_OOK:",
           f"s_mov_b32 s{S_W3}, s{sWo}", f"s_mov_b32 s{S_W3+1}, s{sWo+1}", f"s_mov_b32 s{S_W3+2}, s{sWoN}",
           f"v_subrev_u32 {vW3o}, s{sAdv28}, {vW3o}", f"s_mov_b32 s{sIt}, 6", "s_barrier",
           f"v_add_u32 {T[0]}, 0x10000, {vL16}", f"v_and_b32 {T[1]}, 15, {vL}", f"v_lshlrev_b32 {T[1]}, 11, {T[1]}", f"v_bfe_u32 {T[2]}, {vL}, 4, 1",
           f"v_lshl_add_u32 {T[1]}, {T[2]}, 5, {T[1]}", f"v_lshrrev_b32 {T[2]}, 5, {vL}", f"v_lshl_add_u32 {T[1]}, {T[2]}, 4, {T[1]}",
           f"s_lshl_b32 s{sT0}, s{sMT}, 18", f"s_lshl_b32 s{sT1}, s{sW}, 16", f"s_add_u32 s{sT0}, s{sT0}, s{sT1}",
           f"s_lshl_b32 s{sT1}, s{sNT}, 7", f"s_add_u32 s{sT0}, s{sT0}, s{sT1}", f"s_add_u32 s{sT1}, s{sT0}, 32768"]
    if WPRE:
        mid += [f"s_lshl_b32 s{sT2}, s{sW}, 13", f"s_add_u32 s{sT2}, s{sT2}, {W3B}"]
        mid += [f"v_subrev_u32 {vPa[i]}, s{sT2}, {vW3a[i]}" for i in range(4)] + [f"v_add_u32 {vPb[i]}, 0x10000, {vPa[i]}" for i in range(4)]
    mid = resolve_waits(mid, T5)
    probs += verify_waits(M + C.lines + T5 + mid + L3, len(M + C.lines + T5 + mid), "T5->L3")
    tail = [f"s_add_u32 s{sIt}, s{sIt}, 1", f"s_cmp_eq_u32 s{sIt}, 8", "s_cbranch_scc1 P3_DONE", "s_nop 7"]
    for i in range(4):
        for j in range(8):
            for r in (0, 2):
                tail.append(f"v_pk_mul_f32 {acc3[i][j].sub(r,2)}, {acc3[i][j].sub(r,2)}, {SCL.sub(j & ~1, 2)} op_sel:[0,{j&1}] op_sel_hi:[1,{j&1}]")
    tail += ["s_nop 0", "s_branch P3_LOOP", "P3_DONE:"]
    probs += check_hazards(M[-30:] + C.lines + T5 + mid + L3 + tail + L3, "tail") + check_hazards(L3 + L3, "l3")
    tab = opt.get("tabl", "")
    def tabl(L):
        out = []
        for l in L:
            if isinstance(l, VM) and isinstance(l.tag, tuple) and l.tag[0].lower() in tab: continue
            if "t" in tab and l.startswith("ds_read_b64_tr"): continue
            if "m" in tab and l.startswith("v_mfma"): continue
            if "a" in tab and l in adv3: continue
            out.append(l)
        return out
    T5 = tabl(T5); L3 = tabl(L3)
    C.ext(T5); C.ext(ts.at("t5end")); C.ext(mid); C.ext(ts.at("l3"))
    if WPRE:
        XEND = opt.get("xend", 0)
        VA = [Reg("v", S[1].base + 4*j, 4) for j in range(8)]
        RXF = [RX[0], RX[1], VA, RE] if XEND else RX
        def hookL7(s, f):
            if XEND and s < 2:
                if s == 0: put(f, 0, [f"s_add_u32 s{sXP}, s{sW}, {4*34}", f"s_mul_i32 s{sXP}, s{sXP}, {AFS2}", f"s_lshl_b32 s{sT2}, s{sMT}, 14",
                                      f"s_add_u32 s{sXP}, s{sXP}, s{sT2}", f"s_add_u32 s{sXP}, s{sXP}, {AF2_OFF}"])
                for j in range(8):
                    put(f, 4*j + 2, VM(f"buffer_load_dwordx4 {RXF[2+s][j]}, {vAF}, {srd(S_WS)}, s{sXP} offen offset:{(j&1)*2048} {SC1}", ("X", 2 + s + 10, j >> 2)))
                    if j & 1: put(f, 4*j + 2, f"s_add_u32 s{sXP}, s{sXP}, {4096 if j < 7 else 4*AFS2 - 12288}")
            if XEND and s >= 2:
                for g_ in list(f): f[g_] = [l for l in f[g_] if not (isinstance(l, VM) and l.tag[0] == "X")]
            if s == 0:
                for j in range(8):
                    sc = [f"v_pk_mul_f32 {acc3[i][j].sub(r,2)}, {acc3[i][j].sub(r,2)}, {SCL.sub(j & ~1, 2)} op_sel:[0,{j&1}] op_sel_hi:[1,{j&1}]" for i in range(4) for r in (0, 2)]
                    if j == 0: put(f, -1, sc + ["s_nop 1"])
                    else:
                        for k in range(8): put(f, 4*(j - 1) + k // 3, sc[k])
        L7 = resolve_waits(p3iter(hookL7, now=True), L3 + L3)
        probs += check_hazards(L3 + L7, "l7")
        C.ext(L3); C.ext(tabl(L7)); C.ext(ts.at("l3end"))
        LPREV = L3 + L7
    else:
        C(".p2align 6\nP3_LOOP:")
        C.ext(L3); C.ext(tail); C.ext(ts.at("l3end"))
        LPREV = L3 + L3; RXF = RX; XEND = 0
    for w in range(3): C(f"s_cmp_eq_u32 s{sW}, {w}\ns_cbranch_scc1 P3_FIN{w}")
    A.ext(C.lines)
    RWF = [RW[0]] + [[Reg("a", 128 + 16*k + 4*i, 4) for i in range(4)] for k in range(3)]
    def fin(w):
        def adr(off): return (vL16, off) if off < 65536 else (T[0], off - 65536)
        own = [2*w, 2*w + 1]
        oth = [j for d in range(1, 4) for j in (2*((w + d) & 3), 2*((w + d) & 3) + 1)]
        mm = lambda s_, j, i: f"v_mfma_f32_16x16x32_bf16 {acc3[i][j]}, {RWF[s_][i]}, {RXF[s_][j]}, {acc3[i][j]}"
        m = [mm(0, j, i) for j in oth for i in range(4)]
        G0 = 24
        f = {}
        f[-1] = [Need([("X", 0, 1)] + ([] if WPRE else [("W", 1)]), "lgkmcnt(0)")]
        k = 0
        for s_ in (1, 2, 3):
            if s_ > 1 and not WPRE: put(f, k, Need([("W", s_)]))
            for r in (pread(s_, RWF[s_]) if WPRE else [f"ds_read_b64_tr_b16 {RWF[s_][i].sub(2*hf,2)}, {vW3a[i]} offset:{s_*4096 + hf*2048}" for i in range(4) for hf in range(2)]):
                put(f, k * 20 // 24, r); k += 1
        put(f, G0 - 1, Need([("X", 1, 1), ("X", 13, 1)] if (WPRE and XEND) else [("X", 3, 1)], "lgkmcnt(0)"))
        if WPRE: put(f, G0 - 1, "s_barrier")
        for j in oth: m += [mm(s_, j, i) for s_ in (1, 2, 3) for i in range(4)]
        for j in own: m += [mm(s_, j, i) for s_ in (0, 1, 2, 3) for i in range(4)]
        WS_ = opt.get("fws", 3)
        for n, j in enumerate(oth):
            d = j >> 1; q = (w - d - 1) & 3
            for i in range(4):
                b_, off = adr((d*3 + q)*8192 + ((j & 1)*4 + i)*1024)
                put(f, G0 + 12*(n + 1) + 5 + (WS_ if n < 5 else 1)*i, f"ds_write_b128 {b_}, {acc3[i][j]} offset:{off}")
        free = [acc3[i][j] for j in oth for i in range(4)]
        g0 = G0 + 12*6 + 5 + 6
        put(f, g0, ["s_waitcnt lgkmcnt(0)", "s_barrier"])
        k = 0
        for q in range(3):
            for jj in range(2):
                for i in range(4):
                    b_, off = adr((w*3 + q)*8192 + (jj*4 + i)*1024)
                    put(f, min(g0 + (k * 3) // 4, 127), f"ds_read_b128 {free[k]}, {b_} offset:{off}"); k += 1
        R = Asm()
        Fl = resolve_waits(interleave(m, f), LPREV)
        if opt.get("fabl"): Fl = [l for l in Fl if not l.startswith(tuple(opt["fabl"]))]
        R.ext(Fl)
        R.ext(ts.at("redw"))
        R("s_nop 3")
        for q in range(3):
            R(f"s_waitcnt lgkmcnt({[15, 8, 0][q] if not ts.on else 0})")
            for jj in range(2):
                for i in range(4):
                    a = acc3[i][2*w+jj]; b = free[q*8 + jj*4 + i]
                    for r in (0, 2): R(f"v_pk_add_f32 {a.sub(r,2)}, {a.sub(r,2)}, {b.sub(r,2)}")
        for jj in range(2):
            for ip in range(2):
                X, Y = acc3[2*ip][2*w+jj], acc3[2*ip+1][2*w+jj]
                Dd = S[0].sub(4*(jj*2+ip), 4)
                R(f"v_cvt_pk_bf16_f32 {Dd[0]}, {X[0]}, {X[1]}\nv_cvt_pk_bf16_f32 {Dd[1]}, {X[2]}, {X[3]}")
                R(f"v_cvt_pk_bf16_f32 {Dd[2]}, {Y[0]}, {Y[1]}\nv_cvt_pk_bf16_f32 {Dd[3]}, {Y[2]}, {Y[3]}")
                R(f"s_nop 1\nv_permlane16_swap_b32 {Dd[0]}, {Dd[2]}\nv_permlane16_swap_b32 {Dd[1]}, {Dd[3]}")
                R(f"buffer_store_dwordx4 {Dd}, {T[1]}, {srd(S_OUT)}, s{sT0+jj} offen offset:{ip*64} {opt.get('outflag', '')}")
        if trace:
            R(f"""s_waitcnt vmcnt(0)
            s_memrealtime s[100:101]
            s_waitcnt lgkmcnt(0)
            s_lshl_b64 exec, 1, s81
            v_mov_b32 v0, s100
            s_mov_b64 exec, -1
            s_lshl_b32 s80, s2, 2
            s_add_u32 s80, s80, s{sW}
            s_lshl_b32 s80, s80, 8
            s_add_u32 s80, s80, {TS_OFF}
            v_lshlrev_b32 {T[3]}, 2, {vL}
            buffer_store_dword v0, {T[3]}, {srd(S_WS)}, s80 offen
            s_waitcnt vmcnt(0) ; TRACE""")
        if opt.get("dbgt"):
            R(f"""s_waitcnt vmcnt(0) lgkmcnt(0)
            s_memrealtime s[100:101]
            s_waitcnt lgkmcnt(0)
            s_mov_b32 s{S_C}, s{P_DBG}
            s_mov_b32 s{S_C+1}, s{P_DBG+1}
            s_mov_b32 s{S_C+2}, 256
            s_mov_b64 exec, 1""")
            for i in range(10):
                R(f"""s_sub_u32 s80, s{82+2*i}, s{sNonce}
                s_add_u32 s80, s80, 1000
                v_mov_b32 {T[3]}, s80
                buffer_atomic_umax {T[3]}, {vZero}, {srd(S_C)}, 0 offen offset:{8 + 4*i}""")
            R("s_waitcnt vmcnt(0)")
        else:
            R.ext(ts.flush(S_WS, sW, S[1].base))
        R("s_endpgm")
        return R
    for w in (3, 0, 1, 2):
        R = fin(w)
        probs += check_hazards(LPREV[-10:] + R.lines, f"fin{w}")
        A(f"P3_FIN{w}:"); A.ext(R.lines)
    A.ext(slow1.lines)
    A("P3_SLOWH:"); A.ext(spin("P3_SH", hpoll, [vFl[k] for k in range(4)], "P3_HOK"))
    A("P3_SLOWO:"); A.ext(spin("P3_SO", opoll, [vFl[0]], "P3_OOK"))

    F = Asm()
    F("P2_FALLBACK:")
    for ab in range(2): F(f"v_mov_b32 {T[ab]}, 0xff800000")
    F(f"s_mov_b32 s{sT0}, {KV_OFF}")
    F("P2_FB1:")
    for t in range(2): F(f"buffer_load_dwordx4 {K[0][t]}, {vL16}, {srd(S_WS)}, s{sT0} offen offset:{t*1024} {SC1}")
    F("s_waitcnt vmcnt(0)")
    for ab in range(2):
        F(f"v_mfma_f32_32x32x16_bf16 {S[ab]}, {K[0][0]}, {Q[ab][0]}, 0\nv_mfma_f32_32x32x16_bf16 {S[ab]}, {K[0][1]}, {Q[ab][1]}, {S[ab]}")
    F("s_nop 15")
    for ab in range(2):
        for r in range(0, 16, 2): F(f"v_max3_f32 {T[ab]}, {S[ab][r]}, {S[ab][r+1]}, {T[ab]}")
    F(f"s_add_u32 s{sT0}, s{sT0}, 4096\ns_cmp_lt_u32 s{sT0}, {KV_OFF + 262144}\ns_cbranch_scc1 P2_FB1")
    for ab in range(2): F(f"v_mov_b32 {T[2+ab]}, {T[ab]}")
    F("s_nop 1")
    for ab in range(2): F(f"v_permlane32_swap_b32 {T[ab]}, {T[2+ab]}")
    for ab in range(2): F(f"v_max_f32 {vFl[ab]}, {T[ab]}, {T[2+ab]}")
    for ab in range(2):
        for r in range(16): F(f"v_mov_b32 {O[ab][r]}, 0")
        for r in range(4): F(f"v_mov_b32 {Lc[ab][r]}, 0")
    F(f"s_mov_b32 s{sT0}, {KV_OFF}")
    F("P2_FB2:")
    for t in range(2): F(f"buffer_load_dwordx4 {K[0][t]}, {vL16}, {srd(S_WS)}, s{sT0} offen offset:{t*1024} {SC1}")
    for t in range(2): F(f"buffer_load_dwordx4 {V[0][t]}, {vL16}, {srd(S_WS)}, s{sT0} offen offset:{2048 + t*1024} {SC1}")
    F("s_waitcnt vmcnt(0)")
    for ab in range(2):
        F(f"v_mfma_f32_32x32x16_bf16 {S[ab]}, {K[0][0]}, {Q[ab][0]}, 0\nv_mfma_f32_32x32x16_bf16 {S[ab]}, {K[0][1]}, {Q[ab][1]}, {S[ab]}")
    F("s_nop 15")
    for ab in range(2):
        for r in range(16): F(f"v_sub_f32 {S[ab][r]}, {S[ab][r]}, {vFl[ab]}")
        for r in range(16): F(f"v_exp_f32 {S[ab][r]}, {S[ab][r]}")
        F("s_nop 0")
        for r in range(8): F(f"v_cvt_pk_bf16_f32 {P[ab][r]}, {S[ab][2*r]}, {S[ab][2*r+1]}")
    F("s_nop 1")
    for ab in range(2):
        for u_ in range(2):
            F(f"v_mfma_f32_32x32x16_bf16 {O[ab]}, {V[0][u_]}, {P[ab].sub(4*u_,4)}, {O[ab]}")
            if u_ == 0: F(lsum(ab))
    F(f"s_add_u32 s{sT0}, s{sT0}, 4096\ns_cmp_lt_u32 s{sT0}, {KV_OFF + 262144}\ns_cbranch_scc1 P2_FB2")
    F("s_nop 15")
    for ab in range(2): F(f"v_add_f32 {Lc[ab][0]}, {Lc[ab][0]}, {Lc[ab][1]}")
    F("s_branch P2_FINISH")
    F("L_END:\ns_endpgm")
    probs += check_hazards(F.lines, "fb")
    A.ext(F.lines)
    for p_ in probs: print("PROBLEM", p_)
    launch = f"; @launch grid=(256,1,1) block=(256,1,1) lds=163840"
    return launch, A.text(), kdesc(NAME, 512, 256)

HDR = open("gated_mix__grouped_kv_mqa__glu_gated_reglu__prompt.s.ref").read().split("; Override launch")[0]
def build(opt=None):
    l, t, d = gen(opt)
    txt = HDR + l + "\n" + '.amdgcn_target "amdgcn-amd-amdhsa--gfx950"\n.text\n' + t + d
    if (opt or {}).get("skip3"):
        import skip3
        txt = skip3.apply(txt, NAME, *opt["skip3"])
    return txt
if __name__ == "__main__":
    import sys, json
    out = sys.argv[1] if len(sys.argv) > 1 else "gated_mix__grouped_kv_mqa__glu_gated_reglu__prompt.s"
    opt = json.loads(sys.argv[2]) if len(sys.argv) > 2 else {}
    open(out, "w").write(build(opt))
```

```python
from asmlib import *
from common import *
LOG2E = math.log2(math.e)
NAME = "gated_mix__grouped_kv_mqa__glu_gated_reglu__prompt_kernel"

FL_E = 0x1650000
FL_ES = 4352
FL_Q = 0x1660000
FL_H = 0x1670000
FL_O = 0x1672000
SPIN_MAX = 1 << 20
PW = 7168

def put(f, g, x):
    f.setdefault(g, []).extend(x if isinstance(x, list) else [x])

def gen(opt=None):
    opt = opt or {}
    A = Asm()
    DEF = ["start", "p1", "p1end", "kvdone", "poll0", "poll1", "att", "attend", "tail"]
    tsn = opt.get("ts")
    ts = TSN(DEF if tsn == 1 else tsn, opt.get("tskind", "rt"))
    SC1 = "sc1"
    probs = []
    P_X, P_WQ, P_WK, P_WV, P_WO = 4, 6, 8, 10, 12
    P_WG, P_WU, P_WD, P_GW = 16, 18, 20, 22
    P_OUT, P_DBG, P_WS = 24, 26, 28
    S_WS, S_A, S_B, S_C, S_D, S_E = 32, 36, 40, 44, 48, 52
    sW, sNonce = 56, 57
    sT0, sT1, sT2, sT3 = 58, 59, 60, 61
    sIt, sRB, sCB = 62, 63, 64
    sL = 65
    vL, vL16 = Reg("v", 1, 1), Reg("v", 2, 1)
    def srd(b): return f"s[{b}:{b+3}]"

    A("""; LOCALQ AFS4
; (published in d_debug by workgroup 0); consumers poll the flags and read the data with sc1 loads.""")
    A(f".globl {NAME}\n.p2align 8\n.type {NAME},@function\n{NAME}:")
    A("s_cmp_ge_u32 s2, 256\ns_cbranch_scc1 L_END")
    A.ext(ts.at("start"))
    A(f"""s_load_dwordx8 s[4:11], s[0:1], 0
    s_load_dwordx2 s[12:13], s[0:1], 32
    s_load_dwordx8 s[16:23], s[0:1], 48
    s_load_dwordx4 s[24:27], s[0:1], 80
    s_load_dwordx2 s[28:29], s[0:1], 96
    s_memrealtime s[30:31]
    v_lshrrev_b32 v3, 6, v0
    v_and_b32 {vL}, 63, v0
    v_readfirstlane_b32 s{sW}, v3
    v_lshlrev_b32 {vL16}, 4, {vL}""")
    CPF = opt.get("cpf", 1) and not opt.get("trace")
    sPC = 100
    cpf = VM(f"global_load_dword a253, v0, s[{sPC}:{sPC+1}]", "CP")
    cpa = "v_add_u32 v0, 0x2000, v0"
    def cp(adv=True): return ([cpf] + ([cpa] if adv else [])) if CPF else []
    if CPF:
        A(f"""s_getpc_b64 s[{sPC}:{sPC+1}]
        L_PCREF:
        v_lshrrev_b32 v0, 2, v0
        v_lshlrev_b32 v0, 7, v0
        s_sub_u32 s{sPC}, s{sPC}, L_PCREF-{NAME}
        s_subb_u32 s{sPC+1}, s{sPC+1}, 0""")
        A.ext(cp())

    if opt.get("ticket", 0):
        A(f"""s_getreg_b32 s{sT0}, hwreg(HW_REG_XCC_ID)
        s_and_b32 s{sT0}, s{sT0}, 7
        s_cmp_lg_u32 s{sW}, 0
        s_cbranch_scc1 L_TKWAIT
        v_mov_b32 v5, 0
        s_mov_b32 s{sT1}, 8
        s_mov_b32 s{S_WS+2}, 256
        s_mov_b32 s{S_WS+3}, 0x20000
        s_waitcnt lgkmcnt(0)
        s_mov_b32 s{S_WS}, s{P_DBG}
        s_mov_b32 s{S_WS+1}, s{P_DBG+1}
        s_mov_b64 exec, 1
        L_TKTRY:
        v_mov_b32 v4, 1
        s_lshl_b32 s{sT2}, s{sT0}, 5
        buffer_atomic_add v4, v5, {srd(S_WS)}, s{sT2} offen offset:4 sc0
        s_waitcnt vmcnt(0)
        v_readfirstlane_b32 s{sT2}, v4
        s_cmp_lt_u32 s{sT2}, 32
        s_cbranch_scc1 L_TKGOT
        s_add_u32 s{sT0}, s{sT0}, 1
        s_and_b32 s{sT0}, s{sT0}, 7
        s_sub_u32 s{sT1}, s{sT1}, 1
        s_cmp_lg_u32 s{sT1}, 0
        s_cbranch_scc1 L_TKTRY
        s_mov_b32 s{sT2}, 32
        L_TKGOT:
        s_lshl_b32 s{sT2}, s{sT2}, 3
        s_add_u32 s{sT2}, s{sT2}, s{sT0}
        v_mov_b32 v4, s{sT2}
        ds_write_b32 v5, v4
        s_mov_b64 exec, -1
        s_waitcnt lgkmcnt(0)
        L_TKWAIT:
        v_mov_b32 v5, 0
        s_barrier
        ds_read_b32 v4, v5
        s_waitcnt lgkmcnt(0)
        v_readfirstlane_b32 s2, v4
        s_barrier
        s_cmp_ge_u32 s2, 256
        s_cbranch_scc1 L_END""")
    trace = opt.get("trace")
    def tr_issue(): return ["s_memrealtime s[100:101]"] if trace else []
    def tr_commit(): return ["s_lshl_b64 exec, 1, s81", "v_mov_b32 v0, s100", "s_mov_b64 exec, -1", "s_add_u32 s81, s81, 1"] if trace else []
    if trace: A("s_mov_b32 s81, 0\nv_mov_b32 v0, 0\ns_memrealtime s[100:101]\ns_waitcnt lgkmcnt(0)"); A.ext(tr_commit())
    S_X, S_W0, S_W1, S_KV, S_Wb = S_A, S_B, S_C, S_D, S_E
    sSoX = sL - 1
    sSo0 = sL + 7
    sSo1 = sL + 7
    sM0X, sM0W, sM0K, sWwr = sL + 11, sL + 12, sL + 13, sL + 14
    sWrd, s16k, sStep1, sSa, sSc, sIsB, sKVst, sEfl = 14, 30, 15, 3, 31, 9, 10, 11
    XB, WB, KR = 0, 65536, 147456
    vXo = [3, 4]; vWo0, vWo1, vKo, vSXo = 5, 6, 7, 8
    vXa = [9, 10]; vW0a = [[11 + 2*i, 12 + 2*i] for i in range(4)]; vW1a = [19, 20, 21, 22]; vSWa = 23
    vT = 24
    acc = [[None]*8 for _ in range(8)]
    p = 32
    for i in range(7):
        for j in range(8):
            acc[i][j] = Reg("v", p, 4); p += 4
    RA = [[Reg("a", 64*s + 4*i, 4) for i in range(8)] for s in range(2)]
    RB = [[Reg("a", 64*s + 32 + 4*j, 4) for j in range(8)] for s in range(2)]
    SA = [Reg("a", 128 + 4*s, 4) for s in range(2)]
    sacc = Reg("a", 144, 4)
    for j in range(8): acc[7][j] = Reg("a", 148 + 4*j, 4)
    SXB = [[Reg("a", 180 + 8*b + 4*j, 4) for j in range(2)] for b in range(2)]
    GXa = [Reg("a", 196 + 8*r, 8) for r in range(2)]
    GWa = Reg("a", 212, 8)
    t0, t1, t2, t3, t4, t5, t6, t7 = range(vT, vT + 8)
    HUGE = 0x40000000
    KP = opt.get("kp", [0, 1, 2, 4, 5, 6, 7, 8, 9, 10, 12, 13, 14, 15, 3, 11])
    sCWa, sCWb = 6, 7

    A(f"""s_and_b32 s{sT0}, s2, 1
    s_lshl_b32 s{sT0}, s{sT0}, 2
    s_bfe_u32 s{sT1}, s2, 0x20003
    s_add_u32 s{sRB}, s{sT0}, s{sT1}
    s_bfe_u32 s{sT0}, s2, 0x20001
    s_lshl_b32 s{sT0}, s{sT0}, 3
    s_lshr_b32 s{sT1}, s2, 5
    s_add_u32 s{sCB}, s{sT0}, s{sT1}""")
    A(f"""s_lshl_b32 s{sT0}, s{sW}, 6
    v_lshrrev_b32 v{t0}, 3, {vL}
    v_add_u32 v{t2}, s{sT0}, v{t0}
    v_lshlrev_b32 v{t2}, 11, v{t2}
    v_lshrrev_b32 v{t1}, 4, {vL}
    v_and_b32 v{t3}, 7, {vL}
    v_xor_b32 v{t4}, v{t3}, v{t1}
    v_lshl_add_u32 v{vXo[0]}, v{t4}, 4, v{t2}
    v_add_u32 v{vXo[0]}, {KP[0]*128}, v{vXo[0]}
    v_xor_b32 v{vXo[1]}, 64, v{vXo[0]}""")
    for e in range(1, 8): A(f"s_mov_b32 s{sSoX+e}, {e*16384 - (e&3)*1024}")
    A(f"""s_lshl_b32 s{sM0X}, s{sW}, 13
    s_lshl_b32 s{sM0W}, s{sW}, 11
    s_add_u32 s{sM0K}, s{sM0W}, {KR}
    s_add_u32 s{sM0W}, s{sM0W}, {WB}
    s_and_b32 s{sT1}, s{sCB}, 3
    s_mov_b32 s{sStep1}, {PW}
    s_cmp_eq_u32 s{sT1}, 3
    s_cselect_b32 s{sStep1}, 2048, s{sStep1}""")
    A(f"""s_lshl_b32 s{sT0}, s{sW}, 3
    v_add_u32 v{t2}, s{sT0}, v{t1}
    v_mul_lo_u32 v{t2}, v{t2}, s{sStep1}
    s_and_b32 s{sT1}, s{sW}, 1
    s_lshl_b32 s{sT2}, s{sT1}, 3
    v_and_b32 v{t4}, 15, {vL}
    v_lshl_or_b32 v{t5}, v{t1}, 1, s{sT2}
    v_xor_b32 v{t4}, v{t4}, v{t5}
    v_lshl_add_u32 v{vWo1}, v{t4}, 4, v{t2}
    v_add_u32 v{t2}, s{sT0}, v{t0}
    v_mul_u32_u24 v{t2}, {PW}, v{t2}
    s_lshl_b32 s{sT2}, s{sT1}, 2
    v_and_b32 v{t4}, 1, v{t1}
    v_lshl_or_b32 v{t4}, v{t4}, 1, s{sT2}
    v_xor_b32 v{t4}, v{t4}, v{t3}
    v_lshl_add_u32 v{vWo0}, v{t4}, 4, v{t2}""")
    A.ext(ts.at("a0"))
    A("s_waitcnt lgkmcnt(0)")
    A.ext(ts.at("a1"))
    A(f"""s_lshl_b32 s{sT0}, s{sRB}, 19
    s_add_u32 s{S_X}, s{P_X}, s{sT0}
    s_addc_u32 s{S_X+1}, s{P_X+1}, 0
    s_mov_b32 s{S_X+2}, 0x80000
    s_mov_b32 s{S_X+3}, 0x20000""")
    A(f"""s_mov_b32 s{S_WS+3}, 0x20000
    s_or_b32 s{sT0}, s2, s{sW}
    s_cmp_lg_u32 s{sT0}, 0
    s_cbranch_scc1 P1_NONONCE
    s_or_b32 s30, s30, 1
    s_mov_b32 s{S_WS}, s{P_DBG}
    s_mov_b32 s{S_WS+1}, s{P_DBG+1}
    s_mov_b32 s{S_WS+2}, 256
    v_mov_b32 v{t6}, s30
    v_mov_b32 v{t7}, 0
    s_mov_b64 exec, 1
    buffer_store_dword v{t6}, v{t7}, {srd(S_WS)}, 0 offen sc1
    s_mov_b64 exec, -1
    P1_NONONCE:""")
    WNT = opt.get("wnt", "")
    def xdma(par):
        sl = []
        for e in range(8):
            pre = []
            if e == 0: pre = [f"s_add_u32 m0, s{sM0X}, {par}"]
            if e == 4: pre = ["s_add_u32 m0, m0, 4096"]
            so = "0" if e == 0 else f"s{sSoX+e}"
            sl.append((pre, VM(f"buffer_load_dwordx4 v{vXo[e&1]}, {srd(S_X)}, {so} offen offset:{(e&3)*1024} {opt.get('xnt', '')} lds", "X")))
        return sl
    def wdma(hb, slot):
        so0 = "0" if hb == 0 else f"s{sSo0}"
        so1 = ["0" if hb == 0 else f"s{sSo1+2}", f"s{sSo1 + 1 + 2*hb}"]
        return [([f"s_add_u32 m0, s{sM0W}, {slot}"], VM(f"buffer_load_dwordx4 v{vWo0}, {srd(S_W0)}, {so0} offen {WNT} lds", "W")),
                ([], VM(f"buffer_load_dwordx4 v{vWo0}, {srd(S_Wb)}, {so0} offen offset:1024 {WNT} lds", "W")),
                (["s_add_u32 m0, m0, 40960"], VM(f"buffer_load_dwordx4 v{vWo1}, {srd(S_W1)}, {so1[0]} offen {WNT} lds", "W")),
                ([], VM(f"buffer_load_dwordx4 v{vWo1}, {srd(S_W1)}, {so1[1]} offen offset:1024 {WNT} lds", "W"))]
    def kdma(slot):
        return [([f"s_add_u32 m0, s{sM0K}, {slot}"], VM(f"buffer_load_dwordx4 v{vKo}, {srd(S_KV)}, 0 offen lds", "X")),
                ([], VM(f"buffer_load_dwordx4 v{vKo}, {srd(S_KV)}, 0 offen offset:1024 lds", "X"))]
    def sxload(b): return [VM(f"buffer_load_dwordx4 {SXB[b][j]}, v{vSXo}, {srd(S_X)}, 0 offen offset:{j*64}", "SX") for j in range(2)]
    def emit_dma(X, sl):
        for pre, d in sl:
            X.ext(pre)
            if pre: X("s_nop 0")
            X(d)
    emit_dma(A, xdma(0))
    A.ext(ts.at("a2"))
    A(f"""s_lshr_b32 s{sT0}, s{sCB}, 2
    s_and_b32 s{sT1}, s{sCB}, 3
    s_mul_i32 s{sT2}, s{sT0}, 896
    s_lshl_b32 s{sT3}, s{sT1}, 8
    s_add_u32 s{sT2}, s{sT2}, s{sT3}
    s_add_u32 s{S_W0}, s{P_WG}, s{sT2}
    s_addc_u32 s{S_W0+1}, s{P_WG+1}, 0
    s_sub_u32 s{S_W0+2}, {1024*PW}, s{sT2}
    s_mov_b32 s{S_W0+3}, 0x20000
    s_mov_b32 s{S_W1+3}, 0x20000
    s_mov_b32 s{S_Wb+3}, 0x20000
    s_mov_b32 s{sSo0}, {32*PW}
    s_cmp_eq_u32 s{sT1}, 3
    s_cbranch_scc1 P1_SRDB
    s_add_u32 s{S_Wb}, s{S_W0}, {4*PW - 1024}
    s_addc_u32 s{S_Wb+1}, s{S_W0+1}, 0
    s_sub_u32 s{S_Wb+2}, s{S_W0+2}, {4*PW - 1024}
    s_add_u32 s{S_W1}, s{P_WU}, s{sT2}
    s_addc_u32 s{S_W1+1}, s{P_WU+1}, 0
    s_mov_b32 s{S_W1+2}, s{S_W0+2}
    v_mov_b32 v{vWo0}, v{vWo1}
    s_branch P1_SRDD
    P1_SRDB:
    s_add_u32 s{S_Wb}, s{P_WU}, s{sT2}
    s_addc_u32 s{S_Wb+1}, s{P_WU+1}, 0
    s_sub_u32 s{S_Wb}, s{S_Wb}, 1024
    s_subb_u32 s{S_Wb+1}, s{S_Wb+1}, 0
    s_add_u32 s{S_Wb+2}, s{S_W0+2}, 1024
    s_lshl_b32 s{sT0}, s{sT0}, 8
    s_add_u32 s{S_W1}, s{P_WQ}, s{sT0}
    s_addc_u32 s{S_W1+1}, s{P_WQ+1}, 0
    s_sub_u32 s{S_W1+2}, {1024*2048}, s{sT0}
    P1_SRDD:
    s_lshl_b32 s{sSo1+1}, s{sStep1}, 2
    s_sub_u32 s{sSo1+1}, s{sSo1+1}, 1024
    s_lshl_b32 s{sSo1+2}, s{sStep1}, 5
    s_add_u32 s{sSo1+3}, s{sSo1+2}, s{sSo1+1}
    s_lshl_b32 s{sStep1}, s{sStep1}, 6""")
    def advXf(a, b):
        d = (KP[b] - KP[a]) * 128 & 0xffffffff
        return [f"v_add_u32 v{vXo[0]}, {d:#x}, v{vXo[0]}", f"v_add_u32 v{vXo[1]}, {d:#x}, v{vXo[1]}"]
    def advWf(a, b):
        d = KP[b] - KP[a]
        if d == 1: return [f"v_add_u32 v{vWo0}, {64*PW}, v{vWo0}", f"v_add_u32 v{vWo1}, s{sStep1}, v{vWo1}"]
        return [f"v_add_u32 v{vWo0}, {d*64*PW & 0xffffffff:#x}, v{vWo0}", f"s_mul_i32 s{sT3}, s{sStep1}, {d}\nv_add_u32 v{vWo1}, s{sT3}, v{vWo1}"]
    if KP[0]:
        A(f"""v_add_u32 v{vWo0}, {KP[0]*64*PW}, v{vWo0}
        s_mul_i32 s{sT3}, s{sStep1}, {KP[0]}
        v_add_u32 v{vWo1}, s{sT3}, v{vWo1}""")
    advK = f"v_add_u32 v{vKo}, 4096, v{vKo}"
    advS = f"v_add_u32 v{vSXo}, 128, v{vSXo}"
    emit_dma(A, wdma(0, 0)); emit_dma(A, wdma(1, 8192))
    A.ext(advXf(0, 1) + advWf(0, 1))
    A(f"""s_bfe_u32 s{sT0}, s{sCB}, 0x10001
    s_and_b32 s{sT1}, s{sW}, 1
    s_bitcmp1_b32 s{sCB}, 0
    s_cselect_b32 s{S_KV}, s{P_WV}, s{P_WK}
    s_cselect_b32 s{S_KV+1}, s{P_WV+1}, s{P_WK+1}
    s_cselect_b32 s{sSa}, s{sT1}, s{sT0}
    s_cselect_b32 s{sSc}, s{sT0}, s{sT1}
    s_mov_b32 s{S_KV+2}, 65536
    s_mov_b32 s{S_KV+3}, 0x20000
    s_and_b32 s{sIsB}, s{sCB}, 3
    s_cmp_eq_u32 s{sIsB}, 3
    s_cselect_b32 s{sIsB}, 1, 0
    v_lshrrev_b32 v{t2}, 5, {vL}
    v_lshlrev_b32 v{t2}, 1, v{t2}
    v_xor_b32 v{t2}, v{t2}, {vL}
    v_lshlrev_b32 v{t2}, 4, v{t2}
    s_lshr_b32 s{sT2}, s{sW}, 1
    s_lshl_b32 s{sT0}, s{sT2}, 15
    s_lshl_b32 s{sT1}, s{sT1}, 11
    s_add_u32 s{sT0}, s{sT0}, s{sT1}
    v_add_u32 v{vKo}, s{sT0}, v{t2}
    s_lshr_b32 s{sT0}, s{sCB}, 2
    s_lshl_b32 s{sT0}, s{sT0}, 1
    s_add_u32 s{sT0}, s{sT0}, s{sSa}
    s_lshl_b32 s{sT0}, s{sT0}, 15
    s_lshl_b32 s{sT2}, s{sT2}, 10
    s_add_u32 s{sT0}, s{sT0}, s{sT2}
    v_and_b32 v{t2}, 15, {vL}
    v_lshlrev_b32 v{t2}, 11, v{t2}
    v_lshl_add_u32 v{t2}, v{t1}, 4, v{t2}
    v_add_u32 v{vSXo}, s{sT0}, v{t2}""")
    emit_dma(A, kdma(0)); A.ext(sxload(0)); A(advK); A(advS)
    A(f"""s_mov_b32 s{S_WS}, s{P_WS}
    s_mov_b32 s{S_WS+1}, s{P_WS+1}
    s_mov_b32 s{S_WS+2}, {WS_USED}""")
    A.ext(ts.at("a3"))
    second = xdma(32768) + wdma(0, 2*8192) + kdma(8192) + wdma(1, 3*8192)
    A(f"""v_and_b32 v{t0}, 15, {vL}
    v_lshrrev_b32 v{t2}, 1, v{t0}
    v_xor_b32 v{t2}, v{t2}, v{t1}
    v_lshlrev_b32 v{t2}, 4, v{t2}
    v_lshl_add_u32 v{t2}, v{t0}, 7, v{t2}
    s_lshr_b32 s{sT0}, s{sW}, 1
    s_lshl_b32 s{sT1}, s{sT0}, 14
    v_add_u32 v{vXa[0]}, s{sT1}, v{t2}
    v_xor_b32 v{vXa[1]}, 64, v{vXa[0]}
    v_bfe_u32 v{t0}, {vL}, 2, 2
    v_lshl_add_u32 v{t2}, v{t1}, 3, v{t0}
    v_and_b32 v{t3}, 1, v{t1}
    v_lshl_or_b32 v{t5}, v{t3}, 2, v{t0}
    v_and_b32 v{t4}, 3, {vL}
    v_lshlrev_b32 v{t4}, 3, v{t4}
    v_lshl_add_u32 v{t6}, v{t2}, 8, v{t4}
    v_add_u32 v{t6}, {WB + 40960}, v{t6}
    s_and_b32 s{sT0}, s{sW}, 1
    s_lshl_b32 s{sT1}, s{sT0}, 2""")
    for ii in range(4):
        A(f"""s_add_u32 s{sT2}, s{sT1}, {ii}
        v_xor_b32 v{t7}, s{sT2}, v{t5}
        v_lshl_add_u32 v{vW1a[ii]}, v{t7}, 5, v{t6}""")
    A(f"""v_lshl_add_u32 v{t2}, v{t2}, 6, v{t4}
    v_xor_b32 v{t7}, s{sSc}, v{t3}
    v_lshl_add_u32 v{t7}, v{t7}, 5, v{t2}
    s_lshr_b32 s{sT2}, s{sW}, 1
    s_lshl_b32 s{sT2}, s{sT2}, 12
    s_add_u32 s{sT2}, s{sT2}, {KR}
    v_add_u32 v{vSWa}, s{sT2}, v{t7}
    s_mov_b32 s{s16k}, 16384
    s_cmp_eq_u32 s{sIsB}, 1
    s_cbranch_scc1 P1_ADB""")
    for ii in range(4):
        A(f"v_subrev_u32 v{vW0a[ii][0]}, 40960, v{vW1a[ii]}\nv_subrev_u32 v{vW0a[ii][1]}, {40960 - 1024}, v{vW1a[ii]}")
    A(f"""s_branch P1_ADD
    P1_ADB:
    v_lshl_add_u32 v{t4}, v{t1}, 11, v{t4}
    v_lshl_add_u32 v{t4}, v{t0}, 7, v{t4}
    v_add_u32 v{t4}, {WB}, v{t4}
    v_lshrrev_b32 v{t0}, 1, v{t0}
    v_lshl_or_b32 v{t0}, v{t3}, 1, v{t0}
    s_lshl_b32 s{sT1}, s{sT0}, 1""")
    for k in range(2):
        A(f"""s_add_u32 s{sT2}, s{sT1}, {k}
        v_xor_b32 v{t7}, s{sT2}, v{t0}
        v_lshl_add_u32 v{vW0a[k][0]}, v{t7}, 5, v{t4}
        v_add_u32 v{vW0a[k][1]}, 512, v{vW0a[k][0]}
        v_add_u32 v{vW0a[2+k][0]}, 1024, v{vW0a[k][0]}
        v_add_u32 v{vW0a[2+k][1]}, 1536, v{vW0a[k][0]}""")
    A("P1_ADD:")
    A("; @@PRE@@")
    PF = opt.get("pf", 1)
    Z = []
    for i in range(8):
        for j in range(8):
            for r in range(4):
                a = acc[i][j][r]
                Z.append(f"v_mov_b32 {a}, 0" if a.f == "v" else f"v_accvgpr_write_b32 {a}, 0")
    for r in range(4): Z.append(f"v_accvgpr_write_b32 {sacc[r]}, 0")
    PEEL = opt.get("peel", 0)
    NPRE = opt.get("npre", 0)
    if not PEEL:
        per = len(Z) // len(second)
        for k, (pre, d) in enumerate(second):
            A.ext(pre); A.ext(Z[k*per:(k+1)*per]); A(d)
        A.ext(Z[len(second)*per:])
        A.ext(advXf(1, 2) + advWf(1, 2) + [advK])
    else:
        emit_dma(A, second[:NPRE])

    def reads(t, s, side):
        b = t & 1; xo = ((t >> 1) & 1)*32768; wo = (t % 5)*8192; ko = ((t >> 1) & 1)*8192
        L = [f"ds_read_b128 {RB[s][j]}, v{vXa[b]} offset:{xo + j*2048}" for j in range(8)]
        for i in range(8):
            for hf in range(2):
                if i < 4: L.append(f"ds_read_b64_tr_b16 {RA[s][i].sub(2*hf, 2)}, v{vW0a[i][hf]} offset:{wo}")
                else: L.append(f"ds_read_b64_tr_b16 {RA[s][i].sub(2*hf, 2)}, v{vW1a[i-4]} offset:{wo + hf*1024}")
        if side:
            for hf in range(2):
                L.append(f"ds_read_b64_tr_b16 {SA[s].sub(2*hf, 2)}, v{vSWa} offset:{ko + b*2048 + hf*256}")
        return L
    def mfmas(s, side=None, zero=False):
        L = []
        for i in range(8):
            js = range(8) if i % 2 == 0 else range(7, -1, -1)
            for j in js:
                L.append(f"v_mfma_f32_16x16x32_bf16 {acc[i][j]}, {RA[s][i]}, {RB[s][j]}, {0 if zero else acc[i][j]}")
            if side is not None and i == 3:
                L.append(f"v_mfma_f32_16x16x32_bf16 {sacc}, {SA[s]}, {SXB[side][s]}, {0 if zero else sacc}")
        return L
    IPF = opt.get("ipf", 0)
    npf = 0
    if IPF:
        assert KP[2:6] == [2, 4, 5, 6]
        A(f"""v_lshrrev_b32 v{t0}, 3, {vL}
        v_cmp_lt_u32 vcc, 0, v{t0}
        v_add_u32 v{t1}, 2, v{t0}
        v_and_b32 v{t2}, 7, {vL}
        v_addc_co_u32 v{t1}, vcc, 0, v{t1}, vcc
        v_cmp_gt_u32 vcc, {IPF}, v{t0}
        s_and_b32 s{sT0}, s{sCB}, 7
        s_lshl_b32 s{sT0}, s{sT0}, 2
        s_add_u32 s{sT0}, s{sT0}, s{sW}
        s_lshl_b32 s{sT0}, s{sT0}, 3
        v_add_u32 v{t3}, s{sT0}, v{t2}
        v_lshlrev_b32 v{t3}, 11, v{t3}
        v_lshl_add_u32 v{t3}, v{t1}, 7, v{t3}
        v_mov_b32 v{t6}, {HUGE}
        v_cndmask_b32 v{t3}, v{t6}, v{t3}, vcc
        buffer_load_dword a252, v{t3}, {srd(S_X)}, 0 offen
        s_and_b32 s{sT0}, s{sRB}, 3
        s_lshl_b32 s{sT0}, s{sT0}, 2
        s_add_u32 s{sT0}, s{sT0}, s{sW}
        s_lshl_b32 s{sT0}, s{sT0}, 2
        v_lshrrev_b32 v{t4}, 1, v{t2}
        v_lshl_add_u32 v{t4}, v{t1}, 6, v{t4}
        v_add_u32 v{t4}, s{sT0}, v{t4}
        v_and_b32 v{t2}, 1, v{t2}
        v_lshlrev_b32 v{t2}, 7, v{t2}
        v_mul_u32_u24 v{t5}, {PW}, v{t4}
        v_add_u32 v{t5}, v{t5}, v{t2}
        v_cndmask_b32 v{t5}, v{t6}, v{t5}, vcc
        buffer_load_dword a254, v{t5}, {srd(S_W0)}, 0 offen
        s_lshr_b32 s{sT0}, s{sStep1}, 6
        v_mul_lo_u32 v{t5}, v{t4}, s{sT0}
        v_add_u32 v{t5}, v{t5}, v{t2}
        v_cndmask_b32 v{t5}, v{t6}, v{t5}, vcc
        buffer_load_dword a255, v{t5}, {srd(S_W1)}, 0 offen""")
        npf = 3
    A.ext(ts.at("a4"))
    A(f"s_waitcnt vmcnt({len(second) + npf}) lgkmcnt(0)")
    A.ext(ts.at("a5"))
    A("s_barrier")
    A.ext(reads(0, 0, True))
    A("s_waitcnt lgkmcnt(0)\ns_barrier")
    A.ext(ts.at("p1"))
    if ts.on: A("s_waitcnt lgkmcnt(0)")
    pro_hist = list(A.lines)

    NOB1 = opt.get("nob1", 0)
    def step(st, hook=None, cpl=False):
        out = []
        sd = st < 8; side = st & 1 if sd else None
        dma = st < 14; last = st == 15
        n = 65 if sd else 64
        BG = n - opt.get('bgo', 4)
        f = {}
        for k, r in enumerate(reads(2*st + 1, 1, sd)): put(f, 2*k, r)
        if dma:
            dg = opt.get('dgw', [1, 9, 17, 25, 33, 39, 47, 55]) if not (st < 7) else [13, 19, 25, 31, 37, 43, 49, 55]
            wl = wdma(0, ((2*st + 4) % 5)*8192) + ([] if NOB1 else wdma(1, ((2*st + 5) % 5)*8192))
            if NOB1: dg = [13, 27, 41, 55]
            for k, (pre, d) in enumerate(wl):
                if pre: put(f, dg[k] - 1, pre)
                put(f, dg[k], d)
            if st < 13 and not NOB1: put(f, 57, advWf(st + 2, st + 3)[0]); put(f, 58, advWf(st + 2, st + 3)[1])
        if st < 7:
            for k, l in enumerate(sxload(side ^ 1)): put(f, [1, 7][k], l)
            put(f, 9, advS)
        if cpl: put(f, 4, cp())
        if hook: hook(0, f, BG)
        put(f, BG, [Need(["X"], "lgkmcnt(0)") if not last else "s_waitcnt lgkmcnt(0)", "s_barrier"])
        out += interleave(mfmas(0, side), f)
        if last: return out + tr_issue() + (["s_waitcnt lgkmcnt(0)"] if trace else []) + tr_commit()
        f = {}
        for k, r in enumerate(reads(2*st + 2, 0, st < 7)): put(f, 2*k, r)
        if dma:
            kv = st < 6
            dl = ((kdma((st & 1)*8192) if kv else []) + xdma((st & 1)*32768)) if not opt.get('xfirst') else (xdma((st & 1)*32768) + (kdma((st & 1)*8192) if kv else []))
            dg = opt.get('dgk', [1, 7, 13, 19, 25, 31, 37, 43, 49, 55]) if kv else opt.get('dgx', [1, 9, 17, 25, 33, 41, 47, 55])
            if NOB1:
                dl = wdma(1, ((2*st + 5) % 5)*8192) + dl
                dg = [1 + 2*((k * 28) // len(dl)) for k in range(len(dl))]
                if st < 13: put(f, 30, advWf(st + 2, st + 3)[0]); put(f, 32, advWf(st + 2, st + 3)[1])
            for k, (pre, d) in enumerate(dl):
                if pre: put(f, dg[k] - 1, pre)
                put(f, dg[k], d)
            if st < 13: put(f, 57, advXf(st + 2, st + 3)[0]); put(f, 59, advXf(st + 2, st + 3)[1])
            if kv: put(f, 58 if (opt.get('xfirst') or NOB1) else 9, advK)
        if hook: hook(1, f, BG)
        put(f, BG - 3, tr_issue())
        put(f, BG, [Need(["SX"], "lgkmcnt(0)") if st < 7 else "s_waitcnt lgkmcnt(0)"] + (["s_barrier"] if (not NOB1 or st == 8) else []) + tr_commit())
        out += interleave(mfmas(1, side), f)
        return out

    vN, vZ, vKA, vFA = t0, t1, t2, t3
    u = 28
    nload = f"buffer_load_dword v{vN}, v{vZ}, {srd(S_KV)}, 0 offen sc1"
    dbgsrd = [f"s_mov_b32 s{S_KV}, s{P_DBG}", f"s_mov_b32 s{S_KV+1}, s{P_DBG+1}", f"s_mov_b32 s{S_KV+2}, 256", f"v_mov_b32 v{vZ}, 0"]
    PSC = KR + 4096
    kvK = f"""v_bfe_u32 v{vKA}, {vL}, 3, 1
    v_lshlrev_b32 v{vKA}, 4, v{vKA}
    v_and_b32 v{vFA}, 7, {vL}
    v_add_u32 v{vKA}, v{vKA}, v{vFA}
    v_bfe_u32 v{vFA}, {vL}, 4, 1
    v_lshl_add_u32 v{vKA}, v{vFA}, 5, v{vKA}
    v_lshlrev_b32 v{vKA}, 4, v{vKA}
    v_lshrrev_b32 v{vFA}, 5, {vL}
    v_lshl_add_u32 v{vKA}, v{vFA}, 10, v{vKA}
    s_lshl_b32 s{sKVst}, s{sSa}, 7
    s_lshl_b32 s{sEfl}, s{sSc}, 3""".split("\n")
    kvV = f"""v_lshrrev_b32 v{vKA}, 5, {vL}
    v_lshlrev_b32 v{vKA}, 4, v{vKA}
    v_bfe_u32 v{vFA}, {vL}, 4, 1
    v_lshl_add_u32 v{vKA}, v{vFA}, 2, v{vKA}
    v_bfe_u32 v{vFA}, {vL}, 2, 1
    v_lshl_add_u32 v{vKA}, v{vFA}, 5, v{vKA}
    v_lshlrev_b32 v{vKA}, 4, v{vKA}
    v_bfe_u32 v{vFA}, {vL}, 3, 1
    v_lshl_add_u32 v{vKA}, v{vFA}, 10, v{vKA}
    v_and_b32 v{vFA}, 3, {vL}
    v_lshl_add_u32 v{vKA}, v{vFA}, 1, v{vKA}
    s_lshl_b32 s{sKVst}, s{sSc}, 7
    s_lshl_b32 s{sEfl}, s{sSa}, 3""".split("\n")
    kvaddr = [f"s_bitcmp1_b32 s{sCB}, 0", "s_cbranch_scc1 P1_KVAV"] + [l.strip() for l in kvK] + ["P1_KVAD:",
              f"s_add_u32 s{sKVst}, s{sKVst}, s{sEfl}", f"s_add_u32 s{sKVst}, s{sKVst}, {KR}", f"v_add_u32 v{vKA}, s{sKVst}, v{vKA}"]
    kvwr = [f"s_bitcmp1_b32 s{sCB}, 0", "s_cbranch_scc1 P1_KVWV", f"ds_write_b64 v{vKA}, v[{u}:{u+1}]", "P1_KVWD:"]
    ool = Asm()
    ool("P1_KVAV:"); ool.ext(kvV); ool("s_branch P1_KVAD")
    ool(f"""P1_KVWV:
    ds_write_b16 v{vKA}, v{u}
    ds_write_b16_d16_hi v{vKA}, v{u} offset:16
    ds_write_b16 v{vKA}, v{u+1} offset:32
    ds_write_b16_d16_hi v{vKA}, v{u+1} offset:48
    s_branch P1_KVWD""")
    vP = vSXo
    KT = Reg("a", 128, 4); PT = Reg("a", 132, 4)
    QPOLL = opt.get("qpoll", 0)
    CW = opt.get("cw", 1)
    CA, CB = Reg("a", 136, 4), Reg("a", 140, 4)
    vDA, vDB = vSWa, vKo
    pre = list(kvaddr)
    if CW:
        pre += f"""s_lshl_b32 s{sT2}, s2, 2
        s_add_u32 s{sT2}, s{sT2}, s{sW}
        s_mul_i32 s{sT3}, s{sT2}, 7
        v_lshrrev_b32 v24, 3, {vL}
        v_and_b32 v25, 7, {vL}
        v_lshlrev_b32 v25, 4, v25
        v_add_u32 v27, s{sT3}, v24
        v_and_b32 v31, 1, v27
        v_lshrrev_b32 v27, 1, v27
        v_lshl_add_u32 v29, v27, 8, v25
        v_mul_u32_u24 v30, {CW_SZ}, v31
        v_add_u32 v29, v29, v30
        v_add_u32 v29, {CW_OFF}, v29
        v_lshl_add_u32 v27, v27, 11, v25
        v_lshl_add_u32 v27, v31, 10, v27
        v_cmp_gt_u32 vcc, 56, {vL}
        v_mov_b32 v31, {HUGE}
        v_add_u32 v27, 384, v27
        v_cndmask_b32 v27, v31, v27, vcc
        v_cndmask_b32 v29, v31, v29, vcc
        v_mul_u32_u24 v30, {CW_SZ}, v24
        v_add_u32 v30, v30, v25
        s_lshl_b32 s{sT3}, s{sT2}, 8
        s_add_u32 s{sT3}, s{sT3}, {CW_OFF + 3584*256}
        v_add_u32 v30, s{sT3}, v30
        v_lshl_add_u32 v28, v24, 10, v25
        s_lshl_b32 s{sT3}, s{sT2}, 11
        s_add_u32 s{sT3}, s{sT3}, 384
        v_cmp_gt_u32 vcc, 16, {vL}
        v_add_u32 v28, s{sT3}, v28
        s_nop 0
        v_cndmask_b32 v28, v31, v28, vcc
        v_cndmask_b32 v30, v31, v30, vcc""".split("\n")
    pre = [l.strip() if type(l) is str else l for l in pre]
    k_ = A.lines.index("; @@PRE@@"); A.lines[k_:k_ + 1] = pre
    def hookS6(ph, f, BG):
        if ph == 0 and CW:
            put(f, 2, f"s_mov_b32 s{S_KV}, s{P_WD}"); put(f, 3, [f"s_mov_b32 s{S_KV+1}, s{P_WD+1}", f"s_mov_b32 s{S_KV+2}, {3584*2048}"])
            put(f, 5, VM(f"buffer_load_dwordx4 {CA}, v27, {srd(S_KV)}, 0 offen", "CL"))
            put(f, 6, f"s_mov_b32 s{S_KV}, s{P_WO}"); put(f, 8, f"s_mov_b32 s{S_KV+1}, s{P_WO+1}"); put(f, 10, f"s_mov_b32 s{S_KV+2}, {1024*2048}")
            put(f, 11, VM(f"buffer_load_dwordx4 {CB}, v28, {srd(S_KV)}, 0 offen", "CL"))
    def hookS7(ph, f, BG):
        if ph == 1 and CW:
            put(f, 5, [Need(["CL"]), VM(f"buffer_store_dwordx4 {CA}, v29, {srd(S_WS)}, 0 offen {SC1}", "CS")])
            put(f, 13, VM(f"buffer_store_dwordx4 {CB}, v30, {srd(S_WS)}, 0 offen {SC1}", "CS"))
    def hookS8(ph, f, BG):
        if ph == 0 and QPOLL:
            for r in range(4): put(f, 2 + r, f"v_mov_b32 v{u+r}, -1")
            put(f, 5, [f"s_lshl_b32 s{sKVst}, s{sRB}, 5", f"s_add_u32 s{sKVst}, s{sKVst}, s{sCB}", f"s_lshl_b32 s{sKVst}, s{sKVst}, 2"])
            put(f, 7, [f"s_add_u32 s{sKVst}, s{sKVst}, s{sW}", f"s_lshl_b32 s{sKVst}, s{sKVst}, 12", f"s_add_u32 s{sKVst}, s{sKVst}, {QF4_OFF}"])
            for r in range(4): put(f, [13, 15, 21, 23][r], VM(f"buffer_store_dwordx4 v[{u}:{u+3}], {vL16}, {srd(S_WS)}, s{sKVst} offen offset:{r*1024} {SC1}", "QP"))
        if ph == 0:
            for k, l in enumerate(dbgsrd): put(f, 25 + 2*k, l)
            put(f, 21, [f"s_lshl_b32 s{sT2}, s{sW}, 10", f"s_add_u32 s{sT2}, s{sT2}, {PSC}"]); put(f, 23, f"v_add_u32 v{vP}, s{sT2}, {vL16}")
        if ph == 1:
            put(f, 3, f"ds_write_b128 v{vP}, {sacc}")
            put(f, 5, VM(nload, "N"))
            put(f, 11, f"v_xor_b32 v{vP}, 0x800, v{vP}")
            for r in range(4): put(f, 13 + 2*r, f"v_accvgpr_read_b32 v{u+r}, {sacc[r]}")
    def hookS9(ph, f, BG):
        if ph == 0:
            put(f, 1, f"ds_read_b128 {PT}, v{vP}")
            put(f, 11, "s_waitcnt lgkmcnt(5)")
            for r in range(4): put(f, 11 + 2*r, f"v_accvgpr_read_b32 v{vFA}, {PT[r]}"); put(f, 12 + 2*r, f"v_add_f32 v{u+r}, v{u+r}, v{vFA}")
            put(f, 21, f"v_cvt_pk_bf16_f32 v{u}, v{u}, v{u+1}"); put(f, 23, f"v_cvt_pk_bf16_f32 v{u+1}, v{u+2}, v{u+3}")
            put(f, 27, kvwr)
            put(f, 29, f"v_lshrrev_b32 v{vP}, 3, {vL}"); put(f, 31, f"v_and_b32 v{vFA}, 7, {vL}")
            put(f, 35, f"v_lshlrev_b32 v{vFA}, 4, v{vFA}"); put(f, 37, f"v_lshl_add_u32 v{vP}, v{vP}, 8, v{vFA}")
            put(f, 41, [f"s_bfe_u32 s{sT2}, s{sCB}, 0x10001", f"s_lshl_b32 s{sT2}, s{sT2}, 7"])
            put(f, 43, f"v_add_u32 v{vP}, s{sT2}, v{vP}")
            put(f, 44, f"v_add_u32 v{vKA}, {KR}, v{vP}")
        if ph == 1:
            put(f, 3, f"ds_read_b128 {KT}, v{vKA}")
            put(f, 5, [f"s_lshl_b32 s{sKVst}, s{sRB}, 3", f"s_lshr_b32 s{sT2}, s{sCB}, 2", f"s_add_u32 s{sKVst}, s{sKVst}, s{sT2}"])
            put(f, 7, [f"s_lshl_b32 s{sKVst}, s{sKVst}, 1", f"s_and_b32 s{sT2}, s{sCB}, 1", f"s_add_u32 s{sKVst}, s{sKVst}, s{sT2}"])
            put(f, 11, [f"s_lshl_b32 s{sKVst}, s{sKVst}, 11", f"s_add_u32 s{sKVst}, s{sKVst}, {KV_OFF}", f"s_lshl_b32 s{sEfl}, s{sRB}, 5"])
            put(f, 13, [f"s_add_u32 s{sEfl}, s{sEfl}, s{sCB}", f"s_lshl_b32 s{sEfl}, s{sEfl}, 2", f"s_add_u32 s{sEfl}, s{sEfl}, {FL_E}"])
            put(f, 15, [f"s_cmp_eq_u32 s{sW}, 0", f"s_cselect_b32 s{sKVst}, s{sKVst}, {HUGE}", f"s_cselect_b32 s{sEfl}, s{sEfl}, {HUGE}"])
            put(f, 19, f"v_mul_u32_u24 v{vFA}, {FL_ES}, {vL}")
            put(f, 21, ["s_waitcnt lgkmcnt(9)", VM(f"buffer_store_dwordx4 {KT}, v{vP}, {srd(S_WS)}, s{sKVst} offen {SC1}", "KS")])
    def hookS10(ph, f, BG):
        if ph == 1:
            put(f, 27, [Need(["KS", "N"]), f"v_readfirstlane_b32 s{sNonce}, v{vN}", f"s_cmp_eq_u32 s{sNonce}, 0", "s_cbranch_scc1 P1_SLOWN", "P1_NOK:",
                       "s_mov_b64 exec, 0xff", VM(f"buffer_store_dword v{vN}, v{vFA}, {srd(S_WS)}, s{sEfl} offen sc1", "EF"), "s_mov_b64 exec, -1", "s_nop 2"])
    sKVo, sM0 = sL + 3, sL + 4
    S_KVD = S_C
    vE = Reg("v", 28, 4)
    epoll = f"buffer_load_dwordx4 {vE}, {vL16}, {srd(S_WS)}, s{sEfl} offen sc1"
    def kvdma0(slotoff):
        L = []
        for e in range(8):
            pre = []
            if e == 0: pre = [f"s_add_u32 m0, s{sM0}, {slotoff}"]
            if e == 4: pre = [f"s_add_u32 m0, m0, 4096", f"s_add_u32 s{sKVo}, s{sKVo}, 4096"]
            L.append((pre, VM(f"buffer_load_dwordx4 {vL16}, {srd(S_KVD)}, s{sKVo} offen offset:{(e&3)*1024} {SC1} lds", "KV")))
        return L
    def hookS14(ph, f, BG):
        if ph == 0:
            put(f, 5, [f"s_bfe_u32 s{sEfl}, s2, 0x30003", f"s_mul_i32 s{sEfl}, s{sEfl}, {FL_ES}", f"s_add_u32 s{sEfl}, s{sEfl}, {FL_E}"])
            put(f, 45, VM(epoll, "N"))
            put(f, 11, [f"s_mov_b32 s{S_KVD}, s{P_WS}", f"s_mov_b32 s{S_KVD+1}, s{P_WS+1}", f"s_mov_b32 s{S_KVD+2}, {KV_OFF + 262144}"])
            put(f, 13, [f"s_lshl_b32 s{sM0}, s{sW}, 13", f"s_add_u32 s{sKVo}, s{sM0}, {KV_OFF}"])
        if ph == 1: put(f, 51, [Need(["N"])] + echeck() + ["s_cbranch_scc0 P1_SLOWE", "P1_EOK:"])
    def echeck():
        return [f"v_xor_b32 {vE[0]}, {vE[0]}, v{vN}", f"v_xor_b32 {vE[1]}, {vE[1]}, v{vN}", f"v_xor_b32 {vE[2]}, {vE[2]}, v{vN}", f"v_xor_b32 {vE[3]}, {vE[3]}, v{vN}",
                f"v_or3_b32 {vE[0]}, {vE[0]}, {vE[1]}, {vE[2]}", f"v_or_b32 {vE[0]}, {vE[0]}, {vE[3]}", f"v_cmp_eq_u32 vcc, 0, {vE[0]}", "s_nop 0", "s_cmp_eq_u64 vcc, -1"]
    def hookS15(ph, f, BG):
        dg = [5, 11, 17, 23, 29, 35, 41, 46]
        if ph == 0:
            for k, (pre, d) in enumerate(kvdma0(32768*ph)):
                if pre: put(f, dg[k] - 1, pre)
                put(f, dg[k], d)
            put(f, 47, f"s_add_u32 s{sKVo}, s{sKVo}, {32768 - 4096}")
    z = [7, 8]; vOne = 23
    gv = [f"v_mov_b32 v{vOne}, 0x3f803f80", f"v_mov_b32 v{z[0]}, 0", f"v_mov_b32 v{z[1]}, 0", None]
    for k in range(8):
        gv += [f"v_accvgpr_read_b32 v26, {GWa[k]}", f"v_accvgpr_read_b32 v28, {GXa[0][k]}", f"v_accvgpr_read_b32 v30, {GXa[1][k]}",
               "v_and_b32 v27, 0xffff0000, v26", "v_and_b32 v29, 0xffff0000, v28", "v_and_b32 v31, 0xffff0000, v30",
               "v_lshlrev_b32 v26, 16, v26", "v_lshlrev_b32 v28, 16, v28", "v_lshlrev_b32 v30, 16, v30",
               "v_mul_f32 v29, v29, v27", "v_mul_f32 v31, v31, v27", "v_mul_f32 v28, v28, v26", "v_mul_f32 v30, v30, v26",
               "v_cvt_pk_bf16_f32 v28, v28, v29", "v_cvt_pk_bf16_f32 v30, v30, v31",
               f"v_dot2_f32_bf16 v{z[0]}, v28, v{vOne}, v{z[0]}", f"v_dot2_f32_bf16 v{z[1]}, v30, v{vOne}, v{z[1]}"]
    gv += [None, None]
    P2_ = lambda fmt: [fmt(r) for r in range(2)]
    for sh in (8, 4, 2, 1): gv += P2_(lambda r: f"v_add_f32_dpp v{z[r]}, v{z[r]}, v{z[r]} row_ror:{sh} row_mask:0xf bank_mask:0xf")
    for sw in ("16", "32"):
        gv += P2_(lambda r: f"v_mov_b32 v{28+r}, v{z[r]}") + P2_(lambda r: f"v_permlane{sw}_swap_b32 v{z[r]}, v{28+r}") + P2_(lambda r: f"v_add_f32 v{z[r]}, v{z[r]}, v{28+r}")
    gv += P2_(lambda r: f"v_cvt_pk_bf16_f32 v{z[r]}, v{z[r]}, v{z[r]}") + P2_(lambda r: f"v_and_b32 v{z[r]}, 0xffff0000, v{z[r]}")
    gv += P2_(lambda r: f"v_mul_f32 v{z[r]}, {f2u(-LOG2E):#x}, v{z[r]}") + [f"v_exp_f32 v{z[0]}, v{z[0]}", None, f"v_exp_f32 v{z[1]}, v{z[1]}", None]
    gv += P2_(lambda r: f"v_add_f32 v{z[r]}, 1.0, v{z[r]}") + [f"v_rcp_f32 v{z[0]}, v{z[0]}", None, f"v_rcp_f32 v{z[1]}, v{z[1]}", None]
    gv += P2_(lambda r: f"v_cvt_pk_bf16_f32 v{z[r]}, v{z[r]}, v{z[r]}") + P2_(lambda r: f"v_and_b32 v{26+r}, 0xffff0000, v{z[r]}")
    GR = opt.get("gr", 1)
    gq = [gv[k:k+GR] for k in range(0, len(gv), GR)]
    def hookS10g(ph, f, BG):
        hookS10(ph, f, BG)
        if ph == 1:
            put(f, 28, f"s_mov_b32 s{S_KV}, s{P_GW}"); put(f, 29, [f"s_mov_b32 s{S_KV+1}, s{P_GW+1}", f"s_mov_b32 s{S_KV+2}, 2048"])
            put(f, 31, VM(f"buffer_load_dwordx4 {GWa.sub(0,4)}, {vL16}, {srd(S_KV)}, 0 offen", "GL"))
            put(f, 35, VM(f"buffer_load_dwordx4 {GWa.sub(4,4)}, {vL16}, {srd(S_KV)}, 0 offen offset:1024", "GL"))
            put(f, 36, f"s_mov_b32 s{S_KV}, s{P_X}"); put(f, 37, [f"s_mov_b32 s{S_KV+1}, s{P_X+1}", f"s_mov_b32 s{S_KV+2}, 0x400000", f"s_lshl_b32 s{sT2}, s{sRB}, 5"])
            put(f, 38, f"s_add_u32 s{sT2}, s{sT2}, s{sCB}"); put(f, 39, [f"s_lshl_b32 s{sT2}, s{sT2}, 2", f"s_add_u32 s{sT2}, s{sT2}, s{sW}", f"s_lshl_b32 s{sT1}, s{sT2}, 3"])
            put(f, 40, f"s_lshl_b32 s{sT2}, s{sT2}, 12"); put(f, 42, f"s_add_u32 s{sT1}, s{sT1}, {G_OFF}")
            for k in range(4):
                put(f, [43, 45, 51, 53][k], VM(f"buffer_load_dwordx4 {GXa[k>>1].sub(4*(k&1),4)}, {vL16}, {srd(S_KV)}, s{sT2} offen offset:{k*1024}", "X"))
    def hookG(ph, f, BG, first=False):
        if first and ph == 0: return
        for g_ in range(1, BG - 1):
            cur = flat(f.get(g_, []))
            busy = any(is_vmem(x) or x.startswith(("v_",) if GR == 1 else ("v_", "ds_")) for x in cur) or len(cur) > 1
            if gq and not busy: put(f, g_, [x for x in gq.pop(0) if x])
    def hookS12(ph, f, BG): hookG(ph, f, BG, True)
    def hookS14g(ph, f, BG):
        if ph == 0:
            hookG(ph, f, 38)
            assert not gq, len(gq)
            put(f, 41, ["s_mov_b64 exec, 1", VM(f"buffer_store_dwordx2 v[26:27], v{vZ}, {srd(S_WS)}, s{sT1} offen sc1", "GS"), "s_mov_b64 exec, -1", "s_nop 2"])
        hookS14(ph, f, BG)
    hooks = {6: hookS6, 7: hookS7, 8: hookS8, 9: hookS9, 10: hookS10g, 11: hookS12, 12: hookG, 13: hookG, 14: hookS14g, 15: hookS15}
    cpsteps = opt.get("cps", [0, 3, 7, 11, 14])
    h1 = list(pro_hist)
    for st in range(16):
        S_ = resolve_waits(step(st, hooks.get(st), st in cpsteps), h1)
        h1 += S_
        A.ext(ts.at(f"s{st}"))
        if st == 15: A(f"s_cmp_eq_u32 s{sIsB}, 1\ns_cbranch_scc1 P1_EPIB")
        if st == 14: S14 = S_
        A.ext(S_)
        if st == 10: A("s_branch P1_CONT"); A.ext(ool.lines); A("P1_CONT:")
    S15 = S_
    probs += check_hazards(A.lines, "p1")
    slow1 = Asm()
    slow1(f"""P1_SLOWN:
    s_mov_b32 s{sT2}, {SPIN_MAX}
    P1_SLOWN_L:
    {nload}
    s_waitcnt vmcnt(0)
    v_readfirstlane_b32 s{sNonce}, v{vN}
    s_cmp_lg_u32 s{sNonce}, 0
    s_cbranch_scc1 P1_NOK
    s_sleep 4
    s_sub_u32 s{sT2}, s{sT2}, 1
    s_cmp_lg_u32 s{sT2}, 0
    s_cbranch_scc1 P1_SLOWN_L
    s_endpgm
    P1_SLOWE:
    s_mov_b32 s{sT0}, {SPIN_MAX}
    P1_SLOWE_L:
    {epoll}
    s_waitcnt vmcnt(0)""")
    slow1.ext(echeck())
    slow1(f"""s_cbranch_scc1 P1_EOK
    s_sleep 4
    s_sub_u32 s{sT0}, s{sT0}, 1
    s_cmp_lg_u32 s{sT0}, 0
    s_cbranch_scc1 P1_SLOWE_L
    s_endpgm""")

    va = Alloc("v", 3, 256)
    vCur = va.get(1); vNxt = va.get(1); vZero = va.get(1); vNon = va.get(1); vQP = va.get(1)
    T = va.get(12, 4)
    S = [va.get(16, 4) for _ in range(2)]
    P = [va.get(8, 4) for _ in range(2)]
    O = [va.get(16, 4) for _ in range(2)]
    Lc = [va.get(4, 4) for _ in range(2)]
    SCL = va.get(8, 4)
    acc3 = [[va.get(4, 4) for j in range(8)] for i in range(4)]
    vW3o = va.get(1); vW3a = [va.get(1) for _ in range(4)]; vPF = va.get(1); vG = va.get(2, 2); vFl = va.get(4, 4)
    NEG = [Reg("v", acc3[0][0].base + 16*k, 16) for k in range(2)]
    aa = Alloc("a", 0, 180)
    RX = [[aa.get(4, 4) for j in range(8)] for s in range(4)]
    Q = [[aa.get(4, 4) for t in range(2)] for ab in range(2)]
    K = [[aa.get(4, 4) for t in range(2)] for b in range(2)]
    V = [[aa.get(4, 4) for t in range(2)] for b in range(2)]
    ONES = aa.get(4, 4)
    RW = [[Reg("a", 220 + 16*s + 4*i, 4) for i in range(4)] for s in range(2)]
    QXB = 98304
    W3B = 98304

    E = Asm()
    E.ext(ts.at("p1end"))
    sO, sO1, sO2 = 0, 1, 3
    sC = sL + 1
    sQf = 14
    tA = [Reg("v", 20, 4), Reg("v", 28, 4)]
    PKE = opt.get("pke", 0)
    def hmath(pairs, dst, pk=True):
        L = []
        for Gx, U in pairs:
            for r in range(4): L.append(f"v_max_f32 {Gx[r]}, 0, {Gx[r]}")
        for Gx, U in pairs:
            if pk:
                for r in (0, 2): L.append(f"v_pk_mul_f32 {Gx.sub(r,2)}, {Gx.sub(r,2)}, {U.sub(r,2)}")
            else:
                for r in range(4): L.append(f"v_mul_f32 {Gx[r]}, {Gx[r]}, {U[r]}")
        for k, (Gx, U) in enumerate(pairs):
            L.append(f"v_cvt_pk_bf16_f32 {dst[2*k]}, {Gx[0]}, {Gx[1]}"); L.append(f"v_cvt_pk_bf16_f32 {dst[2*k+1]}, {Gx[2]}, {Gx[3]}")
        return L
    gl = Asm()
    gl(f"""s_mov_b32 s{S_A}, s{P_X}
    s_mov_b32 s{S_A+1}, s{P_X+1}
    s_mov_b32 s{S_A+2}, 0x400000
    s_mov_b32 s{S_B}, s{P_GW}
    s_mov_b32 s{S_B+1}, s{P_GW+1}
    s_mov_b32 s{S_B+2}, 2048
    s_lshl_b32 s{sT2}, s{sRB}, 5
    s_add_u32 s{sT2}, s{sT2}, s{sCB}
    s_lshl_b32 s{sT2}, s{sT2}, 2
    s_add_u32 s{sT2}, s{sT2}, s{sW}
    s_lshl_b32 s{sT2}, s{sT2}, 12""")
    for h in range(2): gl(f"buffer_load_dwordx4 {GWa.sub(4*h,4)}, {vL16}, {srd(S_B)}, 0 offen offset:{h*1024}")
    for r in range(2):
        for h in range(2):
            gl(f"buffer_load_dwordx4 {GXa[r].sub(4*h,4)}, {vL16}, {srd(S_A)}, s{sT2} offen offset:{r*2048 + h*1024}")
    def merge(mf, items, rate, fixed=None):
        out = []; k = 0
        for g, m_ in enumerate(mf):
            out.append(m_)
            n = 0; seenv = False
            if fixed and g in fixed: out.extend(fixed[g]); n += len(fixed[g])
            while k < len(items) and items[k][0] <= g and n < rate:
                x_ = items[k][1]
                if is_vmem(x_) and seenv: break
                seenv |= x_.startswith("v_")
                out.append(x_); k += 1; n += 1
        if k < len(items): out.append("s_nop 7")
        return out + [x[1] for x in items[k:]]
    mm1 = lambda i, j: f"v_mfma_f32_16x16x32_bf16 {acc[i][j]}, {RA[1][i]}, {RB[1][j]}, {acc[i][j]}"
    kv1 = []
    for pre, d in kvdma0(32768): kv1 += pre + (["s_nop 0"] if pre else []) + [d]
    kv1.append(f"s_add_u32 s{sKVo}, s{sKVo}, {32768 - 4096}")
    head = Asm()
    head(f"""s_lshr_b32 s{sT0}, s{sW}, 1
    s_and_b32 s{sT1}, s{sW}, 1
    s_lshl_b32 s{sO}, s{sRB}, 4
    s_lshl_b32 s{sT2}, s{sT0}, 3
    s_add_u32 s{sO}, s{sO}, s{sT2}
    s_lshl_b32 s{sO}, s{sO}, 11
    s_add_u32 s{sO}, s{sO}, {AF2_OFF}
    s_lshr_b32 s{sT2}, s{sCB}, 2
    s_mul_i32 s{sO1}, s{sT2}, 14
    s_and_b32 s{sT3}, s{sCB}, 3
    s_lshl_b32 s{sT3}, s{sT3}, 2
    s_add_u32 s{sO1}, s{sO1}, s{sT3}
    s_add_u32 s{sO1}, s{sO1}, s{sT1}""")
    LAG = 5
    it = [(0, l) for l in head.lines]
    it += [(0, l) for l in (f"s_add_u32 s{sO1}, s{sO1}, s{sT1}", f"s_mul_i32 s{sO1}, s{sO1}, {AFS2}", f"s_add_u32 s{sO}, s{sO}, s{sO1}", f"s_add_u32 s{sO2}, s{sO}, {AFS2}")]
    kq = list(kv1)
    for j in range(8):
        g_ = 8*j + 7 + LAG
        Tt = tA[j % 2]
        L_ = hmath([(acc[0][j], acc[4][j]), (acc[1][j], acc[5][j])], acc[4][j], PKE or j >= opt.get('pkj', 8))
        L_ += [f"v_accvgpr_read_b32 {Tt[r]}, {acc[7][j][r]}" for r in range(4)]
        L_ += hmath([(acc[2][j], acc[6][j]), (acc[3][j], Tt)], acc[5][j], PKE or j >= opt.get('pkj', 8))
        it += [(g_, l) for l in L_]
        while kq:
            x_ = kq.pop(0); it.append((g_, x_))
            if is_vmem(x_): break
    it += [(64, l) for l in kq]
    EA = merge([mm1(i, j) for j in range(8) for i in range(8)], it, opt.get("rateA", 5))
    E.ext(EA)
    E("s_branch P1_EPID\nP1_EPIB:")
    hb = Asm()
    hb(f"""s_mul_i32 s{sO1}, s{sO1}, {AFS2}
    s_add_u32 s{sO}, s{sO}, s{sO1}
    s_mov_b32 s{sO2}, {HUGE}
    s_lshl_b32 s{sQf}, s{sRB}, 3
    s_add_u32 s{sQf}, s{sQf}, s{sT2}
    s_lshl_b32 s{sQf}, s{sQf}, 2
    s_lshl_b32 s{sT1}, s{sT1}, 1
    s_add_u32 s{sT2}, s{sQf}, s{sT1}
    s_lshl_b32 s{sT2}, s{sT2}, 1
    s_add_u32 s{sT2}, s{sT2}, s{sT0}
    s_lshl_b32 s{sT2}, s{sT2}, 14
    s_add_u32 s{sT0}, s{sT2}, {QF5_OFF}
    s_add_u32 s{sT1}, s{sT0}, 32768
    v_cmp_lt_u32 vcc, 23, {vL}
    v_add_u32 v26, 128, {vL16}
    s_nop 0
    v_cndmask_b32 v26, {vL16}, v26, vcc
    s_add_u32 s{sQf}, s{sQf}, s{sW}
    s_lshl_b32 s{sQf}, s{sQf}, 8
    s_add_u32 s{sQf}, s{sQf}, {FL_Q}
    s_mov_b32 s{sC}, {f2u(QSCALE):#x}
    s_mov_b32 s{sC+1}, {f2u(QSCALE):#x}""")
    it = [(0, l) for l in head.lines + hb.lines]
    for j in range(8):
        g_ = 32 + 4*j + 3 + LAG
        for hh in range(2):
            F0, F1 = acc[4 + 2*hh][j], acc[5 + 2*hh][j]
            L_ = []
            if F1.f == "a":
                Tt = tA[j % 2]
                L_ += [f"v_accvgpr_read_b32 {Tt[r]}, {F1[r]}" for r in range(4)]
                F1 = Tt
            for F in (F0, F1):
                if PKE:
                    for r in (0, 2): L_.append(f"v_pk_mul_f32 {F.sub(r,2)}, {F.sub(r,2)}, s[{sC}:{sC+1}]")
                else:
                    for r in range(4): L_.append(f"v_mul_f32 {F[r]}, s{sC}, {F[r]}")
            L_ += [f"v_cvt_pk_bf16_f32 {F0[0]}, {F0[0]}, {F0[1]}", f"v_cvt_pk_bf16_f32 {F0[1]}, {F0[2]}, {F0[3]}",
                   f"v_cvt_pk_bf16_f32 {F0[2]}, {F1[0]}, {F1[1]}", f"v_cvt_pk_bf16_f32 {F0[3]}, {F1[2]}, {F1[3]}",
                   f"buffer_store_dwordx4 {F0}, v26, {srd(S_WS)}, s{sT0 + hh} offen offset:{(j&1)*2048} {SC1}"]
            if j & 1: L_.append(f"s_add_u32 s{sT0 + hh}, s{sT0 + hh}, 4096")
            it += [(g_, l) for l in L_]
    mm0 = lambda i, j: f"v_mfma_f32_16x16x32_bf16 {acc[i][j]}, {RA[0][i]}, {RB[0][j]}, {acc[i][j]}"
    fx = {}
    rd_ = reads(31, 1, False)
    for k, r in enumerate(rd_[:8] + rd_[16:24] + rd_[8:16]): put(fx, k, r)
    k = 0
    for pre, d in kvdma0(0):
        if pre: put(fx, 23 + k, pre)
        put(fx, 24 + k, d); k += 1
    put(fx, 31, [f"s_add_u32 s{sKVo}, s{sKVo}, {32768 - 4096}", "s_waitcnt lgkmcnt(0)", "s_barrier"])
    EB = merge([mm0(i, j) for i in range(4, 8) for j in range(8)] + [mm1(i, j) for j in range(8) for i in range(4, 8)] +
               [mm0(i, j) for i in range(4) for j in range(8)] + [mm1(i, j) for j in range(8) for i in range(4)], it, opt.get("rateB", 3), fx)
    E.ext(EB)
    E.ext(kv1)
    for j in range(8):
        E.ext(hmath([(acc[0][j], acc[2][j]), (acc[1][j], acc[3][j])], acc[4][j]))
    E(f"""s_waitcnt vmcnt(8)
    s_mov_b64 exec, 1
    buffer_store_dword v{vN}, v{vZ}, {srd(S_WS)}, s{sQf} offen sc1
    s_mov_b64 exec, -1
    P1_EPID:""")
    probs += check_hazards(S15[-20:] + EA, "epiA") + check_hazards(S14[-20:] + E.lines[E.lines.index("P1_EPIB:"):], "epiB")
    E.ext(ts.at("kvdone"))
    vAF = T[9]
    def hstore(reg, so, j):
        return [VM(f"buffer_store_dwordx4 {reg}, {vAF}, {srd(S_WS)}, s{so} offen offset:{(j&1)*2048} {SC1}", "H")] + ([f"s_add_u32 s{so}, s{so}, 4096"] if j & 1 else [])
    hst0 = [hstore(acc[4][j], sO, j) for j in range(8)]
    hst1a = [hstore(acc[5][j], sO2, j) for j in range(8)]
    A.ext(E.lines)

    B = Asm()
    sCur, sNext, sFree, sFl = sL, sL + 1, sL + 2, sL + 5
    B(f"""v_mov_b32 {vNon}, s{sNonce}
    v_mov_b32 {vZero}, 0
    v_bfe_u32 {T[0]}, {vL}, 4, 1
    v_and_b32 {T[1]}, 15, {vL}
    v_lshrrev_b32 {T[2]}, 5, {vL}
    v_lshl_add_u32 {T[1]}, {T[2]}, 4, {T[1]}
    v_lshlrev_b32 {T[1]}, 4, {T[1]}
    v_lshl_add_u32 {vQP}, {T[0]}, 11, {T[1]}""")
    S_PF, sPF = S_E, 8
    pfop = [VM(f"buffer_load_dword a252, {vPF}, {srd(S_PF)}, s{sPF} offen", "PF"), f"s_add_u32 s{sPF}, s{sPF}, 0x100000"] if PF else []
    for ab in range(2):
        for r in range(16): B(f"v_mov_b32 {O[ab][r]}, 0")
        for r in range(4): B(f"v_mov_b32 {Lc[ab][r]}, 0")
    for r in range(8): B(f"v_mov_b32 {P[1][r]}, 0")
    for t in range(2):
        for r in range(4): B(f"v_accvgpr_write_b32 {V[1][t][r]}, 0")
    vIdx = T[10]
    B(f"""v_bfe_u32 {T[4]}, {vL}, 2, 1
    v_cmp_eq_u32 vcc, 0, {T[4]}
    v_mov_b32 {T[5]}, 0x3f803f80
    v_mov_b32 {vCur}, {vL16}
    v_cndmask_b32 {T[4]}, 0, {T[5]}, vcc
    v_cndmask_b32 {T[5]}, {T[5]}, 0, vcc
    v_add_u32 {vNxt}, 32768, {vL16}
    v_and_b32 {vIdx}, 1, {vL}
    v_mul_u32_u24 {vIdx}, 0xaaaa, {vIdx}
    v_add_u32 {vIdx}, 0x4444, {vIdx}
    v_cmp_lt_u32 vcc, 23, {vL}
    v_add_u32 {vAF}, 128, {vL16}
    s_nop 0
    v_cndmask_b32 {vAF}, {vL16}, {vAF}, vcc""".replace(f"v_cndmask_b32 {T[5]}, {T[5]}, 0, vcc", f"v_xor_b32 {T[5]}, {T[5]}, {T[4]}"))
    for r in range(4): B(f"v_accvgpr_write_b32 {ONES[r]}, {T[4 + (r >> 1)]}")
    def lsum(o): return f"v_smfmac_f32_16x16x64_bf16 {Lc[o]}, {ONES}, {P[o]}, {vIdx}"
    B("; @@SETUP3@@")
    B(f"""s_mov_b32 s{sCur}, 0
    s_mov_b32 s{sNext}, 32768
    s_mov_b32 s{sFree}, 65536
    s_add_u32 s{sL+14}, s{sM0}, 65536
    s_lshl_b32 s{sFl}, s{sRB}, 2
    s_add_u32 s{sFl}, s{sFl}, s{sW}
    s_lshl_b32 s{sFl}, s{sFl}, 6
    s_add_u32 s{sFl}, s{sFl}, s{sCB}
    s_lshl_b32 s{sFl}, s{sFl}, 2
    s_add_u32 s{sFl}, s{sFl}, {FL_H}
    s_lshl_b32 s{sT1}, s{sRB}, 3
    s_lshr_b32 s{sT2}, s{sCB}, 2
    s_add_u32 s{sT1}, s{sT1}, s{sT2}
    s_lshl_b32 s{sT1}, s{sT1}, 2
    s_and_b32 s{sT2}, s{sW}, 2
    s_add_u32 s{sT1}, s{sT1}, s{sT2}
    s_bfe_u32 s{sT2}, s{sCB}, 0x10001
    s_add_u32 s{sT1}, s{sT1}, s{sT2}
    s_lshl_b32 s{sT1}, s{sT1}, 8
    s_add_u32 s{sT1}, s{sT1}, {FL_Q}
    s_lshl_b32 s{sQf}, s{sRB}, 5
    s_add_u32 s{sQf}, s{sQf}, s{sCB}
    s_lshl_b32 s{sQf}, s{sQf}, 2
    s_add_u32 s{sQf}, s{sQf}, s{sW}
    s_lshl_b32 s{sQf}, s{sQf}, 13
    s_add_u32 s{sQf}, s{sQf}, {QF5_OFF}
    s_add_u32 s{sT3}, s{sQf}, 4096""")
    def check(regs):
        if len(regs) == 4:
            return [f"v_xor_b32 {r}, {r}, {vNon}" for r in regs] + [f"v_or3_b32 {regs[0]}, {regs[0]}, {regs[1]}, {regs[2]}", f"v_or_b32 {regs[0]}, {regs[0]}, {regs[3]}",
                    f"v_cmp_eq_u32 vcc, 0, {regs[0]}", "s_nop 0", "s_cmp_eq_u64 vcc, -1"]
        L = [f"v_cmp_eq_u32 vcc, s{sNonce}, {regs[0]}"]
        if len(regs) > 1: L += [f"v_cmp_eq_u32 s[{sT2}:{sT3}], s{sNonce}, {regs[1]}", "s_nop 0", f"s_and_b64 vcc, vcc, s[{sT2}:{sT3}]"]
        else: L += ["s_nop 0"]
        return L + ["s_cmp_eq_u64 vcc, -1"]
    def spin(label, load, regs, back=None):
        L = [f"s_mov_b32 s{sT0}, {SPIN_MAX}", f"{label}_L:", load, "s_waitcnt vmcnt(0)"] + check(regs)
        L += [f"s_cbranch_scc1 {back or label + '_OK'}", f"s_sleep {4 if back else 1}", f"s_sub_u32 s{sT0}, s{sT0}, 1",
              f"s_cmp_lg_u32 s{sT0}, 0", f"s_cbranch_scc1 {label}_L", "s_endpgm"]
        if not back: L.append(f"{label}_OK:")
        return L
    B.ext(ts.at("poll0"))
    B(f"""v_and_b32 {T[2]}, 40, {vL}
    v_cmp_eq_u32 vcc, 40, {T[2]}
    v_add_u32 {T[3]}, 128, {vQP}
    s_nop 0
    v_cndmask_b32 {T[2]}, {vQP}, {T[3]}, vcc""")
    qld = lambda dst: [f"buffer_load_dwordx4 {dst(ab, t)}, {T[2+t]}, {srd(S_WS)}, s{[sQf, sT3][ab]} offen offset:{t*512} {SC1}" for ab in range(2) for t in range(2)]
    if QPOLL:
        QV = S[1]
        B(f"s_mov_b32 s{sT0}, {SPIN_MAX}\nP2_QL:")
        B(f"buffer_load_dword {T[8]}, {vZero}, {srd(S_WS)}, s{sT1} offen sc1")
        B.ext(qld(lambda ab, t: QV.sub(8*ab + 4*t, 4)))
        B("s_waitcnt vmcnt(0)")
        B(f"v_max3_u32 {T[9]}, {QV[0]}, {QV[1]}, {QV[2]}")
        for k in range(3, 15, 2): B(f"v_max3_u32 {T[9]}, {QV[k]}, {QV[k+1]}, {T[9]}")
        B(f"""v_max_u32 {T[9]}, {QV[15]}, {T[9]}
        v_cmp_eq_u32 vcc, -1, {T[9]}
        v_readfirstlane_b32 s{sT2}, {T[8]}
        s_nop 0
        s_cmp_eq_u64 vcc, 0
        s_cbranch_scc1 P2_QOK
        s_cmp_eq_u32 s{sT2}, s{sNonce}
        s_cbranch_scc1 P2_QRE
        s_sub_u32 s{sT0}, s{sT0}, 1
        s_cmp_lg_u32 s{sT0}, 0
        s_cbranch_scc1 P2_QL
        s_endpgm
        P2_QRE:""")
        B.ext(qld(lambda ab, t: QV.sub(8*ab + 4*t, 4)))
        B("s_waitcnt vmcnt(0)\nP2_QOK:")
        B.ext(ts.at("poll1"))
        for ab in range(2):
            for t in range(2):
                for r in range(4): B(f"v_accvgpr_write_b32 {Q[ab][t][r]}, {QV[8*ab + 4*t + r]}")
    else:
        B.ext(spin("P2_POLL", f"buffer_load_dword {T[8]}, {vZero}, {srd(S_WS)}, s{sT1} offen sc1", [T[8]]))
        B.ext(ts.at("poll1"))
        B.ext(qld(lambda ab, t: Q[ab][t]))
    B("s_barrier")
    def kvdma(slot, tag):
        L = []
        for e in range(8):
            pre = []
            if e == 0: pre = [f"s_add_u32 m0, s{slot}, s{sM0}"]
            if e == 4: pre = [f"s_add_u32 s{sT0}, s{slot}, s{sM0}", f"s_add_u32 m0, s{sT0}, 4096", f"s_add_u32 s{sKVo}, s{sKVo}, 4096"]
            L.append((pre, VM(f"buffer_load_dwordx4 {vL16}, {srd(S_KVD)}, s{sKVo} offen offset:{(e&3)*1024} {SC1} lds", tag)))
        return L
    post_dma = f"s_add_u32 s{sKVo}, s{sKVo}, {32768 - 4096}"
    B(f"""ds_read_b128 {K[0][0]}, {vCur}
    ds_read_b128 {K[0][1]}, {vCur} offset:1024
    ds_read_b128 {V[0][0]}, {vCur} offset:2048
    ds_read_b128 {V[0][1]}, {vCur} offset:3072""")
    hist = list(S15) + list(EA) + list(B.lines)
    B(f"""s_waitcnt vmcnt(0) lgkmcnt(0)
    v_mfma_f32_32x32x16_bf16 {S[0]}, {K[0][0]}, {Q[0][0]}, 0
    v_mfma_f32_32x32x16_bf16 {S[0]}, {K[0][1]}, {Q[0][1]}, {S[0]}""")
    B.ext(ts.at("att"))
    B("s_nop 7\ns_nop 3")

    NS = 4
    S_AF, S_W3, S_OUT = S_A, S_B, S_D
    sMT, sNT = sL + 6, sL + 7
    sAo = sL + 8
    sSo3 = sL + 9
    sM3 = sL + 13
    sWo, sWoN = 30, 15
    sX3 = 16
    sSh, sAdv, sAdv28 = 10, 18, 19
    setup3 = Asm()
    MAP48 = opt.get("map48", 0)
    if MAP48:
        setup3(f"""s_and_b32 s{sT0}, s{sRB}, 4
        s_add_u32 s{sMT}, s{sRB}, s{sT0}
        s_bfe_u32 s{sT0}, s{sCB}, 0x10003
        s_lshl2_add_u32 s{sMT}, s{sT0}, s{sMT}
        s_lshr_b32 s{sT0}, s{sCB}, 4
        s_and_b32 s{sT1}, s{sCB}, 7
        s_lshl3_add_u32 s{sNT}, s{sT0}, s{sT1}""")
    else:
        setup3(f"""s_and_b32 s{sT0}, s{sCB}, 1
        s_lshl_b32 s{sMT}, s{sRB}, 1
        s_add_u32 s{sMT}, s{sMT}, s{sT0}
        s_lshr_b32 s{sT0}, s{sCB}, 3
        s_lshl_b32 s{sT0}, s{sT0}, 2
        s_bfe_u32 s{sT1}, s{sCB}, 0x20001
        s_add_u32 s{sNT}, s{sT0}, s{sT1}""")
    setup3(f"""s_lshl_b32 s{sT0}, s{sNT}, 7
    s_add_u32 s{S_W3}, s{P_WD}, s{sT0}
    s_addc_u32 s{S_W3+1}, s{P_WD+1}, 0
    s_sub_u32 s{S_W3+2}, {3584*2048}, s{sT0}
    s_add_u32 s{sWo}, s{P_WO}, s{sT0}
    s_addc_u32 s{sWo+1}, s{P_WO+1}, 0
    s_sub_u32 s{sWoN}, {1024*2048}, s{sT0}
    s_mov_b32 s{sSh}, 11
    s_mov_b32 s{S_AF+2}, 16384
    s_mov_b32 s{S_OUT}, s{P_OUT}
    s_mov_b32 s{S_OUT+1}, s{P_OUT+1}
    s_mov_b32 s{S_OUT+2}, 0x400000
    s_mul_i32 s{sAo}, s{sW}, {AFS2}
    s_lshl_b32 s{sT0}, s{sMT}, 14
    s_add_u32 s{sAo}, s{sAo}, s{sT0}
    s_add_u32 s{sAo}, s{sAo}, {AF2_OFF}
    s_add_u32 s{S_AF}, s{P_WS}, s{sAo}
    s_addc_u32 s{S_AF+1}, s{P_WS+1}, 0
    s_mov_b32 s{sAo}, 4096
    s_mov_b32 s{sAo+1}, 8192
    s_mov_b32 s{sX3}, 12288
    s_lshl_b32 s{sM3}, s{sW}, 14
    s_add_u32 s{sM3}, s{sM3}, {W3B}""")
    for e in range(1, 4): setup3(f"s_mov_b32 s{sSo3+e}, {e*16384 - e*1024}")
    if CW:
        setup3(f"""s_and_b32 s{sT0}, s{sNT}, 7
        s_cmp_lg_u32 s{sT0}, 3
        s_cbranch_scc1 P3_NOCW
        s_lshr_b32 s{sT0}, s{sNT}, 3
        s_mul_i32 s{sT0}, s{sT0}, {CW_SZ}
        s_add_u32 s{sT0}, s{sT0}, {CW_OFF}
        s_add_u32 s{S_W3}, s{P_WS}, s{sT0}
        s_addc_u32 s{S_W3+1}, s{P_WS+1}, 0
        s_mov_b32 s{S_W3+2}, {3584*256}
        s_add_u32 s{sWo}, s{S_W3}, {3584*256}
        s_addc_u32 s{sWo+1}, s{S_W3+1}, 0
        s_mov_b32 s{sWoN}, {1024*256}
        s_mov_b32 s{sSh}, 8
        s_mov_b32 s{sSo3+1}, 1024
        s_mov_b32 s{sSo3+2}, 2048
        s_mov_b32 s{sSo3+3}, 3072
        P3_NOCW:""")
    setup3(f"""s_lshl_b32 s{sAdv}, 128, s{sSh}
    s_mul_i32 s{sAdv28}, s{sAdv}, 28""")
    setup3v = Asm()
    setup3v(f"""v_lshrrev_b32 {T[0]}, 3, {vL}
    v_lshrrev_b32 {T[1]}, 4, {vL}
    v_lshlrev_b32 {T[2]}, 1, {T[1]}
    v_and_b32 {T[3]}, 7, {vL}
    v_xor_b32 {T[2]}, {T[2]}, {T[3]}
    v_lshlrev_b32 {T[2]}, 4, {T[2]}
    s_lshl_b32 s{sT0}, s{sW}, 5
    v_add_u32 {T[0]}, s{sT0}, {T[0]}
    v_lshl_add_u32 {vW3o}, {T[0]}, s{sSh}, {T[2]}
    s_lshl_b32 s{sT0}, s{sAdv}, 2
    v_add_u32 {T[11]}, s{sT0}, {vW3o}
    v_lshrrev_b32 {T[0]}, 2, {vL}
    v_bfe_u32 {T[1]}, {vL}, 3, 2
    v_and_b32 {T[2]}, 3, {vL}
    v_lshlrev_b32 {T[2]}, 3, {T[2]}
    v_lshl_add_u32 {T[2]}, {T[0]}, 7, {T[2]}
    v_add_u32 {T[2]}, s{sM3}, {T[2]}""")
    for i in range(4): setup3v(f"v_xor_b32 {T[3]}, {i}, {T[1]}\nv_lshl_add_u32 {vW3a[i]}, {T[3]}, 5, {T[2]}")
    setup3v(f"""s_lshr_b32 s{sT0}, s{sMT}, 1
    s_lshl_b32 s{sT0}, s{sT0}, 10
    s_lshl_b32 s{sT1}, s{sRB}, 10
    v_mov_b32 {T[4]}, s{sT0}
    v_mov_b32 {T[5]}, s{sT1}
    v_cmp_gt_u32 vcc, 32, {vL}
    v_and_b32 {T[6]}, 31, {vL}
    v_lshlrev_b32 {T[6]}, 2, {T[6]}
    v_cndmask_b32 {T[4]}, {T[4]}, {T[5]}, vcc
    v_bfe_u32 {T[5]}, {vL}, 3, 2
    v_lshl_add_u32 {T[4]}, {T[5]}, 8, {T[4]}
    v_and_b32 {T[5]}, 7, {vL}
    v_lshl_add_u32 {T[4]}, {T[5]}, 4, {T[4]}
    v_lshrrev_b32 {T[5]}, 5, {vL}
    v_lshl_add_u32 {T[5]}, {T[5]}, 8, {T[6]}
    v_and_b32 {T[7]}, 15, {vL}
    v_lshlrev_b32 {T[7]}, 2, {T[7]}""")
    XRE = opt.get("xre", 0)
    RE = [Reg("a", 180 + 4*j, 4) for j in range(8)]
    sXP = 17
    setup3v(f"""s_add_u32 s{sXP}, s{sW}, {4*(36 - 4*opt.get("np", 4))}
    s_mul_i32 s{sXP}, s{sXP}, {AFS2}
    s_lshl_b32 s{sT0}, s{sMT}, 14
    s_add_u32 s{sXP}, s{sXP}, s{sT0}
    s_add_u32 s{sXP}, s{sXP}, {AF2_OFF}""")
    zero3 = [f"v_mov_b32 {acc3[i][j][r]}, 0" for i in range(4) for j in range(8) for r in range(4)]
    def w3dma(slot, e):
        m0 = f"s_add_u32 m0, s{sM3}, {slot*4096}"
        return m0, VM(f"buffer_load_dwordx4 {vW3o}, {srd(S_W3)}, {'0' if e == 0 else 's%d' % (sSo3+e)} offen offset:{e*1024} {SC1 if CW else ''} lds", ("W", slot))
    def xload(slot, j):
        return VM(f"buffer_load_dwordx4 {RX[slot][j]}, {vAF}, {srd(S_AF)}, {['0', 's%d' % sAo, 's%d' % (sAo+1), 's16'][j>>1]} offen offset:{(j&1)*2048} {opt.get('xflag', SC1)}", ("X", slot, j >> 2))
    adv3 = [f"v_add_u32 {vW3o}, s{sAdv}, {vW3o}", f"s_add_u32 s{S_AF}, s{S_AF}, {4*AFS2}\ns_addc_u32 s{S_AF+1}, s{S_AF+1}, 0"]
    def wread(slot, s):
        return [f"ds_read_b64_tr_b16 {RW[s][i].sub(2*hf,2)}, {vW3a[i]} offset:{slot*4096 + hf*2048}" for i in range(4) for hf in range(2)]
    def gm(s, j, i, first=False): return f"v_mfma_f32_16x16x32_bf16 {acc3[i][j]}, {RW[s&1][i]}, {RX[s][j]}, {0 if first else acc3[i][j]}"

    EARLY3 = opt.get("early3", 0)
    pfsetup = [f"s_lshl_b32 s{sT1}, s2, 2", f"s_add_u32 s{sT1}, s{sT1}, s{sW}", f"s_lshl_b32 s{sT1}, s{sT1}, 10",
               f"v_lshrrev_b32 {vPF}, 3, {vL}", f"v_lshlrev_b32 {vPF}, 7, {vPF}", f"v_add_u32 {vPF}, s{sT1}, {vPF}",
               f"s_mov_b32 s{S_PF}, s{P_WD}", f"s_mov_b32 s{S_PF+1}, s{P_WD+1}", f"s_mov_b32 s{S_PF+2}, {3584*2048}", f"s_mov_b32 s{sPF}, 0x100000"] if PF else []
    k_ = B.lines.index("; @@SETUP3@@")
    ins = []
    if EARLY3:
        ins = setup3.lines + setup3v.lines + pfsetup
        if EARLY3 > 1:
            for s_ in range(4):
                for e_ in range(4):
                    m0, d = w3dma(s_, e_)
                    ins += ([m0, "s_nop 0"] if e_ == 0 else []) + [d] + ([adv3[0]] if e_ == 3 else [])
    B.lines[k_:k_ + 1] = ins
    k2_ = hist.index("; @@SETUP3@@"); hist[k2_:k2_ + 1] = ins
    probs += check_hazards(B.lines, "p2pro")
    A.ext(B.lines)
    def att_parts(ab, kq, vp):
        o = ab ^ 1
        M = [f"v_mfma_f32_32x32x16_bf16 {S[o]}, {K[kq][0]}, {Q[o][0]}, 0",
             f"v_mfma_f32_32x32x16_bf16 {S[o]}, {K[kq][1]}, {Q[o][1]}, {S[o]}",
             f"v_mfma_f32_32x32x16_bf16 {O[o]}, {V[vp][0]}, {P[o].sub(0,4)}, {O[o]}",
             lsum(o),
             f"v_mfma_f32_32x32x16_bf16 {O[o]}, {V[vp][1]}, {P[o].sub(4,4)}, {O[o]}",
             None]
        ex = [f"v_exp_f32 {S[ab][r]}, {S[ab][r]}" for r in range(16)]
        cv = [f"v_cvt_pk_bf16_f32 {P[ab][r]}, {S[ab][2*r]}, {S[ab][2*r+1]}" for r in range(8)]
        return M, ex, cv
    def phase_plain(ab, kq, vp, extra):
        M, ex, cv = att_parts(ab, kq, vp)
        order = [M[2], M[0], M[1], M[3], M[4]]
        vl = []
        for r in range(16):
            vl.append(ex[r])
            if r >= 3 and r % 2 == 1: vl.append(cv[(r - 3)//2])
        vl.append(cv[7])
        mpos = opt.get("mpos", [0, 4, 9, 14, 18])
        assert max(extra, default=0) <= 4
        out = []; mi = 0
        for i, v in enumerate(vl):
            while mi < 5 and mpos[mi] == i:
                out.append(order[mi]); out.extend(extra.get(mi, [])); mi += 1
            out.append(v)
        return out
    def phase_merged(ab, kq, vp, G8, extra):
        M, ex, cv = att_parts(ab, kq, vp)
        order = [M[2], G8[0], M[0], G8[1], G8[2], M[1], G8[3], M[3], G8[4], M[4], G8[5], G8[6], G8[7]]
        e, c = ex, cv
        fill = [[e[0], e[1], e[2]], [e[3]], [e[4], e[5], e[6]], [c[0], c[1]], [e[7]], [e[8], e[9], e[10]], [c[2], c[3]], [c[4]],
                [e[11]], [e[12], e[13], e[14]], [e[15]], [c[5], c[6]], [c[7]]]
        assert max(extra, default=0) <= 12
        out = []
        for k in range(13):
            out.append(order[k]); out.extend(extra.get(k, [])); out.extend(fill[k])
        return out
    sX3 = 16
    NP = opt.get("np", 4)
    PFSW = 6
    sKM = sL + 14
    def chunk(kind, hook=None, first=False, pfok=True, wpre=False):
        out = []
        mer = kind == "merged"
        for pi in range(16):
            tau, ab = pi >> 1, pi & 1
            kp = tau & 1
            ex = {}
            if ab == 0:
                src = (vCur, (tau+1)*4096) if tau < 7 else (vNxt, 0)
                ld = [f"ds_read_b128 {K[kp^1][t]}, {src[0]} offset:{src[1] + t*1024}" for t in range(2)]
            else:
                src = (vCur, (tau+1)*4096 + 2048) if tau < 7 else (vNxt, 2048)
                ld = [f"ds_read_b128 {V[kp^1][t]}, {src[0]} offset:{src[1] + t*1024}" for t in range(2)]
            kvd = VM(f"buffer_load_dwordx4 {vL16}, {srd(S_KVD)}, s{sKVo} offen offset:{(pi&3)*1024} {SC1} lds", "KV")
            if wpre:
                kvd = VM(f"buffer_load_dwordx4 {T[11]}, {srd(S_KVD)}, {'0' if pi & 3 == 0 else 's%d' % (sSo3 + (pi & 3))} offen offset:{(pi&3)*1024} {SC1 if CW else ''} lds", "PW")
            rotate = [f"s_mov_b32 s{sT0}, s{sCur}", f"s_mov_b32 s{sCur}, s{sNext}", f"s_mov_b32 s{sNext}, s{sFree}", f"s_mov_b32 s{sFree}, s{sT0}",
                      f"s_add_u32 s{sKM}, s{sT0}, s{sM0}", f"s_add_u32 s{sIt}, s{sIt}, 1"]
            upd = [f"v_add_u32 {vCur}, s{sCur}, {vL16}", f"v_add_u32 {vNxt}, s{sNext}, {vL16}"]
            lg = 0 if (trace or not mer) else 2
            s, q = pi >> 2, pi & 3
            if pi == 14: w0 = [Need(["KV"], "lgkmcnt(0)"), "s_barrier"]
            elif mer and q == 0: w0 = [Need([("W", (s+1) % NS), ("X", s, 1)], "lgkmcnt(0)")]
            else: w0 = [f"s_waitcnt lgkmcnt({lg})"]
            put(ex, 0, w0)
            if pi % 8 == 7: put(ex, 0, tr_commit())
            if not mer:
                if pi < 8: put(ex, 3, f"s_mov_b32 m0, s{sKM}")
                if pi == 4: put(ex, 1, f"s_add_u32 s{sKVo}, s{sKVo}, 4096"); put(ex, 2, f"s_add_u32 s{sKM}, s{sKM}, 4096")
                if pi == 8: put(ex, 1, post_dma)
                if pi == 14: put(ex, 3, rotate[0]); put(ex, 4, rotate[1])
                if pi == 15: put(ex, 1, rotate[2]); put(ex, 2, rotate[3]); put(ex, 3, rotate[4]); put(ex, 4, rotate[5])
                put(ex, 1, ld[0]); put(ex, 2, ld[1])
                if pi < 8: put(ex, 4, kvd)
            else:
                G8 = [gm(s, 2*q + jj, i, first and s == 0) for jj in range(2) for i in range(4)]
                m0, d = w3dma(s, q)
                rd = wread((s+1) % NS, (s+1) & 1)
                if pi == 4: put(ex, 1, f"s_add_u32 s{sKVo}, s{sKVo}, 4096"); put(ex, 4, f"s_add_u32 s{sKM}, s{sKM}, 4096")
                if pi == 8: put(ex, 1, post_dma)
                if q == 0 and s > 0: put(ex, 6, adv3[1])
                if pi == 15:
                    for k, g_ in enumerate((4, 5, 6, 7, 8, 9)): put(ex, g_, rotate[k])
                if pi == 10 and PF: put(ex, 1, pfop[1])
                put(ex, 1, ld[0]); put(ex, 2, m0); put(ex, 3, d); put(ex, 4, ld[1])
                put(ex, 5, rd[2*q]); put(ex, 10 if q < 3 else 6, rd[2*q+1])
                put(ex, 7, xload(s, 2*q)); put(ex, 12, xload(s, 2*q+1))
                if q == 3: put(ex, 11, adv3[0])
                if pi < 8: put(ex, 8, f"s_mov_b32 m0, s{sKM}"); put(ex, 9, kvd)
                if wpre and pi in (4, 8): put(ex, 6, f"v_add_u32 {T[11]}, s{sAdv}, {T[11]}")
                if pi == 9 and PF:
                    put(ex, 9, pfop[0])
                    put(ex, 6, [f"s_cmp_eq_u32 s{sIt}, {PFSW}", f"s_cselect_b32 s{sPF}, 0, s{sPF}", f"s_cselect_b32 s{S_PF}, s{P_WO}, s{S_PF}",
                                f"s_cselect_b32 s{S_PF+1}, s{P_WO+1}, s{S_PF+1}", f"s_cselect_b32 s{S_PF+2}, 0x200000, s{S_PF+2}"])
                if pi == 12: put(ex, 9, cp(False))
                if wpre and XRE and pi >= 8:
                    j_ = pi - 8
                    put(ex, 8 if pi not in (15,) else 10, VM(f"buffer_load_dwordx4 {RE[j_]}, {vAF}, {srd(S_WS)}, s{sXP} offen offset:{(j_&1)*2048} {SC1}", ("XE", j_ >> 2)))
                    if j_ & 1: put(ex, 11, f"s_add_u32 s{sXP}, s{sXP}, {4096 if j_ < 7 else (-12288) & 0xffffffff}")
            if pi % 8 == 6: put(ex, 3, tr_issue())
            if hook: hook(pi, ex, None)
            if mer: out += phase_merged(ab, kp ^ ab, kp ^ 1 ^ ab, G8, ex)
            else: out += phase_plain(ab, kp ^ ab, kp ^ 1 ^ ab, ex)
        if mer: out += adv3[1:]
        out += upd
        return out

    dflt = {3: dict(hs=[1, 1], gs=23, hf=26, hp=36, hc=39, pf=[25, 28, 41]), 4: dict(hs=[2, 1], gs=32, hf=44, hp=50, hc=53, pf=[34, 38, 44, 56])}[NP]
    dflt.update(opt.get("sched", {}))
    HSN, HSD = dflt["hs"]; GS, HF, HPg, HC, PFP = dflt["gs"], dflt["hf"], dflt["hp"], dflt["hc"], dflt["pf"]
    assert len(PFP) == NP
    hst = hst0 + hst1a
    hph = [dflt.get("hs0", 0) + n*HSN//HSD for n in range(16)]
    assert EARLY3 or hph[-1] < GS
    hpoll = f"buffer_load_dwordx4 {vFl}, {T[4]}, {srd(S_WS)}, s{sT1} offen sc1"
    LASTP = 16*NP - 1
    wph = [GS + 1 + k // 2 for k in range(16)] if not EARLY3 else ([-1]*16 if EARLY3 > 1 else [2*(k // 2)*2 + 1 for k in range(16)])
    NXP = opt.get("nxp", 32)
    xph = [HC + 1 + (k * (LASTP - HC)) // NXP for k in range(NXP)] + [-1] * (32 - NXP)
    gloads = [VM(f"buffer_load_dword {vG[ab]}, {T[6]}, {srd(S_WS)}, s{sT2} offen offset:{ab*128} sc1", "G") for ab in range(2)]
    gloads += [VM(f"buffer_load_dword {SCL[j]}, {T[7]}, {srd(S_WS)}, s{sT3} offen offset:{j*64} sc1", "G") for j in range(8)]
    def hookM0(pi, ex, pre):
        n = NXP + pi
        if n < 32:
            s_, j_ = divmod(n, 8)
            put(ex, 6, VM(f"buffer_load_dwordx4 {RX[s_][j_]}, {vL16}, {srd(S_AF)}, s{sX3 + (j_>>2)} offen offset:{(j_&3)*1024} {SC1}", ("X", s_, j_ >> 2)))
        if pi >= 11: put(ex, 8, gloads[2*(pi - 11)]); put(ex, 11, gloads[2*(pi - 11) + 1])
    def mkhook(base):
        def hook(pi, ex, pre):
            gp = base + pi
            k = 0
            for n in range(16):
                if hph[n] == gp: put(ex, [0, 3][k], hst[n]); k += 1
            if gp == GS and not EARLY3:
                put(ex, 0, setup3.lines[:15]); put(ex, 1, setup3.lines[15:]); put(ex, 3, setup3v.lines + pfsetup)
            if gp in PFP and PF: put(ex, 3 if (gp & 15) >= 8 else 0, pfop)
            if gp in opt.get('cpg', (9, 16*NP - 22)): put(ex, 4, cp())
            k = 0
            for n in range(16):
                if wph[n] == gp:
                    s_, e_ = divmod(n, 4)
                    m0, d = w3dma(s_, e_)
                    if k == 0: ex[0] = ex[0] + [m0]
                    put(ex, k + 1, [d] + ([adv3[0]] if e_ == 3 else [])); k += 1
            if gp == HF:
                put(ex, 2, [Need(["H"]), "s_mov_b64 exec, 1", VM(f"buffer_store_dword {vNon}, {vZero}, {srd(S_WS)}, s{sFl} offen sc1", "HF"), "s_mov_b64 exec, -1", "s_nop 2"])
            if gp == HPg: put(ex, 3, [f"s_mov_b32 s{sT1}, {FL_H}", VM(hpoll, "HP")])
            if gp == HC:
                put(ex, 2, [Need(["HP"])] + check([vFl[k] for k in range(4)]) + ["s_cbranch_scc0 P3_SLOWH", "P3_HOK:"])
                put(ex, 3, [f"s_lshl_b32 s{sT2}, s{sRB}, 10", f"s_lshl_b32 s{sT3}, s{sW}, 8", f"s_add_u32 s{sT2}, s{sT2}, s{sT3}", f"s_add_u32 s{sT2}, s{sT2}, {G_OFF}",
                            f"s_lshl_b32 s{sT3}, s{sMT}, 9", f"s_add_u32 s{sT3}, s{sT3}, {G_OFF}"])
            k = 0
            for n in range(32):
                if xph[n] == gp:
                    s_, j_ = divmod(n, 8)
                    put(ex, [0, 3, 4, 2][k], [xload(s_, j_)] + (adv3[1:] if j_ == 7 else [])); k += 1
            if gp == LASTP:
                put(ex, 3, [Need([("W", 0)])] + wread(0, 0))
                if NXP == 24: put(ex, 5, [f"s_mov_b32 s{sX3}, s{sAo}", f"s_mov_b32 s{sX3+1}, s{sAo+1}"] + adv3[1:])
        return hook
    def retag(ch, cur, need):
        out = []
        for l in ch:
            if isinstance(l, VM) and l.tag == "KV": out.append(VM(l, cur))
            elif isinstance(l, Need) and "KV" in l.tags: out.append(Need([need], l.extra))
            else: out.append(l)
        return out
    hist = [VM(l, "KV-1") if isinstance(l, VM) and l.tag == "KV" else l for l in hist]
    CP = []; hh_ = list(hist)
    for c in range(NP):
        ch = resolve_waits(retag(chunk("plain", mkhook(16*c)), f"KV{c}", f"KV{c-1}"), hh_)
        CP.append(ch); hh_ += ch
    mA = retag(chunk("merged"), "KVa", "KVb"); mB = retag(chunk("merged"), "KVb", "KVa")
    mres = resolve_waits(mA, mB)
    M = mres
    M0 = resolve_waits(retag(chunk("merged", hookM0, first=True), "KVb", f"KV{NP-1}"), hh_)
    probs += verify_waits(hh_ + M0 + M, len(hh_ + M0), "M0->M")
    WPRE = opt.get("wpre", 1)
    if WPRE:
        MW = resolve_waits(retag(chunk("merged", wpre=True), "-", "KVa"), M)
        probs += verify_waits(M + MW + [l for l in MW if not (isinstance(l, Need) and "KVa" in l.tags)], len(M + MW), "MW->MW")
    mab = opt.get("mabl", "")
    def abl(L):
        out = []
        for l in L:
            if "x" in mab and isinstance(l, VM) and isinstance(l.tag, tuple) and l.tag[0] == "X": continue
            if "w" in mab and isinstance(l, VM) and isinstance(l.tag, tuple) and l.tag[0] == "W": continue
            if "t" in mab and l.startswith("ds_read_b64_tr"): continue
            if "k" in mab and l.startswith("ds_read_b128"): continue
            if "s" in mab and l.startswith(("s_add", "s_mov", "s_cmp", "s_cselect")) and f"s{sIt}" not in l and "exec" not in l: continue
            if "n" in mab and isinstance(l, Need): out.append("s_waitcnt lgkmcnt(0)" if l.extra else "s_nop 0"); continue
            if "g" in mab and l.startswith("v_mfma_f32_16x16") and "a[2" in l: continue
            out.append(l)
        return out
    Me = abl(M); M0e = abl(M0)
    D = Asm()
    D(f"s_mov_b32 s{sIt}, 0")
    for c in range(NP): D.ext(ts.at(f"c{c}")); D.ext(CP[c])
    D.ext(ts.at("m")); D.ext(M0e)
    D.ext(ts.at("m1"))
    D(".p2align 6\nP2_MLOOP:")
    D.ext(Me)
    if WPRE:
        D(f"""s_cmp_lt_u32 s{sIt}, 6
        s_cbranch_scc1 P2_MLOOP
        s_mov_b32 s{S_KVD}, s{sWo}
        s_mov_b32 s{S_KVD+1}, s{sWo+1}
        s_mov_b32 s{S_KVD+2}, s{sWoN}""")
        if CPF: D(cpa)
        D.ext(ts.at("mw"))
        D("P2_MWLOOP:")
        if "mw2" in ts.names: D.ext(ts.at("mw2"))
        D.ext(abl(MW))
        D(f"s_cmp_lt_u32 s{sIt}, 8\ns_cbranch_scc1 P2_MWLOOP")
        probs += check_hazards(M + MW + MW, "mw")
        M = MW
    else:
        D(f"s_cmp_lt_u32 s{sIt}, 8\ns_cbranch_scc1 P2_MLOOP")
    probs += check_hazards(B.lines[-8:] + sum(CP, []) + M0 + M + M, "att")
    A.ext(D.lines)

    C = Asm()
    C.ext(ts.at("attend"))
    C(f"""v_mfma_f32_32x32x16_bf16 {O[1]}, {V[1][0]}, {P[1].sub(0,4)}, {O[1]}
    {lsum(1)}
    v_mfma_f32_32x32x16_bf16 {O[1]}, {V[1][1]}, {P[1].sub(4,4)}, {O[1]}""")
    C(f"v_mov_b32 {T[1]}, 0")
    for r in range(16): C(f"v_fmac_f32 {T[1]}, 0, {O[0][r]}")
    for r in range(16): C(f"v_fmac_f32 {T[1]}, 0, {O[1][r]}")
    for ab in range(2): C(f"v_add_f32 {Lc[ab][0]}, {Lc[ab][0]}, {Lc[ab][1]}")
    C(f"""s_mov_b32 s{sT0}, {f2u(2.0**-20):#x}
    s_mov_b32 s{sT1}, {f2u(2.0**100):#x}
    v_cmp_le_f32 vcc, s{sT0}, {Lc[0][0]}
    v_cmp_le_f32 s[{S_C}:{S_C+1}], s{sT0}, {Lc[1][0]}
    s_nop 1
    s_and_b64 vcc, vcc, s[{S_C}:{S_C+1}]
    v_cmp_ge_f32 s[{S_C}:{S_C+1}], s{sT1}, {Lc[0][0]}
    v_cmp_ge_f32 s[{sT2}:{sT3}], s{sT1}, {Lc[1][0]}
    s_nop 1
    s_and_b64 vcc, vcc, s[{S_C}:{S_C+1}]
    s_and_b64 vcc, vcc, s[{sT2}:{sT3}]
    v_cmp_eq_f32 s[{S_C}:{S_C+1}], 0, {T[1]}
    s_nop 1
    s_and_b64 vcc, vcc, s[{S_C}:{S_C+1}]
    s_cmp_eq_u64 vcc, -1""")
    if opt.get("force_fallback"): C("s_branch P2_FALLBACK")
    C("s_cbranch_scc0 P2_FALLBACK")
    C("P2_FINISH:")
    for ab in range(2): C(f"v_rcp_f32 {T[2*ab]}, {Lc[ab][0]}")
    C(f"""s_add_u32 s{sT0}, s{sCB}, 112
    s_mul_i32 s{sT0}, s{sT0}, {AFS2}
    s_lshl_b32 s{sT1}, s{sRB}, 15
    s_add_u32 s{sT0}, s{sT0}, s{sT1}
    s_lshl_b32 s{sT1}, s{sW}, 13
    s_add_u32 s{sT0}, s{sT0}, s{sT1}
    s_add_u32 s{sT0}, s{sT0}, {AF2_OFF}
    s_add_u32 s{sT1}, s{sT0}, 4096
    v_and_b32 {vFl[2]}, 40, {vL}
    v_cmp_eq_u32 vcc, 40, {vFl[2]}
    v_add_u32 {vFl[2]}, 128, {vQP}
    s_nop 0
    v_cndmask_b32 {vFl[1]}, {vQP}, {vFl[2]}, vcc""")
    for ab in range(2): C(f"v_mul_f32 {T[2*ab]}, {T[2*ab]}, {vG[ab]}")
    for ab in range(2):
        for r in range(0, 16, 2):
            C(f"v_pk_mul_f32 {O[ab].sub(r,2)}, {O[ab].sub(r,2)}, {T.sub(2*ab,2)} op_sel_hi:[1,0]")
        for r in range(8): C(f"v_cvt_pk_bf16_f32 {S[ab][r]}, {O[ab][2*r]}, {O[ab][2*r+1]}")
        for c in range(2):
            C(VM(f"buffer_store_dwordx4 {S[ab].sub(4*c,4)}, {vFl[1+c]}, {srd(S_WS)}, s{sT0+ab} offen offset:{c*512} {SC1}", "O"))
    for j in range(8): C(f"v_sub_f32 {SCL[j]}, 1.0, {SCL[j]}")
    for j in range(8): C(f"v_cvt_pk_bf16_f32 {SCL[j]}, {SCL[j]}, {SCL[j]}")
    for j in range(8): C(f"v_and_b32 {SCL[j]}, 0xffff0000, {SCL[j]}")
    sFC = sL
    C(f"""s_lshl_b32 s{sFC}, s{sMT}, 9
    s_add_u32 s{sFC}, s{sFC}, {FL_O}
    s_add_u32 s{sFl}, s{sFl}, {FL_O - FL_H}""")
    C.ext(ts.at("tail"))
    EPI_IL = opt.get("epi_il", 1)
    groups = []
    if EPI_IL:
        n0 = next(k for k, l in enumerate(C.lines) if l.startswith("v_mov_b32") )
        rest = C.lines[n0:]; C.lines = C.lines[:n0]
        k0 = next(k for k, l in enumerate(rest) if l.startswith("s_mov_b32"))
        k1 = rest.index("P2_FINISH:")
        groups = [[l] for l in rest[:k0]] + [rest[k0:k1 + 1]] + [[l] for l in rest[k1 + 1:]]
    vPa = [O[0][i] for i in range(4)]; vPb = [O[0][4 + i] for i in range(4)]
    def pread(st, dst):
        base = vPb if st < 2 else vPa
        return [f"ds_read_b64_tr_b16 {dst[i].sub(2*hf,2)}, {base[i]} offset:{(st & 1)*4096 + hf*2048}" for i in range(4) for hf in range(2)]
    def p3iter(hook=None, now=False, skipx=False, usee=False):
        out = []
        for s in range(NS):
            m = [gm(s, j, i) for j in range(8) for i in range(4)]
            xt = lambda h: ("X", s, h)
            if usee and s == 0:
                m = [l.replace(str(RX[0][k // 4]), str(RE[k // 4])) for k, l in enumerate(m)]
                xt = lambda h: ("XE", h)
            f = {}
            if opt.get("t3", 1) == 0:
                f[-1] = [Need([("W", (s+1) % NS), ("X", s, 1)], "lgkmcnt(0)"), w3dma(s, 0)[0]]
                dgap = [0, 6, 14, 22]
                for e in range(4): put(f, dgap[e], w3dma(s, e)[1])
                for k, r in enumerate(wread((s + 1) % NS, (s+1) & 1)): put(f, 1 + 3*k, r)
                for j in range(8): put(f, 4*j + 3 + (1 if j < 7 else 0), xload(s, j))
            else:
                f[-1] = [Need([xt(0)], "lgkmcnt(0)"), w3dma(s, 0)[0]]
                dgap = opt.get("t3w", [0, 2, 6, 10])
                if now: f[-1] = f[-1][:1]
                else:
                    for e in range(4): put(f, dgap[e], w3dma(s, e)[1])
                put(f, 15, Need([xt(1)]))
                rg0 = opt.get("t3r", 18)
                if not (now and s == 3): put(f, rg0 - 1, Need([("W", (s+1) % NS)]))
                for k, r in enumerate(pread(0, RW[0]) if (now and s == 3) else wread((s + 1) % NS, (s+1) & 1)): put(f, rg0 + k + (1 if rg0 + k >= 20 else 0) + (1 if rg0 + k >= 23 else 0), r)
                if not (skipx and s == 0):
                    for j in range(8): put(f, 4*j + 3 + (1 if j < 7 else 0), xload(s, j))
            put(f, 31, adv3)
            put(f, 28, tr_issue())
            if trace: f[-1] = f[-1][:1] + tr_commit() + f[-1][1:]
            if hook: hook(s, f)
            out += interleave(m, f)
        return out
    opoll = f"buffer_load_dword {vFl[0]}, {T[5]}, {srd(S_WS)}, s{sFC} offen sc1"
    NT = NP - 2
    OFS, OPS = opt.get("oflag_step", 2), opt.get("opoll_step", 4*NT - 1 if NT == 1 else 4*NT - 2)
    def mkT(base):
        def hookT(s, f):
            if base == 0 and s < 2:
                R_ = opt.get("epi_rate", 3)
                for g_ in range(2 if s == 0 else 0, 31):
                    for _ in range(R_):
                        if groups: put(f, g_, groups.pop(0))
                assert s == 0 or not groups
            if base + s == OFS: put(f, 10, [Need(["O"]), "s_mov_b64 exec, 1", VM(f"buffer_store_dword {vNon}, {vZero}, {srd(S_WS)}, s{sFl} offen sc1", "OF"), "s_mov_b64 exec, -1", "s_nop 2"])
            if base + s == OPS: put(f, 26, VM(opoll, "OP"))
            if base + s == 1 and CPF: put(f, 14, [cpa, f"v_min_u32 v0, L_END-{NAME}-4, v0"] + cp(False))
        return hookT
    T5 = []
    XE_ = XRE and WPRE and NT >= 2
    for k in range(NT): T5 += resolve_waits(p3iter(mkT(4*k), skipx=XE_ and k == 0, usee=XE_ and k == 1), M + M + C.lines + T5)
    L3 = resolve_waits(p3iter())
    mid = [Need(["OP"])] + check([vFl[0]]) + ["s_cbranch_scc0 P3_SLOWO", "P3_OOK:",
           f"s_mov_b32 s{S_W3}, s{sWo}", f"s_mov_b32 s{S_W3+1}, s{sWo+1}", f"s_mov_b32 s{S_W3+2}, s{sWoN}",
           f"v_subrev_u32 {vW3o}, s{sAdv28}, {vW3o}", f"s_mov_b32 s{sIt}, 6", "s_barrier",
           f"v_add_u32 {T[0]}, 0x10000, {vL16}", f"v_and_b32 {T[1]}, 15, {vL}", f"v_lshlrev_b32 {T[1]}, 11, {T[1]}", f"v_bfe_u32 {T[2]}, {vL}, 4, 1",
           f"v_lshl_add_u32 {T[1]}, {T[2]}, 5, {T[1]}", f"v_lshrrev_b32 {T[2]}, 5, {vL}", f"v_lshl_add_u32 {T[1]}, {T[2]}, 4, {T[1]}",
           f"s_lshl_b32 s{sT0}, s{sMT}, 18", f"s_lshl_b32 s{sT1}, s{sW}, 16", f"s_add_u32 s{sT0}, s{sT0}, s{sT1}",
           f"s_lshl_b32 s{sT1}, s{sNT}, 7", f"s_add_u32 s{sT0}, s{sT0}, s{sT1}", f"s_add_u32 s{sT1}, s{sT0}, 32768"]
    if WPRE:
        mid += [f"s_lshl_b32 s{sT2}, s{sW}, 13", f"s_add_u32 s{sT2}, s{sT2}, {W3B}"]
        mid += [f"v_subrev_u32 {vPa[i]}, s{sT2}, {vW3a[i]}" for i in range(4)] + [f"v_add_u32 {vPb[i]}, 0x10000, {vPa[i]}" for i in range(4)]
    mid = resolve_waits(mid, T5)
    probs += verify_waits(M + C.lines + T5 + mid + L3, len(M + C.lines + T5 + mid), "T5->L3")
    tail = [f"s_add_u32 s{sIt}, s{sIt}, 1", f"s_cmp_eq_u32 s{sIt}, 8", "s_cbranch_scc1 P3_DONE", "s_nop 7"]
    for i in range(4):
        for j in range(8):
            for r in (0, 2):
                tail.append(f"v_pk_mul_f32 {acc3[i][j].sub(r,2)}, {acc3[i][j].sub(r,2)}, {SCL.sub(j & ~1, 2)} op_sel:[0,{j&1}] op_sel_hi:[1,{j&1}]")
    tail += ["s_nop 0", "s_branch P3_LOOP", "P3_DONE:"]
    probs += check_hazards(M[-30:] + C.lines + T5 + mid + L3 + tail + L3, "tail") + check_hazards(L3 + L3, "l3")
    tab = opt.get("tabl", "")
    def tabl(L):
        out = []
        for l in L:
            if isinstance(l, VM) and isinstance(l.tag, tuple) and l.tag[0].lower() in tab: continue
            if "t" in tab and l.startswith("ds_read_b64_tr"): continue
            if "m" in tab and l.startswith("v_mfma"): continue
            if "a" in tab and l in adv3: continue
            out.append(l)
        return out
    T5 = tabl(T5); L3 = tabl(L3)
    C.ext(T5); C.ext(ts.at("t5end")); C.ext(mid); C.ext(ts.at("l3"))
    if WPRE:
        XEND = opt.get("xend", 0)
        VA = [Reg("v", S[1].base + 4*j, 4) for j in range(8)]
        RXF = [RX[0], RX[1], VA, RE] if XEND else RX
        def hookL7(s, f):
            if XEND and s < 2:
                if s == 0: put(f, 0, [f"s_add_u32 s{sXP}, s{sW}, {4*34}", f"s_mul_i32 s{sXP}, s{sXP}, {AFS2}", f"s_lshl_b32 s{sT2}, s{sMT}, 14",
                                      f"s_add_u32 s{sXP}, s{sXP}, s{sT2}", f"s_add_u32 s{sXP}, s{sXP}, {AF2_OFF}"])
                for j in range(8):
                    put(f, 4*j + 2, VM(f"buffer_load_dwordx4 {RXF[2+s][j]}, {vAF}, {srd(S_WS)}, s{sXP} offen offset:{(j&1)*2048} {SC1}", ("X", 2 + s + 10, j >> 2)))
                    if j & 1: put(f, 4*j + 2, f"s_add_u32 s{sXP}, s{sXP}, {4096 if j < 7 else 4*AFS2 - 12288}")
            if XEND and s >= 2:
                for g_ in list(f): f[g_] = [l for l in f[g_] if not (isinstance(l, VM) and l.tag[0] == "X")]
            if s == 0:
                for j in range(8):
                    sc = [f"v_pk_mul_f32 {acc3[i][j].sub(r,2)}, {acc3[i][j].sub(r,2)}, {SCL.sub(j & ~1, 2)} op_sel:[0,{j&1}] op_sel_hi:[1,{j&1}]" for i in range(4) for r in (0, 2)]
                    if j == 0: put(f, -1, sc + ["s_nop 1"])
                    else:
                        for k in range(8): put(f, 4*(j - 1) + k // 3, sc[k])
        L7 = resolve_waits(p3iter(hookL7, now=True), L3 + L3)
        probs += check_hazards(L3 + L7, "l7")
        C.ext(L3); C.ext(tabl(L7)); C.ext(ts.at("l3end"))
        LPREV = L3 + L7
    else:
        C(".p2align 6\nP3_LOOP:")
        C.ext(L3); C.ext(tail); C.ext(ts.at("l3end"))
        LPREV = L3 + L3; RXF = RX; XEND = 0
    for w in range(3): C(f"s_cmp_eq_u32 s{sW}, {w}\ns_cbranch_scc1 P3_FIN{w}")
    A.ext(C.lines)
    RWF = [RW[0]] + [[Reg("a", 128 + 16*k + 4*i, 4) for i in range(4)] for k in range(3)]
    def fin(w):
        def adr(off): return (vL16, off) if off < 65536 else (T[0], off - 65536)
        own = [2*w, 2*w + 1]
        oth = [j for d in range(1, 4) for j in (2*((w + d) & 3), 2*((w + d) & 3) + 1)]
        mm = lambda s_, j, i: f"v_mfma_f32_16x16x32_bf16 {acc3[i][j]}, {RWF[s_][i]}, {RXF[s_][j]}, {acc3[i][j]}"
        m = [mm(0, j, i) for j in oth for i in range(4)]
        G0 = 24
        f = {}
        f[-1] = [Need([("X", 0, 1)] + ([] if WPRE else [("W", 1)]), "lgkmcnt(0)")]
        k = 0
        for s_ in (1, 2, 3):
            if s_ > 1 and not WPRE: put(f, k, Need([("W", s_)]))
            for r in (pread(s_, RWF[s_]) if WPRE else [f"ds_read_b64_tr_b16 {RWF[s_][i].sub(2*hf,2)}, {vW3a[i]} offset:{s_*4096 + hf*2048}" for i in range(4) for hf in range(2)]):
                put(f, k * 20 // 24, r); k += 1
        put(f, G0 - 1, Need([("X", 1, 1), ("X", 13, 1)] if (WPRE and XEND) else [("X", 3, 1)], "lgkmcnt(0)"))
        if WPRE: put(f, G0 - 1, "s_barrier")
        for j in oth: m += [mm(s_, j, i) for s_ in (1, 2, 3) for i in range(4)]
        for j in own: m += [mm(s_, j, i) for s_ in (0, 1, 2, 3) for i in range(4)]
        WS_ = opt.get("fws", 3)
        for n, j in enumerate(oth):
            d = j >> 1; q = (w - d - 1) & 3
            for i in range(4):
                b_, off = adr((d*3 + q)*8192 + ((j & 1)*4 + i)*1024)
                put(f, G0 + 12*(n + 1) + 5 + (WS_ if n < 5 else 1)*i, f"ds_write_b128 {b_}, {acc3[i][j]} offset:{off}")
        free = [acc3[i][j] for j in oth for i in range(4)]
        g0 = G0 + 12*6 + 5 + 6
        put(f, g0, ["s_waitcnt lgkmcnt(0)", "s_barrier"])
        k = 0
        for q in range(3):
            for jj in range(2):
                for i in range(4):
                    b_, off = adr((w*3 + q)*8192 + (jj*4 + i)*1024)
                    put(f, min(g0 + (k * 3) // 4, 127), f"ds_read_b128 {free[k]}, {b_} offset:{off}"); k += 1
        R = Asm()
        Fl = resolve_waits(interleave(m, f), LPREV)
        if opt.get("fabl"): Fl = [l for l in Fl if not l.startswith(tuple(opt["fabl"]))]
        R.ext(Fl)
        R.ext(ts.at("redw"))
        R("s_nop 3")
        for q in range(3):
            R(f"s_waitcnt lgkmcnt({[15, 8, 0][q] if not ts.on else 0})")
            for jj in range(2):
                for i in range(4):
                    a = acc3[i][2*w+jj]; b = free[q*8 + jj*4 + i]
                    for r in (0, 2): R(f"v_pk_add_f32 {a.sub(r,2)}, {a.sub(r,2)}, {b.sub(r,2)}")
        for jj in range(2):
            for ip in range(2):
                X, Y = acc3[2*ip][2*w+jj], acc3[2*ip+1][2*w+jj]
                Dd = S[0].sub(4*(jj*2+ip), 4)
                R(f"v_cvt_pk_bf16_f32 {Dd[0]}, {X[0]}, {X[1]}\nv_cvt_pk_bf16_f32 {Dd[1]}, {X[2]}, {X[3]}")
                R(f"v_cvt_pk_bf16_f32 {Dd[2]}, {Y[0]}, {Y[1]}\nv_cvt_pk_bf16_f32 {Dd[3]}, {Y[2]}, {Y[3]}")
                R(f"s_nop 1\nv_permlane16_swap_b32 {Dd[0]}, {Dd[2]}\nv_permlane16_swap_b32 {Dd[1]}, {Dd[3]}")
                R(f"buffer_store_dwordx4 {Dd}, {T[1]}, {srd(S_OUT)}, s{sT0+jj} offen offset:{ip*64} {opt.get('outflag', '')}")
        if trace:
            R(f"""s_waitcnt vmcnt(0)
            s_memrealtime s[100:101]
            s_waitcnt lgkmcnt(0)
            s_lshl_b64 exec, 1, s81
            v_mov_b32 v0, s100
            s_mov_b64 exec, -1
            s_lshl_b32 s80, s2, 2
            s_add_u32 s80, s80, s{sW}
            s_lshl_b32 s80, s80, 8
            s_add_u32 s80, s80, {TS_OFF}
            v_lshlrev_b32 {T[3]}, 2, {vL}
            buffer_store_dword v0, {T[3]}, {srd(S_WS)}, s80 offen
            s_waitcnt vmcnt(0) ; TRACE""")
        if opt.get("dbgt"):
            R(f"""s_waitcnt vmcnt(0) lgkmcnt(0)
            s_memrealtime s[100:101]
            s_waitcnt lgkmcnt(0)
            s_mov_b32 s{S_C}, s{P_DBG}
            s_mov_b32 s{S_C+1}, s{P_DBG+1}
            s_mov_b32 s{S_C+2}, 256
            s_mov_b64 exec, 1""")
            for i in range(10):
                R(f"""s_sub_u32 s80, s{82+2*i}, s{sNonce}
                s_add_u32 s80, s80, 1000
                v_mov_b32 {T[3]}, s80
                buffer_atomic_umax {T[3]}, {vZero}, {srd(S_C)}, 0 offen offset:{8 + 4*i}""")
            R("s_waitcnt vmcnt(0)")
        else:
            R.ext(ts.flush(S_WS, sW, S[1].base))
        R("s_endpgm")
        return R
    for w in (3, 0, 1, 2):
        R = fin(w)
        probs += check_hazards(LPREV[-10:] + R.lines, f"fin{w}")
        A(f"P3_FIN{w}:"); A.ext(R.lines)
    A.ext(slow1.lines)
    A("P3_SLOWH:"); A.ext(spin("P3_SH", hpoll, [vFl[k] for k in range(4)], "P3_HOK"))
    A("P3_SLOWO:"); A.ext(spin("P3_SO", opoll, [vFl[0]], "P3_OOK"))

    F = Asm()
    F("P2_FALLBACK:")
    for ab in range(2): F(f"v_mov_b32 {T[ab]}, 0xff800000")
    F(f"s_mov_b32 s{sT0}, {KV_OFF}")
    F("P2_FB1:")
    for t in range(2): F(f"buffer_load_dwordx4 {K[0][t]}, {vL16}, {srd(S_WS)}, s{sT0} offen offset:{t*1024} {SC1}")
    F("s_waitcnt vmcnt(0)")
    for ab in range(2):
        F(f"v_mfma_f32_32x32x16_bf16 {S[ab]}, {K[0][0]}, {Q[ab][0]}, 0\nv_mfma_f32_32x32x16_bf16 {S[ab]}, {K[0][1]}, {Q[ab][1]}, {S[ab]}")
    F("s_nop 15")
    for ab in range(2):
        for r in range(0, 16, 2): F(f"v_max3_f32 {T[ab]}, {S[ab][r]}, {S[ab][r+1]}, {T[ab]}")
    F(f"s_add_u32 s{sT0}, s{sT0}, 4096\ns_cmp_lt_u32 s{sT0}, {KV_OFF + 262144}\ns_cbranch_scc1 P2_FB1")
    for ab in range(2): F(f"v_mov_b32 {T[2+ab]}, {T[ab]}")
    F("s_nop 1")
    for ab in range(2): F(f"v_permlane32_swap_b32 {T[ab]}, {T[2+ab]}")
    for ab in range(2): F(f"v_max_f32 {vFl[ab]}, {T[ab]}, {T[2+ab]}")
    for ab in range(2):
        for r in range(16): F(f"v_mov_b32 {O[ab][r]}, 0")
        for r in range(4): F(f"v_mov_b32 {Lc[ab][r]}, 0")
    F(f"s_mov_b32 s{sT0}, {KV_OFF}")
    F("P2_FB2:")
    for t in range(2): F(f"buffer_load_dwordx4 {K[0][t]}, {vL16}, {srd(S_WS)}, s{sT0} offen offset:{t*1024} {SC1}")
    for t in range(2): F(f"buffer_load_dwordx4 {V[0][t]}, {vL16}, {srd(S_WS)}, s{sT0} offen offset:{2048 + t*1024} {SC1}")
    F("s_waitcnt vmcnt(0)")
    for ab in range(2):
        F(f"v_mfma_f32_32x32x16_bf16 {S[ab]}, {K[0][0]}, {Q[ab][0]}, 0\nv_mfma_f32_32x32x16_bf16 {S[ab]}, {K[0][1]}, {Q[ab][1]}, {S[ab]}")
    F("s_nop 15")
    for ab in range(2):
        for r in range(16): F(f"v_sub_f32 {S[ab][r]}, {S[ab][r]}, {vFl[ab]}")
        for r in range(16): F(f"v_exp_f32 {S[ab][r]}, {S[ab][r]}")
        F("s_nop 0")
        for r in range(8): F(f"v_cvt_pk_bf16_f32 {P[ab][r]}, {S[ab][2*r]}, {S[ab][2*r+1]}")
    F("s_nop 1")
    for ab in range(2):
        for u_ in range(2):
            F(f"v_mfma_f32_32x32x16_bf16 {O[ab]}, {V[0][u_]}, {P[ab].sub(4*u_,4)}, {O[ab]}")
            if u_ == 0: F(lsum(ab))
    F(f"s_add_u32 s{sT0}, s{sT0}, 4096\ns_cmp_lt_u32 s{sT0}, {KV_OFF + 262144}\ns_cbranch_scc1 P2_FB2")
    F("s_nop 15")
    for ab in range(2): F(f"v_add_f32 {Lc[ab][0]}, {Lc[ab][0]}, {Lc[ab][1]}")
    F("s_branch P2_FINISH")
    F("L_END:\ns_endpgm")
    probs += check_hazards(F.lines, "fb")
    A.ext(F.lines)
    for p_ in probs: print("PROBLEM", p_)
    launch = f"; @launch grid=(256,1,1) block=(256,1,1) lds=163840"
    return launch, A.text(), kdesc(NAME, 512, 256)

HDR = open("gated_mix__grouped_kv_mqa__glu_gated_reglu__prompt.s.ref").read().split("; Override launch")[0]
def build(opt=None):
    l, t, d = gen(opt)
    txt = HDR + l + "\n" + '.amdgcn_target "amdgcn-amd-amdhsa--gfx950"\n.text\n' + t + d
    if (opt or {}).get("skip3"):
        import skip3
        txt = skip3.apply(txt, NAME, *opt["skip3"])
    return txt
if __name__ == "__main__":
    import sys, json
    out = sys.argv[1] if len(sys.argv) > 1 else "gated_mix__grouped_kv_mqa__glu_gated_reglu__prompt.s"
    opt = json.loads(sys.argv[2]) if len(sys.argv) > 2 else {}
    open(out, "w").write(build(opt))
```

```python
from skip3 import sizes
def apply(text, name, groups, nl=1, align=True, off=0):
    lines = text.split("\n")
    sec = next(k for k, l in enumerate(lines) if l.startswith(".section"))
    lines = [l for k, l in enumerate(lines) if not (k < sec and l.strip().startswith(".p2align 6"))]
    clean = ["TA_AL:" if l == "; @@ALIGN@@" else l for l in lines if l == "; @@ALIGN@@" or not l.startswith("; @@")]
    sz = sizes("\n".join(clean))
    k0 = lines.index(name + ":")
    body = lines[k0:]
    ends = next(j for j, l in enumerate(body) if l.startswith(".section"))
    isins = lambda l: l.startswith("    ") and not l.strip().startswith((";", "."))
    size_of = {}; q = 0
    for j, l in enumerate(body[:ends]):
        if isins(l): size_of[j] = sz[q]; q += 1
    assert q == len(sz)
    out = []; addr = None if align else off; g = None; pads = {k: [] for k in range(len(groups))}; nextb = None if align else [4096 + 64*k for k in range(nl)]
    ism = lambda l: isinstance(l, str) and l.strip().startswith(("v_mfma", "v_smfmac"))
    for j, l in enumerate(body):
        if l == "; @@ALIGN@@":
            if align: out += ["    s_branch TA_AL", ".p2align 12", "TA_AL:"]; addr = 0; nextb = [4096 + 64*k for k in range(nl)]
            else: out.append("TA_AL:")
            continue
        if l.startswith("; @@TOUCH"):
            out.append(l);
            if addr is not None: addr += 4*10
            continue
        if l == "; @@PAD@@":
            if g is not None and addr is not None:
                n = len(pads[g]); pads[g].append(addr); out += [f"TP{g}_{n}:", ("PAD", g, n)]; addr += 4
            continue
        for k, (a, b) in enumerate(groups):
            if l == b + ":" and g == k: g = None
            if l == a + ":": g = k
        if j in size_of and addr is not None:
            if addr >= nextb[0]:
                if g is None: nextb = nextb[1:] + [nextb[0] + 4096] if True else nextb
                elif ism(out[-1]) or addr >= nextb[0] + 40:
                    n = len(pads[g]); pads[g].append(addr)
                    out += [f"TP{g}_{n}:", ("PAD", g, n)]; addr += 4
                    nextb = nextb[1:] + [nextb[0] + 4096]
            out.append(l); addr += size_of[j]
        else: out.append(l)
    res = []
    for l in out:
        if isinstance(l, tuple):
            _, g, n = l
            res.append(f"    s_cbranch_execz " + (f"TP{g}_{n+4}" if n + 4 < len(pads[g]) else f"TRET{g}"))
        elif l.startswith("; @@TOUCH"):
            g = int(l.split()[3]); sw = l.split()[4]
            t = lambda k: f"TP{g}_{k}" if k < len(pads[g]) else f"TRET{g}"
            res += ["    s_mov_b64 exec, 0", f"    s_cmp_eq_u32 {sw}, 1", f"    s_cbranch_scc1 {t(1)}", f"    s_cmp_eq_u32 {sw}, 2", f"    s_cbranch_scc1 {t(2)}",
                    f"    s_cmp_eq_u32 {sw}, 3", f"    s_cbranch_scc1 {t(3)}", f"    s_branch {t(0)}", f"TRET{g}:", "    s_mov_b64 exec, -1", "    s_nop 2"]
        else: res.append(l)
    head = lines[:k0]
    if not align:
        k = head.index(".text"); head[k + 1:k + 1] = [".p2align 12"]
    return "\n".join(head + res), pads
```

```python
from asmlib import *
from common import *
LOG2E = math.log2(math.e)
NAME = "gated_mix__grouped_kv_mqa__glu_gated_reglu__prompt_kernel"

FL_E = 0x1650000
FL_ES = 4352
FL_Q = 0x1660000
FL_H = 0x1670000
FL_O = 0x1672000
SPIN_MAX = 1 << 20
PW = 7168

def put(f, g, x):
    f.setdefault(g, []).extend(x if isinstance(x, list) else [x])

def gen(opt=None):
    opt = opt or {}
    A = Asm()
    DEF = ["start", "p1", "p1end", "kvdone", "poll0", "poll1", "att", "attend", "tail"]
    tsn = opt.get("ts")
    ts = TSN(DEF if tsn == 1 else tsn, opt.get("tskind", "rt"))
    SC1 = "sc1"
    probs = []
    P_X, P_WQ, P_WK, P_WV, P_WO = 4, 6, 8, 10, 12
    P_WG, P_WU, P_WD, P_GW = 16, 18, 20, 22
    P_OUT, P_DBG, P_WS = 24, 26, 28
    S_WS, S_A, S_B, S_C, S_D, S_E = 32, 36, 40, 44, 48, 52
    sW, sNonce = 56, 57
    sT0, sT1, sT2, sT3 = 58, 59, 60, 61
    sIt, sRB, sCB = 62, 63, 64
    sL = 65
    vL, vL16 = Reg("v", 1, 1), Reg("v", 2, 1)
    def srd(b): return f"s[{b}:{b+3}]"

    A("""; LOCALQ AFS4
; (published in d_debug by workgroup 0); consumers poll the flags and read the data with sc1 loads.""")
    A(f".globl {NAME}\n.p2align 8\n.type {NAME},@function\n{NAME}:")
    A("s_cmp_ge_u32 s2, 256\ns_cbranch_scc1 L_END")
    A.ext(ts.at("start"))
    A(f"""s_load_dwordx8 s[4:11], s[0:1], 0
    s_load_dwordx2 s[12:13], s[0:1], 32
    s_load_dwordx8 s[16:23], s[0:1], 48
    s_load_dwordx4 s[24:27], s[0:1], 80
    s_load_dwordx2 s[28:29], s[0:1], 96
    s_memrealtime s[30:31]""")
    if opt.get("touch", 2): A("; @@ALIGN@@")
    A(f"""v_lshrrev_b32 v3, 6, v0
    v_and_b32 {vL}, 63, v0
    v_readfirstlane_b32 s{sW}, v3
    v_lshlrev_b32 {vL16}, 4, {vL}""")
    CPF = opt.get("cpf", 1) and not opt.get("trace")
    sPC = 100
    CB0 = "TA_AL" if opt.get("touch", 2) else NAME
    cpf = VM(f"global_load_dword a253, v0, s[{sPC}:{sPC+1}]", "CP")
    cpa = "v_add_u32 v0, 0x2000, v0"
    def cp(adv=True): return ([cpf] + ([cpa] if adv else [])) if CPF else []
    if CPF:
        A(f"""s_getpc_b64 s[{sPC}:{sPC+1}]
        L_PCREF:
        v_lshrrev_b32 v0, 2, v0
        v_lshlrev_b32 v0, 7, v0
        s_sub_u32 s{sPC}, s{sPC}, L_PCREF-{CB0}
        s_subb_u32 s{sPC+1}, s{sPC+1}, 0""")
        A.ext(cp())
        if opt.get("touch", 2):
            A(f"""v_lshrrev_b32 v4, 2, {vL}
            v_lshlrev_b32 v4, 12, v4
            v_add_u32 v4, {'0x1000' if opt.get('talign', 0) else '0x1000-%d-(TA_AL-%s)' % (opt.get('toff', 0x300), NAME)}, v4
            global_load_dword a254, v4, s[{sPC}:{sPC+1}]""")

    if opt.get("ticket", 0):
        A(f"""s_getreg_b32 s{sT0}, hwreg(HW_REG_XCC_ID)
        s_and_b32 s{sT0}, s{sT0}, 7
        s_cmp_lg_u32 s{sW}, 0
        s_cbranch_scc1 L_TKWAIT
        v_mov_b32 v5, 0
        s_mov_b32 s{sT1}, 8
        s_mov_b32 s{S_WS+2}, 256
        s_mov_b32 s{S_WS+3}, 0x20000
        s_waitcnt lgkmcnt(0)
        s_mov_b32 s{S_WS}, s{P_DBG}
        s_mov_b32 s{S_WS+1}, s{P_DBG+1}
        s_mov_b64 exec, 1
        L_TKTRY:
        v_mov_b32 v4, 1
        s_lshl_b32 s{sT2}, s{sT0}, 5
        buffer_atomic_add v4, v5, {srd(S_WS)}, s{sT2} offen offset:4 sc0
        s_waitcnt vmcnt(0)
        v_readfirstlane_b32 s{sT2}, v4
        s_cmp_lt_u32 s{sT2}, 32
        s_cbranch_scc1 L_TKGOT
        s_add_u32 s{sT0}, s{sT0}, 1
        s_and_b32 s{sT0}, s{sT0}, 7
        s_sub_u32 s{sT1}, s{sT1}, 1
        s_cmp_lg_u32 s{sT1}, 0
        s_cbranch_scc1 L_TKTRY
        s_mov_b32 s{sT2}, 32
        L_TKGOT:
        s_lshl_b32 s{sT2}, s{sT2}, 3
        s_add_u32 s{sT2}, s{sT2}, s{sT0}
        v_mov_b32 v4, s{sT2}
        ds_write_b32 v5, v4
        s_mov_b64 exec, -1
        s_waitcnt lgkmcnt(0)
        L_TKWAIT:
        v_mov_b32 v5, 0
        s_barrier
        ds_read_b32 v4, v5
        s_waitcnt lgkmcnt(0)
        v_readfirstlane_b32 s2, v4
        s_barrier
        s_cmp_ge_u32 s2, 256
        s_cbranch_scc1 L_END""")
    trace = opt.get("trace")
    def tr_issue(): return ["s_memrealtime s[100:101]"] if trace else []
    def tr_commit(): return ["s_lshl_b64 exec, 1, s81", "v_mov_b32 v0, s100", "s_mov_b64 exec, -1", "s_add_u32 s81, s81, 1"] if trace else []
    if trace: A("s_mov_b32 s81, 0\nv_mov_b32 v0, 0\ns_memrealtime s[100:101]\ns_waitcnt lgkmcnt(0)"); A.ext(tr_commit())
    S_X, S_W0, S_W1, S_KV, S_Wb = S_A, S_B, S_C, S_D, S_E
    sSoX = sL - 1
    sSo0 = sL + 7
    sSo1 = sL + 7
    sM0X, sM0W, sM0K, sWwr = sL + 11, sL + 12, sL + 13, sL + 14
    sWrd, s16k, sStep1, sSa, sSc, sIsB, sKVst, sEfl = 14, 30, 15, 3, 31, 9, 10, 11
    XB, WB, KR = 0, 65536, 147456
    vXo = [3, 4]; vWo0, vWo1, vKo, vSXo = 5, 6, 7, 8
    vXa = [9, 10]; vW0a = [[11 + 2*i, 12 + 2*i] for i in range(4)]; vW1a = [19, 20, 21, 22]; vSWa = 23
    vT = 24
    acc = [[None]*8 for _ in range(8)]
    p = 32
    for i in range(7):
        for j in range(8):
            acc[i][j] = Reg("v", p, 4); p += 4
    RA = [[Reg("a", 64*s + 4*i, 4) for i in range(8)] for s in range(2)]
    RB = [[Reg("a", 64*s + 32 + 4*j, 4) for j in range(8)] for s in range(2)]
    SA = [Reg("a", 128 + 4*s, 4) for s in range(2)]
    sacc = Reg("a", 144, 4)
    for j in range(8): acc[7][j] = Reg("a", 148 + 4*j, 4)
    SXB = [[Reg("a", 180 + 8*b + 4*j, 4) for j in range(2)] for b in range(2)]
    GXa = [Reg("a", 196 + 8*r, 8) for r in range(2)]
    GWa = Reg("a", 212, 8)
    t0, t1, t2, t3, t4, t5, t6, t7 = range(vT, vT + 8)
    HUGE = 0x40000000
    KP = opt.get("kp", [0, 1, 2, 4, 5, 6, 7, 8, 9, 10, 12, 13, 14, 15, 3, 11])
    sCWa, sCWb = 6, 7

    A(f"""s_and_b32 s{sT0}, s2, 1
    s_lshl_b32 s{sT0}, s{sT0}, 2
    s_bfe_u32 s{sT1}, s2, 0x20003
    s_add_u32 s{sRB}, s{sT0}, s{sT1}
    s_bfe_u32 s{sT0}, s2, 0x20001
    s_lshl_b32 s{sT0}, s{sT0}, 3
    s_lshr_b32 s{sT1}, s2, 5
    s_add_u32 s{sCB}, s{sT0}, s{sT1}""")
    A(f"""s_lshl_b32 s{sT0}, s{sW}, 6
    v_lshrrev_b32 v{t0}, 3, {vL}
    v_add_u32 v{t2}, s{sT0}, v{t0}
    v_lshlrev_b32 v{t2}, 11, v{t2}
    v_lshrrev_b32 v{t1}, 4, {vL}
    v_and_b32 v{t3}, 7, {vL}
    v_xor_b32 v{t4}, v{t3}, v{t1}
    v_lshl_add_u32 v{vXo[0]}, v{t4}, 4, v{t2}
    v_add_u32 v{vXo[0]}, {KP[0]*128}, v{vXo[0]}
    v_xor_b32 v{vXo[1]}, 64, v{vXo[0]}""")
    for e in range(1, 8): A(f"s_mov_b32 s{sSoX+e}, {e*16384 - (e&3)*1024}")
    A(f"""s_lshl_b32 s{sM0X}, s{sW}, 13
    s_lshl_b32 s{sM0W}, s{sW}, 11
    s_add_u32 s{sM0K}, s{sM0W}, {KR}
    s_add_u32 s{sM0W}, s{sM0W}, {WB}
    s_and_b32 s{sT1}, s{sCB}, 3
    s_mov_b32 s{sStep1}, {PW}
    s_cmp_eq_u32 s{sT1}, 3
    s_cselect_b32 s{sStep1}, 2048, s{sStep1}""")
    A(f"""s_lshl_b32 s{sT0}, s{sW}, 3
    v_add_u32 v{t2}, s{sT0}, v{t1}
    v_mul_lo_u32 v{t2}, v{t2}, s{sStep1}
    s_and_b32 s{sT1}, s{sW}, 1
    s_lshl_b32 s{sT2}, s{sT1}, 3
    v_and_b32 v{t4}, 15, {vL}
    v_lshl_or_b32 v{t5}, v{t1}, 1, s{sT2}
    v_xor_b32 v{t4}, v{t4}, v{t5}
    v_lshl_add_u32 v{vWo1}, v{t4}, 4, v{t2}
    v_add_u32 v{t2}, s{sT0}, v{t0}
    v_mul_u32_u24 v{t2}, {PW}, v{t2}
    s_lshl_b32 s{sT2}, s{sT1}, 2
    v_and_b32 v{t4}, 1, v{t1}
    v_lshl_or_b32 v{t4}, v{t4}, 1, s{sT2}
    v_xor_b32 v{t4}, v{t4}, v{t3}
    v_lshl_add_u32 v{vWo0}, v{t4}, 4, v{t2}""")
    A.ext(ts.at("a0"))
    A("s_waitcnt lgkmcnt(0)")
    A.ext(ts.at("a1"))
    A(f"""s_lshl_b32 s{sT0}, s{sRB}, 19
    s_add_u32 s{S_X}, s{P_X}, s{sT0}
    s_addc_u32 s{S_X+1}, s{P_X+1}, 0
    s_mov_b32 s{S_X+2}, 0x80000
    s_mov_b32 s{S_X+3}, 0x20000""")
    A(f"""s_mov_b32 s{S_WS+3}, 0x20000
    s_or_b32 s{sT0}, s2, s{sW}
    s_cmp_lg_u32 s{sT0}, 0
    s_cbranch_scc1 P1_NONONCE
    s_or_b32 s30, s30, 1
    s_mov_b32 s{S_WS}, s{P_DBG}
    s_mov_b32 s{S_WS+1}, s{P_DBG+1}
    s_mov_b32 s{S_WS+2}, 256
    v_mov_b32 v{t6}, s30
    v_mov_b32 v{t7}, 0
    s_mov_b64 exec, 1
    buffer_store_dword v{t6}, v{t7}, {srd(S_WS)}, 0 offen sc1
    s_mov_b64 exec, -1
    P1_NONONCE:""")
    WNT = opt.get("wnt", "")
    def xdma(par):
        sl = []
        for e in range(8):
            pre = []
            if e == 0: pre = [f"s_add_u32 m0, s{sM0X}, {par}"]
            if e == 4: pre = ["s_add_u32 m0, m0, 4096"]
            so = "0" if e == 0 else f"s{sSoX+e}"
            sl.append((pre, VM(f"buffer_load_dwordx4 v{vXo[e&1]}, {srd(S_X)}, {so} offen offset:{(e&3)*1024} {opt.get('xnt', '')} lds", "X")))
        return sl
    def wdma(hb, slot):
        so0 = "0" if hb == 0 else f"s{sSo0}"
        so1 = ["0" if hb == 0 else f"s{sSo1+2}", f"s{sSo1 + 1 + 2*hb}"]
        return [([f"s_add_u32 m0, s{sM0W}, {slot}"], VM(f"buffer_load_dwordx4 v{vWo0}, {srd(S_W0)}, {so0} offen {WNT} lds", "W")),
                ([], VM(f"buffer_load_dwordx4 v{vWo0}, {srd(S_Wb)}, {so0} offen offset:1024 {WNT} lds", "W")),
                (["s_add_u32 m0, m0, 40960"], VM(f"buffer_load_dwordx4 v{vWo1}, {srd(S_W1)}, {so1[0]} offen {WNT} lds", "W")),
                ([], VM(f"buffer_load_dwordx4 v{vWo1}, {srd(S_W1)}, {so1[1]} offen offset:1024 {WNT} lds", "W"))]
    def kdma(slot):
        return [([f"s_add_u32 m0, s{sM0K}, {slot}"], VM(f"buffer_load_dwordx4 v{vKo}, {srd(S_KV)}, 0 offen lds", "X")),
                ([], VM(f"buffer_load_dwordx4 v{vKo}, {srd(S_KV)}, 0 offen offset:1024 lds", "X"))]
    def sxload(b): return [VM(f"buffer_load_dwordx4 {SXB[b][j]}, v{vSXo}, {srd(S_X)}, 0 offen offset:{j*64}", "SX") for j in range(2)]
    def emit_dma(X, sl):
        for pre, d in sl:
            X.ext(pre)
            if pre: X("s_nop 0")
            X(d)
    emit_dma(A, xdma(0))
    A.ext(ts.at("a2"))
    A(f"""s_lshr_b32 s{sT0}, s{sCB}, 2
    s_and_b32 s{sT1}, s{sCB}, 3
    s_mul_i32 s{sT2}, s{sT0}, 896
    s_lshl_b32 s{sT3}, s{sT1}, 8
    s_add_u32 s{sT2}, s{sT2}, s{sT3}
    s_add_u32 s{S_W0}, s{P_WG}, s{sT2}
    s_addc_u32 s{S_W0+1}, s{P_WG+1}, 0
    s_sub_u32 s{S_W0+2}, {1024*PW}, s{sT2}
    s_mov_b32 s{S_W0+3}, 0x20000
    s_mov_b32 s{S_W1+3}, 0x20000
    s_mov_b32 s{S_Wb+3}, 0x20000
    s_mov_b32 s{sSo0}, {32*PW}
    s_cmp_eq_u32 s{sT1}, 3
    s_cbranch_scc1 P1_SRDB
    s_add_u32 s{S_Wb}, s{S_W0}, {4*PW - 1024}
    s_addc_u32 s{S_Wb+1}, s{S_W0+1}, 0
    s_sub_u32 s{S_Wb+2}, s{S_W0+2}, {4*PW - 1024}
    s_add_u32 s{S_W1}, s{P_WU}, s{sT2}
    s_addc_u32 s{S_W1+1}, s{P_WU+1}, 0
    s_mov_b32 s{S_W1+2}, s{S_W0+2}
    v_mov_b32 v{vWo0}, v{vWo1}
    s_branch P1_SRDD
    P1_SRDB:
    s_add_u32 s{S_Wb}, s{P_WU}, s{sT2}
    s_addc_u32 s{S_Wb+1}, s{P_WU+1}, 0
    s_sub_u32 s{S_Wb}, s{S_Wb}, 1024
    s_subb_u32 s{S_Wb+1}, s{S_Wb+1}, 0
    s_add_u32 s{S_Wb+2}, s{S_W0+2}, 1024
    s_lshl_b32 s{sT0}, s{sT0}, 8
    s_add_u32 s{S_W1}, s{P_WQ}, s{sT0}
    s_addc_u32 s{S_W1+1}, s{P_WQ+1}, 0
    s_sub_u32 s{S_W1+2}, {1024*2048}, s{sT0}
    P1_SRDD:
    s_lshl_b32 s{sSo1+1}, s{sStep1}, 2
    s_sub_u32 s{sSo1+1}, s{sSo1+1}, 1024
    s_lshl_b32 s{sSo1+2}, s{sStep1}, 5
    s_add_u32 s{sSo1+3}, s{sSo1+2}, s{sSo1+1}
    s_lshl_b32 s{sStep1}, s{sStep1}, 6""")
    def advXf(a, b):
        d = (KP[b] - KP[a]) * 128 & 0xffffffff
        return [f"v_add_u32 v{vXo[0]}, {d:#x}, v{vXo[0]}", f"v_add_u32 v{vXo[1]}, {d:#x}, v{vXo[1]}"]
    def advWf(a, b):
        d = KP[b] - KP[a]
        if d == 1: return [f"v_add_u32 v{vWo0}, {64*PW}, v{vWo0}", f"v_add_u32 v{vWo1}, s{sStep1}, v{vWo1}"]
        return [f"v_add_u32 v{vWo0}, {d*64*PW & 0xffffffff:#x}, v{vWo0}", f"s_mul_i32 s{sT3}, s{sStep1}, {d}\nv_add_u32 v{vWo1}, s{sT3}, v{vWo1}"]
    if KP[0]:
        A(f"""v_add_u32 v{vWo0}, {KP[0]*64*PW}, v{vWo0}
        s_mul_i32 s{sT3}, s{sStep1}, {KP[0]}
        v_add_u32 v{vWo1}, s{sT3}, v{vWo1}""")
    advK = f"v_add_u32 v{vKo}, 4096, v{vKo}"
    advS = f"v_add_u32 v{vSXo}, 128, v{vSXo}"
    emit_dma(A, wdma(0, 0)); emit_dma(A, wdma(1, 8192))
    A.ext(advXf(0, 1) + advWf(0, 1))
    A(f"""s_bfe_u32 s{sT0}, s{sCB}, 0x10001
    s_and_b32 s{sT1}, s{sW}, 1
    s_bitcmp1_b32 s{sCB}, 0
    s_cselect_b32 s{S_KV}, s{P_WV}, s{P_WK}
    s_cselect_b32 s{S_KV+1}, s{P_WV+1}, s{P_WK+1}
    s_cselect_b32 s{sSa}, s{sT1}, s{sT0}
    s_cselect_b32 s{sSc}, s{sT0}, s{sT1}
    s_mov_b32 s{S_KV+2}, 65536
    s_mov_b32 s{S_KV+3}, 0x20000
    s_and_b32 s{sIsB}, s{sCB}, 3
    s_cmp_eq_u32 s{sIsB}, 3
    s_cselect_b32 s{sIsB}, 1, 0
    v_lshrrev_b32 v{t2}, 5, {vL}
    v_lshlrev_b32 v{t2}, 1, v{t2}
    v_xor_b32 v{t2}, v{t2}, {vL}
    v_lshlrev_b32 v{t2}, 4, v{t2}
    s_lshr_b32 s{sT2}, s{sW}, 1
    s_lshl_b32 s{sT0}, s{sT2}, 15
    s_lshl_b32 s{sT1}, s{sT1}, 11
    s_add_u32 s{sT0}, s{sT0}, s{sT1}
    v_add_u32 v{vKo}, s{sT0}, v{t2}
    s_lshr_b32 s{sT0}, s{sCB}, 2
    s_lshl_b32 s{sT0}, s{sT0}, 1
    s_add_u32 s{sT0}, s{sT0}, s{sSa}
    s_lshl_b32 s{sT0}, s{sT0}, 15
    s_lshl_b32 s{sT2}, s{sT2}, 10
    s_add_u32 s{sT0}, s{sT0}, s{sT2}
    v_and_b32 v{t2}, 15, {vL}
    v_lshlrev_b32 v{t2}, 11, v{t2}
    v_lshl_add_u32 v{t2}, v{t1}, 4, v{t2}
    v_add_u32 v{vSXo}, s{sT0}, v{t2}""")
    emit_dma(A, kdma(0)); A.ext(sxload(0)); A(advK); A(advS)
    A(f"""s_mov_b32 s{S_WS}, s{P_WS}
    s_mov_b32 s{S_WS+1}, s{P_WS+1}
    s_mov_b32 s{S_WS+2}, {WS_USED}""")
    A.ext(ts.at("a3"))
    second = xdma(32768) + wdma(0, 2*8192) + kdma(8192) + wdma(1, 3*8192)
    A(f"""v_and_b32 v{t0}, 15, {vL}
    v_lshrrev_b32 v{t2}, 1, v{t0}
    v_xor_b32 v{t2}, v{t2}, v{t1}
    v_lshlrev_b32 v{t2}, 4, v{t2}
    v_lshl_add_u32 v{t2}, v{t0}, 7, v{t2}
    s_lshr_b32 s{sT0}, s{sW}, 1
    s_lshl_b32 s{sT1}, s{sT0}, 14
    v_add_u32 v{vXa[0]}, s{sT1}, v{t2}
    v_xor_b32 v{vXa[1]}, 64, v{vXa[0]}
    v_bfe_u32 v{t0}, {vL}, 2, 2
    v_lshl_add_u32 v{t2}, v{t1}, 3, v{t0}
    v_and_b32 v{t3}, 1, v{t1}
    v_lshl_or_b32 v{t5}, v{t3}, 2, v{t0}
    v_and_b32 v{t4}, 3, {vL}
    v_lshlrev_b32 v{t4}, 3, v{t4}
    v_lshl_add_u32 v{t6}, v{t2}, 8, v{t4}
    v_add_u32 v{t6}, {WB + 40960}, v{t6}
    s_and_b32 s{sT0}, s{sW}, 1
    s_lshl_b32 s{sT1}, s{sT0}, 2""")
    for ii in range(4):
        A(f"""s_add_u32 s{sT2}, s{sT1}, {ii}
        v_xor_b32 v{t7}, s{sT2}, v{t5}
        v_lshl_add_u32 v{vW1a[ii]}, v{t7}, 5, v{t6}""")
    A(f"""v_lshl_add_u32 v{t2}, v{t2}, 6, v{t4}
    v_xor_b32 v{t7}, s{sSc}, v{t3}
    v_lshl_add_u32 v{t7}, v{t7}, 5, v{t2}
    s_lshr_b32 s{sT2}, s{sW}, 1
    s_lshl_b32 s{sT2}, s{sT2}, 12
    s_add_u32 s{sT2}, s{sT2}, {KR}
    v_add_u32 v{vSWa}, s{sT2}, v{t7}
    s_mov_b32 s{s16k}, 16384
    s_cmp_eq_u32 s{sIsB}, 1
    s_cbranch_scc1 P1_ADB""")
    for ii in range(4):
        A(f"v_subrev_u32 v{vW0a[ii][0]}, 40960, v{vW1a[ii]}\nv_subrev_u32 v{vW0a[ii][1]}, {40960 - 1024}, v{vW1a[ii]}")
    A(f"""s_branch P1_ADD
    P1_ADB:
    v_lshl_add_u32 v{t4}, v{t1}, 11, v{t4}
    v_lshl_add_u32 v{t4}, v{t0}, 7, v{t4}
    v_add_u32 v{t4}, {WB}, v{t4}
    v_lshrrev_b32 v{t0}, 1, v{t0}
    v_lshl_or_b32 v{t0}, v{t3}, 1, v{t0}
    s_lshl_b32 s{sT1}, s{sT0}, 1""")
    for k in range(2):
        A(f"""s_add_u32 s{sT2}, s{sT1}, {k}
        v_xor_b32 v{t7}, s{sT2}, v{t0}
        v_lshl_add_u32 v{vW0a[k][0]}, v{t7}, 5, v{t4}
        v_add_u32 v{vW0a[k][1]}, 512, v{vW0a[k][0]}
        v_add_u32 v{vW0a[2+k][0]}, 1024, v{vW0a[k][0]}
        v_add_u32 v{vW0a[2+k][1]}, 1536, v{vW0a[k][0]}""")
    A("P1_ADD:")
    A("; @@PRE@@")
    PF = opt.get("pf", 1)
    Z = []
    for i in range(8):
        for j in range(8):
            for r in range(4):
                a = acc[i][j][r]
                Z.append(f"v_mov_b32 {a}, 0" if a.f == "v" else f"v_accvgpr_write_b32 {a}, 0")
    for r in range(4): Z.append(f"v_accvgpr_write_b32 {sacc[r]}, 0")
    TCH = opt.get("touch", 2)
    PEEL = opt.get("peel", 0)
    NPRE = opt.get("npre", 0)
    if not PEEL:
        per = len(Z) // len(second)
        for k, (pre, d) in enumerate(second):
            A.ext(pre); A.ext(Z[k*per:(k+1)*per]); A(d)
            if k == opt.get("tk", [3, 11])[0] and TCH: A(f"; @@TOUCH x 0 s{sW}")
            if k == opt.get("tk", [3, 11])[1] and TCH and not opt.get("t1s", 6): A(f"; @@TOUCH x 1 s{sW}")
        A.ext(Z[len(second)*per:])
        A.ext(advXf(1, 2) + advWf(1, 2) + [advK])
    else:
        emit_dma(A, second[:NPRE])

    def reads(t, s, side):
        b = t & 1; xo = ((t >> 1) & 1)*32768; wo = (t % 5)*8192; ko = ((t >> 1) & 1)*8192
        L = [f"ds_read_b128 {RB[s][j]}, v{vXa[b]} offset:{xo + j*2048}" for j in range(8)]
        for i in range(8):
            for hf in range(2):
                if i < 4: L.append(f"ds_read_b64_tr_b16 {RA[s][i].sub(2*hf, 2)}, v{vW0a[i][hf]} offset:{wo}")
                else: L.append(f"ds_read_b64_tr_b16 {RA[s][i].sub(2*hf, 2)}, v{vW1a[i-4]} offset:{wo + hf*1024}")
        if side:
            for hf in range(2):
                L.append(f"ds_read_b64_tr_b16 {SA[s].sub(2*hf, 2)}, v{vSWa} offset:{ko + b*2048 + hf*256}")
        return L
    def mfmas(s, side=None, zero=False):
        L = []
        for i in range(8):
            js = range(8) if i % 2 == 0 else range(7, -1, -1)
            for j in js:
                L.append(f"v_mfma_f32_16x16x32_bf16 {acc[i][j]}, {RA[s][i]}, {RB[s][j]}, {0 if zero else acc[i][j]}")
            if side is not None and i == 3:
                L.append(f"v_mfma_f32_16x16x32_bf16 {sacc}, {SA[s]}, {SXB[side][s]}, {0 if zero else sacc}")
        return L
    IPF = opt.get("ipf", 0)
    npf = 0
    if IPF:
        assert KP[2:6] == [2, 4, 5, 6]
        A(f"""v_lshrrev_b32 v{t0}, 3, {vL}
        v_cmp_lt_u32 vcc, 0, v{t0}
        v_add_u32 v{t1}, 2, v{t0}
        v_and_b32 v{t2}, 7, {vL}
        v_addc_co_u32 v{t1}, vcc, 0, v{t1}, vcc
        v_cmp_gt_u32 vcc, {IPF}, v{t0}
        s_and_b32 s{sT0}, s{sCB}, 7
        s_lshl_b32 s{sT0}, s{sT0}, 2
        s_add_u32 s{sT0}, s{sT0}, s{sW}
        s_lshl_b32 s{sT0}, s{sT0}, 3
        v_add_u32 v{t3}, s{sT0}, v{t2}
        v_lshlrev_b32 v{t3}, 11, v{t3}
        v_lshl_add_u32 v{t3}, v{t1}, 7, v{t3}
        v_mov_b32 v{t6}, {HUGE}
        v_cndmask_b32 v{t3}, v{t6}, v{t3}, vcc
        buffer_load_dword a252, v{t3}, {srd(S_X)}, 0 offen
        s_and_b32 s{sT0}, s{sRB}, 3
        s_lshl_b32 s{sT0}, s{sT0}, 2
        s_add_u32 s{sT0}, s{sT0}, s{sW}
        s_lshl_b32 s{sT0}, s{sT0}, 2
        v_lshrrev_b32 v{t4}, 1, v{t2}
        v_lshl_add_u32 v{t4}, v{t1}, 6, v{t4}
        v_add_u32 v{t4}, s{sT0}, v{t4}
        v_and_b32 v{t2}, 1, v{t2}
        v_lshlrev_b32 v{t2}, 7, v{t2}
        v_mul_u32_u24 v{t5}, {PW}, v{t4}
        v_add_u32 v{t5}, v{t5}, v{t2}
        v_cndmask_b32 v{t5}, v{t6}, v{t5}, vcc
        buffer_load_dword a254, v{t5}, {srd(S_W0)}, 0 offen
        s_lshr_b32 s{sT0}, s{sStep1}, 6
        v_mul_lo_u32 v{t5}, v{t4}, s{sT0}
        v_add_u32 v{t5}, v{t5}, v{t2}
        v_cndmask_b32 v{t5}, v{t6}, v{t5}, vcc
        buffer_load_dword a255, v{t5}, {srd(S_W1)}, 0 offen""")
        npf = 3
    A("P1_START:")
    A.ext(ts.at("a4"))
    A(f"s_waitcnt vmcnt({len(second) + npf}) lgkmcnt(0)")
    A.ext(ts.at("a5"))
    A("s_barrier")
    A.ext(reads(0, 0, True))
    A("s_waitcnt lgkmcnt(0)\ns_barrier")
    A.ext(ts.at("p1"))
    if ts.on: A("s_waitcnt lgkmcnt(0)")
    pro_hist = list(A.lines)

    NOB1 = opt.get("nob1", 0)
    def step(st, hook=None, cpl=False):
        out = []
        sd = st < 8; side = st & 1 if sd else None
        dma = st < 14; last = st == 15
        n = 65 if sd else 64
        BG = n - opt.get('bgo', 4)
        f = {}
        for k, r in enumerate(reads(2*st + 1, 1, sd)): put(f, 2*k, r)
        if dma:
            dg = opt.get('dgw', [1, 9, 17, 25, 33, 39, 47, 55]) if not (st < 7) else [13, 19, 25, 31, 37, 43, 49, 55]
            wl = wdma(0, ((2*st + 4) % 5)*8192) + ([] if NOB1 else wdma(1, ((2*st + 5) % 5)*8192))
            if NOB1: dg = [13, 27, 41, 55]
            for k, (pre, d) in enumerate(wl):
                if pre: put(f, dg[k] - 1, pre)
                put(f, dg[k], d)
            if st < 13 and not NOB1: put(f, 57, advWf(st + 2, st + 3)[0]); put(f, 58, advWf(st + 2, st + 3)[1])
        if st < 7:
            for k, l in enumerate(sxload(side ^ 1)): put(f, [1, 7][k], l)
            put(f, 9, advS)
        if cpl and CPF: put(f, opt.get('cpgap', 3), cpf); put(f, opt.get('cpgap', 3) + 3, cpa)
        if hook: hook(0, f, BG)
        put(f, BG, [Need(["X"], "lgkmcnt(0)") if not last else "s_waitcnt lgkmcnt(0)", "s_barrier"])
        out += interleave(mfmas(0, side), f)
        if last: return out + tr_issue() + (["s_waitcnt lgkmcnt(0)"] if trace else []) + tr_commit()
        f = {}
        for k, r in enumerate(reads(2*st + 2, 0, st < 7)): put(f, 2*k, r)
        if dma:
            kv = st < 6
            dl = ((kdma((st & 1)*8192) if kv else []) + xdma((st & 1)*32768)) if not opt.get('xfirst') else (xdma((st & 1)*32768) + (kdma((st & 1)*8192) if kv else []))
            dg = opt.get('dgk', [1, 7, 13, 19, 25, 31, 37, 43, 49, 55]) if kv else opt.get('dgx', [1, 9, 17, 25, 33, 41, 47, 55])
            if NOB1:
                dl = wdma(1, ((2*st + 5) % 5)*8192) + dl
                dg = [1 + 2*((k * 28) // len(dl)) for k in range(len(dl))]
                if st < 13: put(f, 30, advWf(st + 2, st + 3)[0]); put(f, 32, advWf(st + 2, st + 3)[1])
            for k, (pre, d) in enumerate(dl):
                if pre: put(f, dg[k] - 1, pre)
                put(f, dg[k], d)
            if st < 13: put(f, 57, advXf(st + 2, st + 3)[0]); put(f, 59, advXf(st + 2, st + 3)[1])
            if kv: put(f, 58 if (opt.get('xfirst') or NOB1) else 9, advK)
        if hook: hook(1, f, BG)
        put(f, BG - 3, tr_issue())
        put(f, BG, [Need(["SX"], "lgkmcnt(0)") if st < 7 else "s_waitcnt lgkmcnt(0)"] + (["s_barrier"] if (not NOB1 or st == 8) else []) + tr_commit())
        out += interleave(mfmas(1, side), f)
        return out

    vN, vZ, vKA, vFA = t0, t1, t2, t3
    u = 28
    nload = f"buffer_load_dword v{vN}, v{vZ}, {srd(S_KV)}, 0 offen sc1"
    dbgsrd = [f"s_mov_b32 s{S_KV}, s{P_DBG}", f"s_mov_b32 s{S_KV+1}, s{P_DBG+1}", f"s_mov_b32 s{S_KV+2}, 256", f"v_mov_b32 v{vZ}, 0"]
    PSC = KR + 4096
    kvK = f"""v_bfe_u32 v{vKA}, {vL}, 3, 1
    v_lshlrev_b32 v{vKA}, 4, v{vKA}
    v_and_b32 v{vFA}, 7, {vL}
    v_add_u32 v{vKA}, v{vKA}, v{vFA}
    v_bfe_u32 v{vFA}, {vL}, 4, 1
    v_lshl_add_u32 v{vKA}, v{vFA}, 5, v{vKA}
    v_lshlrev_b32 v{vKA}, 4, v{vKA}
    v_lshrrev_b32 v{vFA}, 5, {vL}
    v_lshl_add_u32 v{vKA}, v{vFA}, 10, v{vKA}
    s_lshl_b32 s{sKVst}, s{sSa}, 7
    s_lshl_b32 s{sEfl}, s{sSc}, 3""".split("\n")
    kvV = f"""v_lshrrev_b32 v{vKA}, 5, {vL}
    v_lshlrev_b32 v{vKA}, 4, v{vKA}
    v_bfe_u32 v{vFA}, {vL}, 4, 1
    v_lshl_add_u32 v{vKA}, v{vFA}, 2, v{vKA}
    v_bfe_u32 v{vFA}, {vL}, 2, 1
    v_lshl_add_u32 v{vKA}, v{vFA}, 5, v{vKA}
    v_lshlrev_b32 v{vKA}, 4, v{vKA}
    v_bfe_u32 v{vFA}, {vL}, 3, 1
    v_lshl_add_u32 v{vKA}, v{vFA}, 10, v{vKA}
    v_and_b32 v{vFA}, 3, {vL}
    v_lshl_add_u32 v{vKA}, v{vFA}, 1, v{vKA}
    s_lshl_b32 s{sKVst}, s{sSc}, 7
    s_lshl_b32 s{sEfl}, s{sSa}, 3""".split("\n")
    kvaddr = [f"s_bitcmp1_b32 s{sCB}, 0", "s_cbranch_scc1 P1_KVAV"] + [l.strip() for l in kvK] + ["P1_KVAD:",
              f"s_add_u32 s{sKVst}, s{sKVst}, s{sEfl}", f"s_add_u32 s{sKVst}, s{sKVst}, {KR}", f"v_add_u32 v{vKA}, s{sKVst}, v{vKA}"]
    kvwr = [f"s_bitcmp1_b32 s{sCB}, 0", "s_cbranch_scc1 P1_KVWV", f"ds_write_b64 v{vKA}, v[{u}:{u+1}]", "P1_KVWD:"]
    ool = Asm()
    ool("P1_KVAV:"); ool.ext(kvV); ool("s_branch P1_KVAD")
    ool(f"""P1_KVWV:
    ds_write_b16 v{vKA}, v{u}
    ds_write_b16_d16_hi v{vKA}, v{u} offset:16
    ds_write_b16 v{vKA}, v{u+1} offset:32
    ds_write_b16_d16_hi v{vKA}, v{u+1} offset:48
    s_branch P1_KVWD""")
    vP = vSXo
    KT = Reg("a", 128, 4); PT = Reg("a", 132, 4)
    QPOLL = opt.get("qpoll", 0)
    CW = opt.get("cw", 1)
    CA, CB = Reg("a", 136, 4), Reg("a", 140, 4)
    vDA, vDB = vSWa, vKo
    pre = list(kvaddr)
    if CW:
        pre += f"""s_lshl_b32 s{sT2}, s2, 2
        s_add_u32 s{sT2}, s{sT2}, s{sW}
        s_mul_i32 s{sT3}, s{sT2}, 7
        v_lshrrev_b32 v24, 3, {vL}
        v_and_b32 v25, 7, {vL}
        v_lshlrev_b32 v25, 4, v25
        v_add_u32 v27, s{sT3}, v24
        v_and_b32 v31, 1, v27
        v_lshrrev_b32 v27, 1, v27
        v_lshl_add_u32 v29, v27, 8, v25
        v_mul_u32_u24 v30, {CW_SZ}, v31
        v_add_u32 v29, v29, v30
        v_add_u32 v29, {CW_OFF}, v29
        v_lshl_add_u32 v27, v27, 11, v25
        v_lshl_add_u32 v27, v31, 10, v27
        v_cmp_gt_u32 vcc, 56, {vL}
        v_mov_b32 v31, {HUGE}
        v_add_u32 v27, 384, v27
        v_cndmask_b32 v27, v31, v27, vcc
        v_cndmask_b32 v29, v31, v29, vcc
        v_mul_u32_u24 v30, {CW_SZ}, v24
        v_add_u32 v30, v30, v25
        s_lshl_b32 s{sT3}, s{sT2}, 8
        s_add_u32 s{sT3}, s{sT3}, {CW_OFF + 3584*256}
        v_add_u32 v30, s{sT3}, v30
        v_lshl_add_u32 v28, v24, 10, v25
        s_lshl_b32 s{sT3}, s{sT2}, 11
        s_add_u32 s{sT3}, s{sT3}, 384
        v_cmp_gt_u32 vcc, 16, {vL}
        v_add_u32 v28, s{sT3}, v28
        s_nop 0
        v_cndmask_b32 v28, v31, v28, vcc
        v_cndmask_b32 v30, v31, v30, vcc""".split("\n")
    pre = [l.strip() if type(l) is str else l for l in pre]
    k_ = A.lines.index("; @@PRE@@"); A.lines[k_:k_ + 1] = pre
    def hookS6(ph, f, BG):
        if ph == 0 and CW:
            put(f, 2, f"s_mov_b32 s{S_KV}, s{P_WD}"); put(f, 3, [f"s_mov_b32 s{S_KV+1}, s{P_WD+1}", f"s_mov_b32 s{S_KV+2}, {3584*2048}"])
            put(f, 5, VM(f"buffer_load_dwordx4 {CA}, v27, {srd(S_KV)}, 0 offen", "CL"))
            put(f, 6, f"s_mov_b32 s{S_KV}, s{P_WO}"); put(f, 8, f"s_mov_b32 s{S_KV+1}, s{P_WO+1}"); put(f, 10, f"s_mov_b32 s{S_KV+2}, {1024*2048}")
            put(f, 11, VM(f"buffer_load_dwordx4 {CB}, v28, {srd(S_KV)}, 0 offen", "CL"))
    def hookS7(ph, f, BG):
        if ph == 1 and CW:
            put(f, 5, [Need(["CL"]), VM(f"buffer_store_dwordx4 {CA}, v29, {srd(S_WS)}, 0 offen {SC1}", "CS")])
            put(f, 13, VM(f"buffer_store_dwordx4 {CB}, v30, {srd(S_WS)}, 0 offen {SC1}", "CS"))
    def hookS8(ph, f, BG):
        if ph == 0 and QPOLL:
            for r in range(4): put(f, 2 + r, f"v_mov_b32 v{u+r}, -1")
            put(f, 5, [f"s_lshl_b32 s{sKVst}, s{sRB}, 5", f"s_add_u32 s{sKVst}, s{sKVst}, s{sCB}", f"s_lshl_b32 s{sKVst}, s{sKVst}, 2"])
            put(f, 7, [f"s_add_u32 s{sKVst}, s{sKVst}, s{sW}", f"s_lshl_b32 s{sKVst}, s{sKVst}, 12", f"s_add_u32 s{sKVst}, s{sKVst}, {QF4_OFF}"])
            for r in range(4): put(f, [13, 15, 21, 23][r], VM(f"buffer_store_dwordx4 v[{u}:{u+3}], {vL16}, {srd(S_WS)}, s{sKVst} offen offset:{r*1024} {SC1}", "QP"))
        if ph == 0:
            for k, l in enumerate(dbgsrd): put(f, 25 + 2*k, l)
            put(f, 21, [f"s_lshl_b32 s{sT2}, s{sW}, 10", f"s_add_u32 s{sT2}, s{sT2}, {PSC}"]); put(f, 23, f"v_add_u32 v{vP}, s{sT2}, {vL16}")
        if ph == 1:
            put(f, 3, f"ds_write_b128 v{vP}, {sacc}")
            put(f, 5, VM(nload, "N"))
            put(f, 11, f"v_xor_b32 v{vP}, 0x800, v{vP}")
            for r in range(4): put(f, 13 + 2*r, f"v_accvgpr_read_b32 v{u+r}, {sacc[r]}")
    def hookS9(ph, f, BG):
        if ph == 0:
            put(f, 1, f"ds_read_b128 {PT}, v{vP}")
            put(f, 11, "s_waitcnt lgkmcnt(5)")
            for r in range(4): put(f, 11 + 2*r, f"v_accvgpr_read_b32 v{vFA}, {PT[r]}"); put(f, 12 + 2*r, f"v_add_f32 v{u+r}, v{u+r}, v{vFA}")
            put(f, 21, f"v_cvt_pk_bf16_f32 v{u}, v{u}, v{u+1}"); put(f, 23, f"v_cvt_pk_bf16_f32 v{u+1}, v{u+2}, v{u+3}")
            put(f, 27, kvwr)
            put(f, 29, f"v_lshrrev_b32 v{vP}, 3, {vL}"); put(f, 31, f"v_and_b32 v{vFA}, 7, {vL}")
            put(f, 35, f"v_lshlrev_b32 v{vFA}, 4, v{vFA}"); put(f, 37, f"v_lshl_add_u32 v{vP}, v{vP}, 8, v{vFA}")
            put(f, 41, [f"s_bfe_u32 s{sT2}, s{sCB}, 0x10001", f"s_lshl_b32 s{sT2}, s{sT2}, 7"])
            put(f, 43, f"v_add_u32 v{vP}, s{sT2}, v{vP}")
            put(f, 44, f"v_add_u32 v{vKA}, {KR}, v{vP}")
        if ph == 1:
            put(f, 3, f"ds_read_b128 {KT}, v{vKA}")
            put(f, 5, [f"s_lshl_b32 s{sKVst}, s{sRB}, 3", f"s_lshr_b32 s{sT2}, s{sCB}, 2", f"s_add_u32 s{sKVst}, s{sKVst}, s{sT2}"])
            put(f, 7, [f"s_lshl_b32 s{sKVst}, s{sKVst}, 1", f"s_and_b32 s{sT2}, s{sCB}, 1", f"s_add_u32 s{sKVst}, s{sKVst}, s{sT2}"])
            put(f, 11, [f"s_lshl_b32 s{sKVst}, s{sKVst}, 11", f"s_add_u32 s{sKVst}, s{sKVst}, {KV_OFF}", f"s_lshl_b32 s{sEfl}, s{sRB}, 5"])
            put(f, 13, [f"s_add_u32 s{sEfl}, s{sEfl}, s{sCB}", f"s_lshl_b32 s{sEfl}, s{sEfl}, 2", f"s_add_u32 s{sEfl}, s{sEfl}, {FL_E}"])
            put(f, 15, [f"s_cmp_eq_u32 s{sW}, 0", f"s_cselect_b32 s{sKVst}, s{sKVst}, {HUGE}", f"s_cselect_b32 s{sEfl}, s{sEfl}, {HUGE}"])
            put(f, 19, f"v_mul_u32_u24 v{vFA}, {FL_ES}, {vL}")
            put(f, 21, ["s_waitcnt lgkmcnt(9)", VM(f"buffer_store_dwordx4 {KT}, v{vP}, {srd(S_WS)}, s{sKVst} offen {SC1}", "KS")])
    def hookS10(ph, f, BG):
        if ph == 1:
            put(f, 27, [Need(["KS", "N"]), f"v_readfirstlane_b32 s{sNonce}, v{vN}", f"s_cmp_eq_u32 s{sNonce}, 0", "s_cbranch_scc1 P1_SLOWN", "P1_NOK:",
                       "s_mov_b64 exec, 0xff", VM(f"buffer_store_dword v{vN}, v{vFA}, {srd(S_WS)}, s{sEfl} offen sc1", "EF"), "s_mov_b64 exec, -1", "s_nop 2"])
    sKVo, sM0 = sL + 3, sL + 4
    S_KVD = S_C
    vE = Reg("v", 28, 4)
    epoll = f"buffer_load_dwordx4 {vE}, {vL16}, {srd(S_WS)}, s{sEfl} offen sc1"
    def kvdma0(slotoff):
        L = []
        for e in range(8):
            pre = []
            if e == 0: pre = [f"s_add_u32 m0, s{sM0}, {slotoff}"]
            if e == 4: pre = [f"s_add_u32 m0, m0, 4096", f"s_add_u32 s{sKVo}, s{sKVo}, 4096"]
            L.append((pre, VM(f"buffer_load_dwordx4 {vL16}, {srd(S_KVD)}, s{sKVo} offen offset:{(e&3)*1024} {SC1} lds", "KV")))
        return L
    def hookS14(ph, f, BG):
        if ph == 0:
            put(f, 5, [f"s_bfe_u32 s{sEfl}, s2, 0x30003", f"s_mul_i32 s{sEfl}, s{sEfl}, {FL_ES}", f"s_add_u32 s{sEfl}, s{sEfl}, {FL_E}"])
            put(f, 45, VM(epoll, "N"))
            put(f, 11, [f"s_mov_b32 s{S_KVD}, s{P_WS}", f"s_mov_b32 s{S_KVD+1}, s{P_WS+1}", f"s_mov_b32 s{S_KVD+2}, {KV_OFF + 262144}"])
            put(f, 13, [f"s_lshl_b32 s{sM0}, s{sW}, 13", f"s_add_u32 s{sKVo}, s{sM0}, {KV_OFF}"])
        if ph == 1: put(f, 51, [Need(["N"])] + echeck() + ["s_cbranch_scc0 P1_SLOWE", "P1_EOK:"])
    def echeck():
        return [f"v_xor_b32 {vE[0]}, {vE[0]}, v{vN}", f"v_xor_b32 {vE[1]}, {vE[1]}, v{vN}", f"v_xor_b32 {vE[2]}, {vE[2]}, v{vN}", f"v_xor_b32 {vE[3]}, {vE[3]}, v{vN}",
                f"v_or3_b32 {vE[0]}, {vE[0]}, {vE[1]}, {vE[2]}", f"v_or_b32 {vE[0]}, {vE[0]}, {vE[3]}", f"v_cmp_eq_u32 vcc, 0, {vE[0]}", "s_nop 0", "s_cmp_eq_u64 vcc, -1"]
    def hookS15(ph, f, BG):
        dg = [5, 11, 17, 23, 29, 35, 41, 46]
        if ph == 0:
            for k, (pre, d) in enumerate(kvdma0(32768*ph)):
                if pre: put(f, dg[k] - 1, pre)
                put(f, dg[k], d)
            put(f, 47, f"s_add_u32 s{sKVo}, s{sKVo}, {32768 - 4096}")
    z = [7, 8]; vOne = 23
    gv = [f"v_mov_b32 v{vOne}, 0x3f803f80", f"v_mov_b32 v{z[0]}, 0", f"v_mov_b32 v{z[1]}, 0", None]
    for k in range(8):
        gv += [f"v_accvgpr_read_b32 v26, {GWa[k]}", f"v_accvgpr_read_b32 v28, {GXa[0][k]}", f"v_accvgpr_read_b32 v30, {GXa[1][k]}",
               "v_and_b32 v27, 0xffff0000, v26", "v_and_b32 v29, 0xffff0000, v28", "v_and_b32 v31, 0xffff0000, v30",
               "v_lshlrev_b32 v26, 16, v26", "v_lshlrev_b32 v28, 16, v28", "v_lshlrev_b32 v30, 16, v30",
               "v_mul_f32 v29, v29, v27", "v_mul_f32 v31, v31, v27", "v_mul_f32 v28, v28, v26", "v_mul_f32 v30, v30, v26",
               "v_cvt_pk_bf16_f32 v28, v28, v29", "v_cvt_pk_bf16_f32 v30, v30, v31",
               f"v_dot2_f32_bf16 v{z[0]}, v28, v{vOne}, v{z[0]}", f"v_dot2_f32_bf16 v{z[1]}, v30, v{vOne}, v{z[1]}"]
    gv += [None, None]
    P2_ = lambda fmt: [fmt(r) for r in range(2)]
    for sh in (8, 4, 2, 1): gv += P2_(lambda r: f"v_add_f32_dpp v{z[r]}, v{z[r]}, v{z[r]} row_ror:{sh} row_mask:0xf bank_mask:0xf")
    for sw in ("16", "32"):
        gv += P2_(lambda r: f"v_mov_b32 v{28+r}, v{z[r]}") + P2_(lambda r: f"v_permlane{sw}_swap_b32 v{z[r]}, v{28+r}") + P2_(lambda r: f"v_add_f32 v{z[r]}, v{z[r]}, v{28+r}")
    gv += P2_(lambda r: f"v_cvt_pk_bf16_f32 v{z[r]}, v{z[r]}, v{z[r]}") + P2_(lambda r: f"v_and_b32 v{z[r]}, 0xffff0000, v{z[r]}")
    gv += P2_(lambda r: f"v_mul_f32 v{z[r]}, {f2u(-LOG2E):#x}, v{z[r]}") + [f"v_exp_f32 v{z[0]}, v{z[0]}", None, f"v_exp_f32 v{z[1]}, v{z[1]}", None]
    gv += P2_(lambda r: f"v_add_f32 v{z[r]}, 1.0, v{z[r]}") + [f"v_rcp_f32 v{z[0]}, v{z[0]}", None, f"v_rcp_f32 v{z[1]}, v{z[1]}", None]
    gv += P2_(lambda r: f"v_cvt_pk_bf16_f32 v{z[r]}, v{z[r]}, v{z[r]}") + P2_(lambda r: f"v_and_b32 v{26+r}, 0xffff0000, v{z[r]}")
    GR = opt.get("gr", 1)
    gq = [gv[k:k+GR] for k in range(0, len(gv), GR)]
    def hookS10g(ph, f, BG):
        hookS10(ph, f, BG)
        if ph == 1:
            put(f, 28, f"s_mov_b32 s{S_KV}, s{P_GW}"); put(f, 29, [f"s_mov_b32 s{S_KV+1}, s{P_GW+1}", f"s_mov_b32 s{S_KV+2}, 2048"])
            put(f, 31, VM(f"buffer_load_dwordx4 {GWa.sub(0,4)}, {vL16}, {srd(S_KV)}, 0 offen", "GL"))
            put(f, 35, VM(f"buffer_load_dwordx4 {GWa.sub(4,4)}, {vL16}, {srd(S_KV)}, 0 offen offset:1024", "GL"))
            put(f, 36, f"s_mov_b32 s{S_KV}, s{P_X}"); put(f, 37, [f"s_mov_b32 s{S_KV+1}, s{P_X+1}", f"s_mov_b32 s{S_KV+2}, 0x400000", f"s_lshl_b32 s{sT2}, s{sRB}, 5"])
            put(f, 38, f"s_add_u32 s{sT2}, s{sT2}, s{sCB}"); put(f, 39, [f"s_lshl_b32 s{sT2}, s{sT2}, 2", f"s_add_u32 s{sT2}, s{sT2}, s{sW}", f"s_lshl_b32 s{sT1}, s{sT2}, 3"])
            put(f, 40, f"s_lshl_b32 s{sT2}, s{sT2}, 12"); put(f, 42, f"s_add_u32 s{sT1}, s{sT1}, {G_OFF}")
            for k in range(4):
                put(f, [43, 45, 51, 53][k], VM(f"buffer_load_dwordx4 {GXa[k>>1].sub(4*(k&1),4)}, {vL16}, {srd(S_KV)}, s{sT2} offen offset:{k*1024}", "X"))
    def hookG(ph, f, BG, first=False):
        if first and ph == 0: return
        for g_ in range(1, BG - 1):
            cur = flat(f.get(g_, []))
            busy = any(is_vmem(x) or x.startswith(("v_",) if GR == 1 else ("v_", "ds_")) for x in cur) or len(cur) > 1
            if gq and not busy: put(f, g_, [x for x in gq.pop(0) if x])
    def hookS12(ph, f, BG): hookG(ph, f, BG, True)
    def hookS14g(ph, f, BG):
        if ph == 0:
            hookG(ph, f, 38)
            assert not gq, len(gq)
            put(f, 41, ["s_mov_b64 exec, 1", VM(f"buffer_store_dwordx2 v[26:27], v{vZ}, {srd(S_WS)}, s{sT1} offen sc1", "GS"), "s_mov_b64 exec, -1", "s_nop 2"])
        hookS14(ph, f, BG)
    hooks = {6: hookS6, 7: hookS7, 8: hookS8, 9: hookS9, 10: hookS10g, 11: hookS12, 12: hookG, 13: hookG, 14: hookS14g, 15: hookS15}
    cpsteps = opt.get("cps", [0, 3, 7, 11, 14])
    h1 = list(pro_hist)
    for st in range(16):
        S_ = resolve_waits(step(st, hooks.get(st), st in cpsteps), h1)
        h1 += S_
        A.ext(ts.at(f"s{st}"))
        if st == 15: A(f"s_cmp_eq_u32 s{sIsB}, 1\ns_cbranch_scc1 P1_EPIB")
        if st == 14: S14 = S_
        if st == 8: A("P1_MID:")
        if TCH and opt.get("t1s", 6) and st == opt.get("t1s", 6): A(f"; @@TOUCH x 1 s{sW}")
        A.ext(S_)
        if st == 10: A("s_branch P1_CONT"); A.ext(ool.lines); A("P1_CONT:\n; @@PAD@@")
    S15 = S_
    probs += check_hazards(A.lines, "p1")
    slow1 = Asm()
    slow1(f"""P1_SLOWN:
    s_mov_b32 s{sT2}, {SPIN_MAX}
    P1_SLOWN_L:
    {nload}
    s_waitcnt vmcnt(0)
    v_readfirstlane_b32 s{sNonce}, v{vN}
    s_cmp_lg_u32 s{sNonce}, 0
    s_cbranch_scc1 P1_NOK
    s_sleep 4
    s_sub_u32 s{sT2}, s{sT2}, 1
    s_cmp_lg_u32 s{sT2}, 0
    s_cbranch_scc1 P1_SLOWN_L
    s_endpgm
    P1_SLOWE:
    s_mov_b32 s{sT0}, {SPIN_MAX}
    P1_SLOWE_L:
    {epoll}
    s_waitcnt vmcnt(0)""")
    slow1.ext(echeck())
    slow1(f"""s_cbranch_scc1 P1_EOK
    s_sleep 4
    s_sub_u32 s{sT0}, s{sT0}, 1
    s_cmp_lg_u32 s{sT0}, 0
    s_cbranch_scc1 P1_SLOWE_L
    s_endpgm""")

    va = Alloc("v", 3, 256)
    vCur = va.get(1); vNxt = va.get(1); vZero = va.get(1); vNon = va.get(1); vQP = va.get(1)
    T = va.get(12, 4)
    S = [va.get(16, 4) for _ in range(2)]
    P = [va.get(8, 4) for _ in range(2)]
    O = [va.get(16, 4) for _ in range(2)]
    Lc = [va.get(4, 4) for _ in range(2)]
    SCL = va.get(8, 4)
    acc3 = [[va.get(4, 4) for j in range(8)] for i in range(4)]
    vW3o = va.get(1); vW3a = [va.get(1) for _ in range(4)]; vPF = va.get(1); vG = va.get(2, 2); vFl = va.get(4, 4)
    NEG = [Reg("v", acc3[0][0].base + 16*k, 16) for k in range(2)]
    aa = Alloc("a", 0, 180)
    RX = [[aa.get(4, 4) for j in range(8)] for s in range(4)]
    Q = [[aa.get(4, 4) for t in range(2)] for ab in range(2)]
    K = [[aa.get(4, 4) for t in range(2)] for b in range(2)]
    V = [[aa.get(4, 4) for t in range(2)] for b in range(2)]
    ONES = aa.get(4, 4)
    RW = [[Reg("a", 220 + 16*s + 4*i, 4) for i in range(4)] for s in range(2)]
    QXB = 98304
    W3B = 98304

    E = Asm()
    E.ext(ts.at("p1end"))
    sO, sO1, sO2 = 0, 1, 3
    sC = sL + 1
    sQf = 14
    tA = [Reg("v", 20, 4), Reg("v", 28, 4)]
    PKE = opt.get("pke", 0)
    def hmath(pairs, dst, pk=True):
        L = []
        for Gx, U in pairs:
            for r in range(4): L.append(f"v_max_f32 {Gx[r]}, 0, {Gx[r]}")
        for Gx, U in pairs:
            if pk:
                for r in (0, 2): L.append(f"v_pk_mul_f32 {Gx.sub(r,2)}, {Gx.sub(r,2)}, {U.sub(r,2)}")
            else:
                for r in range(4): L.append(f"v_mul_f32 {Gx[r]}, {Gx[r]}, {U[r]}")
        for k, (Gx, U) in enumerate(pairs):
            L.append(f"v_cvt_pk_bf16_f32 {dst[2*k]}, {Gx[0]}, {Gx[1]}"); L.append(f"v_cvt_pk_bf16_f32 {dst[2*k+1]}, {Gx[2]}, {Gx[3]}")
        return L
    gl = Asm()
    gl(f"""s_mov_b32 s{S_A}, s{P_X}
    s_mov_b32 s{S_A+1}, s{P_X+1}
    s_mov_b32 s{S_A+2}, 0x400000
    s_mov_b32 s{S_B}, s{P_GW}
    s_mov_b32 s{S_B+1}, s{P_GW+1}
    s_mov_b32 s{S_B+2}, 2048
    s_lshl_b32 s{sT2}, s{sRB}, 5
    s_add_u32 s{sT2}, s{sT2}, s{sCB}
    s_lshl_b32 s{sT2}, s{sT2}, 2
    s_add_u32 s{sT2}, s{sT2}, s{sW}
    s_lshl_b32 s{sT2}, s{sT2}, 12""")
    for h in range(2): gl(f"buffer_load_dwordx4 {GWa.sub(4*h,4)}, {vL16}, {srd(S_B)}, 0 offen offset:{h*1024}")
    for r in range(2):
        for h in range(2):
            gl(f"buffer_load_dwordx4 {GXa[r].sub(4*h,4)}, {vL16}, {srd(S_A)}, s{sT2} offen offset:{r*2048 + h*1024}")
    def merge(mf, items, rate, fixed=None):
        out = []; k = 0
        for g, m_ in enumerate(mf):
            out.append(m_)
            n = 0; seenv = False
            if fixed and g in fixed: out.extend(fixed[g]); n += len(fixed[g])
            while k < len(items) and items[k][0] <= g and n < rate:
                x_ = items[k][1]
                if is_vmem(x_) and seenv: break
                seenv |= x_.startswith("v_")
                out.append(x_); k += 1; n += 1
        if k < len(items): out.append("s_nop 7")
        return out + [x[1] for x in items[k:]]
    mm1 = lambda i, j: f"v_mfma_f32_16x16x32_bf16 {acc[i][j]}, {RA[1][i]}, {RB[1][j]}, {acc[i][j]}"
    kv1 = []
    for pre, d in kvdma0(32768): kv1 += pre + (["s_nop 0"] if pre else []) + [d]
    kv1.append(f"s_add_u32 s{sKVo}, s{sKVo}, {32768 - 4096}")
    head = Asm()
    head(f"""s_lshr_b32 s{sT0}, s{sW}, 1
    s_and_b32 s{sT1}, s{sW}, 1
    s_lshl_b32 s{sO}, s{sRB}, 4
    s_lshl_b32 s{sT2}, s{sT0}, 3
    s_add_u32 s{sO}, s{sO}, s{sT2}
    s_lshl_b32 s{sO}, s{sO}, 11
    s_add_u32 s{sO}, s{sO}, {AF2_OFF}
    s_lshr_b32 s{sT2}, s{sCB}, 2
    s_mul_i32 s{sO1}, s{sT2}, 14
    s_and_b32 s{sT3}, s{sCB}, 3
    s_lshl_b32 s{sT3}, s{sT3}, 2
    s_add_u32 s{sO1}, s{sO1}, s{sT3}
    s_add_u32 s{sO1}, s{sO1}, s{sT1}""")
    LAG = 5
    it = [(0, l) for l in head.lines]
    it += [(0, l) for l in (f"s_add_u32 s{sO1}, s{sO1}, s{sT1}", f"s_mul_i32 s{sO1}, s{sO1}, {AFS2}", f"s_add_u32 s{sO}, s{sO}, s{sO1}", f"s_add_u32 s{sO2}, s{sO}, {AFS2}")]
    kq = list(kv1)
    for j in range(8):
        g_ = 8*j + 7 + LAG
        Tt = tA[j % 2]
        L_ = hmath([(acc[0][j], acc[4][j]), (acc[1][j], acc[5][j])], acc[4][j], PKE or j >= opt.get('pkj', 8))
        L_ += [f"v_accvgpr_read_b32 {Tt[r]}, {acc[7][j][r]}" for r in range(4)]
        L_ += hmath([(acc[2][j], acc[6][j]), (acc[3][j], Tt)], acc[5][j], PKE or j >= opt.get('pkj', 8))
        it += [(g_, l) for l in L_]
        while kq:
            x_ = kq.pop(0); it.append((g_, x_))
            if is_vmem(x_): break
    it += [(64, l) for l in kq]
    EA = merge([mm1(i, j) for j in range(8) for i in range(8)], it, opt.get("rateA", 5))
    E.ext(EA)
    E("s_branch P1_EPID\nP1_EPIB:\n; @@PAD@@")
    hb = Asm()
    hb(f"""s_mul_i32 s{sO1}, s{sO1}, {AFS2}
    s_add_u32 s{sO}, s{sO}, s{sO1}
    s_mov_b32 s{sO2}, {HUGE}
    s_lshl_b32 s{sQf}, s{sRB}, 3
    s_add_u32 s{sQf}, s{sQf}, s{sT2}
    s_lshl_b32 s{sQf}, s{sQf}, 2
    s_lshl_b32 s{sT1}, s{sT1}, 1
    s_add_u32 s{sT2}, s{sQf}, s{sT1}
    s_lshl_b32 s{sT2}, s{sT2}, 1
    s_add_u32 s{sT2}, s{sT2}, s{sT0}
    s_lshl_b32 s{sT2}, s{sT2}, 14
    s_add_u32 s{sT0}, s{sT2}, {QF5_OFF}
    s_add_u32 s{sT1}, s{sT0}, 32768
    v_cmp_lt_u32 vcc, 23, {vL}
    v_add_u32 v26, 128, {vL16}
    s_nop 0
    v_cndmask_b32 v26, {vL16}, v26, vcc
    s_add_u32 s{sQf}, s{sQf}, s{sW}
    s_lshl_b32 s{sQf}, s{sQf}, 8
    s_add_u32 s{sQf}, s{sQf}, {FL_Q}
    s_mov_b32 s{sC}, {f2u(QSCALE):#x}
    s_mov_b32 s{sC+1}, {f2u(QSCALE):#x}""")
    it = [(0, l) for l in head.lines + hb.lines]
    for j in range(8):
        g_ = 32 + 4*j + 3 + LAG
        for hh in range(2):
            F0, F1 = acc[4 + 2*hh][j], acc[5 + 2*hh][j]
            L_ = []
            if F1.f == "a":
                Tt = tA[j % 2]
                L_ += [f"v_accvgpr_read_b32 {Tt[r]}, {F1[r]}" for r in range(4)]
                F1 = Tt
            for F in (F0, F1):
                if PKE:
                    for r in (0, 2): L_.append(f"v_pk_mul_f32 {F.sub(r,2)}, {F.sub(r,2)}, s[{sC}:{sC+1}]")
                else:
                    for r in range(4): L_.append(f"v_mul_f32 {F[r]}, s{sC}, {F[r]}")
            L_ += [f"v_cvt_pk_bf16_f32 {F0[0]}, {F0[0]}, {F0[1]}", f"v_cvt_pk_bf16_f32 {F0[1]}, {F0[2]}, {F0[3]}",
                   f"v_cvt_pk_bf16_f32 {F0[2]}, {F1[0]}, {F1[1]}", f"v_cvt_pk_bf16_f32 {F0[3]}, {F1[2]}, {F1[3]}",
                   f"buffer_store_dwordx4 {F0}, v26, {srd(S_WS)}, s{sT0 + hh} offen offset:{(j&1)*2048} {SC1}"]
            if j & 1: L_.append(f"s_add_u32 s{sT0 + hh}, s{sT0 + hh}, 4096")
            it += [(g_, l) for l in L_]
    mm0 = lambda i, j: f"v_mfma_f32_16x16x32_bf16 {acc[i][j]}, {RA[0][i]}, {RB[0][j]}, {acc[i][j]}"
    fx = {}
    rd_ = reads(31, 1, False)
    for k, r in enumerate(rd_[:8] + rd_[16:24] + rd_[8:16]): put(fx, k, r)
    k = 0
    for pre, d in kvdma0(0):
        if pre: put(fx, 23 + k, pre)
        put(fx, 24 + k, d); k += 1
    put(fx, 31, [f"s_add_u32 s{sKVo}, s{sKVo}, {32768 - 4096}", "s_waitcnt lgkmcnt(0)", "s_barrier"])
    EB = merge([mm0(i, j) for i in range(4, 8) for j in range(8)] + [mm1(i, j) for j in range(8) for i in range(4, 8)] +
               [mm0(i, j) for i in range(4) for j in range(8)] + [mm1(i, j) for j in range(8) for i in range(4)], it, opt.get("rateB", 3), fx)
    E.ext(EB)
    E.ext(kv1)
    for j in range(8):
        E.ext(hmath([(acc[0][j], acc[2][j]), (acc[1][j], acc[3][j])], acc[4][j]))
    E(f"""s_waitcnt vmcnt(8)
    s_mov_b64 exec, 1
    buffer_store_dword v{vN}, v{vZ}, {srd(S_WS)}, s{sQf} offen sc1
    s_mov_b64 exec, -1
    P1_EPID:
    ; @@PAD@@""")
    probs += check_hazards(S15[-20:] + EA, "epiA") + check_hazards(S14[-20:] + E.lines[E.lines.index("P1_EPIB:"):], "epiB")
    E.ext(ts.at("kvdone"))
    vAF = T[9]
    def hstore(reg, so, j):
        return [VM(f"buffer_store_dwordx4 {reg}, {vAF}, {srd(S_WS)}, s{so} offen offset:{(j&1)*2048} {SC1}", "H")] + ([f"s_add_u32 s{so}, s{so}, 4096"] if j & 1 else [])
    hst0 = [hstore(acc[4][j], sO, j) for j in range(8)]
    hst1a = [hstore(acc[5][j], sO2, j) for j in range(8)]
    A.ext(E.lines)

    B = Asm()
    sCur, sNext, sFree, sFl = sL, sL + 1, sL + 2, sL + 5
    B(f"""v_mov_b32 {vNon}, s{sNonce}
    v_mov_b32 {vZero}, 0
    v_bfe_u32 {T[0]}, {vL}, 4, 1
    v_and_b32 {T[1]}, 15, {vL}
    v_lshrrev_b32 {T[2]}, 5, {vL}
    v_lshl_add_u32 {T[1]}, {T[2]}, 4, {T[1]}
    v_lshlrev_b32 {T[1]}, 4, {T[1]}
    v_lshl_add_u32 {vQP}, {T[0]}, 11, {T[1]}""")
    S_PF, sPF = S_E, 8
    pfop = [VM(f"buffer_load_dword a252, {vPF}, {srd(S_PF)}, s{sPF} offen", "PF"), f"s_add_u32 s{sPF}, s{sPF}, 0x100000"] if PF else []
    for ab in range(2):
        for r in range(4): B(f"v_mov_b32 {Lc[ab][r]}, 0")
    vIdx = T[10]
    B(f"""v_bfe_u32 {T[4]}, {vL}, 2, 1
    v_cmp_eq_u32 vcc, 0, {T[4]}
    v_mov_b32 {T[5]}, 0x3f803f80
    v_mov_b32 {vCur}, {vL16}
    v_cndmask_b32 {T[4]}, 0, {T[5]}, vcc
    v_cndmask_b32 {T[5]}, {T[5]}, 0, vcc
    v_add_u32 {vNxt}, 32768, {vL16}
    v_and_b32 {vIdx}, 1, {vL}
    v_mul_u32_u24 {vIdx}, 0xaaaa, {vIdx}
    v_add_u32 {vIdx}, 0x4444, {vIdx}
    v_cmp_lt_u32 vcc, 23, {vL}
    v_add_u32 {vAF}, 128, {vL16}
    s_nop 0
    v_cndmask_b32 {vAF}, {vL16}, {vAF}, vcc""".replace(f"v_cndmask_b32 {T[5]}, {T[5]}, 0, vcc", f"v_xor_b32 {T[5]}, {T[5]}, {T[4]}"))
    for r in range(4): B(f"v_accvgpr_write_b32 {ONES[r]}, {T[4 + (r >> 1)]}")
    def lsum(o): return f"v_smfmac_f32_16x16x64_bf16 {Lc[o]}, {ONES}, {P[o]}, {vIdx}"
    B("; @@SETUP3@@")
    B(f"""s_mov_b32 s{sCur}, 0
    s_mov_b32 s{sNext}, 32768
    s_mov_b32 s{sFree}, 65536
    s_add_u32 s{sL+14}, s{sM0}, 65536
    s_lshl_b32 s{sFl}, s{sRB}, 2
    s_add_u32 s{sFl}, s{sFl}, s{sW}
    s_lshl_b32 s{sFl}, s{sFl}, 6
    s_add_u32 s{sFl}, s{sFl}, s{sCB}
    s_lshl_b32 s{sFl}, s{sFl}, 2
    s_add_u32 s{sFl}, s{sFl}, {FL_H}
    s_lshl_b32 s{sT1}, s{sRB}, 3
    s_lshr_b32 s{sT2}, s{sCB}, 2
    s_add_u32 s{sT1}, s{sT1}, s{sT2}
    s_lshl_b32 s{sT1}, s{sT1}, 2
    s_and_b32 s{sT2}, s{sW}, 2
    s_add_u32 s{sT1}, s{sT1}, s{sT2}
    s_bfe_u32 s{sT2}, s{sCB}, 0x10001
    s_add_u32 s{sT1}, s{sT1}, s{sT2}
    s_lshl_b32 s{sT1}, s{sT1}, 8
    s_add_u32 s{sT1}, s{sT1}, {FL_Q}
    s_lshl_b32 s{sQf}, s{sRB}, 5
    s_add_u32 s{sQf}, s{sQf}, s{sCB}
    s_lshl_b32 s{sQf}, s{sQf}, 2
    s_add_u32 s{sQf}, s{sQf}, s{sW}
    s_lshl_b32 s{sQf}, s{sQf}, 13
    s_add_u32 s{sQf}, s{sQf}, {QF5_OFF}
    s_add_u32 s{sT3}, s{sQf}, 4096""")
    def check(regs):
        if len(regs) == 4:
            return [f"v_xor_b32 {r}, {r}, {vNon}" for r in regs] + [f"v_or3_b32 {regs[0]}, {regs[0]}, {regs[1]}, {regs[2]}", f"v_or_b32 {regs[0]}, {regs[0]}, {regs[3]}",
                    f"v_cmp_eq_u32 vcc, 0, {regs[0]}", "s_nop 0", "s_cmp_eq_u64 vcc, -1"]
        L = [f"v_cmp_eq_u32 vcc, s{sNonce}, {regs[0]}"]
        if len(regs) > 1: L += [f"v_cmp_eq_u32 s[{sT2}:{sT3}], s{sNonce}, {regs[1]}", "s_nop 0", f"s_and_b64 vcc, vcc, s[{sT2}:{sT3}]"]
        else: L += ["s_nop 0"]
        return L + ["s_cmp_eq_u64 vcc, -1"]
    def spin(label, load, regs, back=None):
        L = [f"s_mov_b32 s{sT0}, {SPIN_MAX}", f"{label}_L:", load, "s_waitcnt vmcnt(0)"] + check(regs)
        L += [f"s_cbranch_scc1 {back or label + '_OK'}", f"s_sleep {4 if back else 1}", f"s_sub_u32 s{sT0}, s{sT0}, 1",
              f"s_cmp_lg_u32 s{sT0}, 0", f"s_cbranch_scc1 {label}_L", "s_endpgm"]
        if not back: L.append(f"{label}_OK:")
        return L
    B("P2_PRE:")
    if TCH > 1: B(f"; @@TOUCH x 2 s{sW}")
    B.ext(ts.at("poll0"))
    B(f"""v_and_b32 {T[2]}, 40, {vL}
    v_cmp_eq_u32 vcc, 40, {T[2]}
    v_add_u32 {T[3]}, 128, {vQP}
    s_nop 0
    v_cndmask_b32 {T[2]}, {vQP}, {T[3]}, vcc""")
    qld = lambda dst: [f"buffer_load_dwordx4 {dst(ab, t)}, {T[2+t]}, {srd(S_WS)}, s{[sQf, sT3][ab]} offen offset:{t*512} {SC1}" for ab in range(2) for t in range(2)]
    if QPOLL:
        QV = S[1]
        B(f"s_mov_b32 s{sT0}, {SPIN_MAX}\nP2_QL:")
        B(f"buffer_load_dword {T[8]}, {vZero}, {srd(S_WS)}, s{sT1} offen sc1")
        B.ext(qld(lambda ab, t: QV.sub(8*ab + 4*t, 4)))
        B("s_waitcnt vmcnt(0)")
        B(f"v_max3_u32 {T[9]}, {QV[0]}, {QV[1]}, {QV[2]}")
        for k in range(3, 15, 2): B(f"v_max3_u32 {T[9]}, {QV[k]}, {QV[k+1]}, {T[9]}")
        B(f"""v_max_u32 {T[9]}, {QV[15]}, {T[9]}
        v_cmp_eq_u32 vcc, -1, {T[9]}
        v_readfirstlane_b32 s{sT2}, {T[8]}
        s_nop 0
        s_cmp_eq_u64 vcc, 0
        s_cbranch_scc1 P2_QOK
        s_cmp_eq_u32 s{sT2}, s{sNonce}
        s_cbranch_scc1 P2_QRE
        s_sub_u32 s{sT0}, s{sT0}, 1
        s_cmp_lg_u32 s{sT0}, 0
        s_cbranch_scc1 P2_QL
        s_endpgm
        P2_QRE:""")
        B.ext(qld(lambda ab, t: QV.sub(8*ab + 4*t, 4)))
        B("s_waitcnt vmcnt(0)\nP2_QOK:")
        B.ext(ts.at("poll1"))
        for ab in range(2):
            for t in range(2):
                for r in range(4): B(f"v_accvgpr_write_b32 {Q[ab][t][r]}, {QV[8*ab + 4*t + r]}")
    else:
        B.ext(spin("P2_POLL", f"buffer_load_dword {T[8]}, {vZero}, {srd(S_WS)}, s{sT1} offen sc1", [T[8]]))
        B.ext(ts.at("poll1"))
        B.ext(qld(lambda ab, t: Q[ab][t]))
    B("s_barrier")
    def kvdma(slot, tag):
        L = []
        for e in range(8):
            pre = []
            if e == 0: pre = [f"s_add_u32 m0, s{slot}, s{sM0}"]
            if e == 4: pre = [f"s_add_u32 s{sT0}, s{slot}, s{sM0}", f"s_add_u32 m0, s{sT0}, 4096", f"s_add_u32 s{sKVo}, s{sKVo}, 4096"]
            L.append((pre, VM(f"buffer_load_dwordx4 {vL16}, {srd(S_KVD)}, s{sKVo} offen offset:{(e&3)*1024} {SC1} lds", tag)))
        return L
    post_dma = f"s_add_u32 s{sKVo}, s{sKVo}, {32768 - 4096}"
    B(f"""ds_read_b128 {K[0][0]}, {vCur}
    ds_read_b128 {K[0][1]}, {vCur} offset:1024
    ds_read_b128 {V[0][0]}, {vCur} offset:2048
    ds_read_b128 {V[0][1]}, {vCur} offset:3072""")
    hist = list(S15) + list(EA) + list(B.lines)
    B(f"""s_waitcnt vmcnt(0) lgkmcnt(0)
    v_mfma_f32_32x32x16_bf16 {S[0]}, {K[0][0]}, {Q[0][0]}, 0
    v_mfma_f32_32x32x16_bf16 {S[0]}, {K[0][1]}, {Q[0][1]}, {S[0]}""")
    B.ext(ts.at("att"))
    B("s_nop 7\ns_nop 3")

    NS = 4
    S_AF, S_W3, S_OUT = S_A, S_B, S_D
    sMT, sNT = sL + 6, sL + 7
    sAo = sL + 8
    sSo3 = sL + 9
    sM3 = sL + 13
    sWo, sWoN = 30, 15
    sX3 = 16
    sSh, sAdv, sAdv28 = 10, 18, 19
    setup3 = Asm()
    MAP48 = opt.get("map48", 0)
    if MAP48:
        setup3(f"""s_and_b32 s{sT0}, s{sRB}, 4
        s_add_u32 s{sMT}, s{sRB}, s{sT0}
        s_bfe_u32 s{sT0}, s{sCB}, 0x10003
        s_lshl2_add_u32 s{sMT}, s{sT0}, s{sMT}
        s_lshr_b32 s{sT0}, s{sCB}, 4
        s_and_b32 s{sT1}, s{sCB}, 7
        s_lshl3_add_u32 s{sNT}, s{sT0}, s{sT1}""")
    else:
        setup3(f"""s_and_b32 s{sT0}, s{sCB}, 1
        s_lshl_b32 s{sMT}, s{sRB}, 1
        s_add_u32 s{sMT}, s{sMT}, s{sT0}
        s_lshr_b32 s{sT0}, s{sCB}, 3
        s_lshl_b32 s{sT0}, s{sT0}, 2
        s_bfe_u32 s{sT1}, s{sCB}, 0x20001
        s_add_u32 s{sNT}, s{sT0}, s{sT1}""")
    setup3(f"""s_lshl_b32 s{sT0}, s{sNT}, 7
    s_add_u32 s{S_W3}, s{P_WD}, s{sT0}
    s_addc_u32 s{S_W3+1}, s{P_WD+1}, 0
    s_sub_u32 s{S_W3+2}, {3584*2048}, s{sT0}
    s_add_u32 s{sWo}, s{P_WO}, s{sT0}
    s_addc_u32 s{sWo+1}, s{P_WO+1}, 0
    s_sub_u32 s{sWoN}, {1024*2048}, s{sT0}
    s_mov_b32 s{sSh}, 11
    s_mov_b32 s{S_AF+2}, 16384
    s_mov_b32 s{S_OUT}, s{P_OUT}
    s_mov_b32 s{S_OUT+1}, s{P_OUT+1}
    s_mov_b32 s{S_OUT+2}, 0x400000
    s_mul_i32 s{sAo}, s{sW}, {AFS2}
    s_lshl_b32 s{sT0}, s{sMT}, 14
    s_add_u32 s{sAo}, s{sAo}, s{sT0}
    s_add_u32 s{sAo}, s{sAo}, {AF2_OFF}
    s_add_u32 s{S_AF}, s{P_WS}, s{sAo}
    s_addc_u32 s{S_AF+1}, s{P_WS+1}, 0
    s_mov_b32 s{sAo}, 4096
    s_mov_b32 s{sAo+1}, 8192
    s_mov_b32 s{sX3}, 12288
    s_lshl_b32 s{sM3}, s{sW}, 14
    s_add_u32 s{sM3}, s{sM3}, {W3B}""")
    for e in range(1, 4): setup3(f"s_mov_b32 s{sSo3+e}, {e*16384 - e*1024}")
    if CW:
        setup3(f"""s_and_b32 s{sT0}, s{sNT}, 7
        s_cmp_lg_u32 s{sT0}, 3
        s_cbranch_scc1 P3_NOCW
        s_lshr_b32 s{sT0}, s{sNT}, 3
        s_mul_i32 s{sT0}, s{sT0}, {CW_SZ}
        s_add_u32 s{sT0}, s{sT0}, {CW_OFF}
        s_add_u32 s{S_W3}, s{P_WS}, s{sT0}
        s_addc_u32 s{S_W3+1}, s{P_WS+1}, 0
        s_mov_b32 s{S_W3+2}, {3584*256}
        s_add_u32 s{sWo}, s{S_W3}, {3584*256}
        s_addc_u32 s{sWo+1}, s{S_W3+1}, 0
        s_mov_b32 s{sWoN}, {1024*256}
        s_mov_b32 s{sSh}, 8
        s_mov_b32 s{sSo3+1}, 1024
        s_mov_b32 s{sSo3+2}, 2048
        s_mov_b32 s{sSo3+3}, 3072
        P3_NOCW:""")
    setup3(f"""s_lshl_b32 s{sAdv}, 128, s{sSh}
    s_mul_i32 s{sAdv28}, s{sAdv}, 28""")
    setup3v = Asm()
    setup3v(f"""v_lshrrev_b32 {T[0]}, 3, {vL}
    v_lshrrev_b32 {T[1]}, 4, {vL}
    v_lshlrev_b32 {T[2]}, 1, {T[1]}
    v_and_b32 {T[3]}, 7, {vL}
    v_xor_b32 {T[2]}, {T[2]}, {T[3]}
    v_lshlrev_b32 {T[2]}, 4, {T[2]}
    s_lshl_b32 s{sT0}, s{sW}, 5
    v_add_u32 {T[0]}, s{sT0}, {T[0]}
    v_lshl_add_u32 {vW3o}, {T[0]}, s{sSh}, {T[2]}
    s_lshl_b32 s{sT0}, s{sAdv}, 2
    v_add_u32 {T[11]}, s{sT0}, {vW3o}
    v_lshrrev_b32 {T[0]}, 2, {vL}
    v_bfe_u32 {T[1]}, {vL}, 3, 2
    v_and_b32 {T[2]}, 3, {vL}
    v_lshlrev_b32 {T[2]}, 3, {T[2]}
    v_lshl_add_u32 {T[2]}, {T[0]}, 7, {T[2]}
    v_add_u32 {T[2]}, s{sM3}, {T[2]}""")
    for i in range(4): setup3v(f"v_xor_b32 {T[3]}, {i}, {T[1]}\nv_lshl_add_u32 {vW3a[i]}, {T[3]}, 5, {T[2]}")
    setup3v(f"""s_lshr_b32 s{sT0}, s{sMT}, 1
    s_lshl_b32 s{sT0}, s{sT0}, 10
    s_lshl_b32 s{sT1}, s{sRB}, 10
    v_mov_b32 {T[4]}, s{sT0}
    v_mov_b32 {T[5]}, s{sT1}
    v_cmp_gt_u32 vcc, 32, {vL}
    v_and_b32 {T[6]}, 31, {vL}
    v_lshlrev_b32 {T[6]}, 2, {T[6]}
    v_cndmask_b32 {T[4]}, {T[4]}, {T[5]}, vcc
    v_bfe_u32 {T[5]}, {vL}, 3, 2
    v_lshl_add_u32 {T[4]}, {T[5]}, 8, {T[4]}
    v_and_b32 {T[5]}, 7, {vL}
    v_lshl_add_u32 {T[4]}, {T[5]}, 4, {T[4]}
    v_lshrrev_b32 {T[5]}, 5, {vL}
    v_lshl_add_u32 {T[5]}, {T[5]}, 8, {T[6]}
    v_and_b32 {T[7]}, 15, {vL}
    v_lshlrev_b32 {T[7]}, 2, {T[7]}""")
    XRE = opt.get("xre", 0)
    RE = [Reg("a", 180 + 4*j, 4) for j in range(8)]
    sXP = 17
    setup3v(f"""s_add_u32 s{sXP}, s{sW}, {4*(36 - 4*opt.get("np", 4))}
    s_mul_i32 s{sXP}, s{sXP}, {AFS2}
    s_lshl_b32 s{sT0}, s{sMT}, 14
    s_add_u32 s{sXP}, s{sXP}, s{sT0}
    s_add_u32 s{sXP}, s{sXP}, {AF2_OFF}""")
    zero3 = [f"v_mov_b32 {acc3[i][j][r]}, 0" for i in range(4) for j in range(8) for r in range(4)]
    def w3dma(slot, e):
        m0 = f"s_add_u32 m0, s{sM3}, {slot*4096}"
        return m0, VM(f"buffer_load_dwordx4 {vW3o}, {srd(S_W3)}, {'0' if e == 0 else 's%d' % (sSo3+e)} offen offset:{e*1024} {SC1 if CW else ''} lds", ("W", slot))
    def xload(slot, j):
        return VM(f"buffer_load_dwordx4 {RX[slot][j]}, {vAF}, {srd(S_AF)}, {['0', 's%d' % sAo, 's%d' % (sAo+1), 's16'][j>>1]} offen offset:{(j&1)*2048} {opt.get('xflag', SC1)}", ("X", slot, j >> 2))
    adv3 = [f"v_add_u32 {vW3o}, s{sAdv}, {vW3o}", f"s_add_u32 s{S_AF}, s{S_AF}, {4*AFS2}\ns_addc_u32 s{S_AF+1}, s{S_AF+1}, 0"]
    def wread(slot, s):
        return [f"ds_read_b64_tr_b16 {RW[s][i].sub(2*hf,2)}, {vW3a[i]} offset:{slot*4096 + hf*2048}" for i in range(4) for hf in range(2)]
    def gm(s, j, i, first=False): return f"v_mfma_f32_16x16x32_bf16 {acc3[i][j]}, {RW[s&1][i]}, {RX[s][j]}, {0 if first else acc3[i][j]}"

    EARLY3 = opt.get("early3", 0)
    pfsetup = [f"s_lshl_b32 s{sT1}, s2, 2", f"s_add_u32 s{sT1}, s{sT1}, s{sW}", f"s_lshl_b32 s{sT1}, s{sT1}, 10",
               f"v_lshrrev_b32 {vPF}, 3, {vL}", f"v_lshlrev_b32 {vPF}, 7, {vPF}", f"v_add_u32 {vPF}, s{sT1}, {vPF}",
               f"s_mov_b32 s{S_PF}, s{P_WD}", f"s_mov_b32 s{S_PF+1}, s{P_WD+1}", f"s_mov_b32 s{S_PF+2}, {3584*2048}", f"s_mov_b32 s{sPF}, 0x100000"] if PF else []
    k_ = B.lines.index("; @@SETUP3@@")
    ins = []
    if EARLY3:
        ins = setup3.lines + setup3v.lines + pfsetup
        if EARLY3 > 1:
            for s_ in range(4):
                for e_ in range(4):
                    m0, d = w3dma(s_, e_)
                    ins += ([m0, "s_nop 0"] if e_ == 0 else []) + [d] + ([adv3[0]] if e_ == 3 else [])
    B.lines[k_:k_ + 1] = ins
    k2_ = hist.index("; @@SETUP3@@"); hist[k2_:k2_ + 1] = ins
    probs += check_hazards(B.lines, "p2pro")
    A.ext(B.lines)
    def att_parts(ab, kq, vp):
        o = ab ^ 1
        M = [f"v_mfma_f32_32x32x16_bf16 {S[o]}, {K[kq][0]}, {Q[o][0]}, 0",
             f"v_mfma_f32_32x32x16_bf16 {S[o]}, {K[kq][1]}, {Q[o][1]}, {S[o]}",
             f"v_mfma_f32_32x32x16_bf16 {O[o]}, {V[vp][0]}, {P[o].sub(0,4)}, {O[o]}",
             lsum(o),
             f"v_mfma_f32_32x32x16_bf16 {O[o]}, {V[vp][1]}, {P[o].sub(4,4)}, {O[o]}",
             None]
        ex = [f"v_exp_f32 {S[ab][r]}, {S[ab][r]}" for r in range(16)]
        cv = [f"v_cvt_pk_bf16_f32 {P[ab][r]}, {S[ab][2*r]}, {S[ab][2*r+1]}" for r in range(8)]
        return M, ex, cv
    def phase_plain(ab, kq, vp, extra, gp=99):
        M, ex, cv = att_parts(ab, kq, vp)
        order = [M[2], M[0], M[1], M[3], M[4]]
        if gp == 0: order = ["s_nop 0", M[0], M[1], "s_nop 0", "s_nop 0"]
        if gp in (1, 2): order[0] = order[0].rsplit(",", 1)[0] + ", 0"
        vl = []
        for r in range(16):
            vl.append(ex[r])
            if r >= 3 and r % 2 == 1: vl.append(cv[(r - 3)//2])
        vl.append(cv[7])
        mpos = opt.get("mpos", [0, 4, 9, 14, 18])
        assert max(extra, default=0) <= 4
        out = []; mi = 0
        for i, v in enumerate(vl):
            while mi < 5 and mpos[mi] == i:
                out.append(order[mi]); out.extend(extra.get(mi, [])); mi += 1
            out.append(v)
        return out
    def phase_merged(ab, kq, vp, G8, extra):
        M, ex, cv = att_parts(ab, kq, vp)
        order = [M[2], G8[0], M[0], G8[1], G8[2], M[1], G8[3], M[3], G8[4], M[4], G8[5], G8[6], G8[7]]
        e, c = ex, cv
        fill = [[e[0], e[1], e[2]], [e[3]], [e[4], e[5], e[6]], [c[0], c[1]], [e[7]], [e[8], e[9], e[10]], [c[2], c[3]], [c[4]],
                [e[11]], [e[12], e[13], e[14]], [e[15]], [c[5], c[6]], [c[7]]]
        assert max(extra, default=0) <= 12
        out = []
        for k in range(13):
            out.append(order[k]); out.extend(extra.get(k, [])); out.extend(fill[k])
        return out
    sX3 = 16
    NP = opt.get("np", 4)
    PFSW = 6
    sKM = sL + 14
    def chunk(kind, hook=None, first=False, pfok=True, wpre=False):
        out = []
        mer = kind == "merged"
        for pi in range(16):
            tau, ab = pi >> 1, pi & 1
            kp = tau & 1
            ex = {}
            if ab == 0:
                src = (vCur, (tau+1)*4096) if tau < 7 else (vNxt, 0)
                ld = [f"ds_read_b128 {K[kp^1][t]}, {src[0]} offset:{src[1] + t*1024}" for t in range(2)]
            else:
                src = (vCur, (tau+1)*4096 + 2048) if tau < 7 else (vNxt, 2048)
                ld = [f"ds_read_b128 {V[kp^1][t]}, {src[0]} offset:{src[1] + t*1024}" for t in range(2)]
            kvd = VM(f"buffer_load_dwordx4 {vL16}, {srd(S_KVD)}, s{sKVo} offen offset:{(pi&3)*1024} {SC1} lds", "KV")
            if wpre:
                kvd = VM(f"buffer_load_dwordx4 {T[11]}, {srd(S_KVD)}, {'0' if pi & 3 == 0 else 's%d' % (sSo3 + (pi & 3))} offen offset:{(pi&3)*1024} {SC1 if CW else ''} lds", "PW")
            rotate = [f"s_mov_b32 s{sT0}, s{sCur}", f"s_mov_b32 s{sCur}, s{sNext}", f"s_mov_b32 s{sNext}, s{sFree}", f"s_mov_b32 s{sFree}, s{sT0}",
                      f"s_add_u32 s{sKM}, s{sT0}, s{sM0}", f"s_add_u32 s{sIt}, s{sIt}, 1"]
            upd = [f"v_add_u32 {vCur}, s{sCur}, {vL16}", f"v_add_u32 {vNxt}, s{sNext}, {vL16}"]
            lg = 0 if (trace or not mer) else 2
            s, q = pi >> 2, pi & 3
            if pi == 14: w0 = [Need(["KV"], "lgkmcnt(0)"), "s_barrier"]
            elif mer and q == 0: w0 = [Need([("W", (s+1) % NS), ("X", s, 1)], "lgkmcnt(0)")]
            else: w0 = [f"s_waitcnt lgkmcnt({lg})"]
            put(ex, 0, w0)
            if pi % 8 == 7: put(ex, 0, tr_commit())
            if not mer:
                if pi < 8: put(ex, 3, f"s_mov_b32 m0, s{sKM}")
                if pi == 4: put(ex, 1, f"s_add_u32 s{sKVo}, s{sKVo}, 4096"); put(ex, 2, f"s_add_u32 s{sKM}, s{sKM}, 4096")
                if pi == 8: put(ex, 1, post_dma)
                if pi == 14: put(ex, 3, rotate[0]); put(ex, 4, rotate[1])
                if pi == 15: put(ex, 1, rotate[2]); put(ex, 2, rotate[3]); put(ex, 3, rotate[4]); put(ex, 4, rotate[5])
                put(ex, 1, ld[0]); put(ex, 2, ld[1])
                if pi < 8: put(ex, 4, kvd)
            else:
                G8 = [gm(s, 2*q + jj, i, first and s == 0) for jj in range(2) for i in range(4)]
                m0, d = w3dma(s, q)
                rd = wread((s+1) % NS, (s+1) & 1)
                if pi == 4: put(ex, 1, f"s_add_u32 s{sKVo}, s{sKVo}, 4096"); put(ex, 4, f"s_add_u32 s{sKM}, s{sKM}, 4096")
                if pi == 8: put(ex, 1, post_dma)
                if q == 0 and s > 0: put(ex, 6, adv3[1])
                if pi == 15:
                    for k, g_ in enumerate((4, 5, 6, 7, 8, 9)): put(ex, g_, rotate[k])
                if pi == 10 and PF: put(ex, 1, pfop[1])
                put(ex, 1, ld[0]); put(ex, 2, m0); put(ex, 3, d); put(ex, 4, ld[1])
                put(ex, 5, rd[2*q]); put(ex, 10 if q < 3 else 6, rd[2*q+1])
                put(ex, 7, xload(s, 2*q)); put(ex, 12, xload(s, 2*q+1))
                if q == 3: put(ex, 11, adv3[0])
                if pi < 8: put(ex, 8, f"s_mov_b32 m0, s{sKM}"); put(ex, 9, kvd)
                if wpre and pi in (4, 8): put(ex, 6, f"v_add_u32 {T[11]}, s{sAdv}, {T[11]}")
                if pi == 9 and PF:
                    put(ex, 9, pfop[0])
                    put(ex, 6, [f"s_cmp_eq_u32 s{sIt}, {PFSW}", f"s_cselect_b32 s{sPF}, 0, s{sPF}", f"s_cselect_b32 s{S_PF}, s{P_WO}, s{S_PF}",
                                f"s_cselect_b32 s{S_PF+1}, s{P_WO+1}, s{S_PF+1}", f"s_cselect_b32 s{S_PF+2}, 0x200000, s{S_PF+2}"])
                if pi == 12: put(ex, 9, cp(False))
                if wpre and XRE and pi >= 8:
                    j_ = pi - 8
                    put(ex, 8 if pi not in (15,) else 10, VM(f"buffer_load_dwordx4 {RE[j_]}, {vAF}, {srd(S_WS)}, s{sXP} offen offset:{(j_&1)*2048} {SC1}", ("XE", j_ >> 2)))
                    if j_ & 1: put(ex, 11, f"s_add_u32 s{sXP}, s{sXP}, {4096 if j_ < 7 else (-12288) & 0xffffffff}")
            if pi % 8 == 6: put(ex, 3, tr_issue())
            if hook: hook(pi, ex, None)
            if mer: out += phase_merged(ab, kp ^ ab, kp ^ 1 ^ ab, G8, ex)
            else: out += phase_plain(ab, kp ^ ab, kp ^ 1 ^ ab, ex, pi if first else 99)
        if mer: out += adv3[1:]
        out += upd
        return out

    dflt = {3: dict(hs=[1, 1], gs=23, hf=26, hp=36, hc=39, pf=[25, 28, 41]), 4: dict(hs=[2, 1], gs=32, hf=44, hp=50, hc=53, pf=[34, 38, 44, 56])}[NP]
    dflt.update(opt.get("sched", {}))
    HSN, HSD = dflt["hs"]; GS, HF, HPg, HC, PFP = dflt["gs"], dflt["hf"], dflt["hp"], dflt["hc"], dflt["pf"]
    assert len(PFP) == NP
    hst = hst0 + hst1a
    hph = [dflt.get("hs0", 0) + n*HSN//HSD for n in range(16)]
    assert EARLY3 or hph[-1] < GS
    hpoll = f"buffer_load_dwordx4 {vFl}, {T[4]}, {srd(S_WS)}, s{sT1} offen sc1"
    LASTP = 16*NP - 1
    wph = [GS + 1 + k // 2 for k in range(16)] if not EARLY3 else ([-1]*16 if EARLY3 > 1 else [2*(k // 2)*2 + 1 for k in range(16)])
    NXP = opt.get("nxp", 32)
    xph = [HC + 1 + (k * (LASTP - HC)) // NXP for k in range(NXP)] + [-1] * (32 - NXP)
    gloads = [VM(f"buffer_load_dword {vG[ab]}, {T[6]}, {srd(S_WS)}, s{sT2} offen offset:{ab*128} sc1", "G") for ab in range(2)]
    gloads += [VM(f"buffer_load_dword {SCL[j]}, {T[7]}, {srd(S_WS)}, s{sT3} offen offset:{j*64} sc1", "G") for j in range(8)]
    def hookM0(pi, ex, pre):
        n = NXP + pi
        if n < 32:
            s_, j_ = divmod(n, 8)
            put(ex, 6, VM(f"buffer_load_dwordx4 {RX[s_][j_]}, {vL16}, {srd(S_AF)}, s{sX3 + (j_>>2)} offen offset:{(j_&3)*1024} {SC1}", ("X", s_, j_ >> 2)))
        if pi >= 11: put(ex, 8, gloads[2*(pi - 11)]); put(ex, 11, gloads[2*(pi - 11) + 1])
    def mkhook(base):
        def hook(pi, ex, pre):
            gp = base + pi
            k = 0
            for n in range(16):
                if hph[n] == gp: put(ex, [0, 3][k], hst[n]); k += 1
            if gp == GS and not EARLY3:
                put(ex, 0, setup3.lines[:15]); put(ex, 1, setup3.lines[15:]); put(ex, 3, setup3v.lines + pfsetup)
            if gp in PFP and PF: put(ex, 3 if (gp & 15) >= 8 else 0, pfop)
            if gp in opt.get('cpg', (9, 16*NP - 22)): put(ex, 4, cp())
            k = 0
            for n in range(16):
                if wph[n] == gp:
                    s_, e_ = divmod(n, 4)
                    m0, d = w3dma(s_, e_)
                    if k == 0: ex[0] = ex[0] + [m0]
                    put(ex, k + 1, [d] + ([adv3[0]] if e_ == 3 else [])); k += 1
            if gp == HF:
                put(ex, 2, [Need(["H"]), "s_mov_b64 exec, 1", VM(f"buffer_store_dword {vNon}, {vZero}, {srd(S_WS)}, s{sFl} offen sc1", "HF"), "s_mov_b64 exec, -1", "s_nop 2"])
            if gp == HPg: put(ex, 3, [f"s_mov_b32 s{sT1}, {FL_H}", VM(hpoll, "HP")])
            if gp == HC:
                put(ex, 2, [Need(["HP"])] + check([vFl[k] for k in range(4)]) + ["s_cbranch_scc0 P3_SLOWH", "P3_HOK:"])
                put(ex, 3, [f"s_lshl_b32 s{sT2}, s{sRB}, 10", f"s_lshl_b32 s{sT3}, s{sW}, 8", f"s_add_u32 s{sT2}, s{sT2}, s{sT3}", f"s_add_u32 s{sT2}, s{sT2}, {G_OFF}",
                            f"s_lshl_b32 s{sT3}, s{sMT}, 9", f"s_add_u32 s{sT3}, s{sT3}, {G_OFF}"])
            k = 0
            for n in range(32):
                if xph[n] == gp:
                    s_, j_ = divmod(n, 8)
                    put(ex, [0, 3, 4, 2][k], [xload(s_, j_)] + (adv3[1:] if j_ == 7 else [])); k += 1
            if gp == LASTP:
                put(ex, 3, [Need([("W", 0)])] + wread(0, 0))
                if NXP == 24: put(ex, 5, [f"s_mov_b32 s{sX3}, s{sAo}", f"s_mov_b32 s{sX3+1}, s{sAo+1}"] + adv3[1:])
        return hook
    def retag(ch, cur, need):
        out = []
        for l in ch:
            if isinstance(l, VM) and l.tag == "KV": out.append(VM(l, cur))
            elif isinstance(l, Need) and "KV" in l.tags: out.append(Need([need], l.extra))
            else: out.append(l)
        return out
    hist = [VM(l, "KV-1") if isinstance(l, VM) and l.tag == "KV" else l for l in hist]
    CP = []; hh_ = list(hist)
    for c in range(NP):
        ch = resolve_waits(retag(chunk("plain", mkhook(16*c), first=(c == 0)), f"KV{c}", f"KV{c-1}"), hh_)
        CP.append(ch); hh_ += ch
    mA = retag(chunk("merged"), "KVa", "KVb"); mB = retag(chunk("merged"), "KVb", "KVa")
    mres = resolve_waits(mA, mB)
    M = mres
    M0 = resolve_waits(retag(chunk("merged", hookM0, first=True), "KVb", f"KV{NP-1}"), hh_)
    probs += verify_waits(hh_ + M0 + M, len(hh_ + M0), "M0->M")
    WPRE = opt.get("wpre", 1)
    if WPRE:
        MW = resolve_waits(retag(chunk("merged", wpre=True), "-", "KVa"), M)
        probs += verify_waits(M + MW + [l for l in MW if not (isinstance(l, Need) and "KVa" in l.tags)], len(M + MW), "MW->MW")
    mab = opt.get("mabl", "")
    def abl(L):
        out = []
        for l in L:
            if "x" in mab and isinstance(l, VM) and isinstance(l.tag, tuple) and l.tag[0] == "X": continue
            if "w" in mab and isinstance(l, VM) and isinstance(l.tag, tuple) and l.tag[0] == "W": continue
            if "t" in mab and l.startswith("ds_read_b64_tr"): continue
            if "k" in mab and l.startswith("ds_read_b128"): continue
            if "s" in mab and l.startswith(("s_add", "s_mov", "s_cmp", "s_cselect")) and f"s{sIt}" not in l and "exec" not in l: continue
            if "n" in mab and isinstance(l, Need): out.append("s_waitcnt lgkmcnt(0)" if l.extra else "s_nop 0"); continue
            if "g" in mab and l.startswith("v_mfma_f32_16x16") and "a[2" in l: continue
            out.append(l)
        return out
    Me = abl(M); M0e = abl(M0)
    D = Asm()
    D(f"s_mov_b32 s{sIt}, 0")
    cab = opt.get("cabl", "")
    def cabl(L):
        out = []
        for l in L:
            if "h" in cab and isinstance(l, VM) and l.tag == "H": continue
            if "k" in cab and isinstance(l, VM) and str(l.tag).startswith("KV"): continue
            if "r" in cab and l.startswith("ds_read_b128"): continue
            if "s" in cab and l.startswith(("s_mov_b32 m0", "s_add_u32")) and "s62" not in l: continue
            if "w" in cab and l.startswith("s_waitcnt lgkmcnt"): continue
            out.append(l)
        return out
    for c in range(NP): D.ext(ts.at(f"c{c}")); D.ext(cabl(CP[c]) if c < 2 else CP[c])
    D.ext(ts.at("m")); D.ext(M0e)
    D.ext(ts.at("m1"))
    D(".p2align 6\nP2_MLOOP:")
    D.ext(Me)
    if WPRE:
        D(f"""s_cmp_lt_u32 s{sIt}, 6
        s_cbranch_scc1 P2_MLOOP
        s_mov_b32 s{S_KVD}, s{sWo}
        s_mov_b32 s{S_KVD+1}, s{sWo+1}
        s_mov_b32 s{S_KVD+2}, s{sWoN}""")
        if CPF: D(cpa)
        D.ext(ts.at("mw"))
        D("P2_MWLOOP:")
        if "mw2" in ts.names: D.ext(ts.at("mw2"))
        D.ext(abl(MW))
        D(f"s_cmp_lt_u32 s{sIt}, 8\ns_cbranch_scc1 P2_MWLOOP")
        probs += check_hazards(M + MW + MW, "mw")
        M = MW
    else:
        D(f"s_cmp_lt_u32 s{sIt}, 8\ns_cbranch_scc1 P2_MLOOP")
    probs += check_hazards(B.lines[-8:] + sum(CP, []) + M0 + M + M, "att")
    A.ext(D.lines)

    C = Asm()
    C.ext(ts.at("attend"))
    C(f"""v_mfma_f32_32x32x16_bf16 {O[1]}, {V[1][0]}, {P[1].sub(0,4)}, {O[1]}
    {lsum(1)}
    v_mfma_f32_32x32x16_bf16 {O[1]}, {V[1][1]}, {P[1].sub(4,4)}, {O[1]}""")
    C(f"v_mov_b32 {T[1]}, 0")
    for r in range(16): C(f"v_fmac_f32 {T[1]}, 0, {O[0][r]}")
    for r in range(16): C(f"v_fmac_f32 {T[1]}, 0, {O[1][r]}")
    for ab in range(2): C(f"v_add_f32 {Lc[ab][0]}, {Lc[ab][0]}, {Lc[ab][1]}")
    C(f"""s_mov_b32 s{sT0}, {f2u(2.0**-20):#x}
    s_mov_b32 s{sT1}, {f2u(2.0**100):#x}
    v_cmp_le_f32 vcc, s{sT0}, {Lc[0][0]}
    v_cmp_le_f32 s[{S_C}:{S_C+1}], s{sT0}, {Lc[1][0]}
    s_nop 1
    s_and_b64 vcc, vcc, s[{S_C}:{S_C+1}]
    v_cmp_ge_f32 s[{S_C}:{S_C+1}], s{sT1}, {Lc[0][0]}
    v_cmp_ge_f32 s[{sT2}:{sT3}], s{sT1}, {Lc[1][0]}
    s_nop 1
    s_and_b64 vcc, vcc, s[{S_C}:{S_C+1}]
    s_and_b64 vcc, vcc, s[{sT2}:{sT3}]
    v_cmp_eq_f32 s[{S_C}:{S_C+1}], 0, {T[1]}
    s_nop 1
    s_and_b64 vcc, vcc, s[{S_C}:{S_C+1}]
    s_cmp_eq_u64 vcc, -1""")
    if opt.get("force_fallback"): C("s_branch P2_FALLBACK")
    C("s_cbranch_scc0 P2_FALLBACK")
    C("P2_FINISH:")
    for ab in range(2): C(f"v_rcp_f32 {T[2*ab]}, {Lc[ab][0]}")
    C(f"""s_add_u32 s{sT0}, s{sCB}, 112
    s_mul_i32 s{sT0}, s{sT0}, {AFS2}
    s_lshl_b32 s{sT1}, s{sRB}, 15
    s_add_u32 s{sT0}, s{sT0}, s{sT1}
    s_lshl_b32 s{sT1}, s{sW}, 13
    s_add_u32 s{sT0}, s{sT0}, s{sT1}
    s_add_u32 s{sT0}, s{sT0}, {AF2_OFF}
    s_add_u32 s{sT1}, s{sT0}, 4096
    v_and_b32 {vFl[2]}, 40, {vL}
    v_cmp_eq_u32 vcc, 40, {vFl[2]}
    v_add_u32 {vFl[2]}, 128, {vQP}
    s_nop 0
    v_cndmask_b32 {vFl[1]}, {vQP}, {vFl[2]}, vcc""")
    for ab in range(2): C(f"v_mul_f32 {T[2*ab]}, {T[2*ab]}, {vG[ab]}")
    for ab in range(2):
        for r in range(0, 16, 2):
            C(f"v_pk_mul_f32 {O[ab].sub(r,2)}, {O[ab].sub(r,2)}, {T.sub(2*ab,2)} op_sel_hi:[1,0]")
        for r in range(8): C(f"v_cvt_pk_bf16_f32 {S[ab][r]}, {O[ab][2*r]}, {O[ab][2*r+1]}")
        for c in range(2):
            C(VM(f"buffer_store_dwordx4 {S[ab].sub(4*c,4)}, {vFl[1+c]}, {srd(S_WS)}, s{sT0+ab} offen offset:{c*512} {SC1}", "O"))
    for j in range(8): C(f"v_sub_f32 {SCL[j]}, 1.0, {SCL[j]}")
    for j in range(8): C(f"v_cvt_pk_bf16_f32 {SCL[j]}, {SCL[j]}, {SCL[j]}")
    for j in range(8): C(f"v_and_b32 {SCL[j]}, 0xffff0000, {SCL[j]}")
    sFC = sL
    C(f"""s_lshl_b32 s{sFC}, s{sMT}, 9
    s_add_u32 s{sFC}, s{sFC}, {FL_O}
    s_add_u32 s{sFl}, s{sFl}, {FL_O - FL_H}""")
    C.ext(ts.at("tail"))
    EPI_IL = opt.get("epi_il", 1)
    groups = []
    if EPI_IL:
        n0 = next(k for k, l in enumerate(C.lines) if l.startswith("v_mov_b32") )
        rest = C.lines[n0:]; C.lines = C.lines[:n0]
        k0 = next(k for k, l in enumerate(rest) if l.startswith("s_mov_b32"))
        k1 = rest.index("P2_FINISH:")
        groups = [[l] for l in rest[:k0]] + [rest[k0:k1 + 1]] + [[l] for l in rest[k1 + 1:]]
    vPa = [O[0][i] for i in range(4)]; vPb = [O[0][4 + i] for i in range(4)]
    def pread(st, dst):
        base = vPb if st < 2 else vPa
        return [f"ds_read_b64_tr_b16 {dst[i].sub(2*hf,2)}, {base[i]} offset:{(st & 1)*4096 + hf*2048}" for i in range(4) for hf in range(2)]
    def p3iter(hook=None, now=False, skipx=False, usee=False):
        out = []
        for s in range(NS):
            m = [gm(s, j, i) for j in range(8) for i in range(4)]
            xt = lambda h: ("X", s, h)
            if usee and s == 0:
                m = [l.replace(str(RX[0][k // 4]), str(RE[k // 4])) for k, l in enumerate(m)]
                xt = lambda h: ("XE", h)
            f = {}
            if opt.get("t3", 1) == 0:
                f[-1] = [Need([("W", (s+1) % NS), ("X", s, 1)], "lgkmcnt(0)"), w3dma(s, 0)[0]]
                dgap = [0, 6, 14, 22]
                for e in range(4): put(f, dgap[e], w3dma(s, e)[1])
                for k, r in enumerate(wread((s + 1) % NS, (s+1) & 1)): put(f, 1 + 3*k, r)
                for j in range(8): put(f, 4*j + 3 + (1 if j < 7 else 0), xload(s, j))
            else:
                f[-1] = [Need([xt(0)], "lgkmcnt(0)"), w3dma(s, 0)[0]]
                dgap = opt.get("t3w", [0, 2, 6, 10])
                if now: f[-1] = f[-1][:1]
                else:
                    for e in range(4): put(f, dgap[e], w3dma(s, e)[1])
                put(f, 15, Need([xt(1)]))
                rg0 = opt.get("t3r", 18)
                if not (now and s == 3): put(f, rg0 - 1, Need([("W", (s+1) % NS)]))
                for k, r in enumerate(pread(0, RW[0]) if (now and s == 3) else wread((s + 1) % NS, (s+1) & 1)): put(f, rg0 + k + (1 if rg0 + k >= 20 else 0) + (1 if rg0 + k >= 23 else 0), r)
                if not (skipx and s == 0):
                    for j in range(8): put(f, 4*j + 3 + (1 if j < 7 else 0), xload(s, j))
            put(f, 31, adv3)
            put(f, 28, tr_issue())
            if trace: f[-1] = f[-1][:1] + tr_commit() + f[-1][1:]
            if hook: hook(s, f)
            out += interleave(m, f)
        return out
    opoll = f"buffer_load_dword {vFl[0]}, {T[5]}, {srd(S_WS)}, s{sFC} offen sc1"
    NT = NP - 2
    OFS, OPS = opt.get("oflag_step", 2), opt.get("opoll_step", 4*NT - 1 if NT == 1 else 4*NT - 2)
    def mkT(base):
        def hookT(s, f):
            if base == 0 and s < 2:
                R_ = opt.get("epi_rate", 3)
                for g_ in range(2 if s == 0 else 0, 31):
                    for _ in range(R_):
                        if groups: put(f, g_, groups.pop(0))
                assert s == 0 or not groups
            if base + s == OFS: put(f, 10, [Need(["O"]), "s_mov_b64 exec, 1", VM(f"buffer_store_dword {vNon}, {vZero}, {srd(S_WS)}, s{sFl} offen sc1", "OF"), "s_mov_b64 exec, -1", "s_nop 2"])
            if base + s == OPS: put(f, 26, VM(opoll, "OP"))
            if base + s == 1 and CPF: put(f, 14, [cpa, f"v_min_u32 v0, L_END-{CB0}-4, v0"] + cp(False))
        return hookT
    T5 = []
    XE_ = XRE and WPRE and NT >= 2
    for k in range(NT): T5 += resolve_waits(p3iter(mkT(4*k), skipx=XE_ and k == 0, usee=XE_ and k == 1), M + M + C.lines + T5)
    L3 = resolve_waits(p3iter())
    mid = [Need(["OP"])] + check([vFl[0]]) + ["s_cbranch_scc0 P3_SLOWO", "P3_OOK:",
           f"s_mov_b32 s{S_W3}, s{sWo}", f"s_mov_b32 s{S_W3+1}, s{sWo+1}", f"s_mov_b32 s{S_W3+2}, s{sWoN}",
           f"v_subrev_u32 {vW3o}, s{sAdv28}, {vW3o}", f"s_mov_b32 s{sIt}, 6", "s_barrier",
           f"v_add_u32 {T[0]}, 0x10000, {vL16}", f"v_and_b32 {T[1]}, 15, {vL}", f"v_lshlrev_b32 {T[1]}, 11, {T[1]}", f"v_bfe_u32 {T[2]}, {vL}, 4, 1",
           f"v_lshl_add_u32 {T[1]}, {T[2]}, 5, {T[1]}", f"v_lshrrev_b32 {T[2]}, 5, {vL}", f"v_lshl_add_u32 {T[1]}, {T[2]}, 4, {T[1]}",
           f"s_lshl_b32 s{sT0}, s{sMT}, 18", f"s_lshl_b32 s{sT1}, s{sW}, 16", f"s_add_u32 s{sT0}, s{sT0}, s{sT1}",
           f"s_lshl_b32 s{sT1}, s{sNT}, 7", f"s_add_u32 s{sT0}, s{sT0}, s{sT1}", f"s_add_u32 s{sT1}, s{sT0}, 32768"]
    if WPRE:
        mid += [f"s_lshl_b32 s{sT2}, s{sW}, 13", f"s_add_u32 s{sT2}, s{sT2}, {W3B}"]
        mid += [f"v_subrev_u32 {vPa[i]}, s{sT2}, {vW3a[i]}" for i in range(4)] + [f"v_add_u32 {vPb[i]}, 0x10000, {vPa[i]}" for i in range(4)]
    mid = resolve_waits(mid, T5)
    probs += verify_waits(M + C.lines + T5 + mid + L3, len(M + C.lines + T5 + mid), "T5->L3")
    tail = [f"s_add_u32 s{sIt}, s{sIt}, 1", f"s_cmp_eq_u32 s{sIt}, 8", "s_cbranch_scc1 P3_DONE", "s_nop 7"]
    for i in range(4):
        for j in range(8):
            for r in (0, 2):
                tail.append(f"v_pk_mul_f32 {acc3[i][j].sub(r,2)}, {acc3[i][j].sub(r,2)}, {SCL.sub(j & ~1, 2)} op_sel:[0,{j&1}] op_sel_hi:[1,{j&1}]")
    tail += ["s_nop 0", "s_branch P3_LOOP", "P3_DONE:"]
    probs += check_hazards(M[-30:] + C.lines + T5 + mid + L3 + tail + L3, "tail") + check_hazards(L3 + L3, "l3")
    tab = opt.get("tabl", "")
    def tabl(L):
        out = []
        for l in L:
            if isinstance(l, VM) and isinstance(l.tag, tuple) and l.tag[0].lower() in tab: continue
            if "t" in tab and l.startswith("ds_read_b64_tr"): continue
            if "m" in tab and l.startswith("v_mfma"): continue
            if "a" in tab and l in adv3: continue
            out.append(l)
        return out
    T5 = tabl(T5); L3 = tabl(L3)
    C.ext(T5); C.ext(ts.at("t5end")); C.ext(mid)
    if TCH > 2: C(f"; @@TOUCH x 3 s{sW}")
    C.ext(ts.at("l3"))
    if WPRE:
        XEND = opt.get("xend", 0)
        VA = [Reg("v", S[1].base + 4*j, 4) for j in range(8)]
        RXF = [RX[0], RX[1], VA, RE] if XEND else RX
        def hookL7(s, f):
            if XEND and s < 2:
                if s == 0: put(f, 0, [f"s_add_u32 s{sXP}, s{sW}, {4*34}", f"s_mul_i32 s{sXP}, s{sXP}, {AFS2}", f"s_lshl_b32 s{sT2}, s{sMT}, 14",
                                      f"s_add_u32 s{sXP}, s{sXP}, s{sT2}", f"s_add_u32 s{sXP}, s{sXP}, {AF2_OFF}"])
                for j in range(8):
                    put(f, 4*j + 2, VM(f"buffer_load_dwordx4 {RXF[2+s][j]}, {vAF}, {srd(S_WS)}, s{sXP} offen offset:{(j&1)*2048} {SC1}", ("X", 2 + s + 10, j >> 2)))
                    if j & 1: put(f, 4*j + 2, f"s_add_u32 s{sXP}, s{sXP}, {4096 if j < 7 else 4*AFS2 - 12288}")
            if XEND and s >= 2:
                for g_ in list(f): f[g_] = [l for l in f[g_] if not (isinstance(l, VM) and l.tag[0] == "X")]
            if s == 0:
                for j in range(8):
                    sc = [f"v_pk_mul_f32 {acc3[i][j].sub(r,2)}, {acc3[i][j].sub(r,2)}, {SCL.sub(j & ~1, 2)} op_sel:[0,{j&1}] op_sel_hi:[1,{j&1}]" for i in range(4) for r in (0, 2)]
                    if j == 0: put(f, -1, sc + ["s_nop 1"])
                    else:
                        for k in range(8): put(f, 4*(j - 1) + k // 3, sc[k])
        L7 = resolve_waits(p3iter(hookL7, now=True), L3 + L3)
        probs += check_hazards(L3 + L7, "l7")
        C.ext(L3); C.ext(tabl(L7)); C.ext(ts.at("l3end"))
        LPREV = L3 + L7
    else:
        C(".p2align 6\nP3_LOOP:")
        C.ext(L3); C.ext(tail); C.ext(ts.at("l3end"))
        LPREV = L3 + L3; RXF = RX; XEND = 0
    for w in range(3): C(f"s_cmp_eq_u32 s{sW}, {w}\ns_cbranch_scc1 P3_FIN{w}")
    A.ext(C.lines)
    RWF = [RW[0]] + [[Reg("a", 128 + 16*k + 4*i, 4) for i in range(4)] for k in range(3)]
    def fin(w):
        def adr(off): return (vL16, off) if off < 65536 else (T[0], off - 65536)
        own = [2*w, 2*w + 1]
        oth = [j for d in range(1, 4) for j in (2*((w + d) & 3), 2*((w + d) & 3) + 1)]
        mm = lambda s_, j, i: f"v_mfma_f32_16x16x32_bf16 {acc3[i][j]}, {RWF[s_][i]}, {RXF[s_][j]}, {acc3[i][j]}"
        m = [mm(0, j, i) for j in oth for i in range(4)]
        G0 = 24
        f = {}
        f[-1] = [Need([("X", 0, 1)] + ([] if WPRE else [("W", 1)]), "lgkmcnt(0)")]
        k = 0
        for s_ in (1, 2, 3):
            if s_ > 1 and not WPRE: put(f, k, Need([("W", s_)]))
            for r in (pread(s_, RWF[s_]) if WPRE else [f"ds_read_b64_tr_b16 {RWF[s_][i].sub(2*hf,2)}, {vW3a[i]} offset:{s_*4096 + hf*2048}" for i in range(4) for hf in range(2)]):
                put(f, k * 20 // 24, r); k += 1
        put(f, G0 - 1, Need([("X", 1, 1), ("X", 13, 1)] if (WPRE and XEND) else [("X", 3, 1)], "lgkmcnt(0)"))
        if WPRE: put(f, G0 - 1, "s_barrier")
        for j in oth: m += [mm(s_, j, i) for s_ in (1, 2, 3) for i in range(4)]
        for j in own: m += [mm(s_, j, i) for s_ in (0, 1, 2, 3) for i in range(4)]
        WS_ = opt.get("fws", 3)
        for n, j in enumerate(oth):
            d = j >> 1; q = (w - d - 1) & 3
            for i in range(4):
                b_, off = adr((d*3 + q)*8192 + ((j & 1)*4 + i)*1024)
                put(f, G0 + 12*(n + 1) + 5 + (WS_ if n < 5 else 1)*i, f"ds_write_b128 {b_}, {acc3[i][j]} offset:{off}")
        free = [acc3[i][j] for j in oth for i in range(4)]
        g0 = G0 + 12*6 + 5 + 6
        put(f, g0, ["s_waitcnt lgkmcnt(0)", "s_barrier"])
        k = 0
        for q in range(3):
            for jj in range(2):
                for i in range(4):
                    b_, off = adr((w*3 + q)*8192 + (jj*4 + i)*1024)
                    put(f, min(g0 + (k * 3) // 4, 127), f"ds_read_b128 {free[k]}, {b_} offset:{off}"); k += 1
        R = Asm()
        Fl = resolve_waits(interleave(m, f), LPREV)
        if opt.get("fabl"): Fl = [l for l in Fl if not l.startswith(tuple(opt["fabl"]))]
        R.ext(Fl)
        R.ext(ts.at("redw"))
        R("s_nop 3")
        for q in range(3):
            R(f"s_waitcnt lgkmcnt({[15, 8, 0][q] if not ts.on else 0})")
            for jj in range(2):
                for i in range(4):
                    a = acc3[i][2*w+jj]; b = free[q*8 + jj*4 + i]
                    for r in (0, 2): R(f"v_pk_add_f32 {a.sub(r,2)}, {a.sub(r,2)}, {b.sub(r,2)}")
        for jj in range(2):
            for ip in range(2):
                X, Y = acc3[2*ip][2*w+jj], acc3[2*ip+1][2*w+jj]
                Dd = S[0].sub(4*(jj*2+ip), 4)
                R(f"v_cvt_pk_bf16_f32 {Dd[0]}, {X[0]}, {X[1]}\nv_cvt_pk_bf16_f32 {Dd[1]}, {X[2]}, {X[3]}")
                R(f"v_cvt_pk_bf16_f32 {Dd[2]}, {Y[0]}, {Y[1]}\nv_cvt_pk_bf16_f32 {Dd[3]}, {Y[2]}, {Y[3]}")
                R(f"s_nop 1\nv_permlane16_swap_b32 {Dd[0]}, {Dd[2]}\nv_permlane16_swap_b32 {Dd[1]}, {Dd[3]}")
                R(f"buffer_store_dwordx4 {Dd}, {T[1]}, {srd(S_OUT)}, s{sT0+jj} offen offset:{ip*64} {opt.get('outflag', '')}")
        if trace:
            R(f"""s_waitcnt vmcnt(0)
            s_memrealtime s[100:101]
            s_waitcnt lgkmcnt(0)
            s_lshl_b64 exec, 1, s81
            v_mov_b32 v0, s100
            s_mov_b64 exec, -1
            s_lshl_b32 s80, s2, 2
            s_add_u32 s80, s80, s{sW}
            s_lshl_b32 s80, s80, 8
            s_add_u32 s80, s80, {TS_OFF}
            v_lshlrev_b32 {T[3]}, 2, {vL}
            buffer_store_dword v0, {T[3]}, {srd(S_WS)}, s80 offen
            s_waitcnt vmcnt(0) ; TRACE""")
        if opt.get("dbgt"):
            R(f"""s_waitcnt vmcnt(0) lgkmcnt(0)
            s_memrealtime s[100:101]
            s_waitcnt lgkmcnt(0)
            s_mov_b32 s{S_C}, s{P_DBG}
            s_mov_b32 s{S_C+1}, s{P_DBG+1}
            s_mov_b32 s{S_C+2}, 256
            s_mov_b64 exec, 1""")
            for i in range(10):
                R(f"""s_sub_u32 s80, s{82+2*i}, s{sNonce}
                s_add_u32 s80, s80, 1000
                v_mov_b32 {T[3]}, s80
                buffer_atomic_umax {T[3]}, {vZero}, {srd(S_C)}, 0 offen offset:{8 + 4*i}""")
            R("s_waitcnt vmcnt(0)")
        else:
            R.ext(ts.flush(S_WS, sW, S[1].base))
        R("s_endpgm")
        return R
    for w in (3, 0, 1, 2):
        R = fin(w)
        probs += check_hazards(LPREV[-10:] + R.lines, f"fin{w}")
        A(f"P3_FIN{w}:\n; @@PAD@@"); A.ext(R.lines)
    A.ext(slow1.lines)
    A("P3_SLOWH:"); A.ext(spin("P3_SH", hpoll, [vFl[k] for k in range(4)], "P3_HOK"))
    A("P3_SLOWO:"); A.ext(spin("P3_SO", opoll, [vFl[0]], "P3_OOK"))

    F = Asm()
    F("P2_FALLBACK:")
    for ab in range(2): F(f"v_mov_b32 {T[ab]}, 0xff800000")
    F(f"s_mov_b32 s{sT0}, {KV_OFF}")
    F("P2_FB1:")
    for t in range(2): F(f"buffer_load_dwordx4 {K[0][t]}, {vL16}, {srd(S_WS)}, s{sT0} offen offset:{t*1024} {SC1}")
    F("s_waitcnt vmcnt(0)")
    for ab in range(2):
        F(f"v_mfma_f32_32x32x16_bf16 {S[ab]}, {K[0][0]}, {Q[ab][0]}, 0\nv_mfma_f32_32x32x16_bf16 {S[ab]}, {K[0][1]}, {Q[ab][1]}, {S[ab]}")
    F("s_nop 15")
    for ab in range(2):
        for r in range(0, 16, 2): F(f"v_max3_f32 {T[ab]}, {S[ab][r]}, {S[ab][r+1]}, {T[ab]}")
    F(f"s_add_u32 s{sT0}, s{sT0}, 4096\ns_cmp_lt_u32 s{sT0}, {KV_OFF + 262144}\ns_cbranch_scc1 P2_FB1")
    for ab in range(2): F(f"v_mov_b32 {T[2+ab]}, {T[ab]}")
    F("s_nop 1")
    for ab in range(2): F(f"v_permlane32_swap_b32 {T[ab]}, {T[2+ab]}")
    for ab in range(2): F(f"v_max_f32 {vFl[ab]}, {T[ab]}, {T[2+ab]}")
    for ab in range(2):
        for r in range(16): F(f"v_mov_b32 {O[ab][r]}, 0")
        for r in range(4): F(f"v_mov_b32 {Lc[ab][r]}, 0")
    F(f"s_mov_b32 s{sT0}, {KV_OFF}")
    F("P2_FB2:")
    for t in range(2): F(f"buffer_load_dwordx4 {K[0][t]}, {vL16}, {srd(S_WS)}, s{sT0} offen offset:{t*1024} {SC1}")
    for t in range(2): F(f"buffer_load_dwordx4 {V[0][t]}, {vL16}, {srd(S_WS)}, s{sT0} offen offset:{2048 + t*1024} {SC1}")
    F("s_waitcnt vmcnt(0)")
    for ab in range(2):
        F(f"v_mfma_f32_32x32x16_bf16 {S[ab]}, {K[0][0]}, {Q[ab][0]}, 0\nv_mfma_f32_32x32x16_bf16 {S[ab]}, {K[0][1]}, {Q[ab][1]}, {S[ab]}")
    F("s_nop 15")
    for ab in range(2):
        for r in range(16): F(f"v_sub_f32 {S[ab][r]}, {S[ab][r]}, {vFl[ab]}")
        for r in range(16): F(f"v_exp_f32 {S[ab][r]}, {S[ab][r]}")
        F("s_nop 0")
        for r in range(8): F(f"v_cvt_pk_bf16_f32 {P[ab][r]}, {S[ab][2*r]}, {S[ab][2*r+1]}")
    F("s_nop 1")
    for ab in range(2):
        for u_ in range(2):
            F(f"v_mfma_f32_32x32x16_bf16 {O[ab]}, {V[0][u_]}, {P[ab].sub(4*u_,4)}, {O[ab]}")
            if u_ == 0: F(lsum(ab))
    F(f"s_add_u32 s{sT0}, s{sT0}, 4096\ns_cmp_lt_u32 s{sT0}, {KV_OFF + 262144}\ns_cbranch_scc1 P2_FB2")
    F("s_nop 15")
    for ab in range(2): F(f"v_add_f32 {Lc[ab][0]}, {Lc[ab][0]}, {Lc[ab][1]}")
    F("s_branch P2_FINISH")
    F("L_END:\ns_endpgm")
    probs += check_hazards(F.lines, "fb")
    A.ext(F.lines)
    for p_ in probs: print("PROBLEM", p_)
    launch = f"; @launch grid=(256,1,1) block=(256,1,1) lds=163840"
    return launch, A.text(), kdesc(NAME, 512, 256)

HDR = open("gated_mix__grouped_kv_mqa__glu_gated_reglu__prompt.s.ref").read().split("; Override launch")[0]
def build(opt=None):
    l, t, d = gen(opt)
    txt = HDR + l + "\n" + '.amdgcn_target "amdgcn-amd-amdhsa--gfx950"\n.text\n' + t + d
    if (opt or {}).get("touch", 2):
        import touch
        txt, pads = touch.apply(txt, NAME, [("P1_START", "P1_MID"), ("P1_MID", "P2_PRE"), ("P2_POLL_OK", (opt or {}).get("tend", "P3_FIN3")), ("P3_FIN3", "P1_SLOWN")][:1 + (opt or {}).get("touch", 2)], (opt or {}).get("tnl", 1), (opt or {}).get("talign", 0), (opt or {}).get("toff", 0x300))
    if (opt or {}).get("skip3"):
        import skip3
        txt = skip3.apply(txt, NAME, *opt["skip3"])
    return txt
if __name__ == "__main__":
    import sys, json
    out = sys.argv[1] if len(sys.argv) > 1 else "gated_mix__grouped_kv_mqa__glu_gated_reglu__prompt.s"
    opt = json.loads(sys.argv[2]) if len(sys.argv) > 2 else {}
    open(out, "w").write(build(opt))
```

```python
from asmlib import *
from common import *
LOG2E = math.log2(math.e)
NAME = "gated_mix__grouped_kv_mqa__glu_gated_reglu__prompt_kernel"

FL_E = 0x1650000
FL_ES = 4352
FL_Q = 0x1660000
FL_H = 0x1670000
FL_O = 0x1672000
SPIN_MAX = 1 << 20
PW = 7168

def put(f, g, x):
    f.setdefault(g, []).extend(x if isinstance(x, list) else [x])

def gen(opt=None):
    opt = opt or {}
    A = Asm()
    DEF = ["start", "p1", "p1end", "kvdone", "poll0", "poll1", "att", "attend", "tail"]
    tsn = opt.get("ts")
    ts = TSN(DEF if tsn == 1 else tsn, opt.get("tskind", "rt"))
    SC1 = "sc1"
    probs = []
    P_X, P_WQ, P_WK, P_WV, P_WO = 4, 6, 8, 10, 12
    P_WG, P_WU, P_WD, P_GW = 16, 18, 20, 22
    P_OUT, P_DBG, P_WS = 24, 26, 28
    S_WS, S_A, S_B, S_C, S_D, S_E = 32, 36, 40, 44, 48, 52
    sW, sNonce = 56, 57
    sT0, sT1, sT2, sT3 = 58, 59, 60, 61
    sIt, sRB, sCB = 62, 63, 64
    sL = 65
    vL, vL16 = Reg("v", 1, 1), Reg("v", 2, 1)
    def srd(b): return f"s[{b}:{b+3}]"

    A("""; LOCALQ AFS4
; (published in d_debug by workgroup 0); consumers poll the flags and read the data with sc1 loads.""")
    A(f".globl {NAME}\n.p2align 8\n.type {NAME},@function\n{NAME}:")
    A("s_cmp_ge_u32 s2, 256\ns_cbranch_scc1 L_END")
    A.ext(ts.at("start"))
    A(f"""s_load_dwordx8 s[4:11], s[0:1], 0
    s_load_dwordx2 s[12:13], s[0:1], 32
    s_load_dwordx8 s[16:23], s[0:1], 48
    s_load_dwordx4 s[24:27], s[0:1], 80
    s_load_dwordx2 s[28:29], s[0:1], 96
    s_memrealtime s[30:31]""")
    if opt.get("touch", 3): A("; @@ALIGN@@")
    A(f"""v_lshrrev_b32 v3, 6, v0
    v_and_b32 {vL}, 63, v0
    v_readfirstlane_b32 s{sW}, v3
    v_lshlrev_b32 {vL16}, 4, {vL}""")
    CPF = opt.get("cpf", 1) and not opt.get("trace")
    sPC = 100
    CB0 = "TA_AL" if opt.get("touch", 3) else NAME
    cpf = VM(f"global_load_dword a253, v0, s[{sPC}:{sPC+1}]", "CP")
    cpa = "v_add_u32 v0, 0x2000, v0"
    def cp(adv=True): return ([cpf] + ([cpa] if adv else [])) if CPF else []
    if CPF:
        A(f"""s_getpc_b64 s[{sPC}:{sPC+1}]
        L_PCREF:
        v_lshrrev_b32 v0, 2, v0
        v_lshlrev_b32 v0, 7, v0
        s_sub_u32 s{sPC}, s{sPC}, L_PCREF-{CB0}
        s_subb_u32 s{sPC+1}, s{sPC+1}, 0""")
        A.ext(cp())
        if opt.get("touch", 3):
            A(f"""v_lshrrev_b32 v4, 2, {vL}
            v_lshlrev_b32 v4, 12, v4
            v_add_u32 v4, {'0x1000' if opt.get('talign', 0) else '0x1000-%d-(TA_AL-%s)' % (opt.get('toff', 0x300), NAME)}, v4
            global_load_dword a254, v4, s[{sPC}:{sPC+1}]""")

    if opt.get("ticket", 0):
        A(f"""s_getreg_b32 s{sT0}, hwreg(HW_REG_XCC_ID)
        s_and_b32 s{sT0}, s{sT0}, 7
        s_cmp_lg_u32 s{sW}, 0
        s_cbranch_scc1 L_TKWAIT
        v_mov_b32 v5, 0
        s_mov_b32 s{sT1}, 8
        s_mov_b32 s{S_WS+2}, 256
        s_mov_b32 s{S_WS+3}, 0x20000
        s_waitcnt lgkmcnt(0)
        s_mov_b32 s{S_WS}, s{P_DBG}
        s_mov_b32 s{S_WS+1}, s{P_DBG+1}
        s_mov_b64 exec, 1
        L_TKTRY:
        v_mov_b32 v4, 1
        s_lshl_b32 s{sT2}, s{sT0}, 5
        buffer_atomic_add v4, v5, {srd(S_WS)}, s{sT2} offen offset:4 sc0
        s_waitcnt vmcnt(0)
        v_readfirstlane_b32 s{sT2}, v4
        s_cmp_lt_u32 s{sT2}, 32
        s_cbranch_scc1 L_TKGOT
        s_add_u32 s{sT0}, s{sT0}, 1
        s_and_b32 s{sT0}, s{sT0}, 7
        s_sub_u32 s{sT1}, s{sT1}, 1
        s_cmp_lg_u32 s{sT1}, 0
        s_cbranch_scc1 L_TKTRY
        s_mov_b32 s{sT2}, 32
        L_TKGOT:
        s_lshl_b32 s{sT2}, s{sT2}, 3
        s_add_u32 s{sT2}, s{sT2}, s{sT0}
        v_mov_b32 v4, s{sT2}
        ds_write_b32 v5, v4
        s_mov_b64 exec, -1
        s_waitcnt lgkmcnt(0)
        L_TKWAIT:
        v_mov_b32 v5, 0
        s_barrier
        ds_read_b32 v4, v5
        s_waitcnt lgkmcnt(0)
        v_readfirstlane_b32 s2, v4
        s_barrier
        s_cmp_ge_u32 s2, 256
        s_cbranch_scc1 L_END""")
    trace = opt.get("trace")
    def tr_issue(): return ["s_memrealtime s[100:101]"] if trace else []
    def tr_commit(): return ["s_lshl_b64 exec, 1, s81", "v_mov_b32 v0, s100", "s_mov_b64 exec, -1", "s_add_u32 s81, s81, 1"] if trace else []
    if trace: A("s_mov_b32 s81, 0\nv_mov_b32 v0, 0\ns_memrealtime s[100:101]\ns_waitcnt lgkmcnt(0)"); A.ext(tr_commit())
    S_X, S_W0, S_W1, S_KV, S_Wb = S_A, S_B, S_C, S_D, S_E
    sSoX = sL - 1
    sSo0 = sL + 7
    sSo1 = sL + 7
    sM0X, sM0W, sM0K, sWwr = sL + 11, sL + 12, sL + 13, sL + 14
    sWrd, s16k, sStep1, sSa, sSc, sIsB, sKVst, sEfl = 14, 30, 15, 3, 31, 9, 10, 11
    XB, WB, KR = 0, 65536, 147456
    vXo = [3, 4]; vWo0, vWo1, vKo, vSXo = 5, 6, 7, 8
    vXa = [9, 10]; vW0a = [[11 + 2*i, 12 + 2*i] for i in range(4)]; vW1a = [19, 20, 21, 22]; vSWa = 23
    vT = 24
    acc = [[None]*8 for _ in range(8)]
    p = 32
    for i in range(7):
        for j in range(8):
            acc[i][j] = Reg("v", p, 4); p += 4
    RA = [[Reg("a", 64*s + 4*i, 4) for i in range(8)] for s in range(2)]
    RB = [[Reg("a", 64*s + 32 + 4*j, 4) for j in range(8)] for s in range(2)]
    SA = [Reg("a", 128 + 4*s, 4) for s in range(2)]
    sacc = Reg("a", 144, 4)
    for j in range(8): acc[7][j] = Reg("a", 148 + 4*j, 4)
    SXB = [[Reg("a", 180 + 8*b + 4*j, 4) for j in range(2)] for b in range(2)]
    GXa = [Reg("a", 196 + 8*r, 8) for r in range(2)]
    GWa = Reg("a", 212, 8)
    t0, t1, t2, t3, t4, t5, t6, t7 = range(vT, vT + 8)
    HUGE = 0x40000000
    KP = opt.get("kp", [0, 1, 2, 4, 5, 6, 7, 8, 9, 10, 12, 13, 14, 15, 3, 11])
    sCWa, sCWb = 6, 7

    A(f"""s_and_b32 s{sT0}, s2, 1
    s_lshl_b32 s{sT0}, s{sT0}, 2
    s_bfe_u32 s{sT1}, s2, 0x20003
    s_add_u32 s{sRB}, s{sT0}, s{sT1}
    s_bfe_u32 s{sT0}, s2, 0x20001
    s_lshl_b32 s{sT0}, s{sT0}, 3
    s_lshr_b32 s{sT1}, s2, 5
    s_add_u32 s{sCB}, s{sT0}, s{sT1}""")
    A(f"""s_lshl_b32 s{sT0}, s{sW}, 6
    v_lshrrev_b32 v{t0}, 3, {vL}
    v_add_u32 v{t2}, s{sT0}, v{t0}
    v_lshlrev_b32 v{t2}, 11, v{t2}
    v_lshrrev_b32 v{t1}, 4, {vL}
    v_and_b32 v{t3}, 7, {vL}
    v_xor_b32 v{t4}, v{t3}, v{t1}
    v_lshl_add_u32 v{vXo[0]}, v{t4}, 4, v{t2}
    v_add_u32 v{vXo[0]}, {KP[0]*128}, v{vXo[0]}
    v_xor_b32 v{vXo[1]}, 64, v{vXo[0]}""")
    for e in range(1, 8): A(f"s_mov_b32 s{sSoX+e}, {e*16384 - (e&3)*1024}")
    A(f"""s_lshl_b32 s{sM0X}, s{sW}, 13
    s_lshl_b32 s{sM0W}, s{sW}, 11
    s_add_u32 s{sM0K}, s{sM0W}, {KR}
    s_add_u32 s{sM0W}, s{sM0W}, {WB}
    s_and_b32 s{sT1}, s{sCB}, 3
    s_mov_b32 s{sStep1}, {PW}
    s_cmp_eq_u32 s{sT1}, 3
    s_cselect_b32 s{sStep1}, 2048, s{sStep1}""")
    A(f"""s_lshl_b32 s{sT0}, s{sW}, 3
    v_add_u32 v{t2}, s{sT0}, v{t1}
    v_mul_lo_u32 v{t2}, v{t2}, s{sStep1}
    s_and_b32 s{sT1}, s{sW}, 1
    s_lshl_b32 s{sT2}, s{sT1}, 3
    v_and_b32 v{t4}, 15, {vL}
    v_lshl_or_b32 v{t5}, v{t1}, 1, s{sT2}
    v_xor_b32 v{t4}, v{t4}, v{t5}
    v_lshl_add_u32 v{vWo1}, v{t4}, 4, v{t2}
    v_add_u32 v{t2}, s{sT0}, v{t0}
    v_mul_u32_u24 v{t2}, {PW}, v{t2}
    s_lshl_b32 s{sT2}, s{sT1}, 2
    v_and_b32 v{t4}, 1, v{t1}
    v_lshl_or_b32 v{t4}, v{t4}, 1, s{sT2}
    v_xor_b32 v{t4}, v{t4}, v{t3}
    v_lshl_add_u32 v{vWo0}, v{t4}, 4, v{t2}""")
    A.ext(ts.at("a0"))
    A("s_waitcnt lgkmcnt(0)")
    A.ext(ts.at("a1"))
    A(f"""s_lshl_b32 s{sT0}, s{sRB}, 19
    s_add_u32 s{S_X}, s{P_X}, s{sT0}
    s_addc_u32 s{S_X+1}, s{P_X+1}, 0
    s_mov_b32 s{S_X+2}, 0x80000
    s_mov_b32 s{S_X+3}, 0x20000""")
    A(f"""s_mov_b32 s{S_WS+3}, 0x20000
    s_or_b32 s{sT0}, s2, s{sW}
    s_cmp_lg_u32 s{sT0}, 0
    s_cbranch_scc1 P1_NONONCE
    s_or_b32 s30, s30, 1
    s_mov_b32 s{S_WS}, s{P_DBG}
    s_mov_b32 s{S_WS+1}, s{P_DBG+1}
    s_mov_b32 s{S_WS+2}, 256
    v_mov_b32 v{t6}, s30
    v_mov_b32 v{t7}, 0
    s_mov_b64 exec, 1
    buffer_store_dword v{t6}, v{t7}, {srd(S_WS)}, 0 offen sc1
    s_mov_b64 exec, -1
    P1_NONONCE:""")
    WNT = opt.get("wnt", "")
    def xdma(par):
        sl = []
        for e in range(8):
            pre = []
            if e == 0: pre = [f"s_add_u32 m0, s{sM0X}, {par}"]
            if e == 4: pre = ["s_add_u32 m0, m0, 4096"]
            so = "0" if e == 0 else f"s{sSoX+e}"
            sl.append((pre, VM(f"buffer_load_dwordx4 v{vXo[e&1]}, {srd(S_X)}, {so} offen offset:{(e&3)*1024} {opt.get('xnt', '')} lds", "X")))
        return sl
    def wdma(hb, slot):
        so0 = "0" if hb == 0 else f"s{sSo0}"
        so1 = ["0" if hb == 0 else f"s{sSo1+2}", f"s{sSo1 + 1 + 2*hb}"]
        return [([f"s_add_u32 m0, s{sM0W}, {slot}"], VM(f"buffer_load_dwordx4 v{vWo0}, {srd(S_W0)}, {so0} offen {WNT} lds", "W")),
                ([], VM(f"buffer_load_dwordx4 v{vWo0}, {srd(S_Wb)}, {so0} offen offset:1024 {WNT} lds", "W")),
                (["s_add_u32 m0, m0, 40960"], VM(f"buffer_load_dwordx4 v{vWo1}, {srd(S_W1)}, {so1[0]} offen {WNT} lds", "W")),
                ([], VM(f"buffer_load_dwordx4 v{vWo1}, {srd(S_W1)}, {so1[1]} offen offset:1024 {WNT} lds", "W"))]
    def kdma(slot):
        return [([f"s_add_u32 m0, s{sM0K}, {slot}"], VM(f"buffer_load_dwordx4 v{vKo}, {srd(S_KV)}, 0 offen lds", "X")),
                ([], VM(f"buffer_load_dwordx4 v{vKo}, {srd(S_KV)}, 0 offen offset:1024 lds", "X"))]
    def sxload(b): return [VM(f"buffer_load_dwordx4 {SXB[b][j]}, v{vSXo}, {srd(S_X)}, 0 offen offset:{j*64}", "SX") for j in range(2)]
    def emit_dma(X, sl):
        for pre, d in sl:
            X.ext(pre)
            if pre: X("s_nop 0")
            X(d)
    emit_dma(A, xdma(0))
    A.ext(ts.at("a2"))
    A(f"""s_lshr_b32 s{sT0}, s{sCB}, 2
    s_and_b32 s{sT1}, s{sCB}, 3
    s_mul_i32 s{sT2}, s{sT0}, 896
    s_lshl_b32 s{sT3}, s{sT1}, 8
    s_add_u32 s{sT2}, s{sT2}, s{sT3}
    s_add_u32 s{S_W0}, s{P_WG}, s{sT2}
    s_addc_u32 s{S_W0+1}, s{P_WG+1}, 0
    s_sub_u32 s{S_W0+2}, {1024*PW}, s{sT2}
    s_mov_b32 s{S_W0+3}, 0x20000
    s_mov_b32 s{S_W1+3}, 0x20000
    s_mov_b32 s{S_Wb+3}, 0x20000
    s_mov_b32 s{sSo0}, {32*PW}
    s_cmp_eq_u32 s{sT1}, 3
    s_cbranch_scc1 P1_SRDB
    s_add_u32 s{S_Wb}, s{S_W0}, {4*PW - 1024}
    s_addc_u32 s{S_Wb+1}, s{S_W0+1}, 0
    s_sub_u32 s{S_Wb+2}, s{S_W0+2}, {4*PW - 1024}
    s_add_u32 s{S_W1}, s{P_WU}, s{sT2}
    s_addc_u32 s{S_W1+1}, s{P_WU+1}, 0
    s_mov_b32 s{S_W1+2}, s{S_W0+2}
    v_mov_b32 v{vWo0}, v{vWo1}
    s_branch P1_SRDD
    P1_SRDB:
    s_add_u32 s{S_Wb}, s{P_WU}, s{sT2}
    s_addc_u32 s{S_Wb+1}, s{P_WU+1}, 0
    s_sub_u32 s{S_Wb}, s{S_Wb}, 1024
    s_subb_u32 s{S_Wb+1}, s{S_Wb+1}, 0
    s_add_u32 s{S_Wb+2}, s{S_W0+2}, 1024
    s_lshl_b32 s{sT0}, s{sT0}, 8
    s_add_u32 s{S_W1}, s{P_WQ}, s{sT0}
    s_addc_u32 s{S_W1+1}, s{P_WQ+1}, 0
    s_sub_u32 s{S_W1+2}, {1024*2048}, s{sT0}
    P1_SRDD:
    s_lshl_b32 s{sSo1+1}, s{sStep1}, 2
    s_sub_u32 s{sSo1+1}, s{sSo1+1}, 1024
    s_lshl_b32 s{sSo1+2}, s{sStep1}, 5
    s_add_u32 s{sSo1+3}, s{sSo1+2}, s{sSo1+1}
    s_lshl_b32 s{sStep1}, s{sStep1}, 6""")
    def advXf(a, b):
        d = (KP[b] - KP[a]) * 128 & 0xffffffff
        return [f"v_add_u32 v{vXo[0]}, {d:#x}, v{vXo[0]}", f"v_add_u32 v{vXo[1]}, {d:#x}, v{vXo[1]}"]
    def advWf(a, b):
        d = KP[b] - KP[a]
        if d == 1: return [f"v_add_u32 v{vWo0}, {64*PW}, v{vWo0}", f"v_add_u32 v{vWo1}, s{sStep1}, v{vWo1}"]
        return [f"v_add_u32 v{vWo0}, {d*64*PW & 0xffffffff:#x}, v{vWo0}", f"s_mul_i32 s{sT3}, s{sStep1}, {d}\nv_add_u32 v{vWo1}, s{sT3}, v{vWo1}"]
    if KP[0]:
        A(f"""v_add_u32 v{vWo0}, {KP[0]*64*PW}, v{vWo0}
        s_mul_i32 s{sT3}, s{sStep1}, {KP[0]}
        v_add_u32 v{vWo1}, s{sT3}, v{vWo1}""")
    advK = f"v_add_u32 v{vKo}, 4096, v{vKo}"
    advS = f"v_add_u32 v{vSXo}, 128, v{vSXo}"
    emit_dma(A, wdma(0, 0)); emit_dma(A, wdma(1, 8192))
    A.ext(advXf(0, 1) + advWf(0, 1))
    A(f"""s_bfe_u32 s{sT0}, s{sCB}, 0x10001
    s_and_b32 s{sT1}, s{sW}, 1
    s_bitcmp1_b32 s{sCB}, 0
    s_cselect_b32 s{S_KV}, s{P_WV}, s{P_WK}
    s_cselect_b32 s{S_KV+1}, s{P_WV+1}, s{P_WK+1}
    s_cselect_b32 s{sSa}, s{sT1}, s{sT0}
    s_cselect_b32 s{sSc}, s{sT0}, s{sT1}
    s_mov_b32 s{S_KV+2}, 65536
    s_mov_b32 s{S_KV+3}, 0x20000
    s_and_b32 s{sIsB}, s{sCB}, 3
    s_cmp_eq_u32 s{sIsB}, 3
    s_cselect_b32 s{sIsB}, 1, 0
    v_lshrrev_b32 v{t2}, 5, {vL}
    v_lshlrev_b32 v{t2}, 1, v{t2}
    v_xor_b32 v{t2}, v{t2}, {vL}
    v_lshlrev_b32 v{t2}, 4, v{t2}
    s_lshr_b32 s{sT2}, s{sW}, 1
    s_lshl_b32 s{sT0}, s{sT2}, 15
    s_lshl_b32 s{sT1}, s{sT1}, 11
    s_add_u32 s{sT0}, s{sT0}, s{sT1}
    v_add_u32 v{vKo}, s{sT0}, v{t2}
    s_lshr_b32 s{sT0}, s{sCB}, 2
    s_lshl_b32 s{sT0}, s{sT0}, 1
    s_add_u32 s{sT0}, s{sT0}, s{sSa}
    s_lshl_b32 s{sT0}, s{sT0}, 15
    s_lshl_b32 s{sT2}, s{sT2}, 10
    s_add_u32 s{sT0}, s{sT0}, s{sT2}
    v_and_b32 v{t2}, 15, {vL}
    v_lshlrev_b32 v{t2}, 11, v{t2}
    v_lshl_add_u32 v{t2}, v{t1}, 4, v{t2}
    v_add_u32 v{vSXo}, s{sT0}, v{t2}""")
    emit_dma(A, kdma(0)); A.ext(sxload(0)); A(advK); A(advS)
    A(f"""s_mov_b32 s{S_WS}, s{P_WS}
    s_mov_b32 s{S_WS+1}, s{P_WS+1}
    s_mov_b32 s{S_WS+2}, {WS_USED}""")
    A.ext(ts.at("a3"))
    second = xdma(32768) + wdma(0, 2*8192) + kdma(8192) + wdma(1, 3*8192)
    A(f"""v_and_b32 v{t0}, 15, {vL}
    v_lshrrev_b32 v{t2}, 1, v{t0}
    v_xor_b32 v{t2}, v{t2}, v{t1}
    v_lshlrev_b32 v{t2}, 4, v{t2}
    v_lshl_add_u32 v{t2}, v{t0}, 7, v{t2}
    s_lshr_b32 s{sT0}, s{sW}, 1
    s_lshl_b32 s{sT1}, s{sT0}, 14
    v_add_u32 v{vXa[0]}, s{sT1}, v{t2}
    v_xor_b32 v{vXa[1]}, 64, v{vXa[0]}
    v_bfe_u32 v{t0}, {vL}, 2, 2
    v_lshl_add_u32 v{t2}, v{t1}, 3, v{t0}
    v_and_b32 v{t3}, 1, v{t1}
    v_lshl_or_b32 v{t5}, v{t3}, 2, v{t0}
    v_and_b32 v{t4}, 3, {vL}
    v_lshlrev_b32 v{t4}, 3, v{t4}
    v_lshl_add_u32 v{t6}, v{t2}, 8, v{t4}
    v_add_u32 v{t6}, {WB + 40960}, v{t6}
    s_and_b32 s{sT0}, s{sW}, 1
    s_lshl_b32 s{sT1}, s{sT0}, 2""")
    for ii in range(4):
        A(f"""s_add_u32 s{sT2}, s{sT1}, {ii}
        v_xor_b32 v{t7}, s{sT2}, v{t5}
        v_lshl_add_u32 v{vW1a[ii]}, v{t7}, 5, v{t6}""")
    A(f"""v_lshl_add_u32 v{t2}, v{t2}, 6, v{t4}
    v_xor_b32 v{t7}, s{sSc}, v{t3}
    v_lshl_add_u32 v{t7}, v{t7}, 5, v{t2}
    s_lshr_b32 s{sT2}, s{sW}, 1
    s_lshl_b32 s{sT2}, s{sT2}, 12
    s_add_u32 s{sT2}, s{sT2}, {KR}
    v_add_u32 v{vSWa}, s{sT2}, v{t7}
    s_mov_b32 s{s16k}, 16384
    s_cmp_eq_u32 s{sIsB}, 1
    s_cbranch_scc1 P1_ADB""")
    for ii in range(4):
        A(f"v_subrev_u32 v{vW0a[ii][0]}, 40960, v{vW1a[ii]}\nv_subrev_u32 v{vW0a[ii][1]}, {40960 - 1024}, v{vW1a[ii]}")
    A(f"""s_branch P1_ADD
    P1_ADB:
    v_lshl_add_u32 v{t4}, v{t1}, 11, v{t4}
    v_lshl_add_u32 v{t4}, v{t0}, 7, v{t4}
    v_add_u32 v{t4}, {WB}, v{t4}
    v_lshrrev_b32 v{t0}, 1, v{t0}
    v_lshl_or_b32 v{t0}, v{t3}, 1, v{t0}
    s_lshl_b32 s{sT1}, s{sT0}, 1""")
    for k in range(2):
        A(f"""s_add_u32 s{sT2}, s{sT1}, {k}
        v_xor_b32 v{t7}, s{sT2}, v{t0}
        v_lshl_add_u32 v{vW0a[k][0]}, v{t7}, 5, v{t4}
        v_add_u32 v{vW0a[k][1]}, 512, v{vW0a[k][0]}
        v_add_u32 v{vW0a[2+k][0]}, 1024, v{vW0a[k][0]}
        v_add_u32 v{vW0a[2+k][1]}, 1536, v{vW0a[k][0]}""")
    A("P1_ADD:")
    A("; @@PRE@@")
    PF = opt.get("pf", 1)
    Z = []
    for i in range(8):
        for j in range(8):
            for r in range(4):
                a = acc[i][j][r]
                Z.append(f"v_mov_b32 {a}, 0" if a.f == "v" else f"v_accvgpr_write_b32 {a}, 0")
    for r in range(4): Z.append(f"v_accvgpr_write_b32 {sacc[r]}, 0")
    TCH = opt.get("touch", 3)
    PEEL = opt.get("peel", 0)
    NPRE = opt.get("npre", 0)
    if not PEEL:
        per = len(Z) // len(second)
        for k, (pre, d) in enumerate(second):
            A.ext(pre); A.ext(Z[k*per:(k+1)*per]); A(d)
            if k == opt.get("tk", [3, 11])[0] and TCH: A(f"; @@TOUCH x 0 s{sW}\nP1_G0:")
            if k == opt.get("tk", [3, 11])[1] and TCH and not opt.get("t1s", 6): A(f"; @@TOUCH x 1 s{sW}")
        A.ext(Z[len(second)*per:])
        A.ext(advXf(1, 2) + advWf(1, 2) + [advK])
    else:
        emit_dma(A, second[:NPRE])

    def reads(t, s, side):
        b = t & 1; xo = ((t >> 1) & 1)*32768; wo = (t % 5)*8192; ko = ((t >> 1) & 1)*8192
        L = [f"ds_read_b128 {RB[s][j]}, v{vXa[b]} offset:{xo + j*2048}" for j in range(8)]
        for i in range(8):
            for hf in range(2):
                if i < 4: L.append(f"ds_read_b64_tr_b16 {RA[s][i].sub(2*hf, 2)}, v{vW0a[i][hf]} offset:{wo}")
                else: L.append(f"ds_read_b64_tr_b16 {RA[s][i].sub(2*hf, 2)}, v{vW1a[i-4]} offset:{wo + hf*1024}")
        if side:
            for hf in range(2):
                L.append(f"ds_read_b64_tr_b16 {SA[s].sub(2*hf, 2)}, v{vSWa} offset:{ko + b*2048 + hf*256}")
        return L
    def mfmas(s, side=None, zero=False):
        L = []
        for i in range(8):
            js = range(8) if i % 2 == 0 else range(7, -1, -1)
            for j in js:
                L.append(f"v_mfma_f32_16x16x32_bf16 {acc[i][j]}, {RA[s][i]}, {RB[s][j]}, {0 if zero else acc[i][j]}")
            if side is not None and i == 3:
                L.append(f"v_mfma_f32_16x16x32_bf16 {sacc}, {SA[s]}, {SXB[side][s]}, {0 if zero else sacc}")
        return L
    IPF = opt.get("ipf", 0)
    npf = 0
    if IPF:
        assert KP[2:6] == [2, 4, 5, 6]
        A(f"""v_lshrrev_b32 v{t0}, 3, {vL}
        v_cmp_lt_u32 vcc, 0, v{t0}
        v_add_u32 v{t1}, 2, v{t0}
        v_and_b32 v{t2}, 7, {vL}
        v_addc_co_u32 v{t1}, vcc, 0, v{t1}, vcc
        v_cmp_gt_u32 vcc, {IPF}, v{t0}
        s_and_b32 s{sT0}, s{sCB}, 7
        s_lshl_b32 s{sT0}, s{sT0}, 2
        s_add_u32 s{sT0}, s{sT0}, s{sW}
        s_lshl_b32 s{sT0}, s{sT0}, 3
        v_add_u32 v{t3}, s{sT0}, v{t2}
        v_lshlrev_b32 v{t3}, 11, v{t3}
        v_lshl_add_u32 v{t3}, v{t1}, 7, v{t3}
        v_mov_b32 v{t6}, {HUGE}
        v_cndmask_b32 v{t3}, v{t6}, v{t3}, vcc
        buffer_load_dword a252, v{t3}, {srd(S_X)}, 0 offen
        s_and_b32 s{sT0}, s{sRB}, 3
        s_lshl_b32 s{sT0}, s{sT0}, 2
        s_add_u32 s{sT0}, s{sT0}, s{sW}
        s_lshl_b32 s{sT0}, s{sT0}, 2
        v_lshrrev_b32 v{t4}, 1, v{t2}
        v_lshl_add_u32 v{t4}, v{t1}, 6, v{t4}
        v_add_u32 v{t4}, s{sT0}, v{t4}
        v_and_b32 v{t2}, 1, v{t2}
        v_lshlrev_b32 v{t2}, 7, v{t2}
        v_mul_u32_u24 v{t5}, {PW}, v{t4}
        v_add_u32 v{t5}, v{t5}, v{t2}
        v_cndmask_b32 v{t5}, v{t6}, v{t5}, vcc
        buffer_load_dword a254, v{t5}, {srd(S_W0)}, 0 offen
        s_lshr_b32 s{sT0}, s{sStep1}, 6
        v_mul_lo_u32 v{t5}, v{t4}, s{sT0}
        v_add_u32 v{t5}, v{t5}, v{t2}
        v_cndmask_b32 v{t5}, v{t6}, v{t5}, vcc
        buffer_load_dword a255, v{t5}, {srd(S_W1)}, 0 offen""")
        npf = 3
    A("P1_START:")
    A.ext(ts.at("a4"))
    A(f"s_waitcnt vmcnt({len(second) + npf}) lgkmcnt(0)")
    A.ext(ts.at("a5"))
    A("s_barrier")
    A.ext(reads(0, 0, True))
    A("s_waitcnt lgkmcnt(0)\ns_barrier")
    A.ext(ts.at("p1"))
    if ts.on: A("s_waitcnt lgkmcnt(0)")
    pro_hist = list(A.lines)

    NOB1 = opt.get("nob1", 0)
    def step(st, hook=None, cpl=False):
        out = []
        sd = st < 8; side = st & 1 if sd else None
        dma = st < 14; last = st == 15
        n = 65 if sd else 64
        BG = n - opt.get('bgo', 4)
        f = {}
        for k, r in enumerate(reads(2*st + 1, 1, sd)): put(f, 2*k, r)
        if dma:
            dg = opt.get('dgw', [1, 9, 17, 25, 33, 39, 47, 55]) if not (st < 7) else [13, 19, 25, 31, 37, 43, 49, 55]
            wl = wdma(0, ((2*st + 4) % 5)*8192) + ([] if NOB1 else wdma(1, ((2*st + 5) % 5)*8192))
            if NOB1: dg = [13, 27, 41, 55]
            for k, (pre, d) in enumerate(wl):
                if pre: put(f, dg[k] - 1, pre)
                put(f, dg[k], d)
            if st < 13 and not NOB1: put(f, 57, advWf(st + 2, st + 3)[0]); put(f, 58, advWf(st + 2, st + 3)[1])
        if st < 7:
            for k, l in enumerate(sxload(side ^ 1)): put(f, [1, 7][k], l)
            put(f, 9, advS)
        if cpl and CPF: put(f, opt.get('cpgap', 3), cpf); put(f, opt.get('cpgap', 3) + 3, cpa)
        if hook: hook(0, f, BG)
        put(f, BG, [Need(["X"], "lgkmcnt(0)") if not last else "s_waitcnt lgkmcnt(0)", "s_barrier"])
        out += interleave(mfmas(0, side), f)
        if last: return out + tr_issue() + (["s_waitcnt lgkmcnt(0)"] if trace else []) + tr_commit()
        f = {}
        for k, r in enumerate(reads(2*st + 2, 0, st < 7)): put(f, 2*k, r)
        if dma:
            kv = st < 6
            dl = ((kdma((st & 1)*8192) if kv else []) + xdma((st & 1)*32768)) if not opt.get('xfirst') else (xdma((st & 1)*32768) + (kdma((st & 1)*8192) if kv else []))
            dg = opt.get('dgk', [1, 7, 13, 19, 25, 31, 37, 43, 49, 55]) if kv else opt.get('dgx', [1, 9, 17, 25, 33, 41, 47, 55])
            if NOB1:
                dl = wdma(1, ((2*st + 5) % 5)*8192) + dl
                dg = [1 + 2*((k * 28) // len(dl)) for k in range(len(dl))]
                if st < 13: put(f, 30, advWf(st + 2, st + 3)[0]); put(f, 32, advWf(st + 2, st + 3)[1])
            for k, (pre, d) in enumerate(dl):
                if pre: put(f, dg[k] - 1, pre)
                put(f, dg[k], d)
            if st < 13: put(f, 57, advXf(st + 2, st + 3)[0]); put(f, 59, advXf(st + 2, st + 3)[1])
            if kv: put(f, 58 if (opt.get('xfirst') or NOB1) else 9, advK)
        if hook: hook(1, f, BG)
        put(f, BG - 3, tr_issue())
        put(f, BG, [Need(["SX"], "lgkmcnt(0)") if st < 7 else "s_waitcnt lgkmcnt(0)"] + (["s_barrier"] if (not NOB1 or st == 8) else []) + tr_commit())
        out += interleave(mfmas(1, side), f)
        return out

    vN, vZ, vKA, vFA = t0, t1, t2, t3
    u = 28
    nload = f"buffer_load_dword v{vN}, v{vZ}, {srd(S_KV)}, 0 offen sc1"
    dbgsrd = [f"s_mov_b32 s{S_KV}, s{P_DBG}", f"s_mov_b32 s{S_KV+1}, s{P_DBG+1}", f"s_mov_b32 s{S_KV+2}, 256", f"v_mov_b32 v{vZ}, 0"]
    PSC = KR + 4096
    kvK = f"""v_bfe_u32 v{vKA}, {vL}, 3, 1
    v_lshlrev_b32 v{vKA}, 4, v{vKA}
    v_and_b32 v{vFA}, 7, {vL}
    v_add_u32 v{vKA}, v{vKA}, v{vFA}
    v_bfe_u32 v{vFA}, {vL}, 4, 1
    v_lshl_add_u32 v{vKA}, v{vFA}, 5, v{vKA}
    v_lshlrev_b32 v{vKA}, 4, v{vKA}
    v_lshrrev_b32 v{vFA}, 5, {vL}
    v_lshl_add_u32 v{vKA}, v{vFA}, 10, v{vKA}
    s_lshl_b32 s{sKVst}, s{sSa}, 7
    s_lshl_b32 s{sEfl}, s{sSc}, 3""".split("\n")
    kvV = f"""v_lshrrev_b32 v{vKA}, 5, {vL}
    v_lshlrev_b32 v{vKA}, 4, v{vKA}
    v_bfe_u32 v{vFA}, {vL}, 4, 1
    v_lshl_add_u32 v{vKA}, v{vFA}, 2, v{vKA}
    v_bfe_u32 v{vFA}, {vL}, 2, 1
    v_lshl_add_u32 v{vKA}, v{vFA}, 5, v{vKA}
    v_lshlrev_b32 v{vKA}, 4, v{vKA}
    v_bfe_u32 v{vFA}, {vL}, 3, 1
    v_lshl_add_u32 v{vKA}, v{vFA}, 10, v{vKA}
    v_and_b32 v{vFA}, 3, {vL}
    v_lshl_add_u32 v{vKA}, v{vFA}, 1, v{vKA}
    s_lshl_b32 s{sKVst}, s{sSc}, 7
    s_lshl_b32 s{sEfl}, s{sSa}, 3""".split("\n")
    kvaddr = [f"s_bitcmp1_b32 s{sCB}, 0", "s_cbranch_scc1 P1_KVAV"] + [l.strip() for l in kvK] + ["s_branch P1_KVAD", "P1_KVAV:"] + [l.strip() for l in kvV] + ["P1_KVAD:",
              f"s_add_u32 s{sKVst}, s{sKVst}, s{sEfl}", f"s_add_u32 s{sKVst}, s{sKVst}, {KR}", f"v_add_u32 v{vKA}, s{sKVst}, v{vKA}"]
    kvwr = [f"s_bitcmp1_b32 s{sCB}, 0", "s_cbranch_scc0 P1_KVWK", f"ds_write_b16 v{vKA}, v{u}", f"ds_write_b16_d16_hi v{vKA}, v{u} offset:16",
            f"ds_write_b16 v{vKA}, v{u+1} offset:32", f"ds_write_b16_d16_hi v{vKA}, v{u+1} offset:48", "s_branch P1_KVWD", "P1_KVWK:",
            f"ds_write_b64 v{vKA}, v[{u}:{u+1}]", "P1_KVWD:"]
    vP = vSXo
    KT = Reg("a", 128, 4); PT = Reg("a", 132, 4)
    QPOLL = opt.get("qpoll", 0)
    CW = opt.get("cw", 1)
    CA, CB = Reg("a", 136, 4), Reg("a", 140, 4)
    vDA, vDB = vSWa, vKo
    pre = list(kvaddr)
    if CW:
        pre += f"""s_lshl_b32 s{sT2}, s2, 2
        s_add_u32 s{sT2}, s{sT2}, s{sW}
        s_mul_i32 s{sT3}, s{sT2}, 7
        v_lshrrev_b32 v24, 3, {vL}
        v_and_b32 v25, 7, {vL}
        v_lshlrev_b32 v25, 4, v25
        v_add_u32 v27, s{sT3}, v24
        v_and_b32 v31, 1, v27
        v_lshrrev_b32 v27, 1, v27
        v_lshl_add_u32 v29, v27, 8, v25
        v_mul_u32_u24 v30, {CW_SZ}, v31
        v_add_u32 v29, v29, v30
        v_add_u32 v29, {CW_OFF}, v29
        v_lshl_add_u32 v27, v27, 11, v25
        v_lshl_add_u32 v27, v31, 10, v27
        v_cmp_gt_u32 vcc, 56, {vL}
        v_mov_b32 v31, {HUGE}
        v_add_u32 v27, 384, v27
        v_cndmask_b32 v27, v31, v27, vcc
        v_cndmask_b32 v29, v31, v29, vcc
        v_mul_u32_u24 v30, {CW_SZ}, v24
        v_add_u32 v30, v30, v25
        s_lshl_b32 s{sT3}, s{sT2}, 8
        s_add_u32 s{sT3}, s{sT3}, {CW_OFF + 3584*256}
        v_add_u32 v30, s{sT3}, v30
        v_lshl_add_u32 v28, v24, 10, v25
        s_lshl_b32 s{sT3}, s{sT2}, 11
        s_add_u32 s{sT3}, s{sT3}, 384
        v_cmp_gt_u32 vcc, 16, {vL}
        v_add_u32 v28, s{sT3}, v28
        s_nop 0
        v_cndmask_b32 v28, v31, v28, vcc
        v_cndmask_b32 v30, v31, v30, vcc""".split("\n")
    pre = [l.strip() if type(l) is str else l for l in pre]
    k_ = A.lines.index("; @@PRE@@"); A.lines[k_:k_ + 1] = pre
    def hookS6(ph, f, BG):
        if ph == 0 and CW:
            put(f, 2, f"s_mov_b32 s{S_KV}, s{P_WD}"); put(f, 3, [f"s_mov_b32 s{S_KV+1}, s{P_WD+1}", f"s_mov_b32 s{S_KV+2}, {3584*2048}"])
            put(f, 5, VM(f"buffer_load_dwordx4 {CA}, v27, {srd(S_KV)}, 0 offen", "CL"))
            put(f, 6, f"s_mov_b32 s{S_KV}, s{P_WO}"); put(f, 8, f"s_mov_b32 s{S_KV+1}, s{P_WO+1}"); put(f, 10, f"s_mov_b32 s{S_KV+2}, {1024*2048}")
            put(f, 11, VM(f"buffer_load_dwordx4 {CB}, v28, {srd(S_KV)}, 0 offen", "CL"))
    def hookS7(ph, f, BG):
        if ph == 1 and CW:
            put(f, 5, [Need(["CL"]), VM(f"buffer_store_dwordx4 {CA}, v29, {srd(S_WS)}, 0 offen {SC1}", "CS")])
            put(f, 13, VM(f"buffer_store_dwordx4 {CB}, v30, {srd(S_WS)}, 0 offen {SC1}", "CS"))
    def hookS8(ph, f, BG):
        if ph == 0 and QPOLL:
            for r in range(4): put(f, 2 + r, f"v_mov_b32 v{u+r}, -1")
            put(f, 5, [f"s_lshl_b32 s{sKVst}, s{sRB}, 5", f"s_add_u32 s{sKVst}, s{sKVst}, s{sCB}", f"s_lshl_b32 s{sKVst}, s{sKVst}, 2"])
            put(f, 7, [f"s_add_u32 s{sKVst}, s{sKVst}, s{sW}", f"s_lshl_b32 s{sKVst}, s{sKVst}, 12", f"s_add_u32 s{sKVst}, s{sKVst}, {QF4_OFF}"])
            for r in range(4): put(f, [13, 15, 21, 23][r], VM(f"buffer_store_dwordx4 v[{u}:{u+3}], {vL16}, {srd(S_WS)}, s{sKVst} offen offset:{r*1024} {SC1}", "QP"))
        if ph == 0:
            for k, l in enumerate(dbgsrd): put(f, 25 + 2*k, l)
            put(f, 21, [f"s_lshl_b32 s{sT2}, s{sW}, 10", f"s_add_u32 s{sT2}, s{sT2}, {PSC}"]); put(f, 23, f"v_add_u32 v{vP}, s{sT2}, {vL16}")
        if ph == 1:
            put(f, 3, f"ds_write_b128 v{vP}, {sacc}")
            put(f, 5, VM(nload, "N"))
            put(f, 11, f"v_xor_b32 v{vP}, 0x800, v{vP}")
            for r in range(4): put(f, 13 + 2*r, f"v_accvgpr_read_b32 v{u+r}, {sacc[r]}")
    def hookS9(ph, f, BG):
        if ph == 0:
            put(f, 1, f"ds_read_b128 {PT}, v{vP}")
            put(f, 11, "s_waitcnt lgkmcnt(5)")
            for r in range(4): put(f, 11 + 2*r, f"v_accvgpr_read_b32 v{vFA}, {PT[r]}"); put(f, 12 + 2*r, f"v_add_f32 v{u+r}, v{u+r}, v{vFA}")
            put(f, 21, f"v_cvt_pk_bf16_f32 v{u}, v{u}, v{u+1}"); put(f, 23, f"v_cvt_pk_bf16_f32 v{u+1}, v{u+2}, v{u+3}")
            put(f, 27, kvwr)
            put(f, 29, f"v_lshrrev_b32 v{vP}, 3, {vL}"); put(f, 31, f"v_and_b32 v{vFA}, 7, {vL}")
            put(f, 35, f"v_lshlrev_b32 v{vFA}, 4, v{vFA}"); put(f, 37, f"v_lshl_add_u32 v{vP}, v{vP}, 8, v{vFA}")
            put(f, 41, [f"s_bfe_u32 s{sT2}, s{sCB}, 0x10001", f"s_lshl_b32 s{sT2}, s{sT2}, 7"])
            put(f, 43, f"v_add_u32 v{vP}, s{sT2}, v{vP}")
            put(f, 44, f"v_add_u32 v{vKA}, {KR}, v{vP}")
        if ph == 1:
            put(f, 3, f"ds_read_b128 {KT}, v{vKA}")
            put(f, 5, [f"s_lshl_b32 s{sKVst}, s{sRB}, 3", f"s_lshr_b32 s{sT2}, s{sCB}, 2", f"s_add_u32 s{sKVst}, s{sKVst}, s{sT2}"])
            put(f, 7, [f"s_lshl_b32 s{sKVst}, s{sKVst}, 1", f"s_and_b32 s{sT2}, s{sCB}, 1", f"s_add_u32 s{sKVst}, s{sKVst}, s{sT2}"])
            put(f, 11, [f"s_lshl_b32 s{sKVst}, s{sKVst}, 11", f"s_add_u32 s{sKVst}, s{sKVst}, {KV_OFF}", f"s_lshl_b32 s{sEfl}, s{sRB}, 5"])
            put(f, 13, [f"s_add_u32 s{sEfl}, s{sEfl}, s{sCB}", f"s_lshl_b32 s{sEfl}, s{sEfl}, 2", f"s_add_u32 s{sEfl}, s{sEfl}, {FL_E}"])
            put(f, 15, [f"s_cmp_eq_u32 s{sW}, 0", f"s_cselect_b32 s{sKVst}, s{sKVst}, {HUGE}", f"s_cselect_b32 s{sEfl}, s{sEfl}, {HUGE}"])
            put(f, 19, f"v_mul_u32_u24 v{vFA}, {FL_ES}, {vL}")
            put(f, 21, ["s_waitcnt lgkmcnt(9)", VM(f"buffer_store_dwordx4 {KT}, v{vP}, {srd(S_WS)}, s{sKVst} offen {SC1}", "KS")])
    def hookS10(ph, f, BG):
        if ph == 1:
            put(f, 27, [Need(["KS", "N"]), f"v_readfirstlane_b32 s{sNonce}, v{vN}", f"s_cmp_eq_u32 s{sNonce}, 0", "s_cbranch_scc1 P1_SLOWN", "P1_NOK:",
                       "s_mov_b64 exec, 0xff", VM(f"buffer_store_dword v{vN}, v{vFA}, {srd(S_WS)}, s{sEfl} offen sc1", "EF"), "s_mov_b64 exec, -1", "s_nop 2"])
    sKVo, sM0 = sL + 3, sL + 4
    S_KVD = S_C
    vE = Reg("v", 28, 4)
    epoll = f"buffer_load_dwordx4 {vE}, {vL16}, {srd(S_WS)}, s{sEfl} offen sc1"
    def kvdma0(slotoff):
        L = []
        for e in range(8):
            pre = []
            if e == 0: pre = [f"s_add_u32 m0, s{sM0}, {slotoff}"]
            if e == 4: pre = [f"s_add_u32 m0, m0, 4096", f"s_add_u32 s{sKVo}, s{sKVo}, 4096"]
            L.append((pre, VM(f"buffer_load_dwordx4 {vL16}, {srd(S_KVD)}, s{sKVo} offen offset:{(e&3)*1024} {SC1} lds", "KV")))
        return L
    def hookS14(ph, f, BG):
        if ph == 0:
            put(f, 5, [f"s_bfe_u32 s{sEfl}, s2, 0x30003", f"s_mul_i32 s{sEfl}, s{sEfl}, {FL_ES}", f"s_add_u32 s{sEfl}, s{sEfl}, {FL_E}"])
            put(f, 45, VM(epoll, "N"))
            put(f, 11, [f"s_mov_b32 s{S_KVD}, s{P_WS}", f"s_mov_b32 s{S_KVD+1}, s{P_WS+1}", f"s_mov_b32 s{S_KVD+2}, {KV_OFF + 262144}"])
            put(f, 13, [f"s_lshl_b32 s{sM0}, s{sW}, 13", f"s_add_u32 s{sKVo}, s{sM0}, {KV_OFF}"])
        if ph == 1: put(f, 51, [Need(["N"])] + echeck() + ["s_cbranch_scc0 P1_SLOWE", "P1_EOK:"])
    def echeck():
        return [f"v_xor_b32 {vE[0]}, {vE[0]}, v{vN}", f"v_xor_b32 {vE[1]}, {vE[1]}, v{vN}", f"v_xor_b32 {vE[2]}, {vE[2]}, v{vN}", f"v_xor_b32 {vE[3]}, {vE[3]}, v{vN}",
                f"v_or3_b32 {vE[0]}, {vE[0]}, {vE[1]}, {vE[2]}", f"v_or_b32 {vE[0]}, {vE[0]}, {vE[3]}", f"v_cmp_eq_u32 vcc, 0, {vE[0]}", "s_nop 0", "s_cmp_eq_u64 vcc, -1"]
    def hookS15(ph, f, BG):
        dg = [5, 11, 17, 23, 29, 35, 41, 46]
        if ph == 0:
            for k, (pre, d) in enumerate(kvdma0(32768*ph)):
                if pre: put(f, dg[k] - 1, pre)
                put(f, dg[k], d)
            put(f, 47, f"s_add_u32 s{sKVo}, s{sKVo}, {32768 - 4096}")
    z = [7, 8]; vOne = 23
    gv = [f"v_mov_b32 v{vOne}, 0x3f803f80", f"v_mov_b32 v{z[0]}, 0", f"v_mov_b32 v{z[1]}, 0", None]
    for k in range(8):
        gv += [f"v_accvgpr_read_b32 v26, {GWa[k]}", f"v_accvgpr_read_b32 v28, {GXa[0][k]}", f"v_accvgpr_read_b32 v30, {GXa[1][k]}",
               "v_and_b32 v27, 0xffff0000, v26", "v_and_b32 v29, 0xffff0000, v28", "v_and_b32 v31, 0xffff0000, v30",
               "v_lshlrev_b32 v26, 16, v26", "v_lshlrev_b32 v28, 16, v28", "v_lshlrev_b32 v30, 16, v30",
               "v_mul_f32 v29, v29, v27", "v_mul_f32 v31, v31, v27", "v_mul_f32 v28, v28, v26", "v_mul_f32 v30, v30, v26",
               "v_cvt_pk_bf16_f32 v28, v28, v29", "v_cvt_pk_bf16_f32 v30, v30, v31",
               f"v_dot2_f32_bf16 v{z[0]}, v28, v{vOne}, v{z[0]}", f"v_dot2_f32_bf16 v{z[1]}, v30, v{vOne}, v{z[1]}"]
    gv += [None, None]
    P2_ = lambda fmt: [fmt(r) for r in range(2)]
    for sh in (8, 4, 2, 1): gv += P2_(lambda r: f"v_add_f32_dpp v{z[r]}, v{z[r]}, v{z[r]} row_ror:{sh} row_mask:0xf bank_mask:0xf")
    for sw in ("16", "32"):
        gv += P2_(lambda r: f"v_mov_b32 v{28+r}, v{z[r]}") + P2_(lambda r: f"v_permlane{sw}_swap_b32 v{z[r]}, v{28+r}") + P2_(lambda r: f"v_add_f32 v{z[r]}, v{z[r]}, v{28+r}")
    gv += P2_(lambda r: f"v_cvt_pk_bf16_f32 v{z[r]}, v{z[r]}, v{z[r]}") + P2_(lambda r: f"v_and_b32 v{z[r]}, 0xffff0000, v{z[r]}")
    gv += P2_(lambda r: f"v_mul_f32 v{z[r]}, {f2u(-LOG2E):#x}, v{z[r]}") + [f"v_exp_f32 v{z[0]}, v{z[0]}", None, f"v_exp_f32 v{z[1]}, v{z[1]}", None]
    gv += P2_(lambda r: f"v_add_f32 v{z[r]}, 1.0, v{z[r]}") + [f"v_rcp_f32 v{z[0]}, v{z[0]}", None, f"v_rcp_f32 v{z[1]}, v{z[1]}", None]
    gv += P2_(lambda r: f"v_cvt_pk_bf16_f32 v{z[r]}, v{z[r]}, v{z[r]}") + P2_(lambda r: f"v_and_b32 v{26+r}, 0xffff0000, v{z[r]}")
    GR = opt.get("gr", 1)
    gq = [gv[k:k+GR] for k in range(0, len(gv), GR)]
    def hookS10g(ph, f, BG):
        hookS10(ph, f, BG)
        if ph == 1:
            put(f, 28, f"s_mov_b32 s{S_KV}, s{P_GW}"); put(f, 29, [f"s_mov_b32 s{S_KV+1}, s{P_GW+1}", f"s_mov_b32 s{S_KV+2}, 2048"])
            put(f, 31, VM(f"buffer_load_dwordx4 {GWa.sub(0,4)}, {vL16}, {srd(S_KV)}, 0 offen", "GL"))
            put(f, 35, VM(f"buffer_load_dwordx4 {GWa.sub(4,4)}, {vL16}, {srd(S_KV)}, 0 offen offset:1024", "GL"))
            put(f, 36, f"s_mov_b32 s{S_KV}, s{P_X}"); put(f, 37, [f"s_mov_b32 s{S_KV+1}, s{P_X+1}", f"s_mov_b32 s{S_KV+2}, 0x400000", f"s_lshl_b32 s{sT2}, s{sRB}, 5"])
            put(f, 38, f"s_add_u32 s{sT2}, s{sT2}, s{sCB}"); put(f, 39, [f"s_lshl_b32 s{sT2}, s{sT2}, 2", f"s_add_u32 s{sT2}, s{sT2}, s{sW}", f"s_lshl_b32 s{sT1}, s{sT2}, 3"])
            put(f, 40, f"s_lshl_b32 s{sT2}, s{sT2}, 12"); put(f, 42, f"s_add_u32 s{sT1}, s{sT1}, {G_OFF}")
            for k in range(4):
                put(f, [43, 45, 51, 53][k], VM(f"buffer_load_dwordx4 {GXa[k>>1].sub(4*(k&1),4)}, {vL16}, {srd(S_KV)}, s{sT2} offen offset:{k*1024}", "X"))
    def hookG(ph, f, BG, first=False):
        if first and ph == 0: return
        for g_ in range(1, BG - 1):
            cur = flat(f.get(g_, []))
            busy = any(is_vmem(x) or x.startswith(("v_",) if GR == 1 else ("v_", "ds_")) for x in cur) or len(cur) > 1
            if gq and not busy: put(f, g_, [x for x in gq.pop(0) if x])
    def hookS12(ph, f, BG): hookG(ph, f, BG, True)
    def hookS14g(ph, f, BG):
        if ph == 0:
            hookG(ph, f, 38)
            assert not gq, len(gq)
            put(f, 41, ["s_mov_b64 exec, 1", VM(f"buffer_store_dwordx2 v[26:27], v{vZ}, {srd(S_WS)}, s{sT1} offen sc1", "GS"), "s_mov_b64 exec, -1", "s_nop 2"])
        hookS14(ph, f, BG)
    hooks = {6: hookS6, 7: hookS7, 8: hookS8, 9: hookS9, 10: hookS10g, 11: hookS12, 12: hookG, 13: hookG, 14: hookS14g, 15: hookS15}
    cpsteps = opt.get("cps", [0, 3, 7, 11, 14])
    h1 = list(pro_hist)
    for st in range(16):
        S_ = resolve_waits(step(st, hooks.get(st), st in cpsteps), h1)
        h1 += S_
        A.ext(ts.at(f"s{st}"))
        if st == 15: A(f"s_cmp_eq_u32 s{sIsB}, 1\ns_cbranch_scc1 P1_EPIB")
        if st == 14: S14 = S_
        if st == 8: A("P1_MID:")
        if TCH and opt.get("t1s", 6) and st == opt.get("t1s", 6): A(f"; @@TOUCH x 1 s{sW}")
        A.ext(S_)
    S15 = S_
    probs += check_hazards(A.lines, "p1")
    slow1 = Asm()
    slow1(f"""P1_SLOWN:
    s_mov_b32 s{sT2}, {SPIN_MAX}
    P1_SLOWN_L:
    {nload}
    s_waitcnt vmcnt(0)
    v_readfirstlane_b32 s{sNonce}, v{vN}
    s_cmp_lg_u32 s{sNonce}, 0
    s_cbranch_scc1 P1_NOK
    s_sleep 4
    s_sub_u32 s{sT2}, s{sT2}, 1
    s_cmp_lg_u32 s{sT2}, 0
    s_cbranch_scc1 P1_SLOWN_L
    s_endpgm
    P1_SLOWE:
    s_mov_b32 s{sT0}, {SPIN_MAX}
    P1_SLOWE_L:
    {epoll}
    s_waitcnt vmcnt(0)""")
    slow1.ext(echeck())
    slow1(f"""s_cbranch_scc1 P1_EOK
    s_sleep 4
    s_sub_u32 s{sT0}, s{sT0}, 1
    s_cmp_lg_u32 s{sT0}, 0
    s_cbranch_scc1 P1_SLOWE_L
    s_endpgm""")

    va = Alloc("v", 3, 256)
    vCur = va.get(1); vNxt = va.get(1); vZero = va.get(1); vNon = va.get(1); vQP = va.get(1)
    T = va.get(12, 4)
    S = [va.get(16, 4) for _ in range(2)]
    P = [va.get(8, 4) for _ in range(2)]
    O = [va.get(16, 4) for _ in range(2)]
    Lc = [va.get(4, 4) for _ in range(2)]
    SCL = va.get(8, 4)
    acc3 = [[va.get(4, 4) for j in range(8)] for i in range(4)]
    vW3o = va.get(1); vW3a = [va.get(1) for _ in range(4)]; vPF = va.get(1); vG = va.get(2, 2); vFl = va.get(4, 4)
    NEG = [Reg("v", acc3[0][0].base + 16*k, 16) for k in range(2)]
    aa = Alloc("a", 0, 180)
    RX = [[aa.get(4, 4) for j in range(8)] for s in range(4)]
    Q = [[aa.get(4, 4) for t in range(2)] for ab in range(2)]
    K = [[aa.get(4, 4) for t in range(2)] for b in range(2)]
    V = [[aa.get(4, 4) for t in range(2)] for b in range(2)]
    ONES = aa.get(4, 4)
    RW = [[Reg("a", 220 + 16*s + 4*i, 4) for i in range(4)] for s in range(2)]
    QXB = 98304
    W3B = 98304

    E = Asm()
    E.ext(ts.at("p1end"))
    sO, sO1, sO2 = 0, 1, 3
    sC = sL + 1
    sQf = 14
    tA = [Reg("v", 20, 4), Reg("v", 28, 4)]
    PKE = opt.get("pke", 0)
    def hmath(pairs, dst, pk=True):
        L = []
        for Gx, U in pairs:
            for r in range(4): L.append(f"v_max_f32 {Gx[r]}, 0, {Gx[r]}")
        for Gx, U in pairs:
            if pk:
                for r in (0, 2): L.append(f"v_pk_mul_f32 {Gx.sub(r,2)}, {Gx.sub(r,2)}, {U.sub(r,2)}")
            else:
                for r in range(4): L.append(f"v_mul_f32 {Gx[r]}, {Gx[r]}, {U[r]}")
        for k, (Gx, U) in enumerate(pairs):
            L.append(f"v_cvt_pk_bf16_f32 {dst[2*k]}, {Gx[0]}, {Gx[1]}"); L.append(f"v_cvt_pk_bf16_f32 {dst[2*k+1]}, {Gx[2]}, {Gx[3]}")
        return L
    gl = Asm()
    gl(f"""s_mov_b32 s{S_A}, s{P_X}
    s_mov_b32 s{S_A+1}, s{P_X+1}
    s_mov_b32 s{S_A+2}, 0x400000
    s_mov_b32 s{S_B}, s{P_GW}
    s_mov_b32 s{S_B+1}, s{P_GW+1}
    s_mov_b32 s{S_B+2}, 2048
    s_lshl_b32 s{sT2}, s{sRB}, 5
    s_add_u32 s{sT2}, s{sT2}, s{sCB}
    s_lshl_b32 s{sT2}, s{sT2}, 2
    s_add_u32 s{sT2}, s{sT2}, s{sW}
    s_lshl_b32 s{sT2}, s{sT2}, 12""")
    for h in range(2): gl(f"buffer_load_dwordx4 {GWa.sub(4*h,4)}, {vL16}, {srd(S_B)}, 0 offen offset:{h*1024}")
    for r in range(2):
        for h in range(2):
            gl(f"buffer_load_dwordx4 {GXa[r].sub(4*h,4)}, {vL16}, {srd(S_A)}, s{sT2} offen offset:{r*2048 + h*1024}")
    def merge(mf, items, rate, fixed=None):
        out = []; k = 0
        for g, m_ in enumerate(mf):
            out.append(m_)
            n = 0; seenv = False
            if fixed and g in fixed: out.extend(fixed[g]); n += len(fixed[g])
            while k < len(items) and items[k][0] <= g and n < rate:
                x_ = items[k][1]
                if is_vmem(x_) and seenv: break
                seenv |= x_.startswith("v_")
                out.append(x_); k += 1; n += 1
        if k < len(items): out.append("s_nop 7")
        return out + [x[1] for x in items[k:]]
    mm1 = lambda i, j: f"v_mfma_f32_16x16x32_bf16 {acc[i][j]}, {RA[1][i]}, {RB[1][j]}, {acc[i][j]}"
    kv1 = []
    for pre, d in kvdma0(32768): kv1 += pre + (["s_nop 0"] if pre else []) + [d]
    kv1.append(f"s_add_u32 s{sKVo}, s{sKVo}, {32768 - 4096}")
    head = Asm()
    head(f"""s_lshr_b32 s{sT0}, s{sW}, 1
    s_and_b32 s{sT1}, s{sW}, 1
    s_lshl_b32 s{sO}, s{sRB}, 4
    s_lshl_b32 s{sT2}, s{sT0}, 3
    s_add_u32 s{sO}, s{sO}, s{sT2}
    s_lshl_b32 s{sO}, s{sO}, 11
    s_add_u32 s{sO}, s{sO}, {AF2_OFF}
    s_lshr_b32 s{sT2}, s{sCB}, 2
    s_mul_i32 s{sO1}, s{sT2}, 14
    s_and_b32 s{sT3}, s{sCB}, 3
    s_lshl_b32 s{sT3}, s{sT3}, 2
    s_add_u32 s{sO1}, s{sO1}, s{sT3}
    s_add_u32 s{sO1}, s{sO1}, s{sT1}""")
    LAG = 5
    it = [(0, l) for l in head.lines]
    it += [(0, l) for l in (f"s_add_u32 s{sO1}, s{sO1}, s{sT1}", f"s_mul_i32 s{sO1}, s{sO1}, {AFS2}", f"s_add_u32 s{sO}, s{sO}, s{sO1}", f"s_add_u32 s{sO2}, s{sO}, {AFS2}")]
    kq = list(kv1)
    for j in range(8):
        g_ = 8*j + 7 + LAG
        Tt = tA[j % 2]
        L_ = hmath([(acc[0][j], acc[4][j]), (acc[1][j], acc[5][j])], acc[4][j], PKE or j >= opt.get('pkj', 8))
        L_ += [f"v_accvgpr_read_b32 {Tt[r]}, {acc[7][j][r]}" for r in range(4)]
        L_ += hmath([(acc[2][j], acc[6][j]), (acc[3][j], Tt)], acc[5][j], PKE or j >= opt.get('pkj', 8))
        it += [(g_, l) for l in L_]
        while kq:
            x_ = kq.pop(0); it.append((g_, x_))
            if is_vmem(x_): break
    it += [(64, l) for l in kq]
    EA = merge([mm1(i, j) for j in range(8) for i in range(8)], it, opt.get("rateA", 5))
    E.ext(EA)
    E("s_branch P1_EPID\nP1_EPIB:\n; @@PAD@@")
    hb = Asm()
    hb(f"""s_mul_i32 s{sO1}, s{sO1}, {AFS2}
    s_add_u32 s{sO}, s{sO}, s{sO1}
    s_mov_b32 s{sO2}, {HUGE}
    s_lshl_b32 s{sQf}, s{sRB}, 3
    s_add_u32 s{sQf}, s{sQf}, s{sT2}
    s_lshl_b32 s{sQf}, s{sQf}, 2
    s_lshl_b32 s{sT1}, s{sT1}, 1
    s_add_u32 s{sT2}, s{sQf}, s{sT1}
    s_lshl_b32 s{sT2}, s{sT2}, 1
    s_add_u32 s{sT2}, s{sT2}, s{sT0}
    s_lshl_b32 s{sT2}, s{sT2}, 14
    s_add_u32 s{sT0}, s{sT2}, {QF5_OFF}
    s_add_u32 s{sT1}, s{sT0}, 32768
    v_cmp_lt_u32 vcc, 23, {vL}
    v_add_u32 v26, 128, {vL16}
    s_nop 0
    v_cndmask_b32 v26, {vL16}, v26, vcc
    s_add_u32 s{sQf}, s{sQf}, s{sW}
    s_lshl_b32 s{sQf}, s{sQf}, 8
    s_add_u32 s{sQf}, s{sQf}, {FL_Q}
    s_mov_b32 s{sC}, {f2u(QSCALE):#x}
    s_mov_b32 s{sC+1}, {f2u(QSCALE):#x}""")
    it = [(0, l) for l in head.lines + hb.lines]
    for j in range(8):
        g_ = 32 + 4*j + 3 + LAG
        for hh in range(2):
            F0, F1 = acc[4 + 2*hh][j], acc[5 + 2*hh][j]
            L_ = []
            if F1.f == "a":
                Tt = tA[j % 2]
                L_ += [f"v_accvgpr_read_b32 {Tt[r]}, {F1[r]}" for r in range(4)]
                F1 = Tt
            for F in (F0, F1):
                if PKE:
                    for r in (0, 2): L_.append(f"v_pk_mul_f32 {F.sub(r,2)}, {F.sub(r,2)}, s[{sC}:{sC+1}]")
                else:
                    for r in range(4): L_.append(f"v_mul_f32 {F[r]}, s{sC}, {F[r]}")
            L_ += [f"v_cvt_pk_bf16_f32 {F0[0]}, {F0[0]}, {F0[1]}", f"v_cvt_pk_bf16_f32 {F0[1]}, {F0[2]}, {F0[3]}",
                   f"v_cvt_pk_bf16_f32 {F0[2]}, {F1[0]}, {F1[1]}", f"v_cvt_pk_bf16_f32 {F0[3]}, {F1[2]}, {F1[3]}",
                   f"buffer_store_dwordx4 {F0}, v26, {srd(S_WS)}, s{sT0 + hh} offen offset:{(j&1)*2048} {SC1}"]
            if j & 1: L_.append(f"s_add_u32 s{sT0 + hh}, s{sT0 + hh}, 4096")
            it += [(g_, l) for l in L_]
    mm0 = lambda i, j: f"v_mfma_f32_16x16x32_bf16 {acc[i][j]}, {RA[0][i]}, {RB[0][j]}, {acc[i][j]}"
    fx = {}
    rd_ = reads(31, 1, False)
    for k, r in enumerate(rd_[:8] + rd_[16:24] + rd_[8:16]): put(fx, k, r)
    k = 0
    for pre, d in kvdma0(0):
        if pre: put(fx, 23 + k, pre)
        put(fx, 24 + k, d); k += 1
    put(fx, 31, [f"s_add_u32 s{sKVo}, s{sKVo}, {32768 - 4096}", "s_waitcnt lgkmcnt(0)", "s_barrier"])
    EB = merge([mm0(i, j) for i in range(4, 8) for j in range(8)] + [mm1(i, j) for j in range(8) for i in range(4, 8)] +
               [mm0(i, j) for i in range(4) for j in range(8)] + [mm1(i, j) for j in range(8) for i in range(4)], it, opt.get("rateB", 3), fx)
    E.ext(EB)
    E.ext(kv1)
    for j in range(8):
        E.ext(hmath([(acc[0][j], acc[2][j]), (acc[1][j], acc[3][j])], acc[4][j]))
    E(f"""s_waitcnt vmcnt(8)
    s_mov_b64 exec, 1
    buffer_store_dword v{vN}, v{vZ}, {srd(S_WS)}, s{sQf} offen sc1
    s_mov_b64 exec, -1
    P1_EPID:
    ; @@PAD@@""")
    probs += check_hazards(S15[-20:] + EA, "epiA") + check_hazards(S14[-20:] + E.lines[E.lines.index("P1_EPIB:"):], "epiB")
    E.ext(ts.at("kvdone"))
    vAF = T[9]
    def hstore(reg, so, j):
        return [VM(f"buffer_store_dwordx4 {reg}, {vAF}, {srd(S_WS)}, s{so} offen offset:{(j&1)*2048} {SC1}", "H")] + ([f"s_add_u32 s{so}, s{so}, 4096"] if j & 1 else [])
    hst0 = [hstore(acc[4][j], sO, j) for j in range(8)]
    hst1a = [hstore(acc[5][j], sO2, j) for j in range(8)]
    A.ext(E.lines)

    B = Asm()
    sCur, sNext, sFree, sFl = sL, sL + 1, sL + 2, sL + 5
    B(f"""v_mov_b32 {vNon}, s{sNonce}
    v_mov_b32 {vZero}, 0
    v_bfe_u32 {T[0]}, {vL}, 4, 1
    v_and_b32 {T[1]}, 15, {vL}
    v_lshrrev_b32 {T[2]}, 5, {vL}
    v_lshl_add_u32 {T[1]}, {T[2]}, 4, {T[1]}
    v_lshlrev_b32 {T[1]}, 4, {T[1]}
    v_lshl_add_u32 {vQP}, {T[0]}, 11, {T[1]}""")
    S_PF, sPF = S_E, 8
    pfop = [VM(f"buffer_load_dword a252, {vPF}, {srd(S_PF)}, s{sPF} offen", "PF"), f"s_add_u32 s{sPF}, s{sPF}, 0x100000"] if PF else []
    for ab in range(2):
        for r in range(4): B(f"v_mov_b32 {Lc[ab][r]}, 0")
    vIdx = T[10]
    B(f"""v_bfe_u32 {T[4]}, {vL}, 2, 1
    v_cmp_eq_u32 vcc, 0, {T[4]}
    v_mov_b32 {T[5]}, 0x3f803f80
    v_mov_b32 {vCur}, {vL16}
    v_cndmask_b32 {T[4]}, 0, {T[5]}, vcc
    v_cndmask_b32 {T[5]}, {T[5]}, 0, vcc
    v_add_u32 {vNxt}, 32768, {vL16}
    v_and_b32 {vIdx}, 1, {vL}
    v_mul_u32_u24 {vIdx}, 0xaaaa, {vIdx}
    v_add_u32 {vIdx}, 0x4444, {vIdx}
    v_cmp_lt_u32 vcc, 23, {vL}
    v_add_u32 {vAF}, 128, {vL16}
    s_nop 0
    v_cndmask_b32 {vAF}, {vL16}, {vAF}, vcc""".replace(f"v_cndmask_b32 {T[5]}, {T[5]}, 0, vcc", f"v_xor_b32 {T[5]}, {T[5]}, {T[4]}"))
    for r in range(4): B(f"v_accvgpr_write_b32 {ONES[r]}, {T[4 + (r >> 1)]}")
    def lsum(o): return f"v_smfmac_f32_16x16x64_bf16 {Lc[o]}, {ONES}, {P[o]}, {vIdx}"
    B("; @@SETUP3@@")
    B(f"""s_mov_b32 s{sCur}, 0
    s_mov_b32 s{sNext}, 32768
    s_mov_b32 s{sFree}, 65536
    s_add_u32 s{sL+14}, s{sM0}, 65536
    s_lshl_b32 s{sFl}, s{sRB}, 2
    s_add_u32 s{sFl}, s{sFl}, s{sW}
    s_lshl_b32 s{sFl}, s{sFl}, 6
    s_add_u32 s{sFl}, s{sFl}, s{sCB}
    s_lshl_b32 s{sFl}, s{sFl}, 2
    s_add_u32 s{sFl}, s{sFl}, {FL_H}
    s_lshl_b32 s{sT1}, s{sRB}, 3
    s_lshr_b32 s{sT2}, s{sCB}, 2
    s_add_u32 s{sT1}, s{sT1}, s{sT2}
    s_lshl_b32 s{sT1}, s{sT1}, 2
    s_and_b32 s{sT2}, s{sW}, 2
    s_add_u32 s{sT1}, s{sT1}, s{sT2}
    s_bfe_u32 s{sT2}, s{sCB}, 0x10001
    s_add_u32 s{sT1}, s{sT1}, s{sT2}
    s_lshl_b32 s{sT1}, s{sT1}, 8
    s_add_u32 s{sT1}, s{sT1}, {FL_Q}
    s_lshl_b32 s{sQf}, s{sRB}, 5
    s_add_u32 s{sQf}, s{sQf}, s{sCB}
    s_lshl_b32 s{sQf}, s{sQf}, 2
    s_add_u32 s{sQf}, s{sQf}, s{sW}
    s_lshl_b32 s{sQf}, s{sQf}, 13
    s_add_u32 s{sQf}, s{sQf}, {QF5_OFF}
    s_add_u32 s{sT3}, s{sQf}, 4096""")
    def check(regs):
        if len(regs) == 4:
            return [f"v_xor_b32 {r}, {r}, {vNon}" for r in regs] + [f"v_or3_b32 {regs[0]}, {regs[0]}, {regs[1]}, {regs[2]}", f"v_or_b32 {regs[0]}, {regs[0]}, {regs[3]}",
                    f"v_cmp_eq_u32 vcc, 0, {regs[0]}", "s_nop 0", "s_cmp_eq_u64 vcc, -1"]
        L = [f"v_cmp_eq_u32 vcc, s{sNonce}, {regs[0]}"]
        if len(regs) > 1: L += [f"v_cmp_eq_u32 s[{sT2}:{sT3}], s{sNonce}, {regs[1]}", "s_nop 0", f"s_and_b64 vcc, vcc, s[{sT2}:{sT3}]"]
        else: L += ["s_nop 0"]
        return L + ["s_cmp_eq_u64 vcc, -1"]
    def spin(label, load, regs, back=None):
        L = [f"s_mov_b32 s{sT0}, {SPIN_MAX}", f"{label}_L:", load, "s_waitcnt vmcnt(0)"] + check(regs)
        L += [f"s_cbranch_scc1 {back or label + '_OK'}", f"s_sleep {4 if back else 1}", f"s_sub_u32 s{sT0}, s{sT0}, 1",
              f"s_cmp_lg_u32 s{sT0}, 0", f"s_cbranch_scc1 {label}_L", "s_endpgm"]
        if not back: L.append(f"{label}_OK:")
        return L
    B("P2_PRE:")
    if TCH > 1: B(f"; @@TOUCH x 2 s{sW}")
    B.ext(ts.at("poll0"))
    B(f"""v_and_b32 {T[2]}, 40, {vL}
    v_cmp_eq_u32 vcc, 40, {T[2]}
    v_add_u32 {T[3]}, 128, {vQP}
    s_nop 0
    v_cndmask_b32 {T[2]}, {vQP}, {T[3]}, vcc""")
    qld = lambda dst: [f"buffer_load_dwordx4 {dst(ab, t)}, {T[2+t]}, {srd(S_WS)}, s{[sQf, sT3][ab]} offen offset:{t*512} {SC1}" for ab in range(2) for t in range(2)]
    if QPOLL:
        QV = S[1]
        B(f"s_mov_b32 s{sT0}, {SPIN_MAX}\nP2_QL:")
        B(f"buffer_load_dword {T[8]}, {vZero}, {srd(S_WS)}, s{sT1} offen sc1")
        B.ext(qld(lambda ab, t: QV.sub(8*ab + 4*t, 4)))
        B("s_waitcnt vmcnt(0)")
        B(f"v_max3_u32 {T[9]}, {QV[0]}, {QV[1]}, {QV[2]}")
        for k in range(3, 15, 2): B(f"v_max3_u32 {T[9]}, {QV[k]}, {QV[k+1]}, {T[9]}")
        B(f"""v_max_u32 {T[9]}, {QV[15]}, {T[9]}
        v_cmp_eq_u32 vcc, -1, {T[9]}
        v_readfirstlane_b32 s{sT2}, {T[8]}
        s_nop 0
        s_cmp_eq_u64 vcc, 0
        s_cbranch_scc1 P2_QOK
        s_cmp_eq_u32 s{sT2}, s{sNonce}
        s_cbranch_scc1 P2_QRE
        s_sub_u32 s{sT0}, s{sT0}, 1
        s_cmp_lg_u32 s{sT0}, 0
        s_cbranch_scc1 P2_QL
        s_endpgm
        P2_QRE:""")
        B.ext(qld(lambda ab, t: QV.sub(8*ab + 4*t, 4)))
        B("s_waitcnt vmcnt(0)\nP2_QOK:")
        B.ext(ts.at("poll1"))
        for ab in range(2):
            for t in range(2):
                for r in range(4): B(f"v_accvgpr_write_b32 {Q[ab][t][r]}, {QV[8*ab + 4*t + r]}")
    else:
        B.ext(spin("P2_POLL", f"buffer_load_dword {T[8]}, {vZero}, {srd(S_WS)}, s{sT1} offen sc1", [T[8]]))
        B.ext(ts.at("poll1"))
        B.ext(qld(lambda ab, t: Q[ab][t]))
    B("s_barrier")
    def kvdma(slot, tag):
        L = []
        for e in range(8):
            pre = []
            if e == 0: pre = [f"s_add_u32 m0, s{slot}, s{sM0}"]
            if e == 4: pre = [f"s_add_u32 s{sT0}, s{slot}, s{sM0}", f"s_add_u32 m0, s{sT0}, 4096", f"s_add_u32 s{sKVo}, s{sKVo}, 4096"]
            L.append((pre, VM(f"buffer_load_dwordx4 {vL16}, {srd(S_KVD)}, s{sKVo} offen offset:{(e&3)*1024} {SC1} lds", tag)))
        return L
    post_dma = f"s_add_u32 s{sKVo}, s{sKVo}, {32768 - 4096}"
    B(f"""ds_read_b128 {K[0][0]}, {vCur}
    ds_read_b128 {K[0][1]}, {vCur} offset:1024
    ds_read_b128 {V[0][0]}, {vCur} offset:2048
    ds_read_b128 {V[0][1]}, {vCur} offset:3072""")
    hist = list(S15) + list(EA) + list(B.lines)
    B(f"""s_waitcnt vmcnt(0) lgkmcnt(0)
    v_mfma_f32_32x32x16_bf16 {S[0]}, {K[0][0]}, {Q[0][0]}, 0
    v_mfma_f32_32x32x16_bf16 {S[0]}, {K[0][1]}, {Q[0][1]}, {S[0]}""")
    B.ext(ts.at("att"))
    B("s_nop 7\ns_nop 3")

    NS = 4
    S_AF, S_W3, S_OUT = S_A, S_B, S_D
    sMT, sNT = sL + 6, sL + 7
    sAo = sL + 8
    sSo3 = sL + 9
    sM3 = sL + 13
    sWo, sWoN = 30, 15
    sX3 = 16
    sSh, sAdv, sAdv28 = 10, 18, 19
    setup3 = Asm()
    MAP48 = opt.get("map48", 0)
    if MAP48:
        setup3(f"""s_and_b32 s{sT0}, s{sRB}, 4
        s_add_u32 s{sMT}, s{sRB}, s{sT0}
        s_bfe_u32 s{sT0}, s{sCB}, 0x10003
        s_lshl2_add_u32 s{sMT}, s{sT0}, s{sMT}
        s_lshr_b32 s{sT0}, s{sCB}, 4
        s_and_b32 s{sT1}, s{sCB}, 7
        s_lshl3_add_u32 s{sNT}, s{sT0}, s{sT1}""")
    else:
        setup3(f"""s_and_b32 s{sT0}, s{sCB}, 1
        s_lshl_b32 s{sMT}, s{sRB}, 1
        s_add_u32 s{sMT}, s{sMT}, s{sT0}
        s_lshr_b32 s{sT0}, s{sCB}, 3
        s_lshl_b32 s{sT0}, s{sT0}, 2
        s_bfe_u32 s{sT1}, s{sCB}, 0x20001
        s_add_u32 s{sNT}, s{sT0}, s{sT1}""")
    setup3(f"""s_lshl_b32 s{sT0}, s{sNT}, 7
    s_add_u32 s{S_W3}, s{P_WD}, s{sT0}
    s_addc_u32 s{S_W3+1}, s{P_WD+1}, 0
    s_sub_u32 s{S_W3+2}, {3584*2048}, s{sT0}
    s_add_u32 s{sWo}, s{P_WO}, s{sT0}
    s_addc_u32 s{sWo+1}, s{P_WO+1}, 0
    s_sub_u32 s{sWoN}, {1024*2048}, s{sT0}
    s_mov_b32 s{sSh}, 11
    s_mov_b32 s{S_AF+2}, 16384
    s_mov_b32 s{S_OUT}, s{P_OUT}
    s_mov_b32 s{S_OUT+1}, s{P_OUT+1}
    s_mov_b32 s{S_OUT+2}, 0x400000
    s_mul_i32 s{sAo}, s{sW}, {AFS2}
    s_lshl_b32 s{sT0}, s{sMT}, 14
    s_add_u32 s{sAo}, s{sAo}, s{sT0}
    s_add_u32 s{sAo}, s{sAo}, {AF2_OFF}
    s_add_u32 s{S_AF}, s{P_WS}, s{sAo}
    s_addc_u32 s{S_AF+1}, s{P_WS+1}, 0
    s_mov_b32 s{sAo}, 4096
    s_mov_b32 s{sAo+1}, 8192
    s_mov_b32 s{sX3}, 12288
    s_lshl_b32 s{sM3}, s{sW}, 14
    s_add_u32 s{sM3}, s{sM3}, {W3B}""")
    for e in range(1, 4): setup3(f"s_mov_b32 s{sSo3+e}, {e*16384 - e*1024}")
    if CW:
        setup3(f"""s_and_b32 s{sT0}, s{sNT}, 7
        s_cmp_lg_u32 s{sT0}, 3
        s_cbranch_scc1 P3_NOCW
        s_lshr_b32 s{sT0}, s{sNT}, 3
        s_mul_i32 s{sT0}, s{sT0}, {CW_SZ}
        s_add_u32 s{sT0}, s{sT0}, {CW_OFF}
        s_add_u32 s{S_W3}, s{P_WS}, s{sT0}
        s_addc_u32 s{S_W3+1}, s{P_WS+1}, 0
        s_mov_b32 s{S_W3+2}, {3584*256}
        s_add_u32 s{sWo}, s{S_W3}, {3584*256}
        s_addc_u32 s{sWo+1}, s{S_W3+1}, 0
        s_mov_b32 s{sWoN}, {1024*256}
        s_mov_b32 s{sSh}, 8
        s_mov_b32 s{sSo3+1}, 1024
        s_mov_b32 s{sSo3+2}, 2048
        s_mov_b32 s{sSo3+3}, 3072
        P3_NOCW:""")
    setup3(f"""s_lshl_b32 s{sAdv}, 128, s{sSh}
    s_mul_i32 s{sAdv28}, s{sAdv}, 28""")
    setup3v = Asm()
    setup3v(f"""v_lshrrev_b32 {T[0]}, 3, {vL}
    v_lshrrev_b32 {T[1]}, 4, {vL}
    v_lshlrev_b32 {T[2]}, 1, {T[1]}
    v_and_b32 {T[3]}, 7, {vL}
    v_xor_b32 {T[2]}, {T[2]}, {T[3]}
    v_lshlrev_b32 {T[2]}, 4, {T[2]}
    s_lshl_b32 s{sT0}, s{sW}, 5
    v_add_u32 {T[0]}, s{sT0}, {T[0]}
    v_lshl_add_u32 {vW3o}, {T[0]}, s{sSh}, {T[2]}
    s_lshl_b32 s{sT0}, s{sAdv}, 2
    v_add_u32 {T[11]}, s{sT0}, {vW3o}
    v_lshrrev_b32 {T[0]}, 2, {vL}
    v_bfe_u32 {T[1]}, {vL}, 3, 2
    v_and_b32 {T[2]}, 3, {vL}
    v_lshlrev_b32 {T[2]}, 3, {T[2]}
    v_lshl_add_u32 {T[2]}, {T[0]}, 7, {T[2]}
    v_add_u32 {T[2]}, s{sM3}, {T[2]}""")
    for i in range(4): setup3v(f"v_xor_b32 {T[3]}, {i}, {T[1]}\nv_lshl_add_u32 {vW3a[i]}, {T[3]}, 5, {T[2]}")
    setup3v(f"""s_lshr_b32 s{sT0}, s{sMT}, 1
    s_lshl_b32 s{sT0}, s{sT0}, 10
    s_lshl_b32 s{sT1}, s{sRB}, 10
    v_mov_b32 {T[4]}, s{sT0}
    v_mov_b32 {T[5]}, s{sT1}
    v_cmp_gt_u32 vcc, 32, {vL}
    v_and_b32 {T[6]}, 31, {vL}
    v_lshlrev_b32 {T[6]}, 2, {T[6]}
    v_cndmask_b32 {T[4]}, {T[4]}, {T[5]}, vcc
    v_bfe_u32 {T[5]}, {vL}, 3, 2
    v_lshl_add_u32 {T[4]}, {T[5]}, 8, {T[4]}
    v_and_b32 {T[5]}, 7, {vL}
    v_lshl_add_u32 {T[4]}, {T[5]}, 4, {T[4]}
    v_lshrrev_b32 {T[5]}, 5, {vL}
    v_lshl_add_u32 {T[5]}, {T[5]}, 8, {T[6]}
    v_and_b32 {T[7]}, 15, {vL}
    v_lshlrev_b32 {T[7]}, 2, {T[7]}""")
    XRE = opt.get("xre", 0)
    RE = [Reg("a", 180 + 4*j, 4) for j in range(8)]
    sXP = 17
    setup3v(f"""s_add_u32 s{sXP}, s{sW}, {4*(36 - 4*opt.get("np", 4))}
    s_mul_i32 s{sXP}, s{sXP}, {AFS2}
    s_lshl_b32 s{sT0}, s{sMT}, 14
    s_add_u32 s{sXP}, s{sXP}, s{sT0}
    s_add_u32 s{sXP}, s{sXP}, {AF2_OFF}""")
    zero3 = [f"v_mov_b32 {acc3[i][j][r]}, 0" for i in range(4) for j in range(8) for r in range(4)]
    def w3dma(slot, e):
        m0 = f"s_add_u32 m0, s{sM3}, {slot*4096}"
        return m0, VM(f"buffer_load_dwordx4 {vW3o}, {srd(S_W3)}, {'0' if e == 0 else 's%d' % (sSo3+e)} offen offset:{e*1024} {SC1 if CW else ''} lds", ("W", slot))
    def xload(slot, j):
        return VM(f"buffer_load_dwordx4 {RX[slot][j]}, {vAF}, {srd(S_AF)}, {['0', 's%d' % sAo, 's%d' % (sAo+1), 's16'][j>>1]} offen offset:{(j&1)*2048} {opt.get('xflag', SC1)}", ("X", slot, j >> 2))
    adv3 = [f"v_add_u32 {vW3o}, s{sAdv}, {vW3o}", f"s_add_u32 s{S_AF}, s{S_AF}, {4*AFS2}\ns_addc_u32 s{S_AF+1}, s{S_AF+1}, 0"]
    def wread(slot, s):
        return [f"ds_read_b64_tr_b16 {RW[s][i].sub(2*hf,2)}, {vW3a[i]} offset:{slot*4096 + hf*2048}" for i in range(4) for hf in range(2)]
    def gm(s, j, i, first=False): return f"v_mfma_f32_16x16x32_bf16 {acc3[i][j]}, {RW[s&1][i]}, {RX[s][j]}, {0 if first else acc3[i][j]}"

    EARLY3 = opt.get("early3", 0)
    pfsetup = [f"s_lshl_b32 s{sT1}, s2, 2", f"s_add_u32 s{sT1}, s{sT1}, s{sW}", f"s_lshl_b32 s{sT1}, s{sT1}, 10",
               f"v_lshrrev_b32 {vPF}, 3, {vL}", f"v_lshlrev_b32 {vPF}, 7, {vPF}", f"v_add_u32 {vPF}, s{sT1}, {vPF}",
               f"s_mov_b32 s{S_PF}, s{P_WD}", f"s_mov_b32 s{S_PF+1}, s{P_WD+1}", f"s_mov_b32 s{S_PF+2}, {3584*2048}", f"s_mov_b32 s{sPF}, 0x100000"] if PF else []
    k_ = B.lines.index("; @@SETUP3@@")
    ins = []
    if EARLY3:
        ins = setup3.lines + setup3v.lines + pfsetup
        if EARLY3 > 1:
            for s_ in range(4):
                for e_ in range(4):
                    m0, d = w3dma(s_, e_)
                    ins += ([m0, "s_nop 0"] if e_ == 0 else []) + [d] + ([adv3[0]] if e_ == 3 else [])
    B.lines[k_:k_ + 1] = ins
    k2_ = hist.index("; @@SETUP3@@"); hist[k2_:k2_ + 1] = ins
    probs += check_hazards(B.lines, "p2pro")
    A.ext(B.lines)
    def att_parts(ab, kq, vp):
        o = ab ^ 1
        M = [f"v_mfma_f32_32x32x16_bf16 {S[o]}, {K[kq][0]}, {Q[o][0]}, 0",
             f"v_mfma_f32_32x32x16_bf16 {S[o]}, {K[kq][1]}, {Q[o][1]}, {S[o]}",
             f"v_mfma_f32_32x32x16_bf16 {O[o]}, {V[vp][0]}, {P[o].sub(0,4)}, {O[o]}",
             lsum(o),
             f"v_mfma_f32_32x32x16_bf16 {O[o]}, {V[vp][1]}, {P[o].sub(4,4)}, {O[o]}",
             None]
        ex = [f"v_exp_f32 {S[ab][r]}, {S[ab][r]}" for r in range(16)]
        cv = [f"v_cvt_pk_bf16_f32 {P[ab][r]}, {S[ab][2*r]}, {S[ab][2*r+1]}" for r in range(8)]
        return M, ex, cv
    def phase_plain(ab, kq, vp, extra, gp=99):
        M, ex, cv = att_parts(ab, kq, vp)
        order = [M[2], M[0], M[1], M[3], M[4]]
        if gp == 0: order = ["s_nop 0", M[0], M[1], "s_nop 0", "s_nop 0"]
        if gp in (1, 2): order[0] = order[0].rsplit(",", 1)[0] + ", 0"
        vl = []
        for r in range(16):
            vl.append(ex[r])
            if r >= 3 and r % 2 == 1: vl.append(cv[(r - 3)//2])
        vl.append(cv[7])
        mpos = opt.get("mpos", [0, 4, 9, 14, 18])
        assert max(extra, default=0) <= 4
        out = []; mi = 0
        for i, v in enumerate(vl):
            while mi < 5 and mpos[mi] == i:
                out.append(order[mi]); out.extend(extra.get(mi, [])); mi += 1
            out.append(v)
        return out
    def phase_merged(ab, kq, vp, G8, extra):
        M, ex, cv = att_parts(ab, kq, vp)
        order = [M[2], G8[0], M[0], G8[1], G8[2], M[1], G8[3], M[3], G8[4], M[4], G8[5], G8[6], G8[7]]
        e, c = ex, cv
        fill = [[e[0], e[1], e[2]], [e[3]], [e[4], e[5], e[6]], [c[0], c[1]], [e[7]], [e[8], e[9], e[10]], [c[2], c[3]], [c[4]],
                [e[11]], [e[12], e[13], e[14]], [e[15]], [c[5], c[6]], [c[7]]]
        assert max(extra, default=0) <= 12
        out = []
        for k in range(13):
            out.append(order[k]); out.extend(extra.get(k, [])); out.extend(fill[k])
        return out
    sX3 = 16
    NP = opt.get("np", 4)
    PFSW = 6
    sKM = sL + 14
    def chunk(kind, hook=None, first=False, pfok=True, wpre=False):
        out = []
        mer = kind == "merged"
        for pi in range(16):
            tau, ab = pi >> 1, pi & 1
            kp = tau & 1
            ex = {}
            if ab == 0:
                src = (vCur, (tau+1)*4096) if tau < 7 else (vNxt, 0)
                ld = [f"ds_read_b128 {K[kp^1][t]}, {src[0]} offset:{src[1] + t*1024}" for t in range(2)]
            else:
                src = (vCur, (tau+1)*4096 + 2048) if tau < 7 else (vNxt, 2048)
                ld = [f"ds_read_b128 {V[kp^1][t]}, {src[0]} offset:{src[1] + t*1024}" for t in range(2)]
            kvd = VM(f"buffer_load_dwordx4 {vL16}, {srd(S_KVD)}, s{sKVo} offen offset:{(pi&3)*1024} {SC1} lds", "KV")
            if wpre:
                kvd = VM(f"buffer_load_dwordx4 {T[11]}, {srd(S_KVD)}, {'0' if pi & 3 == 0 else 's%d' % (sSo3 + (pi & 3))} offen offset:{(pi&3)*1024} {SC1 if CW else ''} lds", "PW")
            rotate = [f"s_mov_b32 s{sT0}, s{sCur}", f"s_mov_b32 s{sCur}, s{sNext}", f"s_mov_b32 s{sNext}, s{sFree}", f"s_mov_b32 s{sFree}, s{sT0}",
                      f"s_add_u32 s{sKM}, s{sT0}, s{sM0}", f"s_add_u32 s{sIt}, s{sIt}, 1"]
            upd = [f"v_add_u32 {vCur}, s{sCur}, {vL16}", f"v_add_u32 {vNxt}, s{sNext}, {vL16}"]
            lg = 0 if (trace or not mer) else 2
            s, q = pi >> 2, pi & 3
            if pi == 14: w0 = [Need(["KV"], "lgkmcnt(0)"), "s_barrier"]
            elif mer and q == 0: w0 = [Need([("W", (s+1) % NS), ("X", s, 1)], "lgkmcnt(0)")]
            else: w0 = [f"s_waitcnt lgkmcnt({lg})"]
            put(ex, 0, w0)
            if pi % 8 == 7: put(ex, 0, tr_commit())
            if not mer:
                if pi < 8: put(ex, 3, f"s_mov_b32 m0, s{sKM}")
                if pi == 4: put(ex, 1, f"s_add_u32 s{sKVo}, s{sKVo}, 4096"); put(ex, 2, f"s_add_u32 s{sKM}, s{sKM}, 4096")
                if pi == 8: put(ex, 1, post_dma)
                if pi == 14: put(ex, 3, rotate[0]); put(ex, 4, rotate[1])
                if pi == 15: put(ex, 1, rotate[2]); put(ex, 2, rotate[3]); put(ex, 3, rotate[4]); put(ex, 4, rotate[5])
                put(ex, 1, ld[0]); put(ex, 2, ld[1])
                if pi < 8: put(ex, 4, kvd)
            else:
                G8 = [gm(s, 2*q + jj, i, first and s == 0) for jj in range(2) for i in range(4)]
                m0, d = w3dma(s, q)
                rd = wread((s+1) % NS, (s+1) & 1)
                if pi == 4: put(ex, 1, f"s_add_u32 s{sKVo}, s{sKVo}, 4096"); put(ex, 4, f"s_add_u32 s{sKM}, s{sKM}, 4096")
                if pi == 8: put(ex, 1, post_dma)
                if q == 0 and s > 0: put(ex, 6, adv3[1])
                if pi == 15:
                    for k, g_ in enumerate((4, 5, 6, 7, 8, 9)): put(ex, g_, rotate[k])
                if pi == 10 and PF: put(ex, 1, pfop[1])
                put(ex, 1, ld[0]); put(ex, 2, m0); put(ex, 3, d); put(ex, 4, ld[1])
                put(ex, 5, rd[2*q]); put(ex, 10 if q < 3 else 6, rd[2*q+1])
                put(ex, 7, xload(s, 2*q)); put(ex, 12, xload(s, 2*q+1))
                if q == 3: put(ex, 11, adv3[0])
                if pi < 8: put(ex, 8, f"s_mov_b32 m0, s{sKM}"); put(ex, 9, kvd)
                if wpre and pi in (4, 8): put(ex, 6, f"v_add_u32 {T[11]}, s{sAdv}, {T[11]}")
                if pi == 9 and PF:
                    put(ex, 9, pfop[0])
                    put(ex, 6, [f"s_cmp_eq_u32 s{sIt}, {PFSW}", f"s_cselect_b32 s{sPF}, 0, s{sPF}", f"s_cselect_b32 s{S_PF}, s{P_WO}, s{S_PF}",
                                f"s_cselect_b32 s{S_PF+1}, s{P_WO+1}, s{S_PF+1}", f"s_cselect_b32 s{S_PF+2}, 0x200000, s{S_PF+2}"])
                if pi == 12: put(ex, 9, cp(False))
                if wpre and XRE and pi >= 8:
                    j_ = pi - 8
                    put(ex, 8 if pi not in (15,) else 10, VM(f"buffer_load_dwordx4 {RE[j_]}, {vAF}, {srd(S_WS)}, s{sXP} offen offset:{(j_&1)*2048} {SC1}", ("XE", j_ >> 2)))
                    if j_ & 1: put(ex, 11, f"s_add_u32 s{sXP}, s{sXP}, {4096 if j_ < 7 else (-12288) & 0xffffffff}")
            if pi % 8 == 6: put(ex, 3, tr_issue())
            if hook: hook(pi, ex, None)
            if mer: out += phase_merged(ab, kp ^ ab, kp ^ 1 ^ ab, G8, ex)
            else: out += phase_plain(ab, kp ^ ab, kp ^ 1 ^ ab, ex, pi if first else 99)
        if mer: out += adv3[1:]
        out += upd
        return out

    dflt = {3: dict(hs=[1, 1], gs=23, hf=26, hp=36, hc=39, pf=[25, 28, 41]), 4: dict(hs=[2, 1], gs=32, hf=44, hp=50, hc=53, pf=[34, 38, 44, 56])}[NP]
    dflt.update(opt.get("sched", {}))
    HSN, HSD = dflt["hs"]; GS, HF, HPg, HC, PFP = dflt["gs"], dflt["hf"], dflt["hp"], dflt["hc"], dflt["pf"]
    assert len(PFP) == NP
    hst = hst0 + hst1a
    hph = [dflt.get("hs0", 0) + n*HSN//HSD for n in range(16)]
    assert EARLY3 or hph[-1] < GS
    hpoll = f"buffer_load_dwordx4 {vFl}, {T[4]}, {srd(S_WS)}, s{sT1} offen sc1"
    LASTP = 16*NP - 1
    wph = [GS + 1 + k // 2 for k in range(16)] if not EARLY3 else ([-1]*16 if EARLY3 > 1 else [2*(k // 2)*2 + 1 for k in range(16)])
    NXP = opt.get("nxp", 32)
    xph = [HC + 1 + (k * (LASTP - HC)) // NXP for k in range(NXP)] + [-1] * (32 - NXP)
    gloads = [VM(f"buffer_load_dword {vG[ab]}, {T[6]}, {srd(S_WS)}, s{sT2} offen offset:{ab*128} sc1", "G") for ab in range(2)]
    gloads += [VM(f"buffer_load_dword {SCL[j]}, {T[7]}, {srd(S_WS)}, s{sT3} offen offset:{j*64} sc1", "G") for j in range(8)]
    def hookM0(pi, ex, pre):
        n = NXP + pi
        if n < 32:
            s_, j_ = divmod(n, 8)
            put(ex, 6, VM(f"buffer_load_dwordx4 {RX[s_][j_]}, {vL16}, {srd(S_AF)}, s{sX3 + (j_>>2)} offen offset:{(j_&3)*1024} {SC1}", ("X", s_, j_ >> 2)))
        if pi >= 11: put(ex, 8, gloads[2*(pi - 11)]); put(ex, 11, gloads[2*(pi - 11) + 1])
    def mkhook(base):
        def hook(pi, ex, pre):
            gp = base + pi
            k = 0
            for n in range(16):
                if hph[n] == gp: put(ex, [0, 3][k], hst[n]); k += 1
            if gp == GS and not EARLY3:
                put(ex, 0, setup3.lines[:15]); put(ex, 1, setup3.lines[15:]); put(ex, 3, setup3v.lines + pfsetup)
            if gp in PFP and PF: put(ex, 3 if (gp & 15) >= 8 else 0, pfop)
            if gp in opt.get('cpg', (9, 16*NP - 22)): put(ex, 4, cp())
            k = 0
            for n in range(16):
                if wph[n] == gp:
                    s_, e_ = divmod(n, 4)
                    m0, d = w3dma(s_, e_)
                    if k == 0: ex[0] = ex[0] + [m0]
                    put(ex, k + 1, [d] + ([adv3[0]] if e_ == 3 else [])); k += 1
            if gp == HF:
                put(ex, 2, [Need(["H"]), "s_mov_b64 exec, 1", VM(f"buffer_store_dword {vNon}, {vZero}, {srd(S_WS)}, s{sFl} offen sc1", "HF"), "s_mov_b64 exec, -1", "s_nop 2"])
            if gp == HPg: put(ex, 3, [f"s_mov_b32 s{sT1}, {FL_H}", VM(hpoll, "HP")])
            if gp == HC:
                put(ex, 2, [Need(["HP"])] + check([vFl[k] for k in range(4)]) + ["s_cbranch_scc0 P3_SLOWH", "P3_HOK:"])
                put(ex, 3, [f"s_lshl_b32 s{sT2}, s{sRB}, 10", f"s_lshl_b32 s{sT3}, s{sW}, 8", f"s_add_u32 s{sT2}, s{sT2}, s{sT3}", f"s_add_u32 s{sT2}, s{sT2}, {G_OFF}",
                            f"s_lshl_b32 s{sT3}, s{sMT}, 9", f"s_add_u32 s{sT3}, s{sT3}, {G_OFF}"])
            k = 0
            for n in range(32):
                if xph[n] == gp:
                    s_, j_ = divmod(n, 8)
                    put(ex, [0, 3, 4, 2][k], [xload(s_, j_)] + (adv3[1:] if j_ == 7 else [])); k += 1
            if gp == LASTP:
                put(ex, 3, [Need([("W", 0)])] + wread(0, 0))
                if NXP == 24: put(ex, 5, [f"s_mov_b32 s{sX3}, s{sAo}", f"s_mov_b32 s{sX3+1}, s{sAo+1}"] + adv3[1:])
        return hook
    def retag(ch, cur, need):
        out = []
        for l in ch:
            if isinstance(l, VM) and l.tag == "KV": out.append(VM(l, cur))
            elif isinstance(l, Need) and "KV" in l.tags: out.append(Need([need], l.extra))
            else: out.append(l)
        return out
    hist = [VM(l, "KV-1") if isinstance(l, VM) and l.tag == "KV" else l for l in hist]
    CP = []; hh_ = list(hist)
    for c in range(NP):
        ch = resolve_waits(retag(chunk("plain", mkhook(16*c), first=(c == 0)), f"KV{c}", f"KV{c-1}"), hh_)
        CP.append(ch); hh_ += ch
    mA = retag(chunk("merged"), "KVa", "KVb"); mB = retag(chunk("merged"), "KVb", "KVa")
    mres = resolve_waits(mA, mB)
    M = mres
    M0 = resolve_waits(retag(chunk("merged", hookM0, first=True), "KVb", f"KV{NP-1}"), hh_)
    probs += verify_waits(hh_ + M0 + M, len(hh_ + M0), "M0->M")
    WPRE = opt.get("wpre", 1)
    if WPRE:
        MW = resolve_waits(retag(chunk("merged", wpre=True), "-", "KVa"), M)
        probs += verify_waits(M + MW + [l for l in MW if not (isinstance(l, Need) and "KVa" in l.tags)], len(M + MW), "MW->MW")
    mab = opt.get("mabl", "")
    def abl(L):
        out = []
        for l in L:
            if "x" in mab and isinstance(l, VM) and isinstance(l.tag, tuple) and l.tag[0] == "X": continue
            if "w" in mab and isinstance(l, VM) and isinstance(l.tag, tuple) and l.tag[0] == "W": continue
            if "t" in mab and l.startswith("ds_read_b64_tr"): continue
            if "k" in mab and l.startswith("ds_read_b128"): continue
            if "s" in mab and l.startswith(("s_add", "s_mov", "s_cmp", "s_cselect")) and f"s{sIt}" not in l and "exec" not in l: continue
            if "n" in mab and isinstance(l, Need): out.append("s_waitcnt lgkmcnt(0)" if l.extra else "s_nop 0"); continue
            if "g" in mab and l.startswith("v_mfma_f32_16x16") and "a[2" in l: continue
            out.append(l)
        return out
    Me = abl(M); M0e = abl(M0)
    D = Asm()
    D(f"s_mov_b32 s{sIt}, 0")
    cab = opt.get("cabl", "")
    def cabl(L):
        out = []
        for l in L:
            if "h" in cab and isinstance(l, VM) and l.tag == "H": continue
            if "k" in cab and isinstance(l, VM) and str(l.tag).startswith("KV"): continue
            if "r" in cab and l.startswith("ds_read_b128"): continue
            if "s" in cab and l.startswith(("s_mov_b32 m0", "s_add_u32")) and "s62" not in l: continue
            if "w" in cab and l.startswith("s_waitcnt lgkmcnt"): continue
            out.append(l)
        return out
    for c in range(NP): D.ext(ts.at(f"c{c}")); D.ext(cabl(CP[c]) if c < 2 else CP[c])
    D.ext(ts.at("m")); D.ext(M0e)
    D.ext(ts.at("m1"))
    D(".p2align 6\nP2_MLOOP:")
    D.ext(Me)
    if WPRE:
        D(f"""s_cmp_lt_u32 s{sIt}, 6
        s_cbranch_scc1 P2_MLOOP
        s_mov_b32 s{S_KVD}, s{sWo}
        s_mov_b32 s{S_KVD+1}, s{sWo+1}
        s_mov_b32 s{S_KVD+2}, s{sWoN}""")
        if CPF: D(cpa)
        D.ext(ts.at("mw"))
        D("P2_MWLOOP:")
        if "mw2" in ts.names: D.ext(ts.at("mw2"))
        D.ext(abl(MW))
        D(f"s_cmp_lt_u32 s{sIt}, 8\ns_cbranch_scc1 P2_MWLOOP")
        probs += check_hazards(M + MW + MW, "mw")
        M = MW
    else:
        D(f"s_cmp_lt_u32 s{sIt}, 8\ns_cbranch_scc1 P2_MLOOP")
    probs += check_hazards(B.lines[-8:] + sum(CP, []) + M0 + M + M, "att")
    A.ext(D.lines)

    C = Asm()
    C.ext(ts.at("attend"))
    C(f"""v_mfma_f32_32x32x16_bf16 {O[1]}, {V[1][0]}, {P[1].sub(0,4)}, {O[1]}
    {lsum(1)}
    v_mfma_f32_32x32x16_bf16 {O[1]}, {V[1][1]}, {P[1].sub(4,4)}, {O[1]}""")
    C(f"v_mov_b32 {T[1]}, 0")
    for r in range(16): C(f"v_fmac_f32 {T[1]}, 0, {O[0][r]}")
    for r in range(16): C(f"v_fmac_f32 {T[1]}, 0, {O[1][r]}")
    for ab in range(2): C(f"v_add_f32 {Lc[ab][0]}, {Lc[ab][0]}, {Lc[ab][1]}")
    C(f"""s_mov_b32 s{sT0}, {f2u(2.0**-20):#x}
    s_mov_b32 s{sT1}, {f2u(2.0**100):#x}
    v_cmp_le_f32 vcc, s{sT0}, {Lc[0][0]}
    v_cmp_le_f32 s[{S_C}:{S_C+1}], s{sT0}, {Lc[1][0]}
    s_nop 1
    s_and_b64 vcc, vcc, s[{S_C}:{S_C+1}]
    v_cmp_ge_f32 s[{S_C}:{S_C+1}], s{sT1}, {Lc[0][0]}
    v_cmp_ge_f32 s[{sT2}:{sT3}], s{sT1}, {Lc[1][0]}
    s_nop 1
    s_and_b64 vcc, vcc, s[{S_C}:{S_C+1}]
    s_and_b64 vcc, vcc, s[{sT2}:{sT3}]
    v_cmp_eq_f32 s[{S_C}:{S_C+1}], 0, {T[1]}
    s_nop 1
    s_and_b64 vcc, vcc, s[{S_C}:{S_C+1}]
    s_cmp_eq_u64 vcc, -1""")
    if opt.get("force_fallback"): C("s_branch P2_FALLBACK")
    C("s_cbranch_scc0 P2_FALLBACK")
    C("P2_FINISH:")
    for ab in range(2): C(f"v_rcp_f32 {T[2*ab]}, {Lc[ab][0]}")
    C(f"""s_add_u32 s{sT0}, s{sCB}, 112
    s_mul_i32 s{sT0}, s{sT0}, {AFS2}
    s_lshl_b32 s{sT1}, s{sRB}, 15
    s_add_u32 s{sT0}, s{sT0}, s{sT1}
    s_lshl_b32 s{sT1}, s{sW}, 13
    s_add_u32 s{sT0}, s{sT0}, s{sT1}
    s_add_u32 s{sT0}, s{sT0}, {AF2_OFF}
    s_add_u32 s{sT1}, s{sT0}, 4096
    v_and_b32 {vFl[2]}, 40, {vL}
    v_cmp_eq_u32 vcc, 40, {vFl[2]}
    v_add_u32 {vFl[2]}, 128, {vQP}
    s_nop 0
    v_cndmask_b32 {vFl[1]}, {vQP}, {vFl[2]}, vcc""")
    for ab in range(2): C(f"v_mul_f32 {T[2*ab]}, {T[2*ab]}, {vG[ab]}")
    for ab in range(2):
        for r in range(0, 16, 2):
            C(f"v_pk_mul_f32 {O[ab].sub(r,2)}, {O[ab].sub(r,2)}, {T.sub(2*ab,2)} op_sel_hi:[1,0]")
        for r in range(8): C(f"v_cvt_pk_bf16_f32 {S[ab][r]}, {O[ab][2*r]}, {O[ab][2*r+1]}")
        for c in range(2):
            C(VM(f"buffer_store_dwordx4 {S[ab].sub(4*c,4)}, {vFl[1+c]}, {srd(S_WS)}, s{sT0+ab} offen offset:{c*512} {SC1}", "O"))
    for j in range(8): C(f"v_sub_f32 {SCL[j]}, 1.0, {SCL[j]}")
    for j in range(8): C(f"v_cvt_pk_bf16_f32 {SCL[j]}, {SCL[j]}, {SCL[j]}")
    for j in range(8): C(f"v_and_b32 {SCL[j]}, 0xffff0000, {SCL[j]}")
    sFC = sL
    C(f"""s_lshl_b32 s{sFC}, s{sMT}, 9
    s_add_u32 s{sFC}, s{sFC}, {FL_O}
    s_add_u32 s{sFl}, s{sFl}, {FL_O - FL_H}""")
    C.ext(ts.at("tail"))
    EPI_IL = opt.get("epi_il", 1)
    groups = []
    if EPI_IL:
        n0 = next(k for k, l in enumerate(C.lines) if l.startswith("v_mov_b32") )
        rest = C.lines[n0:]; C.lines = C.lines[:n0]
        k0 = next(k for k, l in enumerate(rest) if l.startswith("s_mov_b32"))
        k1 = rest.index("P2_FINISH:")
        groups = [[l] for l in rest[:k0]] + [rest[k0:k1 + 1]] + [[l] for l in rest[k1 + 1:]]
    vPa = [O[0][i] for i in range(4)]; vPb = [O[0][4 + i] for i in range(4)]
    def pread(st, dst):
        base = vPb if st < 2 else vPa
        return [f"ds_read_b64_tr_b16 {dst[i].sub(2*hf,2)}, {base[i]} offset:{(st & 1)*4096 + hf*2048}" for i in range(4) for hf in range(2)]
    def p3iter(hook=None, now=False, skipx=False, usee=False):
        out = []
        for s in range(NS):
            m = [gm(s, j, i) for j in range(8) for i in range(4)]
            xt = lambda h: ("X", s, h)
            if usee and s == 0:
                m = [l.replace(str(RX[0][k // 4]), str(RE[k // 4])) for k, l in enumerate(m)]
                xt = lambda h: ("XE", h)
            f = {}
            if opt.get("t3", 1) == 0:
                f[-1] = [Need([("W", (s+1) % NS), ("X", s, 1)], "lgkmcnt(0)"), w3dma(s, 0)[0]]
                dgap = [0, 6, 14, 22]
                for e in range(4): put(f, dgap[e], w3dma(s, e)[1])
                for k, r in enumerate(wread((s + 1) % NS, (s+1) & 1)): put(f, 1 + 3*k, r)
                for j in range(8): put(f, 4*j + 3 + (1 if j < 7 else 0), xload(s, j))
            else:
                f[-1] = [Need([xt(0)], "lgkmcnt(0)"), w3dma(s, 0)[0]]
                dgap = opt.get("t3w", [0, 2, 6, 10])
                if now: f[-1] = f[-1][:1]
                else:
                    for e in range(4): put(f, dgap[e], w3dma(s, e)[1])
                put(f, 15, Need([xt(1)]))
                rg0 = opt.get("t3r", 18)
                if not (now and s == 3): put(f, rg0 - 1, Need([("W", (s+1) % NS)]))
                for k, r in enumerate(pread(0, RW[0]) if (now and s == 3) else wread((s + 1) % NS, (s+1) & 1)): put(f, rg0 + k + (1 if rg0 + k >= 20 else 0) + (1 if rg0 + k >= 23 else 0), r)
                if not (skipx and s == 0):
                    for j in range(8): put(f, 4*j + 3 + (1 if j < 7 else 0), xload(s, j))
            put(f, 31, adv3)
            put(f, 28, tr_issue())
            if trace: f[-1] = f[-1][:1] + tr_commit() + f[-1][1:]
            if hook: hook(s, f)
            out += interleave(m, f)
        return out
    opoll = f"buffer_load_dword {vFl[0]}, {T[5]}, {srd(S_WS)}, s{sFC} offen sc1"
    NT = NP - 2
    OFS, OPS = opt.get("oflag_step", 2), opt.get("opoll_step", 4*NT - 1 if NT == 1 else 4*NT - 2)
    def mkT(base):
        def hookT(s, f):
            if base == 0 and s < 2:
                R_ = opt.get("epi_rate", 3)
                for g_ in range(2 if s == 0 else 0, 31):
                    for _ in range(R_):
                        if groups: put(f, g_, groups.pop(0))
                assert s == 0 or not groups
            if base + s == OFS: put(f, 10, [Need(["O"]), "s_mov_b64 exec, 1", VM(f"buffer_store_dword {vNon}, {vZero}, {srd(S_WS)}, s{sFl} offen sc1", "OF"), "s_mov_b64 exec, -1", "s_nop 2"])
            if base + s == OPS: put(f, 26, VM(opoll, "OP"))
            if base + s == 1 and CPF: put(f, 14, [cpa, f"v_min_u32 v0, L_END-{CB0}-4, v0"] + cp(False))
        return hookT
    T5 = []
    XE_ = XRE and WPRE and NT >= 2
    for k in range(NT): T5 += resolve_waits(p3iter(mkT(4*k), skipx=XE_ and k == 0, usee=XE_ and k == 1), M + M + C.lines + T5)
    L3 = resolve_waits(p3iter())
    mid = [Need(["OP"])] + check([vFl[0]]) + ["s_cbranch_scc0 P3_SLOWO", "P3_OOK:",
           f"s_mov_b32 s{S_W3}, s{sWo}", f"s_mov_b32 s{S_W3+1}, s{sWo+1}", f"s_mov_b32 s{S_W3+2}, s{sWoN}",
           f"v_subrev_u32 {vW3o}, s{sAdv28}, {vW3o}", f"s_mov_b32 s{sIt}, 6", "s_barrier",
           f"v_add_u32 {T[0]}, 0x10000, {vL16}", f"v_and_b32 {T[1]}, 15, {vL}", f"v_lshlrev_b32 {T[1]}, 11, {T[1]}", f"v_bfe_u32 {T[2]}, {vL}, 4, 1",
           f"v_lshl_add_u32 {T[1]}, {T[2]}, 5, {T[1]}", f"v_lshrrev_b32 {T[2]}, 5, {vL}", f"v_lshl_add_u32 {T[1]}, {T[2]}, 4, {T[1]}",
           f"s_lshl_b32 s{sT0}, s{sMT}, 18", f"s_lshl_b32 s{sT1}, s{sW}, 16", f"s_add_u32 s{sT0}, s{sT0}, s{sT1}",
           f"s_lshl_b32 s{sT1}, s{sNT}, 7", f"s_add_u32 s{sT0}, s{sT0}, s{sT1}", f"s_add_u32 s{sT1}, s{sT0}, 32768"]
    if WPRE:
        mid += [f"s_lshl_b32 s{sT2}, s{sW}, 13", f"s_add_u32 s{sT2}, s{sT2}, {W3B}"]
        mid += [f"v_subrev_u32 {vPa[i]}, s{sT2}, {vW3a[i]}" for i in range(4)] + [f"v_add_u32 {vPb[i]}, 0x10000, {vPa[i]}" for i in range(4)]
    mid = resolve_waits(mid, T5)
    probs += verify_waits(M + C.lines + T5 + mid + L3, len(M + C.lines + T5 + mid), "T5->L3")
    tail = [f"s_add_u32 s{sIt}, s{sIt}, 1", f"s_cmp_eq_u32 s{sIt}, 8", "s_cbranch_scc1 P3_DONE", "s_nop 7"]
    for i in range(4):
        for j in range(8):
            for r in (0, 2):
                tail.append(f"v_pk_mul_f32 {acc3[i][j].sub(r,2)}, {acc3[i][j].sub(r,2)}, {SCL.sub(j & ~1, 2)} op_sel:[0,{j&1}] op_sel_hi:[1,{j&1}]")
    tail += ["s_nop 0", "s_branch P3_LOOP", "P3_DONE:"]
    probs += check_hazards(M[-30:] + C.lines + T5 + mid + L3 + tail + L3, "tail") + check_hazards(L3 + L3, "l3")
    tab = opt.get("tabl", "")
    def tabl(L):
        out = []
        for l in L:
            if isinstance(l, VM) and isinstance(l.tag, tuple) and l.tag[0].lower() in tab: continue
            if "t" in tab and l.startswith("ds_read_b64_tr"): continue
            if "m" in tab and l.startswith("v_mfma"): continue
            if "a" in tab and l in adv3: continue
            out.append(l)
        return out
    T5 = tabl(T5); L3 = tabl(L3)
    C.ext(T5); C.ext(ts.at("t5end")); C.ext(mid)
    if TCH > 2: C(f"; @@TOUCH x 3 s{sW}")
    C.ext(ts.at("l3"))
    if WPRE:
        XEND = opt.get("xend", 0)
        VA = [Reg("v", S[1].base + 4*j, 4) for j in range(8)]
        RXF = [RX[0], RX[1], VA, RE] if XEND else RX
        def hookL7(s, f):
            if XEND and s < 2:
                if s == 0: put(f, 0, [f"s_add_u32 s{sXP}, s{sW}, {4*34}", f"s_mul_i32 s{sXP}, s{sXP}, {AFS2}", f"s_lshl_b32 s{sT2}, s{sMT}, 14",
                                      f"s_add_u32 s{sXP}, s{sXP}, s{sT2}", f"s_add_u32 s{sXP}, s{sXP}, {AF2_OFF}"])
                for j in range(8):
                    put(f, 4*j + 2, VM(f"buffer_load_dwordx4 {RXF[2+s][j]}, {vAF}, {srd(S_WS)}, s{sXP} offen offset:{(j&1)*2048} {SC1}", ("X", 2 + s + 10, j >> 2)))
                    if j & 1: put(f, 4*j + 2, f"s_add_u32 s{sXP}, s{sXP}, {4096 if j < 7 else 4*AFS2 - 12288}")
            if XEND and s >= 2:
                for g_ in list(f): f[g_] = [l for l in f[g_] if not (isinstance(l, VM) and l.tag[0] == "X")]
            if s == 0:
                for j in range(8):
                    sc = [f"v_pk_mul_f32 {acc3[i][j].sub(r,2)}, {acc3[i][j].sub(r,2)}, {SCL.sub(j & ~1, 2)} op_sel:[0,{j&1}] op_sel_hi:[1,{j&1}]" for i in range(4) for r in (0, 2)]
                    if j == 0: put(f, -1, sc + ["s_nop 1"])
                    else:
                        for k in range(8): put(f, 4*(j - 1) + k // 3, sc[k])
        L7 = resolve_waits(p3iter(hookL7, now=True), L3 + L3)
        probs += check_hazards(L3 + L7, "l7")
        C.ext(L3); C.ext(tabl(L7)); C.ext(ts.at("l3end"))
        LPREV = L3 + L7
    else:
        C(".p2align 6\nP3_LOOP:")
        C.ext(L3); C.ext(tail); C.ext(ts.at("l3end"))
        LPREV = L3 + L3; RXF = RX; XEND = 0
    for w in range(3): C(f"s_cmp_eq_u32 s{sW}, {w}\ns_cbranch_scc1 P3_FIN{w}")
    A.ext(C.lines)
    RWF = [RW[0]] + [[Reg("a", 128 + 16*k + 4*i, 4) for i in range(4)] for k in range(3)]
    def fin(w):
        def adr(off): return (vL16, off) if off < 65536 else (T[0], off - 65536)
        own = [2*w, 2*w + 1]
        oth = [j for d in range(1, 4) for j in (2*((w + d) & 3), 2*((w + d) & 3) + 1)]
        mm = lambda s_, j, i: f"v_mfma_f32_16x16x32_bf16 {acc3[i][j]}, {RWF[s_][i]}, {RXF[s_][j]}, {acc3[i][j]}"
        m = [mm(0, j, i) for j in oth for i in range(4)]
        G0 = 24
        f = {}
        f[-1] = [Need([("X", 0, 1)] + ([] if WPRE else [("W", 1)]), "lgkmcnt(0)")]
        k = 0
        for s_ in (1, 2, 3):
            if s_ > 1 and not WPRE: put(f, k, Need([("W", s_)]))
            for r in (pread(s_, RWF[s_]) if WPRE else [f"ds_read_b64_tr_b16 {RWF[s_][i].sub(2*hf,2)}, {vW3a[i]} offset:{s_*4096 + hf*2048}" for i in range(4) for hf in range(2)]):
                put(f, k * 20 // 24, r); k += 1
        put(f, G0 - 1, Need([("X", 1, 1), ("X", 13, 1)] if (WPRE and XEND) else [("X", 3, 1)], "lgkmcnt(0)"))
        if WPRE: put(f, G0 - 1, "s_barrier")
        for j in oth: m += [mm(s_, j, i) for s_ in (1, 2, 3) for i in range(4)]
        for j in own: m += [mm(s_, j, i) for s_ in (0, 1, 2, 3) for i in range(4)]
        WS_ = opt.get("fws", 3)
        for n, j in enumerate(oth):
            d = j >> 1; q = (w - d - 1) & 3
            for i in range(4):
                b_, off = adr((d*3 + q)*8192 + ((j & 1)*4 + i)*1024)
                put(f, G0 + 12*(n + 1) + 5 + (WS_ if n < 5 else 1)*i, f"ds_write_b128 {b_}, {acc3[i][j]} offset:{off}")
        free = [acc3[i][j] for j in oth for i in range(4)]
        g0 = G0 + 12*6 + 5 + 6
        put(f, g0, ["s_waitcnt lgkmcnt(0)", "s_barrier"])
        k = 0
        for q in range(3):
            for jj in range(2):
                for i in range(4):
                    b_, off = adr((w*3 + q)*8192 + (jj*4 + i)*1024)
                    put(f, min(g0 + (k * 3) // 4, 127), f"ds_read_b128 {free[k]}, {b_} offset:{off}"); k += 1
        R = Asm()
        Fl = resolve_waits(interleave(m, f), LPREV)
        if opt.get("fabl"): Fl = [l for l in Fl if not l.startswith(tuple(opt["fabl"]))]
        R.ext(Fl)
        R.ext(ts.at("redw"))
        R("s_nop 3")
        for q in range(3):
            R(f"s_waitcnt lgkmcnt({[15, 8, 0][q] if not ts.on else 0})")
            for jj in range(2):
                for i in range(4):
                    a = acc3[i][2*w+jj]; b = free[q*8 + jj*4 + i]
                    for r in (0, 2): R(f"v_pk_add_f32 {a.sub(r,2)}, {a.sub(r,2)}, {b.sub(r,2)}")
        for jj in range(2):
            for ip in range(2):
                X, Y = acc3[2*ip][2*w+jj], acc3[2*ip+1][2*w+jj]
                Dd = S[0].sub(4*(jj*2+ip), 4)
                R(f"v_cvt_pk_bf16_f32 {Dd[0]}, {X[0]}, {X[1]}\nv_cvt_pk_bf16_f32 {Dd[1]}, {X[2]}, {X[3]}")
                R(f"v_cvt_pk_bf16_f32 {Dd[2]}, {Y[0]}, {Y[1]}\nv_cvt_pk_bf16_f32 {Dd[3]}, {Y[2]}, {Y[3]}")
                R(f"s_nop 1\nv_permlane16_swap_b32 {Dd[0]}, {Dd[2]}\nv_permlane16_swap_b32 {Dd[1]}, {Dd[3]}")
                R(f"buffer_store_dwordx4 {Dd}, {T[1]}, {srd(S_OUT)}, s{sT0+jj} offen offset:{ip*64} {opt.get('outflag', '')}")
        if trace:
            R(f"""s_waitcnt vmcnt(0)
            s_memrealtime s[100:101]
            s_waitcnt lgkmcnt(0)
            s_lshl_b64 exec, 1, s81
            v_mov_b32 v0, s100
            s_mov_b64 exec, -1
            s_lshl_b32 s80, s2, 2
            s_add_u32 s80, s80, s{sW}
            s_lshl_b32 s80, s80, 8
            s_add_u32 s80, s80, {TS_OFF}
            v_lshlrev_b32 {T[3]}, 2, {vL}
            buffer_store_dword v0, {T[3]}, {srd(S_WS)}, s80 offen
            s_waitcnt vmcnt(0) ; TRACE""")
        if opt.get("dbgt"):
            R(f"""s_waitcnt vmcnt(0) lgkmcnt(0)
            s_memrealtime s[100:101]
            s_waitcnt lgkmcnt(0)
            s_mov_b32 s{S_C}, s{P_DBG}
            s_mov_b32 s{S_C+1}, s{P_DBG+1}
            s_mov_b32 s{S_C+2}, 256
            s_mov_b64 exec, 1""")
            for i in range(10):
                R(f"""s_sub_u32 s80, s{82+2*i}, s{sNonce}
                s_add_u32 s80, s80, 1000
                v_mov_b32 {T[3]}, s80
                buffer_atomic_umax {T[3]}, {vZero}, {srd(S_C)}, 0 offen offset:{8 + 4*i}""")
            R("s_waitcnt vmcnt(0)")
        else:
            R.ext(ts.flush(S_WS, sW, S[1].base))
        R("s_endpgm")
        return R
    for w in (3, 0, 1, 2):
        R = fin(w)
        probs += check_hazards(LPREV[-10:] + R.lines, f"fin{w}")
        A(f"P3_FIN{w}:\n; @@PAD@@"); A.ext(R.lines)
    A.ext(slow1.lines)
    A("P3_SLOWH:"); A.ext(spin("P3_SH", hpoll, [vFl[k] for k in range(4)], "P3_HOK"))
    A("P3_SLOWO:"); A.ext(spin("P3_SO", opoll, [vFl[0]], "P3_OOK"))

    F = Asm()
    F("P2_FALLBACK:")
    for ab in range(2): F(f"v_mov_b32 {T[ab]}, 0xff800000")
    F(f"s_mov_b32 s{sT0}, {KV_OFF}")
    F("P2_FB1:")
    for t in range(2): F(f"buffer_load_dwordx4 {K[0][t]}, {vL16}, {srd(S_WS)}, s{sT0} offen offset:{t*1024} {SC1}")
    F("s_waitcnt vmcnt(0)")
    for ab in range(2):
        F(f"v_mfma_f32_32x32x16_bf16 {S[ab]}, {K[0][0]}, {Q[ab][0]}, 0\nv_mfma_f32_32x32x16_bf16 {S[ab]}, {K[0][1]}, {Q[ab][1]}, {S[ab]}")
    F("s_nop 15")
    for ab in range(2):
        for r in range(0, 16, 2): F(f"v_max3_f32 {T[ab]}, {S[ab][r]}, {S[ab][r+1]}, {T[ab]}")
    F(f"s_add_u32 s{sT0}, s{sT0}, 4096\ns_cmp_lt_u32 s{sT0}, {KV_OFF + 262144}\ns_cbranch_scc1 P2_FB1")
    for ab in range(2): F(f"v_mov_b32 {T[2+ab]}, {T[ab]}")
    F("s_nop 1")
    for ab in range(2): F(f"v_permlane32_swap_b32 {T[ab]}, {T[2+ab]}")
    for ab in range(2): F(f"v_max_f32 {vFl[ab]}, {T[ab]}, {T[2+ab]}")
    for ab in range(2):
        for r in range(16): F(f"v_mov_b32 {O[ab][r]}, 0")
        for r in range(4): F(f"v_mov_b32 {Lc[ab][r]}, 0")
    F(f"s_mov_b32 s{sT0}, {KV_OFF}")
    F("P2_FB2:")
    for t in range(2): F(f"buffer_load_dwordx4 {K[0][t]}, {vL16}, {srd(S_WS)}, s{sT0} offen offset:{t*1024} {SC1}")
    for t in range(2): F(f"buffer_load_dwordx4 {V[0][t]}, {vL16}, {srd(S_WS)}, s{sT0} offen offset:{2048 + t*1024} {SC1}")
    F("s_waitcnt vmcnt(0)")
    for ab in range(2):
        F(f"v_mfma_f32_32x32x16_bf16 {S[ab]}, {K[0][0]}, {Q[ab][0]}, 0\nv_mfma_f32_32x32x16_bf16 {S[ab]}, {K[0][1]}, {Q[ab][1]}, {S[ab]}")
    F("s_nop 15")
    for ab in range(2):
        for r in range(16): F(f"v_sub_f32 {S[ab][r]}, {S[ab][r]}, {vFl[ab]}")
        for r in range(16): F(f"v_exp_f32 {S[ab][r]}, {S[ab][r]}")
        F("s_nop 0")
        for r in range(8): F(f"v_cvt_pk_bf16_f32 {P[ab][r]}, {S[ab][2*r]}, {S[ab][2*r+1]}")
    F("s_nop 1")
    for ab in range(2):
        for u_ in range(2):
            F(f"v_mfma_f32_32x32x16_bf16 {O[ab]}, {V[0][u_]}, {P[ab].sub(4*u_,4)}, {O[ab]}")
            if u_ == 0: F(lsum(ab))
    F(f"s_add_u32 s{sT0}, s{sT0}, 4096\ns_cmp_lt_u32 s{sT0}, {KV_OFF + 262144}\ns_cbranch_scc1 P2_FB2")
    F("s_nop 15")
    for ab in range(2): F(f"v_add_f32 {Lc[ab][0]}, {Lc[ab][0]}, {Lc[ab][1]}")
    F("s_branch P2_FINISH")
    F("L_END:\ns_endpgm")
    probs += check_hazards(F.lines, "fb")
    A.ext(F.lines)
    for p_ in probs: print("PROBLEM", p_)
    launch = f"; @launch grid=(256,1,1) block=(256,1,1) lds=163840"
    return launch, A.text(), kdesc(NAME, 512, 256)

HDR = open("gated_mix__grouped_kv_mqa__glu_gated_reglu__prompt.s.ref").read().split("; Override launch")[0]
def build(opt=None):
    l, t, d = gen(opt)
    txt = HDR + l + "\n" + '.amdgcn_target "amdgcn-amd-amdhsa--gfx950"\n.text\n' + t + d
    if (opt or {}).get("touch", 3):
        import touch
        txt, pads = touch.apply(txt, NAME, [("P1_G0", "P1_MID"), ("P1_MID", "P2_PRE"), ("P2_POLL_OK", (opt or {}).get("tend", "P3_FIN3")), ("P3_FIN3", "P1_SLOWN")][:1 + (opt or {}).get("touch", 3)], (opt or {}).get("tnl", 1), (opt or {}).get("talign", 0), (opt or {}).get("toff", 0x300))
    if (opt or {}).get("skip3"):
        import skip3
        txt = skip3.apply(txt, NAME, *opt["skip3"])
    return txt
if __name__ == "__main__":
    import sys, json
    out = sys.argv[1] if len(sys.argv) > 1 else "gated_mix__grouped_kv_mqa__glu_gated_reglu__prompt.s"
    opt = json.loads(sys.argv[2]) if len(sys.argv) > 2 else {}
    open(out, "w").write(build(opt))
```

```python
from asmlib import *
from common import *
LOG2E = math.log2(math.e)
NAME = "gated_mix__grouped_kv_mqa__glu_gated_reglu__prompt_kernel"

FL_E = 0x1650000
FL_ES = 4352
FL_Q = 0x1660000
FL_H = 0x1670000
FL_O = 0x1672000
SPIN_MAX = 1 << 20
PW = 7168

def put(f, g, x):
    f.setdefault(g, []).extend(x if isinstance(x, list) else [x])

def gen(opt=None):
    opt = opt or {}
    A = Asm()
    DEF = ["start", "p1", "p1end", "kvdone", "poll0", "poll1", "att", "attend", "tail"]
    tsn = opt.get("ts")
    ts = TSN(DEF if tsn == 1 else tsn, opt.get("tskind", "rt"))
    SC1 = "sc1"
    probs = []
    P_X, P_WQ, P_WK, P_WV, P_WO = 4, 6, 8, 10, 12
    P_WG, P_WU, P_WD, P_GW = 16, 18, 20, 22
    P_OUT, P_DBG, P_WS = 24, 26, 28
    S_WS, S_A, S_B, S_C, S_D, S_E = 32, 36, 40, 44, 48, 52
    sW, sNonce = 56, 57
    sT0, sT1, sT2, sT3 = 58, 59, 60, 61
    sIt, sRB, sCB = 62, 63, 64
    sL = 65
    vL, vL16 = Reg("v", 1, 1), Reg("v", 2, 1)
    def srd(b): return f"s[{b}:{b+3}]"

    A("""; LOCALQ AFS4
; (published in d_debug by workgroup 0); consumers poll the flags and read the data with sc1 loads.""")
    A(f".globl {NAME}\n.p2align 8\n.type {NAME},@function\n{NAME}:")
    A("s_cmp_ge_u32 s2, 256\ns_cbranch_scc1 L_END")
    A.ext(ts.at("start"))
    A(f"""s_load_dwordx8 s[4:11], s[0:1], 0
    s_load_dwordx2 s[12:13], s[0:1], 32
    s_load_dwordx8 s[16:23], s[0:1], 48
    s_load_dwordx4 s[24:27], s[0:1], 80
    s_load_dwordx2 s[28:29], s[0:1], 96
    s_memrealtime s[30:31]""")
    if opt.get("touch", 3): A("; @@ALIGN@@")
    A(f"""v_lshrrev_b32 v3, 6, v0
    v_and_b32 {vL}, 63, v0
    v_readfirstlane_b32 s{sW}, v3
    v_lshlrev_b32 {vL16}, 4, {vL}""")
    CPF = opt.get("cpf", 1) and not opt.get("trace")
    sPC = 100
    CB0 = "TA_AL" if opt.get("touch", 3) else NAME
    cpf = VM(f"global_load_dword a253, v0, s[{sPC}:{sPC+1}]", "CP")
    cpa = "v_add_u32 v0, 0x2000, v0"
    def cp(adv=True): return ([cpf] + ([cpa] if adv else [])) if CPF else []
    if CPF:
        A(f"""s_getpc_b64 s[{sPC}:{sPC+1}]
        L_PCREF:
        v_lshrrev_b32 v0, 2, v0
        v_lshlrev_b32 v0, 7, v0
        s_sub_u32 s{sPC}, s{sPC}, L_PCREF-{CB0}
        s_subb_u32 s{sPC+1}, s{sPC+1}, 0""")
    EP = opt.get("ep", "w0,pg,entry").split(",")
    def entry_pf(tmp):
        if not CPF: return
        if "w0" in EP: A.ext(cp())
        else: A(cpa)
        if opt.get("touch", 3) and "pg" in EP:
            A(f"""v_lshrrev_b32 v{tmp}, 2, {vL}
            v_lshlrev_b32 v{tmp}, 12, v{tmp}
            v_add_u32 v{tmp}, {'0x1000' if opt.get('talign', 0) else '0x1000-%d-(TA_AL-%s)' % (opt.get('toff', 0x300), NAME)}, v{tmp}
            global_load_dword a254, v{tmp}, s[{sPC}:{sPC+1}]""")
    if "entry" in EP: entry_pf(4)
    if opt.get("ticket", 0):
        A(f"""s_getreg_b32 s{sT0}, hwreg(HW_REG_XCC_ID)
        s_and_b32 s{sT0}, s{sT0}, 7
        s_cmp_lg_u32 s{sW}, 0
        s_cbranch_scc1 L_TKWAIT
        v_mov_b32 v5, 0
        s_mov_b32 s{sT1}, 8
        s_mov_b32 s{S_WS+2}, 256
        s_mov_b32 s{S_WS+3}, 0x20000
        s_waitcnt lgkmcnt(0)
        s_mov_b32 s{S_WS}, s{P_DBG}
        s_mov_b32 s{S_WS+1}, s{P_DBG+1}
        s_mov_b64 exec, 1
        L_TKTRY:
        v_mov_b32 v4, 1
        s_lshl_b32 s{sT2}, s{sT0}, 5
        buffer_atomic_add v4, v5, {srd(S_WS)}, s{sT2} offen offset:4 sc0
        s_waitcnt vmcnt(0)
        v_readfirstlane_b32 s{sT2}, v4
        s_cmp_lt_u32 s{sT2}, 32
        s_cbranch_scc1 L_TKGOT
        s_add_u32 s{sT0}, s{sT0}, 1
        s_and_b32 s{sT0}, s{sT0}, 7
        s_sub_u32 s{sT1}, s{sT1}, 1
        s_cmp_lg_u32 s{sT1}, 0
        s_cbranch_scc1 L_TKTRY
        s_mov_b32 s{sT2}, 32
        L_TKGOT:
        s_lshl_b32 s{sT2}, s{sT2}, 3
        s_add_u32 s{sT2}, s{sT2}, s{sT0}
        v_mov_b32 v4, s{sT2}
        ds_write_b32 v5, v4
        s_mov_b64 exec, -1
        s_waitcnt lgkmcnt(0)
        L_TKWAIT:
        v_mov_b32 v5, 0
        s_barrier
        ds_read_b32 v4, v5
        s_waitcnt lgkmcnt(0)
        v_readfirstlane_b32 s2, v4
        s_barrier
        s_cmp_ge_u32 s2, 256
        s_cbranch_scc1 L_END""")
    trace = opt.get("trace")
    def tr_issue(): return ["s_memrealtime s[100:101]"] if trace else []
    def tr_commit(): return ["s_lshl_b64 exec, 1, s81", "v_mov_b32 v0, s100", "s_mov_b64 exec, -1", "s_add_u32 s81, s81, 1"] if trace else []
    if trace: A("s_mov_b32 s81, 0\nv_mov_b32 v0, 0\ns_memrealtime s[100:101]\ns_waitcnt lgkmcnt(0)"); A.ext(tr_commit())
    S_X, S_W0, S_W1, S_KV, S_Wb = S_A, S_B, S_C, S_D, S_E
    sSoX = sL - 1
    sSo0 = sL + 7
    sSo1 = sL + 7
    sM0X, sM0W, sM0K, sWwr = sL + 11, sL + 12, sL + 13, sL + 14
    sWrd, s16k, sStep1, sSa, sSc, sIsB, sKVst, sEfl = 14, 30, 15, 3, 31, 9, 10, 11
    XB, WB, KR = 0, 65536, 147456
    vXo = [3, 4]; vWo0, vWo1, vKo, vSXo = 5, 6, 7, 8
    vXa = [9, 10]; vW0a = [[11 + 2*i, 12 + 2*i] for i in range(4)]; vW1a = [19, 20, 21, 22]; vSWa = 23
    vT = 24
    acc = [[None]*8 for _ in range(8)]
    p = 32
    for i in range(7):
        for j in range(8):
            acc[i][j] = Reg("v", p, 4); p += 4
    RA = [[Reg("a", 64*s + 4*i, 4) for i in range(8)] for s in range(2)]
    RB = [[Reg("a", 64*s + 32 + 4*j, 4) for j in range(8)] for s in range(2)]
    SA = [Reg("a", 128 + 4*s, 4) for s in range(2)]
    sacc = Reg("a", 144, 4)
    for j in range(8): acc[7][j] = Reg("a", 148 + 4*j, 4)
    SXB = [[Reg("a", 180 + 8*b + 4*j, 4) for j in range(2)] for b in range(2)]
    GXa = [Reg("a", 196 + 8*r, 8) for r in range(2)]
    GWa = Reg("a", 212, 8)
    t0, t1, t2, t3, t4, t5, t6, t7 = range(vT, vT + 8)
    HUGE = 0x40000000
    KP = opt.get("kp", [0, 1, 2, 4, 5, 6, 7, 8, 9, 10, 12, 13, 14, 15, 3, 11])
    sCWa, sCWb = 6, 7

    A(f"""s_and_b32 s{sT0}, s2, 1
    s_lshl_b32 s{sT0}, s{sT0}, 2
    s_bfe_u32 s{sT1}, s2, 0x20003
    s_add_u32 s{sRB}, s{sT0}, s{sT1}
    s_bfe_u32 s{sT0}, s2, 0x20001
    s_lshl_b32 s{sT0}, s{sT0}, 3
    s_lshr_b32 s{sT1}, s2, 5
    s_add_u32 s{sCB}, s{sT0}, s{sT1}""")
    A(f"""s_lshl_b32 s{sT0}, s{sW}, 6
    v_lshrrev_b32 v{t0}, 3, {vL}
    v_add_u32 v{t2}, s{sT0}, v{t0}
    v_lshlrev_b32 v{t2}, 11, v{t2}
    v_lshrrev_b32 v{t1}, 4, {vL}
    v_and_b32 v{t3}, 7, {vL}
    v_xor_b32 v{t4}, v{t3}, v{t1}
    v_lshl_add_u32 v{vXo[0]}, v{t4}, 4, v{t2}
    v_add_u32 v{vXo[0]}, {KP[0]*128}, v{vXo[0]}
    v_xor_b32 v{vXo[1]}, 64, v{vXo[0]}""")
    for e in range(1, 8): A(f"s_mov_b32 s{sSoX+e}, {e*16384 - (e&3)*1024}")
    A(f"""s_lshl_b32 s{sM0X}, s{sW}, 13
    s_lshl_b32 s{sM0W}, s{sW}, 11
    s_add_u32 s{sM0K}, s{sM0W}, {KR}
    s_add_u32 s{sM0W}, s{sM0W}, {WB}
    s_and_b32 s{sT1}, s{sCB}, 3
    s_mov_b32 s{sStep1}, {PW}
    s_cmp_eq_u32 s{sT1}, 3
    s_cselect_b32 s{sStep1}, 2048, s{sStep1}""")
    A(f"""s_lshl_b32 s{sT0}, s{sW}, 3
    v_add_u32 v{t2}, s{sT0}, v{t1}
    v_mul_lo_u32 v{t2}, v{t2}, s{sStep1}
    s_and_b32 s{sT1}, s{sW}, 1
    s_lshl_b32 s{sT2}, s{sT1}, 3
    v_and_b32 v{t4}, 15, {vL}
    v_lshl_or_b32 v{t5}, v{t1}, 1, s{sT2}
    v_xor_b32 v{t4}, v{t4}, v{t5}
    v_lshl_add_u32 v{vWo1}, v{t4}, 4, v{t2}
    v_add_u32 v{t2}, s{sT0}, v{t0}
    v_mul_u32_u24 v{t2}, {PW}, v{t2}
    s_lshl_b32 s{sT2}, s{sT1}, 2
    v_and_b32 v{t4}, 1, v{t1}
    v_lshl_or_b32 v{t4}, v{t4}, 1, s{sT2}
    v_xor_b32 v{t4}, v{t4}, v{t3}
    v_lshl_add_u32 v{vWo0}, v{t4}, 4, v{t2}""")
    A.ext(ts.at("a0"))
    A("s_waitcnt lgkmcnt(0)")
    A.ext(ts.at("a1"))
    A(f"""s_lshl_b32 s{sT0}, s{sRB}, 19
    s_add_u32 s{S_X}, s{P_X}, s{sT0}
    s_addc_u32 s{S_X+1}, s{P_X+1}, 0
    s_mov_b32 s{S_X+2}, 0x80000
    s_mov_b32 s{S_X+3}, 0x20000""")
    A(f"""s_mov_b32 s{S_WS+3}, 0x20000
    s_or_b32 s{sT0}, s2, s{sW}
    s_cmp_lg_u32 s{sT0}, 0
    s_cbranch_scc1 P1_NONONCE
    s_or_b32 s30, s30, 1
    s_mov_b32 s{S_WS}, s{P_DBG}
    s_mov_b32 s{S_WS+1}, s{P_DBG+1}
    s_mov_b32 s{S_WS+2}, 256
    v_mov_b32 v{t6}, s30
    v_mov_b32 v{t7}, 0
    s_mov_b64 exec, 1
    buffer_store_dword v{t6}, v{t7}, {srd(S_WS)}, 0 offen sc1
    s_mov_b64 exec, -1
    P1_NONONCE:""")
    WNT = opt.get("wnt", "")
    def xdma(par):
        sl = []
        for e in range(8):
            pre = []
            if e == 0: pre = [f"s_add_u32 m0, s{sM0X}, {par}"]
            if e == 4: pre = ["s_add_u32 m0, m0, 4096"]
            so = "0" if e == 0 else f"s{sSoX+e}"
            sl.append((pre, VM(f"buffer_load_dwordx4 v{vXo[e&1]}, {srd(S_X)}, {so} offen offset:{(e&3)*1024} {opt.get('xnt', '')} lds", "X")))
        return sl
    def wdma(hb, slot):
        so0 = "0" if hb == 0 else f"s{sSo0}"
        so1 = ["0" if hb == 0 else f"s{sSo1+2}", f"s{sSo1 + 1 + 2*hb}"]
        return [([f"s_add_u32 m0, s{sM0W}, {slot}"], VM(f"buffer_load_dwordx4 v{vWo0}, {srd(S_W0)}, {so0} offen {WNT} lds", "W")),
                ([], VM(f"buffer_load_dwordx4 v{vWo0}, {srd(S_Wb)}, {so0} offen offset:1024 {WNT} lds", "W")),
                (["s_add_u32 m0, m0, 40960"], VM(f"buffer_load_dwordx4 v{vWo1}, {srd(S_W1)}, {so1[0]} offen {WNT} lds", "W")),
                ([], VM(f"buffer_load_dwordx4 v{vWo1}, {srd(S_W1)}, {so1[1]} offen offset:1024 {WNT} lds", "W"))]
    def kdma(slot):
        return [([f"s_add_u32 m0, s{sM0K}, {slot}"], VM(f"buffer_load_dwordx4 v{vKo}, {srd(S_KV)}, 0 offen lds", "X")),
                ([], VM(f"buffer_load_dwordx4 v{vKo}, {srd(S_KV)}, 0 offen offset:1024 lds", "X"))]
    def sxload(b): return [VM(f"buffer_load_dwordx4 {SXB[b][j]}, v{vSXo}, {srd(S_X)}, 0 offen offset:{j*64}", "SX") for j in range(2)]
    def emit_dma(X, sl):
        for pre, d in sl:
            X.ext(pre)
            if pre: X("s_nop 0")
            X(d)
    emit_dma(A, xdma(0))
    A.ext(ts.at("a2"))
    A(f"""s_lshr_b32 s{sT0}, s{sCB}, 2
    s_and_b32 s{sT1}, s{sCB}, 3
    s_mul_i32 s{sT2}, s{sT0}, 896
    s_lshl_b32 s{sT3}, s{sT1}, 8
    s_add_u32 s{sT2}, s{sT2}, s{sT3}
    s_add_u32 s{S_W0}, s{P_WG}, s{sT2}
    s_addc_u32 s{S_W0+1}, s{P_WG+1}, 0
    s_sub_u32 s{S_W0+2}, {1024*PW}, s{sT2}
    s_mov_b32 s{S_W0+3}, 0x20000
    s_mov_b32 s{S_W1+3}, 0x20000
    s_mov_b32 s{S_Wb+3}, 0x20000
    s_mov_b32 s{sSo0}, {32*PW}
    s_cmp_eq_u32 s{sT1}, 3
    s_cbranch_scc1 P1_SRDB
    s_add_u32 s{S_Wb}, s{S_W0}, {4*PW - 1024}
    s_addc_u32 s{S_Wb+1}, s{S_W0+1}, 0
    s_sub_u32 s{S_Wb+2}, s{S_W0+2}, {4*PW - 1024}
    s_add_u32 s{S_W1}, s{P_WU}, s{sT2}
    s_addc_u32 s{S_W1+1}, s{P_WU+1}, 0
    s_mov_b32 s{S_W1+2}, s{S_W0+2}
    v_mov_b32 v{vWo0}, v{vWo1}
    s_branch P1_SRDD
    P1_SRDB:
    s_add_u32 s{S_Wb}, s{P_WU}, s{sT2}
    s_addc_u32 s{S_Wb+1}, s{P_WU+1}, 0
    s_sub_u32 s{S_Wb}, s{S_Wb}, 1024
    s_subb_u32 s{S_Wb+1}, s{S_Wb+1}, 0
    s_add_u32 s{S_Wb+2}, s{S_W0+2}, 1024
    s_lshl_b32 s{sT0}, s{sT0}, 8
    s_add_u32 s{S_W1}, s{P_WQ}, s{sT0}
    s_addc_u32 s{S_W1+1}, s{P_WQ+1}, 0
    s_sub_u32 s{S_W1+2}, {1024*2048}, s{sT0}
    P1_SRDD:
    s_lshl_b32 s{sSo1+1}, s{sStep1}, 2
    s_sub_u32 s{sSo1+1}, s{sSo1+1}, 1024
    s_lshl_b32 s{sSo1+2}, s{sStep1}, 5
    s_add_u32 s{sSo1+3}, s{sSo1+2}, s{sSo1+1}
    s_lshl_b32 s{sStep1}, s{sStep1}, 6""")
    def advXf(a, b):
        d = (KP[b] - KP[a]) * 128 & 0xffffffff
        return [f"v_add_u32 v{vXo[0]}, {d:#x}, v{vXo[0]}", f"v_add_u32 v{vXo[1]}, {d:#x}, v{vXo[1]}"]
    def advWf(a, b):
        d = KP[b] - KP[a]
        if d == 1: return [f"v_add_u32 v{vWo0}, {64*PW}, v{vWo0}", f"v_add_u32 v{vWo1}, s{sStep1}, v{vWo1}"]
        return [f"v_add_u32 v{vWo0}, {d*64*PW & 0xffffffff:#x}, v{vWo0}", f"s_mul_i32 s{sT3}, s{sStep1}, {d}\nv_add_u32 v{vWo1}, s{sT3}, v{vWo1}"]
    if KP[0]:
        A(f"""v_add_u32 v{vWo0}, {KP[0]*64*PW}, v{vWo0}
        s_mul_i32 s{sT3}, s{sStep1}, {KP[0]}
        v_add_u32 v{vWo1}, s{sT3}, v{vWo1}""")
    advK = f"v_add_u32 v{vKo}, 4096, v{vKo}"
    advS = f"v_add_u32 v{vSXo}, 128, v{vSXo}"
    emit_dma(A, wdma(0, 0)); emit_dma(A, wdma(1, 8192))
    A.ext(advXf(0, 1) + advWf(0, 1))
    A(f"""s_bfe_u32 s{sT0}, s{sCB}, 0x10001
    s_and_b32 s{sT1}, s{sW}, 1
    s_bitcmp1_b32 s{sCB}, 0
    s_cselect_b32 s{S_KV}, s{P_WV}, s{P_WK}
    s_cselect_b32 s{S_KV+1}, s{P_WV+1}, s{P_WK+1}
    s_cselect_b32 s{sSa}, s{sT1}, s{sT0}
    s_cselect_b32 s{sSc}, s{sT0}, s{sT1}
    s_mov_b32 s{S_KV+2}, 65536
    s_mov_b32 s{S_KV+3}, 0x20000
    s_and_b32 s{sIsB}, s{sCB}, 3
    s_cmp_eq_u32 s{sIsB}, 3
    s_cselect_b32 s{sIsB}, 1, 0
    v_lshrrev_b32 v{t2}, 5, {vL}
    v_lshlrev_b32 v{t2}, 1, v{t2}
    v_xor_b32 v{t2}, v{t2}, {vL}
    v_lshlrev_b32 v{t2}, 4, v{t2}
    s_lshr_b32 s{sT2}, s{sW}, 1
    s_lshl_b32 s{sT0}, s{sT2}, 15
    s_lshl_b32 s{sT1}, s{sT1}, 11
    s_add_u32 s{sT0}, s{sT0}, s{sT1}
    v_add_u32 v{vKo}, s{sT0}, v{t2}
    s_lshr_b32 s{sT0}, s{sCB}, 2
    s_lshl_b32 s{sT0}, s{sT0}, 1
    s_add_u32 s{sT0}, s{sT0}, s{sSa}
    s_lshl_b32 s{sT0}, s{sT0}, 15
    s_lshl_b32 s{sT2}, s{sT2}, 10
    s_add_u32 s{sT0}, s{sT0}, s{sT2}
    v_and_b32 v{t2}, 15, {vL}
    v_lshlrev_b32 v{t2}, 11, v{t2}
    v_lshl_add_u32 v{t2}, v{t1}, 4, v{t2}
    v_add_u32 v{vSXo}, s{sT0}, v{t2}""")
    emit_dma(A, kdma(0)); A.ext(sxload(0)); A(advK); A(advS)
    A(f"""s_mov_b32 s{S_WS}, s{P_WS}
    s_mov_b32 s{S_WS+1}, s{P_WS+1}
    s_mov_b32 s{S_WS+2}, {WS_USED}""")
    if "late" in EP: entry_pf(t7)
    A.ext(ts.at("a3"))
    second = xdma(32768) + wdma(0, 2*8192) + kdma(8192) + wdma(1, 3*8192)
    A(f"""v_and_b32 v{t0}, 15, {vL}
    v_lshrrev_b32 v{t2}, 1, v{t0}
    v_xor_b32 v{t2}, v{t2}, v{t1}
    v_lshlrev_b32 v{t2}, 4, v{t2}
    v_lshl_add_u32 v{t2}, v{t0}, 7, v{t2}
    s_lshr_b32 s{sT0}, s{sW}, 1
    s_lshl_b32 s{sT1}, s{sT0}, 14
    v_add_u32 v{vXa[0]}, s{sT1}, v{t2}
    v_xor_b32 v{vXa[1]}, 64, v{vXa[0]}
    v_bfe_u32 v{t0}, {vL}, 2, 2
    v_lshl_add_u32 v{t2}, v{t1}, 3, v{t0}
    v_and_b32 v{t3}, 1, v{t1}
    v_lshl_or_b32 v{t5}, v{t3}, 2, v{t0}
    v_and_b32 v{t4}, 3, {vL}
    v_lshlrev_b32 v{t4}, 3, v{t4}
    v_lshl_add_u32 v{t6}, v{t2}, 8, v{t4}
    v_add_u32 v{t6}, {WB + 40960}, v{t6}
    s_and_b32 s{sT0}, s{sW}, 1
    s_lshl_b32 s{sT1}, s{sT0}, 2""")
    for ii in range(4):
        A(f"""s_add_u32 s{sT2}, s{sT1}, {ii}
        v_xor_b32 v{t7}, s{sT2}, v{t5}
        v_lshl_add_u32 v{vW1a[ii]}, v{t7}, 5, v{t6}""")
    A(f"""v_lshl_add_u32 v{t2}, v{t2}, 6, v{t4}
    v_xor_b32 v{t7}, s{sSc}, v{t3}
    v_lshl_add_u32 v{t7}, v{t7}, 5, v{t2}
    s_lshr_b32 s{sT2}, s{sW}, 1
    s_lshl_b32 s{sT2}, s{sT2}, 12
    s_add_u32 s{sT2}, s{sT2}, {KR}
    v_add_u32 v{vSWa}, s{sT2}, v{t7}
    s_mov_b32 s{s16k}, 16384
    s_cmp_eq_u32 s{sIsB}, 1
    s_cbranch_scc1 P1_ADB""")
    for ii in range(4):
        A(f"v_subrev_u32 v{vW0a[ii][0]}, 40960, v{vW1a[ii]}\nv_subrev_u32 v{vW0a[ii][1]}, {40960 - 1024}, v{vW1a[ii]}")
    A(f"""s_branch P1_ADD
    P1_ADB:
    v_lshl_add_u32 v{t4}, v{t1}, 11, v{t4}
    v_lshl_add_u32 v{t4}, v{t0}, 7, v{t4}
    v_add_u32 v{t4}, {WB}, v{t4}
    v_lshrrev_b32 v{t0}, 1, v{t0}
    v_lshl_or_b32 v{t0}, v{t3}, 1, v{t0}
    s_lshl_b32 s{sT1}, s{sT0}, 1""")
    for k in range(2):
        A(f"""s_add_u32 s{sT2}, s{sT1}, {k}
        v_xor_b32 v{t7}, s{sT2}, v{t0}
        v_lshl_add_u32 v{vW0a[k][0]}, v{t7}, 5, v{t4}
        v_add_u32 v{vW0a[k][1]}, 512, v{vW0a[k][0]}
        v_add_u32 v{vW0a[2+k][0]}, 1024, v{vW0a[k][0]}
        v_add_u32 v{vW0a[2+k][1]}, 1536, v{vW0a[k][0]}""")
    A("P1_ADD:")
    A("; @@PRE@@")
    PF = opt.get("pf", 1)
    Z = []
    for i in range(8):
        for j in range(8):
            for r in range(4):
                a = acc[i][j][r]
                Z.append(f"v_mov_b32 {a}, 0" if a.f == "v" else f"v_accvgpr_write_b32 {a}, 0")
    for r in range(4): Z.append(f"v_accvgpr_write_b32 {sacc[r]}, 0")
    TCH = opt.get("touch", 3)
    PEEL = opt.get("peel", 0)
    NPRE = opt.get("npre", 0)
    if not PEEL:
        per = len(Z) // len(second)
        for k, (pre, d) in enumerate(second):
            A.ext(pre); A.ext(Z[k*per:(k+1)*per]); A(d)
            if k == opt.get("tk", [3, 11])[0] and TCH: A(f"; @@TOUCH x 0 s{sW}\nP1_G0:")
            if k == opt.get("tk", [3, 11])[1] and TCH and not opt.get("t1s", 6): A(f"; @@TOUCH x 1 s{sW}")
        A.ext(Z[len(second)*per:])
        A.ext(advXf(1, 2) + advWf(1, 2) + [advK])
    else:
        emit_dma(A, second[:NPRE])

    def reads(t, s, side):
        b = t & 1; xo = ((t >> 1) & 1)*32768; wo = (t % 5)*8192; ko = ((t >> 1) & 1)*8192
        L = [f"ds_read_b128 {RB[s][j]}, v{vXa[b]} offset:{xo + j*2048}" for j in range(8)]
        for i in range(8):
            for hf in range(2):
                if i < 4: L.append(f"ds_read_b64_tr_b16 {RA[s][i].sub(2*hf, 2)}, v{vW0a[i][hf]} offset:{wo}")
                else: L.append(f"ds_read_b64_tr_b16 {RA[s][i].sub(2*hf, 2)}, v{vW1a[i-4]} offset:{wo + hf*1024}")
        if side:
            for hf in range(2):
                L.append(f"ds_read_b64_tr_b16 {SA[s].sub(2*hf, 2)}, v{vSWa} offset:{ko + b*2048 + hf*256}")
        return L
    def mfmas(s, side=None, zero=False):
        L = []
        for i in range(8):
            js = range(8) if i % 2 == 0 else range(7, -1, -1)
            for j in js:
                L.append(f"v_mfma_f32_16x16x32_bf16 {acc[i][j]}, {RA[s][i]}, {RB[s][j]}, {0 if zero else acc[i][j]}")
            if side is not None and i == 3:
                L.append(f"v_mfma_f32_16x16x32_bf16 {sacc}, {SA[s]}, {SXB[side][s]}, {0 if zero else sacc}")
        return L
    IPF = opt.get("ipf", 0)
    npf = 0
    if IPF:
        assert KP[2:6] == [2, 4, 5, 6]
        A(f"""v_lshrrev_b32 v{t0}, 3, {vL}
        v_cmp_lt_u32 vcc, 0, v{t0}
        v_add_u32 v{t1}, 2, v{t0}
        v_and_b32 v{t2}, 7, {vL}
        v_addc_co_u32 v{t1}, vcc, 0, v{t1}, vcc
        v_cmp_gt_u32 vcc, {IPF}, v{t0}
        s_and_b32 s{sT0}, s{sCB}, 7
        s_lshl_b32 s{sT0}, s{sT0}, 2
        s_add_u32 s{sT0}, s{sT0}, s{sW}
        s_lshl_b32 s{sT0}, s{sT0}, 3
        v_add_u32 v{t3}, s{sT0}, v{t2}
        v_lshlrev_b32 v{t3}, 11, v{t3}
        v_lshl_add_u32 v{t3}, v{t1}, 7, v{t3}
        v_mov_b32 v{t6}, {HUGE}
        v_cndmask_b32 v{t3}, v{t6}, v{t3}, vcc
        buffer_load_dword a252, v{t3}, {srd(S_X)}, 0 offen
        s_and_b32 s{sT0}, s{sRB}, 3
        s_lshl_b32 s{sT0}, s{sT0}, 2
        s_add_u32 s{sT0}, s{sT0}, s{sW}
        s_lshl_b32 s{sT0}, s{sT0}, 2
        v_lshrrev_b32 v{t4}, 1, v{t2}
        v_lshl_add_u32 v{t4}, v{t1}, 6, v{t4}
        v_add_u32 v{t4}, s{sT0}, v{t4}
        v_and_b32 v{t2}, 1, v{t2}
        v_lshlrev_b32 v{t2}, 7, v{t2}
        v_mul_u32_u24 v{t5}, {PW}, v{t4}
        v_add_u32 v{t5}, v{t5}, v{t2}
        v_cndmask_b32 v{t5}, v{t6}, v{t5}, vcc
        buffer_load_dword a254, v{t5}, {srd(S_W0)}, 0 offen
        s_lshr_b32 s{sT0}, s{sStep1}, 6
        v_mul_lo_u32 v{t5}, v{t4}, s{sT0}
        v_add_u32 v{t5}, v{t5}, v{t2}
        v_cndmask_b32 v{t5}, v{t6}, v{t5}, vcc
        buffer_load_dword a255, v{t5}, {srd(S_W1)}, 0 offen""")
        npf = 3
    A("P1_START:")
    A.ext(ts.at("a4"))
    A(f"s_waitcnt vmcnt({len(second) + npf}) lgkmcnt(0)")
    A.ext(ts.at("a5"))
    A("s_barrier")
    A.ext(reads(0, 0, True))
    A("s_waitcnt lgkmcnt(0)\ns_barrier")
    A.ext(ts.at("p1"))
    if ts.on: A("s_waitcnt lgkmcnt(0)")
    pro_hist = list(A.lines)

    NOB1 = opt.get("nob1", 0)
    def step(st, hook=None, cpl=False):
        out = []
        sd = st < 8; side = st & 1 if sd else None
        dma = st < 14; last = st == 15
        n = 65 if sd else 64
        BG = n - opt.get('bgo', 4)
        f = {}
        for k, r in enumerate(reads(2*st + 1, 1, sd)): put(f, 2*k, r)
        if dma:
            dg = opt.get('dgw', [1, 9, 17, 25, 33, 39, 47, 55]) if not (st < 7) else [13, 19, 25, 31, 37, 43, 49, 55]
            wl = wdma(0, ((2*st + 4) % 5)*8192) + ([] if NOB1 else wdma(1, ((2*st + 5) % 5)*8192))
            if NOB1: dg = [13, 27, 41, 55]
            for k, (pre, d) in enumerate(wl):
                if pre: put(f, dg[k] - 1, pre)
                put(f, dg[k], d)
            if st < 13 and not NOB1: put(f, 57, advWf(st + 2, st + 3)[0]); put(f, 58, advWf(st + 2, st + 3)[1])
        if st < 7:
            for k, l in enumerate(sxload(side ^ 1)): put(f, [1, 7][k], l)
            put(f, 9, advS)
        if cpl and CPF: put(f, opt.get('cpgap', 3), cpf); put(f, opt.get('cpgap', 3) + 3, cpa)
        if hook: hook(0, f, BG)
        put(f, BG, [Need(["X"], "lgkmcnt(0)") if not last else "s_waitcnt lgkmcnt(0)", "s_barrier"])
        out += interleave(mfmas(0, side), f)
        if last: return out + tr_issue() + (["s_waitcnt lgkmcnt(0)"] if trace else []) + tr_commit()
        f = {}
        for k, r in enumerate(reads(2*st + 2, 0, st < 7)): put(f, 2*k, r)
        if dma:
            kv = st < 6
            dl = ((kdma((st & 1)*8192) if kv else []) + xdma((st & 1)*32768)) if not opt.get('xfirst') else (xdma((st & 1)*32768) + (kdma((st & 1)*8192) if kv else []))
            dg = opt.get('dgk', [1, 7, 13, 19, 25, 31, 37, 43, 49, 55]) if kv else opt.get('dgx', [1, 9, 17, 25, 33, 41, 47, 55])
            if NOB1:
                dl = wdma(1, ((2*st + 5) % 5)*8192) + dl
                dg = [1 + 2*((k * 28) // len(dl)) for k in range(len(dl))]
                if st < 13: put(f, 30, advWf(st + 2, st + 3)[0]); put(f, 32, advWf(st + 2, st + 3)[1])
            for k, (pre, d) in enumerate(dl):
                if pre: put(f, dg[k] - 1, pre)
                put(f, dg[k], d)
            if st < 13: put(f, 57, advXf(st + 2, st + 3)[0]); put(f, 59, advXf(st + 2, st + 3)[1])
            if kv: put(f, 58 if (opt.get('xfirst') or NOB1) else 9, advK)
        if hook: hook(1, f, BG)
        put(f, BG - 3, tr_issue())
        put(f, BG, [Need(["SX"], "lgkmcnt(0)") if st < 7 else "s_waitcnt lgkmcnt(0)"] + (["s_barrier"] if (not NOB1 or st == 8) else []) + tr_commit())
        out += interleave(mfmas(1, side), f)
        return out

    vN, vZ, vKA, vFA = t0, t1, t2, t3
    u = 28
    nload = f"buffer_load_dword v{vN}, v{vZ}, {srd(S_KV)}, 0 offen sc1"
    dbgsrd = [f"s_mov_b32 s{S_KV}, s{P_DBG}", f"s_mov_b32 s{S_KV+1}, s{P_DBG+1}", f"s_mov_b32 s{S_KV+2}, 256", f"v_mov_b32 v{vZ}, 0"]
    PSC = KR + 4096
    kvK = f"""v_bfe_u32 v{vKA}, {vL}, 3, 1
    v_lshlrev_b32 v{vKA}, 4, v{vKA}
    v_and_b32 v{vFA}, 7, {vL}
    v_add_u32 v{vKA}, v{vKA}, v{vFA}
    v_bfe_u32 v{vFA}, {vL}, 4, 1
    v_lshl_add_u32 v{vKA}, v{vFA}, 5, v{vKA}
    v_lshlrev_b32 v{vKA}, 4, v{vKA}
    v_lshrrev_b32 v{vFA}, 5, {vL}
    v_lshl_add_u32 v{vKA}, v{vFA}, 10, v{vKA}
    s_lshl_b32 s{sKVst}, s{sSa}, 7
    s_lshl_b32 s{sEfl}, s{sSc}, 3""".split("\n")
    kvV = f"""v_lshrrev_b32 v{vKA}, 5, {vL}
    v_lshlrev_b32 v{vKA}, 4, v{vKA}
    v_bfe_u32 v{vFA}, {vL}, 4, 1
    v_lshl_add_u32 v{vKA}, v{vFA}, 2, v{vKA}
    v_bfe_u32 v{vFA}, {vL}, 2, 1
    v_lshl_add_u32 v{vKA}, v{vFA}, 5, v{vKA}
    v_lshlrev_b32 v{vKA}, 4, v{vKA}
    v_bfe_u32 v{vFA}, {vL}, 3, 1
    v_lshl_add_u32 v{vKA}, v{vFA}, 10, v{vKA}
    v_and_b32 v{vFA}, 3, {vL}
    v_lshl_add_u32 v{vKA}, v{vFA}, 1, v{vKA}
    s_lshl_b32 s{sKVst}, s{sSc}, 7
    s_lshl_b32 s{sEfl}, s{sSa}, 3""".split("\n")
    kvaddr = [f"s_bitcmp1_b32 s{sCB}, 0", "s_cbranch_scc1 P1_KVAV"] + [l.strip() for l in kvK] + ["s_branch P1_KVAD", "P1_KVAV:"] + [l.strip() for l in kvV] + ["P1_KVAD:",
              f"s_add_u32 s{sKVst}, s{sKVst}, s{sEfl}", f"s_add_u32 s{sKVst}, s{sKVst}, {KR}", f"v_add_u32 v{vKA}, s{sKVst}, v{vKA}"]
    kvwr = [f"s_bitcmp1_b32 s{sCB}, 0", "s_cbranch_scc0 P1_KVWK", f"ds_write_b16 v{vKA}, v{u}", f"ds_write_b16_d16_hi v{vKA}, v{u} offset:16",
            f"ds_write_b16 v{vKA}, v{u+1} offset:32", f"ds_write_b16_d16_hi v{vKA}, v{u+1} offset:48", "s_branch P1_KVWD", "P1_KVWK:",
            f"ds_write_b64 v{vKA}, v[{u}:{u+1}]", "P1_KVWD:"]
    vP = vSXo
    KT = Reg("a", 128, 4); PT = Reg("a", 132, 4)
    QPOLL = opt.get("qpoll", 0)
    CW = opt.get("cw", 1)
    CA, CB = Reg("a", 136, 4), Reg("a", 140, 4)
    vDA, vDB = vSWa, vKo
    pre = list(kvaddr)
    if CW:
        pre += f"""s_lshl_b32 s{sT2}, s2, 2
        s_add_u32 s{sT2}, s{sT2}, s{sW}
        s_mul_i32 s{sT3}, s{sT2}, 7
        v_lshrrev_b32 v24, 3, {vL}
        v_and_b32 v25, 7, {vL}
        v_lshlrev_b32 v25, 4, v25
        v_add_u32 v27, s{sT3}, v24
        v_and_b32 v31, 1, v27
        v_lshrrev_b32 v27, 1, v27
        v_lshl_add_u32 v29, v27, 8, v25
        v_mul_u32_u24 v30, {CW_SZ}, v31
        v_add_u32 v29, v29, v30
        v_add_u32 v29, {CW_OFF}, v29
        v_lshl_add_u32 v27, v27, 11, v25
        v_lshl_add_u32 v27, v31, 10, v27
        v_cmp_gt_u32 vcc, 56, {vL}
        v_mov_b32 v31, {HUGE}
        v_add_u32 v27, 384, v27
        v_cndmask_b32 v27, v31, v27, vcc
        v_cndmask_b32 v29, v31, v29, vcc
        v_mul_u32_u24 v30, {CW_SZ}, v24
        v_add_u32 v30, v30, v25
        s_lshl_b32 s{sT3}, s{sT2}, 8
        s_add_u32 s{sT3}, s{sT3}, {CW_OFF + 3584*256}
        v_add_u32 v30, s{sT3}, v30
        v_lshl_add_u32 v28, v24, 10, v25
        s_lshl_b32 s{sT3}, s{sT2}, 11
        s_add_u32 s{sT3}, s{sT3}, 384
        v_cmp_gt_u32 vcc, 16, {vL}
        v_add_u32 v28, s{sT3}, v28
        s_nop 0
        v_cndmask_b32 v28, v31, v28, vcc
        v_cndmask_b32 v30, v31, v30, vcc""".split("\n")
    pre = [l.strip() if type(l) is str else l for l in pre]
    k_ = A.lines.index("; @@PRE@@"); A.lines[k_:k_ + 1] = pre
    def hookS6(ph, f, BG):
        if ph == 0 and CW:
            put(f, 2, f"s_mov_b32 s{S_KV}, s{P_WD}"); put(f, 3, [f"s_mov_b32 s{S_KV+1}, s{P_WD+1}", f"s_mov_b32 s{S_KV+2}, {3584*2048}"])
            put(f, 5, VM(f"buffer_load_dwordx4 {CA}, v27, {srd(S_KV)}, 0 offen", "CL"))
            put(f, 6, f"s_mov_b32 s{S_KV}, s{P_WO}"); put(f, 8, f"s_mov_b32 s{S_KV+1}, s{P_WO+1}"); put(f, 10, f"s_mov_b32 s{S_KV+2}, {1024*2048}")
            put(f, 11, VM(f"buffer_load_dwordx4 {CB}, v28, {srd(S_KV)}, 0 offen", "CL"))
    def hookS7(ph, f, BG):
        if ph == 1 and CW:
            put(f, 5, [Need(["CL"]), VM(f"buffer_store_dwordx4 {CA}, v29, {srd(S_WS)}, 0 offen {SC1}", "CS")])
            put(f, 13, VM(f"buffer_store_dwordx4 {CB}, v30, {srd(S_WS)}, 0 offen {SC1}", "CS"))
    def hookS8(ph, f, BG):
        if ph == 0 and QPOLL:
            for r in range(4): put(f, 2 + r, f"v_mov_b32 v{u+r}, -1")
            put(f, 5, [f"s_lshl_b32 s{sKVst}, s{sRB}, 5", f"s_add_u32 s{sKVst}, s{sKVst}, s{sCB}", f"s_lshl_b32 s{sKVst}, s{sKVst}, 2"])
            put(f, 7, [f"s_add_u32 s{sKVst}, s{sKVst}, s{sW}", f"s_lshl_b32 s{sKVst}, s{sKVst}, 12", f"s_add_u32 s{sKVst}, s{sKVst}, {QF4_OFF}"])
            for r in range(4): put(f, [13, 15, 21, 23][r], VM(f"buffer_store_dwordx4 v[{u}:{u+3}], {vL16}, {srd(S_WS)}, s{sKVst} offen offset:{r*1024} {SC1}", "QP"))
        if ph == 0:
            for k, l in enumerate(dbgsrd): put(f, 25 + 2*k, l)
            put(f, 21, [f"s_lshl_b32 s{sT2}, s{sW}, 10", f"s_add_u32 s{sT2}, s{sT2}, {PSC}"]); put(f, 23, f"v_add_u32 v{vP}, s{sT2}, {vL16}")
        if ph == 1:
            put(f, 3, f"ds_write_b128 v{vP}, {sacc}")
            put(f, 5, VM(nload, "N"))
            put(f, 11, f"v_xor_b32 v{vP}, 0x800, v{vP}")
            for r in range(4): put(f, 13 + 2*r, f"v_accvgpr_read_b32 v{u+r}, {sacc[r]}")
    def hookS9(ph, f, BG):
        if ph == 0:
            put(f, 1, f"ds_read_b128 {PT}, v{vP}")
            put(f, 11, "s_waitcnt lgkmcnt(5)")
            for r in range(4): put(f, 11 + 2*r, f"v_accvgpr_read_b32 v{vFA}, {PT[r]}"); put(f, 12 + 2*r, f"v_add_f32 v{u+r}, v{u+r}, v{vFA}")
            put(f, 21, f"v_cvt_pk_bf16_f32 v{u}, v{u}, v{u+1}"); put(f, 23, f"v_cvt_pk_bf16_f32 v{u+1}, v{u+2}, v{u+3}")
            put(f, 27, kvwr)
            put(f, 29, f"v_lshrrev_b32 v{vP}, 3, {vL}"); put(f, 31, f"v_and_b32 v{vFA}, 7, {vL}")
            put(f, 35, f"v_lshlrev_b32 v{vFA}, 4, v{vFA}"); put(f, 37, f"v_lshl_add_u32 v{vP}, v{vP}, 8, v{vFA}")
            put(f, 41, [f"s_bfe_u32 s{sT2}, s{sCB}, 0x10001", f"s_lshl_b32 s{sT2}, s{sT2}, 7"])
            put(f, 43, f"v_add_u32 v{vP}, s{sT2}, v{vP}")
            put(f, 44, f"v_add_u32 v{vKA}, {KR}, v{vP}")
        if ph == 1:
            put(f, 3, f"ds_read_b128 {KT}, v{vKA}")
            put(f, 5, [f"s_lshl_b32 s{sKVst}, s{sRB}, 3", f"s_lshr_b32 s{sT2}, s{sCB}, 2", f"s_add_u32 s{sKVst}, s{sKVst}, s{sT2}"])
            put(f, 7, [f"s_lshl_b32 s{sKVst}, s{sKVst}, 1", f"s_and_b32 s{sT2}, s{sCB}, 1", f"s_add_u32 s{sKVst}, s{sKVst}, s{sT2}"])
            put(f, 11, [f"s_lshl_b32 s{sKVst}, s{sKVst}, 11", f"s_add_u32 s{sKVst}, s{sKVst}, {KV_OFF}", f"s_lshl_b32 s{sEfl}, s{sRB}, 5"])
            put(f, 13, [f"s_add_u32 s{sEfl}, s{sEfl}, s{sCB}", f"s_lshl_b32 s{sEfl}, s{sEfl}, 2", f"s_add_u32 s{sEfl}, s{sEfl}, {FL_E}"])
            put(f, 15, [f"s_cmp_eq_u32 s{sW}, 0", f"s_cselect_b32 s{sKVst}, s{sKVst}, {HUGE}", f"s_cselect_b32 s{sEfl}, s{sEfl}, {HUGE}"])
            put(f, 19, f"v_mul_u32_u24 v{vFA}, {FL_ES}, {vL}")
            put(f, 21, ["s_waitcnt lgkmcnt(9)", VM(f"buffer_store_dwordx4 {KT}, v{vP}, {srd(S_WS)}, s{sKVst} offen {SC1}", "KS")])
    def hookS10(ph, f, BG):
        if ph == 1:
            put(f, 27, [Need(["KS", "N"]), f"v_readfirstlane_b32 s{sNonce}, v{vN}", f"s_cmp_eq_u32 s{sNonce}, 0", "s_cbranch_scc1 P1_SLOWN", "P1_NOK:",
                       "s_mov_b64 exec, 0xff", VM(f"buffer_store_dword v{vN}, v{vFA}, {srd(S_WS)}, s{sEfl} offen sc1", "EF"), "s_mov_b64 exec, -1", "s_nop 2"])
    sKVo, sM0 = sL + 3, sL + 4
    S_KVD = S_C
    vE = Reg("v", 28, 4)
    epoll = f"buffer_load_dwordx4 {vE}, {vL16}, {srd(S_WS)}, s{sEfl} offen sc1"
    def kvdma0(slotoff):
        L = []
        for e in range(8):
            pre = []
            if e == 0: pre = [f"s_add_u32 m0, s{sM0}, {slotoff}"]
            if e == 4: pre = [f"s_add_u32 m0, m0, 4096", f"s_add_u32 s{sKVo}, s{sKVo}, 4096"]
            L.append((pre, VM(f"buffer_load_dwordx4 {vL16}, {srd(S_KVD)}, s{sKVo} offen offset:{(e&3)*1024} {SC1} lds", "KV")))
        return L
    def hookS14(ph, f, BG):
        if ph == 0:
            put(f, 5, [f"s_bfe_u32 s{sEfl}, s2, 0x30003", f"s_mul_i32 s{sEfl}, s{sEfl}, {FL_ES}", f"s_add_u32 s{sEfl}, s{sEfl}, {FL_E}"])
            put(f, 45, VM(epoll, "N"))
            put(f, 11, [f"s_mov_b32 s{S_KVD}, s{P_WS}", f"s_mov_b32 s{S_KVD+1}, s{P_WS+1}", f"s_mov_b32 s{S_KVD+2}, {KV_OFF + 262144}"])
            put(f, 13, [f"s_lshl_b32 s{sM0}, s{sW}, 13", f"s_add_u32 s{sKVo}, s{sM0}, {KV_OFF}"])
        if ph == 1: put(f, 51, [Need(["N"])] + echeck() + ["s_cbranch_scc0 P1_SLOWE", "P1_EOK:"])
    def echeck():
        return [f"v_xor_b32 {vE[0]}, {vE[0]}, v{vN}", f"v_xor_b32 {vE[1]}, {vE[1]}, v{vN}", f"v_xor_b32 {vE[2]}, {vE[2]}, v{vN}", f"v_xor_b32 {vE[3]}, {vE[3]}, v{vN}",
                f"v_or3_b32 {vE[0]}, {vE[0]}, {vE[1]}, {vE[2]}", f"v_or_b32 {vE[0]}, {vE[0]}, {vE[3]}", f"v_cmp_eq_u32 vcc, 0, {vE[0]}", "s_nop 0", "s_cmp_eq_u64 vcc, -1"]
    def hookS15(ph, f, BG):
        dg = [5, 11, 17, 23, 29, 35, 41, 46]
        if ph == 0:
            for k, (pre, d) in enumerate(kvdma0(32768*ph)):
                if pre: put(f, dg[k] - 1, pre)
                put(f, dg[k], d)
            put(f, 47, f"s_add_u32 s{sKVo}, s{sKVo}, {32768 - 4096}")
    z = [7, 8]; vOne = 23
    gv = [f"v_mov_b32 v{vOne}, 0x3f803f80", f"v_mov_b32 v{z[0]}, 0", f"v_mov_b32 v{z[1]}, 0", None]
    for k in range(8):
        gv += [f"v_accvgpr_read_b32 v26, {GWa[k]}", f"v_accvgpr_read_b32 v28, {GXa[0][k]}", f"v_accvgpr_read_b32 v30, {GXa[1][k]}",
               "v_and_b32 v27, 0xffff0000, v26", "v_and_b32 v29, 0xffff0000, v28", "v_and_b32 v31, 0xffff0000, v30",
               "v_lshlrev_b32 v26, 16, v26", "v_lshlrev_b32 v28, 16, v28", "v_lshlrev_b32 v30, 16, v30",
               "v_mul_f32 v29, v29, v27", "v_mul_f32 v31, v31, v27", "v_mul_f32 v28, v28, v26", "v_mul_f32 v30, v30, v26",
               "v_cvt_pk_bf16_f32 v28, v28, v29", "v_cvt_pk_bf16_f32 v30, v30, v31",
               f"v_dot2_f32_bf16 v{z[0]}, v28, v{vOne}, v{z[0]}", f"v_dot2_f32_bf16 v{z[1]}, v30, v{vOne}, v{z[1]}"]
    gv += [None, None]
    P2_ = lambda fmt: [fmt(r) for r in range(2)]
    for sh in (8, 4, 2, 1): gv += P2_(lambda r: f"v_add_f32_dpp v{z[r]}, v{z[r]}, v{z[r]} row_ror:{sh} row_mask:0xf bank_mask:0xf")
    for sw in ("16", "32"):
        gv += P2_(lambda r: f"v_mov_b32 v{28+r}, v{z[r]}") + P2_(lambda r: f"v_permlane{sw}_swap_b32 v{z[r]}, v{28+r}") + P2_(lambda r: f"v_add_f32 v{z[r]}, v{z[r]}, v{28+r}")
    gv += P2_(lambda r: f"v_cvt_pk_bf16_f32 v{z[r]}, v{z[r]}, v{z[r]}") + P2_(lambda r: f"v_and_b32 v{z[r]}, 0xffff0000, v{z[r]}")
    gv += P2_(lambda r: f"v_mul_f32 v{z[r]}, {f2u(-LOG2E):#x}, v{z[r]}") + [f"v_exp_f32 v{z[0]}, v{z[0]}", None, f"v_exp_f32 v{z[1]}, v{z[1]}", None]
    gv += P2_(lambda r: f"v_add_f32 v{z[r]}, 1.0, v{z[r]}") + [f"v_rcp_f32 v{z[0]}, v{z[0]}", None, f"v_rcp_f32 v{z[1]}, v{z[1]}", None]
    gv += P2_(lambda r: f"v_cvt_pk_bf16_f32 v{z[r]}, v{z[r]}, v{z[r]}") + P2_(lambda r: f"v_and_b32 v{26+r}, 0xffff0000, v{z[r]}")
    GR = opt.get("gr", 1)
    gq = [gv[k:k+GR] for k in range(0, len(gv), GR)]
    def hookS10g(ph, f, BG):
        hookS10(ph, f, BG)
        if ph == 1:
            put(f, 28, f"s_mov_b32 s{S_KV}, s{P_GW}"); put(f, 29, [f"s_mov_b32 s{S_KV+1}, s{P_GW+1}", f"s_mov_b32 s{S_KV+2}, 2048"])
            put(f, 31, VM(f"buffer_load_dwordx4 {GWa.sub(0,4)}, {vL16}, {srd(S_KV)}, 0 offen", "GL"))
            put(f, 35, VM(f"buffer_load_dwordx4 {GWa.sub(4,4)}, {vL16}, {srd(S_KV)}, 0 offen offset:1024", "GL"))
            put(f, 36, f"s_mov_b32 s{S_KV}, s{P_X}"); put(f, 37, [f"s_mov_b32 s{S_KV+1}, s{P_X+1}", f"s_mov_b32 s{S_KV+2}, 0x400000", f"s_lshl_b32 s{sT2}, s{sRB}, 5"])
            put(f, 38, f"s_add_u32 s{sT2}, s{sT2}, s{sCB}"); put(f, 39, [f"s_lshl_b32 s{sT2}, s{sT2}, 2", f"s_add_u32 s{sT2}, s{sT2}, s{sW}", f"s_lshl_b32 s{sT1}, s{sT2}, 3"])
            put(f, 40, f"s_lshl_b32 s{sT2}, s{sT2}, 12"); put(f, 42, f"s_add_u32 s{sT1}, s{sT1}, {G_OFF}")
            for k in range(4):
                put(f, [43, 45, 51, 53][k], VM(f"buffer_load_dwordx4 {GXa[k>>1].sub(4*(k&1),4)}, {vL16}, {srd(S_KV)}, s{sT2} offen offset:{k*1024}", "X"))
    def hookG(ph, f, BG, first=False):
        if first and ph == 0: return
        for g_ in range(1, BG - 1):
            cur = flat(f.get(g_, []))
            busy = any(is_vmem(x) or x.startswith(("v_",) if GR == 1 else ("v_", "ds_")) for x in cur) or len(cur) > 1
            if gq and not busy: put(f, g_, [x for x in gq.pop(0) if x])
    def hookS12(ph, f, BG): hookG(ph, f, BG, True)
    def hookS14g(ph, f, BG):
        if ph == 0:
            hookG(ph, f, 38)
            assert not gq, len(gq)
            put(f, 41, ["s_mov_b64 exec, 1", VM(f"buffer_store_dwordx2 v[26:27], v{vZ}, {srd(S_WS)}, s{sT1} offen sc1", "GS"), "s_mov_b64 exec, -1", "s_nop 2"])
        hookS14(ph, f, BG)
    hooks = {6: hookS6, 7: hookS7, 8: hookS8, 9: hookS9, 10: hookS10g, 11: hookS12, 12: hookG, 13: hookG, 14: hookS14g, 15: hookS15}
    cpsteps = opt.get("cps", [0, 3, 7, 11, 14])
    h1 = list(pro_hist)
    for st in range(16):
        S_ = resolve_waits(step(st, hooks.get(st), st in cpsteps), h1)
        h1 += S_
        A.ext(ts.at(f"s{st}"))
        if st == 15: A(f"s_cmp_eq_u32 s{sIsB}, 1\ns_cbranch_scc1 P1_EPIB")
        if st == 14: S14 = S_
        if st == 8: A("P1_MID:")
        if TCH and opt.get("t1s", 6) and st == opt.get("t1s", 6): A(f"; @@TOUCH x 1 s{sW}")
        A.ext(S_)
    S15 = S_
    probs += check_hazards(A.lines, "p1")
    slow1 = Asm()
    slow1(f"""P1_SLOWN:
    s_mov_b32 s{sT2}, {SPIN_MAX}
    P1_SLOWN_L:
    {nload}
    s_waitcnt vmcnt(0)
    v_readfirstlane_b32 s{sNonce}, v{vN}
    s_cmp_lg_u32 s{sNonce}, 0
    s_cbranch_scc1 P1_NOK
    s_sleep 4
    s_sub_u32 s{sT2}, s{sT2}, 1
    s_cmp_lg_u32 s{sT2}, 0
    s_cbranch_scc1 P1_SLOWN_L
    s_endpgm
    P1_SLOWE:
    s_mov_b32 s{sT0}, {SPIN_MAX}
    P1_SLOWE_L:
    {epoll}
    s_waitcnt vmcnt(0)""")
    slow1.ext(echeck())
    slow1(f"""s_cbranch_scc1 P1_EOK
    s_sleep 4
    s_sub_u32 s{sT0}, s{sT0}, 1
    s_cmp_lg_u32 s{sT0}, 0
    s_cbranch_scc1 P1_SLOWE_L
    s_endpgm""")

    va = Alloc("v", 3, 256)
    vCur = va.get(1); vNxt = va.get(1); vZero = va.get(1); vNon = va.get(1); vQP = va.get(1)
    T = va.get(12, 4)
    S = [va.get(16, 4) for _ in range(2)]
    P = [va.get(8, 4) for _ in range(2)]
    O = [va.get(16, 4) for _ in range(2)]
    Lc = [va.get(4, 4) for _ in range(2)]
    SCL = va.get(8, 4)
    acc3 = [[va.get(4, 4) for j in range(8)] for i in range(4)]
    vW3o = va.get(1); vW3a = [va.get(1) for _ in range(4)]; vPF = va.get(1); vG = va.get(2, 2); vFl = va.get(4, 4)
    NEG = [Reg("v", acc3[0][0].base + 16*k, 16) for k in range(2)]
    aa = Alloc("a", 0, 180)
    RX = [[aa.get(4, 4) for j in range(8)] for s in range(4)]
    Q = [[aa.get(4, 4) for t in range(2)] for ab in range(2)]
    K = [[aa.get(4, 4) for t in range(2)] for b in range(2)]
    V = [[aa.get(4, 4) for t in range(2)] for b in range(2)]
    ONES = aa.get(4, 4)
    RW = [[Reg("a", 220 + 16*s + 4*i, 4) for i in range(4)] for s in range(2)]
    QXB = 98304
    W3B = 98304

    E = Asm()
    E.ext(ts.at("p1end"))
    sO, sO1, sO2 = 0, 1, 3
    sC = sL + 1
    sQf = 14
    tA = [Reg("v", 20, 4), Reg("v", 28, 4)]
    PKE = opt.get("pke", 0)
    def hmath(pairs, dst, pk=True):
        L = []
        for Gx, U in pairs:
            for r in range(4): L.append(f"v_max_f32 {Gx[r]}, 0, {Gx[r]}")
        for Gx, U in pairs:
            if pk:
                for r in (0, 2): L.append(f"v_pk_mul_f32 {Gx.sub(r,2)}, {Gx.sub(r,2)}, {U.sub(r,2)}")
            else:
                for r in range(4): L.append(f"v_mul_f32 {Gx[r]}, {Gx[r]}, {U[r]}")
        for k, (Gx, U) in enumerate(pairs):
            L.append(f"v_cvt_pk_bf16_f32 {dst[2*k]}, {Gx[0]}, {Gx[1]}"); L.append(f"v_cvt_pk_bf16_f32 {dst[2*k+1]}, {Gx[2]}, {Gx[3]}")
        return L
    gl = Asm()
    gl(f"""s_mov_b32 s{S_A}, s{P_X}
    s_mov_b32 s{S_A+1}, s{P_X+1}
    s_mov_b32 s{S_A+2}, 0x400000
    s_mov_b32 s{S_B}, s{P_GW}
    s_mov_b32 s{S_B+1}, s{P_GW+1}
    s_mov_b32 s{S_B+2}, 2048
    s_lshl_b32 s{sT2}, s{sRB}, 5
    s_add_u32 s{sT2}, s{sT2}, s{sCB}
    s_lshl_b32 s{sT2}, s{sT2}, 2
    s_add_u32 s{sT2}, s{sT2}, s{sW}
    s_lshl_b32 s{sT2}, s{sT2}, 12""")
    for h in range(2): gl(f"buffer_load_dwordx4 {GWa.sub(4*h,4)}, {vL16}, {srd(S_B)}, 0 offen offset:{h*1024}")
    for r in range(2):
        for h in range(2):
            gl(f"buffer_load_dwordx4 {GXa[r].sub(4*h,4)}, {vL16}, {srd(S_A)}, s{sT2} offen offset:{r*2048 + h*1024}")
    def merge(mf, items, rate, fixed=None):
        out = []; k = 0
        for g, m_ in enumerate(mf):
            out.append(m_)
            n = 0; seenv = False
            if fixed and g in fixed: out.extend(fixed[g]); n += len(fixed[g])
            while k < len(items) and items[k][0] <= g and n < rate:
                x_ = items[k][1]
                if is_vmem(x_) and seenv: break
                seenv |= x_.startswith("v_")
                out.append(x_); k += 1; n += 1
        if k < len(items): out.append("s_nop 7")
        return out + [x[1] for x in items[k:]]
    mm1 = lambda i, j: f"v_mfma_f32_16x16x32_bf16 {acc[i][j]}, {RA[1][i]}, {RB[1][j]}, {acc[i][j]}"
    kv1 = []
    for pre, d in kvdma0(32768): kv1 += pre + (["s_nop 0"] if pre else []) + [d]
    kv1.append(f"s_add_u32 s{sKVo}, s{sKVo}, {32768 - 4096}")
    head = Asm()
    head(f"""s_lshr_b32 s{sT0}, s{sW}, 1
    s_and_b32 s{sT1}, s{sW}, 1
    s_lshl_b32 s{sO}, s{sRB}, 4
    s_lshl_b32 s{sT2}, s{sT0}, 3
    s_add_u32 s{sO}, s{sO}, s{sT2}
    s_lshl_b32 s{sO}, s{sO}, 11
    s_add_u32 s{sO}, s{sO}, {AF2_OFF}
    s_lshr_b32 s{sT2}, s{sCB}, 2
    s_mul_i32 s{sO1}, s{sT2}, 14
    s_and_b32 s{sT3}, s{sCB}, 3
    s_lshl_b32 s{sT3}, s{sT3}, 2
    s_add_u32 s{sO1}, s{sO1}, s{sT3}
    s_add_u32 s{sO1}, s{sO1}, s{sT1}""")
    LAG = 5
    it = [(0, l) for l in head.lines]
    it += [(0, l) for l in (f"s_add_u32 s{sO1}, s{sO1}, s{sT1}", f"s_mul_i32 s{sO1}, s{sO1}, {AFS2}", f"s_add_u32 s{sO}, s{sO}, s{sO1}", f"s_add_u32 s{sO2}, s{sO}, {AFS2}")]
    kq = list(kv1)
    for j in range(8):
        g_ = 8*j + 7 + LAG
        Tt = tA[j % 2]
        L_ = hmath([(acc[0][j], acc[4][j]), (acc[1][j], acc[5][j])], acc[4][j], PKE or j >= opt.get('pkj', 8))
        L_ += [f"v_accvgpr_read_b32 {Tt[r]}, {acc[7][j][r]}" for r in range(4)]
        L_ += hmath([(acc[2][j], acc[6][j]), (acc[3][j], Tt)], acc[5][j], PKE or j >= opt.get('pkj', 8))
        it += [(g_, l) for l in L_]
        while kq:
            x_ = kq.pop(0); it.append((g_, x_))
            if is_vmem(x_): break
    it += [(64, l) for l in kq]
    EA = merge([mm1(i, j) for j in range(8) for i in range(8)], it, opt.get("rateA", 5))
    E.ext(EA)
    E("s_branch P1_EPID\nP1_EPIB:\n; @@PAD@@")
    hb = Asm()
    hb(f"""s_mul_i32 s{sO1}, s{sO1}, {AFS2}
    s_add_u32 s{sO}, s{sO}, s{sO1}
    s_mov_b32 s{sO2}, {HUGE}
    s_lshl_b32 s{sQf}, s{sRB}, 3
    s_add_u32 s{sQf}, s{sQf}, s{sT2}
    s_lshl_b32 s{sQf}, s{sQf}, 2
    s_lshl_b32 s{sT1}, s{sT1}, 1
    s_add_u32 s{sT2}, s{sQf}, s{sT1}
    s_lshl_b32 s{sT2}, s{sT2}, 1
    s_add_u32 s{sT2}, s{sT2}, s{sT0}
    s_lshl_b32 s{sT2}, s{sT2}, 14
    s_add_u32 s{sT0}, s{sT2}, {QF5_OFF}
    s_add_u32 s{sT1}, s{sT0}, 32768
    v_cmp_lt_u32 vcc, 23, {vL}
    v_add_u32 v26, 128, {vL16}
    s_nop 0
    v_cndmask_b32 v26, {vL16}, v26, vcc
    s_add_u32 s{sQf}, s{sQf}, s{sW}
    s_lshl_b32 s{sQf}, s{sQf}, 8
    s_add_u32 s{sQf}, s{sQf}, {FL_Q}
    s_mov_b32 s{sC}, {f2u(QSCALE):#x}
    s_mov_b32 s{sC+1}, {f2u(QSCALE):#x}""")
    it = [(0, l) for l in head.lines + hb.lines]
    for j in range(8):
        g_ = 32 + 4*j + 3 + LAG
        for hh in range(2):
            F0, F1 = acc[4 + 2*hh][j], acc[5 + 2*hh][j]
            L_ = []
            if F1.f == "a":
                Tt = tA[j % 2]
                L_ += [f"v_accvgpr_read_b32 {Tt[r]}, {F1[r]}" for r in range(4)]
                F1 = Tt
            for F in (F0, F1):
                if PKE:
                    for r in (0, 2): L_.append(f"v_pk_mul_f32 {F.sub(r,2)}, {F.sub(r,2)}, s[{sC}:{sC+1}]")
                else:
                    for r in range(4): L_.append(f"v_mul_f32 {F[r]}, s{sC}, {F[r]}")
            L_ += [f"v_cvt_pk_bf16_f32 {F0[0]}, {F0[0]}, {F0[1]}", f"v_cvt_pk_bf16_f32 {F0[1]}, {F0[2]}, {F0[3]}",
                   f"v_cvt_pk_bf16_f32 {F0[2]}, {F1[0]}, {F1[1]}", f"v_cvt_pk_bf16_f32 {F0[3]}, {F1[2]}, {F1[3]}",
                   f"buffer_store_dwordx4 {F0}, v26, {srd(S_WS)}, s{sT0 + hh} offen offset:{(j&1)*2048} {SC1}"]
            if j & 1: L_.append(f"s_add_u32 s{sT0 + hh}, s{sT0 + hh}, 4096")
            it += [(g_, l) for l in L_]
    mm0 = lambda i, j: f"v_mfma_f32_16x16x32_bf16 {acc[i][j]}, {RA[0][i]}, {RB[0][j]}, {acc[i][j]}"
    fx = {}
    rd_ = reads(31, 1, False)
    for k, r in enumerate(rd_[:8] + rd_[16:24] + rd_[8:16]): put(fx, k, r)
    k = 0
    for pre, d in kvdma0(0):
        if pre: put(fx, 23 + k, pre)
        put(fx, 24 + k, d); k += 1
    put(fx, 31, [f"s_add_u32 s{sKVo}, s{sKVo}, {32768 - 4096}", "s_waitcnt lgkmcnt(0)", "s_barrier"])
    EB = merge([mm0(i, j) for i in range(4, 8) for j in range(8)] + [mm1(i, j) for j in range(8) for i in range(4, 8)] +
               [mm0(i, j) for i in range(4) for j in range(8)] + [mm1(i, j) for j in range(8) for i in range(4)], it, opt.get("rateB", 3), fx)
    E.ext(EB)
    E.ext(kv1)
    for j in range(8):
        E.ext(hmath([(acc[0][j], acc[2][j]), (acc[1][j], acc[3][j])], acc[4][j]))
    E(f"""s_waitcnt vmcnt(8)
    s_mov_b64 exec, 1
    buffer_store_dword v{vN}, v{vZ}, {srd(S_WS)}, s{sQf} offen sc1
    s_mov_b64 exec, -1
    P1_EPID:
    ; @@PAD@@""")
    probs += check_hazards(S15[-20:] + EA, "epiA") + check_hazards(S14[-20:] + E.lines[E.lines.index("P1_EPIB:"):], "epiB")
    E.ext(ts.at("kvdone"))
    vAF = T[9]
    def hstore(reg, so, j):
        return [VM(f"buffer_store_dwordx4 {reg}, {vAF}, {srd(S_WS)}, s{so} offen offset:{(j&1)*2048} {SC1}", "H")] + ([f"s_add_u32 s{so}, s{so}, 4096"] if j & 1 else [])
    hst0 = [hstore(acc[4][j], sO, j) for j in range(8)]
    hst1a = [hstore(acc[5][j], sO2, j) for j in range(8)]
    A.ext(E.lines)

    B = Asm()
    sCur, sNext, sFree, sFl = sL, sL + 1, sL + 2, sL + 5
    B(f"""v_mov_b32 {vNon}, s{sNonce}
    v_mov_b32 {vZero}, 0
    v_bfe_u32 {T[0]}, {vL}, 4, 1
    v_and_b32 {T[1]}, 15, {vL}
    v_lshrrev_b32 {T[2]}, 5, {vL}
    v_lshl_add_u32 {T[1]}, {T[2]}, 4, {T[1]}
    v_lshlrev_b32 {T[1]}, 4, {T[1]}
    v_lshl_add_u32 {vQP}, {T[0]}, 11, {T[1]}""")
    S_PF, sPF = S_E, 8
    pfop = [VM(f"buffer_load_dword a252, {vPF}, {srd(S_PF)}, s{sPF} offen", "PF"), f"s_add_u32 s{sPF}, s{sPF}, 0x100000"] if PF else []
    for ab in range(2):
        for r in range(4): B(f"v_mov_b32 {Lc[ab][r]}, 0")
    vIdx = T[10]
    B(f"""v_bfe_u32 {T[4]}, {vL}, 2, 1
    v_cmp_eq_u32 vcc, 0, {T[4]}
    v_mov_b32 {T[5]}, 0x3f803f80
    v_mov_b32 {vCur}, {vL16}
    v_cndmask_b32 {T[4]}, 0, {T[5]}, vcc
    v_cndmask_b32 {T[5]}, {T[5]}, 0, vcc
    v_add_u32 {vNxt}, 32768, {vL16}
    v_and_b32 {vIdx}, 1, {vL}
    v_mul_u32_u24 {vIdx}, 0xaaaa, {vIdx}
    v_add_u32 {vIdx}, 0x4444, {vIdx}
    v_cmp_lt_u32 vcc, 23, {vL}
    v_add_u32 {vAF}, 128, {vL16}
    s_nop 0
    v_cndmask_b32 {vAF}, {vL16}, {vAF}, vcc""".replace(f"v_cndmask_b32 {T[5]}, {T[5]}, 0, vcc", f"v_xor_b32 {T[5]}, {T[5]}, {T[4]}"))
    for r in range(4): B(f"v_accvgpr_write_b32 {ONES[r]}, {T[4 + (r >> 1)]}")
    def lsum(o): return f"v_smfmac_f32_16x16x64_bf16 {Lc[o]}, {ONES}, {P[o]}, {vIdx}"
    B("; @@SETUP3@@")
    B(f"""s_mov_b32 s{sCur}, 0
    s_mov_b32 s{sNext}, 32768
    s_mov_b32 s{sFree}, 65536
    s_add_u32 s{sL+14}, s{sM0}, 65536
    s_lshl_b32 s{sFl}, s{sRB}, 2
    s_add_u32 s{sFl}, s{sFl}, s{sW}
    s_lshl_b32 s{sFl}, s{sFl}, 6
    s_add_u32 s{sFl}, s{sFl}, s{sCB}
    s_lshl_b32 s{sFl}, s{sFl}, 2
    s_add_u32 s{sFl}, s{sFl}, {FL_H}
    s_lshl_b32 s{sT1}, s{sRB}, 3
    s_lshr_b32 s{sT2}, s{sCB}, 2
    s_add_u32 s{sT1}, s{sT1}, s{sT2}
    s_lshl_b32 s{sT1}, s{sT1}, 2
    s_and_b32 s{sT2}, s{sW}, 2
    s_add_u32 s{sT1}, s{sT1}, s{sT2}
    s_bfe_u32 s{sT2}, s{sCB}, 0x10001
    s_add_u32 s{sT1}, s{sT1}, s{sT2}
    s_lshl_b32 s{sT1}, s{sT1}, 8
    s_add_u32 s{sT1}, s{sT1}, {FL_Q}
    s_lshl_b32 s{sQf}, s{sRB}, 5
    s_add_u32 s{sQf}, s{sQf}, s{sCB}
    s_lshl_b32 s{sQf}, s{sQf}, 2
    s_add_u32 s{sQf}, s{sQf}, s{sW}
    s_lshl_b32 s{sQf}, s{sQf}, 13
    s_add_u32 s{sQf}, s{sQf}, {QF5_OFF}
    s_add_u32 s{sT3}, s{sQf}, 4096""")
    def check(regs):
        if len(regs) == 4:
            return [f"v_xor_b32 {r}, {r}, {vNon}" for r in regs] + [f"v_or3_b32 {regs[0]}, {regs[0]}, {regs[1]}, {regs[2]}", f"v_or_b32 {regs[0]}, {regs[0]}, {regs[3]}",
                    f"v_cmp_eq_u32 vcc, 0, {regs[0]}", "s_nop 0", "s_cmp_eq_u64 vcc, -1"]
        L = [f"v_cmp_eq_u32 vcc, s{sNonce}, {regs[0]}"]
        if len(regs) > 1: L += [f"v_cmp_eq_u32 s[{sT2}:{sT3}], s{sNonce}, {regs[1]}", "s_nop 0", f"s_and_b64 vcc, vcc, s[{sT2}:{sT3}]"]
        else: L += ["s_nop 0"]
        return L + ["s_cmp_eq_u64 vcc, -1"]
    def spin(label, load, regs, back=None):
        L = [f"s_mov_b32 s{sT0}, {SPIN_MAX}", f"{label}_L:", load, "s_waitcnt vmcnt(0)"] + check(regs)
        L += [f"s_cbranch_scc1 {back or label + '_OK'}", f"s_sleep {4 if back else 1}", f"s_sub_u32 s{sT0}, s{sT0}, 1",
              f"s_cmp_lg_u32 s{sT0}, 0", f"s_cbranch_scc1 {label}_L", "s_endpgm"]
        if not back: L.append(f"{label}_OK:")
        return L
    B("P2_PRE:")
    if TCH > 1: B(f"; @@TOUCH x 2 s{sW}")
    B.ext(ts.at("poll0"))
    B(f"""v_and_b32 {T[2]}, 40, {vL}
    v_cmp_eq_u32 vcc, 40, {T[2]}
    v_add_u32 {T[3]}, 128, {vQP}
    s_nop 0
    v_cndmask_b32 {T[2]}, {vQP}, {T[3]}, vcc""")
    qld = lambda dst: [f"buffer_load_dwordx4 {dst(ab, t)}, {T[2+t]}, {srd(S_WS)}, s{[sQf, sT3][ab]} offen offset:{t*512} {SC1}" for ab in range(2) for t in range(2)]
    if QPOLL:
        QV = S[1]
        B(f"s_mov_b32 s{sT0}, {SPIN_MAX}\nP2_QL:")
        B(f"buffer_load_dword {T[8]}, {vZero}, {srd(S_WS)}, s{sT1} offen sc1")
        B.ext(qld(lambda ab, t: QV.sub(8*ab + 4*t, 4)))
        B("s_waitcnt vmcnt(0)")
        B(f"v_max3_u32 {T[9]}, {QV[0]}, {QV[1]}, {QV[2]}")
        for k in range(3, 15, 2): B(f"v_max3_u32 {T[9]}, {QV[k]}, {QV[k+1]}, {T[9]}")
        B(f"""v_max_u32 {T[9]}, {QV[15]}, {T[9]}
        v_cmp_eq_u32 vcc, -1, {T[9]}
        v_readfirstlane_b32 s{sT2}, {T[8]}
        s_nop 0
        s_cmp_eq_u64 vcc, 0
        s_cbranch_scc1 P2_QOK
        s_cmp_eq_u32 s{sT2}, s{sNonce}
        s_cbranch_scc1 P2_QRE
        s_sub_u32 s{sT0}, s{sT0}, 1
        s_cmp_lg_u32 s{sT0}, 0
        s_cbranch_scc1 P2_QL
        s_endpgm
        P2_QRE:""")
        B.ext(qld(lambda ab, t: QV.sub(8*ab + 4*t, 4)))
        B("s_waitcnt vmcnt(0)\nP2_QOK:")
        B.ext(ts.at("poll1"))
        for ab in range(2):
            for t in range(2):
                for r in range(4): B(f"v_accvgpr_write_b32 {Q[ab][t][r]}, {QV[8*ab + 4*t + r]}")
    else:
        B.ext(spin("P2_POLL", f"buffer_load_dword {T[8]}, {vZero}, {srd(S_WS)}, s{sT1} offen sc1", [T[8]]))
        B.ext(ts.at("poll1"))
        B.ext(qld(lambda ab, t: Q[ab][t]))
    B("s_barrier")
    def kvdma(slot, tag):
        L = []
        for e in range(8):
            pre = []
            if e == 0: pre = [f"s_add_u32 m0, s{slot}, s{sM0}"]
            if e == 4: pre = [f"s_add_u32 s{sT0}, s{slot}, s{sM0}", f"s_add_u32 m0, s{sT0}, 4096", f"s_add_u32 s{sKVo}, s{sKVo}, 4096"]
            L.append((pre, VM(f"buffer_load_dwordx4 {vL16}, {srd(S_KVD)}, s{sKVo} offen offset:{(e&3)*1024} {SC1} lds", tag)))
        return L
    post_dma = f"s_add_u32 s{sKVo}, s{sKVo}, {32768 - 4096}"
    B(f"""ds_read_b128 {K[0][0]}, {vCur}
    ds_read_b128 {K[0][1]}, {vCur} offset:1024
    ds_read_b128 {V[0][0]}, {vCur} offset:2048
    ds_read_b128 {V[0][1]}, {vCur} offset:3072""")
    hist = list(S15) + list(EA) + list(B.lines)
    B(f"""s_waitcnt vmcnt(0) lgkmcnt(0)
    v_mfma_f32_32x32x16_bf16 {S[0]}, {K[0][0]}, {Q[0][0]}, 0
    v_mfma_f32_32x32x16_bf16 {S[0]}, {K[0][1]}, {Q[0][1]}, {S[0]}""")
    B.ext(ts.at("att"))
    B("s_nop 7\ns_nop 3")

    NS = 4
    S_AF, S_W3, S_OUT = S_A, S_B, S_D
    sMT, sNT = sL + 6, sL + 7
    sAo = sL + 8
    sSo3 = sL + 9
    sM3 = sL + 13
    sWo, sWoN = 30, 15
    sX3 = 16
    sSh, sAdv, sAdv28 = 10, 18, 19
    setup3 = Asm()
    MAP48 = opt.get("map48", 0)
    if MAP48:
        setup3(f"""s_and_b32 s{sT0}, s{sRB}, 4
        s_add_u32 s{sMT}, s{sRB}, s{sT0}
        s_bfe_u32 s{sT0}, s{sCB}, 0x10003
        s_lshl2_add_u32 s{sMT}, s{sT0}, s{sMT}
        s_lshr_b32 s{sT0}, s{sCB}, 4
        s_and_b32 s{sT1}, s{sCB}, 7
        s_lshl3_add_u32 s{sNT}, s{sT0}, s{sT1}""")
    else:
        setup3(f"""s_and_b32 s{sT0}, s{sCB}, 1
        s_lshl_b32 s{sMT}, s{sRB}, 1
        s_add_u32 s{sMT}, s{sMT}, s{sT0}
        s_lshr_b32 s{sT0}, s{sCB}, 3
        s_lshl_b32 s{sT0}, s{sT0}, 2
        s_bfe_u32 s{sT1}, s{sCB}, 0x20001
        s_add_u32 s{sNT}, s{sT0}, s{sT1}""")
    setup3(f"""s_lshl_b32 s{sT0}, s{sNT}, 7
    s_add_u32 s{S_W3}, s{P_WD}, s{sT0}
    s_addc_u32 s{S_W3+1}, s{P_WD+1}, 0
    s_sub_u32 s{S_W3+2}, {3584*2048}, s{sT0}
    s_add_u32 s{sWo}, s{P_WO}, s{sT0}
    s_addc_u32 s{sWo+1}, s{P_WO+1}, 0
    s_sub_u32 s{sWoN}, {1024*2048}, s{sT0}
    s_mov_b32 s{sSh}, 11
    s_mov_b32 s{S_AF+2}, 16384
    s_mov_b32 s{S_OUT}, s{P_OUT}
    s_mov_b32 s{S_OUT+1}, s{P_OUT+1}
    s_mov_b32 s{S_OUT+2}, 0x400000
    s_mul_i32 s{sAo}, s{sW}, {AFS2}
    s_lshl_b32 s{sT0}, s{sMT}, 14
    s_add_u32 s{sAo}, s{sAo}, s{sT0}
    s_add_u32 s{sAo}, s{sAo}, {AF2_OFF}
    s_add_u32 s{S_AF}, s{P_WS}, s{sAo}
    s_addc_u32 s{S_AF+1}, s{P_WS+1}, 0
    s_mov_b32 s{sAo}, 4096
    s_mov_b32 s{sAo+1}, 8192
    s_mov_b32 s{sX3}, 12288
    s_lshl_b32 s{sM3}, s{sW}, 14
    s_add_u32 s{sM3}, s{sM3}, {W3B}""")
    for e in range(1, 4): setup3(f"s_mov_b32 s{sSo3+e}, {e*16384 - e*1024}")
    if CW:
        setup3(f"""s_and_b32 s{sT0}, s{sNT}, 7
        s_cmp_lg_u32 s{sT0}, 3
        s_cbranch_scc1 P3_NOCW
        s_lshr_b32 s{sT0}, s{sNT}, 3
        s_mul_i32 s{sT0}, s{sT0}, {CW_SZ}
        s_add_u32 s{sT0}, s{sT0}, {CW_OFF}
        s_add_u32 s{S_W3}, s{P_WS}, s{sT0}
        s_addc_u32 s{S_W3+1}, s{P_WS+1}, 0
        s_mov_b32 s{S_W3+2}, {3584*256}
        s_add_u32 s{sWo}, s{S_W3}, {3584*256}
        s_addc_u32 s{sWo+1}, s{S_W3+1}, 0
        s_mov_b32 s{sWoN}, {1024*256}
        s_mov_b32 s{sSh}, 8
        s_mov_b32 s{sSo3+1}, 1024
        s_mov_b32 s{sSo3+2}, 2048
        s_mov_b32 s{sSo3+3}, 3072
        P3_NOCW:""")
    setup3(f"""s_lshl_b32 s{sAdv}, 128, s{sSh}
    s_mul_i32 s{sAdv28}, s{sAdv}, 28""")
    setup3v = Asm()
    setup3v(f"""v_lshrrev_b32 {T[0]}, 3, {vL}
    v_lshrrev_b32 {T[1]}, 4, {vL}
    v_lshlrev_b32 {T[2]}, 1, {T[1]}
    v_and_b32 {T[3]}, 7, {vL}
    v_xor_b32 {T[2]}, {T[2]}, {T[3]}
    v_lshlrev_b32 {T[2]}, 4, {T[2]}
    s_lshl_b32 s{sT0}, s{sW}, 5
    v_add_u32 {T[0]}, s{sT0}, {T[0]}
    v_lshl_add_u32 {vW3o}, {T[0]}, s{sSh}, {T[2]}
    s_lshl_b32 s{sT0}, s{sAdv}, 2
    v_add_u32 {T[11]}, s{sT0}, {vW3o}
    v_lshrrev_b32 {T[0]}, 2, {vL}
    v_bfe_u32 {T[1]}, {vL}, 3, 2
    v_and_b32 {T[2]}, 3, {vL}
    v_lshlrev_b32 {T[2]}, 3, {T[2]}
    v_lshl_add_u32 {T[2]}, {T[0]}, 7, {T[2]}
    v_add_u32 {T[2]}, s{sM3}, {T[2]}""")
    for i in range(4): setup3v(f"v_xor_b32 {T[3]}, {i}, {T[1]}\nv_lshl_add_u32 {vW3a[i]}, {T[3]}, 5, {T[2]}")
    setup3v(f"""s_lshr_b32 s{sT0}, s{sMT}, 1
    s_lshl_b32 s{sT0}, s{sT0}, 10
    s_lshl_b32 s{sT1}, s{sRB}, 10
    v_mov_b32 {T[4]}, s{sT0}
    v_mov_b32 {T[5]}, s{sT1}
    v_cmp_gt_u32 vcc, 32, {vL}
    v_and_b32 {T[6]}, 31, {vL}
    v_lshlrev_b32 {T[6]}, 2, {T[6]}
    v_cndmask_b32 {T[4]}, {T[4]}, {T[5]}, vcc
    v_bfe_u32 {T[5]}, {vL}, 3, 2
    v_lshl_add_u32 {T[4]}, {T[5]}, 8, {T[4]}
    v_and_b32 {T[5]}, 7, {vL}
    v_lshl_add_u32 {T[4]}, {T[5]}, 4, {T[4]}
    v_lshrrev_b32 {T[5]}, 5, {vL}
    v_lshl_add_u32 {T[5]}, {T[5]}, 8, {T[6]}
    v_and_b32 {T[7]}, 15, {vL}
    v_lshlrev_b32 {T[7]}, 2, {T[7]}""")
    XRE = opt.get("xre", 0)
    RE = [Reg("a", 180 + 4*j, 4) for j in range(8)]
    sXP = 17
    setup3v(f"""s_add_u32 s{sXP}, s{sW}, {4*(36 - 4*opt.get("np", 4))}
    s_mul_i32 s{sXP}, s{sXP}, {AFS2}
    s_lshl_b32 s{sT0}, s{sMT}, 14
    s_add_u32 s{sXP}, s{sXP}, s{sT0}
    s_add_u32 s{sXP}, s{sXP}, {AF2_OFF}""")
    zero3 = [f"v_mov_b32 {acc3[i][j][r]}, 0" for i in range(4) for j in range(8) for r in range(4)]
    def w3dma(slot, e):
        m0 = f"s_add_u32 m0, s{sM3}, {slot*4096}"
        return m0, VM(f"buffer_load_dwordx4 {vW3o}, {srd(S_W3)}, {'0' if e == 0 else 's%d' % (sSo3+e)} offen offset:{e*1024} {SC1 if CW else ''} lds", ("W", slot))
    def xload(slot, j):
        return VM(f"buffer_load_dwordx4 {RX[slot][j]}, {vAF}, {srd(S_AF)}, {['0', 's%d' % sAo, 's%d' % (sAo+1), 's16'][j>>1]} offen offset:{(j&1)*2048} {opt.get('xflag', SC1)}", ("X", slot, j >> 2))
    adv3 = [f"v_add_u32 {vW3o}, s{sAdv}, {vW3o}", f"s_add_u32 s{S_AF}, s{S_AF}, {4*AFS2}\ns_addc_u32 s{S_AF+1}, s{S_AF+1}, 0"]
    def wread(slot, s):
        return [f"ds_read_b64_tr_b16 {RW[s][i].sub(2*hf,2)}, {vW3a[i]} offset:{slot*4096 + hf*2048}" for i in range(4) for hf in range(2)]
    def gm(s, j, i, first=False): return f"v_mfma_f32_16x16x32_bf16 {acc3[i][j]}, {RW[s&1][i]}, {RX[s][j]}, {0 if first else acc3[i][j]}"

    EARLY3 = opt.get("early3", 0)
    pfsetup = [f"s_lshl_b32 s{sT1}, s2, 2", f"s_add_u32 s{sT1}, s{sT1}, s{sW}", f"s_lshl_b32 s{sT1}, s{sT1}, 10",
               f"v_lshrrev_b32 {vPF}, 3, {vL}", f"v_lshlrev_b32 {vPF}, 7, {vPF}", f"v_add_u32 {vPF}, s{sT1}, {vPF}",
               f"s_mov_b32 s{S_PF}, s{P_WD}", f"s_mov_b32 s{S_PF+1}, s{P_WD+1}", f"s_mov_b32 s{S_PF+2}, {3584*2048}", f"s_mov_b32 s{sPF}, 0x100000"] if PF else []
    k_ = B.lines.index("; @@SETUP3@@")
    ins = []
    if EARLY3:
        ins = setup3.lines + setup3v.lines + pfsetup
        if EARLY3 > 1:
            for s_ in range(4):
                for e_ in range(4):
                    m0, d = w3dma(s_, e_)
                    ins += ([m0, "s_nop 0"] if e_ == 0 else []) + [d] + ([adv3[0]] if e_ == 3 else [])
    B.lines[k_:k_ + 1] = ins
    k2_ = hist.index("; @@SETUP3@@"); hist[k2_:k2_ + 1] = ins
    probs += check_hazards(B.lines, "p2pro")
    A.ext(B.lines)
    def att_parts(ab, kq, vp):
        o = ab ^ 1
        M = [f"v_mfma_f32_32x32x16_bf16 {S[o]}, {K[kq][0]}, {Q[o][0]}, 0",
             f"v_mfma_f32_32x32x16_bf16 {S[o]}, {K[kq][1]}, {Q[o][1]}, {S[o]}",
             f"v_mfma_f32_32x32x16_bf16 {O[o]}, {V[vp][0]}, {P[o].sub(0,4)}, {O[o]}",
             lsum(o),
             f"v_mfma_f32_32x32x16_bf16 {O[o]}, {V[vp][1]}, {P[o].sub(4,4)}, {O[o]}",
             None]
        ex = [f"v_exp_f32 {S[ab][r]}, {S[ab][r]}" for r in range(16)]
        cv = [f"v_cvt_pk_bf16_f32 {P[ab][r]}, {S[ab][2*r]}, {S[ab][2*r+1]}" for r in range(8)]
        return M, ex, cv
    def phase_plain(ab, kq, vp, extra, gp=99):
        M, ex, cv = att_parts(ab, kq, vp)
        order = [M[2], M[0], M[1], M[3], M[4]]
        if gp == 0: order = ["s_nop 0", M[0], M[1], "s_nop 0", "s_nop 0"]
        if gp in (1, 2): order[0] = order[0].rsplit(",", 1)[0] + ", 0"
        vl = []
        for r in range(16):
            vl.append(ex[r])
            if r >= 3 and r % 2 == 1: vl.append(cv[(r - 3)//2])
        vl.append(cv[7])
        mpos = opt.get("mpos", [0, 4, 9, 14, 18])
        assert max(extra, default=0) <= 4
        out = []; mi = 0
        for i, v in enumerate(vl):
            while mi < 5 and mpos[mi] == i:
                out.append(order[mi]); out.extend(extra.get(mi, [])); mi += 1
            out.append(v)
        return out
    def phase_merged(ab, kq, vp, G8, extra):
        M, ex, cv = att_parts(ab, kq, vp)
        order = [M[2], G8[0], M[0], G8[1], G8[2], M[1], G8[3], M[3], G8[4], M[4], G8[5], G8[6], G8[7]]
        e, c = ex, cv
        fill = [[e[0], e[1], e[2]], [e[3]], [e[4], e[5], e[6]], [c[0], c[1]], [e[7]], [e[8], e[9], e[10]], [c[2], c[3]], [c[4]],
                [e[11]], [e[12], e[13], e[14]], [e[15]], [c[5], c[6]], [c[7]]]
        assert max(extra, default=0) <= 12
        out = []
        for k in range(13):
            out.append(order[k]); out.extend(extra.get(k, [])); out.extend(fill[k])
        return out
    sX3 = 16
    NP = opt.get("np", 4)
    PFSW = 6
    sKM = sL + 14
    def chunk(kind, hook=None, first=False, pfok=True, wpre=False):
        out = []
        mer = kind == "merged"
        for pi in range(16):
            tau, ab = pi >> 1, pi & 1
            kp = tau & 1
            ex = {}
            if ab == 0:
                src = (vCur, (tau+1)*4096) if tau < 7 else (vNxt, 0)
                ld = [f"ds_read_b128 {K[kp^1][t]}, {src[0]} offset:{src[1] + t*1024}" for t in range(2)]
            else:
                src = (vCur, (tau+1)*4096 + 2048) if tau < 7 else (vNxt, 2048)
                ld = [f"ds_read_b128 {V[kp^1][t]}, {src[0]} offset:{src[1] + t*1024}" for t in range(2)]
            kvd = VM(f"buffer_load_dwordx4 {vL16}, {srd(S_KVD)}, s{sKVo} offen offset:{(pi&3)*1024} {SC1} lds", "KV")
            if wpre:
                kvd = VM(f"buffer_load_dwordx4 {T[11]}, {srd(S_KVD)}, {'0' if pi & 3 == 0 else 's%d' % (sSo3 + (pi & 3))} offen offset:{(pi&3)*1024} {SC1 if CW else ''} lds", "PW")
            rotate = [f"s_mov_b32 s{sT0}, s{sCur}", f"s_mov_b32 s{sCur}, s{sNext}", f"s_mov_b32 s{sNext}, s{sFree}", f"s_mov_b32 s{sFree}, s{sT0}",
                      f"s_add_u32 s{sKM}, s{sT0}, s{sM0}", f"s_add_u32 s{sIt}, s{sIt}, 1"]
            upd = [f"v_add_u32 {vCur}, s{sCur}, {vL16}", f"v_add_u32 {vNxt}, s{sNext}, {vL16}"]
            lg = 0 if (trace or not mer) else 2
            s, q = pi >> 2, pi & 3
            if pi == 14: w0 = [Need(["KV"], "lgkmcnt(0)"), "s_barrier"]
            elif mer and q == 0: w0 = [Need([("W", (s+1) % NS), ("X", s, 1)], "lgkmcnt(0)")]
            else: w0 = [f"s_waitcnt lgkmcnt({lg})"]
            put(ex, 0, w0)
            if pi % 8 == 7: put(ex, 0, tr_commit())
            if not mer:
                if pi < 8: put(ex, 3, f"s_mov_b32 m0, s{sKM}")
                if pi == 4: put(ex, 1, f"s_add_u32 s{sKVo}, s{sKVo}, 4096"); put(ex, 2, f"s_add_u32 s{sKM}, s{sKM}, 4096")
                if pi == 8: put(ex, 1, post_dma)
                if pi == 14: put(ex, 3, rotate[0]); put(ex, 4, rotate[1])
                if pi == 15: put(ex, 1, rotate[2]); put(ex, 2, rotate[3]); put(ex, 3, rotate[4]); put(ex, 4, rotate[5])
                put(ex, 1, ld[0]); put(ex, 2, ld[1])
                if pi < 8: put(ex, 4, kvd)
            else:
                G8 = [gm(s, 2*q + jj, i, first and s == 0) for jj in range(2) for i in range(4)]
                m0, d = w3dma(s, q)
                rd = wread((s+1) % NS, (s+1) & 1)
                if pi == 4: put(ex, 1, f"s_add_u32 s{sKVo}, s{sKVo}, 4096"); put(ex, 4, f"s_add_u32 s{sKM}, s{sKM}, 4096")
                if pi == 8: put(ex, 1, post_dma)
                if q == 0 and s > 0: put(ex, 6, adv3[1])
                if pi == 15:
                    for k, g_ in enumerate((4, 5, 6, 7, 8, 9)): put(ex, g_, rotate[k])
                if pi == 10 and PF: put(ex, 1, pfop[1])
                put(ex, 1, ld[0]); put(ex, 2, m0); put(ex, 3, d); put(ex, 4, ld[1])
                put(ex, 5, rd[2*q]); put(ex, 10 if q < 3 else 6, rd[2*q+1])
                put(ex, 7, xload(s, 2*q)); put(ex, 12, xload(s, 2*q+1))
                if q == 3: put(ex, 11, adv3[0])
                if pi < 8: put(ex, 8, f"s_mov_b32 m0, s{sKM}"); put(ex, 9, kvd)
                if wpre and pi in (4, 8): put(ex, 6, f"v_add_u32 {T[11]}, s{sAdv}, {T[11]}")
                if pi == 9 and PF:
                    put(ex, 9, pfop[0])
                    put(ex, 6, [f"s_cmp_eq_u32 s{sIt}, {PFSW}", f"s_cselect_b32 s{sPF}, 0, s{sPF}", f"s_cselect_b32 s{S_PF}, s{P_WO}, s{S_PF}",
                                f"s_cselect_b32 s{S_PF+1}, s{P_WO+1}, s{S_PF+1}", f"s_cselect_b32 s{S_PF+2}, 0x200000, s{S_PF+2}"])
                if pi == 12: put(ex, 9, cp(False))
                if wpre and XRE and pi >= 8:
                    j_ = pi - 8
                    put(ex, 8 if pi not in (15,) else 10, VM(f"buffer_load_dwordx4 {RE[j_]}, {vAF}, {srd(S_WS)}, s{sXP} offen offset:{(j_&1)*2048} {SC1}", ("XE", j_ >> 2)))
                    if j_ & 1: put(ex, 11, f"s_add_u32 s{sXP}, s{sXP}, {4096 if j_ < 7 else (-12288) & 0xffffffff}")
            if pi % 8 == 6: put(ex, 3, tr_issue())
            if hook: hook(pi, ex, None)
            if mer: out += phase_merged(ab, kp ^ ab, kp ^ 1 ^ ab, G8, ex)
            else: out += phase_plain(ab, kp ^ ab, kp ^ 1 ^ ab, ex, pi if first else 99)
        if mer: out += adv3[1:]
        out += upd
        return out

    dflt = {3: dict(hs=[1, 1], gs=23, hf=26, hp=36, hc=39, pf=[25, 28, 41]), 4: dict(hs=[2, 1], gs=32, hf=44, hp=50, hc=53, pf=[34, 38, 44, 56])}[NP]
    dflt.update(opt.get("sched", {}))
    HSN, HSD = dflt["hs"]; GS, HF, HPg, HC, PFP = dflt["gs"], dflt["hf"], dflt["hp"], dflt["hc"], dflt["pf"]
    assert len(PFP) == NP
    hst = hst0 + hst1a
    hph = [dflt.get("hs0", 0) + n*HSN//HSD for n in range(16)]
    assert EARLY3 or hph[-1] < GS
    hpoll = f"buffer_load_dwordx4 {vFl}, {T[4]}, {srd(S_WS)}, s{sT1} offen sc1"
    LASTP = 16*NP - 1
    wph = [GS + 1 + k // 2 for k in range(16)] if not EARLY3 else ([-1]*16 if EARLY3 > 1 else [2*(k // 2)*2 + 1 for k in range(16)])
    NXP = opt.get("nxp", 32)
    xph = [HC + 1 + (k * (LASTP - HC)) // NXP for k in range(NXP)] + [-1] * (32 - NXP)
    gloads = [VM(f"buffer_load_dword {vG[ab]}, {T[6]}, {srd(S_WS)}, s{sT2} offen offset:{ab*128} sc1", "G") for ab in range(2)]
    gloads += [VM(f"buffer_load_dword {SCL[j]}, {T[7]}, {srd(S_WS)}, s{sT3} offen offset:{j*64} sc1", "G") for j in range(8)]
    def hookM0(pi, ex, pre):
        n = NXP + pi
        if n < 32:
            s_, j_ = divmod(n, 8)
            put(ex, 6, VM(f"buffer_load_dwordx4 {RX[s_][j_]}, {vL16}, {srd(S_AF)}, s{sX3 + (j_>>2)} offen offset:{(j_&3)*1024} {SC1}", ("X", s_, j_ >> 2)))
        if pi >= 11: put(ex, 8, gloads[2*(pi - 11)]); put(ex, 11, gloads[2*(pi - 11) + 1])
    def mkhook(base):
        def hook(pi, ex, pre):
            gp = base + pi
            k = 0
            for n in range(16):
                if hph[n] == gp: put(ex, [0, 3][k], hst[n]); k += 1
            if gp == GS and not EARLY3:
                put(ex, 0, setup3.lines[:15]); put(ex, 1, setup3.lines[15:]); put(ex, 3, setup3v.lines + pfsetup)
            if gp in PFP and PF: put(ex, 3 if (gp & 15) >= 8 else 0, pfop)
            if gp in opt.get('cpg', (9, 16*NP - 22)): put(ex, 4, cp())
            k = 0
            for n in range(16):
                if wph[n] == gp:
                    s_, e_ = divmod(n, 4)
                    m0, d = w3dma(s_, e_)
                    if k == 0: ex[0] = ex[0] + [m0]
                    put(ex, k + 1, [d] + ([adv3[0]] if e_ == 3 else [])); k += 1
            if gp == HF:
                put(ex, 2, [Need(["H"]), "s_mov_b64 exec, 1", VM(f"buffer_store_dword {vNon}, {vZero}, {srd(S_WS)}, s{sFl} offen sc1", "HF"), "s_mov_b64 exec, -1", "s_nop 2"])
            if gp == HPg: put(ex, 3, [f"s_mov_b32 s{sT1}, {FL_H}", VM(hpoll, "HP")])
            if gp == HC:
                put(ex, 2, [Need(["HP"])] + check([vFl[k] for k in range(4)]) + ["s_cbranch_scc0 P3_SLOWH", "P3_HOK:"])
                put(ex, 3, [f"s_lshl_b32 s{sT2}, s{sRB}, 10", f"s_lshl_b32 s{sT3}, s{sW}, 8", f"s_add_u32 s{sT2}, s{sT2}, s{sT3}", f"s_add_u32 s{sT2}, s{sT2}, {G_OFF}",
                            f"s_lshl_b32 s{sT3}, s{sMT}, 9", f"s_add_u32 s{sT3}, s{sT3}, {G_OFF}"])
            k = 0
            for n in range(32):
                if xph[n] == gp:
                    s_, j_ = divmod(n, 8)
                    put(ex, [0, 3, 4, 2][k], [xload(s_, j_)] + (adv3[1:] if j_ == 7 else [])); k += 1
            if gp == LASTP:
                put(ex, 3, [Need([("W", 0)])] + wread(0, 0))
                if NXP == 24: put(ex, 5, [f"s_mov_b32 s{sX3}, s{sAo}", f"s_mov_b32 s{sX3+1}, s{sAo+1}"] + adv3[1:])
        return hook
    def retag(ch, cur, need):
        out = []
        for l in ch:
            if isinstance(l, VM) and l.tag == "KV": out.append(VM(l, cur))
            elif isinstance(l, Need) and "KV" in l.tags: out.append(Need([need], l.extra))
            else: out.append(l)
        return out
    hist = [VM(l, "KV-1") if isinstance(l, VM) and l.tag == "KV" else l for l in hist]
    CP = []; hh_ = list(hist)
    for c in range(NP):
        ch = resolve_waits(retag(chunk("plain", mkhook(16*c), first=(c == 0)), f"KV{c}", f"KV{c-1}"), hh_)
        CP.append(ch); hh_ += ch
    mA = retag(chunk("merged"), "KVa", "KVb"); mB = retag(chunk("merged"), "KVb", "KVa")
    mres = resolve_waits(mA, mB)
    M = mres
    M0 = resolve_waits(retag(chunk("merged", hookM0, first=True), "KVb", f"KV{NP-1}"), hh_)
    probs += verify_waits(hh_ + M0 + M, len(hh_ + M0), "M0->M")
    WPRE = opt.get("wpre", 1)
    if WPRE:
        MW = resolve_waits(retag(chunk("merged", wpre=True), "-", "KVa"), M)
        probs += verify_waits(M + MW + [l for l in MW if not (isinstance(l, Need) and "KVa" in l.tags)], len(M + MW), "MW->MW")
    mab = opt.get("mabl", "")
    def abl(L):
        out = []
        for l in L:
            if "x" in mab and isinstance(l, VM) and isinstance(l.tag, tuple) and l.tag[0] == "X": continue
            if "w" in mab and isinstance(l, VM) and isinstance(l.tag, tuple) and l.tag[0] == "W": continue
            if "t" in mab and l.startswith("ds_read_b64_tr"): continue
            if "k" in mab and l.startswith("ds_read_b128"): continue
            if "s" in mab and l.startswith(("s_add", "s_mov", "s_cmp", "s_cselect")) and f"s{sIt}" not in l and "exec" not in l: continue
            if "n" in mab and isinstance(l, Need): out.append("s_waitcnt lgkmcnt(0)" if l.extra else "s_nop 0"); continue
            if "g" in mab and l.startswith("v_mfma_f32_16x16") and "a[2" in l: continue
            out.append(l)
        return out
    Me = abl(M); M0e = abl(M0)
    D = Asm()
    D(f"s_mov_b32 s{sIt}, 0")
    cab = opt.get("cabl", "")
    def cabl(L):
        out = []
        for l in L:
            if "h" in cab and isinstance(l, VM) and l.tag == "H": continue
            if "k" in cab and isinstance(l, VM) and str(l.tag).startswith("KV"): continue
            if "r" in cab and l.startswith("ds_read_b128"): continue
            if "s" in cab and l.startswith(("s_mov_b32 m0", "s_add_u32")) and "s62" not in l: continue
            if "w" in cab and l.startswith("s_waitcnt lgkmcnt"): continue
            out.append(l)
        return out
    for c in range(NP): D.ext(ts.at(f"c{c}")); D.ext(cabl(CP[c]) if c < 2 else CP[c])
    D.ext(ts.at("m")); D.ext(M0e)
    D.ext(ts.at("m1"))
    D(".p2align 6\nP2_MLOOP:")
    D.ext(Me)
    if WPRE:
        D(f"""s_cmp_lt_u32 s{sIt}, 6
        s_cbranch_scc1 P2_MLOOP
        s_mov_b32 s{S_KVD}, s{sWo}
        s_mov_b32 s{S_KVD+1}, s{sWo+1}
        s_mov_b32 s{S_KVD+2}, s{sWoN}""")
        if CPF: D(cpa)
        D.ext(ts.at("mw"))
        D("P2_MWLOOP:")
        if "mw2" in ts.names: D.ext(ts.at("mw2"))
        D.ext(abl(MW))
        D(f"s_cmp_lt_u32 s{sIt}, 8\ns_cbranch_scc1 P2_MWLOOP")
        probs += check_hazards(M + MW + MW, "mw")
        M = MW
    else:
        D(f"s_cmp_lt_u32 s{sIt}, 8\ns_cbranch_scc1 P2_MLOOP")
    probs += check_hazards(B.lines[-8:] + sum(CP, []) + M0 + M + M, "att")
    A.ext(D.lines)

    C = Asm()
    C.ext(ts.at("attend"))
    C(f"""v_mfma_f32_32x32x16_bf16 {O[1]}, {V[1][0]}, {P[1].sub(0,4)}, {O[1]}
    {lsum(1)}
    v_mfma_f32_32x32x16_bf16 {O[1]}, {V[1][1]}, {P[1].sub(4,4)}, {O[1]}""")
    C(f"v_mov_b32 {T[1]}, 0")
    for r in range(16): C(f"v_fmac_f32 {T[1]}, 0, {O[0][r]}")
    for r in range(16): C(f"v_fmac_f32 {T[1]}, 0, {O[1][r]}")
    for ab in range(2): C(f"v_add_f32 {Lc[ab][0]}, {Lc[ab][0]}, {Lc[ab][1]}")
    C(f"""s_mov_b32 s{sT0}, {f2u(2.0**-20):#x}
    s_mov_b32 s{sT1}, {f2u(2.0**100):#x}
    v_cmp_le_f32 vcc, s{sT0}, {Lc[0][0]}
    v_cmp_le_f32 s[{S_C}:{S_C+1}], s{sT0}, {Lc[1][0]}
    s_nop 1
    s_and_b64 vcc, vcc, s[{S_C}:{S_C+1}]
    v_cmp_ge_f32 s[{S_C}:{S_C+1}], s{sT1}, {Lc[0][0]}
    v_cmp_ge_f32 s[{sT2}:{sT3}], s{sT1}, {Lc[1][0]}
    s_nop 1
    s_and_b64 vcc, vcc, s[{S_C}:{S_C+1}]
    s_and_b64 vcc, vcc, s[{sT2}:{sT3}]
    v_cmp_eq_f32 s[{S_C}:{S_C+1}], 0, {T[1]}
    s_nop 1
    s_and_b64 vcc, vcc, s[{S_C}:{S_C+1}]
    s_cmp_eq_u64 vcc, -1""")
    if opt.get("force_fallback"): C("s_branch P2_FALLBACK")
    C("s_cbranch_scc0 P2_FALLBACK")
    C("P2_FINISH:")
    for ab in range(2): C(f"v_rcp_f32 {T[2*ab]}, {Lc[ab][0]}")
    C(f"""s_add_u32 s{sT0}, s{sCB}, 112
    s_mul_i32 s{sT0}, s{sT0}, {AFS2}
    s_lshl_b32 s{sT1}, s{sRB}, 15
    s_add_u32 s{sT0}, s{sT0}, s{sT1}
    s_lshl_b32 s{sT1}, s{sW}, 13
    s_add_u32 s{sT0}, s{sT0}, s{sT1}
    s_add_u32 s{sT0}, s{sT0}, {AF2_OFF}
    s_add_u32 s{sT1}, s{sT0}, 4096
    v_and_b32 {vFl[2]}, 40, {vL}
    v_cmp_eq_u32 vcc, 40, {vFl[2]}
    v_add_u32 {vFl[2]}, 128, {vQP}
    s_nop 0
    v_cndmask_b32 {vFl[1]}, {vQP}, {vFl[2]}, vcc""")
    for ab in range(2): C(f"v_mul_f32 {T[2*ab]}, {T[2*ab]}, {vG[ab]}")
    for ab in range(2):
        for r in range(0, 16, 2):
            C(f"v_pk_mul_f32 {O[ab].sub(r,2)}, {O[ab].sub(r,2)}, {T.sub(2*ab,2)} op_sel_hi:[1,0]")
        for r in range(8): C(f"v_cvt_pk_bf16_f32 {S[ab][r]}, {O[ab][2*r]}, {O[ab][2*r+1]}")
        for c in range(2):
            C(VM(f"buffer_store_dwordx4 {S[ab].sub(4*c,4)}, {vFl[1+c]}, {srd(S_WS)}, s{sT0+ab} offen offset:{c*512} {SC1}", "O"))
    for j in range(8): C(f"v_sub_f32 {SCL[j]}, 1.0, {SCL[j]}")
    for j in range(8): C(f"v_cvt_pk_bf16_f32 {SCL[j]}, {SCL[j]}, {SCL[j]}")
    for j in range(8): C(f"v_and_b32 {SCL[j]}, 0xffff0000, {SCL[j]}")
    sFC = sL
    C(f"""s_lshl_b32 s{sFC}, s{sMT}, 9
    s_add_u32 s{sFC}, s{sFC}, {FL_O}
    s_add_u32 s{sFl}, s{sFl}, {FL_O - FL_H}""")
    C.ext(ts.at("tail"))
    EPI_IL = opt.get("epi_il", 1)
    groups = []
    if EPI_IL:
        n0 = next(k for k, l in enumerate(C.lines) if l.startswith("v_mov_b32") )
        rest = C.lines[n0:]; C.lines = C.lines[:n0]
        k0 = next(k for k, l in enumerate(rest) if l.startswith("s_mov_b32"))
        k1 = rest.index("P2_FINISH:")
        groups = [[l] for l in rest[:k0]] + [rest[k0:k1 + 1]] + [[l] for l in rest[k1 + 1:]]
    vPa = [O[0][i] for i in range(4)]; vPb = [O[0][4 + i] for i in range(4)]
    def pread(st, dst):
        base = vPb if st < 2 else vPa
        return [f"ds_read_b64_tr_b16 {dst[i].sub(2*hf,2)}, {base[i]} offset:{(st & 1)*4096 + hf*2048}" for i in range(4) for hf in range(2)]
    def p3iter(hook=None, now=False, skipx=False, usee=False):
        out = []
        for s in range(NS):
            m = [gm(s, j, i) for j in range(8) for i in range(4)]
            xt = lambda h: ("X", s, h)
            if usee and s == 0:
                m = [l.replace(str(RX[0][k // 4]), str(RE[k // 4])) for k, l in enumerate(m)]
                xt = lambda h: ("XE", h)
            f = {}
            if opt.get("t3", 1) == 0:
                f[-1] = [Need([("W", (s+1) % NS), ("X", s, 1)], "lgkmcnt(0)"), w3dma(s, 0)[0]]
                dgap = [0, 6, 14, 22]
                for e in range(4): put(f, dgap[e], w3dma(s, e)[1])
                for k, r in enumerate(wread((s + 1) % NS, (s+1) & 1)): put(f, 1 + 3*k, r)
                for j in range(8): put(f, 4*j + 3 + (1 if j < 7 else 0), xload(s, j))
            else:
                f[-1] = [Need([xt(0)], "lgkmcnt(0)"), w3dma(s, 0)[0]]
                dgap = opt.get("t3w", [0, 2, 6, 10])
                if now: f[-1] = f[-1][:1]
                else:
                    for e in range(4): put(f, dgap[e], w3dma(s, e)[1])
                put(f, 15, Need([xt(1)]))
                rg0 = opt.get("t3r", 18)
                if not (now and s == 3): put(f, rg0 - 1, Need([("W", (s+1) % NS)]))
                for k, r in enumerate(pread(0, RW[0]) if (now and s == 3) else wread((s + 1) % NS, (s+1) & 1)): put(f, rg0 + k + (1 if rg0 + k >= 20 else 0) + (1 if rg0 + k >= 23 else 0), r)
                if not (skipx and s == 0):
                    for j in range(8): put(f, 4*j + 3 + (1 if j < 7 else 0), xload(s, j))
            put(f, 31, adv3)
            put(f, 28, tr_issue())
            if trace: f[-1] = f[-1][:1] + tr_commit() + f[-1][1:]
            if hook: hook(s, f)
            out += interleave(m, f)
        return out
    opoll = f"buffer_load_dword {vFl[0]}, {T[5]}, {srd(S_WS)}, s{sFC} offen sc1"
    NT = NP - 2
    OFS, OPS = opt.get("oflag_step", 2), opt.get("opoll_step", 4*NT - 1 if NT == 1 else 4*NT - 2)
    def mkT(base):
        def hookT(s, f):
            if base == 0 and s < 2:
                R_ = opt.get("epi_rate", 3)
                for g_ in range(2 if s == 0 else 0, 31):
                    for _ in range(R_):
                        if groups: put(f, g_, groups.pop(0))
                assert s == 0 or not groups
            if base + s == OFS: put(f, 10, [Need(["O"]), "s_mov_b64 exec, 1", VM(f"buffer_store_dword {vNon}, {vZero}, {srd(S_WS)}, s{sFl} offen sc1", "OF"), "s_mov_b64 exec, -1", "s_nop 2"])
            if base + s == OPS: put(f, 26, VM(opoll, "OP"))
            if base + s == 1 and CPF: put(f, 14, [cpa, f"v_min_u32 v0, L_END-{CB0}-4, v0"] + cp(False))
        return hookT
    T5 = []
    XE_ = XRE and WPRE and NT >= 2
    for k in range(NT): T5 += resolve_waits(p3iter(mkT(4*k), skipx=XE_ and k == 0, usee=XE_ and k == 1), M + M + C.lines + T5)
    L3 = resolve_waits(p3iter())
    mid = [Need(["OP"])] + check([vFl[0]]) + ["s_cbranch_scc0 P3_SLOWO", "P3_OOK:",
           f"s_mov_b32 s{S_W3}, s{sWo}", f"s_mov_b32 s{S_W3+1}, s{sWo+1}", f"s_mov_b32 s{S_W3+2}, s{sWoN}",
           f"v_subrev_u32 {vW3o}, s{sAdv28}, {vW3o}", f"s_mov_b32 s{sIt}, 6", "s_barrier",
           f"v_add_u32 {T[0]}, 0x10000, {vL16}", f"v_and_b32 {T[1]}, 15, {vL}", f"v_lshlrev_b32 {T[1]}, 11, {T[1]}", f"v_bfe_u32 {T[2]}, {vL}, 4, 1",
           f"v_lshl_add_u32 {T[1]}, {T[2]}, 5, {T[1]}", f"v_lshrrev_b32 {T[2]}, 5, {vL}", f"v_lshl_add_u32 {T[1]}, {T[2]}, 4, {T[1]}",
           f"s_lshl_b32 s{sT0}, s{sMT}, 18", f"s_lshl_b32 s{sT1}, s{sW}, 16", f"s_add_u32 s{sT0}, s{sT0}, s{sT1}",
           f"s_lshl_b32 s{sT1}, s{sNT}, 7", f"s_add_u32 s{sT0}, s{sT0}, s{sT1}", f"s_add_u32 s{sT1}, s{sT0}, 32768"]
    if WPRE:
        mid += [f"s_lshl_b32 s{sT2}, s{sW}, 13", f"s_add_u32 s{sT2}, s{sT2}, {W3B}"]
        mid += [f"v_subrev_u32 {vPa[i]}, s{sT2}, {vW3a[i]}" for i in range(4)] + [f"v_add_u32 {vPb[i]}, 0x10000, {vPa[i]}" for i in range(4)]
    mid = resolve_waits(mid, T5)
    probs += verify_waits(M + C.lines + T5 + mid + L3, len(M + C.lines + T5 + mid), "T5->L3")
    tail = [f"s_add_u32 s{sIt}, s{sIt}, 1", f"s_cmp_eq_u32 s{sIt}, 8", "s_cbranch_scc1 P3_DONE", "s_nop 7"]
    for i in range(4):
        for j in range(8):
            for r in (0, 2):
                tail.append(f"v_pk_mul_f32 {acc3[i][j].sub(r,2)}, {acc3[i][j].sub(r,2)}, {SCL.sub(j & ~1, 2)} op_sel:[0,{j&1}] op_sel_hi:[1,{j&1}]")
    tail += ["s_nop 0", "s_branch P3_LOOP", "P3_DONE:"]
    probs += check_hazards(M[-30:] + C.lines + T5 + mid + L3 + tail + L3, "tail") + check_hazards(L3 + L3, "l3")
    tab = opt.get("tabl", "")
    def tabl(L):
        out = []
        for l in L:
            if isinstance(l, VM) and isinstance(l.tag, tuple) and l.tag[0].lower() in tab: continue
            if "t" in tab and l.startswith("ds_read_b64_tr"): continue
            if "m" in tab and l.startswith("v_mfma"): continue
            if "a" in tab and l in adv3: continue
            out.append(l)
        return out
    T5 = tabl(T5); L3 = tabl(L3)
    C.ext(T5); C.ext(ts.at("t5end")); C.ext(mid)
    if TCH > 2: C(f"; @@TOUCH x 3 s{sW}")
    C.ext(ts.at("l3"))
    if WPRE:
        XEND = opt.get("xend", 0)
        VA = [Reg("v", S[1].base + 4*j, 4) for j in range(8)]
        RXF = [RX[0], RX[1], VA, RE] if XEND else RX
        def hookL7(s, f):
            if XEND and s < 2:
                if s == 0: put(f, 0, [f"s_add_u32 s{sXP}, s{sW}, {4*34}", f"s_mul_i32 s{sXP}, s{sXP}, {AFS2}", f"s_lshl_b32 s{sT2}, s{sMT}, 14",
                                      f"s_add_u32 s{sXP}, s{sXP}, s{sT2}", f"s_add_u32 s{sXP}, s{sXP}, {AF2_OFF}"])
                for j in range(8):
                    put(f, 4*j + 2, VM(f"buffer_load_dwordx4 {RXF[2+s][j]}, {vAF}, {srd(S_WS)}, s{sXP} offen offset:{(j&1)*2048} {SC1}", ("X", 2 + s + 10, j >> 2)))
                    if j & 1: put(f, 4*j + 2, f"s_add_u32 s{sXP}, s{sXP}, {4096 if j < 7 else 4*AFS2 - 12288}")
            if XEND and s >= 2:
                for g_ in list(f): f[g_] = [l for l in f[g_] if not (isinstance(l, VM) and l.tag[0] == "X")]
            if s == 0:
                for j in range(8):
                    sc = [f"v_pk_mul_f32 {acc3[i][j].sub(r,2)}, {acc3[i][j].sub(r,2)}, {SCL.sub(j & ~1, 2)} op_sel:[0,{j&1}] op_sel_hi:[1,{j&1}]" for i in range(4) for r in (0, 2)]
                    if j == 0: put(f, -1, sc + ["s_nop 1"])
                    else:
                        for k in range(8): put(f, 4*(j - 1) + k // 3, sc[k])
        L7 = resolve_waits(p3iter(hookL7, now=True), L3 + L3)
        probs += check_hazards(L3 + L7, "l7")
        C.ext(L3); C.ext(tabl(L7)); C.ext(ts.at("l3end"))
        LPREV = L3 + L7
    else:
        C(".p2align 6\nP3_LOOP:")
        C.ext(L3); C.ext(tail); C.ext(ts.at("l3end"))
        LPREV = L3 + L3; RXF = RX; XEND = 0
    for w in range(3): C(f"s_cmp_eq_u32 s{sW}, {w}\ns_cbranch_scc1 P3_FIN{w}")
    A.ext(C.lines)
    RWF = [RW[0]] + [[Reg("a", 128 + 16*k + 4*i, 4) for i in range(4)] for k in range(3)]
    def fin(w):
        def adr(off): return (vL16, off) if off < 65536 else (T[0], off - 65536)
        own = [2*w, 2*w + 1]
        oth = [j for d in range(1, 4) for j in (2*((w + d) & 3), 2*((w + d) & 3) + 1)]
        mm = lambda s_, j, i: f"v_mfma_f32_16x16x32_bf16 {acc3[i][j]}, {RWF[s_][i]}, {RXF[s_][j]}, {acc3[i][j]}"
        m = [mm(0, j, i) for j in oth for i in range(4)]
        G0 = 24
        f = {}
        f[-1] = [Need([("X", 0, 1)] + ([] if WPRE else [("W", 1)]), "lgkmcnt(0)")]
        k = 0
        for s_ in (1, 2, 3):
            if s_ > 1 and not WPRE: put(f, k, Need([("W", s_)]))
            for r in (pread(s_, RWF[s_]) if WPRE else [f"ds_read_b64_tr_b16 {RWF[s_][i].sub(2*hf,2)}, {vW3a[i]} offset:{s_*4096 + hf*2048}" for i in range(4) for hf in range(2)]):
                put(f, k * 20 // 24, r); k += 1
        put(f, G0 - 1, Need([("X", 1, 1), ("X", 13, 1)] if (WPRE and XEND) else [("X", 3, 1)], "lgkmcnt(0)"))
        if WPRE: put(f, G0 - 1, "s_barrier")
        for j in oth: m += [mm(s_, j, i) for s_ in (1, 2, 3) for i in range(4)]
        for j in own: m += [mm(s_, j, i) for s_ in (0, 1, 2, 3) for i in range(4)]
        WS_ = opt.get("fws", 3)
        for n, j in enumerate(oth):
            d = j >> 1; q = (w - d - 1) & 3
            for i in range(4):
                b_, off = adr((d*3 + q)*8192 + ((j & 1)*4 + i)*1024)
                put(f, G0 + 12*(n + 1) + 5 + (WS_ if n < 5 else 1)*i, f"ds_write_b128 {b_}, {acc3[i][j]} offset:{off}")
        free = [acc3[i][j] for j in oth for i in range(4)]
        g0 = G0 + 12*6 + 5 + 6
        put(f, g0, ["s_waitcnt lgkmcnt(0)", "s_barrier"])
        k = 0
        for q in range(3):
            for jj in range(2):
                for i in range(4):
                    b_, off = adr((w*3 + q)*8192 + (jj*4 + i)*1024)
                    put(f, min(g0 + (k * 3) // 4, 127), f"ds_read_b128 {free[k]}, {b_} offset:{off}"); k += 1
        R = Asm()
        Fl = resolve_waits(interleave(m, f), LPREV)
        if opt.get("fabl"): Fl = [l for l in Fl if not l.startswith(tuple(opt["fabl"]))]
        R.ext(Fl)
        R.ext(ts.at("redw"))
        R("s_nop 3")
        for q in range(3):
            R(f"s_waitcnt lgkmcnt({[15, 8, 0][q] if not ts.on else 0})")
            for jj in range(2):
                for i in range(4):
                    a = acc3[i][2*w+jj]; b = free[q*8 + jj*4 + i]
                    for r in (0, 2): R(f"v_pk_add_f32 {a.sub(r,2)}, {a.sub(r,2)}, {b.sub(r,2)}")
        for jj in range(2):
            for ip in range(2):
                X, Y = acc3[2*ip][2*w+jj], acc3[2*ip+1][2*w+jj]
                Dd = S[0].sub(4*(jj*2+ip), 4)
                R(f"v_cvt_pk_bf16_f32 {Dd[0]}, {X[0]}, {X[1]}\nv_cvt_pk_bf16_f32 {Dd[1]}, {X[2]}, {X[3]}")
                R(f"v_cvt_pk_bf16_f32 {Dd[2]}, {Y[0]}, {Y[1]}\nv_cvt_pk_bf16_f32 {Dd[3]}, {Y[2]}, {Y[3]}")
                R(f"s_nop 1\nv_permlane16_swap_b32 {Dd[0]}, {Dd[2]}\nv_permlane16_swap_b32 {Dd[1]}, {Dd[3]}")
                R(f"buffer_store_dwordx4 {Dd}, {T[1]}, {srd(S_OUT)}, s{sT0+jj} offen offset:{ip*64} {opt.get('outflag', '')}")
        if trace:
            R(f"""s_waitcnt vmcnt(0)
            s_memrealtime s[100:101]
            s_waitcnt lgkmcnt(0)
            s_lshl_b64 exec, 1, s81
            v_mov_b32 v0, s100
            s_mov_b64 exec, -1
            s_lshl_b32 s80, s2, 2
            s_add_u32 s80, s80, s{sW}
            s_lshl_b32 s80, s80, 8
            s_add_u32 s80, s80, {TS_OFF}
            v_lshlrev_b32 {T[3]}, 2, {vL}
            buffer_store_dword v0, {T[3]}, {srd(S_WS)}, s80 offen
            s_waitcnt vmcnt(0) ; TRACE""")
        if opt.get("dbgt"):
            R(f"""s_waitcnt vmcnt(0) lgkmcnt(0)
            s_memrealtime s[100:101]
            s_waitcnt lgkmcnt(0)
            s_mov_b32 s{S_C}, s{P_DBG}
            s_mov_b32 s{S_C+1}, s{P_DBG+1}
            s_mov_b32 s{S_C+2}, 256
            s_mov_b64 exec, 1""")
            for i in range(10):
                R(f"""s_sub_u32 s80, s{82+2*i}, s{sNonce}
                s_add_u32 s80, s80, 1000
                v_mov_b32 {T[3]}, s80
                buffer_atomic_umax {T[3]}, {vZero}, {srd(S_C)}, 0 offen offset:{8 + 4*i}""")
            R("s_waitcnt vmcnt(0)")
        else:
            R.ext(ts.flush(S_WS, sW, S[1].base))
        R("s_endpgm")
        return R
    for w in (3, 0, 1, 2):
        R = fin(w)
        probs += check_hazards(LPREV[-10:] + R.lines, f"fin{w}")
        A(f"P3_FIN{w}:\n; @@PAD@@"); A.ext(R.lines)
    A.ext(slow1.lines)
    A("P3_SLOWH:"); A.ext(spin("P3_SH", hpoll, [vFl[k] for k in range(4)], "P3_HOK"))
    A("P3_SLOWO:"); A.ext(spin("P3_SO", opoll, [vFl[0]], "P3_OOK"))

    F = Asm()
    F("P2_FALLBACK:")
    for ab in range(2): F(f"v_mov_b32 {T[ab]}, 0xff800000")
    F(f"s_mov_b32 s{sT0}, {KV_OFF}")
    F("P2_FB1:")
    for t in range(2): F(f"buffer_load_dwordx4 {K[0][t]}, {vL16}, {srd(S_WS)}, s{sT0} offen offset:{t*1024} {SC1}")
    F("s_waitcnt vmcnt(0)")
    for ab in range(2):
        F(f"v_mfma_f32_32x32x16_bf16 {S[ab]}, {K[0][0]}, {Q[ab][0]}, 0\nv_mfma_f32_32x32x16_bf16 {S[ab]}, {K[0][1]}, {Q[ab][1]}, {S[ab]}")
    F("s_nop 15")
    for ab in range(2):
        for r in range(0, 16, 2): F(f"v_max3_f32 {T[ab]}, {S[ab][r]}, {S[ab][r+1]}, {T[ab]}")
    F(f"s_add_u32 s{sT0}, s{sT0}, 4096\ns_cmp_lt_u32 s{sT0}, {KV_OFF + 262144}\ns_cbranch_scc1 P2_FB1")
    for ab in range(2): F(f"v_mov_b32 {T[2+ab]}, {T[ab]}")
    F("s_nop 1")
    for ab in range(2): F(f"v_permlane32_swap_b32 {T[ab]}, {T[2+ab]}")
    for ab in range(2): F(f"v_max_f32 {vFl[ab]}, {T[ab]}, {T[2+ab]}")
    for ab in range(2):
        for r in range(16): F(f"v_mov_b32 {O[ab][r]}, 0")
        for r in range(4): F(f"v_mov_b32 {Lc[ab][r]}, 0")
    F(f"s_mov_b32 s{sT0}, {KV_OFF}")
    F("P2_FB2:")
    for t in range(2): F(f"buffer_load_dwordx4 {K[0][t]}, {vL16}, {srd(S_WS)}, s{sT0} offen offset:{t*1024} {SC1}")
    for t in range(2): F(f"buffer_load_dwordx4 {V[0][t]}, {vL16}, {srd(S_WS)}, s{sT0} offen offset:{2048 + t*1024} {SC1}")
    F("s_waitcnt vmcnt(0)")
    for ab in range(2):
        F(f"v_mfma_f32_32x32x16_bf16 {S[ab]}, {K[0][0]}, {Q[ab][0]}, 0\nv_mfma_f32_32x32x16_bf16 {S[ab]}, {K[0][1]}, {Q[ab][1]}, {S[ab]}")
    F("s_nop 15")
    for ab in range(2):
        for r in range(16): F(f"v_sub_f32 {S[ab][r]}, {S[ab][r]}, {vFl[ab]}")
        for r in range(16): F(f"v_exp_f32 {S[ab][r]}, {S[ab][r]}")
        F("s_nop 0")
        for r in range(8): F(f"v_cvt_pk_bf16_f32 {P[ab][r]}, {S[ab][2*r]}, {S[ab][2*r+1]}")
    F("s_nop 1")
    for ab in range(2):
        for u_ in range(2):
            F(f"v_mfma_f32_32x32x16_bf16 {O[ab]}, {V[0][u_]}, {P[ab].sub(4*u_,4)}, {O[ab]}")
            if u_ == 0: F(lsum(ab))
    F(f"s_add_u32 s{sT0}, s{sT0}, 4096\ns_cmp_lt_u32 s{sT0}, {KV_OFF + 262144}\ns_cbranch_scc1 P2_FB2")
    F("s_nop 15")
    for ab in range(2): F(f"v_add_f32 {Lc[ab][0]}, {Lc[ab][0]}, {Lc[ab][1]}")
    F("s_branch P2_FINISH")
    F("L_END:\ns_endpgm")
    probs += check_hazards(F.lines, "fb")
    A.ext(F.lines)
    for p_ in probs: print("PROBLEM", p_)
    launch = f"; @launch grid=(256,1,1) block=(256,1,1) lds=163840"
    return launch, A.text(), kdesc(NAME, 512, 256)

HDR = open("gated_mix__grouped_kv_mqa__glu_gated_reglu__prompt.s.ref").read().split("; Override launch")[0]
def build(opt=None):
    l, t, d = gen(opt)
    txt = HDR + l + "\n" + '.amdgcn_target "amdgcn-amd-amdhsa--gfx950"\n.text\n' + t + d
    if (opt or {}).get("touch", 3):
        import touch
        txt, pads = touch.apply(txt, NAME, [("P1_G0", "P1_MID"), ("P1_MID", "P2_PRE"), ("P2_POLL_OK", (opt or {}).get("tend", "P3_FIN3")), ("P3_FIN3", "P1_SLOWN")][:1 + (opt or {}).get("touch", 3)], (opt or {}).get("tnl", 1), (opt or {}).get("talign", 0), (opt or {}).get("toff", 0x300))
    if (opt or {}).get("skip3"):
        import skip3
        txt = skip3.apply(txt, NAME, *opt["skip3"])
    return txt
if __name__ == "__main__":
    import sys, json
    out = sys.argv[1] if len(sys.argv) > 1 else "gated_mix__grouped_kv_mqa__glu_gated_reglu__prompt.s"
    opt = json.loads(sys.argv[2]) if len(sys.argv) > 2 else {}
    open(out, "w").write(build(opt))
```

```python
from asmlib import *
from common import *
LOG2E = math.log2(math.e)
NAME = "gated_mix__grouped_kv_mqa__glu_gated_reglu__prompt_kernel"

FL_E = 0x1650000
FL_ES = 4352
FL_Q = 0x1660000
FL_H = 0x1670000
FL_O = 0x1672000
SPIN_MAX = 1 << 20
PW = 7168

def put(f, g, x):
    f.setdefault(g, []).extend(x if isinstance(x, list) else [x])

def gen(opt=None):
    opt = opt or {}
    A = Asm()
    DEF = ["start", "p1", "p1end", "kvdone", "poll0", "poll1", "att", "attend", "tail"]
    tsn = opt.get("ts")
    ts = TSN(DEF if tsn == 1 else tsn, opt.get("tskind", "rt"))
    SC1 = "sc1"
    probs = []
    P_X, P_WQ, P_WK, P_WV, P_WO = 4, 6, 8, 10, 12
    P_WG, P_WU, P_WD, P_GW = 16, 18, 20, 22
    P_OUT, P_DBG, P_WS = 24, 26, 28
    S_WS, S_A, S_B, S_C, S_D, S_E = 32, 36, 40, 44, 48, 52
    sW, sNonce = 56, 57
    sT0, sT1, sT2, sT3 = 58, 59, 60, 61
    sIt, sRB, sCB = 62, 63, 64
    sL = 65
    vL, vL16 = Reg("v", 1, 1), Reg("v", 2, 1)
    def srd(b): return f"s[{b}:{b+3}]"

    A("""; LOCALQ AFS4
; (published in d_debug by workgroup 0); consumers poll the flags and read the data with sc1 loads.""")
    A(f".globl {NAME}\n.p2align 8\n.type {NAME},@function\n{NAME}:")
    A("s_cmp_ge_u32 s2, 256\ns_cbranch_scc1 L_END")
    A.ext(ts.at("start"))
    A(f"""s_load_dwordx8 s[4:11], s[0:1], 0
    s_load_dwordx2 s[12:13], s[0:1], 32
    s_load_dwordx8 s[16:23], s[0:1], 48
    s_load_dwordx4 s[24:27], s[0:1], 80
    s_load_dwordx2 s[28:29], s[0:1], 96
    s_memrealtime s[30:31]""")
    if opt.get("touch", 3): A("; @@ALIGN@@")
    A(f"""v_lshrrev_b32 v3, 6, v0
    v_and_b32 {vL}, 63, v0
    v_readfirstlane_b32 s{sW}, v3
    v_lshlrev_b32 {vL16}, 4, {vL}""")
    CPF = opt.get("cpf", 1) and not opt.get("trace")
    sPC = 100
    CB0 = "TA_AL" if opt.get("touch", 3) else NAME
    cpf = VM(f"global_load_dword a253, v0, s[{sPC}:{sPC+1}]", "CP")
    cpa = "v_add_u32 v0, 0x2000, v0"
    def cp(adv=True): return ([cpf] + ([cpa] if adv else [])) if CPF else []
    if CPF:
        A(f"""s_getpc_b64 s[{sPC}:{sPC+1}]
        L_PCREF:
        v_lshrrev_b32 v0, 2, v0
        v_lshlrev_b32 v0, 7, v0
        s_sub_u32 s{sPC}, s{sPC}, L_PCREF-{CB0}
        s_subb_u32 s{sPC+1}, s{sPC+1}, 0""")
    EP = opt.get("ep", "w0,pg,entry").split(",")
    def entry_pf(tmp):
        if not CPF: return
        if "w0" in EP: A.ext(cp())
        else: A(cpa)
        if opt.get("touch", 3) and "pg" in EP:
            A(f"""v_lshrrev_b32 v{tmp}, 2, {vL}
            v_lshlrev_b32 v{tmp}, 12, v{tmp}
            v_add_u32 v{tmp}, {'0x1000' if opt.get('talign', 0) else '0x1000-%d-(TA_AL-%s)' % (opt.get('toff', 0x300), NAME)}, v{tmp}
            global_load_dword a254, v{tmp}, s[{sPC}:{sPC+1}]""")
    if "entry" in EP: entry_pf(4)
    if opt.get("ticket", 0):
        A(f"""s_getreg_b32 s{sT0}, hwreg(HW_REG_XCC_ID)
        s_and_b32 s{sT0}, s{sT0}, 7
        s_cmp_lg_u32 s{sW}, 0
        s_cbranch_scc1 L_TKWAIT
        v_mov_b32 v5, 0
        s_mov_b32 s{sT1}, 8
        s_mov_b32 s{S_WS+2}, 256
        s_mov_b32 s{S_WS+3}, 0x20000
        s_waitcnt lgkmcnt(0)
        s_mov_b32 s{S_WS}, s{P_DBG}
        s_mov_b32 s{S_WS+1}, s{P_DBG+1}
        s_mov_b64 exec, 1
        L_TKTRY:
        v_mov_b32 v4, 1
        s_lshl_b32 s{sT2}, s{sT0}, 5
        buffer_atomic_add v4, v5, {srd(S_WS)}, s{sT2} offen offset:4 sc0
        s_waitcnt vmcnt(0)
        v_readfirstlane_b32 s{sT2}, v4
        s_cmp_lt_u32 s{sT2}, 32
        s_cbranch_scc1 L_TKGOT
        s_add_u32 s{sT0}, s{sT0}, 1
        s_and_b32 s{sT0}, s{sT0}, 7
        s_sub_u32 s{sT1}, s{sT1}, 1
        s_cmp_lg_u32 s{sT1}, 0
        s_cbranch_scc1 L_TKTRY
        s_mov_b32 s{sT2}, 32
        L_TKGOT:
        s_lshl_b32 s{sT2}, s{sT2}, 3
        s_add_u32 s{sT2}, s{sT2}, s{sT0}
        v_mov_b32 v4, s{sT2}
        ds_write_b32 v5, v4
        s_mov_b64 exec, -1
        s_waitcnt lgkmcnt(0)
        L_TKWAIT:
        v_mov_b32 v5, 0
        s_barrier
        ds_read_b32 v4, v5
        s_waitcnt lgkmcnt(0)
        v_readfirstlane_b32 s2, v4
        s_barrier
        s_cmp_ge_u32 s2, 256
        s_cbranch_scc1 L_END""")
    trace = opt.get("trace")
    def tr_issue(): return ["s_memrealtime s[100:101]"] if trace else []
    def tr_commit(): return ["s_lshl_b64 exec, 1, s81", "v_mov_b32 v0, s100", "s_mov_b64 exec, -1", "s_add_u32 s81, s81, 1"] if trace else []
    if trace: A("s_mov_b32 s81, 0\nv_mov_b32 v0, 0\ns_memrealtime s[100:101]\ns_waitcnt lgkmcnt(0)"); A.ext(tr_commit())
    S_X, S_W0, S_W1, S_KV, S_Wb = S_A, S_B, S_C, S_D, S_E
    sSoX = sL - 1
    sSo0 = sL + 7
    sSo1 = sL + 7
    sM0X, sM0W, sM0K, sWwr = sL + 11, sL + 12, sL + 13, sL + 14
    sWrd, s16k, sStep1, sSa, sSc, sIsB, sKVst, sEfl = 14, 30, 15, 3, 31, 9, 10, 11
    XB, WB, KR = 0, 65536, 147456
    vXo = [3, 4]; vWo0, vWo1, vKo, vSXo = 5, 6, 7, 8
    vXa = [9, 10]; vW0a = [[11 + 2*i, 12 + 2*i] for i in range(4)]; vW1a = [19, 20, 21, 22]; vSWa = 23
    vT = 24
    acc = [[None]*8 for _ in range(8)]
    p = 32
    for i in range(7):
        for j in range(8):
            acc[i][j] = Reg("v", p, 4); p += 4
    RA = [[Reg("a", 64*s + 4*i, 4) for i in range(8)] for s in range(2)]
    RB = [[Reg("a", 64*s + 32 + 4*j, 4) for j in range(8)] for s in range(2)]
    SA = [Reg("a", 128 + 4*s, 4) for s in range(2)]
    sacc = Reg("a", 144, 4)
    for j in range(8): acc[7][j] = Reg("a", 148 + 4*j, 4)
    SXB = [[Reg("a", 180 + 8*b + 4*j, 4) for j in range(2)] for b in range(2)]
    GXa = [Reg("a", 196 + 8*r, 8) for r in range(2)]
    GWa = Reg("a", 212, 8)
    t0, t1, t2, t3, t4, t5, t6, t7 = range(vT, vT + 8)
    HUGE = 0x40000000
    KP = opt.get("kp", [0, 1, 2, 4, 5, 6, 7, 8, 9, 10, 12, 13, 14, 15, 3, 11])
    sCWa, sCWb = 6, 7

    A(f"""s_and_b32 s{sT0}, s2, 1
    s_lshl_b32 s{sT0}, s{sT0}, 2
    s_bfe_u32 s{sT1}, s2, 0x20003
    s_add_u32 s{sRB}, s{sT0}, s{sT1}
    s_bfe_u32 s{sT0}, s2, 0x20001
    s_lshl_b32 s{sT0}, s{sT0}, 3
    s_lshr_b32 s{sT1}, s2, 5
    s_add_u32 s{sCB}, s{sT0}, s{sT1}""")
    A(f"""s_lshl_b32 s{sT0}, s{sW}, 6
    v_lshrrev_b32 v{t0}, 3, {vL}
    v_add_u32 v{t2}, s{sT0}, v{t0}
    v_lshlrev_b32 v{t2}, 11, v{t2}
    v_lshrrev_b32 v{t1}, 4, {vL}
    v_and_b32 v{t3}, 7, {vL}
    v_xor_b32 v{t4}, v{t3}, v{t1}
    v_lshl_add_u32 v{vXo[0]}, v{t4}, 4, v{t2}
    v_add_u32 v{vXo[0]}, {KP[0]*128}, v{vXo[0]}
    v_xor_b32 v{vXo[1]}, 64, v{vXo[0]}""")
    for e in range(1, 8): A(f"s_mov_b32 s{sSoX+e}, {e*16384 - (e&3)*1024}")
    A(f"""s_lshl_b32 s{sM0X}, s{sW}, 13
    s_lshl_b32 s{sM0W}, s{sW}, 11
    s_add_u32 s{sM0K}, s{sM0W}, {KR}
    s_add_u32 s{sM0W}, s{sM0W}, {WB}
    s_and_b32 s{sT1}, s{sCB}, 3
    s_mov_b32 s{sStep1}, {PW}
    s_cmp_eq_u32 s{sT1}, 3
    s_cselect_b32 s{sStep1}, 2048, s{sStep1}""")
    A(f"""s_lshl_b32 s{sT0}, s{sW}, 3
    v_add_u32 v{t2}, s{sT0}, v{t1}
    v_mul_lo_u32 v{t2}, v{t2}, s{sStep1}
    s_and_b32 s{sT1}, s{sW}, 1
    s_lshl_b32 s{sT2}, s{sT1}, 3
    v_and_b32 v{t4}, 15, {vL}
    v_lshl_or_b32 v{t5}, v{t1}, 1, s{sT2}
    v_xor_b32 v{t4}, v{t4}, v{t5}
    v_lshl_add_u32 v{vWo1}, v{t4}, 4, v{t2}
    v_add_u32 v{t2}, s{sT0}, v{t0}
    v_mul_u32_u24 v{t2}, {PW}, v{t2}
    s_lshl_b32 s{sT2}, s{sT1}, 2
    v_and_b32 v{t4}, 1, v{t1}
    v_lshl_or_b32 v{t4}, v{t4}, 1, s{sT2}
    v_xor_b32 v{t4}, v{t4}, v{t3}
    v_lshl_add_u32 v{vWo0}, v{t4}, 4, v{t2}""")
    A.ext(ts.at("a0"))
    A("s_waitcnt lgkmcnt(0)")
    A.ext(ts.at("a1"))
    A(f"""s_lshl_b32 s{sT0}, s{sRB}, 19
    s_add_u32 s{S_X}, s{P_X}, s{sT0}
    s_addc_u32 s{S_X+1}, s{P_X+1}, 0
    s_mov_b32 s{S_X+2}, 0x80000
    s_mov_b32 s{S_X+3}, 0x20000""")
    A(f"""s_mov_b32 s{S_WS+3}, 0x20000
    s_or_b32 s{sT0}, s2, s{sW}
    s_cmp_lg_u32 s{sT0}, 0
    s_cbranch_scc1 P1_NONONCE
    s_or_b32 s30, s30, 1
    s_mov_b32 s{S_WS}, s{P_DBG}
    s_mov_b32 s{S_WS+1}, s{P_DBG+1}
    s_mov_b32 s{S_WS+2}, 256
    v_mov_b32 v{t6}, s30
    v_mov_b32 v{t7}, 0
    s_mov_b64 exec, 1
    buffer_store_dword v{t6}, v{t7}, {srd(S_WS)}, 0 offen sc1
    s_mov_b64 exec, -1
    P1_NONONCE:""")
    WNT = opt.get("wnt", "")
    def xdma(par):
        sl = []
        for e in range(8):
            pre = []
            if e == 0: pre = [f"s_add_u32 m0, s{sM0X}, {par}"]
            if e == 4: pre = ["s_add_u32 m0, m0, 4096"]
            so = "0" if e == 0 else f"s{sSoX+e}"
            sl.append((pre, VM(f"buffer_load_dwordx4 v{vXo[e&1]}, {srd(S_X)}, {so} offen offset:{(e&3)*1024} {opt.get('xnt', '')} lds", "X")))
        return sl
    def wdma(hb, slot):
        so0 = "0" if hb == 0 else f"s{sSo0}"
        so1 = ["0" if hb == 0 else f"s{sSo1+2}", f"s{sSo1 + 1 + 2*hb}"]
        return [([f"s_add_u32 m0, s{sM0W}, {slot}"], VM(f"buffer_load_dwordx4 v{vWo0}, {srd(S_W0)}, {so0} offen {WNT} lds", "W")),
                ([], VM(f"buffer_load_dwordx4 v{vWo0}, {srd(S_Wb)}, {so0} offen offset:1024 {WNT} lds", "W")),
                (["s_add_u32 m0, m0, 40960"], VM(f"buffer_load_dwordx4 v{vWo1}, {srd(S_W1)}, {so1[0]} offen {WNT} lds", "W")),
                ([], VM(f"buffer_load_dwordx4 v{vWo1}, {srd(S_W1)}, {so1[1]} offen offset:1024 {WNT} lds", "W"))]
    def kdma(slot):
        return [([f"s_add_u32 m0, s{sM0K}, {slot}"], VM(f"buffer_load_dwordx4 v{vKo}, {srd(S_KV)}, 0 offen lds", "X")),
                ([], VM(f"buffer_load_dwordx4 v{vKo}, {srd(S_KV)}, 0 offen offset:1024 lds", "X"))]
    def sxload(b): return [VM(f"buffer_load_dwordx4 {SXB[b][j]}, v{vSXo}, {srd(S_X)}, 0 offen offset:{j*64}", "SX") for j in range(2)]
    def emit_dma(X, sl):
        for pre, d in sl:
            X.ext(pre)
            if pre: X("s_nop 0")
            X(d)
    emit_dma(A, xdma(0))
    A.ext(ts.at("a2"))
    A(f"""s_lshr_b32 s{sT0}, s{sCB}, 2
    s_and_b32 s{sT1}, s{sCB}, 3
    s_mul_i32 s{sT2}, s{sT0}, 896
    s_lshl_b32 s{sT3}, s{sT1}, 8
    s_add_u32 s{sT2}, s{sT2}, s{sT3}
    s_add_u32 s{S_W0}, s{P_WG}, s{sT2}
    s_addc_u32 s{S_W0+1}, s{P_WG+1}, 0
    s_sub_u32 s{S_W0+2}, {1024*PW}, s{sT2}
    s_mov_b32 s{S_W0+3}, 0x20000
    s_mov_b32 s{S_W1+3}, 0x20000
    s_mov_b32 s{S_Wb+3}, 0x20000
    s_mov_b32 s{sSo0}, {32*PW}
    s_cmp_eq_u32 s{sT1}, 3
    s_cbranch_scc1 P1_SRDB
    s_add_u32 s{S_Wb}, s{S_W0}, {4*PW - 1024}
    s_addc_u32 s{S_Wb+1}, s{S_W0+1}, 0
    s_sub_u32 s{S_Wb+2}, s{S_W0+2}, {4*PW - 1024}
    s_add_u32 s{S_W1}, s{P_WU}, s{sT2}
    s_addc_u32 s{S_W1+1}, s{P_WU+1}, 0
    s_mov_b32 s{S_W1+2}, s{S_W0+2}
    v_mov_b32 v{vWo0}, v{vWo1}
    s_branch P1_SRDD
    P1_SRDB:
    s_add_u32 s{S_Wb}, s{P_WU}, s{sT2}
    s_addc_u32 s{S_Wb+1}, s{P_WU+1}, 0
    s_sub_u32 s{S_Wb}, s{S_Wb}, 1024
    s_subb_u32 s{S_Wb+1}, s{S_Wb+1}, 0
    s_add_u32 s{S_Wb+2}, s{S_W0+2}, 1024
    s_lshl_b32 s{sT0}, s{sT0}, 8
    s_add_u32 s{S_W1}, s{P_WQ}, s{sT0}
    s_addc_u32 s{S_W1+1}, s{P_WQ+1}, 0
    s_sub_u32 s{S_W1+2}, {1024*2048}, s{sT0}
    P1_SRDD:
    s_lshl_b32 s{sSo1+1}, s{sStep1}, 2
    s_sub_u32 s{sSo1+1}, s{sSo1+1}, 1024
    s_lshl_b32 s{sSo1+2}, s{sStep1}, 5
    s_add_u32 s{sSo1+3}, s{sSo1+2}, s{sSo1+1}
    s_lshl_b32 s{sStep1}, s{sStep1}, 6""")
    def advXf(a, b):
        d = (KP[b] - KP[a]) * 128 & 0xffffffff
        return [f"v_add_u32 v{vXo[0]}, {d:#x}, v{vXo[0]}", f"v_add_u32 v{vXo[1]}, {d:#x}, v{vXo[1]}"]
    def advWf(a, b):
        d = KP[b] - KP[a]
        if d == 1: return [f"v_add_u32 v{vWo0}, {64*PW}, v{vWo0}", f"v_add_u32 v{vWo1}, s{sStep1}, v{vWo1}"]
        return [f"v_add_u32 v{vWo0}, {d*64*PW & 0xffffffff:#x}, v{vWo0}", f"s_mul_i32 s{sT3}, s{sStep1}, {d}\nv_add_u32 v{vWo1}, s{sT3}, v{vWo1}"]
    if KP[0]:
        A(f"""v_add_u32 v{vWo0}, {KP[0]*64*PW}, v{vWo0}
        s_mul_i32 s{sT3}, s{sStep1}, {KP[0]}
        v_add_u32 v{vWo1}, s{sT3}, v{vWo1}""")
    advK = f"v_add_u32 v{vKo}, 4096, v{vKo}"
    advS = f"v_add_u32 v{vSXo}, 128, v{vSXo}"
    emit_dma(A, wdma(0, 0)); emit_dma(A, wdma(1, 8192))
    A.ext(advXf(0, 1) + advWf(0, 1))
    A(f"""s_bfe_u32 s{sT0}, s{sCB}, 0x10001
    s_and_b32 s{sT1}, s{sW}, 1
    s_bitcmp1_b32 s{sCB}, 0
    s_cselect_b32 s{S_KV}, s{P_WV}, s{P_WK}
    s_cselect_b32 s{S_KV+1}, s{P_WV+1}, s{P_WK+1}
    s_cselect_b32 s{sSa}, s{sT1}, s{sT0}
    s_cselect_b32 s{sSc}, s{sT0}, s{sT1}
    s_mov_b32 s{S_KV+2}, 65536
    s_mov_b32 s{S_KV+3}, 0x20000
    s_and_b32 s{sIsB}, s{sCB}, 3
    s_cmp_eq_u32 s{sIsB}, 3
    s_cselect_b32 s{sIsB}, 1, 0
    v_lshrrev_b32 v{t2}, 5, {vL}
    v_lshlrev_b32 v{t2}, 1, v{t2}
    v_xor_b32 v{t2}, v{t2}, {vL}
    v_lshlrev_b32 v{t2}, 4, v{t2}
    s_lshr_b32 s{sT2}, s{sW}, 1
    s_lshl_b32 s{sT0}, s{sT2}, 15
    s_lshl_b32 s{sT1}, s{sT1}, 11
    s_add_u32 s{sT0}, s{sT0}, s{sT1}
    v_add_u32 v{vKo}, s{sT0}, v{t2}
    s_lshr_b32 s{sT0}, s{sCB}, 2
    s_lshl_b32 s{sT0}, s{sT0}, 1
    s_add_u32 s{sT0}, s{sT0}, s{sSa}
    s_lshl_b32 s{sT0}, s{sT0}, 15
    s_lshl_b32 s{sT2}, s{sT2}, 10
    s_add_u32 s{sT0}, s{sT0}, s{sT2}
    v_and_b32 v{t2}, 15, {vL}
    v_lshlrev_b32 v{t2}, 11, v{t2}
    v_lshl_add_u32 v{t2}, v{t1}, 4, v{t2}
    v_add_u32 v{vSXo}, s{sT0}, v{t2}""")
    emit_dma(A, kdma(0)); A.ext(sxload(0)); A(advK); A(advS)
    A(f"""s_mov_b32 s{S_WS}, s{P_WS}
    s_mov_b32 s{S_WS+1}, s{P_WS+1}
    s_mov_b32 s{S_WS+2}, {WS_USED}""")
    if "late" in EP: entry_pf(t7)
    A.ext(ts.at("a3"))
    second = xdma(32768) + wdma(0, 2*8192) + kdma(8192) + wdma(1, 3*8192)
    A(f"""v_and_b32 v{t0}, 15, {vL}
    v_lshrrev_b32 v{t2}, 1, v{t0}
    v_xor_b32 v{t2}, v{t2}, v{t1}
    v_lshlrev_b32 v{t2}, 4, v{t2}
    v_lshl_add_u32 v{t2}, v{t0}, 7, v{t2}
    s_lshr_b32 s{sT0}, s{sW}, 1
    s_lshl_b32 s{sT1}, s{sT0}, 14
    v_add_u32 v{vXa[0]}, s{sT1}, v{t2}
    v_xor_b32 v{vXa[1]}, 64, v{vXa[0]}
    v_bfe_u32 v{t0}, {vL}, 2, 2
    v_lshl_add_u32 v{t2}, v{t1}, 3, v{t0}
    v_and_b32 v{t3}, 1, v{t1}
    v_lshl_or_b32 v{t5}, v{t3}, 2, v{t0}
    v_and_b32 v{t4}, 3, {vL}
    v_lshlrev_b32 v{t4}, 3, v{t4}
    v_lshl_add_u32 v{t6}, v{t2}, 8, v{t4}
    v_add_u32 v{t6}, {WB + 40960}, v{t6}
    s_and_b32 s{sT0}, s{sW}, 1
    s_lshl_b32 s{sT1}, s{sT0}, 2""")
    for ii in range(4):
        A(f"""s_add_u32 s{sT2}, s{sT1}, {ii}
        v_xor_b32 v{t7}, s{sT2}, v{t5}
        v_lshl_add_u32 v{vW1a[ii]}, v{t7}, 5, v{t6}""")
    A(f"""v_lshl_add_u32 v{t2}, v{t2}, 6, v{t4}
    v_xor_b32 v{t7}, s{sSc}, v{t3}
    v_lshl_add_u32 v{t7}, v{t7}, 5, v{t2}
    s_lshr_b32 s{sT2}, s{sW}, 1
    s_lshl_b32 s{sT2}, s{sT2}, 12
    s_add_u32 s{sT2}, s{sT2}, {KR}
    v_add_u32 v{vSWa}, s{sT2}, v{t7}
    s_mov_b32 s{s16k}, 16384
    s_cmp_eq_u32 s{sIsB}, 1
    s_cbranch_scc1 P1_ADB""")
    for ii in range(4):
        A(f"v_subrev_u32 v{vW0a[ii][0]}, 40960, v{vW1a[ii]}\nv_subrev_u32 v{vW0a[ii][1]}, {40960 - 1024}, v{vW1a[ii]}")
    A(f"""s_branch P1_ADD
    P1_ADB:
    v_lshl_add_u32 v{t4}, v{t1}, 11, v{t4}
    v_lshl_add_u32 v{t4}, v{t0}, 7, v{t4}
    v_add_u32 v{t4}, {WB}, v{t4}
    v_lshrrev_b32 v{t0}, 1, v{t0}
    v_lshl_or_b32 v{t0}, v{t3}, 1, v{t0}
    s_lshl_b32 s{sT1}, s{sT0}, 1""")
    for k in range(2):
        A(f"""s_add_u32 s{sT2}, s{sT1}, {k}
        v_xor_b32 v{t7}, s{sT2}, v{t0}
        v_lshl_add_u32 v{vW0a[k][0]}, v{t7}, 5, v{t4}
        v_add_u32 v{vW0a[k][1]}, 512, v{vW0a[k][0]}
        v_add_u32 v{vW0a[2+k][0]}, 1024, v{vW0a[k][0]}
        v_add_u32 v{vW0a[2+k][1]}, 1536, v{vW0a[k][0]}""")
    A("P1_ADD:")
    A("; @@PRE@@")
    PF = opt.get("pf", 1)
    Z = []
    for i in range(8):
        for j in range(8):
            for r in range(4):
                a = acc[i][j][r]
                Z.append(f"v_mov_b32 {a}, 0" if a.f == "v" else f"v_accvgpr_write_b32 {a}, 0")
    for r in range(4): Z.append(f"v_accvgpr_write_b32 {sacc[r]}, 0")
    TCH = opt.get("touch", 3)
    PEEL = opt.get("peel", 0)
    NPRE = opt.get("npre", 0)
    if not PEEL:
        per = len(Z) // len(second)
        for k, (pre, d) in enumerate(second):
            A.ext(pre); A.ext(Z[k*per:(k+1)*per]); A(d)
            if k == opt.get("tk", [3, 11])[0] and TCH: A(f"; @@TOUCH x 0 s{sW}\nP1_G0:")
            if k == opt.get("tk", [3, 11])[1] and TCH and not opt.get("t1s", 6): A(f"; @@TOUCH x 1 s{sW}")
        A.ext(Z[len(second)*per:])
        A.ext(advXf(1, 2) + advWf(1, 2) + [advK])
    else:
        emit_dma(A, second[:NPRE])

    def reads(t, s, side):
        b = t & 1; xo = ((t >> 1) & 1)*32768; wo = (t % 5)*8192; ko = ((t >> 1) & 1)*8192
        L = [f"ds_read_b128 {RB[s][j]}, v{vXa[b]} offset:{xo + j*2048}" for j in range(8)]
        for i in range(8):
            for hf in range(2):
                if i < 4: L.append(f"ds_read_b64_tr_b16 {RA[s][i].sub(2*hf, 2)}, v{vW0a[i][hf]} offset:{wo}")
                else: L.append(f"ds_read_b64_tr_b16 {RA[s][i].sub(2*hf, 2)}, v{vW1a[i-4]} offset:{wo + hf*1024}")
        if side:
            for hf in range(2):
                L.append(f"ds_read_b64_tr_b16 {SA[s].sub(2*hf, 2)}, v{vSWa} offset:{ko + b*2048 + hf*256}")
        return L
    def mfmas(s, side=None, zero=False):
        L = []
        for i in range(8):
            js = range(8) if i % 2 == 0 else range(7, -1, -1)
            for j in js:
                L.append(f"v_mfma_f32_16x16x32_bf16 {acc[i][j]}, {RA[s][i]}, {RB[s][j]}, {0 if zero else acc[i][j]}")
            if side is not None and i == 3:
                L.append(f"v_mfma_f32_16x16x32_bf16 {sacc}, {SA[s]}, {SXB[side][s]}, {0 if zero else sacc}")
        return L
    IPF = opt.get("ipf", 0)
    npf = 0
    if IPF:
        assert KP[2:6] == [2, 4, 5, 6]
        A(f"""v_lshrrev_b32 v{t0}, 3, {vL}
        v_cmp_lt_u32 vcc, 0, v{t0}
        v_add_u32 v{t1}, 2, v{t0}
        v_and_b32 v{t2}, 7, {vL}
        v_addc_co_u32 v{t1}, vcc, 0, v{t1}, vcc
        v_cmp_gt_u32 vcc, {IPF}, v{t0}
        s_and_b32 s{sT0}, s{sCB}, 7
        s_lshl_b32 s{sT0}, s{sT0}, 2
        s_add_u32 s{sT0}, s{sT0}, s{sW}
        s_lshl_b32 s{sT0}, s{sT0}, 3
        v_add_u32 v{t3}, s{sT0}, v{t2}
        v_lshlrev_b32 v{t3}, 11, v{t3}
        v_lshl_add_u32 v{t3}, v{t1}, 7, v{t3}
        v_mov_b32 v{t6}, {HUGE}
        v_cndmask_b32 v{t3}, v{t6}, v{t3}, vcc
        buffer_load_dword a252, v{t3}, {srd(S_X)}, 0 offen
        s_and_b32 s{sT0}, s{sRB}, 3
        s_lshl_b32 s{sT0}, s{sT0}, 2
        s_add_u32 s{sT0}, s{sT0}, s{sW}
        s_lshl_b32 s{sT0}, s{sT0}, 2
        v_lshrrev_b32 v{t4}, 1, v{t2}
        v_lshl_add_u32 v{t4}, v{t1}, 6, v{t4}
        v_add_u32 v{t4}, s{sT0}, v{t4}
        v_and_b32 v{t2}, 1, v{t2}
        v_lshlrev_b32 v{t2}, 7, v{t2}
        v_mul_u32_u24 v{t5}, {PW}, v{t4}
        v_add_u32 v{t5}, v{t5}, v{t2}
        v_cndmask_b32 v{t5}, v{t6}, v{t5}, vcc
        buffer_load_dword a254, v{t5}, {srd(S_W0)}, 0 offen
        s_lshr_b32 s{sT0}, s{sStep1}, 6
        v_mul_lo_u32 v{t5}, v{t4}, s{sT0}
        v_add_u32 v{t5}, v{t5}, v{t2}
        v_cndmask_b32 v{t5}, v{t6}, v{t5}, vcc
        buffer_load_dword a255, v{t5}, {srd(S_W1)}, 0 offen""")
        npf = 3
    A("P1_START:")
    A.ext(ts.at("a4"))
    A(f"s_waitcnt vmcnt({len(second) + npf}) lgkmcnt(0)")
    A.ext(ts.at("a5"))
    A("s_barrier")
    A.ext(reads(0, 0, True))
    A("s_waitcnt lgkmcnt(0)\ns_barrier")
    A.ext(ts.at("p1"))
    if ts.on: A("s_waitcnt lgkmcnt(0)")
    pro_hist = list(A.lines)

    NOB1 = opt.get("nob1", 0)
    def step(st, hook=None, cpl=False):
        out = []
        sd = st < 8; side = st & 1 if sd else None
        dma = st < 14; last = st == 15
        n = 65 if sd else 64
        BG = n - opt.get('bgo', 4)
        f = {}
        for k, r in enumerate(reads(2*st + 1, 1, sd)): put(f, 2*k, r)
        if dma:
            dg = opt.get('dgw', [1, 9, 17, 25, 33, 39, 47, 55]) if not (st < 7) else [13, 19, 25, 31, 37, 43, 49, 55]
            wl = wdma(0, ((2*st + 4) % 5)*8192) + ([] if NOB1 else wdma(1, ((2*st + 5) % 5)*8192))
            if NOB1: dg = [13, 27, 41, 55]
            for k, (pre, d) in enumerate(wl):
                if pre: put(f, dg[k] - 1, pre)
                put(f, dg[k], d)
            if st < 13 and not NOB1: put(f, 57, advWf(st + 2, st + 3)[0]); put(f, 58, advWf(st + 2, st + 3)[1])
        if st < 7:
            for k, l in enumerate(sxload(side ^ 1)): put(f, [1, 7][k], l)
            put(f, 9, advS)
        if TCH and CPF and st in opt.get("padpf", [14]):
            vt_ = 24 if st < 8 else vWo0
            p0 = 0x4000 if st < 8 else 0x9000
            put(f, 51, f"v_lshrrev_b32 v{vt_}, 2, {vL}"); put(f, 52, f"v_lshlrev_b32 v{vt_}, 12, v{vt_}")
            put(f, 53, f"v_add_u32 v{vt_}, {p0}-{opt.get('toff', 0x300)}-(TA_AL-{NAME}), v{vt_}"); put(f, 54, f"v_min_u32 v{vt_}, L_END-{CB0}-4, v{vt_}")
            put(f, 56, VM(f"global_load_dword a254, v{vt_}, s[{sPC}:{sPC+1}]", "CP"))
        if cpl and CPF: put(f, opt.get('cpgap', 3), cpf); put(f, opt.get('cpgap', 3) + 3, cpa)
        if hook: hook(0, f, BG)
        put(f, BG, [Need(["X"], "lgkmcnt(0)") if not last else "s_waitcnt lgkmcnt(0)", "s_barrier"])
        out += interleave(mfmas(0, side), f)
        if last: return out + tr_issue() + (["s_waitcnt lgkmcnt(0)"] if trace else []) + tr_commit()
        f = {}
        for k, r in enumerate(reads(2*st + 2, 0, st < 7)): put(f, 2*k, r)
        if dma:
            kv = st < 6
            dl = ((kdma((st & 1)*8192) if kv else []) + xdma((st & 1)*32768)) if not opt.get('xfirst') else (xdma((st & 1)*32768) + (kdma((st & 1)*8192) if kv else []))
            dg = opt.get('dgk', [1, 7, 13, 19, 25, 31, 37, 43, 49, 55]) if kv else opt.get('dgx', [1, 9, 17, 25, 33, 41, 47, 55])
            if NOB1:
                dl = wdma(1, ((2*st + 5) % 5)*8192) + dl
                dg = [1 + 2*((k * 28) // len(dl)) for k in range(len(dl))]
                if st < 13: put(f, 30, advWf(st + 2, st + 3)[0]); put(f, 32, advWf(st + 2, st + 3)[1])
            for k, (pre, d) in enumerate(dl):
                if pre: put(f, dg[k] - 1, pre)
                put(f, dg[k], d)
            if st < 13: put(f, 57, advXf(st + 2, st + 3)[0]); put(f, 59, advXf(st + 2, st + 3)[1])
            if kv: put(f, 58 if (opt.get('xfirst') or NOB1) else 9, advK)
        if hook: hook(1, f, BG)
        put(f, BG - 3, tr_issue())
        put(f, BG, [Need(["SX"], "lgkmcnt(0)") if st < 7 else "s_waitcnt lgkmcnt(0)"] + (["s_barrier"] if (not NOB1 or st == 8) else []) + tr_commit())
        out += interleave(mfmas(1, side), f)
        return out

    vN, vZ, vKA, vFA = t0, t1, t2, t3
    u = 28
    nload = f"buffer_load_dword v{vN}, v{vZ}, {srd(S_KV)}, 0 offen sc1"
    dbgsrd = [f"s_mov_b32 s{S_KV}, s{P_DBG}", f"s_mov_b32 s{S_KV+1}, s{P_DBG+1}", f"s_mov_b32 s{S_KV+2}, 256", f"v_mov_b32 v{vZ}, 0"]
    PSC = KR + 4096
    kvK = f"""v_bfe_u32 v{vKA}, {vL}, 3, 1
    v_lshlrev_b32 v{vKA}, 4, v{vKA}
    v_and_b32 v{vFA}, 7, {vL}
    v_add_u32 v{vKA}, v{vKA}, v{vFA}
    v_bfe_u32 v{vFA}, {vL}, 4, 1
    v_lshl_add_u32 v{vKA}, v{vFA}, 5, v{vKA}
    v_lshlrev_b32 v{vKA}, 4, v{vKA}
    v_lshrrev_b32 v{vFA}, 5, {vL}
    v_lshl_add_u32 v{vKA}, v{vFA}, 10, v{vKA}
    s_lshl_b32 s{sKVst}, s{sSa}, 7
    s_lshl_b32 s{sEfl}, s{sSc}, 3""".split("\n")
    kvV = f"""v_lshrrev_b32 v{vKA}, 5, {vL}
    v_lshlrev_b32 v{vKA}, 4, v{vKA}
    v_bfe_u32 v{vFA}, {vL}, 4, 1
    v_lshl_add_u32 v{vKA}, v{vFA}, 2, v{vKA}
    v_bfe_u32 v{vFA}, {vL}, 2, 1
    v_lshl_add_u32 v{vKA}, v{vFA}, 5, v{vKA}
    v_lshlrev_b32 v{vKA}, 4, v{vKA}
    v_bfe_u32 v{vFA}, {vL}, 3, 1
    v_lshl_add_u32 v{vKA}, v{vFA}, 10, v{vKA}
    v_and_b32 v{vFA}, 3, {vL}
    v_lshl_add_u32 v{vKA}, v{vFA}, 1, v{vKA}
    s_lshl_b32 s{sKVst}, s{sSc}, 7
    s_lshl_b32 s{sEfl}, s{sSa}, 3""".split("\n")
    kvaddr = [f"s_bitcmp1_b32 s{sCB}, 0", "s_cbranch_scc1 P1_KVAV"] + [l.strip() for l in kvK] + ["s_branch P1_KVAD", "P1_KVAV:"] + [l.strip() for l in kvV] + ["P1_KVAD:",
              f"s_add_u32 s{sKVst}, s{sKVst}, s{sEfl}", f"s_add_u32 s{sKVst}, s{sKVst}, {KR}", f"v_add_u32 v{vKA}, s{sKVst}, v{vKA}"]
    kvwr = [f"s_bitcmp1_b32 s{sCB}, 0", "s_cbranch_scc0 P1_KVWK", f"ds_write_b16 v{vKA}, v{u}", f"ds_write_b16_d16_hi v{vKA}, v{u} offset:16",
            f"ds_write_b16 v{vKA}, v{u+1} offset:32", f"ds_write_b16_d16_hi v{vKA}, v{u+1} offset:48", "s_branch P1_KVWD", "P1_KVWK:",
            f"ds_write_b64 v{vKA}, v[{u}:{u+1}]", "P1_KVWD:"]
    vP = vSXo
    KT = Reg("a", 128, 4); PT = Reg("a", 132, 4)
    QPOLL = opt.get("qpoll", 0)
    CW = opt.get("cw", 1)
    CA, CB = Reg("a", 136, 4), Reg("a", 140, 4)
    vDA, vDB = vSWa, vKo
    pre = list(kvaddr)
    if CW:
        pre += f"""s_lshl_b32 s{sT2}, s2, 2
        s_add_u32 s{sT2}, s{sT2}, s{sW}
        s_mul_i32 s{sT3}, s{sT2}, 7
        v_lshrrev_b32 v24, 3, {vL}
        v_and_b32 v25, 7, {vL}
        v_lshlrev_b32 v25, 4, v25
        v_add_u32 v27, s{sT3}, v24
        v_and_b32 v31, 1, v27
        v_lshrrev_b32 v27, 1, v27
        v_lshl_add_u32 v29, v27, 8, v25
        v_mul_u32_u24 v30, {CW_SZ}, v31
        v_add_u32 v29, v29, v30
        v_add_u32 v29, {CW_OFF}, v29
        v_lshl_add_u32 v27, v27, 11, v25
        v_lshl_add_u32 v27, v31, 10, v27
        v_cmp_gt_u32 vcc, 56, {vL}
        v_mov_b32 v31, {HUGE}
        v_add_u32 v27, 384, v27
        v_cndmask_b32 v27, v31, v27, vcc
        v_cndmask_b32 v29, v31, v29, vcc
        v_mul_u32_u24 v30, {CW_SZ}, v24
        v_add_u32 v30, v30, v25
        s_lshl_b32 s{sT3}, s{sT2}, 8
        s_add_u32 s{sT3}, s{sT3}, {CW_OFF + 3584*256}
        v_add_u32 v30, s{sT3}, v30
        v_lshl_add_u32 v28, v24, 10, v25
        s_lshl_b32 s{sT3}, s{sT2}, 11
        s_add_u32 s{sT3}, s{sT3}, 384
        v_cmp_gt_u32 vcc, 16, {vL}
        v_add_u32 v28, s{sT3}, v28
        s_nop 0
        v_cndmask_b32 v28, v31, v28, vcc
        v_cndmask_b32 v30, v31, v30, vcc""".split("\n")
    pre = [l.strip() if type(l) is str else l for l in pre]
    k_ = A.lines.index("; @@PRE@@"); A.lines[k_:k_ + 1] = pre
    def hookS6(ph, f, BG):
        if ph == 0 and CW:
            put(f, 2, f"s_mov_b32 s{S_KV}, s{P_WD}"); put(f, 3, [f"s_mov_b32 s{S_KV+1}, s{P_WD+1}", f"s_mov_b32 s{S_KV+2}, {3584*2048}"])
            put(f, 5, VM(f"buffer_load_dwordx4 {CA}, v27, {srd(S_KV)}, 0 offen", "CL"))
            put(f, 6, f"s_mov_b32 s{S_KV}, s{P_WO}"); put(f, 8, f"s_mov_b32 s{S_KV+1}, s{P_WO+1}"); put(f, 10, f"s_mov_b32 s{S_KV+2}, {1024*2048}")
            put(f, 11, VM(f"buffer_load_dwordx4 {CB}, v28, {srd(S_KV)}, 0 offen", "CL"))
    def hookS7(ph, f, BG):
        if ph == 1 and CW:
            put(f, 5, [Need(["CL"]), VM(f"buffer_store_dwordx4 {CA}, v29, {srd(S_WS)}, 0 offen {SC1}", "CS")])
            put(f, 13, VM(f"buffer_store_dwordx4 {CB}, v30, {srd(S_WS)}, 0 offen {SC1}", "CS"))
    def hookS8(ph, f, BG):
        if ph == 0 and QPOLL:
            for r in range(4): put(f, 2 + r, f"v_mov_b32 v{u+r}, -1")
            put(f, 5, [f"s_lshl_b32 s{sKVst}, s{sRB}, 5", f"s_add_u32 s{sKVst}, s{sKVst}, s{sCB}", f"s_lshl_b32 s{sKVst}, s{sKVst}, 2"])
            put(f, 7, [f"s_add_u32 s{sKVst}, s{sKVst}, s{sW}", f"s_lshl_b32 s{sKVst}, s{sKVst}, 12", f"s_add_u32 s{sKVst}, s{sKVst}, {QF4_OFF}"])
            for r in range(4): put(f, [13, 15, 21, 23][r], VM(f"buffer_store_dwordx4 v[{u}:{u+3}], {vL16}, {srd(S_WS)}, s{sKVst} offen offset:{r*1024} {SC1}", "QP"))
        if ph == 0:
            for k, l in enumerate(dbgsrd): put(f, 25 + 2*k, l)
            put(f, 21, [f"s_lshl_b32 s{sT2}, s{sW}, 10", f"s_add_u32 s{sT2}, s{sT2}, {PSC}"]); put(f, 23, f"v_add_u32 v{vP}, s{sT2}, {vL16}")
        if ph == 1:
            put(f, 3, f"ds_write_b128 v{vP}, {sacc}")
            put(f, 5, VM(nload, "N"))
            put(f, 11, f"v_xor_b32 v{vP}, 0x800, v{vP}")
            for r in range(4): put(f, 13 + 2*r, f"v_accvgpr_read_b32 v{u+r}, {sacc[r]}")
    def hookS9(ph, f, BG):
        if ph == 0:
            put(f, 1, f"ds_read_b128 {PT}, v{vP}")
            put(f, 11, "s_waitcnt lgkmcnt(5)")
            for r in range(4): put(f, 11 + 2*r, f"v_accvgpr_read_b32 v{vFA}, {PT[r]}"); put(f, 12 + 2*r, f"v_add_f32 v{u+r}, v{u+r}, v{vFA}")
            put(f, 21, f"v_cvt_pk_bf16_f32 v{u}, v{u}, v{u+1}"); put(f, 23, f"v_cvt_pk_bf16_f32 v{u+1}, v{u+2}, v{u+3}")
            put(f, 27, kvwr)
            put(f, 29, f"v_lshrrev_b32 v{vP}, 3, {vL}"); put(f, 31, f"v_and_b32 v{vFA}, 7, {vL}")
            put(f, 35, f"v_lshlrev_b32 v{vFA}, 4, v{vFA}"); put(f, 37, f"v_lshl_add_u32 v{vP}, v{vP}, 8, v{vFA}")
            put(f, 41, [f"s_bfe_u32 s{sT2}, s{sCB}, 0x10001", f"s_lshl_b32 s{sT2}, s{sT2}, 7"])
            put(f, 43, f"v_add_u32 v{vP}, s{sT2}, v{vP}")
            put(f, 44, f"v_add_u32 v{vKA}, {KR}, v{vP}")
        if ph == 1:
            put(f, 3, f"ds_read_b128 {KT}, v{vKA}")
            put(f, 5, [f"s_lshl_b32 s{sKVst}, s{sRB}, 3", f"s_lshr_b32 s{sT2}, s{sCB}, 2", f"s_add_u32 s{sKVst}, s{sKVst}, s{sT2}"])
            put(f, 7, [f"s_lshl_b32 s{sKVst}, s{sKVst}, 1", f"s_and_b32 s{sT2}, s{sCB}, 1", f"s_add_u32 s{sKVst}, s{sKVst}, s{sT2}"])
            put(f, 11, [f"s_lshl_b32 s{sKVst}, s{sKVst}, 11", f"s_add_u32 s{sKVst}, s{sKVst}, {KV_OFF}", f"s_lshl_b32 s{sEfl}, s{sRB}, 5"])
            put(f, 13, [f"s_add_u32 s{sEfl}, s{sEfl}, s{sCB}", f"s_lshl_b32 s{sEfl}, s{sEfl}, 2", f"s_add_u32 s{sEfl}, s{sEfl}, {FL_E}"])
            put(f, 15, [f"s_cmp_eq_u32 s{sW}, 0", f"s_cselect_b32 s{sKVst}, s{sKVst}, {HUGE}", f"s_cselect_b32 s{sEfl}, s{sEfl}, {HUGE}"])
            put(f, 19, f"v_mul_u32_u24 v{vFA}, {FL_ES}, {vL}")
            put(f, 21, ["s_waitcnt lgkmcnt(9)", VM(f"buffer_store_dwordx4 {KT}, v{vP}, {srd(S_WS)}, s{sKVst} offen {SC1}", "KS")])
    def hookS10(ph, f, BG):
        if ph == 1:
            put(f, 27, [Need(["KS", "N"]), f"v_readfirstlane_b32 s{sNonce}, v{vN}", f"s_cmp_eq_u32 s{sNonce}, 0", "s_cbranch_scc1 P1_SLOWN", "P1_NOK:",
                       "s_mov_b64 exec, 0xff", VM(f"buffer_store_dword v{vN}, v{vFA}, {srd(S_WS)}, s{sEfl} offen sc1", "EF"), "s_mov_b64 exec, -1", "s_nop 2"])
    sKVo, sM0 = sL + 3, sL + 4
    S_KVD = S_C
    vE = Reg("v", 28, 4)
    epoll = f"buffer_load_dwordx4 {vE}, {vL16}, {srd(S_WS)}, s{sEfl} offen sc1"
    def kvdma0(slotoff):
        L = []
        for e in range(8):
            pre = []
            if e == 0: pre = [f"s_add_u32 m0, s{sM0}, {slotoff}"]
            if e == 4: pre = [f"s_add_u32 m0, m0, 4096", f"s_add_u32 s{sKVo}, s{sKVo}, 4096"]
            L.append((pre, VM(f"buffer_load_dwordx4 {vL16}, {srd(S_KVD)}, s{sKVo} offen offset:{(e&3)*1024} {SC1} lds", "KV")))
        return L
    def hookS14(ph, f, BG):
        if ph == 0:
            put(f, 5, [f"s_bfe_u32 s{sEfl}, s2, 0x30003", f"s_mul_i32 s{sEfl}, s{sEfl}, {FL_ES}", f"s_add_u32 s{sEfl}, s{sEfl}, {FL_E}"])
            put(f, 45, VM(epoll, "N"))
            put(f, 11, [f"s_mov_b32 s{S_KVD}, s{P_WS}", f"s_mov_b32 s{S_KVD+1}, s{P_WS+1}", f"s_mov_b32 s{S_KVD+2}, {KV_OFF + 262144}"])
            put(f, 13, [f"s_lshl_b32 s{sM0}, s{sW}, 13", f"s_add_u32 s{sKVo}, s{sM0}, {KV_OFF}"])
        if ph == 1: put(f, 51, [Need(["N"])] + echeck() + ["s_cbranch_scc0 P1_SLOWE", "P1_EOK:"])
    def echeck():
        return [f"v_xor_b32 {vE[0]}, {vE[0]}, v{vN}", f"v_xor_b32 {vE[1]}, {vE[1]}, v{vN}", f"v_xor_b32 {vE[2]}, {vE[2]}, v{vN}", f"v_xor_b32 {vE[3]}, {vE[3]}, v{vN}",
                f"v_or3_b32 {vE[0]}, {vE[0]}, {vE[1]}, {vE[2]}", f"v_or_b32 {vE[0]}, {vE[0]}, {vE[3]}", f"v_cmp_eq_u32 vcc, 0, {vE[0]}", "s_nop 0", "s_cmp_eq_u64 vcc, -1"]
    def hookS15(ph, f, BG):
        dg = [5, 11, 17, 23, 29, 35, 41, 46]
        if ph == 0:
            for k, (pre, d) in enumerate(kvdma0(32768*ph)):
                if pre: put(f, dg[k] - 1, pre)
                put(f, dg[k], d)
            put(f, 47, f"s_add_u32 s{sKVo}, s{sKVo}, {32768 - 4096}")
    z = [7, 8]; vOne = 23
    gv = [f"v_mov_b32 v{vOne}, 0x3f803f80", f"v_mov_b32 v{z[0]}, 0", f"v_mov_b32 v{z[1]}, 0", None]
    for k in range(8):
        gv += [f"v_accvgpr_read_b32 v26, {GWa[k]}", f"v_accvgpr_read_b32 v28, {GXa[0][k]}", f"v_accvgpr_read_b32 v30, {GXa[1][k]}",
               "v_and_b32 v27, 0xffff0000, v26", "v_and_b32 v29, 0xffff0000, v28", "v_and_b32 v31, 0xffff0000, v30",
               "v_lshlrev_b32 v26, 16, v26", "v_lshlrev_b32 v28, 16, v28", "v_lshlrev_b32 v30, 16, v30",
               "v_mul_f32 v29, v29, v27", "v_mul_f32 v31, v31, v27", "v_mul_f32 v28, v28, v26", "v_mul_f32 v30, v30, v26",
               "v_cvt_pk_bf16_f32 v28, v28, v29", "v_cvt_pk_bf16_f32 v30, v30, v31",
               f"v_dot2_f32_bf16 v{z[0]}, v28, v{vOne}, v{z[0]}", f"v_dot2_f32_bf16 v{z[1]}, v30, v{vOne}, v{z[1]}"]
    gv += [None, None]
    P2_ = lambda fmt: [fmt(r) for r in range(2)]
    for sh in (8, 4, 2, 1): gv += P2_(lambda r: f"v_add_f32_dpp v{z[r]}, v{z[r]}, v{z[r]} row_ror:{sh} row_mask:0xf bank_mask:0xf")
    for sw in ("16", "32"):
        gv += P2_(lambda r: f"v_mov_b32 v{28+r}, v{z[r]}") + P2_(lambda r: f"v_permlane{sw}_swap_b32 v{z[r]}, v{28+r}") + P2_(lambda r: f"v_add_f32 v{z[r]}, v{z[r]}, v{28+r}")
    gv += P2_(lambda r: f"v_cvt_pk_bf16_f32 v{z[r]}, v{z[r]}, v{z[r]}") + P2_(lambda r: f"v_and_b32 v{z[r]}, 0xffff0000, v{z[r]}")
    gv += P2_(lambda r: f"v_mul_f32 v{z[r]}, {f2u(-LOG2E):#x}, v{z[r]}") + [f"v_exp_f32 v{z[0]}, v{z[0]}", None, f"v_exp_f32 v{z[1]}, v{z[1]}", None]
    gv += P2_(lambda r: f"v_add_f32 v{z[r]}, 1.0, v{z[r]}") + [f"v_rcp_f32 v{z[0]}, v{z[0]}", None, f"v_rcp_f32 v{z[1]}, v{z[1]}", None]
    gv += P2_(lambda r: f"v_cvt_pk_bf16_f32 v{z[r]}, v{z[r]}, v{z[r]}") + P2_(lambda r: f"v_and_b32 v{26+r}, 0xffff0000, v{z[r]}")
    GR = opt.get("gr", 1)
    gq = [gv[k:k+GR] for k in range(0, len(gv), GR)]
    def hookS10g(ph, f, BG):
        hookS10(ph, f, BG)
        if ph == 1:
            put(f, 28, f"s_mov_b32 s{S_KV}, s{P_GW}"); put(f, 29, [f"s_mov_b32 s{S_KV+1}, s{P_GW+1}", f"s_mov_b32 s{S_KV+2}, 2048"])
            put(f, 31, VM(f"buffer_load_dwordx4 {GWa.sub(0,4)}, {vL16}, {srd(S_KV)}, 0 offen", "GL"))
            put(f, 35, VM(f"buffer_load_dwordx4 {GWa.sub(4,4)}, {vL16}, {srd(S_KV)}, 0 offen offset:1024", "GL"))
            put(f, 36, f"s_mov_b32 s{S_KV}, s{P_X}"); put(f, 37, [f"s_mov_b32 s{S_KV+1}, s{P_X+1}", f"s_mov_b32 s{S_KV+2}, 0x400000", f"s_lshl_b32 s{sT2}, s{sRB}, 5"])
            put(f, 38, f"s_add_u32 s{sT2}, s{sT2}, s{sCB}"); put(f, 39, [f"s_lshl_b32 s{sT2}, s{sT2}, 2", f"s_add_u32 s{sT2}, s{sT2}, s{sW}", f"s_lshl_b32 s{sT1}, s{sT2}, 3"])
            put(f, 40, f"s_lshl_b32 s{sT2}, s{sT2}, 12"); put(f, 42, f"s_add_u32 s{sT1}, s{sT1}, {G_OFF}")
            for k in range(4):
                put(f, [43, 45, 51, 53][k], VM(f"buffer_load_dwordx4 {GXa[k>>1].sub(4*(k&1),4)}, {vL16}, {srd(S_KV)}, s{sT2} offen offset:{k*1024}", "X"))
    def hookG(ph, f, BG, first=False):
        if first and ph == 0: return
        for g_ in range(1, BG - 1):
            cur = flat(f.get(g_, []))
            busy = any(is_vmem(x) or x.startswith(("v_",) if GR == 1 else ("v_", "ds_")) for x in cur) or len(cur) > 1
            if gq and not busy: put(f, g_, [x for x in gq.pop(0) if x])
    def hookS12(ph, f, BG): hookG(ph, f, BG, True)
    def hookS14g(ph, f, BG):
        if ph == 0:
            hookG(ph, f, 38)
            assert not gq, len(gq)
            put(f, 41, ["s_mov_b64 exec, 1", VM(f"buffer_store_dwordx2 v[26:27], v{vZ}, {srd(S_WS)}, s{sT1} offen sc1", "GS"), "s_mov_b64 exec, -1", "s_nop 2"])
        hookS14(ph, f, BG)
    hooks = {6: hookS6, 7: hookS7, 8: hookS8, 9: hookS9, 10: hookS10g, 11: hookS12, 12: hookG, 13: hookG, 14: hookS14g, 15: hookS15}
    cpsteps = opt.get("cps", [0, 1, 2, 4, 10])
    h1 = list(pro_hist)
    for st in range(16):
        S_ = resolve_waits(step(st, hooks.get(st), st in cpsteps), h1)
        h1 += S_
        A.ext(ts.at(f"s{st}"))
        if st == 15: A(f"s_cmp_eq_u32 s{sIsB}, 1\ns_cbranch_scc1 P1_EPIB")
        if st == 14: S14 = S_
        if st == 8: A("P1_MID:")
        if TCH and opt.get("t1s", 6) and st == opt.get("t1s", 6): A(f"; @@TOUCH x 1 s{sW}")
        A.ext(S_)
    S15 = S_
    probs += check_hazards(A.lines, "p1")
    slow1 = Asm()
    slow1(f"""P1_SLOWN:
    s_mov_b32 s{sT2}, {SPIN_MAX}
    P1_SLOWN_L:
    {nload}
    s_waitcnt vmcnt(0)
    v_readfirstlane_b32 s{sNonce}, v{vN}
    s_cmp_lg_u32 s{sNonce}, 0
    s_cbranch_scc1 P1_NOK
    s_sleep 4
    s_sub_u32 s{sT2}, s{sT2}, 1
    s_cmp_lg_u32 s{sT2}, 0
    s_cbranch_scc1 P1_SLOWN_L
    s_endpgm
    P1_SLOWE:
    s_mov_b32 s{sT0}, {SPIN_MAX}
    P1_SLOWE_L:
    {epoll}
    s_waitcnt vmcnt(0)""")
    slow1.ext(echeck())
    slow1(f"""s_cbranch_scc1 P1_EOK
    s_sleep 4
    s_sub_u32 s{sT0}, s{sT0}, 1
    s_cmp_lg_u32 s{sT0}, 0
    s_cbranch_scc1 P1_SLOWE_L
    s_endpgm""")

    va = Alloc("v", 3, 256)
    vCur = va.get(1); vNxt = va.get(1); vZero = va.get(1); vNon = va.get(1); vQP = va.get(1)
    T = va.get(12, 4)
    S = [va.get(16, 4) for _ in range(2)]
    P = [va.get(8, 4) for _ in range(2)]
    O = [va.get(16, 4) for _ in range(2)]
    Lc = [va.get(4, 4) for _ in range(2)]
    SCL = va.get(8, 4)
    acc3 = [[va.get(4, 4) for j in range(8)] for i in range(4)]
    vW3o = va.get(1); vW3a = [va.get(1) for _ in range(4)]; vPF = va.get(1); vG = va.get(2, 2); vFl = va.get(4, 4)
    NEG = [Reg("v", acc3[0][0].base + 16*k, 16) for k in range(2)]
    aa = Alloc("a", 0, 180)
    RX = [[aa.get(4, 4) for j in range(8)] for s in range(4)]
    Q = [[aa.get(4, 4) for t in range(2)] for ab in range(2)]
    K = [[aa.get(4, 4) for t in range(2)] for b in range(2)]
    V = [[aa.get(4, 4) for t in range(2)] for b in range(2)]
    ONES = aa.get(4, 4)
    RW = [[Reg("a", 220 + 16*s + 4*i, 4) for i in range(4)] for s in range(2)]
    QXB = 98304
    W3B = 98304

    E = Asm()
    E.ext(ts.at("p1end"))
    sO, sO1, sO2 = 0, 1, 3
    sC = sL + 1
    sQf = 14
    tA = [Reg("v", 20, 4), Reg("v", 28, 4)]
    PKE = opt.get("pke", 0)
    def hmath(pairs, dst, pk=True):
        L = []
        for Gx, U in pairs:
            for r in range(4): L.append(f"v_max_f32 {Gx[r]}, 0, {Gx[r]}")
        for Gx, U in pairs:
            if pk:
                for r in (0, 2): L.append(f"v_pk_mul_f32 {Gx.sub(r,2)}, {Gx.sub(r,2)}, {U.sub(r,2)}")
            else:
                for r in range(4): L.append(f"v_mul_f32 {Gx[r]}, {Gx[r]}, {U[r]}")
        for k, (Gx, U) in enumerate(pairs):
            L.append(f"v_cvt_pk_bf16_f32 {dst[2*k]}, {Gx[0]}, {Gx[1]}"); L.append(f"v_cvt_pk_bf16_f32 {dst[2*k+1]}, {Gx[2]}, {Gx[3]}")
        return L
    gl = Asm()
    gl(f"""s_mov_b32 s{S_A}, s{P_X}
    s_mov_b32 s{S_A+1}, s{P_X+1}
    s_mov_b32 s{S_A+2}, 0x400000
    s_mov_b32 s{S_B}, s{P_GW}
    s_mov_b32 s{S_B+1}, s{P_GW+1}
    s_mov_b32 s{S_B+2}, 2048
    s_lshl_b32 s{sT2}, s{sRB}, 5
    s_add_u32 s{sT2}, s{sT2}, s{sCB}
    s_lshl_b32 s{sT2}, s{sT2}, 2
    s_add_u32 s{sT2}, s{sT2}, s{sW}
    s_lshl_b32 s{sT2}, s{sT2}, 12""")
    for h in range(2): gl(f"buffer_load_dwordx4 {GWa.sub(4*h,4)}, {vL16}, {srd(S_B)}, 0 offen offset:{h*1024}")
    for r in range(2):
        for h in range(2):
            gl(f"buffer_load_dwordx4 {GXa[r].sub(4*h,4)}, {vL16}, {srd(S_A)}, s{sT2} offen offset:{r*2048 + h*1024}")
    def merge(mf, items, rate, fixed=None):
        out = []; k = 0
        for g, m_ in enumerate(mf):
            out.append(m_)
            n = 0; seenv = False
            if fixed and g in fixed: out.extend(fixed[g]); n += len(fixed[g])
            while k < len(items) and items[k][0] <= g and n < rate:
                x_ = items[k][1]
                if is_vmem(x_) and seenv: break
                seenv |= x_.startswith("v_")
                out.append(x_); k += 1; n += 1
        if k < len(items): out.append("s_nop 7")
        return out + [x[1] for x in items[k:]]
    mm1 = lambda i, j: f"v_mfma_f32_16x16x32_bf16 {acc[i][j]}, {RA[1][i]}, {RB[1][j]}, {acc[i][j]}"
    kv1 = []
    for pre, d in kvdma0(32768): kv1 += pre + (["s_nop 0"] if pre else []) + [d]
    kv1.append(f"s_add_u32 s{sKVo}, s{sKVo}, {32768 - 4096}")
    head = Asm()
    head(f"""s_lshr_b32 s{sT0}, s{sW}, 1
    s_and_b32 s{sT1}, s{sW}, 1
    s_lshl_b32 s{sO}, s{sRB}, 4
    s_lshl_b32 s{sT2}, s{sT0}, 3
    s_add_u32 s{sO}, s{sO}, s{sT2}
    s_lshl_b32 s{sO}, s{sO}, 11
    s_add_u32 s{sO}, s{sO}, {AF2_OFF}
    s_lshr_b32 s{sT2}, s{sCB}, 2
    s_mul_i32 s{sO1}, s{sT2}, 14
    s_and_b32 s{sT3}, s{sCB}, 3
    s_lshl_b32 s{sT3}, s{sT3}, 2
    s_add_u32 s{sO1}, s{sO1}, s{sT3}
    s_add_u32 s{sO1}, s{sO1}, s{sT1}""")
    LAG = 5
    it = [(0, l) for l in head.lines]
    it += [(0, l) for l in (f"s_add_u32 s{sO1}, s{sO1}, s{sT1}", f"s_mul_i32 s{sO1}, s{sO1}, {AFS2}", f"s_add_u32 s{sO}, s{sO}, s{sO1}", f"s_add_u32 s{sO2}, s{sO}, {AFS2}")]
    kq = list(kv1)
    for j in range(8):
        g_ = 8*j + 7 + LAG
        Tt = tA[j % 2]
        L_ = hmath([(acc[0][j], acc[4][j]), (acc[1][j], acc[5][j])], acc[4][j], PKE or j >= opt.get('pkj', 8))
        L_ += [f"v_accvgpr_read_b32 {Tt[r]}, {acc[7][j][r]}" for r in range(4)]
        L_ += hmath([(acc[2][j], acc[6][j]), (acc[3][j], Tt)], acc[5][j], PKE or j >= opt.get('pkj', 8))
        it += [(g_, l) for l in L_]
        while kq:
            x_ = kq.pop(0); it.append((g_, x_))
            if is_vmem(x_): break
    it += [(64, l) for l in kq]
    EA = merge([mm1(i, j) for j in range(8) for i in range(8)], it, opt.get("rateA", 5))
    E.ext(EA)
    E("s_branch P1_EPID\nP1_EPIB:\n; @@PAD@@")
    hb = Asm()
    hb(f"""s_mul_i32 s{sO1}, s{sO1}, {AFS2}
    s_add_u32 s{sO}, s{sO}, s{sO1}
    s_mov_b32 s{sO2}, {HUGE}
    s_lshl_b32 s{sQf}, s{sRB}, 3
    s_add_u32 s{sQf}, s{sQf}, s{sT2}
    s_lshl_b32 s{sQf}, s{sQf}, 2
    s_lshl_b32 s{sT1}, s{sT1}, 1
    s_add_u32 s{sT2}, s{sQf}, s{sT1}
    s_lshl_b32 s{sT2}, s{sT2}, 1
    s_add_u32 s{sT2}, s{sT2}, s{sT0}
    s_lshl_b32 s{sT2}, s{sT2}, 14
    s_add_u32 s{sT0}, s{sT2}, {QF5_OFF}
    s_add_u32 s{sT1}, s{sT0}, 32768
    v_cmp_lt_u32 vcc, 23, {vL}
    v_add_u32 v26, 128, {vL16}
    s_nop 0
    v_cndmask_b32 v26, {vL16}, v26, vcc
    s_add_u32 s{sQf}, s{sQf}, s{sW}
    s_lshl_b32 s{sQf}, s{sQf}, 8
    s_add_u32 s{sQf}, s{sQf}, {FL_Q}
    s_mov_b32 s{sC}, {f2u(QSCALE):#x}
    s_mov_b32 s{sC+1}, {f2u(QSCALE):#x}""")
    it = [(0, l) for l in head.lines + hb.lines]
    for j in range(8):
        g_ = 32 + 4*j + 3 + LAG
        for hh in range(2):
            F0, F1 = acc[4 + 2*hh][j], acc[5 + 2*hh][j]
            L_ = []
            if F1.f == "a":
                Tt = tA[j % 2]
                L_ += [f"v_accvgpr_read_b32 {Tt[r]}, {F1[r]}" for r in range(4)]
                F1 = Tt
            for F in (F0, F1):
                if PKE:
                    for r in (0, 2): L_.append(f"v_pk_mul_f32 {F.sub(r,2)}, {F.sub(r,2)}, s[{sC}:{sC+1}]")
                else:
                    for r in range(4): L_.append(f"v_mul_f32 {F[r]}, s{sC}, {F[r]}")
            L_ += [f"v_cvt_pk_bf16_f32 {F0[0]}, {F0[0]}, {F0[1]}", f"v_cvt_pk_bf16_f32 {F0[1]}, {F0[2]}, {F0[3]}",
                   f"v_cvt_pk_bf16_f32 {F0[2]}, {F1[0]}, {F1[1]}", f"v_cvt_pk_bf16_f32 {F0[3]}, {F1[2]}, {F1[3]}",
                   f"buffer_store_dwordx4 {F0}, v26, {srd(S_WS)}, s{sT0 + hh} offen offset:{(j&1)*2048} {SC1}"]
            if j & 1: L_.append(f"s_add_u32 s{sT0 + hh}, s{sT0 + hh}, 4096")
            it += [(g_, l) for l in L_]
    mm0 = lambda i, j: f"v_mfma_f32_16x16x32_bf16 {acc[i][j]}, {RA[0][i]}, {RB[0][j]}, {acc[i][j]}"
    fx = {}
    rd_ = reads(31, 1, False)
    for k, r in enumerate(rd_[:8] + rd_[16:24] + rd_[8:16]): put(fx, k, r)
    k = 0
    for pre, d in kvdma0(0):
        if pre: put(fx, 23 + k, pre)
        put(fx, 24 + k, d); k += 1
    put(fx, 31, [f"s_add_u32 s{sKVo}, s{sKVo}, {32768 - 4096}", "s_waitcnt lgkmcnt(0)", "s_barrier"])
    EB = merge([mm0(i, j) for i in range(4, 8) for j in range(8)] + [mm1(i, j) for j in range(8) for i in range(4, 8)] +
               [mm0(i, j) for i in range(4) for j in range(8)] + [mm1(i, j) for j in range(8) for i in range(4)], it, opt.get("rateB", 3), fx)
    E.ext(EB)
    E.ext(kv1)
    for j in range(8):
        E.ext(hmath([(acc[0][j], acc[2][j]), (acc[1][j], acc[3][j])], acc[4][j]))
    E(f"""s_waitcnt vmcnt(8)
    s_mov_b64 exec, 1
    buffer_store_dword v{vN}, v{vZ}, {srd(S_WS)}, s{sQf} offen sc1
    s_mov_b64 exec, -1
    P1_EPID:
    ; @@PAD@@""")
    probs += check_hazards(S15[-20:] + EA, "epiA") + check_hazards(S14[-20:] + E.lines[E.lines.index("P1_EPIB:"):], "epiB")
    E.ext(ts.at("kvdone"))
    vAF = T[9]
    def hstore(reg, so, j):
        return [VM(f"buffer_store_dwordx4 {reg}, {vAF}, {srd(S_WS)}, s{so} offen offset:{(j&1)*2048} {SC1}", "H")] + ([f"s_add_u32 s{so}, s{so}, 4096"] if j & 1 else [])
    hst0 = [hstore(acc[4][j], sO, j) for j in range(8)]
    hst1a = [hstore(acc[5][j], sO2, j) for j in range(8)]
    A.ext(E.lines)

    B = Asm()
    sCur, sNext, sFree, sFl = sL, sL + 1, sL + 2, sL + 5
    B(f"""v_mov_b32 {vNon}, s{sNonce}
    v_mov_b32 {vZero}, 0
    v_bfe_u32 {T[0]}, {vL}, 4, 1
    v_and_b32 {T[1]}, 15, {vL}
    v_lshrrev_b32 {T[2]}, 5, {vL}
    v_lshl_add_u32 {T[1]}, {T[2]}, 4, {T[1]}
    v_lshlrev_b32 {T[1]}, 4, {T[1]}
    v_lshl_add_u32 {vQP}, {T[0]}, 11, {T[1]}""")
    S_PF, sPF = S_E, 8
    pfop = [VM(f"buffer_load_dword a252, {vPF}, {srd(S_PF)}, s{sPF} offen", "PF"), f"s_add_u32 s{sPF}, s{sPF}, 0x100000"] if PF else []
    for ab in range(2):
        for r in range(4): B(f"v_mov_b32 {Lc[ab][r]}, 0")
    vIdx = T[10]
    B(f"""v_bfe_u32 {T[4]}, {vL}, 2, 1
    v_cmp_eq_u32 vcc, 0, {T[4]}
    v_mov_b32 {T[5]}, 0x3f803f80
    v_mov_b32 {vCur}, {vL16}
    v_cndmask_b32 {T[4]}, 0, {T[5]}, vcc
    v_cndmask_b32 {T[5]}, {T[5]}, 0, vcc
    v_add_u32 {vNxt}, 32768, {vL16}
    v_and_b32 {vIdx}, 1, {vL}
    v_mul_u32_u24 {vIdx}, 0xaaaa, {vIdx}
    v_add_u32 {vIdx}, 0x4444, {vIdx}
    v_cmp_lt_u32 vcc, 23, {vL}
    v_add_u32 {vAF}, 128, {vL16}
    s_nop 0
    v_cndmask_b32 {vAF}, {vL16}, {vAF}, vcc""".replace(f"v_cndmask_b32 {T[5]}, {T[5]}, 0, vcc", f"v_xor_b32 {T[5]}, {T[5]}, {T[4]}"))
    for r in range(4): B(f"v_accvgpr_write_b32 {ONES[r]}, {T[4 + (r >> 1)]}")
    def lsum(o): return f"v_smfmac_f32_16x16x64_bf16 {Lc[o]}, {ONES}, {P[o]}, {vIdx}"
    B("; @@SETUP3@@")
    B(f"""s_mov_b32 s{sCur}, 0
    s_mov_b32 s{sNext}, 32768
    s_mov_b32 s{sFree}, 65536
    s_add_u32 s{sL+14}, s{sM0}, 65536
    s_lshl_b32 s{sFl}, s{sRB}, 2
    s_add_u32 s{sFl}, s{sFl}, s{sW}
    s_lshl_b32 s{sFl}, s{sFl}, 6
    s_add_u32 s{sFl}, s{sFl}, s{sCB}
    s_lshl_b32 s{sFl}, s{sFl}, 2
    s_add_u32 s{sFl}, s{sFl}, {FL_H}
    s_lshl_b32 s{sT1}, s{sRB}, 3
    s_lshr_b32 s{sT2}, s{sCB}, 2
    s_add_u32 s{sT1}, s{sT1}, s{sT2}
    s_lshl_b32 s{sT1}, s{sT1}, 2
    s_and_b32 s{sT2}, s{sW}, 2
    s_add_u32 s{sT1}, s{sT1}, s{sT2}
    s_bfe_u32 s{sT2}, s{sCB}, 0x10001
    s_add_u32 s{sT1}, s{sT1}, s{sT2}
    s_lshl_b32 s{sT1}, s{sT1}, 8
    s_add_u32 s{sT1}, s{sT1}, {FL_Q}
    s_lshl_b32 s{sQf}, s{sRB}, 5
    s_add_u32 s{sQf}, s{sQf}, s{sCB}
    s_lshl_b32 s{sQf}, s{sQf}, 2
    s_add_u32 s{sQf}, s{sQf}, s{sW}
    s_lshl_b32 s{sQf}, s{sQf}, 13
    s_add_u32 s{sQf}, s{sQf}, {QF5_OFF}
    s_add_u32 s{sT3}, s{sQf}, 4096""")
    def check(regs):
        if len(regs) == 4:
            return [f"v_xor_b32 {r}, {r}, {vNon}" for r in regs] + [f"v_or3_b32 {regs[0]}, {regs[0]}, {regs[1]}, {regs[2]}", f"v_or_b32 {regs[0]}, {regs[0]}, {regs[3]}",
                    f"v_cmp_eq_u32 vcc, 0, {regs[0]}", "s_nop 0", "s_cmp_eq_u64 vcc, -1"]
        L = [f"v_cmp_eq_u32 vcc, s{sNonce}, {regs[0]}"]
        if len(regs) > 1: L += [f"v_cmp_eq_u32 s[{sT2}:{sT3}], s{sNonce}, {regs[1]}", "s_nop 0", f"s_and_b64 vcc, vcc, s[{sT2}:{sT3}]"]
        else: L += ["s_nop 0"]
        return L + ["s_cmp_eq_u64 vcc, -1"]
    def spin(label, load, regs, back=None):
        L = [f"s_mov_b32 s{sT0}, {SPIN_MAX}", f"{label}_L:", load, "s_waitcnt vmcnt(0)"] + check(regs)
        L += [f"s_cbranch_scc1 {back or label + '_OK'}", f"s_sleep {4 if back else 1}", f"s_sub_u32 s{sT0}, s{sT0}, 1",
              f"s_cmp_lg_u32 s{sT0}, 0", f"s_cbranch_scc1 {label}_L", "s_endpgm"]
        if not back: L.append(f"{label}_OK:")
        return L
    B("P2_PRE:")
    if TCH > 1: B(f"; @@TOUCH x 2 s{sW}")
    B.ext(ts.at("poll0"))
    B(f"""v_and_b32 {T[2]}, 40, {vL}
    v_cmp_eq_u32 vcc, 40, {T[2]}
    v_add_u32 {T[3]}, 128, {vQP}
    s_nop 0
    v_cndmask_b32 {T[2]}, {vQP}, {T[3]}, vcc""")
    qld = lambda dst: [f"buffer_load_dwordx4 {dst(ab, t)}, {T[2+t]}, {srd(S_WS)}, s{[sQf, sT3][ab]} offen offset:{t*512} {SC1}" for ab in range(2) for t in range(2)]
    if QPOLL:
        QV = S[1]
        B(f"s_mov_b32 s{sT0}, {SPIN_MAX}\nP2_QL:")
        B(f"buffer_load_dword {T[8]}, {vZero}, {srd(S_WS)}, s{sT1} offen sc1")
        B.ext(qld(lambda ab, t: QV.sub(8*ab + 4*t, 4)))
        B("s_waitcnt vmcnt(0)")
        B(f"v_max3_u32 {T[9]}, {QV[0]}, {QV[1]}, {QV[2]}")
        for k in range(3, 15, 2): B(f"v_max3_u32 {T[9]}, {QV[k]}, {QV[k+1]}, {T[9]}")
        B(f"""v_max_u32 {T[9]}, {QV[15]}, {T[9]}
        v_cmp_eq_u32 vcc, -1, {T[9]}
        v_readfirstlane_b32 s{sT2}, {T[8]}
        s_nop 0
        s_cmp_eq_u64 vcc, 0
        s_cbranch_scc1 P2_QOK
        s_cmp_eq_u32 s{sT2}, s{sNonce}
        s_cbranch_scc1 P2_QRE
        s_sub_u32 s{sT0}, s{sT0}, 1
        s_cmp_lg_u32 s{sT0}, 0
        s_cbranch_scc1 P2_QL
        s_endpgm
        P2_QRE:""")
        B.ext(qld(lambda ab, t: QV.sub(8*ab + 4*t, 4)))
        B("s_waitcnt vmcnt(0)\nP2_QOK:")
        B.ext(ts.at("poll1"))
        for ab in range(2):
            for t in range(2):
                for r in range(4): B(f"v_accvgpr_write_b32 {Q[ab][t][r]}, {QV[8*ab + 4*t + r]}")
    else:
        B.ext(spin("P2_POLL", f"buffer_load_dword {T[8]}, {vZero}, {srd(S_WS)}, s{sT1} offen sc1", [T[8]]))
        B.ext(ts.at("poll1"))
        B.ext(qld(lambda ab, t: Q[ab][t]))
    B("s_barrier")
    def kvdma(slot, tag):
        L = []
        for e in range(8):
            pre = []
            if e == 0: pre = [f"s_add_u32 m0, s{slot}, s{sM0}"]
            if e == 4: pre = [f"s_add_u32 s{sT0}, s{slot}, s{sM0}", f"s_add_u32 m0, s{sT0}, 4096", f"s_add_u32 s{sKVo}, s{sKVo}, 4096"]
            L.append((pre, VM(f"buffer_load_dwordx4 {vL16}, {srd(S_KVD)}, s{sKVo} offen offset:{(e&3)*1024} {SC1} lds", tag)))
        return L
    post_dma = f"s_add_u32 s{sKVo}, s{sKVo}, {32768 - 4096}"
    B(f"""ds_read_b128 {K[0][0]}, {vCur}
    ds_read_b128 {K[0][1]}, {vCur} offset:1024
    ds_read_b128 {V[0][0]}, {vCur} offset:2048
    ds_read_b128 {V[0][1]}, {vCur} offset:3072""")
    hist = list(S15) + list(EA) + list(B.lines)
    B(f"""s_waitcnt vmcnt(0) lgkmcnt(0)
    v_mfma_f32_32x32x16_bf16 {S[0]}, {K[0][0]}, {Q[0][0]}, 0
    v_mfma_f32_32x32x16_bf16 {S[0]}, {K[0][1]}, {Q[0][1]}, {S[0]}""")
    B.ext(ts.at("att"))
    B("s_nop 7\ns_nop 3")

    NS = 4
    S_AF, S_W3, S_OUT = S_A, S_B, S_D
    sMT, sNT = sL + 6, sL + 7
    sAo = sL + 8
    sSo3 = sL + 9
    sM3 = sL + 13
    sWo, sWoN = 30, 15
    sX3 = 16
    sSh, sAdv, sAdv28 = 10, 18, 19
    setup3 = Asm()
    MAP48 = opt.get("map48", 0)
    if MAP48:
        setup3(f"""s_and_b32 s{sT0}, s{sRB}, 4
        s_add_u32 s{sMT}, s{sRB}, s{sT0}
        s_bfe_u32 s{sT0}, s{sCB}, 0x10003
        s_lshl2_add_u32 s{sMT}, s{sT0}, s{sMT}
        s_lshr_b32 s{sT0}, s{sCB}, 4
        s_and_b32 s{sT1}, s{sCB}, 7
        s_lshl3_add_u32 s{sNT}, s{sT0}, s{sT1}""")
    else:
        setup3(f"""s_and_b32 s{sT0}, s{sCB}, 1
        s_lshl_b32 s{sMT}, s{sRB}, 1
        s_add_u32 s{sMT}, s{sMT}, s{sT0}
        s_lshr_b32 s{sT0}, s{sCB}, 3
        s_lshl_b32 s{sT0}, s{sT0}, 2
        s_bfe_u32 s{sT1}, s{sCB}, 0x20001
        s_add_u32 s{sNT}, s{sT0}, s{sT1}""")
    setup3(f"""s_lshl_b32 s{sT0}, s{sNT}, 7
    s_add_u32 s{S_W3}, s{P_WD}, s{sT0}
    s_addc_u32 s{S_W3+1}, s{P_WD+1}, 0
    s_sub_u32 s{S_W3+2}, {3584*2048}, s{sT0}
    s_add_u32 s{sWo}, s{P_WO}, s{sT0}
    s_addc_u32 s{sWo+1}, s{P_WO+1}, 0
    s_sub_u32 s{sWoN}, {1024*2048}, s{sT0}
    s_mov_b32 s{sSh}, 11
    s_mov_b32 s{S_AF+2}, 16384
    s_mov_b32 s{S_OUT}, s{P_OUT}
    s_mov_b32 s{S_OUT+1}, s{P_OUT+1}
    s_mov_b32 s{S_OUT+2}, 0x400000
    s_mul_i32 s{sAo}, s{sW}, {AFS2}
    s_lshl_b32 s{sT0}, s{sMT}, 14
    s_add_u32 s{sAo}, s{sAo}, s{sT0}
    s_add_u32 s{sAo}, s{sAo}, {AF2_OFF}
    s_add_u32 s{S_AF}, s{P_WS}, s{sAo}
    s_addc_u32 s{S_AF+1}, s{P_WS+1}, 0
    s_mov_b32 s{sAo}, 4096
    s_mov_b32 s{sAo+1}, 8192
    s_mov_b32 s{sX3}, 12288
    s_lshl_b32 s{sM3}, s{sW}, 14
    s_add_u32 s{sM3}, s{sM3}, {W3B}""")
    for e in range(1, 4): setup3(f"s_mov_b32 s{sSo3+e}, {e*16384 - e*1024}")
    if CW:
        setup3(f"""s_and_b32 s{sT0}, s{sNT}, 7
        s_cmp_lg_u32 s{sT0}, 3
        s_cbranch_scc1 P3_NOCW
        s_lshr_b32 s{sT0}, s{sNT}, 3
        s_mul_i32 s{sT0}, s{sT0}, {CW_SZ}
        s_add_u32 s{sT0}, s{sT0}, {CW_OFF}
        s_add_u32 s{S_W3}, s{P_WS}, s{sT0}
        s_addc_u32 s{S_W3+1}, s{P_WS+1}, 0
        s_mov_b32 s{S_W3+2}, {3584*256}
        s_add_u32 s{sWo}, s{S_W3}, {3584*256}
        s_addc_u32 s{sWo+1}, s{S_W3+1}, 0
        s_mov_b32 s{sWoN}, {1024*256}
        s_mov_b32 s{sSh}, 8
        s_mov_b32 s{sSo3+1}, 1024
        s_mov_b32 s{sSo3+2}, 2048
        s_mov_b32 s{sSo3+3}, 3072
        P3_NOCW:""")
    setup3(f"""s_lshl_b32 s{sAdv}, 128, s{sSh}
    s_mul_i32 s{sAdv28}, s{sAdv}, 28""")
    setup3v = Asm()
    setup3v(f"""v_lshrrev_b32 {T[0]}, 3, {vL}
    v_lshrrev_b32 {T[1]}, 4, {vL}
    v_lshlrev_b32 {T[2]}, 1, {T[1]}
    v_and_b32 {T[3]}, 7, {vL}
    v_xor_b32 {T[2]}, {T[2]}, {T[3]}
    v_lshlrev_b32 {T[2]}, 4, {T[2]}
    s_lshl_b32 s{sT0}, s{sW}, 5
    v_add_u32 {T[0]}, s{sT0}, {T[0]}
    v_lshl_add_u32 {vW3o}, {T[0]}, s{sSh}, {T[2]}
    s_lshl_b32 s{sT0}, s{sAdv}, 2
    v_add_u32 {T[11]}, s{sT0}, {vW3o}
    v_lshrrev_b32 {T[0]}, 2, {vL}
    v_bfe_u32 {T[1]}, {vL}, 3, 2
    v_and_b32 {T[2]}, 3, {vL}
    v_lshlrev_b32 {T[2]}, 3, {T[2]}
    v_lshl_add_u32 {T[2]}, {T[0]}, 7, {T[2]}
    v_add_u32 {T[2]}, s{sM3}, {T[2]}""")
    for i in range(4): setup3v(f"v_xor_b32 {T[3]}, {i}, {T[1]}\nv_lshl_add_u32 {vW3a[i]}, {T[3]}, 5, {T[2]}")
    setup3v(f"""s_lshr_b32 s{sT0}, s{sMT}, 1
    s_lshl_b32 s{sT0}, s{sT0}, 10
    s_lshl_b32 s{sT1}, s{sRB}, 10
    v_mov_b32 {T[4]}, s{sT0}
    v_mov_b32 {T[5]}, s{sT1}
    v_cmp_gt_u32 vcc, 32, {vL}
    v_and_b32 {T[6]}, 31, {vL}
    v_lshlrev_b32 {T[6]}, 2, {T[6]}
    v_cndmask_b32 {T[4]}, {T[4]}, {T[5]}, vcc
    v_bfe_u32 {T[5]}, {vL}, 3, 2
    v_lshl_add_u32 {T[4]}, {T[5]}, 8, {T[4]}
    v_and_b32 {T[5]}, 7, {vL}
    v_lshl_add_u32 {T[4]}, {T[5]}, 4, {T[4]}
    v_lshrrev_b32 {T[5]}, 5, {vL}
    v_lshl_add_u32 {T[5]}, {T[5]}, 8, {T[6]}
    v_and_b32 {T[7]}, 15, {vL}
    v_lshlrev_b32 {T[7]}, 2, {T[7]}""")
    XRE = opt.get("xre", 0)
    RE = [Reg("a", 180 + 4*j, 4) for j in range(8)]
    sXP = 17
    setup3v(f"""s_add_u32 s{sXP}, s{sW}, {4*(36 - 4*opt.get("np", 4))}
    s_mul_i32 s{sXP}, s{sXP}, {AFS2}
    s_lshl_b32 s{sT0}, s{sMT}, 14
    s_add_u32 s{sXP}, s{sXP}, s{sT0}
    s_add_u32 s{sXP}, s{sXP}, {AF2_OFF}""")
    zero3 = [f"v_mov_b32 {acc3[i][j][r]}, 0" for i in range(4) for j in range(8) for r in range(4)]
    def w3dma(slot, e):
        m0 = f"s_add_u32 m0, s{sM3}, {slot*4096}"
        return m0, VM(f"buffer_load_dwordx4 {vW3o}, {srd(S_W3)}, {'0' if e == 0 else 's%d' % (sSo3+e)} offen offset:{e*1024} {SC1 if CW else ''} lds", ("W", slot))
    def xload(slot, j):
        return VM(f"buffer_load_dwordx4 {RX[slot][j]}, {vAF}, {srd(S_AF)}, {['0', 's%d' % sAo, 's%d' % (sAo+1), 's16'][j>>1]} offen offset:{(j&1)*2048} {opt.get('xflag', SC1)}", ("X", slot, j >> 2))
    adv3 = [f"v_add_u32 {vW3o}, s{sAdv}, {vW3o}", f"s_add_u32 s{S_AF}, s{S_AF}, {4*AFS2}\ns_addc_u32 s{S_AF+1}, s{S_AF+1}, 0"]
    def wread(slot, s):
        return [f"ds_read_b64_tr_b16 {RW[s][i].sub(2*hf,2)}, {vW3a[i]} offset:{slot*4096 + hf*2048}" for i in range(4) for hf in range(2)]
    def gm(s, j, i, first=False): return f"v_mfma_f32_16x16x32_bf16 {acc3[i][j]}, {RW[s&1][i]}, {RX[s][j]}, {0 if first else acc3[i][j]}"

    EARLY3 = opt.get("early3", 0)
    pfsetup = [f"s_lshl_b32 s{sT1}, s2, 2", f"s_add_u32 s{sT1}, s{sT1}, s{sW}", f"s_lshl_b32 s{sT1}, s{sT1}, 10",
               f"v_lshrrev_b32 {vPF}, 3, {vL}", f"v_lshlrev_b32 {vPF}, 7, {vPF}", f"v_add_u32 {vPF}, s{sT1}, {vPF}",
               f"s_mov_b32 s{S_PF}, s{P_WD}", f"s_mov_b32 s{S_PF+1}, s{P_WD+1}", f"s_mov_b32 s{S_PF+2}, {3584*2048}", f"s_mov_b32 s{sPF}, 0x100000"] if PF else []
    k_ = B.lines.index("; @@SETUP3@@")
    ins = []
    if EARLY3:
        ins = setup3.lines + setup3v.lines + pfsetup
        if EARLY3 > 1:
            for s_ in range(4):
                for e_ in range(4):
                    m0, d = w3dma(s_, e_)
                    ins += ([m0, "s_nop 0"] if e_ == 0 else []) + [d] + ([adv3[0]] if e_ == 3 else [])
    B.lines[k_:k_ + 1] = ins
    k2_ = hist.index("; @@SETUP3@@"); hist[k2_:k2_ + 1] = ins
    probs += check_hazards(B.lines, "p2pro")
    A.ext(B.lines)
    def att_parts(ab, kq, vp):
        o = ab ^ 1
        M = [f"v_mfma_f32_32x32x16_bf16 {S[o]}, {K[kq][0]}, {Q[o][0]}, 0",
             f"v_mfma_f32_32x32x16_bf16 {S[o]}, {K[kq][1]}, {Q[o][1]}, {S[o]}",
             f"v_mfma_f32_32x32x16_bf16 {O[o]}, {V[vp][0]}, {P[o].sub(0,4)}, {O[o]}",
             lsum(o),
             f"v_mfma_f32_32x32x16_bf16 {O[o]}, {V[vp][1]}, {P[o].sub(4,4)}, {O[o]}",
             None]
        ex = [f"v_exp_f32 {S[ab][r]}, {S[ab][r]}" for r in range(16)]
        cv = [f"v_cvt_pk_bf16_f32 {P[ab][r]}, {S[ab][2*r]}, {S[ab][2*r+1]}" for r in range(8)]
        return M, ex, cv
    def phase_plain(ab, kq, vp, extra, gp=99):
        M, ex, cv = att_parts(ab, kq, vp)
        order = [M[2], M[0], M[1], M[3], M[4]]
        if gp == 0: order = ["s_nop 0", M[0], M[1], "s_nop 0", "s_nop 0"]
        if gp in (1, 2): order[0] = order[0].rsplit(",", 1)[0] + ", 0"
        vl = []
        for r in range(16):
            vl.append(ex[r])
            if r >= 3 and r % 2 == 1: vl.append(cv[(r - 3)//2])
        vl.append(cv[7])
        mpos = opt.get("mpos", [0, 4, 9, 14, 18])
        assert max(extra, default=0) <= 4
        out = []; mi = 0
        for i, v in enumerate(vl):
            while mi < 5 and mpos[mi] == i:
                out.append(order[mi]); out.extend(extra.get(mi, [])); mi += 1
            out.append(v)
        return out
    def phase_merged(ab, kq, vp, G8, extra):
        M, ex, cv = att_parts(ab, kq, vp)
        order = [M[2], G8[0], M[0], G8[1], G8[2], M[1], G8[3], M[3], G8[4], M[4], G8[5], G8[6], G8[7]]
        e, c = ex, cv
        fill = [[e[0], e[1], e[2]], [e[3]], [e[4], e[5], e[6]], [c[0], c[1]], [e[7]], [e[8], e[9], e[10]], [c[2], c[3]], [c[4]],
                [e[11]], [e[12], e[13], e[14]], [e[15]], [c[5], c[6]], [c[7]]]
        assert max(extra, default=0) <= 12
        out = []
        for k in range(13):
            out.append(order[k]); out.extend(extra.get(k, [])); out.extend(fill[k])
        return out
    sX3 = 16
    NP = opt.get("np", 4)
    PFSW = 6
    sKM = sL + 14
    def chunk(kind, hook=None, first=False, pfok=True, wpre=False):
        out = []
        mer = kind == "merged"
        for pi in range(16):
            tau, ab = pi >> 1, pi & 1
            kp = tau & 1
            ex = {}
            if ab == 0:
                src = (vCur, (tau+1)*4096) if tau < 7 else (vNxt, 0)
                ld = [f"ds_read_b128 {K[kp^1][t]}, {src[0]} offset:{src[1] + t*1024}" for t in range(2)]
            else:
                src = (vCur, (tau+1)*4096 + 2048) if tau < 7 else (vNxt, 2048)
                ld = [f"ds_read_b128 {V[kp^1][t]}, {src[0]} offset:{src[1] + t*1024}" for t in range(2)]
            kvd = VM(f"buffer_load_dwordx4 {vL16}, {srd(S_KVD)}, s{sKVo} offen offset:{(pi&3)*1024} {SC1} lds", "KV")
            if wpre:
                kvd = VM(f"buffer_load_dwordx4 {T[11]}, {srd(S_KVD)}, {'0' if pi & 3 == 0 else 's%d' % (sSo3 + (pi & 3))} offen offset:{(pi&3)*1024} {SC1 if CW else ''} lds", "PW")
            rotate = [f"s_mov_b32 s{sT0}, s{sCur}", f"s_mov_b32 s{sCur}, s{sNext}", f"s_mov_b32 s{sNext}, s{sFree}", f"s_mov_b32 s{sFree}, s{sT0}",
                      f"s_add_u32 s{sKM}, s{sT0}, s{sM0}", f"s_add_u32 s{sIt}, s{sIt}, 1"]
            upd = [f"v_add_u32 {vCur}, s{sCur}, {vL16}", f"v_add_u32 {vNxt}, s{sNext}, {vL16}"]
            lg = 0 if (trace or not mer) else 2
            s, q = pi >> 2, pi & 3
            if pi == 14: w0 = [Need(["KV"], "lgkmcnt(0)"), "s_barrier"]
            elif mer and q == 0: w0 = [Need([("W", (s+1) % NS), ("X", s, 1)], "lgkmcnt(0)")]
            else: w0 = [f"s_waitcnt lgkmcnt({lg})"]
            put(ex, 0, w0)
            if pi % 8 == 7: put(ex, 0, tr_commit())
            if not mer:
                if pi < 8: put(ex, 3, f"s_mov_b32 m0, s{sKM}")
                if pi == 4: put(ex, 1, f"s_add_u32 s{sKVo}, s{sKVo}, 4096"); put(ex, 2, f"s_add_u32 s{sKM}, s{sKM}, 4096")
                if pi == 8: put(ex, 1, post_dma)
                if pi == 14: put(ex, 3, rotate[0]); put(ex, 4, rotate[1])
                if pi == 15: put(ex, 1, rotate[2]); put(ex, 2, rotate[3]); put(ex, 3, rotate[4]); put(ex, 4, rotate[5])
                put(ex, 1, ld[0]); put(ex, 2, ld[1])
                if pi < 8: put(ex, 4, kvd)
            else:
                G8 = [gm(s, 2*q + jj, i, first and s == 0) for jj in range(2) for i in range(4)]
                m0, d = w3dma(s, q)
                rd = wread((s+1) % NS, (s+1) & 1)
                if pi == 4: put(ex, 1, f"s_add_u32 s{sKVo}, s{sKVo}, 4096"); put(ex, 4, f"s_add_u32 s{sKM}, s{sKM}, 4096")
                if pi == 8: put(ex, 1, post_dma)
                if q == 0 and s > 0: put(ex, 6, adv3[1])
                if pi == 15:
                    for k, g_ in enumerate((4, 5, 6, 7, 8, 9)): put(ex, g_, rotate[k])
                if pi == 10 and PF: put(ex, 1, pfop[1])
                put(ex, 1, ld[0]); put(ex, 2, m0); put(ex, 3, d); put(ex, 4, ld[1])
                put(ex, 5, rd[2*q]); put(ex, 10 if q < 3 else 6, rd[2*q+1])
                put(ex, 7, xload(s, 2*q)); put(ex, 12, xload(s, 2*q+1))
                if q == 3: put(ex, 11, adv3[0])
                if pi < 8: put(ex, 8, f"s_mov_b32 m0, s{sKM}"); put(ex, 9, kvd)
                if wpre and pi in (4, 8): put(ex, 6, f"v_add_u32 {T[11]}, s{sAdv}, {T[11]}")
                if pi == 9 and PF:
                    put(ex, 9, pfop[0])
                    put(ex, 6, [f"s_cmp_eq_u32 s{sIt}, {PFSW}", f"s_cselect_b32 s{sPF}, 0, s{sPF}", f"s_cselect_b32 s{S_PF}, s{P_WO}, s{S_PF}",
                                f"s_cselect_b32 s{S_PF+1}, s{P_WO+1}, s{S_PF+1}", f"s_cselect_b32 s{S_PF+2}, 0x200000, s{S_PF+2}"])
                if pi == 12: put(ex, 9, cp(False))
                if wpre and XRE and pi >= 8:
                    j_ = pi - 8
                    put(ex, 8 if pi not in (15,) else 10, VM(f"buffer_load_dwordx4 {RE[j_]}, {vAF}, {srd(S_WS)}, s{sXP} offen offset:{(j_&1)*2048} {SC1}", ("XE", j_ >> 2)))
                    if j_ & 1: put(ex, 11, f"s_add_u32 s{sXP}, s{sXP}, {4096 if j_ < 7 else (-12288) & 0xffffffff}")
            if pi % 8 == 6: put(ex, 3, tr_issue())
            if hook: hook(pi, ex, None)
            if mer: out += phase_merged(ab, kp ^ ab, kp ^ 1 ^ ab, G8, ex)
            else: out += phase_plain(ab, kp ^ ab, kp ^ 1 ^ ab, ex, pi if first else 99)
        if mer: out += adv3[1:]
        out += upd
        return out

    dflt = {3: dict(hs=[1, 1], gs=23, hf=26, hp=36, hc=39, pf=[25, 28, 41]), 4: dict(hs=[2, 1], gs=32, hf=44, hp=50, hc=53, pf=[34, 38, 44, 56])}[NP]
    dflt.update(opt.get("sched", {}))
    HSN, HSD = dflt["hs"]; GS, HF, HPg, HC, PFP = dflt["gs"], dflt["hf"], dflt["hp"], dflt["hc"], dflt["pf"]
    assert len(PFP) == NP
    hst = hst0 + hst1a
    hph = [dflt.get("hs0", 0) + n*HSN//HSD for n in range(16)]
    assert EARLY3 or hph[-1] < GS
    hpoll = f"buffer_load_dwordx4 {vFl}, {T[4]}, {srd(S_WS)}, s{sT1} offen sc1"
    LASTP = 16*NP - 1
    wph = [GS + 1 + k // 2 for k in range(16)] if not EARLY3 else ([-1]*16 if EARLY3 > 1 else [2*(k // 2)*2 + 1 for k in range(16)])
    NXP = opt.get("nxp", 32)
    xph = [HC + 1 + (k * (LASTP - HC)) // NXP for k in range(NXP)] + [-1] * (32 - NXP)
    gloads = [VM(f"buffer_load_dword {vG[ab]}, {T[6]}, {srd(S_WS)}, s{sT2} offen offset:{ab*128} sc1", "G") for ab in range(2)]
    gloads += [VM(f"buffer_load_dword {SCL[j]}, {T[7]}, {srd(S_WS)}, s{sT3} offen offset:{j*64} sc1", "G") for j in range(8)]
    def hookM0(pi, ex, pre):
        n = NXP + pi
        if n < 32:
            s_, j_ = divmod(n, 8)
            put(ex, 6, VM(f"buffer_load_dwordx4 {RX[s_][j_]}, {vL16}, {srd(S_AF)}, s{sX3 + (j_>>2)} offen offset:{(j_&3)*1024} {SC1}", ("X", s_, j_ >> 2)))
        if pi >= 11: put(ex, 8, gloads[2*(pi - 11)]); put(ex, 11, gloads[2*(pi - 11) + 1])
    def mkhook(base):
        def hook(pi, ex, pre):
            gp = base + pi
            k = 0
            for n in range(16):
                if hph[n] == gp: put(ex, [0, 3][k], hst[n]); k += 1
            if gp == GS and not EARLY3:
                put(ex, 0, setup3.lines[:15]); put(ex, 1, setup3.lines[15:]); put(ex, 3, setup3v.lines + pfsetup)
            if gp in PFP and PF: put(ex, 3 if (gp & 15) >= 8 else 0, pfop)
            if gp in opt.get('cpg', (1, 25)): put(ex, 4, cp())
            k = 0
            for n in range(16):
                if wph[n] == gp:
                    s_, e_ = divmod(n, 4)
                    m0, d = w3dma(s_, e_)
                    if k == 0: ex[0] = ex[0] + [m0]
                    put(ex, k + 1, [d] + ([adv3[0]] if e_ == 3 else [])); k += 1
            if gp == HF:
                put(ex, 2, [Need(["H"]), "s_mov_b64 exec, 1", VM(f"buffer_store_dword {vNon}, {vZero}, {srd(S_WS)}, s{sFl} offen sc1", "HF"), "s_mov_b64 exec, -1", "s_nop 2"])
            if gp == HPg: put(ex, 3, [f"s_mov_b32 s{sT1}, {FL_H}", VM(hpoll, "HP")])
            if gp == HC:
                put(ex, 2, [Need(["HP"])] + check([vFl[k] for k in range(4)]) + ["s_cbranch_scc0 P3_SLOWH", "P3_HOK:"])
                put(ex, 3, [f"s_lshl_b32 s{sT2}, s{sRB}, 10", f"s_lshl_b32 s{sT3}, s{sW}, 8", f"s_add_u32 s{sT2}, s{sT2}, s{sT3}", f"s_add_u32 s{sT2}, s{sT2}, {G_OFF}",
                            f"s_lshl_b32 s{sT3}, s{sMT}, 9", f"s_add_u32 s{sT3}, s{sT3}, {G_OFF}"])
            k = 0
            for n in range(32):
                if xph[n] == gp:
                    s_, j_ = divmod(n, 8)
                    put(ex, [0, 3, 4, 2][k], [xload(s_, j_)] + (adv3[1:] if j_ == 7 else [])); k += 1
            if gp == LASTP:
                put(ex, 3, [Need([("W", 0)])] + wread(0, 0))
                if NXP == 24: put(ex, 5, [f"s_mov_b32 s{sX3}, s{sAo}", f"s_mov_b32 s{sX3+1}, s{sAo+1}"] + adv3[1:])
        return hook
    def retag(ch, cur, need):
        out = []
        for l in ch:
            if isinstance(l, VM) and l.tag == "KV": out.append(VM(l, cur))
            elif isinstance(l, Need) and "KV" in l.tags: out.append(Need([need], l.extra))
            else: out.append(l)
        return out
    hist = [VM(l, "KV-1") if isinstance(l, VM) and l.tag == "KV" else l for l in hist]
    CP = []; hh_ = list(hist)
    for c in range(NP):
        ch = resolve_waits(retag(chunk("plain", mkhook(16*c), first=(c == 0)), f"KV{c}", f"KV{c-1}"), hh_)
        CP.append(ch); hh_ += ch
    mA = retag(chunk("merged"), "KVa", "KVb"); mB = retag(chunk("merged"), "KVb", "KVa")
    mres = resolve_waits(mA, mB)
    M = mres
    M0 = resolve_waits(retag(chunk("merged", hookM0, first=True), "KVb", f"KV{NP-1}"), hh_)
    probs += verify_waits(hh_ + M0 + M, len(hh_ + M0), "M0->M")
    WPRE = opt.get("wpre", 1)
    if WPRE:
        MW = resolve_waits(retag(chunk("merged", wpre=True), "-", "KVa"), M)
        probs += verify_waits(M + MW + [l for l in MW if not (isinstance(l, Need) and "KVa" in l.tags)], len(M + MW), "MW->MW")
    mab = opt.get("mabl", "")
    def abl(L):
        out = []
        for l in L:
            if "x" in mab and isinstance(l, VM) and isinstance(l.tag, tuple) and l.tag[0] == "X": continue
            if "w" in mab and isinstance(l, VM) and isinstance(l.tag, tuple) and l.tag[0] == "W": continue
            if "t" in mab and l.startswith("ds_read_b64_tr"): continue
            if "k" in mab and l.startswith("ds_read_b128"): continue
            if "s" in mab and l.startswith(("s_add", "s_mov", "s_cmp", "s_cselect")) and f"s{sIt}" not in l and "exec" not in l: continue
            if "n" in mab and isinstance(l, Need): out.append("s_waitcnt lgkmcnt(0)" if l.extra else "s_nop 0"); continue
            if "g" in mab and l.startswith("v_mfma_f32_16x16") and "a[2" in l: continue
            out.append(l)
        return out
    Me = abl(M); M0e = abl(M0)
    D = Asm()
    D(f"s_mov_b32 s{sIt}, 0")
    cab = opt.get("cabl", "")
    def cabl(L):
        out = []
        for l in L:
            if "h" in cab and isinstance(l, VM) and l.tag == "H": continue
            if "k" in cab and isinstance(l, VM) and str(l.tag).startswith("KV"): continue
            if "r" in cab and l.startswith("ds_read_b128"): continue
            if "s" in cab and l.startswith(("s_mov_b32 m0", "s_add_u32")) and "s62" not in l: continue
            if "w" in cab and l.startswith("s_waitcnt lgkmcnt"): continue
            out.append(l)
        return out
    for c in range(NP): D.ext(ts.at(f"c{c}")); D.ext(cabl(CP[c]) if c < 2 else CP[c])
    D.ext(ts.at("m")); D.ext(M0e)
    D.ext(ts.at("m1"))
    D(".p2align 6\nP2_MLOOP:")
    D.ext(Me)
    if WPRE:
        D(f"""s_cmp_lt_u32 s{sIt}, 6
        s_cbranch_scc1 P2_MLOOP
        s_mov_b32 s{S_KVD}, s{sWo}
        s_mov_b32 s{S_KVD+1}, s{sWo+1}
        s_mov_b32 s{S_KVD+2}, s{sWoN}""")
        if CPF: D(cpa)
        D.ext(ts.at("mw"))
        D("P2_MWLOOP:")
        if "mw2" in ts.names: D.ext(ts.at("mw2"))
        D.ext(abl(MW))
        D(f"s_cmp_lt_u32 s{sIt}, 8\ns_cbranch_scc1 P2_MWLOOP")
        probs += check_hazards(M + MW + MW, "mw")
        M = MW
    else:
        D(f"s_cmp_lt_u32 s{sIt}, 8\ns_cbranch_scc1 P2_MLOOP")
    probs += check_hazards(B.lines[-8:] + sum(CP, []) + M0 + M + M, "att")
    A.ext(D.lines)

    C = Asm()
    C.ext(ts.at("attend"))
    C(f"""v_mfma_f32_32x32x16_bf16 {O[1]}, {V[1][0]}, {P[1].sub(0,4)}, {O[1]}
    {lsum(1)}
    v_mfma_f32_32x32x16_bf16 {O[1]}, {V[1][1]}, {P[1].sub(4,4)}, {O[1]}""")
    C(f"v_mov_b32 {T[1]}, 0")
    for r in range(16): C(f"v_fmac_f32 {T[1]}, 0, {O[0][r]}")
    for r in range(16): C(f"v_fmac_f32 {T[1]}, 0, {O[1][r]}")
    for ab in range(2): C(f"v_add_f32 {Lc[ab][0]}, {Lc[ab][0]}, {Lc[ab][1]}")
    C(f"""s_mov_b32 s{sT0}, {f2u(2.0**-20):#x}
    s_mov_b32 s{sT1}, {f2u(2.0**100):#x}
    v_cmp_le_f32 vcc, s{sT0}, {Lc[0][0]}
    v_cmp_le_f32 s[{S_C}:{S_C+1}], s{sT0}, {Lc[1][0]}
    s_nop 1
    s_and_b64 vcc, vcc, s[{S_C}:{S_C+1}]
    v_cmp_ge_f32 s[{S_C}:{S_C+1}], s{sT1}, {Lc[0][0]}
    v_cmp_ge_f32 s[{sT2}:{sT3}], s{sT1}, {Lc[1][0]}
    s_nop 1
    s_and_b64 vcc, vcc, s[{S_C}:{S_C+1}]
    s_and_b64 vcc, vcc, s[{sT2}:{sT3}]
    v_cmp_eq_f32 s[{S_C}:{S_C+1}], 0, {T[1]}
    s_nop 1
    s_and_b64 vcc, vcc, s[{S_C}:{S_C+1}]
    s_cmp_eq_u64 vcc, -1""")
    if opt.get("force_fallback"): C("s_branch P2_FALLBACK")
    C("s_cbranch_scc0 P2_FALLBACK")
    C("P2_FINISH:")
    for ab in range(2): C(f"v_rcp_f32 {T[2*ab]}, {Lc[ab][0]}")
    C(f"""s_add_u32 s{sT0}, s{sCB}, 112
    s_mul_i32 s{sT0}, s{sT0}, {AFS2}
    s_lshl_b32 s{sT1}, s{sRB}, 15
    s_add_u32 s{sT0}, s{sT0}, s{sT1}
    s_lshl_b32 s{sT1}, s{sW}, 13
    s_add_u32 s{sT0}, s{sT0}, s{sT1}
    s_add_u32 s{sT0}, s{sT0}, {AF2_OFF}
    s_add_u32 s{sT1}, s{sT0}, 4096
    v_and_b32 {vFl[2]}, 40, {vL}
    v_cmp_eq_u32 vcc, 40, {vFl[2]}
    v_add_u32 {vFl[2]}, 128, {vQP}
    s_nop 0
    v_cndmask_b32 {vFl[1]}, {vQP}, {vFl[2]}, vcc""")
    for ab in range(2): C(f"v_mul_f32 {T[2*ab]}, {T[2*ab]}, {vG[ab]}")
    for ab in range(2):
        for r in range(0, 16, 2):
            C(f"v_pk_mul_f32 {O[ab].sub(r,2)}, {O[ab].sub(r,2)}, {T.sub(2*ab,2)} op_sel_hi:[1,0]")
        for r in range(8): C(f"v_cvt_pk_bf16_f32 {S[ab][r]}, {O[ab][2*r]}, {O[ab][2*r+1]}")
        for c in range(2):
            C(VM(f"buffer_store_dwordx4 {S[ab].sub(4*c,4)}, {vFl[1+c]}, {srd(S_WS)}, s{sT0+ab} offen offset:{c*512} {SC1}", "O"))
    for j in range(8): C(f"v_sub_f32 {SCL[j]}, 1.0, {SCL[j]}")
    for j in range(8): C(f"v_cvt_pk_bf16_f32 {SCL[j]}, {SCL[j]}, {SCL[j]}")
    for j in range(8): C(f"v_and_b32 {SCL[j]}, 0xffff0000, {SCL[j]}")
    sFC = sL
    C(f"""s_lshl_b32 s{sFC}, s{sMT}, 9
    s_add_u32 s{sFC}, s{sFC}, {FL_O}
    s_add_u32 s{sFl}, s{sFl}, {FL_O - FL_H}""")
    C.ext(ts.at("tail"))
    EPI_IL = opt.get("epi_il", 1)
    groups = []
    if EPI_IL:
        n0 = next(k for k, l in enumerate(C.lines) if l.startswith("v_mov_b32") )
        rest = C.lines[n0:]; C.lines = C.lines[:n0]
        k0 = next(k for k, l in enumerate(rest) if l.startswith("s_mov_b32"))
        k1 = rest.index("P2_FINISH:")
        groups = [[l] for l in rest[:k0]] + [rest[k0:k1 + 1]] + [[l] for l in rest[k1 + 1:]]
    vPa = [O[0][i] for i in range(4)]; vPb = [O[0][4 + i] for i in range(4)]
    def pread(st, dst):
        base = vPb if st < 2 else vPa
        return [f"ds_read_b64_tr_b16 {dst[i].sub(2*hf,2)}, {base[i]} offset:{(st & 1)*4096 + hf*2048}" for i in range(4) for hf in range(2)]
    def p3iter(hook=None, now=False, skipx=False, usee=False):
        out = []
        for s in range(NS):
            m = [gm(s, j, i) for j in range(8) for i in range(4)]
            xt = lambda h: ("X", s, h)
            if usee and s == 0:
                m = [l.replace(str(RX[0][k // 4]), str(RE[k // 4])) for k, l in enumerate(m)]
                xt = lambda h: ("XE", h)
            f = {}
            if opt.get("t3", 1) == 0:
                f[-1] = [Need([("W", (s+1) % NS), ("X", s, 1)], "lgkmcnt(0)"), w3dma(s, 0)[0]]
                dgap = [0, 6, 14, 22]
                for e in range(4): put(f, dgap[e], w3dma(s, e)[1])
                for k, r in enumerate(wread((s + 1) % NS, (s+1) & 1)): put(f, 1 + 3*k, r)
                for j in range(8): put(f, 4*j + 3 + (1 if j < 7 else 0), xload(s, j))
            else:
                f[-1] = [Need([xt(0)], "lgkmcnt(0)"), w3dma(s, 0)[0]]
                dgap = opt.get("t3w", [0, 2, 6, 10])
                if now: f[-1] = f[-1][:1]
                else:
                    for e in range(4): put(f, dgap[e], w3dma(s, e)[1])
                put(f, 15, Need([xt(1)]))
                rg0 = opt.get("t3r", 18)
                if not (now and s == 3): put(f, rg0 - 1, Need([("W", (s+1) % NS)]))
                for k, r in enumerate(pread(0, RW[0]) if (now and s == 3) else wread((s + 1) % NS, (s+1) & 1)): put(f, rg0 + k + (1 if rg0 + k >= 20 else 0) + (1 if rg0 + k >= 23 else 0), r)
                if not (skipx and s == 0):
                    for j in range(8): put(f, 4*j + 3 + (1 if j < 7 else 0), xload(s, j))
            put(f, 31, adv3)
            put(f, 28, tr_issue())
            if trace: f[-1] = f[-1][:1] + tr_commit() + f[-1][1:]
            if hook: hook(s, f)
            out += interleave(m, f)
        return out
    opoll = f"buffer_load_dword {vFl[0]}, {T[5]}, {srd(S_WS)}, s{sFC} offen sc1"
    NT = NP - 2
    OFS, OPS = opt.get("oflag_step", 2), opt.get("opoll_step", 4*NT - 1 if NT == 1 else 4*NT - 2)
    def mkT(base):
        def hookT(s, f):
            if base == 0 and s < 2:
                R_ = opt.get("epi_rate", 3)
                for g_ in range(2 if s == 0 else 0, 31):
                    for _ in range(R_):
                        if groups: put(f, g_, groups.pop(0))
                assert s == 0 or not groups
            if base + s == OFS: put(f, 10, [Need(["O"]), "s_mov_b64 exec, 1", VM(f"buffer_store_dword {vNon}, {vZero}, {srd(S_WS)}, s{sFl} offen sc1", "OF"), "s_mov_b64 exec, -1", "s_nop 2"])
            if base + s == OPS: put(f, 26, VM(opoll, "OP"))
            if base + s == 1 and CPF: put(f, 14, [cpa, f"v_min_u32 v0, L_END-{CB0}-4, v0"] + cp(False))
        return hookT
    T5 = []
    XE_ = XRE and WPRE and NT >= 2
    for k in range(NT): T5 += resolve_waits(p3iter(mkT(4*k), skipx=XE_ and k == 0, usee=XE_ and k == 1), M + M + C.lines + T5)
    L3 = resolve_waits(p3iter())
    mid = [Need(["OP"])] + check([vFl[0]]) + ["s_cbranch_scc0 P3_SLOWO", "P3_OOK:",
           f"s_mov_b32 s{S_W3}, s{sWo}", f"s_mov_b32 s{S_W3+1}, s{sWo+1}", f"s_mov_b32 s{S_W3+2}, s{sWoN}",
           f"v_subrev_u32 {vW3o}, s{sAdv28}, {vW3o}", f"s_mov_b32 s{sIt}, 6", "s_barrier",
           f"v_add_u32 {T[0]}, 0x10000, {vL16}", f"v_and_b32 {T[1]}, 15, {vL}", f"v_lshlrev_b32 {T[1]}, 11, {T[1]}", f"v_bfe_u32 {T[2]}, {vL}, 4, 1",
           f"v_lshl_add_u32 {T[1]}, {T[2]}, 5, {T[1]}", f"v_lshrrev_b32 {T[2]}, 5, {vL}", f"v_lshl_add_u32 {T[1]}, {T[2]}, 4, {T[1]}",
           f"s_lshl_b32 s{sT0}, s{sMT}, 18", f"s_lshl_b32 s{sT1}, s{sW}, 16", f"s_add_u32 s{sT0}, s{sT0}, s{sT1}",
           f"s_lshl_b32 s{sT1}, s{sNT}, 7", f"s_add_u32 s{sT0}, s{sT0}, s{sT1}", f"s_add_u32 s{sT1}, s{sT0}, 32768"]
    if WPRE:
        mid += [f"s_lshl_b32 s{sT2}, s{sW}, 13", f"s_add_u32 s{sT2}, s{sT2}, {W3B}"]
        mid += [f"v_subrev_u32 {vPa[i]}, s{sT2}, {vW3a[i]}" for i in range(4)] + [f"v_add_u32 {vPb[i]}, 0x10000, {vPa[i]}" for i in range(4)]
    mid = resolve_waits(mid, T5)
    probs += verify_waits(M + C.lines + T5 + mid + L3, len(M + C.lines + T5 + mid), "T5->L3")
    tail = [f"s_add_u32 s{sIt}, s{sIt}, 1", f"s_cmp_eq_u32 s{sIt}, 8", "s_cbranch_scc1 P3_DONE", "s_nop 7"]
    for i in range(4):
        for j in range(8):
            for r in (0, 2):
                tail.append(f"v_pk_mul_f32 {acc3[i][j].sub(r,2)}, {acc3[i][j].sub(r,2)}, {SCL.sub(j & ~1, 2)} op_sel:[0,{j&1}] op_sel_hi:[1,{j&1}]")
    tail += ["s_nop 0", "s_branch P3_LOOP", "P3_DONE:"]
    probs += check_hazards(M[-30:] + C.lines + T5 + mid + L3 + tail + L3, "tail") + check_hazards(L3 + L3, "l3")
    tab = opt.get("tabl", "")
    def tabl(L):
        out = []
        for l in L:
            if isinstance(l, VM) and isinstance(l.tag, tuple) and l.tag[0].lower() in tab: continue
            if "t" in tab and l.startswith("ds_read_b64_tr"): continue
            if "m" in tab and l.startswith("v_mfma"): continue
            if "a" in tab and l in adv3: continue
            out.append(l)
        return out
    T5 = tabl(T5); L3 = tabl(L3)
    C.ext(T5); C.ext(ts.at("t5end")); C.ext(mid)
    if TCH > 2: C(f"; @@TOUCH x 3 s{sW}")
    C.ext(ts.at("l3"))
    if WPRE:
        XEND = opt.get("xend", 0)
        VA = [Reg("v", S[1].base + 4*j, 4) for j in range(8)]
        RXF = [RX[0], RX[1], VA, RE] if XEND else RX
        def hookL7(s, f):
            if XEND and s < 2:
                if s == 0: put(f, 0, [f"s_add_u32 s{sXP}, s{sW}, {4*34}", f"s_mul_i32 s{sXP}, s{sXP}, {AFS2}", f"s_lshl_b32 s{sT2}, s{sMT}, 14",
                                      f"s_add_u32 s{sXP}, s{sXP}, s{sT2}", f"s_add_u32 s{sXP}, s{sXP}, {AF2_OFF}"])
                for j in range(8):
                    put(f, 4*j + 2, VM(f"buffer_load_dwordx4 {RXF[2+s][j]}, {vAF}, {srd(S_WS)}, s{sXP} offen offset:{(j&1)*2048} {SC1}", ("X", 2 + s + 10, j >> 2)))
                    if j & 1: put(f, 4*j + 2, f"s_add_u32 s{sXP}, s{sXP}, {4096 if j < 7 else 4*AFS2 - 12288}")
            if XEND and s >= 2:
                for g_ in list(f): f[g_] = [l for l in f[g_] if not (isinstance(l, VM) and l.tag[0] == "X")]
            if s == 0:
                for j in range(8):
                    sc = [f"v_pk_mul_f32 {acc3[i][j].sub(r,2)}, {acc3[i][j].sub(r,2)}, {SCL.sub(j & ~1, 2)} op_sel:[0,{j&1}] op_sel_hi:[1,{j&1}]" for i in range(4) for r in (0, 2)]
                    if j == 0: put(f, -1, sc + ["s_nop 1"])
                    else:
                        for k in range(8): put(f, 4*(j - 1) + k // 3, sc[k])
        L7 = resolve_waits(p3iter(hookL7, now=True), L3 + L3)
        probs += check_hazards(L3 + L7, "l7")
        C.ext(L3); C.ext(tabl(L7)); C.ext(ts.at("l3end"))
        LPREV = L3 + L7
    else:
        C(".p2align 6\nP3_LOOP:")
        C.ext(L3); C.ext(tail); C.ext(ts.at("l3end"))
        LPREV = L3 + L3; RXF = RX; XEND = 0
    for w in range(3): C(f"s_cmp_eq_u32 s{sW}, {w}\ns_cbranch_scc1 P3_FIN{w}")
    A.ext(C.lines)
    RWF = [RW[0]] + [[Reg("a", 128 + 16*k + 4*i, 4) for i in range(4)] for k in range(3)]
    def fin(w):
        def adr(off): return (vL16, off) if off < 65536 else (T[0], off - 65536)
        own = [2*w, 2*w + 1]
        oth = [j for d in range(1, 4) for j in (2*((w + d) & 3), 2*((w + d) & 3) + 1)]
        mm = lambda s_, j, i: f"v_mfma_f32_16x16x32_bf16 {acc3[i][j]}, {RWF[s_][i]}, {RXF[s_][j]}, {acc3[i][j]}"
        m = [mm(0, j, i) for j in oth for i in range(4)]
        G0 = 24
        f = {}
        f[-1] = [Need([("X", 0, 1)] + ([] if WPRE else [("W", 1)]), "lgkmcnt(0)")]
        k = 0
        for s_ in (1, 2, 3):
            if s_ > 1 and not WPRE: put(f, k, Need([("W", s_)]))
            for r in (pread(s_, RWF[s_]) if WPRE else [f"ds_read_b64_tr_b16 {RWF[s_][i].sub(2*hf,2)}, {vW3a[i]} offset:{s_*4096 + hf*2048}" for i in range(4) for hf in range(2)]):
                put(f, k * 20 // 24, r); k += 1
        put(f, G0 - 1, Need([("X", 1, 1), ("X", 13, 1)] if (WPRE and XEND) else [("X", 3, 1)], "lgkmcnt(0)"))
        if WPRE: put(f, G0 - 1, "s_barrier")
        for j in oth: m += [mm(s_, j, i) for s_ in (1, 2, 3) for i in range(4)]
        for j in own: m += [mm(s_, j, i) for s_ in (0, 1, 2, 3) for i in range(4)]
        WS_ = opt.get("fws", 3)
        for n, j in enumerate(oth):
            d = j >> 1; q = (w - d - 1) & 3
            for i in range(4):
                b_, off = adr((d*3 + q)*8192 + ((j & 1)*4 + i)*1024)
                put(f, G0 + 12*(n + 1) + 5 + (WS_ if n < 5 else 1)*i, f"ds_write_b128 {b_}, {acc3[i][j]} offset:{off}")
        free = [acc3[i][j] for j in oth for i in range(4)]
        g0 = G0 + 12*6 + 5 + 6
        put(f, g0, ["s_waitcnt lgkmcnt(0)", "s_barrier"])
        k = 0
        for q in range(3):
            for jj in range(2):
                for i in range(4):
                    b_, off = adr((w*3 + q)*8192 + (jj*4 + i)*1024)
                    put(f, min(g0 + (k * 3) // 4, 127), f"ds_read_b128 {free[k]}, {b_} offset:{off}"); k += 1
        R = Asm()
        Fl = resolve_waits(interleave(m, f), LPREV)
        if opt.get("fabl"): Fl = [l for l in Fl if not l.startswith(tuple(opt["fabl"]))]
        R.ext(Fl)
        R.ext(ts.at("redw"))
        R("s_nop 3")
        for q in range(3):
            R(f"s_waitcnt lgkmcnt({[15, 8, 0][q] if not ts.on else 0})")
            for jj in range(2):
                for i in range(4):
                    a = acc3[i][2*w+jj]; b = free[q*8 + jj*4 + i]
                    for r in (0, 2): R(f"v_pk_add_f32 {a.sub(r,2)}, {a.sub(r,2)}, {b.sub(r,2)}")
        for jj in range(2):
            for ip in range(2):
                X, Y = acc3[2*ip][2*w+jj], acc3[2*ip+1][2*w+jj]
                Dd = S[0].sub(4*(jj*2+ip), 4)
                R(f"v_cvt_pk_bf16_f32 {Dd[0]}, {X[0]}, {X[1]}\nv_cvt_pk_bf16_f32 {Dd[1]}, {X[2]}, {X[3]}")
                R(f"v_cvt_pk_bf16_f32 {Dd[2]}, {Y[0]}, {Y[1]}\nv_cvt_pk_bf16_f32 {Dd[3]}, {Y[2]}, {Y[3]}")
                R(f"s_nop 1\nv_permlane16_swap_b32 {Dd[0]}, {Dd[2]}\nv_permlane16_swap_b32 {Dd[1]}, {Dd[3]}")
                R(f"buffer_store_dwordx4 {Dd}, {T[1]}, {srd(S_OUT)}, s{sT0+jj} offen offset:{ip*64} {opt.get('outflag', '')}")
        if trace:
            R(f"""s_waitcnt vmcnt(0)
            s_memrealtime s[100:101]
            s_waitcnt lgkmcnt(0)
            s_lshl_b64 exec, 1, s81
            v_mov_b32 v0, s100
            s_mov_b64 exec, -1
            s_lshl_b32 s80, s2, 2
            s_add_u32 s80, s80, s{sW}
            s_lshl_b32 s80, s80, 8
            s_add_u32 s80, s80, {TS_OFF}
            v_lshlrev_b32 {T[3]}, 2, {vL}
            buffer_store_dword v0, {T[3]}, {srd(S_WS)}, s80 offen
            s_waitcnt vmcnt(0) ; TRACE""")
        if opt.get("dbgt"):
            R(f"""s_waitcnt vmcnt(0) lgkmcnt(0)
            s_memrealtime s[100:101]
            s_waitcnt lgkmcnt(0)
            s_mov_b32 s{S_C}, s{P_DBG}
            s_mov_b32 s{S_C+1}, s{P_DBG+1}
            s_mov_b32 s{S_C+2}, 256
            s_mov_b64 exec, 1""")
            for i in range(10):
                R(f"""s_sub_u32 s80, s{82+2*i}, s{sNonce}
                s_add_u32 s80, s80, 1000
                v_mov_b32 {T[3]}, s80
                buffer_atomic_umax {T[3]}, {vZero}, {srd(S_C)}, 0 offen offset:{8 + 4*i}""")
            R("s_waitcnt vmcnt(0)")
        else:
            R.ext(ts.flush(S_WS, sW, S[1].base))
        R("s_endpgm")
        return R
    for w in (3, 0, 1, 2):
        R = fin(w)
        probs += check_hazards(LPREV[-10:] + R.lines, f"fin{w}")
        A(f"P3_FIN{w}:\n; @@PAD@@"); A.ext(R.lines)
    A.ext(slow1.lines)
    A("P3_SLOWH:"); A.ext(spin("P3_SH", hpoll, [vFl[k] for k in range(4)], "P3_HOK"))
    A("P3_SLOWO:"); A.ext(spin("P3_SO", opoll, [vFl[0]], "P3_OOK"))

    F = Asm()
    F("P2_FALLBACK:")
    for ab in range(2): F(f"v_mov_b32 {T[ab]}, 0xff800000")
    F(f"s_mov_b32 s{sT0}, {KV_OFF}")
    F("P2_FB1:")
    for t in range(2): F(f"buffer_load_dwordx4 {K[0][t]}, {vL16}, {srd(S_WS)}, s{sT0} offen offset:{t*1024} {SC1}")
    F("s_waitcnt vmcnt(0)")
    for ab in range(2):
        F(f"v_mfma_f32_32x32x16_bf16 {S[ab]}, {K[0][0]}, {Q[ab][0]}, 0\nv_mfma_f32_32x32x16_bf16 {S[ab]}, {K[0][1]}, {Q[ab][1]}, {S[ab]}")
    F("s_nop 15")
    for ab in range(2):
        for r in range(0, 16, 2): F(f"v_max3_f32 {T[ab]}, {S[ab][r]}, {S[ab][r+1]}, {T[ab]}")
    F(f"s_add_u32 s{sT0}, s{sT0}, 4096\ns_cmp_lt_u32 s{sT0}, {KV_OFF + 262144}\ns_cbranch_scc1 P2_FB1")
    for ab in range(2): F(f"v_mov_b32 {T[2+ab]}, {T[ab]}")
    F("s_nop 1")
    for ab in range(2): F(f"v_permlane32_swap_b32 {T[ab]}, {T[2+ab]}")
    for ab in range(2): F(f"v_max_f32 {vFl[ab]}, {T[ab]}, {T[2+ab]}")
    for ab in range(2):
        for r in range(16): F(f"v_mov_b32 {O[ab][r]}, 0")
        for r in range(4): F(f"v_mov_b32 {Lc[ab][r]}, 0")
    F(f"s_mov_b32 s{sT0}, {KV_OFF}")
    F("P2_FB2:")
    for t in range(2): F(f"buffer_load_dwordx4 {K[0][t]}, {vL16}, {srd(S_WS)}, s{sT0} offen offset:{t*1024} {SC1}")
    for t in range(2): F(f"buffer_load_dwordx4 {V[0][t]}, {vL16}, {srd(S_WS)}, s{sT0} offen offset:{2048 + t*1024} {SC1}")
    F("s_waitcnt vmcnt(0)")
    for ab in range(2):
        F(f"v_mfma_f32_32x32x16_bf16 {S[ab]}, {K[0][0]}, {Q[ab][0]}, 0\nv_mfma_f32_32x32x16_bf16 {S[ab]}, {K[0][1]}, {Q[ab][1]}, {S[ab]}")
    F("s_nop 15")
    for ab in range(2):
        for r in range(16): F(f"v_sub_f32 {S[ab][r]}, {S[ab][r]}, {vFl[ab]}")
        for r in range(16): F(f"v_exp_f32 {S[ab][r]}, {S[ab][r]}")
        F("s_nop 0")
        for r in range(8): F(f"v_cvt_pk_bf16_f32 {P[ab][r]}, {S[ab][2*r]}, {S[ab][2*r+1]}")
    F("s_nop 1")
    for ab in range(2):
        for u_ in range(2):
            F(f"v_mfma_f32_32x32x16_bf16 {O[ab]}, {V[0][u_]}, {P[ab].sub(4*u_,4)}, {O[ab]}")
            if u_ == 0: F(lsum(ab))
    F(f"s_add_u32 s{sT0}, s{sT0}, 4096\ns_cmp_lt_u32 s{sT0}, {KV_OFF + 262144}\ns_cbranch_scc1 P2_FB2")
    F("s_nop 15")
    for ab in range(2): F(f"v_add_f32 {Lc[ab][0]}, {Lc[ab][0]}, {Lc[ab][1]}")
    F("s_branch P2_FINISH")
    F("L_END:\ns_endpgm")
    probs += check_hazards(F.lines, "fb")
    A.ext(F.lines)
    for p_ in probs: print("PROBLEM", p_)
    launch = f"; @launch grid=(256,1,1) block=(256,1,1) lds=163840"
    return launch, A.text(), kdesc(NAME, 512, 256)

HDR = open("gated_mix__grouped_kv_mqa__glu_gated_reglu__prompt.s.ref").read().split("; Override launch")[0]
def build(opt=None):
    l, t, d = gen(opt)
    txt = HDR + l + "\n" + '.amdgcn_target "amdgcn-amd-amdhsa--gfx950"\n.text\n' + t + d
    if (opt or {}).get("touch", 3):
        import touch
        txt, pads = touch.apply(txt, NAME, [("P1_G0", "P1_MID"), ("P1_MID", "P2_PRE"), ("P2_POLL_OK", (opt or {}).get("tend", "P3_FIN3")), ("P3_FIN3", "P1_SLOWN")][:1 + (opt or {}).get("touch", 3)], (opt or {}).get("tnl", 1), (opt or {}).get("talign", 0), (opt or {}).get("toff", 0x300))
    if (opt or {}).get("skip3"):
        import skip3
        txt = skip3.apply(txt, NAME, *opt["skip3"])
    return txt
if __name__ == "__main__":
    import sys, json
    out = sys.argv[1] if len(sys.argv) > 1 else "gated_mix__grouped_kv_mqa__glu_gated_reglu__prompt.s"
    opt = json.loads(sys.argv[2]) if len(sys.argv) > 2 else {}
    open(out, "w").write(build(opt))
```
